```python
import torch

def _softmax(x, axis=-1):
    return torch.softmax(x, dim=axis)

def _gelu(x):
    return torch.nn.functional.gelu(x, approximate='tanh')

def _silu(x):
    return torch.nn.functional.silu(x)

def _sigmoid(x):
    return torch.sigmoid(x)

def _layernorm(x, axis=-1, eps=1e-05):
    m = x.mean(dim=axis, keepdim=True)
    v = x.var(dim=axis, keepdim=True, unbiased=False)
    return (x - m) / torch.sqrt(v + eps)

def _scatter_add(tgt, idx, src, axis=0):
    return tgt.clone().index_add_(axis, idx, src)

def _segment_sum(src, seg, n):
    out = torch.zeros((n,) + src.shape[1:], dtype=src.dtype)
    return out.index_add_(0, seg, src)

def _pad(x, pw):
    flat = tuple((v for pair in reversed(pw) for v in pair))
    return torch.nn.functional.pad(x, flat)
kernel_name = 'recurrent_scan__memory_aug_recurrent_mem_tr__dense_activation_squared_relu__prompt'

def setup_inputs():

    _w = lambda a: (lambda t: t.to(torch.bfloat16) if t.is_floating_point() else t)(torch.as_tensor(a))

    def _A_setup():
        B, S, Dm = (1, 2048, 448)
        H, Dh = (16, 256)
        M, seg = (8, 32)
        seg = min(seg, S)
        S = S // seg * seg
        return {'x': _w((lambda *s: torch.randn(*s, dtype=torch.bfloat16) * 0.05)(B, S, Dm)), 'mem0': _w((lambda *s: torch.randn(*s, dtype=torch.bfloat16) * 0.05)(B, M, Dm)), 'Wq': _w((lambda *s: torch.randn(*s, dtype=torch.bfloat16) * 1.6)(Dm, H, Dh) * Dm ** (-0.5)), 'Wk': _w((lambda *s: torch.randn(*s, dtype=torch.bfloat16) * 1.6)(Dm, H, Dh) * Dm ** (-0.5)), 'Wv': _w((lambda *s: torch.randn(*s, dtype=torch.bfloat16) * 0.05)(Dm, H, Dh) * Dm ** (-0.5)), 'Wo': _w((lambda *s: torch.randn(*s, dtype=torch.bfloat16) * 0.05)(H, Dh, Dm) * (H * Dh) ** (-0.5)), 'seg_len': seg}
    _A_in = _A_setup()

    def _B_setup():
        B, S, D, F = (1, 2048, 448, 1792)
        return {'x': _w((lambda *s: torch.randn(*s, dtype=torch.bfloat16) * 0.05)(B, S, D)), 'w1': _w((lambda *s: torch.randn(*s, dtype=torch.bfloat16) * 0.05)(D, F)), 'b1': _w((lambda *s: torch.randn(*s, dtype=torch.bfloat16) * 0.4)(F)), 'w2': _w((lambda *s: torch.randn(*s, dtype=torch.bfloat16) * 0.05)(F, D)), 'b2': _w((lambda *s: torch.randn(*s, dtype=torch.bfloat16) * 1.6)(D))}
    _B_in = _B_setup()
    return {'A_x': _A_in['x'], 'A_mem0': _A_in['mem0'], 'A_Wq': _A_in['Wq'], 'A_Wk': _A_in['Wk'], 'A_Wv': _A_in['Wv'], 'A_Wo': _A_in['Wo'], 'A_seg_len': _A_in['seg_len'], 'B_x': _B_in['x'], 'B_w1': _B_in['w1'], 'B_b1': _B_in['b1'], 'B_w2': _B_in['w2'], 'B_b2': _B_in['b2']}

def reference(A_x, A_mem0, A_Wq, A_Wk, A_Wv, A_Wo, A_seg_len, B_x, B_w1, B_b1, B_w2, B_b2):

    def _A_ref(x, mem0, Wq, Wk, Wv, Wo, seg_len):
        B, S, Dm = x.shape
        H, Dh = (Wq.shape[1], Wq.shape[2])
        M = mem0.shape[1]
        scale = Dh ** (-0.5)
        n_seg = S // seg_len
        L = M + seg_len
        idx = torch.arange(L)
        mask = (idx[:, None] < M) | (idx[:, None] >= idx[None, :])
        mem = mem0
        outs = []
        for s in range(n_seg):
            xs = x[:, s * seg_len:(s + 1) * seg_len, :].clone()
            h = torch.concatenate([mem, xs], axis=1)
            q = torch.einsum('btd,dhe->bhte', h, Wq)
            k = torch.einsum('btd,dhe->bhte', h, Wk)
            v = torch.einsum('btd,dhe->bhte', h, Wv)
            scores = torch.einsum('bhqe,bhke->bhqk', q, k) * scale
            scores = torch.where(mask[None, None], scores, -1000000000.0)
            p = _softmax(scores, axis=-1)
            o = torch.einsum('bhqk,bhke->bhqe', p, v)
            o = torch.einsum('bhte,hed->btd', o, Wo)
            mem = o[:, :M, :].clone()
            outs.append(o[:, M:, :])
        return torch.concatenate(outs, axis=1)

    def _B_ref(x, w1, b1, w2, b2):
        h = torch.einsum('bsd,df->bsf', x, w1) + b1
        zero = torch.zeros_like(h)
        r = torch.where(h > zero, h, zero)
        h = r * r
        out = torch.einsum('bsf,fd->bsd', h, w2) + b2
        return out
    x = A_x
    xn = _layernorm(x, axis=-1)
    s = _A_ref(xn, A_mem0, A_Wq, A_Wk, A_Wv, A_Wo, A_seg_len)
    g = _silu(_B_ref(xn, B_w1, B_b1, B_w2, B_b2))
    return x + s * g
```

```python
import re

REG_RE = re.compile(r'^(-?)(\|?)(v|a|s)(\d+)(\|?)$')
RNG_RE = re.compile(r'^(-?)(v|a|s)\[(\d+):(\d+)\]$')

def regs_of(op):
    op = op.strip()
    if op.startswith('abs(') and op.endswith(')'):
        op = op[4:-1]
    if op.startswith('-abs(') and op.endswith(')'):
        op = op[5:-1]
    m = REG_RE.match(op)
    if m:
        return [(m.group(3), int(m.group(4)))]
    m = RNG_RE.match(op)
    if m:
        return [(m.group(2), i) for i in range(int(m.group(3)), int(m.group(4)) + 1)]
    if op == 'vcc':
        return [('s', 'vcc')]
    if op in ('vcc_lo', 'vcc_hi'):
        return [('s', 'vcc')]
    if op == 'exec' or op in ('exec_lo', 'exec_hi'):
        return [('s', 'exec')]
    if op == 'm0':
        return [('s', 'm0')]
    return []

TRANS = ('v_exp_f32', 'v_log_f32', 'v_rcp_f32', 'v_rsq_f32', 'v_sqrt_f32', 'v_sin_f32', 'v_cos_f32', 'v_rcp_iflag_f32')

class Ins:
    __slots__ = ('text', 'op', 'kind', 'rd', 'wr', 'srcc', 'srcab', 'passes', 'label', 'target', 'dpp', 'nops',
                 'store_data', 'lds_dma', 'uncond', 'sgpr_const_rd', 'addr_sgpr')
    def __init__(self, text):
        self.text = text
        self.label = None; self.target = None
        self.rd = set(); self.wr = set(); self.srcc = set(); self.srcab = set()
        self.passes = 0; self.dpp = False; self.nops = 0; self.store_data = set(); self.lds_dma = False
        self.uncond = False
        t = text.split(';')[0].strip()
        if t.endswith(':') and ' ' not in t:
            self.kind = 'label'; self.label = t[:-1]; self.op = ''
            return
        if not t or t.startswith('.'):
            self.kind = 'dir'; self.op = ''
            return
        parts = t.split(None, 1)
        op = parts[0]; self.op = op
        rest = parts[1] if len(parts) > 1 else ''
        ops = []; cur = ''; depth = 0
        for ch in rest:
            if ch in '[(': depth += 1
            if ch in '])': depth -= 1
            if ch == ',' and depth == 0:
                ops.append(cur.strip()); cur = ''
            else:
                cur += ch
        if cur.strip(): ops.append(cur.strip())
        mods = ''
        if ops:
            last = ops[-1].split(None, 1)
            if len(last) > 1 and not last[0].endswith('('):
                ops[-1] = last[0]; mods = last[1]
        R = lambda o: set(regs_of(o))
        if op.startswith('v_mfma') or op.startswith('v_smfmac'):
            self.kind = 'mfma'
            self.passes = 8 if '32x32' in op else 4
            self.wr = R(ops[0])
            self.srcab = R(ops[1]) | R(ops[2])
            if op.startswith('v_smfmac'):
                self.srcc = R(ops[0]); self.srcab |= R(ops[3])
            else:
                self.srcc = R(ops[3])
            self.rd = self.srcab | self.srcc
        elif op.startswith('v_'):
            self.kind = 'valu'
            self.dpp = ('_dpp' in op) or ('row_' in mods) or ('quad_perm' in mods)
            if op.startswith('v_cmp'):
                self.wr = R(ops[0]);
                for o in ops[1:]: self.rd |= R(o)
            elif op.startswith('v_permlane') or op.startswith('v_swap'):
                self.wr = R(ops[0]) | R(ops[1]); self.rd = set(self.wr)
            elif op.startswith('v_add_co') or op.startswith('v_addc_co') or op.startswith('v_sub_co'):
                self.wr = R(ops[0]) | R(ops[1])
                for o in ops[2:]: self.rd |= R(o)
            elif op == 'v_nop':
                pass
            else:
                self.wr = R(ops[0])
                for o in ops[1:]: self.rd |= R(o)
                if 'fmac' in op or op.startswith('v_writelane') or self.dpp or 'dot2c' in op:
                    self.rd |= self.wr
        elif op.startswith('ds_'):
            self.kind = 'ds'
            if op.startswith('ds_read') or op.startswith('ds_bpermute') or op.startswith('ds_swizzle') or '_rtn' in op:
                self.wr = R(ops[0])
                for o in ops[1:]: self.rd |= R(o)
            else:
                for o in ops: self.rd |= R(o)
        elif op.startswith('buffer_') or op.startswith('global_'):
            self.kind = 'vmem'
            islds = bool(re.search(r'\blds\b', mods)) or 'load_lds' in op
            if op in ('buffer_wbl2', 'buffer_inv'):
                pass
            elif islds:
                self.lds_dma = True
                for o in ops: self.rd |= R(o)
                self.rd.add(('s', 'm0'))
            elif '_load' in op:
                self.wr = R(ops[0])
                for o in ops[1:]: self.rd |= R(o)
            elif '_store' in op:
                for o in ops: self.rd |= R(o)
                d = R(ops[0]) if op.startswith('buffer_') else R(ops[1])
                if len(d) >= 3: self.store_data = d
            elif '_atomic' in op:
                for o in ops: self.rd |= R(o)
                if 'sc0' in mods: self.wr = R(ops[0])
        elif op.startswith('s_'):
            self.kind = 'salu'
            if op == 's_nop':
                self.nops = int(ops[0], 0) + 1
            elif op.startswith('s_cbranch') or op == 's_branch':
                self.kind = 'branch'; self.target = ops[0]; self.uncond = (op == 's_branch')
                if 'vcc' in op: self.rd.add(('s', 'vcc'))
                if 'exec' in op: self.rd.add(('s', 'exec'))
            elif op == 's_endpgm':
                self.kind = 'end'
            elif op.startswith('s_cmp') or op.startswith('s_bitcmp') or op in ('s_waitcnt', 's_barrier', 's_sleep', 's_setprio'):
                for o in ops: self.rd |= R(o)
            else:
                if ops: self.wr = R(ops[0])
                for o in ops[1:]: self.rd |= R(o)
                if 'saveexec' in op: self.wr.add(('s', 'exec'))
        else:
            raise ValueError('cannot parse: ' + text)

def vg(s): return {r for r in s if r[0] in 'va'}
def sg(s): return {r for r in s if r[0] == 's'}

def required(p, c):
    n = 0
    if p.kind == 'valu':
        w = vg(p.wr)
        if c.kind == 'mfma' and w & c.rd: n = max(n, 2)
        if c.kind == 'valu':
            if c.dpp and w & c.rd: n = max(n, 2)
            if c.op.startswith('v_permlane') and w & c.rd: n = max(n, 2)
            if (c.op.startswith('v_readlane') or c.op.startswith('v_readfirstlane')) and w & c.rd: n = max(n, 1)
            if any(p.op.startswith(t) for t in TRANS) and not any(c.op.startswith(t) for t in TRANS) and w & c.rd: n = max(n, 1)
            if ('sdwa' in p.op or 'op_sel' in p.text and not p.op.startswith('v_pk')) and w & (c.rd | c.wr): n = max(n, 1)
        ws = sg(p.wr)
        if ws:
            if c.kind == 'valu' and ws & c.rd:
                n = max(n, 4 if (c.op.startswith('v_readlane') or c.op.startswith('v_writelane')) else 2)
            if c.kind == 'vmem' and ws & c.rd: n = max(n, 5)
            if ('s', 'exec') in ws:
                if c.kind == 'mfma': n = max(n, 4)
                if c.kind == 'valu': n = max(n, 5 if c.dpp else 4)
    elif p.kind == 'mfma':
        big = p.passes == 8
        if c.kind == 'mfma':
            if p.wr & c.srcab: n = max(n, 12 if big else 8)
            if p.wr & c.srcc:
                if not (p.wr == c.srcc and p.op == c.op): n = max(n, 10 if big else 6)
            if (p.wr & c.wr) and not (p.wr & c.srcc): n = max(n, 10 if big else 6)
        elif c.kind in ('valu', 'ds', 'vmem'):
            if p.wr & (c.rd | c.wr): n = max(n, 12 if big else 8)
            if c.kind == 'valu' and p.srcc & c.wr: n = max(n, 7 if big else 3)
    elif p.kind == 'salu':
        if ('s', 'm0') in p.wr and (c.lds_dma or 'addtid' in c.op): n = max(n, 1)
    elif p.kind == 'vmem':
        if p.store_data and c.kind in ('valu', 'ds', 'vmem', 'mfma') and p.store_data & c.wr: n = max(n, 2)
    return n

MAXW = 12

class Asm:
    def __init__(self):
        self.lines = []
        self.uid = 0
    def __call__(self, text):
        for l in text.split('\n'):
            l = l.strip()
            if l: self.lines.append(l)
        return self
    def label(self, name): self.lines.append(name + ':')
    def newlabel(self, base):
        self.uid += 1
        return f'{base}_{self.uid}'
    def text(self): return '\n'.join(self.lines)

def fix_hazards(lines, mfma_time=True, verbose=False):
    ins = [Ins(l) for l in lines]
    total = 0
    while True:
        labels = {x.label: i for i, x in enumerate(ins) if x.kind == 'label'}
        need = {}
        for i, p in enumerate(ins):
            if p.kind not in ('valu', 'mfma', 'salu', 'vmem'): continue
            if p.kind == 'salu' and ('s', 'm0') not in p.wr: continue
            if p.kind == 'vmem' and not p.store_data: continue
            if p.kind == 'valu' and not p.wr: continue
            stack = [(i + 1, 0, (p.passes - 1) if (p.kind == 'mfma' and mfma_time) else 0)]
            seen = set()
            while stack:
                j, el, busy = stack.pop()
                while j < len(ins) and el < MAXW:
                    if (j, el, busy) in seen: break
                    seen.add((j, el, busy))
                    c = ins[j]
                    if c.kind in ('label', 'dir'):
                        j += 1; continue
                    if c.kind == 'end': break
                    el_here = el
                    if c.kind == 'mfma' and busy > 0:
                        el_here = el + busy
                    r = required(p, c)
                    if r > el_here:
                        need[j] = max(need.get(j, 0), r - el)
                    step = c.nops if c.nops else 1
                    if c.kind == 'mfma' and mfma_time:
                        el = el_here + 1; busy = c.passes - 1
                    else:
                        el += step; busy = max(0, busy - step)
                    if c.kind == 'branch':
                        if c.target in labels: stack.append((labels[c.target], el, busy))
                        if c.uncond: break
                    j += 1
        if not need: break
        out = []; last = -100
        for j, x in enumerate(ins):
            if j in need and j - last > 14:
                n = need[j]; total += n; last = j
                if verbose: print('nop', n, 'before', x.text)
                while n > 0:
                    k = min(n, 16); out.append(Ins(f's_nop {k-1}')); n -= k
            out.append(x)
        ins = out
    return [x.text for x in ins], total
```

```python
import sys
sys.path.insert(0, 'gen')
from asmdsl import Asm, fix_hazards
NAME = 'recurrent_scan__memory_aug_recurrent_mem_tr__dense_activation_squared_relu__prompt'

def kernel_text(name, lines):
    return f'.text\n.globl {name}\n.p2align 8\n.type {name},@function\n{name}:\n' + '\n'.join(lines) + '\n'
def descriptor(name, vgpr, accum, sgpr=102):
    return f""".amdhsa_kernel {name}
  .amdhsa_next_free_vgpr {vgpr}
  .amdhsa_next_free_sgpr {sgpr}
  .amdhsa_accum_offset {accum}
  .amdhsa_group_segment_fixed_size 0
  .amdhsa_kernarg_size 120
  .amdhsa_user_sgpr_count 2
  .amdhsa_user_sgpr_kernarg_segment_ptr 1
  .amdhsa_system_sgpr_workgroup_id_x 1
  .amdhsa_float_denorm_mode_32 3
.end_amdhsa_kernel
"""
def assemble(kernels, header=''):
    out = header
    for k in kernels: out += f'; @launch kernel={k[0]} grid=({k[2]},1,1) block=({k[3]},1,1) lds={k[4]}\n'
    out += '.amdgcn_target "amdgcn-amd-amdhsa--gfx950"\n'
    seen = set()
    for k in kernels:
        if k[0] in seen: continue
        seen.add(k[0])
        lines, n = fix_hazards(k[1])
        out += kernel_text(k[0], lines)
    out += '.section .rodata,"a"\n'
    seen = set()
    for k in kernels:
        if k[0] in seen: continue
        seen.add(k[0])
        out += '.p2align 6\n' + descriptor(k[0], k[5], k[6])
    return out
```

```python
import numpy as np

class X:
    def __init__(self, op, *a): self.op = op; self.a = a
    def __add__(s, o): return X('add', s, wrap(o))
    __radd__ = __add__
    def __sub__(s, o): return X('sub', s, wrap(o))
    def __rsub__(s, o): return X('sub', wrap(o), s)
    def __mul__(s, o): return X('mul', s, wrap(o))
    __rmul__ = __mul__
    def __and__(s, o): return X('and', s, wrap(o))
    def __or__(s, o): return X('or', s, wrap(o))
    def __xor__(s, o): return X('xor', s, wrap(o))
    def __rshift__(s, o): return X('shr', s, wrap(o))
    def __lshift__(s, o): return X('shl', s, wrap(o))
    def div(s, c): return X('div', s, wrap(c))
    def mod(s, c): return s - s.div(c) * c
    def min(s, o): return X('min', s, wrap(o))
    def max(s, o): return X('max', s, wrap(o))
def wrap(o): return o if isinstance(o, X) else X('const', int(o))
def V(name): return X('v', name)
def Sg(name): return X('s', name)
def sel_lt(a, b, t, f): return X('sel_lt', wrap(a), wrap(b), wrap(t), wrap(f))

def ev(e, env):
    o = e.op
    if o == 'const': return np.uint32(e.a[0] & 0xFFFFFFFF)
    if o in ('v', 's'): return np.asarray(env[e.a[0]], dtype=np.uint32)
    a = [np.asarray(ev(x, env), dtype=np.int64) + np.zeros(64, dtype=np.int64) for x in e.a]
    m = 0xFFFFFFFF
    if o == 'add': r = a[0] + a[1]
    elif o == 'sub': r = a[0] + (2**32) - a[1]
    elif o == 'mul': r = (a[0].astype(np.uint64) * a[1].astype(np.uint64) & np.uint64(m)).astype(np.int64)
    elif o == 'and': r = a[0] & a[1]
    elif o == 'or': r = a[0] | a[1]
    elif o == 'xor': r = a[0] ^ a[1]
    elif o == 'shr': r = a[0] >> a[1]
    elif o == 'shl': r = a[0] << a[1]
    elif o == 'div':
        c = int(e.a[1].a[0]); mg = -(-(1 << 18) // c)
        r = (a[0] * mg) >> 18
        assert np.all(r == a[0] // c), 'magic division out of range'
    elif o == 'min': r = np.minimum(a[0], a[1])
    elif o == 'max': r = np.maximum(a[0], a[1])
    elif o == 'sel_lt': r = np.where(a[0] < a[1], a[2], a[3])
    return (r & m).astype(np.uint32)

def inline(c): return -16 <= c <= 64

class Emitter:
    def __init__(self, asm, temps):
        self.A = asm; self.free = list(temps)
    def _alloc(self):
        return self.free.pop()
    def _val(self, e):
        if e.op == 'const':
            c = e.a[0]
            return (str(c) if inline(c) else hex(c & 0xFFFFFFFF)), False, None
        if e.op == 'v': return e.a[0], True, None
        if e.op == 's': return e.a[0], False, None
        t = self._alloc(); self.emit(e, t); return t, True, t
    def _vreg(self, e):
        op, isv, t = self._val(e)
        if isv: return op, t
        t = self._alloc(); self.A(f'v_mov_b32 {t}, {op}'); return t, t
    def _rel(self, *ts):
        for t in ts:
            if t: self.free.append(t)
    def emit(self, e, dst):
        A = self.A; o = e.op
        if o in ('const', 'v', 's'):
            op, _, _ = self._val(e); A(f'v_mov_b32 {dst}, {op}'); return
        if o in ('add', 'and', 'or', 'xor', 'min', 'max'):
            a, b = e.a
            if a.op not in ('const', 's') and b.op in ('const', 's'): a, b = b, a
            x, _, ta = self._val(a); y, tb = self._vreg(b)
            nm = {'add': 'v_add_u32', 'and': 'v_and_b32', 'or': 'v_or_b32', 'xor': 'v_xor_b32', 'min': 'v_min_u32', 'max': 'v_max_u32'}[o]
            A(f'{nm} {dst}, {x}, {y}'); self._rel(ta, tb); return
        if o == 'sub':
            x, _, ta = self._val(e.a[0]); y, tb = self._vreg(e.a[1])
            A(f'v_sub_u32 {dst}, {x}, {y}'); self._rel(ta, tb); return
        if o in ('shr', 'shl'):
            x, _, ta = self._val(e.a[1]); y, tb = self._vreg(e.a[0])
            A(f'{"v_lshrrev_b32" if o == "shr" else "v_lshlrev_b32"} {dst}, {x}, {y}'); self._rel(ta, tb); return
        if o == 'mul':
            a, b = e.a
            if a.op == 'const' and b.op != 'const': a, b = b, a
            if b.op == 'const' and b.a[0] > 0 and (b.a[0] & (b.a[0] - 1)) == 0:
                return self.emit(X('shl', a, wrap(b.a[0].bit_length() - 1)), dst)
            x, tx = self._vreg(a); y, ty = self._vreg(b)
            A(f'v_mul_lo_u32 {dst}, {x}, {y}'); self._rel(tx, ty); return
        if o == 'div':
            c = int(e.a[1].a[0]); mg = -(-(1 << 18) // c)
            return self.emit(X('shr', X('mul', e.a[0], wrap(mg)), wrap(18)), dst)
        if o == 'sel_lt':
            t_, tt = self._vreg(e.a[2]); f_, tf = self._vreg(e.a[3])
            x, _, ta = self._val(e.a[0]); y, tb = self._vreg(e.a[1])
            A(f'v_cmp_lt_u32 vcc, {x}, {y}')
            A(f'v_cndmask_b32 {dst}, {f_}, {t_}, vcc')
            self._rel(tt, tf, ta, tb); return
        raise ValueError(o)
```

```python
S, D, H, E, F, M, SEG = 2048, 448, 16, 256, 1792, 8, 32
NSEG = S // SEG
WS_BYTES = 0x10000000
OOB = 0x40000000
XF   = 0x0000000
AF   = 0x0200000
BF   = 0x0900000
VXF  = 0x1000000
VM   = 0x2C00000
MX   = 0x3300000
MS   = 0x3400000
PS   = 0x3410000
HU1  = 0x3420000
HU2  = 0x3428000
FVX  = 0x3430000
FVM  = 0x3434000
FPX  = 0x3438000
FG   = 0x343C000
FB   = 0x3432000
FA   = 0x3433000
FX   = 0x343E000
FW   = 0x343F000
DBG  = 0x3440000
PX   = 0x3500000
W1F  = 0x3800000
W2F  = 0x3A00000
GB   = 0x3C00000
NREP = 8
VX_SEG = H * 4 * D * 16
VM_SEG = H * D * 16

def a_col(tau, rho):
    return 32 * (tau >> 1) + 8 * (rho >> 2) + 4 * (tau & 1) + (rho & 3)
def sp_row(rho):
    return 2 * (rho >> 2) + (rho & 1), (rho >> 1) & 1
def sp_rho(i, half):
    return 4 * (i >> 1) + 2 * half + (i & 1)
def tok_perm(g, j):
    return 4 * g + j if j < 4 else 16 + 4 * g + (j - 4)
N0 = [0, 1, 3, 4]
def a_quads(w):
    a, cs = w >> 1, w & 1
    return [7 * a + 4 * cs + 0, 7 * a + 4 * cs + 1, 7 * a + 4 * cs + 2, 7 * a + 3]
def a_tiles(w):
    q = a_quads(w)
    return [2 * q[0], 2 * q[0] + 1, 2 * q[1], 2 * q[1] + 1, 2 * q[2], 2 * q[2] + 1, 2 * q[3] + (w & 1)]
def ms_off(i, d0):
    kk, k = d0 >> 6, d0 & 63
    gA, q, half = k >> 4, (k >> 2) & 3, (k >> 1) & 1
    return kk * 1024 + (gA * 16 + sp_rho(i, half)) * 16 + q * 4
def ps_off(h, i, pi):
    if pi < 4:
        j = 2 * pi
        m, gA, q, half = 8 + (h >> 3), (h >> 1) & 3, 2 * (h & 1) + (j >> 2), (j >> 1) & 1
    else:
        t0 = 2 * (pi - 4)
        m = h >> 1
        gA = 2 * (h & 1) + ((t0 >> 3) & 1)
        q = 2 * ((t0 >> 2) & 1) + (t0 >> 4)
        half = (t0 >> 1) & 1
    return m * 1024 + (gA * 16 + sp_rho(i, half)) * 16 + q * 4
PX_SEG = 40960
```

```python
from asmdsl import Asm
from layout import *
import rec, workers, prep, build

BEST = dict(xpos=[12, 18, 24, 30, 36, 42, 50, 52], hu1pos=-2, hu2pos=7, mpoll=1, blate=1, mdepth=2)

def counts(A, lab, tmo):
    A(f's_mov_b32 s19, 0x40000\n{lab}:')
    A('buffer_load_dword v3, v4, s[40:43], 0 offen sc1')
    A(f's_sub_u32 s19, s19, 1\ns_cbranch_scc1 {tmo}\ns_waitcnt vmcnt(0)')
    A('v_readlane_b32 s47, v3, 0\ns_mov_b32 s46, s47')
    for x in range(1, 8): A(f'v_readlane_b32 s11, v3, {x}\ns_add_u32 s46, s46, s11')

def gen_main(A, cfg):
    A(f"""s_cmp_ge_u32 s2, 256
    s_cbranch_scc1 M_exit
    s_load_dwordx2 s[4:5], s[0:1], 112
    s_load_dwordx2 s[40:41], s[0:1], 104
    s_getreg_b32 s12, hwreg(HW_REG_XCC_ID, 0, 3)
    v_lshrrev_b32 v1, 6, v0
    v_readfirstlane_b32 s9, v1
    v_mov_b32 v2, 0x27c00
    s_waitcnt lgkmcnt(0)
    s_mov_b32 s6, {WS_BYTES}
    s_mov_b32 s7, 0x20000
    s_mov_b32 s42, 256
    s_mov_b32 s43, 0x20000""")
    if cfg.get('fakexcc'): A(cfg['fakexcc'])
    A(f"""s_cmp_lg_u32 s9, 0
    s_cbranch_scc1 M_ranked
    v_mov_b32 v3, 1
    s_lshl_b32 s11, s12, 2
    s_mov_b64 exec, 1
    buffer_atomic_add v3, off, s[40:43], s11 sc0 sc1
    s_waitcnt vmcnt(0)
    s_mov_b64 exec, -1
    v_readfirstlane_b32 s3, v3
    s_lshl_b32 s11, s12, 5
    s_cmp_lt_u32 s3, 32
    s_cselect_b32 s15, 0, 1
    s_add_u32 s3, s3, s11
    s_cmp_eq_u32 s15, 0
    s_cbranch_scc1 M_have""")
    A("""v_mov_b32 v3, 1
    s_mov_b64 exec, 1
    buffer_atomic_add v3, off, s[40:43], 0 offset:32 sc0 sc1
    s_waitcnt vmcnt(0)
    s_mov_b64 exec, -1
    v_readfirstlane_b32 s15, v3
    v_and_b32 v4, 7, v0
    v_lshlrev_b32 v4, 2, v4""")
    counts(A, 'M_ovf', 'M_exit')
    A('s_cmp_lt_u32 s46, 256\ns_cbranch_scc1 M_ovf_again\ns_mov_b32 s3, 0')
    for x in range(8):
        A(f'v_readlane_b32 s11, v3, {x}\ns_min_u32 s11, s11, 32\ns_sub_u32 s16, 32, s11')
        A(f's_cmp_lt_u32 s15, s16\ns_cbranch_scc0 M_nx{x}\ns_add_u32 s3, s11, s15\ns_add_u32 s3, s3, {32*x}\ns_branch M_have\nM_nx{x}:\ns_sub_u32 s15, s15, s16')
    A('s_endpgm\nM_ovf_again:')
    A('s_branch M_ovf')
    A("""M_have:
    v_mov_b32 v3, s3
    ds_write_b32 v2, v3
    s_waitcnt lgkmcnt(0)
M_ranked:
    s_barrier
    ds_read_b32 v3, v2
    s_waitcnt lgkmcnt(0)
    v_readfirstlane_b32 s3, v3
    s_cmp_lt_u32 s3, 32
    s_cbranch_scc1 M_rec
    s_sub_u32 s11, s3, 32
    s_and_b32 s10, s11, 63
    s_lshr_b32 s11, s11, 6
    s_cmp_eq_u32 s11, 2
    s_cbranch_scc1 M_F
    s_cmp_eq_u32 s11, 3
    s_cbranch_scc1 M_T
    s_and_b32 s12, s10, 3
    s_lshr_b32 s10, s10, 2
    s_cmp_eq_u32 s11, 1
    s_cbranch_scc1 M_Q""")
    workers.gen_V(A, cfg, 'WV', 'M_exit')
    A('M_Q:'); workers.gen_Q(A, cfg, 'WQ', 'M_exit')
    A('M_T:'); workers.gen_T(A, cfg, 'WT', 'M_exit')
    A('M_F:'); workers.gen_F(A, cfg, 'WF', 'M_exit')
    A('M_exit:\ns_endpgm')
    def start_sync(w, lab):
        A(f'v_mov_b32 v2, 0x27c00\ns_cmp_lg_u32 s9, 0\ns_cbranch_scc1 {lab}_ss')
        A('v_and_b32 v4, 7, v0\nv_lshlrev_b32 v4, 2, v4')
        counts(A, f'{lab}_cnt', 'R_exit')
        A(f's_mov_b32 s30, 0\ns_cmp_ge_u32 s47, 32\ns_cbranch_scc1 {lab}_md\ns_mov_b32 s30, 1\ns_cmp_ge_u32 s46, 256\ns_cbranch_scc1 {lab}_md')
        A(f's_branch {lab}_cnt\n{lab}_md:')
        A(f'v_min_u32 v4, 2, v0\nv_lshlrev_b32 v4, 7, v4\ns_mov_b32 s11, {FVX}\ns_mov_b32 s19, 0x40000')
        A(f'{lab}_fv:\nbuffer_load_dword v3, v4, s[4:7], s11 offen sc1\ns_sub_u32 s19, s19, 1\ns_cbranch_scc1 R_exit')
        A(f's_waitcnt vmcnt(0)\nv_cmp_gt_u32 vcc, 16, v3\ns_cbranch_vccnz {lab}_fv')
        A(f'v_mov_b32 v3, s30\nds_write_b32 v2, v3\ns_waitcnt lgkmcnt(0)\n{lab}_ss:\ns_barrier')
        A(f'ds_read_b32 v3, v2\ns_waitcnt lgkmcnt(0)\nv_readfirstlane_b32 s30, v3\ns_mov_b32 s19, {rec.SPIN_MAX}')
    c = dict(BEST); c.update(cfg)
    c.setdefault('start_sync', start_sync); c.setdefault('finish', lambda w, lab: None); c.setdefault('loop_top', lambda w, lab: None)
    A('M_rec:\ns_and_b32 s10, s3, 15\ns_cmp_ge_u32 s3, 16\ns_cbranch_scc1 M_B')
    rec.gen_A(A, c, 'RA', 'R_exit')
    A('R_exit:\ns_endpgm\nM_B:')
    rec.gen_B(A, c, 'RB', 'R_exit')

def generate(cfg={}, header=''):
    P = Asm(); prep.gen_prep(P, cfg)
    K = Asm(); gen_main(K, cfg)
    return build.assemble([('prep_kernel', P.lines, 256, 256, 32768, 448, 256),
                           ('main_kernel', K.lines, 256, 256, 163840, 512, 256)], header)

if __name__ == '__main__':
    ref = open(f'cdna_kernels/{build.NAME}.s.ref').read().split('\n')
    header = '\n'.join(l for l in ref if l.startswith(';') and '@launch' not in l and 'Override' not in l and 'grid=ceil' not in l) + '\n'
    open(f'cdna_kernels/{build.NAME}.s', 'w').write(generate({}, header))
```

```python
import numpy as np
from layout import *

def f2bf(x):
    u = np.ascontiguousarray(x, dtype=np.float32).view(np.uint32)
    r = ((u + 0x7FFF + ((u >> 16) & 1)) >> 16).astype(np.uint16)
    return r
def bf2f(u):
    return (np.ascontiguousarray(u, dtype=np.uint16).astype(np.uint32) << 16).view(np.float32)
def rb(x): return bf2f(f2bf(x))

def make_inputs(seed=0, memscale=0.05, wscale=1.0):
    rng = np.random.default_rng(seed)
    r = lambda *s: rng.standard_normal(s).astype(np.float32)
    d = {}
    d['x'] = rb(r(S, D) * 0.05)
    d['mem0'] = rb(r(M, D) * memscale)
    d['Wq'] = rb(rb(r(D, H, E) * 1.6) * D ** -0.5)
    d['Wk'] = rb(rb(r(D, H, E) * 1.6) * D ** -0.5)
    d['Wv'] = rb(rb(r(D, H, E) * 0.05 * wscale) * D ** -0.5)
    d['Wo'] = rb(rb(r(H, E, D) * 0.05 * wscale) * (H * E) ** -0.5)
    d['w1'] = rb(r(D, F) * 0.05); d['b1'] = rb(r(F) * 0.4)
    d['w2'] = rb(r(F, D) * 0.05); d['b2'] = rb(r(D) * 1.6)
    return d

def layernorm(x):
    m = rb(x.mean(-1, keepdims=True, dtype=np.float64).astype(np.float32))
    v = rb(x.astype(np.float64).var(-1, keepdims=True).astype(np.float32))
    return rb(rb(x - m) / rb(np.sqrt(rb(v + np.float32(1e-5)))))

CSC = np.float32(np.log2(np.e) / 16)
def weights(d):
    A = rb(np.einsum('dhe,fhe->hdf', d['Wq'], d['Wk'], optimize=True) * CSC)
    B = rb(np.einsum('dhe,hef->hdf', d['Wv'], d['Wo'], optimize=True))
    return A, B

def img_XF(xn):
    return f2bf(xn).reshape(128, 16, 14, 4, 8).transpose(0, 2, 3, 1, 4).copy()
def img_AF(A):
    cols = np.array([[a_col(t, r) for r in range(16)] for t in range(28)])
    Ab = f2bf(A).reshape(H, 14, 4, 8, D)
    o = Ab[..., cols]
    return o.transpose(0, 4, 1, 2, 5, 3).copy()
def img_BF(B):
    Bb = f2bf(B).reshape(H, 14, 4, 8, D)
    return Bb.transpose(0, 1, 2, 4, 3).copy()
TP = np.array([[tok_perm(g, j) for j in range(8)] for g in range(4)])
def img_VX(VX):
    v = f2bf(VX).reshape(H, NSEG, SEG, D)[:, :, TP, :]
    return v.transpose(1, 0, 2, 4, 3).copy()
MSI = np.zeros((M, D), dtype=np.int64)
for i in range(M):
    for d0 in range(0, D, 2):
        MSI[i, d0] = ms_off(i, d0) // 2; MSI[i, d0 + 1] = ms_off(i, d0) // 2 + 1
def img_MS(mem):
    o = np.zeros(3584, dtype=np.uint16); o[MSI] = f2bf(mem); return o
def unimg_MS(u): return bf2f(u[MSI])

def recurrence(xn, mem0, A, B, VX):
    mems = [mem0]; Vs = []
    mem = mem0
    for s in range(NSEG):
        V = rb(np.einsum('id,hdf->hif', mem, B, optimize=True)); Vs.append(V)
        if s == NSEG - 1: break
        Z = np.concatenate([mem, xn[s * SEG:(s + 1) * SEG]], 0)
        T = rb(np.einsum('id,hdf->hif', mem, A, optimize=True))
        Sc = np.einsum('hif,jf->hij', T, Z)
        e = np.exp2(Sc - Sc.max(-1, keepdims=True))
        P = rb(e / e.sum(-1, keepdims=True))
        W = np.concatenate([V, VX[:, s * SEG:(s + 1) * SEG]], 1)
        mem = rb(np.einsum('hij,hjf->if', P, W))
        mems.append(mem)
    return np.stack(mems), np.stack(Vs)

def reference(d):
    x = d['x']; xn = layernorm(x)
    Wq = d['Wq'].reshape(D, H * E); Wk = d['Wk'].reshape(D, H * E); Wv = d['Wv'].reshape(D, H * E); Wo = d['Wo'].reshape(H * E, D)
    L = M + SEG
    idx = np.arange(L); mask = (idx[:, None] < M) | (idx[:, None] >= idx[None, :])
    mem = d['mem0']; outs = []; mems = []
    for s in range(NSEG):
        mems.append(mem)
        h = np.concatenate([mem, xn[s * SEG:(s + 1) * SEG]], 0)
        q = rb(h @ Wq).reshape(L, H, E).transpose(1, 0, 2); k = rb(h @ Wk).reshape(L, H, E).transpose(1, 0, 2)
        v = rb(h @ Wv).reshape(L, H, E).transpose(1, 0, 2)
        sc = rb(rb(q @ k.transpose(0, 2, 1)) * np.float32(1 / 16))
        sc = np.where(mask[None], sc, np.float32(-1e9))
        e = np.exp(sc - sc.max(-1, keepdims=True)); p = rb(e / e.sum(-1, keepdims=True))
        o = rb(p @ v).transpose(1, 0, 2).reshape(L, H * E)
        o = rb(o @ Wo)
        mem = o[:M]; outs.append(o[M:])
    sA = np.concatenate(outs, 0)
    hh = rb(rb(xn @ d['w1']) + d['b1']); r = np.maximum(hh, 0); hh = rb(r * r)
    ob = rb(rb(hh @ d['w2']) + d['b2'])
    g = rb(ob / (1 + np.exp(-ob)))
    return rb(x + rb(sA * g)), dict(xn=xn, sA=sA, g=g, mems=np.stack(mems))
```

```python
from asmdsl import Asm
from expr import X, V, Sg, Emitter, ev, sel_lt
from layout import *
from rec import Wv, vr
import struct, math

def f32(x): return hex(struct.unpack('<I', struct.pack('<f', x))[0])
CSC = math.log2(math.e) / 16
W_BYTES = D * H * E * 2

def mfma(acc, a, b, c=None): return f'v_mfma_f32_16x16x32_bf16 {acc}, {a}, {b}, {c if c is not None else acc}'
def srd(A, r, lo, nbytes):
    A(f's_mov_b32 s{r}, s{lo}\ns_mov_b32 s{r+1}, s{lo+1}\ns_mov_b32 s{r+2}, {nbytes}\ns_mov_b32 s{r+3}, 0x20000')

def gen_prep(A, cfg):
    w = Wv(A, {})
    A(f"""s_cmp_ge_u32 s2, 256
    s_cbranch_scc1 P_exit
    s_load_dwordx4 s[28:31], s[0:1], 0
    s_load_dwordx8 s[36:43], s[0:1], 16
    s_load_dwordx2 s[4:5], s[0:1], 112
    v_lshrrev_b32 v1, 6, v0
    v_readfirstlane_b32 s9, v1
    v_and_b32 v0, 63, v0
    s_and_b32 s10, s2, 7
    s_lshr_b32 s11, s2, 3
    s_waitcnt lgkmcnt(0)
    s_mov_b32 s6, {WS_BYTES}
    s_mov_b32 s7, 0x20000
    s_cmp_ge_u32 s11, 28
    s_cbranch_scc1 P_misc""")
    em = Emitter(A, [f'v{i}' for i in range(8, 30)])
    l = V('v0'); g = l >> 4; rho = l & 15
    A("""s_mul_i32 s12, s11, 37
    s_lshr_b32 s12, s12, 8          ; idx / 7
    s_mul_i32 s13, s12, 7
    s_sub_u32 s13, s11, s13         ; part
    s_lshl_b32 s14, s10, 2
    s_add_u32 s14, s14, s12         ; combo
    s_and_b32 s15, s14, 1           ; 0: A, 1: B
    s_lshr_b32 s16, s14, 1          ; head
    s_lshl_b32 s17, s9, 2
    s_cmp_eq_u32 s9, 3
    s_cselect_b32 s17, 11, s17
    s_cmp_eq_u32 s15, 0
    s_cselect_b32 s20, s36, s40
    s_cselect_b32 s21, s37, s41
    s_cselect_b32 s24, s38, s42
    s_cselect_b32 s25, s39, s43""")
    A(f's_mov_b32 s22, {W_BYTES}\ns_mov_b32 s23, 0x20000\ns_mov_b32 s26, {W_BYTES}\ns_mov_b32 s27, 0x20000')
    SA, SB = 's[20:23]', 's[24:27]'
    em.emit(((rho >> 2) * 8 + (rho & 3)) * 8192 + g * 16, 'v1')
    A('s_lshl_b32 s18, s16, 9          ; h*512')
    areg = lambda k, b, ks: (lambda n: f'v[{n}:{n+3}]' if n < 256 else f'a[{n-128}:{n-125}]')(64 + ((k * 2 + b) * 8 + ks) * 4)
    breg = lambda t, ks: f'a[{(t*8+ks)*4}:{(t*8+ks)*4+3}]'
    ACCR = lambda b, t: 32 + (b * 4 + t) * 4
    def load_a(k):
        A(f's_add_u32 s19, s17, {k}\ns_min_u32 s19, s19, 13\ns_lshl_b32 s19, s19, 18\ns_add_u32 s19, s19, s18\ns_add_u32 s33, s19, 32768')
        for b in range(2):
            for ks in range(8):
                w.vmem(f'buffer_load_dwordx4 {areg(k,b,ks)}, v1, {SA}, {"s33" if b else "s19"} offen offset:{ks*64}', f'A{k}')
    A('s_cmp_eq_u32 s15, 1\ns_cbranch_scc1 P_bload')
    for t in range(4):
        A(f's_lshl_b32 s19, s13, 1\ns_add_u32 s19, s19, {t>>1}\ns_lshl_b32 s19, s19, 18\ns_add_u32 s19, s19, s18' + (f'\ns_add_u32 s19, s19, 32768' if t & 1 else ''))
        for ks in range(8): A(f'buffer_load_dwordx4 {breg(t,ks)}, v1, {SB}, s19 offen offset:{ks*64}')
    w.vm = []
    load_a(0)
    em.emit(l * 16, 'v2')
    A(f's_mul_i32 s44, s16, {28*14336}\ns_mul_i32 s19, s13, {4*14336}\ns_add_u32 s44, s44, s19\ns_add_u32 s44, s44, {AF}')
    A(f's_mov_b32 s45, 14336\ns_mov_b32 s46, 1024\ns_mov_b32 s47, {f32(CSC)}')
    A('s_branch P_gemm\nP_bload:')
    for par in range(2):
        em.emit((l >> 3) * 896 + ((l & 7) ^ (((l >> 4) & 1) * 2 + par * 4)) * 16, f'v{4+par}')
    A('s_lshl_b32 s19, s16, 8\ns_lshl_b32 s33, s9, 6\ns_add_u32 s19, s19, s33\ns_mul_i32 s19, s19, 896\ns_lshl_b32 s33, s13, 7\ns_add_u32 s19, s19, s33\ns_lshl_b32 s34, s9, 13')
    for k in range(8):
        A(f's_add_u32 m0, s34, {k*1024}\ns_add_u32 s33, s19, {k*8*896}')
        A(f'buffer_load_dwordx4 v{4+(k&1)}, {SB}, s33 offen lds')
    w.vm = []
    load_a(0)
    al = (l >> 2) & 3; c = l & 3
    f = ((al >> 1) & 1) * 2 + (g & 1) * 4
    for t in range(4):
        em.emit((g * 8 + al) * 128 + ((f ^ (2 * t)) + (c >> 1)) * 16 + (c & 1) * 8, f'v{4+t}')
    A('s_waitcnt vmcnt(16)\ns_barrier')
    for t in range(4):
        for ks in range(8):
            n = (t * 8 + ks) * 4
            A(f'ds_read_b64_tr_b16 a[{n}:{n+1}], v{4+t} offset:{ks*4096}')
            A(f'ds_read_b64_tr_b16 a[{n+2}:{n+3}], v{4+t} offset:{ks*4096+512}')
    em.emit(g * 7168 + rho * 16, 'v2')
    A(f's_mul_i32 s44, s16, {14*28672}\ns_lshl_b32 s19, s13, 10\ns_add_u32 s44, s44, s19\ns_add_u32 s44, s44, {BF}')
    A(f's_mov_b32 s45, 256\ns_mov_b32 s46, 28672\ns_mov_b32 s47, 1.0')
    A('P_gemm:')
    A('s_waitcnt vmcnt(44)'); load_a(1); A('s_waitcnt vmcnt(44)'); load_a(2)
    A('s_waitcnt lgkmcnt(0)')
    for k in range(4):
        w.wait(vm=f'A{k}')
        if k == 0: load_a(3)
        if k == 3: A('s_cmp_ge_u32 s9, 2\ns_cbranch_scc1 P_exit')
        for ks in range(8):
            for b in range(2):
                for t in range(4):
                    A(mfma(vr(ACCR(b, t), 4), areg(k, b, ks), breg(t, ks), 0 if ks == 0 else None))
        A(f's_add_u32 s19, s17, {k}\ns_mul_i32 s19, s19, s46\ns_add_u32 s19, s19, s44')
        for t in range(4):
            o = 8 + 4 * t
            for b in range(2):
                a = ACCR(b, t)
                for r in range(4): A(f'v_mul_f32 v{a+r}, s47, v{a+r}')
                A(f'v_cvt_pk_bf16_f32 v{o+2*b}, v{a}, v{a+1}\nv_cvt_pk_bf16_f32 v{o+2*b+1}, v{a+2}, v{a+3}')
            w.vmem(f'buffer_store_dwordx4 {vr(o,4)}, v2, s[4:7], s19 offen')
            if t < 3: A('s_add_u32 s19, s19, s45')
    A('s_endpgm')
    A('P_misc:')
    em = Emitter(A, [f'v{i}' for i in range(200, 230)])
    A('s_sub_u32 s12, s11, 28\ns_lshl_b32 s12, s12, 3\ns_add_u32 s12, s12, s10      ; m = 0..31')
    srd(A, 20, 28, S * D * 2); srd(A, 24, 30, M * D * 2)
    A('s_lshl_b32 s13, s12, 2\ns_add_u32 s13, s13, s9')
    em.emit(rho * 896 + g * 16, 'v1')
    A('s_mul_i32 s14, s13, 14336')
    for p in range(14): A(f'buffer_load_dwordx4 {vr(4+4*p,4)}, v1, s[20:23], s14 offen offset:{p*64}')
    tid = l + Sg('s9') * 64
    em.emit(tid * 16, 'v2')
    A('v_mov_b64 v[180:181], -1\nv_mov_b64 v[182:183], -1\nv_mov_b64 v[184:185], 0\nv_mov_b64 v[186:187], 0')
    A(f's_lshl_b32 s15, s12, 14\ns_add_u32 s15, s15, {MX}')
    for k in range(4):
        A(f'buffer_store_dwordx4 v[180:183], v2, s[4:7], s15 offen' + ('\ns_add_u32 s15, s15, 4096' if k < 3 else ''))
    A(f's_lshl_b32 s15, s12, 12\ns_add_u32 s16, s15, {HU1}\nbuffer_store_dwordx4 v[184:187], v2, s[4:7], s16 offen')
    A(f's_mov_b32 s16, {PS}\ns_cmp_lt_u32 s12, 16\ns_cselect_b32 s16, s16, {MS + 8192 - 16*4096}\ns_add_u32 s16, s16, s15')
    A('s_cmp_ge_u32 s12, 22\ns_cbranch_scc1 P_nofill\nbuffer_store_dwordx4 v[180:183], v2, s[4:7], s16 offen\nP_nofill:')
    A('s_cmp_lt_u32 s12, 30\ns_cbranch_scc1 P_nomem')
    gi = (Sg('s12') - 30) * 256 + tid
    rr = gi & 15
    em.emit(sel_lt(gi, 448, (((rr >> 2) * 2 + (rr & 1)) * 448 + (gi >> 4) * 16 + ((rr >> 1) & 1) * 2) * 2, OOB), 'v3')
    for q in range(4): A(f'buffer_load_dword v{188+q}, v3, s[24:27], 0 offen offset:{q*8}')
    em.emit(sel_lt(gi, 448, gi * 16 + MS, OOB), 'v3')
    A('s_waitcnt vmcnt(0)')
    for q in range(4): A(f'v_min_u32 v{188+q}, -2, v{188+q}')
    A('buffer_store_dwordx4 v[188:191], v3, s[4:7], 0 offen\nP_nomem:')
    A('s_waitcnt vmcnt(0)')
    for k in range(56):
        A(f'v_lshlrev_b32 v{64+2*k}, 16, v{4+k}\nv_and_b32 v{65+2*k}, 0xffff0000, v{4+k}')
    def allred(r):
        A(f'v_mov_b32 v{r+1}, v{r}\nv_permlane16_swap_b32 v{r}, v{r+1}\nv_add_f32 v{r}, v{r}, v{r+1}')
        A(f'v_mov_b32 v{r+1}, v{r}\nv_permlane32_swap_b32 v{r}, v{r+1}\nv_add_f32 v{r}, v{r}, v{r+1}')
    A('v_pk_add_f32 v[180:181], v[64:65], v[66:67]\nv_pk_add_f32 v[182:183], v[68:69], v[70:71]')
    for k in range(4, 56): A(f'v_pk_add_f32 v[{180+2*(k&1)}:{181+2*(k&1)}], v[{180+2*(k&1)}:{181+2*(k&1)}], v[{64+2*k}:{65+2*k}]')
    A('v_pk_add_f32 v[180:181], v[180:181], v[182:183]\nv_add_f32 v180, v180, v181')
    allred(180)
    A(f'v_mul_f32 v180, {f32(1/448)}, v180          ; mean')
    A('v_mov_b64 v[184:185], 0\nv_mov_b64 v[186:187], 0')
    for k in range(56):
        t = 188 + 2 * (k & 1); s_ = 184 + 2 * (k & 1)
        A(f'v_pk_add_f32 v[{t}:{t+1}], v[{64+2*k}:{65+2*k}], v[180:181] op_sel_hi:[1,0] neg_lo:[0,1] neg_hi:[0,1]')
        A(f'v_pk_fma_f32 v[{s_}:{s_+1}], v[{t}:{t+1}], v[{t}:{t+1}], v[{s_}:{s_+1}]')
    A('v_pk_add_f32 v[184:185], v[184:185], v[186:187]\nv_add_f32 v184, v184, v185')
    allred(184)
    A(f'v_mul_f32 v184, {f32(1/448)}, v184          ; variance')
    rnd = lambda r: A(f'v_cvt_pk_bf16_f32 v{r}, v{r}, v{r}\nv_and_b32 v{r}, 0xffff0000, v{r}')
    rnd(180); rnd(184)
    A(f'v_add_f32 v184, {f32(1e-5)}, v184'); rnd(184)
    A('v_sqrt_f32 v184, v184'); rnd(184)
    A('v_rcp_f32 v184, v184')
    em.emit(l * 16, 'v2')
    if XF: A(f's_add_u32 s14, s14, {XF}')
    for k in range(56):
        a = 64 + 2 * k
        A(f'v_pk_add_f32 v[{a}:{a+1}], v[{a}:{a+1}], v[180:181] op_sel_hi:[1,0] neg_lo:[0,1] neg_hi:[0,1]')
        A(f'v_cvt_pk_bf16_f32 v{a}, v{a}, v{a+1}\nv_and_b32 v{a+1}, 0xffff0000, v{a}\nv_lshlrev_b32 v{a}, 16, v{a}')
        A(f'v_pk_mul_f32 v[{a}:{a+1}], v[{a}:{a+1}], v[184:185] op_sel_hi:[1,0]')
        A(f'v_cvt_pk_bf16_f32 v{4+k}, v{a}, v{a+1}')
        if k % 4 == 3:
            p = k >> 2
            if p and p % 4 == 0: A('s_add_u32 s14, s14, 4096')
            A(f'buffer_store_dwordx4 {vr(4+4*p,4)}, v2, s[4:7], s14 offen offset:{(p%4)*1024}')
    A('P_exit:\ns_endpgm')
```

```python
from asmdsl import Asm
from expr import X, V, Sg, Emitter, ev, sel_lt, wrap
from layout import *
import numpy as np

SRD = 's[4:7]'
def vr(a, n=1): return f'v{a}' if n == 1 else f'v[{a}:{a+n-1}]'
def wreg(o):
    return f'a[{8*o}:{8*o+7}]' if o < 32 else f'v[{120+8*(o-32)}:{127+8*(o-32)}]'
def wquad(o, b):
    return f'a[{8*o+4*b}:{8*o+4*b+3}]' if o < 32 else f'v[{120+8*(o-32)+4*b}:{123+8*(o-32)+4*b}]'

class Wv:
    def __init__(self, A, cfg):
        self.A = A; self.vm = []; self.lg = []; self.cfg = cfg; self.nst = 0
    def __call__(self, t): self.A(t)
    def vmem(self, t, tag=None): self.A(t); self.vm.append(tag)
    def ds(self, t, tag=None): self.A(t); self.lg.append(tag)
    def wait(self, vm=None, lg=None):
        parts = []
        if vm is not None and vm in self.vm:
            i = len(self.vm) - 1 - self.vm[::-1].index(vm)
            parts.append(f'vmcnt({len(self.vm)-1-i})'); self.vm = self.vm[i+1:]
        if lg is not None and lg in self.lg:
            i = len(self.lg) - 1 - self.lg[::-1].index(lg)
            n = min(len(self.lg) - 1 - i, 15)
            parts.append(f'lgkmcnt({n})'); self.lg = self.lg[i+1:]
        if parts: self.A('s_waitcnt ' + ' '.join(parts))
    def wait_all_lg(self): self.A('s_waitcnt lgkmcnt(0)'); self.lg = []
    def wait_all_vm(self): self.A('s_waitcnt vmcnt(0)'); self.vm = []
    def stamp(self, name=None):
        if self.cfg.get('stamps'):
            assert self.nst < 12
            self.A(f's_memtime s[{60+2*self.nst}:{61+2*self.nst}]'); self.nst += 1
    def dump_stamps(self, lab):
        if not self.cfg.get('stamps'): return
        A = self.A
        A(f's_waitcnt lgkmcnt(0)\ns_cmp_lg_u32 s8, 6\ns_cbranch_scc1 {lab}_nocal')
        A(f's_memrealtime s[96:97]\ns_waitcnt lgkmcnt(0)\n{lab}_cal:\ns_memrealtime s[98:99]\ns_memtime s[100:101]\ns_waitcnt lgkmcnt(0)\ns_cmp_eq_u32 s96, s98\ns_cbranch_scc1 {lab}_cal')
        for k in range(12): A(f's_mov_b32 s{84+k}, 0')
        A(f'{lab}_nocal:\ns_cmp_lt_u32 s8, 8\ns_cbranch_scc1 {lab}_nodump\ns_cmp_gt_u32 s8, 57\ns_cbranch_scc1 {lab}_nodump')
        for k in range(self.nst): A(f's_sub_u32 s11, s{60+2*k}, s100\ns_add_u32 s{84+k}, s{84+k}, s11')
        A(f's_cmp_lg_u32 s8, 57\ns_cbranch_scc1 {lab}_nodump')
        A('s_lshl_b32 s11, s3, 2\ns_add_u32 s11, s11, s9\ns_lshl_b32 s11, s11, 6')
        A(f's_add_u32 s11, s11, {DBG}')
        A(f'v_mov_b32 v0, s98\nv_mov_b32 v2, 0x4000\nbuffer_store_dword v0, v2, {SRD}, s11 offen')
        for k in range(self.nst):
            A(f'v_mov_b32 v0, s{84+k}\nv_mov_b32 v1, {4*k}\nbuffer_store_dword v0, v1, {SRD}, s11 offen')
        A(f's_waitcnt vmcnt(0)\n{lab}_nodump:')

def smf(acc, a, b, idx): return f'v_smfmac_f32_16x16x64_bf16 {vr(acc,4)}, {a}, {b}, {idx}'

KM = 3
MREG = [16, 20, 24, 0, 4, 8, 12]
ACC = [28 + 4 * t for t in range(7)]
vIDX, vL16, vHUp, vHUs = 'v119', 'v118', 'v117', 'v116'
vKA = ['v115', 'v114', 'v113', 'v112', 'v111', 'v110', 'v109']
sSTEP, sW, sR = 's8', 's9', 's10'
sKK = [f's{12+t}' for t in range(7)]
sSPIN, sRETRY, sS1 = 's19', 's20', 's31'
sMO = ['s36', 's37', 's38']
SPIN_MAX = 0x80000
L_K = 131072

def common_consts(em, A, lab, rot):
    l = V('v0')
    em.emit(l & 63, 'v0')
    em.emit(sel_lt(l & 2, 1, 0x44444444, 0xEEEEEEEE), vIDX)
    em.emit(l * 16, vL16)
    A(f's_lshl_b32 s33, {sW}, 1\ns_add_u32 s33, s33, {rot}')
    for _ in range(3): A('s_cmp_ge_u32 s33, 7\ns_cselect_b32 s35, 7, 0\ns_sub_u32 s33, s33, s35')
    for t in range(7):
        A(f's_add_u32 s34, s33, {t}\ns_cmp_ge_u32 s34, 7\ns_cselect_b32 s35, 7, 0\ns_sub_u32 s34, s34, s35\ns_lshl_b32 {sKK[t]}, s34, 10')
    em.emit(L_K + l * 16, 'v1')
    for t in range(7): A(f'v_add_u32 {vKA[t]}, {sKK[t]}, v1')
    A(f's_cmp_lg_u32 {sW}, 3\ns_cbranch_scc1 {lab}_w3skip\nv_add_u32 {vKA[1]}, 7168, v1\n{lab}_w3skip:')

def step_consts(A, solo=False):
    A(f's_and_b32 s11, {sSTEP}, {0 if solo else 3}\ns_lshl_b32 s33, s11, 13\ns_add_u32 s33, s33, {MS}')
    for t in range(3): A(f's_add_u32 {sMO[t]}, s33, {sKK[t]}')
    A(f's_add_u32 {sS1}, {sSTEP}, 1')

def poll(w, lab, vp, sval, tmo, nl):
    w(f'v_mov_b32 {vp}, 0')
    if w.cfg.get('pollmask', 1): w(f's_mov_b32 exec_lo, {hex((1 << nl) - 1) if nl < 32 else -1}\ns_mov_b32 exec_hi, 0')
    w(f'{lab}:')
    if w.cfg.get('pollnop'): w(f's_nop {w.cfg["pollnop"]-1}')
    w(f'buffer_load_dword {vp}, {vHUp}, {SRD}, 0 offen sc1')
    w(f's_waitcnt vmcnt({w.cfg.get("polldepth", 40)})')
    w(f'v_cmp_gt_u32 vcc, {sval}, {vp}')
    w(f's_sub_u32 {sSPIN}, {sSPIN}, 1\ns_cbranch_scc1 {tmo}')
    w(f's_cbranch_vccnz {lab}')
    if w.cfg.get('pollmask', 1): w('s_mov_b64 exec, -1')
    w.vm = []

def zero(w, a, n):
    for i in range(a, a + n, 2): w(f'v_mov_b64 {vr(i,2)}, 0')

def sentinel_check(w, regs, tmp):
    w(f'v_max3_u32 {tmp}, v{regs[0]}, v{regs[1]}, v{regs[2]}')
    r = regs[3:]
    while len(r) >= 2:
        w(f'v_max3_u32 {tmp}, {tmp}, v{r[0]}, v{r[1]}'); r = r[2:]
    if r: w(f'v_max_u32 {tmp}, {tmp}, v{r[0]}')
    w(f'v_cmp_eq_u32 vcc, -1, {tmp}')

def weight_stream(w, fill, comb_write, lab, tmp, tmo=None, mpoll=False):
    cfg = w.cfg; ND = cfg.get('nd', 2)
    w(f'{lab}_mload:')
    w.vm = []; w.lg = []
    if mpoll:
        assert ND == 2
        for t in range(ND):
            w(f'buffer_load_dwordx4 {vr(MREG[t],4)}, {vL16}, {SRD}, {sMO[t]} offen sc1')
        if cfg.get('mnop'): w(f's_nop {cfg["mnop"]-1}')
        w(f's_waitcnt vmcnt({cfg.get("mdepth", 6)})')
        sentinel_check(w, list(range(MREG[0], MREG[0] + 8)), f'v{tmp}')
        w(f's_sub_u32 {sSPIN}, {sSPIN}, 1\ns_cbranch_scc1 {tmo}')
        w(f's_cbranch_vccnz {lab}_mload')
        w.vm = ['MP']
    else:
        for t in range(ND):
            w(f's_setprio {ND-1-t}')
            w.vmem(f'buffer_load_dwordx4 {vr(MREG[t],4)}, {vL16}, {SRD}, {sMO[t]} offen sc1', f'M{t}')
    order = [(tl, t) for t in range(KM) for tl in range(7)] + [(tl, t) for tl in range(7) for t in range(KM, 7)]
    pre = {}; mem = {}; val = {}
    ad = lambda d, n, f: d.setdefault(n, []).append(f)
    w1 = 1 if mpoll else cfg.get('w1', 3)
    for t, s0 in ((0, 0), (1, w1)):
        m = MREG[t]
        ad(pre, s0, lambda t=t: w.wait(vm=f'M{t}'))
        ad(mem, s0, lambda t=t, m=m: w.ds(f'ds_write_b128 {vKA[t]}, {vr(m,4)}'))
    if mpoll:
        bs = w1 + cfg.get('mbar', 4)
        def sync():
            w.wait_all_lg(); w('s_barrier')
        ad(pre, 20, lambda: w.wait(vm='MP'))
    else:
        m0, m1, m2 = MREG[0], MREG[1], MREG[2]
        ad(val, 1, lambda: w(f'v_max3_u32 v{tmp}, v{m0}, v{m0+1}, v{m0+2}'))
        c = w1 + 1
        ad(val, c, lambda: w(f'v_max3_u32 v{tmp}, v{tmp}, v{m0+3}, v{m1}'))
        ad(val, c + 1, lambda: w(f'v_max3_u32 v{tmp}, v{tmp}, v{m1+1}, v{m1+2}'))
        if ND == 2:
            ad(val, c + 2, lambda: w(f'v_max_u32 v{tmp}, v{tmp}, v{m1+3}'))
            c += 3
        else:
            ad(pre, c + 2, lambda: w.wait(vm='M2'))
            ad(val, c + 2, lambda: w(f'v_max3_u32 v{tmp}, v{tmp}, v{m1+3}, v{m2}'))
            ad(val, c + 3, lambda: w(f'v_max3_u32 v{tmp}, v{tmp}, v{m2+1}, v{m2+2}'))
            ad(val, c + 4, lambda: w(f'v_max_u32 v{tmp}, v{tmp}, v{m2+3}'))
            c += 5
        ad(val, c, lambda: w(f'v_cmp_eq_u32 vcc, -1, v{tmp}'))
        bs = c + cfg.get('bdelay', 2)
        def sync():
            w(f's_cbranch_vccnz {lab}_mretry')
            w.wait_all_lg(); w('s_barrier')
    ad(mem, bs, sync)
    n = 0
    for t in range(ND, 7):
        m = MREG[t]
        ad(mem, bs + n, lambda t=t, m=m: w.ds(f'ds_read_b128 {vr(m,4)}, {vKA[t]}', f'M{t}'))
        n += 1
    per = 7 - KM; base = 7 * KM
    for tl in range(6):
        s0 = base + per * (tl + 1) + 1
        ad(val, s0, lambda tl=tl: w(f'v_add_f32 v{tmp}, v{ACC[tl]}, v{ACC[tl]+2}'))
        ad(val, s0 + 1, lambda tl=tl: w(f'v_add_f32 v{tmp+1}, v{ACC[tl]+1}, v{ACC[tl]+3}'))
        ad(val, s0 + 2, lambda: w(f'v_cvt_pk_bf16_f32 v{tmp+2}, v{tmp}, v{tmp+1}'))
        ad(mem, s0 + 3, lambda tl=tl: comb_write(tl, f'v{tmp+2}'))
    fl, fv = fill(bs + n)
    for k, fs in fv.items():
        for f in fs: ad(val, k, f)
    if cfg.get('stamps'):
        for k in cfg.get('fine', [0]): ad(fl, k, lambda: w.stamp())
    for n, (tl, t) in enumerate(order):
        for f in pre.get(n, []): f()
        w.wait(vm=f'M{t}', lg=f'M{t}')
        w(smf(ACC[tl], vr(MREG[t], 4), wreg(tl * 7 + t), vIDX))
        for f in mem.get(n, []): f()
        for f in fl.get(n, []): f()
        for f in val.get(n, []): f()
    assert all(k < 49 for k in fl) and all(k < 49 for k in val)
    return [f for k in sorted(mem) if k >= 49 for f in mem[k]]

def m_retry(w, lab, tmo):
    w(f'{lab}_mretry:')
    w(f's_add_u32 {sRETRY}, {sRETRY}, 1')
    w(f's_sub_u32 {sSPIN}, {sSPIN}, 8\ns_cbranch_scc1 {tmo}\ns_waitcnt vmcnt(0) lgkmcnt(0)')
    zero(w, 28, 28)
    w(f's_branch {lab}_mload')

def emit_modes(A, cfg, lab, loop):
    if cfg.get('modes', 2) == 1:
        loop(lab, cfg.get('st', '')); return
    A(f's_cmp_lg_u32 s30, 0\ns_cbranch_scc1 {lab}_slow')
    loop(lab + 'x', '')
    A(f'{lab}_slow:')
    loop(lab + 'y', 'sc1')

def load_weights(w, addr_of):
    n = 0
    for tl in range(7):
        for t in range(7):
            for b in range(2):
                va, pre = addr_of(tl, t, b)
                w(pre)
                w(f'buffer_load_dwordx4 {wquad(tl*7+t, b)}, {va}, {SRD}, s11 offen')
                n += 1
                if n % 16 == 0: w('s_waitcnt vmcnt(32)')

A_X, A_T, A_R = 0, 65536, 77824
Z0, Z1, SACC, TSP0, TSP1, TMP = 56, 16, 80, 40, 44, 92
aKR, aKR3, aTW, aTW6, aTR, aXR, aRW, aRR = 'v108', 'v107', 'v106', 'v105', 'v104', 'v103', 'v102', 'v101'
aP, aTOUCH, aINC, aFLAG, aPOLL = 'v100', 'v99', 'v98', 'v97', 'v96'
sQ = ['s21', 's22', 's23', 's24']
sXS, sXL, sPW, sPR, sWL, sMASK = 's25', 's26', 's27', 's28', 's32', 's[52:53]'

def a_exprs():
    l = V('v0'); w = Sg(sW); h = Sg(sR)
    g = l >> 4; rho = l & 15
    half = (rho >> 1) & 1
    q0 = (w >> 1) * 7 + (w & 1) * 4; q3 = (w >> 1) * 7 + 3
    e = {}
    i = rho & 7
    kr = L_K + ((g >> 1) * 16 + (i >> 1) * 4 + (i & 1)) * 16 + (g & 1) * 8
    e[aKR] = kr + q0 * 512
    e[aKR3] = kr + q3 * 512
    tw = A_T + w * 3072 + (rho >> 2) * 192 + (rho & 1) * 32 + g * 8 + half * 4
    e[aTW] = tw
    e[aTW6] = tw + 2304 + (w & 1) * 64
    e[aTR] = A_T + w * 3072 + g * 384 + ((l >> 3) & 1) * 64 + ((l >> 2) & 1) * 32 + (l & 3) * 8
    e[aXR] = A_X + w * 8192 + l * 16
    e[aRW] = A_R + w * 1536 + g * 384 + rho * 4
    rr = l >> 5; pi = l & 31; pc = pi.min(19)
    e[aRR] = A_R + (w * 2 + rr) * 192 + sel_lt(pc, 4, pc * 8, pc * 8 + 32)
    row = w * 2 + rr
    rho_of = lambda hf: (row >> 1) * 4 + hf * 2 + (row & 1)
    pm = ((h >> 3) + 8) * 1024 + (((h >> 1) & 3) * 16 + rho_of(pi & 1)) * 16 + ((h & 1) * 2 + ((pi >> 1) & 1)) * 4
    t0 = (pc - 4) * 2
    px = (h >> 1) * 1024 + (((h & 1) * 2 + ((t0 >> 3) & 1)) * 16 + rho_of((t0 >> 1) & 1)) * 16 + (((t0 >> 2) & 1) * 2 + ((t0 >> 4) & 1)) * 4
    e[aP] = sel_lt(pi, 4, pm, sel_lt(pi, 20, px, OOB))
    return e

def check_a_exprs():
    e = a_exprs(); l = np.arange(64)
    for h in (0, 1, 7, 8, 15):
        for w in range(4):
            env = {'v0': l, sW: w, sR: h}
            p = ev(e[aP], env)
            for ln in range(64):
                pi = ln & 31
                assert p[ln] == (ps_off(h, 2 * w + (ln >> 5), pi) if pi < 20 else OOB)
check_a_exprs()

def gen_A(A, cfg, lab, tmo):
    w = Wv(A, cfg)
    em = Emitter(A, [f'v{i}' for i in range(2, 30)])
    common_consts(em, A, lab, sR if cfg.get('arot', 1) else 0)
    for k, x in a_exprs().items(): em.emit(x, k)
    l = V('v0')
    R = cfg.get('nrep', 1); RS = cfg.get('rstride', 256)
    em.emit(HU1 + (Sg('s3') & (R - 1)) * RS + (l & 31) * 4, vHUp)
    em.emit(sel_lt(l + Sg(sW) * 64, R, HU2 + l * RS + Sg(sR) * 4, OOB), vHUs)
    nt = cfg.get('ntouch', 0); pd = 3
    a = Sg(sR) * 4 + Sg(sW)
    xl = a * 4 + (l - 56)
    em.emit(sel_lt(l, nt, VXF + pd * VX_SEG + (a >> 5) * (VX_SEG // 2) + ((a & 31) * nt + l) * 128,
            sel_lt(l, 56, OOB, sel_lt(l, 60, sel_lt(xl, 224, XF + 2 * 28672 + xl * 128, OOB),
            sel_lt(l, 63, OOB, FVX + (pd + 1) * 128)))), aTOUCH)
    em.emit(sel_lt(l, 56, VX_SEG, sel_lt(l, 63, 28672, 128)), aINC)
    A(f'v_mov_b32 {aFLAG}, 0')
    A(f's_mov_b32 s52, 0xfffff\ns_mov_b32 s53, 0xfffff')
    A(f's_lshr_b32 s11, {sW}, 1')
    A(f's_mul_i32 s34, s11, 7\ns_and_b32 s35, {sW}, 1\ns_lshl_b32 s36, s35, 2\ns_add_u32 s36, s36, s34')
    for u in range(3): A(f's_add_u32 s37, s36, {u}\ns_lshl_b32 {sQ[u]}, s37, 10')
    A(f's_add_u32 s37, s34, 3\ns_lshl_b32 {sQ[3]}, s37, 10')
    A(f's_lshl_b32 {sWL}, {sW}, 13')
    A(f's_mul_i32 s38, {sR}, {28*14336}\ns_add_u32 s38, s38, {AF}')
    A(f's_mul_i32 s39, s35, 14336')
    def addr(tl, t, b):
        pre = f's_mul_i32 s11, {sQ[tl>>1]}, 28\ns_add_u32 s11, s11, s38\n'
        pre += (f's_add_u32 s11, s11, {14336*(tl&1) + 1024*b}\n' if tl < 6 else f's_add_u32 s11, s11, s39\ns_add_u32 s11, s11, {1024*b}\n')
        pre += f's_lshl_b32 s37, {sKK[t]}, 1\ns_add_u32 s11, s11, s37'
        return vL16, pre
    sXo = ['s44', 's45', 's46', 's47']; sXm = ['s48', 's49', 's50', 's51']
    def x_consts():
        A(f's_add_u32 {sXo[0]}, {sXS}, {sQ[0]}\ns_add_u32 {sXo[1]}, {sXS}, {sQ[3]}')
        A(f's_add_u32 {sXo[2]}, {sXo[0]}, 14336\ns_add_u32 {sXo[3]}, {sXo[1]}, 14336')
        A(f's_mov_b32 {sXm[0]}, {sXL}\ns_add_u32 {sXm[1]}, {sXL}, 3072\ns_add_u32 {sXm[2]}, {sXL}, 4096\ns_add_u32 {sXm[3]}, {sXL}, 7168')
    def x_m0(tt, u):
        if u in (0, 3): A(f's_mov_b32 m0, {sXm[2*tt + (u == 3)]}')
    def x_dma(tt, u, w=w):
        w.vmem(f'buffer_load_dwordx4 {vL16}, {SRD}, {sXo[2*tt + (u == 3)]} offen offset:{1024*u if u < 3 else 0} lds', 'X')
    A(f's_mov_b32 {sXS}, {XF}\ns_mov_b32 {sXL}, {sWL}')
    x_consts()
    for tt in range(2):
        for u in range(4): x_m0(tt, u); x_dma(tt, u)
    load_weights(w, addr)
    em.emit(A_T + Sg(sW) * 3072 + l * 16, 'v1')
    A('v_mov_b64 v[4:5], 0\nv_mov_b64 v[6:7], 0')
    for k in range(3): A(f'ds_write_b128 v1, v[4:7] offset:{k*1024}')
    zero(w, 28, 28); zero(w, SACC, 12)
    A(f's_mov_b32 {sSTEP}, 0\ns_mov_b32 {sSPIN}, {SPIN_MAX}\ns_mov_b32 {sRETRY}, 0')
    cfg['start_sync'](w, lab)
    A('s_waitcnt vmcnt(0) lgkmcnt(0)'); w.vm = []; w.lg = []
    def loop(lab, st):
        w = Wv(A, cfg)
        A(f'{lab}_loop:')
        cfg['loop_top'](w, lab)
        step_consts(A, cfg.get('solo'))
        A(f's_lshl_b32 s33, s11, 14\ns_add_u32 {sPW}, s33, {PS}\ns_xor_b32 {sPR}, {sPW}, 0x8000')
        A(f's_mul_i32 {sXS}, {sS1}, {0 if cfg.get("xsame") else 28672}' + (f'\ns_add_u32 {sXS}, {sXS}, {XF}' if XF else ''))
        A(f's_and_b32 s11, {sS1}, 1\ns_lshl_b32 s11, s11, 15\ns_add_u32 {sXL}, s11, {sWL}')
        x_consts()
        A(f'v_mov_b32 v{TMP+3}, {sS1}')
        if cfg.get('mpoll'):
            for r in range(MREG[0], MREG[0] + 8, 2): A(f'v_mov_b64 {vr(r,2)}, -1')
        w.stamp()
        A(f's_cmp_lg_u32 {sW}, 0\ns_cbranch_scc1 {lab}_nopoll')
        if not cfg.get('solo'): poll(w, f'{lab}_poll1', aPOLL, sSTEP, tmo, 32)
        A(f'{lab}_nopoll:\ns_barrier')
        w.stamp()
        xpos = cfg.get('xpos', [14, 19, 24, 29, 34, 39, 44, 50]); t0 = cfg.get('tslot', 99)
        touch = lambda: w.vmem(f'buffer_load_dword {aFLAG}, {aTOUCH}, {SRD}, 0 offen sc1', 'F')
        def xat(p):
            for k in range(8):
                if xpos[k] == p: x_m0(k >> 2, k & 3); x_dma(k >> 2, k & 3, w)
        def fill(f0):
            d = {}; dv = {}
            add = lambda n, f: d.setdefault(n, []).append(f)
            def kq(n, reg, areg, off, tag, ns):
                add(n, lambda: w.ds(f'ds_read_b64 {vr(reg,2)}, {areg} offset:{off}', tag))
                add(n, lambda: w.ds(f'ds_read_b64 {vr(reg+2,2)}, {areg} offset:{off+32}', tag))
                add(ns, lambda: w.wait(lg=tag))
                dv.setdefault(ns, []).append(lambda: w(f'v_swap_b32 v{reg+1}, v{reg+2}'))
            kq(f0, Z0, aKR, 0, 'K0', f0 + 5); kq(f0 + 1, Z0 + 4, aKR, 512, 'K1', f0 + 6)
            n = f0 + 2
            for tt in range(2):
                for uu in range(2):
                    add(n, lambda tt=tt, uu=uu: w.ds(f'ds_read_b128 {vr(Z0+8*(1+tt)+4*uu,4)}, {aXR} offset:{(tt*4+uu)*1024}', 'Z0')); n += 1
            for k in range(8):
                if xpos[k] < 49:
                    add(xpos[k] - 1, lambda k=k: x_m0(k >> 2, k & 3))
                    add(xpos[k], lambda k=k: x_dma(k >> 2, k & 3, w))
            if t0 < 49: add(t0, touch)
            kq(21, Z1, aKR, 1024, 'K2', 25); kq(22, Z1 + 4, aKR3, 0, 'K3', 29)
            for k, sl in enumerate((27, 30, 34, 36)):
                tt, uu = k >> 1, k & 1
                add(sl, lambda tt=tt, uu=uu: w.ds(f'ds_read_b128 {vr(Z1+8*(1+tt)+4*uu,4)}, {aXR} offset:{(tt*4+2+uu)*1024}', 'Z1'))
            add(42, lambda: w.ds(f'ds_read_b64_tr_b16 {vr(TSP0,2)}, {aTR}', 'TS0'))
            add(43, lambda: w.ds(f'ds_read_b64_tr_b16 {vr(TSP0+2,2)}, {aTR} offset:192', 'TS0'))
            return d, dv
        def tw(tl, reg):
            if tl < 6: w.ds(f'ds_write_b32 {aTW}, {reg} offset:{(tl>>1)*768 + (tl&1)*64}')
            else: w.ds(f'ds_write_b32 {aTW6}, {reg}')
        rest = weight_stream(w, fill, tw, lab, TMP, tmo, cfg.get('mpoll'))
        w.stamp()
        w.wait(lg='TS0')
        w(smf(SACC, vr(TSP0, 4), vr(Z0, 8), vIDX))
        for f in rest: f()
        w(smf(SACC + 4, vr(TSP0, 4), vr(Z0 + 8, 8), vIDX))
        w(f'v_add_f32 v{TMP}, v{ACC[6]}, v{ACC[6]+2}\nv_add_f32 v{TMP+1}, v{ACC[6]+1}, v{ACC[6]+3}')
        w(f'v_cvt_pk_bf16_f32 v{TMP+2}, v{TMP}, v{TMP+1}')
        tw(6, f'v{TMP+2}')
        w.ds(f'ds_read_b64_tr_b16 {vr(TSP1,2)}, {aTR} offset:1536', 'TS1')
        w.ds(f'ds_read_b64_tr_b16 {vr(TSP1+2,2)}, {aTR} offset:{1536+192}', 'TS1')
        w(smf(SACC + 8, vr(TSP0, 4), vr(Z0 + 16, 8), vIDX))
        xat(50)
        w.wait(lg='TS1')
        for kt in range(3): w(smf(SACC + 4 * kt, vr(TSP1, 4), vr(Z1 + 8 * kt, 8), vIDX))
        for kt in range(3):
            w(f'v_add_f32 v{56+2*kt}, v{SACC+4*kt}, v{SACC+4*kt+2}\nv_add_f32 v{57+2*kt}, v{SACC+4*kt+1}, v{SACC+4*kt+3}')
            w.ds(f'ds_write2_b32 {aRW}, v{56+2*kt}, v{57+2*kt} offset0:{16*kt} offset1:{16*kt+48}')
        hu2 = lambda: w.vmem(f'buffer_store_dword v{TMP+3}, {vHUs}, {SRD}, 0 offen {st}')
        hp = cfg.get('hu2pos', 0)
        w.stamp()
        if hp == -1: hu2()
        xat(51)
        w.wait_all_lg()
        A('s_barrier')
        for k in range(4): w.ds(f'ds_read_b64 {vr(64+2*k,2)}, {aRR} offset:{k*1536}', f'R{k}')
        if hp == 0: hu2()
        xat(52)
        w.stamp()
        w.wait(lg='R1'); w('v_pk_add_f32 v[64:65], v[64:65], v[66:67]')
        w.wait(lg='R3'); w('v_pk_add_f32 v[68:69], v[68:69], v[70:71]')
        w('v_pk_add_f32 v[64:65], v[64:65], v[68:69]')
        if hp == 1: hu2()
        w('v_max_f32 v66, v64, v65')
        for k, r in enumerate((8, 4, 2, 1)):
            if hp == 2 + k: hu2()
            xat(53 + k)
            w(f'v_max_f32_dpp v66, v66, v66 row_ror:{r} row_mask:0xf bank_mask:0xf')
        w('v_mov_b32 v67, v66')
        w('v_permlane16_swap_b32 v66, v67')
        w('v_max_f32 v66, v66, v67')
        w('v_pk_add_f32 v[64:65], v[64:65], v[66:67] op_sel_hi:[1,0] neg_lo:[0,1] neg_hi:[0,1]')
        w('v_exp_f32 v64, v64\nv_exp_f32 v65, v65')
        if hp == 6: hu2()
        w('v_add_f32 v66, v64, v65')
        w(f'v_cndmask_b32 v66, 0, v66, {sMASK}')
        for k, r in enumerate((8, 4, 2, 1)):
            if hp == 7 + k: hu2()
            xat(57 + k)
            w(f'v_add_f32_dpp v66, v66, v66 row_ror:{r} row_mask:0xf bank_mask:0xf')
        w('v_mov_b32 v67, v66\nv_permlane16_swap_b32 v66, v67\nv_add_f32 v66, v66, v67')
        w('v_rcp_f32 v66, v66')
        if hp == 11: hu2()
        w('v_pk_mul_f32 v[64:65], v[64:65], v[66:67] op_sel_hi:[1,0]')
        w('v_cvt_pk_bf16_f32 v64, v64, v65')
        w('v_min_u32 v64, -2, v64')
        w.vmem(f'buffer_store_dword v64, {aP}, {SRD}, {sPW} offen {st}')
        if hp == 99: hu2()
        w.stamp()
        w('v_mov_b32 v65, -1')
        w.vmem(f'buffer_store_dword v65, {aP}, {SRD}, {sPR} offen {st}')
        xat(99)
        A(f's_cmp_ge_u32 {sSTEP}, {NSEG-3}\ns_cbranch_scc1 {lab}_fok')
        A(f'{lab}_fchk:\nv_readlane_b32 s11, {aFLAG}, 63\ns_nop 0\ns_cmp_ge_u32 s11, 16\ns_cbranch_scc1 {lab}_fok')
        A(f's_add_u32 s11, {sSTEP}, 3\ns_lshl_b32 s11, s11, 7\ns_add_u32 s11, s11, {FVX}')
        A(f'buffer_load_dword {aFLAG}, off, {SRD}, s11 sc1')
        A(f's_sub_u32 {sSPIN}, {sSPIN}, 1\ns_cbranch_scc1 {tmo}\ns_waitcnt vmcnt(0)\ns_branch {lab}_fchk\n{lab}_fok:')
        if t0 == 99: touch()
        zero(w, 28, 28); zero(w, SACC, 12)
        w(f'v_xor_b32 {aXR}, 0x8000, {aXR}')
        if not cfg.get('xsame'): A(f'v_add_u32 {aTOUCH}, {aTOUCH}, {aINC}')
        w.dump_stamps(lab)
        A(f's_mov_b32 {sSPIN}, {SPIN_MAX}')
        A(f's_mov_b32 {sSTEP}, {sS1}\ns_cmp_lt_u32 {sSTEP}, {NSEG-1}\ns_cbranch_scc1 {lab}_loop')
        cfg['finish'](w, lab)
        A('s_endpgm')
        m_retry(w, lab, tmo)

    emit_modes(A, cfg, lab, loop)

B_VX, B_V = 0, 65536
bVW, bWR, bVR, bMS, bSEL = 'v108', 'v107', 'v106', 'v105', 'v104'
bMX, bFL, bVL, bPOLL = 'v107', 'v106', 'v105', 'v104'
bVMA = ['v99', 'v98', 'v97', 'v96']
bDM = [f'v{89+k}' for k in range(7)]
BT = 100
FACC = 96
sVS, sVL, sMW, sMR, sMXO = 's25', 's26', 's27', 's28', 's29'

def b_exprs_final():
    l = V('v0'); w = Sg(sW); j = Sg(sR)
    g = l >> 4; n = l & 15; c = w * 16 + n
    e = {}
    e[bWR] = B_VX + (g * 28 + c.min(27)) * 16
    e[bVR] = B_V + (g * 28 + c.min(27)) * 16
    i = g * 2 + (n & 1); d0 = j * 28 + (c & 30)
    k = d0 & 63
    off = (d0 >> 6) * 1024 + ((k >> 4) * 16 + (i >> 1) * 4 + ((k >> 1) & 1) * 2 + (i & 1)) * 16 + ((k >> 2) & 3) * 4
    e[bMS] = sel_lt(c, 28, off, OOB)
    e[bSEL] = sel_lt(n & 1, 1, 0x05040100, 0x03020706)
    return e
def check_b():
    e = b_exprs_final(); l = np.arange(64)
    for j in (0, 1, 5, 15):
        for w in range(2):
            p = ev(e[bMS], {'v0': l, sW: w, sR: j})
            for ln in range(64):
                c = 16 * w + (ln & 15)
                assert p[ln] == (ms_off(2 * (ln >> 4) + (ln & 1), 28 * j + (c & ~1)) if c < 28 else OOB)
check_b()

def gen_B(A, cfg, lab, tmo):
    w = Wv(A, cfg)
    em = Emitter(A, [f'v{i}' for i in range(2, 20)])
    A(f's_add_u32 s39, {sR}, 1')
    common_consts(em, A, lab, 's39')
    l = V('v0'); ww = Sg(sW); j = Sg(sR)
    em.emit(B_V + (ww * 112 + (l & 15)) * 16 + (l >> 4) * 4, bVW)
    for tl in range(7):
        f = ww * 112 + tl * 16 + (l & 15); hh = f.div(28)
        em.emit((hh * 56 + (l >> 4)) * 7168 + (j * 28 + f - hh * 28) * 16, f'v{20+tl}')
    def addr(tl, t, b):
        return f'v{20+tl}', f's_mul_i32 s11, {sKK[t]}, 56\ns_add_u32 s11, s11, {BF + 28672*b}'
    def vw(tl, reg): w.ds(f'ds_write_b32 {bVW}, {reg} offset:{tl*256}')
    def tail6(rest):
        for f in rest: f()
        w(f'v_add_f32 v{BT}, v{ACC[6]}, v{ACC[6]+2}\nv_add_f32 v{BT+1}, v{ACC[6]+1}, v{ACC[6]+3}')
        w(f'v_cvt_pk_bf16_f32 v{BT+2}, v{BT}, v{BT+1}')
        vw(6, f'v{BT+2}')
    A(f's_cmp_ge_u32 {sW}, 2\ns_cbranch_scc1 {lab}_loader')
    for k, x in b_exprs_final().items(): em.emit(x, k)
    R = cfg.get('nrep', 1); RS = cfg.get('rstride', 256)
    em.emit(sel_lt(l, R, HU1 + l * RS + (j * 2 + ww) * 4, OOB), vHUs)
    load_weights(w, addr)
    zero(w, 28, 28)
    A(f's_mov_b32 {sSTEP}, 0\ns_mov_b32 {sSPIN}, {SPIN_MAX}\ns_mov_b32 {sRETRY}, 0')
    cfg['start_sync'](w, lab + 'f')
    A('s_waitcnt vmcnt(0) lgkmcnt(0)')
    def loopf(lf, st):
        nonlocal w
        w = Wv(A, cfg)
        PREG = [4 * m for m in range(10)]
        order = cfg.get('porder', [0, 1, 2, 3, 4, 8, 9, 5, 6, 7])
        WREG = {0: 56, 1: 64, 2: 72, 3: 80, 4: 88, 8: 40, 9: 48, 5: 56, 6: 64, 7: 72}
        sPO = ['s22', 's23', 's24']
        def wx(m, b): w.ds(f'ds_read_b128 {vr(WREG[m]+4*b,4)}, {bWR} offset:{(2*m+b)*1792}', f'W{m}')
        A(f'{lf}_loop:')
        step_consts(A)
        A(f's_lshl_b32 s11, s11, 14\ns_add_u32 s22, s11, {PS}\ns_add_u32 s23, s22, 4096\ns_add_u32 s24, s22, 8192')
        A(f's_and_b32 s11, {sS1}, 3\ns_lshl_b32 s11, s11, 13\ns_add_u32 {sMW}, s11, {MS}\ns_xor_b32 {sMR}, {sMW}, 0x4000')
        A(f'v_mov_b32 v{BT+3}, {sS1}\nv_mov_b64 {vr(FACC,2)}, 0\nv_mov_b64 {vr(FACC+2,2)}, 0')
        if cfg.get('bpoll'):
            for r in range(MREG[0], MREG[0] + 8, 2): A(f'v_mov_b64 {vr(r,2)}, -1')
        w.stamp()
        A('s_barrier')
        w.stamp()
        def fillf(f0):
            d = {}
            for m in range(5):
                for b in range(2): d.setdefault(f0 + 2 * m + b, []).append(lambda m=m, b=b: wx(m, b))
            return d, {}
        tail6(weight_stream(w, fillf, vw, lf, BT, tmo, cfg.get('bpoll')))
        w.stamp()
        w.wait_all_lg()
        A('s_barrier')
        A(f's_cmp_eq_u32 {sSTEP}, {NSEG-1}\ns_cbranch_scc1 {lf}_done')
        for u in range(4): w.ds(f'ds_read_b128 {vr(40+4*u,4)}, {bVR} offset:{u*1792}', f'W{8+(u>>1)}')
        w.stamp()
        A('s_barrier')
        w.stamp()
        hp = cfg.get('hu1pos', 4)
        hu1 = lambda: w.vmem(f'buffer_store_dword v{BT+3}, {vHUs}, {SRD}, 0 offen {st}')
        if hp == -2: hu1()
        A(f'{lf}_pload:')
        for k, m in enumerate(order):
            if cfg.get('pprio') and k < 4: w(f's_setprio {3-k}')
            w.vmem(f'buffer_load_dwordx4 {vr(PREG[k],4)}, {vL16}, {SRD}, {sPO[m>>2]} offen offset:{(m&3)*1024} sc1', f'P{k}')
        if hp == -1: hu1()
        for k, m in enumerate(order):
            w.wait(vm=f'P{k}', lg=f'W{m}')
            if k == 0: w.stamp()
            w(smf(FACC, vr(PREG[k], 4), vr(WREG[m], 8), vIDX))
            if k < 3: wx(5 + k, 0); wx(5 + k, 1)
            if k == hp: hu1()
        w(f'v_add_f32 v{BT}, v{FACC}, v{FACC+2}\nv_add_f32 v{BT+1}, v{FACC+1}, v{FACC+3}')
        w(f'v_cmp_u_f32 vcc, v{BT}, v{BT+1}')
        w(f'v_cvt_pk_bf16_f32 v{BT}, v{BT}, v{BT+1}')
        w(f'v_mov_b32_dpp v{BT+1}, v{BT} quad_perm:[1,0,3,2] row_mask:0xf bank_mask:0xf')
        w(f'v_perm_b32 v{BT}, v{BT+1}, v{BT}, {bSEL}')
        w(f'v_min_u32 v{BT}, -2, v{BT}')
        w(f's_cbranch_vccnz {lf}_pretry\n{lf}_pok:')
        w.vmem(f'buffer_store_dword v{BT}, {bMS}, {SRD}, {sMW} offen {st}')
        if hp == 99: hu1()
        w.stamp()
        w(f'v_mov_b32 v{BT+1}, -1')
        w.vmem(f'buffer_store_dword v{BT+1}, {bMS}, {SRD}, {sMR} offen {st}')
        if cfg.get('blate'): w.vmem(f'buffer_store_dword v{BT+3}, {vHUs}, {SRD}, 0 offen offset:128 {st}')
        zero(w, 28, 28)
        w(f'v_xor_b32 {bWR}, 0x8000, {bWR}')
        w.dump_stamps(lf)
        A(f's_mov_b32 {sSPIN}, {SPIN_MAX}\ns_mov_b32 {sSTEP}, {sS1}\ns_branch {lf}_loop')
        A(f'{lf}_done:')
        cfg['finish'](w, lf)
        A('s_endpgm')
        m_retry(w, lf, tmo)
        A(f'{lf}_pretry:\ns_waitcnt vmcnt(0) lgkmcnt(0)')
        sentinel_check(w, list(range(0, 40)), f'v{BT+2}')
        A(f's_cbranch_vccz {lf}_pok')
        A(f's_add_u32 {sRETRY}, {sRETRY}, 0x10000\ns_sub_u32 {sSPIN}, {sSPIN}, 8\ns_cbranch_scc1 {tmo}')
        for m in range(3): wx(m, 0); wx(m, 1)
        A(f'v_mov_b64 {vr(FACC,2)}, 0\nv_mov_b64 {vr(FACC+2,2)}, 0\ns_waitcnt lgkmcnt(0)\ns_branch {lf}_pload')
    emit_modes(A, cfg, lab + 'f', loopf)
    ll = lab + 'l'
    A(f'{lab}_loader:')
    w = Wv(A, cfg)
    for r in range(7):
        f = l + 64 * r; hg = f.div(28)
        em.emit(hg * 7168 + (j * 28 + f - hg * 28) * 16 + (4096 - (r & 3) * 1024), bDM[r])
    em.emit(sel_lt(ww, 3, HU1 + (128 if cfg.get('blate') else 0) + (l & 31) * 4, HU2 + (l & 15) * 4) + (Sg('s3') & (R - 1)) * RS, vHUp)
    em.emit(sel_lt(j + (3 - ww) * 16, 7, j * 1024 + l * 16, OOB), bMX)
    A(f's_sub_u32 s11, {sW}, 2\ns_mul_i32 s23, s11, 14336\ns_mul_i32 s24, s11, {VX_SEG//2}\ns_add_u32 s24, s24, {VXF - 4096}')
    def vx_m0(k):
        if k % 7 in (0, 4): w(f's_add_u32 m0, {sVL}, {k*1024}')
    def vx_dma(k):
        w.vmem(f'buffer_load_dwordx4 {bDM[k%7]}, {SRD}, {sVS if k < 7 else "s44"} offen offset:{((k%7)&3)*1024} lds', 'D')
    load_weights(w, addr)
    zero(w, 28, 28)
    A(f's_mov_b32 {sSTEP}, 0\ns_mov_b32 {sSPIN}, {SPIN_MAX}\ns_mov_b32 {sRETRY}, 0')
    cfg['start_sync'](w, ll)
    A(f's_mov_b32 {sVS}, s24\ns_add_u32 s44, {sVS}, {16*7168}\ns_mov_b32 {sVL}, s23')
    for k in range(14): vx_m0(k); vx_dma(k)
    A(f'{ll}_loop:')
    step_consts(A)
    A(f's_min_u32 s11, {sS1}, {0 if cfg.get("vxsame") else NSEG-1}\ns_mul_i32 {sVS}, s11, {VX_SEG}\ns_add_u32 {sVS}, {sVS}, s24\ns_add_u32 s44, {sVS}, {16*7168}')
    A(f's_and_b32 s11, {sS1}, 1\ns_lshl_b32 s11, s11, 15\ns_add_u32 {sVL}, s11, s23')
    A(f's_mul_i32 {sMXO}, {sSTEP}, 7168\ns_add_u32 {sMXO}, {sMXO}, {MX}')
    if cfg.get('bpoll'):
        for r in range(MREG[0], MREG[0] + 8, 2): A(f'v_mov_b64 {vr(r,2)}, -1')
    A('s_waitcnt vmcnt(0)')
    w.stamp()
    A(f's_cmp_lg_u32 {sW}, 2\ns_cbranch_scc1 {ll}_nopoll')
    poll(w, f'{ll}_poll1', bPOLL, sSTEP, tmo, 32)
    A(f'{ll}_nopoll:\ns_barrier')
    w.stamp()
    d0 = cfg.get('dslot', 2); dstep = cfg.get('dstep', 2)
    def filll(f0):
        d = {}
        add = lambda n, f: d.setdefault(n, []).append(f)
        for k in range(14):
            add(d0 + dstep * k - 1, lambda k=k: vx_m0(k))
            add(d0 + dstep * k, lambda k=k: vx_dma(k))
        if not cfg.get('nomx'):
            add(max(f0 - 4, cfg.get('vslot', 0)), lambda: w.vmem(f'buffer_store_dwordx4 {vr(MREG[0],4)}, {bMX}, {SRD}, {sMXO} offen {cfg.get("mxfl", "sc1")}'))
        return d, {}
    tail6(weight_stream(w, filll, vw, ll, BT, tmo, cfg.get('bpoll')))
    w.stamp()
    w.wait_all_lg()
    A('s_barrier')
    A(f's_cmp_eq_u32 {sSTEP}, {NSEG-1}\ns_cbranch_scc1 {ll}_done')
    zero(w, 28, 28)
    w.stamp()
    if cfg.get('drain'):
        w.wait(vm='D'); w.stamp(); w.wait_all_vm(); w.stamp()
    A(f's_cmp_lg_u32 {sW}, 3\ns_cbranch_scc1 {ll}_nopoll2')
    poll(w, f'{ll}_poll2', bPOLL, sS1, tmo, 16)
    A(f'{ll}_nopoll2:\ns_barrier')
    w.dump_stamps(ll)
    A(f's_mov_b32 {sSPIN}, {SPIN_MAX}\ns_mov_b32 {sSTEP}, {sS1}\ns_branch {ll}_loop\n{ll}_done:')
    cfg['finish'](w, ll)
    A('s_endpgm')
    m_retry(w, ll, tmo)
```

```python
from asmdsl import Asm
from expr import X, V, Sg, Emitter, ev, sel_lt
from layout import *
from rec import Wv, vr, wquad, wreg, smf, zero, sentinel_check, SRD
from prep import f32, mfma, srd
import math

sW, sR = 's9', 's10'
sSPIN = 's19'
WSPIN = 0x40000
NV = 4
NQ = 4

def wait_flag(w, lab, soff, target, tmo, vt='v2'):
    w(f's_cmp_lg_u32 {sW}, 0\ns_cbranch_scc1 {lab}_go\ns_mov_b32 {sSPIN}, {WSPIN}')
    w(f'{lab}:\nbuffer_load_dword {vt}, off, {SRD}, {soff} sc1')
    w(f's_sub_u32 {sSPIN}, {sSPIN}, 1\ns_cbranch_scc1 {tmo}\ns_waitcnt vmcnt(0)')
    w(f'v_cmp_gt_u32 vcc, {target}, {vt}\ns_cbranch_vccnz {lab}')
    w(f'{lab}_go:\ns_barrier')

def signal(w, lab, soff, vt='v2'):
    w('s_waitcnt vmcnt(0)\ns_barrier'); w.vm = []
    w(f's_cmp_lg_u32 {sW}, 0\ns_cbranch_scc1 {lab}\nv_mov_b32 {vt}, 1\ns_mov_b64 exec, 1')
    w(f'buffer_atomic_add {vt}, off, {SRD}, {soff} sc1\ns_mov_b64 exec, -1\n{lab}:')

def load_w(w, addr_of):
    n = 0
    for tl in range(7):
        for p in range(14):
            va, pre = addr_of(tl, p)
            w(pre)
            w(f'buffer_load_dwordx4 {wquad(tl*7 + (p>>1), p&1)}, {va}, {SRD}, s11 offen')
            n += 1
            if n % 16 == 0: w('s_waitcnt vmcnt(32)')

XB = 56
def xq(p, tt): return XB + ((p & 3) * 2 + tt) * 4
def acc2(tl, tt): return (tl * 2 + tt) * 4
sXB, sXN = 's20', 's21'
vL16 = 'v119'

def x_load(w, p, base):
    for tt in range(2):
        off = p * 1024 + tt * 14336
        w(f's_add_u32 s11, {base}, {off & ~4095}')
        w.vmem(f'buffer_load_dwordx4 {vr(xq(p,tt),4)}, {vL16}, {SRD}, s11 offen offset:{off & 4095}', f'X{p}')

def seg_gemm(w, w_is_a):
    for p in range(14):
        w.wait(vm=f'X{p}')
        for tl in range(7):
            for tt in range(2):
                wq = wquad(tl * 7 + (p >> 1), p & 1); xx = vr(xq(p, tt), 4)
                a, b = (wq, xx) if w_is_a else (xx, wq)
                w(mfma(vr(acc2(tl, tt), 4), a, b, 0 if p == 0 else None))
        if p + 4 < 14: x_load(w, p + 4, sXB)
        elif p >= 12: pass
    for p in range(4): x_load(w, p, sXN)

def mx_wait(w, lab, regs, loads, tmo, tmp):
    w(f's_mov_b32 {sSPIN}, {WSPIN}\n{lab}_1:\nbuffer_load_dword {tmp}, off, {SRD}, s15 sc1')
    w(f's_sub_u32 {sSPIN}, {sSPIN}, 1\ns_cbranch_scc1 {tmo}\ns_waitcnt vmcnt(0)\nv_cmp_eq_u32 vcc, -1, {tmp}\ns_cbranch_vccnz {lab}_1')
    w(f'{lab}:')
    loads()
    w(f's_sub_u32 {sSPIN}, {sSPIN}, 1\ns_cbranch_scc1 {tmo}\ns_waitcnt vmcnt(0)'); w.vm = []
    sentinel_check(w, regs, tmp)
    w(f's_cbranch_vccnz {lab}')

def gen_V(A, cfg, lab, tmo):
    w = Wv(A, {})
    em = Emitter(A, [f'v{i}' for i in range(2, 30)])
    l = V('v0'); g = l >> 4; n = l & 15; ww = Sg(sW); h = Sg(sR)
    em.emit(l & 63, 'v0')
    em.emit(l * 16, vL16)
    em.emit(sel_lt(l & 2, 1, 0x44444444, 0xEEEEEEEE), 'v118')
    em.emit(g * 7168 + (ww * 112 + n) * 16, 'v117')
    em.emit((ww * 112 + n) * 16 + g * 4, 'v116')
    A(f's_mul_i32 s13, {sR}, {14*28672}\ns_add_u32 s13, s13, {BF}')
    A(f's_mul_i32 {sXB}, s12, 28672' + (f'\ns_add_u32 {sXB}, {sXB}, {XF}' if XF else ''))
    load_w(w, lambda tl, p: ('v117', f's_add_u32 s11, s13, {p*28672 + tl*256}'))
    for p in range(4): x_load(w, p, sXB)
    A(f's_mov_b32 s8, s12\ns_mul_i32 s14, {sR}, 28672')
    A(f'{lab}_loop:')
    A(f's_add_u32 {sXN}, {sXB}, {NV*28672}')
    w.vm = [f'X{p}' for p in range(4) for _ in range(2)]
    seg_gemm(w, False)
    A(f's_mul_i32 s15, s8, {VX_SEG}\ns_add_u32 s15, s15, s14\ns_add_u32 s15, s15, {VXF}')
    for tl in range(7):
        o = 88 + 4 * (tl & 1)
        for tt in range(2):
            a = acc2(tl, tt)
            A(f'v_cvt_pk_bf16_f32 v{o+2*tt}, v{a}, v{a+1}\nv_cvt_pk_bf16_f32 v{o+2*tt+1}, v{a+2}, v{a+3}')
        A(f'buffer_store_dwordx4 {vr(o,4)}, v117, {SRD}, s15 offen offset:{tl*256} sc1')
    A(f's_lshl_b32 s15, s8, 7\ns_add_u32 s15, s15, {FVX}')
    signal(w, f'{lab}_sig', 's15', 'v96')
    A(f's_mov_b32 {sXB}, {sXN}\ns_add_u32 s8, s8, {NV}\ns_cmp_lt_u32 s8, {NSEG}\ns_cbranch_scc1 {lab}_loop')
    A(f's_mov_b32 s8, s12\ns_mul_i32 s14, {sR}, 7168')
    A(f'{lab}_mloop:')
    zero(w, 28, 28)
    A(f's_mul_i32 s15, s8, 7168\ns_add_u32 s15, s15, {MX}\ns_add_u32 s16, s15, 4096')
    def loads():
        for kk in range(7):
            A(f'buffer_load_dwordx4 {vr(4*kk,4)}, {vL16}, {SRD}, {"s15" if kk < 4 else "s16"} offen offset:{(kk&3)*1024} sc1')
    mx_wait(w, f'{lab}_mx', list(range(28)), loads, tmo, 'v96')
    for tl in range(7):
        for kk in range(7): A(smf(28 + 4 * tl, vr(4 * kk, 4), wreg(tl * 7 + kk), 'v118'))
    A(f's_mul_i32 s15, s8, {VM_SEG}\ns_add_u32 s15, s15, s14\ns_add_u32 s15, s15, {VM}')
    for tl in range(7):
        a = 28 + 4 * tl
        A(f'v_add_f32 v{a}, v{a}, v{a+2}\nv_add_f32 v{a+1}, v{a+1}, v{a+3}\nv_cvt_pk_bf16_f32 v{a}, v{a}, v{a+1}')
        A(f'buffer_store_dword v{a}, v116, {SRD}, s15 offen offset:{tl*256} sc1')
    A(f's_lshl_b32 s15, s8, 7\ns_add_u32 s15, s15, {FVM}')
    signal(w, f'{lab}_sig2', 's15', 'v96')
    A(f's_add_u32 s8, s8, {NV}\ns_cmp_lt_u32 s8, {NSEG}\ns_cbranch_scc1 {lab}_mloop')
    A('s_endpgm')

def gen_Q(A, cfg, lab, tmo):
    w = Wv(A, {})
    em = Emitter(A, [f'v{i}' for i in range(2, 30)])
    l = V('v0'); g = l >> 4; n = l & 15; ww = Sg(sW); h = Sg(sR)
    sQ = ['s22', 's23', 's24', 's25']
    em.emit(l & 63, 'v0')
    em.emit(l * 16, vL16)
    em.emit(l * 16 + (ww & 1) * 8, 'v118')
    i = n & 7
    em.emit(((g >> 1) * 16 + (i >> 1) * 4 + (i & 1)) * 16 + (g & 1) * 8, 'v117')
    em.emit(((g >> 1) * 16 + (i >> 1) * 4 + (i & 1)) * 16 + (g & 1) * 8 + (ww & 1) * 4, 'v116')
    em.emit(ww * 5120 + l * 16, 'v115')
    em.emit(ww * 1024 + l * 16, 'v114')
    em.emit(ww * 20480 + h * 1024 + l * 16, 'v113')
    em.emit(sel_lt(g, 2, ww * 20480 + ((h >> 2) + 16) * 1024 + ((h & 3) * 16 + n) * 16 + g * 8, OOB), 'v112')
    em.emit(n - g * 4, 'v111')
    A(f's_lshr_b32 s11, {sW}, 1\ns_mul_i32 s14, s11, 7\ns_and_b32 s15, {sW}, 1\ns_lshl_b32 s16, s15, 2\ns_add_u32 s16, s16, s14')
    for u in range(3): A(f's_add_u32 s17, s16, {u}\ns_lshl_b32 {sQ[u]}, s17, 10')
    A(f's_add_u32 s17, s14, 3\ns_lshl_b32 {sQ[3]}, s17, 10')
    A(f's_mul_i32 s13, {sR}, {28*14336}\ns_add_u32 s13, s13, {AF}\ns_mul_i32 s15, s15, 14336')
    def addr(tl, p):
        pre = f's_mul_i32 s11, {sQ[tl>>1]}, 28\ns_add_u32 s11, s11, s13\n'
        pre += f's_add_u32 s11, s11, {14336*(tl&1) + 1024*p}' if tl < 6 else f's_add_u32 s11, s11, s15\ns_add_u32 s11, s11, {1024*p}'
        return vL16, pre
    A(f's_mul_i32 {sXB}, s12, 28672' + (f'\ns_add_u32 {sXB}, {sXB}, {XF}' if XF else ''))
    load_w(w, addr)
    for p in range(4): x_load(w, p, sXB)
    A('s_mov_b32 s8, s12')
    A(f'{lab}_loop:')
    A(f's_add_u32 {sXN}, {sXB}, {NQ*28672}')
    w.vm = [f'X{p}' for p in range(4) for _ in range(2)]
    seg_gemm(w, True)
    QQ = lambda u, tt: 16 * u + 4 * tt
    for u in range(4):
        for tt in range(2):
            for b in range(2 if u < 3 else 1):
                a = acc2(2 * u + b, tt)
                A(f'v_cvt_pk_bf16_f32 v{88+4*tt+2*b}, v{a}, v{a+1}\nv_cvt_pk_bf16_f32 v{89+4*tt+2*b}, v{a+2}, v{a+3}')
        for tt in range(2):
            for k in range(0, 4 if u < 3 else 2, 2): A(f'v_mov_b64 {vr(QQ(u,tt)+k,2)}, {vr(88+4*tt+k,2)}')
    for u in range(4):
        for kt in range(2):
            A(f's_add_u32 s11, {sXB}, {sQ[u]}' + ('\ns_add_u32 s11, s11, 14336' if kt else ''))
            if u < 3: w.vmem(f'buffer_load_dwordx4 {vr(16*u+8+4*kt,4)}, {vL16}, {SRD}, s11 offen', 'Z')
            else: w.vmem(f'buffer_load_dwordx2 {vr(88+2*kt,2)}, v118, {SRD}, s11 offen', 'Z')
    w.wait(vm='Z')
    SX = {(1, 0): 92, (1, 1): 96, (2, 1): 100}
    for (kt, tt), a in SX.items():
        for u in range(3): A(mfma(vr(a, 4), vr(16 * u + 8 + 4 * (kt - 1), 4), vr(QQ(u, tt), 4), 0 if u == 0 else None))
        A(f'v_mfma_f32_16x16x16_bf16 {vr(a,4)}, {vr(88+2*(kt-1),2)}, {vr(QQ(3,tt),2)}, {vr(a,4)}')
    for (kt, tt), a in SX.items():
        A(f'ds_write_b128 v115, {vr(a,4)} offset:{(2*kt + tt - (1 if kt == 2 else 0))*1024}')
    A('s_waitcnt lgkmcnt(0)\ns_barrier')
    E1, E2, E0 = 92, 96, 100
    A(f's_cmp_ge_u32 {sW}, 2\ns_cbranch_scc1 {lab}_nored')
    def red(dst, off, t0):
        for k in range(4): A(f'ds_read_b128 {vr(dst if k == 0 else t0+16*(k-1),4)}, v114 offset:{k*5120 + off}')
        A('s_waitcnt lgkmcnt(0)')
        for k in range(3):
            for r in (0, 2): A(f'v_pk_add_f32 {vr(dst+r,2)}, {vr(dst+r,2)}, {vr(t0+16*k+r,2)}')
    red(E1, 2048, 8)
    red(E2, 3072, 8)
    A(f'v_mov_b32 v104, 0xff800000\ns_cmp_eq_u32 {sW}, 0\ns_cbranch_scc0 {lab}_t1')
    for r in range(4):
        A(f'v_cmp_le_i32 vcc, {r}, v111\nv_cndmask_b32 v{E1+r}, v104, v{E1+r}, vcc\nv_mov_b32 v{E2+r}, v104')
    A(f's_branch {lab}_nored\n{lab}_t1:')
    for r in range(4): A(f'v_cmp_le_i32 vcc, {r}, v111\nv_cndmask_b32 v{E2+r}, v104, v{E2+r}, vcc')
    A(f'{lab}_nored:')
    A(f's_mul_i32 s15, s8, 7168\ns_add_u32 s15, s15, {MX}')
    KQ = lambda u: 16 * u + 8
    def loads():
        for u in range(4):
            A(f's_lshr_b32 s11, {sQ[u]}, 1\ns_add_u32 s11, s11, s15')
            if u < 3:
                A(f'buffer_load_dwordx2 {vr(KQ(u),2)}, v117, {SRD}, s11 offen sc1\nbuffer_load_dwordx2 {vr(KQ(u)+2,2)}, v117, {SRD}, s11 offen offset:32 sc1')
            else:
                A(f'buffer_load_dword v88, v116, {SRD}, s11 offen sc1\nbuffer_load_dword v89, v116, {SRD}, s11 offen offset:32 sc1')
    mx_wait(w, f'{lab}_mx', [KQ(u) + k for u in range(3) for k in range(4)] + [88, 89], loads, tmo, 'v105')
    for u in range(3): A(f'v_swap_b32 v{KQ(u)+1}, v{KQ(u)+2}')
    for tt in range(2):
        a = 12 + 16 * tt
        for u in range(3): A(mfma(vr(a, 4), vr(KQ(u), 4), vr(QQ(u, tt), 4), 0 if u == 0 else None))
        A(f'v_mfma_f32_16x16x16_bf16 {vr(a,4)}, v[88:89], {vr(QQ(3,tt),2)}, {vr(a,4)}')
    for tt in range(2): A(f'ds_write_b128 v115, {vr(12+16*tt,4)} offset:{tt*1024}')
    A('s_waitcnt lgkmcnt(0)\ns_barrier')
    A(f's_cmp_ge_u32 {sW}, 2\ns_cbranch_scc1 {lab}_nosm')
    red(E0, 0, 8)
    A('s_mov_b32 vcc_lo, -1\ns_mov_b32 vcc_hi, 0')
    for r in range(4): A(f'v_cndmask_b32 v{E0+r}, v104, v{E0+r}, vcc')
    A(f'v_max3_f32 v8, v{E1}, v{E1+1}, v{E1+2}')
    for r in range(E1 + 3, E1 + 11, 2): A(f'v_max3_f32 v8, v8, v{r}, v{r+1}')
    A(f'v_max_f32 v8, v8, v{E1+11}')
    def allred(op):
        A(f'v_mov_b32 v9, v8\nv_permlane16_swap_b32 v8, v9\n{op} v8, v8, v9')
        A(f'v_mov_b32 v9, v8\nv_permlane32_swap_b32 v8, v9\n{op} v8, v8, v9')
    allred('v_max_f32')
    for r in range(E1, E1 + 12, 2): A(f'v_pk_add_f32 {vr(r,2)}, {vr(r,2)}, v[8:9] op_sel_hi:[1,0] neg_lo:[0,1] neg_hi:[0,1]')
    for r in range(E1, E1 + 12): A(f'v_exp_f32 v{r}, v{r}')
    A(f'v_pk_add_f32 v[8:9], {vr(E1,2)}, {vr(E1+2,2)}')
    for r in range(E1 + 4, E1 + 12, 2): A(f'v_pk_add_f32 v[8:9], v[8:9], {vr(r,2)}')
    A('v_add_f32 v8, v8, v9')
    allred('v_add_f32')
    A('v_rcp_f32 v8, v8')
    for r in range(E1, E1 + 12, 2): A(f'v_pk_mul_f32 {vr(r,2)}, {vr(r,2)}, v[8:9] op_sel_hi:[1,0]')
    for k in range(6): A(f'v_cvt_pk_bf16_f32 v{12+k}, v{E1+2*k}, v{E1+2*k+1}')
    A(f's_mul_i32 s15, s8, {PX_SEG}\ns_add_u32 s15, s15, {PX}')
    A(f'buffer_store_dwordx4 v[12:15], v113, {SRD}, s15 offen sc1\nbuffer_store_dwordx2 v[16:17], v112, {SRD}, s15 offen sc1')
    A(f'{lab}_nosm:')
    A(f's_lshl_b32 s15, s8, 7\ns_add_u32 s15, s15, {FPX}')
    signal(w, f'{lab}_sig', 's15', 'v105')
    A(f's_mov_b32 {sXB}, {sXN}\ns_add_u32 s8, s8, {NQ}\ns_cmp_lt_u32 s8, {NSEG}\ns_cbranch_scc1 {lab}_loop')
    A('s_endpgm')

def gen_T(A, cfg, lab, tmo):
    w = Wv(A, {})
    em = Emitter(A, [f'v{i}' for i in range(8, 30)])
    l = V('v0'); g = l >> 4
    A('s_load_dwordx2 s[28:29], s[0:1], 64\ns_load_dwordx2 s[30:31], s[0:1], 80')
    em.emit(l & 63, 'v0')
    A(f"""s_and_b32 s12, {sR}, 15
    s_lshl_b32 s12, s12, 2
    s_add_u32 s12, s12, {sW}
    s_waitcnt lgkmcnt(0)
    s_cmp_lt_u32 {sR}, 16
    s_cselect_b32 s20, s28, s30
    s_cselect_b32 s21, s29, s31
    s_mov_b32 s22, {D*F*2}
    s_mov_b32 s23, 0x20000
    s_movk_i32 s13, 896
    s_cselect_b32 s13, 3584, s13
    s_cselect_b32 s14, 28, 7
    s_movk_i32 s15, 9363
    s_cselect_b32 s15, 2341, s15       ; 65536 / blocks
    s_cselect_b32 s16, 14, 56          ; k quads
    s_mov_b32 s17, {W2F}
    s_cselect_b32 s17, {W1F}, s17
    s_mul_i32 s18, {sW}, 28672""")
    em.emit((l >> 3) * Sg('s13') + (l & 7) * 16, 'v1')
    em.emit(Sg('s18') + (g * 8 + ((l >> 2) & 3)) * 128 + (l & 3) * 16, 'v2')
    em.emit(l * 16, 'v3')
    A('s_lshl_b32 s24, s13, 3')
    for k in range(7):
        A(f's_add_u32 s25, s12, {64*k}\ns_mul_i32 s26, s25, s15\ns_lshr_b32 s26, s26, 16\ns_mul_i32 s27, s26, s14\ns_sub_u32 s27, s25, s27')
        A(f's_lshl_b32 s{40+k}, s27, 2\ns_mul_i32 s{40+k}, s{40+k}, s16\ns_add_u32 s{40+k}, s{40+k}, s26\ns_lshl_b32 s{40+k}, s{40+k}, 10\ns_add_u32 s{40+k}, s{40+k}, s17')
        A(f's_cmp_lt_u32 s25, 392\ns_cselect_b32 s{40+k}, s{40+k}, {OOB}')
        A('s_lshl_b32 s26, s26, 5\ns_mul_i32 s26, s26, s13\ns_lshl_b32 s27, s27, 7\ns_add_u32 s26, s26, s27')
        for r in range(4):
            A(f's_add_u32 m0, s18, {k*4096 + r*1024}')
            w.vmem(f'buffer_load_dwordx4 v1, s[20:23], s26 offen lds', f'U{k}')
            if r < 3: A('s_add_u32 s26, s26, s24')
    A('s_lshl_b32 s24, s16, 10')
    for k in range(7):
        w.wait(vm=f'U{k}')
        for t in range(4):
            o = 8 + 16 * (k & 1) + 4 * t; off = k * 4096 + (t >> 1) * 64 + (t & 1) * 8
            A(f'ds_read_b64_tr_b16 {vr(o,2)}, v2 offset:{off}\nds_read_b64_tr_b16 {vr(o+2,2)}, v2 offset:{off+512}')
        A('s_waitcnt lgkmcnt(0)')
        for t in range(4):
            w.vmem(f'buffer_store_dwordx4 {vr(8+16*(k&1)+4*t,4)}, v3, {SRD}, s{40+k} offen sc1')
            if t < 3: A(f's_add_u32 s{40+k}, s{40+k}, s24')
    A(f's_mov_b32 s15, {FW}')
    signal(w, f'{lab}_sig', 's15', 'v4')
    A('s_endpgm')

def gen_F(A, cfg, lab, tmo):
    w = Wv(A, {})
    em = Emitter(A, [f'v{i}' for i in range(8, 30)])
    l = V('v0'); g = l >> 4; n = l & 15; ww = Sg(sW)
    A('s_load_dwordx2 s[28:29], s[0:1], 72\ns_load_dwordx2 s[30:31], s[0:1], 88\ns_load_dwordx2 s[32:33], s[0:1], 0\ns_load_dwordx2 s[34:35], s[0:1], 96')
    em.emit(l & 63, 'v0')
    em.emit(l * 16, 'v1')
    em.emit(g * 16, 'v3')
    A('s_waitcnt lgkmcnt(0)')
    srd(A, 36, 28, F * 2); srd(A, 40, 30, D * 2); srd(A, 44, 32, S * D * 2); srd(A, 48, 34, S * D * 2)
    xr = lambda tt, p: f'a[{(tt*14+p)*4}:{(tt*14+p)*4+3}]'
    A(f's_mul_i32 s12, {sR}, 28672' + (f'\ns_add_u32 s12, s12, {XF}' if XF else ''))
    for q in range(28):
        if q % 4 == 0: A(f's_add_u32 s11, s12, {q*1024}')
        A(f'buffer_load_dwordx4 {xr(q//14, q%14)}, v1, {SRD}, s11 offen offset:{(q%4)*1024}')
    A(f's_mov_b32 s15, {FW}')
    wait_flag(w, f'{lab}_fw', 's15', 32, tmo)
    WB = lambda buf, q: 32 + buf * 112 + 4 * q
    A(f's_mul_i32 s13, {sW}, {14*28672}\ns_add_u32 s13, s13, {W1F}\ns_mul_i32 s14, {sW}, {14*64}')
    em.emit(ww * 28672 + l * 16, 'v4')
    def wl(buf, q):
        if q % 4 == 0: A(f's_add_u32 s11, s13, {q*1024}')
        w.vmem(f'buffer_load_dwordx4 {vr(WB(buf,q),4)}, v1, {SRD}, s11 offen offset:{(q%4)*1024} sc1', f'W{buf}_{q}')
    def bl(buf): w.vmem(f'buffer_load_dwordx4 {vr(24+4*buf,4)}, v3, s[36:39], s14 offen', f'B{buf}')
    w.vm = []
    bl(0)
    for q in range(28): wl(0, q)
    A('s_mov_b32 s8, 0')
    A(f'{lab}_l1:')
    def block(buf):
        A('s_add_u32 s13, s13, 28672\ns_add_u32 s14, s14, 64')
        bl(1 - buf)
        for p in range(14):
            for b in range(2):
                q = b * 14 + p
                w.wait(vm=f'W{buf}_{q}')
                for tt in range(2): A(mfma(vr(8 + (b * 2 + tt) * 4, 4), vr(WB(buf, q), 4), xr(tt, p), 0 if p == 0 else None))
            wl(1 - buf, 2 * p); wl(1 - buf, 2 * p + 1)
        bb = 24 + 4 * buf
        for tt in range(2):
            for b in range(2):
                a = 8 + (b * 2 + tt) * 4
                for k in range(2):
                    A(f'v_lshlrev_b32 v6, 16, v{bb+2*b+k}\nv_and_b32 v7, 0xffff0000, v{bb+2*b+k}')
                    A(f'v_pk_add_f32 {vr(a+2*k,2)}, {vr(a+2*k,2)}, v[6:7]')
                    A(f'v_max_f32 v{a+2*k}, 0, v{a+2*k}\nv_max_f32 v{a+2*k+1}, 0, v{a+2*k+1}')
                    A(f'v_pk_mul_f32 {vr(a+2*k,2)}, {vr(a+2*k,2)}, {vr(a+2*k,2)}')
                    A(f'v_cvt_pk_bf16_f32 v{a+k}, v{a+2*k}, v{a+2*k+1}')
            A(f'v_mov_b64 {vr(8+tt*4+2,2)}, {vr(16+tt*4,2)}')
            A(f'ds_write_b128 v4, {vr(8+tt*4,4)} offset:{buf*2048 + tt*1024}')
    w.vm = ['B0'] + [f'W0_{q}' for q in range(28)]
    block(0); block(1)
    A(f'v_add_u32 v4, 4096, v4\ns_add_u32 s8, s8, 1\ns_cmp_lt_u32 s8, 7\ns_cbranch_scc1 {lab}_l1')
    A(f's_lshl_b32 s16, {sW}, 2\ns_cmp_eq_u32 {sW}, 3\ns_cselect_b32 s16, 11, s16')
    A(f's_mul_i32 s13, s16, {2*57344}\ns_add_u32 s13, s13, {W2F}')
    for t in range(8):
        A(f's_add_u32 s{52+t}, s13, {t*57344}')
    A(f's_cmp_ge_u32 {sW}, 2\ns_cselect_b32 s58, {OOB}, s58\ns_cselect_b32 s59, {OOB}, s59')
    A('s_waitcnt vmcnt(0) lgkmcnt(0)\ns_barrier')
    W2 = lambda buf, t: 32 + (buf * 8 + t) * 4
    HB = lambda buf, tt: 8 + (buf * 2 + tt) * 4
    G = lambda t, tt: f'a[{(t*2+tt)*4}:{(t*2+tt)*4+3}]'
    for r in range(64): A(f'v_accvgpr_write_b32 a{r}, 0')
    A('v_mov_b32 v4, v1\nv_mov_b32 v5, v1')
    def w2l(buf, off):
        for t in range(8): w.vmem(f'buffer_load_dwordx4 {vr(W2(buf,t),4)}, v5, {SRD}, s{52+t} offen offset:{off} sc1', f'V{buf}')
    def hl(buf, off):
        for tt in range(2): w.ds(f'ds_read_b128 {vr(HB(buf,tt),4)}, v4 offset:{off + tt*1024}', f'H{buf}')
    w.vm = []; w.lg = []
    for k in range(3): w2l(k, k * 1024)
    hl(0, 0)
    A('v_add_u32 v5, 3072, v5\ns_mov_b32 s8, 0')
    A(f'{lab}_l2:')
    for k in range(4):
        w2l((k + 3) & 3, k * 1024)
        hl((k + 1) & 1, (k + 1) * 2048)
        w.wait(vm=f'V{k}', lg=f'H{k&1}')
        for t in range(8):
            for tt in range(2): A(mfma(G(t, tt), vr(W2(k, t), 4), vr(HB(k & 1, tt), 4)))
    A(f'v_add_u32 v5, 4096, v5\nv_add_u32 v4, 8192, v4\ns_add_u32 s8, s8, 1\ns_cmp_lt_u32 s8, 14\ns_cbranch_scc1 {lab}_l2')
    A('s_waitcnt vmcnt(0) lgkmcnt(0)')
    A('s_lshl_b32 s14, s16, 6')
    for k in range(4): A(f'buffer_load_dwordx4 {vr(32+4*k,4)}, v3, s[40:43], s14 offen offset:{k*64}')
    A(f's_lshl_b32 s14, s16, 10\ns_add_u32 s14, s14, s12\ns_add_u32 s14, s14, {GB - XF}\ns_add_u32 s15, s14, 14336')
    A('s_waitcnt vmcnt(0)')
    for k in range(4):
        if k == 3: A(f's_cmp_ge_u32 {sW}, 2\ns_cbranch_scc1 {lab}_gdone')
        for tt in range(2):
            for b in range(2):
                for r in range(4): A(f'v_accvgpr_read_b32 v{48+4*b+r}, a{((2*k+b)*2+tt)*4+r}')
            for j in range(4):
                A(f'v_lshlrev_b32 v6, 16, v{32+4*k+j}\nv_and_b32 v7, 0xffff0000, v{32+4*k+j}')
                A(f'v_pk_add_f32 {vr(48+2*j,2)}, {vr(48+2*j,2)}, v[6:7]')
            for r in range(8): A(f'v_mul_f32 v{56+r}, {f32(-math.log2(math.e))}, v{48+r}')
            for r in range(8): A(f'v_exp_f32 v{56+r}, v{56+r}')
            for r in range(8): A(f'v_add_f32 v{56+r}, 1.0, v{56+r}')
            for r in range(8): A(f'v_rcp_f32 v{56+r}, v{56+r}')
            for j in range(4):
                A(f'v_pk_mul_f32 {vr(48+2*j,2)}, {vr(48+2*j,2)}, {vr(56+2*j,2)}')
                A(f'v_cvt_pk_bf16_f32 v{64+4*tt+j}, v{48+2*j}, v{49+2*j}')
            A(f'buffer_store_dwordx4 {vr(64+4*tt,4)}, v1, {SRD}, {"s15" if tt else "s14"} offen offset:{k*1024} sc1')
    A(f'{lab}_gdone:')
    A(f's_lshl_b32 s15, {sR}, 7\ns_add_u32 s15, s15, {FG}')
    signal(w, f'{lab}_gsig', 's15')
    A(f's_and_b32 s11, {sR}, 3\ns_lshl_b32 s16, s11, 2\ns_cmp_eq_u32 s11, 3\ns_cselect_b32 s16, 11, s16\ns_add_u32 s16, s16, {sW}')
    A(f's_lshr_b32 s11, s11, 1\ns_add_u32 s11, s11, {sW}\ns_cmp_ge_u32 s11, 4\ns_cselect_b32 s17, {OOB}, 0')
    col = Sg('s16') * 32 + (n >> 2) * 8 + (n & 3)
    em.emit(g * 7168 + col * 16 + Sg('s17'), 'v4')
    em.emit(n * 896 + Sg('s16') * 64 + g * 16 + Sg('s17'), 'v5')
    em.emit(Sg('s16') * 1024 + l * 16 + Sg('s17'), 'v6')
    em.emit((l & 1) * (FPX - FVM), 'v7')
    A(f's_lshr_b32 s8, {sR}, 2\ns_mul_i32 s18, {sW}, 10240')
    WX = lambda q, b: 32 + (q * 2 + b) * 4
    A(f'{lab}_l3:')
    A(f's_lshl_b32 s13, s8, 7\ns_add_u32 s15, s13, {FVX}')
    wait_flag(w, f'{lab}_fvx', 's15', 16, tmo)
    A(f's_mul_i32 s14, s8, {VX_SEG}\ns_add_u32 s14, s14, {VXF}')
    for q in range(16):
        for b in range(2): A(f'buffer_load_dwordx4 {vr(WX(q,b),4)}, v4, {SRD}, s14 offen offset:{b*64} sc1')
        if q < 15: A('s_add_u32 s14, s14, 28672')
    A('s_mul_i32 s14, s8, 28672\ns_add_u32 s20, s14, 14336')
    A('buffer_load_dwordx4 v[192:195], v5, s[44:47], s14 offen\nbuffer_load_dwordx4 v[196:199], v5, s[44:47], s20 offen')
    A(f's_add_u32 s15, s13, {FG}')
    wait_flag(w, f'{lab}_fg', 's15', 1, tmo)
    A(f's_add_u32 s21, s14, {GB}\ns_add_u32 s22, s20, {GB}')
    A(f'buffer_load_dwordx4 v[200:203], v6, {SRD}, s21 offen sc1\nbuffer_load_dwordx4 v[204:207], v6, {SRD}, s22 offen sc1')
    A(f's_add_u32 s15, s13, {FVM}')
    A(f's_cmp_lg_u32 {sW}, 0\ns_cbranch_scc1 {lab}_f2go\ns_mov_b32 {sSPIN}, {WSPIN}')
    A(f'{lab}_f2:\nbuffer_load_dword v2, v7, {SRD}, s15 offen sc1')
    A(f's_sub_u32 {sSPIN}, {sSPIN}, 1\ns_cbranch_scc1 {tmo}\ns_waitcnt vmcnt(0)\nv_cmp_gt_u32 vcc, 16, v2\ns_cbranch_vccnz {lab}_f2')
    A(f'{lab}_f2go:\ns_barrier')
    A(f's_mul_i32 s21, s8, {PX_SEG}\ns_add_u32 s21, s21, s18\ns_add_u32 s21, s21, {PX}')
    for k in range(10):
        if k % 4 == 0: A(f's_add_u32 m0, s18, {k*1024}\ns_add_u32 s22, s21, {k*1024}')
        A(f'buffer_load_dwordx4 v1, {SRD}, s22 offen offset:{(k%4)*1024} sc1 lds')
    A(f's_mul_i32 s21, s8, {VM_SEG}\ns_add_u32 s21, s21, {VM}')
    for u in range(4):
        for b in range(2): A(f'buffer_load_dwordx4 {vr(WX(16+u,b),4)}, v4, {SRD}, s21 offen offset:{b*64} sc1')
        if u < 3: A('s_add_u32 s21, s21, 28672')
    A('s_waitcnt vmcnt(8)\ns_barrier')
    w.lg = []
    PB = lambda q, tt: 208 + ((q & 3) * 2 + tt) * 4
    def pl(q):
        for tt in range(2): w.ds(f'ds_read_b128 {vr(PB(q,tt),4)}, v1 offset:{tt*20480 + q*1024}', f'P{q}')
    for q in range(3): pl(q)
    for q in range(20):
        if q + 3 < 20: pl(q + 3)
        w.wait(lg=f'P{q}')
        if q == 16: A('s_waitcnt vmcnt(0)')
        for b in range(2):
            for tt in range(2): A(mfma(vr(8 + (tt * 2 + b) * 4, 4), vr(WX(q, b), 4), vr(PB(q, tt), 4), 0 if q == 0 else None))
    for tt in range(2):
        a = 8 + tt * 8
        for j in range(4):
            r = a + 2 * j
            A(f'v_cvt_pk_bf16_f32 v{r}, v{r}, v{r+1}\nv_and_b32 v{r+1}, 0xffff0000, v{r}\nv_lshlrev_b32 v{r}, 16, v{r}')
            A(f'v_lshlrev_b32 v24, 16, v{200+4*tt+j}\nv_and_b32 v25, 0xffff0000, v{200+4*tt+j}')
            A(f'v_pk_mul_f32 {vr(r,2)}, {vr(r,2)}, v[24:25]')
            A(f'v_cvt_pk_bf16_f32 v{r}, v{r}, v{r+1}\nv_and_b32 v{r+1}, 0xffff0000, v{r}\nv_lshlrev_b32 v{r}, 16, v{r}')
            A(f'v_lshlrev_b32 v24, 16, v{192+4*tt+j}\nv_and_b32 v25, 0xffff0000, v{192+4*tt+j}')
            A(f'v_pk_add_f32 {vr(r,2)}, {vr(r,2)}, v[24:25]')
            A(f'v_cvt_pk_bf16_f32 v{28+j}, v{r}, v{r+1}')
        A(f'buffer_store_dwordx4 v[28:31], v5, s[48:51], {"s20" if tt else "s14"} offen')
    A(f's_add_u32 s8, s8, 16\ns_cmp_lt_u32 s8, {NSEG}\ns_cbranch_scc1 {lab}_l3')
    A('s_endpgm')
```

```python
import sys
sys.path.insert(0, 'gen')
from asmdsl import Asm, fix_hazards
NAME = 'recurrent_scan__memory_aug_recurrent_mem_tr__dense_activation_squared_relu__prompt'

def kernel_text(name, lines):
    return f'.text\n.globl {name}\n.p2align 8\n.type {name},@function\n{name}:\n' + '\n'.join(lines) + '\n'
def descriptor(name, vgpr, accum, sgpr=102):
    return f""".amdhsa_kernel {name}
  .amdhsa_next_free_vgpr {vgpr}
  .amdhsa_next_free_sgpr {sgpr}
  .amdhsa_accum_offset {accum}
  .amdhsa_group_segment_fixed_size 0
  .amdhsa_kernarg_size 120
  .amdhsa_user_sgpr_count 2
  .amdhsa_user_sgpr_kernarg_segment_ptr 1
  .amdhsa_system_sgpr_workgroup_id_x 1
  .amdhsa_float_denorm_mode_32 3
.end_amdhsa_kernel
"""
def assemble(kernels, header=''):
    out = header
    if len(kernels) == 1:
        k = kernels[0]; out += f'; @launch grid=({k[2]},1,1) block=({k[3]},1,1) lds={k[4]}\n'
    else:
        for k in kernels: out += f'; @launch kernel={k[0]} grid=({k[2]},1,1) block=({k[3]},1,1) lds={k[4]}\n'
    out += '.amdgcn_target "amdgcn-amd-amdhsa--gfx950"\n'
    seen = set()
    for k in kernels:
        if k[0] in seen: continue
        seen.add(k[0])
        lines, n = fix_hazards(k[1])
        out += kernel_text(k[0], lines)
    out += '.section .rodata,"a"\n'
    seen = set()
    for k in kernels:
        if k[0] in seen: continue
        seen.add(k[0])
        out += '.p2align 6\n' + descriptor(k[0], k[5], k[6])
    return out
```

```python
from asmdsl import Asm
from layout import *
import rec, workers, prep, build

BEST = dict(xpos=[11, 15, 20, 25, 99, 99, 99, 99], hu2pos=7, ew=64, ebar=6, gate='none')

def counts(A, lab, tmo):
    A(f's_mov_b32 s19, 0x40000\n{lab}:')
    A('buffer_load_dword v3, v4, s[40:43], 0 offen sc1')
    A(f's_sub_u32 s19, s19, 1\ns_cbranch_scc1 {tmo}\ns_waitcnt vmcnt(0)')
    A('v_readlane_b32 s47, v3, 0\ns_mov_b32 s46, s47')
    for x in range(1, 8): A(f'v_readlane_b32 s11, v3, {x}\ns_add_u32 s46, s46, s11')

def gen_main(A, cfg):
    A(f"""s_cmp_ge_u32 s2, 256
    s_cbranch_scc1 M_exit0
    s_load_dwordx4 s[28:31], s[0:1], 0
    s_load_dwordx8 s[36:43], s[0:1], 16
    s_load_dwordx2 s[4:5], s[0:1], 112
    s_load_dwordx2 s[48:49], s[0:1], 104
    s_getreg_b32 s54, hwreg(HW_REG_XCC_ID, 0, 3)
    v_lshrrev_b32 v1, 6, v0
    v_readfirstlane_b32 s9, v1
    v_and_b32 v0, 63, v0
    s_waitcnt lgkmcnt(0)
    s_mov_b32 s6, {WS_BYTES}
    s_mov_b32 s7, 0x20000
    s_mov_b32 s50, 256
    s_mov_b32 s51, 0x20000""")
    if cfg.get('fakexcc'): A(cfg['fakexcc'])
    def rank_request(w):
        lab = A.newlabel('M_rk')
        A(f's_cmp_lg_u32 s9, 0\ns_cbranch_scc1 {lab}\nv_mov_b32 v1, 1\ns_lshl_b32 s55, s54, 2\ns_mov_b64 exec, 1')
        A(f'buffer_atomic_add v1, off, s[48:51], s55 sc0 sc1\ns_mov_b64 exec, -1\n{lab}:')
    prep.gen_prep(A, dict(cfg, after_loads=rank_request), 'M_prepared')
    A('M_exit0:\ns_endpgm\nM_prepared:')
    A('s_waitcnt vmcnt(0)\ns_barrier')
    rec.tline(A, dict(cfg, tlreg=3), 2, 0x4000, 's2')
    A("""s_mov_b64 s[40:41], s[48:49]
    s_mov_b32 s42, 256
    s_mov_b32 s43, 0x20000
    s_mov_b32 s12, s54
    v_mov_b32 v2, 0x27c00
    s_cmp_lg_u32 s9, 0
    s_cbranch_scc1 M_ranked
    v_mov_b32 v3, 1
    s_mov_b64 exec, 1
    buffer_atomic_add v3, off, s[40:43], 0 offset:64 sc0 sc1
    s_waitcnt vmcnt(0)
    s_mov_b64 exec, -1
    v_readfirstlane_b32 s3, v1
    v_readfirstlane_b32 s11, v3
    v_and_b32 v4, 7, v0
    v_lshlrev_b32 v4, 2, v4
    s_mov_b32 s19, 0x40000
    s_cmp_eq_u32 s11, 255
    s_cbranch_scc0 M_grid
    v_mov_b32 v3, 1
    buffer_store_dword v3, off, s[40:43], 0 offset:128 sc1
    s_branch M_go
M_grid:
    buffer_load_dword v3, off, s[40:43], 0 offset:128 sc1
    s_sub_u32 s19, s19, 1
    s_cbranch_scc1 M_exit0
    s_waitcnt vmcnt(0)
    v_cmp_eq_u32 vcc, 0, v3
    s_cbranch_vccnz M_grid
M_go:
    s_lshl_b32 s11, s12, 5
    s_cmp_lt_u32 s3, 32
    s_cselect_b32 s15, 0, 1
    s_add_u32 s3, s3, s11
    s_cmp_eq_u32 s15, 0
    s_cbranch_scc1 M_have""")
    A("""v_mov_b32 v3, 1
    s_mov_b64 exec, 1
    buffer_atomic_add v3, off, s[40:43], 0 offset:32 sc0 sc1
    s_waitcnt vmcnt(0)
    s_mov_b64 exec, -1
    v_readfirstlane_b32 s15, v3""")
    counts(A, 'M_ovf', 'M_exit0')
    A('s_cmp_lt_u32 s46, 256\ns_cbranch_scc1 M_ovf_again\ns_mov_b32 s3, 0')
    for x in range(8):
        A(f'v_readlane_b32 s11, v3, {x}\ns_min_u32 s11, s11, 32\ns_sub_u32 s16, 32, s11')
        A(f's_cmp_lt_u32 s15, s16\ns_cbranch_scc0 M_nx{x}\ns_add_u32 s3, s11, s15\ns_add_u32 s3, s3, {32*x}\ns_branch M_have\nM_nx{x}:\ns_sub_u32 s15, s15, s16')
    A('s_endpgm\nM_ovf_again:')
    A('s_branch M_ovf')
    A("""M_have:
    v_mov_b32 v3, s3
    ds_write_b32 v2, v3
    s_waitcnt lgkmcnt(0)
M_ranked:
    s_barrier
    ds_read_b32 v3, v2
    s_waitcnt lgkmcnt(0)
    v_readfirstlane_b32 s3, v3""")
    rec.tline(A, dict(cfg, tlreg=3), 0)
    A("""s_cmp_lt_u32 s3, 32
    s_cbranch_scc1 M_rec
    s_sub_u32 s11, s3, 32
    s_and_b32 s10, s11, 63
    s_lshr_b32 s11, s11, 6
    s_cmp_eq_u32 s11, 2
    s_cbranch_scc1 M_F
    s_cmp_eq_u32 s11, 3
    s_cbranch_scc1 M_T
    s_and_b32 s12, s10, 3
    s_lshr_b32 s10, s10, 2
    s_cmp_eq_u32 s11, 1
    s_cbranch_scc1 M_Q""")
    workers.gen_V(A, cfg, 'WV', 'M_exit')
    A('M_Q:'); workers.gen_Q(A, cfg, 'WQ', 'M_exit')
    A('M_T:'); workers.gen_T(A, cfg, 'WT', 'M_exit')
    A('M_F:'); workers.gen_F(A, cfg, 'WF', 'M_exit')
    A('M_exit:\ns_endpgm')
    def start_sync(w, lab):
        if cfg.get('tl'): A('s_waitcnt vmcnt(0)')
        rec.tline(A, dict(cfg, tlreg=3), 1)
        A(f'v_mov_b32 v2, 0x27c00\ns_cmp_lg_u32 s9, 0\ns_cbranch_scc1 {lab}_ss')
        A('v_and_b32 v4, 7, v0\nv_lshlrev_b32 v4, 2, v4')
        counts(A, f'{lab}_cnt', 'R_exit')
        A(f's_mov_b32 s30, 0\ns_cmp_ge_u32 s47, 32\ns_cbranch_scc1 {lab}_md\ns_mov_b32 s30, 1\ns_cmp_ge_u32 s46, 256\ns_cbranch_scc1 {lab}_md')
        A(f's_branch {lab}_cnt\n{lab}_md:')
        A(f'v_min_u32 v4, 1, v0\nv_lshlrev_b32 v4, 7, v4\ns_mov_b32 s11, {FVX}\ns_mov_b32 s19, 0x40000')
        A(f'{lab}_fv:\nbuffer_load_dword v3, v4, s[4:7], s11 offen sc1\ns_sub_u32 s19, s19, 1\ns_cbranch_scc1 R_exit')
        A(f's_waitcnt vmcnt(0)\nv_cmp_gt_u32 vcc, 16, v3\ns_cbranch_vccnz {lab}_fv')
        A(f'v_mov_b32 v3, s30\nds_write_b32 v2, v3\ns_waitcnt lgkmcnt(0)\n{lab}_ss:\ns_barrier')
        A(f'ds_read_b32 v3, v2\ns_waitcnt lgkmcnt(0)\nv_readfirstlane_b32 s30, v3\ns_mov_b32 s19, {rec.SPIN_MAX}')
        rec.tline(A, dict(cfg, tlreg=3), 2)
    c = dict(BEST); c.update(cfg)
    c.setdefault('start_sync', start_sync); c.setdefault('finish', lambda w, lab: rec.tline(A, dict(cfg, tlreg=3), 4))
    def loop_top(w, lab):
        if cfg.get('tl'):
            for k, st in ((3, 1), (5, 16), (6, 32)):
                A(f's_cmp_lg_u32 s8, {st}\ns_cbranch_scc1 {lab}_lt{k}'); rec.tline(A, dict(cfg, tlreg=3), k); A(f'{lab}_lt{k}:')
    c.setdefault('loop_top', loop_top)
    A('M_rec:\ns_and_b32 s10, s3, 15\ns_cmp_ge_u32 s3, 16\ns_cbranch_scc1 M_B')
    rec.gen_A(A, c, 'RA', 'R_exit')
    A('R_exit:\ns_endpgm\nM_B:')
    rec.gen_B(A, c, 'RB', 'R_exit')

def generate(cfg={}, header=''):
    K = Asm(); gen_main(K, cfg)
    return build.assemble([(build.NAME + '_kernel', K.lines, 256, 256, 163840, 512, 256)], header)

if __name__ == '__main__':
    ref = open(f'cdna_kernels/{build.NAME}.s.ref').read().split('\n')
    header = '\n'.join(l for l in ref if l.startswith(';') and '@launch' not in l and 'Override' not in l and 'grid=ceil' not in l) + '\n'
    open(f'cdna_kernels/{build.NAME}.s', 'w').write(generate({}, header))
```

```python
from asmdsl import Asm
from expr import X, V, Sg, Emitter, ev, sel_lt
from layout import *
from rec import Wv, vr, tline
import struct, math

def f32(x): return hex(struct.unpack('<I', struct.pack('<f', x))[0])
CSC = math.log2(math.e) / 16
W_BYTES = D * H * E * 2

def mfma(acc, a, b, c=None): return f'v_mfma_f32_16x16x32_bf16 {acc}, {a}, {b}, {c if c is not None else acc}'
def srd(A, r, lo, nbytes):
    A(f's_mov_b32 s{r}, s{lo}\ns_mov_b32 s{r+1}, s{lo+1}\ns_mov_b32 s{r+2}, {nbytes}\ns_mov_b32 s{r+3}, 0x20000')

def gen_prep(A, cfg, done):
    w = Wv(A, {}); st = cfg.get('pst', 'sc1')
    c2 = dict(cfg, tlreg=3)
    A('s_and_b32 s10, s2, 7\ns_lshr_b32 s11, s2, 3')
    tline(A, c2, 0, 0x4000, 's2')
    A('s_cmp_ge_u32 s11, 28\ns_cbranch_scc1 P_misc')
    em = Emitter(A, [f'v{i}' for i in range(32, 60)])
    l = V('v0'); g = l >> 4; rho = l & 15
    A("""s_mul_i32 s12, s11, 37
    s_lshr_b32 s12, s12, 8          ; idx / 7
    s_mul_i32 s13, s12, 7
    s_sub_u32 s13, s11, s13         ; part
    s_and_b32 s15, s10, 1           ; 0: A, 1: B
    s_lshr_b32 s16, s10, 1
    s_lshl_b32 s16, s16, 2
    s_add_u32 s16, s16, s12
    s_lshl_b32 s17, s9, 2
    s_cmp_eq_u32 s9, 3
    s_cselect_b32 s17, 11, s17
    s_cmp_eq_u32 s15, 0
    s_cselect_b32 s20, s36, s40
    s_cselect_b32 s21, s37, s41
    s_cselect_b32 s24, s38, s42
    s_cselect_b32 s25, s39, s43""")
    A(f's_mov_b32 s22, {W_BYTES}\ns_mov_b32 s23, 0x20000\ns_mov_b32 s26, {W_BYTES}\ns_mov_b32 s27, 0x20000')
    SA, SB = 's[20:23]', 's[24:27]'
    LB = 131072
    for i in range(8):
        r = (l >> 5) + 2 * i
        em.emit(((r >> 2) * 8 + (r & 3)) * 8192 + ((l & 31) ^ r) * 16 - (i & 3) * 1024, f'v{8+i}')
    A('s_lshl_b32 s18, s16, 9\ns_lshl_b32 s35, s9, 15')
    def tile_dma(srd_, soff, lds, tag):
        for i in range(8):
            if i % 4 == 0: A(f's_add_u32 m0, {lds[0]}, {lds[1] + i*1024}')
            w.vmem(f'buffer_load_dwordx4 v{8+i}, {srd_}, {soff} offen offset:{(i&3)*1024} lds', tag)
    def load_a(k):
        A(f's_add_u32 s19, s17, {k}\ns_min_u32 s19, s19, 13\ns_lshl_b32 s19, s19, 18\ns_add_u32 s19, s19, s18\ns_add_u32 s33, s19, 32768')
        for b in range(2): tile_dma(SA, 's33' if b else 's19', ('s35', (k & 1) * 16384 + b * 8192), f'A{k}')
    breg = lambda t, ks: f'a[{(t*8+ks)*4}:{(t*8+ks)*4+3}]'
    areg = lambda k, b, ks: vr(64 + (((k & 1) * 2 + b) * 8 + ks) * 4, 4)
    ACCR = lambda b, t: 32 + (b * 4 + t) * 4
    tline(A, c2, 4, 0x4000, 's2')
    A('s_cmp_eq_u32 s15, 1\ns_cbranch_scc1 P_bload')
    A('s_lshl_b32 s19, s13, 1\ns_lshr_b32 s33, s9, 1\ns_add_u32 s19, s19, s33\ns_lshl_b32 s19, s19, 18\ns_and_b32 s33, s9, 1\ns_lshl_b32 s33, s33, 15')
    A('s_add_u32 s19, s19, s33\ns_add_u32 s19, s19, s18\ns_lshl_b32 s34, s9, 13')
    tile_dma(SB, 's19', ('s34', LB), 'B')
    load_a(0); load_a(1)
    for q in range(4): em.emit(rho * 512 + (((rho & 12) ^ (4 * q)) + (g ^ (rho & 3))) * 16, f'v{4+q}')
    em.emit(l * 16, 'v2')
    A(f's_mul_i32 s44, s16, {28*14336}\ns_mul_i32 s19, s13, {4*14336}\ns_add_u32 s44, s44, s19\ns_add_u32 s44, s44, {AF}')
    A(f's_mov_b32 s45, 14336\ns_mov_b32 s46, 1024\ns_mov_b32 s47, {f32(CSC)}')
    for q in range(4): A(f'v_add_u32 v{16+q}, {LB}, v{4+q}')
    tline(A, c2, 5, 0x4000, 's2')
    A('s_waitcnt vmcnt(32)\ns_barrier')
    tline(A, c2, 6, 0x4000, 's2')
    for t in range(4):
        for ks in range(8): A(f'ds_read_b128 {breg(t,ks)}, v{16+(ks&3)} offset:{t*8192 + (ks>>2)*256}')
    A('s_branch P_gemm\nP_bload:')
    w.vm = []
    for par in range(2):
        em.emit((l >> 3) * 896 + ((l & 7) ^ (((l >> 4) & 1) * 2 + par * 4)) * 16, f'v{4+par}')
    A('s_lshl_b32 s19, s16, 8\ns_lshl_b32 s33, s9, 6\ns_add_u32 s19, s19, s33\ns_mul_i32 s19, s19, 896\ns_lshl_b32 s33, s13, 7\ns_add_u32 s19, s19, s33\ns_lshl_b32 s34, s9, 13')
    for k in range(8):
        A(f's_add_u32 m0, s34, {LB + k*1024}\ns_add_u32 s33, s19, {k*8*896}')
        w.vmem(f'buffer_load_dwordx4 v{4+(k&1)}, {SB}, s33 offen lds', 'B')
    load_a(0); load_a(1)
    al = (l >> 2) & 3; c = l & 3
    f = ((al >> 1) & 1) * 2 + (g & 1) * 4
    for t in range(4):
        em.emit(LB + (g * 8 + al) * 128 + ((f ^ (2 * t)) + (c >> 1)) * 16 + (c & 1) * 8, f'v{16+t}')
    for q in range(4): em.emit(rho * 512 + (((rho & 12) ^ (4 * q)) + (g ^ (rho & 3))) * 16, f'v{4+q}')
    em.emit(g * 7168 + rho * 16, 'v2')
    A(f's_mul_i32 s44, s16, {14*28672}\ns_lshl_b32 s19, s13, 10\ns_add_u32 s44, s44, s19\ns_add_u32 s44, s44, {BF}')
    A(f's_mov_b32 s45, 256\ns_mov_b32 s46, 28672\ns_mov_b32 s47, 1.0')
    tline(A, c2, 5, 0x4000, 's2')
    A('s_waitcnt vmcnt(32)\ns_barrier')
    tline(A, c2, 6, 0x4000, 's2')
    for t in range(4):
        for ks in range(8):
            n = (t * 8 + ks) * 4
            A(f'ds_read_b64_tr_b16 a[{n}:{n+1}], v{16+t} offset:{ks*4096}')
            A(f'ds_read_b64_tr_b16 a[{n+2}:{n+3}], v{16+t} offset:{ks*4096+512}')
    A('P_gemm:')
    for q in range(4): A(f'v_add_u32 v{4+q}, s35, v{4+q}')
    def read_a(k, b, ks): A(f'ds_read_b128 {areg(k,b,ks)}, v{4+(ks&3)} offset:{(k&1)*16384 + b*8192 + (ks>>2)*256}')
    sfrom = cfg.get('sfrom', 2)
    def stores(k):
        A(f's_add_u32 s19, s17, {k}\ns_mul_i32 s19, s19, s46\ns_add_u32 s19, s19, s44')
        for t in range(4):
            w.vmem(f'buffer_store_dwordx4 {vr(192+16*k+4*t,4)}, v2, s[4:7], s19 offen {st}')
            if t < 3: A('s_add_u32 s19, s19, s45')
    w.wait(vm='A0')
    tline(A, c2, 7, 0x4000, 's2')
    for ks in range(8):
        for b in range(2): read_a(0, b, ks)
    for k in range(4):
        A('s_waitcnt lgkmcnt(0)')
        if k + 2 < 4: load_a(k + 2)
        if k == cfg.get('rankpos', 2) and cfg.get('after_loads'): cfg['after_loads'](w)
        if k == 3: A(f's_cmp_ge_u32 s9, 2\ns_cbranch_scc1 P_gend')
        if k < 3: w.wait(vm=f'A{k+1}')
        for ks in range(8):
            for b in range(2):
                for t in range(4):
                    A(mfma(vr(ACCR(b, t), 4), areg(k, b, ks), breg(t, ks), 0 if ks == 0 else None))
                if k < 3: read_a(k + 1, b, ks)
        for t in range(4):
            o = 192 + 16 * k + 4 * t
            for b in range(2):
                a = ACCR(b, t)
                for r in range(4): A(f'v_mul_f32 v{a+r}, s47, v{a+r}')
                A(f'v_cvt_pk_bf16_f32 v{o+2*b}, v{a}, v{a+1}\nv_cvt_pk_bf16_f32 v{o+2*b+1}, v{a+2}, v{a+3}')
        if k >= sfrom:
            for kk in (range(k + 1) if k == sfrom else [k]): stores(kk)
        if k == 0: tline(A, c2, 1, 0x4000, 's2')
        if k in (1, 2): tline(A, c2, 7 + k, 0x4000, 's2')
    A('P_gend:')
    tline(A, c2, 3, 0x4000, 's2')
    A(f's_branch {done}')
    A('P_misc:')
    em = Emitter(A, [f'v{i}' for i in range(200, 230)])
    A('s_sub_u32 s12, s11, 28\ns_lshl_b32 s12, s12, 3\ns_add_u32 s12, s12, s10      ; m = 0..31')
    srd(A, 20, 28, S * D * 2); srd(A, 24, 30, M * D * 2)
    A('s_lshl_b32 s13, s12, 2\ns_add_u32 s13, s13, s9')
    em.emit(rho * 896 + g * 16, 'v1')
    A('s_mul_i32 s14, s13, 14336')
    for p in range(14): A(f'buffer_load_dwordx4 {vr(4+4*p,4)}, v1, s[20:23], s14 offen offset:{p*64}')
    tid = l + Sg('s9') * 64
    A('s_cmp_lt_u32 s12, 30\ns_cbranch_scc1 P_nomem')
    gi = (Sg('s12') - 30) * 256 + tid
    rr = gi & 15
    em.emit(sel_lt(gi, 448, (((rr >> 2) * 2 + (rr & 1)) * 448 + (gi >> 4) * 16 + ((rr >> 1) & 1) * 2) * 2, OOB), 'v3')
    for q in range(4): A(f'buffer_load_dword v{188+q}, v3, s[24:27], 0 offen offset:{q*8}')
    em.emit(sel_lt(gi, 448, gi * 16 + MS, OOB), 'v3')
    A('s_waitcnt vmcnt(0)')
    for q in range(4): A(f'v_min_u32 v{188+q}, -2, v{188+q}')
    A(f'buffer_store_dwordx4 v[188:191], v3, s[4:7], 0 offen {st}\ns_waitcnt vmcnt(1)\ns_branch P_memok\nP_nomem:')
    A('s_waitcnt vmcnt(0)\nP_memok:')
    if cfg.get('after_loads'): cfg['after_loads'](w)
    em.emit(tid * 16, 'v2')
    A('v_mov_b64 v[180:181], -1\nv_mov_b64 v[182:183], -1\nv_mov_b64 v[184:185], 0\nv_mov_b64 v[186:187], 0')
    A(f's_lshl_b32 s15, s12, 14\ns_add_u32 s15, s15, {MX}')
    for k in range(4):
        A(f'buffer_store_dwordx4 v[180:183], v2, s[4:7], s15 offen {st}' + ('\ns_add_u32 s15, s15, 4096' if k < 3 else ''))
    A(f's_lshl_b32 s15, s12, 12\ns_add_u32 s16, s15, {HU1}\nbuffer_store_dwordx4 v[184:187], v2, s[4:7], s16 offen {st}')
    A(f's_mov_b32 s16, {PS}\ns_cmp_lt_u32 s12, 16\ns_cselect_b32 s16, s16, {MS + 8192 - 16*4096}\ns_add_u32 s16, s16, s15')
    A(f's_cmp_ge_u32 s12, 22\ns_cbranch_scc1 P_nofill\nbuffer_store_dwordx4 v[180:183], v2, s[4:7], s16 offen {st}\nP_nofill:')
    for k in range(56):
        A(f'v_lshlrev_b32 v{64+2*k}, 16, v{4+k}\nv_and_b32 v{65+2*k}, 0xffff0000, v{4+k}')
    def allred(r):
        A(f'v_mov_b32 v{r+1}, v{r}\nv_permlane16_swap_b32 v{r}, v{r+1}\nv_add_f32 v{r}, v{r}, v{r+1}')
        A(f'v_mov_b32 v{r+1}, v{r}\nv_permlane32_swap_b32 v{r}, v{r+1}\nv_add_f32 v{r}, v{r}, v{r+1}')
    A('v_pk_add_f32 v[180:181], v[64:65], v[66:67]\nv_pk_add_f32 v[182:183], v[68:69], v[70:71]')
    for k in range(4, 56): A(f'v_pk_add_f32 v[{180+2*(k&1)}:{181+2*(k&1)}], v[{180+2*(k&1)}:{181+2*(k&1)}], v[{64+2*k}:{65+2*k}]')
    A('v_pk_add_f32 v[180:181], v[180:181], v[182:183]\nv_add_f32 v180, v180, v181')
    allred(180)
    A(f'v_mul_f32 v180, {f32(1/448)}, v180          ; mean')
    A('v_mov_b64 v[184:185], 0\nv_mov_b64 v[186:187], 0')
    for k in range(56):
        t = 188 + 2 * (k & 1); s_ = 184 + 2 * (k & 1)
        A(f'v_pk_add_f32 v[{t}:{t+1}], v[{64+2*k}:{65+2*k}], v[180:181] op_sel_hi:[1,0] neg_lo:[0,1] neg_hi:[0,1]')
        A(f'v_pk_fma_f32 v[{s_}:{s_+1}], v[{t}:{t+1}], v[{t}:{t+1}], v[{s_}:{s_+1}]')
    A('v_pk_add_f32 v[184:185], v[184:185], v[186:187]\nv_add_f32 v184, v184, v185')
    allred(184)
    A(f'v_mul_f32 v184, {f32(1/448)}, v184          ; variance')
    rnd = lambda r: A(f'v_cvt_pk_bf16_f32 v{r}, v{r}, v{r}\nv_and_b32 v{r}, 0xffff0000, v{r}')
    rnd(180); rnd(184)
    A(f'v_add_f32 v184, {f32(1e-5)}, v184'); rnd(184)
    A('v_sqrt_f32 v184, v184'); rnd(184)
    A('v_rcp_f32 v184, v184')
    em.emit(l * 16, 'v2')
    if XF: A(f's_add_u32 s14, s14, {XF}')
    for k in range(56):
        a = 64 + 2 * k
        A(f'v_pk_add_f32 v[{a}:{a+1}], v[{a}:{a+1}], v[180:181] op_sel_hi:[1,0] neg_lo:[0,1] neg_hi:[0,1]')
        A(f'v_cvt_pk_bf16_f32 v{a}, v{a}, v{a+1}\nv_and_b32 v{a+1}, 0xffff0000, v{a}\nv_lshlrev_b32 v{a}, 16, v{a}')
        A(f'v_pk_mul_f32 v[{a}:{a+1}], v[{a}:{a+1}], v[184:185] op_sel_hi:[1,0]')
        A(f'v_cvt_pk_bf16_f32 v{4+k}, v{a}, v{a+1}')
        if k % 4 == 3:
            p = k >> 2
            if p and p % 4 == 0: A('s_add_u32 s14, s14, 4096')
            A(f'buffer_store_dwordx4 {vr(4+4*p,4)}, v2, s[4:7], s14 offen offset:{(p%4)*1024} {st}')
    A(f's_branch {done}')
```

```python
from asmdsl import Asm
from expr import X, V, Sg, Emitter, ev, sel_lt, wrap
from layout import *
import numpy as np

SRD = 's[4:7]'
def vr(a, n=1): return f'v{a}' if n == 1 else f'v[{a}:{a+n-1}]'
def wreg(o):
    return f'a[{8*o}:{8*o+7}]' if o < 32 else f'v[{120+8*(o-32)}:{127+8*(o-32)}]'
def wquad(o, b):
    return f'a[{8*o+4*b}:{8*o+4*b+3}]' if o < 32 else f'v[{120+8*(o-32)+4*b}:{123+8*(o-32)+4*b}]'

class Wv:
    def __init__(self, A, cfg):
        self.A = A; self.vm = []; self.lg = []; self.cfg = cfg; self.nst = 0
    def __call__(self, t): self.A(t)
    def vmem(self, t, tag=None): self.A(t); self.vm.append(tag)
    def ds(self, t, tag=None): self.A(t); self.lg.append(tag)
    def wait(self, vm=None, lg=None):
        parts = []
        if vm is not None and vm in self.vm:
            i = len(self.vm) - 1 - self.vm[::-1].index(vm)
            parts.append(f'vmcnt({len(self.vm)-1-i})'); self.vm = self.vm[i+1:]
        if lg is not None and lg in self.lg:
            i = len(self.lg) - 1 - self.lg[::-1].index(lg)
            n = min(len(self.lg) - 1 - i, 15)
            parts.append(f'lgkmcnt({n})'); self.lg = self.lg[i+1:]
        if parts: self.A('s_waitcnt ' + ' '.join(parts))
    def wait_all_lg(self): self.A('s_waitcnt lgkmcnt(0)'); self.lg = []
    def wait_all_vm(self): self.A('s_waitcnt vmcnt(0)'); self.vm = []
    def stamp(self, name=None):
        if self.cfg.get('stamps'):
            assert self.nst < 12
            self.A(f's_memtime s[{60+2*self.nst}:{61+2*self.nst}]'); self.nst += 1
    def dump_stamps(self, lab):
        if not self.cfg.get('stamps'): return
        A = self.A
        A(f's_waitcnt lgkmcnt(0)\ns_cmp_lg_u32 s8, 6\ns_cbranch_scc1 {lab}_nocal')
        A(f's_memrealtime s[96:97]\ns_waitcnt lgkmcnt(0)\n{lab}_cal:\ns_memrealtime s[98:99]\ns_memtime s[100:101]\ns_waitcnt lgkmcnt(0)\ns_cmp_eq_u32 s96, s98\ns_cbranch_scc1 {lab}_cal')
        for k in range(12): A(f's_mov_b32 s{84+k}, 0')
        A(f'{lab}_nocal:\ns_cmp_lt_u32 s8, 8\ns_cbranch_scc1 {lab}_nodump\ns_cmp_gt_u32 s8, 57\ns_cbranch_scc1 {lab}_nodump')
        for k in range(self.nst): A(f's_sub_u32 s11, s{60+2*k}, s100\ns_add_u32 s{84+k}, s{84+k}, s11')
        A(f's_cmp_lg_u32 s8, 57\ns_cbranch_scc1 {lab}_nodump')
        A('s_lshl_b32 s11, s3, 2\ns_add_u32 s11, s11, s9\ns_lshl_b32 s11, s11, 6')
        A(f's_add_u32 s11, s11, {DBG}')
        A(f'v_mov_b32 v0, s98\nv_mov_b32 v2, 0x4000\nbuffer_store_dword v0, v2, {SRD}, s11 offen')
        for k in range(self.nst):
            A(f'v_mov_b32 v0, s{84+k}\nv_mov_b32 v1, {4*k}\nbuffer_store_dword v0, v1, {SRD}, s11 offen')
        A(f's_waitcnt vmcnt(0)\n{lab}_nodump:')

def tline(A, cfg, k, base=0, idx='s3'):
    if not cfg.get('tl'): return
    lab = A.newlabel(f'TL{base}')
    A(f's_cmp_lg_u32 s9, 0\ns_cbranch_scc1 {lab}')
    A(f's_memrealtime s[96:97]\ns_lshl_b32 s98, {idx}, 6\ns_add_u32 s98, s98, {DBG + 0x8000 + base + 4*k}\ns_waitcnt lgkmcnt(0)')
    A(f'v_accvgpr_write_b32 a255, s96' if False else f'v_mov_b32 v{cfg.get("tlreg", 95)}, s96')
    A(f'buffer_store_dword v{cfg.get("tlreg", 95)}, off, {SRD}, s98\n{lab}:')

def smf(acc, a, b, idx): return f'v_smfmac_f32_16x16x64_bf16 {vr(acc,4)}, {a}, {b}, {idx}'

KM = 3
MREG = [16, 20, 24, 0, 4, 8, 12]
ACC = [28 + 4 * t for t in range(7)]
vIDX, vL16, vHUp, vHUs = 'v119', 'v118', 'v117', 'v116'
vKA = ['v115', 'v114', 'v113', 'v112', 'v111', 'v110', 'v109']
sSTEP, sW, sR = 's8', 's9', 's10'
sKK = [f's{12+t}' for t in range(7)]
sSPIN, sRETRY, sS1 = 's19', 's20', 's31'
sMO = ['s36', 's37', 's38']
SPIN_MAX = 0x80000
L_K = 131072

def common_consts(em, A, lab, rot):
    l = V('v0')
    em.emit(l & 63, 'v0')
    em.emit(sel_lt(l & 2, 1, 0x44444444, 0xEEEEEEEE), vIDX)
    em.emit(l * 16, vL16)
    A(f's_lshl_b32 s33, {sW}, 1\ns_add_u32 s33, s33, {rot}')
    for _ in range(3): A('s_cmp_ge_u32 s33, 7\ns_cselect_b32 s35, 7, 0\ns_sub_u32 s33, s33, s35')
    for t in range(7):
        A(f's_add_u32 s34, s33, {t}\ns_cmp_ge_u32 s34, 7\ns_cselect_b32 s35, 7, 0\ns_sub_u32 s34, s34, s35\ns_lshl_b32 {sKK[t]}, s34, 10')
    em.emit(L_K + l * 16, 'v1')
    for t in range(7): A(f'v_add_u32 {vKA[t]}, {sKK[t]}, v1')
    A(f's_cmp_lg_u32 {sW}, 3\ns_cbranch_scc1 {lab}_w3skip\nv_add_u32 {vKA[1]}, 7168, v1\n{lab}_w3skip:')

def step_consts(A, solo=False):
    A(f's_and_b32 s11, {sSTEP}, {0 if solo else 3}\ns_lshl_b32 s33, s11, 13\ns_add_u32 s33, s33, {MS}')
    for t in range(3): A(f's_add_u32 {sMO[t]}, s33, {sKK[t]}')
    A(f's_add_u32 {sS1}, {sSTEP}, 1')

def poll(w, lab, vp, sval, tmo, nl):
    w(f'v_mov_b32 {vp}, 0')
    if w.cfg.get('pollmask', 1): w(f's_mov_b32 exec_lo, {hex((1 << nl) - 1) if nl < 32 else -1}\ns_mov_b32 exec_hi, 0')
    w(f'{lab}:')
    if w.cfg.get('pollnop'): w(f's_nop {w.cfg["pollnop"]-1}')
    w(f'buffer_load_dword {vp}, {vHUp}, {SRD}, 0 offen sc1')
    w(f's_waitcnt vmcnt({w.cfg.get("polldepth", 40)})')
    w(f'v_cmp_gt_u32 vcc, {sval}, {vp}')
    w(f's_sub_u32 {sSPIN}, {sSPIN}, 1\ns_cbranch_scc1 {tmo}')
    w(f's_cbranch_vccnz {lab}')
    if w.cfg.get('pollmask', 1): w('s_mov_b64 exec, -1')
    w.vm = []

def zero(w, a, n):
    for i in range(a, a + n, 2): w(f'v_mov_b64 {vr(i,2)}, 0')

def sentinel_check(w, regs, tmp):
    w(f'v_max3_u32 {tmp}, v{regs[0]}, v{regs[1]}, v{regs[2]}')
    r = regs[3:]
    while len(r) >= 2:
        w(f'v_max3_u32 {tmp}, {tmp}, v{r[0]}, v{r[1]}'); r = r[2:]
    if r: w(f'v_max_u32 {tmp}, {tmp}, v{r[0]}')
    w(f'v_cmp_eq_u32 vcc, -1, {tmp}')

def weight_stream(w, fill, comb_write, lab, tmp, tmo=None, mpoll=False):
    cfg = w.cfg; ND = cfg.get('nd', 2)
    w(f'{lab}_mload:')
    w.vm = []; w.lg = []
    if mpoll:
        assert ND == 2
        for t in range(ND):
            w(f'buffer_load_dwordx4 {vr(MREG[t],4)}, {vL16}, {SRD}, {sMO[t]} offen sc1')
        if cfg.get('mnop'): w(f's_nop {cfg["mnop"]-1}')
        w(f's_waitcnt vmcnt({cfg.get("mdepth", 6)})')
        sentinel_check(w, list(range(MREG[0], MREG[0] + 8)), f'v{tmp}')
        w(f's_sub_u32 {sSPIN}, {sSPIN}, 1\ns_cbranch_scc1 {tmo}')
        w(f's_cbranch_vccnz {lab}_mload')
        w.vm = ['MP']
    else:
        for t in range(ND):
            w(f's_setprio {ND-1-t}')
            w.vmem(f'buffer_load_dwordx4 {vr(MREG[t],4)}, {vL16}, {SRD}, {sMO[t]} offen sc1', f'M{t}')
    order = [(tl, t) for t in range(KM) for tl in range(7)] + [(tl, t) for tl in range(7) for t in range(KM, 7)]
    pre = {}; mem = {}; val = {}
    ad = lambda d, n, f: d.setdefault(n, []).append(f)
    w1 = 1 if mpoll else cfg.get('w1', 3)
    for t, s0 in ((0, 0), (1, w1)):
        m = MREG[t]
        ad(pre, s0, lambda t=t: w.wait(vm=f'M{t}'))
        ad(mem, s0, lambda t=t, m=m: w.ds(f'ds_write_b128 {vKA[t]}, {vr(m,4)}'))
    if mpoll:
        bs = w1 + cfg.get('mbar', 4)
        def sync():
            w.wait_all_lg(); w('s_barrier')
        ad(pre, 20, lambda: w.wait(vm='MP'))
    else:
        m0, m1, m2 = MREG[0], MREG[1], MREG[2]
        ad(val, 1, lambda: w(f'v_max3_u32 v{tmp}, v{m0}, v{m0+1}, v{m0+2}'))
        c = w1 + 1
        ad(val, c, lambda: w(f'v_max3_u32 v{tmp}, v{tmp}, v{m0+3}, v{m1}'))
        ad(val, c + 1, lambda: w(f'v_max3_u32 v{tmp}, v{tmp}, v{m1+1}, v{m1+2}'))
        if ND == 2:
            ad(val, c + 2, lambda: w(f'v_max_u32 v{tmp}, v{tmp}, v{m1+3}'))
            c += 3
        else:
            ad(pre, c + 2, lambda: w.wait(vm='M2'))
            ad(val, c + 2, lambda: w(f'v_max3_u32 v{tmp}, v{tmp}, v{m1+3}, v{m2}'))
            ad(val, c + 3, lambda: w(f'v_max3_u32 v{tmp}, v{tmp}, v{m2+1}, v{m2+2}'))
            ad(val, c + 4, lambda: w(f'v_max_u32 v{tmp}, v{tmp}, v{m2+3}'))
            c += 5
        ad(val, c, lambda: w(f'v_cmp_eq_u32 vcc, -1, v{tmp}'))
        bs = c + cfg.get('bdelay', 2)
        def sync():
            w(f's_cbranch_vccnz {lab}_mretry')
            w.wait_all_lg(); w('s_barrier')
    ad(mem, bs, sync)
    n = 0
    for t in range(ND, 7):
        m = MREG[t]
        ad(mem, bs + n, lambda t=t, m=m: w.ds(f'ds_read_b128 {vr(m,4)}, {vKA[t]}', f'M{t}'))
        n += 1
    per = 7 - KM; base = 7 * KM
    for tl in range(6):
        s0 = base + per * (tl + 1) + 1
        ad(val, s0, lambda tl=tl: w(f'v_add_f32 v{tmp}, v{ACC[tl]}, v{ACC[tl]+2}'))
        ad(val, s0 + 1, lambda tl=tl: w(f'v_add_f32 v{tmp+1}, v{ACC[tl]+1}, v{ACC[tl]+3}'))
        ad(val, s0 + 2, lambda: w(f'v_cvt_pk_bf16_f32 v{tmp+2}, v{tmp}, v{tmp+1}'))
        ad(mem, s0 + 3, lambda tl=tl: comb_write(tl, f'v{tmp+2}'))
    fl, fv = fill(bs + n)
    for k, fs in fv.items():
        for f in fs: ad(val, k, f)
    if cfg.get('stamps'):
        for k in cfg.get('bfine', [0]): ad(fl, k, lambda: w.stamp())
    for n, (tl, t) in enumerate(order):
        for f in pre.get(n, []): f()
        w.wait(vm=f'M{t}', lg=f'M{t}')
        w(smf(ACC[tl], vr(MREG[t], 4), wreg(tl * 7 + t), vIDX))
        for f in mem.get(n, []): f()
        for f in fl.get(n, []): f()
        for f in val.get(n, []): f()
    assert all(k < 49 for k in fl) and all(k < 49 for k in val)
    return [f for k in sorted(mem) if k >= 49 for f in mem[k]]

MREGA = [12, 16, 20, 24, 0, 4, 8]
def a_consts(em, A):
    l = V('v0')
    em.emit(l & 63, 'v0')
    em.emit(sel_lt(l & 2, 1, 0x44444444, 0xEEEEEEEE), vIDX)
    em.emit(l * 16, vL16)
    for t in range(4): A(f's_add_u32 s34, {sW}, {sR}\ns_add_u32 s34, s34, {t}\ns_and_b32 s34, s34, 3\ns_lshl_b32 {sKK[t]}, s34, 10')
    for t in range(4, 7): A(f's_movk_i32 {sKK[t]}, {t*1024}')
    em.emit(L_K + l * 16, vKA[4])
    for t in range(4): A(f'v_add_u32 {vKA[t]}, {sKK[t]}, {vKA[4]}')
    A(f's_lshl_b32 s29, {sW}, 10\ns_add_u32 s29, s29, 4096')

def a_step_consts(A, solo=False):
    A(f's_and_b32 s11, {sSTEP}, {0 if solo else 3}\ns_lshl_b32 s33, s11, 13\ns_add_u32 s33, s33, {MS}')
    A(f's_add_u32 s36, s33, {sKK[0]}\ns_add_u32 s37, s33, {sKK[1]}\ns_add_u32 s38, s33, s29\ns_add_u32 s39, s29, {L_K}')
    A(f's_add_u32 {sS1}, {sSTEP}, 1')

def a_stream(w, fill, comb_write, lab, tmp, tmo):
    cfg = w.cfg; MR = MREGA; KMA = 4; NE = cfg.get('ne', 2)
    w(f'{lab}_mload:')
    w.vm = []; w.lg = []
    for t in range(NE): w(f'buffer_load_dwordx4 {vr(MR[t],4)}, {vL16}, {SRD}, s{36+t} offen sc1')
    if cfg.get('mnop'): w(f's_nop {cfg["mnop"]-1}')
    w(f's_waitcnt vmcnt({cfg.get("mdepth", 2)})')
    sentinel_check(w, list(range(MR[0], MR[0] + 4 * NE)), f'v{tmp}')
    w(f's_sub_u32 {sSPIN}, {sSPIN}, 1\ns_cbranch_scc1 {tmo}')
    w(f's_cbranch_vccnz {lab}_mload')
    order = [(tl, t) for t in range(KMA) for tl in range(7)] + [(tl, t) for tl in range(7) for t in range(KMA, 7)]
    pre = {}; mem = {}; val = {}
    ad = lambda d, n, f: d.setdefault(n, []).append(f)
    ew = cfg.get('ew', 128)
    if ew == 128:
        if NE == 1: w.ds(f'ds_write_b128 {vKA[0]}, {vr(MR[0],4)}')
        else: ad(mem, 0, lambda: w.ds(f'ds_write_b128 {vKA[0]}, {vr(MR[0],4)}'))
    elif ew == 64:
        for k in range(2): ad(mem, k, lambda k=k: w.ds(f'ds_write_b64 {vKA[0]}, {vr(MR[0]+2*k,2)} offset:{8*k}'))
    else:
        for k in range(4): ad(mem, k, lambda k=k: w.ds(f'ds_write_b32 {vKA[0]}, v{MR[0]+k} offset:{4*k}'))
    bs = cfg.get('ebar', 2 if NE == 1 else 8)
    ad(mem, bs, lambda: (w.wait_all_lg(), w('s_barrier')))
    for t in range(NE, 4):
        ad(mem, bs + (t - NE), lambda t=t: w.ds(f'ds_read_b128 {vr(MR[t],4)}, {vKA[t]}', f'M{t}'))
    l0 = cfg.get('lslot', 3); lb = cfg.get('lbar', 17)
    ad(mem, l0 - 1, lambda: w('s_mov_b32 m0, s39'))
    ad(mem, l0, lambda: w.vmem(f'buffer_load_dwordx4 {vL16}, {SRD}, s38 offen sc1 lds', 'L'))
    ad(mem, lb, lambda: (w.wait(vm='L'), w('s_barrier')))
    for t in (4, 5, 6): ad(mem, lb + (t - 4) // 2, lambda t=t: w.ds(f'ds_read_b128 {vr(MR[t],4)}, {vKA[4]} offset:{t*1024}', f'M{t}'))
    lc = lb + 3
    w.lretry_state = None
    ad(pre, lc + 1, lambda: w.wait(lg='M5'))
    ad(val, lc + 1, lambda: w(f'v_max3_u32 v{tmp}, v0, v1, v2'))
    ad(val, lc + 2, lambda: w(f'v_max3_u32 v{tmp}, v{tmp}, v3, v4'))
    ad(pre, lc + 3, lambda: w.wait(lg='M6'))
    ad(val, lc + 3, lambda: w(f'v_max3_u32 v{tmp}, v{tmp}, v5, v6'))
    ad(val, lc + 4, lambda: w(f'v_max3_u32 v{tmp}, v{tmp}, v7, v8'))
    ad(val, lc + 5, lambda: w(f'v_max3_u32 v{tmp}, v{tmp}, v9, v10'))
    ad(val, lc + 6, lambda: (w(f'v_max_u32 v{tmp}, v{tmp}, v11'), w(f'v_cmp_eq_u32 vcc, -1, v{tmp}')))
    cs = lc + 7
    assert cs <= 27
    ad(mem, cs, lambda: w(f's_cbranch_vccnz {lab}_lretry\n{lab}_lok:'))
    per = 7 - KMA; base = 7 * KMA
    for tl in range(6):
        s0 = base + per * (tl + 1) + 1
        o = tmp + 2
        ad(val, s0, lambda tl=tl: w(f'v_add_f32 v{tmp}, v{ACC[tl]}, v{ACC[tl]+2}'))
        ad(val, s0 + 1, lambda tl=tl: w(f'v_add_f32 v{tmp+1}, v{ACC[tl]+1}, v{ACC[tl]+3}'))
        ad(val, s0 + 2, lambda: w(f'v_cvt_pk_bf16_f32 v{o}, v{tmp}, v{tmp+1}'))
        ad(mem, s0 + 3, lambda tl=tl: comb_write(tl, f'v{o}'))
    fl, fv = fill(bs + 4 - NE, cs + 1)
    for k, fs in fv.items():
        for f in fs: ad(val, k, f)
    if cfg.get('stamps'):
        for k in cfg.get('fine', [0]): ad(fl, k, lambda: w.stamp())
    for n, (tl, t) in enumerate(order):
        for f in pre.get(n, []): f()
        w.wait(lg=f'M{t}')
        w(smf(ACC[tl], vr(MR[t], 4), wreg(tl * 7 + t), vIDX))
        for f in mem.get(n, []): f()
        for f in fl.get(n, []): f()
        for f in val.get(n, []): f()
    assert all(k < 49 for k in fl)
    return [f for k in range(49, 56) for f in mem.get(k, []) + val.get(k, [])]

def l_retry(w, lab, tmp, tmo):
    w(f'{lab}_lretry:\ns_mov_b32 s35, m0\n{lab}_lretry2:')
    w(f's_add_u32 {sRETRY}, {sRETRY}, 1\ns_barrier\ns_mov_b32 m0, s39')
    w(f's_sub_u32 {sSPIN}, {sSPIN}, 4\ns_cbranch_scc1 {tmo}')
    w(f'buffer_load_dwordx4 {vL16}, {SRD}, s38 offen sc1 lds\ns_waitcnt vmcnt(0)\ns_barrier')
    for t in (4, 5, 6): w(f'ds_read_b128 {vr(MREGA[t],4)}, {vKA[4]} offset:{t*1024}')
    w('s_waitcnt lgkmcnt(0)')
    sentinel_check(w, list(range(0, 12)), f'v{tmp}')
    w(f's_cbranch_vccnz {lab}_lretry2\ns_mov_b32 m0, s35\ns_branch {lab}_lok')

def m_retry(w, lab, tmo):
    w(f'{lab}_mretry:')
    w(f's_add_u32 {sRETRY}, {sRETRY}, 1')
    w(f's_sub_u32 {sSPIN}, {sSPIN}, 8\ns_cbranch_scc1 {tmo}\ns_waitcnt vmcnt(0) lgkmcnt(0)')
    zero(w, 28, 28)
    w(f's_branch {lab}_mload')

def emit_modes(A, cfg, lab, loop):
    if cfg.get('modes', 2) == 1:
        loop(lab, cfg.get('st', '')); return
    A(f's_cmp_lg_u32 s30, 0\ns_cbranch_scc1 {lab}_slow')
    loop(lab + 'x', '')
    A(f'{lab}_slow:')
    loop(lab + 'y', 'sc1')

def load_weights(w, addr_of):
    n = 0
    for tl in range(7):
        for t in range(7):
            for b in range(2):
                va, pre = addr_of(tl, t, b)
                w(pre)
                w(f'buffer_load_dwordx4 {wquad(tl*7+t, b)}, {va}, {SRD}, s11 offen')
                n += 1
                if n % 16 == 0: w('s_waitcnt vmcnt(32)')

A_X, A_T, A_R = 0, 65536, 77824
Z0, Z1, SACC, TSP0, TSP1, TMP = 56, 12, 80, 36, 40, 92
aKR, aKR3, aTW, aTW6, aTR, aXR, aRW, aRR = 'v108', 'v107', 'v106', 'v105', 'v104', 'v103', 'v102', 'v101'
aP, aKR2, aPOLL = 'v100', 'v99', 'v96'
sQ = ['s21', 's22', 's23', 's24']
sXS, sXL, sPW, sPR, sWL, sMASK = 's25', 's26', 's27', 's28', 's32', 's[52:53]'

def a_exprs():
    l = V('v0'); w = Sg(sW); h = Sg(sR)
    g = l >> 4; rho = l & 15
    half = (rho >> 1) & 1
    q0 = (w >> 1) * 7 + (w & 1) * 4; q3 = (w >> 1) * 7 + 3
    e = {}
    i = rho & 7
    kr = L_K + ((g >> 1) * 16 + (i >> 1) * 4 + (i & 1)) * 16 + (g & 1) * 8
    e[aKR] = kr + q0 * 512
    e[aKR3] = kr + q3 * 512
    e[aKR2] = kr + q0 * 512 + 1024
    tw = A_T + w * 3072 + (rho >> 2) * 192 + (rho & 1) * 32 + g * 8 + half * 4
    e[aTW] = tw
    e[aTW6] = tw + 2304 + (w & 1) * 64
    e[aTR] = A_T + w * 3072 + g * 384 + ((l >> 3) & 1) * 64 + ((l >> 2) & 1) * 32 + (l & 3) * 8
    e[aXR] = A_X + w * 8192 + l * 16
    e[aRW] = A_R + w * 1536 + g * 384 + rho * 4
    rr = l >> 5; pi = l & 31; pc = pi.min(19)
    e[aRR] = A_R + (w * 2 + rr) * 192 + sel_lt(pc, 4, pc * 8, pc * 8 + 32)
    row = w * 2 + rr
    rho_of = lambda hf: (row >> 1) * 4 + hf * 2 + (row & 1)
    pm = ((h >> 3) + 8) * 1024 + (((h >> 1) & 3) * 16 + rho_of(pi & 1)) * 16 + ((h & 1) * 2 + ((pi >> 1) & 1)) * 4
    t0 = (pc - 4) * 2
    px = (h >> 1) * 1024 + (((h & 1) * 2 + ((t0 >> 3) & 1)) * 16 + rho_of((t0 >> 1) & 1)) * 16 + (((t0 >> 2) & 1) * 2 + ((t0 >> 4) & 1)) * 4
    e[aP] = sel_lt(pi, 4, pm, sel_lt(pi, 20, px, OOB))
    return e

def check_a_exprs():
    e = a_exprs(); l = np.arange(64)
    for h in (0, 1, 7, 8, 15):
        for w in range(4):
            env = {'v0': l, sW: w, sR: h}
            p = ev(e[aP], env)
            for ln in range(64):
                pi = ln & 31
                assert p[ln] == (ps_off(h, 2 * w + (ln >> 5), pi) if pi < 20 else OOB)
check_a_exprs()

def gen_A(A, cfg, lab, tmo):
    w = Wv(A, cfg)
    em = Emitter(A, [f'v{i}' for i in range(2, 30)])
    a_consts(em, A)
    for k, x in a_exprs().items(): em.emit(x, k)
    l = V('v0')
    em.emit(HU1 + (l & 15) * 4, vHUp)
    em.emit(sel_lt(l + Sg(sW) * 64, 1, HU2 + Sg(sR) * 4, OOB), vHUs)
    A(f's_mov_b32 s52, 0xfffff\ns_mov_b32 s53, 0xfffff')
    A(f's_lshr_b32 s11, {sW}, 1')
    A(f's_mul_i32 s34, s11, 7\ns_and_b32 s35, {sW}, 1\ns_lshl_b32 s36, s35, 2\ns_add_u32 s36, s36, s34')
    for u in range(3): A(f's_add_u32 s37, s36, {u}\ns_lshl_b32 {sQ[u]}, s37, 10')
    A(f's_add_u32 s37, s34, 3\ns_lshl_b32 {sQ[3]}, s37, 10')
    A(f's_lshl_b32 {sWL}, {sW}, 13')
    A(f's_mul_i32 s38, {sR}, {28*14336}\ns_add_u32 s38, s38, {AF}')
    A(f's_mul_i32 s39, s35, 14336')
    def addr(tl, t, b):
        pre = f's_mul_i32 s11, {sQ[tl>>1]}, 28\ns_add_u32 s11, s11, s38\n'
        pre += (f's_add_u32 s11, s11, {14336*(tl&1) + 1024*b}\n' if tl < 6 else f's_add_u32 s11, s11, s39\ns_add_u32 s11, s11, {1024*b}\n')
        pre += f's_lshl_b32 s37, {sKK[t]}, 1\ns_add_u32 s11, s11, s37'
        return vL16, pre
    sXo = ['s44', 's45', 's46', 's47']; sXm = ['s48', 's49', 's50', 's51']
    def x_consts():
        A(f's_add_u32 {sXo[0]}, {sXS}, {sQ[0]}\ns_add_u32 {sXo[1]}, {sXS}, {sQ[3]}')
        A(f's_add_u32 {sXo[2]}, {sXo[0]}, 14336\ns_add_u32 {sXo[3]}, {sXo[1]}, 14336')
        A(f's_mov_b32 {sXm[0]}, {sXL}\ns_add_u32 {sXm[1]}, {sXL}, 3072\ns_add_u32 {sXm[2]}, {sXL}, 4096\ns_add_u32 {sXm[3]}, {sXL}, 7168')
    def x_m0(tt, u):
        if u in (0, 3): A(f's_mov_b32 m0, {sXm[2*tt + (u == 3)]}')
    def x_dma(tt, u, w=w):
        w.vmem(f'buffer_load_dwordx4 {vL16}, {SRD}, {sXo[2*tt + (u == 3)]} offen offset:{1024*u if u < 3 else 0} lds', 'X')
    A(f's_mov_b32 {sXS}, {XF}\ns_mov_b32 {sXL}, {sWL}')
    x_consts()
    for tt in range(2):
        for u in range(4): x_m0(tt, u); x_dma(tt, u)
    load_weights(w, addr)
    em.emit(A_T + Sg(sW) * 3072 + l * 16, 'v1')
    A('v_mov_b64 v[4:5], 0\nv_mov_b64 v[6:7], 0')
    for k in range(3): A(f'ds_write_b128 v1, v[4:7] offset:{k*1024}')
    zero(w, 28, 28); zero(w, SACC, 12)
    A(f's_mov_b32 {sSTEP}, 0\ns_mov_b32 {sSPIN}, {SPIN_MAX}\ns_mov_b32 {sRETRY}, 0')
    cfg['start_sync'](w, lab)
    A('s_waitcnt vmcnt(0) lgkmcnt(0)'); w.vm = []; w.lg = []
    def loop(lab, st):
        w = Wv(A, cfg)
        A(f'{lab}_loop:')
        cfg['loop_top'](w, lab)
        a_step_consts(A, cfg.get('solo'))
        A(f's_lshl_b32 s33, s11, 14\ns_add_u32 {sPW}, s33, {PS}\ns_xor_b32 {sPR}, {sPW}, 0x8000')
        A(f's_mul_i32 {sXS}, {sS1}, {0 if cfg.get("xsame") else 28672}' + (f'\ns_add_u32 {sXS}, {sXS}, {XF}' if XF else ''))
        A(f's_and_b32 s11, {sS1}, 1\ns_lshl_b32 s11, s11, 15\ns_add_u32 {sXL}, s11, {sWL}')
        x_consts()
        A(f'v_mov_b32 v{TMP+3}, {sS1}')
        for r in range(MREGA[0], MREGA[0] + 4 * cfg.get('ne', 2), 2): A(f'v_mov_b64 {vr(r,2)}, -1')
        w.stamp()
        gate = cfg.get('gate', 'w0')
        if gate == 'w0':
            A(f's_cmp_lg_u32 {sW}, 0\ns_cbranch_scc1 {lab}_nopoll')
            if not cfg.get('solo'): poll(w, f'{lab}_poll1', aPOLL, sSTEP, tmo, 16)
            A(f'{lab}_nopoll:\ns_barrier')
        elif gate == 'all':
            poll(w, f'{lab}_poll1', aPOLL, sSTEP, tmo, 16)
        w.stamp()
        for _ in range(cfg.get('adelay', 0)): A('s_nop 15')
        xpos = cfg.get('xpos', [14, 19, 24, 29, 34, 39, 44, 50])
        def xat(p):
            for k in range(8):
                if xpos[k] == p: x_m0(k >> 2, k & 3); x_dma(k >> 2, k & 3, w)
        def fill(f0, k0):
            d = {}; dv = {}
            add = lambda n, f: d.setdefault(n, []).append(f)
            def kq(n, reg, areg, off, tag, ns):
                if cfg.get('kr2'):
                    r2 = areg if off < 1024 else aKR2
                    o = (off & 1023) // 4
                    add(n, lambda: w.ds(f'ds_read2_b32 {vr(reg,2)}, {r2} offset0:{o} offset1:{o+8}', tag))
                    add(n, lambda: w.ds(f'ds_read2_b32 {vr(reg+2,2)}, {r2} offset0:{o+1} offset1:{o+9}', tag))
                    return
                add(n, lambda: w.ds(f'ds_read_b64 {vr(reg,2)}, {areg} offset:{off}', tag))
                add(n, lambda: w.ds(f'ds_read_b64 {vr(reg+2,2)}, {areg} offset:{off+32}', tag))
                add(ns, lambda: w.wait(lg=tag))
                dv.setdefault(ns, []).append(lambda: w(f'v_swap_b32 v{reg+1}, v{reg+2}'))
            n = f0
            for tt in range(2):
                for uu in range(2):
                    add(n, lambda tt=tt, uu=uu: w.ds(f'ds_read_b128 {vr(Z0+8*(1+tt)+4*uu,4)}, {aXR} offset:{(tt*4+uu)*1024}', 'Z0')); n += 1
            for k in range(8):
                if xpos[k] < 49:
                    add(xpos[k] - 1, lambda k=k: x_m0(k >> 2, k & 3))
                    add(xpos[k], lambda k=k: x_dma(k >> 2, k & 3, w))
            ks = cfg.get('kswap', [36, 39, 42, 45])
            kq(k0, Z0, aKR, 0, 'K0', ks[0]); kq(k0 + 1, Z0 + 4, aKR, 512, 'K1', ks[1])
            kq(k0 + 3, Z1, aKR, 1024, 'K2', ks[2]); kq(k0 + 4, Z1 + 4, aKR3, 0, 'K3', ks[3])
            for k, sl in enumerate((36, 37, 39, 40)):
                tt, uu = k >> 1, k & 1
                add(sl, lambda tt=tt, uu=uu: w.ds(f'ds_read_b128 {vr(Z1+8*(1+tt)+4*uu,4)}, {aXR} offset:{(tt*4+2+uu)*1024}', 'Z1'))
            add(45, lambda: w.ds(f'ds_read_b64_tr_b16 {vr(TSP0,2)}, {aTR}', 'TS0'))
            add(46, lambda: w.ds(f'ds_read_b64_tr_b16 {vr(TSP0+2,2)}, {aTR} offset:192', 'TS0'))
            return d, dv
        def tw(tl, reg):
            if tl < 6: w.ds(f'ds_write_b32 {aTW}, {reg} offset:{(tl>>1)*768 + (tl&1)*64}')
            else: w.ds(f'ds_write_b32 {aTW6}, {reg}')
        rest = a_stream(w, fill, tw, lab, TMP, tmo)
        w.stamp()
        w.wait(lg='TS0')
        w(smf(SACC, vr(TSP0, 4), vr(Z0, 8), vIDX))
        rest[0]()
        w(smf(SACC + 4, vr(TSP0, 4), vr(Z0 + 8, 8), vIDX))
        rest[1]()
        w(f'v_add_f32 v{TMP}, v{ACC[6]}, v{ACC[6]+2}\nv_add_f32 v{TMP+1}, v{ACC[6]+1}, v{ACC[6]+3}')
        w(f'v_cvt_pk_bf16_f32 v{TMP+2}, v{TMP}, v{TMP+1}')
        tw(6, f'v{TMP+2}')
        w.ds(f'ds_read_b64_tr_b16 {vr(TSP1,2)}, {aTR} offset:1536', 'TS1')
        w.ds(f'ds_read_b64_tr_b16 {vr(TSP1+2,2)}, {aTR} offset:{1536+192}', 'TS1')
        w(smf(SACC + 8, vr(TSP0, 4), vr(Z0 + 16, 8), vIDX))
        xat(50)
        w.wait(lg='TS1')
        for kt in range(3): w(smf(SACC + 4 * kt, vr(TSP1, 4), vr(Z1 + 8 * kt, 8), vIDX))
        for kt in range(3):
            w(f'v_add_f32 v{56+2*kt}, v{SACC+4*kt}, v{SACC+4*kt+2}\nv_add_f32 v{57+2*kt}, v{SACC+4*kt+1}, v{SACC+4*kt+3}')
            w.ds(f'ds_write2_b32 {aRW}, v{56+2*kt}, v{57+2*kt} offset0:{16*kt} offset1:{16*kt+48}')
        hu2 = lambda: w.vmem(f'buffer_store_dword v{TMP+3}, {vHUs}, {SRD}, 0 offen {st}')
        hp = cfg.get('hu2pos', 0)
        w.stamp()
        if hp == -1: hu2()
        xat(51)
        w.wait_all_lg()
        A('s_barrier')
        for k in range(4): w.ds(f'ds_read_b64 {vr(64+2*k,2)}, {aRR} offset:{k*1536}', f'R{k}')
        if hp == 0: hu2()
        xat(52)
        w.stamp()
        w.wait(lg='R1'); w('v_pk_add_f32 v[64:65], v[64:65], v[66:67]')
        w.wait(lg='R3'); w('v_pk_add_f32 v[68:69], v[68:69], v[70:71]')
        w('v_pk_add_f32 v[64:65], v[64:65], v[68:69]')
        if hp == 1: hu2()
        w('v_max_f32 v66, v64, v65')
        for k, r in enumerate((8, 4, 2, 1)):
            if hp == 2 + k: hu2()
            xat(53 + k)
            w(f'v_max_f32_dpp v66, v66, v66 row_ror:{r} row_mask:0xf bank_mask:0xf')
        w('v_mov_b32 v67, v66')
        w('v_permlane16_swap_b32 v66, v67')
        w('v_max_f32 v66, v66, v67')
        w('v_pk_add_f32 v[64:65], v[64:65], v[66:67] op_sel_hi:[1,0] neg_lo:[0,1] neg_hi:[0,1]')
        w('v_exp_f32 v64, v64\nv_exp_f32 v65, v65')
        if hp == 6: hu2()
        w('v_add_f32 v66, v64, v65')
        w(f'v_cndmask_b32 v66, 0, v66, {sMASK}')
        for k, r in enumerate((8, 4, 2, 1)):
            if hp == 7 + k: hu2()
            xat(57 + k)
            w(f'v_add_f32_dpp v66, v66, v66 row_ror:{r} row_mask:0xf bank_mask:0xf')
        w('v_mov_b32 v67, v66\nv_permlane16_swap_b32 v66, v67\nv_add_f32 v66, v66, v67')
        w('v_rcp_f32 v66, v66')
        if hp == 11: hu2()
        w('v_pk_mul_f32 v[64:65], v[64:65], v[66:67] op_sel_hi:[1,0]')
        w('v_cvt_pk_bf16_f32 v64, v64, v65')
        w('v_min_u32 v64, -2, v64')
        w.vmem(f'buffer_store_dword v64, {aP}, {SRD}, {sPW} offen {st}')
        if hp == 99: hu2()
        w.stamp()
        if cfg.get('ack'): w.wait_all_vm(); w.stamp()
        w('v_mov_b32 v65, -1')
        w.vmem(f'buffer_store_dword v65, {aP}, {SRD}, {sPR} offen {st}')
        xat(99)
        zero(w, 28, 28); zero(w, SACC, 12)
        w(f'v_xor_b32 {aXR}, 0x8000, {aXR}')
        w.dump_stamps(lab)
        A(f's_mov_b32 {sSPIN}, {SPIN_MAX}')
        A(f's_mov_b32 {sSTEP}, {sS1}\ns_cmp_lt_u32 {sSTEP}, {NSEG-1}\ns_cbranch_scc1 {lab}_loop')
        cfg['finish'](w, lab)
        A('s_endpgm')
        l_retry(w, lab, TMP, tmo)

    emit_modes(A, cfg, lab, loop)

B_VX, B_V = 0, 65536
bVW, bWR, bVR, bMS, bSEL = 'v108', 'v107', 'v106', 'v105', 'v104'
bMX, bFL, bVL, bPOLL = 'v107', 'v106', 'v105', 'v104'
bTO, bINC, bFLAG = 'v99', 'v98', 'v97'
bDM = [f'v{89+k}' for k in range(7)]
BT = 100
FACC = 96
sVS, sVL, sMW, sMR, sMXO = 's25', 's26', 's27', 's28', 's29'

def bcol(j, c):
    return sel_lt(c, 16, j * 16 + c, j * 12 + c + 240)

def b_exprs_final():
    l = V('v0'); w = Sg(sW); j = Sg(sR)
    g = l >> 4; n = l & 15; c = w * 16 + n
    e = {}
    e[bWR] = B_VX + (g * 28 + c.min(27)) * 16
    e[bVR] = B_V + (g * 28 + c.min(27)) * 16
    i = g * 2 + (n & 1); d0 = bcol(j, c & 30)
    k = d0 & 63
    off = (d0 >> 6) * 1024 + ((k >> 4) * 16 + (i >> 1) * 4 + ((k >> 1) & 1) * 2 + (i & 1)) * 16 + ((k >> 2) & 3) * 4
    e[bMS] = sel_lt(c, 28, off, OOB)
    e[bSEL] = sel_lt(n & 1, 1, 0x05040100, 0x03020706)
    return e
def check_b():
    e = b_exprs_final(); l = np.arange(64)
    for j in (0, 1, 5, 15):
        for w in range(2):
            p = ev(e[bMS], {'v0': l, sW: w, sR: j})
            for ln in range(64):
                c = 16 * w + (ln & 15)
                assert p[ln] == (ms_off(2 * (ln >> 4) + (ln & 1), (16 * j if c < 16 else 12 * j + 240) + (c & ~1)) if c < 28 else OOB)
check_b()

def gen_B(A, cfg, lab, tmo):
    w = Wv(A, cfg)
    em = Emitter(A, [f'v{i}' for i in list(range(2, 20)) + list(range(28, 56))])
    A(f's_add_u32 s39, {sR}, 1')
    common_consts(em, A, lab, 's39')
    l = V('v0'); ww = Sg(sW); j = Sg(sR)
    em.emit(B_V + (ww * 112 + (l & 15)) * 16 + (l >> 4) * 4, bVW)
    for tl in range(7):
        f = ww * 112 + tl * 16 + (l & 15); hh = f.div(28)
        em.emit((hh * 56 + (l >> 4)) * 7168 + bcol(j, f - hh * 28) * 16, f'v{20+tl}')
    def addr(tl, t, b):
        return f'v{20+tl}', f's_mul_i32 s11, {sKK[t]}, 56\ns_add_u32 s11, s11, {BF + 28672*b}'
    def vw(tl, reg): w.ds(f'ds_write_b32 {bVW}, {reg} offset:{tl*256}')
    def tail6(rest):
        for f in rest: f()
        w(f'v_add_f32 v{BT}, v{ACC[6]}, v{ACC[6]+2}\nv_add_f32 v{BT+1}, v{ACC[6]+1}, v{ACC[6]+3}')
        w(f'v_cvt_pk_bf16_f32 v{BT+2}, v{BT}, v{BT+1}')
        vw(6, f'v{BT+2}')
    A(f's_cmp_ge_u32 {sW}, 2\ns_cbranch_scc1 {lab}_loader')
    for k, x in b_exprs_final().items(): em.emit(x, k)
    em.emit(sel_lt(l, 1, HU1 + 128 + (j * 2 + ww) * 4, OOB), vHUs)
    load_weights(w, addr)
    zero(w, 28, 28)
    A(f's_mov_b32 {sSTEP}, 0\ns_mov_b32 {sSPIN}, {SPIN_MAX}\ns_mov_b32 {sRETRY}, 0')
    cfg['start_sync'](w, lab + 'f')
    A('s_waitcnt vmcnt(0) lgkmcnt(0)')
    def loopf(lf, st, second):
        nonlocal w
        w = Wv(A, cfg)
        PREG = [4 * m for m in range(10)]
        order = cfg.get('porder', [0, 1, 2, 3, 4, 8, 9, 5, 6, 7])
        WREG = {0: 56, 1: 64, 2: 72, 3: 80, 4: 88, 8: 40, 9: 48, 5: 56, 6: 64, 7: 72}
        sPO = ['s22', 's23', 's24']
        def wx(m, b): w.ds(f'ds_read_b128 {vr(WREG[m]+4*b,4)}, {bWR} offset:{(2*m+b)*1792}', f'W{m}')
        A(f'{lf}_loop:')
        step_consts(A)
        A(f's_lshl_b32 s11, s11, 14\ns_add_u32 s22, s11, {PS}\ns_add_u32 s23, s22, 4096\ns_add_u32 s24, s22, 8192')
        A(f's_and_b32 s11, {sS1}, 3\ns_lshl_b32 s11, s11, 13\ns_add_u32 {sMW}, s11, {MS}\ns_xor_b32 {sMR}, {sMW}, 0x4000')
        A(f'v_mov_b32 v{BT+3}, {sS1}\nv_mov_b64 {vr(FACC,2)}, 0\nv_mov_b64 {vr(FACC+2,2)}, 0')
        if cfg.get('bpoll'):
            for r in range(MREG[0], MREG[0] + 8, 2): A(f'v_mov_b64 {vr(r,2)}, -1')
        w.stamp()
        A('s_barrier')
        w.stamp()
        def fillf(f0):
            d = {}
            for m in range(5):
                for b in range(2): d.setdefault(f0 + 2 * m + b, []).append(lambda m=m, b=b: wx(m, b))
            return d, {}
        tail6(weight_stream(w, fillf, vw, lf, BT, tmo, cfg.get('bpoll')))
        w.stamp()
        w.wait_all_lg()
        A('s_barrier')
        A(f's_cmp_eq_u32 {sSTEP}, {NSEG-1}\ns_cbranch_scc1 {lf}_done')
        for u in range(4): w.ds(f'ds_read_b128 {vr(40+4*u,4)}, {bVR} offset:{u*1792}', f'W{8+(u>>1)}')
        w.stamp()
        A('s_barrier')
        if second: A('s_barrier')
        w.stamp()
        def ploads():
            for k, m in enumerate(order):
                w.vmem(f'buffer_load_dwordx4 {vr(PREG[k],4)}, {vL16}, {SRD}, {sPO[m>>2]} offen offset:{(m&3)*1024} sc1', f'P{k}')
        ploads()
        if not second: A('s_barrier')
        A(f'{lf}_pchain:')
        for k, m in enumerate(order):
            w.wait(vm=f'P{k}', lg=f'W{m}')
            if k == 0: w.stamp()
            w(smf(FACC, vr(PREG[k], 4), vr(WREG[m], 8), vIDX))
            if k < 3: wx(5 + k, 0); wx(5 + k, 1)
        w(f'v_add_f32 v{BT}, v{FACC}, v{FACC+2}\nv_add_f32 v{BT+1}, v{FACC+1}, v{FACC+3}')
        w(f'v_cmp_u_f32 vcc, v{BT}, v{BT+1}')
        w(f'v_cvt_pk_bf16_f32 v{BT}, v{BT}, v{BT+1}')
        w(f'v_mov_b32_dpp v{BT+1}, v{BT} quad_perm:[1,0,3,2] row_mask:0xf bank_mask:0xf')
        w(f'v_perm_b32 v{BT}, v{BT+1}, v{BT}, {bSEL}')
        w(f'v_min_u32 v{BT}, -2, v{BT}')
        w(f's_cbranch_vccnz {lf}_pretry\n{lf}_pok:')
        w.vmem(f'buffer_store_dword v{BT}, {bMS}, {SRD}, {sMW} offen {st}')
        w.stamp()
        if cfg.get('ack'): w.wait_all_vm(); w.stamp()
        w(f'v_mov_b32 v{BT+1}, -1')
        w.vmem(f'buffer_store_dword v{BT+1}, {bMS}, {SRD}, {sMR} offen {st}')
        w.vmem(f'buffer_store_dword v{BT+3}, {vHUs}, {SRD}, 0 offen {st}')
        zero(w, 28, 28)
        w(f'v_xor_b32 {bWR}, 0x8000, {bWR}')
        w.dump_stamps(lf)
        A(f's_mov_b32 {sSPIN}, {SPIN_MAX}\ns_mov_b32 {sSTEP}, {sS1}\ns_branch {lf}_loop')
        A(f'{lf}_done:')
        cfg['finish'](w, lf)
        A('s_endpgm')
        m_retry(w, lf, tmo)
        A(f'{lf}_pretry:\ns_waitcnt vmcnt(0) lgkmcnt(0)')
        sentinel_check(w, list(range(0, 40)), f'v{BT+2}')
        A(f's_cbranch_vccz {lf}_pok')
        A(f's_add_u32 {sRETRY}, {sRETRY}, 0x10000\ns_sub_u32 {sSPIN}, {sSPIN}, 8\ns_cbranch_scc1 {tmo}')
        for m in range(3): wx(m, 0); wx(m, 1)
        A(f'v_mov_b64 {vr(FACC,2)}, 0\nv_mov_b64 {vr(FACC+2,2)}, 0\ns_waitcnt lgkmcnt(0)')
        ploads()
        A(f's_branch {lf}_pchain')
    A(f's_cmp_eq_u32 {sW}, 1\ns_cbranch_scc1 {lab}_second')
    emit_modes(A, cfg, lab + 'f', lambda lf, st: loopf(lf, st, False))
    A(f'{lab}_second:')
    emit_modes(A, cfg, lab + 'g', lambda lf, st: loopf(lf, st, True))
    ll = lab + 'l'
    A(f'{lab}_loader:')
    w = Wv(A, cfg)
    for r in range(7):
        f = l + 64 * r; hg = f.div(28)
        em.emit(hg * 7168 + bcol(j, f - hg * 28) * 16 + (4096 - (r & 3) * 1024), bDM[r])
    em.emit(sel_lt(ww, 3, HU1 + 128 + (l & 31) * 4, HU2 + (l & 15) * 4), vHUp)
    em.emit(sel_lt(l + (3 - ww) * 64, 1, HU1 + j * 4, OOB), vHUs)
    em.emit(sel_lt(j + (3 - ww) * 16, 7, j * 1024 + l * 16, OOB), bMX)
    xl = (j * 2 + ww - 2) * 7 + l
    em.emit(sel_lt(l, 7, XF + 2 * 28672 + xl * 128, sel_lt(l, 63, OOB, FVX + 2 * 128)), bTO)
    em.emit(sel_lt(l, 63, 28672, 128), bINC)
    A(f'v_mov_b32 {bFLAG}, 16')
    A(f's_sub_u32 s11, {sW}, 2\ns_mul_i32 s23, s11, 14336\ns_mul_i32 s24, s11, {VX_SEG//2}\ns_add_u32 s24, s24, {VXF - 4096}')
    def vx_m0(k):
        if k % 7 in (0, 4): w(f's_add_u32 m0, {sVL}, {k*1024}')
    def vx_dma(k):
        w.vmem(f'buffer_load_dwordx4 {bDM[k%7]}, {SRD}, {sVS if k < 7 else "s44"} offen offset:{((k%7)&3)*1024} lds', 'D')
    load_weights(w, addr)
    zero(w, 28, 28)
    A(f's_mov_b32 {sSTEP}, 0\ns_mov_b32 {sSPIN}, {SPIN_MAX}\ns_mov_b32 {sRETRY}, 0')
    cfg['start_sync'](w, ll)
    A(f's_mov_b32 {sVS}, s24\ns_add_u32 s44, {sVS}, {16*7168}\ns_mov_b32 {sVL}, s23')
    for k in range(14): vx_m0(k); vx_dma(k)
    def loopl(ll, st):
        nonlocal w
        w = Wv(A, cfg)
        A(f'{ll}_loop:')
        step_consts(A)
        A(f's_min_u32 s11, {sS1}, {0 if cfg.get("vxsame") else NSEG-1}\ns_mul_i32 {sVS}, s11, {VX_SEG}\ns_add_u32 {sVS}, {sVS}, s24\ns_add_u32 s44, {sVS}, {16*7168}')
        A(f's_and_b32 s11, {sS1}, 1\ns_lshl_b32 s11, s11, 15\ns_add_u32 {sVL}, s11, s23')
        A(f's_mul_i32 {sMXO}, {sSTEP}, 7168\ns_add_u32 {sMXO}, {sMXO}, {MX}')
        if cfg.get('bpoll'):
            for r in range(MREG[0], MREG[0] + 8, 2): A(f'v_mov_b64 {vr(r,2)}, -1')
        A('s_waitcnt vmcnt(0)')
        A(f's_cmp_ge_u32 {sSTEP}, {NSEG-1}\ns_cbranch_scc1 {ll}_fok')
        A(f'{ll}_fchk:\nv_readlane_b32 s11, {bFLAG}, 63\ns_nop 0\ns_cmp_ge_u32 s11, 16\ns_cbranch_scc1 {ll}_fok')
        A(f's_lshl_b32 s11, {sS1}, 7\ns_add_u32 s11, s11, {FVX}')
        A(f'buffer_load_dword {bFLAG}, off, {SRD}, s11 sc1')
        A(f's_sub_u32 {sSPIN}, {sSPIN}, 1\ns_cbranch_scc1 {tmo}\ns_waitcnt vmcnt(0)\ns_branch {ll}_fchk\n{ll}_fok:')
        w.stamp()
        A(f's_cmp_lg_u32 {sW}, 2\ns_cbranch_scc1 {ll}_nopoll')
        poll(w, f'{ll}_poll1', bPOLL, sSTEP, tmo, 32)
        A(f'{ll}_nopoll:\ns_barrier')
        w.stamp()
        d0 = cfg.get('dslot', 2); dstep = cfg.get('dstep', 2)
        def filll(f0):
            d = {}
            add = lambda n, f: d.setdefault(n, []).append(f)
            for k in range(14):
                add(d0 + dstep * k - 1, lambda k=k: vx_m0(k))
                add(d0 + dstep * k, lambda k=k: vx_dma(k))
            add(d0 + dstep * 14, lambda: w.vmem(f'buffer_load_dword {bFLAG}, {bTO}, {SRD}, 0 offen sc1', 'D'))
            if not cfg.get('nomx'):
                add(max(f0 - 4, cfg.get('vslot', 0)), lambda: w.vmem(f'buffer_store_dwordx4 {vr(MREG[0],4)}, {bMX}, {SRD}, {sMXO} offen {cfg.get("mxfl", "sc1")}'))
            return d, {}
        tail6(weight_stream(w, filll, vw, ll, BT, tmo, cfg.get('bpoll')))
        w.stamp()
        w.wait_all_lg()
        A('s_barrier')
        A(f's_cmp_eq_u32 {sSTEP}, {NSEG-1}\ns_cbranch_scc1 {ll}_done')
        zero(w, 28, 28)
        A(f'v_mov_b32 v{BT+3}, {sS1}')
        if not cfg.get('xsame'): A(f'v_add_u32 {bTO}, {bTO}, {bINC}')
        w.stamp()
        if cfg.get('drain'):
            w.wait(vm='D'); w.stamp(); w.wait_all_vm(); w.stamp()
        A(f's_cmp_lg_u32 {sW}, 3\ns_cbranch_scc1 {ll}_nopoll2')
        poll(w, f'{ll}_poll2', bPOLL, sS1, tmo, 16)
        A(f'{ll}_nopoll2:\ns_barrier')
        hu1 = f'buffer_store_dword v{BT+3}, {vHUs}, {SRD}, 0 offen {st}'
        if cfg.get('hu1pos', 0) == 0: A(hu1)
        A('s_barrier')
        if cfg.get('hu1pos', 0) == 1: A(hu1)
        w.dump_stamps(ll)
        A(f's_mov_b32 {sSPIN}, {SPIN_MAX}\ns_mov_b32 {sSTEP}, {sS1}\ns_branch {ll}_loop\n{ll}_done:')
        cfg['finish'](w, ll)
        A('s_endpgm')
        m_retry(w, ll, tmo)
    emit_modes(A, cfg, ll, loopl)
```

```python
from asmdsl import Asm
from expr import X, V, Sg, Emitter, ev, sel_lt
from layout import *
from rec import tline, Wv, vr, wquad, wreg, smf, zero, sentinel_check, SRD
from prep import f32, mfma, srd
import math

sW, sR = 's9', 's10'
sSPIN = 's19'
WSPIN = 0x40000
NV = 4
NQ = 4

def wait_flag(w, lab, soff, target, tmo, vt='v2'):
    w(f's_cmp_lg_u32 {sW}, 0\ns_cbranch_scc1 {lab}_go\ns_mov_b32 {sSPIN}, {WSPIN}')
    w(f'{lab}:\nbuffer_load_dword {vt}, off, {SRD}, {soff} sc1')
    w(f's_sub_u32 {sSPIN}, {sSPIN}, 1\ns_cbranch_scc1 {tmo}\ns_waitcnt vmcnt(0)')
    w(f'v_cmp_gt_u32 vcc, {target}, {vt}\ns_cbranch_vccnz {lab}')
    w(f'{lab}_go:\ns_barrier')

def signal(w, lab, soff, vt='v2'):
    w('s_waitcnt vmcnt(0)\ns_barrier'); w.vm = []
    w(f's_cmp_lg_u32 {sW}, 0\ns_cbranch_scc1 {lab}\nv_mov_b32 {vt}, 1\ns_mov_b64 exec, 1')
    w(f'buffer_atomic_add {vt}, off, {SRD}, {soff} sc1\ns_mov_b64 exec, -1\n{lab}:')

def load_w(w, addr_of):
    n = 0
    for tl in range(7):
        for p in range(14):
            va, pre = addr_of(tl, p)
            w(pre)
            w(f'buffer_load_dwordx4 {wquad(tl*7 + (p>>1), p&1)}, {va}, {SRD}, s11 offen')
            n += 1
            if n % 16 == 0: w('s_waitcnt vmcnt(32)')

XB = 56
def xq(p, tt): return XB + ((p & 3) * 2 + tt) * 4
def acc2(tl, tt): return (tl * 2 + tt) * 4
sXB, sXN = 's20', 's21'
vL16 = 'v119'

def x_load(w, p, base):
    for tt in range(2):
        off = p * 1024 + tt * 14336
        w(f's_add_u32 s11, {base}, {off & ~4095}')
        w.vmem(f'buffer_load_dwordx4 {vr(xq(p,tt),4)}, {vL16}, {SRD}, s11 offen offset:{off & 4095}', f'X{p}')

def seg_gemm(w, w_is_a):
    for p in range(14):
        w.wait(vm=f'X{p}')
        for tl in range(7):
            for tt in range(2):
                wq = wquad(tl * 7 + (p >> 1), p & 1); xx = vr(xq(p, tt), 4)
                a, b = (wq, xx) if w_is_a else (xx, wq)
                w(mfma(vr(acc2(tl, tt), 4), a, b, 0 if p == 0 else None))
        if p + 4 < 14: x_load(w, p + 4, sXB)
        elif p >= 12: pass
    for p in range(4): x_load(w, p, sXN)

def mx_wait(w, lab, regs, loads, tmo, tmp):
    w(f's_mov_b32 {sSPIN}, {WSPIN}\n{lab}_1:\nbuffer_load_dword {tmp}, off, {SRD}, s15 sc1')
    w(f's_sub_u32 {sSPIN}, {sSPIN}, 1\ns_cbranch_scc1 {tmo}\ns_waitcnt vmcnt(0)\nv_cmp_eq_u32 vcc, -1, {tmp}\ns_cbranch_vccnz {lab}_1')
    w(f'{lab}:')
    loads()
    w(f's_sub_u32 {sSPIN}, {sSPIN}, 1\ns_cbranch_scc1 {tmo}\ns_waitcnt vmcnt(0)'); w.vm = []
    sentinel_check(w, regs, tmp)
    w(f's_cbranch_vccnz {lab}')

def gen_V(A, cfg, lab, tmo):
    w = Wv(A, {})
    em = Emitter(A, [f'v{i}' for i in range(2, 30)])
    l = V('v0'); g = l >> 4; n = l & 15; ww = Sg(sW); h = Sg(sR)
    em.emit(l & 63, 'v0')
    em.emit(l * 16, vL16)
    em.emit(sel_lt(l & 2, 1, 0x44444444, 0xEEEEEEEE), 'v118')
    em.emit(g * 7168 + (ww * 112 + n) * 16, 'v117')
    em.emit((ww * 112 + n) * 16 + g * 4, 'v116')
    A(f's_mul_i32 s13, {sR}, {14*28672}\ns_add_u32 s13, s13, {BF}')
    A(f's_mul_i32 {sXB}, s12, 28672' + (f'\ns_add_u32 {sXB}, {sXB}, {XF}' if XF else ''))
    load_w(w, lambda tl, p: ('v117', f's_add_u32 s11, s13, {p*28672 + tl*256}'))
    c2 = dict(cfg, tlreg=97)
    if cfg.get('tl'): A('s_waitcnt vmcnt(0)')
    tline(A, c2, 1)
    for p in range(4): x_load(w, p, sXB)
    A(f's_mov_b32 s8, s12\ns_mul_i32 s14, {sR}, 28672')
    A(f'{lab}_loop:')
    A(f's_add_u32 {sXN}, {sXB}, {NV*28672}')
    w.vm = [f'X{p}' for p in range(4) for _ in range(2)]
    seg_gemm(w, False)
    A(f's_mul_i32 s15, s8, {VX_SEG}\ns_add_u32 s15, s15, s14\ns_add_u32 s15, s15, {VXF}')
    for tl in range(7):
        o = 88 + 4 * (tl & 1)
        for tt in range(2):
            a = acc2(tl, tt)
            A(f'v_cvt_pk_bf16_f32 v{o+2*tt}, v{a}, v{a+1}\nv_cvt_pk_bf16_f32 v{o+2*tt+1}, v{a+2}, v{a+3}')
        A(f'buffer_store_dwordx4 {vr(o,4)}, v117, {SRD}, s15 offen offset:{tl*256} sc1')
    A(f's_lshl_b32 s15, s8, 7\ns_add_u32 s15, s15, {FVX}')
    signal(w, f'{lab}_sig', 's15', 'v96')
    if cfg.get('tl'):
        A(f's_cmp_ge_u32 s8, {NV}\ns_cbranch_scc1 {lab}_tl1'); tline(A, c2, 2); A(f'{lab}_tl1:')
    A(f's_mov_b32 {sXB}, {sXN}\ns_add_u32 s8, s8, {NV}\ns_cmp_lt_u32 s8, {NSEG}\ns_cbranch_scc1 {lab}_loop')
    tline(A, c2, 3)
    A(f's_mov_b32 s8, s12\ns_mul_i32 s14, {sR}, 7168')
    A(f'{lab}_mloop:')
    zero(w, 28, 28)
    A(f's_mul_i32 s15, s8, 7168\ns_add_u32 s15, s15, {MX}\ns_add_u32 s16, s15, 4096')
    def loads():
        for kk in range(7):
            A(f'buffer_load_dwordx4 {vr(4*kk,4)}, {vL16}, {SRD}, {"s15" if kk < 4 else "s16"} offen offset:{(kk&3)*1024} sc1')
    mx_wait(w, f'{lab}_mx', list(range(28)), loads, tmo, 'v96')
    for tl in range(7):
        for kk in range(7): A(smf(28 + 4 * tl, vr(4 * kk, 4), wreg(tl * 7 + kk), 'v118'))
    A(f's_mul_i32 s15, s8, {VM_SEG}\ns_add_u32 s15, s15, s14\ns_add_u32 s15, s15, {VM}')
    for tl in range(7):
        a = 28 + 4 * tl
        A(f'v_add_f32 v{a}, v{a}, v{a+2}\nv_add_f32 v{a+1}, v{a+1}, v{a+3}\nv_cvt_pk_bf16_f32 v{a}, v{a}, v{a+1}')
        A(f'buffer_store_dword v{a}, v116, {SRD}, s15 offen offset:{tl*256} sc1')
    A(f's_lshl_b32 s15, s8, 7\ns_add_u32 s15, s15, {FVM}')
    signal(w, f'{lab}_sig2', 's15', 'v96')
    A(f's_add_u32 s8, s8, {NV}\ns_cmp_lt_u32 s8, {NSEG}\ns_cbranch_scc1 {lab}_mloop')
    tline(A, c2, 4)
    A('s_endpgm')

def gen_Q(A, cfg, lab, tmo):
    w = Wv(A, {})
    em = Emitter(A, [f'v{i}' for i in range(2, 30)])
    l = V('v0'); g = l >> 4; n = l & 15; ww = Sg(sW); h = Sg(sR)
    sQ = ['s22', 's23', 's24', 's25']
    em.emit(l & 63, 'v0')
    em.emit(l * 16, vL16)
    em.emit(l * 16 + (ww & 1) * 8, 'v118')
    i = n & 7
    em.emit(((g >> 1) * 16 + (i >> 1) * 4 + (i & 1)) * 16 + (g & 1) * 8, 'v117')
    em.emit(((g >> 1) * 16 + (i >> 1) * 4 + (i & 1)) * 16 + (g & 1) * 8 + (ww & 1) * 4, 'v116')
    em.emit(ww * 5120 + l * 16, 'v115')
    em.emit(ww * 1024 + l * 16, 'v114')
    em.emit(ww * 20480 + h * 1024 + l * 16, 'v113')
    em.emit(sel_lt(g, 2, ww * 20480 + ((h >> 2) + 16) * 1024 + ((h & 3) * 16 + n) * 16 + g * 8, OOB), 'v112')
    em.emit(n - g * 4, 'v111')
    A(f's_lshr_b32 s11, {sW}, 1\ns_mul_i32 s14, s11, 7\ns_and_b32 s15, {sW}, 1\ns_lshl_b32 s16, s15, 2\ns_add_u32 s16, s16, s14')
    for u in range(3): A(f's_add_u32 s17, s16, {u}\ns_lshl_b32 {sQ[u]}, s17, 10')
    A(f's_add_u32 s17, s14, 3\ns_lshl_b32 {sQ[3]}, s17, 10')
    A(f's_mul_i32 s13, {sR}, {28*14336}\ns_add_u32 s13, s13, {AF}\ns_mul_i32 s15, s15, 14336')
    def addr(tl, p):
        pre = f's_mul_i32 s11, {sQ[tl>>1]}, 28\ns_add_u32 s11, s11, s13\n'
        pre += f's_add_u32 s11, s11, {14336*(tl&1) + 1024*p}' if tl < 6 else f's_add_u32 s11, s11, s15\ns_add_u32 s11, s11, {1024*p}'
        return vL16, pre
    A(f's_mul_i32 {sXB}, s12, 28672' + (f'\ns_add_u32 {sXB}, {sXB}, {XF}' if XF else ''))
    load_w(w, addr)
    for p in range(4): x_load(w, p, sXB)
    A('s_mov_b32 s8, s12')
    A(f'{lab}_loop:')
    A(f's_add_u32 {sXN}, {sXB}, {NQ*28672}')
    w.vm = [f'X{p}' for p in range(4) for _ in range(2)]
    seg_gemm(w, True)
    QQ = lambda u, tt: 16 * u + 4 * tt
    for u in range(4):
        for tt in range(2):
            for b in range(2 if u < 3 else 1):
                a = acc2(2 * u + b, tt)
                A(f'v_cvt_pk_bf16_f32 v{88+4*tt+2*b}, v{a}, v{a+1}\nv_cvt_pk_bf16_f32 v{89+4*tt+2*b}, v{a+2}, v{a+3}')
        for tt in range(2):
            for k in range(0, 4 if u < 3 else 2, 2): A(f'v_mov_b64 {vr(QQ(u,tt)+k,2)}, {vr(88+4*tt+k,2)}')
    for u in range(4):
        for kt in range(2):
            A(f's_add_u32 s11, {sXB}, {sQ[u]}' + ('\ns_add_u32 s11, s11, 14336' if kt else ''))
            if u < 3: w.vmem(f'buffer_load_dwordx4 {vr(16*u+8+4*kt,4)}, {vL16}, {SRD}, s11 offen', 'Z')
            else: w.vmem(f'buffer_load_dwordx2 {vr(88+2*kt,2)}, v118, {SRD}, s11 offen', 'Z')
    w.wait(vm='Z')
    SX = {(1, 0): 92, (1, 1): 96, (2, 1): 100}
    for (kt, tt), a in SX.items():
        for u in range(3): A(mfma(vr(a, 4), vr(16 * u + 8 + 4 * (kt - 1), 4), vr(QQ(u, tt), 4), 0 if u == 0 else None))
        A(f'v_mfma_f32_16x16x16_bf16 {vr(a,4)}, {vr(88+2*(kt-1),2)}, {vr(QQ(3,tt),2)}, {vr(a,4)}')
    for (kt, tt), a in SX.items():
        A(f'ds_write_b128 v115, {vr(a,4)} offset:{(2*kt + tt - (1 if kt == 2 else 0))*1024}')
    A('s_waitcnt lgkmcnt(0)\ns_barrier')
    E1, E2, E0 = 92, 96, 100
    A(f's_cmp_ge_u32 {sW}, 2\ns_cbranch_scc1 {lab}_nored')
    def red(dst, off, t0):
        for k in range(4): A(f'ds_read_b128 {vr(dst if k == 0 else t0+16*(k-1),4)}, v114 offset:{k*5120 + off}')
        A('s_waitcnt lgkmcnt(0)')
        for k in range(3):
            for r in (0, 2): A(f'v_pk_add_f32 {vr(dst+r,2)}, {vr(dst+r,2)}, {vr(t0+16*k+r,2)}')
    red(E1, 2048, 8)
    red(E2, 3072, 8)
    A(f'v_mov_b32 v104, 0xff800000\ns_cmp_eq_u32 {sW}, 0\ns_cbranch_scc0 {lab}_t1')
    for r in range(4):
        A(f'v_cmp_le_i32 vcc, {r}, v111\nv_cndmask_b32 v{E1+r}, v104, v{E1+r}, vcc\nv_mov_b32 v{E2+r}, v104')
    A(f's_branch {lab}_nored\n{lab}_t1:')
    for r in range(4): A(f'v_cmp_le_i32 vcc, {r}, v111\nv_cndmask_b32 v{E2+r}, v104, v{E2+r}, vcc')
    A(f'{lab}_nored:')
    A(f's_mul_i32 s15, s8, 7168\ns_add_u32 s15, s15, {MX}')
    KQ = lambda u: 16 * u + 8
    def loads():
        for u in range(4):
            A(f's_lshr_b32 s11, {sQ[u]}, 1\ns_add_u32 s11, s11, s15')
            if u < 3:
                A(f'buffer_load_dwordx2 {vr(KQ(u),2)}, v117, {SRD}, s11 offen sc1\nbuffer_load_dwordx2 {vr(KQ(u)+2,2)}, v117, {SRD}, s11 offen offset:32 sc1')
            else:
                A(f'buffer_load_dword v88, v116, {SRD}, s11 offen sc1\nbuffer_load_dword v89, v116, {SRD}, s11 offen offset:32 sc1')
    mx_wait(w, f'{lab}_mx', [KQ(u) + k for u in range(3) for k in range(4)] + [88, 89], loads, tmo, 'v105')
    for u in range(3): A(f'v_swap_b32 v{KQ(u)+1}, v{KQ(u)+2}')
    for tt in range(2):
        a = 12 + 16 * tt
        for u in range(3): A(mfma(vr(a, 4), vr(KQ(u), 4), vr(QQ(u, tt), 4), 0 if u == 0 else None))
        A(f'v_mfma_f32_16x16x16_bf16 {vr(a,4)}, v[88:89], {vr(QQ(3,tt),2)}, {vr(a,4)}')
    for tt in range(2): A(f'ds_write_b128 v115, {vr(12+16*tt,4)} offset:{tt*1024}')
    A('s_waitcnt lgkmcnt(0)\ns_barrier')
    A(f's_cmp_ge_u32 {sW}, 2\ns_cbranch_scc1 {lab}_nosm')
    red(E0, 0, 8)
    A('s_mov_b32 vcc_lo, -1\ns_mov_b32 vcc_hi, 0')
    for r in range(4): A(f'v_cndmask_b32 v{E0+r}, v104, v{E0+r}, vcc')
    A(f'v_max3_f32 v8, v{E1}, v{E1+1}, v{E1+2}')
    for r in range(E1 + 3, E1 + 11, 2): A(f'v_max3_f32 v8, v8, v{r}, v{r+1}')
    A(f'v_max_f32 v8, v8, v{E1+11}')
    def allred(op):
        A(f'v_mov_b32 v9, v8\nv_permlane16_swap_b32 v8, v9\n{op} v8, v8, v9')
        A(f'v_mov_b32 v9, v8\nv_permlane32_swap_b32 v8, v9\n{op} v8, v8, v9')
    allred('v_max_f32')
    for r in range(E1, E1 + 12, 2): A(f'v_pk_add_f32 {vr(r,2)}, {vr(r,2)}, v[8:9] op_sel_hi:[1,0] neg_lo:[0,1] neg_hi:[0,1]')
    for r in range(E1, E1 + 12): A(f'v_exp_f32 v{r}, v{r}')
    A(f'v_pk_add_f32 v[8:9], {vr(E1,2)}, {vr(E1+2,2)}')
    for r in range(E1 + 4, E1 + 12, 2): A(f'v_pk_add_f32 v[8:9], v[8:9], {vr(r,2)}')
    A('v_add_f32 v8, v8, v9')
    allred('v_add_f32')
    A('v_rcp_f32 v8, v8')
    for r in range(E1, E1 + 12, 2): A(f'v_pk_mul_f32 {vr(r,2)}, {vr(r,2)}, v[8:9] op_sel_hi:[1,0]')
    for k in range(6): A(f'v_cvt_pk_bf16_f32 v{12+k}, v{E1+2*k}, v{E1+2*k+1}')
    A(f's_mul_i32 s15, s8, {PX_SEG}\ns_add_u32 s15, s15, {PX}')
    A(f'buffer_store_dwordx4 v[12:15], v113, {SRD}, s15 offen sc1\nbuffer_store_dwordx2 v[16:17], v112, {SRD}, s15 offen sc1')
    A(f'{lab}_nosm:')
    A(f's_lshl_b32 s15, s8, 7\ns_add_u32 s15, s15, {FPX}')
    signal(w, f'{lab}_sig', 's15', 'v105')
    A(f's_mov_b32 {sXB}, {sXN}\ns_add_u32 s8, s8, {NQ}\ns_cmp_lt_u32 s8, {NSEG}\ns_cbranch_scc1 {lab}_loop')
    tline(A, dict(cfg, tlreg=106), 4)
    A('s_endpgm')

def gen_T(A, cfg, lab, tmo):
    w = Wv(A, {})
    em = Emitter(A, [f'v{i}' for i in range(8, 30)])
    l = V('v0'); g = l >> 4
    A('s_load_dwordx2 s[28:29], s[0:1], 64\ns_load_dwordx2 s[30:31], s[0:1], 80')
    em.emit(l & 63, 'v0')
    A(f"""s_and_b32 s12, {sR}, 15
    s_lshl_b32 s12, s12, 2
    s_add_u32 s12, s12, {sW}
    s_waitcnt lgkmcnt(0)
    s_cmp_lt_u32 {sR}, 16
    s_cselect_b32 s20, s28, s30
    s_cselect_b32 s21, s29, s31
    s_mov_b32 s22, {D*F*2}
    s_mov_b32 s23, 0x20000
    s_movk_i32 s13, 896
    s_cselect_b32 s13, 3584, s13
    s_cselect_b32 s14, 28, 7
    s_movk_i32 s15, 9363
    s_cselect_b32 s15, 2341, s15       ; 65536 / blocks
    s_cselect_b32 s16, 14, 56          ; k quads
    s_mov_b32 s17, {W2F}
    s_cselect_b32 s17, {W1F}, s17
    s_mul_i32 s18, {sW}, 28672""")
    em.emit((l >> 3) * Sg('s13') + (l & 7) * 16, 'v1')
    em.emit(Sg('s18') + (g * 8 + ((l >> 2) & 3)) * 128 + (l & 3) * 16, 'v2')
    em.emit(l * 16, 'v3')
    A('s_lshl_b32 s24, s13, 3')
    for k in range(7):
        A(f's_add_u32 s25, s12, {64*k}\ns_mul_i32 s26, s25, s15\ns_lshr_b32 s26, s26, 16\ns_mul_i32 s27, s26, s14\ns_sub_u32 s27, s25, s27')
        A(f's_lshl_b32 s{40+k}, s27, 2\ns_mul_i32 s{40+k}, s{40+k}, s16\ns_add_u32 s{40+k}, s{40+k}, s26\ns_lshl_b32 s{40+k}, s{40+k}, 10\ns_add_u32 s{40+k}, s{40+k}, s17')
        A(f's_cmp_lt_u32 s25, 392\ns_cselect_b32 s{40+k}, s{40+k}, {OOB}')
        A('s_lshl_b32 s26, s26, 5\ns_mul_i32 s26, s26, s13\ns_lshl_b32 s27, s27, 7\ns_add_u32 s26, s26, s27')
        for r in range(4):
            A(f's_add_u32 m0, s18, {k*4096 + r*1024}')
            w.vmem(f'buffer_load_dwordx4 v1, s[20:23], s26 offen lds', f'U{k}')
            if r < 3: A('s_add_u32 s26, s26, s24')
    A('s_lshl_b32 s24, s16, 10')
    for k in range(7):
        w.wait(vm=f'U{k}')
        for t in range(4):
            o = 8 + 16 * (k & 1) + 4 * t; off = k * 4096 + (t >> 1) * 64 + (t & 1) * 8
            A(f'ds_read_b64_tr_b16 {vr(o,2)}, v2 offset:{off}\nds_read_b64_tr_b16 {vr(o+2,2)}, v2 offset:{off+512}')
        A('s_waitcnt lgkmcnt(0)')
        for t in range(4):
            w.vmem(f'buffer_store_dwordx4 {vr(8+16*(k&1)+4*t,4)}, v3, {SRD}, s{40+k} offen sc1')
            if t < 3: A(f's_add_u32 s{40+k}, s{40+k}, s24')
    A(f's_mov_b32 s15, {FW}')
    signal(w, f'{lab}_sig', 's15', 'v4')
    tline(A, dict(cfg, tlreg=5), 4)
    A('s_endpgm')

def gen_F(A, cfg, lab, tmo):
    w = Wv(A, {})
    em = Emitter(A, [f'v{i}' for i in range(8, 30)])
    l = V('v0'); g = l >> 4; n = l & 15; ww = Sg(sW)
    A('s_load_dwordx2 s[28:29], s[0:1], 72\ns_load_dwordx2 s[30:31], s[0:1], 88\ns_load_dwordx2 s[32:33], s[0:1], 0\ns_load_dwordx2 s[34:35], s[0:1], 96')
    em.emit(l & 63, 'v0')
    em.emit(l * 16, 'v1')
    em.emit(g * 16, 'v3')
    A('s_waitcnt lgkmcnt(0)')
    srd(A, 36, 28, F * 2); srd(A, 40, 30, D * 2); srd(A, 44, 32, S * D * 2); srd(A, 48, 34, S * D * 2)
    xr = lambda tt, p: f'a[{(tt*14+p)*4}:{(tt*14+p)*4+3}]'
    A(f's_mul_i32 s12, {sR}, 28672' + (f'\ns_add_u32 s12, s12, {XF}' if XF else ''))
    for q in range(28):
        if q % 4 == 0: A(f's_add_u32 s11, s12, {q*1024}')
        A(f'buffer_load_dwordx4 {xr(q//14, q%14)}, v1, {SRD}, s11 offen offset:{(q%4)*1024}')
    A(f's_mov_b32 s15, {FW}')
    wait_flag(w, f'{lab}_fw', 's15', 32, tmo)
    c2 = dict(cfg, tlreg=2)
    tline(A, c2, 1)
    WB = lambda buf, q: 32 + buf * 112 + 4 * q
    A(f's_mul_i32 s13, {sW}, {14*28672}\ns_add_u32 s13, s13, {W1F}\ns_mul_i32 s14, {sW}, {14*64}')
    em.emit(ww * 28672 + l * 16, 'v4')
    def wl(buf, q):
        if q % 4 == 0: A(f's_add_u32 s11, s13, {q*1024}')
        w.vmem(f'buffer_load_dwordx4 {vr(WB(buf,q),4)}, v1, {SRD}, s11 offen offset:{(q%4)*1024} sc1', f'W{buf}_{q}')
    def bl(buf): w.vmem(f'buffer_load_dwordx4 {vr(24+4*buf,4)}, v3, s[36:39], s14 offen', f'B{buf}')
    w.vm = []
    bl(0)
    for q in range(28): wl(0, q)
    A('s_mov_b32 s8, 0')
    A(f'{lab}_l1:')
    def block(buf):
        A('s_add_u32 s13, s13, 28672\ns_add_u32 s14, s14, 64')
        bl(1 - buf)
        for p in range(14):
            for b in range(2):
                q = b * 14 + p
                w.wait(vm=f'W{buf}_{q}')
                for tt in range(2): A(mfma(vr(8 + (b * 2 + tt) * 4, 4), vr(WB(buf, q), 4), xr(tt, p), 0 if p == 0 else None))
            wl(1 - buf, 2 * p); wl(1 - buf, 2 * p + 1)
        bb = 24 + 4 * buf
        for tt in range(2):
            for b in range(2):
                a = 8 + (b * 2 + tt) * 4
                for k in range(2):
                    A(f'v_lshlrev_b32 v6, 16, v{bb+2*b+k}\nv_and_b32 v7, 0xffff0000, v{bb+2*b+k}')
                    A(f'v_pk_add_f32 {vr(a+2*k,2)}, {vr(a+2*k,2)}, v[6:7]')
                    A(f'v_max_f32 v{a+2*k}, 0, v{a+2*k}\nv_max_f32 v{a+2*k+1}, 0, v{a+2*k+1}')
                    A(f'v_pk_mul_f32 {vr(a+2*k,2)}, {vr(a+2*k,2)}, {vr(a+2*k,2)}')
                    A(f'v_cvt_pk_bf16_f32 v{a+k}, v{a+2*k}, v{a+2*k+1}')
            A(f'v_mov_b64 {vr(8+tt*4+2,2)}, {vr(16+tt*4,2)}')
            A(f'ds_write_b128 v4, {vr(8+tt*4,4)} offset:{buf*2048 + tt*1024}')
    w.vm = ['B0'] + [f'W0_{q}' for q in range(28)]
    block(0); block(1)
    A(f'v_add_u32 v4, 4096, v4\ns_add_u32 s8, s8, 1\ns_cmp_lt_u32 s8, 7\ns_cbranch_scc1 {lab}_l1')
    tline(A, c2, 2)
    A(f's_lshl_b32 s16, {sW}, 2\ns_cmp_eq_u32 {sW}, 3\ns_cselect_b32 s16, 11, s16')
    A(f's_mul_i32 s13, s16, {2*57344}\ns_add_u32 s13, s13, {W2F}')
    for t in range(8):
        A(f's_add_u32 s{52+t}, s13, {t*57344}')
    A(f's_cmp_ge_u32 {sW}, 2\ns_cselect_b32 s58, {OOB}, s58\ns_cselect_b32 s59, {OOB}, s59')
    A('s_waitcnt vmcnt(0) lgkmcnt(0)\ns_barrier')
    W2 = lambda buf, t: 32 + (buf * 8 + t) * 4
    HB = lambda buf, tt: 8 + (buf * 2 + tt) * 4
    G = lambda t, tt: f'a[{(t*2+tt)*4}:{(t*2+tt)*4+3}]'
    for r in range(64): A(f'v_accvgpr_write_b32 a{r}, 0')
    A('v_mov_b32 v4, v1\nv_mov_b32 v5, v1')
    def w2l(buf, off):
        for t in range(8): w.vmem(f'buffer_load_dwordx4 {vr(W2(buf,t),4)}, v5, {SRD}, s{52+t} offen offset:{off} sc1', f'V{buf}')
    def hl(buf, off):
        for tt in range(2): w.ds(f'ds_read_b128 {vr(HB(buf,tt),4)}, v4 offset:{off + tt*1024}', f'H{buf}')
    w.vm = []; w.lg = []
    for k in range(3): w2l(k, k * 1024)
    hl(0, 0)
    A('v_add_u32 v5, 3072, v5\ns_mov_b32 s8, 0')
    A(f'{lab}_l2:')
    for k in range(4):
        w2l((k + 3) & 3, k * 1024)
        hl((k + 1) & 1, (k + 1) * 2048)
        w.wait(vm=f'V{k}', lg=f'H{k&1}')
        for t in range(8):
            for tt in range(2): A(mfma(G(t, tt), vr(W2(k, t), 4), vr(HB(k & 1, tt), 4)))
    A(f'v_add_u32 v5, 4096, v5\nv_add_u32 v4, 8192, v4\ns_add_u32 s8, s8, 1\ns_cmp_lt_u32 s8, 14\ns_cbranch_scc1 {lab}_l2')
    A('s_waitcnt vmcnt(0) lgkmcnt(0)')
    A('s_lshl_b32 s14, s16, 6')
    for k in range(4): A(f'buffer_load_dwordx4 {vr(32+4*k,4)}, v3, s[40:43], s14 offen offset:{k*64}')
    A(f's_lshl_b32 s14, s16, 10\ns_add_u32 s14, s14, s12\ns_add_u32 s14, s14, {GB - XF}\ns_add_u32 s15, s14, 14336')
    A('s_waitcnt vmcnt(0)')
    for k in range(4):
        if k == 3: A(f's_cmp_ge_u32 {sW}, 2\ns_cbranch_scc1 {lab}_gdone')
        for tt in range(2):
            for b in range(2):
                for r in range(4): A(f'v_accvgpr_read_b32 v{48+4*b+r}, a{((2*k+b)*2+tt)*4+r}')
            for j in range(4):
                A(f'v_lshlrev_b32 v6, 16, v{32+4*k+j}\nv_and_b32 v7, 0xffff0000, v{32+4*k+j}')
                A(f'v_pk_add_f32 {vr(48+2*j,2)}, {vr(48+2*j,2)}, v[6:7]')
            for r in range(8): A(f'v_mul_f32 v{56+r}, {f32(-math.log2(math.e))}, v{48+r}')
            for r in range(8): A(f'v_exp_f32 v{56+r}, v{56+r}')
            for r in range(8): A(f'v_add_f32 v{56+r}, 1.0, v{56+r}')
            for r in range(8): A(f'v_rcp_f32 v{56+r}, v{56+r}')
            for j in range(4):
                A(f'v_pk_mul_f32 {vr(48+2*j,2)}, {vr(48+2*j,2)}, {vr(56+2*j,2)}')
                A(f'v_cvt_pk_bf16_f32 v{64+4*tt+j}, v{48+2*j}, v{49+2*j}')
            A(f'buffer_store_dwordx4 {vr(64+4*tt,4)}, v1, {SRD}, {"s15" if tt else "s14"} offen offset:{k*1024} sc1')
    A(f'{lab}_gdone:')
    A(f's_lshl_b32 s15, {sR}, 7\ns_add_u32 s15, s15, {FG}')
    signal(w, f'{lab}_gsig', 's15')
    tline(A, c2, 3)
    A(f's_and_b32 s11, {sR}, 3\ns_lshl_b32 s16, s11, 2\ns_cmp_eq_u32 s11, 3\ns_cselect_b32 s16, 11, s16\ns_add_u32 s16, s16, {sW}')
    A(f's_lshr_b32 s11, s11, 1\ns_add_u32 s11, s11, {sW}\ns_cmp_ge_u32 s11, 4\ns_cselect_b32 s17, {OOB}, 0')
    col = Sg('s16') * 32 + (n >> 2) * 8 + (n & 3)
    em.emit(g * 7168 + col * 16 + Sg('s17'), 'v4')
    em.emit(n * 896 + Sg('s16') * 64 + g * 16 + Sg('s17'), 'v5')
    em.emit(Sg('s16') * 1024 + l * 16 + Sg('s17'), 'v6')
    em.emit((l & 1) * (FPX - FVM), 'v7')
    A(f's_lshr_b32 s8, {sR}, 2\ns_mul_i32 s18, {sW}, 10240')
    WX = lambda q, b: 32 + (q * 2 + b) * 4
    A(f'{lab}_l3:')
    A(f's_lshl_b32 s13, s8, 7\ns_add_u32 s15, s13, {FVX}')
    wait_flag(w, f'{lab}_fvx', 's15', 16, tmo)
    A(f's_mul_i32 s14, s8, {VX_SEG}\ns_add_u32 s14, s14, {VXF}')
    for q in range(16):
        for b in range(2): A(f'buffer_load_dwordx4 {vr(WX(q,b),4)}, v4, {SRD}, s14 offen offset:{b*64} sc1')
        if q < 15: A('s_add_u32 s14, s14, 28672')
    A('s_mul_i32 s14, s8, 28672\ns_add_u32 s20, s14, 14336')
    A('buffer_load_dwordx4 v[192:195], v5, s[44:47], s14 offen\nbuffer_load_dwordx4 v[196:199], v5, s[44:47], s20 offen')
    A(f's_add_u32 s15, s13, {FG}')
    wait_flag(w, f'{lab}_fg', 's15', 1, tmo)
    A(f's_add_u32 s21, s14, {GB}\ns_add_u32 s22, s20, {GB}')
    A(f'buffer_load_dwordx4 v[200:203], v6, {SRD}, s21 offen sc1\nbuffer_load_dwordx4 v[204:207], v6, {SRD}, s22 offen sc1')
    A(f's_add_u32 s15, s13, {FVM}')
    A(f's_cmp_lg_u32 {sW}, 0\ns_cbranch_scc1 {lab}_f2go\ns_mov_b32 {sSPIN}, {WSPIN}')
    A(f'{lab}_f2:\nbuffer_load_dword v2, v7, {SRD}, s15 offen sc1')
    A(f's_sub_u32 {sSPIN}, {sSPIN}, 1\ns_cbranch_scc1 {tmo}\ns_waitcnt vmcnt(0)\nv_cmp_gt_u32 vcc, 16, v2\ns_cbranch_vccnz {lab}_f2')
    A(f'{lab}_f2go:\ns_barrier')
    tline(A, c2, 5)
    A(f's_mul_i32 s21, s8, {PX_SEG}\ns_add_u32 s21, s21, s18\ns_add_u32 s21, s21, {PX}')
    for k in range(10):
        if k % 4 == 0: A(f's_add_u32 m0, s18, {k*1024}\ns_add_u32 s22, s21, {k*1024}')
        A(f'buffer_load_dwordx4 v1, {SRD}, s22 offen offset:{(k%4)*1024} sc1 lds')
    A(f's_mul_i32 s21, s8, {VM_SEG}\ns_add_u32 s21, s21, {VM}')
    for u in range(4):
        for b in range(2): A(f'buffer_load_dwordx4 {vr(WX(16+u,b),4)}, v4, {SRD}, s21 offen offset:{b*64} sc1')
        if u < 3: A('s_add_u32 s21, s21, 28672')
    A('s_waitcnt vmcnt(8)\ns_barrier')
    w.lg = []
    PB = lambda q, tt: 208 + ((q & 3) * 2 + tt) * 4
    def pl(q):
        for tt in range(2): w.ds(f'ds_read_b128 {vr(PB(q,tt),4)}, v1 offset:{tt*20480 + q*1024}', f'P{q}')
    for q in range(3): pl(q)
    for q in range(20):
        if q + 3 < 20: pl(q + 3)
        w.wait(lg=f'P{q}')
        if q == 16: A('s_waitcnt vmcnt(0)')
        for b in range(2):
            for tt in range(2): A(mfma(vr(8 + (tt * 2 + b) * 4, 4), vr(WX(q, b), 4), vr(PB(q, tt), 4), 0 if q == 0 else None))
    for tt in range(2):
        a = 8 + tt * 8
        for j in range(4):
            r = a + 2 * j
            A(f'v_cvt_pk_bf16_f32 v{r}, v{r}, v{r+1}\nv_and_b32 v{r+1}, 0xffff0000, v{r}\nv_lshlrev_b32 v{r}, 16, v{r}')
            A(f'v_lshlrev_b32 v24, 16, v{200+4*tt+j}\nv_and_b32 v25, 0xffff0000, v{200+4*tt+j}')
            A(f'v_pk_mul_f32 {vr(r,2)}, {vr(r,2)}, v[24:25]')
            A(f'v_cvt_pk_bf16_f32 v{r}, v{r}, v{r+1}\nv_and_b32 v{r+1}, 0xffff0000, v{r}\nv_lshlrev_b32 v{r}, 16, v{r}')
            A(f'v_lshlrev_b32 v24, 16, v{192+4*tt+j}\nv_and_b32 v25, 0xffff0000, v{192+4*tt+j}')
            A(f'v_pk_add_f32 {vr(r,2)}, {vr(r,2)}, v[24:25]')
            A(f'v_cvt_pk_bf16_f32 v{28+j}, v{r}, v{r+1}')
        A(f'buffer_store_dwordx4 v[28:31], v5, s[48:51], {"s20" if tt else "s14"} offen')
    A(f's_add_u32 s8, s8, 16\ns_cmp_lt_u32 s8, {NSEG}\ns_cbranch_scc1 {lab}_l3')
    if cfg.get('tl'): A('s_waitcnt vmcnt(0)')
    tline(A, c2, 4)
    A('s_endpgm')
```

```python
from asmdsl import Asm
from layout import *
import rec, workers, prep, build

BEST = dict(xpos=[11, 15, 20, 25, 99, 99, 99, 99], hu2pos=7, ew=64, ebar=6, gate='w0')

def counts(A, lab, tmo, sd='s[48:51]'):
    A(f's_mov_b32 s19, 0x40000\n{lab}:')
    A(f'buffer_load_dword v3, v4, {sd}, 0 offen sc1')
    A(f's_sub_u32 s19, s19, 1\ns_cbranch_scc1 {tmo}\ns_waitcnt vmcnt(0)')
    A('v_readlane_b32 s47, v3, 0\ns_mov_b32 s46, s47')
    for x in range(1, 8): A(f'v_readlane_b32 s11, v3, {x}\ns_add_u32 s46, s46, s11')

def gen_main(A, cfg):
    workers.BACK[0] = f's_sleep {cfg["back"]}\n' if cfg.get('back') else ''
    A(f"""s_cmp_ge_u32 s2, 256
    s_cbranch_scc1 M_exit0
    s_load_dwordx4 s[28:31], s[0:1], 0
    s_load_dwordx8 s[36:43], s[0:1], 16
    s_load_dwordx2 s[4:5], s[0:1], 112
    s_load_dwordx2 s[48:49], s[0:1], 104
    s_getreg_b32 s54, hwreg(HW_REG_XCC_ID, 0, 3)
    v_lshrrev_b32 v1, 6, v0
    v_readfirstlane_b32 s9, v1
    v_and_b32 v0, 63, v0
    s_waitcnt lgkmcnt(0)
    s_mov_b32 s6, {WS_BYTES}
    s_mov_b32 s7, 0x20000
    s_mov_b32 s50, 256
    s_mov_b32 s51, 0x20000""")
    if cfg.get('fakexcc'): A(cfg['fakexcc'])
    A("""s_mov_b32 s12, s54
    v_mov_b32 v2, 0x27c00
    s_cmp_lg_u32 s9, 0
    s_cbranch_scc1 M_ranked
    v_mov_b32 v3, 1
    s_lshl_b32 s11, s12, 5
    s_mov_b64 exec, 1
    buffer_atomic_add v3, off, s[48:51], s11 sc0 sc1
    s_waitcnt vmcnt(0)
    s_mov_b64 exec, -1
    v_readfirstlane_b32 s3, v3
    v_and_b32 v4, 7, v0
    v_lshlrev_b32 v4, 5, v4
    s_lshl_b32 s11, s12, 5
    s_cmp_lt_u32 s3, 32
    s_cselect_b32 s15, 0, 1
    s_add_u32 s3, s3, s11
    s_cmp_eq_u32 s15, 0
    s_cbranch_scc1 M_have""")
    A("""v_mov_b32 v3, 1
    s_mov_b64 exec, 1
    buffer_atomic_add v3, off, s[48:51], 0 offset:4 sc0 sc1
    s_waitcnt vmcnt(0)
    s_mov_b64 exec, -1
    v_readfirstlane_b32 s15, v3""")
    counts(A, 'M_ovf', 'M_exit0')
    A('s_cmp_lt_u32 s46, 256\ns_cbranch_scc1 M_ovf_again\ns_mov_b32 s3, 0')
    for x in range(8):
        A(f'v_readlane_b32 s11, v3, {x}\ns_min_u32 s11, s11, 32\ns_sub_u32 s16, 32, s11')
        A(f's_cmp_lt_u32 s15, s16\ns_cbranch_scc0 M_nx{x}\ns_add_u32 s3, s11, s15\ns_add_u32 s3, s3, {32*x}\ns_branch M_have\nM_nx{x}:\ns_sub_u32 s15, s15, s16')
    A('M_exit0:\ns_endpgm\nM_ovf_again:')
    A('s_branch M_ovf')
    A("""M_have:
    v_mov_b32 v3, s3
    ds_write_b32 v2, v3
    s_waitcnt lgkmcnt(0)
M_ranked:
    s_barrier
    ds_read_b32 v3, v2
    s_waitcnt lgkmcnt(0)
    v_readfirstlane_b32 s3, v3""")
    rec.tline(A, dict(cfg, tlreg=3), 0)
    A('s_barrier\ns_cmp_lt_u32 s3, 32\ns_cbranch_scc1 M_rec\ns_sub_u32 s10, s3, 32')
    prep.gen_gemm(A, cfg, 'M_exit0')
    A("""s_sub_u32 s11, s3, 32
    s_and_b32 s10, s11, 63
    s_lshr_b32 s11, s11, 6
    s_cmp_eq_u32 s11, 2
    s_cbranch_scc1 M_F
    s_cmp_eq_u32 s11, 3
    s_cbranch_scc1 M_T
    s_and_b32 s12, s10, 3
    s_lshr_b32 s10, s10, 2
    s_cmp_eq_u32 s11, 1
    s_cbranch_scc1 M_Q""")
    workers.gen_V(A, cfg, 'WV', 'M_exit')
    A('M_Q:'); workers.gen_Q(A, cfg, 'WQ', 'M_exit')
    A('M_T:'); workers.gen_T(A, cfg, 'WT', 'M_exit')
    A('M_F:'); workers.gen_F(A, cfg, 'WF', 'M_exit')
    A('M_exit:\ns_endpgm')
    def start_sync(w, lab):
        if cfg.get('tl'): A('s_waitcnt vmcnt(0)')
        rec.tline(A, dict(cfg, tlreg=3), 1)
        A(f'v_mov_b32 v2, 0x27c00\ns_cmp_lg_u32 s9, 0\ns_cbranch_scc1 {lab}_ss')
        A('v_and_b32 v4, 7, v0\nv_lshlrev_b32 v4, 5, v4')
        counts(A, f'{lab}_cnt', 'R_exit', 's[40:43]')
        A(f's_mov_b32 s30, 0\ns_cmp_ge_u32 s47, 32\ns_cbranch_scc1 {lab}_md\ns_mov_b32 s30, 1\ns_cmp_ge_u32 s46, 256\ns_cbranch_scc1 {lab}_md')
        A(f's_branch {lab}_cnt\n{lab}_md:')
        A(f'v_min_u32 v4, 1, v0\nv_lshlrev_b32 v4, 7, v4\ns_mov_b32 s11, {FVX}\ns_mov_b32 s19, 0x40000')
        A(f'{lab}_fv:\nbuffer_load_dword v3, v4, s[4:7], s11 offen sc1\ns_sub_u32 s19, s19, 1\ns_cbranch_scc1 R_exit')
        A(f's_waitcnt vmcnt(0)\nv_cmp_gt_u32 vcc, 16, v3\ns_cbranch_vccnz {lab}_fv')
        A(f'v_mov_b32 v3, s30\nds_write_b32 v2, v3\ns_waitcnt lgkmcnt(0)\n{lab}_ss:\ns_barrier')
        A(f'ds_read_b32 v3, v2\ns_waitcnt lgkmcnt(0)\nv_readfirstlane_b32 s30, v3\ns_mov_b32 s19, {rec.SPIN_MAX}')
        rec.tline(A, dict(cfg, tlreg=3), 2)
    c = dict(BEST); c.update(cfg)
    c.setdefault('start_sync', start_sync); c.setdefault('finish', lambda w, lab: rec.tline(A, dict(cfg, tlreg=3, tlclk=1), 4))
    def loop_top(w, lab):
        if cfg.get('tl'):
            for k, st in ((3, 1), (5, 16), (6, 32)):
                A(f's_cmp_lg_u32 s8, {st}\ns_cbranch_scc1 {lab}_lt{k}'); rec.tline(A, dict(cfg, tlreg=3, tlclk=1), k); A(f'{lab}_lt{k}:')
    c.setdefault('loop_top', loop_top)
    A('M_rec:\ns_mov_b32 s10, s3')
    prep.gen_misc(A, cfg, 'R_exit')
    from expr import V, Sg, sel_lt
    l = V('v0')
    c['pre_a'] = lambda: rec.wait_lanes(A, 'RA_wa', sel_lt(l, 1, FA + Sg('s10') * 128, FX), sel_lt(l, 1, 14, 32), 'R_exit')
    c['pre_b'] = lambda: rec.wait_lanes(A, 'RB_wb', sel_lt(l, 16, FB + l * 128, FX), sel_lt(l, 16, 14, 32), 'R_exit')
    A('s_mov_b64 s[40:41], s[48:49]\ns_mov_b32 s42, 256\ns_mov_b32 s43, 0x20000')
    A('s_and_b32 s10, s3, 15\ns_cmp_ge_u32 s3, 16\ns_cbranch_scc1 M_B')
    rec.gen_A(A, c, 'RA', 'R_exit')
    A('R_exit:\ns_endpgm\nM_B:')
    rec.gen_B(A, c, 'RB', 'R_exit')

def generate(cfg={}, header=''):
    K = Asm(); gen_main(K, cfg)
    return build.assemble([(build.NAME + '_kernel', K.lines, 256, 256, 163840, 512, 256)], header)

if __name__ == '__main__':
    ref = open(f'cdna_kernels/{build.NAME}.s.ref').read().split('\n')
    header = '\n'.join(l for l in ref if l.startswith(';') and '@launch' not in l and 'Override' not in l and 'grid=ceil' not in l) + '\n'
    open(f'cdna_kernels/{build.NAME}.s', 'w').write(generate({}, header))
```

```python
from asmdsl import Asm
from expr import X, V, Sg, Emitter, ev, sel_lt
from layout import *
from rec import Wv, vr, tline, dstamp
import struct, math

def f32(x): return hex(struct.unpack('<I', struct.pack('<f', x))[0])
CSC = math.log2(math.e) / 16
W_BYTES = D * H * E * 2

def mfma(acc, a, b, c=None): return f'v_mfma_f32_16x16x32_bf16 {acc}, {a}, {b}, {c if c is not None else acc}'
def srd(A, r, lo, nbytes):
    A(f's_mov_b32 s{r}, s{lo}\ns_mov_b32 s{r+1}, s{lo+1}\ns_mov_b32 s{r+2}, {nbytes}\ns_mov_b32 s{r+3}, 0x20000')

def zero_ready(A, lab, tmo):
    A(f's_mov_b32 s19, 0x40000\n{lab}:\nbuffer_load_dword v1, off, s[48:51], 0 offset:132 sc1')
    A(f's_sub_u32 s19, s19, 1\ns_cbranch_scc1 {tmo}\ns_waitcnt vmcnt(0)\nv_cmp_eq_u32 vcc, 0, v1\ns_cbranch_vccnz {lab}')

def gen_gemm(A, cfg, tmo):
    w = Wv(A, {}); st = 'sc1'
    c2 = dict(cfg, tlreg=1)
    em = Emitter(A, [f'v{i}' for i in range(32, 60)])
    l = V('v0'); g = l >> 4; rho = l & 15
    A("""s_mul_i32 s16, s10, 4682
    s_lshr_b32 s16, s16, 16
    s_mul_i32 s13, s16, 14
    s_sub_u32 s13, s10, s13
    s_and_b32 s12, s13, 1
    s_lshr_b32 s13, s13, 1
    s_mul_i32 s17, s12, 7
    s_lshl_b32 s11, s9, 1
    s_add_u32 s17, s17, s11
    s_lshl_b32 s18, s16, 9          ; h*512
    s_lshl_b32 s35, s9, 15
    s_lshl_b32 s34, s9, 13""")
    srd(A, 20, 40, W_BYTES); srd(A, 24, 42, W_BYTES); srd(A, 56, 36, W_BYTES); srd(A, 60, 38, W_BYTES)
    LB = 131072
    for par in range(2):
        em.emit((l >> 3) * 896 + ((l & 7) ^ (((l >> 4) & 1) * 2 + par * 4)) * 16, f'v{24+par}')
    A('s_lshl_b32 s19, s16, 8\ns_lshl_b32 s33, s9, 6\ns_add_u32 s19, s19, s33\ns_mul_i32 s19, s19, 896\ns_lshl_b32 s33, s13, 7\ns_add_u32 s19, s19, s33')
    for k in range(8):
        A(f's_add_u32 m0, s34, {LB + k*1024}\ns_add_u32 s33, s19, {k*8*896}')
        w.vmem(f'buffer_load_dwordx4 v{24+(k&1)}, s[24:27], s33 offen lds', 'B0')
    for i in range(8):
        r = (l >> 5) + 2 * i
        em.emit(((r >> 2) * 8 + (r & 3)) * 8192 + ((l & 31) ^ r) * 16 - (i & 3) * 1024, f'v{8+i}')
    def tile_dma(srd_, soff, lds, tag):
        for i in range(8):
            if i % 4 == 0: A(f's_add_u32 m0, {lds[0]}, {lds[1] + i*1024}')
            w.vmem(f'buffer_load_dwordx4 v{8+i}, {srd_}, {soff} offen offset:{(i&3)*1024} lds', tag)
    A(f's_lshl_b32 s52, s17, 18\ns_add_u32 s52, s52, s18\ns_add_u32 s53, s52, 0x40000\ns_cmp_eq_u32 s9, 3\ns_cselect_b32 s53, {OOB}, s53')
    def load_a(task, k):
        A(f's_add_u32 s33, s{52+k}, 32768')
        for b in range(2): tile_dma(('s[20:23]', 's[56:59]')[task], 's33' if b else f's{52+k}', ('s35', k * 16384 + b * 8192), f'A{task}{k}')
    load_a(0, 0); load_a(0, 1)
    tline(A, c2, 5, 0x4000)
    al = (l >> 2) & 3; c = l & 3
    f = ((al >> 1) & 1) * 2 + (g & 1) * 4
    for t in range(4):
        em.emit(LB + (g * 8 + al) * 128 + ((f ^ (2 * t)) + (c >> 1)) * 16 + (c & 1) * 8, f'v{20+t}')
    for q in range(4):
        em.emit(rho * 512 + (((rho & 12) ^ (4 * q)) + (g ^ (rho & 3))) * 16, f'v{4+q}')
        A(f'v_add_u32 v{16+q}, {LB}, v{4+q}\nv_add_u32 v{4+q}, s35, v{4+q}')
    em.emit(g * 7168 + rho * 16, 'v2')
    em.emit(l * 16, 'v3')
    breg = lambda t, ks: f'a[{(t*8+ks)*4}:{(t*8+ks)*4+3}]'
    areg = lambda k, b, ks: vr(64 + ((k * 2 + b) * 8 + ks) * 4, 4)
    ACCR = lambda b, t: 32 + (b * 4 + t) * 4
    def read_a(k, b, ks): A(f'ds_read_b128 {areg(k,b,ks)}, v{4+(ks&3)} offset:{k*16384 + b*8192 + (ks>>2)*256}')
    def pair(task, k):
        for ks in range(8):
            for b in range(2):
                for t in range(4):
                    A(mfma(vr(ACCR(b, t), 4), areg(k, b, ks), breg(t, ks), 0 if ks == 0 else None))
                if k == 0: read_a(1, b, ks)
        for t in range(4):
            o = 192 + 16 * k + 4 * t
            for b in range(2):
                a = ACCR(b, t)
                if task:
                    for r in range(4): A(f'v_mul_f32 v{a+r}, s47, v{a+r}')
                A(f'v_cvt_pk_bf16_f32 v{o+2*b}, v{a}, v{a+1}\nv_cvt_pk_bf16_f32 v{o+2*b+1}, v{a+2}, v{a+3}')
    def stores(task, k):
        sp, stt = ((28672, 256), (1024, 14336))[task]
        A(f's_add_u32 s19, s17, {k}\ns_mul_i32 s19, s19, {sp}\ns_add_u32 s19, s19, s44')
        for t in range(4):
            w.vmem(f'buffer_store_dwordx4 {vr(192+16*k+4*t,4)}, v{2+task}, s[4:7], s19 offen {st}')
            if t < 3: A(f's_add_u32 s19, s19, {stt}')
    def signal(task, keep):
        lab = f'P_sig{task}'
        A(f's_waitcnt vmcnt({keep})\ns_barrier\ns_cmp_lg_u32 s9, 0\ns_cbranch_scc1 {lab}')
        if task == 0:
            A('v_cmp_eq_u32 vcc, 0, v26\ns_cbranch_vccz P_zok')
            zero_ready(A, 'P_zr', tmo)
            A('P_zok:')
        A(f's_lshl_b32 s19, s16, 7\ns_add_u32 s19, s19, {(FB, FA)[task]}\nv_mov_b32 v1, 1\ns_mov_b64 exec, 1')
        A(f'buffer_atomic_add v1, off, s[4:7], s19 sc1\ns_mov_b64 exec, -1\n{lab}:')
    for task in range(2):
        if task == 0:
            w.wait(vm='B0'); A('s_barrier')
            tline(A, c2, 6, 0x4000)
            for t in range(4):
                for ks in range(8):
                    n = (t * 8 + ks) * 4
                    A(f'ds_read_b64_tr_b16 a[{n}:{n+1}], v{20+t} offset:{ks*4096}')
                    A(f'ds_read_b64_tr_b16 a[{n+2}:{n+3}], v{20+t} offset:{ks*4096+512}')
            A(f's_mul_i32 s44, s16, {14*28672}\ns_lshl_b32 s19, s13, 10\ns_add_u32 s44, s44, s19\ns_add_u32 s44, s44, {BF}')
            w.wait(vm='A00')
        else:
            A('s_waitcnt vmcnt(16)\ns_barrier')
            for t in range(4):
                for ks in range(8): A(f'ds_read_b128 {breg(t,ks)}, v{16+(ks&3)} offset:{t*8192 + (ks>>2)*256}')
            A(f's_mul_i32 s44, s16, {28*14336}\ns_mul_i32 s19, s13, {4*14336}\ns_add_u32 s44, s44, s19\ns_add_u32 s44, s44, {AF}')
            A(f's_mov_b32 s47, {f32(CSC)}')
        for ks in range(8):
            for b in range(2): read_a(0, b, ks)
        A('s_waitcnt vmcnt(0) lgkmcnt(0)'); w.vm = []
        if task == 0: A('s_barrier\nbuffer_load_dword v26, off, s[48:51], 0 offset:132 sc1')
        pair(task, 0)
        A('s_waitcnt lgkmcnt(0)')
        stores(task, 0)
        A(f's_cmp_eq_u32 s9, 3\ns_cbranch_scc1 P_skip{task}')
        pair(task, 1)
        stores(task, 1)
        A(f'P_skip{task}:')
        tline(A, c2, 1 + 2 * task, 0x4000)
        dstamp(A, cfg, 10 + task, 100, 1)
        if task == 0:
            A('s_lshl_b32 s19, s13, 1\ns_lshr_b32 s33, s9, 1\ns_add_u32 s19, s19, s33\ns_lshl_b32 s19, s19, 18\ns_and_b32 s33, s9, 1\ns_lshl_b32 s33, s33, 15')
            A('s_add_u32 s19, s19, s33\ns_add_u32 s19, s19, s18')
            npre = cfg.get('npre', 1)
            tile_dma('s[60:63]', 's19', ('s34', LB), 'B1')
            if npre >= 2: load_a(1, 0)
            if npre >= 3: load_a(1, 1)
            signal(0, (8, 24, 40)[npre - 1])
            if npre < 2: load_a(1, 0)
            if npre < 3: load_a(1, 1)
        else:
            signal(1, 0)
        tline(A, c2, 2 + 2 * task, 0x4000)

def gen_misc(A, cfg, tmo):
    st = 'sc1'
    c2 = dict(cfg, tlreg=1)
    l = V('v0'); g = l >> 4; rho = l & 15
    em = Emitter(A, [f'v{i}' for i in range(200, 230)])
    A('s_mov_b32 s12, s10')
    srd(A, 20, 28, S * D * 2); srd(A, 24, 30, M * D * 2)
    A('s_lshl_b32 s13, s12, 2\ns_add_u32 s13, s13, s9')
    tid = l + Sg('s9') * 64
    em.emit(tid * 16, 'v2')
    A(f'v_mov_b64 v[184:185], 0\nv_mov_b64 v[186:187], 0\ns_lshl_b32 s15, s12, 12\ns_add_u32 s16, s15, {HU1}')
    A(f'buffer_store_dwordx4 v[184:187], v2, s[4:7], s16 offen {st}')
    em.emit(rho * 896 + g * 16, 'v1')
    A('s_mul_i32 s14, s13, 14336')
    for p in range(14): A(f'buffer_load_dwordx4 {vr(4+4*p,4)}, v1, s[20:23], s14 offen offset:{p*64}')
    A('s_cmp_lt_u32 s12, 30\ns_cbranch_scc1 P_nomem')
    gi = (Sg('s12') - 30) * 256 + tid
    rr = gi & 15
    em.emit(sel_lt(gi, 448, (((rr >> 2) * 2 + (rr & 1)) * 448 + (gi >> 4) * 16 + ((rr >> 1) & 1) * 2) * 2, OOB), 'v3')
    for q in range(4): A(f'buffer_load_dword v{188+q}, v3, s[24:27], 0 offen offset:{q*8}')
    em.emit(sel_lt(gi, 448, gi * 16 + MS, OOB), 'v3')
    A('s_waitcnt vmcnt(0)')
    for q in range(4): A(f'v_min_u32 v{188+q}, -2, v{188+q}')
    A(f'buffer_store_dwordx4 v[188:191], v3, s[4:7], 0 offen {st}\ns_waitcnt vmcnt(1)\ns_branch P_memok\nP_nomem:')
    A('s_waitcnt vmcnt(0)\nP_memok:\ns_barrier\ns_cmp_lg_u32 s9, 0\ns_cbranch_scc1 P_zdone')
    A('v_mov_b32 v1, 1\ns_mov_b64 exec, 1\nbuffer_atomic_add v1, off, s[48:51], 0 offset:8 sc0 sc1\ns_waitcnt vmcnt(0)\ns_mov_b64 exec, -1')
    A('v_readfirstlane_b32 s11, v1\ns_cmp_lg_u32 s11, 31\ns_cbranch_scc1 P_zdone\nv_mov_b32 v1, 1\nbuffer_store_dword v1, off, s[48:51], 0 offset:132 sc1\nP_zdone:')
    A('v_mov_b64 v[180:181], -1\nv_mov_b64 v[182:183], -1')
    A(f's_lshl_b32 s15, s12, 14\ns_add_u32 s15, s15, {MX}')
    for k in range(4):
        A(f'buffer_store_dwordx4 v[180:183], v2, s[4:7], s15 offen {st}' + ('\ns_add_u32 s15, s15, 4096' if k < 3 else ''))
    A(f's_lshl_b32 s15, s12, 12')
    A(f's_mov_b32 s16, {PS}\ns_cmp_lt_u32 s12, 16\ns_cselect_b32 s16, s16, {MS + 8192 - 16*4096}\ns_add_u32 s16, s16, s15')
    A(f's_cmp_ge_u32 s12, 22\ns_cbranch_scc1 P_nofill\nbuffer_store_dwordx4 v[180:183], v2, s[4:7], s16 offen {st}\nP_nofill:')
    for k in range(56):
        A(f'v_lshlrev_b32 v{64+2*k}, 16, v{4+k}\nv_and_b32 v{65+2*k}, 0xffff0000, v{4+k}')
    def allred(r):
        A(f'v_mov_b32 v{r+1}, v{r}\nv_permlane16_swap_b32 v{r}, v{r+1}\nv_add_f32 v{r}, v{r}, v{r+1}')
        A(f'v_mov_b32 v{r+1}, v{r}\nv_permlane32_swap_b32 v{r}, v{r+1}\nv_add_f32 v{r}, v{r}, v{r+1}')
    A('v_pk_add_f32 v[180:181], v[64:65], v[66:67]\nv_pk_add_f32 v[182:183], v[68:69], v[70:71]')
    for k in range(4, 56): A(f'v_pk_add_f32 v[{180+2*(k&1)}:{181+2*(k&1)}], v[{180+2*(k&1)}:{181+2*(k&1)}], v[{64+2*k}:{65+2*k}]')
    A('v_pk_add_f32 v[180:181], v[180:181], v[182:183]\nv_add_f32 v180, v180, v181')
    allred(180)
    A(f'v_mul_f32 v180, {f32(1/448)}, v180          ; mean')
    A('v_mov_b64 v[184:185], 0\nv_mov_b64 v[186:187], 0')
    for k in range(56):
        t = 188 + 2 * (k & 1); s_ = 184 + 2 * (k & 1)
        A(f'v_pk_add_f32 v[{t}:{t+1}], v[{64+2*k}:{65+2*k}], v[180:181] op_sel_hi:[1,0] neg_lo:[0,1] neg_hi:[0,1]')
        A(f'v_pk_fma_f32 v[{s_}:{s_+1}], v[{t}:{t+1}], v[{t}:{t+1}], v[{s_}:{s_+1}]')
    A('v_pk_add_f32 v[184:185], v[184:185], v[186:187]\nv_add_f32 v184, v184, v185')
    allred(184)
    A(f'v_mul_f32 v184, {f32(1/448)}, v184          ; variance')
    rnd = lambda r: A(f'v_cvt_pk_bf16_f32 v{r}, v{r}, v{r}\nv_and_b32 v{r}, 0xffff0000, v{r}')
    rnd(180); rnd(184)
    A(f'v_add_f32 v184, {f32(1e-5)}, v184'); rnd(184)
    A('v_sqrt_f32 v184, v184'); rnd(184)
    A('v_rcp_f32 v184, v184')
    em.emit(l * 16, 'v2')
    if XF: A(f's_add_u32 s14, s14, {XF}')
    for k in range(56):
        a = 64 + 2 * k
        A(f'v_pk_add_f32 v[{a}:{a+1}], v[{a}:{a+1}], v[180:181] op_sel_hi:[1,0] neg_lo:[0,1] neg_hi:[0,1]')
        A(f'v_cvt_pk_bf16_f32 v{a}, v{a}, v{a+1}\nv_and_b32 v{a+1}, 0xffff0000, v{a}\nv_lshlrev_b32 v{a}, 16, v{a}')
        A(f'v_pk_mul_f32 v[{a}:{a+1}], v[{a}:{a+1}], v[184:185] op_sel_hi:[1,0]')
        A(f'v_cvt_pk_bf16_f32 v{4+k}, v{a}, v{a+1}')
        if k % 4 == 3:
            p = k >> 2
            if p and p % 4 == 0: A('s_add_u32 s14, s14, 4096')
            A(f'buffer_store_dwordx4 {vr(4+4*p,4)}, v2, s[4:7], s14 offen offset:{(p%4)*1024} {st}')
    A('s_waitcnt vmcnt(0)\ns_barrier\ns_cmp_lg_u32 s9, 0\ns_cbranch_scc1 P_xdone')
    zero_ready(A, 'P_zr2', tmo)
    A(f's_mov_b32 s19, {FX}\nv_mov_b32 v1, 1\ns_mov_b64 exec, 1\nbuffer_atomic_add v1, off, s[4:7], s19 sc1\ns_mov_b64 exec, -1\nP_xdone:')
    tline(A, c2, 2, 0x4000)
```

```python
from asmdsl import Asm
from expr import X, V, Sg, Emitter, ev, sel_lt, wrap
from layout import *
import numpy as np

SRD = 's[4:7]'
def vr(a, n=1): return f'v{a}' if n == 1 else f'v[{a}:{a+n-1}]'
def wreg(o):
    return f'a[{8*o}:{8*o+7}]' if o < 32 else f'v[{120+8*(o-32)}:{127+8*(o-32)}]'
def wquad(o, b):
    return f'a[{8*o+4*b}:{8*o+4*b+3}]' if o < 32 else f'v[{120+8*(o-32)+4*b}:{123+8*(o-32)+4*b}]'

class Wv:
    def __init__(self, A, cfg):
        self.A = A; self.vm = []; self.lg = []; self.cfg = cfg; self.nst = 0
    def __call__(self, t): self.A(t)
    def vmem(self, t, tag=None): self.A(t); self.vm.append(tag)
    def ds(self, t, tag=None): self.A(t); self.lg.append(tag)
    def wait(self, vm=None, lg=None):
        parts = []
        if vm is not None and vm in self.vm:
            i = len(self.vm) - 1 - self.vm[::-1].index(vm)
            parts.append(f'vmcnt({len(self.vm)-1-i})'); self.vm = self.vm[i+1:]
        if lg is not None and lg in self.lg:
            i = len(self.lg) - 1 - self.lg[::-1].index(lg)
            n = min(len(self.lg) - 1 - i, 15)
            parts.append(f'lgkmcnt({n})'); self.lg = self.lg[i+1:]
        if parts: self.A('s_waitcnt ' + ' '.join(parts))
    def wait_all_lg(self): self.A('s_waitcnt lgkmcnt(0)'); self.lg = []
    def wait_all_vm(self): self.A('s_waitcnt vmcnt(0)'); self.vm = []
    def stamp(self, name=None):
        if self.cfg.get('stamps'):
            assert self.nst < 12
            self.A(f's_memtime s[{60+2*self.nst}:{61+2*self.nst}]'); self.nst += 1
    def dump_stamps(self, lab):
        if not self.cfg.get('stamps'): return
        A = self.A
        A(f's_waitcnt lgkmcnt(0)\ns_cmp_lg_u32 s8, 6\ns_cbranch_scc1 {lab}_nocal')
        A(f's_memrealtime s[96:97]\ns_waitcnt lgkmcnt(0)\n{lab}_cal:\ns_memrealtime s[98:99]\ns_memtime s[100:101]\ns_waitcnt lgkmcnt(0)\ns_cmp_eq_u32 s96, s98\ns_cbranch_scc1 {lab}_cal')
        for k in range(12): A(f's_mov_b32 s{84+k}, 0')
        A(f'{lab}_nocal:\ns_cmp_lt_u32 s8, 8\ns_cbranch_scc1 {lab}_nodump\ns_cmp_gt_u32 s8, 57\ns_cbranch_scc1 {lab}_nodump')
        for k in range(self.nst): A(f's_sub_u32 s11, s{60+2*k}, s100\ns_add_u32 s{84+k}, s{84+k}, s11')
        A(f's_cmp_lg_u32 s8, 57\ns_cbranch_scc1 {lab}_nodump')
        A('s_lshl_b32 s11, s3, 2\ns_add_u32 s11, s11, s9\ns_lshl_b32 s11, s11, 6')
        A(f's_add_u32 s11, s11, {DBG}')
        A(f'v_mov_b32 v0, s98\nv_mov_b32 v2, 0x4000\nbuffer_store_dword v0, v2, {SRD}, s11 offen')
        for k in range(self.nst):
            A(f'v_mov_b32 v0, s{84+k}\nv_mov_b32 v1, {4*k}\nbuffer_store_dword v0, v1, {SRD}, s11 offen')
        A(f's_waitcnt vmcnt(0)\n{lab}_nodump:')

def tline(A, cfg, k, base=0, idx='s3'):
    if not cfg.get('tl'): return
    lab = A.newlabel(f'TL{base}')
    A(f's_cmp_lg_u32 s9, 0\ns_cbranch_scc1 {lab}')
    A(f's_memrealtime s[96:97]\ns_lshl_b32 s98, {idx}, 6\ns_add_u32 s98, s98, {DBG + 0x8000 + base + 4*k}\ns_waitcnt lgkmcnt(0)')
    A(f'v_accvgpr_write_b32 a255, s96' if False else f'v_mov_b32 v{cfg.get("tlreg", 95)}, s96')
    A(f'buffer_store_dword v{cfg.get("tlreg", 95)}, off, {SRD}, s98')
    if cfg.get('tlclk'):
        A(f's_memtime s[96:97]\ns_waitcnt lgkmcnt(0)\nv_mov_b32 v{cfg.get("tlreg", 95)}, s96\nbuffer_store_dword v{cfg.get("tlreg", 95)}, off, {SRD}, s98 offset:32')
    A(f'{lab}:')

def smf(acc, a, b, idx): return f'v_smfmac_f32_16x16x64_bf16 {vr(acc,4)}, {a}, {b}, {idx}'

KM = 3
MREG = [16, 20, 24, 0, 4, 8, 12]
ACC = [28 + 4 * t for t in range(7)]
vIDX, vL16, vHUp, vHUs = 'v119', 'v118', 'v117', 'v116'
vKA = ['v115', 'v114', 'v113', 'v112', 'v111', 'v110', 'v109']
sSTEP, sW, sR = 's8', 's9', 's10'
sKK = [f's{12+t}' for t in range(7)]
sSPIN, sRETRY, sS1 = 's19', 's20', 's31'
sMO = ['s36', 's37', 's38']
SPIN_MAX = 0x80000
L_K = 131072

def common_consts(em, A, lab, rot):
    l = V('v0')
    em.emit(l & 63, 'v0')
    em.emit(sel_lt(l & 2, 1, 0x44444444, 0xEEEEEEEE), vIDX)
    em.emit(l * 16, vL16)
    A(f's_lshl_b32 s33, {sW}, 1\ns_add_u32 s33, s33, {rot}')
    for _ in range(3): A('s_cmp_ge_u32 s33, 7\ns_cselect_b32 s35, 7, 0\ns_sub_u32 s33, s33, s35')
    for t in range(7):
        A(f's_add_u32 s34, s33, {t}\ns_cmp_ge_u32 s34, 7\ns_cselect_b32 s35, 7, 0\ns_sub_u32 s34, s34, s35\ns_lshl_b32 {sKK[t]}, s34, 10')
    em.emit(L_K + l * 16, 'v1')
    for t in range(7): A(f'v_add_u32 {vKA[t]}, {sKK[t]}, v1')
    A(f's_cmp_lg_u32 {sW}, 3\ns_cbranch_scc1 {lab}_w3skip\nv_add_u32 {vKA[1]}, 7168, v1\n{lab}_w3skip:')

def step_consts(A, solo=False):
    A(f's_and_b32 s11, {sSTEP}, {0 if solo else 3}\ns_lshl_b32 s33, s11, 13\ns_add_u32 s33, s33, {MS}')
    for t in range(3): A(f's_add_u32 {sMO[t]}, s33, {sKK[t]}')
    A(f's_add_u32 {sS1}, {sSTEP}, 1')

def poll(w, lab, vp, sval, tmo, nl):
    w(f'v_mov_b32 {vp}, 0')
    if w.cfg.get('pollmask', 1): w(f's_mov_b32 exec_lo, {hex((1 << nl) - 1) if nl < 32 else -1}\ns_mov_b32 exec_hi, 0')
    w(f'{lab}:')
    if w.cfg.get('pollnop'): w(f's_nop {w.cfg["pollnop"]-1}')
    w(f'buffer_load_dword {vp}, {vHUp}, {SRD}, 0 offen sc1')
    w(f's_waitcnt vmcnt({w.cfg.get("polldepth", 40)})')
    w(f'v_cmp_gt_u32 vcc, {sval}, {vp}')
    w(f's_sub_u32 {sSPIN}, {sSPIN}, 1\ns_cbranch_scc1 {tmo}')
    w(f's_cbranch_vccnz {lab}')
    if w.cfg.get('pollmask', 1): w('s_mov_b64 exec, -1')
    w.vm = []

def zero(w, a, n):
    for i in range(a, a + n, 2): w(f'v_mov_b64 {vr(i,2)}, 0')

def sentinel_check(w, regs, tmp):
    w(f'v_max3_u32 {tmp}, v{regs[0]}, v{regs[1]}, v{regs[2]}')
    r = regs[3:]
    while len(r) >= 2:
        w(f'v_max3_u32 {tmp}, {tmp}, v{r[0]}, v{r[1]}'); r = r[2:]
    if r: w(f'v_max_u32 {tmp}, {tmp}, v{r[0]}')
    w(f'v_cmp_eq_u32 vcc, -1, {tmp}')

def weight_stream(w, fill, comb_write, lab, tmp, tmo=None, mpoll=False):
    cfg = w.cfg; ND = cfg.get('nd', 2)
    w(f'{lab}_mload:')
    w.vm = []; w.lg = []
    if mpoll:
        assert ND == 2
        for t in range(ND):
            w(f'buffer_load_dwordx4 {vr(MREG[t],4)}, {vL16}, {SRD}, {sMO[t]} offen sc1')
        if cfg.get('mnop'): w(f's_nop {cfg["mnop"]-1}')
        w(f's_waitcnt vmcnt({cfg.get("mdepth", 6)})')
        sentinel_check(w, list(range(MREG[0], MREG[0] + 8)), f'v{tmp}')
        w(f's_sub_u32 {sSPIN}, {sSPIN}, 1\ns_cbranch_scc1 {tmo}')
        w(f's_cbranch_vccnz {lab}_mload')
        w.vm = ['MP']
    else:
        for t in range(ND):
            w(f's_setprio {ND-1-t}')
            w.vmem(f'buffer_load_dwordx4 {vr(MREG[t],4)}, {vL16}, {SRD}, {sMO[t]} offen sc1', f'M{t}')
    order = [(tl, t) for t in range(KM) for tl in range(7)] + [(tl, t) for tl in range(7) for t in range(KM, 7)]
    pre = {}; mem = {}; val = {}
    ad = lambda d, n, f: d.setdefault(n, []).append(f)
    w1 = 1 if mpoll else cfg.get('w1', 3)
    for t, s0 in ((0, 0), (1, w1)):
        m = MREG[t]
        ad(pre, s0, lambda t=t: w.wait(vm=f'M{t}'))
        ad(mem, s0, lambda t=t, m=m: w.ds(f'ds_write_b128 {vKA[t]}, {vr(m,4)}'))
    if mpoll:
        bs = w1 + cfg.get('mbar', 4)
        def sync():
            w.wait_all_lg(); w('s_barrier')
        ad(pre, 20, lambda: w.wait(vm='MP'))
    else:
        m0, m1, m2 = MREG[0], MREG[1], MREG[2]
        ad(val, 1, lambda: w(f'v_max3_u32 v{tmp}, v{m0}, v{m0+1}, v{m0+2}'))
        c = w1 + 1
        ad(val, c, lambda: w(f'v_max3_u32 v{tmp}, v{tmp}, v{m0+3}, v{m1}'))
        ad(val, c + 1, lambda: w(f'v_max3_u32 v{tmp}, v{tmp}, v{m1+1}, v{m1+2}'))
        if ND == 2:
            ad(val, c + 2, lambda: w(f'v_max_u32 v{tmp}, v{tmp}, v{m1+3}'))
            c += 3
        else:
            ad(pre, c + 2, lambda: w.wait(vm='M2'))
            ad(val, c + 2, lambda: w(f'v_max3_u32 v{tmp}, v{tmp}, v{m1+3}, v{m2}'))
            ad(val, c + 3, lambda: w(f'v_max3_u32 v{tmp}, v{tmp}, v{m2+1}, v{m2+2}'))
            ad(val, c + 4, lambda: w(f'v_max_u32 v{tmp}, v{tmp}, v{m2+3}'))
            c += 5
        ad(val, c, lambda: w(f'v_cmp_eq_u32 vcc, -1, v{tmp}'))
        bs = c + cfg.get('bdelay', 2)
        def sync():
            w(f's_cbranch_vccnz {lab}_mretry')
            w.wait_all_lg(); w('s_barrier')
    ad(mem, bs, sync)
    n = 0
    for t in range(ND, 7):
        m = MREG[t]
        ad(mem, bs + n, lambda t=t, m=m: w.ds(f'ds_read_b128 {vr(m,4)}, {vKA[t]}', f'M{t}'))
        n += 1
    per = 7 - KM; base = 7 * KM
    for tl in range(6):
        s0 = base + per * (tl + 1) + 1
        ad(val, s0, lambda tl=tl: w(f'v_add_f32 v{tmp}, v{ACC[tl]}, v{ACC[tl]+2}'))
        ad(val, s0 + 1, lambda tl=tl: w(f'v_add_f32 v{tmp+1}, v{ACC[tl]+1}, v{ACC[tl]+3}'))
        ad(val, s0 + 2, lambda: w(f'v_cvt_pk_bf16_f32 v{tmp+2}, v{tmp}, v{tmp+1}'))
        ad(mem, s0 + 3, lambda tl=tl: comb_write(tl, f'v{tmp+2}'))
    fl, fv = fill(bs + n)
    for k, fs in fv.items():
        for f in fs: ad(val, k, f)
    if cfg.get('stamps'):
        for k in cfg.get('bfine', [0]): ad(fl, k, lambda: w.stamp())
    for n, (tl, t) in enumerate(order):
        for f in pre.get(n, []): f()
        w.wait(vm=f'M{t}', lg=f'M{t}')
        w(smf(ACC[tl], vr(MREG[t], 4), wreg(tl * 7 + t), vIDX))
        for f in mem.get(n, []): f()
        for f in fl.get(n, []): f()
        for f in val.get(n, []): f()
    assert all(k < 49 for k in fl) and all(k < 49 for k in val)
    return [f for k in sorted(mem) if k >= 49 for f in mem[k]]

MREGA = [12, 16, 20, 24, 0, 4, 8]
def a_consts(em, A):
    l = V('v0')
    em.emit(l & 63, 'v0')
    em.emit(sel_lt(l & 2, 1, 0x44444444, 0xEEEEEEEE), vIDX)
    em.emit(l * 16, vL16)
    for t in range(4): A(f's_add_u32 s34, {sW}, {sR}\ns_add_u32 s34, s34, {t}\ns_and_b32 s34, s34, 3\ns_lshl_b32 {sKK[t]}, s34, 10')
    for t in range(4, 7): A(f's_movk_i32 {sKK[t]}, {t*1024}')
    em.emit(L_K + l * 16, vKA[4])
    for t in range(4): A(f'v_add_u32 {vKA[t]}, {sKK[t]}, {vKA[4]}')
    A(f's_lshl_b32 s29, {sW}, 10\ns_add_u32 s29, s29, 4096')

def a_step_consts(A, solo=False):
    A(f's_and_b32 s11, {sSTEP}, {0 if solo else 3}\ns_lshl_b32 s33, s11, 13\ns_add_u32 s33, s33, {MS}')
    A(f's_add_u32 s36, s33, {sKK[0]}\ns_add_u32 s37, s33, {sKK[1]}\ns_add_u32 s38, s33, s29\ns_add_u32 s39, s29, {L_K}')
    A(f's_add_u32 {sS1}, {sSTEP}, 1')

def a_stream(w, fill, comb_write, lab, tmp, tmo):
    cfg = w.cfg; MR = MREGA; KMA = 4; NE = cfg.get('ne', 2)
    w(f'{lab}_mload:')
    w.vm = []; w.lg = []
    for t in range(NE): w(f'buffer_load_dwordx4 {vr(MR[t],4)}, {vL16}, {SRD}, s{36+t} offen sc1')
    if cfg.get('mnop'): w(f's_nop {cfg["mnop"]-1}')
    w(f's_waitcnt vmcnt({cfg.get("mdepth", 2)})')
    sentinel_check(w, list(range(MR[0], MR[0] + 4 * NE)), f'v{tmp}')
    w(f's_sub_u32 {sSPIN}, {sSPIN}, 1\ns_cbranch_scc1 {tmo}')
    w(f's_cbranch_vccnz {lab}_mload')
    order = [(tl, t) for t in range(KMA) for tl in range(7)] + [(tl, t) for tl in range(7) for t in range(KMA, 7)]
    pre = {}; mem = {}; val = {}
    ad = lambda d, n, f: d.setdefault(n, []).append(f)
    ew = cfg.get('ew', 128)
    if ew == 128:
        if NE == 1: w.ds(f'ds_write_b128 {vKA[0]}, {vr(MR[0],4)}')
        else: ad(mem, 0, lambda: w.ds(f'ds_write_b128 {vKA[0]}, {vr(MR[0],4)}'))
    elif ew == 64:
        for k in range(2): ad(mem, k, lambda k=k: w.ds(f'ds_write_b64 {vKA[0]}, {vr(MR[0]+2*k,2)} offset:{8*k}'))
    else:
        for k in range(4): ad(mem, k, lambda k=k: w.ds(f'ds_write_b32 {vKA[0]}, v{MR[0]+k} offset:{4*k}'))
    bs = cfg.get('ebar', 2 if NE == 1 else 8)
    ad(mem, bs, lambda: (w.wait_all_lg(), w('s_barrier')))
    for t in range(NE, 4):
        ad(mem, bs + (t - NE), lambda t=t: w.ds(f'ds_read_b128 {vr(MR[t],4)}, {vKA[t]}', f'M{t}'))
    l0 = cfg.get('lslot', 3); lb = cfg.get('lbar', 17)
    ad(mem, l0 - 1, lambda: w('s_mov_b32 m0, s39'))
    ad(mem, l0, lambda: w.vmem(f'buffer_load_dwordx4 {vL16}, {SRD}, s38 offen sc1 lds', 'L'))
    ad(mem, lb, lambda: (w.wait(vm='L'), w('s_barrier')))
    for t in (4, 5, 6): ad(mem, lb + (t - 4) // 2, lambda t=t: w.ds(f'ds_read_b128 {vr(MR[t],4)}, {vKA[4]} offset:{t*1024}', f'M{t}'))
    lc = lb + 3
    w.lretry_state = None
    ad(pre, lc + 1, lambda: w.wait(lg='M5'))
    ad(val, lc + 1, lambda: w(f'v_max3_u32 v{tmp}, v0, v1, v2'))
    ad(val, lc + 2, lambda: w(f'v_max3_u32 v{tmp}, v{tmp}, v3, v4'))
    ad(pre, lc + 3, lambda: w.wait(lg='M6'))
    ad(val, lc + 3, lambda: w(f'v_max3_u32 v{tmp}, v{tmp}, v5, v6'))
    ad(val, lc + 4, lambda: w(f'v_max3_u32 v{tmp}, v{tmp}, v7, v8'))
    ad(val, lc + 5, lambda: w(f'v_max3_u32 v{tmp}, v{tmp}, v9, v10'))
    ad(val, lc + 6, lambda: (w(f'v_max_u32 v{tmp}, v{tmp}, v11'), w(f'v_cmp_eq_u32 vcc, -1, v{tmp}')))
    cs = lc + 7
    assert cs <= 27
    ad(mem, cs, lambda: w(f's_cbranch_vccnz {lab}_lretry\n{lab}_lok:'))
    per = 7 - KMA; base = 7 * KMA
    for tl in range(6):
        s0 = base + per * (tl + 1) + 1
        o = tmp + 2
        ad(val, s0, lambda tl=tl: w(f'v_add_f32 v{tmp}, v{ACC[tl]}, v{ACC[tl]+2}'))
        ad(val, s0 + 1, lambda tl=tl: w(f'v_add_f32 v{tmp+1}, v{ACC[tl]+1}, v{ACC[tl]+3}'))
        ad(val, s0 + 2, lambda: w(f'v_cvt_pk_bf16_f32 v{o}, v{tmp}, v{tmp+1}'))
        ad(mem, s0 + 3, lambda tl=tl: comb_write(tl, f'v{o}'))
    fl, fv = fill(bs + 4 - NE, cs + 1)
    for k, fs in fv.items():
        for f in fs: ad(val, k, f)
    if cfg.get('stamps'):
        for k in cfg.get('fine', [0]): ad(fl, k, lambda: w.stamp())
    for n, (tl, t) in enumerate(order):
        for f in pre.get(n, []): f()
        w.wait(lg=f'M{t}')
        w(smf(ACC[tl], vr(MR[t], 4), wreg(tl * 7 + t), vIDX))
        for f in mem.get(n, []): f()
        for f in fl.get(n, []): f()
        for f in val.get(n, []): f()
    assert all(k < 49 for k in fl)
    return [f for k in range(49, 56) for f in mem.get(k, []) + val.get(k, [])]

def l_retry(w, lab, tmp, tmo):
    w(f'{lab}_lretry:\ns_mov_b32 s35, m0\n{lab}_lretry2:')
    w(f's_add_u32 {sRETRY}, {sRETRY}, 1\ns_barrier\ns_mov_b32 m0, s39')
    w(f's_sub_u32 {sSPIN}, {sSPIN}, 4\ns_cbranch_scc1 {tmo}')
    w(f'buffer_load_dwordx4 {vL16}, {SRD}, s38 offen sc1 lds\ns_waitcnt vmcnt(0)\ns_barrier')
    for t in (4, 5, 6): w(f'ds_read_b128 {vr(MREGA[t],4)}, {vKA[4]} offset:{t*1024}')
    w('s_waitcnt lgkmcnt(0)')
    sentinel_check(w, list(range(0, 12)), f'v{tmp}')
    w(f's_cbranch_vccnz {lab}_lretry2\ns_mov_b32 m0, s35\ns_branch {lab}_lok')

def m_retry(w, lab, tmo):
    w(f'{lab}_mretry:')
    w(f's_add_u32 {sRETRY}, {sRETRY}, 1')
    w(f's_sub_u32 {sSPIN}, {sSPIN}, 8\ns_cbranch_scc1 {tmo}\ns_waitcnt vmcnt(0) lgkmcnt(0)')
    zero(w, 28, 28)
    w(f's_branch {lab}_mload')

def wait_lanes(A, lab, addr, target, tmo):
    em = Emitter(A, [f'v{i}' for i in range(4, 13)])
    A(f's_cmp_lg_u32 s9, 0\ns_cbranch_scc1 {lab}_go')
    em.emit(addr, 'v1'); em.emit(target, 'v2')
    A(f's_mov_b32 s19, 0x40000\n{lab}:\nbuffer_load_dword v3, v1, {SRD}, 0 offen sc1')
    A(f's_sub_u32 s19, s19, 1\ns_cbranch_scc1 {tmo}\ns_waitcnt vmcnt(0)\nv_cmp_gt_u32 vcc, v2, v3\ns_cbranch_vccnz {lab}')
    A(f'{lab}_go:\ns_barrier')

def emit_modes(A, cfg, lab, loop):
    if cfg.get('modes', 2) == 1:
        loop(lab, cfg.get('st', '')); return
    A(f's_cmp_lg_u32 s30, 0\ns_cbranch_scc1 {lab}_slow')
    loop(lab + 'x', '')
    A(f'{lab}_slow:')
    loop(lab + 'y', 'sc1')

def load_weights(w, addr_of):
    n = 0
    for tl in range(7):
        for t in range(7):
            for b in range(2):
                va, pre = addr_of(tl, t, b)
                w(pre)
                w(f'buffer_load_dwordx4 {wquad(tl*7+t, b)}, {va}, {SRD}, s11 offen')
                n += 1
                if n % 16 == 0: w('s_waitcnt vmcnt(32)')

A_X, A_T, A_R = 0, 65536, 77824
Z0, Z1, SACC, TSP0, TSP1, TMP = 56, 12, 80, 36, 40, 92
aKR, aKR3, aTW, aTW6, aTR, aXR, aRW, aRR = 'v108', 'v107', 'v106', 'v105', 'v104', 'v103', 'v102', 'v101'
aP, aKR2, aPOLL = 'v100', 'v99', 'v96'
sQ = ['s21', 's22', 's23', 's24']
sXS, sXL, sPW, sPR, sWL, sMASK = 's25', 's26', 's27', 's28', 's32', 's[52:53]'

def a_exprs():
    l = V('v0'); w = Sg(sW); h = Sg(sR)
    g = l >> 4; rho = l & 15
    half = (rho >> 1) & 1
    q0 = (w >> 1) * 7 + (w & 1) * 4; q3 = (w >> 1) * 7 + 3
    e = {}
    i = rho & 7
    kr = L_K + ((g >> 1) * 16 + (i >> 1) * 4 + (i & 1)) * 16 + (g & 1) * 8
    e[aKR] = kr + q0 * 512
    e[aKR3] = kr + q3 * 512
    e[aKR2] = kr + q0 * 512 + 1024
    tw = A_T + w * 3072 + (rho >> 2) * 192 + (rho & 1) * 32 + g * 8 + half * 4
    e[aTW] = tw
    e[aTW6] = tw + 2304 + (w & 1) * 64
    e[aTR] = A_T + w * 3072 + g * 384 + ((l >> 3) & 1) * 64 + ((l >> 2) & 1) * 32 + (l & 3) * 8
    e[aXR] = A_X + w * 8192 + l * 16
    e[aRW] = A_R + w * 1536 + g * 384 + rho * 4
    rr = l >> 5; pi = l & 31; pc = pi.min(19)
    e[aRR] = A_R + (w * 2 + rr) * 192 + sel_lt(pc, 4, pc * 8, pc * 8 + 32)
    row = w * 2 + rr
    rho_of = lambda hf: (row >> 1) * 4 + hf * 2 + (row & 1)
    pm = ((h >> 3) + 8) * 1024 + (((h >> 1) & 3) * 16 + rho_of(pi & 1)) * 16 + ((h & 1) * 2 + ((pi >> 1) & 1)) * 4
    t0 = (pc - 4) * 2
    px = (h >> 1) * 1024 + (((h & 1) * 2 + ((t0 >> 3) & 1)) * 16 + rho_of((t0 >> 1) & 1)) * 16 + (((t0 >> 2) & 1) * 2 + ((t0 >> 4) & 1)) * 4
    e[aP] = sel_lt(pi, 4, pm, sel_lt(pi, 20, px, OOB))
    return e

def check_a_exprs():
    e = a_exprs(); l = np.arange(64)
    for h in (0, 1, 7, 8, 15):
        for w in range(4):
            env = {'v0': l, sW: w, sR: h}
            p = ev(e[aP], env)
            for ln in range(64):
                pi = ln & 31
                assert p[ln] == (ps_off(h, 2 * w + (ln >> 5), pi) if pi < 20 else OOB)
check_a_exprs()

def gen_A(A, cfg, lab, tmo):
    w = Wv(A, cfg)
    em = Emitter(A, [f'v{i}' for i in range(2, 30)])
    a_consts(em, A)
    for k, x in a_exprs().items(): em.emit(x, k)
    l = V('v0')
    em.emit(HU1 + (l & 15) * 4, vHUp)
    em.emit(sel_lt(l + Sg(sW) * 64, 1, HU2 + Sg(sR) * 4, OOB), vHUs)
    A(f's_mov_b32 s52, 0xfffff\ns_mov_b32 s53, 0xfffff')
    A(f's_lshr_b32 s11, {sW}, 1')
    A(f's_mul_i32 s34, s11, 7\ns_and_b32 s35, {sW}, 1\ns_lshl_b32 s36, s35, 2\ns_add_u32 s36, s36, s34')
    for u in range(3): A(f's_add_u32 s37, s36, {u}\ns_lshl_b32 {sQ[u]}, s37, 10')
    A(f's_add_u32 s37, s34, 3\ns_lshl_b32 {sQ[3]}, s37, 10')
    A(f's_lshl_b32 {sWL}, {sW}, 13')
    A(f's_mul_i32 s38, {sR}, {28*14336}\ns_add_u32 s38, s38, {AF}')
    A(f's_mul_i32 s39, s35, 14336')
    def addr(tl, t, b):
        pre = f's_mul_i32 s11, {sQ[tl>>1]}, 28\ns_add_u32 s11, s11, s38\n'
        pre += (f's_add_u32 s11, s11, {14336*(tl&1) + 1024*b}\n' if tl < 6 else f's_add_u32 s11, s11, s39\ns_add_u32 s11, s11, {1024*b}\n')
        pre += f's_lshl_b32 s37, {sKK[t]}, 1\ns_add_u32 s11, s11, s37'
        return vL16, pre
    sXo = ['s44', 's45', 's46', 's47']; sXm = ['s48', 's49', 's50', 's51']
    def x_consts():
        A(f's_add_u32 {sXo[0]}, {sXS}, {sQ[0]}\ns_add_u32 {sXo[1]}, {sXS}, {sQ[3]}')
        A(f's_add_u32 {sXo[2]}, {sXo[0]}, 14336\ns_add_u32 {sXo[3]}, {sXo[1]}, 14336')
        A(f's_mov_b32 {sXm[0]}, {sXL}\ns_add_u32 {sXm[1]}, {sXL}, 3072\ns_add_u32 {sXm[2]}, {sXL}, 4096\ns_add_u32 {sXm[3]}, {sXL}, 7168')
    def x_m0(tt, u):
        if u in (0, 3): A(f's_mov_b32 m0, {sXm[2*tt + (u == 3)]}')
    def x_dma(tt, u, w=w):
        w.vmem(f'buffer_load_dwordx4 {vL16}, {SRD}, {sXo[2*tt + (u == 3)]} offen offset:{1024*u if u < 3 else 0} lds', 'X')
    if cfg.get('pre_a'): cfg['pre_a']()
    A(f's_mov_b32 {sXS}, {XF}\ns_mov_b32 {sXL}, {sWL}')
    x_consts()
    for tt in range(2):
        for u in range(4): x_m0(tt, u); x_dma(tt, u)
    load_weights(w, addr)
    em.emit(A_T + Sg(sW) * 3072 + l * 16, 'v1')
    A('v_mov_b64 v[4:5], 0\nv_mov_b64 v[6:7], 0')
    for k in range(3): A(f'ds_write_b128 v1, v[4:7] offset:{k*1024}')
    zero(w, 28, 28); zero(w, SACC, 12)
    A(f's_mov_b32 {sSTEP}, 0\ns_mov_b32 {sSPIN}, {SPIN_MAX}\ns_mov_b32 {sRETRY}, 0')
    cfg['start_sync'](w, lab)
    A('s_waitcnt vmcnt(0) lgkmcnt(0)'); w.vm = []; w.lg = []
    def loop(lab, st):
        w = Wv(A, cfg)
        A(f'{lab}_loop:')
        cfg['loop_top'](w, lab)
        a_step_consts(A, cfg.get('solo'))
        A(f's_lshl_b32 s33, s11, 14\ns_add_u32 {sPW}, s33, {PS}\ns_xor_b32 {sPR}, {sPW}, 0x8000')
        A(f's_mul_i32 {sXS}, {sS1}, {0 if cfg.get("xsame") else 28672}' + (f'\ns_add_u32 {sXS}, {sXS}, {XF}' if XF else ''))
        A(f's_and_b32 s11, {sS1}, 1\ns_lshl_b32 s11, s11, 15\ns_add_u32 {sXL}, s11, {sWL}')
        x_consts()
        A(f'v_mov_b32 v{TMP+3}, {sS1}')
        for r in range(MREGA[0], MREGA[0] + 4 * cfg.get('ne', 2), 2): A(f'v_mov_b64 {vr(r,2)}, -1')
        w.stamp()
        gate = cfg.get('gate', 'w0')
        if gate == 'w0':
            A(f's_cmp_lg_u32 {sW}, 0\ns_cbranch_scc1 {lab}_nopoll')
            if not cfg.get('solo'): poll(w, f'{lab}_poll1', aPOLL, sSTEP, tmo, 16)
            A(f'{lab}_nopoll:\ns_barrier')
        elif gate == 'all':
            poll(w, f'{lab}_poll1', aPOLL, sSTEP, tmo, 16)
        w.stamp()
        for _ in range(cfg.get('adelay', 0)): A('s_nop 15')
        xpos = cfg.get('xpos', [14, 19, 24, 29, 34, 39, 44, 50])
        def xat(p):
            for k in range(8):
                if xpos[k] == p: x_m0(k >> 2, k & 3); x_dma(k >> 2, k & 3, w)
        def fill(f0, k0):
            d = {}; dv = {}
            add = lambda n, f: d.setdefault(n, []).append(f)
            def kq(n, reg, areg, off, tag, ns):
                if cfg.get('kr2'):
                    r2 = areg if off < 1024 else aKR2
                    o = (off & 1023) // 4
                    add(n, lambda: w.ds(f'ds_read2_b32 {vr(reg,2)}, {r2} offset0:{o} offset1:{o+8}', tag))
                    add(n, lambda: w.ds(f'ds_read2_b32 {vr(reg+2,2)}, {r2} offset0:{o+1} offset1:{o+9}', tag))
                    return
                add(n, lambda: w.ds(f'ds_read_b64 {vr(reg,2)}, {areg} offset:{off}', tag))
                add(n, lambda: w.ds(f'ds_read_b64 {vr(reg+2,2)}, {areg} offset:{off+32}', tag))
                add(ns, lambda: w.wait(lg=tag))
                dv.setdefault(ns, []).append(lambda: w(f'v_swap_b32 v{reg+1}, v{reg+2}'))
            n = f0
            for tt in range(2):
                for uu in range(2):
                    add(n, lambda tt=tt, uu=uu: w.ds(f'ds_read_b128 {vr(Z0+8*(1+tt)+4*uu,4)}, {aXR} offset:{(tt*4+uu)*1024}', 'Z0')); n += 1
            for k in range(8):
                if xpos[k] < 49:
                    add(xpos[k] - 1, lambda k=k: x_m0(k >> 2, k & 3))
                    add(xpos[k], lambda k=k: x_dma(k >> 2, k & 3, w))
            ks = cfg.get('kswap', [36, 39, 42, 45])
            kq(k0, Z0, aKR, 0, 'K0', ks[0]); kq(k0 + 1, Z0 + 4, aKR, 512, 'K1', ks[1])
            kq(k0 + 3, Z1, aKR, 1024, 'K2', ks[2]); kq(k0 + 4, Z1 + 4, aKR3, 0, 'K3', ks[3])
            for k, sl in enumerate((36, 37, 39, 40)):
                tt, uu = k >> 1, k & 1
                add(sl, lambda tt=tt, uu=uu: w.ds(f'ds_read_b128 {vr(Z1+8*(1+tt)+4*uu,4)}, {aXR} offset:{(tt*4+2+uu)*1024}', 'Z1'))
            add(45, lambda: w.ds(f'ds_read_b64_tr_b16 {vr(TSP0,2)}, {aTR}', 'TS0'))
            add(46, lambda: w.ds(f'ds_read_b64_tr_b16 {vr(TSP0+2,2)}, {aTR} offset:192', 'TS0'))
            return d, dv
        def tw(tl, reg):
            if tl < 6: w.ds(f'ds_write_b32 {aTW}, {reg} offset:{(tl>>1)*768 + (tl&1)*64}')
            else: w.ds(f'ds_write_b32 {aTW6}, {reg}')
        rest = a_stream(w, fill, tw, lab, TMP, tmo)
        w.stamp()
        w.wait(lg='TS0')
        w(smf(SACC, vr(TSP0, 4), vr(Z0, 8), vIDX))
        rest[0]()
        w(smf(SACC + 4, vr(TSP0, 4), vr(Z0 + 8, 8), vIDX))
        rest[1]()
        w(f'v_add_f32 v{TMP}, v{ACC[6]}, v{ACC[6]+2}\nv_add_f32 v{TMP+1}, v{ACC[6]+1}, v{ACC[6]+3}')
        w(f'v_cvt_pk_bf16_f32 v{TMP+2}, v{TMP}, v{TMP+1}')
        tw(6, f'v{TMP+2}')
        w.ds(f'ds_read_b64_tr_b16 {vr(TSP1,2)}, {aTR} offset:1536', 'TS1')
        w.ds(f'ds_read_b64_tr_b16 {vr(TSP1+2,2)}, {aTR} offset:{1536+192}', 'TS1')
        w(smf(SACC + 8, vr(TSP0, 4), vr(Z0 + 16, 8), vIDX))
        xat(50)
        w.wait(lg='TS1')
        for kt in range(3): w(smf(SACC + 4 * kt, vr(TSP1, 4), vr(Z1 + 8 * kt, 8), vIDX))
        for kt in range(3):
            w(f'v_add_f32 v{56+2*kt}, v{SACC+4*kt}, v{SACC+4*kt+2}\nv_add_f32 v{57+2*kt}, v{SACC+4*kt+1}, v{SACC+4*kt+3}')
            w.ds(f'ds_write2_b32 {aRW}, v{56+2*kt}, v{57+2*kt} offset0:{16*kt} offset1:{16*kt+48}')
        hu2 = lambda: w.vmem(f'buffer_store_dword v{TMP+3}, {vHUs}, {SRD}, 0 offen {st}')
        hp = cfg.get('hu2pos', 0)
        w.stamp()
        if hp == -1: hu2()
        xat(51)
        w.wait_all_lg()
        A('s_barrier')
        for k in range(4): w.ds(f'ds_read_b64 {vr(64+2*k,2)}, {aRR} offset:{k*1536}', f'R{k}')
        if hp == 0: hu2()
        xat(52)
        w.stamp()
        w.wait(lg='R1'); w('v_pk_add_f32 v[64:65], v[64:65], v[66:67]')
        w.wait(lg='R3'); w('v_pk_add_f32 v[68:69], v[68:69], v[70:71]')
        w('v_pk_add_f32 v[64:65], v[64:65], v[68:69]')
        if hp == 1: hu2()
        w('v_max_f32 v66, v64, v65')
        for k, r in enumerate((8, 4, 2, 1)):
            if hp == 2 + k: hu2()
            xat(53 + k)
            w(f'v_max_f32_dpp v66, v66, v66 row_ror:{r} row_mask:0xf bank_mask:0xf')
        w('v_mov_b32 v67, v66')
        w('v_permlane16_swap_b32 v66, v67')
        w('v_max_f32 v66, v66, v67')
        w('v_pk_add_f32 v[64:65], v[64:65], v[66:67] op_sel_hi:[1,0] neg_lo:[0,1] neg_hi:[0,1]')
        w('v_exp_f32 v64, v64\nv_exp_f32 v65, v65')
        if hp == 6: hu2()
        w('v_add_f32 v66, v64, v65')
        w(f'v_cndmask_b32 v66, 0, v66, {sMASK}')
        for k, r in enumerate((8, 4, 2, 1)):
            if hp == 7 + k: hu2()
            xat(57 + k)
            w(f'v_add_f32_dpp v66, v66, v66 row_ror:{r} row_mask:0xf bank_mask:0xf')
        w('v_mov_b32 v67, v66\nv_permlane16_swap_b32 v66, v67\nv_add_f32 v66, v66, v67')
        w('v_rcp_f32 v66, v66')
        if hp == 11: hu2()
        w('v_pk_mul_f32 v[64:65], v[64:65], v[66:67] op_sel_hi:[1,0]')
        w('v_cvt_pk_bf16_f32 v64, v64, v65')
        w('v_min_u32 v64, -2, v64')
        w.vmem(f'buffer_store_dword v64, {aP}, {SRD}, {sPW} offen {st}')
        if hp == 99: hu2()
        w.stamp()
        if cfg.get('ack'): w.wait_all_vm(); w.stamp()
        w('v_mov_b32 v65, -1')
        w.vmem(f'buffer_store_dword v65, {aP}, {SRD}, {sPR} offen {st}')
        xat(99)
        zero(w, 28, 28); zero(w, SACC, 12)
        w(f'v_xor_b32 {aXR}, 0x8000, {aXR}')
        w.dump_stamps(lab)
        A(f's_mov_b32 {sSPIN}, {SPIN_MAX}')
        A(f's_mov_b32 {sSTEP}, {sS1}\ns_cmp_lt_u32 {sSTEP}, {NSEG-1}\ns_cbranch_scc1 {lab}_loop')
        cfg['finish'](w, lab)
        A('s_endpgm')
        l_retry(w, lab, TMP, tmo)

    emit_modes(A, cfg, lab, loop)

B_VX, B_V = 0, 65536
bVW, bWR, bVR, bMS, bSEL = 'v108', 'v107', 'v106', 'v105', 'v104'
bMX, bFL, bVL, bPOLL = 'v107', 'v106', 'v105', 'v104'
bTO, bINC, bFLAG = 'v99', 'v98', 'v97'
bDM = [f'v{89+k}' for k in range(7)]
BT = 100
FACC = 96
sVS, sVL, sMW, sMR, sMXO = 's25', 's26', 's27', 's28', 's29'

def bcol(j, c):
    return sel_lt(c, 16, j * 16 + c, j * 12 + c + 240)

def b_exprs_final():
    l = V('v0'); w = Sg(sW); j = Sg(sR)
    g = l >> 4; n = l & 15; c = w * 16 + n
    e = {}
    e[bWR] = B_VX + (g * 28 + c.min(27)) * 16
    e[bVR] = B_V + (g * 28 + c.min(27)) * 16
    i = g * 2 + (n & 1); d0 = bcol(j, c & 30)
    k = d0 & 63
    off = (d0 >> 6) * 1024 + ((k >> 4) * 16 + (i >> 1) * 4 + ((k >> 1) & 1) * 2 + (i & 1)) * 16 + ((k >> 2) & 3) * 4
    e[bMS] = sel_lt(c, 28, off, OOB)
    e[bSEL] = sel_lt(n & 1, 1, 0x05040100, 0x03020706)
    return e
def check_b():
    e = b_exprs_final(); l = np.arange(64)
    for j in (0, 1, 5, 15):
        for w in range(2):
            p = ev(e[bMS], {'v0': l, sW: w, sR: j})
            for ln in range(64):
                c = 16 * w + (ln & 15)
                assert p[ln] == (ms_off(2 * (ln >> 4) + (ln & 1), (16 * j if c < 16 else 12 * j + 240) + (c & ~1)) if c < 28 else OOB)
check_b()

def gen_B(A, cfg, lab, tmo):
    w = Wv(A, cfg)
    em = Emitter(A, [f'v{i}' for i in list(range(2, 20)) + list(range(28, 56))])
    A(f's_add_u32 s39, {sR}, 1')
    common_consts(em, A, lab, 's39')
    l = V('v0'); ww = Sg(sW); j = Sg(sR)
    em.emit(B_V + (ww * 112 + (l & 15)) * 16 + (l >> 4) * 4, bVW)
    for tl in range(7):
        f = ww * 112 + tl * 16 + (l & 15); hh = f.div(28)
        em.emit((hh * 56 + (l >> 4)) * 7168 + bcol(j, f - hh * 28) * 16, f'v{20+tl}')
    def addr(tl, t, b):
        return f'v{20+tl}', f's_mul_i32 s11, {sKK[t]}, 56\ns_add_u32 s11, s11, {BF + 28672*b}'
    def vw(tl, reg): w.ds(f'ds_write_b32 {bVW}, {reg} offset:{tl*256}')
    def tail6(rest):
        for f in rest: f()
        w(f'v_add_f32 v{BT}, v{ACC[6]}, v{ACC[6]+2}\nv_add_f32 v{BT+1}, v{ACC[6]+1}, v{ACC[6]+3}')
        w(f'v_cvt_pk_bf16_f32 v{BT+2}, v{BT}, v{BT+1}')
        vw(6, f'v{BT+2}')
    if cfg.get('pre_b'): cfg['pre_b']()
    A(f's_cmp_ge_u32 {sW}, 2\ns_cbranch_scc1 {lab}_loader')
    for k, x in b_exprs_final().items(): em.emit(x, k)
    em.emit(sel_lt(l, 1, HU1 + 128 + (j * 2 + ww) * 4, OOB), vHUs)
    load_weights(w, addr)
    zero(w, 28, 28)
    A(f's_mov_b32 {sSTEP}, 0\ns_mov_b32 {sSPIN}, {SPIN_MAX}\ns_mov_b32 {sRETRY}, 0')
    cfg['start_sync'](w, lab + 'f')
    A('s_waitcnt vmcnt(0) lgkmcnt(0)')
    def loopf(lf, st, second):
        nonlocal w
        w = Wv(A, cfg)
        PREG = [4 * m for m in range(10)]
        order = cfg.get('porder', [0, 1, 2, 3, 4, 8, 9, 5, 6, 7])
        WREG = {0: 56, 1: 64, 2: 72, 3: 80, 4: 88, 8: 40, 9: 48, 5: 56, 6: 64, 7: 72}
        sPO = ['s22', 's23', 's24']
        def wx(m, b): w.ds(f'ds_read_b128 {vr(WREG[m]+4*b,4)}, {bWR} offset:{(2*m+b)*1792}', f'W{m}')
        A(f'{lf}_loop:')
        step_consts(A)
        A(f's_lshl_b32 s11, s11, 14\ns_add_u32 s22, s11, {PS}\ns_add_u32 s23, s22, 4096\ns_add_u32 s24, s22, 8192')
        A(f's_and_b32 s11, {sS1}, 3\ns_lshl_b32 s11, s11, 13\ns_add_u32 {sMW}, s11, {MS}\ns_xor_b32 {sMR}, {sMW}, 0x4000')
        A(f'v_mov_b32 v{BT+3}, {sS1}\nv_mov_b64 {vr(FACC,2)}, 0\nv_mov_b64 {vr(FACC+2,2)}, 0')
        if cfg.get('bpoll'):
            for r in range(MREG[0], MREG[0] + 8, 2): A(f'v_mov_b64 {vr(r,2)}, -1')
        w.stamp()
        A('s_barrier')
        w.stamp()
        def fillf(f0):
            d = {}
            for m in range(5):
                for b in range(2): d.setdefault(f0 + 2 * m + b, []).append(lambda m=m, b=b: wx(m, b))
            return d, {}
        tail6(weight_stream(w, fillf, vw, lf, BT, tmo, cfg.get('bpoll')))
        w.stamp()
        w.wait_all_lg()
        A('s_barrier')
        A(f's_cmp_eq_u32 {sSTEP}, {NSEG-1}\ns_cbranch_scc1 {lf}_done')
        for u in range(4): w.ds(f'ds_read_b128 {vr(40+4*u,4)}, {bVR} offset:{u*1792}', f'W{8+(u>>1)}')
        w.stamp()
        A('s_barrier')
        if second: A('s_barrier')
        w.stamp()
        def ploads():
            for k, m in enumerate(order):
                w.vmem(f'buffer_load_dwordx4 {vr(PREG[k],4)}, {vL16}, {SRD}, {sPO[m>>2]} offen offset:{(m&3)*1024} sc1', f'P{k}')
        ploads()
        if not second: A('s_barrier')
        A(f'{lf}_pchain:')
        for k, m in enumerate(order):
            w.wait(vm=f'P{k}', lg=f'W{m}')
            if k == 0: w.stamp()
            w(smf(FACC, vr(PREG[k], 4), vr(WREG[m], 8), vIDX))
            if k < 3: wx(5 + k, 0); wx(5 + k, 1)
        w(f'v_add_f32 v{BT}, v{FACC}, v{FACC+2}\nv_add_f32 v{BT+1}, v{FACC+1}, v{FACC+3}')
        w(f'v_cmp_u_f32 vcc, v{BT}, v{BT+1}')
        w(f'v_cvt_pk_bf16_f32 v{BT}, v{BT}, v{BT+1}')
        w(f'v_mov_b32_dpp v{BT+1}, v{BT} quad_perm:[1,0,3,2] row_mask:0xf bank_mask:0xf')
        w(f'v_perm_b32 v{BT}, v{BT+1}, v{BT}, {bSEL}')
        w(f'v_min_u32 v{BT}, -2, v{BT}')
        w(f's_cbranch_vccnz {lf}_pretry\n{lf}_pok:')
        w.vmem(f'buffer_store_dword v{BT}, {bMS}, {SRD}, {sMW} offen {st}')
        w.stamp()
        if cfg.get('ack'): w.wait_all_vm(); w.stamp()
        w(f'v_mov_b32 v{BT+1}, -1')
        w.vmem(f'buffer_store_dword v{BT+1}, {bMS}, {SRD}, {sMR} offen {st}')
        w.vmem(f'buffer_store_dword v{BT+3}, {vHUs}, {SRD}, 0 offen {st}')
        zero(w, 28, 28)
        w(f'v_xor_b32 {bWR}, 0x8000, {bWR}')
        w.dump_stamps(lf)
        A(f's_mov_b32 {sSPIN}, {SPIN_MAX}\ns_mov_b32 {sSTEP}, {sS1}\ns_branch {lf}_loop')
        A(f'{lf}_done:')
        cfg['finish'](w, lf)
        A('s_endpgm')
        m_retry(w, lf, tmo)
        A(f'{lf}_pretry:\ns_waitcnt vmcnt(0) lgkmcnt(0)')
        sentinel_check(w, list(range(0, 40)), f'v{BT+2}')
        A(f's_cbranch_vccz {lf}_pok')
        A(f's_add_u32 {sRETRY}, {sRETRY}, 0x10000\ns_sub_u32 {sSPIN}, {sSPIN}, 8\ns_cbranch_scc1 {tmo}')
        for m in range(3): wx(m, 0); wx(m, 1)
        A(f'v_mov_b64 {vr(FACC,2)}, 0\nv_mov_b64 {vr(FACC+2,2)}, 0\ns_waitcnt lgkmcnt(0)')
        ploads()
        A(f's_branch {lf}_pchain')
    A(f's_cmp_eq_u32 {sW}, 1\ns_cbranch_scc1 {lab}_second')
    emit_modes(A, cfg, lab + 'f', lambda lf, st: loopf(lf, st, False))
    A(f'{lab}_second:')
    emit_modes(A, cfg, lab + 'g', lambda lf, st: loopf(lf, st, True))
    ll = lab + 'l'
    A(f'{lab}_loader:')
    w = Wv(A, cfg)
    for r in range(7):
        f = l + 64 * r; hg = f.div(28)
        em.emit(hg * 7168 + bcol(j, f - hg * 28) * 16 + (4096 - (r & 3) * 1024), bDM[r])
    em.emit(sel_lt(ww, 3, HU1 + 128 + (l & 31) * 4, HU2 + (l & 15) * 4), vHUp)
    em.emit(sel_lt(l + (3 - ww) * 64, 1, HU1 + j * 4, OOB), vHUs)
    em.emit(sel_lt(j + (3 - ww) * 16, 7, j * 1024 + l * 16, OOB), bMX)
    xl = (j * 2 + ww - 2) * 7 + l
    em.emit(sel_lt(l, 7, XF + 2 * 28672 + xl * 128, sel_lt(l, 63, OOB, FVX + 2 * 128)), bTO)
    em.emit(sel_lt(l, 63, 28672, 128), bINC)
    A(f'v_mov_b32 {bFLAG}, 16')
    A(f's_sub_u32 s11, {sW}, 2\ns_mul_i32 s23, s11, 14336\ns_mul_i32 s24, s11, {VX_SEG//2}\ns_add_u32 s24, s24, {VXF - 4096}')
    def vx_m0(k):
        if k % 7 in (0, 4): w(f's_add_u32 m0, {sVL}, {k*1024}')
    def vx_dma(k):
        w.vmem(f'buffer_load_dwordx4 {bDM[k%7]}, {SRD}, {sVS if k < 7 else "s44"} offen offset:{((k%7)&3)*1024} lds', 'D')
    load_weights(w, addr)
    zero(w, 28, 28)
    A(f's_mov_b32 {sSTEP}, 0\ns_mov_b32 {sSPIN}, {SPIN_MAX}\ns_mov_b32 {sRETRY}, 0')
    cfg['start_sync'](w, ll)
    A(f's_mov_b32 {sVS}, s24\ns_add_u32 s44, {sVS}, {16*7168}\ns_mov_b32 {sVL}, s23')
    for k in range(14): vx_m0(k); vx_dma(k)
    def loopl(ll, st):
        nonlocal w
        w = Wv(A, cfg)
        A(f'{ll}_loop:')
        step_consts(A)
        A(f's_min_u32 s11, {sS1}, {0 if cfg.get("vxsame") else NSEG-1}\ns_mul_i32 {sVS}, s11, {VX_SEG}\ns_add_u32 {sVS}, {sVS}, s24\ns_add_u32 s44, {sVS}, {16*7168}')
        A(f's_and_b32 s11, {sS1}, 1\ns_lshl_b32 s11, s11, 15\ns_add_u32 {sVL}, s11, s23')
        A(f's_mul_i32 {sMXO}, {sSTEP}, 7168\ns_add_u32 {sMXO}, {sMXO}, {MX}')
        if cfg.get('bpoll'):
            for r in range(MREG[0], MREG[0] + 8, 2): A(f'v_mov_b64 {vr(r,2)}, -1')
        A('s_waitcnt vmcnt(0)')
        A(f's_cmp_ge_u32 {sSTEP}, {NSEG-1}\ns_cbranch_scc1 {ll}_fok')
        A(f'{ll}_fchk:\nv_readlane_b32 s11, {bFLAG}, 63\ns_nop 0\ns_cmp_ge_u32 s11, 16\ns_cbranch_scc1 {ll}_fok')
        A(f's_lshl_b32 s11, {sS1}, 7\ns_add_u32 s11, s11, {FVX}')
        A(f'buffer_load_dword {bFLAG}, off, {SRD}, s11 sc1')
        A(f's_sub_u32 {sSPIN}, {sSPIN}, 1\ns_cbranch_scc1 {tmo}\ns_waitcnt vmcnt(0)\ns_branch {ll}_fchk\n{ll}_fok:')
        w.stamp()
        A(f's_cmp_lg_u32 {sW}, 2\ns_cbranch_scc1 {ll}_nopoll')
        poll(w, f'{ll}_poll1', bPOLL, sSTEP, tmo, 32)
        A(f'{ll}_nopoll:\ns_barrier')
        w.stamp()
        d0 = cfg.get('dslot', 2); dstep = cfg.get('dstep', 2)
        def filll(f0):
            d = {}
            add = lambda n, f: d.setdefault(n, []).append(f)
            for k in range(14):
                add(d0 + dstep * k - 1, lambda k=k: vx_m0(k))
                add(d0 + dstep * k, lambda k=k: vx_dma(k))
            add(d0 + dstep * 14, lambda: w.vmem(f'buffer_load_dword {bFLAG}, {bTO}, {SRD}, 0 offen sc1', 'D'))
            if not cfg.get('nomx'):
                add(max(f0 - 4, cfg.get('vslot', 0)), lambda: w.vmem(f'buffer_store_dwordx4 {vr(MREG[0],4)}, {bMX}, {SRD}, {sMXO} offen {cfg.get("mxfl", "sc1")}'))
            return d, {}
        tail6(weight_stream(w, filll, vw, ll, BT, tmo, cfg.get('bpoll')))
        w.stamp()
        w.wait_all_lg()
        A('s_barrier')
        A(f's_cmp_eq_u32 {sSTEP}, {NSEG-1}\ns_cbranch_scc1 {ll}_done')
        zero(w, 28, 28)
        A(f'v_mov_b32 v{BT+3}, {sS1}')
        if not cfg.get('xsame'): A(f'v_add_u32 {bTO}, {bTO}, {bINC}')
        w.stamp()
        if cfg.get('drain'):
            w.wait(vm='D'); w.stamp(); w.wait_all_vm(); w.stamp()
        A(f's_cmp_lg_u32 {sW}, 3\ns_cbranch_scc1 {ll}_nopoll2')
        poll(w, f'{ll}_poll2', bPOLL, sS1, tmo, 16)
        A(f'{ll}_nopoll2:\ns_barrier')
        hu1 = f'buffer_store_dword v{BT+3}, {vHUs}, {SRD}, 0 offen {st}'
        if cfg.get('hu1pos', 0) == 0: A(hu1)
        A('s_barrier')
        if cfg.get('hu1pos', 0) == 1: A(hu1)
        w.dump_stamps(ll)
        A(f's_mov_b32 {sSPIN}, {SPIN_MAX}\ns_mov_b32 {sSTEP}, {sS1}\ns_branch {ll}_loop\n{ll}_done:')
        cfg['finish'](w, ll)
        A('s_endpgm')
        m_retry(w, ll, tmo)
    emit_modes(A, cfg, ll, loopl)
```

```python
from asmdsl import Asm
from expr import X, V, Sg, Emitter, ev, sel_lt
from layout import *
from rec import tline, wait_lanes, Wv, vr, wquad, wreg, smf, zero, sentinel_check, SRD
from prep import f32, mfma, srd
import math

sW, sR = 's9', 's10'
sSPIN = 's19'
WSPIN = 0x40000
BACK = ['']
NV = 4
NQ = 4

def wait_flag(w, lab, soff, target, tmo, vt='v2'):
    w(f's_cmp_lg_u32 {sW}, 0\ns_cbranch_scc1 {lab}_go\ns_mov_b32 {sSPIN}, {WSPIN}')
    w(f'{lab}:\nbuffer_load_dword {vt}, off, {SRD}, {soff} sc1')
    w(f's_sub_u32 {sSPIN}, {sSPIN}, 1\ns_cbranch_scc1 {tmo}\n{BACK[0]}s_waitcnt vmcnt(0)')
    w(f'v_cmp_gt_u32 vcc, {target}, {vt}\ns_cbranch_vccnz {lab}')
    w(f'{lab}_go:\ns_barrier')

def signal(w, lab, soff, vt='v2'):
    w('s_waitcnt vmcnt(0)\ns_barrier'); w.vm = []
    w(f's_cmp_lg_u32 {sW}, 0\ns_cbranch_scc1 {lab}\nv_mov_b32 {vt}, 1\ns_mov_b64 exec, 1')
    w(f'buffer_atomic_add {vt}, off, {SRD}, {soff} sc1\ns_mov_b64 exec, -1\n{lab}:')

def load_w(w, addr_of):
    n = 0
    for tl in range(7):
        for p in range(14):
            va, pre = addr_of(tl, p)
            w(pre)
            w(f'buffer_load_dwordx4 {wquad(tl*7 + (p>>1), p&1)}, {va}, {SRD}, s11 offen')
            n += 1
            if n % 16 == 0: w('s_waitcnt vmcnt(32)')

XB = 56
def xq(p, tt): return XB + ((p & 3) * 2 + tt) * 4
def acc2(tl, tt): return (tl * 2 + tt) * 4
sXB, sXN = 's20', 's21'
vL16 = 'v119'

def x_load(w, p, base):
    for tt in range(2):
        off = p * 1024 + tt * 14336
        w(f's_add_u32 s11, {base}, {off & ~4095}')
        w.vmem(f'buffer_load_dwordx4 {vr(xq(p,tt),4)}, {vL16}, {SRD}, s11 offen offset:{off & 4095}', f'X{p}')

def seg_gemm(w, w_is_a):
    for p in range(14):
        w.wait(vm=f'X{p}')
        for tl in range(7):
            for tt in range(2):
                wq = wquad(tl * 7 + (p >> 1), p & 1); xx = vr(xq(p, tt), 4)
                a, b = (wq, xx) if w_is_a else (xx, wq)
                w(mfma(vr(acc2(tl, tt), 4), a, b, 0 if p == 0 else None))
        if p + 4 < 14: x_load(w, p + 4, sXB)
        elif p >= 12: pass
    for p in range(4): x_load(w, p, sXN)

def mx_wait(w, lab, regs, loads, tmo, tmp):
    w(f's_mov_b32 {sSPIN}, {WSPIN}\n{lab}_1:\nbuffer_load_dword {tmp}, off, {SRD}, s15 sc1')
    w(f's_sub_u32 {sSPIN}, {sSPIN}, 1\ns_cbranch_scc1 {tmo}\n{BACK[0]}s_waitcnt vmcnt(0)\nv_cmp_eq_u32 vcc, -1, {tmp}\ns_cbranch_vccnz {lab}_1')
    w(f'{lab}:')
    loads()
    w(f's_sub_u32 {sSPIN}, {sSPIN}, 1\ns_cbranch_scc1 {tmo}\n{BACK[0]}s_waitcnt vmcnt(0)'); w.vm = []
    sentinel_check(w, regs, tmp)
    w(f's_cbranch_vccnz {lab}')

def gen_V(A, cfg, lab, tmo):
    w = Wv(A, {})
    em = Emitter(A, [f'v{i}' for i in range(2, 30)])
    l = V('v0'); g = l >> 4; n = l & 15; ww = Sg(sW); h = Sg(sR)
    em.emit(l & 63, 'v0')
    em.emit(l * 16, vL16)
    em.emit(sel_lt(l & 2, 1, 0x44444444, 0xEEEEEEEE), 'v118')
    em.emit(g * 7168 + (ww * 112 + n) * 16, 'v117')
    em.emit((ww * 112 + n) * 16 + g * 4, 'v116')
    A(f's_mul_i32 s13, {sR}, {14*28672}\ns_add_u32 s13, s13, {BF}')
    A(f's_mul_i32 {sXB}, s12, 28672' + (f'\ns_add_u32 {sXB}, {sXB}, {XF}' if XF else ''))
    wait_lanes(A, f'{lab}_wb', sel_lt(l, 1, FB + h * 128, FX), sel_lt(l, 1, 14, 32), tmo)
    load_w(w, lambda tl, p: ('v117', f's_add_u32 s11, s13, {p*28672 + tl*256}'))
    c2 = dict(cfg, tlreg=97)
    if cfg.get('tl'): A('s_waitcnt vmcnt(0)')
    tline(A, c2, 1)
    for p in range(4): x_load(w, p, sXB)
    A(f's_mov_b32 s8, s12\ns_mul_i32 s14, {sR}, 28672')
    A(f'{lab}_loop:')
    if cfg.get('vpace'):
        A(f's_cmp_lt_u32 s8, {cfg["vpace"]}\ns_cbranch_scc1 {lab}_np\ns_sub_u32 s15, s8, {cfg["vpace"]}\ns_mul_i32 s15, s15, 7168\ns_add_u32 s15, s15, {MX}')
        A(f's_mov_b32 {sSPIN}, {WSPIN}\n{lab}_pc:\nbuffer_load_dword v96, off, {SRD}, s15 sc1')
        A(f's_sub_u32 {sSPIN}, {sSPIN}, 1\ns_cbranch_scc1 {tmo}\n{BACK[0]}s_waitcnt vmcnt(0)\nv_cmp_eq_u32 vcc, -1, v96\ns_cbranch_vccnz {lab}_pc\n{lab}_np:')
    A(f's_add_u32 {sXN}, {sXB}, {NV*28672}')
    w.vm = [f'X{p}' for p in range(4) for _ in range(2)]
    seg_gemm(w, False)
    A(f's_mul_i32 s15, s8, {VX_SEG}\ns_add_u32 s15, s15, s14\ns_add_u32 s15, s15, {VXF}')
    for tl in range(7):
        o = 88 + 4 * (tl & 1)
        for tt in range(2):
            a = acc2(tl, tt)
            A(f'v_cvt_pk_bf16_f32 v{o+2*tt}, v{a}, v{a+1}\nv_cvt_pk_bf16_f32 v{o+2*tt+1}, v{a+2}, v{a+3}')
        A(f'buffer_store_dwordx4 {vr(o,4)}, v117, {SRD}, s15 offen offset:{tl*256} sc1')
    A(f's_lshl_b32 s15, s8, 7\ns_add_u32 s15, s15, {FVX}')
    signal(w, f'{lab}_sig', 's15', 'v96')
    if cfg.get('tl'):
        A(f's_cmp_ge_u32 s8, {NV}\ns_cbranch_scc1 {lab}_tl1'); tline(A, c2, 2); A(f'{lab}_tl1:')
    A(f's_mov_b32 {sXB}, {sXN}\ns_add_u32 s8, s8, {NV}\ns_cmp_lt_u32 s8, {NSEG}\ns_cbranch_scc1 {lab}_loop')
    tline(A, c2, 3)
    A(f's_mov_b32 s8, s12\ns_mul_i32 s14, {sR}, 7168')
    A(f'{lab}_mloop:')
    zero(w, 28, 28)
    A(f's_mul_i32 s15, s8, 7168\ns_add_u32 s15, s15, {MX}\ns_add_u32 s16, s15, 4096')
    def loads():
        for kk in range(7):
            A(f'buffer_load_dwordx4 {vr(4*kk,4)}, {vL16}, {SRD}, {"s15" if kk < 4 else "s16"} offen offset:{(kk&3)*1024} sc1')
    mx_wait(w, f'{lab}_mx', list(range(28)), loads, tmo, 'v96')
    for tl in range(7):
        for kk in range(7): A(smf(28 + 4 * tl, vr(4 * kk, 4), wreg(tl * 7 + kk), 'v118'))
    A(f's_mul_i32 s15, s8, {VM_SEG}\ns_add_u32 s15, s15, s14\ns_add_u32 s15, s15, {VM}')
    for tl in range(7):
        a = 28 + 4 * tl
        A(f'v_add_f32 v{a}, v{a}, v{a+2}\nv_add_f32 v{a+1}, v{a+1}, v{a+3}\nv_cvt_pk_bf16_f32 v{a}, v{a}, v{a+1}')
        A(f'buffer_store_dword v{a}, v116, {SRD}, s15 offen offset:{tl*256} sc1')
    A(f's_lshl_b32 s15, s8, 7\ns_add_u32 s15, s15, {FVM}')
    signal(w, f'{lab}_sig2', 's15', 'v96')
    A(f's_add_u32 s8, s8, {NV}\ns_cmp_lt_u32 s8, {NSEG}\ns_cbranch_scc1 {lab}_mloop')
    tline(A, c2, 4)
    A('s_endpgm')

def gen_Q(A, cfg, lab, tmo):
    w = Wv(A, {})
    em = Emitter(A, [f'v{i}' for i in range(2, 30)])
    l = V('v0'); g = l >> 4; n = l & 15; ww = Sg(sW); h = Sg(sR)
    sQ = ['s22', 's23', 's24', 's25']
    em.emit(l & 63, 'v0')
    em.emit(l * 16, vL16)
    em.emit(l * 16 + (ww & 1) * 8, 'v118')
    i = n & 7
    em.emit(((g >> 1) * 16 + (i >> 1) * 4 + (i & 1)) * 16 + (g & 1) * 8, 'v117')
    em.emit(((g >> 1) * 16 + (i >> 1) * 4 + (i & 1)) * 16 + (g & 1) * 8 + (ww & 1) * 4, 'v116')
    em.emit(ww * 5120 + l * 16, 'v115')
    em.emit(ww * 1024 + l * 16, 'v114')
    em.emit(ww * 20480 + h * 1024 + l * 16, 'v113')
    em.emit(sel_lt(g, 2, ww * 20480 + ((h >> 2) + 16) * 1024 + ((h & 3) * 16 + n) * 16 + g * 8, OOB), 'v112')
    em.emit(n - g * 4, 'v111')
    A(f's_lshr_b32 s11, {sW}, 1\ns_mul_i32 s14, s11, 7\ns_and_b32 s15, {sW}, 1\ns_lshl_b32 s16, s15, 2\ns_add_u32 s16, s16, s14')
    for u in range(3): A(f's_add_u32 s17, s16, {u}\ns_lshl_b32 {sQ[u]}, s17, 10')
    A(f's_add_u32 s17, s14, 3\ns_lshl_b32 {sQ[3]}, s17, 10')
    A(f's_mul_i32 s13, {sR}, {28*14336}\ns_add_u32 s13, s13, {AF}\ns_mul_i32 s15, s15, 14336')
    def addr(tl, p):
        pre = f's_mul_i32 s11, {sQ[tl>>1]}, 28\ns_add_u32 s11, s11, s13\n'
        pre += f's_add_u32 s11, s11, {14336*(tl&1) + 1024*p}' if tl < 6 else f's_add_u32 s11, s11, s15\ns_add_u32 s11, s11, {1024*p}'
        return vL16, pre
    A(f's_mul_i32 {sXB}, s12, 28672' + (f'\ns_add_u32 {sXB}, {sXB}, {XF}' if XF else ''))
    wait_lanes(A, f'{lab}_wa', sel_lt(l, 1, FA + h * 128, FX), sel_lt(l, 1, 14, 32), tmo)
    load_w(w, addr)
    for p in range(4): x_load(w, p, sXB)
    A('s_mov_b32 s8, s12')
    A(f'{lab}_loop:')
    A(f's_add_u32 {sXN}, {sXB}, {NQ*28672}')
    w.vm = [f'X{p}' for p in range(4) for _ in range(2)]
    seg_gemm(w, True)
    QQ = lambda u, tt: 16 * u + 4 * tt
    for u in range(4):
        for tt in range(2):
            for b in range(2 if u < 3 else 1):
                a = acc2(2 * u + b, tt)
                A(f'v_cvt_pk_bf16_f32 v{88+4*tt+2*b}, v{a}, v{a+1}\nv_cvt_pk_bf16_f32 v{89+4*tt+2*b}, v{a+2}, v{a+3}')
        for tt in range(2):
            for k in range(0, 4 if u < 3 else 2, 2): A(f'v_mov_b64 {vr(QQ(u,tt)+k,2)}, {vr(88+4*tt+k,2)}')
    for u in range(4):
        for kt in range(2):
            A(f's_add_u32 s11, {sXB}, {sQ[u]}' + ('\ns_add_u32 s11, s11, 14336' if kt else ''))
            if u < 3: w.vmem(f'buffer_load_dwordx4 {vr(16*u+8+4*kt,4)}, {vL16}, {SRD}, s11 offen', 'Z')
            else: w.vmem(f'buffer_load_dwordx2 {vr(88+2*kt,2)}, v118, {SRD}, s11 offen', 'Z')
    w.wait(vm='Z')
    SX = {(1, 0): 92, (1, 1): 96, (2, 1): 100}
    for (kt, tt), a in SX.items():
        for u in range(3): A(mfma(vr(a, 4), vr(16 * u + 8 + 4 * (kt - 1), 4), vr(QQ(u, tt), 4), 0 if u == 0 else None))
        A(f'v_mfma_f32_16x16x16_bf16 {vr(a,4)}, {vr(88+2*(kt-1),2)}, {vr(QQ(3,tt),2)}, {vr(a,4)}')
    for (kt, tt), a in SX.items():
        A(f'ds_write_b128 v115, {vr(a,4)} offset:{(2*kt + tt - (1 if kt == 2 else 0))*1024}')
    A('s_waitcnt lgkmcnt(0)\ns_barrier')
    E1, E2, E0 = 92, 96, 100
    A(f's_cmp_ge_u32 {sW}, 2\ns_cbranch_scc1 {lab}_nored')
    def red(dst, off, t0):
        for k in range(4): A(f'ds_read_b128 {vr(dst if k == 0 else t0+16*(k-1),4)}, v114 offset:{k*5120 + off}')
        A('s_waitcnt lgkmcnt(0)')
        for k in range(3):
            for r in (0, 2): A(f'v_pk_add_f32 {vr(dst+r,2)}, {vr(dst+r,2)}, {vr(t0+16*k+r,2)}')
    red(E1, 2048, 8)
    red(E2, 3072, 8)
    A(f'v_mov_b32 v104, 0xff800000\ns_cmp_eq_u32 {sW}, 0\ns_cbranch_scc0 {lab}_t1')
    for r in range(4):
        A(f'v_cmp_le_i32 vcc, {r}, v111\nv_cndmask_b32 v{E1+r}, v104, v{E1+r}, vcc\nv_mov_b32 v{E2+r}, v104')
    A(f's_branch {lab}_nored\n{lab}_t1:')
    for r in range(4): A(f'v_cmp_le_i32 vcc, {r}, v111\nv_cndmask_b32 v{E2+r}, v104, v{E2+r}, vcc')
    A(f'{lab}_nored:')
    A(f's_mul_i32 s15, s8, 7168\ns_add_u32 s15, s15, {MX}')
    KQ = lambda u: 16 * u + 8
    def loads():
        for u in range(4):
            A(f's_lshr_b32 s11, {sQ[u]}, 1\ns_add_u32 s11, s11, s15')
            if u < 3:
                A(f'buffer_load_dwordx2 {vr(KQ(u),2)}, v117, {SRD}, s11 offen sc1\nbuffer_load_dwordx2 {vr(KQ(u)+2,2)}, v117, {SRD}, s11 offen offset:32 sc1')
            else:
                A(f'buffer_load_dword v88, v116, {SRD}, s11 offen sc1\nbuffer_load_dword v89, v116, {SRD}, s11 offen offset:32 sc1')
    mx_wait(w, f'{lab}_mx', [KQ(u) + k for u in range(3) for k in range(4)] + [88, 89], loads, tmo, 'v105')
    for u in range(3): A(f'v_swap_b32 v{KQ(u)+1}, v{KQ(u)+2}')
    for tt in range(2):
        a = 12 + 16 * tt
        for u in range(3): A(mfma(vr(a, 4), vr(KQ(u), 4), vr(QQ(u, tt), 4), 0 if u == 0 else None))
        A(f'v_mfma_f32_16x16x16_bf16 {vr(a,4)}, v[88:89], {vr(QQ(3,tt),2)}, {vr(a,4)}')
    for tt in range(2): A(f'ds_write_b128 v115, {vr(12+16*tt,4)} offset:{tt*1024}')
    A('s_waitcnt lgkmcnt(0)\ns_barrier')
    A(f's_cmp_ge_u32 {sW}, 2\ns_cbranch_scc1 {lab}_nosm')
    red(E0, 0, 8)
    A('s_mov_b32 vcc_lo, -1\ns_mov_b32 vcc_hi, 0')
    for r in range(4): A(f'v_cndmask_b32 v{E0+r}, v104, v{E0+r}, vcc')
    A(f'v_max3_f32 v8, v{E1}, v{E1+1}, v{E1+2}')
    for r in range(E1 + 3, E1 + 11, 2): A(f'v_max3_f32 v8, v8, v{r}, v{r+1}')
    A(f'v_max_f32 v8, v8, v{E1+11}')
    def allred(op):
        A(f'v_mov_b32 v9, v8\nv_permlane16_swap_b32 v8, v9\n{op} v8, v8, v9')
        A(f'v_mov_b32 v9, v8\nv_permlane32_swap_b32 v8, v9\n{op} v8, v8, v9')
    allred('v_max_f32')
    for r in range(E1, E1 + 12, 2): A(f'v_pk_add_f32 {vr(r,2)}, {vr(r,2)}, v[8:9] op_sel_hi:[1,0] neg_lo:[0,1] neg_hi:[0,1]')
    for r in range(E1, E1 + 12): A(f'v_exp_f32 v{r}, v{r}')
    A(f'v_pk_add_f32 v[8:9], {vr(E1,2)}, {vr(E1+2,2)}')
    for r in range(E1 + 4, E1 + 12, 2): A(f'v_pk_add_f32 v[8:9], v[8:9], {vr(r,2)}')
    A('v_add_f32 v8, v8, v9')
    allred('v_add_f32')
    A('v_rcp_f32 v8, v8')
    for r in range(E1, E1 + 12, 2): A(f'v_pk_mul_f32 {vr(r,2)}, {vr(r,2)}, v[8:9] op_sel_hi:[1,0]')
    for k in range(6): A(f'v_cvt_pk_bf16_f32 v{12+k}, v{E1+2*k}, v{E1+2*k+1}')
    A(f's_mul_i32 s15, s8, {PX_SEG}\ns_add_u32 s15, s15, {PX}')
    A(f'buffer_store_dwordx4 v[12:15], v113, {SRD}, s15 offen sc1\nbuffer_store_dwordx2 v[16:17], v112, {SRD}, s15 offen sc1')
    A(f'{lab}_nosm:')
    A(f's_lshl_b32 s15, s8, 7\ns_add_u32 s15, s15, {FPX}')
    signal(w, f'{lab}_sig', 's15', 'v105')
    A(f's_mov_b32 {sXB}, {sXN}\ns_add_u32 s8, s8, {NQ}\ns_cmp_lt_u32 s8, {NSEG}\ns_cbranch_scc1 {lab}_loop')
    tline(A, dict(cfg, tlreg=106), 4)
    A('s_endpgm')

def gen_T(A, cfg, lab, tmo):
    w = Wv(A, {})
    em = Emitter(A, [f'v{i}' for i in range(8, 30)])
    l = V('v0'); g = l >> 4
    A('s_load_dwordx2 s[28:29], s[0:1], 64\ns_load_dwordx2 s[30:31], s[0:1], 80')
    em.emit(l & 63, 'v0')
    A(f"""s_and_b32 s12, {sR}, 15
    s_lshl_b32 s12, s12, 2
    s_add_u32 s12, s12, {sW}
    s_waitcnt lgkmcnt(0)
    s_cmp_lt_u32 {sR}, 16
    s_cselect_b32 s20, s28, s30
    s_cselect_b32 s21, s29, s31
    s_mov_b32 s22, {D*F*2}
    s_mov_b32 s23, 0x20000
    s_movk_i32 s13, 896
    s_cselect_b32 s13, 3584, s13
    s_cselect_b32 s14, 28, 7
    s_movk_i32 s15, 9363
    s_cselect_b32 s15, 2341, s15       ; 65536 / blocks
    s_cselect_b32 s16, 14, 56          ; k quads
    s_mov_b32 s17, {W2F}
    s_cselect_b32 s17, {W1F}, s17
    s_mul_i32 s18, {sW}, 28672""")
    em.emit((l >> 3) * Sg('s13') + (l & 7) * 16, 'v1')
    em.emit(Sg('s18') + (g * 8 + ((l >> 2) & 3)) * 128 + (l & 3) * 16, 'v2')
    em.emit(l * 16, 'v3')
    A('s_lshl_b32 s24, s13, 3')
    for k in range(7):
        A(f's_add_u32 s25, s12, {64*k}\ns_mul_i32 s26, s25, s15\ns_lshr_b32 s26, s26, 16\ns_mul_i32 s27, s26, s14\ns_sub_u32 s27, s25, s27')
        A(f's_lshl_b32 s{40+k}, s27, 2\ns_mul_i32 s{40+k}, s{40+k}, s16\ns_add_u32 s{40+k}, s{40+k}, s26\ns_lshl_b32 s{40+k}, s{40+k}, 10\ns_add_u32 s{40+k}, s{40+k}, s17')
        A(f's_cmp_lt_u32 s25, 392\ns_cselect_b32 s{40+k}, s{40+k}, {OOB}')
        A('s_lshl_b32 s26, s26, 5\ns_mul_i32 s26, s26, s13\ns_lshl_b32 s27, s27, 7\ns_add_u32 s26, s26, s27')
        for r in range(4):
            A(f's_add_u32 m0, s18, {k*4096 + r*1024}')
            w.vmem(f'buffer_load_dwordx4 v1, s[20:23], s26 offen lds', f'U{k}')
            if r < 3: A('s_add_u32 s26, s26, s24')
    A('s_lshl_b32 s24, s16, 10')
    for k in range(7):
        w.wait(vm=f'U{k}')
        for t in range(4):
            o = 8 + 16 * (k & 1) + 4 * t; off = k * 4096 + (t >> 1) * 64 + (t & 1) * 8
            A(f'ds_read_b64_tr_b16 {vr(o,2)}, v2 offset:{off}\nds_read_b64_tr_b16 {vr(o+2,2)}, v2 offset:{off+512}')
        A('s_waitcnt lgkmcnt(0)')
        for t in range(4):
            w.vmem(f'buffer_store_dwordx4 {vr(8+16*(k&1)+4*t,4)}, v3, {SRD}, s{40+k} offen sc1')
            if t < 3: A(f's_add_u32 s{40+k}, s{40+k}, s24')
    A(f's_mov_b32 s15, {FW}')
    signal(w, f'{lab}_sig', 's15', 'v4')
    tline(A, dict(cfg, tlreg=5), 4)
    A('s_endpgm')

def gen_F(A, cfg, lab, tmo):
    w = Wv(A, {})
    em = Emitter(A, [f'v{i}' for i in range(8, 30)])
    l = V('v0'); g = l >> 4; n = l & 15; ww = Sg(sW)
    A('s_load_dwordx2 s[28:29], s[0:1], 72\ns_load_dwordx2 s[30:31], s[0:1], 88\ns_load_dwordx2 s[32:33], s[0:1], 0\ns_load_dwordx2 s[34:35], s[0:1], 96')
    wait_lanes(A, f'{lab}_wx', l * 0 + FX, l * 0 + 32, tmo)
    em.emit(l * 16, 'v1')
    em.emit(g * 16, 'v3')
    A('s_waitcnt lgkmcnt(0)')
    srd(A, 36, 28, F * 2); srd(A, 40, 30, D * 2); srd(A, 44, 32, S * D * 2); srd(A, 48, 34, S * D * 2)
    xr = lambda tt, p: f'a[{(tt*14+p)*4}:{(tt*14+p)*4+3}]'
    A(f's_mul_i32 s12, {sR}, 28672' + (f'\ns_add_u32 s12, s12, {XF}' if XF else ''))
    for q in range(28):
        if q % 4 == 0: A(f's_add_u32 s11, s12, {q*1024}')
        A(f'buffer_load_dwordx4 {xr(q//14, q%14)}, v1, {SRD}, s11 offen offset:{(q%4)*1024}')
    A(f's_mov_b32 s15, {FW}')
    wait_flag(w, f'{lab}_fw', 's15', 32, tmo)
    c2 = dict(cfg, tlreg=2)
    tline(A, c2, 1)
    WB = lambda buf, q: 32 + buf * 112 + 4 * q
    A(f's_mul_i32 s13, {sW}, {14*28672}\ns_add_u32 s13, s13, {W1F}\ns_mul_i32 s14, {sW}, {14*64}')
    em.emit(ww * 28672 + l * 16, 'v4')
    def wl(buf, q):
        if q % 4 == 0: A(f's_add_u32 s11, s13, {q*1024}')
        w.vmem(f'buffer_load_dwordx4 {vr(WB(buf,q),4)}, v1, {SRD}, s11 offen offset:{(q%4)*1024} sc1', f'W{buf}_{q}')
    def bl(buf): w.vmem(f'buffer_load_dwordx4 {vr(24+4*buf,4)}, v3, s[36:39], s14 offen', f'B{buf}')
    w.vm = []
    bl(0)
    for q in range(28): wl(0, q)
    A('s_mov_b32 s8, 0')
    A(f'{lab}_l1:')
    def block(buf):
        A('s_add_u32 s13, s13, 28672\ns_add_u32 s14, s14, 64')
        bl(1 - buf)
        for p in range(14):
            for b in range(2):
                q = b * 14 + p
                w.wait(vm=f'W{buf}_{q}')
                for tt in range(2): A(mfma(vr(8 + (b * 2 + tt) * 4, 4), vr(WB(buf, q), 4), xr(tt, p), 0 if p == 0 else None))
            wl(1 - buf, 2 * p); wl(1 - buf, 2 * p + 1)
        bb = 24 + 4 * buf
        for tt in range(2):
            for b in range(2):
                a = 8 + (b * 2 + tt) * 4
                for k in range(2):
                    A(f'v_lshlrev_b32 v6, 16, v{bb+2*b+k}\nv_and_b32 v7, 0xffff0000, v{bb+2*b+k}')
                    A(f'v_pk_add_f32 {vr(a+2*k,2)}, {vr(a+2*k,2)}, v[6:7]')
                    A(f'v_max_f32 v{a+2*k}, 0, v{a+2*k}\nv_max_f32 v{a+2*k+1}, 0, v{a+2*k+1}')
                    A(f'v_pk_mul_f32 {vr(a+2*k,2)}, {vr(a+2*k,2)}, {vr(a+2*k,2)}')
                    A(f'v_cvt_pk_bf16_f32 v{a+k}, v{a+2*k}, v{a+2*k+1}')
            A(f'v_mov_b64 {vr(8+tt*4+2,2)}, {vr(16+tt*4,2)}')
            A(f'ds_write_b128 v4, {vr(8+tt*4,4)} offset:{buf*2048 + tt*1024}')
    w.vm = ['B0'] + [f'W0_{q}' for q in range(28)]
    block(0); block(1)
    A(f'v_add_u32 v4, 4096, v4\ns_add_u32 s8, s8, 1\ns_cmp_lt_u32 s8, {1 if cfg.get("noffn") else 7}\ns_cbranch_scc1 {lab}_l1')
    tline(A, c2, 2)
    A(f's_lshl_b32 s16, {sW}, 2\ns_cmp_eq_u32 {sW}, 3\ns_cselect_b32 s16, 11, s16')
    A(f's_mul_i32 s13, s16, {2*57344}\ns_add_u32 s13, s13, {W2F}')
    for t in range(8):
        A(f's_add_u32 s{52+t}, s13, {t*57344}')
    A(f's_cmp_ge_u32 {sW}, 2\ns_cselect_b32 s58, {OOB}, s58\ns_cselect_b32 s59, {OOB}, s59')
    A('s_waitcnt vmcnt(0) lgkmcnt(0)\ns_barrier')
    W2 = lambda buf, t: 32 + (buf * 8 + t) * 4
    HB = lambda buf, tt: 8 + (buf * 2 + tt) * 4
    G = lambda t, tt: f'a[{(t*2+tt)*4}:{(t*2+tt)*4+3}]'
    for r in range(64): A(f'v_accvgpr_write_b32 a{r}, 0')
    A('v_mov_b32 v4, v1\nv_mov_b32 v5, v1')
    def w2l(buf, off):
        for t in range(8): w.vmem(f'buffer_load_dwordx4 {vr(W2(buf,t),4)}, v5, {SRD}, s{52+t} offen offset:{off} sc1', f'V{buf}')
    def hl(buf, off):
        for tt in range(2): w.ds(f'ds_read_b128 {vr(HB(buf,tt),4)}, v4 offset:{off + tt*1024}', f'H{buf}')
    w.vm = []; w.lg = []
    for k in range(3): w2l(k, k * 1024)
    hl(0, 0)
    A('v_add_u32 v5, 3072, v5\ns_mov_b32 s8, 0')
    A(f'{lab}_l2:')
    for k in range(4):
        w2l((k + 3) & 3, k * 1024)
        hl((k + 1) & 1, (k + 1) * 2048)
        w.wait(vm=f'V{k}', lg=f'H{k&1}')
        for t in range(8):
            for tt in range(2): A(mfma(G(t, tt), vr(W2(k, t), 4), vr(HB(k & 1, tt), 4)))
    A(f'v_add_u32 v5, 4096, v5\nv_add_u32 v4, 8192, v4\ns_add_u32 s8, s8, 1\ns_cmp_lt_u32 s8, {1 if cfg.get("noffn") else 14}\ns_cbranch_scc1 {lab}_l2')
    A('s_waitcnt vmcnt(0) lgkmcnt(0)')
    A('s_lshl_b32 s14, s16, 6')
    for k in range(4): A(f'buffer_load_dwordx4 {vr(32+4*k,4)}, v3, s[40:43], s14 offen offset:{k*64}')
    A(f's_lshl_b32 s14, s16, 10\ns_add_u32 s14, s14, s12\ns_add_u32 s14, s14, {GB - XF}\ns_add_u32 s15, s14, 14336')
    A('s_waitcnt vmcnt(0)')
    for k in range(4):
        if k == 3: A(f's_cmp_ge_u32 {sW}, 2\ns_cbranch_scc1 {lab}_gdone')
        for tt in range(2):
            for b in range(2):
                for r in range(4): A(f'v_accvgpr_read_b32 v{48+4*b+r}, a{((2*k+b)*2+tt)*4+r}')
            for j in range(4):
                A(f'v_lshlrev_b32 v6, 16, v{32+4*k+j}\nv_and_b32 v7, 0xffff0000, v{32+4*k+j}')
                A(f'v_pk_add_f32 {vr(48+2*j,2)}, {vr(48+2*j,2)}, v[6:7]')
            for r in range(8): A(f'v_mul_f32 v{56+r}, {f32(-math.log2(math.e))}, v{48+r}')
            for r in range(8): A(f'v_exp_f32 v{56+r}, v{56+r}')
            for r in range(8): A(f'v_add_f32 v{56+r}, 1.0, v{56+r}')
            for r in range(8): A(f'v_rcp_f32 v{56+r}, v{56+r}')
            for j in range(4):
                A(f'v_pk_mul_f32 {vr(48+2*j,2)}, {vr(48+2*j,2)}, {vr(56+2*j,2)}')
                A(f'v_cvt_pk_bf16_f32 v{64+4*tt+j}, v{48+2*j}, v{49+2*j}')
            A(f'buffer_store_dwordx4 {vr(64+4*tt,4)}, v1, {SRD}, {"s15" if tt else "s14"} offen offset:{k*1024} sc1')
    A(f'{lab}_gdone:')
    A(f's_lshl_b32 s15, {sR}, 7\ns_add_u32 s15, s15, {FG}')
    signal(w, f'{lab}_gsig', 's15')
    tline(A, c2, 3)
    A(f's_and_b32 s11, {sR}, 3\ns_lshl_b32 s16, s11, 2\ns_cmp_eq_u32 s11, 3\ns_cselect_b32 s16, 11, s16\ns_add_u32 s16, s16, {sW}')
    A(f's_lshr_b32 s11, s11, 1\ns_add_u32 s11, s11, {sW}\ns_cmp_ge_u32 s11, 4\ns_cselect_b32 s17, {OOB}, 0')
    col = Sg('s16') * 32 + (n >> 2) * 8 + (n & 3)
    em.emit(g * 7168 + col * 16 + Sg('s17'), 'v4')
    em.emit(n * 896 + Sg('s16') * 64 + g * 16 + Sg('s17'), 'v5')
    em.emit(Sg('s16') * 1024 + l * 16 + Sg('s17'), 'v6')
    em.emit((l & 1) * (FPX - FVM), 'v7')
    A(f's_lshr_b32 s8, {sR}, 2\ns_mul_i32 s18, {sW}, 10240')
    WX = lambda q, b: 32 + (q * 2 + b) * 4
    A(f'{lab}_l3:')
    A(f's_lshl_b32 s13, s8, 7\ns_add_u32 s15, s13, {FVX}')
    wait_flag(w, f'{lab}_fvx', 's15', 16, tmo)
    A(f's_mul_i32 s14, s8, {VX_SEG}\ns_add_u32 s14, s14, {VXF}')
    for q in range(16):
        for b in range(2): A(f'buffer_load_dwordx4 {vr(WX(q,b),4)}, v4, {SRD}, s14 offen offset:{b*64} sc1')
        if q < 15: A('s_add_u32 s14, s14, 28672')
    A('s_mul_i32 s14, s8, 28672\ns_add_u32 s20, s14, 14336')
    A('buffer_load_dwordx4 v[192:195], v5, s[44:47], s14 offen\nbuffer_load_dwordx4 v[196:199], v5, s[44:47], s20 offen')
    A(f's_add_u32 s15, s13, {FG}')
    wait_flag(w, f'{lab}_fg', 's15', 1, tmo)
    A(f's_add_u32 s21, s14, {GB}\ns_add_u32 s22, s20, {GB}')
    A(f'buffer_load_dwordx4 v[200:203], v6, {SRD}, s21 offen sc1\nbuffer_load_dwordx4 v[204:207], v6, {SRD}, s22 offen sc1')
    A(f's_add_u32 s15, s13, {FVM}')
    A(f's_cmp_lg_u32 {sW}, 0\ns_cbranch_scc1 {lab}_f2go\ns_mov_b32 {sSPIN}, {WSPIN}')
    A(f'{lab}_f2:\nbuffer_load_dword v2, v7, {SRD}, s15 offen sc1')
    A(f's_sub_u32 {sSPIN}, {sSPIN}, 1\ns_cbranch_scc1 {tmo}\n{BACK[0]}s_waitcnt vmcnt(0)\nv_cmp_gt_u32 vcc, 16, v2\ns_cbranch_vccnz {lab}_f2')
    A(f'{lab}_f2go:\ns_barrier')
    tline(A, c2, 5)
    A(f's_mul_i32 s21, s8, {PX_SEG}\ns_add_u32 s21, s21, s18\ns_add_u32 s21, s21, {PX}')
    for k in range(10):
        if k % 4 == 0: A(f's_add_u32 m0, s18, {k*1024}\ns_add_u32 s22, s21, {k*1024}')
        A(f'buffer_load_dwordx4 v1, {SRD}, s22 offen offset:{(k%4)*1024} sc1 lds')
    A(f's_mul_i32 s21, s8, {VM_SEG}\ns_add_u32 s21, s21, {VM}')
    for u in range(4):
        for b in range(2): A(f'buffer_load_dwordx4 {vr(WX(16+u,b),4)}, v4, {SRD}, s21 offen offset:{b*64} sc1')
        if u < 3: A('s_add_u32 s21, s21, 28672')
    A('s_waitcnt vmcnt(8)\ns_barrier')
    w.lg = []
    PB = lambda q, tt: 208 + ((q & 3) * 2 + tt) * 4
    def pl(q):
        for tt in range(2): w.ds(f'ds_read_b128 {vr(PB(q,tt),4)}, v1 offset:{tt*20480 + q*1024}', f'P{q}')
    for q in range(3): pl(q)
    for q in range(20):
        if q + 3 < 20: pl(q + 3)
        w.wait(lg=f'P{q}')
        if q == 16: A('s_waitcnt vmcnt(0)')
        for b in range(2):
            for tt in range(2): A(mfma(vr(8 + (tt * 2 + b) * 4, 4), vr(WX(q, b), 4), vr(PB(q, tt), 4), 0 if q == 0 else None))
    for tt in range(2):
        a = 8 + tt * 8
        for j in range(4):
            r = a + 2 * j
            A(f'v_cvt_pk_bf16_f32 v{r}, v{r}, v{r+1}\nv_and_b32 v{r+1}, 0xffff0000, v{r}\nv_lshlrev_b32 v{r}, 16, v{r}')
            A(f'v_lshlrev_b32 v24, 16, v{200+4*tt+j}\nv_and_b32 v25, 0xffff0000, v{200+4*tt+j}')
            A(f'v_pk_mul_f32 {vr(r,2)}, {vr(r,2)}, v[24:25]')
            A(f'v_cvt_pk_bf16_f32 v{r}, v{r}, v{r+1}\nv_and_b32 v{r+1}, 0xffff0000, v{r}\nv_lshlrev_b32 v{r}, 16, v{r}')
            A(f'v_lshlrev_b32 v24, 16, v{192+4*tt+j}\nv_and_b32 v25, 0xffff0000, v{192+4*tt+j}')
            A(f'v_pk_add_f32 {vr(r,2)}, {vr(r,2)}, v[24:25]')
            A(f'v_cvt_pk_bf16_f32 v{28+j}, v{r}, v{r+1}')
        A(f'buffer_store_dwordx4 v[28:31], v5, s[48:51], {"s20" if tt else "s14"} offen')
    A(f's_add_u32 s8, s8, 16\ns_cmp_lt_u32 s8, {NSEG}\ns_cbranch_scc1 {lab}_l3')
    if cfg.get('tl'): A('s_waitcnt vmcnt(0)')
    tline(A, c2, 4)
    A('s_endpgm')
```

```python
from asmdsl import Asm
from expr import X, V, Sg, Emitter, ev, sel_lt, wrap
from layout import *
import numpy as np

SRD = 's[4:7]'
def vr(a, n=1): return f'v{a}' if n == 1 else f'v[{a}:{a+n-1}]'
def wreg(o):
    return f'a[{8*o}:{8*o+7}]' if o < 32 else f'v[{120+8*(o-32)}:{127+8*(o-32)}]'
def wquad(o, b):
    return f'a[{8*o+4*b}:{8*o+4*b+3}]' if o < 32 else f'v[{120+8*(o-32)+4*b}:{123+8*(o-32)+4*b}]'

class Wv:
    def __init__(self, A, cfg):
        self.A = A; self.vm = []; self.lg = []; self.cfg = cfg; self.nst = 0
    def __call__(self, t): self.A(t)
    def vmem(self, t, tag=None): self.A(t); self.vm.append(tag)
    def ds(self, t, tag=None): self.A(t); self.lg.append(tag)
    def wait(self, vm=None, lg=None):
        parts = []
        if vm is not None and vm in self.vm:
            i = len(self.vm) - 1 - self.vm[::-1].index(vm)
            parts.append(f'vmcnt({len(self.vm)-1-i})'); self.vm = self.vm[i+1:]
        if lg is not None and lg in self.lg:
            i = len(self.lg) - 1 - self.lg[::-1].index(lg)
            n = min(len(self.lg) - 1 - i, 15)
            parts.append(f'lgkmcnt({n})'); self.lg = self.lg[i+1:]
        if parts: self.A('s_waitcnt ' + ' '.join(parts))
    def wait_all_lg(self): self.A('s_waitcnt lgkmcnt(0)'); self.lg = []
    def wait_all_vm(self): self.A('s_waitcnt vmcnt(0)'); self.vm = []
    def stamp(self, name=None):
        if self.cfg.get('stamps'):
            assert self.nst < 12
            self.A(f's_memtime s[{60+2*self.nst}:{61+2*self.nst}]'); self.nst += 1
    def dump_stamps(self, lab):
        if not self.cfg.get('stamps'): return
        A = self.A
        A(f's_waitcnt lgkmcnt(0)\ns_cmp_lg_u32 s8, 6\ns_cbranch_scc1 {lab}_nocal')
        A(f's_memrealtime s[96:97]\ns_waitcnt lgkmcnt(0)\n{lab}_cal:\ns_memrealtime s[98:99]\ns_memtime s[100:101]\ns_waitcnt lgkmcnt(0)\ns_cmp_eq_u32 s96, s98\ns_cbranch_scc1 {lab}_cal')
        for k in range(12): A(f's_mov_b32 s{84+k}, 0')
        A(f'{lab}_nocal:\ns_cmp_lt_u32 s8, 8\ns_cbranch_scc1 {lab}_nodump\ns_cmp_gt_u32 s8, 57\ns_cbranch_scc1 {lab}_nodump')
        for k in range(self.nst): A(f's_sub_u32 s11, s{60+2*k}, s100\ns_add_u32 s{84+k}, s{84+k}, s11')
        A(f's_cmp_lg_u32 s8, 57\ns_cbranch_scc1 {lab}_nodump')
        A('s_lshl_b32 s11, s3, 2\ns_add_u32 s11, s11, s9\ns_lshl_b32 s11, s11, 6')
        A(f's_add_u32 s11, s11, {DBG}')
        A(f'v_mov_b32 v0, s98\nv_mov_b32 v2, 0x4000\nbuffer_store_dword v0, v2, {SRD}, s11 offen')
        for k in range(self.nst):
            A(f'v_mov_b32 v0, s{84+k}\nv_mov_b32 v1, {4*k}\nbuffer_store_dword v0, v1, {SRD}, s11 offen')
        A(f's_waitcnt vmcnt(0)\n{lab}_nodump:')

def tline(A, cfg, k, base=0, idx='s3'):
    if not cfg.get('tl'): return
    lab = A.newlabel(f'TL{base}')
    A(f's_cmp_lg_u32 s9, 0\ns_cbranch_scc1 {lab}')
    A(f's_memrealtime s[96:97]\ns_lshl_b32 s98, {idx}, 6\ns_add_u32 s98, s98, {DBG + 0x8000 + base + 4*k}\ns_waitcnt lgkmcnt(0)')
    A(f'v_accvgpr_write_b32 a255, s96' if False else f'v_mov_b32 v{cfg.get("tlreg", 95)}, s96')
    A(f'buffer_store_dword v{cfg.get("tlreg", 95)}, off, {SRD}, s98')
    if cfg.get('tlclk'):
        A(f's_memtime s[96:97]\ns_waitcnt lgkmcnt(0)\nv_mov_b32 v{cfg.get("tlreg", 95)}, s96\nbuffer_store_dword v{cfg.get("tlreg", 95)}, off, {SRD}, s98 offset:32')
    A(f'{lab}:')

def dstamp(A, cfg, k, slot, reg):
    if not cfg.get('ds'): return
    lab = A.newlabel('DS')
    A(f's_cmp_lg_u32 s9, 0\ns_cbranch_scc1 {lab}\ns_cmp_lg_u32 s3, {slot}\ns_cbranch_scc1 {lab}')
    A(f's_load_dwordx2 s[96:97], s[0:1], 104\ns_memrealtime s[94:95]\ns_waitcnt lgkmcnt(0)\ns_mov_b32 s98, 256\ns_mov_b32 s99, 0x20000')
    A(f's_and_b32 s94, s94, 0xfffff\nv_mov_b32 v{reg}, s94\nbuffer_store_dword v{reg}, off, s[96:99], 0 offset:{4*k}\n{lab}:')

def smf(acc, a, b, idx): return f'v_smfmac_f32_16x16x64_bf16 {vr(acc,4)}, {a}, {b}, {idx}'

KM = 3
MREG = [16, 20, 24, 0, 4, 8, 12]
ACC = [28 + 4 * t for t in range(7)]
vIDX, vL16, vHUp, vHUs = 'v119', 'v118', 'v117', 'v116'
vKA = ['v115', 'v114', 'v113', 'v112', 'v111', 'v110', 'v109']
sSTEP, sW, sR = 's8', 's9', 's10'
sKK = [f's{12+t}' for t in range(7)]
sSPIN, sRETRY, sS1 = 's19', 's20', 's31'
sMO = ['s36', 's37', 's38']
SPIN_MAX = 0x80000
L_K = 131072

def common_consts(em, A, lab, rot):
    l = V('v0')
    em.emit(l & 63, 'v0')
    em.emit(sel_lt(l & 2, 1, 0x44444444, 0xEEEEEEEE), vIDX)
    em.emit(l * 16, vL16)
    A(f's_lshl_b32 s33, {sW}, 1\ns_add_u32 s33, s33, {rot}')
    for _ in range(3): A('s_cmp_ge_u32 s33, 7\ns_cselect_b32 s35, 7, 0\ns_sub_u32 s33, s33, s35')
    for t in range(7):
        A(f's_add_u32 s34, s33, {t}\ns_cmp_ge_u32 s34, 7\ns_cselect_b32 s35, 7, 0\ns_sub_u32 s34, s34, s35\ns_lshl_b32 {sKK[t]}, s34, 10')
    em.emit(L_K + l * 16, 'v1')
    for t in range(7): A(f'v_add_u32 {vKA[t]}, {sKK[t]}, v1')
    A(f's_cmp_lg_u32 {sW}, 3\ns_cbranch_scc1 {lab}_w3skip\nv_add_u32 {vKA[1]}, 7168, v1\n{lab}_w3skip:')

def step_consts(A, solo=False):
    A(f's_and_b32 s11, {sSTEP}, {0 if solo else 3}\ns_lshl_b32 s33, s11, 13\ns_add_u32 s33, s33, {MS}')
    for t in range(3): A(f's_add_u32 {sMO[t]}, s33, {sKK[t]}')
    A(f's_add_u32 {sS1}, {sSTEP}, 1')

def poll(w, lab, vp, sval, tmo, nl):
    w(f'v_mov_b32 {vp}, 0')
    if w.cfg.get('pollmask', 1): w(f's_mov_b32 exec_lo, {hex((1 << nl) - 1) if nl < 32 else -1}\ns_mov_b32 exec_hi, 0')
    w(f'{lab}:')
    if w.cfg.get('pollnop'): w(f's_nop {w.cfg["pollnop"]-1}')
    w(f'buffer_load_dword {vp}, {vHUp}, {SRD}, 0 offen sc1')
    w(f's_waitcnt vmcnt({w.cfg.get("polldepth", 40)})')
    w(f'v_cmp_gt_u32 vcc, {sval}, {vp}')
    w(f's_sub_u32 {sSPIN}, {sSPIN}, 1\ns_cbranch_scc1 {tmo}')
    w(f's_cbranch_vccnz {lab}')
    if w.cfg.get('pollmask', 1): w('s_mov_b64 exec, -1')
    w.vm = []

def zero(w, a, n):
    for i in range(a, a + n, 2): w(f'v_mov_b64 {vr(i,2)}, 0')

def sentinel_check(w, regs, tmp):
    w(f'v_max3_u32 {tmp}, v{regs[0]}, v{regs[1]}, v{regs[2]}')
    r = regs[3:]
    while len(r) >= 2:
        w(f'v_max3_u32 {tmp}, {tmp}, v{r[0]}, v{r[1]}'); r = r[2:]
    if r: w(f'v_max_u32 {tmp}, {tmp}, v{r[0]}')
    w(f'v_cmp_eq_u32 vcc, -1, {tmp}')

def weight_stream(w, fill, comb_write, lab, tmp, tmo=None, mpoll=False):
    cfg = w.cfg; ND = cfg.get('nd', 2)
    w(f'{lab}_mload:')
    w.vm = []; w.lg = []
    if mpoll:
        assert ND == 2
        for t in range(ND):
            w(f'buffer_load_dwordx4 {vr(MREG[t],4)}, {vL16}, {SRD}, {sMO[t]} offen sc1')
        if cfg.get('mnop'): w(f's_nop {cfg["mnop"]-1}')
        w(f's_waitcnt vmcnt({cfg.get("mdepth", 6)})')
        sentinel_check(w, list(range(MREG[0], MREG[0] + 8)), f'v{tmp}')
        w(f's_sub_u32 {sSPIN}, {sSPIN}, 1\ns_cbranch_scc1 {tmo}')
        w(f's_cbranch_vccnz {lab}_mload')
        w.vm = ['MP']
    else:
        for t in range(ND):
            w(f's_setprio {ND-1-t}')
            w.vmem(f'buffer_load_dwordx4 {vr(MREG[t],4)}, {vL16}, {SRD}, {sMO[t]} offen sc1', f'M{t}')
    order = [(tl, t) for t in range(KM) for tl in range(7)] + [(tl, t) for tl in range(7) for t in range(KM, 7)]
    pre = {}; mem = {}; val = {}
    ad = lambda d, n, f: d.setdefault(n, []).append(f)
    w1 = 1 if mpoll else cfg.get('w1', 3)
    for t, s0 in ((0, 0), (1, w1)):
        m = MREG[t]
        ad(pre, s0, lambda t=t: w.wait(vm=f'M{t}'))
        ad(mem, s0, lambda t=t, m=m: w.ds(f'ds_write_b128 {vKA[t]}, {vr(m,4)}'))
    if mpoll:
        bs = w1 + cfg.get('mbar', 4)
        def sync():
            w.wait_all_lg(); w('s_barrier')
        ad(pre, 20, lambda: w.wait(vm='MP'))
    else:
        m0, m1, m2 = MREG[0], MREG[1], MREG[2]
        ad(val, 1, lambda: w(f'v_max3_u32 v{tmp}, v{m0}, v{m0+1}, v{m0+2}'))
        c = w1 + 1
        ad(val, c, lambda: w(f'v_max3_u32 v{tmp}, v{tmp}, v{m0+3}, v{m1}'))
        ad(val, c + 1, lambda: w(f'v_max3_u32 v{tmp}, v{tmp}, v{m1+1}, v{m1+2}'))
        if ND == 2:
            ad(val, c + 2, lambda: w(f'v_max_u32 v{tmp}, v{tmp}, v{m1+3}'))
            c += 3
        else:
            ad(pre, c + 2, lambda: w.wait(vm='M2'))
            ad(val, c + 2, lambda: w(f'v_max3_u32 v{tmp}, v{tmp}, v{m1+3}, v{m2}'))
            ad(val, c + 3, lambda: w(f'v_max3_u32 v{tmp}, v{tmp}, v{m2+1}, v{m2+2}'))
            ad(val, c + 4, lambda: w(f'v_max_u32 v{tmp}, v{tmp}, v{m2+3}'))
            c += 5
        ad(val, c, lambda: w(f'v_cmp_eq_u32 vcc, -1, v{tmp}'))
        bs = c + cfg.get('bdelay', 2)
        def sync():
            w(f's_cbranch_vccnz {lab}_mretry')
            w.wait_all_lg(); w('s_barrier')
    ad(mem, bs, sync)
    n = 0
    for t in range(ND, 7):
        m = MREG[t]
        ad(mem, bs + n, lambda t=t, m=m: w.ds(f'ds_read_b128 {vr(m,4)}, {vKA[t]}', f'M{t}'))
        n += 1
    per = 7 - KM; base = 7 * KM
    for tl in range(6):
        s0 = base + per * (tl + 1) + 1
        ad(val, s0, lambda tl=tl: w(f'v_add_f32 v{tmp}, v{ACC[tl]}, v{ACC[tl]+2}'))
        ad(val, s0 + 1, lambda tl=tl: w(f'v_add_f32 v{tmp+1}, v{ACC[tl]+1}, v{ACC[tl]+3}'))
        ad(val, s0 + 2, lambda: w(f'v_cvt_pk_bf16_f32 v{tmp+2}, v{tmp}, v{tmp+1}'))
        ad(mem, s0 + 3, lambda tl=tl: comb_write(tl, f'v{tmp+2}'))
    fl, fv = fill(bs + n)
    for k, fs in fv.items():
        for f in fs: ad(val, k, f)
    if cfg.get('stamps'):
        for k in cfg.get('bfine', [0]): ad(fl, k, lambda: w.stamp())
    for n, (tl, t) in enumerate(order):
        for f in pre.get(n, []): f()
        w.wait(vm=f'M{t}', lg=f'M{t}')
        w(smf(ACC[tl], vr(MREG[t], 4), wreg(tl * 7 + t), vIDX))
        for f in mem.get(n, []): f()
        for f in fl.get(n, []): f()
        for f in val.get(n, []): f()
    assert all(k < 49 for k in fl) and all(k < 49 for k in val)
    return [f for k in sorted(mem) if k >= 49 for f in mem[k]]

MREGA = [12, 16, 20, 24, 0, 4, 8]
def a_consts(em, A):
    l = V('v0')
    em.emit(l & 63, 'v0')
    em.emit(sel_lt(l & 2, 1, 0x44444444, 0xEEEEEEEE), vIDX)
    em.emit(l * 16, vL16)
    for t in range(4): A(f's_add_u32 s34, {sW}, {sR}\ns_add_u32 s34, s34, {t}\ns_and_b32 s34, s34, 3\ns_lshl_b32 {sKK[t]}, s34, 10')
    for t in range(4, 7): A(f's_movk_i32 {sKK[t]}, {t*1024}')
    em.emit(L_K + l * 16, vKA[4])
    for t in range(4): A(f'v_add_u32 {vKA[t]}, {sKK[t]}, {vKA[4]}')
    A(f's_lshl_b32 s29, {sW}, 10\ns_add_u32 s29, s29, 4096')

def a_step_consts(A, solo=False):
    A(f's_and_b32 s11, {sSTEP}, {0 if solo else 3}\ns_lshl_b32 s33, s11, 13\ns_add_u32 s33, s33, {MS}')
    A(f's_add_u32 s36, s33, {sKK[0]}\ns_add_u32 s37, s33, {sKK[1]}\ns_add_u32 s38, s33, s29\ns_add_u32 s39, s29, {L_K}')
    A(f's_add_u32 {sS1}, {sSTEP}, 1')

def a_stream(w, fill, comb_write, lab, tmp, tmo):
    cfg = w.cfg; MR = MREGA; KMA = 4; NE = cfg.get('ne', 2)
    w(f'{lab}_mload:')
    w.vm = []; w.lg = []
    for t in range(NE): w(f'buffer_load_dwordx4 {vr(MR[t],4)}, {vL16}, {SRD}, s{36+t} offen sc1')
    if cfg.get('mnop'): w(f's_nop {cfg["mnop"]-1}')
    w(f's_waitcnt vmcnt({cfg.get("mdepth", 2)})')
    sentinel_check(w, list(range(MR[0], MR[0] + 4 * NE)), f'v{tmp}')
    w(f's_sub_u32 {sSPIN}, {sSPIN}, 1\ns_cbranch_scc1 {tmo}')
    w(f's_cbranch_vccnz {lab}_mload')
    order = [(tl, t) for t in range(KMA) for tl in range(7)] + [(tl, t) for tl in range(7) for t in range(KMA, 7)]
    pre = {}; mem = {}; val = {}
    ad = lambda d, n, f: d.setdefault(n, []).append(f)
    ew = cfg.get('ew', 128)
    if ew == 128:
        if NE == 1: w.ds(f'ds_write_b128 {vKA[0]}, {vr(MR[0],4)}')
        else: ad(mem, 0, lambda: w.ds(f'ds_write_b128 {vKA[0]}, {vr(MR[0],4)}'))
    elif ew == 64:
        for k in range(2): ad(mem, k, lambda k=k: w.ds(f'ds_write_b64 {vKA[0]}, {vr(MR[0]+2*k,2)} offset:{8*k}'))
    else:
        for k in range(4): ad(mem, k, lambda k=k: w.ds(f'ds_write_b32 {vKA[0]}, v{MR[0]+k} offset:{4*k}'))
    bs = cfg.get('ebar', 2 if NE == 1 else 8)
    ad(mem, bs, lambda: (w.wait_all_lg(), w('s_barrier')))
    for t in range(NE, 4):
        ad(mem, bs + (t - NE), lambda t=t: w.ds(f'ds_read_b128 {vr(MR[t],4)}, {vKA[t]}', f'M{t}'))
    l0 = cfg.get('lslot', 3); lb = cfg.get('lbar', 17)
    ad(mem, l0 - 1, lambda: w('s_mov_b32 m0, s39'))
    ad(mem, l0, lambda: w.vmem(f'buffer_load_dwordx4 {vL16}, {SRD}, s38 offen sc1 lds', 'L'))
    ad(mem, lb, lambda: (w.wait(vm='L'), w('s_barrier')))
    for t in (4, 5, 6): ad(mem, lb + (t - 4) // 2, lambda t=t: w.ds(f'ds_read_b128 {vr(MR[t],4)}, {vKA[4]} offset:{t*1024}', f'M{t}'))
    lc = lb + 3
    w.lretry_state = None
    ad(pre, lc + 1, lambda: w.wait(lg='M5'))
    ad(val, lc + 1, lambda: w(f'v_max3_u32 v{tmp}, v0, v1, v2'))
    ad(val, lc + 2, lambda: w(f'v_max3_u32 v{tmp}, v{tmp}, v3, v4'))
    ad(pre, lc + 3, lambda: w.wait(lg='M6'))
    ad(val, lc + 3, lambda: w(f'v_max3_u32 v{tmp}, v{tmp}, v5, v6'))
    ad(val, lc + 4, lambda: w(f'v_max3_u32 v{tmp}, v{tmp}, v7, v8'))
    ad(val, lc + 5, lambda: w(f'v_max3_u32 v{tmp}, v{tmp}, v9, v10'))
    ad(val, lc + 6, lambda: (w(f'v_max_u32 v{tmp}, v{tmp}, v11'), w(f'v_cmp_eq_u32 vcc, -1, v{tmp}')))
    cs = lc + 7
    assert cs <= 27
    ad(mem, cs, lambda: w(f's_cbranch_vccnz {lab}_lretry\n{lab}_lok:'))
    per = 7 - KMA; base = 7 * KMA
    for tl in range(6):
        s0 = base + per * (tl + 1) + 1
        o = tmp + 2
        ad(val, s0, lambda tl=tl: w(f'v_add_f32 v{tmp}, v{ACC[tl]}, v{ACC[tl]+2}'))
        ad(val, s0 + 1, lambda tl=tl: w(f'v_add_f32 v{tmp+1}, v{ACC[tl]+1}, v{ACC[tl]+3}'))
        ad(val, s0 + 2, lambda: w(f'v_cvt_pk_bf16_f32 v{o}, v{tmp}, v{tmp+1}'))
        ad(mem, s0 + 3, lambda tl=tl: comb_write(tl, f'v{o}'))
    fl, fv = fill(bs + 4 - NE, cs + 1)
    for k, fs in fv.items():
        for f in fs: ad(val, k, f)
    if cfg.get('stamps'):
        for k in cfg.get('fine', [0]): ad(fl, k, lambda: w.stamp())
    for n, (tl, t) in enumerate(order):
        for f in pre.get(n, []): f()
        w.wait(lg=f'M{t}')
        w(smf(ACC[tl], vr(MR[t], 4), wreg(tl * 7 + t), vIDX))
        for f in mem.get(n, []): f()
        for f in fl.get(n, []): f()
        for f in val.get(n, []): f()
    assert all(k < 49 for k in fl)
    return [f for k in range(49, 56) for f in mem.get(k, []) + val.get(k, [])]

def l_retry(w, lab, tmp, tmo):
    w(f'{lab}_lretry:\ns_mov_b32 s35, m0\n{lab}_lretry2:')
    w(f's_add_u32 {sRETRY}, {sRETRY}, 1\ns_barrier\ns_mov_b32 m0, s39')
    w(f's_sub_u32 {sSPIN}, {sSPIN}, 4\ns_cbranch_scc1 {tmo}')
    w(f'buffer_load_dwordx4 {vL16}, {SRD}, s38 offen sc1 lds\ns_waitcnt vmcnt(0)\ns_barrier')
    for t in (4, 5, 6): w(f'ds_read_b128 {vr(MREGA[t],4)}, {vKA[4]} offset:{t*1024}')
    w('s_waitcnt lgkmcnt(0)')
    sentinel_check(w, list(range(0, 12)), f'v{tmp}')
    w(f's_cbranch_vccnz {lab}_lretry2\ns_mov_b32 m0, s35\ns_branch {lab}_lok')

def m_retry(w, lab, tmo):
    w(f'{lab}_mretry:')
    w(f's_add_u32 {sRETRY}, {sRETRY}, 1')
    w(f's_sub_u32 {sSPIN}, {sSPIN}, 8\ns_cbranch_scc1 {tmo}\ns_waitcnt vmcnt(0) lgkmcnt(0)')
    zero(w, 28, 28)
    w(f's_branch {lab}_mload')

def wait_lanes(A, lab, addr, target, tmo):
    em = Emitter(A, [f'v{i}' for i in range(4, 13)])
    A(f's_cmp_lg_u32 s9, 0\ns_cbranch_scc1 {lab}_go')
    em.emit(addr, 'v1'); em.emit(target, 'v2')
    A(f's_mov_b32 s19, 0x40000\n{lab}:\nbuffer_load_dword v3, v1, {SRD}, 0 offen sc1')
    A(f's_sub_u32 s19, s19, 1\ns_cbranch_scc1 {tmo}\ns_waitcnt vmcnt(0)\nv_cmp_gt_u32 vcc, v2, v3\ns_cbranch_vccnz {lab}')
    A(f'{lab}_go:\ns_barrier')

def emit_modes(A, cfg, lab, loop):
    if cfg.get('modes', 2) == 1:
        loop(lab, cfg.get('st', '')); return
    A(f's_cmp_lg_u32 s30, 0\ns_cbranch_scc1 {lab}_slow')
    loop(lab + 'x', '')
    A(f'{lab}_slow:')
    loop(lab + 'y', 'sc1')

def load_weights(w, addr_of):
    n = 0
    for tl in range(7):
        for t in range(7):
            for b in range(2):
                va, pre = addr_of(tl, t, b)
                w(pre)
                w(f'buffer_load_dwordx4 {wquad(tl*7+t, b)}, {va}, {SRD}, s11 offen')
                n += 1
                if n % 16 == 0: w('s_waitcnt vmcnt(32)')

A_X, A_T, A_R = 0, 65536, 77824
Z0, Z1, SACC, TSP0, TSP1, TMP = 56, 12, 80, 36, 40, 92
aKR, aKR3, aTW, aTW6, aTR, aXR, aRW, aRR = 'v108', 'v107', 'v106', 'v105', 'v104', 'v103', 'v102', 'v101'
aP, aKR2, aPOLL = 'v100', 'v99', 'v96'
sQ = ['s21', 's22', 's23', 's24']
sXS, sXL, sPW, sPR, sWL, sMASK = 's25', 's26', 's27', 's28', 's32', 's[52:53]'

def a_exprs():
    l = V('v0'); w = Sg(sW); h = Sg(sR)
    g = l >> 4; rho = l & 15
    half = (rho >> 1) & 1
    q0 = (w >> 1) * 7 + (w & 1) * 4; q3 = (w >> 1) * 7 + 3
    e = {}
    i = rho & 7
    kr = L_K + ((g >> 1) * 16 + (i >> 1) * 4 + (i & 1)) * 16 + (g & 1) * 8
    e[aKR] = kr + q0 * 512
    e[aKR3] = kr + q3 * 512
    e[aKR2] = kr + q0 * 512 + 1024
    tw = A_T + w * 3072 + (rho >> 2) * 192 + (rho & 1) * 32 + g * 8 + half * 4
    e[aTW] = tw
    e[aTW6] = tw + 2304 + (w & 1) * 64
    e[aTR] = A_T + w * 3072 + g * 384 + ((l >> 3) & 1) * 64 + ((l >> 2) & 1) * 32 + (l & 3) * 8
    e[aXR] = A_X + w * 8192 + l * 16
    e[aRW] = A_R + w * 1536 + g * 384 + rho * 4
    rr = l >> 5; pi = l & 31; pc = pi.min(19)
    e[aRR] = A_R + (w * 2 + rr) * 192 + sel_lt(pc, 4, pc * 8, pc * 8 + 32)
    row = w * 2 + rr
    rho_of = lambda hf: (row >> 1) * 4 + hf * 2 + (row & 1)
    pm = ((h >> 3) + 8) * 1024 + (((h >> 1) & 3) * 16 + rho_of(pi & 1)) * 16 + ((h & 1) * 2 + ((pi >> 1) & 1)) * 4
    t0 = (pc - 4) * 2
    px = (h >> 1) * 1024 + (((h & 1) * 2 + ((t0 >> 3) & 1)) * 16 + rho_of((t0 >> 1) & 1)) * 16 + (((t0 >> 2) & 1) * 2 + ((t0 >> 4) & 1)) * 4
    e[aP] = sel_lt(pi, 4, pm, sel_lt(pi, 20, px, OOB))
    return e

def check_a_exprs():
    e = a_exprs(); l = np.arange(64)
    for h in (0, 1, 7, 8, 15):
        for w in range(4):
            env = {'v0': l, sW: w, sR: h}
            p = ev(e[aP], env)
            for ln in range(64):
                pi = ln & 31
                assert p[ln] == (ps_off(h, 2 * w + (ln >> 5), pi) if pi < 20 else OOB)
check_a_exprs()

def gen_A(A, cfg, lab, tmo):
    w = Wv(A, cfg)
    em = Emitter(A, [f'v{i}' for i in range(2, 30)])
    a_consts(em, A)
    for k, x in a_exprs().items(): em.emit(x, k)
    l = V('v0')
    em.emit(HU1 + (l & 15) * 4, vHUp)
    em.emit(sel_lt(l + Sg(sW) * 64, 1, HU2 + Sg(sR) * 4, OOB), vHUs)
    A(f's_mov_b32 s52, 0xfffff\ns_mov_b32 s53, 0xfffff')
    A(f's_lshr_b32 s11, {sW}, 1')
    A(f's_mul_i32 s34, s11, 7\ns_and_b32 s35, {sW}, 1\ns_lshl_b32 s36, s35, 2\ns_add_u32 s36, s36, s34')
    for u in range(3): A(f's_add_u32 s37, s36, {u}\ns_lshl_b32 {sQ[u]}, s37, 10')
    A(f's_add_u32 s37, s34, 3\ns_lshl_b32 {sQ[3]}, s37, 10')
    A(f's_lshl_b32 {sWL}, {sW}, 13')
    A(f's_mul_i32 s38, {sR}, {28*14336}\ns_add_u32 s38, s38, {AF}')
    A(f's_mul_i32 s39, s35, 14336')
    def addr(tl, t, b):
        pre = f's_mul_i32 s11, {sQ[tl>>1]}, 28\ns_add_u32 s11, s11, s38\n'
        pre += (f's_add_u32 s11, s11, {14336*(tl&1) + 1024*b}\n' if tl < 6 else f's_add_u32 s11, s11, s39\ns_add_u32 s11, s11, {1024*b}\n')
        pre += f's_lshl_b32 s37, {sKK[t]}, 1\ns_add_u32 s11, s11, s37'
        return vL16, pre
    sXo = ['s44', 's45', 's46', 's47']; sXm = ['s48', 's49', 's50', 's51']
    def x_consts():
        A(f's_add_u32 {sXo[0]}, {sXS}, {sQ[0]}\ns_add_u32 {sXo[1]}, {sXS}, {sQ[3]}')
        A(f's_add_u32 {sXo[2]}, {sXo[0]}, 14336\ns_add_u32 {sXo[3]}, {sXo[1]}, 14336')
        A(f's_mov_b32 {sXm[0]}, {sXL}\ns_add_u32 {sXm[1]}, {sXL}, 3072\ns_add_u32 {sXm[2]}, {sXL}, 4096\ns_add_u32 {sXm[3]}, {sXL}, 7168')
    def x_m0(tt, u):
        if u in (0, 3): A(f's_mov_b32 m0, {sXm[2*tt + (u == 3)]}')
    def x_dma(tt, u, w=w):
        w.vmem(f'buffer_load_dwordx4 {vL16}, {SRD}, {sXo[2*tt + (u == 3)]} offen offset:{1024*u if u < 3 else 0} lds', 'X')
    if cfg.get('pre_a'): cfg['pre_a']()
    A(f's_mov_b32 {sXS}, {XF}\ns_mov_b32 {sXL}, {sWL}')
    x_consts()
    for tt in range(2):
        for u in range(4): x_m0(tt, u); x_dma(tt, u)
    load_weights(w, addr)
    em.emit(A_T + Sg(sW) * 3072 + l * 16, 'v1')
    A('v_mov_b64 v[4:5], 0\nv_mov_b64 v[6:7], 0')
    for k in range(3): A(f'ds_write_b128 v1, v[4:7] offset:{k*1024}')
    zero(w, 28, 28); zero(w, SACC, 12)
    A(f's_mov_b32 {sSTEP}, 0\ns_mov_b32 {sSPIN}, {SPIN_MAX}\ns_mov_b32 {sRETRY}, 0')
    cfg['start_sync'](w, lab)
    A('s_waitcnt vmcnt(0) lgkmcnt(0)'); w.vm = []; w.lg = []
    def loop(lab, st):
        w = Wv(A, cfg)
        A(f'{lab}_loop:')
        cfg['loop_top'](w, lab)
        a_step_consts(A, cfg.get('solo'))
        A(f's_lshl_b32 s33, s11, 14\ns_add_u32 {sPW}, s33, {PS}\ns_xor_b32 {sPR}, {sPW}, 0x8000')
        A(f's_mul_i32 {sXS}, {sS1}, {0 if cfg.get("xsame") else 28672}' + (f'\ns_add_u32 {sXS}, {sXS}, {XF}' if XF else ''))
        A(f's_and_b32 s11, {sS1}, 1\ns_lshl_b32 s11, s11, 15\ns_add_u32 {sXL}, s11, {sWL}')
        x_consts()
        A(f'v_mov_b32 v{TMP+3}, {sS1}')
        for r in range(MREGA[0], MREGA[0] + 4 * cfg.get('ne', 2), 2): A(f'v_mov_b64 {vr(r,2)}, -1')
        w.stamp()
        gate = cfg.get('gate', 'w0')
        if gate == 'w0':
            A(f's_cmp_lg_u32 {sW}, 0\ns_cbranch_scc1 {lab}_nopoll')
            if not cfg.get('solo'): poll(w, f'{lab}_poll1', aPOLL, sSTEP, tmo, 16)
            A(f'{lab}_nopoll:\ns_barrier')
        elif gate == 'all':
            poll(w, f'{lab}_poll1', aPOLL, sSTEP, tmo, 16)
        w.stamp()
        for _ in range(cfg.get('adelay', 0)): A('s_nop 15')
        xpos = cfg.get('xpos', [14, 19, 24, 29, 34, 39, 44, 50])
        def xat(p):
            for k in range(8):
                if xpos[k] == p: x_m0(k >> 2, k & 3); x_dma(k >> 2, k & 3, w)
        def fill(f0, k0):
            d = {}; dv = {}
            add = lambda n, f: d.setdefault(n, []).append(f)
            def kq(n, reg, areg, off, tag, ns):
                if cfg.get('kr2'):
                    r2 = areg if off < 1024 else aKR2
                    o = (off & 1023) // 4
                    add(n, lambda: w.ds(f'ds_read2_b32 {vr(reg,2)}, {r2} offset0:{o} offset1:{o+8}', tag))
                    add(n, lambda: w.ds(f'ds_read2_b32 {vr(reg+2,2)}, {r2} offset0:{o+1} offset1:{o+9}', tag))
                    return
                add(n, lambda: w.ds(f'ds_read_b64 {vr(reg,2)}, {areg} offset:{off}', tag))
                add(n, lambda: w.ds(f'ds_read_b64 {vr(reg+2,2)}, {areg} offset:{off+32}', tag))
                add(ns, lambda: w.wait(lg=tag))
                dv.setdefault(ns, []).append(lambda: w(f'v_swap_b32 v{reg+1}, v{reg+2}'))
            n = f0
            for tt in range(2):
                for uu in range(2):
                    add(n, lambda tt=tt, uu=uu: w.ds(f'ds_read_b128 {vr(Z0+8*(1+tt)+4*uu,4)}, {aXR} offset:{(tt*4+uu)*1024}', 'Z0')); n += 1
            for k in range(8):
                if xpos[k] < 49:
                    add(xpos[k] - 1, lambda k=k: x_m0(k >> 2, k & 3))
                    add(xpos[k], lambda k=k: x_dma(k >> 2, k & 3, w))
            ks = cfg.get('kswap', [36, 39, 42, 45])
            kq(k0, Z0, aKR, 0, 'K0', ks[0]); kq(k0 + 1, Z0 + 4, aKR, 512, 'K1', ks[1])
            kq(k0 + 3, Z1, aKR, 1024, 'K2', ks[2]); kq(k0 + 4, Z1 + 4, aKR3, 0, 'K3', ks[3])
            for k, sl in enumerate((36, 37, 39, 40)):
                tt, uu = k >> 1, k & 1
                add(sl, lambda tt=tt, uu=uu: w.ds(f'ds_read_b128 {vr(Z1+8*(1+tt)+4*uu,4)}, {aXR} offset:{(tt*4+2+uu)*1024}', 'Z1'))
            add(45, lambda: w.ds(f'ds_read_b64_tr_b16 {vr(TSP0,2)}, {aTR}', 'TS0'))
            add(46, lambda: w.ds(f'ds_read_b64_tr_b16 {vr(TSP0+2,2)}, {aTR} offset:192', 'TS0'))
            return d, dv
        def tw(tl, reg):
            if tl < 6: w.ds(f'ds_write_b32 {aTW}, {reg} offset:{(tl>>1)*768 + (tl&1)*64}')
            else: w.ds(f'ds_write_b32 {aTW6}, {reg}')
        rest = a_stream(w, fill, tw, lab, TMP, tmo)
        w.stamp()
        w.wait(lg='TS0')
        w(smf(SACC, vr(TSP0, 4), vr(Z0, 8), vIDX))
        rest[0]()
        w(smf(SACC + 4, vr(TSP0, 4), vr(Z0 + 8, 8), vIDX))
        rest[1]()
        w(f'v_add_f32 v{TMP}, v{ACC[6]}, v{ACC[6]+2}\nv_add_f32 v{TMP+1}, v{ACC[6]+1}, v{ACC[6]+3}')
        w(f'v_cvt_pk_bf16_f32 v{TMP+2}, v{TMP}, v{TMP+1}')
        tw(6, f'v{TMP+2}')
        w.ds(f'ds_read_b64_tr_b16 {vr(TSP1,2)}, {aTR} offset:1536', 'TS1')
        w.ds(f'ds_read_b64_tr_b16 {vr(TSP1+2,2)}, {aTR} offset:{1536+192}', 'TS1')
        w(smf(SACC + 8, vr(TSP0, 4), vr(Z0 + 16, 8), vIDX))
        xat(50)
        w.wait(lg='TS1')
        for kt in range(3): w(smf(SACC + 4 * kt, vr(TSP1, 4), vr(Z1 + 8 * kt, 8), vIDX))
        for kt in range(3):
            w(f'v_add_f32 v{56+2*kt}, v{SACC+4*kt}, v{SACC+4*kt+2}\nv_add_f32 v{57+2*kt}, v{SACC+4*kt+1}, v{SACC+4*kt+3}')
            w.ds(f'ds_write2_b32 {aRW}, v{56+2*kt}, v{57+2*kt} offset0:{16*kt} offset1:{16*kt+48}')
        hu2 = lambda: w.vmem(f'buffer_store_dword v{TMP+3}, {vHUs}, {SRD}, 0 offen {st}')
        hp = cfg.get('hu2pos', 0)
        w.stamp()
        if hp == -1: hu2()
        xat(51)
        w.wait_all_lg()
        A('s_barrier')
        for k in range(4): w.ds(f'ds_read_b64 {vr(64+2*k,2)}, {aRR} offset:{k*1536}', f'R{k}')
        if hp == 0: hu2()
        xat(52)
        w.stamp()
        w.wait(lg='R1'); w('v_pk_add_f32 v[64:65], v[64:65], v[66:67]')
        w.wait(lg='R3'); w('v_pk_add_f32 v[68:69], v[68:69], v[70:71]')
        w('v_pk_add_f32 v[64:65], v[64:65], v[68:69]')
        if hp == 1: hu2()
        w('v_max_f32 v66, v64, v65')
        for k, r in enumerate((8, 4, 2, 1)):
            if hp == 2 + k: hu2()
            xat(53 + k)
            w(f'v_max_f32_dpp v66, v66, v66 row_ror:{r} row_mask:0xf bank_mask:0xf')
        w('v_mov_b32 v67, v66')
        w('v_permlane16_swap_b32 v66, v67')
        w('v_max_f32 v66, v66, v67')
        w('v_pk_add_f32 v[64:65], v[64:65], v[66:67] op_sel_hi:[1,0] neg_lo:[0,1] neg_hi:[0,1]')
        w('v_exp_f32 v64, v64\nv_exp_f32 v65, v65')
        if hp == 6: hu2()
        w('v_add_f32 v66, v64, v65')
        w(f'v_cndmask_b32 v66, 0, v66, {sMASK}')
        for k, r in enumerate((8, 4, 2, 1)):
            if hp == 7 + k: hu2()
            xat(57 + k)
            w(f'v_add_f32_dpp v66, v66, v66 row_ror:{r} row_mask:0xf bank_mask:0xf')
        w('v_mov_b32 v67, v66\nv_permlane16_swap_b32 v66, v67\nv_add_f32 v66, v66, v67')
        w('v_rcp_f32 v66, v66')
        if hp == 11: hu2()
        w('v_pk_mul_f32 v[64:65], v[64:65], v[66:67] op_sel_hi:[1,0]')
        w('v_cvt_pk_bf16_f32 v64, v64, v65')
        w('v_min_u32 v64, -2, v64')
        w.vmem(f'buffer_store_dword v64, {aP}, {SRD}, {sPW} offen {st}')
        if hp == 99: hu2()
        w.stamp()
        if cfg.get('ack'): w.wait_all_vm(); w.stamp()
        w('v_mov_b32 v65, -1')
        w.vmem(f'buffer_store_dword v65, {aP}, {SRD}, {sPR} offen {st}')
        xat(99)
        zero(w, 28, 28); zero(w, SACC, 12)
        w(f'v_xor_b32 {aXR}, 0x8000, {aXR}')
        w.dump_stamps(lab)
        A(f's_mov_b32 {sSPIN}, {SPIN_MAX}')
        A(f's_mov_b32 {sSTEP}, {sS1}\ns_cmp_lt_u32 {sSTEP}, {NSEG-1}\ns_cbranch_scc1 {lab}_loop')
        cfg['finish'](w, lab)
        A('s_endpgm')
        l_retry(w, lab, TMP, tmo)

    emit_modes(A, cfg, lab, loop)

B_VX, B_V = 0, 65536
bVW, bWR, bVR, bMS, bSEL = 'v108', 'v107', 'v106', 'v105', 'v104'
bMX, bFL, bVL, bPOLL = 'v107', 'v106', 'v105', 'v104'
bTO, bINC, bFLAG = 'v99', 'v98', 'v97'
bDM = [f'v{89+k}' for k in range(7)]
BT = 100
FACC = 96
sVS, sVL, sMW, sMR, sMXO = 's25', 's26', 's27', 's28', 's29'

def bcol(j, c):
    return sel_lt(c, 16, j * 16 + c, j * 12 + c + 240)

def b_exprs_final():
    l = V('v0'); w = Sg(sW); j = Sg(sR)
    g = l >> 4; n = l & 15; c = w * 16 + n
    e = {}
    e[bWR] = B_VX + (g * 28 + c.min(27)) * 16
    e[bVR] = B_V + (g * 28 + c.min(27)) * 16
    i = g * 2 + (n & 1); d0 = bcol(j, c & 30)
    k = d0 & 63
    off = (d0 >> 6) * 1024 + ((k >> 4) * 16 + (i >> 1) * 4 + ((k >> 1) & 1) * 2 + (i & 1)) * 16 + ((k >> 2) & 3) * 4
    e[bMS] = sel_lt(c, 28, off, OOB)
    e[bSEL] = sel_lt(n & 1, 1, 0x05040100, 0x03020706)
    return e
def check_b():
    e = b_exprs_final(); l = np.arange(64)
    for j in (0, 1, 5, 15):
        for w in range(2):
            p = ev(e[bMS], {'v0': l, sW: w, sR: j})
            for ln in range(64):
                c = 16 * w + (ln & 15)
                assert p[ln] == (ms_off(2 * (ln >> 4) + (ln & 1), (16 * j if c < 16 else 12 * j + 240) + (c & ~1)) if c < 28 else OOB)
check_b()

def gen_B(A, cfg, lab, tmo):
    w = Wv(A, cfg)
    em = Emitter(A, [f'v{i}' for i in list(range(2, 20)) + list(range(28, 56))])
    A(f's_add_u32 s39, {sR}, 1')
    common_consts(em, A, lab, 's39')
    l = V('v0'); ww = Sg(sW); j = Sg(sR)
    em.emit(B_V + (ww * 112 + (l & 15)) * 16 + (l >> 4) * 4, bVW)
    for tl in range(7):
        f = ww * 112 + tl * 16 + (l & 15); hh = f.div(28)
        em.emit((hh * 56 + (l >> 4)) * 7168 + bcol(j, f - hh * 28) * 16, f'v{20+tl}')
    def addr(tl, t, b):
        return f'v{20+tl}', f's_mul_i32 s11, {sKK[t]}, 56\ns_add_u32 s11, s11, {BF + 28672*b}'
    def vw(tl, reg): w.ds(f'ds_write_b32 {bVW}, {reg} offset:{tl*256}')
    def tail6(rest):
        for f in rest: f()
        w(f'v_add_f32 v{BT}, v{ACC[6]}, v{ACC[6]+2}\nv_add_f32 v{BT+1}, v{ACC[6]+1}, v{ACC[6]+3}')
        w(f'v_cvt_pk_bf16_f32 v{BT+2}, v{BT}, v{BT+1}')
        vw(6, f'v{BT+2}')
    if cfg.get('pre_b'): cfg['pre_b']()
    A(f's_cmp_ge_u32 {sW}, 2\ns_cbranch_scc1 {lab}_loader')
    for k, x in b_exprs_final().items(): em.emit(x, k)
    em.emit(sel_lt(l, 1, HU1 + 128 + (j * 2 + ww) * 4, OOB), vHUs)
    load_weights(w, addr)
    zero(w, 28, 28)
    A(f's_mov_b32 {sSTEP}, 0\ns_mov_b32 {sSPIN}, {SPIN_MAX}\ns_mov_b32 {sRETRY}, 0')
    cfg['start_sync'](w, lab + 'f')
    A('s_waitcnt vmcnt(0) lgkmcnt(0)')
    def loopf(lf, st, second):
        nonlocal w
        w = Wv(A, cfg)
        PREG = [4 * m for m in range(10)]
        order = cfg.get('porder', [0, 1, 2, 3, 4, 8, 9, 5, 6, 7])
        WREG = {0: 56, 1: 64, 2: 72, 3: 80, 4: 88, 8: 40, 9: 48, 5: 56, 6: 64, 7: 72}
        sPO = ['s22', 's23', 's24']
        def wx(m, b): w.ds(f'ds_read_b128 {vr(WREG[m]+4*b,4)}, {bWR} offset:{(2*m+b)*1792}', f'W{m}')
        A(f'{lf}_loop:')
        step_consts(A)
        A(f's_lshl_b32 s11, s11, 14\ns_add_u32 s22, s11, {PS}\ns_add_u32 s23, s22, 4096\ns_add_u32 s24, s22, 8192')
        A(f's_and_b32 s11, {sS1}, 3\ns_lshl_b32 s11, s11, 13\ns_add_u32 {sMW}, s11, {MS}\ns_xor_b32 {sMR}, {sMW}, 0x4000')
        A(f'v_mov_b32 v{BT+3}, {sS1}\nv_mov_b64 {vr(FACC,2)}, 0\nv_mov_b64 {vr(FACC+2,2)}, 0')
        if cfg.get('bpoll'):
            for r in range(MREG[0], MREG[0] + 8, 2): A(f'v_mov_b64 {vr(r,2)}, -1')
        w.stamp()
        A('s_barrier')
        w.stamp()
        def fillf(f0):
            d = {}
            for m in range(5):
                for b in range(2): d.setdefault(f0 + 2 * m + b, []).append(lambda m=m, b=b: wx(m, b))
            return d, {}
        tail6(weight_stream(w, fillf, vw, lf, BT, tmo, cfg.get('bpoll')))
        w.stamp()
        w.wait_all_lg()
        A('s_barrier')
        A(f's_cmp_eq_u32 {sSTEP}, {NSEG-1}\ns_cbranch_scc1 {lf}_done')
        for u in range(4): w.ds(f'ds_read_b128 {vr(40+4*u,4)}, {bVR} offset:{u*1792}', f'W{8+(u>>1)}')
        w.stamp()
        A('s_barrier')
        if second: A('s_barrier')
        w.stamp()
        def ploads():
            for k, m in enumerate(order):
                w.vmem(f'buffer_load_dwordx4 {vr(PREG[k],4)}, {vL16}, {SRD}, {sPO[m>>2]} offen offset:{(m&3)*1024} sc1', f'P{k}')
        ploads()
        if not second: A('s_barrier')
        A(f'{lf}_pchain:')
        for k, m in enumerate(order):
            w.wait(vm=f'P{k}', lg=f'W{m}')
            if k == 0: w.stamp()
            w(smf(FACC, vr(PREG[k], 4), vr(WREG[m], 8), vIDX))
            if k < 3: wx(5 + k, 0); wx(5 + k, 1)
        w(f'v_add_f32 v{BT}, v{FACC}, v{FACC+2}\nv_add_f32 v{BT+1}, v{FACC+1}, v{FACC+3}')
        w(f'v_cmp_u_f32 vcc, v{BT}, v{BT+1}')
        w(f'v_cvt_pk_bf16_f32 v{BT}, v{BT}, v{BT+1}')
        w(f'v_mov_b32_dpp v{BT+1}, v{BT} quad_perm:[1,0,3,2] row_mask:0xf bank_mask:0xf')
        w(f'v_perm_b32 v{BT}, v{BT+1}, v{BT}, {bSEL}')
        w(f'v_min_u32 v{BT}, -2, v{BT}')
        w(f's_cbranch_vccnz {lf}_pretry\n{lf}_pok:')
        w.vmem(f'buffer_store_dword v{BT}, {bMS}, {SRD}, {sMW} offen {st}')
        w.stamp()
        if cfg.get('ack'): w.wait_all_vm(); w.stamp()
        w(f'v_mov_b32 v{BT+1}, -1')
        w.vmem(f'buffer_store_dword v{BT+1}, {bMS}, {SRD}, {sMR} offen {st}')
        w.vmem(f'buffer_store_dword v{BT+3}, {vHUs}, {SRD}, 0 offen {st}')
        zero(w, 28, 28)
        w(f'v_xor_b32 {bWR}, 0x8000, {bWR}')
        w.dump_stamps(lf)
        A(f's_mov_b32 {sSPIN}, {SPIN_MAX}\ns_mov_b32 {sSTEP}, {sS1}\ns_branch {lf}_loop')
        A(f'{lf}_done:')
        cfg['finish'](w, lf)
        A('s_endpgm')
        m_retry(w, lf, tmo)
        A(f'{lf}_pretry:\ns_waitcnt vmcnt(0) lgkmcnt(0)')
        sentinel_check(w, list(range(0, 40)), f'v{BT+2}')
        A(f's_cbranch_vccz {lf}_pok')
        A(f's_add_u32 {sRETRY}, {sRETRY}, 0x10000\ns_sub_u32 {sSPIN}, {sSPIN}, 8\ns_cbranch_scc1 {tmo}')
        for m in range(3): wx(m, 0); wx(m, 1)
        A(f'v_mov_b64 {vr(FACC,2)}, 0\nv_mov_b64 {vr(FACC+2,2)}, 0\ns_waitcnt lgkmcnt(0)')
        ploads()
        A(f's_branch {lf}_pchain')
    A(f's_cmp_eq_u32 {sW}, 1\ns_cbranch_scc1 {lab}_second')
    emit_modes(A, cfg, lab + 'f', lambda lf, st: loopf(lf, st, False))
    A(f'{lab}_second:')
    emit_modes(A, cfg, lab + 'g', lambda lf, st: loopf(lf, st, True))
    ll = lab + 'l'
    A(f'{lab}_loader:')
    w = Wv(A, cfg)
    for r in range(7):
        f = l + 64 * r; hg = f.div(28)
        em.emit(hg * 7168 + bcol(j, f - hg * 28) * 16 + (4096 - (r & 3) * 1024), bDM[r])
    em.emit(sel_lt(ww, 3, HU1 + 128 + (l & 31) * 4, HU2 + (l & 15) * 4), vHUp)
    em.emit(sel_lt(l + (3 - ww) * 64, 1, HU1 + j * 4, OOB), vHUs)
    em.emit(sel_lt(j + (3 - ww) * 16, 7, j * 1024 + l * 16, OOB), bMX)
    xl = (j * 2 + ww - 2) * 7 + l
    em.emit(sel_lt(l, 7, XF + 2 * 28672 + xl * 128, sel_lt(l, 63, OOB, FVX + 2 * 128)), bTO)
    em.emit(sel_lt(l, 63, 28672, 128), bINC)
    A(f'v_mov_b32 {bFLAG}, 16')
    A(f's_sub_u32 s11, {sW}, 2\ns_mul_i32 s23, s11, 14336\ns_mul_i32 s24, s11, {VX_SEG//2}\ns_add_u32 s24, s24, {VXF - 4096}')
    def vx_m0(k):
        if k % 7 in (0, 4): w(f's_add_u32 m0, {sVL}, {k*1024}')
    def vx_dma(k):
        w.vmem(f'buffer_load_dwordx4 {bDM[k%7]}, {SRD}, {sVS if k < 7 else "s44"} offen offset:{((k%7)&3)*1024} lds', 'D')
    load_weights(w, addr)
    zero(w, 28, 28)
    A(f's_mov_b32 {sSTEP}, 0\ns_mov_b32 {sSPIN}, {SPIN_MAX}\ns_mov_b32 {sRETRY}, 0')
    cfg['start_sync'](w, ll)
    A(f's_mov_b32 {sVS}, s24\ns_add_u32 s44, {sVS}, {16*7168}\ns_mov_b32 {sVL}, s23')
    for k in range(14): vx_m0(k); vx_dma(k)
    def loopl(ll, st):
        nonlocal w
        w = Wv(A, cfg)
        A(f'{ll}_loop:')
        step_consts(A)
        A(f's_min_u32 s11, {sS1}, {0 if cfg.get("vxsame") else NSEG-1}\ns_mul_i32 {sVS}, s11, {VX_SEG}\ns_add_u32 {sVS}, {sVS}, s24\ns_add_u32 s44, {sVS}, {16*7168}')
        A(f's_and_b32 s11, {sS1}, 1\ns_lshl_b32 s11, s11, 15\ns_add_u32 {sVL}, s11, s23')
        A(f's_mul_i32 {sMXO}, {sSTEP}, 7168\ns_add_u32 {sMXO}, {sMXO}, {MX}')
        if cfg.get('bpoll'):
            for r in range(MREG[0], MREG[0] + 8, 2): A(f'v_mov_b64 {vr(r,2)}, -1')
        A('s_waitcnt vmcnt(0)')
        A(f's_cmp_ge_u32 {sSTEP}, {NSEG-1}\ns_cbranch_scc1 {ll}_fok')
        A(f'{ll}_fchk:\nv_readlane_b32 s11, {bFLAG}, 63\ns_nop 0\ns_cmp_ge_u32 s11, 16\ns_cbranch_scc1 {ll}_fok')
        A(f's_lshl_b32 s11, {sS1}, 7\ns_add_u32 s11, s11, {FVX}')
        A(f'buffer_load_dword {bFLAG}, off, {SRD}, s11 sc1')
        A(f's_sub_u32 {sSPIN}, {sSPIN}, 1\ns_cbranch_scc1 {tmo}\ns_waitcnt vmcnt(0)\ns_branch {ll}_fchk\n{ll}_fok:')
        w.stamp()
        A(f's_cmp_lg_u32 {sW}, 2\ns_cbranch_scc1 {ll}_nopoll')
        poll(w, f'{ll}_poll1', bPOLL, sSTEP, tmo, 32)
        A(f'{ll}_nopoll:\ns_barrier')
        w.stamp()
        d0 = cfg.get('dslot', 2); dstep = cfg.get('dstep', 2)
        def filll(f0):
            d = {}
            add = lambda n, f: d.setdefault(n, []).append(f)
            for k in range(14):
                add(d0 + dstep * k - 1, lambda k=k: vx_m0(k))
                add(d0 + dstep * k, lambda k=k: vx_dma(k))
            add(d0 + dstep * 14, lambda: w.vmem(f'buffer_load_dword {bFLAG}, {bTO}, {SRD}, 0 offen sc1', 'D'))
            if not cfg.get('nomx'):
                add(max(f0 - 4, cfg.get('vslot', 0)), lambda: w.vmem(f'buffer_store_dwordx4 {vr(MREG[0],4)}, {bMX}, {SRD}, {sMXO} offen {cfg.get("mxfl", "sc1")}'))
            return d, {}
        tail6(weight_stream(w, filll, vw, ll, BT, tmo, cfg.get('bpoll')))
        w.stamp()
        w.wait_all_lg()
        A('s_barrier')
        A(f's_cmp_eq_u32 {sSTEP}, {NSEG-1}\ns_cbranch_scc1 {ll}_done')
        zero(w, 28, 28)
        A(f'v_mov_b32 v{BT+3}, {sS1}')
        if not cfg.get('xsame'): A(f'v_add_u32 {bTO}, {bTO}, {bINC}')
        w.stamp()
        if cfg.get('drain'):
            w.wait(vm='D'); w.stamp(); w.wait_all_vm(); w.stamp()
        A(f's_cmp_lg_u32 {sW}, 3\ns_cbranch_scc1 {ll}_nopoll2')
        poll(w, f'{ll}_poll2', bPOLL, sS1, tmo, 16)
        A(f'{ll}_nopoll2:\ns_barrier')
        hu1 = f'buffer_store_dword v{BT+3}, {vHUs}, {SRD}, 0 offen {st}'
        if cfg.get('hu1pos', 0) == 0: A(hu1)
        A('s_barrier')
        if cfg.get('hu1pos', 0) == 1: A(hu1)
        w.dump_stamps(ll)
        A(f's_mov_b32 {sSPIN}, {SPIN_MAX}\ns_mov_b32 {sSTEP}, {sS1}\ns_branch {ll}_loop\n{ll}_done:')
        cfg['finish'](w, ll)
        A('s_endpgm')
        m_retry(w, ll, tmo)
    emit_modes(A, cfg, ll, loopl)
```

```python
from asmdsl import Asm
from expr import X, V, Sg, Emitter, ev, sel_lt
from layout import *
from rec import dstamp, tline, wait_lanes, Wv, vr, wquad, wreg, smf, zero, sentinel_check, SRD
from prep import f32, mfma, srd
import math

sW, sR = 's9', 's10'
sSPIN = 's19'
WSPIN = 0x40000
BACK = ['']
NV = 4
NQ = 4

def wait_flag(w, lab, soff, target, tmo, vt='v2'):
    w(f's_cmp_lg_u32 {sW}, 0\ns_cbranch_scc1 {lab}_go\ns_mov_b32 {sSPIN}, {WSPIN}')
    w(f'{lab}:\nbuffer_load_dword {vt}, off, {SRD}, {soff} sc1')
    w(f's_sub_u32 {sSPIN}, {sSPIN}, 1\ns_cbranch_scc1 {tmo}\n{BACK[0]}s_waitcnt vmcnt(0)')
    w(f'v_cmp_gt_u32 vcc, {target}, {vt}\ns_cbranch_vccnz {lab}')
    w(f'{lab}_go:\ns_barrier')

def signal(w, lab, soff, vt='v2'):
    w('s_waitcnt vmcnt(0)\ns_barrier'); w.vm = []
    w(f's_cmp_lg_u32 {sW}, 0\ns_cbranch_scc1 {lab}\nv_mov_b32 {vt}, 1\ns_mov_b64 exec, 1')
    w(f'buffer_atomic_add {vt}, off, {SRD}, {soff} sc1\ns_mov_b64 exec, -1\n{lab}:')

def load_w(w, addr_of):
    n = 0
    for tl in range(7):
        for p in range(14):
            va, pre = addr_of(tl, p)
            w(pre)
            w(f'buffer_load_dwordx4 {wquad(tl*7 + (p>>1), p&1)}, {va}, {SRD}, s11 offen')
            n += 1
            if n % 16 == 0: w('s_waitcnt vmcnt(32)')

XB = 56
def xq(p, tt): return XB + ((p & 3) * 2 + tt) * 4
def acc2(tl, tt): return (tl * 2 + tt) * 4
sXB, sXN = 's20', 's21'
vL16 = 'v119'

def x_load(w, p, base):
    for tt in range(2):
        off = p * 1024 + tt * 14336
        w(f's_add_u32 s11, {base}, {off & ~4095}')
        w.vmem(f'buffer_load_dwordx4 {vr(xq(p,tt),4)}, {vL16}, {SRD}, s11 offen offset:{off & 4095}', f'X{p}')

def seg_gemm(w, w_is_a):
    for p in range(14):
        w.wait(vm=f'X{p}')
        for tl in range(7):
            for tt in range(2):
                wq = wquad(tl * 7 + (p >> 1), p & 1); xx = vr(xq(p, tt), 4)
                a, b = (wq, xx) if w_is_a else (xx, wq)
                w(mfma(vr(acc2(tl, tt), 4), a, b, 0 if p == 0 else None))
        if p + 4 < 14: x_load(w, p + 4, sXB)
        elif p >= 12: pass
    for p in range(4): x_load(w, p, sXN)

def mx_wait(w, lab, regs, loads, tmo, tmp):
    w(f's_mov_b32 {sSPIN}, {WSPIN}\n{lab}_1:\nbuffer_load_dword {tmp}, off, {SRD}, s15 sc1')
    w(f's_sub_u32 {sSPIN}, {sSPIN}, 1\ns_cbranch_scc1 {tmo}\n{BACK[0]}s_waitcnt vmcnt(0)\nv_cmp_eq_u32 vcc, -1, {tmp}\ns_cbranch_vccnz {lab}_1')
    w(f'{lab}:')
    loads()
    w(f's_sub_u32 {sSPIN}, {sSPIN}, 1\ns_cbranch_scc1 {tmo}\n{BACK[0]}s_waitcnt vmcnt(0)'); w.vm = []
    sentinel_check(w, regs, tmp)
    w(f's_cbranch_vccnz {lab}')

def gen_V(A, cfg, lab, tmo):
    w = Wv(A, {})
    em = Emitter(A, [f'v{i}' for i in range(2, 30)])
    l = V('v0'); g = l >> 4; n = l & 15; ww = Sg(sW); h = Sg(sR)
    em.emit(l & 63, 'v0')
    em.emit(l * 16, vL16)
    em.emit(sel_lt(l & 2, 1, 0x44444444, 0xEEEEEEEE), 'v118')
    em.emit(g * 7168 + (ww * 112 + n) * 16, 'v117')
    em.emit((ww * 112 + n) * 16 + g * 4, 'v116')
    A(f's_mul_i32 s13, {sR}, {14*28672}\ns_add_u32 s13, s13, {BF}')
    A(f's_mul_i32 {sXB}, s12, 28672' + (f'\ns_add_u32 {sXB}, {sXB}, {XF}' if XF else ''))
    wait_lanes(A, f'{lab}_wb', sel_lt(l, 1, FB + h * 128, FX), sel_lt(l, 1, 14, 32), tmo)
    load_w(w, lambda tl, p: ('v117', f's_add_u32 s11, s13, {p*28672 + tl*256}'))
    c2 = dict(cfg, tlreg=97)
    if cfg.get('tl'): A('s_waitcnt vmcnt(0)')
    tline(A, c2, 1)
    for p in range(4): x_load(w, p, sXB)
    A(f's_mov_b32 s8, s12\ns_mul_i32 s14, {sR}, 28672')
    A(f'{lab}_loop:')
    if cfg.get('vpace'):
        A(f's_cmp_lt_u32 s8, {cfg["vpace"]}\ns_cbranch_scc1 {lab}_np\ns_sub_u32 s15, s8, {cfg["vpace"]}\ns_mul_i32 s15, s15, 7168\ns_add_u32 s15, s15, {MX}')
        A(f's_mov_b32 {sSPIN}, {WSPIN}\n{lab}_pc:\nbuffer_load_dword v96, off, {SRD}, s15 sc1')
        A(f's_sub_u32 {sSPIN}, {sSPIN}, 1\ns_cbranch_scc1 {tmo}\n{BACK[0]}s_waitcnt vmcnt(0)\nv_cmp_eq_u32 vcc, -1, v96\ns_cbranch_vccnz {lab}_pc\n{lab}_np:')
    A(f's_add_u32 {sXN}, {sXB}, {NV*28672}')
    w.vm = [f'X{p}' for p in range(4) for _ in range(2)]
    seg_gemm(w, False)
    A(f's_mul_i32 s15, s8, {VX_SEG}\ns_add_u32 s15, s15, s14\ns_add_u32 s15, s15, {VXF}')
    for tl in range(7):
        o = 88 + 4 * (tl & 1)
        for tt in range(2):
            a = acc2(tl, tt)
            A(f'v_cvt_pk_bf16_f32 v{o+2*tt}, v{a}, v{a+1}\nv_cvt_pk_bf16_f32 v{o+2*tt+1}, v{a+2}, v{a+3}')
        A(f'buffer_store_dwordx4 {vr(o,4)}, v117, {SRD}, s15 offen offset:{tl*256} sc1')
    A(f's_lshl_b32 s15, s8, 7\ns_add_u32 s15, s15, {FVX}')
    signal(w, f'{lab}_sig', 's15', 'v96')
    if cfg.get('tl'):
        A(f's_cmp_ge_u32 s8, {NV}\ns_cbranch_scc1 {lab}_tl1'); tline(A, c2, 2); A(f'{lab}_tl1:')
    A(f's_mov_b32 {sXB}, {sXN}\ns_add_u32 s8, s8, {NV}\ns_cmp_lt_u32 s8, {NSEG}\ns_cbranch_scc1 {lab}_loop')
    tline(A, c2, 3)
    A(f's_mov_b32 s8, s12\ns_mul_i32 s14, {sR}, 7168')
    A(f'{lab}_mloop:')
    zero(w, 28, 28)
    A(f's_mul_i32 s15, s8, 7168\ns_add_u32 s15, s15, {MX}\ns_add_u32 s16, s15, 4096')
    def loads():
        for kk in range(7):
            A(f'buffer_load_dwordx4 {vr(4*kk,4)}, {vL16}, {SRD}, {"s15" if kk < 4 else "s16"} offen offset:{(kk&3)*1024} sc1')
    mx_wait(w, f'{lab}_mx', list(range(28)), loads, tmo, 'v96')
    for tl in range(7):
        for kk in range(7): A(smf(28 + 4 * tl, vr(4 * kk, 4), wreg(tl * 7 + kk), 'v118'))
    A(f's_mul_i32 s15, s8, {VM_SEG}\ns_add_u32 s15, s15, s14\ns_add_u32 s15, s15, {VM}')
    for tl in range(7):
        a = 28 + 4 * tl
        A(f'v_add_f32 v{a}, v{a}, v{a+2}\nv_add_f32 v{a+1}, v{a+1}, v{a+3}\nv_cvt_pk_bf16_f32 v{a}, v{a}, v{a+1}')
        A(f'buffer_store_dword v{a}, v116, {SRD}, s15 offen offset:{tl*256} sc1')
    A(f's_lshl_b32 s15, s8, 7\ns_add_u32 s15, s15, {FVM}')
    signal(w, f'{lab}_sig2', 's15', 'v96')
    A(f's_add_u32 s8, s8, {NV}\ns_cmp_lt_u32 s8, {NSEG}\ns_cbranch_scc1 {lab}_mloop')
    tline(A, c2, 4)
    A('s_endpgm')

def gen_Q(A, cfg, lab, tmo):
    w = Wv(A, {})
    em = Emitter(A, [f'v{i}' for i in range(2, 30)])
    l = V('v0'); g = l >> 4; n = l & 15; ww = Sg(sW); h = Sg(sR)
    sQ = ['s22', 's23', 's24', 's25']
    em.emit(l & 63, 'v0')
    em.emit(l * 16, vL16)
    em.emit(l * 16 + (ww & 1) * 8, 'v118')
    i = n & 7
    em.emit(((g >> 1) * 16 + (i >> 1) * 4 + (i & 1)) * 16 + (g & 1) * 8, 'v117')
    em.emit(((g >> 1) * 16 + (i >> 1) * 4 + (i & 1)) * 16 + (g & 1) * 8 + (ww & 1) * 4, 'v116')
    em.emit(ww * 5120 + l * 16, 'v115')
    em.emit(ww * 1024 + l * 16, 'v114')
    em.emit(ww * 20480 + h * 1024 + l * 16, 'v113')
    em.emit(sel_lt(g, 2, ww * 20480 + ((h >> 2) + 16) * 1024 + ((h & 3) * 16 + n) * 16 + g * 8, OOB), 'v112')
    em.emit(n - g * 4, 'v111')
    A(f's_lshr_b32 s11, {sW}, 1\ns_mul_i32 s14, s11, 7\ns_and_b32 s15, {sW}, 1\ns_lshl_b32 s16, s15, 2\ns_add_u32 s16, s16, s14')
    for u in range(3): A(f's_add_u32 s17, s16, {u}\ns_lshl_b32 {sQ[u]}, s17, 10')
    A(f's_add_u32 s17, s14, 3\ns_lshl_b32 {sQ[3]}, s17, 10')
    A(f's_mul_i32 s13, {sR}, {28*14336}\ns_add_u32 s13, s13, {AF}\ns_mul_i32 s15, s15, 14336')
    def addr(tl, p):
        pre = f's_mul_i32 s11, {sQ[tl>>1]}, 28\ns_add_u32 s11, s11, s13\n'
        pre += f's_add_u32 s11, s11, {14336*(tl&1) + 1024*p}' if tl < 6 else f's_add_u32 s11, s11, s15\ns_add_u32 s11, s11, {1024*p}'
        return vL16, pre
    A(f's_mul_i32 {sXB}, s12, 28672' + (f'\ns_add_u32 {sXB}, {sXB}, {XF}' if XF else ''))
    wait_lanes(A, f'{lab}_wa', sel_lt(l, 1, FA + h * 128, FX), sel_lt(l, 1, 14, 32), tmo)
    load_w(w, addr)
    for p in range(4): x_load(w, p, sXB)
    A('s_mov_b32 s8, s12')
    A(f'{lab}_loop:')
    A(f's_add_u32 {sXN}, {sXB}, {NQ*28672}')
    w.vm = [f'X{p}' for p in range(4) for _ in range(2)]
    seg_gemm(w, True)
    QQ = lambda u, tt: 16 * u + 4 * tt
    for u in range(4):
        for tt in range(2):
            for b in range(2 if u < 3 else 1):
                a = acc2(2 * u + b, tt)
                A(f'v_cvt_pk_bf16_f32 v{88+4*tt+2*b}, v{a}, v{a+1}\nv_cvt_pk_bf16_f32 v{89+4*tt+2*b}, v{a+2}, v{a+3}')
        for tt in range(2):
            for k in range(0, 4 if u < 3 else 2, 2): A(f'v_mov_b64 {vr(QQ(u,tt)+k,2)}, {vr(88+4*tt+k,2)}')
    for u in range(4):
        for kt in range(2):
            A(f's_add_u32 s11, {sXB}, {sQ[u]}' + ('\ns_add_u32 s11, s11, 14336' if kt else ''))
            if u < 3: w.vmem(f'buffer_load_dwordx4 {vr(16*u+8+4*kt,4)}, {vL16}, {SRD}, s11 offen', 'Z')
            else: w.vmem(f'buffer_load_dwordx2 {vr(88+2*kt,2)}, v118, {SRD}, s11 offen', 'Z')
    w.wait(vm='Z')
    SX = {(1, 0): 92, (1, 1): 96, (2, 1): 100}
    for (kt, tt), a in SX.items():
        for u in range(3): A(mfma(vr(a, 4), vr(16 * u + 8 + 4 * (kt - 1), 4), vr(QQ(u, tt), 4), 0 if u == 0 else None))
        A(f'v_mfma_f32_16x16x16_bf16 {vr(a,4)}, {vr(88+2*(kt-1),2)}, {vr(QQ(3,tt),2)}, {vr(a,4)}')
    for (kt, tt), a in SX.items():
        A(f'ds_write_b128 v115, {vr(a,4)} offset:{(2*kt + tt - (1 if kt == 2 else 0))*1024}')
    A('s_waitcnt lgkmcnt(0)\ns_barrier')
    E1, E2, E0 = 92, 96, 100
    A(f's_cmp_ge_u32 {sW}, 2\ns_cbranch_scc1 {lab}_nored')
    def red(dst, off, t0):
        for k in range(4): A(f'ds_read_b128 {vr(dst if k == 0 else t0+16*(k-1),4)}, v114 offset:{k*5120 + off}')
        A('s_waitcnt lgkmcnt(0)')
        for k in range(3):
            for r in (0, 2): A(f'v_pk_add_f32 {vr(dst+r,2)}, {vr(dst+r,2)}, {vr(t0+16*k+r,2)}')
    red(E1, 2048, 8)
    red(E2, 3072, 8)
    A(f'v_mov_b32 v104, 0xff800000\ns_cmp_eq_u32 {sW}, 0\ns_cbranch_scc0 {lab}_t1')
    for r in range(4):
        A(f'v_cmp_le_i32 vcc, {r}, v111\nv_cndmask_b32 v{E1+r}, v104, v{E1+r}, vcc\nv_mov_b32 v{E2+r}, v104')
    A(f's_branch {lab}_nored\n{lab}_t1:')
    for r in range(4): A(f'v_cmp_le_i32 vcc, {r}, v111\nv_cndmask_b32 v{E2+r}, v104, v{E2+r}, vcc')
    A(f'{lab}_nored:')
    A(f's_mul_i32 s15, s8, 7168\ns_add_u32 s15, s15, {MX}')
    KQ = lambda u: 16 * u + 8
    def loads():
        for u in range(4):
            A(f's_lshr_b32 s11, {sQ[u]}, 1\ns_add_u32 s11, s11, s15')
            if u < 3:
                A(f'buffer_load_dwordx2 {vr(KQ(u),2)}, v117, {SRD}, s11 offen sc1\nbuffer_load_dwordx2 {vr(KQ(u)+2,2)}, v117, {SRD}, s11 offen offset:32 sc1')
            else:
                A(f'buffer_load_dword v88, v116, {SRD}, s11 offen sc1\nbuffer_load_dword v89, v116, {SRD}, s11 offen offset:32 sc1')
    mx_wait(w, f'{lab}_mx', [KQ(u) + k for u in range(3) for k in range(4)] + [88, 89], loads, tmo, 'v105')
    for u in range(3): A(f'v_swap_b32 v{KQ(u)+1}, v{KQ(u)+2}')
    for tt in range(2):
        a = 12 + 16 * tt
        for u in range(3): A(mfma(vr(a, 4), vr(KQ(u), 4), vr(QQ(u, tt), 4), 0 if u == 0 else None))
        A(f'v_mfma_f32_16x16x16_bf16 {vr(a,4)}, v[88:89], {vr(QQ(3,tt),2)}, {vr(a,4)}')
    for tt in range(2): A(f'ds_write_b128 v115, {vr(12+16*tt,4)} offset:{tt*1024}')
    A('s_waitcnt lgkmcnt(0)\ns_barrier')
    A(f's_cmp_ge_u32 {sW}, 2\ns_cbranch_scc1 {lab}_nosm')
    red(E0, 0, 8)
    A('s_mov_b32 vcc_lo, -1\ns_mov_b32 vcc_hi, 0')
    for r in range(4): A(f'v_cndmask_b32 v{E0+r}, v104, v{E0+r}, vcc')
    A(f'v_max3_f32 v8, v{E1}, v{E1+1}, v{E1+2}')
    for r in range(E1 + 3, E1 + 11, 2): A(f'v_max3_f32 v8, v8, v{r}, v{r+1}')
    A(f'v_max_f32 v8, v8, v{E1+11}')
    def allred(op):
        A(f'v_mov_b32 v9, v8\nv_permlane16_swap_b32 v8, v9\n{op} v8, v8, v9')
        A(f'v_mov_b32 v9, v8\nv_permlane32_swap_b32 v8, v9\n{op} v8, v8, v9')
    allred('v_max_f32')
    for r in range(E1, E1 + 12, 2): A(f'v_pk_add_f32 {vr(r,2)}, {vr(r,2)}, v[8:9] op_sel_hi:[1,0] neg_lo:[0,1] neg_hi:[0,1]')
    for r in range(E1, E1 + 12): A(f'v_exp_f32 v{r}, v{r}')
    A(f'v_pk_add_f32 v[8:9], {vr(E1,2)}, {vr(E1+2,2)}')
    for r in range(E1 + 4, E1 + 12, 2): A(f'v_pk_add_f32 v[8:9], v[8:9], {vr(r,2)}')
    A('v_add_f32 v8, v8, v9')
    allred('v_add_f32')
    A('v_rcp_f32 v8, v8')
    for r in range(E1, E1 + 12, 2): A(f'v_pk_mul_f32 {vr(r,2)}, {vr(r,2)}, v[8:9] op_sel_hi:[1,0]')
    for k in range(6): A(f'v_cvt_pk_bf16_f32 v{12+k}, v{E1+2*k}, v{E1+2*k+1}')
    A(f's_mul_i32 s15, s8, {PX_SEG}\ns_add_u32 s15, s15, {PX}')
    A(f'buffer_store_dwordx4 v[12:15], v113, {SRD}, s15 offen sc1\nbuffer_store_dwordx2 v[16:17], v112, {SRD}, s15 offen sc1')
    A(f'{lab}_nosm:')
    A(f's_lshl_b32 s15, s8, 7\ns_add_u32 s15, s15, {FPX}')
    signal(w, f'{lab}_sig', 's15', 'v105')
    A(f's_mov_b32 {sXB}, {sXN}\ns_add_u32 s8, s8, {NQ}\ns_cmp_lt_u32 s8, {NSEG}\ns_cbranch_scc1 {lab}_loop')
    tline(A, dict(cfg, tlreg=106), 4)
    A('s_endpgm')

def gen_T(A, cfg, lab, tmo):
    w = Wv(A, {})
    em = Emitter(A, [f'v{i}' for i in range(8, 30)])
    l = V('v0'); g = l >> 4
    A('s_load_dwordx2 s[28:29], s[0:1], 64\ns_load_dwordx2 s[30:31], s[0:1], 80')
    em.emit(l & 63, 'v0')
    A(f"""s_and_b32 s12, {sR}, 15
    s_lshl_b32 s12, s12, 2
    s_add_u32 s12, s12, {sW}
    s_waitcnt lgkmcnt(0)
    s_cmp_lt_u32 {sR}, 16
    s_cselect_b32 s20, s28, s30
    s_cselect_b32 s21, s29, s31
    s_mov_b32 s22, {D*F*2}
    s_mov_b32 s23, 0x20000
    s_movk_i32 s13, 896
    s_cselect_b32 s13, 3584, s13
    s_cselect_b32 s14, 28, 7
    s_movk_i32 s15, 9363
    s_cselect_b32 s15, 2341, s15       ; 65536 / blocks
    s_cselect_b32 s16, 14, 56          ; k quads
    s_mov_b32 s17, {W2F}
    s_cselect_b32 s17, {W1F}, s17
    s_mul_i32 s18, {sW}, 28672""")
    em.emit((l >> 3) * Sg('s13') + (l & 7) * 16, 'v1')
    em.emit(Sg('s18') + (g * 8 + ((l >> 2) & 3)) * 128 + (l & 3) * 16, 'v2')
    em.emit(l * 16, 'v3')
    A('s_lshl_b32 s24, s13, 3')
    for k in range(7):
        A(f's_add_u32 s25, s12, {64*k}\ns_mul_i32 s26, s25, s15\ns_lshr_b32 s26, s26, 16\ns_mul_i32 s27, s26, s14\ns_sub_u32 s27, s25, s27')
        A(f's_lshl_b32 s{40+k}, s27, 2\ns_mul_i32 s{40+k}, s{40+k}, s16\ns_add_u32 s{40+k}, s{40+k}, s26\ns_lshl_b32 s{40+k}, s{40+k}, 10\ns_add_u32 s{40+k}, s{40+k}, s17')
        A(f's_cmp_lt_u32 s25, 392\ns_cselect_b32 s{40+k}, s{40+k}, {OOB}')
        A('s_lshl_b32 s26, s26, 5\ns_mul_i32 s26, s26, s13\ns_lshl_b32 s27, s27, 7\ns_add_u32 s26, s26, s27')
        for r in range(4):
            A(f's_add_u32 m0, s18, {k*4096 + r*1024}')
            w.vmem(f'buffer_load_dwordx4 v1, s[20:23], s26 offen lds', f'U{k}')
            if r < 3: A('s_add_u32 s26, s26, s24')
    A('s_lshl_b32 s24, s16, 10')
    for k in range(7):
        w.wait(vm=f'U{k}')
        for t in range(4):
            o = 8 + 16 * (k & 1) + 4 * t; off = k * 4096 + (t >> 1) * 64 + (t & 1) * 8
            A(f'ds_read_b64_tr_b16 {vr(o,2)}, v2 offset:{off}\nds_read_b64_tr_b16 {vr(o+2,2)}, v2 offset:{off+512}')
        A('s_waitcnt lgkmcnt(0)')
        for t in range(4):
            w.vmem(f'buffer_store_dwordx4 {vr(8+16*(k&1)+4*t,4)}, v3, {SRD}, s{40+k} offen sc1')
            if t < 3: A(f's_add_u32 s{40+k}, s{40+k}, s24')
    A(f's_mov_b32 s15, {FW}')
    signal(w, f'{lab}_sig', 's15', 'v4')
    tline(A, dict(cfg, tlreg=5), 4)
    A('s_endpgm')

def gen_F(A, cfg, lab, tmo):
    w = Wv(A, {})
    em = Emitter(A, [f'v{i}' for i in range(8, 30)])
    l = V('v0'); g = l >> 4; n = l & 15; ww = Sg(sW)
    A('s_load_dwordx2 s[28:29], s[0:1], 72\ns_load_dwordx2 s[30:31], s[0:1], 88\ns_load_dwordx2 s[32:33], s[0:1], 0\ns_load_dwordx2 s[34:35], s[0:1], 96')
    wait_lanes(A, f'{lab}_wx', l * 0 + FX, l * 0 + 32, tmo)
    em.emit(l * 16, 'v1')
    em.emit(g * 16, 'v3')
    A('s_waitcnt lgkmcnt(0)')
    srd(A, 36, 28, F * 2); srd(A, 40, 30, D * 2); srd(A, 44, 32, S * D * 2); srd(A, 48, 34, S * D * 2)
    xr = lambda tt, p: f'a[{(tt*14+p)*4}:{(tt*14+p)*4+3}]'
    A(f's_mul_i32 s12, {sR}, 28672' + (f'\ns_add_u32 s12, s12, {XF}' if XF else ''))
    for q in range(28):
        if q % 4 == 0: A(f's_add_u32 s11, s12, {q*1024}')
        A(f'buffer_load_dwordx4 {xr(q//14, q%14)}, v1, {SRD}, s11 offen offset:{(q%4)*1024}')
    A(f's_mov_b32 s15, {FW}')
    wait_flag(w, f'{lab}_fw', 's15', 32, tmo)
    c2 = dict(cfg, tlreg=2)
    tline(A, c2, 1)
    WB = lambda buf, q: 32 + buf * 112 + 4 * q
    A(f's_mul_i32 s13, {sW}, {14*28672}\ns_add_u32 s13, s13, {W1F}\ns_mul_i32 s14, {sW}, {14*64}')
    em.emit(ww * 28672 + l * 16, 'v4')
    def wl(buf, q):
        if q % 4 == 0: A(f's_add_u32 s11, s13, {q*1024}')
        w.vmem(f'buffer_load_dwordx4 {vr(WB(buf,q),4)}, v1, {SRD}, s11 offen offset:{(q%4)*1024} sc1', f'W{buf}_{q}')
    def bl(buf): w.vmem(f'buffer_load_dwordx4 {vr(24+4*buf,4)}, v3, s[36:39], s14 offen', f'B{buf}')
    w.vm = []
    bl(0)
    for q in range(28): wl(0, q)
    A('s_mov_b32 s8, 0')
    A(f'{lab}_l1:')
    def block(buf):
        A('s_add_u32 s13, s13, 28672\ns_add_u32 s14, s14, 64')
        bl(1 - buf)
        for p in range(14):
            for b in range(2):
                q = b * 14 + p
                w.wait(vm=f'W{buf}_{q}')
                for tt in range(2): A(mfma(vr(8 + (b * 2 + tt) * 4, 4), vr(WB(buf, q), 4), xr(tt, p), 0 if p == 0 else None))
            wl(1 - buf, 2 * p); wl(1 - buf, 2 * p + 1)
        bb = 24 + 4 * buf
        for tt in range(2):
            for b in range(2):
                a = 8 + (b * 2 + tt) * 4
                for k in range(2):
                    A(f'v_lshlrev_b32 v6, 16, v{bb+2*b+k}\nv_and_b32 v7, 0xffff0000, v{bb+2*b+k}')
                    A(f'v_pk_add_f32 {vr(a+2*k,2)}, {vr(a+2*k,2)}, v[6:7]')
                    A(f'v_max_f32 v{a+2*k}, 0, v{a+2*k}\nv_max_f32 v{a+2*k+1}, 0, v{a+2*k+1}')
                    A(f'v_pk_mul_f32 {vr(a+2*k,2)}, {vr(a+2*k,2)}, {vr(a+2*k,2)}')
                    A(f'v_cvt_pk_bf16_f32 v{a+k}, v{a+2*k}, v{a+2*k+1}')
            A(f'v_mov_b64 {vr(8+tt*4+2,2)}, {vr(16+tt*4,2)}')
            A(f'ds_write_b128 v4, {vr(8+tt*4,4)} offset:{buf*2048 + tt*1024}')
    w.vm = ['B0'] + [f'W0_{q}' for q in range(28)]
    block(0); block(1)
    A(f'v_add_u32 v4, 4096, v4\ns_add_u32 s8, s8, 1\ns_cmp_lt_u32 s8, {1 if cfg.get("noffn") else 7}\ns_cbranch_scc1 {lab}_l1')
    tline(A, c2, 2)
    A(f's_lshl_b32 s16, {sW}, 2\ns_cmp_eq_u32 {sW}, 3\ns_cselect_b32 s16, 11, s16')
    A(f's_mul_i32 s13, s16, {2*57344}\ns_add_u32 s13, s13, {W2F}')
    for t in range(8):
        A(f's_add_u32 s{52+t}, s13, {t*57344}')
    A(f's_cmp_ge_u32 {sW}, 2\ns_cselect_b32 s58, {OOB}, s58\ns_cselect_b32 s59, {OOB}, s59')
    A('s_waitcnt vmcnt(0) lgkmcnt(0)\ns_barrier')
    W2 = lambda buf, t: 32 + (buf * 8 + t) * 4
    HB = lambda buf, tt: 8 + (buf * 2 + tt) * 4
    G = lambda t, tt: f'a[{(t*2+tt)*4}:{(t*2+tt)*4+3}]'
    for r in range(64): A(f'v_accvgpr_write_b32 a{r}, 0')
    A('v_mov_b32 v4, v1\nv_mov_b32 v5, v1')
    def w2l(buf, off):
        for t in range(8): w.vmem(f'buffer_load_dwordx4 {vr(W2(buf,t),4)}, v5, {SRD}, s{52+t} offen offset:{off} sc1', f'V{buf}')
    def hl(buf, off):
        for tt in range(2): w.ds(f'ds_read_b128 {vr(HB(buf,tt),4)}, v4 offset:{off + tt*1024}', f'H{buf}')
    w.vm = []; w.lg = []
    for k in range(3): w2l(k, k * 1024)
    hl(0, 0)
    A('v_add_u32 v5, 3072, v5\ns_mov_b32 s8, 0')
    A(f'{lab}_l2:')
    for k in range(4):
        w2l((k + 3) & 3, k * 1024)
        hl((k + 1) & 1, (k + 1) * 2048)
        w.wait(vm=f'V{k}', lg=f'H{k&1}')
        for t in range(8):
            for tt in range(2): A(mfma(G(t, tt), vr(W2(k, t), 4), vr(HB(k & 1, tt), 4)))
    A(f'v_add_u32 v5, 4096, v5\nv_add_u32 v4, 8192, v4\ns_add_u32 s8, s8, 1\ns_cmp_lt_u32 s8, {1 if cfg.get("noffn") else 14}\ns_cbranch_scc1 {lab}_l2')
    A('s_waitcnt vmcnt(0) lgkmcnt(0)')
    A('s_lshl_b32 s14, s16, 6')
    for k in range(4): A(f'buffer_load_dwordx4 {vr(32+4*k,4)}, v3, s[40:43], s14 offen offset:{k*64}')
    A(f's_lshl_b32 s14, s16, 10\ns_add_u32 s14, s14, s12\ns_add_u32 s14, s14, {GB - XF}\ns_add_u32 s15, s14, 14336')
    A('s_waitcnt vmcnt(0)')
    for k in range(4):
        if k == 3: A(f's_cmp_ge_u32 {sW}, 2\ns_cbranch_scc1 {lab}_gdone')
        for tt in range(2):
            for b in range(2):
                for r in range(4): A(f'v_accvgpr_read_b32 v{48+4*b+r}, a{((2*k+b)*2+tt)*4+r}')
            for j in range(4):
                A(f'v_lshlrev_b32 v6, 16, v{32+4*k+j}\nv_and_b32 v7, 0xffff0000, v{32+4*k+j}')
                A(f'v_pk_add_f32 {vr(48+2*j,2)}, {vr(48+2*j,2)}, v[6:7]')
            for r in range(8): A(f'v_mul_f32 v{56+r}, {f32(-math.log2(math.e))}, v{48+r}')
            for r in range(8): A(f'v_exp_f32 v{56+r}, v{56+r}')
            for r in range(8): A(f'v_add_f32 v{56+r}, 1.0, v{56+r}')
            for r in range(8): A(f'v_rcp_f32 v{56+r}, v{56+r}')
            for j in range(4):
                A(f'v_pk_mul_f32 {vr(48+2*j,2)}, {vr(48+2*j,2)}, {vr(56+2*j,2)}')
                A(f'v_cvt_pk_bf16_f32 v{64+4*tt+j}, v{48+2*j}, v{49+2*j}')
            A(f'buffer_store_dwordx4 {vr(64+4*tt,4)}, v1, {SRD}, {"s15" if tt else "s14"} offen offset:{k*1024} sc1')
    A(f'{lab}_gdone:')
    A(f's_lshl_b32 s15, {sR}, 7\ns_add_u32 s15, s15, {FG}')
    signal(w, f'{lab}_gsig', 's15')
    tline(A, c2, 3)
    A(f's_and_b32 s11, {sR}, 3\ns_lshl_b32 s16, s11, 2\ns_cmp_eq_u32 s11, 3\ns_cselect_b32 s16, 11, s16\ns_add_u32 s16, s16, {sW}')
    A(f's_lshr_b32 s11, s11, 1\ns_add_u32 s11, s11, {sW}\ns_cmp_ge_u32 s11, 4\ns_cselect_b32 s17, {OOB}, 0')
    col = Sg('s16') * 32 + (n >> 2) * 8 + (n & 3)
    em.emit(g * 7168 + col * 16 + Sg('s17'), 'v4')
    em.emit(n * 896 + Sg('s16') * 64 + g * 16 + Sg('s17'), 'v5')
    em.emit(Sg('s16') * 1024 + l * 16 + Sg('s17'), 'v6')
    em.emit((l & 1) * (FPX - FVM), 'v7')
    A(f's_lshr_b32 s8, {sR}, 2\ns_mul_i32 s18, {sW}, 10240')
    WX = lambda q, b: 32 + (q * 2 + b) * 4
    A(f'{lab}_l3:')
    A(f's_lshl_b32 s13, s8, 7\ns_add_u32 s15, s13, {FVX}')
    wait_flag(w, f'{lab}_fvx', 's15', 16, tmo)
    A(f's_mul_i32 s14, s8, {VX_SEG}\ns_add_u32 s14, s14, {VXF}')
    for q in range(16):
        for b in range(2): A(f'buffer_load_dwordx4 {vr(WX(q,b),4)}, v4, {SRD}, s14 offen offset:{b*64} sc1')
        if q < 15: A('s_add_u32 s14, s14, 28672')
    A('s_mul_i32 s14, s8, 28672\ns_add_u32 s20, s14, 14336')
    A('buffer_load_dwordx4 v[192:195], v5, s[44:47], s14 offen\nbuffer_load_dwordx4 v[196:199], v5, s[44:47], s20 offen')
    A(f's_add_u32 s15, s13, {FG}')
    wait_flag(w, f'{lab}_fg', 's15', 1, tmo)
    A(f's_add_u32 s21, s14, {GB}\ns_add_u32 s22, s20, {GB}')
    A(f'buffer_load_dwordx4 v[200:203], v6, {SRD}, s21 offen sc1\nbuffer_load_dwordx4 v[204:207], v6, {SRD}, s22 offen sc1')
    A(f's_add_u32 s15, s13, {FVM}')
    A(f's_cmp_lg_u32 {sW}, 0\ns_cbranch_scc1 {lab}_f2go\ns_mov_b32 {sSPIN}, {WSPIN}')
    A(f'{lab}_f2:\nbuffer_load_dword v2, v7, {SRD}, s15 offen sc1')
    A(f's_sub_u32 {sSPIN}, {sSPIN}, 1\ns_cbranch_scc1 {tmo}\n{BACK[0]}s_waitcnt vmcnt(0)\nv_cmp_gt_u32 vcc, 16, v2\ns_cbranch_vccnz {lab}_f2')
    A(f'{lab}_f2go:\ns_barrier')
    tline(A, c2, 5)
    A(f's_mul_i32 s21, s8, {PX_SEG}\ns_add_u32 s21, s21, s18\ns_add_u32 s21, s21, {PX}')
    for k in range(10):
        if k % 4 == 0: A(f's_add_u32 m0, s18, {k*1024}\ns_add_u32 s22, s21, {k*1024}')
        A(f'buffer_load_dwordx4 v1, {SRD}, s22 offen offset:{(k%4)*1024} sc1 lds')
    A(f's_mul_i32 s21, s8, {VM_SEG}\ns_add_u32 s21, s21, {VM}')
    for u in range(4):
        for b in range(2): A(f'buffer_load_dwordx4 {vr(WX(16+u,b),4)}, v4, {SRD}, s21 offen offset:{b*64} sc1')
        if u < 3: A('s_add_u32 s21, s21, 28672')
    A('s_waitcnt vmcnt(8)\ns_barrier')
    w.lg = []
    PB = lambda q, tt: 208 + ((q & 3) * 2 + tt) * 4
    def pl(q):
        for tt in range(2): w.ds(f'ds_read_b128 {vr(PB(q,tt),4)}, v1 offset:{tt*20480 + q*1024}', f'P{q}')
    for q in range(3): pl(q)
    for q in range(20):
        if q + 3 < 20: pl(q + 3)
        w.wait(lg=f'P{q}')
        if q == 16: A('s_waitcnt vmcnt(0)')
        for b in range(2):
            for tt in range(2): A(mfma(vr(8 + (tt * 2 + b) * 4, 4), vr(WX(q, b), 4), vr(PB(q, tt), 4), 0 if q == 0 else None))
    for tt in range(2):
        a = 8 + tt * 8
        for j in range(4):
            r = a + 2 * j
            A(f'v_cvt_pk_bf16_f32 v{r}, v{r}, v{r+1}\nv_and_b32 v{r+1}, 0xffff0000, v{r}\nv_lshlrev_b32 v{r}, 16, v{r}')
            A(f'v_lshlrev_b32 v24, 16, v{200+4*tt+j}\nv_and_b32 v25, 0xffff0000, v{200+4*tt+j}')
            A(f'v_pk_mul_f32 {vr(r,2)}, {vr(r,2)}, v[24:25]')
            A(f'v_cvt_pk_bf16_f32 v{r}, v{r}, v{r+1}\nv_and_b32 v{r+1}, 0xffff0000, v{r}\nv_lshlrev_b32 v{r}, 16, v{r}')
            A(f'v_lshlrev_b32 v24, 16, v{192+4*tt+j}\nv_and_b32 v25, 0xffff0000, v{192+4*tt+j}')
            A(f'v_pk_add_f32 {vr(r,2)}, {vr(r,2)}, v[24:25]')
            A(f'v_cvt_pk_bf16_f32 v{28+j}, v{r}, v{r+1}')
        A(f'buffer_store_dwordx4 v[28:31], v5, s[48:51], {"s20" if tt else "s14"} offen {cfg.get("ost", "")}')
    A(f's_add_u32 s8, s8, 16\ns_cmp_lt_u32 s8, {NSEG}\ns_cbranch_scc1 {lab}_l3')
    if cfg.get('tl') or cfg.get('ds'): A('s_waitcnt vmcnt(0)')
    tline(A, c2, 4)
    dstamp(A, cfg, 7, 223, 2)
    A('s_endpgm')
```

```python
from asmdsl import Asm
from layout import *
import rec, workers, prep, build

BEST = dict(xpos=[11, 15, 20, 25, 99, 99, 99, 99], hu2pos=7, ew=64, ebar=6, gate='w0')

def counts(A, lab, tmo, sd='s[48:51]'):
    A(f's_mov_b32 s19, 0x40000\n{lab}:')
    A(f'buffer_load_dword v3, v4, {sd}, 0 offen sc1')
    A(f's_sub_u32 s19, s19, 1\ns_cbranch_scc1 {tmo}\ns_waitcnt vmcnt(0)')
    A('v_readlane_b32 s47, v3, 0\ns_mov_b32 s46, s47')
    for x in range(1, 8): A(f'v_readlane_b32 s11, v3, {x}\ns_add_u32 s46, s46, s11')

def gen_main(A, cfg):
    workers.BACK[0] = f's_sleep {cfg["back"]}\n' if cfg.get('back') else ''
    A(f"""s_cmp_ge_u32 s2, 256
    s_cbranch_scc1 M_exit0
    s_load_dwordx4 s[28:31], s[0:1], 0
    s_load_dwordx8 s[36:43], s[0:1], 16
    s_load_dwordx2 s[4:5], s[0:1], 112
    s_load_dwordx2 s[48:49], s[0:1], 104
    s_getreg_b32 s54, hwreg(HW_REG_XCC_ID, 0, 3)
    v_lshrrev_b32 v1, 6, v0
    v_readfirstlane_b32 s9, v1
    v_and_b32 v0, 63, v0
    s_waitcnt lgkmcnt(0)
    s_mov_b32 s6, {WS_BYTES}
    s_mov_b32 s7, 0x20000
    s_mov_b32 s50, 256
    s_mov_b32 s51, 0x20000""")
    if cfg.get('fakexcc'): A(cfg['fakexcc'])
    if cfg.get('ds'):
        A('s_mov_b32 s3, s2'); rec.dstamp(A, cfg, 9, 0, 3)
    A("""s_mov_b32 s12, s54
    v_mov_b32 v2, 0x27c00
    s_cmp_lg_u32 s9, 0
    s_cbranch_scc1 M_ranked
    v_mov_b32 v3, 1
    s_lshl_b32 s11, s12, 5
    s_mov_b64 exec, 1
    buffer_atomic_add v3, off, s[48:51], s11 sc0 sc1
    s_waitcnt vmcnt(0)
    s_mov_b64 exec, -1
    v_readfirstlane_b32 s3, v3
    v_and_b32 v4, 7, v0
    v_lshlrev_b32 v4, 5, v4
    s_lshl_b32 s11, s12, 5
    s_cmp_lt_u32 s3, 32
    s_cselect_b32 s15, 0, 1
    s_add_u32 s3, s3, s11
    s_cmp_eq_u32 s15, 0
    s_cbranch_scc1 M_have""")
    A("""v_mov_b32 v3, 1
    s_mov_b64 exec, 1
    buffer_atomic_add v3, off, s[48:51], 0 offset:4 sc0 sc1
    s_waitcnt vmcnt(0)
    s_mov_b64 exec, -1
    v_readfirstlane_b32 s15, v3""")
    counts(A, 'M_ovf', 'M_exit0')
    A('s_cmp_lt_u32 s46, 256\ns_cbranch_scc1 M_ovf_again\ns_mov_b32 s3, 0')
    for x in range(8):
        A(f'v_readlane_b32 s11, v3, {x}\ns_min_u32 s11, s11, 32\ns_sub_u32 s16, 32, s11')
        A(f's_cmp_lt_u32 s15, s16\ns_cbranch_scc0 M_nx{x}\ns_add_u32 s3, s11, s15\ns_add_u32 s3, s3, {32*x}\ns_branch M_have\nM_nx{x}:\ns_sub_u32 s15, s15, s16')
    A('M_exit0:\ns_endpgm\nM_ovf_again:')
    A('s_branch M_ovf')
    A("""M_have:
    v_mov_b32 v3, s3
    ds_write_b32 v2, v3
    s_waitcnt lgkmcnt(0)
M_ranked:
    s_barrier
    ds_read_b32 v3, v2
    s_waitcnt lgkmcnt(0)
    v_readfirstlane_b32 s3, v3""")
    rec.tline(A, dict(cfg, tlreg=3), 0)
    rec.dstamp(A, cfg, 3, 0, 3)
    A('s_barrier\ns_cmp_lt_u32 s3, 32\ns_cbranch_scc1 M_rec\ns_sub_u32 s10, s3, 32')
    prep.gen_gemm(A, cfg, 'M_exit0')
    A("""s_sub_u32 s11, s3, 32
    s_and_b32 s10, s11, 63
    s_lshr_b32 s11, s11, 6
    s_cmp_eq_u32 s11, 2
    s_cbranch_scc1 M_F
    s_cmp_eq_u32 s11, 3
    s_cbranch_scc1 M_T
    s_and_b32 s12, s10, 3
    s_lshr_b32 s10, s10, 2
    s_cmp_eq_u32 s11, 1
    s_cbranch_scc1 M_Q""")
    workers.gen_V(A, cfg, 'WV', 'M_exit')
    A('M_Q:'); workers.gen_Q(A, cfg, 'WQ', 'M_exit')
    A('M_T:'); workers.gen_T(A, cfg, 'WT', 'M_exit')
    A('M_F:'); workers.gen_F(A, cfg, 'WF', 'M_exit')
    A('M_exit:\ns_endpgm')
    def start_sync(w, lab):
        if cfg.get('tl'): A('s_waitcnt vmcnt(0)')
        rec.tline(A, dict(cfg, tlreg=3), 1)
        A(f'v_mov_b32 v2, 0x27c00\ns_cmp_lg_u32 s9, 0\ns_cbranch_scc1 {lab}_ss')
        A('v_and_b32 v4, 7, v0\nv_lshlrev_b32 v4, 5, v4')
        counts(A, f'{lab}_cnt', 'R_exit', 's[40:43]')
        A(f's_mov_b32 s30, 0\ns_cmp_ge_u32 s47, 32\ns_cbranch_scc1 {lab}_md\ns_mov_b32 s30, 1\ns_cmp_ge_u32 s46, 256\ns_cbranch_scc1 {lab}_md')
        A(f's_branch {lab}_cnt\n{lab}_md:')
        A(f'v_min_u32 v4, 1, v0\nv_lshlrev_b32 v4, 7, v4\ns_mov_b32 s11, {FVX}\ns_mov_b32 s19, 0x40000')
        A(f'{lab}_fv:\nbuffer_load_dword v3, v4, s[4:7], s11 offen sc1\ns_sub_u32 s19, s19, 1\ns_cbranch_scc1 R_exit')
        A(f's_waitcnt vmcnt(0)\nv_cmp_gt_u32 vcc, 16, v3\ns_cbranch_vccnz {lab}_fv')
        A(f'v_mov_b32 v3, s30\nds_write_b32 v2, v3\ns_waitcnt lgkmcnt(0)\n{lab}_ss:\ns_barrier')
        A(f'ds_read_b32 v3, v2\ns_waitcnt lgkmcnt(0)\nv_readfirstlane_b32 s30, v3\ns_mov_b32 s19, {rec.SPIN_MAX}')
        rec.tline(A, dict(cfg, tlreg=3), 2)
        rec.dstamp(A, cfg, 4, 0, 3); rec.dstamp(A, cfg, 5, 31, 3)
    c = dict(BEST); c.update(cfg)
    c.setdefault('start_sync', start_sync); c.setdefault('finish', lambda w, lab: (rec.tline(A, dict(cfg, tlreg=3, tlclk=1), 4), rec.dstamp(A, cfg, 6, 0, 3)))
    def loop_top(w, lab):
        if cfg.get('tl'):
            for k, st in ((3, 1), (5, 16), (6, 32)):
                A(f's_cmp_lg_u32 s8, {st}\ns_cbranch_scc1 {lab}_lt{k}'); rec.tline(A, dict(cfg, tlreg=3, tlclk=1), k); A(f'{lab}_lt{k}:')
    c.setdefault('loop_top', loop_top)
    A('M_rec:\ns_mov_b32 s10, s3')
    prep.gen_misc(A, cfg, 'R_exit')
    from expr import V, Sg, sel_lt
    l = V('v0')
    c['pre_a'] = lambda: rec.wait_lanes(A, 'RA_wa', sel_lt(l, 1, FA + Sg('s10') * 128, FX), sel_lt(l, 1, 14, 32), 'R_exit')
    c['pre_b'] = lambda: rec.wait_lanes(A, 'RB_wb', sel_lt(l, 16, FB + l * 128, FX), sel_lt(l, 16, 14, 32), 'R_exit')
    A('s_mov_b64 s[40:41], s[48:49]\ns_mov_b32 s42, 256\ns_mov_b32 s43, 0x20000')
    A('s_and_b32 s10, s3, 15\ns_cmp_ge_u32 s3, 16\ns_cbranch_scc1 M_B')
    rec.gen_A(A, c, 'RA', 'R_exit')
    A('R_exit:\ns_endpgm\nM_B:')
    rec.gen_B(A, c, 'RB', 'R_exit')

def generate(cfg={}, header=''):
    K = Asm(); gen_main(K, cfg)
    return build.assemble([(build.NAME + '_kernel', K.lines, 256, 256, 163840, 512, 256)], header)

if __name__ == '__main__':
    ref = open(f'cdna_kernels/{build.NAME}.s.ref').read().split('\n')
    header = '\n'.join(l for l in ref if l.startswith(';') and '@launch' not in l and 'Override' not in l and 'grid=ceil' not in l) + '\n'
    import sys, json
    if len(sys.argv) > 2: open(sys.argv[1], 'w').write(generate(json.loads(sys.argv[2]), header))
    else: open(f'cdna_kernels/{build.NAME}.s', 'w').write(generate({}, header))
```

```python
from asmdsl import Asm
from expr import X, V, Sg, Emitter, ev, sel_lt, wrap
from layout import *
import numpy as np

SRD = 's[4:7]'
def vr(a, n=1): return f'v{a}' if n == 1 else f'v[{a}:{a+n-1}]'
def wreg(o):
    return f'a[{8*o}:{8*o+7}]' if o < 32 else f'v[{120+8*(o-32)}:{127+8*(o-32)}]'
def wquad(o, b):
    return f'a[{8*o+4*b}:{8*o+4*b+3}]' if o < 32 else f'v[{120+8*(o-32)+4*b}:{123+8*(o-32)+4*b}]'

class Wv:
    def __init__(self, A, cfg):
        self.A = A; self.vm = []; self.lg = []; self.cfg = cfg; self.nst = 0
    def __call__(self, t): self.A(t)
    def vmem(self, t, tag=None): self.A(t); self.vm.append(tag)
    def ds(self, t, tag=None): self.A(t); self.lg.append(tag)
    def wait(self, vm=None, lg=None):
        parts = []
        if vm is not None and vm in self.vm:
            i = len(self.vm) - 1 - self.vm[::-1].index(vm)
            parts.append(f'vmcnt({len(self.vm)-1-i})'); self.vm = self.vm[i+1:]
        if lg is not None and lg in self.lg:
            i = len(self.lg) - 1 - self.lg[::-1].index(lg)
            n = min(len(self.lg) - 1 - i, 15)
            parts.append(f'lgkmcnt({n})'); self.lg = self.lg[i+1:]
        if parts: self.A('s_waitcnt ' + ' '.join(parts))
    def wait_all_lg(self): self.A('s_waitcnt lgkmcnt(0)'); self.lg = []
    def wait_all_vm(self): self.A('s_waitcnt vmcnt(0)'); self.vm = []
    def stamp(self, name=None):
        if self.cfg.get('stamps'):
            assert self.nst < 12
            self.A(f's_memtime s[{60+2*self.nst}:{61+2*self.nst}]'); self.nst += 1
    def dump_stamps(self, lab):
        if not self.cfg.get('stamps'): return
        A = self.A
        A(f's_waitcnt lgkmcnt(0)\ns_cmp_lg_u32 s8, 6\ns_cbranch_scc1 {lab}_nocal')
        A(f's_memrealtime s[96:97]\ns_waitcnt lgkmcnt(0)\n{lab}_cal:\ns_memrealtime s[98:99]\ns_memtime s[100:101]\ns_waitcnt lgkmcnt(0)\ns_cmp_eq_u32 s96, s98\ns_cbranch_scc1 {lab}_cal')
        for k in range(12): A(f's_mov_b32 s{84+k}, 0')
        A(f'{lab}_nocal:\ns_cmp_lt_u32 s8, 8\ns_cbranch_scc1 {lab}_nodump\ns_cmp_gt_u32 s8, 57\ns_cbranch_scc1 {lab}_nodump')
        for k in range(self.nst): A(f's_sub_u32 s11, s{60+2*k}, s100\ns_add_u32 s{84+k}, s{84+k}, s11')
        A(f's_cmp_lg_u32 s8, 57\ns_cbranch_scc1 {lab}_nodump')
        A('s_lshl_b32 s11, s3, 2\ns_add_u32 s11, s11, s9\ns_lshl_b32 s11, s11, 6')
        A(f's_add_u32 s11, s11, {DBG}')
        A(f'v_mov_b32 v0, s98\nv_mov_b32 v2, 0x4000\nbuffer_store_dword v0, v2, {SRD}, s11 offen')
        for k in range(self.nst):
            A(f'v_mov_b32 v0, s{84+k}\nv_mov_b32 v1, {4*k}\nbuffer_store_dword v0, v1, {SRD}, s11 offen')
        A(f's_waitcnt vmcnt(0)\n{lab}_nodump:')

def tline(A, cfg, k, base=0, idx='s3'):
    if not cfg.get('tl'): return
    lab = A.newlabel(f'TL{base}')
    A(f's_cmp_lg_u32 s9, 0\ns_cbranch_scc1 {lab}')
    A(f's_memrealtime s[96:97]\ns_lshl_b32 s98, {idx}, 6\ns_add_u32 s98, s98, {DBG + 0x8000 + base + 4*k}\ns_waitcnt lgkmcnt(0)')
    A(f'v_accvgpr_write_b32 a255, s96' if False else f'v_mov_b32 v{cfg.get("tlreg", 95)}, s96')
    A(f'buffer_store_dword v{cfg.get("tlreg", 95)}, off, {SRD}, s98')
    if cfg.get('tlclk'):
        A(f's_memtime s[96:97]\ns_waitcnt lgkmcnt(0)\nv_mov_b32 v{cfg.get("tlreg", 95)}, s96\nbuffer_store_dword v{cfg.get("tlreg", 95)}, off, {SRD}, s98 offset:32')
    A(f'{lab}:')

def dstamp(A, cfg, k, slot, reg):
    if not cfg.get('ds'): return
    lab = A.newlabel('DS')
    A(f's_cmp_lg_u32 s9, 0\ns_cbranch_scc1 {lab}\ns_cmp_lg_u32 s3, {slot}\ns_cbranch_scc1 {lab}')
    A(f's_load_dwordx2 s[96:97], s[0:1], 104\ns_memrealtime s[94:95]\ns_waitcnt lgkmcnt(0)\ns_mov_b32 s98, 256\ns_mov_b32 s99, 0x20000')
    A(f's_and_b32 s94, s94, 0xfffff\nv_mov_b32 v{reg}, s94\nbuffer_store_dword v{reg}, off, s[96:99], 0 offset:{4*k}\n{lab}:')

def smf(acc, a, b, idx): return f'v_smfmac_f32_16x16x64_bf16 {vr(acc,4)}, {a}, {b}, {idx}'

KM = 3
MREG = [16, 20, 24, 0, 4, 8, 12]
ACC = [28 + 4 * t for t in range(7)]
vIDX, vL16, vHUp, vHUs = 'v119', 'v118', 'v117', 'v116'
vKA = ['v115', 'v114', 'v113', 'v112', 'v111', 'v110', 'v109']
sSTEP, sW, sR = 's8', 's9', 's10'
sKK = [f's{12+t}' for t in range(7)]
sSPIN, sRETRY, sS1 = 's19', 's20', 's31'
sMO = ['s36', 's37', 's38']
SPIN_MAX = 0x80000
L_K = 131072

def common_consts(em, A, lab, rot):
    l = V('v0')
    em.emit(l & 63, 'v0')
    em.emit(sel_lt(l & 2, 1, 0x44444444, 0xEEEEEEEE), vIDX)
    em.emit(l * 16, vL16)
    A(f's_lshl_b32 s33, {sW}, 1\ns_add_u32 s33, s33, {rot}')
    for _ in range(3): A('s_cmp_ge_u32 s33, 7\ns_cselect_b32 s35, 7, 0\ns_sub_u32 s33, s33, s35')
    for t in range(7):
        A(f's_add_u32 s34, s33, {t}\ns_cmp_ge_u32 s34, 7\ns_cselect_b32 s35, 7, 0\ns_sub_u32 s34, s34, s35\ns_lshl_b32 {sKK[t]}, s34, 10')
    em.emit(L_K + l * 16, 'v1')
    for t in range(7): A(f'v_add_u32 {vKA[t]}, {sKK[t]}, v1')
    A(f's_cmp_lg_u32 {sW}, 3\ns_cbranch_scc1 {lab}_w3skip\nv_add_u32 {vKA[1]}, 7168, v1\n{lab}_w3skip:')

def step_consts(A, solo=False):
    A(f's_and_b32 s11, {sSTEP}, {0 if solo else 3}\ns_lshl_b32 s33, s11, 13\ns_add_u32 s33, s33, {MS}')
    for t in range(3): A(f's_add_u32 {sMO[t]}, s33, {sKK[t]}')
    A(f's_add_u32 {sS1}, {sSTEP}, 1')

def poll(w, lab, vp, sval, tmo, nl):
    w(f'v_mov_b32 {vp}, 0')
    if w.cfg.get('pollmask', 1): w(f's_mov_b32 exec_lo, {hex((1 << nl) - 1) if nl < 32 else -1}\ns_mov_b32 exec_hi, 0')
    w(f'{lab}:')
    if w.cfg.get('pollnop'): w(f's_nop {w.cfg["pollnop"]-1}')
    w(f'buffer_load_dword {vp}, {vHUp}, {SRD}, 0 offen sc1')
    w(f's_waitcnt vmcnt({w.cfg.get("polldepth", 40)})')
    w(f'v_cmp_gt_u32 vcc, {sval}, {vp}')
    w(f's_sub_u32 {sSPIN}, {sSPIN}, 1\ns_cbranch_scc1 {tmo}')
    w(f's_cbranch_vccnz {lab}')
    if w.cfg.get('pollmask', 1): w('s_mov_b64 exec, -1')
    w.vm = []

def zero(w, a, n):
    for i in range(a, a + n, 2): w(f'v_mov_b64 {vr(i,2)}, 0')

def sentinel_check(w, regs, tmp):
    w(f'v_max3_u32 {tmp}, v{regs[0]}, v{regs[1]}, v{regs[2]}')
    r = regs[3:]
    while len(r) >= 2:
        w(f'v_max3_u32 {tmp}, {tmp}, v{r[0]}, v{r[1]}'); r = r[2:]
    if r: w(f'v_max_u32 {tmp}, {tmp}, v{r[0]}')
    w(f'v_cmp_eq_u32 vcc, -1, {tmp}')

def weight_stream(w, fill, comb_write, lab, tmp, tmo=None, mpoll=False):
    cfg = w.cfg; ND = cfg.get('nd', 2)
    w(f'{lab}_mload:')
    w.vm = []; w.lg = []
    if mpoll:
        assert ND == 2
        for t in range(ND):
            w(f'buffer_load_dwordx4 {vr(MREG[t],4)}, {vL16}, {SRD}, {sMO[t]} offen sc1')
        if cfg.get('mnop'): w(f's_nop {cfg["mnop"]-1}')
        w(f's_waitcnt vmcnt({cfg.get("mdepth", 6)})')
        sentinel_check(w, list(range(MREG[0], MREG[0] + 8)), f'v{tmp}')
        w(f's_sub_u32 {sSPIN}, {sSPIN}, 1\ns_cbranch_scc1 {tmo}')
        w(f's_cbranch_vccnz {lab}_mload')
        w.vm = ['MP']
    else:
        for t in range(ND):
            w(f's_setprio {ND-1-t}')
            w.vmem(f'buffer_load_dwordx4 {vr(MREG[t],4)}, {vL16}, {SRD}, {sMO[t]} offen sc1', f'M{t}')
    order = [(tl, t) for t in range(KM) for tl in range(7)] + [(tl, t) for tl in range(7) for t in range(KM, 7)]
    pre = {}; mem = {}; val = {}
    ad = lambda d, n, f: d.setdefault(n, []).append(f)
    w1 = 1 if mpoll else cfg.get('w1', 3)
    for t, s0 in ((0, 0), (1, w1)):
        m = MREG[t]
        ad(pre, s0, lambda t=t: w.wait(vm=f'M{t}'))
        ad(mem, s0, lambda t=t, m=m: w.ds(f'ds_write_b128 {vKA[t]}, {vr(m,4)}'))
    if mpoll:
        bs = w1 + cfg.get('mbar', 4)
        def sync():
            w.wait_all_lg(); w('s_barrier')
        ad(pre, 20, lambda: w.wait(vm='MP'))
    else:
        m0, m1, m2 = MREG[0], MREG[1], MREG[2]
        ad(val, 1, lambda: w(f'v_max3_u32 v{tmp}, v{m0}, v{m0+1}, v{m0+2}'))
        c = w1 + 1
        ad(val, c, lambda: w(f'v_max3_u32 v{tmp}, v{tmp}, v{m0+3}, v{m1}'))
        ad(val, c + 1, lambda: w(f'v_max3_u32 v{tmp}, v{tmp}, v{m1+1}, v{m1+2}'))
        if ND == 2:
            ad(val, c + 2, lambda: w(f'v_max_u32 v{tmp}, v{tmp}, v{m1+3}'))
            c += 3
        else:
            ad(pre, c + 2, lambda: w.wait(vm='M2'))
            ad(val, c + 2, lambda: w(f'v_max3_u32 v{tmp}, v{tmp}, v{m1+3}, v{m2}'))
            ad(val, c + 3, lambda: w(f'v_max3_u32 v{tmp}, v{tmp}, v{m2+1}, v{m2+2}'))
            ad(val, c + 4, lambda: w(f'v_max_u32 v{tmp}, v{tmp}, v{m2+3}'))
            c += 5
        ad(val, c, lambda: w(f'v_cmp_eq_u32 vcc, -1, v{tmp}'))
        bs = c + cfg.get('bdelay', 2)
        def sync():
            w(f's_cbranch_vccnz {lab}_mretry')
            w.wait_all_lg(); w('s_barrier')
    ad(mem, bs, sync)
    n = 0
    for t in range(ND, 7):
        m = MREG[t]
        ad(mem, bs + n, lambda t=t, m=m: w.ds(f'ds_read_b128 {vr(m,4)}, {vKA[t]}', f'M{t}'))
        n += 1
    per = 7 - KM; base = 7 * KM
    for tl in range(6):
        s0 = base + per * (tl + 1) + 1
        ad(val, s0, lambda tl=tl: w(f'v_add_f32 v{tmp}, v{ACC[tl]}, v{ACC[tl]+2}'))
        ad(val, s0 + 1, lambda tl=tl: w(f'v_add_f32 v{tmp+1}, v{ACC[tl]+1}, v{ACC[tl]+3}'))
        ad(val, s0 + 2, lambda: w(f'v_cvt_pk_bf16_f32 v{tmp+2}, v{tmp}, v{tmp+1}'))
        ad(mem, s0 + 3, lambda tl=tl: comb_write(tl, f'v{tmp+2}'))
    fl, fv = fill(bs + n)
    for k, fs in fv.items():
        for f in fs: ad(val, k, f)
    if cfg.get('stamps'):
        for k in cfg.get('bfine', [0]): ad(fl, k, lambda: w.stamp())
    for n, (tl, t) in enumerate(order):
        for f in pre.get(n, []): f()
        w.wait(vm=f'M{t}', lg=f'M{t}')
        w(smf(ACC[tl], vr(MREG[t], 4), wreg(tl * 7 + t), vIDX))
        for f in mem.get(n, []): f()
        for f in fl.get(n, []): f()
        for f in val.get(n, []): f()
    assert all(k < 49 for k in fl) and all(k < 49 for k in val)
    return [f for k in sorted(mem) if k >= 49 for f in mem[k]]

MREGA = [12, 16, 20, 24, 0, 4, 8]
def a_consts(em, A):
    l = V('v0')
    em.emit(l & 63, 'v0')
    em.emit(sel_lt(l & 2, 1, 0x44444444, 0xEEEEEEEE), vIDX)
    em.emit(l * 16, vL16)
    for t in range(4): A(f's_add_u32 s34, {sW}, {sR}\ns_add_u32 s34, s34, {t}\ns_and_b32 s34, s34, 3\ns_lshl_b32 {sKK[t]}, s34, 10')
    for t in range(4, 7): A(f's_movk_i32 {sKK[t]}, {t*1024}')
    em.emit(L_K + l * 16, vKA[4])
    for t in range(4): A(f'v_add_u32 {vKA[t]}, {sKK[t]}, {vKA[4]}')
    A(f's_lshl_b32 s29, {sW}, 10\ns_add_u32 s29, s29, 4096')

def a_step_consts(A, solo=False):
    A(f's_and_b32 s11, {sSTEP}, {0 if solo else 3}\ns_lshl_b32 s33, s11, 13\ns_add_u32 s33, s33, {MS}')
    A(f's_add_u32 s36, s33, {sKK[0]}\ns_add_u32 s37, s33, {sKK[1]}\ns_add_u32 s38, s33, s29\ns_add_u32 s39, s29, {L_K}')
    A(f's_add_u32 {sS1}, {sSTEP}, 1')

def a_stream(w, fill, comb_write, lab, tmp, tmo):
    cfg = w.cfg; MR = MREGA; KMA = 4; NE = cfg.get('ne', 2)
    w(f'{lab}_mload:')
    w.vm = []; w.lg = []
    for t in range(NE): w(f'buffer_load_dwordx4 {vr(MR[t],4)}, {vL16}, {SRD}, s{36+t} offen sc1')
    if cfg.get('mnop'): w(f's_nop {cfg["mnop"]-1}')
    w(f's_waitcnt vmcnt({cfg.get("mdepth", 2)})')
    sentinel_check(w, list(range(MR[0], MR[0] + 4 * NE)), f'v{tmp}')
    w(f's_sub_u32 {sSPIN}, {sSPIN}, 1\ns_cbranch_scc1 {tmo}')
    w(f's_cbranch_vccnz {lab}_mload')
    order = [(tl, t) for t in range(KMA) for tl in range(7)] + [(tl, t) for tl in range(7) for t in range(KMA, 7)]
    pre = {}; mem = {}; val = {}
    ad = lambda d, n, f: d.setdefault(n, []).append(f)
    ew = cfg.get('ew', 128)
    if ew == 128:
        if NE == 1: w.ds(f'ds_write_b128 {vKA[0]}, {vr(MR[0],4)}')
        else: ad(mem, 0, lambda: w.ds(f'ds_write_b128 {vKA[0]}, {vr(MR[0],4)}'))
    elif ew == 64:
        for k in range(2): ad(mem, k, lambda k=k: w.ds(f'ds_write_b64 {vKA[0]}, {vr(MR[0]+2*k,2)} offset:{8*k}'))
    else:
        for k in range(4): ad(mem, k, lambda k=k: w.ds(f'ds_write_b32 {vKA[0]}, v{MR[0]+k} offset:{4*k}'))
    bs = cfg.get('ebar', 2 if NE == 1 else 8)
    ad(mem, bs, lambda: (w.wait_all_lg(), w('s_barrier')))
    for t in range(NE, 4):
        ad(mem, bs + (t - NE), lambda t=t: w.ds(f'ds_read_b128 {vr(MR[t],4)}, {vKA[t]}', f'M{t}'))
    l0 = cfg.get('lslot', 3); lb = cfg.get('lbar', 17)
    ad(mem, l0 - 1, lambda: w('s_mov_b32 m0, s39'))
    ad(mem, l0, lambda: w.vmem(f'buffer_load_dwordx4 {vL16}, {SRD}, s38 offen sc1 lds', 'L'))
    ad(mem, lb, lambda: (w.wait(vm='L'), w('s_barrier')))
    for t in (4, 5, 6): ad(mem, lb + (t - 4) // 2, lambda t=t: w.ds(f'ds_read_b128 {vr(MR[t],4)}, {vKA[4]} offset:{t*1024}', f'M{t}'))
    lc = lb + 3
    w.lretry_state = None
    ad(pre, lc + 1, lambda: w.wait(lg='M5'))
    ad(val, lc + 1, lambda: w(f'v_max3_u32 v{tmp}, v0, v1, v2'))
    ad(val, lc + 2, lambda: w(f'v_max3_u32 v{tmp}, v{tmp}, v3, v4'))
    ad(pre, lc + 3, lambda: w.wait(lg='M6'))
    ad(val, lc + 3, lambda: w(f'v_max3_u32 v{tmp}, v{tmp}, v5, v6'))
    ad(val, lc + 4, lambda: w(f'v_max3_u32 v{tmp}, v{tmp}, v7, v8'))
    ad(val, lc + 5, lambda: w(f'v_max3_u32 v{tmp}, v{tmp}, v9, v10'))
    ad(val, lc + 6, lambda: (w(f'v_max_u32 v{tmp}, v{tmp}, v11'), w(f'v_cmp_eq_u32 vcc, -1, v{tmp}')))
    cs = lc + 7
    assert cs <= 27
    ad(mem, cs, lambda: w(f's_cbranch_vccnz {lab}_lretry\n{lab}_lok:'))
    per = 7 - KMA; base = 7 * KMA
    for tl in range(6):
        s0 = base + per * (tl + 1) + 1
        o = tmp + 2
        ad(val, s0, lambda tl=tl: w(f'v_add_f32 v{tmp}, v{ACC[tl]}, v{ACC[tl]+2}'))
        ad(val, s0 + 1, lambda tl=tl: w(f'v_add_f32 v{tmp+1}, v{ACC[tl]+1}, v{ACC[tl]+3}'))
        ad(val, s0 + 2, lambda: w(f'v_cvt_pk_bf16_f32 v{o}, v{tmp}, v{tmp+1}'))
        ad(mem, s0 + 3, lambda tl=tl: comb_write(tl, f'v{o}'))
    fl, fv = fill(bs + 4 - NE, cs + 1)
    for k, fs in fv.items():
        for f in fs: ad(val, k, f)
    if cfg.get('stamps'):
        for k in cfg.get('fine', [0]): ad(fl, k, lambda: w.stamp())
    for n, (tl, t) in enumerate(order):
        for f in pre.get(n, []): f()
        w.wait(lg=f'M{t}')
        w(smf(ACC[tl], vr(MR[t], 4), wreg(tl * 7 + t), vIDX))
        for f in mem.get(n, []): f()
        for f in fl.get(n, []): f()
        for f in val.get(n, []): f()
    assert all(k < 49 for k in fl)
    return [f for k in range(49, 56) for f in mem.get(k, []) + val.get(k, [])]

def l_retry(w, lab, tmp, tmo):
    w(f'{lab}_lretry:\ns_mov_b32 s35, m0\n{lab}_lretry2:')
    w(f's_add_u32 {sRETRY}, {sRETRY}, 1\ns_barrier\ns_mov_b32 m0, s39')
    w(f's_sub_u32 {sSPIN}, {sSPIN}, 4\ns_cbranch_scc1 {tmo}')
    w(f'buffer_load_dwordx4 {vL16}, {SRD}, s38 offen sc1 lds\ns_waitcnt vmcnt(0)\ns_barrier')
    for t in (4, 5, 6): w(f'ds_read_b128 {vr(MREGA[t],4)}, {vKA[4]} offset:{t*1024}')
    w('s_waitcnt lgkmcnt(0)')
    sentinel_check(w, list(range(0, 12)), f'v{tmp}')
    w(f's_cbranch_vccnz {lab}_lretry2\ns_mov_b32 m0, s35\ns_branch {lab}_lok')

def m_retry(w, lab, tmo):
    w(f'{lab}_mretry:')
    w(f's_add_u32 {sRETRY}, {sRETRY}, 1')
    w(f's_sub_u32 {sSPIN}, {sSPIN}, 8\ns_cbranch_scc1 {tmo}\ns_waitcnt vmcnt(0) lgkmcnt(0)')
    zero(w, 28, 28)
    w(f's_branch {lab}_mload')

def wait_lanes(A, lab, addr, target, tmo):
    em = Emitter(A, [f'v{i}' for i in range(4, 13)])
    A(f's_cmp_lg_u32 s9, 0\ns_cbranch_scc1 {lab}_go')
    em.emit(addr, 'v1'); em.emit(target, 'v2')
    A(f's_mov_b32 s19, 0x40000\n{lab}:\nbuffer_load_dword v3, v1, {SRD}, 0 offen sc1')
    A(f's_sub_u32 s19, s19, 1\ns_cbranch_scc1 {tmo}\ns_waitcnt vmcnt(0)\nv_cmp_gt_u32 vcc, v2, v3\ns_cbranch_vccnz {lab}')
    A(f'{lab}_go:\ns_barrier')

def emit_modes(A, cfg, lab, loop):
    if cfg.get('modes', 2) == 1:
        loop(lab, cfg.get('st', '')); return
    A(f's_cmp_lg_u32 s30, 0\ns_cbranch_scc1 {lab}_slow')
    loop(lab + 'x', '')
    A(f'{lab}_slow:')
    loop(lab + 'y', 'sc1')

def load_weights(w, addr_of):
    n = 0
    for tl in range(7):
        for t in range(7):
            for b in range(2):
                va, pre = addr_of(tl, t, b)
                w(pre)
                w(f'buffer_load_dwordx4 {wquad(tl*7+t, b)}, {va}, {SRD}, s11 offen')
                n += 1
                if n % 16 == 0: w('s_waitcnt vmcnt(32)')

A_X, A_T, A_R = 0, 65536, 77824
Z0, Z1, SACC, TSP0, TSP1, TMP = 56, 12, 80, 36, 40, 92
aKR, aKR3, aTW, aTW6, aTR, aXR, aRW, aRR = 'v108', 'v107', 'v106', 'v105', 'v104', 'v103', 'v102', 'v101'
aP, aKR2, aPOLL = 'v100', 'v99', 'v96'
sQ = ['s21', 's22', 's23', 's24']
sXS, sXL, sPW, sPR, sWL, sMASK = 's25', 's26', 's27', 's28', 's32', 's[52:53]'

def a_exprs():
    l = V('v0'); w = Sg(sW); h = Sg(sR)
    g = l >> 4; rho = l & 15
    half = (rho >> 1) & 1
    q0 = (w >> 1) * 7 + (w & 1) * 4; q3 = (w >> 1) * 7 + 3
    e = {}
    i = rho & 7
    kr = L_K + ((g >> 1) * 16 + (i >> 1) * 4 + (i & 1)) * 16 + (g & 1) * 8
    e[aKR] = kr + q0 * 512
    e[aKR3] = kr + q3 * 512
    e[aKR2] = kr + q0 * 512 + 1024
    tw = A_T + w * 3072 + (rho >> 2) * 192 + (rho & 1) * 32 + g * 8 + half * 4
    e[aTW] = tw
    e[aTW6] = tw + 2304 + (w & 1) * 64
    e[aTR] = A_T + w * 3072 + g * 384 + ((l >> 3) & 1) * 64 + ((l >> 2) & 1) * 32 + (l & 3) * 8
    e[aXR] = A_X + w * 8192 + l * 16
    e[aRW] = A_R + w * 1536 + g * 384 + rho * 4
    rr = l >> 5; pi = l & 31; pc = pi.min(19)
    e[aRR] = A_R + (w * 2 + rr) * 192 + sel_lt(pc, 4, pc * 8, pc * 8 + 32)
    row = w * 2 + rr
    rho_of = lambda hf: (row >> 1) * 4 + hf * 2 + (row & 1)
    pm = ((h >> 3) + 8) * 1024 + (((h >> 1) & 3) * 16 + rho_of(pi & 1)) * 16 + ((h & 1) * 2 + ((pi >> 1) & 1)) * 4
    t0 = (pc - 4) * 2
    px = (h >> 1) * 1024 + (((h & 1) * 2 + ((t0 >> 3) & 1)) * 16 + rho_of((t0 >> 1) & 1)) * 16 + (((t0 >> 2) & 1) * 2 + ((t0 >> 4) & 1)) * 4
    e[aP] = sel_lt(pi, 4, pm, sel_lt(pi, 20, px, OOB))
    return e

def check_a_exprs():
    e = a_exprs(); l = np.arange(64)
    for h in (0, 1, 7, 8, 15):
        for w in range(4):
            env = {'v0': l, sW: w, sR: h}
            p = ev(e[aP], env)
            for ln in range(64):
                pi = ln & 31
                assert p[ln] == (ps_off(h, 2 * w + (ln >> 5), pi) if pi < 20 else OOB)
check_a_exprs()

def gen_A(A, cfg, lab, tmo):
    w = Wv(A, cfg)
    em = Emitter(A, [f'v{i}' for i in range(2, 30)])
    a_consts(em, A)
    for k, x in a_exprs().items(): em.emit(x, k)
    l = V('v0')
    em.emit(HU1 + (l & 15) * 4, vHUp)
    em.emit(sel_lt(l + Sg(sW) * 64, 1, HU2 + Sg(sR) * 4, OOB), vHUs)
    A(f's_mov_b32 s52, 0xfffff\ns_mov_b32 s53, 0xfffff')
    A(f's_lshr_b32 s11, {sW}, 1')
    A(f's_mul_i32 s34, s11, 7\ns_and_b32 s35, {sW}, 1\ns_lshl_b32 s36, s35, 2\ns_add_u32 s36, s36, s34')
    for u in range(3): A(f's_add_u32 s37, s36, {u}\ns_lshl_b32 {sQ[u]}, s37, 10')
    A(f's_add_u32 s37, s34, 3\ns_lshl_b32 {sQ[3]}, s37, 10')
    A(f's_lshl_b32 {sWL}, {sW}, 13')
    A(f's_mul_i32 s38, {sR}, {28*14336}\ns_add_u32 s38, s38, {AF}')
    A(f's_mul_i32 s39, s35, 14336')
    def addr(tl, t, b):
        pre = f's_mul_i32 s11, {sQ[tl>>1]}, 28\ns_add_u32 s11, s11, s38\n'
        pre += (f's_add_u32 s11, s11, {14336*(tl&1) + 1024*b}\n' if tl < 6 else f's_add_u32 s11, s11, s39\ns_add_u32 s11, s11, {1024*b}\n')
        pre += f's_lshl_b32 s37, {sKK[t]}, 1\ns_add_u32 s11, s11, s37'
        return vL16, pre
    sXo = ['s44', 's45', 's46', 's47']; sXm = ['s48', 's49', 's50', 's51']
    def x_consts():
        A(f's_add_u32 {sXo[0]}, {sXS}, {sQ[0]}\ns_add_u32 {sXo[1]}, {sXS}, {sQ[3]}')
        A(f's_add_u32 {sXo[2]}, {sXo[0]}, 14336\ns_add_u32 {sXo[3]}, {sXo[1]}, 14336')
        A(f's_mov_b32 {sXm[0]}, {sXL}\ns_add_u32 {sXm[1]}, {sXL}, 3072\ns_add_u32 {sXm[2]}, {sXL}, 4096\ns_add_u32 {sXm[3]}, {sXL}, 7168')
    def x_m0(tt, u):
        if u in (0, 3): A(f's_mov_b32 m0, {sXm[2*tt + (u == 3)]}')
    def x_dma(tt, u, w=w):
        w.vmem(f'buffer_load_dwordx4 {vL16}, {SRD}, {sXo[2*tt + (u == 3)]} offen offset:{1024*u if u < 3 else 0} lds', 'X')
    if cfg.get('pre_a'): cfg['pre_a']()
    A(f's_mov_b32 {sXS}, {XF}\ns_mov_b32 {sXL}, {sWL}')
    x_consts()
    for tt in range(2):
        for u in range(4): x_m0(tt, u); x_dma(tt, u)
    load_weights(w, addr)
    em.emit(A_T + Sg(sW) * 3072 + l * 16, 'v1')
    A('v_mov_b64 v[4:5], 0\nv_mov_b64 v[6:7], 0')
    for k in range(3): A(f'ds_write_b128 v1, v[4:7] offset:{k*1024}')
    zero(w, 28, 28); zero(w, SACC, 12)
    A(f's_mov_b32 {sSTEP}, 0\ns_mov_b32 {sSPIN}, {SPIN_MAX}\ns_mov_b32 {sRETRY}, 0')
    cfg['start_sync'](w, lab)
    A('s_waitcnt vmcnt(0) lgkmcnt(0)'); w.vm = []; w.lg = []
    def loop(lab, st):
        w = Wv(A, cfg)
        A(f'{lab}_loop:')
        cfg['loop_top'](w, lab)
        a_step_consts(A, cfg.get('solo'))
        A(f's_lshl_b32 s33, s11, 14\ns_add_u32 {sPW}, s33, {PS}\ns_xor_b32 {sPR}, {sPW}, 0x8000')
        A(f's_mul_i32 {sXS}, {sS1}, {0 if cfg.get("xsame") else 28672}' + (f'\ns_add_u32 {sXS}, {sXS}, {XF}' if XF else ''))
        A(f's_and_b32 s11, {sS1}, 1\ns_lshl_b32 s11, s11, 15\ns_add_u32 {sXL}, s11, {sWL}')
        x_consts()
        A(f'v_mov_b32 v{TMP+3}, {sS1}')
        for r in range(MREGA[0], MREGA[0] + 4 * cfg.get('ne', 2), 2): A(f'v_mov_b64 {vr(r,2)}, -1')
        w.stamp()
        gate = cfg.get('gate', 'w0')
        if gate == 'w0':
            A(f's_cmp_lg_u32 {sW}, 0\ns_cbranch_scc1 {lab}_nopoll')
            if not cfg.get('solo'): poll(w, f'{lab}_poll1', aPOLL, sSTEP, tmo, 16)
            A(f'{lab}_nopoll:\ns_barrier')
        elif gate == 'all':
            poll(w, f'{lab}_poll1', aPOLL, sSTEP, tmo, 16)
        w.stamp()
        for _ in range(cfg.get('adelay', 0)): A('s_nop 15')
        xpos = cfg.get('xpos', [14, 19, 24, 29, 34, 39, 44, 50])
        def xat(p):
            for k in range(8):
                if xpos[k] == p: x_m0(k >> 2, k & 3); x_dma(k >> 2, k & 3, w)
        def fill(f0, k0):
            d = {}; dv = {}
            add = lambda n, f: d.setdefault(n, []).append(f)
            def kq(n, reg, areg, off, tag, ns):
                if cfg.get('kr2'):
                    r2 = areg if off < 1024 else aKR2
                    o = (off & 1023) // 4
                    add(n, lambda: w.ds(f'ds_read2_b32 {vr(reg,2)}, {r2} offset0:{o} offset1:{o+8}', tag))
                    add(n, lambda: w.ds(f'ds_read2_b32 {vr(reg+2,2)}, {r2} offset0:{o+1} offset1:{o+9}', tag))
                    return
                add(n, lambda: w.ds(f'ds_read_b64 {vr(reg,2)}, {areg} offset:{off}', tag))
                add(n, lambda: w.ds(f'ds_read_b64 {vr(reg+2,2)}, {areg} offset:{off+32}', tag))
                add(ns, lambda: w.wait(lg=tag))
                dv.setdefault(ns, []).append(lambda: w(f'v_swap_b32 v{reg+1}, v{reg+2}'))
            n = f0
            for tt in range(2):
                for uu in range(2):
                    add(n, lambda tt=tt, uu=uu: w.ds(f'ds_read_b128 {vr(Z0+8*(1+tt)+4*uu,4)}, {aXR} offset:{(tt*4+uu)*1024}', 'Z0')); n += 1
            for k in range(8):
                if xpos[k] < 49:
                    add(xpos[k] - 1, lambda k=k: x_m0(k >> 2, k & 3))
                    add(xpos[k], lambda k=k: x_dma(k >> 2, k & 3, w))
            ks = cfg.get('kswap', [36, 39, 42, 45])
            kq(k0, Z0, aKR, 0, 'K0', ks[0]); kq(k0 + 1, Z0 + 4, aKR, 512, 'K1', ks[1])
            kq(k0 + 3, Z1, aKR, 1024, 'K2', ks[2]); kq(k0 + 4, Z1 + 4, aKR3, 0, 'K3', ks[3])
            for k, sl in enumerate((36, 37, 39, 40)):
                tt, uu = k >> 1, k & 1
                add(sl, lambda tt=tt, uu=uu: w.ds(f'ds_read_b128 {vr(Z1+8*(1+tt)+4*uu,4)}, {aXR} offset:{(tt*4+2+uu)*1024}', 'Z1'))
            add(45, lambda: w.ds(f'ds_read_b64_tr_b16 {vr(TSP0,2)}, {aTR}', 'TS0'))
            add(46, lambda: w.ds(f'ds_read_b64_tr_b16 {vr(TSP0+2,2)}, {aTR} offset:192', 'TS0'))
            return d, dv
        def tw(tl, reg):
            if tl < 6: w.ds(f'ds_write_b32 {aTW}, {reg} offset:{(tl>>1)*768 + (tl&1)*64}')
            else: w.ds(f'ds_write_b32 {aTW6}, {reg}')
        rest = a_stream(w, fill, tw, lab, TMP, tmo)
        w.stamp()
        w.wait(lg='TS0')
        w(smf(SACC, vr(TSP0, 4), vr(Z0, 8), vIDX))
        rest[0]()
        w(smf(SACC + 4, vr(TSP0, 4), vr(Z0 + 8, 8), vIDX))
        rest[1]()
        w(f'v_add_f32 v{TMP}, v{ACC[6]}, v{ACC[6]+2}\nv_add_f32 v{TMP+1}, v{ACC[6]+1}, v{ACC[6]+3}')
        w(f'v_cvt_pk_bf16_f32 v{TMP+2}, v{TMP}, v{TMP+1}')
        tw(6, f'v{TMP+2}')
        w.ds(f'ds_read_b64_tr_b16 {vr(TSP1,2)}, {aTR} offset:1536', 'TS1')
        w.ds(f'ds_read_b64_tr_b16 {vr(TSP1+2,2)}, {aTR} offset:{1536+192}', 'TS1')
        w(smf(SACC + 8, vr(TSP0, 4), vr(Z0 + 16, 8), vIDX))
        xat(50)
        w.wait(lg='TS1')
        for kt in range(3): w(smf(SACC + 4 * kt, vr(TSP1, 4), vr(Z1 + 8 * kt, 8), vIDX))
        for kt in range(3):
            w(f'v_add_f32 v{56+2*kt}, v{SACC+4*kt}, v{SACC+4*kt+2}\nv_add_f32 v{57+2*kt}, v{SACC+4*kt+1}, v{SACC+4*kt+3}')
            w.ds(f'ds_write2_b32 {aRW}, v{56+2*kt}, v{57+2*kt} offset0:{16*kt} offset1:{16*kt+48}')
        hu2 = lambda: w.vmem(f'buffer_store_dword v{TMP+3}, {vHUs}, {SRD}, 0 offen {st}')
        hp = cfg.get('hu2pos', 0)
        w.stamp()
        if hp == -1: hu2()
        xat(51)
        w.wait_all_lg()
        A('s_barrier')
        for k in range(4): w.ds(f'ds_read_b64 {vr(64+2*k,2)}, {aRR} offset:{k*1536}', f'R{k}')
        if hp == 0: hu2()
        xat(52)
        w.stamp()
        w.wait(lg='R1'); w('v_pk_add_f32 v[64:65], v[64:65], v[66:67]')
        w.wait(lg='R3'); w('v_pk_add_f32 v[68:69], v[68:69], v[70:71]')
        w('v_pk_add_f32 v[64:65], v[64:65], v[68:69]')
        if hp == 1: hu2()
        w('v_max_f32 v66, v64, v65')
        for k, r in enumerate((8, 4, 2, 1)):
            if hp == 2 + k: hu2()
            xat(53 + k)
            w(f'v_max_f32_dpp v66, v66, v66 row_ror:{r} row_mask:0xf bank_mask:0xf')
        w('v_mov_b32 v67, v66')
        w('v_permlane16_swap_b32 v66, v67')
        w('v_max_f32 v66, v66, v67')
        w('v_pk_add_f32 v[64:65], v[64:65], v[66:67] op_sel_hi:[1,0] neg_lo:[0,1] neg_hi:[0,1]')
        w('v_exp_f32 v64, v64\nv_exp_f32 v65, v65')
        if hp == 6: hu2()
        w('v_add_f32 v66, v64, v65')
        w(f'v_cndmask_b32 v66, 0, v66, {sMASK}')
        for k, r in enumerate((8, 4, 2, 1)):
            if hp == 7 + k: hu2()
            xat(57 + k)
            w(f'v_add_f32_dpp v66, v66, v66 row_ror:{r} row_mask:0xf bank_mask:0xf')
        w('v_mov_b32 v67, v66\nv_permlane16_swap_b32 v66, v67\nv_add_f32 v66, v66, v67')
        w('v_rcp_f32 v66, v66')
        if hp == 11: hu2()
        w('v_pk_mul_f32 v[64:65], v[64:65], v[66:67] op_sel_hi:[1,0]')
        w('v_cvt_pk_bf16_f32 v64, v64, v65')
        w('v_min_u32 v64, -2, v64')
        w.vmem(f'buffer_store_dword v64, {aP}, {SRD}, {sPW} offen {st}')
        if hp == 99: hu2()
        w.stamp()
        if cfg.get('ack'): w.wait_all_vm(); w.stamp()
        w('v_mov_b32 v65, -1')
        w.vmem(f'buffer_store_dword v65, {aP}, {SRD}, {sPR} offen {st}')
        xat(99)
        zero(w, 28, 28); zero(w, SACC, 12)
        w(f'v_xor_b32 {aXR}, 0x8000, {aXR}')
        w.dump_stamps(lab)
        A(f's_mov_b32 {sSPIN}, {SPIN_MAX}')
        A(f's_mov_b32 {sSTEP}, {sS1}\ns_cmp_lt_u32 {sSTEP}, {NSEG-1}\ns_cbranch_scc1 {lab}_loop')
        cfg['finish'](w, lab)
        A('s_endpgm')
        l_retry(w, lab, TMP, tmo)

    emit_modes(A, cfg, lab, loop)

B_VX, B_V = 0, 65536
bVW, bWR, bVR, bMS, bSEL = 'v108', 'v107', 'v106', 'v105', 'v104'
bMX, bFL, bVL, bPOLL = 'v107', 'v106', 'v105', 'v104'
bTO, bINC, bFLAG = 'v99', 'v98', 'v97'
bDM = [f'v{89+k}' for k in range(7)]
BT = 100
FACC = 96
sVS, sVL, sMW, sMR, sMXO = 's25', 's26', 's27', 's28', 's29'

def bcol(j, c):
    return sel_lt(c, 16, j * 16 + c, j * 12 + c + 240)

def b_exprs_final():
    l = V('v0'); w = Sg(sW); j = Sg(sR)
    g = l >> 4; n = l & 15; c = w * 16 + n
    e = {}
    e[bWR] = B_VX + (g * 28 + c.min(27)) * 16
    e[bVR] = B_V + (g * 28 + c.min(27)) * 16
    i = g * 2 + (n & 1); d0 = bcol(j, c & 30)
    k = d0 & 63
    off = (d0 >> 6) * 1024 + ((k >> 4) * 16 + (i >> 1) * 4 + ((k >> 1) & 1) * 2 + (i & 1)) * 16 + ((k >> 2) & 3) * 4
    e[bMS] = sel_lt(c, 28, off, OOB)
    e[bSEL] = sel_lt(n & 1, 1, 0x05040100, 0x03020706)
    return e
def check_b():
    e = b_exprs_final(); l = np.arange(64)
    for j in (0, 1, 5, 15):
        for w in range(2):
            p = ev(e[bMS], {'v0': l, sW: w, sR: j})
            for ln in range(64):
                c = 16 * w + (ln & 15)
                assert p[ln] == (ms_off(2 * (ln >> 4) + (ln & 1), (16 * j if c < 16 else 12 * j + 240) + (c & ~1)) if c < 28 else OOB)
check_b()

def gen_B(A, cfg, lab, tmo):
    w = Wv(A, cfg)
    em = Emitter(A, [f'v{i}' for i in list(range(2, 20)) + list(range(28, 56))])
    A(f's_add_u32 s39, {sR}, 1')
    common_consts(em, A, lab, 's39')
    l = V('v0'); ww = Sg(sW); j = Sg(sR)
    em.emit(B_V + (ww * 112 + (l & 15)) * 16 + (l >> 4) * 4, bVW)
    for tl in range(7):
        f = ww * 112 + tl * 16 + (l & 15); hh = f.div(28)
        em.emit((hh * 56 + (l >> 4)) * 7168 + bcol(j, f - hh * 28) * 16, f'v{20+tl}')
    def addr(tl, t, b):
        return f'v{20+tl}', f's_mul_i32 s11, {sKK[t]}, 56\ns_add_u32 s11, s11, {BF + 28672*b}'
    def vw(tl, reg): w.ds(f'ds_write_b32 {bVW}, {reg} offset:{tl*256}')
    def tail6(rest):
        for f in rest: f()
        w(f'v_add_f32 v{BT}, v{ACC[6]}, v{ACC[6]+2}\nv_add_f32 v{BT+1}, v{ACC[6]+1}, v{ACC[6]+3}')
        w(f'v_cvt_pk_bf16_f32 v{BT+2}, v{BT}, v{BT+1}')
        vw(6, f'v{BT+2}')
    if cfg.get('pre_b'): cfg['pre_b']()
    A(f's_cmp_ge_u32 {sW}, 2\ns_cbranch_scc1 {lab}_loader')
    for k, x in b_exprs_final().items(): em.emit(x, k)
    em.emit(sel_lt(l, 1, HU1 + 128 + (j * 2 + ww) * 4, OOB), vHUs)
    load_weights(w, addr)
    zero(w, 28, 28)
    A(f's_mov_b32 {sSTEP}, 0\ns_mov_b32 {sSPIN}, {SPIN_MAX}\ns_mov_b32 {sRETRY}, 0')
    cfg['start_sync'](w, lab + 'f')
    A('s_waitcnt vmcnt(0) lgkmcnt(0)')
    def loopf(lf, st, second):
        nonlocal w
        w = Wv(A, cfg)
        PREG = [4 * m for m in range(10)]
        order = cfg.get('porder', [0, 1, 2, 3, 4, 8, 9, 5, 6, 7])
        WREG = {0: 56, 1: 64, 2: 72, 3: 80, 4: 88, 8: 40, 9: 48, 5: 56, 6: 64, 7: 72}
        sPO = ['s22', 's23', 's24']
        def wx(m, b): w.ds(f'ds_read_b128 {vr(WREG[m]+4*b,4)}, {bWR} offset:{(2*m+b)*1792}', f'W{m}')
        A(f'{lf}_loop:')
        step_consts(A)
        A(f's_lshl_b32 s11, s11, 14\ns_add_u32 s22, s11, {PS}\ns_add_u32 s23, s22, 4096\ns_add_u32 s24, s22, 8192')
        A(f's_and_b32 s11, {sS1}, 3\ns_lshl_b32 s11, s11, 13\ns_add_u32 {sMW}, s11, {MS}\ns_xor_b32 {sMR}, {sMW}, 0x4000')
        A(f'v_mov_b32 v{BT+3}, {sS1}\nv_mov_b64 {vr(FACC,2)}, 0\nv_mov_b64 {vr(FACC+2,2)}, 0')
        if cfg.get('bpoll'):
            for r in range(MREG[0], MREG[0] + 8, 2): A(f'v_mov_b64 {vr(r,2)}, -1')
        w.stamp()
        A('s_barrier')
        w.stamp()
        def fillf(f0):
            d = {}
            for m in range(5):
                for b in range(2): d.setdefault(f0 + 2 * m + b, []).append(lambda m=m, b=b: wx(m, b))
            return d, {}
        tail6(weight_stream(w, fillf, vw, lf, BT, tmo, cfg.get('bpoll')))
        w.stamp()
        w.wait_all_lg()
        A('s_barrier')
        A(f's_cmp_eq_u32 {sSTEP}, {NSEG-1}\ns_cbranch_scc1 {lf}_done')
        for u in range(4): w.ds(f'ds_read_b128 {vr(40+4*u,4)}, {bVR} offset:{u*1792}', f'W{8+(u>>1)}')
        w.stamp()
        A('s_barrier')
        if second: A('s_barrier')
        w.stamp()
        def ploads():
            for k, m in enumerate(order):
                w.vmem(f'buffer_load_dwordx4 {vr(PREG[k],4)}, {vL16}, {SRD}, {sPO[m>>2]} offen offset:{(m&3)*1024} sc1', f'P{k}')
        ploads()
        if not second: A('s_barrier')
        A(f'{lf}_pchain:')
        for k, m in enumerate(order):
            w.wait(vm=f'P{k}', lg=f'W{m}')
            if k == 0: w.stamp()
            w(smf(FACC, vr(PREG[k], 4), vr(WREG[m], 8), vIDX))
            if k < 3: wx(5 + k, 0); wx(5 + k, 1)
        w(f'v_add_f32 v{BT}, v{FACC}, v{FACC+2}\nv_add_f32 v{BT+1}, v{FACC+1}, v{FACC+3}')
        w(f'v_cmp_u_f32 vcc, v{BT}, v{BT+1}')
        w(f'v_cvt_pk_bf16_f32 v{BT}, v{BT}, v{BT+1}')
        w(f'v_mov_b32_dpp v{BT+1}, v{BT} quad_perm:[1,0,3,2] row_mask:0xf bank_mask:0xf')
        w(f'v_perm_b32 v{BT}, v{BT+1}, v{BT}, {bSEL}')
        w(f'v_min_u32 v{BT}, -2, v{BT}')
        w(f's_cbranch_vccnz {lf}_pretry\n{lf}_pok:')
        w.vmem(f'buffer_store_dword v{BT}, {bMS}, {SRD}, {sMW} offen {st}')
        if cfg.get('lastmx', 1):
            A(f's_cmp_eq_u32 {sSTEP}, {NSEG-2}\ns_cbranch_scc1 {lf}_last')
        w.stamp()
        if cfg.get('ack'): w.wait_all_vm(); w.stamp()
        w(f'v_mov_b32 v{BT+1}, -1')
        w.vmem(f'buffer_store_dword v{BT+1}, {bMS}, {SRD}, {sMR} offen {st}')
        w.vmem(f'buffer_store_dword v{BT+3}, {vHUs}, {SRD}, 0 offen {st}')
        zero(w, 28, 28)
        w(f'v_xor_b32 {bWR}, 0x8000, {bWR}')
        w.dump_stamps(lf)
        A(f's_mov_b32 {sSPIN}, {SPIN_MAX}\ns_mov_b32 {sSTEP}, {sS1}\ns_branch {lf}_loop')
        if cfg.get('lastmx', 1):
            A(f'{lf}_last:\ns_mov_b32 s11, {MX + (NSEG-1)*7168}\nbuffer_store_dword v{BT}, {bMS}, {SRD}, s11 offen sc1')
        A(f'{lf}_done:')
        cfg['finish'](w, lf)
        A('s_endpgm')
        m_retry(w, lf, tmo)
        A(f'{lf}_pretry:\ns_waitcnt vmcnt(0) lgkmcnt(0)')
        sentinel_check(w, list(range(0, 40)), f'v{BT+2}')
        A(f's_cbranch_vccz {lf}_pok')
        A(f's_add_u32 {sRETRY}, {sRETRY}, 0x10000\ns_sub_u32 {sSPIN}, {sSPIN}, 8\ns_cbranch_scc1 {tmo}')
        for m in range(3): wx(m, 0); wx(m, 1)
        A(f'v_mov_b64 {vr(FACC,2)}, 0\nv_mov_b64 {vr(FACC+2,2)}, 0\ns_waitcnt lgkmcnt(0)')
        ploads()
        A(f's_branch {lf}_pchain')
    A(f's_cmp_eq_u32 {sW}, 1\ns_cbranch_scc1 {lab}_second')
    emit_modes(A, cfg, lab + 'f', lambda lf, st: loopf(lf, st, False))
    A(f'{lab}_second:')
    emit_modes(A, cfg, lab + 'g', lambda lf, st: loopf(lf, st, True))
    ll = lab + 'l'
    A(f'{lab}_loader:')
    w = Wv(A, cfg)
    for r in range(7):
        f = l + 64 * r; hg = f.div(28)
        em.emit(hg * 7168 + bcol(j, f - hg * 28) * 16 + (4096 - (r & 3) * 1024), bDM[r])
    em.emit(sel_lt(ww, 3, HU1 + 128 + (l & 31) * 4, HU2 + (l & 15) * 4), vHUp)
    em.emit(sel_lt(l + (3 - ww) * 64, 1, HU1 + j * 4, OOB), vHUs)
    em.emit(sel_lt(j + (3 - ww) * 16, 7, j * 1024 + l * 16, OOB), bMX)
    xl = (j * 2 + ww - 2) * 7 + l
    em.emit(sel_lt(l, 7, XF + 2 * 28672 + xl * 128, sel_lt(l, 63, OOB, FVX + 2 * 128)), bTO)
    em.emit(sel_lt(l, 63, 28672, 128), bINC)
    A(f'v_mov_b32 {bFLAG}, 16')
    A(f's_sub_u32 s11, {sW}, 2\ns_mul_i32 s23, s11, 14336\ns_mul_i32 s24, s11, {VX_SEG//2}\ns_add_u32 s24, s24, {VXF - 4096}')
    def vx_m0(k):
        if k % 7 in (0, 4): w(f's_add_u32 m0, {sVL}, {k*1024}')
    def vx_dma(k):
        w.vmem(f'buffer_load_dwordx4 {bDM[k%7]}, {SRD}, {sVS if k < 7 else "s44"} offen offset:{((k%7)&3)*1024} lds', 'D')
    load_weights(w, addr)
    zero(w, 28, 28)
    A(f's_mov_b32 {sSTEP}, 0\ns_mov_b32 {sSPIN}, {SPIN_MAX}\ns_mov_b32 {sRETRY}, 0')
    cfg['start_sync'](w, ll)
    A(f's_mov_b32 {sVS}, s24\ns_add_u32 s44, {sVS}, {16*7168}\ns_mov_b32 {sVL}, s23')
    for k in range(14): vx_m0(k); vx_dma(k)
    def loopl(ll, st):
        nonlocal w
        w = Wv(A, cfg)
        A(f'{ll}_loop:')
        step_consts(A)
        A(f's_min_u32 s11, {sS1}, {0 if cfg.get("vxsame") else NSEG-1}\ns_mul_i32 {sVS}, s11, {VX_SEG}\ns_add_u32 {sVS}, {sVS}, s24\ns_add_u32 s44, {sVS}, {16*7168}')
        A(f's_and_b32 s11, {sS1}, 1\ns_lshl_b32 s11, s11, 15\ns_add_u32 {sVL}, s11, s23')
        A(f's_mul_i32 {sMXO}, {sSTEP}, 7168\ns_add_u32 {sMXO}, {sMXO}, {MX}')
        if cfg.get('bpoll'):
            for r in range(MREG[0], MREG[0] + 8, 2): A(f'v_mov_b64 {vr(r,2)}, -1')
        A('s_waitcnt vmcnt(0)')
        A(f's_cmp_ge_u32 {sSTEP}, {NSEG-1}\ns_cbranch_scc1 {ll}_fok')
        A(f'{ll}_fchk:\nv_readlane_b32 s11, {bFLAG}, 63\ns_nop 0\ns_cmp_ge_u32 s11, 16\ns_cbranch_scc1 {ll}_fok')
        A(f's_lshl_b32 s11, {sS1}, 7\ns_add_u32 s11, s11, {FVX}')
        A(f'buffer_load_dword {bFLAG}, off, {SRD}, s11 sc1')
        A(f's_sub_u32 {sSPIN}, {sSPIN}, 1\ns_cbranch_scc1 {tmo}\ns_waitcnt vmcnt(0)\ns_branch {ll}_fchk\n{ll}_fok:')
        w.stamp()
        A(f's_cmp_lg_u32 {sW}, 2\ns_cbranch_scc1 {ll}_nopoll')
        poll(w, f'{ll}_poll1', bPOLL, sSTEP, tmo, 32)
        A(f'{ll}_nopoll:\ns_barrier')
        w.stamp()
        d0 = cfg.get('dslot', 2); dstep = cfg.get('dstep', 2)
        def filll(f0):
            d = {}
            add = lambda n, f: d.setdefault(n, []).append(f)
            for k in range(14):
                add(d0 + dstep * k - 1, lambda k=k: vx_m0(k))
                add(d0 + dstep * k, lambda k=k: vx_dma(k))
            add(d0 + dstep * 14, lambda: w.vmem(f'buffer_load_dword {bFLAG}, {bTO}, {SRD}, 0 offen sc1', 'D'))
            if not cfg.get('nomx'):
                add(max(f0 - 4, cfg.get('vslot', 0)), lambda: w.vmem(f'buffer_store_dwordx4 {vr(MREG[0],4)}, {bMX}, {SRD}, {sMXO} offen {cfg.get("mxfl", "sc1")}'))
            return d, {}
        tail6(weight_stream(w, filll, vw, ll, BT, tmo, cfg.get('bpoll')))
        w.stamp()
        w.wait_all_lg()
        A('s_barrier')
        A(f's_cmp_eq_u32 {sSTEP}, {NSEG-1}\ns_cbranch_scc1 {ll}_done')
        zero(w, 28, 28)
        A(f'v_mov_b32 v{BT+3}, {sS1}')
        if not cfg.get('xsame'): A(f'v_add_u32 {bTO}, {bTO}, {bINC}')
        w.stamp()
        if cfg.get('drain'):
            w.wait(vm='D'); w.stamp(); w.wait_all_vm(); w.stamp()
        A(f's_cmp_lg_u32 {sW}, 3\ns_cbranch_scc1 {ll}_nopoll2')
        poll(w, f'{ll}_poll2', bPOLL, sS1, tmo, 16)
        A(f'{ll}_nopoll2:\ns_barrier')
        hu1 = f'buffer_store_dword v{BT+3}, {vHUs}, {SRD}, 0 offen {st}'
        if cfg.get('hu1pos', 0) == 0: A(hu1)
        A('s_barrier')
        if cfg.get('hu1pos', 0) == 1: A(hu1)
        if cfg.get('lastmx', 1): A(f's_cmp_eq_u32 {sSTEP}, {NSEG-2}\ns_cbranch_scc1 {ll}_done')
        w.dump_stamps(ll)
        A(f's_mov_b32 {sSPIN}, {SPIN_MAX}\ns_mov_b32 {sSTEP}, {sS1}\ns_branch {ll}_loop\n{ll}_done:')
        cfg['finish'](w, ll)
        A('s_endpgm')
        m_retry(w, ll, tmo)
    emit_modes(A, cfg, ll, loopl)
```

```python
from asmdsl import Asm
from layout import *
import rec, workers, prep, build

BEST = dict(xpos=[11, 15, 20, 25, 99, 99, 99, 99], hu2pos=7, ew=64, ebar=6, gate='w0')

def counts(A, lab, tmo, sd='s[48:51]'):
    A(f's_mov_b32 s19, 0x40000\n{lab}:')
    A(f'buffer_load_dword v3, v4, {sd}, 0 offen sc1')
    A(f's_sub_u32 s19, s19, 1\ns_cbranch_scc1 {tmo}\ns_waitcnt vmcnt(0)')
    A('v_readlane_b32 s47, v3, 0\ns_mov_b32 s46, s47')
    for x in range(1, 8): A(f'v_readlane_b32 s11, v3, {x}\ns_add_u32 s46, s46, s11')

def gen_main(A, cfg):
    workers.BACK[0] = f's_sleep {cfg["back"]}\n' if cfg.get('back') else ''
    A(f"""s_cmp_ge_u32 s2, 256
    s_cbranch_scc1 M_exit0
    s_load_dwordx4 s[28:31], s[0:1], 0
    s_load_dwordx8 s[36:43], s[0:1], 16
    s_load_dwordx2 s[4:5], s[0:1], 112
    s_load_dwordx2 s[48:49], s[0:1], 104
    s_getreg_b32 s54, hwreg(HW_REG_XCC_ID, 0, 3)
    v_lshrrev_b32 v1, 6, v0
    v_readfirstlane_b32 s9, v1
    v_and_b32 v0, 63, v0
    s_waitcnt lgkmcnt(0)
    s_mov_b32 s6, {WS_BYTES}
    s_mov_b32 s7, 0x20000
    s_mov_b32 s50, 256
    s_mov_b32 s51, 0x20000""")
    if cfg.get('fakexcc'): A(cfg['fakexcc'])
    if cfg.get('ds'):
        A('s_mov_b32 s3, s2'); rec.dstamp(A, cfg, 9, 0, 3)
    A("""s_mov_b32 s12, s54
    v_mov_b32 v2, 0x27c00
    s_cmp_lg_u32 s9, 0
    s_cbranch_scc1 M_ranked
    v_mov_b32 v3, 1
    s_lshl_b32 s11, s12, 5
    s_mov_b64 exec, 1
    buffer_atomic_add v3, off, s[48:51], s11 sc0 sc1
    s_waitcnt vmcnt(0)
    s_mov_b64 exec, -1
    v_readfirstlane_b32 s3, v3
    v_and_b32 v4, 7, v0
    v_lshlrev_b32 v4, 5, v4
    s_lshl_b32 s11, s12, 5
    s_cmp_lt_u32 s3, 32
    s_cselect_b32 s15, 0, 1
    s_add_u32 s3, s3, s11
    s_cmp_eq_u32 s15, 0
    s_cbranch_scc1 M_have""")
    A("""v_mov_b32 v3, 1
    s_mov_b64 exec, 1
    buffer_atomic_add v3, off, s[48:51], 0 offset:4 sc0 sc1
    s_waitcnt vmcnt(0)
    s_mov_b64 exec, -1
    v_readfirstlane_b32 s15, v3""")
    counts(A, 'M_ovf', 'M_exit0')
    A('s_cmp_lt_u32 s46, 256\ns_cbranch_scc1 M_ovf_again\ns_mov_b32 s3, 0')
    for x in range(8):
        A(f'v_readlane_b32 s11, v3, {x}\ns_min_u32 s11, s11, 32\ns_sub_u32 s16, 32, s11')
        A(f's_cmp_lt_u32 s15, s16\ns_cbranch_scc0 M_nx{x}\ns_add_u32 s3, s11, s15\ns_add_u32 s3, s3, {32*x}\ns_branch M_have\nM_nx{x}:\ns_sub_u32 s15, s15, s16')
    A('M_exit0:\ns_endpgm\nM_ovf_again:')
    A('s_branch M_ovf')
    A("""M_have:
    v_mov_b32 v3, s3
    ds_write_b32 v2, v3
    s_waitcnt lgkmcnt(0)
M_ranked:
    s_barrier
    ds_read_b32 v3, v2
    s_waitcnt lgkmcnt(0)
    v_readfirstlane_b32 s3, v3""")
    rec.tline(A, dict(cfg, tlreg=3), 0)
    rec.dstamp(A, cfg, 3, 0, 3)
    A('s_barrier\ns_cmp_lt_u32 s3, 32\ns_cbranch_scc1 M_rec\ns_sub_u32 s10, s3, 32')
    prep.gen_gemm(A, cfg, 'M_exit0')
    A("""s_sub_u32 s11, s3, 32
    s_and_b32 s10, s11, 63
    s_lshr_b32 s11, s11, 6
    s_cmp_eq_u32 s11, 2
    s_cbranch_scc1 M_F
    s_cmp_eq_u32 s11, 3
    s_cbranch_scc1 M_T
    s_and_b32 s12, s10, 3
    s_lshr_b32 s10, s10, 2
    s_cmp_eq_u32 s11, 1
    s_cbranch_scc1 M_Q""")
    workers.gen_V(A, cfg, 'WV', 'M_exit')
    A('M_Q:'); workers.gen_Q(A, cfg, 'WQ', 'M_exit')
    A('M_T:'); workers.gen_T(A, cfg, 'WT', 'M_exit')
    A('M_F:'); workers.gen_F(A, cfg, 'WF', 'M_exit')
    A('M_exit:\ns_endpgm')
    def mode(lab):
        A(f'v_mov_b32 v2, 0x27c00\ns_cmp_lg_u32 s9, 0\ns_cbranch_scc1 {lab}_ss')
        A('v_and_b32 v4, 7, v0\nv_lshlrev_b32 v4, 5, v4')
        counts(A, f'{lab}_cnt', 'R_exit')
        A(f's_mov_b32 s30, 0\ns_cmp_ge_u32 s47, 32\ns_cbranch_scc1 {lab}_md\ns_mov_b32 s30, 1\ns_cmp_ge_u32 s46, 256\ns_cbranch_scc1 {lab}_md')
        A(f's_branch {lab}_cnt\n{lab}_md:')
        A(f'v_mov_b32 v3, s30\nds_write_b32 v2, v3\ns_waitcnt lgkmcnt(0)\n{lab}_ss:\ns_barrier')
        A(f'ds_read_b32 v3, v2\ns_waitcnt lgkmcnt(0)\nv_readfirstlane_b32 s30, v3')
    def start_sync(w, lab):
        if cfg.get('tl'): A('s_waitcnt vmcnt(0)')
        rec.tline(A, dict(cfg, tlreg=3), 1)
        if lab.endswith('l'):
            A(f'v_min_u32 v4, 1, v0\nv_lshlrev_b32 v4, 7, v4\ns_mov_b32 s11, {FVX}\ns_mov_b32 s19, 0x40000')
            A(f'{lab}_fv:\nbuffer_load_dword v3, v4, s[4:7], s11 offen sc1\ns_sub_u32 s19, s19, 1\ns_cbranch_scc1 R_exit')
            A(f's_waitcnt vmcnt(0)\nv_cmp_gt_u32 vcc, 16, v3\ns_cbranch_vccnz {lab}_fv')
        elif cfg.get('warm', 1) and lab == 'RA':
            A(f's_lshl_b32 s11, s3, 2\ns_add_u32 s11, s11, s9\ns_lshl_b32 s11, s11, 11\ns_add_u32 s11, s11, {MS}\nv_lshlrev_b32 v4, 5, v0')
            A('buffer_load_dword v3, v4, s[4:7], s11 offen sc1')
        A(f's_mov_b32 s19, {rec.SPIN_MAX}')
        rec.tline(A, dict(cfg, tlreg=3), 2)
        rec.dstamp(A, cfg, 4, 0, 3); rec.dstamp(A, cfg, 5, 31, 3)
    c = dict(BEST); c.update(cfg)
    c.setdefault('start_sync', start_sync); c.setdefault('finish', lambda w, lab: (rec.tline(A, dict(cfg, tlreg=3, tlclk=1), 4), rec.dstamp(A, cfg, 6, 0, 3)))
    def loop_top(w, lab):
        if cfg.get('tl'):
            for k, st in ((3, 1), (5, 16), (6, 32)):
                A(f's_cmp_lg_u32 s8, {st}\ns_cbranch_scc1 {lab}_lt{k}'); rec.tline(A, dict(cfg, tlreg=3, tlclk=1), k); A(f'{lab}_lt{k}:')
    c.setdefault('loop_top', loop_top)
    A('M_rec:\ns_mov_b32 s10, s3')
    prep.gen_misc(A, cfg, 'R_exit')
    from expr import V, Sg, sel_lt
    l = V('v0')
    c['pre_a'] = lambda: rec.wait_lanes(A, 'RA_wa', sel_lt(l, 1, FA + Sg('s10') * 128, FX), sel_lt(l, 1, 14, 32), 'R_exit')
    c['pre_b'] = lambda: rec.wait_lanes(A, 'RB_wb', sel_lt(l, 16, FB + l * 128, FX), sel_lt(l, 16, 14, 32), 'R_exit')
    mode('RM')
    A('s_and_b32 s10, s3, 15\ns_cmp_ge_u32 s3, 16\ns_cbranch_scc1 M_B')
    rec.gen_A(A, c, 'RA', 'R_exit')
    A('R_exit:\ns_endpgm\nM_B:')
    rec.gen_B(A, c, 'RB', 'R_exit')

def generate(cfg={}, header=''):
    K = Asm(); gen_main(K, cfg)
    return build.assemble([(build.NAME + '_kernel', K.lines, 256, 256, 163840, 512, 256)], header)

if __name__ == '__main__':
    ref = open(f'cdna_kernels/{build.NAME}.s.ref').read().split('\n')
    header = '\n'.join(l for l in ref if l.startswith(';') and '@launch' not in l and 'Override' not in l and 'grid=ceil' not in l) + '\n'
    import sys, json
    if len(sys.argv) > 2: open(sys.argv[1], 'w').write(generate(json.loads(sys.argv[2]), header))
    else: open(f'cdna_kernels/{build.NAME}.s', 'w').write(generate({}, header))
```

```python
from asmdsl import Asm
from layout import *
import rec, workers, prep, build

BEST = dict(xpos=[11, 15, 20, 25, 99, 99, 99, 99], hu2pos=6, ew=64, ne=1, ebar=2, gate='none', dstep=1, dslot=1, bpoll=1, prot=0, tw2=1)

def counts(A, lab, tmo, sd='s[48:51]'):
    A(f's_mov_b32 s19, 0x40000\n{lab}:')
    A(f'buffer_load_dword v3, v4, {sd}, 0 offen sc1')
    A(f's_sub_u32 s19, s19, 1\ns_cbranch_scc1 {tmo}\ns_waitcnt vmcnt(0)')
    A('v_readlane_b32 s47, v3, 0\ns_mov_b32 s46, s47')
    for x in range(1, 8): A(f'v_readlane_b32 s11, v3, {x}\ns_add_u32 s46, s46, s11')

def gen_main(A, cfg):
    workers.BACK[0] = f's_sleep {cfg["back"]}\n' if cfg.get('back') else ''
    A(f"""s_cmp_ge_u32 s2, 256
    s_cbranch_scc1 M_exit0
    s_load_dwordx4 s[28:31], s[0:1], 0
    s_load_dwordx8 s[36:43], s[0:1], 16
    s_load_dwordx2 s[4:5], s[0:1], 112
    s_load_dwordx2 s[48:49], s[0:1], 104
    s_getreg_b32 s54, hwreg(HW_REG_XCC_ID, 0, 3)
    v_lshrrev_b32 v1, 6, v0
    v_readfirstlane_b32 s9, v1
    v_and_b32 v0, 63, v0
    s_waitcnt lgkmcnt(0)
    s_mov_b32 s6, {WS_BYTES}
    s_mov_b32 s7, 0x20000
    s_mov_b32 s50, 256
    s_mov_b32 s51, 0x20000""")
    if cfg.get('fakexcc'): A(cfg['fakexcc'])
    if cfg.get('ds'):
        A('s_mov_b32 s3, s2'); rec.dstamp(A, cfg, 9, 0, 3)
    A("""s_mov_b32 s12, s54
    v_mov_b32 v2, 0x27c00
    s_cmp_lg_u32 s9, 0
    s_cbranch_scc1 M_noat
    v_mov_b32 v3, 1
    s_lshl_b32 s11, s12, 5
    s_mov_b64 exec, 1
    buffer_atomic_add v3, off, s[48:51], s11 sc0 sc1
    s_mov_b64 exec, -1
M_noat:""")
    nt = 0
    if cfg.get('pretouch', 1):
        A(f's_lshl_b32 s11, s2, 2\ns_add_u32 s11, s11, s9\ns_mul_i32 s11, s11, 3584\nv_lshlrev_b32 v5, 7, v0\nv_mov_b32 v6, {OOB}')
        A('v_cmp_gt_u32 vcc, 28, v0\nv_cndmask_b32 v5, v6, v5, vcc')
        for k, p in enumerate(cfg.get('order', (40, 42))):
            prep.srd(A, 20, p, prep.W_BYTES)
            A(f'buffer_load_dword v{252+k}, v5, s[20:23], s11 offen'); nt += 1
    A(f"""s_cmp_lg_u32 s9, 0
    s_cbranch_scc1 M_ranked
    s_waitcnt vmcnt({nt})
    v_readfirstlane_b32 s3, v3
    v_and_b32 v4, 7, v0
    v_lshlrev_b32 v4, 5, v4
    s_lshl_b32 s11, s12, 5
    s_cmp_lt_u32 s3, 32
    s_cselect_b32 s15, 0, 1
    s_add_u32 s3, s3, s11
    s_cmp_eq_u32 s15, 0
    s_cbranch_scc1 M_have""")
    A("""v_mov_b32 v3, 1
    s_mov_b64 exec, 1
    buffer_atomic_add v3, off, s[48:51], 0 offset:4 sc0 sc1
    s_waitcnt vmcnt(0)
    s_mov_b64 exec, -1
    v_readfirstlane_b32 s15, v3""")
    counts(A, 'M_ovf', 'M_exit0')
    A('s_cmp_lt_u32 s46, 256\ns_cbranch_scc1 M_ovf_again\ns_mov_b32 s3, 0')
    for x in range(8):
        A(f'v_readlane_b32 s11, v3, {x}\ns_min_u32 s11, s11, 32\ns_sub_u32 s16, 32, s11')
        A(f's_cmp_lt_u32 s15, s16\ns_cbranch_scc0 M_nx{x}\ns_add_u32 s3, s11, s15\ns_add_u32 s3, s3, {32*x}\ns_branch M_have\nM_nx{x}:\ns_sub_u32 s15, s15, s16')
    A('M_exit0:\ns_endpgm\nM_ovf_again:')
    A('s_branch M_ovf')
    A("""M_have:
    v_mov_b32 v3, s3
    ds_write_b32 v2, v3
    s_waitcnt lgkmcnt(0)
M_ranked:
    s_barrier
    ds_read_b32 v3, v2
    s_waitcnt lgkmcnt(0)
    v_readfirstlane_b32 s3, v3""")
    rec.tline(A, dict(cfg, tlreg=3), 0)
    rec.dstamp(A, cfg, 3, 0, 3)
    A('s_barrier\ns_cmp_lt_u32 s3, 32\ns_cbranch_scc1 M_rec\ns_sub_u32 s10, s3, 32')
    prep.gen_gemm(A, cfg, 'M_exit0')
    A("""s_sub_u32 s11, s3, 32
    s_and_b32 s10, s11, 63
    s_lshr_b32 s11, s11, 6
    s_cmp_eq_u32 s11, 2
    s_cbranch_scc1 M_F
    s_cmp_eq_u32 s11, 3
    s_cbranch_scc1 M_T
    s_and_b32 s12, s10, 3
    s_lshr_b32 s10, s10, 2
    s_cmp_eq_u32 s11, 1
    s_cbranch_scc1 M_Q""")
    workers.gen_V(A, cfg, 'WV', 'M_exit')
    A('M_Q:'); workers.gen_Q(A, cfg, 'WQ', 'M_exit')
    A('M_T:'); workers.gen_T(A, cfg, 'WT', 'M_exit')
    A('M_F:'); workers.gen_F(A, cfg, 'WF', 'M_exit')
    A('M_exit:\ns_endpgm')
    def mode(lab):
        A(f'v_mov_b32 v2, 0x27c00\ns_cmp_lg_u32 s9, 0\ns_cbranch_scc1 {lab}_ss')
        A('v_and_b32 v4, 7, v0\nv_lshlrev_b32 v4, 5, v4')
        counts(A, f'{lab}_cnt', 'R_exit')
        A(f's_mov_b32 s30, 0\ns_cmp_ge_u32 s47, 32\ns_cbranch_scc1 {lab}_md\ns_mov_b32 s30, 1\ns_cmp_ge_u32 s46, 256\ns_cbranch_scc1 {lab}_md')
        A(f's_branch {lab}_cnt\n{lab}_md:')
        A(f'v_mov_b32 v3, s30\nds_write_b32 v2, v3\ns_waitcnt lgkmcnt(0)\n{lab}_ss:\ns_barrier')
        A(f'ds_read_b32 v3, v2\ns_waitcnt lgkmcnt(0)\nv_readfirstlane_b32 s30, v3')
    def start_sync(w, lab):
        if cfg.get('tl'): A('s_waitcnt vmcnt(0)')
        rec.tline(A, dict(cfg, tlreg=3), 1)
        if lab.endswith('l'):
            A(f'v_min_u32 v4, 1, v0\nv_lshlrev_b32 v4, 7, v4\ns_mov_b32 s11, {FVX}\ns_mov_b32 s19, 0x40000')
            A(f'{lab}_fv:\nbuffer_load_dword v3, v4, s[4:7], s11 offen sc1\ns_sub_u32 s19, s19, 1\ns_cbranch_scc1 R_exit')
            A(f's_waitcnt vmcnt(0)\nv_cmp_gt_u32 vcc, 16, v3\ns_cbranch_vccnz {lab}_fv')
        elif cfg.get('warm', 1) and lab == 'RA':
            A(f's_lshl_b32 s11, s3, 2\ns_add_u32 s11, s11, s9\ns_lshl_b32 s11, s11, 11\ns_add_u32 s11, s11, {MS}\nv_lshlrev_b32 v4, 5, v0')
            A('buffer_load_dword v3, v4, s[4:7], s11 offen sc1')
        A(f's_mov_b32 s19, {rec.SPIN_MAX}')
        rec.tline(A, dict(cfg, tlreg=3), 2)
        rec.dstamp(A, cfg, 4, 0, 3); rec.dstamp(A, cfg, 5, 31, 3)
    c = dict(BEST); c.update(cfg)
    c.setdefault('start_sync', start_sync); c.setdefault('finish', lambda w, lab: (rec.tline(A, dict(cfg, tlreg=3, tlclk=1), 4), rec.dstamp(A, cfg, 6, 0, 3)))
    def loop_top(w, lab):
        if cfg.get('tl'):
            for k, st in ((3, 1), (5, 16), (6, 32)):
                A(f's_cmp_lg_u32 s8, {st}\ns_cbranch_scc1 {lab}_lt{k}'); rec.tline(A, dict(cfg, tlreg=3, tlclk=1), k); A(f'{lab}_lt{k}:')
    c.setdefault('loop_top', loop_top)
    A('M_rec:\ns_mov_b32 s10, s3')
    prep.gen_misc(A, cfg, 'R_exit')
    from expr import V, Sg, sel_lt
    l = V('v0')
    c['pre_a'] = lambda: rec.wait_lanes(A, 'RA_wa', sel_lt(l, 1, FA + Sg('s10') * 128, FX), sel_lt(l, 1, 14, 32), 'R_exit')
    c['pre_b'] = lambda: rec.wait_lanes(A, 'RB_wb', sel_lt(l, 16, FB + l * 128, FX), sel_lt(l, 16, 14, 32), 'R_exit')
    mode('RM')
    A('s_and_b32 s10, s3, 15\ns_cmp_ge_u32 s3, 16\ns_cbranch_scc1 M_B')
    rec.gen_A(A, c, 'RA', 'R_exit')
    A('R_exit:\ns_endpgm\nM_B:')
    rec.gen_B(A, c, 'RB', 'R_exit')

def generate(cfg={}, header=''):
    K = Asm(); gen_main(K, cfg)
    return build.assemble([(build.NAME + '_kernel', K.lines, 256, 256, 163840, 512, 256)], header)

if __name__ == '__main__':
    ref = open(f'cdna_kernels/{build.NAME}.s.ref').read().split('\n')
    header = '\n'.join(l for l in ref if l.startswith(';') and '@launch' not in l and 'Override' not in l and 'grid=ceil' not in l) + '\n'
    import sys, json
    if len(sys.argv) > 2: open(sys.argv[1], 'w').write(generate(json.loads(sys.argv[2]), header))
    else: open(f'cdna_kernels/{build.NAME}.s', 'w').write(generate({}, header))
```

```python
from asmdsl import Asm
from expr import X, V, Sg, Emitter, ev, sel_lt
from layout import *
from rec import Wv, vr, tline, dstamp
import struct, math

def f32(x): return hex(struct.unpack('<I', struct.pack('<f', x))[0])
CSC = math.log2(math.e) / 16
W_BYTES = D * H * E * 2

def mfma(acc, a, b, c=None): return f'v_mfma_f32_16x16x32_bf16 {acc}, {a}, {b}, {c if c is not None else acc}'
def srd(A, r, lo, nbytes):
    A(f's_mov_b32 s{r}, s{lo}\ns_mov_b32 s{r+1}, s{lo+1}\ns_mov_b32 s{r+2}, {nbytes}\ns_mov_b32 s{r+3}, 0x20000')

def zero_ready(A, lab, tmo):
    A(f's_mov_b32 s19, 0x40000\n{lab}:\nbuffer_load_dword v1, off, s[48:51], 0 offset:132 sc1')
    A(f's_sub_u32 s19, s19, 1\ns_cbranch_scc1 {tmo}\ns_waitcnt vmcnt(0)\nv_cmp_eq_u32 vcc, 0, v1\ns_cbranch_vccnz {lab}')

def gen_gemm(A, cfg, tmo):
    w = Wv(A, {}); st = 'sc1'
    c2 = dict(cfg, tlreg=1)
    em = Emitter(A, [f'v{i}' for i in range(32, 60)])
    l = V('v0'); g = l >> 4; rho = l & 15
    A("""s_mul_i32 s16, s10, 4682
    s_lshr_b32 s16, s16, 16
    s_mul_i32 s13, s16, 14
    s_sub_u32 s13, s10, s13
    s_and_b32 s12, s13, 1
    s_lshr_b32 s13, s13, 1
    s_mul_i32 s17, s12, 7
    s_lshl_b32 s11, s9, 1
    s_add_u32 s17, s17, s11
    s_lshl_b32 s18, s16, 9          ; h*512
    s_lshl_b32 s35, s9, 15
    s_lshl_b32 s34, s9, 13""")
    srd(A, 20, 40, W_BYTES); srd(A, 24, 42, W_BYTES); srd(A, 56, 36, W_BYTES); srd(A, 60, 38, W_BYTES)
    LB = 131072
    for par in range(2):
        em.emit((l >> 3) * 896 + ((l & 7) ^ (((l >> 4) & 1) * 2 + par * 4)) * 16, f'v{24+par}')
    A('s_lshl_b32 s19, s16, 8\ns_lshl_b32 s33, s9, 6\ns_add_u32 s19, s19, s33\ns_mul_i32 s19, s19, 896\ns_lshl_b32 s33, s13, 7\ns_add_u32 s19, s19, s33')
    for k in range(8):
        A(f's_add_u32 m0, s34, {LB + k*1024}\ns_add_u32 s33, s19, {k*8*896}')
        w.vmem(f'buffer_load_dwordx4 v{24+(k&1)}, s[24:27], s33 offen lds', 'B0')
    for i in range(8):
        r = (l >> 5) + 2 * i
        em.emit(((r >> 2) * 8 + (r & 3)) * 8192 + ((l & 31) ^ r) * 16 - (i & 3) * 1024, f'v{8+i}')
    def tile_dma(srd_, soff, lds, tag):
        for i in range(8):
            if i % 4 == 0: A(f's_add_u32 m0, {lds[0]}, {lds[1] + i*1024}')
            w.vmem(f'buffer_load_dwordx4 v{8+i}, {srd_}, {soff} offen offset:{(i&3)*1024} lds', tag)
    A(f's_lshl_b32 s52, s17, 18\ns_add_u32 s52, s52, s18\ns_add_u32 s53, s52, 0x40000\ns_cmp_eq_u32 s9, 3\ns_cselect_b32 s53, {OOB}, s53')
    def load_a(task, k):
        A(f's_add_u32 s33, s{52+k}, 32768')
        for b in range(2): tile_dma(('s[20:23]', 's[56:59]')[task], 's33' if b else f's{52+k}', ('s35', k * 16384 + b * 8192), f'A{task}{k}')
    load_a(0, 0); load_a(0, 1)
    tline(A, c2, 5, 0x4000)
    al = (l >> 2) & 3; c = l & 3
    f = ((al >> 1) & 1) * 2 + (g & 1) * 4
    for t in range(4):
        em.emit(LB + (g * 8 + al) * 128 + ((f ^ (2 * t)) + (c >> 1)) * 16 + (c & 1) * 8, f'v{20+t}')
    for q in range(4):
        em.emit(rho * 512 + (((rho & 12) ^ (4 * q)) + (g ^ (rho & 3))) * 16, f'v{4+q}')
        A(f'v_add_u32 v{16+q}, {LB}, v{4+q}\nv_add_u32 v{4+q}, s35, v{4+q}')
    em.emit(g * 7168 + rho * 16, 'v2')
    em.emit(l * 16, 'v3')
    breg = lambda t, ks: f'a[{(t*8+ks)*4}:{(t*8+ks)*4+3}]'
    areg = lambda k, b, ks: vr(64 + ((k * 2 + b) * 8 + ks) * 4, 4)
    ACCR = lambda b, t: 32 + (b * 4 + t) * 4
    def read_a(k, b, ks): A(f'ds_read_b128 {areg(k,b,ks)}, v{4+(ks&3)} offset:{k*16384 + b*8192 + (ks>>2)*256}')
    def pair(task, k):
        for ks in range(8):
            for b in range(2):
                for t in range(4):
                    A(mfma(vr(ACCR(b, t), 4), areg(k, b, ks), breg(t, ks), 0 if ks == 0 else None))
                if k == 0 and ks == 4 and b == 0:
                    A('s_waitcnt vmcnt(0)')
                    if task == 0:
                        A('buffer_load_dword v26, off, s[48:51], 0 offset:132 sc1')
                        if cfg.get('touch2'):
                            A('s_lshl_b32 s19, s10, 2\ns_add_u32 s19, s19, s9\ns_lshl_b32 s19, s19, 12\nv_and_b32 v27, 31, v0\nv_lshlrev_b32 v27, 7, v27')
                            A('buffer_load_dword v28, v27, s[56:59], s19 offen\nbuffer_load_dword v29, v27, s[60:63], s19 offen')
                if k == 0 and ks >= 4: read_a(1, b, 2 * (ks - 4)); read_a(1, b, 2 * (ks - 4) + 1)
        for t in range(4):
            o = 192 + 16 * k + 4 * t
            for b in range(2):
                a = ACCR(b, t)
                if task:
                    for r in range(4): A(f'v_mul_f32 v{a+r}, s47, v{a+r}')
                A(f'v_cvt_pk_bf16_f32 v{o+2*b}, v{a}, v{a+1}\nv_cvt_pk_bf16_f32 v{o+2*b+1}, v{a+2}, v{a+3}')
    def stores(task, k):
        sp, stt = ((28672, 256), (1024, 14336))[task]
        A(f's_add_u32 s19, s17, {k}\ns_mul_i32 s19, s19, {sp}\ns_add_u32 s19, s19, s44')
        for t in range(4):
            w.vmem(f'buffer_store_dwordx4 {vr(192+16*k+4*t,4)}, v{2+task}, s[4:7], s19 offen {st}')
            if t < 3: A(f's_add_u32 s19, s19, {stt}')
    def signal(task, keep):
        lab = f'P_sig{task}'
        A(f's_waitcnt vmcnt({keep})\ns_barrier\ns_cmp_lg_u32 s9, 0\ns_cbranch_scc1 {lab}')
        if task == 0:
            A('v_cmp_eq_u32 vcc, 0, v26\ns_cbranch_vccz P_zok')
            zero_ready(A, 'P_zr', tmo)
            A('P_zok:')
        A(f's_lshl_b32 s19, s16, 7\ns_add_u32 s19, s19, {(FB, FA)[task]}\nv_mov_b32 v1, 1\ns_mov_b64 exec, 1')
        A(f'buffer_atomic_add v1, off, s[4:7], s19 sc1\ns_mov_b64 exec, -1\n{lab}:')
    for task in range(2):
        if task == 0:
            w.wait(vm='B0'); A('s_barrier')
            tline(A, c2, 6, 0x4000)
            for t in range(4):
                for ks in range(8):
                    n = (t * 8 + ks) * 4
                    A(f'ds_read_b64_tr_b16 a[{n}:{n+1}], v{20+t} offset:{ks*4096}')
                    A(f'ds_read_b64_tr_b16 a[{n+2}:{n+3}], v{20+t} offset:{ks*4096+512}')
            A(f's_mul_i32 s44, s16, {14*28672}\ns_lshl_b32 s19, s13, 10\ns_add_u32 s44, s44, s19\ns_add_u32 s44, s44, {BF}')
            w.wait(vm='A00')
        else:
            A('s_waitcnt vmcnt(16)\ns_barrier')
            for t in range(4):
                for ks in range(8): A(f'ds_read_b128 {breg(t,ks)}, v{16+(ks&3)} offset:{t*8192 + (ks>>2)*256}')
            A(f's_mul_i32 s44, s16, {28*14336}\ns_mul_i32 s19, s13, {4*14336}\ns_add_u32 s44, s44, s19\ns_add_u32 s44, s44, {AF}')
            A(f's_mov_b32 s47, {f32(CSC)}')
        for ks in range(8):
            for b in range(2): read_a(0, b, ks)
        A('s_waitcnt lgkmcnt(0)'); w.vm = []
        if task == 0: A('s_barrier')
        pair(task, 0)
        A('s_waitcnt lgkmcnt(0)')
        stores(task, 0)
        A(f's_cmp_eq_u32 s9, 3\ns_cbranch_scc1 P_skip{task}')
        pair(task, 1)
        stores(task, 1)
        A(f'P_skip{task}:')
        tline(A, c2, 1 + 2 * task, 0x4000)
        dstamp(A, cfg, 10 + task, 100, 1)
        if task == 0:
            A('s_lshl_b32 s19, s13, 1\ns_lshr_b32 s33, s9, 1\ns_add_u32 s19, s19, s33\ns_lshl_b32 s19, s19, 18\ns_and_b32 s33, s9, 1\ns_lshl_b32 s33, s33, 15')
            A('s_add_u32 s19, s19, s33\ns_add_u32 s19, s19, s18')
            npre = cfg.get('npre', 1)
            tile_dma('s[60:63]', 's19', ('s34', LB), 'B1')
            if npre >= 2: load_a(1, 0)
            if npre >= 3: load_a(1, 1)
            signal(0, (8, 24, 40)[npre - 1])
            if npre < 2: load_a(1, 0)
            if npre < 3: load_a(1, 1)
        else:
            signal(1, 0)
        tline(A, c2, 2 + 2 * task, 0x4000)

def gen_misc(A, cfg, tmo):
    st = 'sc1'
    c2 = dict(cfg, tlreg=1)
    l = V('v0'); g = l >> 4; rho = l & 15
    em = Emitter(A, [f'v{i}' for i in range(200, 230)])
    A('s_mov_b32 s12, s10')
    srd(A, 20, 28, S * D * 2); srd(A, 24, 30, M * D * 2)
    A('s_lshl_b32 s13, s12, 2\ns_add_u32 s13, s13, s9')
    tid = l + Sg('s9') * 64
    em.emit(tid * 16, 'v2')
    A(f'v_mov_b64 v[184:185], 0\nv_mov_b64 v[186:187], 0\ns_lshl_b32 s15, s12, 12\ns_add_u32 s16, s15, {HU1}')
    A(f'buffer_store_dwordx4 v[184:187], v2, s[4:7], s16 offen {st}')
    em.emit(rho * 896 + g * 16, 'v1')
    A('s_mul_i32 s14, s13, 14336')
    for p in range(14): A(f'buffer_load_dwordx4 {vr(4+4*p,4)}, v1, s[20:23], s14 offen offset:{p*64}')
    A('s_cmp_lt_u32 s12, 30\ns_cbranch_scc1 P_nomem')
    gi = (Sg('s12') - 30) * 256 + tid
    rr = gi & 15
    em.emit(sel_lt(gi, 448, (((rr >> 2) * 2 + (rr & 1)) * 448 + (gi >> 4) * 16 + ((rr >> 1) & 1) * 2) * 2, OOB), 'v3')
    for q in range(4): A(f'buffer_load_dword v{188+q}, v3, s[24:27], 0 offen offset:{q*8}')
    em.emit(sel_lt(gi, 448, gi * 16 + MS, OOB), 'v3')
    A('s_waitcnt vmcnt(0)')
    for q in range(4): A(f'v_min_u32 v{188+q}, -2, v{188+q}')
    A(f'buffer_store_dwordx4 v[188:191], v3, s[4:7], 0 offen {st}\ns_waitcnt vmcnt(1)\ns_branch P_memok\nP_nomem:')
    A('s_waitcnt vmcnt(0)\nP_memok:\ns_barrier\ns_cmp_lg_u32 s9, 0\ns_cbranch_scc1 P_zdone')
    A('v_mov_b32 v1, 1\ns_mov_b64 exec, 1\nbuffer_atomic_add v1, off, s[48:51], 0 offset:8 sc0 sc1\ns_waitcnt vmcnt(0)\ns_mov_b64 exec, -1')
    A('v_readfirstlane_b32 s11, v1\ns_cmp_lg_u32 s11, 31\ns_cbranch_scc1 P_zdone\nv_mov_b32 v1, 1\nbuffer_store_dword v1, off, s[48:51], 0 offset:132 sc1\nP_zdone:')
    A('v_mov_b64 v[180:181], -1\nv_mov_b64 v[182:183], -1')
    A(f's_lshl_b32 s15, s12, 14\ns_add_u32 s15, s15, {MX}')
    for k in range(4):
        A(f'buffer_store_dwordx4 v[180:183], v2, s[4:7], s15 offen {st}' + ('\ns_add_u32 s15, s15, 4096' if k < 3 else ''))
    A(f's_lshl_b32 s15, s12, 12')
    A(f's_add_u32 s16, s15, {VM + (NSEG-1)*VM_SEG}\ns_cmp_lt_u32 s12, 28\ns_cselect_b32 s16, s16, {OOB}\nbuffer_store_dwordx4 v[180:183], v2, s[4:7], s16 offen {st}')
    A(f's_add_u32 s16, s15, {PX + (NSEG-1)*PX_SEG}\ns_cmp_lt_u32 s12, 10\ns_cselect_b32 s16, s16, {OOB}\nbuffer_store_dwordx4 v[180:183], v2, s[4:7], s16 offen {st}')
    A(f's_mov_b32 s16, {PS}\ns_cmp_lt_u32 s12, 16\ns_cselect_b32 s16, s16, {MS + 8192 - 16*4096}\ns_add_u32 s16, s16, s15')
    A(f's_cmp_ge_u32 s12, 22\ns_cbranch_scc1 P_nofill\nbuffer_store_dwordx4 v[180:183], v2, s[4:7], s16 offen {st}\nP_nofill:')
    for k in range(56):
        A(f'v_lshlrev_b32 v{64+2*k}, 16, v{4+k}\nv_and_b32 v{65+2*k}, 0xffff0000, v{4+k}')
    def allred(r):
        A(f'v_mov_b32 v{r+1}, v{r}\nv_permlane16_swap_b32 v{r}, v{r+1}\nv_add_f32 v{r}, v{r}, v{r+1}')
        A(f'v_mov_b32 v{r+1}, v{r}\nv_permlane32_swap_b32 v{r}, v{r+1}\nv_add_f32 v{r}, v{r}, v{r+1}')
    A('v_pk_add_f32 v[180:181], v[64:65], v[66:67]\nv_pk_add_f32 v[182:183], v[68:69], v[70:71]')
    for k in range(4, 56): A(f'v_pk_add_f32 v[{180+2*(k&1)}:{181+2*(k&1)}], v[{180+2*(k&1)}:{181+2*(k&1)}], v[{64+2*k}:{65+2*k}]')
    A('v_pk_add_f32 v[180:181], v[180:181], v[182:183]\nv_add_f32 v180, v180, v181')
    allred(180)
    A(f'v_mul_f32 v180, {f32(1/448)}, v180          ; mean')
    A('v_mov_b64 v[184:185], 0\nv_mov_b64 v[186:187], 0')
    for k in range(56):
        t = 188 + 2 * (k & 1); s_ = 184 + 2 * (k & 1)
        A(f'v_pk_add_f32 v[{t}:{t+1}], v[{64+2*k}:{65+2*k}], v[180:181] op_sel_hi:[1,0] neg_lo:[0,1] neg_hi:[0,1]')
        A(f'v_pk_fma_f32 v[{s_}:{s_+1}], v[{t}:{t+1}], v[{t}:{t+1}], v[{s_}:{s_+1}]')
    A('v_pk_add_f32 v[184:185], v[184:185], v[186:187]\nv_add_f32 v184, v184, v185')
    allred(184)
    A(f'v_mul_f32 v184, {f32(1/448)}, v184          ; variance')
    rnd = lambda r: A(f'v_cvt_pk_bf16_f32 v{r}, v{r}, v{r}\nv_and_b32 v{r}, 0xffff0000, v{r}')
    rnd(180); rnd(184)
    A(f'v_add_f32 v184, {f32(1e-5)}, v184'); rnd(184)
    A('v_sqrt_f32 v184, v184'); rnd(184)
    A('v_rcp_f32 v184, v184')
    em.emit(l * 16, 'v2')
    if XF: A(f's_add_u32 s14, s14, {XF}')
    for k in range(56):
        a = 64 + 2 * k
        A(f'v_pk_add_f32 v[{a}:{a+1}], v[{a}:{a+1}], v[180:181] op_sel_hi:[1,0] neg_lo:[0,1] neg_hi:[0,1]')
        A(f'v_cvt_pk_bf16_f32 v{a}, v{a}, v{a+1}\nv_and_b32 v{a+1}, 0xffff0000, v{a}\nv_lshlrev_b32 v{a}, 16, v{a}')
        A(f'v_pk_mul_f32 v[{a}:{a+1}], v[{a}:{a+1}], v[184:185] op_sel_hi:[1,0]')
        A(f'v_cvt_pk_bf16_f32 v{4+k}, v{a}, v{a+1}')
        if k % 4 == 3:
            p = k >> 2
            if p and p % 4 == 0: A('s_add_u32 s14, s14, 4096')
            A(f'buffer_store_dwordx4 {vr(4+4*p,4)}, v2, s[4:7], s14 offen offset:{(p%4)*1024} {st}')
    A('s_waitcnt vmcnt(0)\ns_barrier\ns_cmp_lg_u32 s9, 0\ns_cbranch_scc1 P_xdone')
    zero_ready(A, 'P_zr2', tmo)
    A(f's_mov_b32 s19, {FX}\nv_mov_b32 v1, 1\ns_mov_b64 exec, 1\nbuffer_atomic_add v1, off, s[4:7], s19 sc1\ns_mov_b64 exec, -1\nP_xdone:')
    tline(A, c2, 2, 0x4000)
```

```python
from asmdsl import Asm
from expr import X, V, Sg, Emitter, ev, sel_lt, wrap
from layout import *
import numpy as np

SRD = 's[4:7]'
def vr(a, n=1): return f'v{a}' if n == 1 else f'v[{a}:{a+n-1}]'
def wreg(o):
    return f'a[{8*o}:{8*o+7}]' if o < 32 else f'v[{120+8*(o-32)}:{127+8*(o-32)}]'
def wquad(o, b):
    return f'a[{8*o+4*b}:{8*o+4*b+3}]' if o < 32 else f'v[{120+8*(o-32)+4*b}:{123+8*(o-32)+4*b}]'

class Wv:
    def __init__(self, A, cfg):
        self.A = A; self.vm = []; self.lg = []; self.cfg = cfg; self.nst = 0
    def __call__(self, t): self.A(t)
    def vmem(self, t, tag=None): self.A(t); self.vm.append(tag)
    def ds(self, t, tag=None): self.A(t); self.lg.append(tag)
    def wait(self, vm=None, lg=None):
        parts = []
        if vm is not None and vm in self.vm:
            i = len(self.vm) - 1 - self.vm[::-1].index(vm)
            parts.append(f'vmcnt({len(self.vm)-1-i})'); self.vm = self.vm[i+1:]
        if lg is not None and lg in self.lg:
            i = len(self.lg) - 1 - self.lg[::-1].index(lg)
            n = min(len(self.lg) - 1 - i, 15)
            parts.append(f'lgkmcnt({n})'); self.lg = self.lg[i+1:]
        if parts: self.A('s_waitcnt ' + ' '.join(parts))
    def wait_all_lg(self): self.A('s_waitcnt lgkmcnt(0)'); self.lg = []
    def wait_all_vm(self): self.A('s_waitcnt vmcnt(0)'); self.vm = []
    def stamp(self, name=None):
        if self.cfg.get('stamps'):
            assert self.nst < 12
            self.A(f's_memtime s[{60+2*self.nst}:{61+2*self.nst}]'); self.nst += 1
    def dump_stamps(self, lab):
        if not self.cfg.get('stamps'): return
        A = self.A
        A(f's_waitcnt lgkmcnt(0)\ns_cmp_lg_u32 s8, 6\ns_cbranch_scc1 {lab}_nocal')
        A(f's_memrealtime s[96:97]\ns_waitcnt lgkmcnt(0)\n{lab}_cal:\ns_memrealtime s[98:99]\ns_memtime s[100:101]\ns_waitcnt lgkmcnt(0)\ns_cmp_eq_u32 s96, s98\ns_cbranch_scc1 {lab}_cal')
        for k in range(12): A(f's_mov_b32 s{84+k}, 0')
        A(f'{lab}_nocal:\ns_cmp_lt_u32 s8, 8\ns_cbranch_scc1 {lab}_nodump\ns_cmp_gt_u32 s8, 57\ns_cbranch_scc1 {lab}_nodump')
        for k in range(self.nst): A(f's_sub_u32 s11, s{60+2*k}, s100\ns_add_u32 s{84+k}, s{84+k}, s11')
        A(f's_cmp_lg_u32 s8, 57\ns_cbranch_scc1 {lab}_nodump')
        A('s_lshl_b32 s11, s3, 2\ns_add_u32 s11, s11, s9\ns_lshl_b32 s11, s11, 6')
        A(f's_add_u32 s11, s11, {DBG}')
        A(f'v_mov_b32 v0, s98\nv_mov_b32 v2, 0x4000\nbuffer_store_dword v0, v2, {SRD}, s11 offen')
        for k in range(self.nst):
            A(f'v_mov_b32 v0, s{84+k}\nv_mov_b32 v1, {4*k}\nbuffer_store_dword v0, v1, {SRD}, s11 offen')
        A(f's_waitcnt vmcnt(0)\n{lab}_nodump:')

def tline(A, cfg, k, base=0, idx='s3'):
    if not cfg.get('tl'): return
    lab = A.newlabel(f'TL{base}')
    A(f's_cmp_lg_u32 s9, 0\ns_cbranch_scc1 {lab}')
    A(f's_memrealtime s[96:97]\ns_lshl_b32 s98, {idx}, 6\ns_add_u32 s98, s98, {DBG + 0x8000 + base + 4*k}\ns_waitcnt lgkmcnt(0)')
    A(f'v_accvgpr_write_b32 a255, s96' if False else f'v_mov_b32 v{cfg.get("tlreg", 95)}, s96')
    A(f'buffer_store_dword v{cfg.get("tlreg", 95)}, off, {SRD}, s98')
    if cfg.get('tlclk'):
        A(f's_memtime s[96:97]\ns_waitcnt lgkmcnt(0)\nv_mov_b32 v{cfg.get("tlreg", 95)}, s96\nbuffer_store_dword v{cfg.get("tlreg", 95)}, off, {SRD}, s98 offset:32')
    A(f'{lab}:')

def dstamp(A, cfg, k, slot, reg):
    if not cfg.get('ds'): return
    lab = A.newlabel('DS')
    A(f's_cmp_lg_u32 s9, 0\ns_cbranch_scc1 {lab}\ns_cmp_lg_u32 s3, {slot}\ns_cbranch_scc1 {lab}')
    A(f's_load_dwordx2 s[96:97], s[0:1], 104\ns_memrealtime s[94:95]\ns_waitcnt lgkmcnt(0)\ns_mov_b32 s98, 256\ns_mov_b32 s99, 0x20000')
    A(f's_and_b32 s94, s94, 0xfffff\nv_mov_b32 v{reg}, s94\nbuffer_store_dword v{reg}, off, s[96:99], 0 offset:{4*k}\n{lab}:')

def smf(acc, a, b, idx): return f'v_smfmac_f32_16x16x64_bf16 {vr(acc,4)}, {a}, {b}, {idx}'

KM = 3
MREG = [16, 20, 24, 0, 4, 8, 12]
ACC = [28 + 4 * t for t in range(7)]
vIDX, vL16, vHUp, vHUs = 'v119', 'v118', 'v117', 'v116'
vKA = ['v115', 'v114', 'v113', 'v112', 'v111', 'v110', 'v109']
sSTEP, sW, sR = 's8', 's9', 's10'
sKK = [f's{12+t}' for t in range(7)]
sSPIN, sRETRY, sS1 = 's19', 's20', 's31'
sMO = ['s36', 's37', 's38']
SPIN_MAX = 0x80000
L_K = 131072

def common_consts(em, A, lab, rot):
    l = V('v0')
    em.emit(l & 63, 'v0')
    em.emit(sel_lt(l & 2, 1, 0x44444444, 0xEEEEEEEE), vIDX)
    em.emit(l * 16, vL16)
    A(f's_lshl_b32 s33, {sW}, 1\ns_add_u32 s33, s33, {rot}')
    for _ in range(3): A('s_cmp_ge_u32 s33, 7\ns_cselect_b32 s35, 7, 0\ns_sub_u32 s33, s33, s35')
    for t in range(7):
        A(f's_add_u32 s34, s33, {t}\ns_cmp_ge_u32 s34, 7\ns_cselect_b32 s35, 7, 0\ns_sub_u32 s34, s34, s35\ns_lshl_b32 {sKK[t]}, s34, 10')
    em.emit(L_K + l * 16, 'v1')
    for t in range(7): A(f'v_add_u32 {vKA[t]}, {sKK[t]}, v1')
    A(f's_cmp_lg_u32 {sW}, 3\ns_cbranch_scc1 {lab}_w3skip\nv_add_u32 {vKA[1]}, 7168, v1\n{lab}_w3skip:')

def step_consts(A, solo=False):
    A(f's_and_b32 s11, {sSTEP}, {0 if solo else 3}\ns_lshl_b32 s33, s11, 13\ns_add_u32 s33, s33, {MS}')
    for t in range(3): A(f's_add_u32 {sMO[t]}, s33, {sKK[t]}')
    A(f's_add_u32 {sS1}, {sSTEP}, 1')

def poll(w, lab, vp, sval, tmo, nl):
    w(f'v_mov_b32 {vp}, 0')
    if w.cfg.get('pollmask', 1): w(f's_mov_b32 exec_lo, {hex((1 << nl) - 1) if nl < 32 else -1}\ns_mov_b32 exec_hi, 0')
    w(f'{lab}:')
    if w.cfg.get('pollnop'): w(f's_nop {w.cfg["pollnop"]-1}')
    w(f'buffer_load_dword {vp}, {vHUp}, {SRD}, 0 offen sc1')
    w(f's_waitcnt vmcnt({w.cfg.get("polldepth", 40)})')
    w(f'v_cmp_gt_u32 vcc, {sval}, {vp}')
    w(f's_sub_u32 {sSPIN}, {sSPIN}, 1\ns_cbranch_scc1 {tmo}')
    w(f's_cbranch_vccnz {lab}')
    if w.cfg.get('pollmask', 1): w('s_mov_b64 exec, -1')
    w.vm = []

def zero(w, a, n):
    for i in range(a, a + n, 2): w(f'v_mov_b64 {vr(i,2)}, 0')

def sentinel_check(w, regs, tmp):
    w(f'v_max3_u32 {tmp}, v{regs[0]}, v{regs[1]}, v{regs[2]}')
    r = regs[3:]
    while len(r) >= 2:
        w(f'v_max3_u32 {tmp}, {tmp}, v{r[0]}, v{r[1]}'); r = r[2:]
    if r: w(f'v_max_u32 {tmp}, {tmp}, v{r[0]}')
    w(f'v_cmp_eq_u32 vcc, -1, {tmp}')

def weight_stream(w, fill, comb_write, lab, tmp, tmo=None, mpoll=False, early=None):
    cfg = w.cfg; ND = cfg.get('nd', 2)
    w(f'{lab}_mload:')
    w.vm = []; w.lg = []
    if mpoll:
        assert ND == 2
        for t in range(ND):
            w(f'buffer_load_dwordx4 {vr(MREG[t],4)}, {vL16}, {SRD}, {sMO[t]} offen sc1')
        if cfg.get('mnop'): w(f's_nop {cfg["mnop"]-1}')
        w(f's_waitcnt vmcnt({cfg.get("bdepth", 0)})')
        sentinel_check(w, list(range(MREG[0], MREG[0] + 8)), f'v{tmp}')
        w(f's_sub_u32 {sSPIN}, {sSPIN}, 1\ns_cbranch_scc1 {tmo}')
        w(f's_cbranch_vccnz {lab}_mload')
        w.vm = ['MP']
        if early: early()
    else:
        for t in range(ND):
            w(f's_setprio {ND-1-t}')
            w.vmem(f'buffer_load_dwordx4 {vr(MREG[t],4)}, {vL16}, {SRD}, {sMO[t]} offen sc1', f'M{t}')
        if early: early()
    order = [(tl, t) for t in range(KM) for tl in range(7)] + [(tl, t) for tl in range(7) for t in range(KM, 7)]
    pre = {}; mem = {}; val = {}
    ad = lambda d, n, f: d.setdefault(n, []).append(f)
    w1 = 1 if mpoll else cfg.get('w1', 3)
    for t, s0 in ((0, 0), (1, w1)):
        m = MREG[t]
        ad(pre, s0, lambda t=t: w.wait(vm=f'M{t}'))
        ad(mem, s0, lambda t=t, m=m: w.ds(f'ds_write_b128 {vKA[t]}, {vr(m,4)}'))
    if mpoll:
        bs = w1 + cfg.get('mbar', 4)
        def sync():
            w.wait_all_lg(); w('s_barrier')
        ad(pre, 20, lambda: w.wait(vm='MP'))
    else:
        m0, m1, m2 = MREG[0], MREG[1], MREG[2]
        ad(val, 1, lambda: w(f'v_max3_u32 v{tmp}, v{m0}, v{m0+1}, v{m0+2}'))
        c = w1 + 1
        ad(val, c, lambda: w(f'v_max3_u32 v{tmp}, v{tmp}, v{m0+3}, v{m1}'))
        ad(val, c + 1, lambda: w(f'v_max3_u32 v{tmp}, v{tmp}, v{m1+1}, v{m1+2}'))
        if ND == 2:
            ad(val, c + 2, lambda: w(f'v_max_u32 v{tmp}, v{tmp}, v{m1+3}'))
            c += 3
        else:
            ad(pre, c + 2, lambda: w.wait(vm='M2'))
            ad(val, c + 2, lambda: w(f'v_max3_u32 v{tmp}, v{tmp}, v{m1+3}, v{m2}'))
            ad(val, c + 3, lambda: w(f'v_max3_u32 v{tmp}, v{tmp}, v{m2+1}, v{m2+2}'))
            ad(val, c + 4, lambda: w(f'v_max_u32 v{tmp}, v{tmp}, v{m2+3}'))
            c += 5
        ad(val, c, lambda: w(f'v_cmp_eq_u32 vcc, -1, v{tmp}'))
        bs = c + cfg.get('bdelay', 2)
        def sync():
            w(f's_cbranch_vccnz {lab}_mretry')
            w.wait_all_lg(); w('s_barrier')
    ad(mem, bs, sync)
    n = 0
    for t in range(ND, 7):
        m = MREG[t]
        ad(mem, bs + n, lambda t=t, m=m: w.ds(f'ds_read_b128 {vr(m,4)}, {vKA[t]}', f'M{t}'))
        n += 1
    per = 7 - KM; base = 7 * KM
    for tl in range(6):
        s0 = base + per * (tl + 1) + 1
        ad(val, s0, lambda tl=tl: w(f'v_add_f32 v{tmp}, v{ACC[tl]}, v{ACC[tl]+2}'))
        ad(val, s0 + 1, lambda tl=tl: w(f'v_add_f32 v{tmp+1}, v{ACC[tl]+1}, v{ACC[tl]+3}'))
        ad(val, s0 + 2, lambda: w(f'v_cvt_pk_bf16_f32 v{tmp+2}, v{tmp}, v{tmp+1}'))
        ad(mem, s0 + 3, lambda tl=tl: comb_write(tl, f'v{tmp+2}'))
    fl, fv = fill(bs + n)
    for k, fs in fv.items():
        for f in fs: ad(val, k, f)
    if cfg.get('stamps'):
        for k in cfg.get('bfine', [0]): ad(fl, k, lambda: w.stamp())
    for n, (tl, t) in enumerate(order):
        for f in pre.get(n, []): f()
        w.wait(vm=f'M{t}', lg=f'M{t}')
        w(smf(ACC[tl], vr(MREG[t], 4), wreg(tl * 7 + t), vIDX))
        for f in mem.get(n, []): f()
        for f in fl.get(n, []): f()
        for f in val.get(n, []): f()
    assert all(k < 49 for k in fl) and all(k < 49 for k in val)
    return [f for k in sorted(mem) if k >= 49 for f in mem[k]]

MREGA = [12, 16, 20, 24, 0, 4, 8]
def a_consts(em, A):
    l = V('v0')
    em.emit(l & 63, 'v0')
    em.emit(sel_lt(l & 2, 1, 0x44444444, 0xEEEEEEEE), vIDX)
    em.emit(l * 16, vL16)
    for t in range(4): A(f's_add_u32 s34, {sW}, {sR}\ns_add_u32 s34, s34, {t}\ns_and_b32 s34, s34, 3\ns_lshl_b32 {sKK[t]}, s34, 10')
    for t in range(4, 7): A(f's_movk_i32 {sKK[t]}, {t*1024}')
    em.emit(L_K + l * 16, vKA[4])
    for t in range(4): A(f'v_add_u32 {vKA[t]}, {sKK[t]}, {vKA[4]}')
    A(f's_lshl_b32 s29, {sW}, 10\ns_add_u32 s29, s29, 4096')

def a_step_consts(A, solo=False):
    A(f's_and_b32 s11, {sSTEP}, {0 if solo else 3}\ns_lshl_b32 s33, s11, 13\ns_add_u32 s33, s33, {MS}')
    A(f's_add_u32 s36, s33, {sKK[0]}\ns_add_u32 s37, s33, {sKK[1]}\ns_add_u32 s38, s33, s29\ns_add_u32 s39, s29, {L_K}')
    A(f's_add_u32 {sS1}, {sSTEP}, 1')

def a_stream(w, fill, comb_write, lab, tmp, tmo):
    cfg = w.cfg; MR = MREGA; KMA = 4; NE = cfg.get('ne', 2)
    w(f'{lab}_mload:')
    w.vm = []; w.lg = []
    for t in range(NE): w(f'buffer_load_dwordx4 {vr(MR[t],4)}, {vL16}, {SRD}, s{36+t} offen sc1')
    if cfg.get('mnop'): w(f's_nop {cfg["mnop"]-1}')
    w(f's_waitcnt vmcnt({cfg.get("mdepth", 2)})')
    sentinel_check(w, list(range(MR[0], MR[0] + 4 * NE)), f'v{tmp}')
    w(f's_sub_u32 {sSPIN}, {sSPIN}, 1\ns_cbranch_scc1 {tmo}')
    w(f's_cbranch_vccnz {lab}_mload')
    order = [(tl, t) for t in range(KMA) for tl in range(7)] + [(tl, t) for tl in range(7) for t in range(KMA, 7)]
    pre = {}; mem = {}; val = {}
    ad = lambda d, n, f: d.setdefault(n, []).append(f)
    ew = cfg.get('ew', 128)
    if ew == 128:
        if NE == 1: w.ds(f'ds_write_b128 {vKA[0]}, {vr(MR[0],4)}')
        else: ad(mem, 0, lambda: w.ds(f'ds_write_b128 {vKA[0]}, {vr(MR[0],4)}'))
    elif ew == 64:
        for k in range(2): ad(mem, k, lambda k=k: w.ds(f'ds_write_b64 {vKA[0]}, {vr(MR[0]+2*k,2)} offset:{8*k}'))
    else:
        for k in range(4): ad(mem, k, lambda k=k: w.ds(f'ds_write_b32 {vKA[0]}, v{MR[0]+k} offset:{4*k}'))
    bs = cfg.get('ebar', 2 if NE == 1 else 8)
    ad(mem, bs, lambda: (w.wait_all_lg(), w('s_barrier')))
    for t in range(NE, 4):
        ad(mem, bs + (t - NE), lambda t=t: w.ds(f'ds_read_b128 {vr(MR[t],4)}, {vKA[t]}', f'M{t}'))
    l0 = cfg.get('lslot', 3); lb = cfg.get('lbar', 17)
    ad(mem, l0 - 1, lambda: w('s_mov_b32 m0, s39'))
    ad(mem, l0, lambda: w.vmem(f'buffer_load_dwordx4 {vL16}, {SRD}, s38 offen sc1 lds', 'L'))
    ad(mem, lb, lambda: (w.wait(vm='L'), w('s_barrier')))
    for t in (4, 5, 6): ad(mem, lb + (t - 4) // 2, lambda t=t: w.ds(f'ds_read_b128 {vr(MR[t],4)}, {vKA[4]} offset:{t*1024}', f'M{t}'))
    lc = lb + 3
    w.lretry_state = None
    ad(pre, lc + 1, lambda: w.wait(lg='M5'))
    ad(val, lc + 1, lambda: w(f'v_max3_u32 v{tmp}, v0, v1, v2'))
    ad(val, lc + 2, lambda: w(f'v_max3_u32 v{tmp}, v{tmp}, v3, v4'))
    ad(pre, lc + 3, lambda: w.wait(lg='M6'))
    ad(val, lc + 3, lambda: w(f'v_max3_u32 v{tmp}, v{tmp}, v5, v6'))
    ad(val, lc + 4, lambda: w(f'v_max3_u32 v{tmp}, v{tmp}, v7, v8'))
    ad(val, lc + 5, lambda: w(f'v_max3_u32 v{tmp}, v{tmp}, v9, v10'))
    ad(val, lc + 6, lambda: (w(f'v_max_u32 v{tmp}, v{tmp}, v11'), w(f'v_cmp_eq_u32 vcc, -1, v{tmp}')))
    cs = lc + 7
    assert cs <= 27
    ad(mem, cs, lambda: w(f's_cbranch_vccnz {lab}_lretry\n{lab}_lok:'))
    per = 7 - KMA; base = 7 * KMA
    for tl in range(6):
        s0 = base + per * (tl + 1) + 1
        o = tmp + 2 if not (cfg.get('tw2') and tl % 2 == 0) else 97
        ad(val, s0, lambda tl=tl: w(f'v_add_f32 v{tmp}, v{ACC[tl]}, v{ACC[tl]+2}'))
        ad(val, s0 + 1, lambda tl=tl: w(f'v_add_f32 v{tmp+1}, v{ACC[tl]+1}, v{ACC[tl]+3}'))
        ad(val, s0 + 2, lambda o=o: w(f'v_cvt_pk_bf16_f32 v{o}, v{tmp}, v{tmp+1}'))
        if not cfg.get('tw2'): ad(mem, s0 + 3, lambda tl=tl, o=o: comb_write(tl, f'v{o}'))
        elif tl % 2: ad(mem, s0 + 3, lambda tl=tl, o=o: comb_write(tl, f'v97, v{o}'))
    fl, fv = fill(bs + 4 - NE, cs + 1)
    for k, fs in fv.items():
        for f in fs: ad(val, k, f)
    if cfg.get('stamps'):
        for k in cfg.get('fine', [0]): ad(fl, k, lambda: w.stamp())
    for n, (tl, t) in enumerate(order):
        for f in pre.get(n, []): f()
        w.wait(lg=f'M{t}')
        w(smf(ACC[tl], vr(MR[t], 4), wreg(tl * 7 + t), vIDX))
        for f in mem.get(n, []): f()
        for f in fl.get(n, []): f()
        for f in val.get(n, []): f()
    assert all(k < 49 for k in fl)
    return [f for k in range(49, 56) for f in mem.get(k, []) + val.get(k, [])]

def l_retry(w, lab, tmp, tmo):
    w(f'{lab}_lretry:\ns_mov_b32 s33, m0\n{lab}_lretry2:')
    w(f's_add_u32 {sRETRY}, {sRETRY}, 1\ns_barrier\ns_mov_b32 m0, s39')
    w(f's_sub_u32 {sSPIN}, {sSPIN}, 4\ns_cbranch_scc1 {tmo}')
    w(f'buffer_load_dwordx4 {vL16}, {SRD}, s38 offen sc1 lds\ns_waitcnt vmcnt(0)\ns_barrier')
    for t in (4, 5, 6): w(f'ds_read_b128 {vr(MREGA[t],4)}, {vKA[4]} offset:{t*1024}')
    w('s_waitcnt lgkmcnt(0)')
    sentinel_check(w, list(range(0, 12)), f'v{tmp}')
    w(f's_cbranch_vccnz {lab}_lretry2\ns_mov_b32 m0, s33\ns_branch {lab}_lok')

def m_retry(w, lab, tmo):
    w(f'{lab}_mretry:')
    w(f's_add_u32 {sRETRY}, {sRETRY}, 1')
    w(f's_sub_u32 {sSPIN}, {sSPIN}, 8\ns_cbranch_scc1 {tmo}\ns_waitcnt vmcnt(0) lgkmcnt(0)')
    zero(w, 28, 28)
    w(f's_branch {lab}_mload')

def wait_lanes(A, lab, addr, target, tmo):
    em = Emitter(A, [f'v{i}' for i in range(4, 13)])
    A(f's_cmp_lg_u32 s9, 0\ns_cbranch_scc1 {lab}_go')
    em.emit(addr, 'v1'); em.emit(target, 'v2')
    A(f's_mov_b32 s19, 0x40000\n{lab}:\nbuffer_load_dword v3, v1, {SRD}, 0 offen sc1')
    A(f's_sub_u32 s19, s19, 1\ns_cbranch_scc1 {tmo}\ns_waitcnt vmcnt(0)\nv_cmp_gt_u32 vcc, v2, v3\ns_cbranch_vccnz {lab}')
    A(f'{lab}_go:\ns_barrier')

def emit_modes(A, cfg, lab, loop):
    if cfg.get('modes', 2) == 1:
        loop(lab, cfg.get('st', '')); return
    A(f's_cmp_lg_u32 s30, 0\ns_cbranch_scc1 {lab}_slow')
    loop(lab + 'x', '')
    A(f'{lab}_slow:')
    loop(lab + 'y', 'sc1')

def load_weights(w, addr_of):
    n = 0
    for tl in range(7):
        for t in range(7):
            for b in range(2):
                va, pre = addr_of(tl, t, b)
                w(pre)
                w(f'buffer_load_dwordx4 {wquad(tl*7+t, b)}, {va}, {SRD}, s11 offen {w.cfg.get("wfl", "")}')
                n += 1
                if n % 16 == 0: w(f's_waitcnt vmcnt({w.cfg.get("wdepth", 32)})')

A_X, A_T, A_R = 0, 65536, 77824
Z0, Z1, SACC, TSP0, TSP1, TMP = 56, 12, 80, 36, 40, 92
aKR, aKR3, aTW, aTW6, aTR, aXR, aRW, aRR = 'v108', 'v107', 'v106', 'v105', 'v104', 'v103', 'v102', 'v101'
aP, aKR2, aPOLL = 'v100', 'v99', 'v96'
sQ = ['s21', 's22', 's23', 's24']
sXS, sXL, sPW, sPR, sWL, sMASK = 's25', 's26', 's27', 's28', 's32', 's[52:53]'

def a_exprs(R128=False):
    l = V('v0'); w = Sg(sW); h = Sg(sR)
    g = l >> 4; rho = l & 15
    half = (rho >> 1) & 1
    q0 = (w >> 1) * 7 + (w & 1) * 4; q3 = (w >> 1) * 7 + 3
    e = {}
    i = rho & 7
    kr = L_K + ((g >> 1) * 16 + (i >> 1) * 4 + (i & 1)) * 16 + (g & 1) * 8
    e[aKR] = kr + q0 * 512
    e[aKR3] = kr + q3 * 512
    e[aKR2] = kr + q0 * 512 + 1024
    tw = A_T + w * 3072 + (rho >> 2) * 192 + (rho & 1) * 32 + g * 8 + half * 4
    e[aTW] = tw
    e['v98'] = tw + 1536
    e[aTW6] = tw + 2304 + (w & 1) * 64
    e[aTR] = A_T + w * 3072 + g * 384 + ((l >> 3) & 1) * 64 + ((l >> 2) & 1) * 32 + (l & 3) * 8
    e[aXR] = A_X + w * 8192 + l * 16
    e[aRW] = A_R + w * 1536 + g * 384 + rho * 4
    if R128: e[aRW] = A_R + g * 1536 + (rho >> 1) * 32 + (w ^ g) * 8 + (rho & 1) * 4
    rr = l >> 5; pi = l & 31; pc = pi.min(19)
    e[aRR] = A_R + (w * 2 + rr) * 192 + sel_lt(pc, 4, pc * 8, pc * 8 + 32)
    if R128: e[aRR] = A_R + (w * 2 + rr) * 768 + sel_lt(pc, 4, pc * 32, pc * 32 + 128)
    row = w * 2 + rr
    rho_of = lambda hf: (row >> 1) * 4 + hf * 2 + (row & 1)
    pm = ((h >> 3) + 8) * 1024 + (((h >> 1) & 3) * 16 + rho_of(pi & 1)) * 16 + ((h & 1) * 2 + ((pi >> 1) & 1)) * 4
    t0 = (pc - 4) * 2
    px = (h >> 1) * 1024 + (((h & 1) * 2 + ((t0 >> 3) & 1)) * 16 + rho_of((t0 >> 1) & 1)) * 16 + (((t0 >> 2) & 1) * 2 + ((t0 >> 4) & 1)) * 4
    e[aP] = sel_lt(pi, 4, pm, sel_lt(pi, 20, px, OOB))
    return e

def check_a_exprs():
    e = a_exprs(); l = np.arange(64)
    for h in (0, 1, 7, 8, 15):
        for w in range(4):
            env = {'v0': l, sW: w, sR: h}
            p = ev(e[aP], env)
            for ln in range(64):
                pi = ln & 31
                assert p[ln] == (ps_off(h, 2 * w + (ln >> 5), pi) if pi < 20 else OOB)
check_a_exprs()

def gen_A(A, cfg, lab, tmo):
    w = Wv(A, cfg)
    em = Emitter(A, [f'v{i}' for i in range(2, 30)])
    a_consts(em, A)
    for k, x in a_exprs(cfg.get('r128')).items(): em.emit(x, k)
    l = V('v0')
    em.emit(HU1 + (l & 15) * 4, vHUp)
    em.emit(sel_lt(l + Sg(sW) * 64, 1, HU2 + Sg(sR) * 4, OOB), vHUs)
    nt = cfg.get('ntouch', 0)
    if nt:
        a = Sg(sR) * 4 + Sg(sW)
        em.emit(sel_lt(l, nt, ((a >> 5) * 1792 + (1792 - 32 * nt) + (a & 31) * nt + l) * 128, OOB), 'v110')
    A(f's_mov_b32 s52, 0xfffff\ns_mov_b32 s53, 0xfffff')
    A(f's_lshr_b32 s11, {sW}, 1')
    A(f's_mul_i32 s34, s11, 7\ns_and_b32 s35, {sW}, 1\ns_lshl_b32 s36, s35, 2\ns_add_u32 s36, s36, s34')
    for u in range(3): A(f's_add_u32 s37, s36, {u}\ns_lshl_b32 {sQ[u]}, s37, 10')
    A(f's_add_u32 s37, s34, 3\ns_lshl_b32 {sQ[3]}, s37, 10')
    A(f's_lshl_b32 {sWL}, {sW}, 13')
    A(f's_mul_i32 s38, {sR}, {28*14336}\ns_add_u32 s38, s38, {AF}')
    A(f's_mul_i32 s39, s35, 14336')
    def addr(tl, t, b):
        pre = f's_mul_i32 s11, {sQ[tl>>1]}, 28\ns_add_u32 s11, s11, s38\n'
        pre += (f's_add_u32 s11, s11, {14336*(tl&1) + 1024*b}\n' if tl < 6 else f's_add_u32 s11, s11, s39\ns_add_u32 s11, s11, {1024*b}\n')
        pre += f's_lshl_b32 s37, {sKK[t]}, 1\ns_add_u32 s11, s11, s37'
        return vL16, pre
    sXo = ['s44', 's45', 's46', 's47']; sXm = ['s48', 's49', 's50', 's51']
    def x_consts():
        A(f's_add_u32 {sXo[0]}, {sXS}, {sQ[0]}\ns_add_u32 {sXo[1]}, {sXS}, {sQ[3]}')
        A(f's_add_u32 {sXo[2]}, {sXo[0]}, 14336\ns_add_u32 {sXo[3]}, {sXo[1]}, 14336')
        A(f's_mov_b32 {sXm[0]}, {sXL}\ns_add_u32 {sXm[1]}, {sXL}, 3072\ns_add_u32 {sXm[2]}, {sXL}, 4096\ns_add_u32 {sXm[3]}, {sXL}, 7168')
    def x_m0(tt, u):
        if u in (0, 3): A(f's_mov_b32 m0, {sXm[2*tt + (u == 3)]}')
    def x_dma(tt, u, w=w):
        w.vmem(f'buffer_load_dwordx4 {vL16}, {SRD}, {sXo[2*tt + (u == 3)]} offen offset:{1024*u if u < 3 else 0} lds', 'X')
    if cfg.get('pre_a'): cfg['pre_a']()
    A(f's_mov_b32 {sXS}, {XF}\ns_mov_b32 {sXL}, {sWL}')
    x_consts()
    for tt in range(2):
        for u in range(4): x_m0(tt, u); x_dma(tt, u)
    load_weights(w, addr)
    em.emit(A_T + Sg(sW) * 3072 + l * 16, 'v1')
    A('v_mov_b64 v[4:5], 0\nv_mov_b64 v[6:7], 0')
    for k in range(3): A(f'ds_write_b128 v1, v[4:7] offset:{k*1024}')
    zero(w, 28, 28); zero(w, SACC, 12)
    A(f's_mov_b32 {sSTEP}, 0\ns_mov_b32 {sSPIN}, {SPIN_MAX}\ns_mov_b32 {sRETRY}, 0')
    cfg['start_sync'](w, lab)
    A('s_waitcnt vmcnt(0) lgkmcnt(0)'); w.vm = []; w.lg = []
    def loop(lab, st):
        w = Wv(A, cfg)
        A(f'{lab}_loop:')
        cfg['loop_top'](w, lab)
        a_step_consts(A, cfg.get('solo'))
        A(f's_lshl_b32 s33, s11, 14\ns_add_u32 {sPW}, s33, {PS}\ns_xor_b32 {sPR}, {sPW}, 0x8000')
        A(f's_mul_i32 {sXS}, {sS1}, {0 if cfg.get("xsame") else 28672}' + (f'\ns_add_u32 {sXS}, {sXS}, {XF}' if XF else ''))
        A(f's_and_b32 s11, {sS1}, 1\ns_lshl_b32 s11, s11, 15\ns_add_u32 {sXL}, s11, {sWL}')
        x_consts()
        if nt: A(f's_add_u32 s11, {sSTEP}, 2\ns_min_u32 s11, s11, {NSEG-1}\ns_mul_i32 s35, s11, {VX_SEG}\ns_add_u32 s34, s35, {VXF}')
        A(f'v_mov_b32 v{TMP+3}, {sS1}')
        for r in range(MREGA[0], MREGA[0] + 4 * cfg.get('ne', 2), 2): A(f'v_mov_b64 {vr(r,2)}, -1')
        w.stamp()
        gate = cfg.get('gate', 'w0')
        if gate == 'w0':
            A(f's_cmp_lg_u32 {sW}, 0\ns_cbranch_scc1 {lab}_nopoll')
            if not cfg.get('solo'): poll(w, f'{lab}_poll1', aPOLL, sSTEP, tmo, 16)
            A(f'{lab}_nopoll:\ns_barrier')
        elif gate == 'all':
            poll(w, f'{lab}_poll1', aPOLL, sSTEP, tmo, 16)
        w.stamp()
        for _ in range(cfg.get('adelay', 0)): A('s_nop 15')
        xpos = cfg.get('xpos', [14, 19, 24, 29, 34, 39, 44, 50])
        def xat(p):
            if nt and cfg.get('tslot', 27) == p: w.vmem(f'buffer_load_dword v109, v110, {SRD}, s34 offen', 'T')
            for k in range(8):
                if xpos[k] == p: x_m0(k >> 2, k & 3); x_dma(k >> 2, k & 3, w)
        def fill(f0, k0):
            d = {}; dv = {}
            add = lambda n, f: d.setdefault(n, []).append(f)
            def kq(n, reg, areg, off, tag, ns):
                if cfg.get('kr2'):
                    r2 = areg if off < 1024 else aKR2
                    o = (off & 1023) // 4
                    add(n, lambda: w.ds(f'ds_read2_b32 {vr(reg,2)}, {r2} offset0:{o} offset1:{o+8}', tag))
                    add(n, lambda: w.ds(f'ds_read2_b32 {vr(reg+2,2)}, {r2} offset0:{o+1} offset1:{o+9}', tag))
                    return
                add(n, lambda: w.ds(f'ds_read_b64 {vr(reg,2)}, {areg} offset:{off}', tag))
                add(n, lambda: w.ds(f'ds_read_b64 {vr(reg+2,2)}, {areg} offset:{off+32}', tag))
                if cfg.get('lswap', 1): return
                add(ns, lambda: w.wait(lg=tag))
                dv.setdefault(ns, []).append(lambda: w(f'v_swap_b32 v{reg+1}, v{reg+2}'))
            n = f0
            for tt in range(2):
                for uu in range(2):
                    add(n, lambda tt=tt, uu=uu: w.ds(f'ds_read_b128 {vr(Z0+8*(1+tt)+4*uu,4)}, {aXR} offset:{(tt*4+uu)*1024}', 'Z0')); n += 1
            for k in range(8):
                if xpos[k] < 49:
                    add(xpos[k] - 1, lambda k=k: x_m0(k >> 2, k & 3))
                    add(xpos[k], lambda k=k: x_dma(k >> 2, k & 3, w))
            if nt and cfg.get('tslot', 27) < 49: add(cfg.get('tslot', 27), lambda: w.vmem(f'buffer_load_dword v109, v110, {SRD}, s34 offen', 'T'))
            ks = cfg.get('kswap', [36, 39, 42, 45])
            kq(k0, Z0, aKR, 0, 'K0', ks[0]); kq(k0 + 1, Z0 + 4, aKR, 512, 'K1', ks[1])
            kq(k0 + 3, Z1, aKR, 1024, 'K2', ks[2]); kq(k0 + 4, Z1 + 4, aKR3, 0, 'K3', ks[3])
            for k, sl in enumerate((36, 37, 39, 40)):
                tt, uu = k >> 1, k & 1
                add(sl, lambda tt=tt, uu=uu: w.ds(f'ds_read_b128 {vr(Z1+8*(1+tt)+4*uu,4)}, {aXR} offset:{(tt*4+2+uu)*1024}', 'Z1'))
            add(45, lambda: w.ds(f'ds_read_b64_tr_b16 {vr(TSP0,2)}, {aTR}', 'TS0'))
            add(46, lambda: w.ds(f'ds_read_b64_tr_b16 {vr(TSP0+2,2)}, {aTR} offset:192', 'TS0'))
            return d, dv
        def tw(tl, reg):
            if ',' in reg:
                u = tl >> 1
                w.ds(f'ds_write2_b32 {aTW if u < 2 else "v98"}, {reg} offset0:{(u&1)*192} offset1:{(u&1)*192+16}')
            elif tl < 6: w.ds(f'ds_write_b32 {aTW}, {reg} offset:{(tl>>1)*768 + (tl&1)*64}')
            else: w.ds(f'ds_write_b32 {aTW6}, {reg}')
        rest = a_stream(w, fill, tw, lab, TMP, tmo)
        w.stamp()
        w.wait(lg='TS0')
        o0 = (1, 2, 0) if cfg.get('lswap', 1) else (0, 1, 2)
        w(smf(SACC + 4 * o0[0], vr(TSP0, 4), vr(Z0 + 8 * o0[0], 8), vIDX))
        rest[0]()
        w(smf(SACC + 4 * o0[1], vr(TSP0, 4), vr(Z0 + 8 * o0[1], 8), vIDX))
        for f in rest[1:]: f()
        w(f'v_add_f32 v{TMP}, v{ACC[6]}, v{ACC[6]+2}\nv_add_f32 v{TMP+1}, v{ACC[6]+1}, v{ACC[6]+3}')
        w(f'v_cvt_pk_bf16_f32 v{TMP+2}, v{TMP}, v{TMP+1}')
        tw(6, f'v{TMP+2}')
        w.ds(f'ds_read_b64_tr_b16 {vr(TSP1,2)}, {aTR} offset:1536', 'TS1')
        w.ds(f'ds_read_b64_tr_b16 {vr(TSP1+2,2)}, {aTR} offset:{1536+192}', 'TS1')
        if cfg.get('lswap', 1) and not cfg.get('kr2'):
            for r in (Z0, Z0 + 4, Z1, Z1 + 4): w(f'v_swap_b32 v{r+1}, v{r+2}')
        w(smf(SACC + 4 * o0[2], vr(TSP0, 4), vr(Z0 + 8 * o0[2], 8), vIDX))
        xat(50)
        w.wait(lg='TS1')
        for kt in o0: w(smf(SACC + 4 * kt, vr(TSP1, 4), vr(Z1 + 8 * kt, 8), vIDX))
        for kt in o0:
            w(f'v_add_f32 v{56+2*kt}, v{SACC+4*kt}, v{SACC+4*kt+2}\nv_add_f32 v{57+2*kt}, v{SACC+4*kt+1}, v{SACC+4*kt+3}')
            if cfg.get('r128'): w.ds(f'ds_write2st64_b32 {aRW}, v{56+2*kt}, v{57+2*kt} offset0:{kt} offset1:{kt+3}')
            else: w.ds(f'ds_write2_b32 {aRW}, v{56+2*kt}, v{57+2*kt} offset0:{16*kt} offset1:{16*kt+48}')
        hu2 = lambda: w.vmem(f'buffer_store_dword v{TMP+3}, {vHUs}, {SRD}, 0 offen {st}')
        hp = cfg.get('hu2pos', 0)
        w.stamp()
        if hp == -1: hu2()
        xat(51)
        w.wait_all_lg()
        A('s_barrier')
        if cfg.get('r128'):
            for k in range(2): w.ds(f'ds_read_b128 {vr(64+4*k,4)}, {aRR} offset:{k*16}', f'R{2*k+1}')
        else:
            for k in range(4): w.ds(f'ds_read_b64 {vr(64+2*k,2)}, {aRR} offset:{k*1536}', f'R{k}')
        if hp == 0: hu2()
        xat(52)
        w.stamp()
        w.wait(lg='R1'); w('v_pk_add_f32 v[64:65], v[64:65], v[66:67]')
        w.wait(lg='R3'); w('v_pk_add_f32 v[68:69], v[68:69], v[70:71]')
        w('v_pk_add_f32 v[64:65], v[64:65], v[68:69]')
        if hp == 1: hu2()
        for _ in range(cfg.get('apad', 0)): A('s_nop 15')
        w('v_max_f32 v66, v64, v65')
        for k, r in enumerate((8, 4, 2, 1)):
            if hp == 2 + k: hu2()
            xat(53 + k)
            w(f'v_max_f32_dpp v66, v66, v66 row_ror:{r} row_mask:0xf bank_mask:0xf')
        w('v_mov_b32 v67, v66')
        w('v_permlane16_swap_b32 v66, v67')
        w('v_max_f32 v66, v66, v67')
        w('v_pk_add_f32 v[64:65], v[64:65], v[66:67] op_sel_hi:[1,0] neg_lo:[0,1] neg_hi:[0,1]')
        w('v_exp_f32 v64, v64\nv_exp_f32 v65, v65')
        if hp == 6: hu2()
        w('v_add_f32 v66, v64, v65')
        w(f'v_cndmask_b32 v66, 0, v66, {sMASK}')
        for k, r in enumerate((8, 4, 2, 1)):
            if hp == 7 + k: hu2()
            xat(57 + k)
            w(f'v_add_f32_dpp v66, v66, v66 row_ror:{r} row_mask:0xf bank_mask:0xf')
        w('v_mov_b32 v67, v66\nv_permlane16_swap_b32 v66, v67\nv_add_f32 v66, v66, v67')
        w('v_rcp_f32 v66, v66')
        if hp == 11: hu2()
        w('v_pk_mul_f32 v[64:65], v[64:65], v[66:67] op_sel_hi:[1,0]')
        w('v_cvt_pk_bf16_f32 v64, v64, v65')
        w('v_min_u32 v64, -2, v64')
        w.vmem(f'buffer_store_dword v64, {aP}, {SRD}, {sPW} offen {st}')
        if hp == 99: hu2()
        w.stamp()
        if cfg.get('ack'): w.wait_all_vm(); w.stamp()
        def later():
            w('v_mov_b32 v65, -1')
            w.vmem(f'buffer_store_dword v65, {aP}, {SRD}, {sPR} offen {st}')
            xat(99)
        lp = cfg.get('lpos', 1)
        if lp == 0: later()
        zero(w, 28, 28); zero(w, SACC, 12)
        w(f'v_xor_b32 {aXR}, 0x8000, {aXR}')
        if lp == 2: A('s_barrier')
        if lp >= 1: later()
        w.dump_stamps(lab)
        A(f's_mov_b32 {sSPIN}, {SPIN_MAX}')
        A(f's_mov_b32 {sSTEP}, {sS1}\ns_cmp_lt_u32 {sSTEP}, {NSEG-1}\ns_cbranch_scc1 {lab}_loop')
        cfg['finish'](w, lab)
        A('s_endpgm')
        l_retry(w, lab, TMP, tmo)

    emit_modes(A, cfg, lab, loop)

B_VX, B_V = 0, 65536
bVW, bWR, bVR, bMS, bSEL = 'v108', 'v107', 'v106', 'v105', 'v104'
bMX, bFL, bVL, bPOLL = 'v107', 'v106', 'v105', 'v104'
bTO, bINC, bFLAG = 'v99', 'v98', 'v97'
bDM = [f'v{89+k}' for k in range(7)]
BT = 100
FACC = 96
sVS, sVL, sMW, sMR, sMXO = 's25', 's26', 's27', 's28', 's29'

def bcol(j, c):
    return sel_lt(c, 16, j * 16 + c, j * 12 + c + 240)

def b_exprs_final():
    l = V('v0'); w = Sg(sW); j = Sg(sR)
    g = l >> 4; n = l & 15; c = w * 16 + n
    e = {}
    e[bWR] = B_VX + (g * 28 + c.min(27)) * 16
    e[bVR] = B_V + (g * 28 + c.min(27)) * 16
    i = g * 2 + (n & 1); d0 = bcol(j, c & 30)
    k = d0 & 63
    off = (d0 >> 6) * 1024 + ((k >> 4) * 16 + (i >> 1) * 4 + ((k >> 1) & 1) * 2 + (i & 1)) * 16 + ((k >> 2) & 3) * 4
    e[bMS] = sel_lt(c, 28, off, OOB)
    e[bSEL] = sel_lt(n & 1, 1, 0x05040100, 0x03020706)
    return e
def check_b():
    e = b_exprs_final(); l = np.arange(64)
    for j in (0, 1, 5, 15):
        for w in range(2):
            p = ev(e[bMS], {'v0': l, sW: w, sR: j})
            for ln in range(64):
                c = 16 * w + (ln & 15)
                assert p[ln] == (ms_off(2 * (ln >> 4) + (ln & 1), (16 * j if c < 16 else 12 * j + 240) + (c & ~1)) if c < 28 else OOB)
check_b()

def gen_B(A, cfg, lab, tmo):
    w = Wv(A, cfg)
    em = Emitter(A, [f'v{i}' for i in list(range(2, 20)) + list(range(28, 56))])
    A(f's_add_u32 s39, {sR}, 1')
    common_consts(em, A, lab, 's39')
    l = V('v0'); ww = Sg(sW); j = Sg(sR)
    em.emit(B_V + (ww * 112 + (l & 15)) * 16 + (l >> 4) * 4, bVW)
    for tl in range(7):
        f = ww * 112 + tl * 16 + (l & 15); hh = f.div(28)
        em.emit((hh * 56 + (l >> 4)) * 7168 + bcol(j, f - hh * 28) * 16, f'v{20+tl}')
    def addr(tl, t, b):
        return f'v{20+tl}', f's_mul_i32 s11, {sKK[t]}, 56\ns_add_u32 s11, s11, {BF + 28672*b}'
    def vw(tl, reg): w.ds(f'ds_write_b32 {bVW}, {reg} offset:{tl*256}')
    def tail6(rest):
        for f in rest: f()
        w(f'v_add_f32 v{BT}, v{ACC[6]}, v{ACC[6]+2}\nv_add_f32 v{BT+1}, v{ACC[6]+1}, v{ACC[6]+3}')
        w(f'v_cvt_pk_bf16_f32 v{BT+2}, v{BT}, v{BT+1}')
        vw(6, f'v{BT+2}')
    rot = sR if cfg.get('prot', 1) else '0'
    for q in range(4): A(f's_add_u32 s{48+q}, {rot}, {q}\ns_and_b32 s{48+q}, s{48+q}, 3\ns_lshl_b32 s{48+q}, s{48+q}, 11')
    if cfg.get('pre_b'): cfg['pre_b']()
    A(f's_cmp_ge_u32 {sW}, 2\ns_cbranch_scc1 {lab}_loader')
    for k, x in b_exprs_final().items(): em.emit(x, k)
    em.emit(sel_lt(l, 1, HU1 + 128 + (j * 2 + ww) * 4, OOB), vHUs)
    em.emit(HU2 + (l & 15) * 4, vHUp)
    load_weights(w, addr)
    zero(w, 28, 28)
    A(f's_mov_b32 {sSTEP}, 0\ns_mov_b32 {sSPIN}, {SPIN_MAX}\ns_mov_b32 {sRETRY}, 0')
    cfg['start_sync'](w, lab + 'f')
    A('s_waitcnt vmcnt(0) lgkmcnt(0)')
    def loopf(lf, st, second):
        nonlocal w
        w = Wv(A, cfg)
        PREG = [4 * m for m in range(10)]
        one = cfg.get('onebar', 1)
        if one:
            order = list(range(10))
            WREG = {0: 56, 1: 64, 2: 72, 3: 80, 4: 88, 5: 40, 6: 48, 7: 56, 8: 64, 9: 72}
        else:
            order = [0, 1, 2, 3, 4, 8, 9, 5, 6, 7]
            WREG = {0: 56, 1: 64, 2: 72, 3: 80, 4: 88, 8: 40, 9: 48, 5: 56, 6: 64, 7: 72}
        sPO = ['s22', 's23', 's24', 's45', 's46']
        def wx(m, b):
            if m < 8: w.ds(f'ds_read_b128 {vr(WREG[m]+4*b,4)}, {bWR} offset:{(2*m+b)*1792}', f'W{m}')
            else: w.ds(f'ds_read_b128 {vr(WREG[m]+4*b,4)}, {bVR} offset:{(2*(m-8)+b)*1792}', f'W{m}')
        A(f'{lf}_loop:')
        step_consts(A)
        A(f's_lshl_b32 s11, s11, 14\ns_add_u32 s11, s11, {PS}\ns_add_u32 s46, s11, 8192')
        for q in range(4): A(f's_add_u32 {sPO[q]}, s11, s{48+q}')
        A(f's_and_b32 s11, {sS1}, 3\ns_lshl_b32 s11, s11, 13\ns_add_u32 {sMW}, s11, {MS}\ns_xor_b32 {sMR}, {sMW}, 0x4000')
        A(f'v_mov_b32 v{BT+3}, {sS1}\nv_mov_b64 {vr(FACC,2)}, 0\nv_mov_b64 {vr(FACC+2,2)}, 0')
        if cfg.get('bpoll'):
            for r in range(MREG[0], MREG[0] + 8, 2): A(f'v_mov_b64 {vr(r,2)}, -1')
        w.stamp()
        A('s_barrier')
        w.stamp()
        def fillf(f0):
            d = {}
            for m in range(5):
                for b in range(2): d.setdefault(f0 + 2 * m + b, []).append(lambda m=m, b=b: wx(m, b))
            return d, {}
        tail6(weight_stream(w, fillf, vw, lf, BT, tmo, cfg.get('bpoll')))
        for _ in range(cfg.get('vpad', 0)): A('s_nop 15')
        w.stamp()
        if one:
            for m in (5, 6): wx(m, 0); wx(m, 1)
            w.wait_all_lg()
            w.stamp()
            if second: A('s_barrier')
            else: poll(w, f'{lf}_poll2', f'v{BT+2}', sS1, tmo, 16)
        else:
            w.wait_all_lg()
            A('s_barrier')
            A(f's_cmp_eq_u32 {sSTEP}, {NSEG-1}\ns_cbranch_scc1 {lf}_done')
            for m in (8, 9): wx(m, 0); wx(m, 1)
            w.stamp()
            if cfg.get('b0poll'):
                if second: A('s_barrier')
                else: poll(w, f'{lf}_poll2', f'v{BT+2}', sS1, tmo, 16)
            else:
                A('s_barrier')
                if second: A('s_barrier')
        w.stamp()
        def ploads():
            for k, m in enumerate(order):
                w.vmem(f'buffer_load_dwordx4 {vr(PREG[k],4)}, {vL16}, {SRD}, {sPO[m>>1]} offen offset:{(m&1)*1024} sc1', f'P{k}')
        ploads()
        if not second: A('s_barrier')
        A(f'{lf}_pchain:')
        for _ in range(cfg.get('bpad', 0)): A('s_nop 15')
        for k, m in enumerate(order):
            w.wait(vm=f'P{k}', lg=f'W{m}')
            if k == 0: w.stamp()
            w(smf(FACC, vr(PREG[k], 4), vr(WREG[m], 8), vIDX))
            if k < 3: wx((7 if one else 5) + k, 0); wx((7 if one else 5) + k, 1)
        w(f'v_add_f32 v{BT}, v{FACC}, v{FACC+2}\nv_add_f32 v{BT+1}, v{FACC+1}, v{FACC+3}')
        w(f'v_cmp_u_f32 vcc, v{BT}, v{BT+1}')
        w(f'v_cvt_pk_bf16_f32 v{BT}, v{BT}, v{BT+1}')
        w(f'v_mov_b32_dpp v{BT+1}, v{BT} quad_perm:[1,0,3,2] row_mask:0xf bank_mask:0xf')
        w(f'v_perm_b32 v{BT}, v{BT+1}, v{BT}, {bSEL}')
        w(f'v_min_u32 v{BT}, -2, v{BT}')
        w(f's_cbranch_vccnz {lf}_pretry\n{lf}_pok:')
        w.vmem(f'buffer_store_dword v{BT}, {bMS}, {SRD}, {sMW} offen {st}')
        if cfg.get('lastmx', 1):
            A(f's_cmp_eq_u32 {sSTEP}, {NSEG-2}\ns_cbranch_scc1 {lf}_last')
        w.stamp()
        if cfg.get('ack'): w.wait_all_vm(); w.stamp()
        w(f'v_mov_b32 v{BT+1}, -1')
        w.vmem(f'buffer_store_dword v{BT+1}, {bMS}, {SRD}, {sMR} offen {st}')
        if not cfg.get('bpoll'): w.vmem(f'buffer_store_dword v{BT+3}, {vHUs}, {SRD}, 0 offen {st}')
        zero(w, 28, 28)
        w(f'v_xor_b32 {bWR}, 0x8000, {bWR}')
        w.dump_stamps(lf)
        A(f's_mov_b32 {sSPIN}, {SPIN_MAX}\ns_mov_b32 {sSTEP}, {sS1}\ns_branch {lf}_loop')
        if cfg.get('lastmx', 1):
            A(f'{lf}_last:\ns_mov_b32 s11, {MX + (NSEG-1)*7168}\nbuffer_store_dword v{BT}, {bMS}, {SRD}, s11 offen sc1')
        A(f'{lf}_done:')
        cfg['finish'](w, lf)
        A('s_endpgm')
        m_retry(w, lf, tmo)
        A(f'{lf}_pretry:\ns_waitcnt vmcnt(0) lgkmcnt(0)')
        sentinel_check(w, list(range(0, 40)), f'v{BT+2}')
        A(f's_cbranch_vccz {lf}_pok')
        A(f's_add_u32 {sRETRY}, {sRETRY}, 0x10000\ns_sub_u32 {sSPIN}, {sSPIN}, 8\ns_cbranch_scc1 {tmo}')
        for m in range(3): wx(m, 0); wx(m, 1)
        A(f'v_mov_b64 {vr(FACC,2)}, 0\nv_mov_b64 {vr(FACC+2,2)}, 0\ns_waitcnt lgkmcnt(0)')
        ploads()
        A(f's_branch {lf}_pchain')
    A(f's_cmp_eq_u32 {sW}, 1\ns_cbranch_scc1 {lab}_second')
    emit_modes(A, cfg, lab + 'f', lambda lf, st: loopf(lf, st, False))
    A(f'{lab}_second:')
    emit_modes(A, cfg, lab + 'g', lambda lf, st: loopf(lf, st, True))
    ll = lab + 'l'
    A(f'{lab}_loader:')
    w = Wv(A, cfg)
    for r in range(7):
        f = l + 64 * r; hg = f.div(28)
        em.emit(hg * 7168 + bcol(j, f - hg * 28) * 16 + (4096 - (r & 3) * 1024), bDM[r])
    em.emit(sel_lt(ww, 3, HU1 + 128 + (l & 31) * 4, HU2 + (l & 15) * 4), vHUp)
    em.emit(sel_lt(l + (3 - ww) * 64, 1, HU1 + j * 4, OOB), vHUs)
    em.emit(sel_lt(j + (3 - ww) * 16, 7, j * 1024 + l * 16, OOB), bMX)
    xl = (j * 2 + ww - 2) * 7 + l
    em.emit(sel_lt(l, 7, XF + 2 * 28672 + xl * 128, sel_lt(l, 63, OOB, FVX + 2 * 128)), bTO)
    em.emit(sel_lt(l, 63, 28672, 128), bINC)
    A(f'v_mov_b32 {bFLAG}, 16')
    A(f's_sub_u32 s11, {sW}, 2\ns_mul_i32 s23, s11, 14336\ns_cmp_eq_u32 s11, 0\ns_cselect_b32 s24, s48, s50\ns_cselect_b32 s45, s49, s51')
    A(f's_mul_i32 s24, s24, 56\ns_add_u32 s24, s24, {VXF - 4096}\ns_mul_i32 s45, s45, 56\ns_add_u32 s45, s45, {VXF - 4096}')
    def vx_m0(k):
        if k % 7 in (0, 4): w(f's_add_u32 m0, {sVL}, {k*1024}')
    def vx_dma(k):
        w.vmem(f'buffer_load_dwordx4 {bDM[k%7]}, {SRD}, {sVS if k < 7 else "s44"} offen offset:{((k%7)&3)*1024} lds', 'D')
    load_weights(w, addr)
    zero(w, 28, 28)
    A(f's_mov_b32 {sSTEP}, 0\ns_mov_b32 {sSPIN}, {SPIN_MAX}\ns_mov_b32 {sRETRY}, 0')
    cfg['start_sync'](w, ll)
    A(f's_mov_b32 {sVS}, s24\ns_mov_b32 s44, s45\ns_mov_b32 {sVL}, s23')
    for k in range(14): vx_m0(k); vx_dma(k)
    def loopl(ll, st):
        nonlocal w
        w = Wv(A, cfg)
        A(f'{ll}_loop:')
        step_consts(A)
        A(f's_min_u32 s11, {sS1}, {0 if cfg.get("vxsame") else NSEG-1}\ns_mul_i32 s11, s11, {VX_SEG}\ns_add_u32 {sVS}, s11, s24\ns_add_u32 s44, s11, s45')
        A(f's_and_b32 s11, {sS1}, 1\ns_lshl_b32 s11, s11, 15\ns_add_u32 {sVL}, s11, s23')
        A(f's_mul_i32 {sMXO}, {sSTEP}, 7168\ns_add_u32 {sMXO}, {sMXO}, {MX}')
        if cfg.get('bpoll'):
            for r in range(MREG[0], MREG[0] + 8, 2): A(f'v_mov_b64 {vr(r,2)}, -1')
        A('s_waitcnt vmcnt(0)')
        A(f's_cmp_ge_u32 {sSTEP}, {NSEG-1}\ns_cbranch_scc1 {ll}_fok')
        A(f'{ll}_fchk:\nv_readlane_b32 s11, {bFLAG}, 63\ns_nop 0\ns_cmp_ge_u32 s11, 16\ns_cbranch_scc1 {ll}_fok')
        A(f's_lshl_b32 s11, {sS1}, 7\ns_add_u32 s11, s11, {FVX}')
        A(f'buffer_load_dword {bFLAG}, off, {SRD}, s11 sc1')
        A(f's_sub_u32 {sSPIN}, {sSPIN}, 1\ns_cbranch_scc1 {tmo}\ns_waitcnt vmcnt(0)\ns_branch {ll}_fchk\n{ll}_fok:')
        w.stamp()
        if not cfg.get('bpoll'):
            A(f's_cmp_lg_u32 {sW}, 2\ns_cbranch_scc1 {ll}_nopoll')
            poll(w, f'{ll}_poll1', bPOLL, sSTEP, tmo, 32)
            A(f'{ll}_nopoll:')
        A('s_barrier')
        w.stamp()
        d0 = cfg.get('dslot', 2); dstep = cfg.get('dstep', 2); ne = cfg.get('dearly', 0)
        def early():
            for k in range(ne): vx_m0(k); vx_dma(k)
        def filll(f0):
            d = {}
            add = lambda n, f: d.setdefault(n, []).append(f)
            for k in range(ne, 14):
                add(d0 + dstep * (k - ne) - 1, lambda k=k: vx_m0(k))
                add(d0 + dstep * (k - ne), lambda k=k: vx_dma(k))
            add(d0 + dstep * (14 - ne), lambda: w.vmem(f'buffer_load_dword {bFLAG}, {bTO}, {SRD}, 0 offen sc1', 'D'))
            if not cfg.get('nomx'):
                add(max(f0 - 4, cfg.get('vslot', 0)), lambda: w.vmem(f'buffer_store_dwordx4 {vr(MREG[0],4)}, {bMX}, {SRD}, {sMXO} offen {cfg.get("mxfl", "sc1")}'))
            return d, {}
        tail6(weight_stream(w, filll, vw, ll, BT, tmo, cfg.get('bpoll'), early))
        w.stamp()
        w.wait_all_lg()
        if not cfg.get('onebar', 1):
            A('s_barrier')
            A(f's_cmp_eq_u32 {sSTEP}, {NSEG-1}\ns_cbranch_scc1 {ll}_done')
        zero(w, 28, 28)
        A(f'v_mov_b32 v{BT+3}, {sS1}')
        if not cfg.get('xsame'): A(f'v_add_u32 {bTO}, {bTO}, {bINC}')
        w.stamp()
        if cfg.get('drain'):
            w.wait(vm='D'); w.stamp(); w.wait_all_vm(); w.stamp()
        hu1 = f'buffer_store_dword v{BT+3}, {vHUs}, {SRD}, 0 offen {st}'
        if cfg.get('b0poll') or cfg.get('onebar', 1):
            A('s_barrier')
            if cfg.get('gate', 'w0') != 'none': A(hu1)
        else:
            A(f's_cmp_lg_u32 {sW}, 3\ns_cbranch_scc1 {ll}_nopoll2')
            poll(w, f'{ll}_poll2', bPOLL, sS1, tmo, 16)
            A(f'{ll}_nopoll2:\ns_barrier')
            if cfg.get('hu1pos', 0) == 0: A(hu1)
            A('s_barrier')
            if cfg.get('hu1pos', 0) == 1: A(hu1)
        if cfg.get('lastmx', 1): A(f's_cmp_eq_u32 {sSTEP}, {NSEG-2}\ns_cbranch_scc1 {ll}_done')
        w.dump_stamps(ll)
        A(f's_mov_b32 {sSPIN}, {SPIN_MAX}\ns_mov_b32 {sSTEP}, {sS1}\ns_branch {ll}_loop\n{ll}_done:')
        cfg['finish'](w, ll)
        A('s_endpgm')
        m_retry(w, ll, tmo)
    emit_modes(A, cfg, ll, loopl)
```

```python
import sys, json
sys.path.insert(0, 'gen'); sys.path.insert(0, 'bench')
from common import *
import main as MAIN
from layout import *
base = json.loads(sys.argv[1]); rounds = int(sys.argv[2]); vars_ = [json.loads(a) for a in sys.argv[3:]]
KN = MAIN.build.NAME + '_kernel'
cos = []
for i, v in enumerate(vars_):
    c = dict(base); c.update(v); c['ds'] = 1
    cos.append(build(MAIN.generate(c), KN, 15, f'abf{i}', lists=True))
if ON_GPU:
    from model import *
    d = make_inputs(0, 0.05, 1.0)
    ref, aux = reference(d)
    names = ['x', 'mem0', 'Wq', 'Wk', 'Wv', 'Wo', None, 'x', 'w1', 'b1', 'w2', 'b2']
    bufs = [DeviceBuffer.from_numpy(f2bf(d[n]) if n else np.array([32], dtype=np.int32)) for n in names]
    out = DeviceBuffer(S * D * 2); dbg = DeviceBuffer(4096); ws = DeviceBuffer(WS_BYTES)
    ka = pack_ptr_kernargs([b.ptr for b in bufs] + [out.ptr, dbg.ptr, ws.ptr])
    ks = [AsmKernel(co, KN) for co in cos]
    res = [[] for _ in ks]; errs = [0.0] * len(ks)
    for r in range(rounds + 1):
        for i, k in enumerate(ks):
            memset(out, 0xff); memset(ws, r & 0x7f, WS_BYTES); memset(dbg, 0); sync()
            k.launch((256,1,1), (256,1,1), ka, 163840); sync()
            g = dbg.to_numpy(np.uint32, (64,)).astype(np.int64)
            rel = lambda x: ((g[x] - g[9]) % 0x100000) / 100
            if r: res[i].append((rel(4), rel(5), rel(6), rel(7)))
            if r == rounds or r == 1:
                got = bf2f(out.to_numpy(np.uint16, (S, D)))
                errs[i] = max(errs[i], float(np.linalg.norm(got - ref) / np.linalg.norm(ref)))
    for i, v in enumerate(vars_):
        a = np.median(np.array(res[i]), 0)
        print(f'end {a[3]:6.1f} Aend {a[2]:6.1f} Aready {a[0]:5.1f} Bready {a[1]:5.1f} rec {a[2]-max(a[0],a[1]):5.1f} err {errs[i]:.5f} {v}')
```

```python
from asmdsl import Asm
from layout import *
import rec, workers, prep, build

BEST = dict(xpos=[11, 15, 20, 25, 99, 99, 99, 99], hu2pos=6, ew=128, ne=1, ebar=3, gate='none', dstep=1, dslot=1, bpoll=1, prot=0, tw2=1,
            bdepth=2, dearly=2, aA=[6, 0], apoll=[6, 0], lbar=21, rtid=1)

def counts(A, lab, tmo, sd='s[48:51]'):
    A(f's_mov_b32 s19, 0x40000\n{lab}:')
    A(f'buffer_load_dword v3, v4, {sd}, 0 offen sc1')
    A(f's_sub_u32 s19, s19, 1\ns_cbranch_scc1 {tmo}\ns_waitcnt vmcnt(0)')
    A('v_readlane_b32 s47, v3, 0\ns_mov_b32 s46, s47')
    for x in range(1, 8): A(f'v_readlane_b32 s11, v3, {x}\ns_add_u32 s46, s46, s11')

def gen_main(A, cfg):
    workers.ONE[0] = cfg.get('one', 0)
    workers.PREV[0] = cfg.get('prev', 0)
    workers.BACK[0] = f's_sleep {cfg["back"]}\n' if cfg.get('back') else ''
    A(f"""s_cmp_ge_u32 s2, 256
    s_cbranch_scc1 M_exit0
    s_load_dwordx4 s[28:31], s[0:1], 0
    s_load_dwordx8 s[36:43], s[0:1], 16
    s_load_dwordx2 s[4:5], s[0:1], 112
    s_load_dwordx2 s[48:49], s[0:1], 104
    s_getreg_b32 s54, hwreg(HW_REG_XCC_ID, 0, 3)
    v_lshrrev_b32 v1, 6, v0
    v_readfirstlane_b32 s9, v1
    v_and_b32 v0, 63, v0
    s_waitcnt lgkmcnt(0)
    s_mov_b32 s6, {WS_BYTES}
    s_mov_b32 s7, 0x20000
    s_mov_b32 s50, 256
    s_mov_b32 s51, 0x20000""")
    if cfg.get('fakexcc'): A(cfg['fakexcc'])
    if cfg.get('ds'):
        A('s_mov_b32 s3, s2'); rec.dstamp(A, cfg, 9, 0, 3)
    A("""s_mov_b32 s12, s54
    v_mov_b32 v2, 0x27c00
    s_cmp_lg_u32 s9, 0
    s_cbranch_scc1 M_noat
    v_mov_b32 v3, 1
    s_lshl_b32 s11, s12, 5
    s_mov_b64 exec, 1
    buffer_atomic_add v3, off, s[48:51], s11 sc0 sc1
    s_mov_b64 exec, -1
M_noat:""")
    nt = 0
    if cfg.get('pretouch', 1):
        A(f's_lshl_b32 s11, s2, 2\ns_add_u32 s11, s11, s9\ns_mul_i32 s11, s11, 3584\nv_lshlrev_b32 v5, 7, v0\nv_mov_b32 v6, {OOB}')
        A('v_cmp_gt_u32 vcc, 28, v0\nv_cndmask_b32 v5, v6, v5, vcc')
        for k, p in enumerate(cfg.get('order', (40, 42))):
            prep.srd(A, 20, p, prep.W_BYTES)
            A(f'buffer_load_dword v{252+k}, v5, s[20:23], s11 offen'); nt += 1
    A(f"""s_cmp_lg_u32 s9, 0
    s_cbranch_scc1 M_ranked
    s_waitcnt vmcnt({nt})
    v_readfirstlane_b32 s3, v3
    v_and_b32 v4, 7, v0
    v_lshlrev_b32 v4, 5, v4
    s_lshl_b32 s11, s12, 5
    s_cmp_lt_u32 s3, 32
    s_cselect_b32 s15, 0, 1
    s_add_u32 s3, s3, s11
    s_cmp_eq_u32 s15, 0
    s_cbranch_scc1 M_have""")
    A("""v_mov_b32 v3, 1
    s_mov_b64 exec, 1
    buffer_atomic_add v3, off, s[48:51], 0 offset:4 sc0 sc1
    s_waitcnt vmcnt(0)
    s_mov_b64 exec, -1
    v_readfirstlane_b32 s15, v3""")
    counts(A, 'M_ovf', 'M_exit0')
    A('s_cmp_lt_u32 s46, 256\ns_cbranch_scc1 M_ovf_again\ns_mov_b32 s3, 0')
    for x in range(8):
        A(f'v_readlane_b32 s11, v3, {x}\ns_min_u32 s11, s11, 32\ns_sub_u32 s16, 32, s11')
        A(f's_cmp_lt_u32 s15, s16\ns_cbranch_scc0 M_nx{x}\ns_add_u32 s3, s11, s15\ns_add_u32 s3, s3, {32*x}\ns_branch M_have\nM_nx{x}:\ns_sub_u32 s15, s15, s16')
    A('M_exit0:\ns_endpgm\nM_ovf_again:')
    A('s_branch M_ovf')
    A("""M_have:
    v_mov_b32 v3, s3
    ds_write_b32 v2, v3
    s_waitcnt lgkmcnt(0)
M_ranked:
    s_barrier
    ds_read_b32 v3, v2
    s_waitcnt lgkmcnt(0)
    v_readfirstlane_b32 s3, v3""")
    rec.tline(A, dict(cfg, tlreg=3), 0)
    rec.dstamp(A, cfg, 3, 0, 3)
    A('s_barrier\ns_cmp_lt_u32 s3, 32\ns_cbranch_scc1 M_rec\ns_sub_u32 s10, s3, 32')
    prep.gen_gemm(A, cfg, 'M_exit0')
    A("""s_sub_u32 s11, s3, 32
    s_and_b32 s10, s11, 63
    s_lshr_b32 s11, s11, 6
    s_cmp_eq_u32 s11, 2
    s_cbranch_scc1 M_F
    s_cmp_eq_u32 s11, 3
    s_cbranch_scc1 M_T
    s_and_b32 s12, s10, 3
    s_lshr_b32 s10, s10, 2
    s_cmp_eq_u32 s11, 1
    s_cbranch_scc1 M_Q""")
    workers.gen_V(A, cfg, 'WV', 'M_exit')
    A('M_Q:'); workers.gen_Q(A, cfg, 'WQ', 'M_exit')
    A('M_T:'); workers.gen_T(A, cfg, 'WT', 'M_exit')
    A('M_F:'); workers.gen_F(A, cfg, 'WF', 'M_exit')
    A('M_exit:\ns_endpgm')
    def mode(lab):
        A(f'v_mov_b32 v2, 0x27c00\ns_cmp_lg_u32 s9, 0\ns_cbranch_scc1 {lab}_ss')
        A('v_and_b32 v4, 7, v0\nv_lshlrev_b32 v4, 5, v4')
        counts(A, f'{lab}_cnt', 'R_exit')
        A(f's_mov_b32 s30, 0\ns_cmp_ge_u32 s47, 32\ns_cbranch_scc1 {lab}_md\ns_mov_b32 s30, 1\ns_cmp_ge_u32 s46, 256\ns_cbranch_scc1 {lab}_md')
        A(f's_branch {lab}_cnt\n{lab}_md:')
        A(f'v_mov_b32 v3, s30\nds_write_b32 v2, v3\ns_waitcnt lgkmcnt(0)\n{lab}_ss:\ns_barrier')
        A(f'ds_read_b32 v3, v2\ns_waitcnt lgkmcnt(0)\nv_readfirstlane_b32 s30, v3')
    def start_sync(w, lab):
        if cfg.get('tl'): A('s_waitcnt vmcnt(0)')
        rec.tline(A, dict(cfg, tlreg=3), 1)
        if lab.endswith('l'):
            A(f'v_min_u32 v4, 1, v0\nv_lshlrev_b32 v4, 7, v4\ns_mov_b32 s11, {FVX}\ns_mov_b32 s19, 0x40000')
            A(f'{lab}_fv:\nbuffer_load_dword v3, v4, s[4:7], s11 offen sc1\ns_sub_u32 s19, s19, 1\ns_cbranch_scc1 R_exit')
            A(f's_waitcnt vmcnt(0)\nv_cmp_gt_u32 vcc, 16, v3\ns_cbranch_vccnz {lab}_fv')
        elif cfg.get('warm', 1) and lab == 'RA':
            A(f's_lshl_b32 s11, s3, 2\ns_add_u32 s11, s11, s9\ns_lshl_b32 s11, s11, 11\ns_add_u32 s11, s11, {MS}\nv_lshlrev_b32 v4, 5, v0')
            A('buffer_load_dword v3, v4, s[4:7], s11 offen sc1')
        A(f's_mov_b32 s19, {rec.SPIN_MAX}')
        rec.tline(A, dict(cfg, tlreg=3), 2)
        rec.dstamp(A, cfg, 4, 0, 3); rec.dstamp(A, cfg, 5, 31, 3)
    c = dict(BEST); c.update(cfg)
    c.setdefault('start_sync', start_sync); c.setdefault('finish', lambda w, lab: (rec.tline(A, dict(cfg, tlreg=3, tlclk=1), 4), rec.dstamp(A, cfg, 6, 0, 3)))
    def loop_top(w, lab):
        if cfg.get('tl'):
            for k, st in ((3, 1), (5, 16), (6, 32)):
                A(f's_cmp_lg_u32 s8, {st}\ns_cbranch_scc1 {lab}_lt{k}'); rec.tline(A, dict(cfg, tlreg=3, tlclk=1), k); A(f'{lab}_lt{k}:')
    c.setdefault('loop_top', loop_top)
    A('M_rec:\ns_mov_b32 s10, s3')
    prep.gen_misc(A, cfg, 'R_exit')
    from expr import V, Sg, sel_lt
    l = V('v0')
    c['pre_a'] = lambda: rec.wait_lanes(A, 'RA_wa', sel_lt(l, 1, FA + Sg('s10') * 128, FX), sel_lt(l, 1, 14, 32), 'R_exit')
    c['pre_b'] = lambda: rec.wait_lanes(A, 'RB_wb', sel_lt(l, 16, FB + l * 128, FX), sel_lt(l, 16, 14, 32), 'R_exit')
    mode('RM')
    A('s_and_b32 s10, s3, 15\ns_cmp_ge_u32 s3, 16\ns_cbranch_scc1 M_B')
    rec.gen_A(A, c, 'RA', 'R_exit')
    A('R_exit:\ns_endpgm\nM_B:')
    rec.gen_B(A, c, 'RB', 'R_exit')

def generate(cfg={}, header=''):
    K = Asm(); gen_main(K, cfg)
    return build.assemble([(build.NAME + '_kernel', K.lines, 256, 256, 163840, 512, 256)], header)

if __name__ == '__main__':
    ref = open(f'cdna_kernels/{build.NAME}.s.ref').read().split('\n')
    header = '\n'.join(l for l in ref if l.startswith(';') and '@launch' not in l and 'Override' not in l and 'grid=ceil' not in l) + '\n'
    import sys, json
    if len(sys.argv) > 2: open(sys.argv[1], 'w').write(generate(json.loads(sys.argv[2]), header))
    else: open(f'cdna_kernels/{build.NAME}.s', 'w').write(generate({}, header))
```

```python
from asmdsl import Asm
from expr import X, V, Sg, Emitter, ev, sel_lt, wrap
from layout import *
import numpy as np

SRD = 's[4:7]'
def vr(a, n=1): return f'v{a}' if n == 1 else f'v[{a}:{a+n-1}]'
def wreg(o):
    return f'a[{8*o}:{8*o+7}]' if o < 32 else f'v[{120+8*(o-32)}:{127+8*(o-32)}]'
def wquad(o, b):
    return f'a[{8*o+4*b}:{8*o+4*b+3}]' if o < 32 else f'v[{120+8*(o-32)+4*b}:{123+8*(o-32)+4*b}]'

class Wv:
    def __init__(self, A, cfg):
        self.A = A; self.vm = []; self.lg = []; self.cfg = cfg; self.nst = 0
    def __call__(self, t): self.A(t)
    def vmem(self, t, tag=None): self.A(t); self.vm.append(tag)
    def ds(self, t, tag=None): self.A(t); self.lg.append(tag)
    def wait(self, vm=None, lg=None):
        parts = []
        if vm is not None and vm in self.vm:
            i = len(self.vm) - 1 - self.vm[::-1].index(vm)
            parts.append(f'vmcnt({len(self.vm)-1-i})'); self.vm = self.vm[i+1:]
        if lg is not None and lg in self.lg:
            i = len(self.lg) - 1 - self.lg[::-1].index(lg)
            n = min(len(self.lg) - 1 - i, 15)
            parts.append(f'lgkmcnt({n})'); self.lg = self.lg[i+1:]
        if parts: self.A('s_waitcnt ' + ' '.join(parts))
    def wait_all_lg(self): self.A('s_waitcnt lgkmcnt(0)'); self.lg = []
    def wait_all_vm(self): self.A('s_waitcnt vmcnt(0)'); self.vm = []
    def stamp(self, name=None):
        if self.cfg.get('stamps'):
            assert self.nst < 12
            self.A(f's_memtime s[{60+2*self.nst}:{61+2*self.nst}]'); self.nst += 1
    def dump_stamps(self, lab):
        if not self.cfg.get('stamps'): return
        A = self.A
        A(f's_waitcnt lgkmcnt(0)\ns_cmp_lg_u32 s8, 6\ns_cbranch_scc1 {lab}_nocal')
        A(f's_memrealtime s[96:97]\ns_waitcnt lgkmcnt(0)\n{lab}_cal:\ns_memrealtime s[98:99]\ns_memtime s[100:101]\ns_waitcnt lgkmcnt(0)\ns_cmp_eq_u32 s96, s98\ns_cbranch_scc1 {lab}_cal')
        for k in range(12): A(f's_mov_b32 s{84+k}, 0')
        A(f'{lab}_nocal:\ns_cmp_lt_u32 s8, 8\ns_cbranch_scc1 {lab}_nodump\ns_cmp_gt_u32 s8, 57\ns_cbranch_scc1 {lab}_nodump')
        for k in range(self.nst): A(f's_sub_u32 s11, s{60+2*k}, s100\ns_add_u32 s{84+k}, s{84+k}, s11')
        A(f's_cmp_lg_u32 s8, 57\ns_cbranch_scc1 {lab}_nodump')
        A('s_lshl_b32 s11, s3, 2\ns_add_u32 s11, s11, s9\ns_lshl_b32 s11, s11, 6')
        A(f's_add_u32 s11, s11, {DBG}')
        A(f'v_mov_b32 v0, s98\nv_mov_b32 v2, 0x4000\nbuffer_store_dword v0, v2, {SRD}, s11 offen')
        for k in range(self.nst):
            A(f'v_mov_b32 v0, s{84+k}\nv_mov_b32 v1, {4*k}\nbuffer_store_dword v0, v1, {SRD}, s11 offen')
        A(f's_waitcnt vmcnt(0)\n{lab}_nodump:')

def tline(A, cfg, k, base=0, idx='s3'):
    if not cfg.get('tl'): return
    lab = A.newlabel(f'TL{base}')
    A(f's_cmp_lg_u32 s9, 0\ns_cbranch_scc1 {lab}')
    A(f's_memrealtime s[96:97]\ns_lshl_b32 s98, {idx}, 6\ns_add_u32 s98, s98, {DBG + 0x8000 + base + 4*k}\ns_waitcnt lgkmcnt(0)')
    A(f'v_accvgpr_write_b32 a255, s96' if False else f'v_mov_b32 v{cfg.get("tlreg", 95)}, s96')
    A(f'buffer_store_dword v{cfg.get("tlreg", 95)}, off, {SRD}, s98')
    if cfg.get('tlclk'):
        A(f's_memtime s[96:97]\ns_waitcnt lgkmcnt(0)\nv_mov_b32 v{cfg.get("tlreg", 95)}, s96\nbuffer_store_dword v{cfg.get("tlreg", 95)}, off, {SRD}, s98 offset:32')
    A(f'{lab}:')

def dstamp(A, cfg, k, slot, reg):
    if not cfg.get('ds'): return
    lab = A.newlabel('DS')
    A(f's_cmp_lg_u32 s9, 0\ns_cbranch_scc1 {lab}\ns_cmp_lg_u32 s3, {slot}\ns_cbranch_scc1 {lab}')
    A(f's_load_dwordx2 s[96:97], s[0:1], 104\ns_memrealtime s[94:95]\ns_waitcnt lgkmcnt(0)\ns_mov_b32 s98, 256\ns_mov_b32 s99, 0x20000')
    A(f's_and_b32 s94, s94, 0xfffff\nv_mov_b32 v{reg}, s94\nbuffer_store_dword v{reg}, off, s[96:99], 0 offset:{4*k}\n{lab}:')

def smf(acc, a, b, idx): return f'v_smfmac_f32_16x16x64_bf16 {vr(acc,4)}, {a}, {b}, {idx}'

KM = 3
MREG = [16, 20, 24, 0, 4, 8, 12]
ACC = [28 + 4 * t for t in range(7)]
vIDX, vL16, vHUp, vHUs = 'v119', 'v118', 'v117', 'v116'
vKA = ['v115', 'v114', 'v113', 'v112', 'v111', 'v110', 'v109']
sSTEP, sW, sR = 's8', 's9', 's10'
sKK = [f's{12+t}' for t in range(7)]
sSPIN, sRETRY, sS1 = 's19', 's20', 's31'
sMO = ['s36', 's37', 's38']
SPIN_MAX = 0x80000
L_K = 131072

def common_consts(em, A, lab, rot, swap=False):
    l = V('v0')
    em.emit(l & 63, 'v0')
    em.emit(sel_lt(l & 2, 1, 0x44444444, 0xEEEEEEEE), vIDX)
    em.emit(l * 16, vL16)
    if swap: A(f's_xor_b32 s33, {sW}, 2\ns_lshl_b32 s33, s33, 1')
    else: A(f's_lshl_b32 s33, {sW}, 1\ns_add_u32 s33, s33, {rot}')
    for _ in range(3): A('s_cmp_ge_u32 s33, 7\ns_cselect_b32 s35, 7, 0\ns_sub_u32 s33, s33, s35')
    for t in range(7):
        A(f's_add_u32 s34, s33, {t}\ns_cmp_ge_u32 s34, 7\ns_cselect_b32 s35, 7, 0\ns_sub_u32 s34, s34, s35\ns_lshl_b32 {sKK[t]}, s34, 10')
    em.emit(L_K + l * 16, 'v1')
    for t in range(7): A(f'v_add_u32 {vKA[t]}, {sKK[t]}, v1')
    A(f's_cmp_lg_u32 {sW}, {1 if swap else 3}\ns_cbranch_scc1 {lab}_w3skip\nv_add_u32 {vKA[1]}, 7168, v1\n{lab}_w3skip:')

def step_consts(A, solo=False):
    A(f's_and_b32 s11, {sSTEP}, {0 if solo else 3}\ns_lshl_b32 s33, s11, 13\ns_add_u32 s33, s33, {MS}')
    for t in range(3): A(f's_add_u32 {sMO[t]}, s33, {sKK[t]}')
    A(f's_add_u32 {sS1}, {sSTEP}, 1')

def align(A, cfg, key):
    a = cfg.get(key)
    if a:
        A(f'.p2align {a[0]}')
        for _ in range(a[1]): A('s_nop 0')

def poll(w, lab, vp, sval, tmo, nl):
    w(f'v_mov_b32 {vp}, 0')
    if w.cfg.get('pollmask', 1): w(f's_mov_b32 exec_lo, {hex((1 << nl) - 1) if nl < 32 else -1}\ns_mov_b32 exec_hi, 0')
    align(w.A, w.cfg, 'apoll')
    w(f'{lab}:')
    if w.cfg.get('pollnop'): w(f's_nop {w.cfg["pollnop"]-1}')
    w(f'buffer_load_dword {vp}, {vHUp}, {SRD}, 0 offen sc1')
    w(f's_waitcnt vmcnt({w.cfg.get("polldepth", 40)})')
    w(f'v_cmp_gt_u32 vcc, {sval}, {vp}')
    w(f's_sub_u32 {sSPIN}, {sSPIN}, 1\ns_cbranch_scc1 {tmo}')
    w(f's_cbranch_vccnz {lab}')
    if w.cfg.get('pollmask', 1): w('s_mov_b64 exec, -1')
    w.vm = []

def zero(w, a, n):
    for i in range(a, a + n, 2): w(f'v_mov_b64 {vr(i,2)}, 0')

def sentinel_check(w, regs, tmp):
    w(f'v_max3_u32 {tmp}, v{regs[0]}, v{regs[1]}, v{regs[2]}')
    r = regs[3:]
    while len(r) >= 2:
        w(f'v_max3_u32 {tmp}, {tmp}, v{r[0]}, v{r[1]}'); r = r[2:]
    if r: w(f'v_max_u32 {tmp}, {tmp}, v{r[0]}')
    w(f'v_cmp_eq_u32 vcc, -1, {tmp}')

def weight_stream(w, fill, comb_write, lab, tmp, tmo=None, mpoll=False, early=None):
    cfg = w.cfg; ND = cfg.get('nd', 2)
    align(w.A, cfg, 'aB')
    w(f'{lab}_mload:')
    w.vm = []; w.lg = []
    if mpoll:
        assert ND == 2
        for t in range(ND):
            w(f'buffer_load_dwordx4 {vr(MREG[t],4)}, {vL16}, {SRD}, {sMO[t]} offen sc1')
        if cfg.get('mnop'): w(f's_nop {cfg["mnop"]-1}')
        w(f's_waitcnt vmcnt({cfg.get("bdepth", 0)})')
        sentinel_check(w, list(range(MREG[0], MREG[0] + 8)), f'v{tmp}')
        w(f's_sub_u32 {sSPIN}, {sSPIN}, 1\ns_cbranch_scc1 {tmo}')
        w(f's_cbranch_vccnz {lab}_mload')
        w.vm = ['MP']
        if early: early()
    else:
        for t in range(ND):
            w(f's_setprio {ND-1-t}')
            w.vmem(f'buffer_load_dwordx4 {vr(MREG[t],4)}, {vL16}, {SRD}, {sMO[t]} offen sc1', f'M{t}')
        if early: early()
    order = [(tl, t) for t in range(KM) for tl in range(7)] + [(tl, t) for tl in range(7) for t in range(KM, 7)]
    pre = {}; mem = {}; val = {}
    ad = lambda d, n, f: d.setdefault(n, []).append(f)
    w1 = 1 if mpoll else cfg.get('w1', 3)
    for t, s0 in ((0, 0), (1, w1)):
        m = MREG[t]
        ad(pre, s0, lambda t=t: w.wait(vm=f'M{t}'))
        ad(mem, s0, lambda t=t, m=m: w.ds(f'ds_write_b128 {vKA[t]}, {vr(m,4)}'))
    if mpoll:
        bs = w1 + cfg.get('mbar', 4)
        def sync():
            w.wait_all_lg(); w('s_barrier')
        ad(pre, 20, lambda: w.wait(vm='MP'))
    else:
        m0, m1, m2 = MREG[0], MREG[1], MREG[2]
        ad(val, 1, lambda: w(f'v_max3_u32 v{tmp}, v{m0}, v{m0+1}, v{m0+2}'))
        c = w1 + 1
        ad(val, c, lambda: w(f'v_max3_u32 v{tmp}, v{tmp}, v{m0+3}, v{m1}'))
        ad(val, c + 1, lambda: w(f'v_max3_u32 v{tmp}, v{tmp}, v{m1+1}, v{m1+2}'))
        if ND == 2:
            ad(val, c + 2, lambda: w(f'v_max_u32 v{tmp}, v{tmp}, v{m1+3}'))
            c += 3
        else:
            ad(pre, c + 2, lambda: w.wait(vm='M2'))
            ad(val, c + 2, lambda: w(f'v_max3_u32 v{tmp}, v{tmp}, v{m1+3}, v{m2}'))
            ad(val, c + 3, lambda: w(f'v_max3_u32 v{tmp}, v{tmp}, v{m2+1}, v{m2+2}'))
            ad(val, c + 4, lambda: w(f'v_max_u32 v{tmp}, v{tmp}, v{m2+3}'))
            c += 5
        ad(val, c, lambda: w(f'v_cmp_eq_u32 vcc, -1, v{tmp}'))
        bs = c + cfg.get('bdelay', 2)
        def sync():
            w(f's_cbranch_vccnz {lab}_mretry')
            w.wait_all_lg(); w('s_barrier')
    ad(mem, bs, sync)
    n = 0
    for t in range(ND, 7):
        m = MREG[t]
        ad(mem, bs + n, lambda t=t, m=m: w.ds(f'ds_read_b128 {vr(m,4)}, {vKA[t]}', f'M{t}'))
        n += 1
    per = 7 - KM; base = 7 * KM
    for tl in range(6):
        s0 = base + per * (tl + 1) + 1
        ad(val, s0, lambda tl=tl: w(f'v_add_f32 v{tmp}, v{ACC[tl]}, v{ACC[tl]+2}'))
        ad(val, s0 + 1, lambda tl=tl: w(f'v_add_f32 v{tmp+1}, v{ACC[tl]+1}, v{ACC[tl]+3}'))
        ad(val, s0 + 2, lambda: w(f'v_cvt_pk_bf16_f32 v{tmp+2}, v{tmp}, v{tmp+1}'))
        ad(mem, s0 + 3, lambda tl=tl: comb_write(tl, f'v{tmp+2}'))
    fl, fv = fill(bs + n)
    for k, fs in fv.items():
        for f in fs: ad(val, k, f)
    if cfg.get('stamps'):
        for k in cfg.get('bfine', [0]): ad(fl, k, lambda: w.stamp())
    for n, (tl, t) in enumerate(order):
        for f in pre.get(n, []): f()
        w.wait(vm=f'M{t}', lg=f'M{t}')
        w(smf(ACC[tl], vr(MREG[t], 4), wreg(tl * 7 + t), vIDX))
        for f in mem.get(n, []): f()
        for f in fl.get(n, []): f()
        for f in val.get(n, []): f()
    assert all(k < 49 for k in fl) and all(k < 49 for k in val)
    return [f for k in sorted(mem) if k >= 49 for f in mem[k]]

MREGA = [12, 16, 20, 24, 0, 4, 8]
def a_consts(em, A):
    l = V('v0')
    em.emit(l & 63, 'v0')
    em.emit(sel_lt(l & 2, 1, 0x44444444, 0xEEEEEEEE), vIDX)
    em.emit(l * 16, vL16)
    for t in range(4): A(f's_add_u32 s34, {sW}, {sR}\ns_add_u32 s34, s34, {t}\ns_and_b32 s34, s34, 3\ns_lshl_b32 {sKK[t]}, s34, 10')
    for t in range(4, 7): A(f's_movk_i32 {sKK[t]}, {t*1024}')
    em.emit(L_K + l * 16, vKA[4])
    for t in range(4): A(f'v_add_u32 {vKA[t]}, {sKK[t]}, {vKA[4]}')
    A(f's_lshl_b32 s29, {sW}, 10\ns_add_u32 s29, s29, 4096')

def a_step_consts(A, solo=False):
    A(f's_and_b32 s11, {sSTEP}, {0 if solo else 3}\ns_lshl_b32 s33, s11, 13\ns_add_u32 s33, s33, {MS}')
    A(f's_add_u32 s36, s33, {sKK[0]}\ns_add_u32 s37, s33, {sKK[1]}\ns_add_u32 s38, s33, s29\ns_add_u32 s39, s29, {L_K}')
    A(f's_add_u32 {sS1}, {sSTEP}, 1')

def a_stream(w, fill, comb_write, lab, tmp, tmo):
    cfg = w.cfg; MR = MREGA; KMA = 4; NE = cfg.get('ne', 2)
    align(w.A, cfg, 'aA')
    w(f'{lab}_mload:')
    w.vm = []; w.lg = []
    for t in range(NE): w(f'buffer_load_dwordx4 {vr(MR[t],4)}, {vL16}, {SRD}, s{36+t} offen sc1')
    if cfg.get('mnop'): w(f's_nop {cfg["mnop"]-1}')
    w(f's_waitcnt vmcnt({cfg.get("mdepth", 2)})')
    if cfg.get('poll1'):
        assert NE == 1 and cfg.get('nanchk', 1)
        w(f'v_cmp_eq_u32 vcc, -1, v{MR[0]+3}')
    else: sentinel_check(w, list(range(MR[0], MR[0] + 4 * NE)), f'v{tmp}')
    w(f's_sub_u32 {sSPIN}, {sSPIN}, 1\ns_cbranch_scc1 {tmo}')
    w(f's_cbranch_vccnz {lab}_mload')
    w(f'{lab}_again:')
    order = [(tl, t) for t in range(KMA) for tl in range(7)] + [(tl, t) for tl in range(7) for t in range(KMA, 7)]
    pre = {}; mem = {}; val = {}
    ad = lambda d, n, f: d.setdefault(n, []).append(f)
    ew = cfg.get('ew', 128)
    if ew == 128:
        if NE == 1: w.ds(f'ds_write_b128 {vKA[0]}, {vr(MR[0],4)}')
        else: ad(mem, 0, lambda: w.ds(f'ds_write_b128 {vKA[0]}, {vr(MR[0],4)}'))
    elif ew == 64:
        for k in range(2): ad(mem, k, lambda k=k: w.ds(f'ds_write_b64 {vKA[0]}, {vr(MR[0]+2*k,2)} offset:{8*k}'))
    else:
        for k in range(4): ad(mem, k, lambda k=k: w.ds(f'ds_write_b32 {vKA[0]}, v{MR[0]+k} offset:{4*k}'))
    bs = cfg.get('ebar', 2 if NE == 1 else 8)
    ad(mem, bs, lambda: (w.wait_all_lg(), w('s_barrier')))
    for t in range(NE, 4):
        ad(mem, bs + (t - NE), lambda t=t: w.ds(f'ds_read_b128 {vr(MR[t],4)}, {vKA[t]}', f'M{t}'))
    l0 = cfg.get('lslot', 3); lb = cfg.get('lbar', 17)
    ad(mem, l0 - 1, lambda: w('s_mov_b32 m0, s39'))
    ad(mem, l0, lambda: w.vmem(f'buffer_load_dwordx4 {vL16}, {SRD}, s38 offen sc1 lds', 'L'))
    ad(mem, lb, lambda: (w.wait(vm='L'), w('s_barrier')))
    for t in (4, 5, 6): ad(mem, lb + (t - 4) // 2, lambda t=t: w.ds(f'ds_read_b128 {vr(MR[t],4)}, {vKA[4]} offset:{t*1024}', f'M{t}'))
    nanchk = cfg.get('nanchk', 1)
    if nanchk:
        cs = lb + 1
        ad(val, 34, lambda: w(f'v_cmp_u_f32 vcc, v{tmp}, v{tmp+1}'))
        ad(mem, 36, lambda: w(f's_cbranch_vccnz {lab}_lretry\n{lab}_lok:'))
    else:
        lc = lb + 3
        w.lretry_state = None
        ad(pre, lc + 1, lambda: w.wait(lg='M5'))
        ad(val, lc + 1, lambda: w(f'v_max3_u32 v{tmp}, v0, v1, v2'))
        ad(val, lc + 2, lambda: w(f'v_max3_u32 v{tmp}, v{tmp}, v3, v4'))
        ad(pre, lc + 3, lambda: w.wait(lg='M6'))
        ad(val, lc + 3, lambda: w(f'v_max3_u32 v{tmp}, v{tmp}, v5, v6'))
        ad(val, lc + 4, lambda: w(f'v_max3_u32 v{tmp}, v{tmp}, v7, v8'))
        ad(val, lc + 5, lambda: w(f'v_max3_u32 v{tmp}, v{tmp}, v9, v10'))
        ad(val, lc + 6, lambda: (w(f'v_max_u32 v{tmp}, v{tmp}, v11'), w(f'v_cmp_eq_u32 vcc, -1, v{tmp}')))
        cs = lc + 7
        assert cs <= 27
        ad(mem, cs, lambda: w(f's_cbranch_vccnz {lab}_lretry\n{lab}_lok:'))
    per = 7 - KMA; base = 7 * KMA
    for tl in range(6):
        s0 = base + per * (tl + 1) + 1
        o = tmp + 2 if not (cfg.get('tw2') and tl % 2 == 0) else 97
        ad(val, s0, lambda tl=tl: w(f'v_add_f32 v{tmp}, v{ACC[tl]}, v{ACC[tl]+2}'))
        ad(val, s0 + 1, lambda tl=tl: w(f'v_add_f32 v{tmp+1}, v{ACC[tl]+1}, v{ACC[tl]+3}'))
        ad(val, s0 + 2, lambda o=o: w(f'v_cvt_pk_bf16_f32 v{o}, v{tmp}, v{tmp+1}'))
        if not cfg.get('tw2'): ad(mem, s0 + 3, lambda tl=tl, o=o: comb_write(tl, f'v{o}'))
        elif tl % 2: ad(mem, s0 + 3, lambda tl=tl, o=o: comb_write(tl, f'v97, v{o}'))
    fl, fv = fill(bs + 4 - NE, cs + 1)
    for k, fs in fv.items():
        for f in fs: ad(val, k, f)
    if cfg.get('stamps'):
        for k in cfg.get('fine', [0]): ad(fl, k, lambda: w.stamp())
    for n, (tl, t) in enumerate(order):
        for f in pre.get(n, []): f()
        w.wait(lg=f'M{t}')
        w(smf(ACC[tl], vr(MR[t], 4), wreg(tl * 7 + t), vIDX))
        for f in mem.get(n, []): f()
        for f in fl.get(n, []): f()
        for f in val.get(n, []): f()
    assert all(k < 49 for k in fl)
    return [f for k in range(49, 56) for f in mem.get(k, []) + val.get(k, [])]

def l_retry(w, lab, tmp, tmo):
    if w.cfg.get('nanchk', 1):
        w(f'{lab}_lretry:')
        sentinel_check(w, list(range(0, 28 if w.cfg.get('poll1') else 12)), f'v{tmp+3}')
        w(f'v_mov_b32 v{tmp+3}, {sS1}\ns_cbranch_vccz {lab}_lok')
        w(f's_add_u32 {sRETRY}, {sRETRY}, 1\ns_sub_u32 {sSPIN}, {sSPIN}, 16\ns_cbranch_scc1 {tmo}')
        w('s_waitcnt vmcnt(0) lgkmcnt(0)\ns_barrier')
        zero(w, 28, 28)
        if w.cfg.get('poll1'):
            w(f'buffer_load_dwordx4 {vr(MREGA[0],4)}, {vL16}, {SRD}, s36 offen sc1\ns_waitcnt vmcnt(0)')
        w(f's_branch {lab}_again')
        return
    w(f'{lab}_lretry:\ns_mov_b32 s33, m0\n{lab}_lretry2:')
    w(f's_add_u32 {sRETRY}, {sRETRY}, 1\ns_barrier\ns_mov_b32 m0, s39')
    w(f's_sub_u32 {sSPIN}, {sSPIN}, 4\ns_cbranch_scc1 {tmo}')
    w(f'buffer_load_dwordx4 {vL16}, {SRD}, s38 offen sc1 lds\ns_waitcnt vmcnt(0)\ns_barrier')
    for t in (4, 5, 6): w(f'ds_read_b128 {vr(MREGA[t],4)}, {vKA[4]} offset:{t*1024}')
    w('s_waitcnt lgkmcnt(0)')
    sentinel_check(w, list(range(0, 12)), f'v{tmp}')
    w(f's_cbranch_vccnz {lab}_lretry2\ns_mov_b32 m0, s33\ns_branch {lab}_lok')

def m_retry(w, lab, tmo):
    w(f'{lab}_mretry:')
    w(f's_add_u32 {sRETRY}, {sRETRY}, 1')
    w(f's_sub_u32 {sSPIN}, {sSPIN}, 8\ns_cbranch_scc1 {tmo}\ns_waitcnt vmcnt(0) lgkmcnt(0)')
    zero(w, 28, 28)
    w(f's_branch {lab}_mload')

def wait_lanes(A, lab, addr, target, tmo):
    em = Emitter(A, [f'v{i}' for i in range(4, 13)])
    A(f's_cmp_lg_u32 s9, 0\ns_cbranch_scc1 {lab}_go')
    em.emit(addr, 'v1'); em.emit(target, 'v2')
    A(f's_mov_b32 s19, 0x40000\n{lab}:\nbuffer_load_dword v3, v1, {SRD}, 0 offen sc1')
    A(f's_sub_u32 s19, s19, 1\ns_cbranch_scc1 {tmo}\ns_waitcnt vmcnt(0)\nv_cmp_gt_u32 vcc, v2, v3\ns_cbranch_vccnz {lab}')
    A(f'{lab}_go:\ns_barrier')

def emit_modes(A, cfg, lab, loop):
    if cfg.get('modes', 2) == 1:
        loop(lab, cfg.get('st', '')); return
    A(f's_cmp_lg_u32 s30, 0\ns_cbranch_scc1 {lab}_slow')
    loop(lab + 'x', '')
    A(f'{lab}_slow:')
    loop(lab + 'y', 'sc1')

def load_weights(w, addr_of):
    n = 0
    for tl in range(7):
        for t in range(7):
            for b in range(2):
                va, pre = addr_of(tl, t, b)
                w(pre)
                w(f'buffer_load_dwordx4 {wquad(tl*7+t, b)}, {va}, {SRD}, s11 offen {w.cfg.get("wfl", "")}')
                n += 1
                if n % 16 == 0: w(f's_waitcnt vmcnt({w.cfg.get("wdepth", 32)})')

A_X, A_T, A_R = 0, 65536, 77824
Z0, Z1, SACC, TSP0, TSP1, TMP = 56, 12, 80, 36, 40, 92
aKR, aKR3, aTW, aTW6, aTR, aXR, aRW, aRR = 'v108', 'v107', 'v106', 'v105', 'v104', 'v103', 'v102', 'v101'
aP, aKR2, aPOLL = 'v100', 'v99', 'v96'
sQ = ['s21', 's22', 's23', 's24']
sXS, sXL, sPW, sPR, sWL, sMASK = 's25', 's26', 's27', 's28', 's32', 's[52:53]'

def a_exprs(R128=False):
    l = V('v0'); w = Sg(sW); h = Sg(sR)
    g = l >> 4; rho = l & 15
    half = (rho >> 1) & 1
    q0 = (w >> 1) * 7 + (w & 1) * 4; q3 = (w >> 1) * 7 + 3
    e = {}
    i = rho & 7
    kr = L_K + ((g >> 1) * 16 + (i >> 1) * 4 + (i & 1)) * 16 + (g & 1) * 8
    e[aKR] = kr + q0 * 512
    e[aKR3] = kr + q3 * 512
    e[aKR2] = kr + q0 * 512 + 1024
    tw = A_T + w * 3072 + (rho >> 2) * 192 + (rho & 1) * 32 + g * 8 + half * 4
    e[aTW] = tw
    e['v98'] = tw + 1536
    e[aTW6] = tw + 2304 + (w & 1) * 64
    e[aTR] = A_T + w * 3072 + g * 384 + ((l >> 3) & 1) * 64 + ((l >> 2) & 1) * 32 + (l & 3) * 8
    e[aXR] = A_X + w * 8192 + l * 16
    e[aRW] = A_R + w * 1536 + g * 384 + rho * 4
    if R128 == 1: e[aRW] = A_R + g * 1536 + (rho >> 1) * 32 + (w ^ g) * 8 + (rho & 1) * 4
    rr = l >> 5; pi = l & 31; pc = pi.min(19)
    e[aRR] = A_R + (w * 2 + rr) * 192 + sel_lt(pc, 4, pc * 8, pc * 8 + 32)
    if R128 == 2: e[aRR] = A_R + (sel_lt(pc, 4, 0, ((pc - 4) >> 3) + 1) * 2 + rr) * 288 + (w * 16 + sel_lt(pc, 4, pc, (pc - 4) & 7) * 2) * 4
    if R128 == 3: e[aRR] = sel_lt(pi, 20, A_R + (sel_lt(pc, 4, 0, ((pc - 4) >> 3) + 1) * 2 + rr) * 288 + (w * 16 + sel_lt(pc, 4, pc, (pc - 4) & 7) * 2) * 4, A_R + 256)
    if R128 == 1: e[aRR] = A_R + (w * 2 + rr) * 768 + sel_lt(pc, 4, pc * 32, pc * 32 + 128)
    row = w * 2 + rr
    rho_of = lambda hf: (row >> 1) * 4 + hf * 2 + (row & 1)
    pm = ((h >> 3) + 8) * 1024 + (((h >> 1) & 3) * 16 + rho_of(pi & 1)) * 16 + ((h & 1) * 2 + ((pi >> 1) & 1)) * 4
    t0 = (pc - 4) * 2
    px = (h >> 1) * 1024 + (((h & 1) * 2 + ((t0 >> 3) & 1)) * 16 + rho_of((t0 >> 1) & 1)) * 16 + (((t0 >> 2) & 1) * 2 + ((t0 >> 4) & 1)) * 4
    e[aP] = sel_lt(pi, 4, pm, sel_lt(pi, 20, px, OOB))
    return e

def check_a_exprs():
    e = a_exprs(); l = np.arange(64)
    for h in (0, 1, 7, 8, 15):
        for w in range(4):
            env = {'v0': l, sW: w, sR: h}
            p = ev(e[aP], env)
            for ln in range(64):
                pi = ln & 31
                assert p[ln] == (ps_off(h, 2 * w + (ln >> 5), pi) if pi < 20 else OOB)
check_a_exprs()

def gen_A(A, cfg, lab, tmo):
    w = Wv(A, cfg)
    em = Emitter(A, [f'v{i}' for i in range(2, 30)])
    a_consts(em, A)
    for k, x in a_exprs((3 if cfg.get('nomask') else 2) if cfg.get('rtid') else cfg.get('r128')).items(): em.emit(x, k)
    l = V('v0')
    em.emit(HU1 + (l & 15) * 4, vHUp)
    em.emit(sel_lt(l + Sg(sW) * 64, 1, HU2 + Sg(sR) * 4, OOB), vHUs)
    nt = cfg.get('ntouch', 0)
    if nt:
        a = Sg(sR) * 4 + Sg(sW)
        em.emit(sel_lt(l, nt, ((a >> 5) * 1792 + (1792 - 32 * nt) + (a & 31) * nt + l) * 128, OOB), 'v110')
    A(f's_mov_b32 s52, 0xfffff\ns_mov_b32 s53, 0xfffff')
    A(f's_lshr_b32 s11, {sW}, 1')
    A(f's_mul_i32 s34, s11, 7\ns_and_b32 s35, {sW}, 1\ns_lshl_b32 s36, s35, 2\ns_add_u32 s36, s36, s34')
    for u in range(3): A(f's_add_u32 s37, s36, {u}\ns_lshl_b32 {sQ[u]}, s37, 10')
    A(f's_add_u32 s37, s34, 3\ns_lshl_b32 {sQ[3]}, s37, 10')
    A(f's_lshl_b32 {sWL}, {sW}, 13')
    A(f's_mul_i32 s38, {sR}, {28*14336}\ns_add_u32 s38, s38, {AF}')
    A(f's_mul_i32 s39, s35, 14336')
    def addr(tl, t, b):
        pre = f's_mul_i32 s11, {sQ[tl>>1]}, 28\ns_add_u32 s11, s11, s38\n'
        pre += (f's_add_u32 s11, s11, {14336*(tl&1) + 1024*b}\n' if tl < 6 else f's_add_u32 s11, s11, s39\ns_add_u32 s11, s11, {1024*b}\n')
        pre += f's_lshl_b32 s37, {sKK[t]}, 1\ns_add_u32 s11, s11, s37'
        return vL16, pre
    sXo = ['s44', 's45', 's46', 's47']; sXm = ['s48', 's49', 's50', 's51']
    def x_consts():
        A(f's_add_u32 {sXo[0]}, {sXS}, {sQ[0]}\ns_add_u32 {sXo[1]}, {sXS}, {sQ[3]}')
        A(f's_add_u32 {sXo[2]}, {sXo[0]}, 14336\ns_add_u32 {sXo[3]}, {sXo[1]}, 14336')
        A(f's_mov_b32 {sXm[0]}, {sXL}\ns_add_u32 {sXm[1]}, {sXL}, 3072\ns_add_u32 {sXm[2]}, {sXL}, 4096\ns_add_u32 {sXm[3]}, {sXL}, 7168')
    def x_m0(tt, u):
        if u in (0, 3): A(f's_mov_b32 m0, {sXm[2*tt + (u == 3)]}')
    def x_dma(tt, u, w=w):
        w.vmem(f'buffer_load_dwordx4 {vL16}, {SRD}, {sXo[2*tt + (u == 3)]} offen offset:{1024*u if u < 3 else 0} lds', 'X')
    if cfg.get('pre_a'): cfg['pre_a']()
    A(f's_mov_b32 {sXS}, {XF}\ns_mov_b32 {sXL}, {sWL}')
    x_consts()
    for tt in range(2):
        for u in range(4): x_m0(tt, u); x_dma(tt, u)
    load_weights(w, addr)
    em.emit(A_T + Sg(sW) * 3072 + l * 16, 'v1')
    A('v_mov_b64 v[4:5], 0\nv_mov_b64 v[6:7], 0')
    for k in range(3): A(f'ds_write_b128 v1, v[4:7] offset:{k*1024}')
    if cfg.get('nomask'):
        em.emit(A_R + 256 + Sg(sW) * 1728 + l * 0, 'v1')
        em.emit(sel_lt(Sg(sW) + l * 0, 1, 0xff800000, 0), 'v8')
        A('v_mov_b32 v9, v8\nds_write_b64 v1, v[8:9]')
    zero(w, 28, 28); zero(w, SACC, 12)
    A(f's_mov_b32 {sSTEP}, 0\ns_mov_b32 {sSPIN}, {SPIN_MAX}\ns_mov_b32 {sRETRY}, 0')
    A(f's_mul_i32 s35, {sW}, 1728\ns_add_u32 s35, s35, 32768')
    cfg['start_sync'](w, lab)
    A('s_waitcnt vmcnt(0) lgkmcnt(0)'); w.vm = []; w.lg = []
    def loop(lab, st):
        w = Wv(A, cfg)
        A(f'{lab}_loop:')
        cfg['loop_top'](w, lab)
        a_step_consts(A, cfg.get('solo'))
        A(f's_lshl_b32 s33, s11, 14\ns_add_u32 {sPW}, s33, {PS}\ns_xor_b32 {sPR}, {sPW}, 0x8000')
        A(f's_mul_i32 {sXS}, {sS1}, {0 if cfg.get("xsame") else 28672}' + (f'\ns_add_u32 {sXS}, {sXS}, {XF}' if XF else ''))
        A(f's_and_b32 s11, {sS1}, 1\ns_lshl_b32 s11, s11, 15\ns_add_u32 {sXL}, s11, {sWL}')
        x_consts()
        if nt: A(f's_add_u32 s11, {sSTEP}, 2\ns_min_u32 s11, s11, {NSEG-1}\ns_mul_i32 s11, s11, {VX_SEG}\ns_add_u32 s34, s11, {VXF}')
        A(f'v_mov_b32 v{TMP+3}, {sS1}')
        for r in range(MREGA[0], MREGA[0] + 4 * cfg.get('ne', 2), 2): A(f'v_mov_b64 {vr(r,2)}, -1')
        w.stamp()
        gate = cfg.get('gate', 'w0')
        if gate == 'w0':
            A(f's_cmp_lg_u32 {sW}, 0\ns_cbranch_scc1 {lab}_nopoll')
            if not cfg.get('solo'): poll(w, f'{lab}_poll1', aPOLL, sSTEP, tmo, 16)
            A(f'{lab}_nopoll:\ns_barrier')
        elif gate == 'all':
            poll(w, f'{lab}_poll1', aPOLL, sSTEP, tmo, 16)
        w.stamp()
        for _ in range(cfg.get('adelay', 0)): A('s_nop 15')
        xpos = cfg.get('xpos', [14, 19, 24, 29, 34, 39, 44, 50])
        def xat(p):
            if nt and cfg.get('tslot', 27) == p: w.vmem(f'buffer_load_dword v109, v110, {SRD}, s34 offen', 'T')
            for k in range(8):
                if xpos[k] == p: x_m0(k >> 2, k & 3); x_dma(k >> 2, k & 3, w)
        def fill(f0, k0):
            d = {}; dv = {}
            add = lambda n, f: d.setdefault(n, []).append(f)
            def kq(n, reg, areg, off, tag, ns):
                if cfg.get('kr2'):
                    r2 = areg if off < 1024 else aKR2
                    o = (off & 1023) // 4
                    add(n, lambda: w.ds(f'ds_read2_b32 {vr(reg,2)}, {r2} offset0:{o} offset1:{o+8}', tag))
                    add(n, lambda: w.ds(f'ds_read2_b32 {vr(reg+2,2)}, {r2} offset0:{o+1} offset1:{o+9}', tag))
                    return
                add(n, lambda: w.ds(f'ds_read_b64 {vr(reg,2)}, {areg} offset:{off}', tag))
                add(n, lambda: w.ds(f'ds_read_b64 {vr(reg+2,2)}, {areg} offset:{off+32}', tag))
                if cfg.get('lswap', 1) and not (cfg.get('z0swap') and tag in ('K0', 'K1')): return
                add(ns, lambda: w.wait(lg=tag))
                dv.setdefault(ns, []).append(lambda: w(f'v_swap_b32 v{reg+1}, v{reg+2}'))
            n = f0
            for tt in range(2):
                for uu in range(2):
                    add(n, lambda tt=tt, uu=uu: w.ds(f'ds_read_b128 {vr(Z0+8*(1+tt)+4*uu,4)}, {aXR} offset:{(tt*4+uu)*1024}', 'Z0')); n += 1
            for k in range(8):
                if xpos[k] < 49:
                    add(xpos[k] - 1, lambda k=k: x_m0(k >> 2, k & 3))
                    add(xpos[k], lambda k=k: x_dma(k >> 2, k & 3, w))
            if nt and cfg.get('tslot', 27) < 49: add(cfg.get('tslot', 27), lambda: w.vmem(f'buffer_load_dword v109, v110, {SRD}, s34 offen', 'T'))
            ks = cfg.get('kswap', [36, 39, 42, 45])
            if cfg.get('z0swap'): ks = [k0 + 5, k0 + 6, 0, 0]
            kq(k0, Z0, aKR, 0, 'K0', ks[0]); kq(k0 + 1, Z0 + 4, aKR, 512, 'K1', ks[1])
            k1 = 41 if cfg.get('nanchk', 1) else k0 + 3
            if cfg.get('nanchk', 1): k0 += 3
            kq(k1, Z1, aKR, 1024, 'K2', ks[2]); kq(k1 + 1, Z1 + 4, aKR3, 0, 'K3', ks[3])
            for k, sl in enumerate((37, 38, 39, 40) if cfg.get('nanchk', 1) else (36, 37, 39, 40)):
                tt, uu = k >> 1, k & 1
                add(sl, lambda tt=tt, uu=uu: w.ds(f'ds_read_b128 {vr(Z1+8*(1+tt)+4*uu,4)}, {aXR} offset:{(tt*4+2+uu)*1024}', 'Z1'))
            add(45, lambda: w.ds(f'ds_read_b64_tr_b16 {vr(TSP0,2)}, {aTR}', 'TS0'))
            add(46, lambda: w.ds(f'ds_read_b64_tr_b16 {vr(TSP0+2,2)}, {aTR} offset:192', 'TS0'))
            return d, dv
        def tw(tl, reg):
            if ',' in reg:
                u = tl >> 1
                w.ds(f'ds_write2_b32 {aTW if u < 2 else "v98"}, {reg} offset0:{(u&1)*192} offset1:{(u&1)*192+16}')
            elif tl < 6: w.ds(f'ds_write_b32 {aTW}, {reg} offset:{(tl>>1)*768 + (tl&1)*64}')
            else: w.ds(f'ds_write_b32 {aTW6}, {reg}')
        rest = a_stream(w, fill, tw, lab, TMP, tmo)
        w.stamp()
        w.wait(lg='TS0')
        o0 = (1, 2, 0) if cfg.get('lswap', 1) and not cfg.get('z0swap') else (0, 1, 2)
        w(smf(SACC + 4 * o0[0], vr(TSP0, 4), vr(Z0 + 8 * o0[0], 8), vIDX))
        rest[0]()
        w(smf(SACC + 4 * o0[1], vr(TSP0, 4), vr(Z0 + 8 * o0[1], 8), vIDX))
        for f in rest[1:]: f()
        w(f'v_add_f32 v{TMP}, v{ACC[6]}, v{ACC[6]+2}\nv_add_f32 v{TMP+1}, v{ACC[6]+1}, v{ACC[6]+3}')
        w(f'v_cvt_pk_bf16_f32 v{TMP+2}, v{TMP}, v{TMP+1}')
        tw(6, f'v{TMP+2}')
        w.ds(f'ds_read_b64_tr_b16 {vr(TSP1,2)}, {aTR} offset:1536', 'TS1')
        w.ds(f'ds_read_b64_tr_b16 {vr(TSP1+2,2)}, {aTR} offset:{1536+192}', 'TS1')
        if cfg.get('rtid'): w('s_mov_b32 m0, s35')
        if cfg.get('lswap', 1) and not cfg.get('kr2'):
            if not cfg.get('z0swap'):
                for r in (Z0, Z0 + 4, Z1, Z1 + 4): w(f'v_swap_b32 v{r+1}, v{r+2}')
        w(smf(SACC + 4 * o0[2], vr(TSP0, 4), vr(Z0 + 8 * o0[2], 8), vIDX))
        if cfg.get('z0swap'):
            for r in (Z1, Z1 + 4): w(f'v_swap_b32 v{r+1}, v{r+2}')
        xat(50)
        w.wait(lg='TS1')
        for kt in o0: w(smf(SACC + 4 * kt, vr(TSP1, 4), vr(Z1 + 8 * kt, 8), vIDX))
        for kt in o0:
            w(f'v_add_f32 v{56+2*kt}, v{SACC+4*kt}, v{SACC+4*kt+2}\nv_add_f32 v{57+2*kt}, v{SACC+4*kt+1}, v{SACC+4*kt+3}')
            if cfg.get('rtid'):
                for rp in range(2): w.ds(f'ds_write_addtid_b32 v{56+2*kt+rp} offset:{A_R - 32768 + (2*kt+rp)*288}')
            elif cfg.get('r128'): w.ds(f'ds_write2st64_b32 {aRW}, v{56+2*kt}, v{57+2*kt} offset0:{kt} offset1:{kt+3}')
            else: w.ds(f'ds_write2_b32 {aRW}, v{56+2*kt}, v{57+2*kt} offset0:{16*kt} offset1:{16*kt+48}')
        hu2 = lambda: w.vmem(f'buffer_store_dword v{TMP+3}, {vHUs}, {SRD}, 0 offen {st}')
        hp = cfg.get('hu2pos', 0)
        w.stamp()
        if hp == -1: hu2()
        xat(51)
        w.wait_all_lg()
        A('s_barrier')
        if cfg.get('r128'):
            for k in range(2): w.ds(f'ds_read_b128 {vr(64+4*k,4)}, {aRR} offset:{k*16}', f'R{2*k+1}')
        else:
            for k in range(4): w.ds(f'ds_read_b64 {vr(64+2*k,2)}, {aRR} offset:{k*(1728 if cfg.get("rtid") else 1536)}', f'R{k}')
        if hp == 0: hu2()
        xat(52)
        w.stamp()
        w.wait(lg='R1'); w('v_pk_add_f32 v[64:65], v[64:65], v[66:67]')
        w.wait(lg='R3'); w('v_pk_add_f32 v[68:69], v[68:69], v[70:71]')
        w('v_pk_add_f32 v[64:65], v[64:65], v[68:69]')
        if hp == 1: hu2()
        for _ in range(cfg.get('apad', 0)): A('s_nop 15')
        w('v_max_f32 v66, v64, v65')
        for k, r in enumerate((8, 4, 2, 1)):
            if hp == 2 + k: hu2()
            xat(53 + k)
            w(f'v_max_f32_dpp v66, v66, v66 row_ror:{r} row_mask:0xf bank_mask:0xf')
        w('v_mov_b32 v67, v66')
        w('v_permlane16_swap_b32 v66, v67')
        w('v_max_f32 v66, v66, v67')
        w('v_pk_add_f32 v[64:65], v[64:65], v[66:67] op_sel_hi:[1,0] neg_lo:[0,1] neg_hi:[0,1]')
        w('v_exp_f32 v64, v64\nv_exp_f32 v65, v65')
        if hp == 6: hu2()
        w('v_add_f32 v66, v64, v65')
        if not cfg.get('nomask'): w(f'v_cndmask_b32 v66, 0, v66, {sMASK}')
        for k, r in enumerate((8, 4, 2, 1)):
            if hp == 7 + k: hu2()
            xat(57 + k)
            w(f'v_add_f32_dpp v66, v66, v66 row_ror:{r} row_mask:0xf bank_mask:0xf')
        w('v_mov_b32 v67, v66\nv_permlane16_swap_b32 v66, v67\nv_add_f32 v66, v66, v67')
        w('v_rcp_f32 v66, v66')
        if hp == 11: hu2()
        w('v_pk_mul_f32 v[64:65], v[64:65], v[66:67] op_sel_hi:[1,0]')
        w('v_cvt_pk_bf16_f32 v64, v64, v65')
        w('v_min_u32 v64, -2, v64')
        w.vmem(f'buffer_store_dword v64, {aP}, {SRD}, {sPW} offen {st}')
        if hp == 99: hu2()
        w.stamp()
        if cfg.get('ack'): w.wait_all_vm(); w.stamp()
        def later():
            w('v_mov_b32 v65, -1')
            w.vmem(f'buffer_store_dword v65, {aP}, {SRD}, {sPR} offen {st}')
            xat(99)
        lp = cfg.get('lpos', 1)
        if lp == 0: later()
        zero(w, 28, 28); zero(w, SACC, 12)
        w(f'v_xor_b32 {aXR}, 0x8000, {aXR}')
        if lp == 2: A('s_barrier')
        if lp >= 1: later()
        w.dump_stamps(lab)
        A(f's_mov_b32 {sSPIN}, {SPIN_MAX}')
        A(f's_mov_b32 {sSTEP}, {sS1}\ns_cmp_lt_u32 {sSTEP}, {NSEG-1}\ns_cbranch_scc1 {lab}_loop')
        cfg['finish'](w, lab)
        A('s_endpgm')
        l_retry(w, lab, TMP, tmo)

    emit_modes(A, cfg, lab, loop)

B_VX, B_V = 0, 98304
bVW, bWR, bVR, bMS, bSEL = 'v108', 'v107', 'v106', 'v105', 'v104'
bMX, bFL, bVL, bPOLL = 'v107', 'v106', 'v105', 'v104'
bTO, bINC, bFLAG = 'v99', 'v98', 'v97'
bDM = [f'v{89+k}' for k in range(7)]
BT = 100
FACC = 96
sVS, sVL, sMW, sMR, sMXO = 's25', 's26', 's27', 's28', 's29'

def bcol(j, c):
    return sel_lt(c, 16, j * 16 + c, j * 12 + c + 240)

def b_exprs_final():
    l = V('v0'); w = Sg(sW); j = Sg(sR)
    g = l >> 4; n = l & 15; c = w * 16 + n
    e = {}
    e[bWR] = B_VX + (g * 28 + c.min(27)) * 16
    e[bVR] = B_V + (g * 28 + c.min(27)) * 16
    i = g * 2 + (n & 1); d0 = bcol(j, c & 30)
    k = d0 & 63
    off = (d0 >> 6) * 1024 + ((k >> 4) * 16 + (i >> 1) * 4 + ((k >> 1) & 1) * 2 + (i & 1)) * 16 + ((k >> 2) & 3) * 4
    e[bMS] = sel_lt(c, 28, off, OOB)
    e[bSEL] = sel_lt(n & 1, 1, 0x05040100, 0x03020706)
    return e
def check_b():
    e = b_exprs_final(); l = np.arange(64)
    for j in (0, 1, 5, 15):
        for w in range(2):
            p = ev(e[bMS], {'v0': l, sW: w, sR: j})
            for ln in range(64):
                c = 16 * w + (ln & 15)
                assert p[ln] == (ms_off(2 * (ln >> 4) + (ln & 1), (16 * j if c < 16 else 12 * j + 240) + (c & ~1)) if c < 28 else OOB)
check_b()

def gen_B(A, cfg, lab, tmo):
    w = Wv(A, cfg)
    em = Emitter(A, [f'v{i}' for i in list(range(2, 20)) + list(range(28, 56))])
    A(f's_add_u32 s39, {sR}, 1')
    fast = cfg.get('bfast', 2)
    common_consts(em, A, lab, '0' if fast else 's39', fast == 1)
    l = V('v0'); ww = Sg(sW); j = Sg(sR)
    em.emit(B_V + (ww * 112 + (l & 15)) * 16 + (l >> 4) * 4, bVW)
    for tl in range(7):
        f = ww * 112 + tl * 16 + (l & 15); hh = f.div(28)
        em.emit((hh * 56 + (l >> 4)) * 7168 + bcol(j, f - hh * 28) * 16, f'v{20+tl}')
    def addr(tl, t, b):
        return f'v{20+tl}', f's_mul_i32 s11, {sKK[t]}, 56\ns_add_u32 s11, s11, {BF + 28672*b}'
    def vw(tl, reg): w.ds(f'ds_write_b32 {bVW}, {reg} offset:{tl*256}')
    def tail6(rest):
        for f in rest: f()
        w(f'v_add_f32 v{BT}, v{ACC[6]}, v{ACC[6]+2}\nv_add_f32 v{BT+1}, v{ACC[6]+1}, v{ACC[6]+3}')
        w(f'v_cvt_pk_bf16_f32 v{BT+2}, v{BT}, v{BT+1}')
        vw(6, f'v{BT+2}')
    rot = sR if cfg.get('prot', 1) else '0'
    for q in range(4): A(f's_add_u32 s{48+q}, {rot}, {q}\ns_and_b32 s{48+q}, s{48+q}, 3\ns_lshl_b32 s{48+q}, s{48+q}, 11')
    if cfg.get('pre_b'): cfg['pre_b']()
    A(f's_cmp_ge_u32 {sW}, 2\ns_cbranch_scc1 {lab}_loader')
    for k, x in b_exprs_final().items(): em.emit(x, k)
    bWB = vHUs if cfg.get('bpoll') else None
    assert bWB, 'the flag variant has no register left for three slots'
    A(f'v_mov_b32 {bWB}, {bWR}\ns_mov_b32 s47, 0')
    em.emit(HU2 + (l & 15) * 4, vHUp)
    load_weights(w, addr)
    zero(w, 28, 28)
    A(f's_mov_b32 {sSTEP}, 0\ns_mov_b32 {sSPIN}, {SPIN_MAX}\ns_mov_b32 {sRETRY}, 0')
    cfg['start_sync'](w, lab + 'f')
    A('s_waitcnt vmcnt(0) lgkmcnt(0)')
    def loopf(lf, st, second):
        nonlocal w
        w = Wv(A, cfg)
        PREG = [4 * m for m in range(10)]
        one = cfg.get('onebar', 1)
        if one:
            order = list(range(10))
            WREG = {0: 56, 1: 64, 2: 72, 3: 80, 4: 88, 5: 40, 6: 48, 7: 56, 8: 64, 9: 72}
        else:
            order = [0, 1, 2, 3, 4, 8, 9, 5, 6, 7]
            WREG = {0: 56, 1: 64, 2: 72, 3: 80, 4: 88, 8: 40, 9: 48, 5: 56, 6: 64, 7: 72}
        sPO = ['s22', 's23', 's24', 's45', 's46']
        def wx(m, b):
            if m < 8: w.ds(f'ds_read_b128 {vr(WREG[m]+4*b,4)}, {bWR} offset:{(2*m+b)*1792}', f'W{m}')
            else: w.ds(f'ds_read_b128 {vr(WREG[m]+4*b,4)}, {bVR} offset:{(2*(m-8)+b)*1792}', f'W{m}')
        def mfirst():
            for t in range(2): A(f'buffer_load_dwordx4 {vr(MREG[t],4)}, {vL16}, {SRD}, {sMO[t]} offen sc1')
        if fast:
            step_consts(A)
            A('s_barrier'); mfirst()
        A(f'{lf}_loop:')
        if fast: A(f's_and_b32 s11, {sSTEP}, 3\ns_add_u32 {sS1}, {sSTEP}, 1')
        else: step_consts(A)
        A(f's_lshl_b32 s11, s11, 14\ns_add_u32 s11, s11, {PS}\ns_add_u32 s46, s11, 8192')
        for q in range(4): A(f's_add_u32 {sPO[q]}, s11, s{48+q}')
        A(f's_and_b32 s11, {sS1}, 3\ns_lshl_b32 s11, s11, 13\ns_add_u32 {sMW}, s11, {MS}\ns_xor_b32 {sMR}, {sMW}, 0x4000')
        A(f'v_mov_b32 v{BT+3}, {sS1}\nv_mov_b64 {vr(FACC,2)}, 0\nv_mov_b64 {vr(FACC+2,2)}, 0')
        if cfg.get('bpoll') and not fast:
            for r in range(MREG[0], MREG[0] + 8, 2): A(f'v_mov_b64 {vr(r,2)}, -1')
        w.stamp()
        if not fast: A('s_barrier')
        w.stamp()
        def fillf(f0):
            d = {}
            for m in range(5):
                for b in range(2): d.setdefault(f0 + 2 * m + b, []).append(lambda m=m, b=b: wx(m, b))
            return d, {}
        tail6(weight_stream(w, fillf, vw, lf, BT, tmo, cfg.get('bpoll')))
        for _ in range(cfg.get('vpad', 0)): A('s_nop 15')
        w.stamp()
        if one:
            for m in (5, 6): wx(m, 0); wx(m, 1)
            if fast:
                for t in range(2): A(f's_add_u32 {sMO[t]}, {sMW}, {sKK[t]}')
            w.wait_all_lg()
            w.stamp()
            if second: A('s_barrier')
            else: poll(w, f'{lf}_poll2', f'v{BT+2}', sS1, tmo, 16)
        else:
            w.wait_all_lg()
            A('s_barrier')
            A(f's_cmp_eq_u32 {sSTEP}, {NSEG-1}\ns_cbranch_scc1 {lf}_done')
            for m in (8, 9): wx(m, 0); wx(m, 1)
            w.stamp()
            if cfg.get('b0poll'):
                if second: A('s_barrier')
                else: poll(w, f'{lf}_poll2', f'v{BT+2}', sS1, tmo, 16)
            else:
                A('s_barrier')
                if second: A('s_barrier')
        w.stamp()
        def ploads():
            for k, m in enumerate(order):
                w.vmem(f'buffer_load_dwordx4 {vr(PREG[k],4)}, {vL16}, {SRD}, {sPO[m>>1]} offen offset:{(m&1)*1024} sc1', f'P{k}')
        ploads()
        if not second: A('s_barrier')
        if fast and second: A('s_cmp_eq_u32 0, 1')
        A(f'{lf}_pchain:')
        for _ in range(cfg.get('bpad', 0)): A('s_nop 15')
        for k, m in enumerate(order):
            w.wait(vm=f'P{k}', lg=f'W{m}')
            if k == 0: w.stamp()
            w(smf(FACC, vr(PREG[k], 4), vr(WREG[m], 8), vIDX))
            if k < 3: wx((7 if one else 5) + k, 0); wx((7 if one else 5) + k, 1)
            if fast and second and k == cfg.get('kb', 4 if fast == 1 else 99):
                w.wait_all_lg(); A(f's_cbranch_scc1 {lf}_nob\ns_barrier\n{lf}_nob:')
        w(f'v_add_f32 v{BT}, v{FACC}, v{FACC+2}\nv_add_f32 v{BT+1}, v{FACC+1}, v{FACC+3}')
        if cfg.get('bcmp', 1):
            w(f'v_cvt_pk_bf16_f32 v{FACC}, v{BT}, v{BT+1}')
            w(f'v_cmp_u_f32 vcc, v{BT}, v{BT+1}')
            w(f'v_mov_b32_dpp v{BT+1}, v{FACC} quad_perm:[1,0,3,2] row_mask:0xf bank_mask:0xf')
            w(f'v_perm_b32 v{BT}, v{BT+1}, v{FACC}, {bSEL}')
        else:
            w(f'v_cmp_u_f32 vcc, v{BT}, v{BT+1}')
            w(f'v_cvt_pk_bf16_f32 v{BT}, v{BT}, v{BT+1}')
            w(f'v_mov_b32_dpp v{BT+1}, v{BT} quad_perm:[1,0,3,2] row_mask:0xf bank_mask:0xf')
            w(f'v_perm_b32 v{BT}, v{BT+1}, v{BT}, {bSEL}')
        w(f'v_min_u32 v{BT}, -2, v{BT}')
        w(f's_cbranch_vccnz {lf}_pretry\n{lf}_pok:')
        w.vmem(f'buffer_store_dword v{BT}, {bMS}, {SRD}, {sMW} offen {st}')
        if fast:
            if not second or cfg.get('kb', 4 if fast == 1 else 99) == 99: A('s_barrier')
            mfirst()
        if cfg.get('lastmx', 1):
            A(f's_cmp_eq_u32 {sSTEP}, {NSEG-2}\ns_cbranch_scc1 {lf}_last')
        w.stamp()
        if cfg.get('ack'): w.wait_all_vm(); w.stamp()
        w(f'v_mov_b32 v{BT+1}, -1')
        w.vmem(f'buffer_store_dword v{BT+1}, {bMS}, {SRD}, {sMR} offen {st}')
        if not cfg.get('bpoll'): w.vmem(f'buffer_store_dword v{BT+3}, {vHUs}, {SRD}, 0 offen {st}')
        zero(w, 28, 28)
        w(f's_add_u32 s47, s47, 0x8000\ns_cmp_eq_u32 s47, 0x18000\ns_cselect_b32 s47, 0, s47\nv_add_u32 {bWR}, s47, {bWB}')
        w.dump_stamps(lf)
        A(f's_mov_b32 {sSPIN}, {SPIN_MAX}\ns_mov_b32 {sSTEP}, {sS1}\ns_branch {lf}_loop')
        if cfg.get('lastmx', 1):
            A(f'{lf}_last:\ns_mov_b32 s11, {MX + (NSEG-1)*7168}\nbuffer_store_dword v{BT}, {bMS}, {SRD}, s11 offen sc1')
        A(f'{lf}_done:')
        cfg['finish'](w, lf)
        A('s_endpgm')
        m_retry(w, lf, tmo)
        A(f'{lf}_pretry:\ns_waitcnt vmcnt(0) lgkmcnt(0)')
        sentinel_check(w, list(range(0, 40)), f'v{BT+2}')
        A(f's_cbranch_vccz {lf}_pok')
        A(f's_add_u32 {sRETRY}, {sRETRY}, 0x10000\ns_sub_u32 {sSPIN}, {sSPIN}, 8\ns_cbranch_scc1 {tmo}')
        for m in range(3): wx(m, 0); wx(m, 1)
        A(f'v_mov_b64 {vr(FACC,2)}, 0\nv_mov_b64 {vr(FACC+2,2)}, 0\ns_waitcnt lgkmcnt(0)')
        ploads()
        A(f's_cmp_eq_u32 0, 0\ns_branch {lf}_pchain')
    A(f's_cmp_eq_u32 {sW}, 1\ns_cbranch_scc1 {lab}_second')
    emit_modes(A, cfg, lab + 'f', lambda lf, st: loopf(lf, st, False))
    A(f'{lab}_second:')
    emit_modes(A, cfg, lab + 'g', lambda lf, st: loopf(lf, st, True))
    ll = lab + 'l'
    A(f'{lab}_loader:')
    w = Wv(A, cfg)
    for r in range(7):
        f = l + 64 * r; hg = f.div(28)
        em.emit(hg * 7168 + bcol(j, f - hg * 28) * 16 + (4096 - (r & 3) * 1024), bDM[r])
    em.emit(sel_lt(ww, 3, HU1 + 128 + (l & 31) * 4, HU2 + (l & 15) * 4), vHUp)
    em.emit(sel_lt(l + (3 - ww) * 64, 1, HU1 + j * 4, OOB), vHUs)
    em.emit(sel_lt(j + (3 - ww) * 16, 7, j * 1024 + l * 16, OOB), bMX)
    em.emit(L_K + (j & 7) * 1024 + l * 16, 'v88')
    xl = (j * 2 + ww - 2) * 7 + l
    em.emit(sel_lt(l, 7, XF + 2 * 28672 + xl * 128, sel_lt(l, 63, OOB, FVX + 2 * 128)), bTO)
    em.emit(sel_lt(l, 63, 28672, 128), bINC)
    A(f'v_mov_b32 {bFLAG}, 16')
    A(f's_sub_u32 s11, {sW}, 2\ns_mul_i32 s23, s11, 14336\ns_cmp_eq_u32 s11, 0\ns_cselect_b32 s24, s48, s50\ns_cselect_b32 s45, s49, s51')
    A(f's_mul_i32 s24, s24, 56\ns_add_u32 s24, s24, {VXF - 4096}\ns_mul_i32 s45, s45, 56\ns_add_u32 s45, s45, {VXF - 4096}')
    def vx_m0(k):
        if k % 7 in (0, 4): w(f's_add_u32 m0, {sVL}, {k*1024}')
    def vx_dma(k):
        w.vmem(f'buffer_load_dwordx4 {bDM[k%7]}, {SRD}, {sVS if k < 7 else "s44"} offen offset:{((k%7)&3)*1024} lds', 'D')
    load_weights(w, addr)
    zero(w, 28, 28)
    A(f's_mov_b32 {sSTEP}, 0\ns_mov_b32 {sSPIN}, {SPIN_MAX}\ns_mov_b32 {sRETRY}, 0')
    cfg['start_sync'](w, ll)
    A(f's_mov_b32 {sVS}, s24\ns_mov_b32 s44, s45\ns_mov_b32 {sVL}, s23\ns_mov_b32 s47, 0')
    for k in range(14): vx_m0(k); vx_dma(k)
    def loopl(ll, st):
        nonlocal w
        w = Wv(A, cfg)
        A(f'{ll}_loop:')
        step_consts(A)
        A(f's_min_u32 s11, {sS1}, {0 if cfg.get("vxsame") else NSEG-1}\ns_mul_i32 s11, s11, {VX_SEG}\ns_add_u32 {sVS}, s11, s24\ns_add_u32 s44, s11, s45')
        A(f's_add_u32 s47, s47, 0x8000\ns_cmp_eq_u32 s47, 0x18000\ns_cselect_b32 s47, 0, s47\ns_add_u32 {sVL}, s47, s23')
        A(f's_mul_i32 {sMXO}, {sSTEP}, 7168\ns_add_u32 {sMXO}, {sMXO}, {MX}')
        if cfg.get('bpoll'):
            for r in range(MREG[0], MREG[0] + 8, 2): A(f'v_mov_b64 {vr(r,2)}, -1')
        A('s_waitcnt vmcnt(0)')
        A(f's_cmp_ge_u32 {sSTEP}, {NSEG-1}\ns_cbranch_scc1 {ll}_fok')
        A(f'{ll}_fchk:\nv_readlane_b32 s11, {bFLAG}, 63\ns_nop 0\ns_cmp_ge_u32 s11, 16\ns_cbranch_scc1 {ll}_fok')
        A(f's_lshl_b32 s11, {sS1}, 7\ns_add_u32 s11, s11, {FVX}')
        A(f'buffer_load_dword {bFLAG}, off, {SRD}, s11 sc1')
        A(f's_sub_u32 {sSPIN}, {sSPIN}, 1\ns_cbranch_scc1 {tmo}\ns_waitcnt vmcnt(0)\ns_branch {ll}_fchk\n{ll}_fok:')
        w.stamp()
        if not cfg.get('bpoll'):
            A(f's_cmp_lg_u32 {sW}, 2\ns_cbranch_scc1 {ll}_nopoll')
            poll(w, f'{ll}_poll1', bPOLL, sSTEP, tmo, 32)
            A(f'{ll}_nopoll:')
        A('s_barrier')
        w.stamp()
        d0 = cfg.get('dslot', 2); dstep = cfg.get('dstep', 2); ne = cfg.get('dearly', 0)
        def early():
            for k in range(ne): vx_m0(k); vx_dma(k)
        def filll(f0):
            d = {}
            add = lambda n, f: d.setdefault(n, []).append(f)
            for k in range(ne, 14):
                add(d0 + dstep * (k - ne) - 1, lambda k=k: vx_m0(k))
                add(d0 + dstep * (k - ne), lambda k=k: vx_dma(k))
            add(d0 + dstep * (14 - ne), lambda: w.vmem(f'buffer_load_dword {bFLAG}, {bTO}, {SRD}, 0 offen sc1', 'D'))
            if fast and not cfg.get('nomx'):
                add(f0, lambda: w.ds('ds_read_b128 v[56:59], v88', 'MX'))
                add(f0 + 5, lambda: (w.wait(lg='MX'), w.vmem(f'buffer_store_dwordx4 v[56:59], {bMX}, {SRD}, {sMXO} offen sc1')))
            elif not cfg.get('nomx'):
                add(max(f0 - 4, cfg.get('vslot', 0)), lambda: w.vmem(f'buffer_store_dwordx4 {vr(MREG[0],4)}, {bMX}, {SRD}, {sMXO} offen {cfg.get("mxfl", "sc1")}'))
            return d, {}
        tail6(weight_stream(w, filll, vw, ll, BT, tmo, cfg.get('bpoll'), early))
        w.stamp()
        w.wait_all_lg()
        if not cfg.get('onebar', 1):
            A('s_barrier')
            A(f's_cmp_eq_u32 {sSTEP}, {NSEG-1}\ns_cbranch_scc1 {ll}_done')
        zero(w, 28, 28)
        A(f'v_mov_b32 v{BT+3}, {sS1}')
        if not cfg.get('xsame'): A(f'v_add_u32 {bTO}, {bTO}, {bINC}')
        w.stamp()
        if cfg.get('drain'):
            w.wait(vm='D'); w.stamp(); w.wait_all_vm(); w.stamp()
        hu1 = f'buffer_store_dword v{BT+3}, {vHUs}, {SRD}, 0 offen {st}'
        if cfg.get('b0poll') or cfg.get('onebar', 1):
            A('s_barrier')
            if cfg.get('gate', 'w0') != 'none': A(hu1)
        else:
            A(f's_cmp_lg_u32 {sW}, 3\ns_cbranch_scc1 {ll}_nopoll2')
            poll(w, f'{ll}_poll2', bPOLL, sS1, tmo, 16)
            A(f'{ll}_nopoll2:\ns_barrier')
            if cfg.get('hu1pos', 0) == 0: A(hu1)
            A('s_barrier')
            if cfg.get('hu1pos', 0) == 1: A(hu1)
        if cfg.get('lastmx', 1): A(f's_cmp_eq_u32 {sSTEP}, {NSEG-2}\ns_cbranch_scc1 {ll}_done')
        w.dump_stamps(ll)
        A(f's_mov_b32 {sSPIN}, {SPIN_MAX}\ns_mov_b32 {sSTEP}, {sS1}\ns_branch {ll}_loop\n{ll}_done:')
        cfg['finish'](w, ll)
        A('s_endpgm')
        m_retry(w, ll, tmo)
    emit_modes(A, cfg, ll, loopl)
```

```python
from asmdsl import Asm
from expr import X, V, Sg, Emitter, ev, sel_lt
from layout import *
from rec import dstamp, tline, wait_lanes, Wv, vr, wquad, wreg, smf, zero, sentinel_check, SRD
from prep import f32, mfma, srd
import math

sW, sR = 's9', 's10'
sSPIN = 's19'
WSPIN = 0x40000
BACK = ['']
PREV = [1]
ONE = [0]
NV = 4
NQ = 4

def wait_flag(w, lab, soff, target, tmo, vt='v2'):
    w(f's_cmp_lg_u32 {sW}, 0\ns_cbranch_scc1 {lab}_go\ns_mov_b32 {sSPIN}, {WSPIN}')
    w(f'{lab}:\nbuffer_load_dword {vt}, off, {SRD}, {soff} sc1')
    w(f's_sub_u32 {sSPIN}, {sSPIN}, 1\ns_cbranch_scc1 {tmo}\n{BACK[0]}s_waitcnt vmcnt(0)')
    w(f'v_cmp_gt_u32 vcc, {target}, {vt}\ns_cbranch_vccnz {lab}')
    w(f'{lab}_go:\ns_barrier')

def signal(w, lab, soff, vt='v2'):
    w('s_waitcnt vmcnt(0)\ns_barrier'); w.vm = []
    w(f's_cmp_lg_u32 {sW}, 0\ns_cbranch_scc1 {lab}\nv_mov_b32 {vt}, 1\ns_mov_b64 exec, 1')
    w(f'buffer_atomic_add {vt}, off, {SRD}, {soff} sc1\ns_mov_b64 exec, -1\n{lab}:')

def load_w(w, addr_of, ps=range(14)):
    n = 0
    for p in ps:
        for tl in range(7):
            va, pre = addr_of(tl, p)
            w(pre)
            w.vmem(f'buffer_load_dwordx4 {wquad(tl*7 + (p>>1), p&1)}, {va}, {SRD}, s11 offen', f'W{p}')
            n += 1
            if n % 14 == 0 and len(w.vm) > 44: w('s_waitcnt vmcnt(32)'); w.vm = w.vm[-32:]

XB = 56
def xq(p, tt): return XB + ((p & 3) * 2 + tt) * 4
def acc2(tl, tt): return (tl * 2 + tt) * 4
sXB, sXN = 's20', 's21'
vL16 = 'v119'

def x_load(w, p, base):
    for tt in range(2):
        off = p * 1024 + tt * 14336
        w(f's_add_u32 s11, {base}, {off & ~4095}')
        w.vmem(f'buffer_load_dwordx4 {vr(xq(p,tt),4)}, {vL16}, {SRD}, s11 offen offset:{off & 4095}', f'X{p}')

def seg_gemm(w, w_is_a, wload=None):
    for p in range(14):
        w.wait(vm=f'X{p}'); w.wait(vm=f'W{p}')
        for tl in range(7):
            for tt in range(2):
                wq = wquad(tl * 7 + (p >> 1), p & 1); xx = vr(xq(p, tt), 4)
                a, b = (wq, xx) if w_is_a else (xx, wq)
                w(mfma(vr(acc2(tl, tt), 4), a, b, 0 if p == 0 else None))
        if p + 4 < 14: x_load(w, p + 4, sXB)
        if wload and p + 6 < 14: wload(p + 6)
    for p in range(4): x_load(w, p, sXN)

def mx_wait(w, lab, regs, loads, tmo, tmp):
    if PREV[0]: w(f's_sub_u32 s26, s15, 7168\ns_max_u32 s26, s26, {MX}')
    else: w('s_mov_b32 s26, s15')
    w(f's_mov_b32 {sSPIN}, {WSPIN}')
    if ONE[0]: w(f's_cmp_lg_u32 {sW}, 3\ns_cbranch_scc1 {lab}_2')
    w(f'{lab}_1:\nbuffer_load_dword {tmp}, off, {SRD}, s26 sc1')
    w(f's_sub_u32 {sSPIN}, {sSPIN}, 1\ns_cbranch_scc1 {tmo}\n{BACK[0]}s_waitcnt vmcnt(0)\nv_cmp_eq_u32 vcc, -1, {tmp}\ns_cbranch_vccnz {lab}_1')
    if ONE[0]: w(f'{lab}_2:\ns_barrier')
    w(f'{lab}:')
    loads()
    w(f's_sub_u32 {sSPIN}, {sSPIN}, 1\ns_cbranch_scc1 {tmo}\n{BACK[0]}s_waitcnt vmcnt(0)'); w.vm = []
    sentinel_check(w, regs, tmp)
    w(f's_cbranch_vccnz {lab}')

def gen_V(A, cfg, lab, tmo):
    w = Wv(A, {})
    em = Emitter(A, [f'v{i}' for i in range(2, 30)])
    l = V('v0'); g = l >> 4; n = l & 15; ww = Sg(sW); h = Sg(sR)
    em.emit(l & 63, 'v0')
    em.emit(l * 16, vL16)
    em.emit(sel_lt(l & 2, 1, 0x44444444, 0xEEEEEEEE), 'v118')
    em.emit(g * 7168 + (ww * 112 + n) * 16, 'v117')
    em.emit((ww * 112 + n) * 16 + g * 4, 'v116')
    A(f's_mul_i32 s13, {sR}, {14*28672}\ns_add_u32 s13, s13, {BF}')
    A(f's_mul_i32 {sXB}, s12, 28672' + (f'\ns_add_u32 {sXB}, {sXB}, {XF}' if XF else ''))
    wait_lanes(A, f'{lab}_wb', sel_lt(l, 1, FB + h * 128, FX), sel_lt(l, 1, 14, 32), tmo)
    waddr = lambda tl, p: ('v117', f's_add_u32 s11, s13, {p*28672 + tl*256}')
    c2 = dict(cfg, tlreg=97)
    A(f's_mov_b32 s8, s12\ns_mul_i32 s14, {sR}, 28672')
    if cfg.get('vfirst', 1):
        for p in range(4): x_load(w, p, sXB)
        load_w(w, waddr, range(6))
        A(f's_add_u32 {sXN}, {sXB}, {NV*28672}')
        seg_gemm(w, False, lambda p: load_w(w, waddr, [p]))
        tline(A, c2, 1)
        A(f's_branch {lab}_epi')
    else:
        load_w(w, waddr)
        if cfg.get('tl'): A('s_waitcnt vmcnt(0)')
        tline(A, c2, 1)
        for p in range(4): x_load(w, p, sXB)
    A(f'{lab}_loop:')
    A(f's_add_u32 {sXN}, {sXB}, {NV*28672}')
    w.vm = [f'X{p}' for p in range(4) for _ in range(2)]
    seg_gemm(w, False)
    A(f'{lab}_epi:')
    A(f's_mul_i32 s15, s8, {VX_SEG}\ns_add_u32 s15, s15, s14\ns_add_u32 s15, s15, {VXF}')
    for tl in range(7):
        o = 88 + 4 * (tl & 1)
        for tt in range(2):
            a = acc2(tl, tt)
            A(f'v_cvt_pk_bf16_f32 v{o+2*tt}, v{a}, v{a+1}\nv_cvt_pk_bf16_f32 v{o+2*tt+1}, v{a+2}, v{a+3}')
        A(f'buffer_store_dwordx4 {vr(o,4)}, v117, {SRD}, s15 offen offset:{tl*256} sc1')
    A(f's_lshl_b32 s15, s8, 7\ns_add_u32 s15, s15, {FVX}')
    signal(w, f'{lab}_sig', 's15', 'v96')
    if cfg.get('tl'):
        A(f's_cmp_ge_u32 s8, {NV}\ns_cbranch_scc1 {lab}_tl1'); tline(A, c2, 2); A(f'{lab}_tl1:')
    A(f's_mov_b32 {sXB}, {sXN}\ns_add_u32 s8, s8, {NV}\ns_cmp_lt_u32 s8, {NSEG}\ns_cbranch_scc1 {lab}_loop')
    tline(A, c2, 3)
    if cfg.get('nopost'): A('s_endpgm')
    A(f's_mov_b32 s8, s12\ns_mul_i32 s14, {sR}, 7168')
    A(f'{lab}_mloop:')
    zero(w, 28, 28)
    A(f's_mul_i32 s15, s8, 7168\ns_add_u32 s15, s15, {MX}\ns_add_u32 s16, s15, 4096')
    def loads():
        for kk in range(7):
            A(f'buffer_load_dwordx4 {vr(4*kk,4)}, {vL16}, {SRD}, {"s15" if kk < 4 else "s16"} offen offset:{(kk&3)*1024} sc1')
    mx_wait(w, f'{lab}_mx', list(range(28)), loads, tmo, 'v96')
    for tl in range(7):
        for kk in range(7): A(smf(28 + 4 * tl, vr(4 * kk, 4), wreg(tl * 7 + kk), 'v118'))
    A(f's_mul_i32 s15, s8, {VM_SEG}\ns_add_u32 s15, s15, s14\ns_add_u32 s15, s15, {VM}')
    for tl in range(7):
        a = 28 + 4 * tl
        A(f'v_add_f32 v{a}, v{a}, v{a+2}\nv_add_f32 v{a+1}, v{a+1}, v{a+3}\nv_cvt_pk_bf16_f32 v{a}, v{a}, v{a+1}')
        A(f'buffer_store_dword v{a}, v116, {SRD}, s15 offen offset:{tl*256} sc1')
    A(f's_lshl_b32 s15, s8, 7\ns_add_u32 s15, s15, {FVM}')
    signal(w, f'{lab}_sig2', 's15', 'v96')
    A(f's_add_u32 s8, s8, {NV}\ns_cmp_lt_u32 s8, {NSEG}\ns_cbranch_scc1 {lab}_mloop')
    tline(A, c2, 4)
    A('s_endpgm')

def gen_Q(A, cfg, lab, tmo):
    w = Wv(A, {})
    em = Emitter(A, [f'v{i}' for i in range(2, 30)])
    l = V('v0'); g = l >> 4; n = l & 15; ww = Sg(sW); h = Sg(sR)
    sQ = ['s22', 's23', 's24', 's25']
    em.emit(l & 63, 'v0')
    em.emit(l * 16, vL16)
    em.emit(l * 16 + (ww & 1) * 8, 'v118')
    i = n & 7
    em.emit(((g >> 1) * 16 + (i >> 1) * 4 + (i & 1)) * 16 + (g & 1) * 8, 'v117')
    em.emit(((g >> 1) * 16 + (i >> 1) * 4 + (i & 1)) * 16 + (g & 1) * 8 + (ww & 1) * 4, 'v116')
    em.emit(ww * 5120 + l * 16, 'v115')
    em.emit(ww * 1024 + l * 16, 'v114')
    em.emit(ww * 20480 + h * 1024 + l * 16, 'v113')
    em.emit(sel_lt(g, 2, ww * 20480 + ((h >> 2) + 16) * 1024 + ((h & 3) * 16 + n) * 16 + g * 8, OOB), 'v112')
    em.emit(n - g * 4, 'v111')
    A(f's_lshr_b32 s11, {sW}, 1\ns_mul_i32 s14, s11, 7\ns_and_b32 s15, {sW}, 1\ns_lshl_b32 s16, s15, 2\ns_add_u32 s16, s16, s14')
    for u in range(3): A(f's_add_u32 s17, s16, {u}\ns_lshl_b32 {sQ[u]}, s17, 10')
    A(f's_add_u32 s17, s14, 3\ns_lshl_b32 {sQ[3]}, s17, 10')
    A(f's_mul_i32 s13, {sR}, {28*14336}\ns_add_u32 s13, s13, {AF}\ns_mul_i32 s15, s15, 14336')
    def addr(tl, p):
        pre = f's_mul_i32 s11, {sQ[tl>>1]}, 28\ns_add_u32 s11, s11, s13\n'
        pre += f's_add_u32 s11, s11, {14336*(tl&1) + 1024*p}' if tl < 6 else f's_add_u32 s11, s11, s15\ns_add_u32 s11, s11, {1024*p}'
        return vL16, pre
    A(f's_mul_i32 {sXB}, s12, 28672' + (f'\ns_add_u32 {sXB}, {sXB}, {XF}' if XF else ''))
    if cfg.get('nopost'): A('s_endpgm')
    wait_lanes(A, f'{lab}_wa', sel_lt(l, 1, FA + h * 128, FX), sel_lt(l, 1, 14, 32), tmo)
    load_w(w, addr)
    w.vm = []
    for p in range(4): x_load(w, p, sXB)
    A('s_mov_b32 s8, s12')
    A(f'{lab}_loop:')
    A(f's_add_u32 {sXN}, {sXB}, {NQ*28672}')
    w.vm = [f'X{p}' for p in range(4) for _ in range(2)]
    seg_gemm(w, True)
    QQ = lambda u, tt: 16 * u + 4 * tt
    for u in range(4):
        for tt in range(2):
            for b in range(2 if u < 3 else 1):
                a = acc2(2 * u + b, tt)
                A(f'v_cvt_pk_bf16_f32 v{88+4*tt+2*b}, v{a}, v{a+1}\nv_cvt_pk_bf16_f32 v{89+4*tt+2*b}, v{a+2}, v{a+3}')
        for tt in range(2):
            for k in range(0, 4 if u < 3 else 2, 2): A(f'v_mov_b64 {vr(QQ(u,tt)+k,2)}, {vr(88+4*tt+k,2)}')
    for u in range(4):
        for kt in range(2):
            A(f's_add_u32 s11, {sXB}, {sQ[u]}' + ('\ns_add_u32 s11, s11, 14336' if kt else ''))
            if u < 3: w.vmem(f'buffer_load_dwordx4 {vr(16*u+8+4*kt,4)}, {vL16}, {SRD}, s11 offen', 'Z')
            else: w.vmem(f'buffer_load_dwordx2 {vr(88+2*kt,2)}, v118, {SRD}, s11 offen', 'Z')
    w.wait(vm='Z')
    SX = {(1, 0): 92, (1, 1): 96, (2, 1): 100}
    for (kt, tt), a in SX.items():
        for u in range(3): A(mfma(vr(a, 4), vr(16 * u + 8 + 4 * (kt - 1), 4), vr(QQ(u, tt), 4), 0 if u == 0 else None))
        A(f'v_mfma_f32_16x16x16_bf16 {vr(a,4)}, {vr(88+2*(kt-1),2)}, {vr(QQ(3,tt),2)}, {vr(a,4)}')
    for (kt, tt), a in SX.items():
        A(f'ds_write_b128 v115, {vr(a,4)} offset:{(2*kt + tt - (1 if kt == 2 else 0))*1024}')
    A('s_waitcnt lgkmcnt(0)\ns_barrier')
    E1, E2, E0 = 92, 96, 100
    A(f's_cmp_ge_u32 {sW}, 2\ns_cbranch_scc1 {lab}_nored')
    def red(dst, off, t0):
        for k in range(4): A(f'ds_read_b128 {vr(dst if k == 0 else t0+16*(k-1),4)}, v114 offset:{k*5120 + off}')
        A('s_waitcnt lgkmcnt(0)')
        for k in range(3):
            for r in (0, 2): A(f'v_pk_add_f32 {vr(dst+r,2)}, {vr(dst+r,2)}, {vr(t0+16*k+r,2)}')
    red(E1, 2048, 8)
    red(E2, 3072, 8)
    A(f'v_mov_b32 v104, 0xff800000\ns_cmp_eq_u32 {sW}, 0\ns_cbranch_scc0 {lab}_t1')
    for r in range(4):
        A(f'v_cmp_le_i32 vcc, {r}, v111\nv_cndmask_b32 v{E1+r}, v104, v{E1+r}, vcc\nv_mov_b32 v{E2+r}, v104')
    A(f's_branch {lab}_nored\n{lab}_t1:')
    for r in range(4): A(f'v_cmp_le_i32 vcc, {r}, v111\nv_cndmask_b32 v{E2+r}, v104, v{E2+r}, vcc')
    A(f'{lab}_nored:')
    A(f's_mul_i32 s15, s8, 7168\ns_add_u32 s15, s15, {MX}')
    KQ = lambda u: 16 * u + 8
    def loads():
        for u in range(4):
            A(f's_lshr_b32 s11, {sQ[u]}, 1\ns_add_u32 s11, s11, s15')
            if u < 3:
                A(f'buffer_load_dwordx2 {vr(KQ(u),2)}, v117, {SRD}, s11 offen sc1\nbuffer_load_dwordx2 {vr(KQ(u)+2,2)}, v117, {SRD}, s11 offen offset:32 sc1')
            else:
                A(f'buffer_load_dword v88, v116, {SRD}, s11 offen sc1\nbuffer_load_dword v89, v116, {SRD}, s11 offen offset:32 sc1')
    mx_wait(w, f'{lab}_mx', [KQ(u) + k for u in range(3) for k in range(4)] + [88, 89], loads, tmo, 'v105')
    for u in range(3): A(f'v_swap_b32 v{KQ(u)+1}, v{KQ(u)+2}')
    for tt in range(2):
        a = 12 + 16 * tt
        for u in range(3): A(mfma(vr(a, 4), vr(KQ(u), 4), vr(QQ(u, tt), 4), 0 if u == 0 else None))
        A(f'v_mfma_f32_16x16x16_bf16 {vr(a,4)}, v[88:89], {vr(QQ(3,tt),2)}, {vr(a,4)}')
    for tt in range(2): A(f'ds_write_b128 v115, {vr(12+16*tt,4)} offset:{tt*1024}')
    A('s_waitcnt lgkmcnt(0)\ns_barrier')
    A(f's_cmp_ge_u32 {sW}, 2\ns_cbranch_scc1 {lab}_nosm')
    red(E0, 0, 8)
    A('s_mov_b32 vcc_lo, -1\ns_mov_b32 vcc_hi, 0')
    for r in range(4): A(f'v_cndmask_b32 v{E0+r}, v104, v{E0+r}, vcc')
    A(f'v_max3_f32 v8, v{E1}, v{E1+1}, v{E1+2}')
    for r in range(E1 + 3, E1 + 11, 2): A(f'v_max3_f32 v8, v8, v{r}, v{r+1}')
    A(f'v_max_f32 v8, v8, v{E1+11}')
    def allred(op):
        A(f'v_mov_b32 v9, v8\nv_permlane16_swap_b32 v8, v9\n{op} v8, v8, v9')
        A(f'v_mov_b32 v9, v8\nv_permlane32_swap_b32 v8, v9\n{op} v8, v8, v9')
    allred('v_max_f32')
    for r in range(E1, E1 + 12, 2): A(f'v_pk_add_f32 {vr(r,2)}, {vr(r,2)}, v[8:9] op_sel_hi:[1,0] neg_lo:[0,1] neg_hi:[0,1]')
    for r in range(E1, E1 + 12): A(f'v_exp_f32 v{r}, v{r}')
    A(f'v_pk_add_f32 v[8:9], {vr(E1,2)}, {vr(E1+2,2)}')
    for r in range(E1 + 4, E1 + 12, 2): A(f'v_pk_add_f32 v[8:9], v[8:9], {vr(r,2)}')
    A('v_add_f32 v8, v8, v9')
    allred('v_add_f32')
    A('v_rcp_f32 v8, v8')
    for r in range(E1, E1 + 12, 2): A(f'v_pk_mul_f32 {vr(r,2)}, {vr(r,2)}, v[8:9] op_sel_hi:[1,0]')
    for k in range(6): A(f'v_cvt_pk_bf16_f32 v{12+k}, v{E1+2*k}, v{E1+2*k+1}')
    A(f's_mul_i32 s15, s8, {PX_SEG}\ns_add_u32 s15, s15, {PX}')
    A(f'buffer_store_dwordx4 v[12:15], v113, {SRD}, s15 offen sc1\nbuffer_store_dwordx2 v[16:17], v112, {SRD}, s15 offen sc1')
    A(f'{lab}_nosm:')
    A(f's_lshl_b32 s15, s8, 7\ns_add_u32 s15, s15, {FPX}')
    signal(w, f'{lab}_sig', 's15', 'v105')
    A(f's_mov_b32 {sXB}, {sXN}\ns_add_u32 s8, s8, {NQ}\ns_cmp_lt_u32 s8, {NSEG}\ns_cbranch_scc1 {lab}_loop')
    tline(A, dict(cfg, tlreg=106), 4)
    A('s_endpgm')

def gen_T(A, cfg, lab, tmo):
    w = Wv(A, {})
    em = Emitter(A, [f'v{i}' for i in range(8, 30)])
    l = V('v0'); g = l >> 4
    A('s_load_dwordx2 s[28:29], s[0:1], 64\ns_load_dwordx2 s[30:31], s[0:1], 80')
    em.emit(l & 63, 'v0')
    A(f"""s_and_b32 s12, {sR}, 15
    s_lshl_b32 s12, s12, 2
    s_add_u32 s12, s12, {sW}
    s_waitcnt lgkmcnt(0)
    s_cmp_lt_u32 {sR}, 16
    s_cselect_b32 s20, s28, s30
    s_cselect_b32 s21, s29, s31
    s_mov_b32 s22, {D*F*2}
    s_mov_b32 s23, 0x20000
    s_movk_i32 s13, 896
    s_cselect_b32 s13, 3584, s13
    s_cselect_b32 s14, 28, 7
    s_movk_i32 s15, 9363
    s_cselect_b32 s15, 2341, s15       ; 65536 / blocks
    s_cselect_b32 s16, 14, 56          ; k quads
    s_mov_b32 s17, {W2F}
    s_cselect_b32 s17, {W1F}, s17
    s_mul_i32 s18, {sW}, 28672""")
    em.emit((l >> 3) * Sg('s13') + (l & 7) * 16, 'v1')
    em.emit(Sg('s18') + (g * 8 + ((l >> 2) & 3)) * 128 + (l & 3) * 16, 'v2')
    em.emit(l * 16, 'v3')
    A('s_lshl_b32 s24, s13, 3')
    for k in range(7):
        A(f's_add_u32 s25, s12, {64*k}\ns_mul_i32 s26, s25, s15\ns_lshr_b32 s26, s26, 16\ns_mul_i32 s27, s26, s14\ns_sub_u32 s27, s25, s27')
        A(f's_lshl_b32 s{40+k}, s27, 2\ns_mul_i32 s{40+k}, s{40+k}, s16\ns_add_u32 s{40+k}, s{40+k}, s26\ns_lshl_b32 s{40+k}, s{40+k}, 10\ns_add_u32 s{40+k}, s{40+k}, s17')
        A(f's_cmp_lt_u32 s25, 392\ns_cselect_b32 s{40+k}, s{40+k}, {OOB}')
        A('s_lshl_b32 s26, s26, 5\ns_mul_i32 s26, s26, s13\ns_lshl_b32 s27, s27, 7\ns_add_u32 s26, s26, s27')
        for r in range(4):
            A(f's_add_u32 m0, s18, {k*4096 + r*1024}')
            w.vmem(f'buffer_load_dwordx4 v1, s[20:23], s26 offen lds', f'U{k}')
            if r < 3: A('s_add_u32 s26, s26, s24')
    A('s_lshl_b32 s24, s16, 10')
    for k in range(7):
        w.wait(vm=f'U{k}')
        for t in range(4):
            o = 8 + 16 * (k & 1) + 4 * t; off = k * 4096 + (t >> 1) * 64 + (t & 1) * 8
            A(f'ds_read_b64_tr_b16 {vr(o,2)}, v2 offset:{off}\nds_read_b64_tr_b16 {vr(o+2,2)}, v2 offset:{off+512}')
        A('s_waitcnt lgkmcnt(0)')
        for t in range(4):
            w.vmem(f'buffer_store_dwordx4 {vr(8+16*(k&1)+4*t,4)}, v3, {SRD}, s{40+k} offen sc1')
            if t < 3: A(f's_add_u32 s{40+k}, s{40+k}, s24')
    A(f's_mov_b32 s15, {FW}')
    signal(w, f'{lab}_sig', 's15', 'v4')
    tline(A, dict(cfg, tlreg=5), 4)
    A('s_endpgm')

def gen_F(A, cfg, lab, tmo):
    w = Wv(A, {})
    em = Emitter(A, [f'v{i}' for i in range(8, 30)])
    l = V('v0'); g = l >> 4; n = l & 15; ww = Sg(sW)
    A('s_load_dwordx2 s[28:29], s[0:1], 72\ns_load_dwordx2 s[30:31], s[0:1], 88\ns_load_dwordx2 s[32:33], s[0:1], 0\ns_load_dwordx2 s[34:35], s[0:1], 96')
    wait_lanes(A, f'{lab}_wx', l * 0 + FX, l * 0 + 32, tmo)
    em.emit(l * 16, 'v1')
    em.emit(g * 16, 'v3')
    A('s_waitcnt lgkmcnt(0)')
    srd(A, 36, 28, F * 2); srd(A, 40, 30, D * 2); srd(A, 44, 32, S * D * 2); srd(A, 48, 34, S * D * 2)
    xr = lambda tt, p: f'a[{(tt*14+p)*4}:{(tt*14+p)*4+3}]'
    A(f's_mul_i32 s12, {sR}, 28672' + (f'\ns_add_u32 s12, s12, {XF}' if XF else ''))
    for q in range(28):
        if q % 4 == 0: A(f's_add_u32 s11, s12, {q*1024}')
        A(f'buffer_load_dwordx4 {xr(q//14, q%14)}, v1, {SRD}, s11 offen offset:{(q%4)*1024}')
    A(f's_mov_b32 s15, {FW}')
    wait_flag(w, f'{lab}_fw', 's15', 32, tmo)
    c2 = dict(cfg, tlreg=2)
    tline(A, c2, 1)
    WB = lambda buf, q: 32 + buf * 112 + 4 * q
    A(f's_mul_i32 s13, {sW}, {14*28672}\ns_add_u32 s13, s13, {W1F}\ns_mul_i32 s14, {sW}, {14*64}')
    em.emit(ww * 28672 + l * 16, 'v4')
    def wl(buf, q):
        if q % 4 == 0: A(f's_add_u32 s11, s13, {q*1024}')
        w.vmem(f'buffer_load_dwordx4 {vr(WB(buf,q),4)}, v1, {SRD}, s11 offen offset:{(q%4)*1024} sc1', f'W{buf}_{q}')
    def bl(buf): w.vmem(f'buffer_load_dwordx4 {vr(24+4*buf,4)}, v3, s[36:39], s14 offen', f'B{buf}')
    w.vm = []
    bl(0)
    for q in range(28): wl(0, q)
    A('s_mov_b32 s8, 0')
    A(f'{lab}_l1:')
    def block(buf):
        A('s_add_u32 s13, s13, 28672\ns_add_u32 s14, s14, 64')
        bl(1 - buf)
        for p in range(14):
            for b in range(2):
                q = b * 14 + p
                w.wait(vm=f'W{buf}_{q}')
                for tt in range(2): A(mfma(vr(8 + (b * 2 + tt) * 4, 4), vr(WB(buf, q), 4), xr(tt, p), 0 if p == 0 else None))
            wl(1 - buf, 2 * p); wl(1 - buf, 2 * p + 1)
        bb = 24 + 4 * buf
        for tt in range(2):
            for b in range(2):
                a = 8 + (b * 2 + tt) * 4
                for k in range(2):
                    A(f'v_lshlrev_b32 v6, 16, v{bb+2*b+k}\nv_and_b32 v7, 0xffff0000, v{bb+2*b+k}')
                    A(f'v_pk_add_f32 {vr(a+2*k,2)}, {vr(a+2*k,2)}, v[6:7]')
                    A(f'v_max_f32 v{a+2*k}, 0, v{a+2*k}\nv_max_f32 v{a+2*k+1}, 0, v{a+2*k+1}')
                    A(f'v_pk_mul_f32 {vr(a+2*k,2)}, {vr(a+2*k,2)}, {vr(a+2*k,2)}')
                    A(f'v_cvt_pk_bf16_f32 v{a+k}, v{a+2*k}, v{a+2*k+1}')
            A(f'v_mov_b64 {vr(8+tt*4+2,2)}, {vr(16+tt*4,2)}')
            A(f'ds_write_b128 v4, {vr(8+tt*4,4)} offset:{buf*2048 + tt*1024}')
    w.vm = ['B0'] + [f'W0_{q}' for q in range(28)]
    block(0); block(1)
    A(f'v_add_u32 v4, 4096, v4\ns_add_u32 s8, s8, 1\ns_cmp_lt_u32 s8, {1 if cfg.get("noffn") else 7}\ns_cbranch_scc1 {lab}_l1')
    tline(A, c2, 2)
    A(f's_lshl_b32 s16, {sW}, 2\ns_cmp_eq_u32 {sW}, 3\ns_cselect_b32 s16, 11, s16')
    A(f's_mul_i32 s13, s16, {2*57344}\ns_add_u32 s13, s13, {W2F}')
    for t in range(8):
        A(f's_add_u32 s{52+t}, s13, {t*57344}')
    A(f's_cmp_ge_u32 {sW}, 2\ns_cselect_b32 s58, {OOB}, s58\ns_cselect_b32 s59, {OOB}, s59')
    A('s_waitcnt vmcnt(0) lgkmcnt(0)\ns_barrier')
    W2 = lambda buf, t: 32 + (buf * 8 + t) * 4
    HB = lambda buf, tt: 8 + (buf * 2 + tt) * 4
    G = lambda t, tt: f'a[{(t*2+tt)*4}:{(t*2+tt)*4+3}]'
    for r in range(64): A(f'v_accvgpr_write_b32 a{r}, 0')
    A('v_mov_b32 v4, v1\nv_mov_b32 v5, v1')
    def w2l(buf, off):
        for t in range(8): w.vmem(f'buffer_load_dwordx4 {vr(W2(buf,t),4)}, v5, {SRD}, s{52+t} offen offset:{off} sc1', f'V{buf}')
    def hl(buf, off):
        for tt in range(2): w.ds(f'ds_read_b128 {vr(HB(buf,tt),4)}, v4 offset:{off + tt*1024}', f'H{buf}')
    w.vm = []; w.lg = []
    for k in range(3): w2l(k, k * 1024)
    hl(0, 0)
    A('v_add_u32 v5, 3072, v5\ns_mov_b32 s8, 0')
    A(f'{lab}_l2:')
    for k in range(4):
        w2l((k + 3) & 3, k * 1024)
        hl((k + 1) & 1, (k + 1) * 2048)
        w.wait(vm=f'V{k}', lg=f'H{k&1}')
        for t in range(8):
            for tt in range(2): A(mfma(G(t, tt), vr(W2(k, t), 4), vr(HB(k & 1, tt), 4)))
    A(f'v_add_u32 v5, 4096, v5\nv_add_u32 v4, 8192, v4\ns_add_u32 s8, s8, 1\ns_cmp_lt_u32 s8, {1 if cfg.get("noffn") else 14}\ns_cbranch_scc1 {lab}_l2')
    A('s_waitcnt vmcnt(0) lgkmcnt(0)')
    A('s_lshl_b32 s14, s16, 6')
    for k in range(4): A(f'buffer_load_dwordx4 {vr(32+4*k,4)}, v3, s[40:43], s14 offen offset:{k*64}')
    A(f's_lshl_b32 s14, s16, 10\ns_add_u32 s14, s14, s12\ns_add_u32 s14, s14, {GB - XF}\ns_add_u32 s15, s14, 14336')
    A('s_waitcnt vmcnt(0)')
    for k in range(4):
        if k == 3: A(f's_cmp_ge_u32 {sW}, 2\ns_cbranch_scc1 {lab}_gdone')
        for tt in range(2):
            for b in range(2):
                for r in range(4): A(f'v_accvgpr_read_b32 v{48+4*b+r}, a{((2*k+b)*2+tt)*4+r}')
            for j in range(4):
                A(f'v_lshlrev_b32 v6, 16, v{32+4*k+j}\nv_and_b32 v7, 0xffff0000, v{32+4*k+j}')
                A(f'v_pk_add_f32 {vr(48+2*j,2)}, {vr(48+2*j,2)}, v[6:7]')
            for r in range(8): A(f'v_mul_f32 v{56+r}, {f32(-math.log2(math.e))}, v{48+r}')
            for r in range(8): A(f'v_exp_f32 v{56+r}, v{56+r}')
            for r in range(8): A(f'v_add_f32 v{56+r}, 1.0, v{56+r}')
            for r in range(8): A(f'v_rcp_f32 v{56+r}, v{56+r}')
            for j in range(4):
                A(f'v_pk_mul_f32 {vr(48+2*j,2)}, {vr(48+2*j,2)}, {vr(56+2*j,2)}')
                A(f'v_cvt_pk_bf16_f32 v{64+4*tt+j}, v{48+2*j}, v{49+2*j}')
            A(f'buffer_store_dwordx4 {vr(64+4*tt,4)}, v1, {SRD}, {"s15" if tt else "s14"} offen offset:{k*1024} sc1')
    A(f'{lab}_gdone:')
    A(f's_lshl_b32 s15, {sR}, 7\ns_add_u32 s15, s15, {FG}')
    signal(w, f'{lab}_gsig', 's15')
    tline(A, c2, 3)
    if cfg.get('nopost'): A('s_endpgm')
    A(f's_and_b32 s11, {sR}, 3\ns_lshl_b32 s16, s11, 2\ns_cmp_eq_u32 s11, 3\ns_cselect_b32 s16, 11, s16\ns_add_u32 s16, s16, {sW}')
    A(f's_lshr_b32 s11, s11, 1\ns_add_u32 s11, s11, {sW}\ns_cmp_ge_u32 s11, 4\ns_cselect_b32 s17, {OOB}, 0')
    col = Sg('s16') * 32 + (n >> 2) * 8 + (n & 3)
    em.emit(g * 7168 + col * 16 + Sg('s17'), 'v4')
    em.emit(n * 896 + Sg('s16') * 64 + g * 16 + Sg('s17'), 'v5')
    em.emit(Sg('s16') * 1024 + l * 16 + Sg('s17'), 'v6')
    em.emit((l & 1) * (FPX - FVM), 'v7')
    A(f's_lshr_b32 s8, {sR}, 2\ns_mul_i32 s18, {sW}, 10240')
    WX = lambda q, b: 32 + (q * 2 + b) * 4
    A(f'{lab}_l3:')
    A(f's_lshl_b32 s13, s8, 7\ns_add_u32 s15, s13, {FVX}')
    wait_flag(w, f'{lab}_fvx', 's15', 16, tmo)
    A(f's_mul_i32 s14, s8, {VX_SEG}\ns_add_u32 s14, s14, {VXF}')
    for q in range(16):
        for b in range(2): A(f'buffer_load_dwordx4 {vr(WX(q,b),4)}, v4, {SRD}, s14 offen offset:{b*64} sc1')
        if q < 15: A('s_add_u32 s14, s14, 28672')
    A('s_mul_i32 s14, s8, 28672\ns_add_u32 s20, s14, 14336')
    A('buffer_load_dwordx4 v[192:195], v5, s[44:47], s14 offen\nbuffer_load_dwordx4 v[196:199], v5, s[44:47], s20 offen')
    A(f's_add_u32 s15, s13, {FG}')
    wait_flag(w, f'{lab}_fg', 's15', 1, tmo)
    A(f's_add_u32 s21, s14, {GB}\ns_add_u32 s22, s20, {GB}')
    A(f'buffer_load_dwordx4 v[200:203], v6, {SRD}, s21 offen sc1\nbuffer_load_dwordx4 v[204:207], v6, {SRD}, s22 offen sc1')
    A(f's_add_u32 s15, s13, {FVM}')
    A(f's_cmp_lg_u32 {sW}, 0\ns_cbranch_scc1 {lab}_f2go\ns_mov_b32 {sSPIN}, {WSPIN}')
    A(f'{lab}_f2:\nbuffer_load_dword v2, v7, {SRD}, s15 offen sc1')
    A(f's_sub_u32 {sSPIN}, {sSPIN}, 1\ns_cbranch_scc1 {tmo}\n{BACK[0]}s_waitcnt vmcnt(0)\nv_cmp_gt_u32 vcc, 16, v2\ns_cbranch_vccnz {lab}_f2')
    A(f'{lab}_f2go:\ns_barrier')
    tline(A, c2, 5)
    A(f's_mul_i32 s21, s8, {PX_SEG}\ns_add_u32 s21, s21, s18\ns_add_u32 s21, s21, {PX}')
    for k in range(10):
        if k % 4 == 0: A(f's_add_u32 m0, s18, {k*1024}\ns_add_u32 s22, s21, {k*1024}')
        A(f'buffer_load_dwordx4 v1, {SRD}, s22 offen offset:{(k%4)*1024} sc1 lds')
    A(f's_mul_i32 s21, s8, {VM_SEG}\ns_add_u32 s21, s21, {VM}')
    for u in range(4):
        for b in range(2): A(f'buffer_load_dwordx4 {vr(WX(16+u,b),4)}, v4, {SRD}, s21 offen offset:{b*64} sc1')
        if u < 3: A('s_add_u32 s21, s21, 28672')
    A('s_waitcnt vmcnt(8)\ns_barrier')
    w.lg = []
    PB = lambda q, tt: 208 + ((q & 3) * 2 + tt) * 4
    def pl(q):
        for tt in range(2): w.ds(f'ds_read_b128 {vr(PB(q,tt),4)}, v1 offset:{tt*20480 + q*1024}', f'P{q}')
    for q in range(3): pl(q)
    for q in range(20):
        if q + 3 < 20: pl(q + 3)
        w.wait(lg=f'P{q}')
        if q == 16: A('s_waitcnt vmcnt(0)')
        for b in range(2):
            for tt in range(2): A(mfma(vr(8 + (tt * 2 + b) * 4, 4), vr(WX(q, b), 4), vr(PB(q, tt), 4), 0 if q == 0 else None))
    for tt in range(2):
        a = 8 + tt * 8
        for j in range(4):
            r = a + 2 * j
            A(f'v_cvt_pk_bf16_f32 v{r}, v{r}, v{r+1}\nv_and_b32 v{r+1}, 0xffff0000, v{r}\nv_lshlrev_b32 v{r}, 16, v{r}')
            A(f'v_lshlrev_b32 v24, 16, v{200+4*tt+j}\nv_and_b32 v25, 0xffff0000, v{200+4*tt+j}')
            A(f'v_pk_mul_f32 {vr(r,2)}, {vr(r,2)}, v[24:25]')
            A(f'v_cvt_pk_bf16_f32 v{r}, v{r}, v{r+1}\nv_and_b32 v{r+1}, 0xffff0000, v{r}\nv_lshlrev_b32 v{r}, 16, v{r}')
            A(f'v_lshlrev_b32 v24, 16, v{192+4*tt+j}\nv_and_b32 v25, 0xffff0000, v{192+4*tt+j}')
            A(f'v_pk_add_f32 {vr(r,2)}, {vr(r,2)}, v[24:25]')
            A(f'v_cvt_pk_bf16_f32 v{28+j}, v{r}, v{r+1}')
        A(f'buffer_store_dwordx4 v[28:31], v5, s[48:51], {"s20" if tt else "s14"} offen {cfg.get("ost", "")}')
    A(f's_add_u32 s8, s8, 16\ns_cmp_lt_u32 s8, {NSEG}\ns_cbranch_scc1 {lab}_l3')
    if cfg.get('tl') or cfg.get('ds'): A('s_waitcnt vmcnt(0)')
    tline(A, c2, 4)
    dstamp(A, cfg, 7, 223, 2)
    A('s_endpgm')
```

```python
from asmdsl import Asm
from expr import X, V, Sg, Emitter, ev, sel_lt, wrap
from layout import *
import numpy as np

SRD = 's[4:7]'
def vr(a, n=1): return f'v{a}' if n == 1 else f'v[{a}:{a+n-1}]'
def wreg(o):
    return f'a[{8*o}:{8*o+7}]' if o < 32 else f'v[{120+8*(o-32)}:{127+8*(o-32)}]'
def wquad(o, b):
    return f'a[{8*o+4*b}:{8*o+4*b+3}]' if o < 32 else f'v[{120+8*(o-32)+4*b}:{123+8*(o-32)+4*b}]'

class Wv:
    def __init__(self, A, cfg):
        self.A = A; self.vm = []; self.lg = []; self.cfg = cfg; self.nst = 0
    def __call__(self, t): self.A(t)
    def vmem(self, t, tag=None): self.A(t); self.vm.append(tag)
    def ds(self, t, tag=None): self.A(t); self.lg.append(tag)
    def wait(self, vm=None, lg=None):
        parts = []
        if vm is not None and vm in self.vm:
            i = len(self.vm) - 1 - self.vm[::-1].index(vm)
            parts.append(f'vmcnt({len(self.vm)-1-i})'); self.vm = self.vm[i+1:]
        if lg is not None and lg in self.lg:
            i = len(self.lg) - 1 - self.lg[::-1].index(lg)
            n = min(len(self.lg) - 1 - i, 15)
            parts.append(f'lgkmcnt({n})'); self.lg = self.lg[i+1:]
        if parts: self.A('s_waitcnt ' + ' '.join(parts))
    def wait_all_lg(self): self.A('s_waitcnt lgkmcnt(0)'); self.lg = []
    def wait_all_vm(self): self.A('s_waitcnt vmcnt(0)'); self.vm = []
    def stamp(self, name=None):
        if self.cfg.get('stamps'):
            assert self.nst < 12
            self.A(f's_memtime s[{60+2*self.nst}:{61+2*self.nst}]'); self.nst += 1
    def dump_stamps(self, lab):
        if not self.cfg.get('stamps'): return
        A = self.A
        A(f's_waitcnt lgkmcnt(0)\ns_cmp_lg_u32 s8, 6\ns_cbranch_scc1 {lab}_nocal')
        A(f's_memrealtime s[96:97]\ns_waitcnt lgkmcnt(0)\n{lab}_cal:\ns_memrealtime s[98:99]\ns_memtime s[100:101]\ns_waitcnt lgkmcnt(0)\ns_cmp_eq_u32 s96, s98\ns_cbranch_scc1 {lab}_cal')
        for k in range(12): A(f's_mov_b32 s{84+k}, 0')
        A(f'{lab}_nocal:\ns_cmp_lt_u32 s8, 8\ns_cbranch_scc1 {lab}_nodump\ns_cmp_gt_u32 s8, 57\ns_cbranch_scc1 {lab}_nodump')
        for k in range(self.nst): A(f's_sub_u32 s11, s{60+2*k}, s100\ns_add_u32 s{84+k}, s{84+k}, s11')
        A(f's_cmp_lg_u32 s8, 57\ns_cbranch_scc1 {lab}_nodump')
        A('s_lshl_b32 s11, s3, 2\ns_add_u32 s11, s11, s9\ns_lshl_b32 s11, s11, 6')
        A(f's_add_u32 s11, s11, {DBG}')
        A(f'v_mov_b32 v0, s98\nv_mov_b32 v2, 0x4000\nbuffer_store_dword v0, v2, {SRD}, s11 offen')
        for k in range(self.nst):
            A(f'v_mov_b32 v0, s{84+k}\nv_mov_b32 v1, {4*k}\nbuffer_store_dword v0, v1, {SRD}, s11 offen')
        A(f's_waitcnt vmcnt(0)\n{lab}_nodump:')

def tline(A, cfg, k, base=0, idx='s3'):
    if not cfg.get('tl'): return
    lab = A.newlabel(f'TL{base}')
    A(f's_cmp_lg_u32 s9, 0\ns_cbranch_scc1 {lab}')
    A(f's_memrealtime s[96:97]\ns_lshl_b32 s98, {idx}, 6\ns_add_u32 s98, s98, {DBG + 0x8000 + base + 4*k}\ns_waitcnt lgkmcnt(0)')
    A(f'v_accvgpr_write_b32 a255, s96' if False else f'v_mov_b32 v{cfg.get("tlreg", 95)}, s96')
    A(f'buffer_store_dword v{cfg.get("tlreg", 95)}, off, {SRD}, s98')
    if cfg.get('tlclk'):
        A(f's_memtime s[96:97]\ns_waitcnt lgkmcnt(0)\nv_mov_b32 v{cfg.get("tlreg", 95)}, s96\nbuffer_store_dword v{cfg.get("tlreg", 95)}, off, {SRD}, s98 offset:32')
    A(f'{lab}:')

def dstamp(A, cfg, k, slot, reg):
    if not cfg.get('ds'): return
    lab = A.newlabel('DS')
    A(f's_cmp_lg_u32 s9, 0\ns_cbranch_scc1 {lab}\ns_cmp_lg_u32 s3, {slot}\ns_cbranch_scc1 {lab}')
    A(f's_load_dwordx2 s[96:97], s[0:1], 104\ns_memrealtime s[94:95]\ns_waitcnt lgkmcnt(0)\ns_mov_b32 s98, 256\ns_mov_b32 s99, 0x20000')
    A(f's_and_b32 s94, s94, 0xfffff\nv_mov_b32 v{reg}, s94\nbuffer_store_dword v{reg}, off, s[96:99], 0 offset:{4*k}\n{lab}:')

def smf(acc, a, b, idx): return f'v_smfmac_f32_16x16x64_bf16 {vr(acc,4)}, {a}, {b}, {idx}'

KM = 3
MREG = [16, 20, 24, 0, 4, 8, 12]
ACC = [28 + 4 * t for t in range(7)]
vIDX, vL16, vHUp, vHUs = 'v119', 'v118', 'v117', 'v116'
vKA = ['v115', 'v114', 'v113', 'v112', 'v111', 'v110', 'v109']
sSTEP, sW, sR = 's8', 's9', 's10'
sKK = [f's{12+t}' for t in range(7)]
sSPIN, sRETRY, sS1 = 's19', 's20', 's31'
sMO = ['s36', 's37', 's38']
SPIN_MAX = 0x80000
L_K = 131072

def common_consts(em, A, lab, rot, swap=False):
    l = V('v0')
    em.emit(l & 63, 'v0')
    em.emit(sel_lt(l & 2, 1, 0x44444444, 0xEEEEEEEE), vIDX)
    em.emit(l * 16, vL16)
    if swap: A(f's_xor_b32 s33, {sW}, 2\ns_lshl_b32 s33, s33, 1')
    else: A(f's_lshl_b32 s33, {sW}, 1\ns_add_u32 s33, s33, {rot}')
    for _ in range(3): A('s_cmp_ge_u32 s33, 7\ns_cselect_b32 s35, 7, 0\ns_sub_u32 s33, s33, s35')
    for t in range(7):
        A(f's_add_u32 s34, s33, {t}\ns_cmp_ge_u32 s34, 7\ns_cselect_b32 s35, 7, 0\ns_sub_u32 s34, s34, s35\ns_lshl_b32 {sKK[t]}, s34, 10')
    em.emit(L_K + l * 16, 'v1')
    for t in range(7): A(f'v_add_u32 {vKA[t]}, {sKK[t]}, v1')
    A(f's_cmp_lg_u32 {sW}, {1 if swap else 3}\ns_cbranch_scc1 {lab}_w3skip\nv_add_u32 {vKA[1]}, 7168, v1\n{lab}_w3skip:')

def step_consts(A, solo=False):
    A(f's_and_b32 s11, {sSTEP}, {0 if solo else 3}\ns_lshl_b32 s33, s11, 13\ns_add_u32 s33, s33, {MS}')
    for t in range(3): A(f's_add_u32 {sMO[t]}, s33, {sKK[t]}')
    A(f's_add_u32 {sS1}, {sSTEP}, 1')

def align(A, cfg, key):
    a = cfg.get(key)
    if a:
        A(f'.p2align {a[0]}')
        for _ in range(a[1]): A('s_nop 0')

def poll(w, lab, vp, sval, tmo, nl):
    w(f'v_mov_b32 {vp}, 0')
    if w.cfg.get('pollmask', 1): w(f's_mov_b32 exec_lo, {hex((1 << nl) - 1) if nl < 32 else -1}\ns_mov_b32 exec_hi, 0')
    align(w.A, w.cfg, 'apoll')
    w(f'{lab}:')
    if w.cfg.get('pollnop'): w(f's_nop {w.cfg["pollnop"]-1}')
    w(f'buffer_load_dword {vp}, {vHUp}, {SRD}, 0 offen sc1')
    w(f's_waitcnt vmcnt({w.cfg.get("polldepth", 40)})')
    w(f'v_cmp_gt_u32 vcc, {sval}, {vp}')
    w(f's_sub_u32 {sSPIN}, {sSPIN}, 1\ns_cbranch_scc1 {tmo}')
    w(f's_cbranch_vccnz {lab}')
    if w.cfg.get('pollmask', 1): w('s_mov_b64 exec, -1')
    w.vm = []

def zero(w, a, n):
    for i in range(a, a + n, 2): w(f'v_mov_b64 {vr(i,2)}, 0')

def sentinel_check(w, regs, tmp):
    w(f'v_max3_u32 {tmp}, v{regs[0]}, v{regs[1]}, v{regs[2]}')
    r = regs[3:]
    while len(r) >= 2:
        w(f'v_max3_u32 {tmp}, {tmp}, v{r[0]}, v{r[1]}'); r = r[2:]
    if r: w(f'v_max_u32 {tmp}, {tmp}, v{r[0]}')
    w(f'v_cmp_eq_u32 vcc, -1, {tmp}')

def weight_stream(w, fill, comb_write, lab, tmp, tmo=None, mpoll=False, early=None):
    cfg = w.cfg; ND = cfg.get('nd', 2)
    align(w.A, cfg, 'aB')
    w(f'{lab}_mload:')
    w.vm = []; w.lg = []
    if mpoll:
        assert ND == 2
        for t in range(ND):
            w(f'buffer_load_dwordx4 {vr(MREG[t],4)}, {vL16}, {SRD}, {sMO[t]} offen sc1')
        if cfg.get('mnop'): w(f's_nop {cfg["mnop"]-1}')
        w(f's_waitcnt vmcnt({cfg.get("bdepth", 0)})')
        sentinel_check(w, list(range(MREG[0], MREG[0] + 8)), f'v{tmp}')
        w(f's_sub_u32 {sSPIN}, {sSPIN}, 1\ns_cbranch_scc1 {tmo}')
        w(f's_cbranch_vccnz {lab}_mload')
        w.vm = ['MP']
        if early: early()
    else:
        for t in range(ND):
            w(f's_setprio {ND-1-t}')
            w.vmem(f'buffer_load_dwordx4 {vr(MREG[t],4)}, {vL16}, {SRD}, {sMO[t]} offen sc1', f'M{t}')
        if early: early()
    order = [(tl, t) for t in range(KM) for tl in range(7)] + [(tl, t) for tl in range(7) for t in range(KM, 7)]
    pre = {}; mem = {}; val = {}
    ad = lambda d, n, f: d.setdefault(n, []).append(f)
    w1 = 1 if mpoll else cfg.get('w1', 3)
    for t, s0 in ((0, 0), (1, w1)):
        m = MREG[t]
        ad(pre, s0, lambda t=t: w.wait(vm=f'M{t}'))
        ad(mem, s0, lambda t=t, m=m: w.ds(f'ds_write_b128 {vKA[t]}, {vr(m,4)}'))
    if mpoll:
        bs = w1 + cfg.get('mbar', 4)
        def sync():
            w.wait_all_lg(); w('s_barrier')
        ad(pre, 20, lambda: w.wait(vm='MP'))
    else:
        m0, m1, m2 = MREG[0], MREG[1], MREG[2]
        ad(val, 1, lambda: w(f'v_max3_u32 v{tmp}, v{m0}, v{m0+1}, v{m0+2}'))
        c = w1 + 1
        ad(val, c, lambda: w(f'v_max3_u32 v{tmp}, v{tmp}, v{m0+3}, v{m1}'))
        ad(val, c + 1, lambda: w(f'v_max3_u32 v{tmp}, v{tmp}, v{m1+1}, v{m1+2}'))
        if ND == 2:
            ad(val, c + 2, lambda: w(f'v_max_u32 v{tmp}, v{tmp}, v{m1+3}'))
            c += 3
        else:
            ad(pre, c + 2, lambda: w.wait(vm='M2'))
            ad(val, c + 2, lambda: w(f'v_max3_u32 v{tmp}, v{tmp}, v{m1+3}, v{m2}'))
            ad(val, c + 3, lambda: w(f'v_max3_u32 v{tmp}, v{tmp}, v{m2+1}, v{m2+2}'))
            ad(val, c + 4, lambda: w(f'v_max_u32 v{tmp}, v{tmp}, v{m2+3}'))
            c += 5
        ad(val, c, lambda: w(f'v_cmp_eq_u32 vcc, -1, v{tmp}'))
        bs = c + cfg.get('bdelay', 2)
        def sync():
            w(f's_cbranch_vccnz {lab}_mretry')
            w.wait_all_lg(); w('s_barrier')
    ad(mem, bs, sync)
    n = 0
    for t in range(ND, 7):
        m = MREG[t]
        ad(mem, bs + n, lambda t=t, m=m: w.ds(f'ds_read_b128 {vr(m,4)}, {vKA[t]}', f'M{t}'))
        n += 1
    per = 7 - KM; base = 7 * KM
    for tl in range(6):
        s0 = base + per * (tl + 1) + 1
        ad(val, s0, lambda tl=tl: w(f'v_add_f32 v{tmp}, v{ACC[tl]}, v{ACC[tl]+2}'))
        ad(val, s0 + 1, lambda tl=tl: w(f'v_add_f32 v{tmp+1}, v{ACC[tl]+1}, v{ACC[tl]+3}'))
        ad(val, s0 + 2, lambda: w(f'v_cvt_pk_bf16_f32 v{tmp+2}, v{tmp}, v{tmp+1}'))
        ad(mem, s0 + 3, lambda tl=tl: comb_write(tl, f'v{tmp+2}'))
    fl, fv = fill(bs + n)
    for k, fs in fv.items():
        for f in fs: ad(val, k, f)
    if cfg.get('stamps'):
        for k in cfg.get('bfine', [0]): ad(fl, k, lambda: w.stamp())
    for n, (tl, t) in enumerate(order):
        for f in pre.get(n, []): f()
        w.wait(vm=f'M{t}', lg=f'M{t}')
        w(smf(ACC[tl], vr(MREG[t], 4), wreg(tl * 7 + t), vIDX))
        for f in mem.get(n, []): f()
        for f in fl.get(n, []): f()
        for f in val.get(n, []): f()
    assert all(k < 49 for k in fl) and all(k < 49 for k in val)
    return [f for k in sorted(mem) if k >= 49 for f in mem[k]]

MREGA = [12, 16, 20, 24, 0, 4, 8]
def a_consts(em, A):
    l = V('v0')
    em.emit(l & 63, 'v0')
    em.emit(sel_lt(l & 2, 1, 0x44444444, 0xEEEEEEEE), vIDX)
    em.emit(l * 16, vL16)
    for t in range(4): A(f's_add_u32 s34, {sW}, {sR}\ns_add_u32 s34, s34, {t}\ns_and_b32 s34, s34, 3\ns_lshl_b32 {sKK[t]}, s34, 10')
    for t in range(4, 7): A(f's_movk_i32 {sKK[t]}, {t*1024}')
    em.emit(L_K + l * 16, vKA[4])
    for t in range(4): A(f'v_add_u32 {vKA[t]}, {sKK[t]}, {vKA[4]}')
    A(f's_lshl_b32 s29, {sW}, 10\ns_add_u32 s29, s29, 4096')

def a_step_consts(A, solo=False):
    A(f's_and_b32 s11, {sSTEP}, {0 if solo else 3}\ns_lshl_b32 s33, s11, 13\ns_add_u32 s33, s33, {MS}')
    A(f's_add_u32 s36, s33, {sKK[0]}\ns_add_u32 s37, s33, {sKK[1]}\ns_add_u32 s38, s33, s29\ns_add_u32 s39, s29, {L_K}')
    A(f's_add_u32 {sS1}, {sSTEP}, 1')

def a_stream(w, fill, comb_write, lab, tmp, tmo):
    cfg = w.cfg; MR = MREGA; KMA = 4; NE = cfg.get('ne', 2)
    align(w.A, cfg, 'aA')
    w(f'{lab}_mload:')
    w.vm = []; w.lg = []
    for t in range(NE): w(f'buffer_load_dwordx4 {vr(MR[t],4)}, {vL16}, {SRD}, s{36+t} offen sc1')
    if cfg.get('mnop'): w(f's_nop {cfg["mnop"]-1}')
    w(f's_waitcnt vmcnt({cfg.get("mdepth", 2)})')
    if cfg.get('poll1'):
        assert NE == 1 and cfg.get('nanchk', 1)
        w(f'v_cmp_eq_u32 vcc, -1, v{MR[0]+3}')
    else: sentinel_check(w, list(range(MR[0], MR[0] + 4 * NE)), f'v{tmp}')
    w(f's_sub_u32 {sSPIN}, {sSPIN}, 1\ns_cbranch_scc1 {tmo}')
    w(f's_cbranch_vccnz {lab}_mload')
    w(f'{lab}_again:')
    order = [(tl, t) for t in range(KMA) for tl in range(7)] + [(tl, t) for tl in range(7) for t in range(KMA, 7)]
    pre = {}; mem = {}; val = {}
    ad = lambda d, n, f: d.setdefault(n, []).append(f)
    ew = cfg.get('ew', 128)
    if ew == 128:
        if NE == 1: w.ds(f'ds_write_b128 {vKA[0]}, {vr(MR[0],4)}')
        else: ad(mem, 0, lambda: w.ds(f'ds_write_b128 {vKA[0]}, {vr(MR[0],4)}'))
    elif ew == 64:
        for k in range(2): ad(mem, k, lambda k=k: w.ds(f'ds_write_b64 {vKA[0]}, {vr(MR[0]+2*k,2)} offset:{8*k}'))
    else:
        for k in range(4): ad(mem, k, lambda k=k: w.ds(f'ds_write_b32 {vKA[0]}, v{MR[0]+k} offset:{4*k}'))
    bs = cfg.get('ebar', 2 if NE == 1 else 8)
    ad(mem, bs, lambda: (w.wait_all_lg(), w('s_barrier')))
    for t in range(NE, 4):
        ad(mem, bs + (t - NE), lambda t=t: w.ds(f'ds_read_b128 {vr(MR[t],4)}, {vKA[t]}', f'M{t}'))
    l0 = cfg.get('lslot', 3); lb = cfg.get('lbar', 17)
    ad(mem, l0 - 1, lambda: w('s_mov_b32 m0, s39'))
    ad(mem, l0, lambda: w.vmem(f'buffer_load_dwordx4 {vL16}, {SRD}, s38 offen sc1 lds', 'L'))
    ad(mem, lb, lambda: (w.wait(vm='L'), w('s_barrier')))
    for t in (4, 5, 6): ad(mem, lb + (t - 4) // 2, lambda t=t: w.ds(f'ds_read_b128 {vr(MR[t],4)}, {vKA[4]} offset:{t*1024}', f'M{t}'))
    nanchk = cfg.get('nanchk', 1)
    if nanchk:
        cs = lb + 1
        ad(val, 34, lambda: w(f'v_cmp_u_f32 vcc, v{tmp}, v{tmp+1}'))
        ad(mem, 36, lambda: w(f's_cbranch_vccnz {lab}_lretry\n{lab}_lok:'))
    else:
        lc = lb + 3
        w.lretry_state = None
        ad(pre, lc + 1, lambda: w.wait(lg='M5'))
        ad(val, lc + 1, lambda: w(f'v_max3_u32 v{tmp}, v0, v1, v2'))
        ad(val, lc + 2, lambda: w(f'v_max3_u32 v{tmp}, v{tmp}, v3, v4'))
        ad(pre, lc + 3, lambda: w.wait(lg='M6'))
        ad(val, lc + 3, lambda: w(f'v_max3_u32 v{tmp}, v{tmp}, v5, v6'))
        ad(val, lc + 4, lambda: w(f'v_max3_u32 v{tmp}, v{tmp}, v7, v8'))
        ad(val, lc + 5, lambda: w(f'v_max3_u32 v{tmp}, v{tmp}, v9, v10'))
        ad(val, lc + 6, lambda: (w(f'v_max_u32 v{tmp}, v{tmp}, v11'), w(f'v_cmp_eq_u32 vcc, -1, v{tmp}')))
        cs = lc + 7
        assert cs <= 27
        ad(mem, cs, lambda: w(f's_cbranch_vccnz {lab}_lretry\n{lab}_lok:'))
    per = 7 - KMA; base = 7 * KMA
    for tl in range(6):
        s0 = base + per * (tl + 1) + 1
        o = tmp + 2 if not (cfg.get('tw2') and tl % 2 == 0) else 97
        ad(val, s0, lambda tl=tl: w(f'v_add_f32 v{tmp}, v{ACC[tl]}, v{ACC[tl]+2}'))
        ad(val, s0 + 1, lambda tl=tl: w(f'v_add_f32 v{tmp+1}, v{ACC[tl]+1}, v{ACC[tl]+3}'))
        ad(val, s0 + 2, lambda o=o: w(f'v_cvt_pk_bf16_f32 v{o}, v{tmp}, v{tmp+1}'))
        if not cfg.get('tw2'): ad(mem, s0 + 3, lambda tl=tl, o=o: comb_write(tl, f'v{o}'))
        elif tl % 2: ad(mem, s0 + 3, lambda tl=tl, o=o: comb_write(tl, f'v97, v{o}'))
    fl, fv = fill(bs + 4 - NE, cs + 1)
    for k, fs in fv.items():
        for f in fs: ad(val, k, f)
    if cfg.get('stamps'):
        for k in cfg.get('fine', [0]): ad(fl, k, lambda: w.stamp())
    for n, (tl, t) in enumerate(order):
        for f in pre.get(n, []): f()
        w.wait(lg=f'M{t}')
        w(smf(ACC[tl], vr(MR[t], 4), wreg(tl * 7 + t), vIDX))
        for f in mem.get(n, []): f()
        for f in fl.get(n, []): f()
        for f in val.get(n, []): f()
    assert all(k < 49 for k in fl)
    return [f for k in range(49, 56) for f in mem.get(k, []) + val.get(k, [])]

def l_retry(w, lab, tmp, tmo):
    if w.cfg.get('nanchk', 1):
        w(f'{lab}_lretry:')
        sentinel_check(w, list(range(0, 28 if w.cfg.get('poll1') else 12)), f'v{tmp+3}')
        w(f'v_mov_b32 v{tmp+3}, {sS1}\ns_cbranch_vccz {lab}_lok')
        w(f's_add_u32 {sRETRY}, {sRETRY}, 1\ns_sub_u32 {sSPIN}, {sSPIN}, 16\ns_cbranch_scc1 {tmo}')
        w('s_waitcnt vmcnt(0) lgkmcnt(0)\ns_barrier')
        zero(w, 28, 28)
        if w.cfg.get('poll1'):
            w(f'buffer_load_dwordx4 {vr(MREGA[0],4)}, {vL16}, {SRD}, s36 offen sc1\ns_waitcnt vmcnt(0)')
        w(f's_branch {lab}_again')
        return
    w(f'{lab}_lretry:\ns_mov_b32 s33, m0\n{lab}_lretry2:')
    w(f's_add_u32 {sRETRY}, {sRETRY}, 1\ns_barrier\ns_mov_b32 m0, s39')
    w(f's_sub_u32 {sSPIN}, {sSPIN}, 4\ns_cbranch_scc1 {tmo}')
    w(f'buffer_load_dwordx4 {vL16}, {SRD}, s38 offen sc1 lds\ns_waitcnt vmcnt(0)\ns_barrier')
    for t in (4, 5, 6): w(f'ds_read_b128 {vr(MREGA[t],4)}, {vKA[4]} offset:{t*1024}')
    w('s_waitcnt lgkmcnt(0)')
    sentinel_check(w, list(range(0, 12)), f'v{tmp}')
    w(f's_cbranch_vccnz {lab}_lretry2\ns_mov_b32 m0, s33\ns_branch {lab}_lok')

def m_retry(w, lab, tmo):
    w(f'{lab}_mretry:')
    w(f's_add_u32 {sRETRY}, {sRETRY}, 1')
    w(f's_sub_u32 {sSPIN}, {sSPIN}, 8\ns_cbranch_scc1 {tmo}\ns_waitcnt vmcnt(0) lgkmcnt(0)')
    zero(w, 28, 28)
    w(f's_branch {lab}_mload')

def code_touch(A, start, end, sidx, shift, va, vd, sr=56):
    lab = A.newlabel('CT')
    A(f's_getpc_b64 s[{sr}:{sr+1}]\n{lab}:\ns_add_u32 s{sr}, s{sr}, {start}-{lab}\ns_addc_u32 s{sr+1}, s{sr+1}, ({start}-{lab})>>32')
    A(f's_mov_b32 s{sr+2}, {end}-{start}\ns_mov_b32 s{sr+3}, 0x20000\ns_lshl_b32 s11, {sidx}, {shift+6}\nv_lshlrev_b32 {va}, {shift}, v0')
    A(f'buffer_load_dword {vd}, {va}, s[{sr}:{sr+3}], s11 offen')

def wait_lanes(A, lab, addr, target, tmo):
    em = Emitter(A, [f'v{i}' for i in range(4, 13)])
    A(f's_cmp_lg_u32 s9, 0\ns_cbranch_scc1 {lab}_go')
    em.emit(addr, 'v1'); em.emit(target, 'v2')
    A(f's_mov_b32 s19, 0x40000\n{lab}:\nbuffer_load_dword v3, v1, {SRD}, 0 offen sc1')
    A(f's_sub_u32 s19, s19, 1\ns_cbranch_scc1 {tmo}\ns_waitcnt vmcnt(0)\nv_cmp_gt_u32 vcc, v2, v3\ns_cbranch_vccnz {lab}')
    A(f'{lab}_go:\ns_barrier')

def emit_modes(A, cfg, lab, loop):
    if cfg.get('modes', 2) == 1:
        loop(lab, cfg.get('st', '')); return
    A(f's_cmp_lg_u32 s30, 0\ns_cbranch_scc1 {lab}_slow')
    loop(lab + 'x', '')
    A(f'{lab}_slow:')
    loop(lab + 'y', 'sc1')

def load_weights(w, addr_of, spare='v102'):
    n = 0
    for tl in range(7):
        for t in range(7):
            for b in range(2):
                va, pre = addr_of(tl, t, b)
                w(pre)
                w(f'buffer_load_dwordx4 {wquad(tl*7+t, b)}, {va}, {SRD}, s11 offen {w.cfg.get("wfl", "")}')
                n += 1
                if n % 16 == 0: w(f's_waitcnt vmcnt({w.cfg.get("wdepth", 32)})')
                if n == w.cfg.get('midn', 64) and w.cfg.get('mid_weights'): w.cfg['mid_weights'](spare)

A_X, A_T, A_R = 0, 65536, 77824
Z0, Z1, SACC, TSP0, TSP1, TMP = 56, 12, 80, 36, 40, 92
aKR, aKR3, aTW, aTW6, aTR, aXR, aRW, aRR = 'v108', 'v107', 'v106', 'v105', 'v104', 'v103', 'v102', 'v101'
aP, aKR2, aPOLL = 'v100', 'v99', 'v96'
sQ = ['s21', 's22', 's23', 's24']
sXS, sXL, sPW, sPR, sWL, sMASK = 's25', 's26', 's27', 's28', 's32', 's[52:53]'

def a_exprs(R128=False):
    l = V('v0'); w = Sg(sW); h = Sg(sR)
    g = l >> 4; rho = l & 15
    half = (rho >> 1) & 1
    q0 = (w >> 1) * 7 + (w & 1) * 4; q3 = (w >> 1) * 7 + 3
    e = {}
    i = rho & 7
    kr = L_K + ((g >> 1) * 16 + (i >> 1) * 4 + (i & 1)) * 16 + (g & 1) * 8
    e[aKR] = kr + q0 * 512
    e[aKR3] = kr + q3 * 512
    e[aKR2] = kr + q0 * 512 + 1024
    tw = A_T + w * 3072 + (rho >> 2) * 192 + (rho & 1) * 32 + g * 8 + half * 4
    e[aTW] = tw
    e['v98'] = tw + 1536
    e[aTW6] = tw + 2304 + (w & 1) * 64
    e[aTR] = A_T + w * 3072 + g * 384 + ((l >> 3) & 1) * 64 + ((l >> 2) & 1) * 32 + (l & 3) * 8
    e[aXR] = A_X + w * 8192 + l * 16
    e[aRW] = A_R + w * 1536 + g * 384 + rho * 4
    if R128 == 1: e[aRW] = A_R + g * 1536 + (rho >> 1) * 32 + (w ^ g) * 8 + (rho & 1) * 4
    rr = l >> 5; pi = l & 31; pc = pi.min(19)
    e[aRR] = A_R + (w * 2 + rr) * 192 + sel_lt(pc, 4, pc * 8, pc * 8 + 32)
    if R128 == 2: e[aRR] = A_R + (sel_lt(pc, 4, 0, ((pc - 4) >> 3) + 1) * 2 + rr) * 288 + (w * 16 + sel_lt(pc, 4, pc, (pc - 4) & 7) * 2) * 4
    if R128 == 3: e[aRR] = sel_lt(pi, 20, A_R + (sel_lt(pc, 4, 0, ((pc - 4) >> 3) + 1) * 2 + rr) * 288 + (w * 16 + sel_lt(pc, 4, pc, (pc - 4) & 7) * 2) * 4, A_R + 256)
    if R128 == 1: e[aRR] = A_R + (w * 2 + rr) * 768 + sel_lt(pc, 4, pc * 32, pc * 32 + 128)
    row = w * 2 + rr
    rho_of = lambda hf: (row >> 1) * 4 + hf * 2 + (row & 1)
    pm = ((h >> 3) + 8) * 1024 + (((h >> 1) & 3) * 16 + rho_of(pi & 1)) * 16 + ((h & 1) * 2 + ((pi >> 1) & 1)) * 4
    t0 = (pc - 4) * 2
    px = (h >> 1) * 1024 + (((h & 1) * 2 + ((t0 >> 3) & 1)) * 16 + rho_of((t0 >> 1) & 1)) * 16 + (((t0 >> 2) & 1) * 2 + ((t0 >> 4) & 1)) * 4
    e[aP] = sel_lt(pi, 4, pm, sel_lt(pi, 20, px, OOB))
    return e

def check_a_exprs():
    e = a_exprs(); l = np.arange(64)
    for h in (0, 1, 7, 8, 15):
        for w in range(4):
            env = {'v0': l, sW: w, sR: h}
            p = ev(e[aP], env)
            for ln in range(64):
                pi = ln & 31
                assert p[ln] == (ps_off(h, 2 * w + (ln >> 5), pi) if pi < 20 else OOB)
check_a_exprs()

def gen_A(A, cfg, lab, tmo):
    w = Wv(A, cfg)
    em = Emitter(A, [f'v{i}' for i in range(2, 30)])
    a_consts(em, A)
    for k, x in a_exprs((3 if cfg.get('nomask') else 2) if cfg.get('rtid') else cfg.get('r128')).items(): em.emit(x, k)
    l = V('v0')
    em.emit(HU1 + (l & 15) * 4, vHUp)
    em.emit(sel_lt(l + Sg(sW) * 64, 1, HU2 + Sg(sR) * 4, OOB), vHUs)
    nt = cfg.get('ntouch', 0)
    if nt:
        a = Sg(sR) * 4 + Sg(sW)
        em.emit(sel_lt(l, nt, ((a >> 5) * 1792 + (1792 - 32 * nt) + (a & 31) * nt + l) * 128, OOB), 'v110')
    A(f's_mov_b32 s52, 0xfffff\ns_mov_b32 s53, 0xfffff')
    A(f's_lshr_b32 s11, {sW}, 1')
    A(f's_mul_i32 s34, s11, 7\ns_and_b32 s35, {sW}, 1\ns_lshl_b32 s36, s35, 2\ns_add_u32 s36, s36, s34')
    for u in range(3): A(f's_add_u32 s37, s36, {u}\ns_lshl_b32 {sQ[u]}, s37, 10')
    A(f's_add_u32 s37, s34, 3\ns_lshl_b32 {sQ[3]}, s37, 10')
    A(f's_lshl_b32 {sWL}, {sW}, 13')
    A(f's_mul_i32 s38, {sR}, {28*14336}\ns_add_u32 s38, s38, {AF}')
    A(f's_mul_i32 s39, s35, 14336')
    def addr(tl, t, b):
        pre = f's_mul_i32 s11, {sQ[tl>>1]}, 28\ns_add_u32 s11, s11, s38\n'
        pre += (f's_add_u32 s11, s11, {14336*(tl&1) + 1024*b}\n' if tl < 6 else f's_add_u32 s11, s11, s39\ns_add_u32 s11, s11, {1024*b}\n')
        pre += f's_lshl_b32 s37, {sKK[t]}, 1\ns_add_u32 s11, s11, s37'
        return vL16, pre
    sXo = ['s44', 's45', 's46', 's47']; sXm = ['s48', 's49', 's50', 's51']
    def x_consts():
        A(f's_add_u32 {sXo[0]}, {sXS}, {sQ[0]}\ns_add_u32 {sXo[1]}, {sXS}, {sQ[3]}')
        A(f's_add_u32 {sXo[2]}, {sXo[0]}, 14336\ns_add_u32 {sXo[3]}, {sXo[1]}, 14336')
        A(f's_mov_b32 {sXm[0]}, {sXL}\ns_add_u32 {sXm[1]}, {sXL}, 3072\ns_add_u32 {sXm[2]}, {sXL}, 4096\ns_add_u32 {sXm[3]}, {sXL}, 7168')
    def x_m0(tt, u):
        if u in (0, 3): A(f's_mov_b32 m0, {sXm[2*tt + (u == 3)]}')
    def x_dma(tt, u, w=w):
        w.vmem(f'buffer_load_dwordx4 {vL16}, {SRD}, {sXo[2*tt + (u == 3)]} offen offset:{1024*u if u < 3 else 0} lds', 'X')
    if cfg.get('pre_a'): cfg['pre_a']()
    A(f's_mov_b32 {sXS}, {XF}\ns_mov_b32 {sXL}, {sWL}')
    x_consts()
    for tt in range(2):
        for u in range(4): x_m0(tt, u); x_dma(tt, u)
    load_weights(w, addr, 'v94')
    em.emit(A_T + Sg(sW) * 3072 + l * 16, 'v1')
    A('v_mov_b64 v[4:5], 0\nv_mov_b64 v[6:7], 0')
    for k in range(3): A(f'ds_write_b128 v1, v[4:7] offset:{k*1024}')
    if cfg.get('nomask'):
        em.emit(A_R + 256 + Sg(sW) * 1728 + l * 0, 'v1')
        em.emit(sel_lt(Sg(sW) + l * 0, 1, 0xff800000, 0), 'v8')
        A('v_mov_b32 v9, v8\nds_write_b64 v1, v[8:9]')
    zero(w, 28, 28); zero(w, SACC, 12)
    A(f's_mov_b32 {sSTEP}, 0\ns_mov_b32 {sSPIN}, {SPIN_MAX}\ns_mov_b32 {sRETRY}, 0')
    A(f's_mul_i32 s35, {sW}, 1728\ns_add_u32 s35, s35, 32768')
    cfg['start_sync'](w, lab)
    A('s_waitcnt vmcnt(0) lgkmcnt(0)'); w.vm = []; w.lg = []
    def loop(lab, st):
        w = Wv(A, cfg)
        A(f'{lab}_loop:')
        cfg['loop_top'](w, lab)
        a_step_consts(A, cfg.get('solo'))
        A(f's_lshl_b32 s33, s11, 14\ns_add_u32 {sPW}, s33, {PS}\ns_xor_b32 {sPR}, {sPW}, 0x8000')
        A(f's_mul_i32 {sXS}, {sS1}, {0 if cfg.get("xsame") else 28672}' + (f'\ns_add_u32 {sXS}, {sXS}, {XF}' if XF else ''))
        A(f's_and_b32 s11, {sS1}, 1\ns_lshl_b32 s11, s11, 15\ns_add_u32 {sXL}, s11, {sWL}')
        x_consts()
        if nt: A(f's_add_u32 s11, {sSTEP}, 2\ns_min_u32 s11, s11, {NSEG-1}\ns_mul_i32 s11, s11, {VX_SEG}\ns_add_u32 s34, s11, {VXF}')
        A(f'v_mov_b32 v{TMP+3}, {sS1}')
        for r in range(MREGA[0], MREGA[0] + 4 * cfg.get('ne', 2), 2): A(f'v_mov_b64 {vr(r,2)}, -1')
        w.stamp()
        gate = cfg.get('gate', 'w0')
        if gate == 'w0':
            A(f's_cmp_lg_u32 {sW}, 0\ns_cbranch_scc1 {lab}_nopoll')
            if not cfg.get('solo'): poll(w, f'{lab}_poll1', aPOLL, sSTEP, tmo, 16)
            A(f'{lab}_nopoll:\ns_barrier')
        elif gate == 'all':
            poll(w, f'{lab}_poll1', aPOLL, sSTEP, tmo, 16)
        w.stamp()
        for _ in range(cfg.get('adelay', 0)): A('s_nop 15')
        xpos = cfg.get('xpos', [14, 19, 24, 29, 34, 39, 44, 50])
        def xat(p):
            if nt and cfg.get('tslot', 27) == p: w.vmem(f'buffer_load_dword v109, v110, {SRD}, s34 offen', 'T')
            for k in range(8):
                if xpos[k] == p: x_m0(k >> 2, k & 3); x_dma(k >> 2, k & 3, w)
        def fill(f0, k0):
            d = {}; dv = {}
            add = lambda n, f: d.setdefault(n, []).append(f)
            def kq(n, reg, areg, off, tag, ns):
                if cfg.get('kr2'):
                    r2 = areg if off < 1024 else aKR2
                    o = (off & 1023) // 4
                    add(n, lambda: w.ds(f'ds_read2_b32 {vr(reg,2)}, {r2} offset0:{o} offset1:{o+8}', tag))
                    add(n, lambda: w.ds(f'ds_read2_b32 {vr(reg+2,2)}, {r2} offset0:{o+1} offset1:{o+9}', tag))
                    return
                add(n, lambda: w.ds(f'ds_read_b64 {vr(reg,2)}, {areg} offset:{off}', tag))
                add(n, lambda: w.ds(f'ds_read_b64 {vr(reg+2,2)}, {areg} offset:{off+32}', tag))
                if cfg.get('lswap', 1) and not (cfg.get('z0swap') and tag in ('K0', 'K1')): return
                add(ns, lambda: w.wait(lg=tag))
                dv.setdefault(ns, []).append(lambda: w(f'v_swap_b32 v{reg+1}, v{reg+2}'))
            n = f0
            for tt in range(2):
                for uu in range(2):
                    add(n, lambda tt=tt, uu=uu: w.ds(f'ds_read_b128 {vr(Z0+8*(1+tt)+4*uu,4)}, {aXR} offset:{(tt*4+uu)*1024}', 'Z0')); n += 1
            for k in range(8):
                if xpos[k] < 49:
                    add(xpos[k] - 1, lambda k=k: x_m0(k >> 2, k & 3))
                    add(xpos[k], lambda k=k: x_dma(k >> 2, k & 3, w))
            if nt and cfg.get('tslot', 27) < 49: add(cfg.get('tslot', 27), lambda: w.vmem(f'buffer_load_dword v109, v110, {SRD}, s34 offen', 'T'))
            ks = cfg.get('kswap', [36, 39, 42, 45])
            if cfg.get('z0swap'): ks = [k0 + 5, k0 + 6, 0, 0]
            kq(k0, Z0, aKR, 0, 'K0', ks[0]); kq(k0 + 1, Z0 + 4, aKR, 512, 'K1', ks[1])
            k1 = 41 if cfg.get('nanchk', 1) else k0 + 3
            if cfg.get('nanchk', 1): k0 += 3
            kq(k1, Z1, aKR, 1024, 'K2', ks[2]); kq(k1 + 1, Z1 + 4, aKR3, 0, 'K3', ks[3])
            for k, sl in enumerate((37, 38, 39, 40) if cfg.get('nanchk', 1) else (36, 37, 39, 40)):
                tt, uu = k >> 1, k & 1
                add(sl, lambda tt=tt, uu=uu: w.ds(f'ds_read_b128 {vr(Z1+8*(1+tt)+4*uu,4)}, {aXR} offset:{(tt*4+2+uu)*1024}', 'Z1'))
            add(45, lambda: w.ds(f'ds_read_b64_tr_b16 {vr(TSP0,2)}, {aTR}', 'TS0'))
            add(46, lambda: w.ds(f'ds_read_b64_tr_b16 {vr(TSP0+2,2)}, {aTR} offset:192', 'TS0'))
            return d, dv
        def tw(tl, reg):
            if ',' in reg:
                u = tl >> 1
                w.ds(f'ds_write2_b32 {aTW if u < 2 else "v98"}, {reg} offset0:{(u&1)*192} offset1:{(u&1)*192+16}')
            elif tl < 6: w.ds(f'ds_write_b32 {aTW}, {reg} offset:{(tl>>1)*768 + (tl&1)*64}')
            else: w.ds(f'ds_write_b32 {aTW6}, {reg}')
        rest = a_stream(w, fill, tw, lab, TMP, tmo)
        w.stamp()
        w.wait(lg='TS0')
        o0 = (1, 2, 0) if cfg.get('lswap', 1) and not cfg.get('z0swap') else (0, 1, 2)
        w(smf(SACC + 4 * o0[0], vr(TSP0, 4), vr(Z0 + 8 * o0[0], 8), vIDX))
        rest[0]()
        w(smf(SACC + 4 * o0[1], vr(TSP0, 4), vr(Z0 + 8 * o0[1], 8), vIDX))
        for f in rest[1:]: f()
        w(f'v_add_f32 v{TMP}, v{ACC[6]}, v{ACC[6]+2}\nv_add_f32 v{TMP+1}, v{ACC[6]+1}, v{ACC[6]+3}')
        w(f'v_cvt_pk_bf16_f32 v{TMP+2}, v{TMP}, v{TMP+1}')
        tw(6, f'v{TMP+2}')
        w.ds(f'ds_read_b64_tr_b16 {vr(TSP1,2)}, {aTR} offset:1536', 'TS1')
        w.ds(f'ds_read_b64_tr_b16 {vr(TSP1+2,2)}, {aTR} offset:{1536+192}', 'TS1')
        if cfg.get('rtid'): w('s_mov_b32 m0, s35')
        if cfg.get('lswap', 1) and not cfg.get('kr2'):
            if not cfg.get('z0swap'):
                for r in (Z0, Z0 + 4, Z1, Z1 + 4): w(f'v_swap_b32 v{r+1}, v{r+2}')
        w(smf(SACC + 4 * o0[2], vr(TSP0, 4), vr(Z0 + 8 * o0[2], 8), vIDX))
        if cfg.get('z0swap'):
            for r in (Z1, Z1 + 4): w(f'v_swap_b32 v{r+1}, v{r+2}')
        xat(50)
        w.wait(lg='TS1')
        for kt in o0: w(smf(SACC + 4 * kt, vr(TSP1, 4), vr(Z1 + 8 * kt, 8), vIDX))
        for kt in o0:
            w(f'v_add_f32 v{56+2*kt}, v{SACC+4*kt}, v{SACC+4*kt+2}\nv_add_f32 v{57+2*kt}, v{SACC+4*kt+1}, v{SACC+4*kt+3}')
            if cfg.get('rtid'):
                for rp in range(2): w.ds(f'ds_write_addtid_b32 v{56+2*kt+rp} offset:{A_R - 32768 + (2*kt+rp)*288}')
            elif cfg.get('r128'): w.ds(f'ds_write2st64_b32 {aRW}, v{56+2*kt}, v{57+2*kt} offset0:{kt} offset1:{kt+3}')
            else: w.ds(f'ds_write2_b32 {aRW}, v{56+2*kt}, v{57+2*kt} offset0:{16*kt} offset1:{16*kt+48}')
        hu2 = lambda: w.vmem(f'buffer_store_dword v{TMP+3}, {vHUs}, {SRD}, 0 offen {st}')
        hp = cfg.get('hu2pos', 0)
        w.stamp()
        if hp == -1: hu2()
        xat(51)
        w.wait_all_lg()
        A('s_barrier')
        if cfg.get('r128'):
            for k in range(2): w.ds(f'ds_read_b128 {vr(64+4*k,4)}, {aRR} offset:{k*16}', f'R{2*k+1}')
        else:
            for k in range(4): w.ds(f'ds_read_b64 {vr(64+2*k,2)}, {aRR} offset:{k*(1728 if cfg.get("rtid") else 1536)}', f'R{k}')
        if hp == 0: hu2()
        xat(52)
        w.stamp()
        w.wait(lg='R1'); w('v_pk_add_f32 v[64:65], v[64:65], v[66:67]')
        w.wait(lg='R3'); w('v_pk_add_f32 v[68:69], v[68:69], v[70:71]')
        w('v_pk_add_f32 v[64:65], v[64:65], v[68:69]')
        if hp == 1: hu2()
        for _ in range(cfg.get('apad', 0)): A('s_nop 15')
        w('v_max_f32 v66, v64, v65')
        for k, r in enumerate((8, 4, 2, 1)):
            if hp == 2 + k: hu2()
            xat(53 + k)
            w(f'v_max_f32_dpp v66, v66, v66 row_ror:{r} row_mask:0xf bank_mask:0xf')
        w('v_mov_b32 v67, v66')
        w('v_permlane16_swap_b32 v66, v67')
        w('v_max_f32 v66, v66, v67')
        w('v_pk_add_f32 v[64:65], v[64:65], v[66:67] op_sel_hi:[1,0] neg_lo:[0,1] neg_hi:[0,1]')
        w('v_exp_f32 v64, v64\nv_exp_f32 v65, v65')
        if hp == 6: hu2()
        w('v_add_f32 v66, v64, v65')
        if not cfg.get('nomask'): w(f'v_cndmask_b32 v66, 0, v66, {sMASK}')
        for k, r in enumerate((8, 4, 2, 1)):
            if hp == 7 + k: hu2()
            xat(57 + k)
            w(f'v_add_f32_dpp v66, v66, v66 row_ror:{r} row_mask:0xf bank_mask:0xf')
        w('v_mov_b32 v67, v66\nv_permlane16_swap_b32 v66, v67\nv_add_f32 v66, v66, v67')
        w('v_rcp_f32 v66, v66')
        if hp == 11: hu2()
        w('v_pk_mul_f32 v[64:65], v[64:65], v[66:67] op_sel_hi:[1,0]')
        w('v_cvt_pk_bf16_f32 v64, v64, v65')
        w('v_min_u32 v64, -2, v64')
        w.vmem(f'buffer_store_dword v64, {aP}, {SRD}, {sPW} offen {st}')
        if hp == 99: hu2()
        w.stamp()
        if cfg.get('ack'): w.wait_all_vm(); w.stamp()
        def later():
            w('v_mov_b32 v65, -1')
            w.vmem(f'buffer_store_dword v65, {aP}, {SRD}, {sPR} offen {st}')
            xat(99)
        lp = cfg.get('lpos', 1)
        if lp == 0: later()
        zero(w, 28, 28); zero(w, SACC, 12)
        w(f'v_xor_b32 {aXR}, 0x8000, {aXR}')
        if lp == 2: A('s_barrier')
        if lp >= 1: later()
        w.dump_stamps(lab)
        A(f's_mov_b32 {sSPIN}, {SPIN_MAX}')
        A(f's_mov_b32 {sSTEP}, {sS1}\ns_cmp_lt_u32 {sSTEP}, {NSEG-1}\ns_cbranch_scc1 {lab}_loop')
        cfg['finish'](w, lab)
        A('s_endpgm')
        l_retry(w, lab, TMP, tmo)

    emit_modes(A, cfg, lab, loop)

B_VX, B_V = 0, 98304
bVW, bWR, bVR, bMS, bSEL = 'v108', 'v107', 'v106', 'v105', 'v104'
bMX, bFL, bVL, bPOLL = 'v107', 'v106', 'v105', 'v104'
bTO, bINC, bFLAG = 'v99', 'v98', 'v97'
bDM = [f'v{89+k}' for k in range(7)]
BT = 100
FACC = 96
sVS, sVL, sMW, sMR, sMXO = 's25', 's26', 's27', 's28', 's29'

def bcol(j, c):
    return sel_lt(c, 16, j * 16 + c, j * 12 + c + 240)

def b_exprs_final():
    l = V('v0'); w = Sg(sW); j = Sg(sR)
    g = l >> 4; n = l & 15; c = w * 16 + n
    e = {}
    e[bWR] = B_VX + (g * 28 + c.min(27)) * 16
    e[bVR] = B_V + (g * 28 + c.min(27)) * 16
    i = g * 2 + (n & 1); d0 = bcol(j, c & 30)
    k = d0 & 63
    off = (d0 >> 6) * 1024 + ((k >> 4) * 16 + (i >> 1) * 4 + ((k >> 1) & 1) * 2 + (i & 1)) * 16 + ((k >> 2) & 3) * 4
    e[bMS] = sel_lt(c, 28, off, OOB)
    e[bSEL] = sel_lt(n & 1, 1, 0x05040100, 0x03020706)
    return e
def check_b():
    e = b_exprs_final(); l = np.arange(64)
    for j in (0, 1, 5, 15):
        for w in range(2):
            p = ev(e[bMS], {'v0': l, sW: w, sR: j})
            for ln in range(64):
                c = 16 * w + (ln & 15)
                assert p[ln] == (ms_off(2 * (ln >> 4) + (ln & 1), (16 * j if c < 16 else 12 * j + 240) + (c & ~1)) if c < 28 else OOB)
check_b()

def gen_B(A, cfg, lab, tmo):
    w = Wv(A, cfg)
    em = Emitter(A, [f'v{i}' for i in list(range(2, 20)) + list(range(28, 56))])
    A(f's_add_u32 s39, {sR}, 1')
    fast = cfg.get('bfast', 2)
    common_consts(em, A, lab, '0' if fast else 's39', fast == 1)
    l = V('v0'); ww = Sg(sW); j = Sg(sR)
    em.emit(B_V + (ww * 112 + (l & 15)) * 16 + (l >> 4) * 4, bVW)
    for tl in range(7):
        f = ww * 112 + tl * 16 + (l & 15); hh = f.div(28)
        em.emit((hh * 56 + (l >> 4)) * 7168 + bcol(j, f - hh * 28) * 16, f'v{20+tl}')
    def addr(tl, t, b):
        return f'v{20+tl}', f's_mul_i32 s11, {sKK[t]}, 56\ns_add_u32 s11, s11, {BF + 28672*b}'
    def vw(tl, reg): w.ds(f'ds_write_b32 {bVW}, {reg} offset:{tl*256}')
    def tail6(rest):
        for f in rest: f()
        w(f'v_add_f32 v{BT}, v{ACC[6]}, v{ACC[6]+2}\nv_add_f32 v{BT+1}, v{ACC[6]+1}, v{ACC[6]+3}')
        w(f'v_cvt_pk_bf16_f32 v{BT+2}, v{BT}, v{BT+1}')
        vw(6, f'v{BT+2}')
    rot = sR if cfg.get('prot', 1) else '0'
    for q in range(4): A(f's_add_u32 s{48+q}, {rot}, {q}\ns_and_b32 s{48+q}, s{48+q}, 3\ns_lshl_b32 s{48+q}, s{48+q}, 11')
    if cfg.get('pre_b'): cfg['pre_b']()
    A(f's_cmp_ge_u32 {sW}, 2\ns_cbranch_scc1 {lab}_loader')
    for k, x in b_exprs_final().items(): em.emit(x, k)
    bWB = vHUs if cfg.get('bpoll') else None
    assert bWB, 'the flag variant has no register left for three slots'
    A(f'v_mov_b32 {bWB}, {bWR}\ns_mov_b32 s47, 0')
    em.emit(HU2 + (l & 15) * 4, vHUp)
    load_weights(w, addr)
    zero(w, 28, 28)
    A(f's_mov_b32 {sSTEP}, 0\ns_mov_b32 {sSPIN}, {SPIN_MAX}\ns_mov_b32 {sRETRY}, 0')
    cfg['start_sync'](w, lab + 'f')
    A('s_waitcnt vmcnt(0) lgkmcnt(0)')
    def loopf(lf, st, second):
        nonlocal w
        w = Wv(A, cfg)
        PREG = [4 * m for m in range(10)]
        one = cfg.get('onebar', 1)
        if one:
            order = list(range(10))
            WREG = {0: 56, 1: 64, 2: 72, 3: 80, 4: 88, 5: 40, 6: 48, 7: 56, 8: 64, 9: 72}
        else:
            order = [0, 1, 2, 3, 4, 8, 9, 5, 6, 7]
            WREG = {0: 56, 1: 64, 2: 72, 3: 80, 4: 88, 8: 40, 9: 48, 5: 56, 6: 64, 7: 72}
        sPO = ['s22', 's23', 's24', 's45', 's46']
        def wx(m, b):
            if m < 8: w.ds(f'ds_read_b128 {vr(WREG[m]+4*b,4)}, {bWR} offset:{(2*m+b)*1792}', f'W{m}')
            else: w.ds(f'ds_read_b128 {vr(WREG[m]+4*b,4)}, {bVR} offset:{(2*(m-8)+b)*1792}', f'W{m}')
        def mfirst():
            for t in range(2): A(f'buffer_load_dwordx4 {vr(MREG[t],4)}, {vL16}, {SRD}, {sMO[t]} offen sc1')
        if fast:
            step_consts(A)
            A('s_barrier'); mfirst()
        A(f'{lf}_loop:')
        if fast: A(f's_and_b32 s11, {sSTEP}, 3\ns_add_u32 {sS1}, {sSTEP}, 1')
        else: step_consts(A)
        A(f's_lshl_b32 s11, s11, 14\ns_add_u32 s11, s11, {PS}\ns_add_u32 s46, s11, 8192')
        for q in range(4): A(f's_add_u32 {sPO[q]}, s11, s{48+q}')
        A(f's_and_b32 s11, {sS1}, 3\ns_lshl_b32 s11, s11, 13\ns_add_u32 {sMW}, s11, {MS}\ns_xor_b32 {sMR}, {sMW}, 0x4000')
        A(f'v_mov_b32 v{BT+3}, {sS1}\nv_mov_b64 {vr(FACC,2)}, 0\nv_mov_b64 {vr(FACC+2,2)}, 0')
        if cfg.get('bpoll') and not fast:
            for r in range(MREG[0], MREG[0] + 8, 2): A(f'v_mov_b64 {vr(r,2)}, -1')
        w.stamp()
        if not fast: A('s_barrier')
        w.stamp()
        def fillf(f0):
            d = {}
            for m in range(5):
                for b in range(2): d.setdefault(f0 + 2 * m + b, []).append(lambda m=m, b=b: wx(m, b))
            return d, {}
        tail6(weight_stream(w, fillf, vw, lf, BT, tmo, cfg.get('bpoll')))
        for _ in range(cfg.get('vpad', 0)): A('s_nop 15')
        w.stamp()
        if one:
            for m in (5, 6): wx(m, 0); wx(m, 1)
            if fast:
                for t in range(2): A(f's_add_u32 {sMO[t]}, {sMW}, {sKK[t]}')
            w.wait_all_lg()
            w.stamp()
            if second: A('s_barrier')
            else: poll(w, f'{lf}_poll2', f'v{BT+2}', sS1, tmo, 16)
        else:
            w.wait_all_lg()
            A('s_barrier')
            A(f's_cmp_eq_u32 {sSTEP}, {NSEG-1}\ns_cbranch_scc1 {lf}_done')
            for m in (8, 9): wx(m, 0); wx(m, 1)
            w.stamp()
            if cfg.get('b0poll'):
                if second: A('s_barrier')
                else: poll(w, f'{lf}_poll2', f'v{BT+2}', sS1, tmo, 16)
            else:
                A('s_barrier')
                if second: A('s_barrier')
        w.stamp()
        def ploads():
            for k, m in enumerate(order):
                w.vmem(f'buffer_load_dwordx4 {vr(PREG[k],4)}, {vL16}, {SRD}, {sPO[m>>1]} offen offset:{(m&1)*1024} sc1', f'P{k}')
        ploads()
        if not second: A('s_barrier')
        if fast and second: A('s_cmp_eq_u32 0, 1')
        A(f'{lf}_pchain:')
        for _ in range(cfg.get('bpad', 0)): A('s_nop 15')
        for k, m in enumerate(order):
            w.wait(vm=f'P{k}', lg=f'W{m}')
            if k == 0: w.stamp()
            w(smf(FACC, vr(PREG[k], 4), vr(WREG[m], 8), vIDX))
            if k < 3: wx((7 if one else 5) + k, 0); wx((7 if one else 5) + k, 1)
            if fast and second and k == cfg.get('kb', 4 if fast == 1 else 99):
                w.wait_all_lg(); A(f's_cbranch_scc1 {lf}_nob\ns_barrier\n{lf}_nob:')
        w(f'v_add_f32 v{BT}, v{FACC}, v{FACC+2}\nv_add_f32 v{BT+1}, v{FACC+1}, v{FACC+3}')
        if cfg.get('bcmp', 1):
            w(f'v_cvt_pk_bf16_f32 v{FACC}, v{BT}, v{BT+1}')
            w(f'v_cmp_u_f32 vcc, v{BT}, v{BT+1}')
            w(f'v_mov_b32_dpp v{BT+1}, v{FACC} quad_perm:[1,0,3,2] row_mask:0xf bank_mask:0xf')
            w(f'v_perm_b32 v{BT}, v{BT+1}, v{FACC}, {bSEL}')
        else:
            w(f'v_cmp_u_f32 vcc, v{BT}, v{BT+1}')
            w(f'v_cvt_pk_bf16_f32 v{BT}, v{BT}, v{BT+1}')
            w(f'v_mov_b32_dpp v{BT+1}, v{BT} quad_perm:[1,0,3,2] row_mask:0xf bank_mask:0xf')
            w(f'v_perm_b32 v{BT}, v{BT+1}, v{BT}, {bSEL}')
        w(f'v_min_u32 v{BT}, -2, v{BT}')
        w(f's_cbranch_vccnz {lf}_pretry\n{lf}_pok:')
        w.vmem(f'buffer_store_dword v{BT}, {bMS}, {SRD}, {sMW} offen {st}')
        if fast:
            if not second or cfg.get('kb', 4 if fast == 1 else 99) == 99: A('s_barrier')
            mfirst()
        if cfg.get('lastmx', 1):
            A(f's_cmp_eq_u32 {sSTEP}, {NSEG-2}\ns_cbranch_scc1 {lf}_last')
        w.stamp()
        if cfg.get('ack'): w.wait_all_vm(); w.stamp()
        w(f'v_mov_b32 v{BT+1}, -1')
        w.vmem(f'buffer_store_dword v{BT+1}, {bMS}, {SRD}, {sMR} offen {st}')
        if not cfg.get('bpoll'): w.vmem(f'buffer_store_dword v{BT+3}, {vHUs}, {SRD}, 0 offen {st}')
        zero(w, 28, 28)
        w(f's_add_u32 s47, s47, 0x8000\ns_cmp_eq_u32 s47, 0x18000\ns_cselect_b32 s47, 0, s47\nv_add_u32 {bWR}, s47, {bWB}')
        w.dump_stamps(lf)
        A(f's_mov_b32 {sSPIN}, {SPIN_MAX}\ns_mov_b32 {sSTEP}, {sS1}\ns_branch {lf}_loop')
        if cfg.get('lastmx', 1):
            A(f'{lf}_last:\ns_mov_b32 s11, {MX + (NSEG-1)*7168}\nbuffer_store_dword v{BT}, {bMS}, {SRD}, s11 offen sc1')
        A(f'{lf}_done:')
        cfg['finish'](w, lf)
        A('s_endpgm')
        m_retry(w, lf, tmo)
        A(f'{lf}_pretry:\ns_waitcnt vmcnt(0) lgkmcnt(0)')
        sentinel_check(w, list(range(0, 40)), f'v{BT+2}')
        A(f's_cbranch_vccz {lf}_pok')
        A(f's_add_u32 {sRETRY}, {sRETRY}, 0x10000\ns_sub_u32 {sSPIN}, {sSPIN}, 8\ns_cbranch_scc1 {tmo}')
        for m in range(3): wx(m, 0); wx(m, 1)
        A(f'v_mov_b64 {vr(FACC,2)}, 0\nv_mov_b64 {vr(FACC+2,2)}, 0\ns_waitcnt lgkmcnt(0)')
        ploads()
        A(f's_cmp_eq_u32 0, 0\ns_branch {lf}_pchain')
    A(f's_cmp_eq_u32 {sW}, 1\ns_cbranch_scc1 {lab}_second')
    emit_modes(A, cfg, lab + 'f', lambda lf, st: loopf(lf, st, False))
    A(f'{lab}_second:')
    emit_modes(A, cfg, lab + 'g', lambda lf, st: loopf(lf, st, True))
    ll = lab + 'l'
    A(f'{lab}_loader:')
    w = Wv(A, cfg)
    for r in range(7):
        f = l + 64 * r; hg = f.div(28)
        em.emit(hg * 7168 + bcol(j, f - hg * 28) * 16 + (4096 - (r & 3) * 1024), bDM[r])
    em.emit(sel_lt(ww, 3, HU1 + 128 + (l & 31) * 4, HU2 + (l & 15) * 4), vHUp)
    em.emit(sel_lt(l + (3 - ww) * 64, 1, HU1 + j * 4, OOB), vHUs)
    em.emit(sel_lt(j + (3 - ww) * 16, 7, j * 1024 + l * 16, OOB), bMX)
    em.emit(L_K + (j & 7) * 1024 + l * 16, 'v88')
    xl = (j * 2 + ww - 2) * 7 + l
    em.emit(sel_lt(l, 7, XF + 2 * 28672 + xl * 128, sel_lt(l, 63, OOB, FVX + 2 * 128)), bTO)
    em.emit(sel_lt(l, 63, 28672, 128), bINC)
    A(f'v_mov_b32 {bFLAG}, 16')
    A(f's_sub_u32 s11, {sW}, 2\ns_mul_i32 s23, s11, 14336\ns_cmp_eq_u32 s11, 0\ns_cselect_b32 s24, s48, s50\ns_cselect_b32 s45, s49, s51')
    A(f's_mul_i32 s24, s24, 56\ns_add_u32 s24, s24, {VXF - 4096}\ns_mul_i32 s45, s45, 56\ns_add_u32 s45, s45, {VXF - 4096}')
    def vx_m0(k):
        if k % 7 in (0, 4): w(f's_add_u32 m0, {sVL}, {k*1024}')
    def vx_dma(k):
        w.vmem(f'buffer_load_dwordx4 {bDM[k%7]}, {SRD}, {sVS if k < 7 else "s44"} offen offset:{((k%7)&3)*1024} lds', 'D')
    load_weights(w, addr)
    zero(w, 28, 28)
    A(f's_mov_b32 {sSTEP}, 0\ns_mov_b32 {sSPIN}, {SPIN_MAX}\ns_mov_b32 {sRETRY}, 0')
    cfg['start_sync'](w, ll)
    A(f's_mov_b32 {sVS}, s24\ns_mov_b32 s44, s45\ns_mov_b32 {sVL}, s23\ns_mov_b32 s47, 0')
    for k in range(14): vx_m0(k); vx_dma(k)
    def loopl(ll, st):
        nonlocal w
        w = Wv(A, cfg)
        A(f'{ll}_loop:')
        step_consts(A)
        A(f's_min_u32 s11, {sS1}, {0 if cfg.get("vxsame") else NSEG-1}\ns_mul_i32 s11, s11, {VX_SEG}\ns_add_u32 {sVS}, s11, s24\ns_add_u32 s44, s11, s45')
        A(f's_add_u32 s47, s47, 0x8000\ns_cmp_eq_u32 s47, 0x18000\ns_cselect_b32 s47, 0, s47\ns_add_u32 {sVL}, s47, s23')
        A(f's_mul_i32 {sMXO}, {sSTEP}, 7168\ns_add_u32 {sMXO}, {sMXO}, {MX}')
        if cfg.get('bpoll'):
            for r in range(MREG[0], MREG[0] + 8, 2): A(f'v_mov_b64 {vr(r,2)}, -1')
        A('s_waitcnt vmcnt(0)')
        A(f's_cmp_ge_u32 {sSTEP}, {NSEG-1}\ns_cbranch_scc1 {ll}_fok')
        A(f'{ll}_fchk:\nv_readlane_b32 s11, {bFLAG}, 63\ns_nop 0\ns_cmp_ge_u32 s11, 16\ns_cbranch_scc1 {ll}_fok')
        A(f's_lshl_b32 s11, {sS1}, 7\ns_add_u32 s11, s11, {FVX}')
        A(f'buffer_load_dword {bFLAG}, off, {SRD}, s11 sc1')
        A(f's_sub_u32 {sSPIN}, {sSPIN}, 1\ns_cbranch_scc1 {tmo}\ns_waitcnt vmcnt(0)\ns_branch {ll}_fchk\n{ll}_fok:')
        w.stamp()
        if not cfg.get('bpoll'):
            A(f's_cmp_lg_u32 {sW}, 2\ns_cbranch_scc1 {ll}_nopoll')
            poll(w, f'{ll}_poll1', bPOLL, sSTEP, tmo, 32)
            A(f'{ll}_nopoll:')
        A('s_barrier')
        w.stamp()
        d0 = cfg.get('dslot', 2); dstep = cfg.get('dstep', 2); ne = cfg.get('dearly', 0)
        def early():
            for k in range(ne): vx_m0(k); vx_dma(k)
        def filll(f0):
            d = {}
            add = lambda n, f: d.setdefault(n, []).append(f)
            for k in range(ne, 14):
                add(d0 + dstep * (k - ne) - 1, lambda k=k: vx_m0(k))
                add(d0 + dstep * (k - ne), lambda k=k: vx_dma(k))
            add(d0 + dstep * (14 - ne), lambda: w.vmem(f'buffer_load_dword {bFLAG}, {bTO}, {SRD}, 0 offen sc1', 'D'))
            if fast and not cfg.get('nomx'):
                add(f0, lambda: w.ds('ds_read_b128 v[56:59], v88', 'MX'))
                add(f0 + 5, lambda: (w.wait(lg='MX'), w.vmem(f'buffer_store_dwordx4 v[56:59], {bMX}, {SRD}, {sMXO} offen sc1')))
            elif not cfg.get('nomx'):
                add(max(f0 - 4, cfg.get('vslot', 0)), lambda: w.vmem(f'buffer_store_dwordx4 {vr(MREG[0],4)}, {bMX}, {SRD}, {sMXO} offen {cfg.get("mxfl", "sc1")}'))
            return d, {}
        tail6(weight_stream(w, filll, vw, ll, BT, tmo, cfg.get('bpoll'), early))
        w.stamp()
        w.wait_all_lg()
        if not cfg.get('onebar', 1):
            A('s_barrier')
            A(f's_cmp_eq_u32 {sSTEP}, {NSEG-1}\ns_cbranch_scc1 {ll}_done')
        zero(w, 28, 28)
        A(f'v_mov_b32 v{BT+3}, {sS1}')
        if not cfg.get('xsame'): A(f'v_add_u32 {bTO}, {bTO}, {bINC}')
        w.stamp()
        if cfg.get('drain'):
            w.wait(vm='D'); w.stamp(); w.wait_all_vm(); w.stamp()
        hu1 = f'buffer_store_dword v{BT+3}, {vHUs}, {SRD}, 0 offen {st}'
        if cfg.get('b0poll') or cfg.get('onebar', 1):
            A('s_barrier')
            if cfg.get('gate', 'w0') != 'none': A(hu1)
        else:
            A(f's_cmp_lg_u32 {sW}, 3\ns_cbranch_scc1 {ll}_nopoll2')
            poll(w, f'{ll}_poll2', bPOLL, sS1, tmo, 16)
            A(f'{ll}_nopoll2:\ns_barrier')
            if cfg.get('hu1pos', 0) == 0: A(hu1)
            A('s_barrier')
            if cfg.get('hu1pos', 0) == 1: A(hu1)
        if cfg.get('lastmx', 1): A(f's_cmp_eq_u32 {sSTEP}, {NSEG-2}\ns_cbranch_scc1 {ll}_done')
        w.dump_stamps(ll)
        A(f's_mov_b32 {sSPIN}, {SPIN_MAX}\ns_mov_b32 {sSTEP}, {sS1}\ns_branch {ll}_loop\n{ll}_done:')
        cfg['finish'](w, ll)
        A('s_endpgm')
        m_retry(w, ll, tmo)
    emit_modes(A, cfg, ll, loopl)
```

```python
from asmdsl import Asm
from expr import X, V, Sg, Emitter, ev, sel_lt
from layout import *
from rec import code_touch, dstamp, tline, wait_lanes, Wv, vr, wquad, wreg, smf, zero, sentinel_check, SRD
from prep import f32, mfma, srd
import math

sW, sR = 's9', 's10'
sSPIN = 's19'
WSPIN = 0x40000
BACK = ['']
PREV = [1]
ONE = [0]
LASTD = [1]
NV = 4
NQ = 4

def wait_flag(w, lab, soff, target, tmo, vt='v2'):
    w(f's_cmp_lg_u32 {sW}, 0\ns_cbranch_scc1 {lab}_go\ns_mov_b32 {sSPIN}, {WSPIN}')
    w(f'{lab}:\nbuffer_load_dword {vt}, off, {SRD}, {soff} sc1')
    w(f's_sub_u32 {sSPIN}, {sSPIN}, 1\ns_cbranch_scc1 {tmo}\n{BACK[0]}s_waitcnt vmcnt(0)')
    w(f'v_cmp_gt_u32 vcc, {target}, {vt}\ns_cbranch_vccnz {lab}')
    w(f'{lab}_go:\ns_barrier')

def signal(w, lab, soff, vt='v2'):
    w('s_waitcnt vmcnt(0)\ns_barrier'); w.vm = []
    w(f's_cmp_lg_u32 {sW}, 0\ns_cbranch_scc1 {lab}\nv_mov_b32 {vt}, 1\ns_mov_b64 exec, 1')
    w(f'buffer_atomic_add {vt}, off, {SRD}, {soff} sc1\ns_mov_b64 exec, -1\n{lab}:')

def load_w(w, addr_of, ps=range(14)):
    n = 0
    for p in ps:
        for tl in range(7):
            va, pre = addr_of(tl, p)
            w(pre)
            w.vmem(f'buffer_load_dwordx4 {wquad(tl*7 + (p>>1), p&1)}, {va}, {SRD}, s11 offen', f'W{p}')
            n += 1
            if n % 14 == 0 and len(w.vm) > 44: w('s_waitcnt vmcnt(32)'); w.vm = w.vm[-32:]

XB = 56
def xq(p, tt): return XB + ((p & 3) * 2 + tt) * 4
def acc2(tl, tt): return (tl * 2 + tt) * 4
sXB, sXN = 's20', 's21'
vL16 = 'v119'

def x_load(w, p, base):
    for tt in range(2):
        off = p * 1024 + tt * 14336
        w(f's_add_u32 s11, {base}, {off & ~4095}')
        w.vmem(f'buffer_load_dwordx4 {vr(xq(p,tt),4)}, {vL16}, {SRD}, s11 offen offset:{off & 4095}', f'X{p}')

def seg_gemm(w, w_is_a, wload=None):
    for p in range(14):
        w.wait(vm=f'X{p}'); w.wait(vm=f'W{p}')
        for tl in range(7):
            for tt in range(2):
                wq = wquad(tl * 7 + (p >> 1), p & 1); xx = vr(xq(p, tt), 4)
                a, b = (wq, xx) if w_is_a else (xx, wq)
                w(mfma(vr(acc2(tl, tt), 4), a, b, 0 if p == 0 else None))
        if p + 4 < 14: x_load(w, p + 4, sXB)
        if wload and p + 6 < 14: wload(p + 6)
    for p in range(4): x_load(w, p, sXN)

def mx_wait(w, lab, regs, loads, tmo, tmp, light_always=False):
    sl = 's15' if light_always else 's26'
    if light_always: pass
    elif PREV[0]: w(f's_sub_u32 s26, s15, 7168\ns_max_u32 s26, s26, {MX}')
    else: w('s_mov_b32 s26, s15')
    w(f's_mov_b32 {sSPIN}, {WSPIN}')
    if LASTD[0] and not light_always:
        w(f's_cmp_eq_u32 s8, {NSEG-1}\ns_cselect_b32 s11, 7168, 0\ns_sub_u32 s26, s26, s11')
    if ONE[0]: w(f's_cmp_lg_u32 {sW}, 3\ns_cbranch_scc1 {lab}_2')
    w(f'{lab}_1:\nbuffer_load_dword {tmp}, off, {SRD}, {sl} sc1')
    w(f's_sub_u32 {sSPIN}, {sSPIN}, 1\ns_cbranch_scc1 {tmo}\n{BACK[0]}s_waitcnt vmcnt(0)\nv_cmp_eq_u32 vcc, -1, {tmp}\ns_cbranch_vccnz {lab}_1')
    if ONE[0]: w(f'{lab}_2:\ns_barrier')
    w(f'{lab}:')
    loads()
    w(f's_sub_u32 {sSPIN}, {sSPIN}, 1\ns_cbranch_scc1 {tmo}\n{BACK[0]}s_waitcnt vmcnt(0)'); w.vm = []
    sentinel_check(w, regs, tmp)
    w(f's_cbranch_vccnz {lab}')

def gen_V(A, cfg, lab, tmo):
    w = Wv(A, {})
    em = Emitter(A, [f'v{i}' for i in range(2, 30)])
    l = V('v0'); g = l >> 4; n = l & 15; ww = Sg(sW); h = Sg(sR)
    em.emit(l & 63, 'v0')
    em.emit(l * 16, vL16)
    em.emit(sel_lt(l & 2, 1, 0x44444444, 0xEEEEEEEE), 'v118')
    em.emit(g * 7168 + (ww * 112 + n) * 16, 'v117')
    em.emit((ww * 112 + n) * 16 + g * 4, 'v116')
    A(f's_mul_i32 s13, {sR}, {14*28672}\ns_add_u32 s13, s13, {BF}')
    A(f's_mul_i32 {sXB}, s12, 28672' + (f'\ns_add_u32 {sXB}, {sXB}, {XF}' if XF else ''))
    wait_lanes(A, f'{lab}_wb', sel_lt(l, 1, FB + h * 128, FX), sel_lt(l, 1, 14, 32), tmo)
    waddr = lambda tl, p: ('v117', f's_add_u32 s11, s13, {p*28672 + tl*256}')
    c2 = dict(cfg, tlreg=97)
    A(f's_mov_b32 s8, s12\ns_mul_i32 s14, {sR}, 28672')
    if cfg.get('vfirst', 1):
        for p in range(4): x_load(w, p, sXB)
        load_w(w, waddr, range(6))
        A(f's_add_u32 {sXN}, {sXB}, {NV*28672}')
        seg_gemm(w, False, lambda p: load_w(w, waddr, [p]))
        tline(A, c2, 1)
        A(f's_branch {lab}_epi')
    else:
        load_w(w, waddr)
        if cfg.get('tl'): A('s_waitcnt vmcnt(0)')
        tline(A, c2, 1)
        for p in range(4): x_load(w, p, sXB)
    A(f'{lab}_loop:')
    A(f's_add_u32 {sXN}, {sXB}, {NV*28672}')
    w.vm = [f'X{p}' for p in range(4) for _ in range(2)]
    seg_gemm(w, False)
    A(f'{lab}_epi:')
    A(f's_mul_i32 s15, s8, {VX_SEG}\ns_add_u32 s15, s15, s14\ns_add_u32 s15, s15, {VXF}')
    for tl in range(7):
        o = 88 + 4 * (tl & 1)
        for tt in range(2):
            a = acc2(tl, tt)
            A(f'v_cvt_pk_bf16_f32 v{o+2*tt}, v{a}, v{a+1}\nv_cvt_pk_bf16_f32 v{o+2*tt+1}, v{a+2}, v{a+3}')
        A(f'buffer_store_dwordx4 {vr(o,4)}, v117, {SRD}, s15 offen offset:{tl*256} sc1')
    A(f's_lshl_b32 s15, s8, 7\ns_add_u32 s15, s15, {FVX}')
    signal(w, f'{lab}_sig', 's15', 'v96')
    if cfg.get('tl'):
        A(f's_cmp_ge_u32 s8, {NV}\ns_cbranch_scc1 {lab}_tl1'); tline(A, c2, 2); A(f'{lab}_tl1:')
    A(f's_mov_b32 {sXB}, {sXN}\ns_add_u32 s8, s8, {NV}\ns_cmp_lt_u32 s8, {NSEG}\ns_cbranch_scc1 {lab}_loop')
    tline(A, c2, 3)
    if cfg.get('nopost'): A('s_endpgm')
    A(f's_mov_b32 s8, s12\ns_mul_i32 s14, {sR}, 7168')
    A(f'{lab}_mloop:')
    zero(w, 28, 28)
    A(f's_mul_i32 s15, s8, 7168\ns_add_u32 s15, s15, {MX}\ns_add_u32 s16, s15, 4096')
    def loads():
        for kk in range(7):
            A(f'buffer_load_dwordx4 {vr(4*kk,4)}, {vL16}, {SRD}, {"s15" if kk < 4 else "s16"} offen offset:{(kk&3)*1024} sc1')
    mx_wait(w, f'{lab}_mx', list(range(28)), loads, tmo, 'v96')
    for tl in range(7):
        for kk in range(7): A(smf(28 + 4 * tl, vr(4 * kk, 4), wreg(tl * 7 + kk), 'v118'))
    A(f's_mul_i32 s15, s8, {VM_SEG}\ns_add_u32 s15, s15, s14\ns_add_u32 s15, s15, {VM}')
    for tl in range(7):
        a = 28 + 4 * tl
        A(f'v_add_f32 v{a}, v{a}, v{a+2}\nv_add_f32 v{a+1}, v{a+1}, v{a+3}\nv_cvt_pk_bf16_f32 v{a}, v{a}, v{a+1}\nv_min_u32 v{a}, -2, v{a}')
        A(f'buffer_store_dword v{a}, v116, {SRD}, s15 offen offset:{tl*256} sc1')
    A(f's_lshl_b32 s15, s8, 7\ns_add_u32 s15, s15, {FVM}')
    signal(w, f'{lab}_sig2', 's15', 'v96')
    A(f's_add_u32 s8, s8, {NV}\ns_cmp_lt_u32 s8, {NSEG}\ns_cbranch_scc1 {lab}_mloop')
    tline(A, c2, 4)
    A('s_endpgm')

def gen_Q(A, cfg, lab, tmo):
    w = Wv(A, {})
    em = Emitter(A, [f'v{i}' for i in range(2, 30)])
    l = V('v0'); g = l >> 4; n = l & 15; ww = Sg(sW); h = Sg(sR)
    sQ = ['s22', 's23', 's24', 's25']
    em.emit(l & 63, 'v0')
    em.emit(l * 16, vL16)
    em.emit(l * 16 + (ww & 1) * 8, 'v118')
    i = n & 7
    em.emit(((g >> 1) * 16 + (i >> 1) * 4 + (i & 1)) * 16 + (g & 1) * 8, 'v117')
    em.emit(((g >> 1) * 16 + (i >> 1) * 4 + (i & 1)) * 16 + (g & 1) * 8 + (ww & 1) * 4, 'v116')
    em.emit(ww * 5120 + l * 16, 'v115')
    em.emit(ww * 1024 + l * 16, 'v114')
    em.emit(ww * 20480 + h * 1024 + l * 16, 'v113')
    em.emit(sel_lt(g, 2, ww * 20480 + ((h >> 2) + 16) * 1024 + ((h & 3) * 16 + n) * 16 + g * 8, OOB), 'v112')
    em.emit(n - g * 4, 'v111')
    A(f's_lshr_b32 s11, {sW}, 1\ns_mul_i32 s14, s11, 7\ns_and_b32 s15, {sW}, 1\ns_lshl_b32 s16, s15, 2\ns_add_u32 s16, s16, s14')
    for u in range(3): A(f's_add_u32 s17, s16, {u}\ns_lshl_b32 {sQ[u]}, s17, 10')
    A(f's_add_u32 s17, s14, 3\ns_lshl_b32 {sQ[3]}, s17, 10')
    A(f's_mul_i32 s13, {sR}, {28*14336}\ns_add_u32 s13, s13, {AF}\ns_mul_i32 s15, s15, 14336')
    def addr(tl, p):
        pre = f's_mul_i32 s11, {sQ[tl>>1]}, 28\ns_add_u32 s11, s11, s13\n'
        pre += f's_add_u32 s11, s11, {14336*(tl&1) + 1024*p}' if tl < 6 else f's_add_u32 s11, s11, s15\ns_add_u32 s11, s11, {1024*p}'
        return vL16, pre
    A(f's_mul_i32 {sXB}, s12, 28672' + (f'\ns_add_u32 {sXB}, {sXB}, {XF}' if XF else ''))
    if cfg.get('nopost'): A('s_endpgm')
    wait_lanes(A, f'{lab}_wa', sel_lt(l, 1, FA + h * 128, FX), sel_lt(l, 1, 14, 32), tmo)
    load_w(w, addr)
    w.vm = []
    for p in range(4): x_load(w, p, sXB)
    A('s_mov_b32 s8, s12')
    A(f'{lab}_loop:')
    A(f's_add_u32 {sXN}, {sXB}, {NQ*28672}')
    w.vm = [f'X{p}' for p in range(4) for _ in range(2)]
    seg_gemm(w, True)
    QQ = lambda u, tt: 16 * u + 4 * tt
    for u in range(4):
        for tt in range(2):
            for b in range(2 if u < 3 else 1):
                a = acc2(2 * u + b, tt)
                A(f'v_cvt_pk_bf16_f32 v{88+4*tt+2*b}, v{a}, v{a+1}\nv_cvt_pk_bf16_f32 v{89+4*tt+2*b}, v{a+2}, v{a+3}')
        for tt in range(2):
            for k in range(0, 4 if u < 3 else 2, 2): A(f'v_mov_b64 {vr(QQ(u,tt)+k,2)}, {vr(88+4*tt+k,2)}')
    for u in range(4):
        for kt in range(2):
            A(f's_add_u32 s11, {sXB}, {sQ[u]}' + ('\ns_add_u32 s11, s11, 14336' if kt else ''))
            if u < 3: w.vmem(f'buffer_load_dwordx4 {vr(16*u+8+4*kt,4)}, {vL16}, {SRD}, s11 offen', 'Z')
            else: w.vmem(f'buffer_load_dwordx2 {vr(88+2*kt,2)}, v118, {SRD}, s11 offen', 'Z')
    w.wait(vm='Z')
    SX = {(1, 0): 92, (1, 1): 96, (2, 1): 100}
    for (kt, tt), a in SX.items():
        for u in range(3): A(mfma(vr(a, 4), vr(16 * u + 8 + 4 * (kt - 1), 4), vr(QQ(u, tt), 4), 0 if u == 0 else None))
        A(f'v_mfma_f32_16x16x16_bf16 {vr(a,4)}, {vr(88+2*(kt-1),2)}, {vr(QQ(3,tt),2)}, {vr(a,4)}')
    for (kt, tt), a in SX.items():
        A(f'ds_write_b128 v115, {vr(a,4)} offset:{(2*kt + tt - (1 if kt == 2 else 0))*1024}')
    A('s_waitcnt lgkmcnt(0)\ns_barrier')
    E1, E2, E0 = 92, 96, 100
    A(f's_cmp_ge_u32 {sW}, 2\ns_cbranch_scc1 {lab}_nored')
    def red(dst, off, t0):
        for k in range(4): A(f'ds_read_b128 {vr(dst if k == 0 else t0+16*(k-1),4)}, v114 offset:{k*5120 + off}')
        A('s_waitcnt lgkmcnt(0)')
        for k in range(3):
            for r in (0, 2): A(f'v_pk_add_f32 {vr(dst+r,2)}, {vr(dst+r,2)}, {vr(t0+16*k+r,2)}')
    red(E1, 2048, 8)
    red(E2, 3072, 8)
    A(f'v_mov_b32 v104, 0xff800000\ns_cmp_eq_u32 {sW}, 0\ns_cbranch_scc0 {lab}_t1')
    for r in range(4):
        A(f'v_cmp_le_i32 vcc, {r}, v111\nv_cndmask_b32 v{E1+r}, v104, v{E1+r}, vcc\nv_mov_b32 v{E2+r}, v104')
    A(f's_branch {lab}_nored\n{lab}_t1:')
    for r in range(4): A(f'v_cmp_le_i32 vcc, {r}, v111\nv_cndmask_b32 v{E2+r}, v104, v{E2+r}, vcc')
    A(f'{lab}_nored:')
    A(f's_mul_i32 s15, s8, 7168\ns_add_u32 s15, s15, {MX}')
    KQ = lambda u: 16 * u + 8
    def loads():
        for u in range(4):
            A(f's_lshr_b32 s11, {sQ[u]}, 1\ns_add_u32 s11, s11, s15')
            if u < 3:
                A(f'buffer_load_dwordx2 {vr(KQ(u),2)}, v117, {SRD}, s11 offen sc1\nbuffer_load_dwordx2 {vr(KQ(u)+2,2)}, v117, {SRD}, s11 offen offset:32 sc1')
            else:
                A(f'buffer_load_dword v88, v116, {SRD}, s11 offen sc1\nbuffer_load_dword v89, v116, {SRD}, s11 offen offset:32 sc1')
    mx_wait(w, f'{lab}_mx', [KQ(u) + k for u in range(3) for k in range(4)] + [88, 89], loads, tmo, 'v105')
    for u in range(3): A(f'v_swap_b32 v{KQ(u)+1}, v{KQ(u)+2}')
    for tt in range(2):
        a = 12 + 16 * tt
        for u in range(3): A(mfma(vr(a, 4), vr(KQ(u), 4), vr(QQ(u, tt), 4), 0 if u == 0 else None))
        A(f'v_mfma_f32_16x16x16_bf16 {vr(a,4)}, v[88:89], {vr(QQ(3,tt),2)}, {vr(a,4)}')
    for tt in range(2): A(f'ds_write_b128 v115, {vr(12+16*tt,4)} offset:{tt*1024}')
    A('s_waitcnt lgkmcnt(0)\ns_barrier')
    A(f's_cmp_ge_u32 {sW}, 2\ns_cbranch_scc1 {lab}_nosm')
    red(E0, 0, 8)
    A('s_mov_b32 vcc_lo, -1\ns_mov_b32 vcc_hi, 0')
    for r in range(4): A(f'v_cndmask_b32 v{E0+r}, v104, v{E0+r}, vcc')
    A(f'v_max3_f32 v8, v{E1}, v{E1+1}, v{E1+2}')
    for r in range(E1 + 3, E1 + 11, 2): A(f'v_max3_f32 v8, v8, v{r}, v{r+1}')
    A(f'v_max_f32 v8, v8, v{E1+11}')
    def allred(op):
        A(f'v_mov_b32 v9, v8\nv_permlane16_swap_b32 v8, v9\n{op} v8, v8, v9')
        A(f'v_mov_b32 v9, v8\nv_permlane32_swap_b32 v8, v9\n{op} v8, v8, v9')
    allred('v_max_f32')
    for r in range(E1, E1 + 12, 2): A(f'v_pk_add_f32 {vr(r,2)}, {vr(r,2)}, v[8:9] op_sel_hi:[1,0] neg_lo:[0,1] neg_hi:[0,1]')
    for r in range(E1, E1 + 12): A(f'v_exp_f32 v{r}, v{r}')
    A(f'v_pk_add_f32 v[8:9], {vr(E1,2)}, {vr(E1+2,2)}')
    for r in range(E1 + 4, E1 + 12, 2): A(f'v_pk_add_f32 v[8:9], v[8:9], {vr(r,2)}')
    A('v_add_f32 v8, v8, v9')
    allred('v_add_f32')
    A('v_rcp_f32 v8, v8')
    for r in range(E1, E1 + 12, 2): A(f'v_pk_mul_f32 {vr(r,2)}, {vr(r,2)}, v[8:9] op_sel_hi:[1,0]')
    for k in range(6): A(f'v_cvt_pk_bf16_f32 v{12+k}, v{E1+2*k}, v{E1+2*k+1}\nv_min_u32 v{12+k}, -2, v{12+k}')
    A(f's_mul_i32 s15, s8, {PX_SEG}\ns_add_u32 s15, s15, {PX}')
    A(f'buffer_store_dwordx4 v[12:15], v113, {SRD}, s15 offen sc1\nbuffer_store_dwordx2 v[16:17], v112, {SRD}, s15 offen sc1')
    A(f'{lab}_nosm:')
    A(f's_lshl_b32 s15, s8, 7\ns_add_u32 s15, s15, {FPX}')
    signal(w, f'{lab}_sig', 's15', 'v105')
    A(f's_mov_b32 {sXB}, {sXN}\ns_add_u32 s8, s8, {NQ}\ns_cmp_lt_u32 s8, {NSEG}\ns_cbranch_scc1 {lab}_loop')
    tline(A, dict(cfg, tlreg=106), 4)
    A('s_endpgm')

def gen_T(A, cfg, lab, tmo):
    w = Wv(A, {})
    em = Emitter(A, [f'v{i}' for i in range(8, 30)])
    l = V('v0'); g = l >> 4
    A('s_load_dwordx2 s[28:29], s[0:1], 64\ns_load_dwordx2 s[30:31], s[0:1], 80')
    em.emit(l & 63, 'v0')
    A(f"""s_and_b32 s12, {sR}, 15
    s_lshl_b32 s12, s12, 2
    s_add_u32 s12, s12, {sW}
    s_waitcnt lgkmcnt(0)
    s_cmp_lt_u32 {sR}, 16
    s_cselect_b32 s20, s28, s30
    s_cselect_b32 s21, s29, s31
    s_mov_b32 s22, {D*F*2}
    s_mov_b32 s23, 0x20000
    s_movk_i32 s13, 896
    s_cselect_b32 s13, 3584, s13
    s_cselect_b32 s14, 28, 7
    s_movk_i32 s15, 9363
    s_cselect_b32 s15, 2341, s15       ; 65536 / blocks
    s_cselect_b32 s16, 14, 56          ; k quads
    s_mov_b32 s17, {W2F}
    s_cselect_b32 s17, {W1F}, s17
    s_mul_i32 s18, {sW}, 28672""")
    em.emit((l >> 3) * Sg('s13') + (l & 7) * 16, 'v1')
    em.emit(Sg('s18') + (g * 8 + ((l >> 2) & 3)) * 128 + (l & 3) * 16, 'v2')
    em.emit(l * 16, 'v3')
    A('s_lshl_b32 s24, s13, 3')
    for k in range(7):
        A(f's_add_u32 s25, s12, {64*k}\ns_mul_i32 s26, s25, s15\ns_lshr_b32 s26, s26, 16\ns_mul_i32 s27, s26, s14\ns_sub_u32 s27, s25, s27')
        A(f's_lshl_b32 s{40+k}, s27, 2\ns_mul_i32 s{40+k}, s{40+k}, s16\ns_add_u32 s{40+k}, s{40+k}, s26\ns_lshl_b32 s{40+k}, s{40+k}, 10\ns_add_u32 s{40+k}, s{40+k}, s17')
        A(f's_cmp_lt_u32 s25, 392\ns_cselect_b32 s{40+k}, s{40+k}, {OOB}')
        A('s_lshl_b32 s26, s26, 5\ns_mul_i32 s26, s26, s13\ns_lshl_b32 s27, s27, 7\ns_add_u32 s26, s26, s27')
        for r in range(4):
            A(f's_add_u32 m0, s18, {k*4096 + r*1024}')
            w.vmem(f'buffer_load_dwordx4 v1, s[20:23], s26 offen lds', f'U{k}')
            if r < 3: A('s_add_u32 s26, s26, s24')
    A('s_lshl_b32 s24, s16, 10')
    for k in range(7):
        w.wait(vm=f'U{k}')
        for t in range(4):
            o = 8 + 16 * (k & 1) + 4 * t; off = k * 4096 + (t >> 1) * 64 + (t & 1) * 8
            A(f'ds_read_b64_tr_b16 {vr(o,2)}, v2 offset:{off}\nds_read_b64_tr_b16 {vr(o+2,2)}, v2 offset:{off+512}')
        A('s_waitcnt lgkmcnt(0)')
        for t in range(4):
            w.vmem(f'buffer_store_dwordx4 {vr(8+16*(k&1)+4*t,4)}, v3, {SRD}, s{40+k} offen sc1')
            if t < 3: A(f's_add_u32 s{40+k}, s{40+k}, s24')
    A(f's_mov_b32 s15, {FW}')
    signal(w, f'{lab}_sig', 's15', 'v4')
    tline(A, dict(cfg, tlreg=5), 4)
    A('s_endpgm')

def gen_F(A, cfg, lab, tmo):
    w = Wv(A, {})
    em = Emitter(A, [f'v{i}' for i in range(8, 30)])
    l = V('v0'); g = l >> 4; n = l & 15; ww = Sg(sW)
    A('s_load_dwordx2 s[28:29], s[0:1], 72\ns_load_dwordx2 s[30:31], s[0:1], 88\ns_load_dwordx2 s[32:33], s[0:1], 0\ns_load_dwordx2 s[34:35], s[0:1], 96')
    wait_lanes(A, f'{lab}_wx', l * 0 + FX, l * 0 + 32, tmo)
    em.emit(l * 16, 'v1')
    em.emit(g * 16, 'v3')
    A('s_waitcnt lgkmcnt(0)')
    srd(A, 36, 28, F * 2); srd(A, 40, 30, D * 2); srd(A, 44, 32, S * D * 2); srd(A, 48, 34, S * D * 2)
    xr = lambda tt, p: f'a[{(tt*14+p)*4}:{(tt*14+p)*4+3}]'
    A(f's_mul_i32 s12, {sR}, 28672' + (f'\ns_add_u32 s12, s12, {XF}' if XF else ''))
    for q in range(28):
        if q % 4 == 0: A(f's_add_u32 s11, s12, {q*1024}')
        A(f'buffer_load_dwordx4 {xr(q//14, q%14)}, v1, {SRD}, s11 offen offset:{(q%4)*1024}')
    A(f's_mov_b32 s15, {FW}')
    wait_flag(w, f'{lab}_fw', 's15', 32, tmo)
    c2 = dict(cfg, tlreg=2)
    tline(A, c2, 1)
    WB = lambda buf, q: 32 + buf * 112 + 4 * q
    A(f's_mul_i32 s13, {sW}, {14*28672}\ns_add_u32 s13, s13, {W1F}\ns_mul_i32 s14, {sW}, {14*64}')
    em.emit(ww * 28672 + l * 16, 'v4')
    def wl(buf, q):
        if q % 4 == 0: A(f's_add_u32 s11, s13, {q*1024}')
        w.vmem(f'buffer_load_dwordx4 {vr(WB(buf,q),4)}, v1, {SRD}, s11 offen offset:{(q%4)*1024} sc1', f'W{buf}_{q}')
    def bl(buf): w.vmem(f'buffer_load_dwordx4 {vr(24+4*buf,4)}, v3, s[36:39], s14 offen', f'B{buf}')
    w.vm = []
    bl(0)
    for q in range(28): wl(0, q)
    A('s_mov_b32 s8, 0')
    A(f'{lab}_l1:')
    def block(buf):
        A('s_add_u32 s13, s13, 28672\ns_add_u32 s14, s14, 64')
        bl(1 - buf)
        for p in range(14):
            for b in range(2):
                q = b * 14 + p
                w.wait(vm=f'W{buf}_{q}')
                for tt in range(2): A(mfma(vr(8 + (b * 2 + tt) * 4, 4), vr(WB(buf, q), 4), xr(tt, p), 0 if p == 0 else None))
            wl(1 - buf, 2 * p); wl(1 - buf, 2 * p + 1)
        bb = 24 + 4 * buf
        for tt in range(2):
            for b in range(2):
                a = 8 + (b * 2 + tt) * 4
                for k in range(2):
                    A(f'v_lshlrev_b32 v6, 16, v{bb+2*b+k}\nv_and_b32 v7, 0xffff0000, v{bb+2*b+k}')
                    A(f'v_pk_add_f32 {vr(a+2*k,2)}, {vr(a+2*k,2)}, v[6:7]')
                    A(f'v_max_f32 v{a+2*k}, 0, v{a+2*k}\nv_max_f32 v{a+2*k+1}, 0, v{a+2*k+1}')
                    A(f'v_pk_mul_f32 {vr(a+2*k,2)}, {vr(a+2*k,2)}, {vr(a+2*k,2)}')
                    A(f'v_cvt_pk_bf16_f32 v{a+k}, v{a+2*k}, v{a+2*k+1}')
            A(f'v_mov_b64 {vr(8+tt*4+2,2)}, {vr(16+tt*4,2)}')
            A(f'ds_write_b128 v4, {vr(8+tt*4,4)} offset:{buf*2048 + tt*1024}')
    w.vm = ['B0'] + [f'W0_{q}' for q in range(28)]
    block(0); block(1)
    A(f'v_add_u32 v4, 4096, v4\ns_add_u32 s8, s8, 1\ns_cmp_lt_u32 s8, {1 if cfg.get("noffn") else 7}\ns_cbranch_scc1 {lab}_l1')
    tline(A, c2, 2)
    A(f's_lshl_b32 s16, {sW}, 2\ns_cmp_eq_u32 {sW}, 3\ns_cselect_b32 s16, 11, s16')
    A(f's_mul_i32 s13, s16, {2*57344}\ns_add_u32 s13, s13, {W2F}')
    for t in range(8):
        A(f's_add_u32 s{52+t}, s13, {t*57344}')
    A(f's_cmp_ge_u32 {sW}, 2\ns_cselect_b32 s58, {OOB}, s58\ns_cselect_b32 s59, {OOB}, s59')
    A('s_waitcnt vmcnt(0) lgkmcnt(0)\ns_barrier')
    W2 = lambda buf, t: 32 + (buf * 8 + t) * 4
    HB = lambda buf, tt: 8 + (buf * 2 + tt) * 4
    G = lambda t, tt: f'a[{(t*2+tt)*4}:{(t*2+tt)*4+3}]'
    for r in range(64): A(f'v_accvgpr_write_b32 a{r}, 0')
    A('v_mov_b32 v4, v1\nv_mov_b32 v5, v1')
    def w2l(buf, off):
        for t in range(8): w.vmem(f'buffer_load_dwordx4 {vr(W2(buf,t),4)}, v5, {SRD}, s{52+t} offen offset:{off} sc1', f'V{buf}')
    def hl(buf, off):
        for tt in range(2): w.ds(f'ds_read_b128 {vr(HB(buf,tt),4)}, v4 offset:{off + tt*1024}', f'H{buf}')
    w.vm = []; w.lg = []
    for k in range(3): w2l(k, k * 1024)
    hl(0, 0)
    A('v_add_u32 v5, 3072, v5\ns_mov_b32 s8, 0')
    A(f'{lab}_l2:')
    for k in range(4):
        w2l((k + 3) & 3, k * 1024)
        hl((k + 1) & 1, (k + 1) * 2048)
        w.wait(vm=f'V{k}', lg=f'H{k&1}')
        for t in range(8):
            for tt in range(2): A(mfma(G(t, tt), vr(W2(k, t), 4), vr(HB(k & 1, tt), 4)))
    A(f'v_add_u32 v5, 4096, v5\nv_add_u32 v4, 8192, v4\ns_add_u32 s8, s8, 1\ns_cmp_lt_u32 s8, {1 if cfg.get("noffn") else 14}\ns_cbranch_scc1 {lab}_l2')
    A('s_waitcnt vmcnt(0) lgkmcnt(0)')
    A('s_lshl_b32 s14, s16, 6')
    for k in range(4): A(f'buffer_load_dwordx4 {vr(32+4*k,4)}, v3, s[40:43], s14 offen offset:{k*64}')
    A(f's_lshl_b32 s14, s16, 10\ns_add_u32 s14, s14, s12\ns_add_u32 s14, s14, {GB - XF}\ns_add_u32 s15, s14, 14336')
    A('s_waitcnt vmcnt(0)')
    for k in range(4):
        if k == 3: A(f's_cmp_ge_u32 {sW}, 2\ns_cbranch_scc1 {lab}_gdone')
        for tt in range(2):
            for b in range(2):
                for r in range(4): A(f'v_accvgpr_read_b32 v{48+4*b+r}, a{((2*k+b)*2+tt)*4+r}')
            for j in range(4):
                A(f'v_lshlrev_b32 v6, 16, v{32+4*k+j}\nv_and_b32 v7, 0xffff0000, v{32+4*k+j}')
                A(f'v_pk_add_f32 {vr(48+2*j,2)}, {vr(48+2*j,2)}, v[6:7]')
            for r in range(8): A(f'v_mul_f32 v{56+r}, {f32(-math.log2(math.e))}, v{48+r}')
            for r in range(8): A(f'v_exp_f32 v{56+r}, v{56+r}')
            for r in range(8): A(f'v_add_f32 v{56+r}, 1.0, v{56+r}')
            for r in range(8): A(f'v_rcp_f32 v{56+r}, v{56+r}')
            for j in range(4):
                A(f'v_pk_mul_f32 {vr(48+2*j,2)}, {vr(48+2*j,2)}, {vr(56+2*j,2)}')
                A(f'v_cvt_pk_bf16_f32 v{64+4*tt+j}, v{48+2*j}, v{49+2*j}')
            A(f'buffer_store_dwordx4 {vr(64+4*tt,4)}, v1, {SRD}, {"s15" if tt else "s14"} offen offset:{k*1024} sc1')
    A(f'{lab}_gdone:')
    A(f's_lshl_b32 s15, {sR}, 7\ns_add_u32 s15, s15, {FG}')
    signal(w, f'{lab}_gsig', 's15')
    tline(A, c2, 3)
    if cfg.get('nopost'): A('s_endpgm')
    if cfg.get('out2', 1):
        A(f's_cmp_ge_u32 {sR}, 56\ns_cbranch_scc1 {lab}_end')
        A(f's_mul_i32 s8, {sR}, 4682\ns_lshr_b32 s8, s8, 16\ns_mul_i32 s16, s8, 14\ns_sub_u32 s16, {sR}, s16')
        col = Sg('s16') * 32 + (n >> 2) * 8 + (n & 3)
        em.emit(g * 7168 + col * 16, 'v4')
        em.emit(n * 896 + Sg('s16') * 64 + g * 16 + (ww & 1) * 14336, 'v5')
        em.emit(Sg('s16') * 1024 + l * 16 + (ww & 1) * 14336, 'v6')
        em.emit((l & 1) * (FPX - FVM), 'v7')
        em.emit(ww * 4096 + l * 16, 'v3')
        em.emit((ww & 1) * 2048 + l * 16, 'v26')
        A(f's_mul_i32 s17, {sW}, {4*28672}\ns_mul_i32 s18, {sW}, 28672\ns_lshl_b32 s23, {sW}, 12\ns_lshl_b32 s24, {sW}, 10\ns_add_u32 s24, s24, 16384')
        WX = lambda q, b: 32 + (q * 2 + b) * 4
        PB = lambda q, tt: 72 + (q * 2 + tt) * 4
        A(f'{lab}_l3:')
        if cfg.get('codetouch2', 1): code_touch(A, f'{lab}_l3', f'{lab}_end', sW, 4, 'v27', 'v120', 52)
        A(f's_lshl_b32 s13, s8, 7\ns_add_u32 s15, s13, {FVX}')
        wait_flag(w, f'{lab}_fvx', 's15', 16, tmo)
        A(f's_mul_i32 s14, s8, {VX_SEG}\ns_add_u32 s14, s14, s17\ns_add_u32 s14, s14, {VXF}')
        for q in range(4):
            for b in range(2): A(f'buffer_load_dwordx4 {vr(WX(q,b),4)}, v4, {SRD}, s14 offen offset:{b*64} sc1')
            if q < 3: A('s_add_u32 s14, s14, 28672')
        A('s_mul_i32 s14, s8, 28672')
        A('buffer_load_dwordx4 v[112:115], v5, s[44:47], s14 offen')
        A(f's_add_u32 s15, s13, {FG}')
        wait_flag(w, f'{lab}_fg', 's15', 1, tmo)
        A(f's_add_u32 s21, s14, {GB}\nbuffer_load_dwordx4 v[116:119], v6, {SRD}, s21 offen sc1')
        A(f's_mul_i32 s21, s8, {PX_SEG}\ns_add_u32 s21, s21, {PX}\ns_add_u32 s22, s21, s24\ns_add_u32 s21, s21, s23\ns_add_u32 s25, s21, 20480\ns_add_u32 s26, s22, 20480')
        A(f's_mul_i32 s27, s8, {VM_SEG}\ns_add_u32 s27, s27, s18\ns_add_u32 s27, s27, {VM}')
        def late_loads():
            for q in range(4):
                for tt in range(2): A(f'buffer_load_dwordx4 {vr(PB(q,tt),4)}, v1, {SRD}, {"s25" if tt else "s21"} offen offset:{q*1024} sc1')
            for tt in range(2): A(f'buffer_load_dwordx4 {vr(PB(4,tt),4)}, v1, {SRD}, {"s26" if tt else "s22"} offen sc1')
            for b in range(2): A(f'buffer_load_dwordx4 {vr(WX(4,b),4)}, v4, {SRD}, s27 offen offset:{b*64} sc1')
        if cfg.get('lastdirect', 1):
            A(f's_cmp_eq_u32 s8, {NSEG-1}\ns_cbranch_scc0 {lab}_flags')
            A(f's_mov_b32 s15, {MX + (NSEG-1)*7168}')
            mx_wait(w, f'{lab}_dir', list(range(64, 112)), late_loads, tmo, 'v2', True)
            A(f's_branch {lab}_go')
        A(f'{lab}_flags:\ns_add_u32 s15, s13, {FVM}')
        A(f's_cmp_lg_u32 {sW}, 0\ns_cbranch_scc1 {lab}_f2go\ns_mov_b32 {sSPIN}, {WSPIN}')
        A(f'{lab}_f2:\nbuffer_load_dword v2, v7, {SRD}, s15 offen sc1')
        A(f's_sub_u32 {sSPIN}, {sSPIN}, 1\ns_cbranch_scc1 {tmo}\ns_waitcnt vmcnt(0)\nv_cmp_gt_u32 vcc, 16, v2\ns_cbranch_vccnz {lab}_f2')
        A(f'{lab}_f2go:\ns_barrier')
        late_loads()
        A(f's_waitcnt vmcnt(0)\n{lab}_go:')
        tline(A, c2, 5)
        for q in range(5):
            for b in range(2):
                for tt in range(2): A(mfma(vr(8 + (tt * 2 + b) * 4, 4), vr(WX(q, b), 4), vr(PB(q, tt), 4), 0 if q == 0 else None))
        for k in range(4): A(f'ds_write_b128 v3, {vr(8+4*k,4)} offset:{k*1024}')
        A(f's_waitcnt lgkmcnt(0)\ns_barrier\ns_cmp_ge_u32 {sW}, 2\ns_cbranch_scc1 {lab}_next')
        for src in range(4):
            for b in range(2): A(f'ds_read_b128 {vr(32+(src*2+b)*4,4)}, v26 offset:{src*4096 + b*1024}')
        A('s_waitcnt lgkmcnt(0)')
        for j in range(4):
            r = 32 + 2 * j
            A(f'v_pk_add_f32 {vr(r,2)}, {vr(r,2)}, {vr(r+8,2)}\nv_pk_add_f32 {vr(r+16,2)}, {vr(r+16,2)}, {vr(r+24,2)}\nv_pk_add_f32 {vr(r,2)}, {vr(r,2)}, {vr(r+16,2)}')
            A(f'v_cvt_pk_bf16_f32 v{r}, v{r}, v{r+1}\nv_and_b32 v{r+1}, 0xffff0000, v{r}\nv_lshlrev_b32 v{r}, 16, v{r}')
            A(f'v_lshlrev_b32 v24, 16, v{116+j}\nv_and_b32 v25, 0xffff0000, v{116+j}')
            A(f'v_pk_mul_f32 {vr(r,2)}, {vr(r,2)}, v[24:25]')
            A(f'v_cvt_pk_bf16_f32 v{r}, v{r}, v{r+1}\nv_and_b32 v{r+1}, 0xffff0000, v{r}\nv_lshlrev_b32 v{r}, 16, v{r}')
            A(f'v_lshlrev_b32 v24, 16, v{112+j}\nv_and_b32 v25, 0xffff0000, v{112+j}')
            A(f'v_pk_add_f32 {vr(r,2)}, {vr(r,2)}, v[24:25]')
            A(f'v_cvt_pk_bf16_f32 v{28+j}, v{r}, v{r+1}')
        A(f'buffer_store_dwordx4 v[28:31], v5, s[48:51], s14 offen {cfg.get("ost", "")}')
        A(f'{lab}_next:\ns_add_u32 s8, s8, 4\ns_cmp_lt_u32 s8, {NSEG}\ns_cbranch_scc1 {lab}_l3\n{lab}_end:')
    else:
        A(f's_and_b32 s11, {sR}, 3\ns_lshl_b32 s16, s11, 2\ns_cmp_eq_u32 s11, 3\ns_cselect_b32 s16, 11, s16\ns_add_u32 s16, s16, {sW}')
        A(f's_lshr_b32 s11, s11, 1\ns_add_u32 s11, s11, {sW}\ns_cmp_ge_u32 s11, 4\ns_cselect_b32 s17, {OOB}, 0')
        col = Sg('s16') * 32 + (n >> 2) * 8 + (n & 3)
        em.emit(g * 7168 + col * 16 + Sg('s17'), 'v4')
        em.emit(n * 896 + Sg('s16') * 64 + g * 16 + Sg('s17'), 'v5')
        em.emit(Sg('s16') * 1024 + l * 16 + Sg('s17'), 'v6')
        em.emit((l & 1) * (FPX - FVM), 'v7')
        A(f's_lshr_b32 s8, {sR}, 2\ns_mul_i32 s18, {sW}, 10240')
        WX = lambda q, b: 32 + (q * 2 + b) * 4
        A(f'{lab}_l3:')
        A(f's_lshl_b32 s13, s8, 7\ns_add_u32 s15, s13, {FVX}')
        wait_flag(w, f'{lab}_fvx', 's15', 16, tmo)
        A(f's_mul_i32 s14, s8, {VX_SEG}\ns_add_u32 s14, s14, {VXF}')
        for q in range(16):
            for b in range(2): A(f'buffer_load_dwordx4 {vr(WX(q,b),4)}, v4, {SRD}, s14 offen offset:{b*64} sc1')
            if q < 15: A('s_add_u32 s14, s14, 28672')
        A('s_mul_i32 s14, s8, 28672\ns_add_u32 s20, s14, 14336')
        A('buffer_load_dwordx4 v[192:195], v5, s[44:47], s14 offen\nbuffer_load_dwordx4 v[196:199], v5, s[44:47], s20 offen')
        A(f's_add_u32 s15, s13, {FG}')
        wait_flag(w, f'{lab}_fg', 's15', 1, tmo)
        A(f's_add_u32 s21, s14, {GB}\ns_add_u32 s22, s20, {GB}')
        A(f'buffer_load_dwordx4 v[200:203], v6, {SRD}, s21 offen sc1\nbuffer_load_dwordx4 v[204:207], v6, {SRD}, s22 offen sc1')
        A(f's_add_u32 s15, s13, {FVM}')
        A(f's_cmp_lg_u32 {sW}, 0\ns_cbranch_scc1 {lab}_f2go\ns_mov_b32 {sSPIN}, {WSPIN}')
        A(f'{lab}_f2:\nbuffer_load_dword v2, v7, {SRD}, s15 offen sc1')
        A(f's_sub_u32 {sSPIN}, {sSPIN}, 1\ns_cbranch_scc1 {tmo}\n{BACK[0]}s_waitcnt vmcnt(0)\nv_cmp_gt_u32 vcc, 16, v2\ns_cbranch_vccnz {lab}_f2')
        A(f'{lab}_f2go:\ns_barrier')
        tline(A, c2, 5)
        A(f's_mul_i32 s21, s8, {PX_SEG}\ns_add_u32 s21, s21, s18\ns_add_u32 s21, s21, {PX}')
        for k in range(10):
            if k % 4 == 0: A(f's_add_u32 m0, s18, {k*1024}\ns_add_u32 s22, s21, {k*1024}')
            A(f'buffer_load_dwordx4 v1, {SRD}, s22 offen offset:{(k%4)*1024} sc1 lds')
        A(f's_mul_i32 s21, s8, {VM_SEG}\ns_add_u32 s21, s21, {VM}')
        for u in range(4):
            for b in range(2): A(f'buffer_load_dwordx4 {vr(WX(16+u,b),4)}, v4, {SRD}, s21 offen offset:{b*64} sc1')
            if u < 3: A('s_add_u32 s21, s21, 28672')
        A('s_waitcnt vmcnt(8)\ns_barrier')
        w.lg = []
        PB = lambda q, tt: 208 + ((q & 3) * 2 + tt) * 4
        def pl(q):
            for tt in range(2): w.ds(f'ds_read_b128 {vr(PB(q,tt),4)}, v1 offset:{tt*20480 + q*1024}', f'P{q}')
        for q in range(3): pl(q)
        for q in range(20):
            if q + 3 < 20: pl(q + 3)
            w.wait(lg=f'P{q}')
            if q == 16: A('s_waitcnt vmcnt(0)')
            for b in range(2):
                for tt in range(2): A(mfma(vr(8 + (tt * 2 + b) * 4, 4), vr(WX(q, b), 4), vr(PB(q, tt), 4), 0 if q == 0 else None))
        for tt in range(2):
            a = 8 + tt * 8
            for j in range(4):
                r = a + 2 * j
                A(f'v_cvt_pk_bf16_f32 v{r}, v{r}, v{r+1}\nv_and_b32 v{r+1}, 0xffff0000, v{r}\nv_lshlrev_b32 v{r}, 16, v{r}')
                A(f'v_lshlrev_b32 v24, 16, v{200+4*tt+j}\nv_and_b32 v25, 0xffff0000, v{200+4*tt+j}')
                A(f'v_pk_mul_f32 {vr(r,2)}, {vr(r,2)}, v[24:25]')
                A(f'v_cvt_pk_bf16_f32 v{r}, v{r}, v{r+1}\nv_and_b32 v{r+1}, 0xffff0000, v{r}\nv_lshlrev_b32 v{r}, 16, v{r}')
                A(f'v_lshlrev_b32 v24, 16, v{192+4*tt+j}\nv_and_b32 v25, 0xffff0000, v{192+4*tt+j}')
                A(f'v_pk_add_f32 {vr(r,2)}, {vr(r,2)}, v[24:25]')
                A(f'v_cvt_pk_bf16_f32 v{28+j}, v{r}, v{r+1}')
            A(f'buffer_store_dwordx4 v[28:31], v5, s[48:51], {"s20" if tt else "s14"} offen {cfg.get("ost", "")}')
        A(f's_add_u32 s8, s8, 16\ns_cmp_lt_u32 s8, {NSEG}\ns_cbranch_scc1 {lab}_l3')
    if cfg.get('tl') or cfg.get('ds'): A('s_waitcnt vmcnt(0)')
    tline(A, c2, 4)
    dstamp(A, cfg, 7, 215 if cfg.get('out2', 1) else 223, 2)
    A('s_endpgm')
```

```python
from asmdsl import Asm
from layout import *
import rec, workers, prep, build

BEST = dict(xpos=[11, 15, 20, 25, 99, 99, 99, 99], hu2pos=6, ew=128, ne=1, ebar=3, gate='none', dstep=1, dslot=1, bpoll=1, prot=0, tw2=1,
            bdepth=2, dearly=2, aA=[6, 0], apoll=[6, 0], lbar=21, rtid=1)

def counts(A, lab, tmo, sd='s[48:51]'):
    A(f's_mov_b32 s19, 0x40000\n{lab}:')
    A(f'buffer_load_dword v3, v4, {sd}, 0 offen sc1')
    A(f's_sub_u32 s19, s19, 1\ns_cbranch_scc1 {tmo}\ns_waitcnt vmcnt(0)')
    A('v_readlane_b32 s47, v3, 0\ns_mov_b32 s46, s47')
    for x in range(1, 8): A(f'v_readlane_b32 s11, v3, {x}\ns_add_u32 s46, s46, s11')

def gen_main(A, cfg):
    workers.LASTD[0] = cfg.get('lastpoll', 1)
    workers.ONE[0] = cfg.get('one', 0)
    workers.PREV[0] = cfg.get('prev', 0)
    workers.BACK[0] = f's_sleep {cfg["back"]}\n' if cfg.get('back') else ''
    A(f"""M_start:
    s_cmp_ge_u32 s2, 256
    s_cbranch_scc1 M_exit0
    s_load_dwordx4 s[28:31], s[0:1], 0
    s_load_dwordx8 s[36:43], s[0:1], 16
    s_load_dwordx2 s[4:5], s[0:1], 112
    s_load_dwordx2 s[48:49], s[0:1], 104
    s_getreg_b32 s54, hwreg(HW_REG_XCC_ID, 0, 3)
    v_lshrrev_b32 v1, 6, v0
    v_readfirstlane_b32 s9, v1
    v_and_b32 v0, 63, v0
    s_waitcnt lgkmcnt(0)
    s_mov_b32 s6, {WS_BYTES}
    s_mov_b32 s7, 0x20000
    s_mov_b32 s50, 256
    s_mov_b32 s51, 0x20000""")
    if cfg.get('fakexcc'): A(cfg['fakexcc'])
    if cfg.get('ds'):
        A('s_mov_b32 s3, s2'); rec.dstamp(A, cfg, 9, 0, 3)
    A("""s_mov_b32 s12, s54
    v_mov_b32 v2, 0x27c00
    s_cmp_lg_u32 s9, 0
    s_cbranch_scc1 M_noat
    v_mov_b32 v3, 1
    s_lshl_b32 s11, s12, 5
    s_mov_b64 exec, 1
    buffer_atomic_add v3, off, s[48:51], s11 sc0 sc1
    s_mov_b64 exec, -1
M_noat:""")
    nt = 0
    if cfg.get('codetouch', 1):
        A('s_getpc_b64 s[20:21]\nM_pc:\ns_sub_u32 s20, s20, M_pc-M_start\ns_subb_u32 s21, s21, 0\ns_mov_b32 s22, M_end-M_start\ns_mov_b32 s23, 0x20000')
        A('s_lshr_b32 s11, s2, 3\ns_lshl_b32 s11, s11, 2\ns_add_u32 s11, s11, s9\ns_lshl_b32 s11, s11, 10\nv_lshlrev_b32 v5, 4, v0')
        A('buffer_load_dword v251, v5, s[20:23], s11 offen'); nt += 1
    if cfg.get('pretouch', 1):
        A(f's_lshl_b32 s11, s2, 2\ns_add_u32 s11, s11, s9\ns_mul_i32 s11, s11, 3584\nv_lshlrev_b32 v5, 7, v0\nv_mov_b32 v6, {OOB}')
        A('v_cmp_gt_u32 vcc, 28, v0\nv_cndmask_b32 v5, v6, v5, vcc')
        for k, p in enumerate(cfg.get('order', (40, 42))):
            prep.srd(A, 20, p, prep.W_BYTES)
            A(f'buffer_load_dword v{252+k}, v5, s[20:23], s11 offen'); nt += 1
    A(f"""s_cmp_lg_u32 s9, 0
    s_cbranch_scc1 M_ranked
    s_waitcnt vmcnt({nt})
    v_readfirstlane_b32 s3, v3
    v_and_b32 v4, 7, v0
    v_lshlrev_b32 v4, 5, v4
    s_lshl_b32 s11, s12, 5
    s_cmp_lt_u32 s3, 32
    s_cselect_b32 s15, 0, 1
    s_add_u32 s3, s3, s11
    s_cmp_eq_u32 s15, 0
    s_cbranch_scc1 M_have""")
    A("""v_mov_b32 v3, 1
    s_mov_b64 exec, 1
    buffer_atomic_add v3, off, s[48:51], 0 offset:4 sc0 sc1
    s_waitcnt vmcnt(0)
    s_mov_b64 exec, -1
    v_readfirstlane_b32 s15, v3""")
    counts(A, 'M_ovf', 'M_exit0')
    A('s_cmp_lt_u32 s46, 256\ns_cbranch_scc1 M_ovf_again\ns_mov_b32 s3, 0')
    for x in range(8):
        A(f'v_readlane_b32 s11, v3, {x}\ns_min_u32 s11, s11, 32\ns_sub_u32 s16, 32, s11')
        A(f's_cmp_lt_u32 s15, s16\ns_cbranch_scc0 M_nx{x}\ns_add_u32 s3, s11, s15\ns_add_u32 s3, s3, {32*x}\ns_branch M_have\nM_nx{x}:\ns_sub_u32 s15, s15, s16')
    A('M_exit0:\ns_endpgm\nM_ovf_again:')
    A('s_branch M_ovf')
    A("""M_have:
    v_mov_b32 v3, s3
    ds_write_b32 v2, v3
    s_waitcnt lgkmcnt(0)
M_ranked:
    s_barrier
    ds_read_b32 v3, v2
    s_waitcnt lgkmcnt(0)
    v_readfirstlane_b32 s3, v3""")
    rec.tline(A, dict(cfg, tlreg=3), 0)
    rec.dstamp(A, cfg, 3, 0, 3)
    A('s_barrier\ns_cmp_lt_u32 s3, 32\ns_cbranch_scc1 M_rec\ns_sub_u32 s10, s3, 32')
    prep.gen_gemm(A, cfg, 'M_exit0')
    A("""s_sub_u32 s11, s3, 32
    s_and_b32 s10, s11, 63
    s_lshr_b32 s11, s11, 6
    s_cmp_eq_u32 s11, 2
    s_cbranch_scc1 M_F
    s_cmp_eq_u32 s11, 3
    s_cbranch_scc1 M_T
    s_and_b32 s12, s10, 3
    s_lshr_b32 s10, s10, 2
    s_cmp_eq_u32 s11, 1
    s_cbranch_scc1 M_Q""")
    workers.gen_V(A, cfg, 'WV', 'M_exit')
    A('M_Q:'); workers.gen_Q(A, cfg, 'WQ', 'M_exit')
    A('M_T:'); workers.gen_T(A, cfg, 'WT', 'M_exit')
    A('M_F:'); workers.gen_F(A, cfg, 'WF', 'M_exit')
    A('M_exit:\ns_endpgm')
    def mode(lab):
        A(f'v_mov_b32 v2, 0x27c00\ns_cmp_lg_u32 s9, 0\ns_cbranch_scc1 {lab}_ss')
        A('v_and_b32 v4, 7, v0\nv_lshlrev_b32 v4, 5, v4')
        counts(A, f'{lab}_cnt', 'R_exit')
        A(f's_mov_b32 s30, 0\ns_cmp_ge_u32 s47, 32\ns_cbranch_scc1 {lab}_md\ns_mov_b32 s30, 1\ns_cmp_ge_u32 s46, 256\ns_cbranch_scc1 {lab}_md')
        A(f's_branch {lab}_cnt\n{lab}_md:')
        A(f'v_mov_b32 v3, s30\nds_write_b32 v2, v3\ns_waitcnt lgkmcnt(0)\n{lab}_ss:\ns_barrier')
        A(f'ds_read_b32 v3, v2\ns_waitcnt lgkmcnt(0)\nv_readfirstlane_b32 s30, v3')
    def start_sync(w, lab):
        if cfg.get('tl'): A('s_waitcnt vmcnt(0)')
        rec.tline(A, dict(cfg, tlreg=3), 1)
        if lab.endswith('l'):
            A(f'v_min_u32 v4, 1, v0\nv_lshlrev_b32 v4, 7, v4\ns_mov_b32 s11, {FVX}\ns_mov_b32 s19, 0x40000')
            A(f'{lab}_fv:\nbuffer_load_dword v3, v4, s[4:7], s11 offen sc1\ns_sub_u32 s19, s19, 1\ns_cbranch_scc1 R_exit')
            A(f's_waitcnt vmcnt(0)\nv_cmp_gt_u32 vcc, 16, v3\ns_cbranch_vccnz {lab}_fv')
            if cfg.get('tl'):
                A('s_sub_u32 s9, s9, 2'); rec.tline(A, dict(cfg, tlreg=3), 3); A('s_add_u32 s9, s9, 2')
        elif cfg.get('warm', 1) and lab == 'RA':
            A(f's_lshl_b32 s11, s3, 2\ns_add_u32 s11, s11, s9\ns_lshl_b32 s11, s11, 11\ns_add_u32 s11, s11, {MS}\nv_lshlrev_b32 v4, 5, v0')
            A('buffer_load_dword v3, v4, s[4:7], s11 offen sc1')
        A(f's_mov_b32 s19, {rec.SPIN_MAX}')
        rec.tline(A, dict(cfg, tlreg=3), 2)
        rec.dstamp(A, cfg, 4, 0, 3); rec.dstamp(A, cfg, 5, 31, 3)
    c = dict(BEST); c.update(cfg)
    c.setdefault('start_sync', start_sync); c.setdefault('finish', lambda w, lab: (rec.tline(A, dict(cfg, tlreg=3, tlclk=1), 4), rec.dstamp(A, cfg, 6, 0, 3)))
    def loop_top(w, lab):
        if cfg.get('ds'):
            A(f's_cmp_lg_u32 s8, 2\ns_cbranch_scc1 {lab}_ds2'); rec.dstamp(A, cfg, 12, 0, 3); A(f'{lab}_ds2:')
        if cfg.get('tl'):
            for k, st in zip((3, 5, 6), cfg.get('tlsteps', (1, 16, 32))):
                A(f's_cmp_lg_u32 s8, {st}\ns_cbranch_scc1 {lab}_lt{k}'); rec.tline(A, dict(cfg, tlreg=3, tlclk=1), k); A(f'{lab}_lt{k}:')
    c.setdefault('loop_top', loop_top)
    A('M_rec:\ns_mov_b32 s10, s3')
    prep.gen_misc(A, cfg, 'R_exit')
    from expr import V, Sg, sel_lt
    l = V('v0')
    def touch(lab, sbase, n):
        A(f'v_lshlrev_b32 v4, 7, v0')
        for k in range(n):
            A(f'buffer_load_dword v30, v4, s[4:7], {sbase} offen\ns_add_u32 {sbase}, {sbase}, 8192')
    def pre_a():
        nb = cfg.get('helpb', 0)
        if nb:
            hh = (Sg('s10') >> 2) * 4 + 2 + ((Sg('s10') >> 1) & 1)
            rec.wait_lanes(A, 'RA_wb', l * 0 + FB + hh * 128, l * 0 + 14, 'R_exit')
            A(f's_lshr_b32 s11, s10, 2\ns_lshl_b32 s11, s11, 2\ns_add_u32 s11, s11, 2\ns_bfe_u32 s33, s10, 0x10001\ns_add_u32 s11, s11, s33\ns_mul_i32 s11, s11, {14*28672}')
            A(f's_and_b32 s33, s10, 1\ns_lshl_b32 s33, s33, 2\ns_add_u32 s33, s33, s9\ns_mul_i32 s33, s33, 50176\ns_add_u32 s11, s11, s33\ns_add_u32 s33, s11, {BF}')
            touch('RA_tb', 's33', nb)
        rec.wait_lanes(A, 'RA_wa', sel_lt(l, 1, FA + Sg('s10') * 128, FX), sel_lt(l, 1, 14, 32), 'R_exit')
    c['pre_a'] = pre_a
    def mid_weights(spare):
        if cfg.get('codetouch2', 0):
            A('s_lshl_b32 s33, s3, 2\ns_add_u32 s33, s33, s9')
            rec.code_touch(A, 'M_rec', 'M_end', 's33', 3, 'v2', spare)
    c['mid_weights'] = mid_weights
    c['pre_b'] = lambda: rec.wait_lanes(A, 'RB_wb', sel_lt(l, 16, FB + l * 128, FX), sel_lt(l, 16, 14, 32), 'R_exit')
    mode('RM')
    A('s_and_b32 s10, s3, 15\ns_cmp_ge_u32 s3, 16\ns_cbranch_scc1 M_B')
    rec.gen_A(A, c, 'RA', 'R_exit')
    A('R_exit:\ns_endpgm\nM_B:')
    rec.gen_B(A, c, 'RB', 'R_exit')
    A('M_end:')

def generate(cfg={}, header=''):
    K = Asm(); gen_main(K, cfg)
    return build.assemble([(build.NAME + '_kernel', K.lines, 256, 256, 163840, 512, 256)], header)

if __name__ == '__main__':
    ref = open(f'cdna_kernels/{build.NAME}.s.ref').read().split('\n')
    header = '\n'.join(l for l in ref if l.startswith(';') and '@launch' not in l and 'Override' not in l and 'grid=ceil' not in l) + '\n'
    import sys, json
    if len(sys.argv) > 2: open(sys.argv[1], 'w').write(generate(json.loads(sys.argv[2]), header))
    else: open(f'cdna_kernels/{build.NAME}.s', 'w').write(generate({}, header))
```

```python
from asmdsl import Asm
from layout import *
import rec, workers, prep, build

BEST = dict(xpos=[11, 15, 20, 25, 99, 99, 99, 99], hu2pos=6, ew=128, ne=1, ebar=3, gate='none', dstep=1, dslot=1, bpoll=1, prot=0, tw2=1,
            bdepth=2, dearly=2, aA=[6, 0], apoll=[6, 0], lbar=21, rtid=1)

def counts(A, lab, tmo, sd='s[48:51]'):
    A(f's_mov_b32 s19, 0x40000\n{lab}:')
    A(f'buffer_load_dword v3, v4, {sd}, 0 offen sc1')
    A(f's_sub_u32 s19, s19, 1\ns_cbranch_scc1 {tmo}\ns_waitcnt vmcnt(0)')
    A('v_readlane_b32 s47, v3, 0\ns_mov_b32 s46, s47')
    for x in range(1, 8): A(f'v_readlane_b32 s11, v3, {x}\ns_add_u32 s46, s46, s11')

def gen_main(A, cfg):
    workers.LASTD[0] = cfg.get('lastpoll', 1)
    workers.ONE[0] = cfg.get('one', 0)
    workers.PREV[0] = cfg.get('prev', 0)
    workers.BACK[0] = f's_sleep {cfg["back"]}\n' if cfg.get('back') else ''
    A(f"""M_start:
    s_cmp_ge_u32 s2, 256
    s_cbranch_scc1 M_exit0
    s_load_dwordx4 s[28:31], s[0:1], 0
    s_load_dwordx8 s[36:43], s[0:1], 16
    s_load_dwordx2 s[4:5], s[0:1], 112
    s_load_dwordx2 s[48:49], s[0:1], 104
    s_getreg_b32 s54, hwreg(HW_REG_XCC_ID, 0, 3)
    v_lshrrev_b32 v1, 6, v0
    v_readfirstlane_b32 s9, v1
    v_and_b32 v0, 63, v0
    s_waitcnt lgkmcnt(0)
    s_mov_b32 s6, {WS_BYTES}
    s_mov_b32 s7, 0x20000
    s_mov_b32 s50, 256
    s_mov_b32 s51, 0x20000""")
    if cfg.get('fakexcc'): A(cfg['fakexcc'])
    if cfg.get('ds'):
        A('s_mov_b32 s3, s2'); rec.dstamp(A, cfg, 9, 0, 3)
    A("""s_mov_b32 s12, s54
    v_mov_b32 v2, 0x27c00
    s_cmp_lg_u32 s9, 0
    s_cbranch_scc1 M_noat
    v_mov_b32 v3, 1
    s_lshl_b32 s11, s12, 5
    s_mov_b64 exec, 1
    buffer_atomic_add v3, off, s[48:51], s11 sc0 sc1
    s_mov_b64 exec, -1
M_noat:""")
    nt = 0
    if cfg.get('codetouch', 1):
        A('s_getpc_b64 s[20:21]\nM_pc:\ns_sub_u32 s20, s20, M_pc-M_start\ns_subb_u32 s21, s21, 0\ns_mov_b32 s22, M_end-M_start\ns_mov_b32 s23, 0x20000')
        A('s_lshr_b32 s11, s2, 3\ns_lshl_b32 s11, s11, 2\ns_add_u32 s11, s11, s9\ns_lshl_b32 s11, s11, 10\nv_lshlrev_b32 v5, 4, v0')
        A('buffer_load_dword v251, v5, s[20:23], s11 offen'); nt += 1
    if cfg.get('tlbtouch'):
        k = cfg['tlbtouch']
        A(f's_lshl_b32 s11, s9, {k+6}\nv_lshlrev_b32 v5, {k}, v0\nbuffer_load_dword v250, v5, s[4:7], s11 offen'); nt += 1
    if cfg.get('pretouch', 1):
        A(f's_lshl_b32 s11, s2, 2\ns_add_u32 s11, s11, s9\ns_mul_i32 s11, s11, 3584\nv_lshlrev_b32 v5, 7, v0\nv_mov_b32 v6, {OOB}')
        A('v_cmp_gt_u32 vcc, 28, v0\nv_cndmask_b32 v5, v6, v5, vcc')
        for k, p in enumerate(cfg.get('order', (40, 42))):
            prep.srd(A, 20, p, prep.W_BYTES)
            A(f'buffer_load_dword v{252+k}, v5, s[20:23], s11 offen'); nt += 1
    A(f"""s_cmp_lg_u32 s9, 0
    s_cbranch_scc1 M_ranked
    s_waitcnt vmcnt({nt})
    v_readfirstlane_b32 s3, v3
    v_and_b32 v4, 7, v0
    v_lshlrev_b32 v4, 5, v4
    s_lshl_b32 s11, s12, 5
    s_cmp_lt_u32 s3, 32
    s_cselect_b32 s15, 0, 1
    s_add_u32 s3, s3, s11
    s_cmp_eq_u32 s15, 0
    s_cbranch_scc1 M_have""")
    A("""v_mov_b32 v3, 1
    s_mov_b64 exec, 1
    buffer_atomic_add v3, off, s[48:51], 0 offset:4 sc0 sc1
    s_waitcnt vmcnt(0)
    s_mov_b64 exec, -1
    v_readfirstlane_b32 s15, v3""")
    counts(A, 'M_ovf', 'M_exit0')
    A('s_cmp_lt_u32 s46, 256\ns_cbranch_scc1 M_ovf_again\ns_mov_b32 s3, 0')
    for x in range(8):
        A(f'v_readlane_b32 s11, v3, {x}\ns_min_u32 s11, s11, 32\ns_sub_u32 s16, 32, s11')
        A(f's_cmp_lt_u32 s15, s16\ns_cbranch_scc0 M_nx{x}\ns_add_u32 s3, s11, s15\ns_add_u32 s3, s3, {32*x}\ns_branch M_have\nM_nx{x}:\ns_sub_u32 s15, s15, s16')
    A('M_exit0:\ns_endpgm\nM_ovf_again:')
    A('s_branch M_ovf')
    A("""M_have:
    v_mov_b32 v3, s3
    ds_write_b32 v2, v3
    s_waitcnt lgkmcnt(0)
M_ranked:
    s_barrier
    ds_read_b32 v3, v2
    s_waitcnt lgkmcnt(0)
    v_readfirstlane_b32 s3, v3""")
    rec.tline(A, dict(cfg, tlreg=3), 0)
    rec.dstamp(A, cfg, 3, 0, 3)
    A('s_barrier\ns_cmp_lt_u32 s3, 32\ns_cbranch_scc1 M_rec\ns_sub_u32 s10, s3, 32')
    prep.gen_gemm(A, cfg, 'M_exit0')
    A("""s_sub_u32 s11, s3, 32
    s_and_b32 s10, s11, 63
    s_lshr_b32 s11, s11, 6
    s_cmp_eq_u32 s11, 2
    s_cbranch_scc1 M_F
    s_cmp_eq_u32 s11, 3
    s_cbranch_scc1 M_T
    s_and_b32 s12, s10, 3
    s_lshr_b32 s10, s10, 2
    s_cmp_eq_u32 s11, 1
    s_cbranch_scc1 M_Q""")
    workers.gen_V(A, cfg, 'WV', 'M_exit')
    A('M_Q:'); workers.gen_Q(A, cfg, 'WQ', 'M_exit')
    A('M_T:'); workers.gen_T(A, cfg, 'WT', 'M_exit')
    A('M_F:'); workers.gen_F(A, cfg, 'WF', 'M_exit')
    A('M_exit:\ns_endpgm')
    def mode(lab):
        A(f'v_mov_b32 v2, 0x27c00\ns_cmp_lg_u32 s9, 0\ns_cbranch_scc1 {lab}_ss')
        A('v_and_b32 v4, 7, v0\nv_lshlrev_b32 v4, 5, v4')
        counts(A, f'{lab}_cnt', 'R_exit')
        A(f's_mov_b32 s30, 0\ns_cmp_ge_u32 s47, 32\ns_cbranch_scc1 {lab}_md\ns_mov_b32 s30, 1\ns_cmp_ge_u32 s46, 256\ns_cbranch_scc1 {lab}_md')
        A(f's_branch {lab}_cnt\n{lab}_md:')
        A(f'v_mov_b32 v3, s30\nds_write_b32 v2, v3\ns_waitcnt lgkmcnt(0)\n{lab}_ss:\ns_barrier')
        A(f'ds_read_b32 v3, v2\ns_waitcnt lgkmcnt(0)\nv_readfirstlane_b32 s30, v3')
    def start_sync(w, lab):
        if cfg.get('tl'): A('s_waitcnt vmcnt(0)')
        rec.tline(A, dict(cfg, tlreg=3), 1)
        if lab.endswith('l'):
            A(f'v_min_u32 v4, 1, v0\nv_lshlrev_b32 v4, 7, v4\ns_mov_b32 s11, {FVX}\ns_mov_b32 s19, 0x40000')
            A(f'{lab}_fv:\nbuffer_load_dword v3, v4, s[4:7], s11 offen sc1\ns_sub_u32 s19, s19, 1\ns_cbranch_scc1 R_exit')
            A(f's_waitcnt vmcnt(0)\nv_cmp_gt_u32 vcc, 16, v3\ns_cbranch_vccnz {lab}_fv')
            if cfg.get('tl'):
                A('s_sub_u32 s9, s9, 2'); rec.tline(A, dict(cfg, tlreg=3), 3); A('s_add_u32 s9, s9, 2')
        elif cfg.get('warm', 1) and lab == 'RA':
            A(f's_lshl_b32 s11, s3, 2\ns_add_u32 s11, s11, s9\ns_lshl_b32 s11, s11, 11\ns_add_u32 s11, s11, {MS}\nv_lshlrev_b32 v4, 5, v0')
            A('buffer_load_dword v3, v4, s[4:7], s11 offen sc1')
        A(f's_mov_b32 s19, {rec.SPIN_MAX}')
        rec.tline(A, dict(cfg, tlreg=3), 2)
        rec.dstamp(A, cfg, 4, 0, 3); rec.dstamp(A, cfg, 5, 31, 3)
    c = dict(BEST); c.update(cfg)
    c.setdefault('start_sync', start_sync); c.setdefault('finish', lambda w, lab: (rec.tline(A, dict(cfg, tlreg=3, tlclk=1), 4), rec.dstamp(A, cfg, 6, 0, 3)))
    def loop_top(w, lab):
        if cfg.get('ds'):
            A(f's_cmp_lg_u32 s8, 2\ns_cbranch_scc1 {lab}_ds2'); rec.dstamp(A, cfg, 12, 0, 3); A(f'{lab}_ds2:')
        if cfg.get('tl'):
            for k, st in zip((3, 5, 6), cfg.get('tlsteps', (1, 16, 32))):
                A(f's_cmp_lg_u32 s8, {st}\ns_cbranch_scc1 {lab}_lt{k}'); rec.tline(A, dict(cfg, tlreg=3, tlclk=1), k); A(f'{lab}_lt{k}:')
    c.setdefault('loop_top', loop_top)
    A('M_rec:\ns_mov_b32 s10, s3')
    prep.gen_misc(A, cfg, 'R_exit')
    from expr import V, Sg, sel_lt
    l = V('v0')
    def touch(lab, sbase, n):
        A(f'v_lshlrev_b32 v4, 7, v0')
        for k in range(n):
            A(f'buffer_load_dword v30, v4, s[4:7], {sbase} offen\ns_add_u32 {sbase}, {sbase}, 8192')
    def pre_a():
        nb = cfg.get('helpb', 0)
        if nb:
            hh = (Sg('s10') >> 2) * 4 + 2 + ((Sg('s10') >> 1) & 1)
            rec.wait_lanes(A, 'RA_wb', l * 0 + FB + hh * 128, l * 0 + 14, 'R_exit')
            A(f's_lshr_b32 s11, s10, 2\ns_lshl_b32 s11, s11, 2\ns_add_u32 s11, s11, 2\ns_bfe_u32 s33, s10, 0x10001\ns_add_u32 s11, s11, s33\ns_mul_i32 s11, s11, {14*28672}')
            A(f's_and_b32 s33, s10, 1\ns_lshl_b32 s33, s33, 2\ns_add_u32 s33, s33, s9\ns_mul_i32 s33, s33, 50176\ns_add_u32 s11, s11, s33\ns_add_u32 s33, s11, {BF}')
            touch('RA_tb', 's33', nb)
        rec.wait_lanes(A, 'RA_wa', sel_lt(l, 1, FA + Sg('s10') * 128, FX), sel_lt(l, 1, 14, 32), 'R_exit')
    c['pre_a'] = pre_a
    def mid_weights(spare):
        if cfg.get('codetouch2', 1):
            A('s_lshl_b32 s33, s3, 2\ns_add_u32 s33, s33, s9')
            rec.code_touch(A, 'M_rec', 'M_end', 's33', 3, 'v2', spare)
    c['mid_weights'] = mid_weights
    c['pre_b'] = lambda: rec.wait_lanes(A, 'RB_wb', sel_lt(l, 16, FB + l * 128, FX), sel_lt(l, 16, 14, 32), 'R_exit')
    mode('RM')
    A('s_and_b32 s10, s3, 15\ns_cmp_ge_u32 s3, 16\ns_cbranch_scc1 M_B')
    rec.gen_A(A, c, 'RA', 'R_exit')
    A('R_exit:\ns_endpgm\nM_B:')
    rec.gen_B(A, c, 'RB', 'R_exit')
    A('M_end:')

def generate(cfg={}, header=''):
    K = Asm(); gen_main(K, cfg)
    return build.assemble([(build.NAME + '_kernel', K.lines, 256, 256, 163840, 512, 256)], header)

if __name__ == '__main__':
    ref = open(f'cdna_kernels/{build.NAME}.s.ref').read().split('\n')
    header = '\n'.join(l for l in ref if l.startswith(';') and '@launch' not in l and 'Override' not in l and 'grid=ceil' not in l) + '\n'
    import sys, json
    if len(sys.argv) > 2: open(sys.argv[1], 'w').write(generate(json.loads(sys.argv[2]), header))
    else: open(f'cdna_kernels/{build.NAME}.s', 'w').write(generate({}, header))
```

```python
import sys, json
sys.path.insert(0, 'gen'); sys.path.insert(0, 'bench')
from common import *
import build as B
from layout import *
path = sys.argv[1]; n = int(sys.argv[2])
KN = B.NAME + '_kernel'
co = build(open(path).read(), KN, 15, 'stress', lists=True)
if ON_GPU:
    from model import *
    names = ['x', 'mem0', 'Wq', 'Wk', 'Wv', 'Wo', None, 'x', 'w1', 'b1', 'w2', 'b2']
    sets = []
    for seed, sc in ((0, (1.0, 20.0)), (1, (0.05, 1.0)), (2, (3.0, 40.0))):
        d = make_inputs(seed, *sc); ref, _ = reference(d)
        sets.append((d, ref, [DeviceBuffer.from_numpy(f2bf(d[k]) if k else np.array([32], dtype=np.int32)) for k in names]))
    out = DeviceBuffer(S * D * 2); dbg = DeviceBuffer(4096); ws = DeviceBuffer(WS_BYTES)
    k = AsmKernel(co, KN)
    rng = np.random.default_rng(0)
    first = [None] * len(sets); bad = 0
    for it in range(n):
        i = int(rng.integers(len(sets))); d, ref, bufs = sets[i]
        mode = int(rng.integers(4))
        if mode == 0: memset(ws, 0xff, 0x4000000)
        elif mode == 1: put_at(ws, MX, rng.integers(0, 2**32, 0x140000 // 4, dtype=np.uint32))
        memset(out, 0xff if it & 1 else 0x11); memset(dbg, 0); sync()
        ka = pack_ptr_kernargs([b.ptr for b in bufs] + [out.ptr, dbg.ptr, ws.ptr])
        k.launch((256 + int(rng.integers(9)),1,1), (256,1,1), ka, 163840, numbering=int(rng.integers(3))); sync()
        got = out.to_numpy(np.uint16, (S, D))
        if first[i] is None:
            first[i] = got
            g = bf2f(got); print('set', i, 'rel', np.linalg.norm(g - ref) / np.linalg.norm(ref), 'delta rel', np.linalg.norm(g - ref) / np.linalg.norm(ref - d['x']))
        elif not (got == first[i]).all():
            bad += 1; print('MISMATCH it', it, 'set', i, 'mode', mode, 'count', (got != first[i]).sum())
    print('launches', n, 'bad', bad)
```

```python
from asmdsl import Asm
from expr import X, V, Sg, Emitter, ev, sel_lt
from layout import *
from rec import code_touch, dstamp, tline, wait_lanes, Wv, vr, wquad, wreg, smf, zero, sentinel_check, SRD
from prep import f32, mfma, srd
import math

sW, sR = 's9', 's10'
sSPIN = 's19'
WSPIN = 0x40000
BACK = ['']
PREV = [1]
ONE = [0]
LASTD = [1]
NV = 4
NQ = 4

def wait_flag(w, lab, soff, target, tmo, vt='v2'):
    w(f's_cmp_lg_u32 {sW}, 0\ns_cbranch_scc1 {lab}_go\ns_mov_b32 {sSPIN}, {WSPIN}')
    w(f'{lab}:\nbuffer_load_dword {vt}, off, {SRD}, {soff} sc1')
    w(f's_sub_u32 {sSPIN}, {sSPIN}, 1\ns_cbranch_scc1 {tmo}\n{BACK[0]}s_waitcnt vmcnt(0)')
    w(f'v_cmp_gt_u32 vcc, {target}, {vt}\ns_cbranch_vccnz {lab}')
    w(f'{lab}_go:\ns_barrier')

def signal(w, lab, soff, vt='v2'):
    w('s_waitcnt vmcnt(0)\ns_barrier'); w.vm = []
    w(f's_cmp_lg_u32 {sW}, 0\ns_cbranch_scc1 {lab}\nv_mov_b32 {vt}, 1\ns_mov_b64 exec, 1')
    w(f'buffer_atomic_add {vt}, off, {SRD}, {soff} sc1\ns_mov_b64 exec, -1\n{lab}:')

def defer(A, lab, tmo):
    A(f's_cmp_lg_u32 {sW}, 0\ns_cbranch_scc1 {lab}_go\ns_mov_b32 {sSPIN}, {WSPIN}\ns_mov_b32 s11, {MX + 1024}')
    A(f'{lab}:\nbuffer_load_dword v1, off, {SRD}, s11 sc1')
    A(f's_sub_u32 {sSPIN}, {sSPIN}, 1\ns_cbranch_scc1 {tmo}\ns_waitcnt vmcnt(0)\nv_cmp_eq_u32 vcc, -1, v1\ns_cbranch_vccnz {lab}')
    A(f'{lab}_go:\ns_barrier')

def load_w(w, addr_of, ps=range(14)):
    n = 0
    for p in ps:
        for tl in range(7):
            va, pre = addr_of(tl, p)
            w(pre)
            w.vmem(f'buffer_load_dwordx4 {wquad(tl*7 + (p>>1), p&1)}, {va}, {SRD}, s11 offen', f'W{p}')
            n += 1
            if n % 14 == 0 and len(w.vm) > 44: w('s_waitcnt vmcnt(32)'); w.vm = w.vm[-32:]

XB = 56
def xq(p, tt): return XB + ((p & 3) * 2 + tt) * 4
def acc2(tl, tt): return (tl * 2 + tt) * 4
sXB, sXN = 's20', 's21'
vL16 = 'v119'

def x_load(w, p, base):
    for tt in range(2):
        off = p * 1024 + tt * 14336
        w(f's_add_u32 s11, {base}, {off & ~4095}')
        w.vmem(f'buffer_load_dwordx4 {vr(xq(p,tt),4)}, {vL16}, {SRD}, s11 offen offset:{off & 4095}', f'X{p}')

def seg_gemm(w, w_is_a, wload=None):
    for p in range(14):
        w.wait(vm=f'X{p}'); w.wait(vm=f'W{p}')
        for tl in range(7):
            for tt in range(2):
                wq = wquad(tl * 7 + (p >> 1), p & 1); xx = vr(xq(p, tt), 4)
                a, b = (wq, xx) if w_is_a else (xx, wq)
                w(mfma(vr(acc2(tl, tt), 4), a, b, 0 if p == 0 else None))
        if p + 4 < 14: x_load(w, p + 4, sXB)
        if wload and p + 6 < 14: wload(p + 6)
    for p in range(4): x_load(w, p, sXN)

def mx_wait(w, lab, regs, loads, tmo, tmp, light_always=False):
    sl = 's15' if light_always else 's26'
    if light_always: pass
    elif PREV[0]: w(f's_sub_u32 s26, s15, 7168\ns_max_u32 s26, s26, {MX}')
    else: w('s_mov_b32 s26, s15')
    w(f's_mov_b32 {sSPIN}, {WSPIN}')
    if LASTD[0] and not light_always:
        w(f's_cmp_eq_u32 s8, {NSEG-1}\ns_cselect_b32 s11, 7168, 0\ns_sub_u32 s26, s26, s11')
    if ONE[0]: w(f's_cmp_lg_u32 {sW}, 3\ns_cbranch_scc1 {lab}_2')
    w(f'{lab}_1:\nbuffer_load_dword {tmp}, off, {SRD}, {sl} sc1')
    w(f's_sub_u32 {sSPIN}, {sSPIN}, 1\ns_cbranch_scc1 {tmo}\n{BACK[0]}s_waitcnt vmcnt(0)\nv_cmp_eq_u32 vcc, -1, {tmp}\ns_cbranch_vccnz {lab}_1')
    if ONE[0]: w(f'{lab}_2:\ns_barrier')
    w(f'{lab}:')
    loads()
    w(f's_sub_u32 {sSPIN}, {sSPIN}, 1\ns_cbranch_scc1 {tmo}\n{BACK[0]}s_waitcnt vmcnt(0)'); w.vm = []
    sentinel_check(w, regs, tmp)
    w(f's_cbranch_vccnz {lab}')

def gen_V(A, cfg, lab, tmo):
    w = Wv(A, {})
    em = Emitter(A, [f'v{i}' for i in range(2, 30)])
    l = V('v0'); g = l >> 4; n = l & 15; ww = Sg(sW); h = Sg(sR)
    em.emit(l & 63, 'v0')
    em.emit(l * 16, vL16)
    em.emit(sel_lt(l & 2, 1, 0x44444444, 0xEEEEEEEE), 'v118')
    em.emit(g * 7168 + (ww * 112 + n) * 16, 'v117')
    em.emit((ww * 112 + n) * 16 + g * 4, 'v116')
    A(f's_mul_i32 s13, {sR}, {14*28672}\ns_add_u32 s13, s13, {BF}')
    A(f's_mul_i32 {sXB}, s12, 28672' + (f'\ns_add_u32 {sXB}, {sXB}, {XF}' if XF else ''))
    wait_lanes(A, f'{lab}_wb', sel_lt(l, 1, FB + h * 128, FX), sel_lt(l, 1, 14, 32), tmo)
    waddr = lambda tl, p: ('v117', f's_add_u32 s11, s13, {p*28672 + tl*256}')
    c2 = dict(cfg, tlreg=97)
    A(f's_mov_b32 s8, s12\ns_mul_i32 s14, {sR}, 28672')
    if cfg.get('vfirst', 1):
        for p in range(4): x_load(w, p, sXB)
        load_w(w, waddr, range(6))
        A(f's_add_u32 {sXN}, {sXB}, {NV*28672}')
        seg_gemm(w, False, lambda p: load_w(w, waddr, [p]))
        tline(A, c2, 1)
        A(f's_branch {lab}_epi')
    else:
        load_w(w, waddr)
        if cfg.get('tl'): A('s_waitcnt vmcnt(0)')
        tline(A, c2, 1)
        for p in range(4): x_load(w, p, sXB)
    A(f'{lab}_loop:')
    A(f's_add_u32 {sXN}, {sXB}, {NV*28672}')
    w.vm = [f'X{p}' for p in range(4) for _ in range(2)]
    seg_gemm(w, False)
    A(f'{lab}_epi:')
    A(f's_mul_i32 s15, s8, {VX_SEG}\ns_add_u32 s15, s15, s14\ns_add_u32 s15, s15, {VXF}')
    for tl in range(7):
        o = 88 + 4 * (tl & 1)
        for tt in range(2):
            a = acc2(tl, tt)
            A(f'v_cvt_pk_bf16_f32 v{o+2*tt}, v{a}, v{a+1}\nv_cvt_pk_bf16_f32 v{o+2*tt+1}, v{a+2}, v{a+3}')
        A(f'buffer_store_dwordx4 {vr(o,4)}, v117, {SRD}, s15 offen offset:{tl*256} sc1')
    A(f's_lshl_b32 s15, s8, 7\ns_add_u32 s15, s15, {FVX}')
    signal(w, f'{lab}_sig', 's15', 'v96')
    if cfg.get('tl'):
        A(f's_cmp_ge_u32 s8, {NV}\ns_cbranch_scc1 {lab}_tl1'); tline(A, c2, 2); A(f'{lab}_tl1:')
    A(f's_mov_b32 {sXB}, {sXN}\ns_add_u32 s8, s8, {NV}\ns_cmp_lt_u32 s8, {NSEG}\ns_cbranch_scc1 {lab}_loop')
    tline(A, c2, 3)
    if cfg.get('nopost'): A('s_endpgm')
    A(f's_mov_b32 s8, s12\ns_mul_i32 s14, {sR}, 7168')
    A(f'{lab}_mloop:')
    zero(w, 28, 28)
    A(f's_mul_i32 s15, s8, 7168\ns_add_u32 s15, s15, {MX}\ns_add_u32 s16, s15, 4096')
    def loads():
        for kk in range(7):
            A(f'buffer_load_dwordx4 {vr(4*kk,4)}, {vL16}, {SRD}, {"s15" if kk < 4 else "s16"} offen offset:{(kk&3)*1024} sc1')
    mx_wait(w, f'{lab}_mx', list(range(28)), loads, tmo, 'v96')
    for tl in range(7):
        for kk in range(7): A(smf(28 + 4 * tl, vr(4 * kk, 4), wreg(tl * 7 + kk), 'v118'))
    A(f's_mul_i32 s15, s8, {VM_SEG}\ns_add_u32 s15, s15, s14\ns_add_u32 s15, s15, {VM}')
    for tl in range(7):
        a = 28 + 4 * tl
        A(f'v_add_f32 v{a}, v{a}, v{a+2}\nv_add_f32 v{a+1}, v{a+1}, v{a+3}\nv_cvt_pk_bf16_f32 v{a}, v{a}, v{a+1}\nv_min_u32 v{a}, -2, v{a}')
        A(f'buffer_store_dword v{a}, v116, {SRD}, s15 offen offset:{tl*256} sc1')
    A(f's_lshl_b32 s15, s8, 7\ns_add_u32 s15, s15, {FVM}')
    signal(w, f'{lab}_sig2', 's15', 'v96')
    A(f's_add_u32 s8, s8, {NV}\ns_cmp_lt_u32 s8, {NSEG}\ns_cbranch_scc1 {lab}_mloop')
    tline(A, c2, 4)
    A('s_endpgm')

def gen_Q(A, cfg, lab, tmo):
    w = Wv(A, {})
    em = Emitter(A, [f'v{i}' for i in range(2, 30)])
    l = V('v0'); g = l >> 4; n = l & 15; ww = Sg(sW); h = Sg(sR)
    sQ = ['s22', 's23', 's24', 's25']
    em.emit(l & 63, 'v0')
    em.emit(l * 16, vL16)
    em.emit(l * 16 + (ww & 1) * 8, 'v118')
    i = n & 7
    em.emit(((g >> 1) * 16 + (i >> 1) * 4 + (i & 1)) * 16 + (g & 1) * 8, 'v117')
    em.emit(((g >> 1) * 16 + (i >> 1) * 4 + (i & 1)) * 16 + (g & 1) * 8 + (ww & 1) * 4, 'v116')
    em.emit(ww * 5120 + l * 16, 'v115')
    em.emit(ww * 1024 + l * 16, 'v114')
    em.emit(ww * 20480 + h * 1024 + l * 16, 'v113')
    em.emit(sel_lt(g, 2, ww * 20480 + ((h >> 2) + 16) * 1024 + ((h & 3) * 16 + n) * 16 + g * 8, OOB), 'v112')
    em.emit(n - g * 4, 'v111')
    A(f's_lshr_b32 s11, {sW}, 1\ns_mul_i32 s14, s11, 7\ns_and_b32 s15, {sW}, 1\ns_lshl_b32 s16, s15, 2\ns_add_u32 s16, s16, s14')
    for u in range(3): A(f's_add_u32 s17, s16, {u}\ns_lshl_b32 {sQ[u]}, s17, 10')
    A(f's_add_u32 s17, s14, 3\ns_lshl_b32 {sQ[3]}, s17, 10')
    A(f's_mul_i32 s13, {sR}, {28*14336}\ns_add_u32 s13, s13, {AF}\ns_mul_i32 s15, s15, 14336')
    def addr(tl, p):
        pre = f's_mul_i32 s11, {sQ[tl>>1]}, 28\ns_add_u32 s11, s11, s13\n'
        pre += f's_add_u32 s11, s11, {14336*(tl&1) + 1024*p}' if tl < 6 else f's_add_u32 s11, s11, s15\ns_add_u32 s11, s11, {1024*p}'
        return vL16, pre
    A(f's_mul_i32 {sXB}, s12, 28672' + (f'\ns_add_u32 {sXB}, {sXB}, {XF}' if XF else ''))
    if cfg.get('nopost'): A('s_endpgm')
    wait_lanes(A, f'{lab}_wa', sel_lt(l, 1, FA + h * 128, FX), sel_lt(l, 1, 14, 32), tmo)
    if cfg.get('deferq'): defer(A, f'{lab}_df', tmo)
    load_w(w, addr)
    w.vm = []
    for p in range(4): x_load(w, p, sXB)
    A('s_mov_b32 s8, s12')
    A(f'{lab}_loop:')
    A(f's_add_u32 {sXN}, {sXB}, {NQ*28672}')
    w.vm = [f'X{p}' for p in range(4) for _ in range(2)]
    seg_gemm(w, True)
    QQ = lambda u, tt: 16 * u + 4 * tt
    for u in range(4):
        for tt in range(2):
            for b in range(2 if u < 3 else 1):
                a = acc2(2 * u + b, tt)
                A(f'v_cvt_pk_bf16_f32 v{88+4*tt+2*b}, v{a}, v{a+1}\nv_cvt_pk_bf16_f32 v{89+4*tt+2*b}, v{a+2}, v{a+3}')
        for tt in range(2):
            for k in range(0, 4 if u < 3 else 2, 2): A(f'v_mov_b64 {vr(QQ(u,tt)+k,2)}, {vr(88+4*tt+k,2)}')
    for u in range(4):
        for kt in range(2):
            A(f's_add_u32 s11, {sXB}, {sQ[u]}' + ('\ns_add_u32 s11, s11, 14336' if kt else ''))
            if u < 3: w.vmem(f'buffer_load_dwordx4 {vr(16*u+8+4*kt,4)}, {vL16}, {SRD}, s11 offen', 'Z')
            else: w.vmem(f'buffer_load_dwordx2 {vr(88+2*kt,2)}, v118, {SRD}, s11 offen', 'Z')
    w.wait(vm='Z')
    SX = {(1, 0): 92, (1, 1): 96, (2, 1): 100}
    for (kt, tt), a in SX.items():
        for u in range(3): A(mfma(vr(a, 4), vr(16 * u + 8 + 4 * (kt - 1), 4), vr(QQ(u, tt), 4), 0 if u == 0 else None))
        A(f'v_mfma_f32_16x16x16_bf16 {vr(a,4)}, {vr(88+2*(kt-1),2)}, {vr(QQ(3,tt),2)}, {vr(a,4)}')
    for (kt, tt), a in SX.items():
        A(f'ds_write_b128 v115, {vr(a,4)} offset:{(2*kt + tt - (1 if kt == 2 else 0))*1024}')
    A('s_waitcnt lgkmcnt(0)\ns_barrier')
    E1, E2, E0 = 92, 96, 100
    A(f's_cmp_ge_u32 {sW}, 2\ns_cbranch_scc1 {lab}_nored')
    def red(dst, off, t0):
        for k in range(4): A(f'ds_read_b128 {vr(dst if k == 0 else t0+16*(k-1),4)}, v114 offset:{k*5120 + off}')
        A('s_waitcnt lgkmcnt(0)')
        for k in range(3):
            for r in (0, 2): A(f'v_pk_add_f32 {vr(dst+r,2)}, {vr(dst+r,2)}, {vr(t0+16*k+r,2)}')
    red(E1, 2048, 8)
    red(E2, 3072, 8)
    A(f'v_mov_b32 v104, 0xff800000\ns_cmp_eq_u32 {sW}, 0\ns_cbranch_scc0 {lab}_t1')
    for r in range(4):
        A(f'v_cmp_le_i32 vcc, {r}, v111\nv_cndmask_b32 v{E1+r}, v104, v{E1+r}, vcc\nv_mov_b32 v{E2+r}, v104')
    A(f's_branch {lab}_nored\n{lab}_t1:')
    for r in range(4): A(f'v_cmp_le_i32 vcc, {r}, v111\nv_cndmask_b32 v{E2+r}, v104, v{E2+r}, vcc')
    A(f'{lab}_nored:')
    A(f's_mul_i32 s15, s8, 7168\ns_add_u32 s15, s15, {MX}')
    KQ = lambda u: 16 * u + 8
    def loads():
        for u in range(4):
            A(f's_lshr_b32 s11, {sQ[u]}, 1\ns_add_u32 s11, s11, s15')
            if u < 3:
                A(f'buffer_load_dwordx2 {vr(KQ(u),2)}, v117, {SRD}, s11 offen sc1\nbuffer_load_dwordx2 {vr(KQ(u)+2,2)}, v117, {SRD}, s11 offen offset:32 sc1')
            else:
                A(f'buffer_load_dword v88, v116, {SRD}, s11 offen sc1\nbuffer_load_dword v89, v116, {SRD}, s11 offen offset:32 sc1')
    mx_wait(w, f'{lab}_mx', [KQ(u) + k for u in range(3) for k in range(4)] + [88, 89], loads, tmo, 'v105')
    for u in range(3): A(f'v_swap_b32 v{KQ(u)+1}, v{KQ(u)+2}')
    for tt in range(2):
        a = 12 + 16 * tt
        for u in range(3): A(mfma(vr(a, 4), vr(KQ(u), 4), vr(QQ(u, tt), 4), 0 if u == 0 else None))
        A(f'v_mfma_f32_16x16x16_bf16 {vr(a,4)}, v[88:89], {vr(QQ(3,tt),2)}, {vr(a,4)}')
    for tt in range(2): A(f'ds_write_b128 v115, {vr(12+16*tt,4)} offset:{tt*1024}')
    A('s_waitcnt lgkmcnt(0)\ns_barrier')
    A(f's_cmp_ge_u32 {sW}, 2\ns_cbranch_scc1 {lab}_nosm')
    red(E0, 0, 8)
    A('s_mov_b32 vcc_lo, -1\ns_mov_b32 vcc_hi, 0')
    for r in range(4): A(f'v_cndmask_b32 v{E0+r}, v104, v{E0+r}, vcc')
    A(f'v_max3_f32 v8, v{E1}, v{E1+1}, v{E1+2}')
    for r in range(E1 + 3, E1 + 11, 2): A(f'v_max3_f32 v8, v8, v{r}, v{r+1}')
    A(f'v_max_f32 v8, v8, v{E1+11}')
    def allred(op):
        A(f'v_mov_b32 v9, v8\nv_permlane16_swap_b32 v8, v9\n{op} v8, v8, v9')
        A(f'v_mov_b32 v9, v8\nv_permlane32_swap_b32 v8, v9\n{op} v8, v8, v9')
    allred('v_max_f32')
    for r in range(E1, E1 + 12, 2): A(f'v_pk_add_f32 {vr(r,2)}, {vr(r,2)}, v[8:9] op_sel_hi:[1,0] neg_lo:[0,1] neg_hi:[0,1]')
    for r in range(E1, E1 + 12): A(f'v_exp_f32 v{r}, v{r}')
    A(f'v_pk_add_f32 v[8:9], {vr(E1,2)}, {vr(E1+2,2)}')
    for r in range(E1 + 4, E1 + 12, 2): A(f'v_pk_add_f32 v[8:9], v[8:9], {vr(r,2)}')
    A('v_add_f32 v8, v8, v9')
    allred('v_add_f32')
    A('v_rcp_f32 v8, v8')
    for r in range(E1, E1 + 12, 2): A(f'v_pk_mul_f32 {vr(r,2)}, {vr(r,2)}, v[8:9] op_sel_hi:[1,0]')
    for k in range(6): A(f'v_cvt_pk_bf16_f32 v{12+k}, v{E1+2*k}, v{E1+2*k+1}\nv_min_u32 v{12+k}, -2, v{12+k}')
    A(f's_mul_i32 s15, s8, {PX_SEG}\ns_add_u32 s15, s15, {PX}')
    A(f'buffer_store_dwordx4 v[12:15], v113, {SRD}, s15 offen sc1\nbuffer_store_dwordx2 v[16:17], v112, {SRD}, s15 offen sc1')
    A(f'{lab}_nosm:')
    A(f's_lshl_b32 s15, s8, 7\ns_add_u32 s15, s15, {FPX}')
    signal(w, f'{lab}_sig', 's15', 'v105')
    A(f's_mov_b32 {sXB}, {sXN}\ns_add_u32 s8, s8, {NQ}\ns_cmp_lt_u32 s8, {NSEG}\ns_cbranch_scc1 {lab}_loop')
    tline(A, dict(cfg, tlreg=106), 4)
    A('s_endpgm')

def gen_T(A, cfg, lab, tmo):
    w = Wv(A, {})
    em = Emitter(A, [f'v{i}' for i in range(8, 30)])
    l = V('v0'); g = l >> 4
    A('s_load_dwordx2 s[28:29], s[0:1], 64\ns_load_dwordx2 s[30:31], s[0:1], 80')
    em.emit(l & 63, 'v0')
    A(f"""s_and_b32 s12, {sR}, 15
    s_lshl_b32 s12, s12, 2
    s_add_u32 s12, s12, {sW}
    s_waitcnt lgkmcnt(0)
    s_cmp_lt_u32 {sR}, 16
    s_cselect_b32 s20, s28, s30
    s_cselect_b32 s21, s29, s31
    s_mov_b32 s22, {D*F*2}
    s_mov_b32 s23, 0x20000
    s_movk_i32 s13, 896
    s_cselect_b32 s13, 3584, s13
    s_cselect_b32 s14, 28, 7
    s_movk_i32 s15, 9363
    s_cselect_b32 s15, 2341, s15       ; 65536 / blocks
    s_cselect_b32 s16, 14, 56          ; k quads
    s_mov_b32 s17, {W2F}
    s_cselect_b32 s17, {W1F}, s17
    s_mul_i32 s18, {sW}, 28672""")
    if cfg.get('defert'):
        wait_lanes(A, f'{lab}_wx', l * 0 + FX, l * 0 + 32, tmo)
        defer(A, f'{lab}_df', tmo)
    em.emit((l >> 3) * Sg('s13') + (l & 7) * 16, 'v1')
    em.emit(Sg('s18') + (g * 8 + ((l >> 2) & 3)) * 128 + (l & 3) * 16, 'v2')
    em.emit(l * 16, 'v3')
    A('s_lshl_b32 s24, s13, 3')
    for k in range(7):
        A(f's_add_u32 s25, s12, {64*k}\ns_mul_i32 s26, s25, s15\ns_lshr_b32 s26, s26, 16\ns_mul_i32 s27, s26, s14\ns_sub_u32 s27, s25, s27')
        A(f's_lshl_b32 s{40+k}, s27, 2\ns_mul_i32 s{40+k}, s{40+k}, s16\ns_add_u32 s{40+k}, s{40+k}, s26\ns_lshl_b32 s{40+k}, s{40+k}, 10\ns_add_u32 s{40+k}, s{40+k}, s17')
        A(f's_cmp_lt_u32 s25, 392\ns_cselect_b32 s{40+k}, s{40+k}, {OOB}')
        A('s_lshl_b32 s26, s26, 5\ns_mul_i32 s26, s26, s13\ns_lshl_b32 s27, s27, 7\ns_add_u32 s26, s26, s27')
        for r in range(4):
            A(f's_add_u32 m0, s18, {k*4096 + r*1024}')
            w.vmem(f'buffer_load_dwordx4 v1, s[20:23], s26 offen lds', f'U{k}')
            if r < 3: A('s_add_u32 s26, s26, s24')
    A('s_lshl_b32 s24, s16, 10')
    for k in range(7):
        w.wait(vm=f'U{k}')
        for t in range(4):
            o = 8 + 16 * (k & 1) + 4 * t; off = k * 4096 + (t >> 1) * 64 + (t & 1) * 8
            A(f'ds_read_b64_tr_b16 {vr(o,2)}, v2 offset:{off}\nds_read_b64_tr_b16 {vr(o+2,2)}, v2 offset:{off+512}')
        A('s_waitcnt lgkmcnt(0)')
        for t in range(4):
            w.vmem(f'buffer_store_dwordx4 {vr(8+16*(k&1)+4*t,4)}, v3, {SRD}, s{40+k} offen sc1')
            if t < 3: A(f's_add_u32 s{40+k}, s{40+k}, s24')
    A(f's_mov_b32 s15, {FW}')
    signal(w, f'{lab}_sig', 's15', 'v4')
    tline(A, dict(cfg, tlreg=5), 4)
    A('s_endpgm')

def gen_F(A, cfg, lab, tmo):
    w = Wv(A, {})
    em = Emitter(A, [f'v{i}' for i in range(8, 30)])
    l = V('v0'); g = l >> 4; n = l & 15; ww = Sg(sW)
    A('s_load_dwordx2 s[28:29], s[0:1], 72\ns_load_dwordx2 s[30:31], s[0:1], 88\ns_load_dwordx2 s[32:33], s[0:1], 0\ns_load_dwordx2 s[34:35], s[0:1], 96')
    wait_lanes(A, f'{lab}_wx', l * 0 + FX, l * 0 + 32, tmo)
    em.emit(l * 16, 'v1')
    em.emit(g * 16, 'v3')
    A('s_waitcnt lgkmcnt(0)')
    srd(A, 36, 28, F * 2); srd(A, 40, 30, D * 2); srd(A, 44, 32, S * D * 2); srd(A, 48, 34, S * D * 2)
    xr = lambda tt, p: f'a[{(tt*14+p)*4}:{(tt*14+p)*4+3}]'
    A(f's_mul_i32 s12, {sR}, 28672' + (f'\ns_add_u32 s12, s12, {XF}' if XF else ''))
    for q in range(28):
        if q % 4 == 0: A(f's_add_u32 s11, s12, {q*1024}')
        A(f'buffer_load_dwordx4 {xr(q//14, q%14)}, v1, {SRD}, s11 offen offset:{(q%4)*1024}')
    A(f's_mov_b32 s15, {FW}')
    wait_flag(w, f'{lab}_fw', 's15', 32, tmo)
    c2 = dict(cfg, tlreg=2)
    tline(A, c2, 1)
    WB = lambda buf, q: 32 + buf * 112 + 4 * q
    A(f's_mul_i32 s13, {sW}, {14*28672}\ns_add_u32 s13, s13, {W1F}\ns_mul_i32 s14, {sW}, {14*64}')
    em.emit(ww * 28672 + l * 16, 'v4')
    def wl(buf, q):
        if q % 4 == 0: A(f's_add_u32 s11, s13, {q*1024}')
        w.vmem(f'buffer_load_dwordx4 {vr(WB(buf,q),4)}, v1, {SRD}, s11 offen offset:{(q%4)*1024} sc1', f'W{buf}_{q}')
    def bl(buf): w.vmem(f'buffer_load_dwordx4 {vr(24+4*buf,4)}, v3, s[36:39], s14 offen', f'B{buf}')
    w.vm = []
    bl(0)
    for q in range(28): wl(0, q)
    A('s_mov_b32 s8, 0')
    A(f'{lab}_l1:')
    def block(buf):
        A('s_add_u32 s13, s13, 28672\ns_add_u32 s14, s14, 64')
        bl(1 - buf)
        for p in range(14):
            for b in range(2):
                q = b * 14 + p
                w.wait(vm=f'W{buf}_{q}')
                for tt in range(2): A(mfma(vr(8 + (b * 2 + tt) * 4, 4), vr(WB(buf, q), 4), xr(tt, p), 0 if p == 0 else None))
            wl(1 - buf, 2 * p); wl(1 - buf, 2 * p + 1)
        bb = 24 + 4 * buf
        for tt in range(2):
            for b in range(2):
                a = 8 + (b * 2 + tt) * 4
                for k in range(2):
                    A(f'v_lshlrev_b32 v6, 16, v{bb+2*b+k}\nv_and_b32 v7, 0xffff0000, v{bb+2*b+k}')
                    A(f'v_pk_add_f32 {vr(a+2*k,2)}, {vr(a+2*k,2)}, v[6:7]')
                    A(f'v_max_f32 v{a+2*k}, 0, v{a+2*k}\nv_max_f32 v{a+2*k+1}, 0, v{a+2*k+1}')
                    A(f'v_pk_mul_f32 {vr(a+2*k,2)}, {vr(a+2*k,2)}, {vr(a+2*k,2)}')
                    A(f'v_cvt_pk_bf16_f32 v{a+k}, v{a+2*k}, v{a+2*k+1}')
            A(f'v_mov_b64 {vr(8+tt*4+2,2)}, {vr(16+tt*4,2)}')
            A(f'ds_write_b128 v4, {vr(8+tt*4,4)} offset:{buf*2048 + tt*1024}')
    w.vm = ['B0'] + [f'W0_{q}' for q in range(28)]
    block(0); block(1)
    A(f'v_add_u32 v4, 4096, v4\ns_add_u32 s8, s8, 1\ns_cmp_lt_u32 s8, {1 if cfg.get("noffn") else 7}\ns_cbranch_scc1 {lab}_l1')
    tline(A, c2, 2)
    A(f's_lshl_b32 s16, {sW}, 2\ns_cmp_eq_u32 {sW}, 3\ns_cselect_b32 s16, 11, s16')
    A(f's_mul_i32 s13, s16, {2*57344}\ns_add_u32 s13, s13, {W2F}')
    for t in range(8):
        A(f's_add_u32 s{52+t}, s13, {t*57344}')
    A(f's_cmp_ge_u32 {sW}, 2\ns_cselect_b32 s58, {OOB}, s58\ns_cselect_b32 s59, {OOB}, s59')
    A('s_waitcnt vmcnt(0) lgkmcnt(0)\ns_barrier')
    W2 = lambda buf, t: 32 + (buf * 8 + t) * 4
    HB = lambda buf, tt: 8 + (buf * 2 + tt) * 4
    G = lambda t, tt: f'a[{(t*2+tt)*4}:{(t*2+tt)*4+3}]'
    for r in range(64): A(f'v_accvgpr_write_b32 a{r}, 0')
    A('v_mov_b32 v4, v1\nv_mov_b32 v5, v1')
    def w2l(buf, off):
        for t in range(8): w.vmem(f'buffer_load_dwordx4 {vr(W2(buf,t),4)}, v5, {SRD}, s{52+t} offen offset:{off} sc1', f'V{buf}')
    def hl(buf, off):
        for tt in range(2): w.ds(f'ds_read_b128 {vr(HB(buf,tt),4)}, v4 offset:{off + tt*1024}', f'H{buf}')
    w.vm = []; w.lg = []
    for k in range(3): w2l(k, k * 1024)
    hl(0, 0)
    A('v_add_u32 v5, 3072, v5\ns_mov_b32 s8, 0')
    A(f'{lab}_l2:')
    for k in range(4):
        w2l((k + 3) & 3, k * 1024)
        hl((k + 1) & 1, (k + 1) * 2048)
        w.wait(vm=f'V{k}', lg=f'H{k&1}')
        for t in range(8):
            for tt in range(2): A(mfma(G(t, tt), vr(W2(k, t), 4), vr(HB(k & 1, tt), 4)))
    A(f'v_add_u32 v5, 4096, v5\nv_add_u32 v4, 8192, v4\ns_add_u32 s8, s8, 1\ns_cmp_lt_u32 s8, {1 if cfg.get("noffn") else 14}\ns_cbranch_scc1 {lab}_l2')
    A('s_waitcnt vmcnt(0) lgkmcnt(0)')
    A('s_lshl_b32 s14, s16, 6')
    for k in range(4): A(f'buffer_load_dwordx4 {vr(32+4*k,4)}, v3, s[40:43], s14 offen offset:{k*64}')
    A(f's_lshl_b32 s14, s16, 10\ns_add_u32 s14, s14, s12\ns_add_u32 s14, s14, {GB - XF}\ns_add_u32 s15, s14, 14336')
    A('s_waitcnt vmcnt(0)')
    for k in range(4):
        if k == 3: A(f's_cmp_ge_u32 {sW}, 2\ns_cbranch_scc1 {lab}_gdone')
        for tt in range(2):
            for b in range(2):
                for r in range(4): A(f'v_accvgpr_read_b32 v{48+4*b+r}, a{((2*k+b)*2+tt)*4+r}')
            for j in range(4):
                A(f'v_lshlrev_b32 v6, 16, v{32+4*k+j}\nv_and_b32 v7, 0xffff0000, v{32+4*k+j}')
                A(f'v_pk_add_f32 {vr(48+2*j,2)}, {vr(48+2*j,2)}, v[6:7]')
            for r in range(8): A(f'v_mul_f32 v{56+r}, {f32(-math.log2(math.e))}, v{48+r}')
            for r in range(8): A(f'v_exp_f32 v{56+r}, v{56+r}')
            for r in range(8): A(f'v_add_f32 v{56+r}, 1.0, v{56+r}')
            for r in range(8): A(f'v_rcp_f32 v{56+r}, v{56+r}')
            for j in range(4):
                A(f'v_pk_mul_f32 {vr(48+2*j,2)}, {vr(48+2*j,2)}, {vr(56+2*j,2)}')
                A(f'v_cvt_pk_bf16_f32 v{64+4*tt+j}, v{48+2*j}, v{49+2*j}')
            A(f'buffer_store_dwordx4 {vr(64+4*tt,4)}, v1, {SRD}, {"s15" if tt else "s14"} offen offset:{k*1024} sc1')
    A(f'{lab}_gdone:')
    A(f's_lshl_b32 s15, {sR}, 7\ns_add_u32 s15, s15, {FG}')
    signal(w, f'{lab}_gsig', 's15')
    tline(A, c2, 3)
    if cfg.get('nopost'): A('s_endpgm')
    if cfg.get('out2', 1):
        A(f's_cmp_ge_u32 {sR}, 56\ns_cbranch_scc1 {lab}_end')
        A(f's_mul_i32 s8, {sR}, 4682\ns_lshr_b32 s8, s8, 16\ns_mul_i32 s16, s8, 14\ns_sub_u32 s16, {sR}, s16')
        col = Sg('s16') * 32 + (n >> 2) * 8 + (n & 3)
        em.emit(g * 7168 + col * 16, 'v4')
        em.emit(n * 896 + Sg('s16') * 64 + g * 16 + (ww & 1) * 14336, 'v5')
        em.emit(Sg('s16') * 1024 + l * 16 + (ww & 1) * 14336, 'v6')
        em.emit((l & 1) * (FPX - FVM), 'v7')
        em.emit(ww * 4096 + l * 16, 'v3')
        em.emit((ww & 1) * 2048 + l * 16, 'v123')
        l3 = l & 3
        em.emit(sel_lt(l3, 1, FVX, sel_lt(l3, 2, FG, sel_lt(l3, 3, FVM, FPX))), 'v121')
        em.emit(sel_lt(l3 ^ 1, 1, 1, 16), 'v122')
        A(f's_mul_i32 s17, {sW}, {4*28672}\ns_mul_i32 s18, {sW}, 28672\ns_lshl_b32 s23, {sW}, 12\ns_lshl_b32 s24, {sW}, 10\ns_add_u32 s24, s24, 16384')
        WX = lambda q, b: 32 + (q * 2 + b) * 4
        PB = lambda q, tt: 72 + (q * 2 + tt) * 4
        A(f'{lab}_l3:')
        if cfg.get('codetouch2', 1): code_touch(A, f'{lab}_l3', f'{lab}_end', sW, 4, 'v27', 'v120', 52)
        A(f's_lshl_b32 s13, s8, 7\ns_cmp_lg_u32 {sW}, 0\ns_cbranch_scc1 {lab}_f1go\ns_mov_b32 {sSPIN}, {WSPIN}')
        A(f'{lab}_f1:\nbuffer_load_dword v2, v121, {SRD}, s13 offen sc1')
        A(f's_sub_u32 {sSPIN}, {sSPIN}, 1\ns_cbranch_scc1 {tmo}\ns_waitcnt vmcnt(0)\nv_cmp_gt_u32 vcc, v122, v2\ns_and_b32 s11, vcc_lo, 3\ns_cbranch_scc1 {lab}_f1')
        A(f's_and_b32 s28, vcc_lo, 12\n{lab}_f1go:\ns_barrier')
        A(f's_mul_i32 s14, s8, {VX_SEG}\ns_add_u32 s14, s14, s17\ns_add_u32 s14, s14, {VXF}')
        for q in range(4):
            for b in range(2): A(f'buffer_load_dwordx4 {vr(WX(q,b),4)}, v4, {SRD}, s14 offen offset:{b*64} sc1')
            if q < 3: A('s_add_u32 s14, s14, 28672')
        A('s_mul_i32 s14, s8, 28672')
        A('buffer_load_dwordx4 v[112:115], v5, s[44:47], s14 offen')
        A(f's_add_u32 s21, s14, {GB}\nbuffer_load_dwordx4 v[116:119], v6, {SRD}, s21 offen sc1')
        A(f's_mul_i32 s21, s8, {PX_SEG}\ns_add_u32 s21, s21, {PX}\ns_add_u32 s22, s21, s24\ns_add_u32 s21, s21, s23\ns_add_u32 s25, s21, 20480\ns_add_u32 s26, s22, 20480')
        A(f's_mul_i32 s27, s8, {VM_SEG}\ns_add_u32 s27, s27, s18\ns_add_u32 s27, s27, {VM}')
        def late_loads():
            for q in range(4):
                for tt in range(2): A(f'buffer_load_dwordx4 {vr(PB(q,tt),4)}, v1, {SRD}, {"s25" if tt else "s21"} offen offset:{q*1024} sc1')
            for tt in range(2): A(f'buffer_load_dwordx4 {vr(PB(4,tt),4)}, v1, {SRD}, {"s26" if tt else "s22"} offen sc1')
            for b in range(2): A(f'buffer_load_dwordx4 {vr(WX(4,b),4)}, v4, {SRD}, s27 offen offset:{b*64} sc1')
        if cfg.get('lastdirect', 1):
            A(f's_cmp_eq_u32 s8, {NSEG-1}\ns_cbranch_scc0 {lab}_flags')
            A(f's_mov_b32 s15, {MX + (NSEG-1)*7168}')
            mx_wait(w, f'{lab}_dir', list(range(64, 112)), late_loads, tmo, 'v2', True)
            A(f's_branch {lab}_go')
        A(f'{lab}_flags:\ns_add_u32 s15, s13, {FVM}')
        A(f's_cmp_lg_u32 {sW}, 0\ns_cbranch_scc1 {lab}_f2go\ns_cmp_eq_u32 s28, 0\ns_cbranch_scc1 {lab}_f2go\ns_mov_b32 {sSPIN}, {WSPIN}')
        A(f'{lab}_f2:\nbuffer_load_dword v2, v7, {SRD}, s15 offen sc1')
        A(f's_sub_u32 {sSPIN}, {sSPIN}, 1\ns_cbranch_scc1 {tmo}\ns_waitcnt vmcnt(0)\nv_cmp_gt_u32 vcc, 16, v2\ns_cbranch_vccnz {lab}_f2')
        A(f'{lab}_f2go:\ns_barrier')
        late_loads()
        A(f's_waitcnt vmcnt(0)\n{lab}_go:')
        tline(A, c2, 5)
        for q in range(5):
            for b in range(2):
                for tt in range(2): A(mfma(vr(8 + (tt * 2 + b) * 4, 4), vr(WX(q, b), 4), vr(PB(q, tt), 4), 0 if q == 0 else None))
        for k in range(4): A(f'ds_write_b128 v3, {vr(8+4*k,4)} offset:{k*1024}')
        A(f's_waitcnt lgkmcnt(0)\ns_barrier\ns_cmp_ge_u32 {sW}, 2\ns_cbranch_scc1 {lab}_next')
        for src in range(4):
            for b in range(2): A(f'ds_read_b128 {vr(32+(src*2+b)*4,4)}, v123 offset:{src*4096 + b*1024}')
        A('s_waitcnt lgkmcnt(0)')
        for j in range(4):
            r = 32 + 2 * j
            A(f'v_pk_add_f32 {vr(r,2)}, {vr(r,2)}, {vr(r+8,2)}\nv_pk_add_f32 {vr(r+16,2)}, {vr(r+16,2)}, {vr(r+24,2)}\nv_pk_add_f32 {vr(r,2)}, {vr(r,2)}, {vr(r+16,2)}')
            A(f'v_cvt_pk_bf16_f32 v{r}, v{r}, v{r+1}\nv_and_b32 v{r+1}, 0xffff0000, v{r}\nv_lshlrev_b32 v{r}, 16, v{r}')
            A(f'v_lshlrev_b32 v24, 16, v{116+j}\nv_and_b32 v25, 0xffff0000, v{116+j}')
            A(f'v_pk_mul_f32 {vr(r,2)}, {vr(r,2)}, v[24:25]')
            A(f'v_cvt_pk_bf16_f32 v{r}, v{r}, v{r+1}\nv_and_b32 v{r+1}, 0xffff0000, v{r}\nv_lshlrev_b32 v{r}, 16, v{r}')
            A(f'v_lshlrev_b32 v24, 16, v{112+j}\nv_and_b32 v25, 0xffff0000, v{112+j}')
            A(f'v_pk_add_f32 {vr(r,2)}, {vr(r,2)}, v[24:25]')
            A(f'v_cvt_pk_bf16_f32 v{28+j}, v{r}, v{r+1}')
        A(f'buffer_store_dwordx4 v[28:31], v5, s[48:51], s14 offen {cfg.get("ost", "")}')
        A(f'{lab}_next:\ns_add_u32 s8, s8, 4\ns_cmp_lt_u32 s8, {NSEG}\ns_cbranch_scc1 {lab}_l3\n{lab}_end:')
    else:
        A(f's_and_b32 s11, {sR}, 3\ns_lshl_b32 s16, s11, 2\ns_cmp_eq_u32 s11, 3\ns_cselect_b32 s16, 11, s16\ns_add_u32 s16, s16, {sW}')
        A(f's_lshr_b32 s11, s11, 1\ns_add_u32 s11, s11, {sW}\ns_cmp_ge_u32 s11, 4\ns_cselect_b32 s17, {OOB}, 0')
        col = Sg('s16') * 32 + (n >> 2) * 8 + (n & 3)
        em.emit(g * 7168 + col * 16 + Sg('s17'), 'v4')
        em.emit(n * 896 + Sg('s16') * 64 + g * 16 + Sg('s17'), 'v5')
        em.emit(Sg('s16') * 1024 + l * 16 + Sg('s17'), 'v6')
        em.emit((l & 1) * (FPX - FVM), 'v7')
        A(f's_lshr_b32 s8, {sR}, 2\ns_mul_i32 s18, {sW}, 10240')
        WX = lambda q, b: 32 + (q * 2 + b) * 4
        A(f'{lab}_l3:')
        A(f's_lshl_b32 s13, s8, 7\ns_add_u32 s15, s13, {FVX}')
        wait_flag(w, f'{lab}_fvx', 's15', 16, tmo)
        A(f's_mul_i32 s14, s8, {VX_SEG}\ns_add_u32 s14, s14, {VXF}')
        for q in range(16):
            for b in range(2): A(f'buffer_load_dwordx4 {vr(WX(q,b),4)}, v4, {SRD}, s14 offen offset:{b*64} sc1')
            if q < 15: A('s_add_u32 s14, s14, 28672')
        A('s_mul_i32 s14, s8, 28672\ns_add_u32 s20, s14, 14336')
        A('buffer_load_dwordx4 v[192:195], v5, s[44:47], s14 offen\nbuffer_load_dwordx4 v[196:199], v5, s[44:47], s20 offen')
        A(f's_add_u32 s15, s13, {FG}')
        wait_flag(w, f'{lab}_fg', 's15', 1, tmo)
        A(f's_add_u32 s21, s14, {GB}\ns_add_u32 s22, s20, {GB}')
        A(f'buffer_load_dwordx4 v[200:203], v6, {SRD}, s21 offen sc1\nbuffer_load_dwordx4 v[204:207], v6, {SRD}, s22 offen sc1')
        A(f's_add_u32 s15, s13, {FVM}')
        A(f's_cmp_lg_u32 {sW}, 0\ns_cbranch_scc1 {lab}_f2go\ns_mov_b32 {sSPIN}, {WSPIN}')
        A(f'{lab}_f2:\nbuffer_load_dword v2, v7, {SRD}, s15 offen sc1')
        A(f's_sub_u32 {sSPIN}, {sSPIN}, 1\ns_cbranch_scc1 {tmo}\n{BACK[0]}s_waitcnt vmcnt(0)\nv_cmp_gt_u32 vcc, 16, v2\ns_cbranch_vccnz {lab}_f2')
        A(f'{lab}_f2go:\ns_barrier')
        tline(A, c2, 5)
        A(f's_mul_i32 s21, s8, {PX_SEG}\ns_add_u32 s21, s21, s18\ns_add_u32 s21, s21, {PX}')
        for k in range(10):
            if k % 4 == 0: A(f's_add_u32 m0, s18, {k*1024}\ns_add_u32 s22, s21, {k*1024}')
            A(f'buffer_load_dwordx4 v1, {SRD}, s22 offen offset:{(k%4)*1024} sc1 lds')
        A(f's_mul_i32 s21, s8, {VM_SEG}\ns_add_u32 s21, s21, {VM}')
        for u in range(4):
            for b in range(2): A(f'buffer_load_dwordx4 {vr(WX(16+u,b),4)}, v4, {SRD}, s21 offen offset:{b*64} sc1')
            if u < 3: A('s_add_u32 s21, s21, 28672')
        A('s_waitcnt vmcnt(8)\ns_barrier')
        w.lg = []
        PB = lambda q, tt: 208 + ((q & 3) * 2 + tt) * 4
        def pl(q):
            for tt in range(2): w.ds(f'ds_read_b128 {vr(PB(q,tt),4)}, v1 offset:{tt*20480 + q*1024}', f'P{q}')
        for q in range(3): pl(q)
        for q in range(20):
            if q + 3 < 20: pl(q + 3)
            w.wait(lg=f'P{q}')
            if q == 16: A('s_waitcnt vmcnt(0)')
            for b in range(2):
                for tt in range(2): A(mfma(vr(8 + (tt * 2 + b) * 4, 4), vr(WX(q, b), 4), vr(PB(q, tt), 4), 0 if q == 0 else None))
        for tt in range(2):
            a = 8 + tt * 8
            for j in range(4):
                r = a + 2 * j
                A(f'v_cvt_pk_bf16_f32 v{r}, v{r}, v{r+1}\nv_and_b32 v{r+1}, 0xffff0000, v{r}\nv_lshlrev_b32 v{r}, 16, v{r}')
                A(f'v_lshlrev_b32 v24, 16, v{200+4*tt+j}\nv_and_b32 v25, 0xffff0000, v{200+4*tt+j}')
                A(f'v_pk_mul_f32 {vr(r,2)}, {vr(r,2)}, v[24:25]')
                A(f'v_cvt_pk_bf16_f32 v{r}, v{r}, v{r+1}\nv_and_b32 v{r+1}, 0xffff0000, v{r}\nv_lshlrev_b32 v{r}, 16, v{r}')
                A(f'v_lshlrev_b32 v24, 16, v{192+4*tt+j}\nv_and_b32 v25, 0xffff0000, v{192+4*tt+j}')
                A(f'v_pk_add_f32 {vr(r,2)}, {vr(r,2)}, v[24:25]')
                A(f'v_cvt_pk_bf16_f32 v{28+j}, v{r}, v{r+1}')
            A(f'buffer_store_dwordx4 v[28:31], v5, s[48:51], {"s20" if tt else "s14"} offen {cfg.get("ost", "")}')
        A(f's_add_u32 s8, s8, 16\ns_cmp_lt_u32 s8, {NSEG}\ns_cbranch_scc1 {lab}_l3')
    if cfg.get('tl') or cfg.get('ds'): A('s_waitcnt vmcnt(0)')
    tline(A, c2, 4)
    dstamp(A, cfg, 7, 215 if cfg.get('out2', 1) else 223, 2)
    A('s_endpgm')
```

```python
import sys, json
sys.path.insert(0, 'gen'); sys.path.insert(0, 'bench')
from common import *
import main as MAIN
from layout import *
base = json.loads(sys.argv[1]); rounds = int(sys.argv[2]); vars_ = [json.loads(a) for a in sys.argv[3:]]
KN = MAIN.build.NAME + '_kernel'
cos = []
for i, v in enumerate(vars_):
    c = dict(base); c.update(v); c['ds'] = 1
    cos.append(build(MAIN.generate(c), KN, 15, f'abf{i}', lists=True))
if ON_GPU:
    from model import *
    d = make_inputs(0, 0.05, 1.0)
    ref, aux = reference(d)
    names = ['x', 'mem0', 'Wq', 'Wk', 'Wv', 'Wo', None, 'x', 'w1', 'b1', 'w2', 'b2']
    bufs = [DeviceBuffer.from_numpy(f2bf(d[n]) if n else np.array([32], dtype=np.int32)) for n in names]
    out = DeviceBuffer(S * D * 2); dbg = DeviceBuffer(4096); ws = DeviceBuffer(WS_BYTES)
    ka = pack_ptr_kernargs([b.ptr for b in bufs] + [out.ptr, dbg.ptr, ws.ptr])
    ks = [AsmKernel(co, KN) for co in cos]
    res = [[] for _ in ks]; errs = [0.0] * len(ks)
    for r in range(rounds + 1):
        for i, k in enumerate(ks):
            memset(out, 0xff); memset(ws, r & 0x7f, WS_BYTES); memset(dbg, 0); sync()
            if os.environ.get('COLD') == '1':
                t_ = DeviceBuffer(64 << 20); memset(t_, 1); sync(); t_.free(); sync()
            if os.environ.get('COLD') == '2':
                time.sleep(0.02)
            k.launch((256,1,1), (256,1,1), ka, 163840); sync()
            g = dbg.to_numpy(np.uint32, (64,)).astype(np.int64)
            rel = lambda x: ((g[x] - g[9]) % 0x100000) / 100
            if r: res[i].append((rel(4), rel(5), rel(6), rel(7), rel(12)))
            if r == rounds or r == 1:
                got = bf2f(out.to_numpy(np.uint16, (S, D)))
                e_ = float(np.linalg.norm(got - ref) / np.linalg.norm(ref)); errs[i] = max(errs[i], e_ if e_ == e_ else 9.9)
    for i, v in enumerate(vars_):
        a = np.median(np.array(res[i]), 0)
        print(f'end {a[3]:6.1f} Aend {a[2]:6.1f} Aready {a[0]:5.1f} Bready {a[1]:5.1f} step2 {a[4]:5.1f} ns/step {(a[2]-a[4])/61*1000:6.1f} err {errs[i]:.5f} {v}')
```

```python
from asmdsl import Asm
from expr import X, V, Sg, Emitter, ev, sel_lt
from layout import *
from rec import Wv, vr, tline, dstamp, wquad
import struct, math

def f32(x): return hex(struct.unpack('<I', struct.pack('<f', x))[0])
CSC = math.log2(math.e) / 16
W_BYTES = D * H * E * 2

def mfma(acc, a, b, c=None): return f'v_mfma_f32_16x16x32_bf16 {acc}, {a}, {b}, {c if c is not None else acc}'
def srd(A, r, lo, nbytes):
    A(f's_mov_b32 s{r}, s{lo}\ns_mov_b32 s{r+1}, s{lo+1}\ns_mov_b32 s{r+2}, {nbytes}\ns_mov_b32 s{r+3}, 0x20000')

def zero_ready(A, lab, tmo):
    A(f's_mov_b32 s19, 0x40000\n{lab}:\nbuffer_load_dword v1, off, s[48:51], 0 offset:132 sc1')
    A(f's_sub_u32 s19, s19, 1\ns_cbranch_scc1 {tmo}\ns_waitcnt vmcnt(0)\nv_cmp_eq_u32 vcc, 0, v1\ns_cbranch_vccnz {lab}')

def gen_gemm(A, cfg, tmo):
    w = Wv(A, {}); st = 'sc1'
    c2 = dict(cfg, tlreg=1)
    em = Emitter(A, [f'v{i}' for i in range(32, 60)])
    l = V('v0'); g = l >> 4; rho = l & 15
    loc = cfg.get('locala', 1)
    def derive():
        A(f"""s_mul_i32 s17, s12, 7
        s_lshl_b32 s11, s9, 1
        s_add_u32 s17, s17, s11
        s_lshl_b32 s18, s16, 9          ; h*512
        s_lshl_b32 s52, s17, 18
        s_add_u32 s52, s52, s18
        s_add_u32 s53, s52, 0x40000
        s_cmp_eq_u32 s9, 3
        s_cselect_b32 s53, {OOB}, s53""")
    A("""s_mul_i32 s16, s10, 4682
    s_lshr_b32 s16, s16, 16
    s_mul_i32 s13, s16, 14
    s_sub_u32 s13, s10, s13
    s_and_b32 s12, s13, 1
    s_lshr_b32 s13, s13, 1""")
    derive()
    A("""s_lshl_b32 s35, s9, 15
    s_lshl_b32 s34, s9, 13""")
    srd(A, 20, 40, W_BYTES); srd(A, 24, 42, W_BYTES); srd(A, 56, 36, W_BYTES); srd(A, 60, 38, W_BYTES)
    LB = 131072
    for par in range(2):
        em.emit((l >> 3) * 896 + ((l & 7) ^ (((l >> 4) & 1) * 2 + par * 4)) * 16, f'v{24+par}')
    A('s_lshl_b32 s19, s16, 8\ns_lshl_b32 s33, s9, 6\ns_add_u32 s19, s19, s33\ns_mul_i32 s19, s19, 896\ns_lshl_b32 s33, s13, 7\ns_add_u32 s19, s19, s33')
    for k in range(8):
        A(f's_add_u32 m0, s34, {LB + k*1024}\ns_add_u32 s33, s19, {k*8*896}')
        w.vmem(f'buffer_load_dwordx4 v{24+(k&1)}, s[24:27], s33 offen lds', 'B0')
    for i in range(8):
        r = (l >> 5) + 2 * i
        em.emit(((r >> 2) * 8 + (r & 3)) * 8192 + ((l & 31) ^ r) * 16 - (i & 3) * 1024, f'v{8+i}')
    def tile_dma(srd_, soff, lds, tag):
        for i in range(8):
            if i % 4 == 0: A(f's_add_u32 m0, {lds[0]}, {lds[1] + i*1024}')
            w.vmem(f'buffer_load_dwordx4 v{8+i}, {srd_}, {soff} offen offset:{(i&3)*1024} lds', tag)
    def load_a(task, k):
        A(f's_add_u32 s33, s{52+k}, 32768')
        for b in range(2): tile_dma(('s[20:23]', 's[56:59]')[task], 's33' if b else f's{52+k}', ('s35', k * 16384 + b * 8192), f'A{task}{k}')
    load_a(0, 0); load_a(0, 1)
    tline(A, c2, 5, 0x4000)
    al = (l >> 2) & 3; c = l & 3
    f = ((al >> 1) & 1) * 2 + (g & 1) * 4
    for t in range(4):
        em.emit(LB + (g * 8 + al) * 128 + ((f ^ (2 * t)) + (c >> 1)) * 16 + (c & 1) * 8, f'v{20+t}')
    for q in range(4):
        em.emit(rho * 512 + (((rho & 12) ^ (4 * q)) + (g ^ (rho & 3))) * 16, f'v{4+q}')
        A(f'v_add_u32 v{16+q}, {LB}, v{4+q}\nv_add_u32 v{4+q}, s35, v{4+q}')
    em.emit(g * 7168 + rho * 16, 'v2')
    em.emit(l * 16, 'v3')
    breg = lambda t, ks: f'a[{(t*8+ks)*4}:{(t*8+ks)*4+3}]'
    areg = lambda k, b, ks: vr(64 + ((k * 2 + b) * 8 + ks) * 4, 4)
    ACCR = lambda b, t: 32 + (b * 4 + t) * 4
    def read_a(k, b, ks): A(f'ds_read_b128 {areg(k,b,ks)}, v{4+(ks&3)} offset:{k*16384 + b*8192 + (ks>>2)*256}')
    def pair(task, k):
        for ks in range(8):
            for b in range(2):
                for t in range(4):
                    A(mfma(vr(ACCR(b, t), 4), areg(k, b, ks), breg(t, ks), 0 if ks == 0 else None))
                if k == 0 and ks == 4 and b == 0:
                    A('s_waitcnt vmcnt(0)')
                    if task == 0:
                        A('buffer_load_dword v26, off, s[48:51], 0 offset:132 sc1')
                        if cfg.get('touch2'):
                            A('s_lshl_b32 s19, s10, 2\ns_add_u32 s19, s19, s9\ns_lshl_b32 s19, s19, 12\nv_and_b32 v27, 31, v0\nv_lshlrev_b32 v27, 7, v27')
                            A('buffer_load_dword v28, v27, s[56:59], s19 offen\nbuffer_load_dword v29, v27, s[60:63], s19 offen')
                if k == 0 and ks >= 4: read_a(1, b, 2 * (ks - 4)); read_a(1, b, 2 * (ks - 4) + 1)
        for t in range(4):
            o = 192 + 16 * k + 4 * t
            for b in range(2):
                a = ACCR(b, t)
                if task:
                    for r in range(4): A(f'v_mul_f32 v{a+r}, s47, v{a+r}')
                A(f'v_cvt_pk_bf16_f32 v{o+2*b}, v{a}, v{a+1}\nv_cvt_pk_bf16_f32 v{o+2*b+1}, v{a+2}, v{a+3}')
    def stores(task, k):
        sp, stt = ((28672, 256), (1024, 14336))[task]
        A(f's_add_u32 s19, s17, {k}\ns_mul_i32 s19, s19, {sp}\ns_add_u32 s19, s19, s44')
        for t in range(4):
            w.vmem(f'buffer_store_dwordx4 {vr(192+16*k+4*t,4)}, v{2+task}, s[4:7], s19 offen {st}')
            if t < 3: A(f's_add_u32 s19, s19, {stt}')
    def signal(task, keep, sfx=''):
        lab = f'P_sig{task}{sfx}'
        A(f's_waitcnt vmcnt({keep})\ns_barrier\ns_cmp_lg_u32 s9, 0\ns_cbranch_scc1 {lab}')
        if task == 0:
            A(f'v_cmp_eq_u32 vcc, 0, v26\ns_cbranch_vccz P_zok{sfx}')
            zero_ready(A, f'P_zr{sfx}', tmo)
            A(f'P_zok{sfx}:')
        A(f's_lshl_b32 s19, {"s45" if task == 0 else "s16"}, 7\ns_add_u32 s19, s19, {(FB, FA)[task]}')
        if task and loc: A('s_lshl_b32 s11, s12, 11\ns_add_u32 s19, s19, s11')
        A('v_mov_b32 v1, 1\ns_mov_b64 exec, 1')
        A(f'buffer_atomic_add v1, off, s[4:7], s19 sc1\ns_mov_b64 exec, -1\n{lab}:')
    for task in range(2):
        if task == 0:
            w.wait(vm='B0'); A('s_barrier')
            tline(A, c2, 6, 0x4000)
            for t in range(4):
                for ks in range(8):
                    n = (t * 8 + ks) * 4
                    A(f'ds_read_b64_tr_b16 a[{n}:{n+1}], v{20+t} offset:{ks*4096}')
                    A(f'ds_read_b64_tr_b16 a[{n+2}:{n+3}], v{20+t} offset:{ks*4096+512}')
            A(f's_mul_i32 s44, s16, {14*28672}\ns_lshl_b32 s19, s13, 10\ns_add_u32 s44, s44, s19\ns_add_u32 s44, s44, {BF}')
            w.wait(vm='A00')
        else:
            A('s_waitcnt vmcnt(16)\ns_barrier')
            for t in range(4):
                for ks in range(8): A(f'ds_read_b128 {breg(t,ks)}, v{16+(ks&3)} offset:{t*8192 + (ks>>2)*256}')
            A(f's_mul_i32 s44, s16, {28*14336}\ns_mul_i32 s19, s13, {4*14336}\ns_add_u32 s44, s44, s19\ns_add_u32 s44, s44, {AF}')
            A(f's_mov_b32 s47, {f32(CSC)}')
        for ks in range(8):
            for b in range(2): read_a(0, b, ks)
        A('s_waitcnt lgkmcnt(0)'); w.vm = []
        if task == 0: A('s_barrier')
        pair(task, 0)
        A('s_waitcnt lgkmcnt(0)')
        stores(task, 0)
        A(f's_cmp_eq_u32 s9, 3\ns_cbranch_scc1 P_skip{task}')
        pair(task, 1)
        stores(task, 1)
        A(f'P_skip{task}:')
        tline(A, c2, 1 + 2 * task, 0x4000)
        dstamp(A, cfg, 10 + task, 100, 1)
        if task == 0:
            A('s_mov_b32 s45, s16')
            if loc:
                A('s_cmp_lt_u32 s10, 64\ns_cbranch_scc0 P_hasa')
                signal(0, 0, 'v')
                A('s_branch P_gdone\nP_hasa:\ns_sub_u32 s46, s10, 64\ns_mov_b32 s55, 0\nP_atask:')
                A('s_cmp_lt_u32 s46, 112\ns_cselect_b32 s12, 1, 0\ns_cselect_b32 s11, 0, 112\ns_sub_u32 s11, s46, s11')
                A('s_mul_i32 s16, s11, 9363\ns_lshr_b32 s16, s16, 16\ns_mul_i32 s13, s16, 7\ns_sub_u32 s13, s11, s13')
                derive()
            A('s_lshl_b32 s19, s13, 1\ns_lshr_b32 s33, s9, 1\ns_add_u32 s19, s19, s33\ns_lshl_b32 s19, s19, 18\ns_and_b32 s33, s9, 1\ns_lshl_b32 s33, s33, 15')
            A('s_add_u32 s19, s19, s33\ns_add_u32 s19, s19, s18')
            npre = cfg.get('npre', 1)
            tile_dma('s[60:63]', 's19', ('s34', LB), 'B1')
            if npre >= 2: load_a(1, 0)
            if npre >= 3: load_a(1, 1)
            if loc: A('s_cmp_lg_u32 s55, 0\ns_cbranch_scc1 P_nosig')
            signal(0, (8, 24, 40)[npre - 1])
            if loc: A('P_nosig:')
            if npre < 2: load_a(1, 0)
            if npre < 3: load_a(1, 1)
        else:
            signal(1, 0)
            if loc:
                A('s_add_u32 s46, s46, 160\ns_mov_b32 s55, 1\ns_cmp_lt_u32 s46, 224\ns_cbranch_scc1 P_atask\nP_gdone:')
        tline(A, c2, 2 + 2 * task, 0x4000)

def local_A(A, cfg):
    w = Wv(A, {})
    em = Emitter(A, [f'v{i}' for i in range(16, 40)])
    l = V('v0'); g = l >> 4; rho = l & 15
    srd(A, 56, 36, W_BYTES); srd(A, 60, 38, W_BYTES)
    for i in range(8):
        r = (l >> 5) + 2 * i
        em.emit(((r >> 2) * 8 + (r & 3)) * 8192 + ((l & 31) ^ r) * 16 - (i & 3) * 1024, f'v{8+i}')
    A('s_lshl_b32 s18, s10, 9\ns_lshl_b32 s35, s9, 15\ns_lshl_b32 s19, s9, 19\ns_add_u32 s19, s19, s18')
    for k in range(4):
        if k: A(f's_add_u32 s19, s19, {32768 if k & 1 else 262144 - 32768}')
        for i in range(8):
            if i % 4 == 0: A(f's_add_u32 m0, s35, {k*8192 + i*1024}')
            w.vmem(f'buffer_load_dwordx4 v{8+i}, s[56:59], s19 offen offset:{(i&3)*1024} lds', 'Q')
    em.emit(((rho >> 2) * 8 + (rho & 3)) * 8192 + g * 16, 'v1')
    A('s_lshr_b32 s11, s9, 1\ns_mul_i32 s34, s11, 7\ns_and_b32 s33, s9, 1\ns_lshl_b32 s12, s33, 2\ns_add_u32 s12, s12, s34\ns_add_u32 s34, s34, 3')
    breg = lambda tl, ks: wquad(tl * 7 + 4 + (ks >> 1), ks & 1) if ks < 6 else vr(64 + 8 * tl + 4 * (ks - 6), 4)
    def load_b(tl):
        if tl < 6: A(f's_add_u32 s19, s12, {tl>>1}\ns_lshl_b32 s19, s19, 18\ns_add_u32 s19, s19, s18' + ('\ns_add_u32 s19, s19, 32768' if tl & 1 else ''))
        else: A('s_lshl_b32 s19, s34, 18\ns_add_u32 s19, s19, s18\ns_lshl_b32 s11, s33, 15\ns_add_u32 s19, s19, s11')
        for ks in range(8): w.vmem(f'buffer_load_dwordx4 {breg(tl,ks)}, v1, s[60:63], s19 offen offset:{ks*64}', f'K{tl}')
    for tl in range(3): load_b(tl)
    for q in range(4): em.emit(rho * 512 + (((rho & 12) ^ (4 * q)) + (g ^ (rho & 3))) * 16, f'v{2+q}')
    w.wait(vm='Q')
    for tl in range(3, 7): load_b(tl)
    A(f's_barrier\ns_mov_b32 s47, {f32(CSC)}')
    tline(A, dict(cfg, tlreg=6), 5, 0x4000)
    groups = [(0, 1), (2, 3), (4, 5), (6,)]
    jobs = [(t, b, gr) for t in range(4) for b in range(2) for gr in groups]
    steps = [(jn, ks, bp) for jn in range(len(jobs)) for ks in range(8) for bp in range(2)]
    def addr_regs(t, b):
        o = 56 if (t * 2 + b) % 2 == 0 else 60
        return [o, o + 1, o + 2, o + 3]
    def set_addr(t, b):
        A(f's_add_u32 s11, s9, s10\ns_add_u32 s11, s11, {t}\ns_and_b32 s11, s11, 3\ns_lshl_b32 s11, s11, 15' + ('\ns_add_u32 s11, s11, 16384' if b else ''))
        for q, r in enumerate(addr_regs(t, b)): A(f'v_add_u32 v{r}, s11, v{2+q}')
    def read(n):
        jn, ks, bp = steps[n]; t, b, gr = jobs[jn]
        if ks == 0 and bp == 0 and gr == groups[0]: set_addr(t, b)
        w.ds(f'ds_read_b128 {vr(40 + 4*(n & 3), 4)}, v{addr_regs(t, b)[ks & 3]} offset:{bp*8192 + (ks>>2)*256}', f'R{n}')
    acc = lambda jn, bp, j: 8 + (jn & 1) * 16 + (bp * 2 + j) * 4
    def epilogue(jn):
        t, b, gr = jobs[jn]; ops = []
        for j, tl in enumerate(gr):
            dst = wquad(tl * 7 + t, b); base = int(dst[2:dst.index(':')])
            for bp in range(2):
                a = acc(jn, bp, j)
                ops += [f'v_mul_f32 v{a+r}, s47, v{a+r}' for r in range(4)]
                for k in range(2):
                    if dst[0] == 'v': ops.append(f'v_cvt_pk_bf16_f32 v{base+2*bp+k}, v{a+2*k}, v{a+2*k+1}')
                    else: ops += [f'v_cvt_pk_bf16_f32 v{6+k}, v{a+2*k}, v{a+2*k+1}', f'v_accvgpr_write_b32 a{base+2*bp+k}, v{6+k}']
        return ops
    for n in range(3): read(n)
    pend = []
    for n, (jn, ks, bp) in enumerate(steps):
        t, b, gr = jobs[jn]
        if n + 3 < len(steps): read(n + 3)
        w.wait(lg=f'R{n}')
        if jn < 4 and ks == 0 and bp == 0: w.wait(vm=f'K{gr[-1]}')
        first = ks == 0 and bp == 0
        for j, tl in enumerate(gr):
            A(mfma(vr(acc(jn, bp, j), 4), vr(40 + 4 * (n & 3), 4), breg(tl, ks), 0 if ks == 0 else None))
            if not first:
                for _ in range(2 if len(gr) == 2 else 3):
                    if pend: A(pend.pop(0))
        if first and jn:
            assert not pend
            pend = epilogue(jn - 1)
    assert not pend
    for op in epilogue(len(jobs) - 1): A(op)
    A('s_waitcnt vmcnt(0) lgkmcnt(0)\ns_barrier')
    tline(A, dict(cfg, tlreg=6), 6, 0x4000)

def gen_misc(A, cfg, tmo):
    st = 'sc1'
    c2 = dict(cfg, tlreg=1)
    l = V('v0'); g = l >> 4; rho = l & 15
    em = Emitter(A, [f'v{i}' for i in range(200, 230)])
    two = (cfg.get('locala', 1) and not cfg.get('fakeloc')) or cfg.get('amisc')
    A('s_mov_b32 s12, s10')
    srd(A, 20, 28, S * D * 2); srd(A, 24, 30, M * D * 2)
    A('P_pass:\ns_lshl_b32 s13, s12, 2\ns_add_u32 s13, s13, s9')
    tid = l + Sg('s9') * 64
    em.emit(tid * 16, 'v2')
    A(f'v_mov_b64 v[184:185], 0\nv_mov_b64 v[186:187], 0\ns_lshl_b32 s15, s12, 12\ns_add_u32 s16, s15, {HU1}')
    if two: A('s_cmp_ge_u32 s12, 16\ns_cbranch_scc1 P_noz')
    A(f'buffer_store_dwordx4 v[184:187], v2, s[4:7], s16 offen {st}')
    if two: A(f's_add_u32 s16, s16, 65536\nbuffer_store_dwordx4 v[184:187], v2, s[4:7], s16 offen {st}\nP_noz:')
    em.emit(rho * 896 + g * 16, 'v1')
    A('s_mul_i32 s14, s13, 14336')
    for p in range(14): A(f'buffer_load_dwordx4 {vr(4+4*p,4)}, v1, s[20:23], s14 offen offset:{p*64}')
    A('s_cmp_lt_u32 s12, 30\ns_cbranch_scc1 P_nomem')
    gi = (Sg('s12') - 30) * 256 + tid
    rr = gi & 15
    em.emit(sel_lt(gi, 448, (((rr >> 2) * 2 + (rr & 1)) * 448 + (gi >> 4) * 16 + ((rr >> 1) & 1) * 2) * 2, OOB), 'v3')
    for q in range(4): A(f'buffer_load_dword v{188+q}, v3, s[24:27], 0 offen offset:{q*8}')
    em.emit(sel_lt(gi, 448, gi * 16 + MS, OOB), 'v3')
    A('s_waitcnt vmcnt(0)')
    for q in range(4): A(f'v_min_u32 v{188+q}, -2, v{188+q}')
    A(f'buffer_store_dwordx4 v[188:191], v3, s[4:7], 0 offen {st}\ns_waitcnt vmcnt(1)\ns_branch P_memok\nP_nomem:')
    A('s_waitcnt vmcnt(0)\nP_memok:')
    if two:
        A('s_cmp_ge_u32 s12, 16\ns_cbranch_scc1 P_zdone')
        A(f's_add_u32 s11, s14, {64*14336}')
        for p in range(0, 14, 2): A(f'buffer_load_dword a0, v1, s[20:23], s11 offen offset:{p*64}')
    A('s_barrier\ns_cmp_lg_u32 s9, 0\ns_cbranch_scc1 P_zdone')
    A('v_mov_b32 v1, 1\ns_mov_b64 exec, 1\nbuffer_atomic_add v1, off, s[48:51], 0 offset:8 sc0 sc1\ns_waitcnt vmcnt(0)\ns_mov_b64 exec, -1')
    A(f'v_readfirstlane_b32 s11, v1\ns_cmp_lg_u32 s11, {15 if two else 31}\ns_cbranch_scc1 P_zdone\nv_mov_b32 v1, 1\nbuffer_store_dword v1, off, s[48:51], 0 offset:132 sc1\nP_zdone:')
    A('v_mov_b64 v[180:181], -1\nv_mov_b64 v[182:183], -1')
    A(f's_lshl_b32 s15, s12, 14\ns_add_u32 s15, s15, {MX}')
    for k in range(4):
        A(f'buffer_store_dwordx4 v[180:183], v2, s[4:7], s15 offen {st}' + ('\ns_add_u32 s15, s15, 4096' if k < 3 else ''))
    A(f's_lshl_b32 s15, s12, 12')
    A(f's_add_u32 s16, s15, {VM + (NSEG-1)*VM_SEG}\ns_cmp_lt_u32 s12, 28\ns_cselect_b32 s16, s16, {OOB}\nbuffer_store_dwordx4 v[180:183], v2, s[4:7], s16 offen {st}')
    A(f's_add_u32 s16, s15, {PX + (NSEG-1)*PX_SEG}\ns_cmp_lt_u32 s12, 10\ns_cselect_b32 s16, s16, {OOB}\nbuffer_store_dwordx4 v[180:183], v2, s[4:7], s16 offen {st}')
    A(f's_mov_b32 s16, {PS}\ns_cmp_lt_u32 s12, 16\ns_cselect_b32 s16, s16, {MS + 8192 - 16*4096}\ns_add_u32 s16, s16, s15')
    A(f's_cmp_ge_u32 s12, 22\ns_cbranch_scc1 P_nofill\nbuffer_store_dwordx4 v[180:183], v2, s[4:7], s16 offen {st}\nP_nofill:')
    for k in range(56):
        A(f'v_lshlrev_b32 v{64+2*k}, 16, v{4+k}\nv_and_b32 v{65+2*k}, 0xffff0000, v{4+k}')
    def allred(r):
        A(f'v_mov_b32 v{r+1}, v{r}\nv_permlane16_swap_b32 v{r}, v{r+1}\nv_add_f32 v{r}, v{r}, v{r+1}')
        A(f'v_mov_b32 v{r+1}, v{r}\nv_permlane32_swap_b32 v{r}, v{r+1}\nv_add_f32 v{r}, v{r}, v{r+1}')
    A('v_pk_add_f32 v[180:181], v[64:65], v[66:67]\nv_pk_add_f32 v[182:183], v[68:69], v[70:71]')
    for k in range(4, 56): A(f'v_pk_add_f32 v[{180+2*(k&1)}:{181+2*(k&1)}], v[{180+2*(k&1)}:{181+2*(k&1)}], v[{64+2*k}:{65+2*k}]')
    A('v_pk_add_f32 v[180:181], v[180:181], v[182:183]\nv_add_f32 v180, v180, v181')
    allred(180)
    A(f'v_mul_f32 v180, {f32(1/448)}, v180          ; mean')
    A('v_mov_b64 v[184:185], 0\nv_mov_b64 v[186:187], 0')
    for k in range(56):
        t = 188 + 2 * (k & 1); s_ = 184 + 2 * (k & 1)
        A(f'v_pk_add_f32 v[{t}:{t+1}], v[{64+2*k}:{65+2*k}], v[180:181] op_sel_hi:[1,0] neg_lo:[0,1] neg_hi:[0,1]')
        A(f'v_pk_fma_f32 v[{s_}:{s_+1}], v[{t}:{t+1}], v[{t}:{t+1}], v[{s_}:{s_+1}]')
    A('v_pk_add_f32 v[184:185], v[184:185], v[186:187]\nv_add_f32 v184, v184, v185')
    allred(184)
    A(f'v_mul_f32 v184, {f32(1/448)}, v184          ; variance')
    rnd = lambda r: A(f'v_cvt_pk_bf16_f32 v{r}, v{r}, v{r}\nv_and_b32 v{r}, 0xffff0000, v{r}')
    rnd(180); rnd(184)
    A(f'v_add_f32 v184, {f32(1e-5)}, v184'); rnd(184)
    A('v_sqrt_f32 v184, v184'); rnd(184)
    A('v_rcp_f32 v184, v184')
    em.emit(l * 16, 'v2')
    if XF: A(f's_add_u32 s14, s14, {XF}')
    for k in range(56):
        a = 64 + 2 * k
        A(f'v_pk_add_f32 v[{a}:{a+1}], v[{a}:{a+1}], v[180:181] op_sel_hi:[1,0] neg_lo:[0,1] neg_hi:[0,1]')
        A(f'v_cvt_pk_bf16_f32 v{a}, v{a}, v{a+1}\nv_and_b32 v{a+1}, 0xffff0000, v{a}\nv_lshlrev_b32 v{a}, 16, v{a}')
        A(f'v_pk_mul_f32 v[{a}:{a+1}], v[{a}:{a+1}], v[184:185] op_sel_hi:[1,0]')
        A(f'v_cvt_pk_bf16_f32 v{4+k}, v{a}, v{a+1}')
        if k % 4 == 3:
            p = k >> 2
            if p and p % 4 == 0: A('s_add_u32 s14, s14, 4096')
            A(f'buffer_store_dwordx4 {vr(4+4*p,4)}, v2, s[4:7], s14 offen offset:{(p%4)*1024} {st}')
    if two: A('s_add_u32 s12, s12, 16\ns_cmp_lt_u32 s12, 32\ns_cbranch_scc1 P_pass')
    A('s_waitcnt vmcnt(0)\ns_barrier\ns_cmp_lg_u32 s9, 0\ns_cbranch_scc1 P_xdone')
    zero_ready(A, 'P_zr2', tmo)
    A(f's_mov_b32 s19, {FX}\nv_mov_b32 v1, 1\ns_mov_b64 exec, 1\nbuffer_atomic_add v1, off, s[4:7], s19 sc1\ns_mov_b64 exec, -1\nP_xdone:')
    tline(A, c2, 2, 0x4000)
```

```python
from asmdsl import Asm
from expr import X, V, Sg, Emitter, ev, sel_lt, wrap
from layout import *
import numpy as np

SRD = 's[4:7]'
def vr(a, n=1): return f'v{a}' if n == 1 else f'v[{a}:{a+n-1}]'
def wreg(o):
    return f'a[{8*o}:{8*o+7}]' if o < 32 else f'v[{120+8*(o-32)}:{127+8*(o-32)}]'
def wquad(o, b):
    return f'a[{8*o+4*b}:{8*o+4*b+3}]' if o < 32 else f'v[{120+8*(o-32)+4*b}:{123+8*(o-32)+4*b}]'

class Wv:
    def __init__(self, A, cfg):
        self.A = A; self.vm = []; self.lg = []; self.cfg = cfg; self.nst = 0
    def __call__(self, t): self.A(t)
    def vmem(self, t, tag=None): self.A(t); self.vm.append(tag)
    def ds(self, t, tag=None): self.A(t); self.lg.append(tag)
    def wait(self, vm=None, lg=None):
        parts = []
        if vm is not None and vm in self.vm:
            i = len(self.vm) - 1 - self.vm[::-1].index(vm)
            parts.append(f'vmcnt({len(self.vm)-1-i})'); self.vm = self.vm[i+1:]
        if lg is not None and lg in self.lg:
            i = len(self.lg) - 1 - self.lg[::-1].index(lg)
            n = min(len(self.lg) - 1 - i, 15)
            parts.append(f'lgkmcnt({n})'); self.lg = self.lg[i+1:]
        if parts: self.A('s_waitcnt ' + ' '.join(parts))
    def wait_all_lg(self): self.A('s_waitcnt lgkmcnt(0)'); self.lg = []
    def wait_all_vm(self): self.A('s_waitcnt vmcnt(0)'); self.vm = []
    def stamp(self, name=None):
        if self.cfg.get('stamps'):
            assert self.nst < 12
            self.A(f's_memtime s[{60+2*self.nst}:{61+2*self.nst}]'); self.nst += 1
    def dump_stamps(self, lab):
        if not self.cfg.get('stamps'): return
        A = self.A
        A(f's_waitcnt lgkmcnt(0)\ns_cmp_lg_u32 s8, 6\ns_cbranch_scc1 {lab}_nocal')
        A(f's_memrealtime s[96:97]\ns_waitcnt lgkmcnt(0)\n{lab}_cal:\ns_memrealtime s[98:99]\ns_memtime s[100:101]\ns_waitcnt lgkmcnt(0)\ns_cmp_eq_u32 s96, s98\ns_cbranch_scc1 {lab}_cal')
        for k in range(12): A(f's_mov_b32 s{84+k}, 0')
        A(f'{lab}_nocal:\ns_cmp_lt_u32 s8, 8\ns_cbranch_scc1 {lab}_nodump\ns_cmp_gt_u32 s8, 57\ns_cbranch_scc1 {lab}_nodump')
        for k in range(self.nst): A(f's_sub_u32 s11, s{60+2*k}, s100\ns_add_u32 s{84+k}, s{84+k}, s11')
        A(f's_cmp_lg_u32 s8, 57\ns_cbranch_scc1 {lab}_nodump')
        A('s_lshl_b32 s11, s3, 2\ns_add_u32 s11, s11, s9\ns_lshl_b32 s11, s11, 6')
        A(f's_add_u32 s11, s11, {DBG}')
        A(f'v_mov_b32 v0, s98\nv_mov_b32 v2, 0x4000\nbuffer_store_dword v0, v2, {SRD}, s11 offen')
        for k in range(self.nst):
            A(f'v_mov_b32 v0, s{84+k}\nv_mov_b32 v1, {4*k}\nbuffer_store_dword v0, v1, {SRD}, s11 offen')
        A(f's_waitcnt vmcnt(0)\n{lab}_nodump:')

def tline(A, cfg, k, base=0, idx='s3'):
    if not cfg.get('tl'): return
    lab = A.newlabel(f'TL{base}')
    A(f's_cmp_lg_u32 s9, 0\ns_cbranch_scc1 {lab}')
    A(f's_memrealtime s[96:97]\ns_lshl_b32 s98, {idx}, 6\ns_add_u32 s98, s98, {DBG + 0x8000 + base + 4*k}\ns_waitcnt lgkmcnt(0)')
    A(f'v_accvgpr_write_b32 a255, s96' if False else f'v_mov_b32 v{cfg.get("tlreg", 95)}, s96')
    A(f'buffer_store_dword v{cfg.get("tlreg", 95)}, off, {SRD}, s98')
    if cfg.get('tlclk'):
        A(f's_memtime s[96:97]\ns_waitcnt lgkmcnt(0)\nv_mov_b32 v{cfg.get("tlreg", 95)}, s96\nbuffer_store_dword v{cfg.get("tlreg", 95)}, off, {SRD}, s98 offset:32')
    A(f'{lab}:')

def dstamp(A, cfg, k, slot, reg):
    if not cfg.get('ds'): return
    lab = A.newlabel('DS')
    A(f's_cmp_lg_u32 s9, 0\ns_cbranch_scc1 {lab}\ns_cmp_lg_u32 s3, {slot}\ns_cbranch_scc1 {lab}')
    A(f's_load_dwordx2 s[96:97], s[0:1], 104\ns_memrealtime s[94:95]\ns_waitcnt lgkmcnt(0)\ns_mov_b32 s98, 256\ns_mov_b32 s99, 0x20000')
    A(f's_and_b32 s94, s94, 0xfffff\nv_mov_b32 v{reg}, s94\nbuffer_store_dword v{reg}, off, s[96:99], 0 offset:{4*k}\n{lab}:')

def smf(acc, a, b, idx): return f'v_smfmac_f32_16x16x64_bf16 {vr(acc,4)}, {a}, {b}, {idx}'

KM = 3
MREG = [16, 20, 24, 0, 4, 8, 12]
ACC = [28 + 4 * t for t in range(7)]
vIDX, vL16, vHUp, vHUs = 'v119', 'v118', 'v117', 'v116'
vKA = ['v115', 'v114', 'v113', 'v112', 'v111', 'v110', 'v109']
sSTEP, sW, sR = 's8', 's9', 's10'
sKK = [f's{12+t}' for t in range(7)]
sSPIN, sRETRY, sS1 = 's19', 's20', 's31'
sMO = ['s36', 's37', 's38']
SPIN_MAX = 0x80000
L_K = 131072

def common_consts(em, A, lab, rot, swap=False):
    l = V('v0')
    em.emit(l & 63, 'v0')
    em.emit(sel_lt(l & 2, 1, 0x44444444, 0xEEEEEEEE), vIDX)
    em.emit(l * 16, vL16)
    if swap: A(f's_xor_b32 s33, {sW}, 2\ns_lshl_b32 s33, s33, 1')
    else: A(f's_lshl_b32 s33, {sW}, 1\ns_add_u32 s33, s33, {rot}')
    for _ in range(3): A('s_cmp_ge_u32 s33, 7\ns_cselect_b32 s35, 7, 0\ns_sub_u32 s33, s33, s35')
    for t in range(7):
        A(f's_add_u32 s34, s33, {t}\ns_cmp_ge_u32 s34, 7\ns_cselect_b32 s35, 7, 0\ns_sub_u32 s34, s34, s35\ns_lshl_b32 {sKK[t]}, s34, 10')
    em.emit(L_K + l * 16, 'v1')
    for t in range(7): A(f'v_add_u32 {vKA[t]}, {sKK[t]}, v1')
    A(f's_cmp_lg_u32 {sW}, {1 if swap else 3}\ns_cbranch_scc1 {lab}_w3skip\nv_add_u32 {vKA[1]}, 7168, v1\n{lab}_w3skip:')

def step_consts(A, solo=False):
    A(f's_and_b32 s11, {sSTEP}, {0 if solo else 3}\ns_lshl_b32 s33, s11, 13\ns_add_u32 s33, s33, {MS}')
    for t in range(3): A(f's_add_u32 {sMO[t]}, s33, {sKK[t]}')
    A(f's_add_u32 {sS1}, {sSTEP}, 1')

def align(A, cfg, key):
    a = cfg.get(key)
    if a:
        A(f'.p2align {a[0]}')
        for _ in range(a[1]): A('s_nop 0')

def poll(w, lab, vp, sval, tmo, nl):
    w(f'v_mov_b32 {vp}, 0')
    if w.cfg.get('pollmask', 1): w(f's_mov_b32 exec_lo, {hex((1 << nl) - 1) if nl < 32 else -1}\ns_mov_b32 exec_hi, 0')
    align(w.A, w.cfg, 'apoll')
    w(f'{lab}:')
    if w.cfg.get('pollnop'): w(f's_nop {w.cfg["pollnop"]-1}')
    w(f'buffer_load_dword {vp}, {vHUp}, {SRD}, 0 offen sc1')
    w(f's_waitcnt vmcnt({w.cfg.get("polldepth", 40)})')
    w(f'v_cmp_gt_u32 vcc, {sval}, {vp}')
    w(f's_sub_u32 {sSPIN}, {sSPIN}, 1\ns_cbranch_scc1 {tmo}')
    w(f's_cbranch_vccnz {lab}')
    if w.cfg.get('pollmask', 1): w('s_mov_b64 exec, -1')
    w.vm = []

def zero(w, a, n):
    for i in range(a, a + n, 2): w(f'v_mov_b64 {vr(i,2)}, 0')

def sentinel_check(w, regs, tmp):
    w(f'v_max3_u32 {tmp}, v{regs[0]}, v{regs[1]}, v{regs[2]}')
    r = regs[3:]
    while len(r) >= 2:
        w(f'v_max3_u32 {tmp}, {tmp}, v{r[0]}, v{r[1]}'); r = r[2:]
    if r: w(f'v_max_u32 {tmp}, {tmp}, v{r[0]}')
    w(f'v_cmp_eq_u32 vcc, -1, {tmp}')

def weight_stream(w, fill, comb_write, lab, tmp, tmo=None, mpoll=False, early=None):
    cfg = w.cfg; ND = cfg.get('nd', 2)
    align(w.A, cfg, 'aB')
    w(f'{lab}_mload:')
    w.vm = []; w.lg = []
    if mpoll:
        assert ND == 2
        for t in range(ND):
            w(f'buffer_load_dwordx4 {vr(MREG[t],4)}, {vL16}, {SRD}, {sMO[t]} offen sc1')
        if cfg.get('mnop'): w(f's_nop {cfg["mnop"]-1}')
        w(f's_waitcnt vmcnt({cfg.get("bdepth", 0)})')
        sentinel_check(w, list(range(MREG[0], MREG[0] + 8)), f'v{tmp}')
        w(f's_sub_u32 {sSPIN}, {sSPIN}, 1\ns_cbranch_scc1 {tmo}')
        w(f's_cbranch_vccnz {lab}_mload')
        w.vm = ['MP']
        if early: early()
    else:
        for t in range(ND):
            w(f's_setprio {ND-1-t}')
            w.vmem(f'buffer_load_dwordx4 {vr(MREG[t],4)}, {vL16}, {SRD}, {sMO[t]} offen sc1', f'M{t}')
        if early: early()
    order = [(tl, t) for t in range(KM) for tl in range(7)] + [(tl, t) for tl in range(7) for t in range(KM, 7)]
    pre = {}; mem = {}; val = {}
    ad = lambda d, n, f: d.setdefault(n, []).append(f)
    w1 = 1 if mpoll else cfg.get('w1', 3)
    for t, s0 in ((0, 0), (1, w1)):
        m = MREG[t]
        ad(pre, s0, lambda t=t: w.wait(vm=f'M{t}'))
        ad(mem, s0, lambda t=t, m=m: w.ds(f'ds_write_b128 {vKA[t]}, {vr(m,4)}'))
    if mpoll:
        bs = w1 + cfg.get('mbar', 4)
        def sync():
            w.wait_all_lg(); w('s_barrier')
        ad(pre, 20, lambda: w.wait(vm='MP'))
    else:
        m0, m1, m2 = MREG[0], MREG[1], MREG[2]
        ad(val, 1, lambda: w(f'v_max3_u32 v{tmp}, v{m0}, v{m0+1}, v{m0+2}'))
        c = w1 + 1
        ad(val, c, lambda: w(f'v_max3_u32 v{tmp}, v{tmp}, v{m0+3}, v{m1}'))
        ad(val, c + 1, lambda: w(f'v_max3_u32 v{tmp}, v{tmp}, v{m1+1}, v{m1+2}'))
        if ND == 2:
            ad(val, c + 2, lambda: w(f'v_max_u32 v{tmp}, v{tmp}, v{m1+3}'))
            c += 3
        else:
            ad(pre, c + 2, lambda: w.wait(vm='M2'))
            ad(val, c + 2, lambda: w(f'v_max3_u32 v{tmp}, v{tmp}, v{m1+3}, v{m2}'))
            ad(val, c + 3, lambda: w(f'v_max3_u32 v{tmp}, v{tmp}, v{m2+1}, v{m2+2}'))
            ad(val, c + 4, lambda: w(f'v_max_u32 v{tmp}, v{tmp}, v{m2+3}'))
            c += 5
        ad(val, c, lambda: w(f'v_cmp_eq_u32 vcc, -1, v{tmp}'))
        bs = c + cfg.get('bdelay', 2)
        def sync():
            w(f's_cbranch_vccnz {lab}_mretry')
            w.wait_all_lg(); w('s_barrier')
    ad(mem, bs, sync)
    n = 0
    for t in range(ND, 7):
        m = MREG[t]
        ad(mem, bs + n, lambda t=t, m=m: w.ds(f'ds_read_b128 {vr(m,4)}, {vKA[t]}', f'M{t}'))
        n += 1
    per = 7 - KM; base = 7 * KM
    for tl in range(6):
        s0 = base + per * (tl + 1) + 1
        ad(val, s0, lambda tl=tl: w(f'v_add_f32 v{tmp}, v{ACC[tl]}, v{ACC[tl]+2}'))
        ad(val, s0 + 1, lambda tl=tl: w(f'v_add_f32 v{tmp+1}, v{ACC[tl]+1}, v{ACC[tl]+3}'))
        ad(val, s0 + 2, lambda: w(f'v_cvt_pk_bf16_f32 v{tmp+2}, v{tmp}, v{tmp+1}'))
        ad(mem, s0 + 3, lambda tl=tl: comb_write(tl, f'v{tmp+2}'))
    fl, fv = fill(bs + n)
    for k, fs in fv.items():
        for f in fs: ad(val, k, f)
    if cfg.get('stamps'):
        for k in cfg.get('bfine', [0]): ad(fl, k, lambda: w.stamp())
    for n, (tl, t) in enumerate(order):
        for f in pre.get(n, []): f()
        w.wait(vm=f'M{t}', lg=f'M{t}')
        w(smf(ACC[tl], vr(MREG[t], 4), wreg(tl * 7 + t), vIDX))
        for f in mem.get(n, []): f()
        for f in fl.get(n, []): f()
        for f in val.get(n, []): f()
    assert all(k < 49 for k in fl) and all(k < 49 for k in val)
    return [f for k in sorted(mem) if k >= 49 for f in mem[k]]

MREGA = [12, 16, 20, 24, 0, 4, 8]
def a_consts(em, A):
    l = V('v0')
    em.emit(l & 63, 'v0')
    em.emit(sel_lt(l & 2, 1, 0x44444444, 0xEEEEEEEE), vIDX)
    em.emit(l * 16, vL16)
    for t in range(4): A(f's_add_u32 s34, {sW}, {sR}\ns_add_u32 s34, s34, {t}\ns_and_b32 s34, s34, 3\ns_lshl_b32 {sKK[t]}, s34, 10')
    for t in range(4, 7): A(f's_movk_i32 {sKK[t]}, {t*1024}')
    em.emit(L_K + l * 16, vKA[4])
    for t in range(4): A(f'v_add_u32 {vKA[t]}, {sKK[t]}, {vKA[4]}')
    A(f's_lshl_b32 s29, {sW}, 10\ns_add_u32 s29, s29, 4096')

def a_step_consts(A, solo=False):
    A(f's_and_b32 s11, {sSTEP}, {0 if solo else 3}\ns_lshl_b32 s33, s11, 13\ns_add_u32 s33, s33, {MS}')
    A(f's_add_u32 s36, s33, {sKK[0]}\ns_add_u32 s37, s33, {sKK[1]}\ns_add_u32 s38, s33, s29\ns_add_u32 s39, s29, {L_K}')
    A(f's_add_u32 {sS1}, {sSTEP}, 1')

def a_stream(w, fill, comb_write, lab, tmp, tmo):
    cfg = w.cfg; MR = MREGA; KMA = 4; NE = cfg.get('ne', 2)
    align(w.A, cfg, 'aA')
    w(f'{lab}_mload:')
    w.vm = []; w.lg = []
    for t in range(NE): w(f'buffer_load_dwordx4 {vr(MR[t],4)}, {vL16}, {SRD}, s{36+t} offen sc1')
    if cfg.get('mnop'): w(f's_nop {cfg["mnop"]-1}')
    w(f's_waitcnt vmcnt({cfg.get("mdepth", 2)})')
    if cfg.get('poll1'):
        assert NE == 1 and cfg.get('nanchk', 1)
        w(f'v_cmp_eq_u32 vcc, -1, v{MR[0]+3}')
    else: sentinel_check(w, list(range(MR[0], MR[0] + 4 * NE)), f'v{tmp}')
    w(f's_sub_u32 {sSPIN}, {sSPIN}, 1\ns_cbranch_scc1 {tmo}')
    w(f's_cbranch_vccnz {lab}_mload')
    w(f'{lab}_again:')
    order = [(tl, t) for t in range(KMA) for tl in range(7)] + [(tl, t) for tl in range(7) for t in range(KMA, 7)]
    pre = {}; mem = {}; val = {}
    ad = lambda d, n, f: d.setdefault(n, []).append(f)
    ew = cfg.get('ew', 128)
    if ew == 128:
        if NE == 1: w.ds(f'ds_write_b128 {vKA[0]}, {vr(MR[0],4)}')
        else: ad(mem, 0, lambda: w.ds(f'ds_write_b128 {vKA[0]}, {vr(MR[0],4)}'))
    elif ew == 64:
        for k in range(2): ad(mem, k, lambda k=k: w.ds(f'ds_write_b64 {vKA[0]}, {vr(MR[0]+2*k,2)} offset:{8*k}'))
    else:
        for k in range(4): ad(mem, k, lambda k=k: w.ds(f'ds_write_b32 {vKA[0]}, v{MR[0]+k} offset:{4*k}'))
    bs = cfg.get('ebar', 2 if NE == 1 else 8)
    ad(mem, bs, lambda: (w.wait_all_lg(), w('s_barrier')))
    for t in range(NE, 4):
        ad(mem, bs + (t - NE), lambda t=t: w.ds(f'ds_read_b128 {vr(MR[t],4)}, {vKA[t]}', f'M{t}'))
    l0 = cfg.get('lslot', 3); lb = cfg.get('lbar', 17)
    ad(mem, l0 - 1, lambda: w('s_mov_b32 m0, s39'))
    ad(mem, l0, lambda: w.vmem(f'buffer_load_dwordx4 {vL16}, {SRD}, s38 offen sc1 lds', 'L'))
    ad(mem, lb, lambda: (w.wait(vm='L'), w('s_barrier')))
    for t in (4, 5, 6): ad(mem, lb + (t - 4) // 2, lambda t=t: w.ds(f'ds_read_b128 {vr(MR[t],4)}, {vKA[4]} offset:{t*1024}', f'M{t}'))
    nanchk = cfg.get('nanchk', 1)
    if nanchk:
        cs = lb + 1
        ad(val, 34, lambda: w(f'v_cmp_u_f32 vcc, v{tmp}, v{tmp+1}'))
        ad(mem, 36, lambda: w(f's_cbranch_vccnz {lab}_lretry\n{lab}_lok:'))
    else:
        lc = lb + 3
        w.lretry_state = None
        ad(pre, lc + 1, lambda: w.wait(lg='M5'))
        ad(val, lc + 1, lambda: w(f'v_max3_u32 v{tmp}, v0, v1, v2'))
        ad(val, lc + 2, lambda: w(f'v_max3_u32 v{tmp}, v{tmp}, v3, v4'))
        ad(pre, lc + 3, lambda: w.wait(lg='M6'))
        ad(val, lc + 3, lambda: w(f'v_max3_u32 v{tmp}, v{tmp}, v5, v6'))
        ad(val, lc + 4, lambda: w(f'v_max3_u32 v{tmp}, v{tmp}, v7, v8'))
        ad(val, lc + 5, lambda: w(f'v_max3_u32 v{tmp}, v{tmp}, v9, v10'))
        ad(val, lc + 6, lambda: (w(f'v_max_u32 v{tmp}, v{tmp}, v11'), w(f'v_cmp_eq_u32 vcc, -1, v{tmp}')))
        cs = lc + 7
        assert cs <= 27
        ad(mem, cs, lambda: w(f's_cbranch_vccnz {lab}_lretry\n{lab}_lok:'))
    per = 7 - KMA; base = 7 * KMA
    for tl in range(6):
        s0 = base + per * (tl + 1) + 1
        o = tmp + 2 if not (cfg.get('tw2') and tl % 2 == 0) else 97
        ad(val, s0, lambda tl=tl: w(f'v_add_f32 v{tmp}, v{ACC[tl]}, v{ACC[tl]+2}'))
        ad(val, s0 + 1, lambda tl=tl: w(f'v_add_f32 v{tmp+1}, v{ACC[tl]+1}, v{ACC[tl]+3}'))
        ad(val, s0 + 2, lambda o=o: w(f'v_cvt_pk_bf16_f32 v{o}, v{tmp}, v{tmp+1}'))
        if not cfg.get('tw2'): ad(mem, s0 + 3, lambda tl=tl, o=o: comb_write(tl, f'v{o}'))
        elif tl % 2: ad(mem, s0 + 3, lambda tl=tl, o=o: comb_write(tl, f'v97, v{o}'))
    fl, fv = fill(bs + 4 - NE, cs + 1)
    for k, fs in fv.items():
        for f in fs: ad(val, k, f)
    if cfg.get('stamps'):
        for k in cfg.get('fine', [0]): ad(fl, k, lambda: w.stamp())
    for n, (tl, t) in enumerate(order):
        for f in pre.get(n, []): f()
        w.wait(lg=f'M{t}')
        w(smf(ACC[tl], vr(MR[t], 4), wreg(tl * 7 + t), vIDX))
        for f in mem.get(n, []): f()
        for f in fl.get(n, []): f()
        for f in val.get(n, []): f()
    assert all(k < 49 for k in fl)
    return [f for k in range(49, 56) for f in mem.get(k, []) + val.get(k, [])]

def l_retry(w, lab, tmp, tmo):
    if w.cfg.get('nanchk', 1):
        w(f'{lab}_lretry:')
        sentinel_check(w, list(range(0, 28 if w.cfg.get('poll1') else 12)), f'v{tmp+3}')
        w(f'v_mov_b32 v{tmp+3}, {sS1}\ns_cbranch_vccz {lab}_lok')
        w(f's_add_u32 {sRETRY}, {sRETRY}, 1\ns_sub_u32 {sSPIN}, {sSPIN}, 16\ns_cbranch_scc1 {tmo}')
        w('s_waitcnt vmcnt(0) lgkmcnt(0)\ns_barrier')
        zero(w, 28, 28)
        if w.cfg.get('poll1'):
            w(f'buffer_load_dwordx4 {vr(MREGA[0],4)}, {vL16}, {SRD}, s36 offen sc1\ns_waitcnt vmcnt(0)')
        w(f's_branch {lab}_again')
        return
    w(f'{lab}_lretry:\ns_mov_b32 s33, m0\n{lab}_lretry2:')
    w(f's_add_u32 {sRETRY}, {sRETRY}, 1\ns_barrier\ns_mov_b32 m0, s39')
    w(f's_sub_u32 {sSPIN}, {sSPIN}, 4\ns_cbranch_scc1 {tmo}')
    w(f'buffer_load_dwordx4 {vL16}, {SRD}, s38 offen sc1 lds\ns_waitcnt vmcnt(0)\ns_barrier')
    for t in (4, 5, 6): w(f'ds_read_b128 {vr(MREGA[t],4)}, {vKA[4]} offset:{t*1024}')
    w('s_waitcnt lgkmcnt(0)')
    sentinel_check(w, list(range(0, 12)), f'v{tmp}')
    w(f's_cbranch_vccnz {lab}_lretry2\ns_mov_b32 m0, s33\ns_branch {lab}_lok')

def m_retry(w, lab, tmo):
    w(f'{lab}_mretry:')
    w(f's_add_u32 {sRETRY}, {sRETRY}, 1')
    w(f's_sub_u32 {sSPIN}, {sSPIN}, 8\ns_cbranch_scc1 {tmo}\ns_waitcnt vmcnt(0) lgkmcnt(0)')
    zero(w, 28, 28)
    w(f's_branch {lab}_mload')

def code_touch(A, start, end, sidx, shift, va, vd, sr=56):
    lab = A.newlabel('CT')
    A(f's_getpc_b64 s[{sr}:{sr+1}]\n{lab}:\ns_add_u32 s{sr}, s{sr}, {start}-{lab}\ns_addc_u32 s{sr+1}, s{sr+1}, ({start}-{lab})>>32')
    A(f's_mov_b32 s{sr+2}, {end}-{start}\ns_mov_b32 s{sr+3}, 0x20000\ns_lshl_b32 s11, {sidx}, {shift+6}\nv_lshlrev_b32 {va}, {shift}, v0')
    A(f'buffer_load_dword {vd}, {va}, s[{sr}:{sr+3}], s11 offen')

def wait_lanes(A, lab, addr, target, tmo):
    em = Emitter(A, [f'v{i}' for i in range(4, 13)])
    A(f's_cmp_lg_u32 s9, 0\ns_cbranch_scc1 {lab}_go')
    em.emit(addr, 'v1'); em.emit(target, 'v2')
    A(f's_mov_b32 s19, 0x40000\n{lab}:\nbuffer_load_dword v3, v1, {SRD}, 0 offen sc1')
    A(f's_sub_u32 s19, s19, 1\ns_cbranch_scc1 {tmo}\ns_waitcnt vmcnt(0)\nv_cmp_gt_u32 vcc, v2, v3\ns_cbranch_vccnz {lab}')
    A(f'{lab}_go:\ns_barrier')

def emit_modes(A, cfg, lab, loop):
    if cfg.get('modes', 2) == 1:
        loop(lab, cfg.get('st', '')); return
    A(f's_cmp_lg_u32 s30, 0\ns_cbranch_scc1 {lab}_slow')
    loop(lab + 'x', '')
    A(f'{lab}_slow:')
    loop(lab + 'y', 'sc1')

def load_weights(w, addr_of, spare='v102', slots=range(7)):
    n = 0
    for tl in range(7):
        for t in slots:
            for b in range(2):
                va, pre = addr_of(tl, t, b)
                w(pre)
                w(f'buffer_load_dwordx4 {wquad(tl*7+t, b)}, {va}, {SRD}, s11 offen {w.cfg.get("wfl", "")}')
                n += 1
                if n % 16 == 0: w(f's_waitcnt vmcnt({w.cfg.get("wdepth", 32)})')
                if n == (w.cfg.get('midn', 64) if len(slots) == 7 else 16) and w.cfg.get('mid_weights'): w.cfg['mid_weights'](spare)

A_X, A_T, A_R = 0, 65536, 77824
Z0, Z1, SACC, TSP0, TSP1, TMP = 56, 12, 80, 36, 40, 92
aKR, aKR3, aTW, aTW6, aTR, aXR, aRW, aRR = 'v108', 'v107', 'v106', 'v105', 'v104', 'v103', 'v102', 'v101'
aP, aKR2, aPOLL = 'v100', 'v99', 'v96'
sQ = ['s21', 's22', 's23', 's24']
sXS, sXL, sPW, sPR, sWL, sMASK = 's25', 's26', 's27', 's28', 's32', 's[52:53]'

def a_exprs(R128=False):
    l = V('v0'); w = Sg(sW); h = Sg(sR)
    g = l >> 4; rho = l & 15
    half = (rho >> 1) & 1
    q0 = (w >> 1) * 7 + (w & 1) * 4; q3 = (w >> 1) * 7 + 3
    e = {}
    i = rho & 7
    kr = L_K + ((g >> 1) * 16 + (i >> 1) * 4 + (i & 1)) * 16 + (g & 1) * 8
    e[aKR] = kr + q0 * 512
    e[aKR3] = kr + q3 * 512
    e[aKR2] = kr + q0 * 512 + 1024
    tw = A_T + w * 3072 + (rho >> 2) * 192 + (rho & 1) * 32 + g * 8 + half * 4
    e[aTW] = tw
    e['v98'] = tw + 1536
    e[aTW6] = tw + 2304 + (w & 1) * 64
    e[aTR] = A_T + w * 3072 + g * 384 + ((l >> 3) & 1) * 64 + ((l >> 2) & 1) * 32 + (l & 3) * 8
    e[aXR] = A_X + w * 8192 + l * 16
    e[aRW] = A_R + w * 1536 + g * 384 + rho * 4
    if R128 == 1: e[aRW] = A_R + g * 1536 + (rho >> 1) * 32 + (w ^ g) * 8 + (rho & 1) * 4
    rr = l >> 5; pi = l & 31; pc = pi.min(19)
    e[aRR] = A_R + (w * 2 + rr) * 192 + sel_lt(pc, 4, pc * 8, pc * 8 + 32)
    if R128 == 2: e[aRR] = A_R + (sel_lt(pc, 4, 0, ((pc - 4) >> 3) + 1) * 2 + rr) * 288 + (w * 16 + sel_lt(pc, 4, pc, (pc - 4) & 7) * 2) * 4
    if R128 == 3: e[aRR] = sel_lt(pi, 20, A_R + (sel_lt(pc, 4, 0, ((pc - 4) >> 3) + 1) * 2 + rr) * 288 + (w * 16 + sel_lt(pc, 4, pc, (pc - 4) & 7) * 2) * 4, A_R + 256)
    if R128 == 1: e[aRR] = A_R + (w * 2 + rr) * 768 + sel_lt(pc, 4, pc * 32, pc * 32 + 128)
    row = w * 2 + rr
    rho_of = lambda hf: (row >> 1) * 4 + hf * 2 + (row & 1)
    pm = ((h >> 3) + 8) * 1024 + (((h >> 1) & 3) * 16 + rho_of(pi & 1)) * 16 + ((h & 1) * 2 + ((pi >> 1) & 1)) * 4
    t0 = (pc - 4) * 2
    px = (h >> 1) * 1024 + (((h & 1) * 2 + ((t0 >> 3) & 1)) * 16 + rho_of((t0 >> 1) & 1)) * 16 + (((t0 >> 2) & 1) * 2 + ((t0 >> 4) & 1)) * 4
    e[aP] = sel_lt(pi, 4, pm, sel_lt(pi, 20, px, OOB))
    return e

def check_a_exprs():
    e = a_exprs(); l = np.arange(64)
    for h in (0, 1, 7, 8, 15):
        for w in range(4):
            env = {'v0': l, sW: w, sR: h}
            p = ev(e[aP], env)
            for ln in range(64):
                pi = ln & 31
                assert p[ln] == (ps_off(h, 2 * w + (ln >> 5), pi) if pi < 20 else OOB)
check_a_exprs()

def gen_A(A, cfg, lab, tmo):
    w = Wv(A, cfg)
    em = Emitter(A, [f'v{i}' for i in range(2, 30)])
    a_consts(em, A)
    for k, x in a_exprs((3 if cfg.get('nomask') else 2) if cfg.get('rtid') else cfg.get('r128')).items(): em.emit(x, k)
    l = V('v0')
    em.emit(HU1 + (l & 15) * 4, vHUp)
    em.emit(sel_lt(l + Sg(sW) * 64, 1, HU2 + Sg(sR) * 4, OOB), vHUs)
    nt = cfg.get('ntouch', 0)
    if nt:
        a = Sg(sR) * 4 + Sg(sW)
        em.emit(sel_lt(l, nt, ((a >> 5) * 1792 + (1792 - 32 * nt) + (a & 31) * nt + l) * 128, OOB), 'v110')
    A(f's_mov_b32 s52, 0xfffff\ns_mov_b32 s53, 0xfffff')
    A(f's_lshr_b32 s11, {sW}, 1')
    A(f's_mul_i32 s34, s11, 7\ns_and_b32 s35, {sW}, 1\ns_lshl_b32 s36, s35, 2\ns_add_u32 s36, s36, s34')
    for u in range(3): A(f's_add_u32 s37, s36, {u}\ns_lshl_b32 {sQ[u]}, s37, 10')
    A(f's_add_u32 s37, s34, 3\ns_lshl_b32 {sQ[3]}, s37, 10')
    A(f's_lshl_b32 {sWL}, {sW}, 13')
    A(f's_mul_i32 s38, {sR}, {28*14336}\ns_add_u32 s38, s38, {AF}')
    A(f's_mul_i32 s39, s35, 14336')
    def addr(tl, t, b):
        pre = f's_mul_i32 s11, {sQ[tl>>1]}, 28\ns_add_u32 s11, s11, s38\n'
        pre += (f's_add_u32 s11, s11, {14336*(tl&1) + 1024*b}\n' if tl < 6 else f's_add_u32 s11, s11, s39\ns_add_u32 s11, s11, {1024*b}\n')
        pre += f's_lshl_b32 s37, {sKK[t]}, 1\ns_add_u32 s11, s11, s37'
        return vL16, pre
    sXo = ['s44', 's45', 's46', 's47']; sXm = ['s48', 's49', 's50', 's51']
    def x_consts():
        A(f's_add_u32 {sXo[0]}, {sXS}, {sQ[0]}\ns_add_u32 {sXo[1]}, {sXS}, {sQ[3]}')
        A(f's_add_u32 {sXo[2]}, {sXo[0]}, 14336\ns_add_u32 {sXo[3]}, {sXo[1]}, 14336')
        A(f's_mov_b32 {sXm[0]}, {sXL}\ns_add_u32 {sXm[1]}, {sXL}, 3072\ns_add_u32 {sXm[2]}, {sXL}, 4096\ns_add_u32 {sXm[3]}, {sXL}, 7168')
    def x_m0(tt, u):
        if u in (0, 3): A(f's_mov_b32 m0, {sXm[2*tt + (u == 3)]}')
    def x_dma(tt, u, w=w):
        w.vmem(f'buffer_load_dwordx4 {vL16}, {SRD}, {sXo[2*tt + (u == 3)]} offen offset:{1024*u if u < 3 else 0} lds', 'X')
    if cfg.get('pre_a'): cfg['pre_a']()
    A(f's_mov_b32 {sXS}, {XF}\ns_mov_b32 {sXL}, {sWL}')
    x_consts()
    for tt in range(2):
        for u in range(4): x_m0(tt, u); x_dma(tt, u)
    load_weights(w, addr, 'v94', range(4, 7) if cfg.get('locala') else range(7))
    em.emit(A_T + Sg(sW) * 3072 + l * 16, 'v1')
    A('v_mov_b64 v[4:5], 0\nv_mov_b64 v[6:7], 0')
    for k in range(3): A(f'ds_write_b128 v1, v[4:7] offset:{k*1024}')
    if cfg.get('nomask'):
        em.emit(A_R + 256 + Sg(sW) * 1728 + l * 0, 'v1')
        em.emit(sel_lt(Sg(sW) + l * 0, 1, 0xff800000, 0), 'v8')
        A('v_mov_b32 v9, v8\nds_write_b64 v1, v[8:9]')
    zero(w, 28, 28); zero(w, SACC, 12)
    A(f's_mov_b32 {sSTEP}, 0\ns_mov_b32 {sSPIN}, {SPIN_MAX}\ns_mov_b32 {sRETRY}, 0')
    A(f's_mul_i32 s35, {sW}, 1728\ns_add_u32 s35, s35, 32768')
    cfg['start_sync'](w, lab)
    A('s_waitcnt vmcnt(0) lgkmcnt(0)'); w.vm = []; w.lg = []
    def loop(lab, st):
        w = Wv(A, cfg)
        A(f'{lab}_loop:')
        cfg['loop_top'](w, lab)
        a_step_consts(A, cfg.get('solo'))
        A(f's_lshl_b32 s33, s11, 14\ns_add_u32 {sPW}, s33, {PS}\ns_xor_b32 {sPR}, {sPW}, 0x8000')
        A(f's_mul_i32 {sXS}, {sS1}, {0 if cfg.get("xsame") else 28672}' + (f'\ns_add_u32 {sXS}, {sXS}, {XF}' if XF else ''))
        A(f's_and_b32 s11, {sS1}, 1\ns_lshl_b32 s11, s11, 15\ns_add_u32 {sXL}, s11, {sWL}')
        x_consts()
        if nt: A(f's_add_u32 s11, {sSTEP}, 2\ns_min_u32 s11, s11, {NSEG-1}\ns_mul_i32 s11, s11, {VX_SEG}\ns_add_u32 s34, s11, {VXF}')
        A(f'v_mov_b32 v{TMP+3}, {sS1}')
        for r in range(MREGA[0], MREGA[0] + 4 * cfg.get('ne', 2), 2): A(f'v_mov_b64 {vr(r,2)}, -1')
        w.stamp()
        gate = cfg.get('gate', 'w0')
        if gate == 'w0':
            A(f's_cmp_lg_u32 {sW}, 0\ns_cbranch_scc1 {lab}_nopoll')
            if not cfg.get('solo'): poll(w, f'{lab}_poll1', aPOLL, sSTEP, tmo, 16)
            A(f'{lab}_nopoll:\ns_barrier')
        elif gate == 'all':
            poll(w, f'{lab}_poll1', aPOLL, sSTEP, tmo, 16)
        w.stamp()
        for _ in range(cfg.get('adelay', 0)): A('s_nop 15')
        xpos = cfg.get('xpos', [14, 19, 24, 29, 34, 39, 44, 50])
        def xat(p):
            if nt and cfg.get('tslot', 27) == p: w.vmem(f'buffer_load_dword v109, v110, {SRD}, s34 offen', 'T')
            for k in range(8):
                if xpos[k] == p: x_m0(k >> 2, k & 3); x_dma(k >> 2, k & 3, w)
        def fill(f0, k0):
            d = {}; dv = {}
            add = lambda n, f: d.setdefault(n, []).append(f)
            def kq(n, reg, areg, off, tag, ns):
                if cfg.get('kr2'):
                    r2 = areg if off < 1024 else aKR2
                    o = (off & 1023) // 4
                    add(n, lambda: w.ds(f'ds_read2_b32 {vr(reg,2)}, {r2} offset0:{o} offset1:{o+8}', tag))
                    add(n, lambda: w.ds(f'ds_read2_b32 {vr(reg+2,2)}, {r2} offset0:{o+1} offset1:{o+9}', tag))
                    return
                add(n, lambda: w.ds(f'ds_read_b64 {vr(reg,2)}, {areg} offset:{off}', tag))
                add(n, lambda: w.ds(f'ds_read_b64 {vr(reg+2,2)}, {areg} offset:{off+32}', tag))
                if cfg.get('lswap', 1) and not (cfg.get('z0swap') and tag in ('K0', 'K1')): return
                add(ns, lambda: w.wait(lg=tag))
                dv.setdefault(ns, []).append(lambda: w(f'v_swap_b32 v{reg+1}, v{reg+2}'))
            n = f0
            for tt in range(2):
                for uu in range(2):
                    add(n, lambda tt=tt, uu=uu: w.ds(f'ds_read_b128 {vr(Z0+8*(1+tt)+4*uu,4)}, {aXR} offset:{(tt*4+uu)*1024}', 'Z0')); n += 1
            for k in range(8):
                if xpos[k] < 49:
                    add(xpos[k] - 1, lambda k=k: x_m0(k >> 2, k & 3))
                    add(xpos[k], lambda k=k: x_dma(k >> 2, k & 3, w))
            if nt and cfg.get('tslot', 27) < 49: add(cfg.get('tslot', 27), lambda: w.vmem(f'buffer_load_dword v109, v110, {SRD}, s34 offen', 'T'))
            ks = cfg.get('kswap', [36, 39, 42, 45])
            if cfg.get('z0swap'): ks = [k0 + 5, k0 + 6, 0, 0]
            kq(k0, Z0, aKR, 0, 'K0', ks[0]); kq(k0 + 1, Z0 + 4, aKR, 512, 'K1', ks[1])
            k1 = 41 if cfg.get('nanchk', 1) else k0 + 3
            if cfg.get('nanchk', 1): k0 += 3
            kq(k1, Z1, aKR, 1024, 'K2', ks[2]); kq(k1 + 1, Z1 + 4, aKR3, 0, 'K3', ks[3])
            for k, sl in enumerate((37, 38, 39, 40) if cfg.get('nanchk', 1) else (36, 37, 39, 40)):
                tt, uu = k >> 1, k & 1
                add(sl, lambda tt=tt, uu=uu: w.ds(f'ds_read_b128 {vr(Z1+8*(1+tt)+4*uu,4)}, {aXR} offset:{(tt*4+2+uu)*1024}', 'Z1'))
            add(45, lambda: w.ds(f'ds_read_b64_tr_b16 {vr(TSP0,2)}, {aTR}', 'TS0'))
            add(46, lambda: w.ds(f'ds_read_b64_tr_b16 {vr(TSP0+2,2)}, {aTR} offset:192', 'TS0'))
            return d, dv
        def tw(tl, reg):
            if ',' in reg:
                u = tl >> 1
                w.ds(f'ds_write2_b32 {aTW if u < 2 else "v98"}, {reg} offset0:{(u&1)*192} offset1:{(u&1)*192+16}')
            elif tl < 6: w.ds(f'ds_write_b32 {aTW}, {reg} offset:{(tl>>1)*768 + (tl&1)*64}')
            else: w.ds(f'ds_write_b32 {aTW6}, {reg}')
        rest = a_stream(w, fill, tw, lab, TMP, tmo)
        w.stamp()
        w.wait(lg='TS0')
        o0 = (1, 2, 0) if cfg.get('lswap', 1) and not cfg.get('z0swap') else (0, 1, 2)
        w(smf(SACC + 4 * o0[0], vr(TSP0, 4), vr(Z0 + 8 * o0[0], 8), vIDX))
        rest[0]()
        w(smf(SACC + 4 * o0[1], vr(TSP0, 4), vr(Z0 + 8 * o0[1], 8), vIDX))
        for f in rest[1:]: f()
        w(f'v_add_f32 v{TMP}, v{ACC[6]}, v{ACC[6]+2}\nv_add_f32 v{TMP+1}, v{ACC[6]+1}, v{ACC[6]+3}')
        w(f'v_cvt_pk_bf16_f32 v{TMP+2}, v{TMP}, v{TMP+1}')
        tw(6, f'v{TMP+2}')
        w.ds(f'ds_read_b64_tr_b16 {vr(TSP1,2)}, {aTR} offset:1536', 'TS1')
        w.ds(f'ds_read_b64_tr_b16 {vr(TSP1+2,2)}, {aTR} offset:{1536+192}', 'TS1')
        if cfg.get('rtid'): w('s_mov_b32 m0, s35')
        if cfg.get('lswap', 1) and not cfg.get('kr2'):
            if not cfg.get('z0swap'):
                for r in (Z0, Z0 + 4, Z1, Z1 + 4): w(f'v_swap_b32 v{r+1}, v{r+2}')
        w(smf(SACC + 4 * o0[2], vr(TSP0, 4), vr(Z0 + 8 * o0[2], 8), vIDX))
        if cfg.get('z0swap'):
            for r in (Z1, Z1 + 4): w(f'v_swap_b32 v{r+1}, v{r+2}')
        xat(50)
        w.wait(lg='TS1')
        for kt in o0: w(smf(SACC + 4 * kt, vr(TSP1, 4), vr(Z1 + 8 * kt, 8), vIDX))
        for kt in o0:
            w(f'v_add_f32 v{56+2*kt}, v{SACC+4*kt}, v{SACC+4*kt+2}\nv_add_f32 v{57+2*kt}, v{SACC+4*kt+1}, v{SACC+4*kt+3}')
            if cfg.get('rtid'):
                for rp in range(2): w.ds(f'ds_write_addtid_b32 v{56+2*kt+rp} offset:{A_R - 32768 + (2*kt+rp)*288}')
            elif cfg.get('r128'): w.ds(f'ds_write2st64_b32 {aRW}, v{56+2*kt}, v{57+2*kt} offset0:{kt} offset1:{kt+3}')
            else: w.ds(f'ds_write2_b32 {aRW}, v{56+2*kt}, v{57+2*kt} offset0:{16*kt} offset1:{16*kt+48}')
        hu2 = lambda: w.vmem(f'buffer_store_dword v{TMP+3}, {vHUs}, {SRD}, 0 offen {st}')
        hp = cfg.get('hu2pos', 0)
        w.stamp()
        if hp == -1: hu2()
        xat(51)
        w.wait_all_lg()
        A('s_barrier')
        if cfg.get('r128'):
            for k in range(2): w.ds(f'ds_read_b128 {vr(64+4*k,4)}, {aRR} offset:{k*16}', f'R{2*k+1}')
        else:
            for k in range(4): w.ds(f'ds_read_b64 {vr(64+2*k,2)}, {aRR} offset:{k*(1728 if cfg.get("rtid") else 1536)}', f'R{k}')
        if hp == 0: hu2()
        xat(52)
        w.stamp()
        w.wait(lg='R1'); w('v_pk_add_f32 v[64:65], v[64:65], v[66:67]')
        w.wait(lg='R3'); w('v_pk_add_f32 v[68:69], v[68:69], v[70:71]')
        w('v_pk_add_f32 v[64:65], v[64:65], v[68:69]')
        if hp == 1: hu2()
        for _ in range(cfg.get('apad', 0)): A('s_nop 15')
        w('v_max_f32 v66, v64, v65')
        for k, r in enumerate((8, 4, 2, 1)):
            if hp == 2 + k: hu2()
            xat(53 + k)
            w(f'v_max_f32_dpp v66, v66, v66 row_ror:{r} row_mask:0xf bank_mask:0xf')
        w('v_mov_b32 v67, v66')
        w('v_permlane16_swap_b32 v66, v67')
        w('v_max_f32 v66, v66, v67')
        w('v_pk_add_f32 v[64:65], v[64:65], v[66:67] op_sel_hi:[1,0] neg_lo:[0,1] neg_hi:[0,1]')
        w('v_exp_f32 v64, v64\nv_exp_f32 v65, v65')
        if hp == 6: hu2()
        w('v_add_f32 v66, v64, v65')
        if not cfg.get('nomask'): w(f'v_cndmask_b32 v66, 0, v66, {sMASK}')
        for k, r in enumerate((8, 4, 2, 1)):
            if hp == 7 + k: hu2()
            xat(57 + k)
            w(f'v_add_f32_dpp v66, v66, v66 row_ror:{r} row_mask:0xf bank_mask:0xf')
        w('v_mov_b32 v67, v66\nv_permlane16_swap_b32 v66, v67\nv_add_f32 v66, v66, v67')
        w('v_rcp_f32 v66, v66')
        if hp == 11: hu2()
        w('v_pk_mul_f32 v[64:65], v[64:65], v[66:67] op_sel_hi:[1,0]')
        w('v_cvt_pk_bf16_f32 v64, v64, v65')
        w('v_min_u32 v64, -2, v64')
        w.vmem(f'buffer_store_dword v64, {aP}, {SRD}, {sPW} offen {st}')
        if hp == 99: hu2()
        w.stamp()
        if cfg.get('ack'): w.wait_all_vm(); w.stamp()
        def later():
            w('v_mov_b32 v65, -1')
            w.vmem(f'buffer_store_dword v65, {aP}, {SRD}, {sPR} offen {st}')
            xat(99)
        lp = cfg.get('lpos', 1)
        if lp == 0: later()
        zero(w, 28, 28); zero(w, SACC, 12)
        w(f'v_xor_b32 {aXR}, 0x8000, {aXR}')
        if lp == 2: A('s_barrier')
        if lp >= 1: later()
        w.dump_stamps(lab)
        A(f's_mov_b32 {sSPIN}, {SPIN_MAX}')
        A(f's_mov_b32 {sSTEP}, {sS1}\ns_cmp_lt_u32 {sSTEP}, {NSEG-1}\ns_cbranch_scc1 {lab}_loop')
        cfg['finish'](w, lab)
        A('s_endpgm')
        l_retry(w, lab, TMP, tmo)

    emit_modes(A, cfg, lab, loop)

B_VX, B_V = 0, 98304
bVW, bWR, bVR, bMS, bSEL = 'v108', 'v107', 'v106', 'v105', 'v104'
bMX, bFL, bVL, bPOLL = 'v107', 'v106', 'v105', 'v104'
bTO, bINC, bFLAG = 'v99', 'v98', 'v97'
bDM = [f'v{89+k}' for k in range(7)]
BT = 100
FACC = 96
sVS, sVL, sMW, sMR, sMXO = 's25', 's26', 's27', 's28', 's29'

def bcol(j, c):
    return sel_lt(c, 16, j * 16 + c, j * 12 + c + 240)

def b_exprs_final(split=False):
    l = V('v0'); w = Sg(sW); j = Sg(sR)
    g = l >> 4; n = l & 15; c = w * 16 + n
    e = {}
    e[bWR] = B_VX + (g * 28 + c.min(27)) * 16
    e[bVR] = B_V + (g * 28 + c.min(27)) * 16
    if split: e[bVR] = B_V + sel_lt(w, 1, g * 16 + n, 256 + g * 12 + n.min(11)) * 16
    i = g * 2 + (n & 1); d0 = bcol(j, c & 30)
    k = d0 & 63
    off = (d0 >> 6) * 1024 + ((k >> 4) * 16 + (i >> 1) * 4 + ((k >> 1) & 1) * 2 + (i & 1)) * 16 + ((k >> 2) & 3) * 4
    e[bMS] = sel_lt(c, 28, off, OOB)
    e[bSEL] = sel_lt(n & 1, 1, 0x05040100, 0x03020706)
    return e
def check_b():
    e = b_exprs_final(); l = np.arange(64)
    for j in (0, 1, 5, 15):
        for w in range(2):
            p = ev(e[bMS], {'v0': l, sW: w, sR: j})
            for ln in range(64):
                c = 16 * w + (ln & 15)
                assert p[ln] == (ms_off(2 * (ln >> 4) + (ln & 1), (16 * j if c < 16 else 12 * j + 240) + (c & ~1)) if c < 28 else OOB)
check_b()

def gen_B(A, cfg, lab, tmo):
    w = Wv(A, cfg)
    em = Emitter(A, [f'v{i}' for i in list(range(2, 20)) + list(range(28, 56))])
    A(f's_add_u32 s39, {sR}, 1')
    fast = cfg.get('bfast', 2)
    common_consts(em, A, lab, '0' if fast else 's39', fast == 1)
    l = V('v0'); ww = Sg(sW); j = Sg(sR)
    split = cfg.get('bsplit', 1)
    em.emit(B_V + (ww * (64 if split else 112) + (l & 15)) * 16 + (l >> 4) * 4, bVW)
    for tl in range(7):
        if not split:
            f = ww * 112 + tl * 16 + (l & 15); hh = f.div(28)
            em.emit((hh * 56 + (l >> 4)) * 7168 + bcol(j, f - hh * 28) * 16, f'v{20+tl}')
        elif tl < 4:
            em.emit(((ww * 4 + tl) * 56 + (l >> 4)) * 7168 + (j * 16 + (l & 15)) * 16, f'v{20+tl}')
        else:
            f = (l & 15) + (tl - 4) * 16; hh = f.div(12)
            em.emit(((ww * 4 + hh) * 56 + (l >> 4)) * 7168 + (j * 12 + 256 + f - hh * 12) * 16, f'v{20+tl}')
    def addr(tl, t, b):
        return f'v{20+tl}', f's_mul_i32 s11, {sKK[t]}, 56\ns_add_u32 s11, s11, {BF + 28672*b}'
    def vw(tl, reg): w.ds(f'ds_write_b32 {bVW}, {reg} offset:{tl*256 if tl < 4 or not split else 4096 + (tl-4)*256}')
    def tail6(rest):
        for f in rest: f()
        w(f'v_add_f32 v{BT}, v{ACC[6]}, v{ACC[6]+2}\nv_add_f32 v{BT+1}, v{ACC[6]+1}, v{ACC[6]+3}')
        w(f'v_cvt_pk_bf16_f32 v{BT+2}, v{BT}, v{BT+1}')
        vw(6, f'v{BT+2}')
    rot = sR if cfg.get('prot', 1) else '0'
    for q in range(4): A(f's_add_u32 s{48+q}, {rot}, {q}\ns_and_b32 s{48+q}, s{48+q}, 3\ns_lshl_b32 s{48+q}, s{48+q}, 11')
    if cfg.get('pre_b'): cfg['pre_b']()
    A(f's_cmp_ge_u32 {sW}, 2\ns_cbranch_scc1 {lab}_loader')
    for k, x in b_exprs_final(split).items(): em.emit(x, k)
    bWB = vHUs if cfg.get('bpoll') else None
    assert bWB, 'the flag variant has no register left for three slots'
    A(f'v_mov_b32 {bWB}, {bWR}\ns_mov_b32 s47, 0')
    em.emit(HU2 + (l & 15) * 4, vHUp)
    load_weights(w, addr)
    zero(w, 28, 28)
    A(f's_mov_b32 {sSTEP}, 0\ns_mov_b32 {sSPIN}, {SPIN_MAX}\ns_mov_b32 {sRETRY}, 0')
    cfg['start_sync'](w, lab + 'f')
    A('s_waitcnt vmcnt(0) lgkmcnt(0)')
    def loopf(lf, st, second):
        nonlocal w
        w = Wv(A, cfg)
        PREG = [4 * m for m in range(10)]
        one = cfg.get('onebar', 1)
        if one:
            order = list(range(10))
            WREG = {0: 56, 1: 64, 2: 72, 3: 80, 4: 88, 5: 40, 6: 48, 7: 56, 8: 64, 9: 72}
        else:
            order = [0, 1, 2, 3, 4, 8, 9, 5, 6, 7]
            WREG = {0: 56, 1: 64, 2: 72, 3: 80, 4: 88, 8: 40, 9: 48, 5: 56, 6: 64, 7: 72}
        sPO = ['s22', 's23', 's24', 's45', 's46']
        def wx(m, b):
            if m < 8: w.ds(f'ds_read_b128 {vr(WREG[m]+4*b,4)}, {bWR} offset:{(2*m+b)*1792}', f'W{m}')
            else: w.ds(f'ds_read_b128 {vr(WREG[m]+4*b,4)}, {bVR} offset:{(2*(m-8)+b)*(1024 if split else 1792)}', f'W{m}')
        def mfirst():
            for t in range(2): A(f'buffer_load_dwordx4 {vr(MREG[t],4)}, {vL16}, {SRD}, {sMO[t]} offen sc1')
        if fast:
            step_consts(A)
            A('s_barrier'); mfirst()
        A(f'{lf}_loop:')
        if fast: A(f's_and_b32 s11, {sSTEP}, 3\ns_add_u32 {sS1}, {sSTEP}, 1')
        else: step_consts(A)
        A(f's_lshl_b32 s11, s11, 14\ns_add_u32 s11, s11, {PS}\ns_add_u32 s46, s11, 8192')
        for q in range(4): A(f's_add_u32 {sPO[q]}, s11, s{48+q}')
        A(f's_and_b32 s11, {sS1}, 3\ns_lshl_b32 s11, s11, 13\ns_add_u32 {sMW}, s11, {MS}\ns_xor_b32 {sMR}, {sMW}, 0x4000')
        A(f'v_mov_b32 v{BT+3}, {sS1}\nv_mov_b64 {vr(FACC,2)}, 0\nv_mov_b64 {vr(FACC+2,2)}, 0')
        if cfg.get('bpoll') and not fast:
            for r in range(MREG[0], MREG[0] + 8, 2): A(f'v_mov_b64 {vr(r,2)}, -1')
        w.stamp()
        if not fast: A('s_barrier')
        w.stamp()
        def fillf(f0):
            d = {}
            for m in range(5):
                for b in range(2): d.setdefault(f0 + 2 * m + b, []).append(lambda m=m, b=b: wx(m, b))
            return d, {}
        tail6(weight_stream(w, fillf, vw, lf, BT, tmo, cfg.get('bpoll')))
        for _ in range(cfg.get('vpad', 0)): A('s_nop 15')
        w.stamp()
        if one:
            for m in (5, 6): wx(m, 0); wx(m, 1)
            if fast:
                for t in range(2): A(f's_add_u32 {sMO[t]}, {sMW}, {sKK[t]}')
            w.wait_all_lg()
            w.stamp()
            if second: A('s_barrier')
            else: poll(w, f'{lf}_poll2', f'v{BT+2}', sS1, tmo, 16)
        else:
            w.wait_all_lg()
            A('s_barrier')
            A(f's_cmp_eq_u32 {sSTEP}, {NSEG-1}\ns_cbranch_scc1 {lf}_done')
            for m in (8, 9): wx(m, 0); wx(m, 1)
            w.stamp()
            if cfg.get('b0poll'):
                if second: A('s_barrier')
                else: poll(w, f'{lf}_poll2', f'v{BT+2}', sS1, tmo, 16)
            else:
                A('s_barrier')
                if second: A('s_barrier')
        w.stamp()
        def ploads():
            for k, m in enumerate(order):
                w.vmem(f'buffer_load_dwordx4 {vr(PREG[k],4)}, {vL16}, {SRD}, {sPO[m>>1]} offen offset:{(m&1)*1024} sc1', f'P{k}')
        ploads()
        if not second: A('s_barrier')
        if fast and second: A('s_cmp_eq_u32 0, 1')
        A(f'{lf}_pchain:')
        for _ in range(cfg.get('bpad', 0)): A('s_nop 15')
        for k, m in enumerate(order):
            w.wait(vm=f'P{k}', lg=f'W{m}')
            if k == 0: w.stamp()
            w(smf(FACC, vr(PREG[k], 4), vr(WREG[m], 8), vIDX))
            if k < 3: wx((7 if one else 5) + k, 0); wx((7 if one else 5) + k, 1)
            if fast and second and k == cfg.get('kb', 4 if fast == 1 else 99):
                w.wait_all_lg(); A(f's_cbranch_scc1 {lf}_nob\ns_barrier\n{lf}_nob:')
        w(f'v_add_f32 v{BT}, v{FACC}, v{FACC+2}\nv_add_f32 v{BT+1}, v{FACC+1}, v{FACC+3}')
        if cfg.get('bcmp', 1):
            w(f'v_cvt_pk_bf16_f32 v{FACC}, v{BT}, v{BT+1}')
            w(f'v_cmp_u_f32 vcc, v{BT}, v{BT+1}')
            w(f'v_mov_b32_dpp v{BT+1}, v{FACC} quad_perm:[1,0,3,2] row_mask:0xf bank_mask:0xf')
            w(f'v_perm_b32 v{BT}, v{BT+1}, v{FACC}, {bSEL}')
        else:
            w(f'v_cmp_u_f32 vcc, v{BT}, v{BT+1}')
            w(f'v_cvt_pk_bf16_f32 v{BT}, v{BT}, v{BT+1}')
            w(f'v_mov_b32_dpp v{BT+1}, v{BT} quad_perm:[1,0,3,2] row_mask:0xf bank_mask:0xf')
            w(f'v_perm_b32 v{BT}, v{BT+1}, v{BT}, {bSEL}')
        w(f'v_min_u32 v{BT}, -2, v{BT}')
        w(f's_cbranch_vccnz {lf}_pretry\n{lf}_pok:')
        w.vmem(f'buffer_store_dword v{BT}, {bMS}, {SRD}, {sMW} offen {st}')
        if fast:
            if not second or cfg.get('kb', 4 if fast == 1 else 99) == 99: A('s_barrier')
            mfirst()
        if cfg.get('lastmx', 1):
            A(f's_cmp_eq_u32 {sSTEP}, {NSEG-2}\ns_cbranch_scc1 {lf}_last')
        w.stamp()
        if cfg.get('ack'): w.wait_all_vm(); w.stamp()
        w(f'v_mov_b32 v{BT+1}, -1')
        w.vmem(f'buffer_store_dword v{BT+1}, {bMS}, {SRD}, {sMR} offen {st}')
        if not cfg.get('bpoll'): w.vmem(f'buffer_store_dword v{BT+3}, {vHUs}, {SRD}, 0 offen {st}')
        zero(w, 28, 28)
        w(f's_add_u32 s47, s47, 0x8000\ns_cmp_eq_u32 s47, 0x18000\ns_cselect_b32 s47, 0, s47\nv_add_u32 {bWR}, s47, {bWB}')
        w.dump_stamps(lf)
        A(f's_mov_b32 {sSPIN}, {SPIN_MAX}\ns_mov_b32 {sSTEP}, {sS1}\ns_branch {lf}_loop')
        if cfg.get('lastmx', 1):
            A(f'{lf}_last:\ns_mov_b32 s11, {MX + (NSEG-1)*7168}\nbuffer_store_dword v{BT}, {bMS}, {SRD}, s11 offen sc1')
        A(f'{lf}_done:')
        cfg['finish'](w, lf)
        A('s_endpgm')
        m_retry(w, lf, tmo)
        A(f'{lf}_pretry:\ns_waitcnt vmcnt(0) lgkmcnt(0)')
        sentinel_check(w, list(range(0, 40)), f'v{BT+2}')
        A(f's_cbranch_vccz {lf}_pok')
        A(f's_add_u32 {sRETRY}, {sRETRY}, 0x10000\ns_sub_u32 {sSPIN}, {sSPIN}, 8\ns_cbranch_scc1 {tmo}')
        for m in range(3): wx(m, 0); wx(m, 1)
        A(f'v_mov_b64 {vr(FACC,2)}, 0\nv_mov_b64 {vr(FACC+2,2)}, 0\ns_waitcnt lgkmcnt(0)')
        ploads()
        A(f's_cmp_eq_u32 0, 0\ns_branch {lf}_pchain')
    A(f's_cmp_eq_u32 {sW}, 1\ns_cbranch_scc1 {lab}_second')
    emit_modes(A, cfg, lab + 'f', lambda lf, st: loopf(lf, st, False))
    A(f'{lab}_second:')
    emit_modes(A, cfg, lab + 'g', lambda lf, st: loopf(lf, st, True))
    ll = lab + 'l'
    A(f'{lab}_loader:')
    w = Wv(A, cfg)
    for r in range(7):
        f = l + 64 * r; hg = f.div(28)
        em.emit(hg * 7168 + bcol(j, f - hg * 28) * 16 + (4096 - (r & 3) * 1024), bDM[r])
    em.emit(sel_lt(ww, 3, HU1 + 128 + (l & 31) * 4, HU2 + (l & 15) * 4), vHUp)
    em.emit(sel_lt(l + (3 - ww) * 64, 1, HU1 + j * 4, OOB), vHUs)
    em.emit(sel_lt(j + (3 - ww) * 16, 7, j * 1024 + l * 16, OOB), bMX)
    em.emit(L_K + (j & 7) * 1024 + l * 16, 'v88')
    xl = (j * 2 + ww - 2) * 7 + l
    em.emit(sel_lt(l, 7, XF + 2 * 28672 + xl * 128, sel_lt(l, 63, OOB, FVX + 2 * 128)), bTO)
    em.emit(sel_lt(l, 63, 28672, 128), bINC)
    A(f'v_mov_b32 {bFLAG}, 16')
    A(f's_sub_u32 s11, {sW}, 2\ns_mul_i32 s23, s11, 14336\ns_cmp_eq_u32 s11, 0\ns_cselect_b32 s24, s48, s50\ns_cselect_b32 s45, s49, s51')
    A(f's_mul_i32 s24, s24, 56\ns_add_u32 s24, s24, {VXF - 4096}\ns_mul_i32 s45, s45, 56\ns_add_u32 s45, s45, {VXF - 4096}')
    def vx_m0(k):
        if k % 7 in (0, 4): w(f's_add_u32 m0, {sVL}, {k*1024}')
    def vx_dma(k):
        w.vmem(f'buffer_load_dwordx4 {bDM[k%7]}, {SRD}, {sVS if k < 7 else "s44"} offen offset:{((k%7)&3)*1024} lds', 'D')
    load_weights(w, addr)
    zero(w, 28, 28)
    A(f's_mov_b32 {sSTEP}, 0\ns_mov_b32 {sSPIN}, {SPIN_MAX}\ns_mov_b32 {sRETRY}, 0')
    cfg['start_sync'](w, ll)
    A(f's_mov_b32 {sVS}, s24\ns_mov_b32 s44, s45\ns_mov_b32 {sVL}, s23\ns_mov_b32 s47, 0')
    for k in range(14): vx_m0(k); vx_dma(k)
    def loopl(ll, st):
        nonlocal w
        w = Wv(A, cfg)
        A(f'{ll}_loop:')
        step_consts(A)
        A(f's_min_u32 s11, {sS1}, {0 if cfg.get("vxsame") else NSEG-1}\ns_mul_i32 s11, s11, {VX_SEG}\ns_add_u32 {sVS}, s11, s24\ns_add_u32 s44, s11, s45')
        A(f's_add_u32 s47, s47, 0x8000\ns_cmp_eq_u32 s47, 0x18000\ns_cselect_b32 s47, 0, s47\ns_add_u32 {sVL}, s47, s23')
        A(f's_mul_i32 {sMXO}, {sSTEP}, 7168\ns_add_u32 {sMXO}, {sMXO}, {MX}')
        if cfg.get('bpoll'):
            for r in range(MREG[0], MREG[0] + 8, 2): A(f'v_mov_b64 {vr(r,2)}, -1')
        A('s_waitcnt vmcnt(0)')
        A(f's_cmp_ge_u32 {sSTEP}, {NSEG-1}\ns_cbranch_scc1 {ll}_fok')
        A(f'{ll}_fchk:\nv_readlane_b32 s11, {bFLAG}, 63\ns_nop 0\ns_cmp_ge_u32 s11, 16\ns_cbranch_scc1 {ll}_fok')
        A(f's_lshl_b32 s11, {sS1}, 7\ns_add_u32 s11, s11, {FVX}')
        A(f'buffer_load_dword {bFLAG}, off, {SRD}, s11 sc1')
        A(f's_sub_u32 {sSPIN}, {sSPIN}, 1\ns_cbranch_scc1 {tmo}\ns_waitcnt vmcnt(0)\ns_branch {ll}_fchk\n{ll}_fok:')
        w.stamp()
        if not cfg.get('bpoll'):
            A(f's_cmp_lg_u32 {sW}, 2\ns_cbranch_scc1 {ll}_nopoll')
            poll(w, f'{ll}_poll1', bPOLL, sSTEP, tmo, 32)
            A(f'{ll}_nopoll:')
        A('s_barrier')
        w.stamp()
        d0 = cfg.get('dslot', 2); dstep = cfg.get('dstep', 2); ne = cfg.get('dearly', 0)
        def early():
            for k in range(ne): vx_m0(k); vx_dma(k)
        def filll(f0):
            d = {}
            add = lambda n, f: d.setdefault(n, []).append(f)
            for k in range(ne, 14):
                add(d0 + dstep * (k - ne) - 1, lambda k=k: vx_m0(k))
                add(d0 + dstep * (k - ne), lambda k=k: vx_dma(k))
            add(d0 + dstep * (14 - ne), lambda: w.vmem(f'buffer_load_dword {bFLAG}, {bTO}, {SRD}, 0 offen sc1', 'D'))
            if fast and not cfg.get('nomx'):
                add(f0, lambda: w.ds('ds_read_b128 v[56:59], v88', 'MX'))
                add(f0 + 5, lambda: (w.wait(lg='MX'), w.vmem(f'buffer_store_dwordx4 v[56:59], {bMX}, {SRD}, {sMXO} offen sc1')))
            elif not cfg.get('nomx'):
                add(max(f0 - 4, cfg.get('vslot', 0)), lambda: w.vmem(f'buffer_store_dwordx4 {vr(MREG[0],4)}, {bMX}, {SRD}, {sMXO} offen {cfg.get("mxfl", "sc1")}'))
            return d, {}
        tail6(weight_stream(w, filll, vw, ll, BT, tmo, cfg.get('bpoll'), early))
        w.stamp()
        w.wait_all_lg()
        if not cfg.get('onebar', 1):
            A('s_barrier')
            A(f's_cmp_eq_u32 {sSTEP}, {NSEG-1}\ns_cbranch_scc1 {ll}_done')
        zero(w, 28, 28)
        A(f'v_mov_b32 v{BT+3}, {sS1}')
        if not cfg.get('xsame'): A(f'v_add_u32 {bTO}, {bTO}, {bINC}')
        w.stamp()
        if cfg.get('drain'):
            w.wait(vm='D'); w.stamp(); w.wait_all_vm(); w.stamp()
        hu1 = f'buffer_store_dword v{BT+3}, {vHUs}, {SRD}, 0 offen {st}'
        if cfg.get('b0poll') or cfg.get('onebar', 1):
            A('s_barrier')
            if cfg.get('gate', 'w0') != 'none': A(hu1)
        else:
            A(f's_cmp_lg_u32 {sW}, 3\ns_cbranch_scc1 {ll}_nopoll2')
            poll(w, f'{ll}_poll2', bPOLL, sS1, tmo, 16)
            A(f'{ll}_nopoll2:\ns_barrier')
            if cfg.get('hu1pos', 0) == 0: A(hu1)
            A('s_barrier')
            if cfg.get('hu1pos', 0) == 1: A(hu1)
        if cfg.get('lastmx', 1): A(f's_cmp_eq_u32 {sSTEP}, {NSEG-2}\ns_cbranch_scc1 {ll}_done')
        w.dump_stamps(ll)
        A(f's_mov_b32 {sSPIN}, {SPIN_MAX}\ns_mov_b32 {sSTEP}, {sS1}\ns_branch {ll}_loop\n{ll}_done:')
        cfg['finish'](w, ll)
        A('s_endpgm')
        m_retry(w, ll, tmo)
    emit_modes(A, cfg, ll, loopl)
```

```python
from asmdsl import Asm
from expr import X, V, Sg, Emitter, ev, sel_lt
from layout import *
from rec import code_touch, dstamp, tline, wait_lanes, Wv, vr, wquad, wreg, smf, zero, sentinel_check, SRD
from prep import f32, mfma, srd
import math

sW, sR = 's9', 's10'
sSPIN = 's19'
WSPIN = 0x40000
BACK = ['']
PREV = [1]
ONE = [0]
LASTD = [1]
NV = 4
NQ = 4

def nfx(cfg): return 16 if (cfg.get('locala') and not cfg.get('fakeloc')) or cfg.get('amisc') else 32

def wait_flag(w, lab, soff, target, tmo, vt='v2'):
    w(f's_cmp_lg_u32 {sW}, 0\ns_cbranch_scc1 {lab}_go\ns_mov_b32 {sSPIN}, {WSPIN}')
    w(f'{lab}:\nbuffer_load_dword {vt}, off, {SRD}, {soff} sc1')
    w(f's_sub_u32 {sSPIN}, {sSPIN}, 1\ns_cbranch_scc1 {tmo}\n{BACK[0]}s_waitcnt vmcnt(0)')
    w(f'v_cmp_gt_u32 vcc, {target}, {vt}\ns_cbranch_vccnz {lab}')
    w(f'{lab}_go:\ns_barrier')

def signal(w, lab, soff, vt='v2'):
    w('s_waitcnt vmcnt(0)\ns_barrier'); w.vm = []
    w(f's_cmp_lg_u32 {sW}, 0\ns_cbranch_scc1 {lab}\nv_mov_b32 {vt}, 1\ns_mov_b64 exec, 1')
    w(f'buffer_atomic_add {vt}, off, {SRD}, {soff} sc1\ns_mov_b64 exec, -1\n{lab}:')

def defer(A, lab, tmo):
    A(f's_cmp_lg_u32 {sW}, 0\ns_cbranch_scc1 {lab}_go\ns_mov_b32 {sSPIN}, {WSPIN}\ns_mov_b32 s11, {MX + 1024}')
    A(f'{lab}:\nbuffer_load_dword v1, off, {SRD}, s11 sc1')
    A(f's_sub_u32 {sSPIN}, {sSPIN}, 1\ns_cbranch_scc1 {tmo}\ns_waitcnt vmcnt(0)\nv_cmp_eq_u32 vcc, -1, v1\ns_cbranch_vccnz {lab}')
    A(f'{lab}_go:\ns_barrier')

def load_w(w, addr_of, ps=range(14)):
    n = 0
    for p in ps:
        for tl in range(7):
            va, pre = addr_of(tl, p)
            w(pre)
            w.vmem(f'buffer_load_dwordx4 {wquad(tl*7 + (p>>1), p&1)}, {va}, {SRD}, s11 offen', f'W{p}')
            n += 1
            if n % 14 == 0 and len(w.vm) > 44: w('s_waitcnt vmcnt(32)'); w.vm = w.vm[-32:]

XB = 56
def xq(p, tt): return XB + ((p & 3) * 2 + tt) * 4
def acc2(tl, tt): return (tl * 2 + tt) * 4
sXB, sXN = 's20', 's21'
vL16 = 'v119'

def x_load(w, p, base):
    for tt in range(2):
        off = p * 1024 + tt * 14336
        w(f's_add_u32 s11, {base}, {off & ~4095}')
        w.vmem(f'buffer_load_dwordx4 {vr(xq(p,tt),4)}, {vL16}, {SRD}, s11 offen offset:{off & 4095}', f'X{p}')

def seg_gemm(w, w_is_a, wload=None):
    for p in range(14):
        w.wait(vm=f'X{p}'); w.wait(vm=f'W{p}')
        for tl in range(7):
            for tt in range(2):
                wq = wquad(tl * 7 + (p >> 1), p & 1); xx = vr(xq(p, tt), 4)
                a, b = (wq, xx) if w_is_a else (xx, wq)
                w(mfma(vr(acc2(tl, tt), 4), a, b, 0 if p == 0 else None))
        if p + 4 < 14: x_load(w, p + 4, sXB)
        if wload and p + 6 < 14: wload(p + 6)
    for p in range(4): x_load(w, p, sXN)

def mx_wait(w, lab, regs, loads, tmo, tmp, light_always=False):
    sl = 's15' if light_always else 's26'
    if light_always: pass
    elif PREV[0]: w(f's_sub_u32 s26, s15, 7168\ns_max_u32 s26, s26, {MX}')
    else: w('s_mov_b32 s26, s15')
    w(f's_mov_b32 {sSPIN}, {WSPIN}')
    if LASTD[0] and not light_always:
        w(f's_cmp_eq_u32 s8, {NSEG-1}\ns_cselect_b32 s11, 7168, 0\ns_sub_u32 s26, s26, s11')
    if ONE[0]: w(f's_cmp_lg_u32 {sW}, 3\ns_cbranch_scc1 {lab}_2')
    w(f'{lab}_1:\nbuffer_load_dword {tmp}, off, {SRD}, {sl} sc1')
    w(f's_sub_u32 {sSPIN}, {sSPIN}, 1\ns_cbranch_scc1 {tmo}\n{BACK[0]}s_waitcnt vmcnt(0)\nv_cmp_eq_u32 vcc, -1, {tmp}\ns_cbranch_vccnz {lab}_1')
    if ONE[0]: w(f'{lab}_2:\ns_barrier')
    w(f'{lab}:')
    loads()
    w(f's_sub_u32 {sSPIN}, {sSPIN}, 1\ns_cbranch_scc1 {tmo}\n{BACK[0]}s_waitcnt vmcnt(0)'); w.vm = []
    sentinel_check(w, regs, tmp)
    w(f's_cbranch_vccnz {lab}')

def gen_V(A, cfg, lab, tmo):
    w = Wv(A, {})
    em = Emitter(A, [f'v{i}' for i in range(2, 30)])
    l = V('v0'); g = l >> 4; n = l & 15; ww = Sg(sW); h = Sg(sR)
    em.emit(l & 63, 'v0')
    em.emit(l * 16, vL16)
    em.emit(sel_lt(l & 2, 1, 0x44444444, 0xEEEEEEEE), 'v118')
    em.emit(g * 7168 + (ww * 112 + n) * 16, 'v117')
    em.emit((ww * 112 + n) * 16 + g * 4, 'v116')
    A(f's_mul_i32 s13, {sR}, {14*28672}\ns_add_u32 s13, s13, {BF}')
    A(f's_mul_i32 {sXB}, s12, 28672' + (f'\ns_add_u32 {sXB}, {sXB}, {XF}' if XF else ''))
    wait_lanes(A, f'{lab}_wb', sel_lt(l, 1, FB + h * 128, FX), sel_lt(l, 1, 14, nfx(cfg)), tmo)
    waddr = lambda tl, p: ('v117', f's_add_u32 s11, s13, {p*28672 + tl*256}')
    c2 = dict(cfg, tlreg=97)
    A(f's_mov_b32 s8, s12\ns_mul_i32 s14, {sR}, 28672')
    if cfg.get('vfirst', 1):
        for p in range(4): x_load(w, p, sXB)
        load_w(w, waddr, range(6))
        A(f's_add_u32 {sXN}, {sXB}, {NV*28672}')
        seg_gemm(w, False, lambda p: load_w(w, waddr, [p]))
        tline(A, c2, 1)
        A(f's_branch {lab}_epi')
    else:
        load_w(w, waddr)
        if cfg.get('tl'): A('s_waitcnt vmcnt(0)')
        tline(A, c2, 1)
        for p in range(4): x_load(w, p, sXB)
    A(f'{lab}_loop:')
    A(f's_add_u32 {sXN}, {sXB}, {NV*28672}')
    w.vm = [f'X{p}' for p in range(4) for _ in range(2)]
    seg_gemm(w, False)
    A(f'{lab}_epi:')
    A(f's_mul_i32 s15, s8, {VX_SEG}\ns_add_u32 s15, s15, s14\ns_add_u32 s15, s15, {VXF}')
    for tl in range(7):
        o = 88 + 4 * (tl & 1)
        for tt in range(2):
            a = acc2(tl, tt)
            A(f'v_cvt_pk_bf16_f32 v{o+2*tt}, v{a}, v{a+1}\nv_cvt_pk_bf16_f32 v{o+2*tt+1}, v{a+2}, v{a+3}')
        A(f'buffer_store_dwordx4 {vr(o,4)}, v117, {SRD}, s15 offen offset:{tl*256} sc1')
    A(f's_lshl_b32 s15, s8, 7\ns_add_u32 s15, s15, {FVX}')
    signal(w, f'{lab}_sig', 's15', 'v96')
    if cfg.get('tl'):
        A(f's_cmp_ge_u32 s8, {NV}\ns_cbranch_scc1 {lab}_tl1'); tline(A, c2, 2); A(f'{lab}_tl1:')
    A(f's_mov_b32 {sXB}, {sXN}\ns_add_u32 s8, s8, {NV}\ns_cmp_lt_u32 s8, {NSEG}\ns_cbranch_scc1 {lab}_loop')
    tline(A, c2, 3)
    if cfg.get('nopost'): A('s_endpgm')
    A(f's_mov_b32 s8, s12\ns_mul_i32 s14, {sR}, 7168')
    A(f'{lab}_mloop:')
    zero(w, 28, 28)
    A(f's_mul_i32 s15, s8, 7168\ns_add_u32 s15, s15, {MX}\ns_add_u32 s16, s15, 4096')
    def loads():
        for kk in range(7):
            A(f'buffer_load_dwordx4 {vr(4*kk,4)}, {vL16}, {SRD}, {"s15" if kk < 4 else "s16"} offen offset:{(kk&3)*1024} sc1')
    mx_wait(w, f'{lab}_mx', list(range(28)), loads, tmo, 'v96')
    for tl in range(7):
        for kk in range(7): A(smf(28 + 4 * tl, vr(4 * kk, 4), wreg(tl * 7 + kk), 'v118'))
    A(f's_mul_i32 s15, s8, {VM_SEG}\ns_add_u32 s15, s15, s14\ns_add_u32 s15, s15, {VM}')
    for tl in range(7):
        a = 28 + 4 * tl
        A(f'v_add_f32 v{a}, v{a}, v{a+2}\nv_add_f32 v{a+1}, v{a+1}, v{a+3}\nv_cvt_pk_bf16_f32 v{a}, v{a}, v{a+1}\nv_min_u32 v{a}, -2, v{a}')
        A(f'buffer_store_dword v{a}, v116, {SRD}, s15 offen offset:{tl*256} sc1')
    A(f's_lshl_b32 s15, s8, 7\ns_add_u32 s15, s15, {FVM}')
    signal(w, f'{lab}_sig2', 's15', 'v96')
    A(f's_add_u32 s8, s8, {NV}\ns_cmp_lt_u32 s8, {NSEG}\ns_cbranch_scc1 {lab}_mloop')
    tline(A, c2, 4)
    A('s_endpgm')

def gen_Q(A, cfg, lab, tmo):
    w = Wv(A, {})
    em = Emitter(A, [f'v{i}' for i in range(2, 30)])
    l = V('v0'); g = l >> 4; n = l & 15; ww = Sg(sW); h = Sg(sR)
    sQ = ['s22', 's23', 's24', 's25']
    em.emit(l & 63, 'v0')
    em.emit(l * 16, vL16)
    em.emit(l * 16 + (ww & 1) * 8, 'v118')
    i = n & 7
    em.emit(((g >> 1) * 16 + (i >> 1) * 4 + (i & 1)) * 16 + (g & 1) * 8, 'v117')
    em.emit(((g >> 1) * 16 + (i >> 1) * 4 + (i & 1)) * 16 + (g & 1) * 8 + (ww & 1) * 4, 'v116')
    em.emit(ww * 5120 + l * 16, 'v115')
    em.emit(ww * 1024 + l * 16, 'v114')
    em.emit(ww * 20480 + h * 1024 + l * 16, 'v113')
    em.emit(sel_lt(g, 2, ww * 20480 + ((h >> 2) + 16) * 1024 + ((h & 3) * 16 + n) * 16 + g * 8, OOB), 'v112')
    em.emit(n - g * 4, 'v111')
    A(f's_lshr_b32 s11, {sW}, 1\ns_mul_i32 s14, s11, 7\ns_and_b32 s15, {sW}, 1\ns_lshl_b32 s16, s15, 2\ns_add_u32 s16, s16, s14')
    for u in range(3): A(f's_add_u32 s17, s16, {u}\ns_lshl_b32 {sQ[u]}, s17, 10')
    A(f's_add_u32 s17, s14, 3\ns_lshl_b32 {sQ[3]}, s17, 10')
    A(f's_mul_i32 s13, {sR}, {28*14336}\ns_add_u32 s13, s13, {AF}\ns_mul_i32 s15, s15, 14336')
    def addr(tl, p):
        pre = f's_mul_i32 s11, {sQ[tl>>1]}, 28\ns_add_u32 s11, s11, s13\n'
        pre += f's_add_u32 s11, s11, {14336*(tl&1) + 1024*p}' if tl < 6 else f's_add_u32 s11, s11, s15\ns_add_u32 s11, s11, {1024*p}'
        return vL16, pre
    A(f's_mul_i32 {sXB}, s12, 28672' + (f'\ns_add_u32 {sXB}, {sXB}, {XF}' if XF else ''))
    if cfg.get('nopost'): A('s_endpgm')
    if cfg.get('locala'): wait_lanes(A, f'{lab}_wa', sel_lt(l, 2, FA + h * 128 + l * 2048, FX), sel_lt(l, 2, 7, nfx(cfg)), tmo)
    else: wait_lanes(A, f'{lab}_wa', sel_lt(l, 1, FA + h * 128, FX), sel_lt(l, 1, 14, nfx(cfg)), tmo)
    if cfg.get('deferq'): defer(A, f'{lab}_df', tmo)
    load_w(w, addr)
    w.vm = []
    for p in range(4): x_load(w, p, sXB)
    A('s_mov_b32 s8, s12')
    A(f'{lab}_loop:')
    A(f's_add_u32 {sXN}, {sXB}, {NQ*28672}')
    w.vm = [f'X{p}' for p in range(4) for _ in range(2)]
    seg_gemm(w, True)
    QQ = lambda u, tt: 16 * u + 4 * tt
    for u in range(4):
        for tt in range(2):
            for b in range(2 if u < 3 else 1):
                a = acc2(2 * u + b, tt)
                A(f'v_cvt_pk_bf16_f32 v{88+4*tt+2*b}, v{a}, v{a+1}\nv_cvt_pk_bf16_f32 v{89+4*tt+2*b}, v{a+2}, v{a+3}')
        for tt in range(2):
            for k in range(0, 4 if u < 3 else 2, 2): A(f'v_mov_b64 {vr(QQ(u,tt)+k,2)}, {vr(88+4*tt+k,2)}')
    for u in range(4):
        for kt in range(2):
            A(f's_add_u32 s11, {sXB}, {sQ[u]}' + ('\ns_add_u32 s11, s11, 14336' if kt else ''))
            if u < 3: w.vmem(f'buffer_load_dwordx4 {vr(16*u+8+4*kt,4)}, {vL16}, {SRD}, s11 offen', 'Z')
            else: w.vmem(f'buffer_load_dwordx2 {vr(88+2*kt,2)}, v118, {SRD}, s11 offen', 'Z')
    w.wait(vm='Z')
    SX = {(1, 0): 92, (1, 1): 96, (2, 1): 100}
    for (kt, tt), a in SX.items():
        for u in range(3): A(mfma(vr(a, 4), vr(16 * u + 8 + 4 * (kt - 1), 4), vr(QQ(u, tt), 4), 0 if u == 0 else None))
        A(f'v_mfma_f32_16x16x16_bf16 {vr(a,4)}, {vr(88+2*(kt-1),2)}, {vr(QQ(3,tt),2)}, {vr(a,4)}')
    for (kt, tt), a in SX.items():
        A(f'ds_write_b128 v115, {vr(a,4)} offset:{(2*kt + tt - (1 if kt == 2 else 0))*1024}')
    A('s_waitcnt lgkmcnt(0)\ns_barrier')
    E1, E2, E0 = 92, 96, 100
    A(f's_cmp_ge_u32 {sW}, 2\ns_cbranch_scc1 {lab}_nored')
    def red(dst, off, t0):
        for k in range(4): A(f'ds_read_b128 {vr(dst if k == 0 else t0+16*(k-1),4)}, v114 offset:{k*5120 + off}')
        A('s_waitcnt lgkmcnt(0)')
        for k in range(3):
            for r in (0, 2): A(f'v_pk_add_f32 {vr(dst+r,2)}, {vr(dst+r,2)}, {vr(t0+16*k+r,2)}')
    red(E1, 2048, 8)
    red(E2, 3072, 8)
    A(f'v_mov_b32 v104, 0xff800000\ns_cmp_eq_u32 {sW}, 0\ns_cbranch_scc0 {lab}_t1')
    for r in range(4):
        A(f'v_cmp_le_i32 vcc, {r}, v111\nv_cndmask_b32 v{E1+r}, v104, v{E1+r}, vcc\nv_mov_b32 v{E2+r}, v104')
    A(f's_branch {lab}_nored\n{lab}_t1:')
    for r in range(4): A(f'v_cmp_le_i32 vcc, {r}, v111\nv_cndmask_b32 v{E2+r}, v104, v{E2+r}, vcc')
    A(f'{lab}_nored:')
    A(f's_mul_i32 s15, s8, 7168\ns_add_u32 s15, s15, {MX}')
    KQ = lambda u: 16 * u + 8
    def loads():
        for u in range(4):
            A(f's_lshr_b32 s11, {sQ[u]}, 1\ns_add_u32 s11, s11, s15')
            if u < 3:
                A(f'buffer_load_dwordx2 {vr(KQ(u),2)}, v117, {SRD}, s11 offen sc1\nbuffer_load_dwordx2 {vr(KQ(u)+2,2)}, v117, {SRD}, s11 offen offset:32 sc1')
            else:
                A(f'buffer_load_dword v88, v116, {SRD}, s11 offen sc1\nbuffer_load_dword v89, v116, {SRD}, s11 offen offset:32 sc1')
    mx_wait(w, f'{lab}_mx', [KQ(u) + k for u in range(3) for k in range(4)] + [88, 89], loads, tmo, 'v105')
    for u in range(3): A(f'v_swap_b32 v{KQ(u)+1}, v{KQ(u)+2}')
    for tt in range(2):
        a = 12 + 16 * tt
        for u in range(3): A(mfma(vr(a, 4), vr(KQ(u), 4), vr(QQ(u, tt), 4), 0 if u == 0 else None))
        A(f'v_mfma_f32_16x16x16_bf16 {vr(a,4)}, v[88:89], {vr(QQ(3,tt),2)}, {vr(a,4)}')
    for tt in range(2): A(f'ds_write_b128 v115, {vr(12+16*tt,4)} offset:{tt*1024}')
    A('s_waitcnt lgkmcnt(0)\ns_barrier')
    A(f's_cmp_ge_u32 {sW}, 2\ns_cbranch_scc1 {lab}_nosm')
    red(E0, 0, 8)
    A('s_mov_b32 vcc_lo, -1\ns_mov_b32 vcc_hi, 0')
    for r in range(4): A(f'v_cndmask_b32 v{E0+r}, v104, v{E0+r}, vcc')
    A(f'v_max3_f32 v8, v{E1}, v{E1+1}, v{E1+2}')
    for r in range(E1 + 3, E1 + 11, 2): A(f'v_max3_f32 v8, v8, v{r}, v{r+1}')
    A(f'v_max_f32 v8, v8, v{E1+11}')
    def allred(op):
        A(f'v_mov_b32 v9, v8\nv_permlane16_swap_b32 v8, v9\n{op} v8, v8, v9')
        A(f'v_mov_b32 v9, v8\nv_permlane32_swap_b32 v8, v9\n{op} v8, v8, v9')
    allred('v_max_f32')
    for r in range(E1, E1 + 12, 2): A(f'v_pk_add_f32 {vr(r,2)}, {vr(r,2)}, v[8:9] op_sel_hi:[1,0] neg_lo:[0,1] neg_hi:[0,1]')
    for r in range(E1, E1 + 12): A(f'v_exp_f32 v{r}, v{r}')
    A(f'v_pk_add_f32 v[8:9], {vr(E1,2)}, {vr(E1+2,2)}')
    for r in range(E1 + 4, E1 + 12, 2): A(f'v_pk_add_f32 v[8:9], v[8:9], {vr(r,2)}')
    A('v_add_f32 v8, v8, v9')
    allred('v_add_f32')
    A('v_rcp_f32 v8, v8')
    for r in range(E1, E1 + 12, 2): A(f'v_pk_mul_f32 {vr(r,2)}, {vr(r,2)}, v[8:9] op_sel_hi:[1,0]')
    for k in range(6): A(f'v_cvt_pk_bf16_f32 v{12+k}, v{E1+2*k}, v{E1+2*k+1}\nv_min_u32 v{12+k}, -2, v{12+k}')
    A(f's_mul_i32 s15, s8, {PX_SEG}\ns_add_u32 s15, s15, {PX}')
    A(f'buffer_store_dwordx4 v[12:15], v113, {SRD}, s15 offen sc1\nbuffer_store_dwordx2 v[16:17], v112, {SRD}, s15 offen sc1')
    A(f'{lab}_nosm:')
    A(f's_lshl_b32 s15, s8, 7\ns_add_u32 s15, s15, {FPX}')
    signal(w, f'{lab}_sig', 's15', 'v105')
    A(f's_mov_b32 {sXB}, {sXN}\ns_add_u32 s8, s8, {NQ}\ns_cmp_lt_u32 s8, {NSEG}\ns_cbranch_scc1 {lab}_loop')
    tline(A, dict(cfg, tlreg=106), 4)
    A('s_endpgm')

def gen_T(A, cfg, lab, tmo, fin='s_endpgm'):
    w = Wv(A, {})
    em = Emitter(A, [f'v{i}' for i in range(8, 30)])
    l = V('v0'); g = l >> 4
    A('s_load_dwordx2 s[28:29], s[0:1], 64\ns_load_dwordx2 s[30:31], s[0:1], 80')
    em.emit(l & 63, 'v0')
    A(f"""s_and_b32 s12, {sR}, 15
    s_lshl_b32 s12, s12, 2
    s_add_u32 s12, s12, {sW}
    s_waitcnt lgkmcnt(0)
    s_cmp_lt_u32 {sR}, 16
    s_cselect_b32 s20, s28, s30
    s_cselect_b32 s21, s29, s31
    s_mov_b32 s22, {D*F*2}
    s_mov_b32 s23, 0x20000
    s_movk_i32 s13, 896
    s_cselect_b32 s13, 3584, s13
    s_cselect_b32 s14, 28, 7
    s_movk_i32 s15, 9363
    s_cselect_b32 s15, 2341, s15       ; 65536 / blocks
    s_cselect_b32 s16, 14, 56          ; k quads
    s_mov_b32 s17, {W2F}
    s_cselect_b32 s17, {W1F}, s17
    s_mul_i32 s18, {sW}, 28672""")
    if cfg.get('defert'):
        wait_lanes(A, f'{lab}_wx', l * 0 + FX, l * 0 + nfx(cfg), tmo)
        defer(A, f'{lab}_df', tmo)
    em.emit((l >> 3) * Sg('s13') + (l & 7) * 16, 'v1')
    em.emit(Sg('s18') + (g * 8 + ((l >> 2) & 3)) * 128 + (l & 3) * 16, 'v2')
    em.emit(l * 16, 'v3')
    A('s_lshl_b32 s24, s13, 3')
    for k in range(7):
        A(f's_add_u32 s25, s12, {64*k}\ns_mul_i32 s26, s25, s15\ns_lshr_b32 s26, s26, 16\ns_mul_i32 s27, s26, s14\ns_sub_u32 s27, s25, s27')
        A(f's_lshl_b32 s{40+k}, s27, 2\ns_mul_i32 s{40+k}, s{40+k}, s16\ns_add_u32 s{40+k}, s{40+k}, s26\ns_lshl_b32 s{40+k}, s{40+k}, 10\ns_add_u32 s{40+k}, s{40+k}, s17')
        A(f's_cmp_lt_u32 s25, 392\ns_cselect_b32 s{40+k}, s{40+k}, {OOB}')
        A('s_lshl_b32 s26, s26, 5\ns_mul_i32 s26, s26, s13\ns_lshl_b32 s27, s27, 7\ns_add_u32 s26, s26, s27')
        for r in range(4):
            A(f's_add_u32 m0, s18, {k*4096 + r*1024}')
            w.vmem(f'buffer_load_dwordx4 v1, s[20:23], s26 offen lds', f'U{k}')
            if r < 3: A('s_add_u32 s26, s26, s24')
    A('s_lshl_b32 s24, s16, 10')
    for k in range(7):
        w.wait(vm=f'U{k}')
        for t in range(4):
            o = 8 + 16 * (k & 1) + 4 * t; off = k * 4096 + (t >> 1) * 64 + (t & 1) * 8
            A(f'ds_read_b64_tr_b16 {vr(o,2)}, v2 offset:{off}\nds_read_b64_tr_b16 {vr(o+2,2)}, v2 offset:{off+512}')
        A('s_waitcnt lgkmcnt(0)')
        for t in range(4):
            w.vmem(f'buffer_store_dwordx4 {vr(8+16*(k&1)+4*t,4)}, v3, {SRD}, s{40+k} offen sc1')
            if t < 3: A(f's_add_u32 s{40+k}, s{40+k}, s24')
    A(f's_mov_b32 s15, {FW}')
    signal(w, f'{lab}_sig', 's15', 'v4')
    tline(A, dict(cfg, tlreg=5), 4)
    A(fin)

def gen_F(A, cfg, lab, tmo):
    w = Wv(A, {})
    em = Emitter(A, [f'v{i}' for i in range(8, 30)])
    l = V('v0'); g = l >> 4; n = l & 15; ww = Sg(sW)
    A('s_load_dwordx2 s[28:29], s[0:1], 72\ns_load_dwordx2 s[30:31], s[0:1], 88\ns_load_dwordx2 s[32:33], s[0:1], 0\ns_load_dwordx2 s[34:35], s[0:1], 96')
    wait_lanes(A, f'{lab}_wx', l * 0 + FX, l * 0 + nfx(cfg), tmo)
    em.emit(l * 16, 'v1')
    em.emit(g * 16, 'v3')
    A('s_waitcnt lgkmcnt(0)')
    srd(A, 36, 28, F * 2); srd(A, 40, 30, D * 2); srd(A, 44, 32, S * D * 2); srd(A, 48, 34, S * D * 2)
    xr = lambda tt, p: f'a[{(tt*14+p)*4}:{(tt*14+p)*4+3}]'
    A(f's_mul_i32 s12, {sR}, 28672' + (f'\ns_add_u32 s12, s12, {XF}' if XF else ''))
    for q in range(28):
        if q % 4 == 0: A(f's_add_u32 s11, s12, {q*1024}')
        A(f'buffer_load_dwordx4 {xr(q//14, q%14)}, v1, {SRD}, s11 offen offset:{(q%4)*1024}')
    A(f's_mov_b32 s15, {FW}')
    wait_flag(w, f'{lab}_fw', 's15', 32, tmo)
    c2 = dict(cfg, tlreg=2)
    tline(A, c2, 1)
    WB = lambda buf, q: 32 + buf * 112 + 4 * q
    A(f's_mul_i32 s13, {sW}, {14*28672}\ns_add_u32 s13, s13, {W1F}\ns_mul_i32 s14, {sW}, {14*64}')
    em.emit(ww * 28672 + l * 16, 'v4')
    def wl(buf, q):
        if q % 4 == 0: A(f's_add_u32 s11, s13, {q*1024}')
        w.vmem(f'buffer_load_dwordx4 {vr(WB(buf,q),4)}, v1, {SRD}, s11 offen offset:{(q%4)*1024} sc1', f'W{buf}_{q}')
    def bl(buf): w.vmem(f'buffer_load_dwordx4 {vr(24+4*buf,4)}, v3, s[36:39], s14 offen', f'B{buf}')
    w.vm = []
    bl(0)
    for q in range(28): wl(0, q)
    A('s_mov_b32 s8, 0')
    A(f'{lab}_l1:')
    def block(buf):
        A('s_add_u32 s13, s13, 28672\ns_add_u32 s14, s14, 64')
        bl(1 - buf)
        for p in range(14):
            for b in range(2):
                q = b * 14 + p
                w.wait(vm=f'W{buf}_{q}')
                for tt in range(2): A(mfma(vr(8 + (b * 2 + tt) * 4, 4), vr(WB(buf, q), 4), xr(tt, p), 0 if p == 0 else None))
            wl(1 - buf, 2 * p); wl(1 - buf, 2 * p + 1)
        bb = 24 + 4 * buf
        for tt in range(2):
            for b in range(2):
                a = 8 + (b * 2 + tt) * 4
                for k in range(2):
                    A(f'v_lshlrev_b32 v6, 16, v{bb+2*b+k}\nv_and_b32 v7, 0xffff0000, v{bb+2*b+k}')
                    A(f'v_pk_add_f32 {vr(a+2*k,2)}, {vr(a+2*k,2)}, v[6:7]')
                    A(f'v_max_f32 v{a+2*k}, 0, v{a+2*k}\nv_max_f32 v{a+2*k+1}, 0, v{a+2*k+1}')
                    A(f'v_pk_mul_f32 {vr(a+2*k,2)}, {vr(a+2*k,2)}, {vr(a+2*k,2)}')
                    A(f'v_cvt_pk_bf16_f32 v{a+k}, v{a+2*k}, v{a+2*k+1}')
            A(f'v_mov_b64 {vr(8+tt*4+2,2)}, {vr(16+tt*4,2)}')
            A(f'ds_write_b128 v4, {vr(8+tt*4,4)} offset:{buf*2048 + tt*1024}')
    w.vm = ['B0'] + [f'W0_{q}' for q in range(28)]
    block(0); block(1)
    A(f'v_add_u32 v4, 4096, v4\ns_add_u32 s8, s8, 1\ns_cmp_lt_u32 s8, {1 if cfg.get("noffn") else 7}\ns_cbranch_scc1 {lab}_l1')
    tline(A, c2, 2)
    A(f's_lshl_b32 s16, {sW}, 2\ns_cmp_eq_u32 {sW}, 3\ns_cselect_b32 s16, 11, s16')
    A(f's_mul_i32 s13, s16, {2*57344}\ns_add_u32 s13, s13, {W2F}')
    for t in range(8):
        A(f's_add_u32 s{52+t}, s13, {t*57344}')
    A(f's_cmp_ge_u32 {sW}, 2\ns_cselect_b32 s58, {OOB}, s58\ns_cselect_b32 s59, {OOB}, s59')
    A('s_waitcnt vmcnt(0) lgkmcnt(0)\ns_barrier')
    W2 = lambda buf, t: 32 + (buf * 8 + t) * 4
    HB = lambda buf, tt: 8 + (buf * 2 + tt) * 4
    G = lambda t, tt: f'a[{(t*2+tt)*4}:{(t*2+tt)*4+3}]'
    for r in range(64): A(f'v_accvgpr_write_b32 a{r}, 0')
    A('v_mov_b32 v4, v1\nv_mov_b32 v5, v1')
    def w2l(buf, off):
        for t in range(8): w.vmem(f'buffer_load_dwordx4 {vr(W2(buf,t),4)}, v5, {SRD}, s{52+t} offen offset:{off} sc1', f'V{buf}')
    def hl(buf, off):
        for tt in range(2): w.ds(f'ds_read_b128 {vr(HB(buf,tt),4)}, v4 offset:{off + tt*1024}', f'H{buf}')
    w.vm = []; w.lg = []
    for k in range(3): w2l(k, k * 1024)
    hl(0, 0)
    A('v_add_u32 v5, 3072, v5\ns_mov_b32 s8, 0')
    A(f'{lab}_l2:')
    for k in range(4):
        w2l((k + 3) & 3, k * 1024)
        hl((k + 1) & 1, (k + 1) * 2048)
        w.wait(vm=f'V{k}', lg=f'H{k&1}')
        for t in range(8):
            for tt in range(2): A(mfma(G(t, tt), vr(W2(k, t), 4), vr(HB(k & 1, tt), 4)))
    A(f'v_add_u32 v5, 4096, v5\nv_add_u32 v4, 8192, v4\ns_add_u32 s8, s8, 1\ns_cmp_lt_u32 s8, {1 if cfg.get("noffn") else 14}\ns_cbranch_scc1 {lab}_l2')
    A('s_waitcnt vmcnt(0) lgkmcnt(0)')
    A('s_lshl_b32 s14, s16, 6')
    for k in range(4): A(f'buffer_load_dwordx4 {vr(32+4*k,4)}, v3, s[40:43], s14 offen offset:{k*64}')
    A(f's_lshl_b32 s14, s16, 10\ns_add_u32 s14, s14, s12\ns_add_u32 s14, s14, {GB - XF}\ns_add_u32 s15, s14, 14336')
    A('s_waitcnt vmcnt(0)')
    for k in range(4):
        if k == 3: A(f's_cmp_ge_u32 {sW}, 2\ns_cbranch_scc1 {lab}_gdone')
        for tt in range(2):
            for b in range(2):
                for r in range(4): A(f'v_accvgpr_read_b32 v{48+4*b+r}, a{((2*k+b)*2+tt)*4+r}')
            for j in range(4):
                A(f'v_lshlrev_b32 v6, 16, v{32+4*k+j}\nv_and_b32 v7, 0xffff0000, v{32+4*k+j}')
                A(f'v_pk_add_f32 {vr(48+2*j,2)}, {vr(48+2*j,2)}, v[6:7]')
            for r in range(8): A(f'v_mul_f32 v{56+r}, {f32(-math.log2(math.e))}, v{48+r}')
            for r in range(8): A(f'v_exp_f32 v{56+r}, v{56+r}')
            for r in range(8): A(f'v_add_f32 v{56+r}, 1.0, v{56+r}')
            for r in range(8): A(f'v_rcp_f32 v{56+r}, v{56+r}')
            for j in range(4):
                A(f'v_pk_mul_f32 {vr(48+2*j,2)}, {vr(48+2*j,2)}, {vr(56+2*j,2)}')
                A(f'v_cvt_pk_bf16_f32 v{64+4*tt+j}, v{48+2*j}, v{49+2*j}')
            A(f'buffer_store_dwordx4 {vr(64+4*tt,4)}, v1, {SRD}, {"s15" if tt else "s14"} offen offset:{k*1024} sc1')
    A(f'{lab}_gdone:')
    A(f's_lshl_b32 s15, {sR}, 7\ns_add_u32 s15, s15, {FG}')
    signal(w, f'{lab}_gsig', 's15')
    tline(A, c2, 3)
    if cfg.get('nopost'): A('s_endpgm')
    if cfg.get('out2', 1):
        A(f's_cmp_ge_u32 {sR}, 56\ns_cbranch_scc1 {lab}_end')
        A(f's_mul_i32 s8, {sR}, 4682\ns_lshr_b32 s8, s8, 16\ns_mul_i32 s16, s8, 14\ns_sub_u32 s16, {sR}, s16')
        col = Sg('s16') * 32 + (n >> 2) * 8 + (n & 3)
        em.emit(g * 7168 + col * 16, 'v4')
        em.emit(n * 896 + Sg('s16') * 64 + g * 16 + (ww & 1) * 14336, 'v5')
        em.emit(Sg('s16') * 1024 + l * 16 + (ww & 1) * 14336, 'v6')
        em.emit((l & 1) * (FPX - FVM), 'v7')
        em.emit(ww * 4096 + l * 16, 'v3')
        em.emit((ww & 1) * 2048 + l * 16, 'v123')
        l3 = l & 3
        em.emit(sel_lt(l3, 1, FVX, sel_lt(l3, 2, FG, sel_lt(l3, 3, FVM, FPX))), 'v121')
        em.emit(sel_lt(l3 ^ 1, 1, 1, 16), 'v122')
        A(f's_mul_i32 s17, {sW}, {4*28672}\ns_mul_i32 s18, {sW}, 28672\ns_lshl_b32 s23, {sW}, 12\ns_lshl_b32 s24, {sW}, 10\ns_add_u32 s24, s24, 16384')
        WX = lambda q, b: 32 + (q * 2 + b) * 4
        PB = lambda q, tt: 72 + (q * 2 + tt) * 4
        A(f'{lab}_l3:')
        if cfg.get('codetouch2', 1): code_touch(A, f'{lab}_l3', f'{lab}_end', sW, 4, 'v27', 'v120', 52)
        A(f's_lshl_b32 s13, s8, 7\ns_cmp_lg_u32 {sW}, 0\ns_cbranch_scc1 {lab}_f1go\ns_mov_b32 {sSPIN}, {WSPIN}')
        A(f'{lab}_f1:\nbuffer_load_dword v2, v121, {SRD}, s13 offen sc1')
        A(f's_sub_u32 {sSPIN}, {sSPIN}, 1\ns_cbranch_scc1 {tmo}\ns_waitcnt vmcnt(0)\nv_cmp_gt_u32 vcc, v122, v2\ns_and_b32 s11, vcc_lo, 3\ns_cbranch_scc1 {lab}_f1')
        A(f's_and_b32 s28, vcc_lo, 12\n{lab}_f1go:\ns_barrier')
        A(f's_mul_i32 s14, s8, {VX_SEG}\ns_add_u32 s14, s14, s17\ns_add_u32 s14, s14, {VXF}')
        for q in range(4):
            for b in range(2): A(f'buffer_load_dwordx4 {vr(WX(q,b),4)}, v4, {SRD}, s14 offen offset:{b*64} sc1')
            if q < 3: A('s_add_u32 s14, s14, 28672')
        A('s_mul_i32 s14, s8, 28672')
        A('buffer_load_dwordx4 v[112:115], v5, s[44:47], s14 offen')
        A(f's_add_u32 s21, s14, {GB}\nbuffer_load_dwordx4 v[116:119], v6, {SRD}, s21 offen sc1')
        A(f's_mul_i32 s21, s8, {PX_SEG}\ns_add_u32 s21, s21, {PX}\ns_add_u32 s22, s21, s24\ns_add_u32 s21, s21, s23\ns_add_u32 s25, s21, 20480\ns_add_u32 s26, s22, 20480')
        A(f's_mul_i32 s27, s8, {VM_SEG}\ns_add_u32 s27, s27, s18\ns_add_u32 s27, s27, {VM}')
        def late_loads():
            for q in range(4):
                for tt in range(2): A(f'buffer_load_dwordx4 {vr(PB(q,tt),4)}, v1, {SRD}, {"s25" if tt else "s21"} offen offset:{q*1024} sc1')
            for tt in range(2): A(f'buffer_load_dwordx4 {vr(PB(4,tt),4)}, v1, {SRD}, {"s26" if tt else "s22"} offen sc1')
            for b in range(2): A(f'buffer_load_dwordx4 {vr(WX(4,b),4)}, v4, {SRD}, s27 offen offset:{b*64} sc1')
        if cfg.get('lastdirect', 1):
            A(f's_cmp_eq_u32 s8, {NSEG-1}\ns_cbranch_scc0 {lab}_flags')
            A(f's_mov_b32 s15, {MX + (NSEG-1)*7168}')
            mx_wait(w, f'{lab}_dir', list(range(64, 112)), late_loads, tmo, 'v2', True)
            A(f's_branch {lab}_go')
        A(f'{lab}_flags:\ns_add_u32 s15, s13, {FVM}')
        A(f's_cmp_lg_u32 {sW}, 0\ns_cbranch_scc1 {lab}_f2go\ns_cmp_eq_u32 s28, 0\ns_cbranch_scc1 {lab}_f2go\ns_mov_b32 {sSPIN}, {WSPIN}')
        A(f'{lab}_f2:\nbuffer_load_dword v2, v7, {SRD}, s15 offen sc1')
        A(f's_sub_u32 {sSPIN}, {sSPIN}, 1\ns_cbranch_scc1 {tmo}\ns_waitcnt vmcnt(0)\nv_cmp_gt_u32 vcc, 16, v2\ns_cbranch_vccnz {lab}_f2')
        A(f'{lab}_f2go:\ns_barrier')
        late_loads()
        A(f's_waitcnt vmcnt(0)\n{lab}_go:')
        tline(A, c2, 5)
        for q in range(5):
            for b in range(2):
                for tt in range(2): A(mfma(vr(8 + (tt * 2 + b) * 4, 4), vr(WX(q, b), 4), vr(PB(q, tt), 4), 0 if q == 0 else None))
        for k in range(4): A(f'ds_write_b128 v3, {vr(8+4*k,4)} offset:{k*1024}')
        A(f's_waitcnt lgkmcnt(0)\ns_barrier\ns_cmp_ge_u32 {sW}, 2\ns_cbranch_scc1 {lab}_next')
        for src in range(4):
            for b in range(2): A(f'ds_read_b128 {vr(32+(src*2+b)*4,4)}, v123 offset:{src*4096 + b*1024}')
        A('s_waitcnt lgkmcnt(0)')
        for j in range(4):
            r = 32 + 2 * j
            A(f'v_pk_add_f32 {vr(r,2)}, {vr(r,2)}, {vr(r+8,2)}\nv_pk_add_f32 {vr(r+16,2)}, {vr(r+16,2)}, {vr(r+24,2)}\nv_pk_add_f32 {vr(r,2)}, {vr(r,2)}, {vr(r+16,2)}')
            A(f'v_cvt_pk_bf16_f32 v{r}, v{r}, v{r+1}\nv_and_b32 v{r+1}, 0xffff0000, v{r}\nv_lshlrev_b32 v{r}, 16, v{r}')
            A(f'v_lshlrev_b32 v24, 16, v{116+j}\nv_and_b32 v25, 0xffff0000, v{116+j}')
            A(f'v_pk_mul_f32 {vr(r,2)}, {vr(r,2)}, v[24:25]')
            A(f'v_cvt_pk_bf16_f32 v{r}, v{r}, v{r+1}\nv_and_b32 v{r+1}, 0xffff0000, v{r}\nv_lshlrev_b32 v{r}, 16, v{r}')
            A(f'v_lshlrev_b32 v24, 16, v{112+j}\nv_and_b32 v25, 0xffff0000, v{112+j}')
            A(f'v_pk_add_f32 {vr(r,2)}, {vr(r,2)}, v[24:25]')
            A(f'v_cvt_pk_bf16_f32 v{28+j}, v{r}, v{r+1}')
        if cfg.get('ostsplit'):
            A(f's_cmp_ge_u32 s8, {cfg["ostsplit"]}\ns_cbranch_scc1 {lab}_plain\nbuffer_store_dwordx4 v[28:31], v5, s[48:51], s14 offen sc1\ns_branch {lab}_next\n{lab}_plain:')
        A(f'buffer_store_dwordx4 v[28:31], v5, s[48:51], s14 offen {cfg.get("ost", "")}')
        A(f'{lab}_next:\ns_add_u32 s8, s8, 4\ns_cmp_lt_u32 s8, {NSEG}\ns_cbranch_scc1 {lab}_l3\n{lab}_end:')
    else:
        A(f's_and_b32 s11, {sR}, 3\ns_lshl_b32 s16, s11, 2\ns_cmp_eq_u32 s11, 3\ns_cselect_b32 s16, 11, s16\ns_add_u32 s16, s16, {sW}')
        A(f's_lshr_b32 s11, s11, 1\ns_add_u32 s11, s11, {sW}\ns_cmp_ge_u32 s11, 4\ns_cselect_b32 s17, {OOB}, 0')
        col = Sg('s16') * 32 + (n >> 2) * 8 + (n & 3)
        em.emit(g * 7168 + col * 16 + Sg('s17'), 'v4')
        em.emit(n * 896 + Sg('s16') * 64 + g * 16 + Sg('s17'), 'v5')
        em.emit(Sg('s16') * 1024 + l * 16 + Sg('s17'), 'v6')
        em.emit((l & 1) * (FPX - FVM), 'v7')
        A(f's_lshr_b32 s8, {sR}, 2\ns_mul_i32 s18, {sW}, 10240')
        WX = lambda q, b: 32 + (q * 2 + b) * 4
        A(f'{lab}_l3:')
        A(f's_lshl_b32 s13, s8, 7\ns_add_u32 s15, s13, {FVX}')
        wait_flag(w, f'{lab}_fvx', 's15', 16, tmo)
        A(f's_mul_i32 s14, s8, {VX_SEG}\ns_add_u32 s14, s14, {VXF}')
        for q in range(16):
            for b in range(2): A(f'buffer_load_dwordx4 {vr(WX(q,b),4)}, v4, {SRD}, s14 offen offset:{b*64} sc1')
            if q < 15: A('s_add_u32 s14, s14, 28672')
        A('s_mul_i32 s14, s8, 28672\ns_add_u32 s20, s14, 14336')
        A('buffer_load_dwordx4 v[192:195], v5, s[44:47], s14 offen\nbuffer_load_dwordx4 v[196:199], v5, s[44:47], s20 offen')
        A(f's_add_u32 s15, s13, {FG}')
        wait_flag(w, f'{lab}_fg', 's15', 1, tmo)
        A(f's_add_u32 s21, s14, {GB}\ns_add_u32 s22, s20, {GB}')
        A(f'buffer_load_dwordx4 v[200:203], v6, {SRD}, s21 offen sc1\nbuffer_load_dwordx4 v[204:207], v6, {SRD}, s22 offen sc1')
        A(f's_add_u32 s15, s13, {FVM}')
        A(f's_cmp_lg_u32 {sW}, 0\ns_cbranch_scc1 {lab}_f2go\ns_mov_b32 {sSPIN}, {WSPIN}')
        A(f'{lab}_f2:\nbuffer_load_dword v2, v7, {SRD}, s15 offen sc1')
        A(f's_sub_u32 {sSPIN}, {sSPIN}, 1\ns_cbranch_scc1 {tmo}\n{BACK[0]}s_waitcnt vmcnt(0)\nv_cmp_gt_u32 vcc, 16, v2\ns_cbranch_vccnz {lab}_f2')
        A(f'{lab}_f2go:\ns_barrier')
        tline(A, c2, 5)
        A(f's_mul_i32 s21, s8, {PX_SEG}\ns_add_u32 s21, s21, s18\ns_add_u32 s21, s21, {PX}')
        for k in range(10):
            if k % 4 == 0: A(f's_add_u32 m0, s18, {k*1024}\ns_add_u32 s22, s21, {k*1024}')
            A(f'buffer_load_dwordx4 v1, {SRD}, s22 offen offset:{(k%4)*1024} sc1 lds')
        A(f's_mul_i32 s21, s8, {VM_SEG}\ns_add_u32 s21, s21, {VM}')
        for u in range(4):
            for b in range(2): A(f'buffer_load_dwordx4 {vr(WX(16+u,b),4)}, v4, {SRD}, s21 offen offset:{b*64} sc1')
            if u < 3: A('s_add_u32 s21, s21, 28672')
        A('s_waitcnt vmcnt(8)\ns_barrier')
        w.lg = []
        PB = lambda q, tt: 208 + ((q & 3) * 2 + tt) * 4
        def pl(q):
            for tt in range(2): w.ds(f'ds_read_b128 {vr(PB(q,tt),4)}, v1 offset:{tt*20480 + q*1024}', f'P{q}')
        for q in range(3): pl(q)
        for q in range(20):
            if q + 3 < 20: pl(q + 3)
            w.wait(lg=f'P{q}')
            if q == 16: A('s_waitcnt vmcnt(0)')
            for b in range(2):
                for tt in range(2): A(mfma(vr(8 + (tt * 2 + b) * 4, 4), vr(WX(q, b), 4), vr(PB(q, tt), 4), 0 if q == 0 else None))
        for tt in range(2):
            a = 8 + tt * 8
            for j in range(4):
                r = a + 2 * j
                A(f'v_cvt_pk_bf16_f32 v{r}, v{r}, v{r+1}\nv_and_b32 v{r+1}, 0xffff0000, v{r}\nv_lshlrev_b32 v{r}, 16, v{r}')
                A(f'v_lshlrev_b32 v24, 16, v{200+4*tt+j}\nv_and_b32 v25, 0xffff0000, v{200+4*tt+j}')
                A(f'v_pk_mul_f32 {vr(r,2)}, {vr(r,2)}, v[24:25]')
                A(f'v_cvt_pk_bf16_f32 v{r}, v{r}, v{r+1}\nv_and_b32 v{r+1}, 0xffff0000, v{r}\nv_lshlrev_b32 v{r}, 16, v{r}')
                A(f'v_lshlrev_b32 v24, 16, v{192+4*tt+j}\nv_and_b32 v25, 0xffff0000, v{192+4*tt+j}')
                A(f'v_pk_add_f32 {vr(r,2)}, {vr(r,2)}, v[24:25]')
                A(f'v_cvt_pk_bf16_f32 v{28+j}, v{r}, v{r+1}')
            A(f'buffer_store_dwordx4 v[28:31], v5, s[48:51], {"s20" if tt else "s14"} offen {cfg.get("ost", "")}')
        A(f's_add_u32 s8, s8, 16\ns_cmp_lt_u32 s8, {NSEG}\ns_cbranch_scc1 {lab}_l3')
    if cfg.get('tl') or cfg.get('ds'): A('s_waitcnt vmcnt(0)')
    tline(A, c2, 4)
    dstamp(A, cfg, 7, 215 if cfg.get('out2', 1) else 223, 2)
    A('s_endpgm')
```

```python
from asmdsl import Asm
from layout import *
import rec, workers, prep, build

BEST = dict(xpos=[11, 15, 20, 25, 99, 99, 99, 99], hu2pos=6, ew=128, ne=1, ebar=3, gate='none', dstep=1, dslot=1, bpoll=1, prot=0, tw2=1,
            bdepth=2, dearly=2, aA=[6, 0], apoll=[6, 0], lbar=21, rtid=1)
WBEST = dict(deferq=1, defert=1, locala=0)

def counts(A, lab, tmo, sd='s[48:51]'):
    A(f's_mov_b32 s19, 0x40000\n{lab}:')
    A(f'buffer_load_dword v3, v4, {sd}, 0 offen sc1')
    A(f's_sub_u32 s19, s19, 1\ns_cbranch_scc1 {tmo}\ns_waitcnt vmcnt(0)')
    A('v_readlane_b32 s47, v3, 0\ns_mov_b32 s46, s47')
    for x in range(1, 8): A(f'v_readlane_b32 s11, v3, {x}\ns_add_u32 s46, s46, s11')

def gen_main(A, cfg):
    cfg = dict(WBEST, **cfg)
    workers.LASTD[0] = cfg.get('lastpoll', 1)
    workers.ONE[0] = cfg.get('one', 0)
    workers.PREV[0] = cfg.get('prev', 0)
    workers.BACK[0] = f's_sleep {cfg["back"]}\n' if cfg.get('back') else ''
    A(f"""M_start:
    s_cmp_ge_u32 s2, 256
    s_cbranch_scc1 M_exit0
    s_load_dwordx4 s[28:31], s[0:1], 0
    s_load_dwordx8 s[36:43], s[0:1], 16
    s_load_dwordx2 s[4:5], s[0:1], 112
    s_load_dwordx2 s[48:49], s[0:1], 104
    s_getreg_b32 s54, hwreg(HW_REG_XCC_ID, 0, 3)
    v_lshrrev_b32 v1, 6, v0
    v_readfirstlane_b32 s9, v1
    v_and_b32 v0, 63, v0
    s_waitcnt lgkmcnt(0)
    s_mov_b32 s6, {WS_BYTES}
    s_mov_b32 s7, 0x20000
    s_mov_b32 s50, 256
    s_mov_b32 s51, 0x20000""")
    if cfg.get('fakexcc'): A(cfg['fakexcc'])
    if cfg.get('ds'):
        A('s_mov_b32 s3, s2'); rec.dstamp(A, cfg, 9, 0, 3)
    A("""s_mov_b32 s12, s54
    v_mov_b32 v2, 0x27c00
    s_cmp_lg_u32 s9, 0
    s_cbranch_scc1 M_noat
    v_mov_b32 v3, 1
    s_lshl_b32 s11, s12, 5
    s_mov_b64 exec, 1
    buffer_atomic_add v3, off, s[48:51], s11 sc0 sc1
    s_mov_b64 exec, -1
M_noat:""")
    nt = 0
    if cfg.get('codetouch', 1):
        A('s_getpc_b64 s[20:21]\nM_pc:\ns_sub_u32 s20, s20, M_pc-M_start\ns_subb_u32 s21, s21, 0\ns_mov_b32 s22, M_end-M_start\ns_mov_b32 s23, 0x20000')
        A('s_lshr_b32 s11, s2, 3\ns_lshl_b32 s11, s11, 2\ns_add_u32 s11, s11, s9\ns_lshl_b32 s11, s11, 10\nv_lshlrev_b32 v5, 4, v0')
        A('buffer_load_dword v251, v5, s[20:23], s11 offen'); nt += 1
    if cfg.get('tlbtouch'):
        k = cfg['tlbtouch']
        A(f's_lshl_b32 s11, s9, {k+6}\nv_lshlrev_b32 v5, {k}, v0\nbuffer_load_dword v250, v5, s[4:7], s11 offen'); nt += 1
    if cfg.get('pretouch', 1):
        A(f's_lshl_b32 s11, s2, 2\ns_add_u32 s11, s11, s9\ns_mul_i32 s11, s11, 3584\nv_lshlrev_b32 v5, 7, v0\nv_mov_b32 v6, {OOB}')
        A('v_cmp_gt_u32 vcc, 28, v0\nv_cndmask_b32 v5, v6, v5, vcc')
        for k, p in enumerate(cfg.get('order', (40, 42))):
            prep.srd(A, 20, p, prep.W_BYTES)
            A(f'buffer_load_dword v{252+k}, v5, s[20:23], s11 offen'); nt += 1
    A(f"""s_cmp_lg_u32 s9, 0
    s_cbranch_scc1 M_ranked
    s_waitcnt vmcnt({nt})
    v_readfirstlane_b32 s3, v3
    v_and_b32 v4, 7, v0
    v_lshlrev_b32 v4, 5, v4
    s_lshl_b32 s11, s12, 5
    s_cmp_lt_u32 s3, 32
    s_cselect_b32 s15, 0, 1
    s_add_u32 s3, s3, s11
    s_cmp_eq_u32 s15, 0
    s_cbranch_scc1 M_have""")
    A("""v_mov_b32 v3, 1
    s_mov_b64 exec, 1
    buffer_atomic_add v3, off, s[48:51], 0 offset:4 sc0 sc1
    s_waitcnt vmcnt(0)
    s_mov_b64 exec, -1
    v_readfirstlane_b32 s15, v3""")
    counts(A, 'M_ovf', 'M_exit0')
    A('s_cmp_lt_u32 s46, 256\ns_cbranch_scc1 M_ovf_again\ns_mov_b32 s3, 0')
    for x in range(8):
        A(f'v_readlane_b32 s11, v3, {x}\ns_min_u32 s11, s11, 32\ns_sub_u32 s16, 32, s11')
        A(f's_cmp_lt_u32 s15, s16\ns_cbranch_scc0 M_nx{x}\ns_add_u32 s3, s11, s15\ns_add_u32 s3, s3, {32*x}\ns_branch M_have\nM_nx{x}:\ns_sub_u32 s15, s15, s16')
    A('M_exit0:\ns_endpgm\nM_ovf_again:')
    A('s_branch M_ovf')
    A("""M_have:
    v_mov_b32 v3, s3
    ds_write_b32 v2, v3
    s_waitcnt lgkmcnt(0)
M_ranked:
    s_barrier
    ds_read_b32 v3, v2
    s_waitcnt lgkmcnt(0)
    v_readfirstlane_b32 s3, v3""")
    rec.tline(A, dict(cfg, tlreg=3), 0)
    rec.dstamp(A, cfg, 3, 0, 3)
    A('s_barrier\ns_cmp_lt_u32 s3, 32\ns_cbranch_scc1 M_rec\ns_sub_u32 s10, s3, 32')
    prep.gen_gemm(A, cfg, 'M_exit0')
    A("""s_sub_u32 s11, s3, 32
    s_and_b32 s10, s11, 63
    s_lshr_b32 s11, s11, 6
    s_cmp_eq_u32 s11, 2
    s_cbranch_scc1 M_F
    s_cmp_eq_u32 s11, 3
    s_cbranch_scc1 M_T
    s_and_b32 s12, s10, 3
    s_lshr_b32 s10, s10, 2
    s_cmp_eq_u32 s11, 1
    s_cbranch_scc1 M_Q""")
    workers.gen_V(A, cfg, 'WV', 'M_exit')
    A('M_Q:'); workers.gen_Q(A, cfg, 'WQ', 'M_exit')
    A('M_T:'); workers.gen_T(A, cfg, 'WT', 'M_exit')
    A('M_F:'); workers.gen_F(A, cfg, 'WF', 'M_exit')
    A('M_exit:\ns_endpgm')
    def mode(lab):
        A(f'v_mov_b32 v2, 0x27c00\ns_cmp_lg_u32 s9, 0\ns_cbranch_scc1 {lab}_ss')
        A('v_and_b32 v4, 7, v0\nv_lshlrev_b32 v4, 5, v4')
        counts(A, f'{lab}_cnt', 'R_exit')
        A(f's_mov_b32 s30, 0\ns_cmp_ge_u32 s47, 32\ns_cbranch_scc1 {lab}_md\ns_mov_b32 s30, 1\ns_cmp_ge_u32 s46, 256\ns_cbranch_scc1 {lab}_md')
        A(f's_branch {lab}_cnt\n{lab}_md:')
        A(f'v_mov_b32 v3, s30\nds_write_b32 v2, v3\ns_waitcnt lgkmcnt(0)\n{lab}_ss:\ns_barrier')
        A(f'ds_read_b32 v3, v2\ns_waitcnt lgkmcnt(0)\nv_readfirstlane_b32 s30, v3')
    def help_a(lab):
        nt_ = cfg.get('helpa', 0)
        if not nt_: return
        A(f's_lshl_b32 s11, s10, 7\ns_add_u32 s11, s11, {FA}\ns_mov_b32 s19, 0x40000')
        A(f'{lab}_ha:\nbuffer_load_dword v3, off, s[4:7], s11 sc1\ns_sub_u32 s19, s19, 1\ns_cbranch_scc1 R_exit')
        A(f's_waitcnt vmcnt(0)\nv_cmp_gt_u32 vcc, 14, v3\ns_cbranch_vccnz {lab}_ha')
        A(f's_mul_i32 s33, s10, {28*14336}\ns_add_u32 s33, s33, {AF}\ns_lshr_b32 s11, s9, 1\ns_mul_i32 s11, s11, {14*14336}\ns_add_u32 s33, s33, s11')
        A(f'v_lshlrev_b32 v4, 7, v0\nv_min_u32 v5, 47, v0\nv_lshlrev_b32 v5, 7, v5\ns_and_b32 s34, s9, 1')
        for k, (t0_, t1_) in enumerate(((6, 7), (5, 13), (4, 12), (3, 11))[:nt_]):
            A(f's_mul_i32 s11, s34, {(t1_-t0_)*14336}\ns_add_u32 s11, s11, s33\ns_add_u32 s11, s11, {t0_*14336}')
            A(f'buffer_load_dword v102, v4, s[4:7], s11 offen\ns_add_u32 s11, s11, 8192\nbuffer_load_dword v102, v5, s[4:7], s11 offen')
    def start_sync(w, lab):
        if lab != 'RA': help_a(lab)
        if cfg.get('tl'): A('s_waitcnt vmcnt(0)')
        rec.tline(A, dict(cfg, tlreg=3), 1)
        if lab.endswith('l'):
            A(f'v_min_u32 v4, 1, v0\nv_lshlrev_b32 v4, 7, v4\ns_mov_b32 s11, {FVX}\ns_mov_b32 s19, 0x40000')
            A(f'{lab}_fv:\nbuffer_load_dword v3, v4, s[4:7], s11 offen sc1\ns_sub_u32 s19, s19, 1\ns_cbranch_scc1 R_exit')
            A(f's_waitcnt vmcnt(0)\nv_cmp_gt_u32 vcc, 16, v3\ns_cbranch_vccnz {lab}_fv')
            if cfg.get('tl'):
                A('s_sub_u32 s9, s9, 2'); rec.tline(A, dict(cfg, tlreg=3), 3); A('s_add_u32 s9, s9, 2')
        elif cfg.get('warm', 1) and lab == 'RA':
            A(f's_lshl_b32 s11, s3, 2\ns_add_u32 s11, s11, s9\ns_lshl_b32 s11, s11, 11\ns_add_u32 s11, s11, {MS}\nv_lshlrev_b32 v4, 5, v0')
            A('buffer_load_dword v3, v4, s[4:7], s11 offen sc1')
        A(f's_mov_b32 s19, {rec.SPIN_MAX}')
        rec.tline(A, dict(cfg, tlreg=3), 2)
        rec.dstamp(A, cfg, 4, 0, 3); rec.dstamp(A, cfg, 5, 31, 3)
    c = dict(BEST); c.update(cfg)
    c.setdefault('start_sync', start_sync); c.setdefault('finish', lambda w, lab: (rec.tline(A, dict(cfg, tlreg=3, tlclk=1), 4), rec.dstamp(A, cfg, 6, 0, 3)))
    def loop_top(w, lab):
        if cfg.get('ds'):
            A(f's_cmp_lg_u32 s8, 2\ns_cbranch_scc1 {lab}_ds2'); rec.dstamp(A, cfg, 12, 0, 3); A(f'{lab}_ds2:')
        if cfg.get('tl'):
            for k, st in zip((3, 5, 6), cfg.get('tlsteps', (1, 16, 32))):
                A(f's_cmp_lg_u32 s8, {st}\ns_cbranch_scc1 {lab}_lt{k}'); rec.tline(A, dict(cfg, tlreg=3, tlclk=1), k); A(f'{lab}_lt{k}:')
    c.setdefault('loop_top', loop_top)
    if cfg.get('locala') and not cfg.get('fakeloc'):
        A('M_rec:\ns_and_b32 s10, s3, 15\ns_cmp_ge_u32 s3, 16\ns_cbranch_scc1 M_misc')
        prep.local_A(A, cfg)
        A('s_cmp_lg_u32 s9, 0\ns_cbranch_scc1 M_prep')
        prep.zero_ready(A, 'M_zr', 'R_exit')
        A('s_branch M_prep\nM_misc:')
    else:
        A('M_rec:\ns_mov_b32 s10, s3')
    prep.gen_misc(A, cfg, 'R_exit')
    A('M_prep:')
    from expr import V, Sg, sel_lt
    l = V('v0')
    def touch(lab, sbase, n):
        A(f'v_lshlrev_b32 v4, 7, v0')
        for k in range(n):
            A(f'buffer_load_dword v30, v4, s[4:7], {sbase} offen\ns_add_u32 {sbase}, {sbase}, 8192')
    def pre_a():
        nb = cfg.get('helpb', 0)
        if nb:
            hh = (Sg('s10') >> 2) * 4 + 2 + ((Sg('s10') >> 1) & 1)
            rec.wait_lanes(A, 'RA_wb', l * 0 + FB + hh * 128, l * 0 + 14, 'R_exit')
            A(f's_lshr_b32 s11, s10, 2\ns_lshl_b32 s11, s11, 2\ns_add_u32 s11, s11, 2\ns_bfe_u32 s33, s10, 0x10001\ns_add_u32 s11, s11, s33\ns_mul_i32 s11, s11, {14*28672}')
            A(f's_and_b32 s33, s10, 1\ns_lshl_b32 s33, s33, 2\ns_add_u32 s33, s33, s9\ns_mul_i32 s33, s33, 50176\ns_add_u32 s11, s11, s33\ns_add_u32 s33, s11, {BF}')
            touch('RA_tb', 's33', nb)
        if cfg.get('locala'): rec.wait_lanes(A, 'RA_wa', sel_lt(l, 1, FA + 2048 + Sg('s10') * 128, FX), sel_lt(l, 1, 7, workers.nfx(cfg)), 'R_exit')
        else: rec.wait_lanes(A, 'RA_wa', sel_lt(l, 1, FA + Sg('s10') * 128, FX), sel_lt(l, 1, 14, 32), 'R_exit')
    c['pre_a'] = pre_a
    def mid_weights(spare):
        if cfg.get('codetouch2', 1):
            A('s_lshl_b32 s33, s3, 2\ns_add_u32 s33, s33, s9')
            rec.code_touch(A, 'M_rec', 'M_end', 's33', 3, 'v2', spare)
    c['mid_weights'] = mid_weights
    c['pre_b'] = lambda: rec.wait_lanes(A, 'RB_wb', sel_lt(l, 16, FB + l * 128, FX), sel_lt(l, 16, 14, workers.nfx(cfg)), 'R_exit')
    mode('RM')
    A('s_and_b32 s10, s3, 15\ns_cmp_ge_u32 s3, 16\ns_cbranch_scc1 M_B')
    rec.gen_A(A, c, 'RA', 'R_exit')
    A('R_exit:\ns_endpgm\nM_B:')
    rec.gen_B(A, c, 'RB', 'R_exit')
    A('M_end:')

def generate(cfg={}, header=''):
    K = Asm(); gen_main(K, cfg)
    return build.assemble([(build.NAME + '_kernel', K.lines, 256, 256, 163840, 512, 256)], header)

if __name__ == '__main__':
    ref = open(f'cdna_kernels/{build.NAME}.s.ref').read().split('\n')
    header = '\n'.join(l for l in ref if l.startswith(';') and '@launch' not in l and 'Override' not in l and 'grid=ceil' not in l) + '\n'
    import sys, json
    if len(sys.argv) > 2: open(sys.argv[1], 'w').write(generate(json.loads(sys.argv[2]), header))
    else: open(f'cdna_kernels/{build.NAME}.s', 'w').write(generate({}, header))
```

```python
from asmdsl import Asm
from layout import *
import rec, workers, prep, build

BEST = dict(xpos=[11, 15, 20, 25, 99, 99, 99, 99], hu2pos=6, ew=128, ne=1, ebar=3, gate='none', dstep=1, dslot=1, bpoll=1, prot=0, tw2=1,
            bdepth=2, dearly=2, aA=[6, 0], apoll=[6, 0], lbar=21, rtid=1)
WBEST = dict(deferq=0, defert=0, locala=0)

def counts(A, lab, tmo, sd='s[48:51]'):
    A(f's_mov_b32 s19, 0x40000\n{lab}:')
    A(f'buffer_load_dword v3, v4, {sd}, 0 offen sc1')
    A(f's_sub_u32 s19, s19, 1\ns_cbranch_scc1 {tmo}\ns_waitcnt vmcnt(0)')
    A('v_readlane_b32 s47, v3, 0\ns_mov_b32 s46, s47')
    for x in range(1, 8): A(f'v_readlane_b32 s11, v3, {x}\ns_add_u32 s46, s46, s11')

def gen_main(A, cfg):
    cfg = dict(WBEST, **cfg)
    workers.LASTD[0] = cfg.get('lastpoll', 1)
    workers.ONE[0] = cfg.get('one', 0)
    workers.PREV[0] = cfg.get('prev', 0)
    workers.BACK[0] = f's_sleep {cfg["back"]}\n' if cfg.get('back') else ''
    A(f"""M_start:
    s_cmp_ge_u32 s2, 256
    s_cbranch_scc1 M_exit0
    s_load_dwordx4 s[28:31], s[0:1], 0
    s_load_dwordx8 s[36:43], s[0:1], 16
    s_load_dwordx2 s[4:5], s[0:1], 112
    s_load_dwordx2 s[48:49], s[0:1], 104
    s_getreg_b32 s54, hwreg(HW_REG_XCC_ID, 0, 3)
    v_lshrrev_b32 v1, 6, v0
    v_readfirstlane_b32 s9, v1
    v_and_b32 v0, 63, v0
    s_waitcnt lgkmcnt(0)
    s_add_u32 s4, s4, {cfg.get('wsoff', 0)}
    s_addc_u32 s5, s5, 0
    s_mov_b32 s6, {WS_BYTES - cfg.get('wsoff', 0)}
    s_mov_b32 s7, 0x20000
    s_mov_b32 s50, 256
    s_mov_b32 s51, 0x20000""")
    if cfg.get('fakexcc'): A(cfg['fakexcc'])
    if cfg.get('ds'):
        A('s_mov_b32 s3, s2'); rec.dstamp(A, cfg, 9, 0, 3)
    A("""s_mov_b32 s12, s54
    v_mov_b32 v2, 0x27c00
    s_cmp_lg_u32 s9, 0
    s_cbranch_scc1 M_noat
    v_mov_b32 v3, 1
    s_lshl_b32 s11, s12, 5
    s_mov_b64 exec, 1
    buffer_atomic_add v3, off, s[48:51], s11 sc0 sc1
    s_mov_b64 exec, -1
M_noat:""")
    nt = 0
    if cfg.get('codetouch', 1):
        A('s_getpc_b64 s[20:21]\nM_pc:\ns_sub_u32 s20, s20, M_pc-M_start\ns_subb_u32 s21, s21, 0\ns_mov_b32 s22, M_end-M_start\ns_mov_b32 s23, 0x20000')
        A('s_lshr_b32 s11, s2, 3\ns_lshl_b32 s11, s11, 2\ns_add_u32 s11, s11, s9\ns_lshl_b32 s11, s11, 10\nv_lshlrev_b32 v5, 4, v0')
        A('buffer_load_dword v251, v5, s[20:23], s11 offen'); nt += 1
    if cfg.get('tlbtouch'):
        k = cfg['tlbtouch']
        A(f's_lshl_b32 s11, s9, {k+6}\nv_lshlrev_b32 v5, {k}, v0\nbuffer_load_dword v250, v5, s[4:7], s11 offen'); nt += 1
    if cfg.get('pretouch', 1):
        A(f's_lshl_b32 s11, s2, 2\ns_add_u32 s11, s11, s9\ns_mul_i32 s11, s11, 3584\nv_lshlrev_b32 v5, 7, v0\nv_mov_b32 v6, {OOB}')
        A('v_cmp_gt_u32 vcc, 28, v0\nv_cndmask_b32 v5, v6, v5, vcc')
        for k, p in enumerate(cfg.get('order', (40, 42))):
            prep.srd(A, 20, p, prep.W_BYTES)
            A(f'buffer_load_dword v{252+k}, v5, s[20:23], s11 offen'); nt += 1
    A(f"""s_cmp_lg_u32 s9, 0
    s_cbranch_scc1 M_ranked
    s_waitcnt vmcnt({nt})
    v_readfirstlane_b32 s3, v3
    v_and_b32 v4, 7, v0
    v_lshlrev_b32 v4, 5, v4
    s_lshl_b32 s11, s12, 5
    s_cmp_lt_u32 s3, 32
    s_cselect_b32 s15, 0, 1
    s_add_u32 s3, s3, s11
    s_cmp_eq_u32 s15, 0
    s_cbranch_scc1 M_have""")
    A("""v_mov_b32 v3, 1
    s_mov_b64 exec, 1
    buffer_atomic_add v3, off, s[48:51], 0 offset:4 sc0 sc1
    s_waitcnt vmcnt(0)
    s_mov_b64 exec, -1
    v_readfirstlane_b32 s15, v3""")
    counts(A, 'M_ovf', 'M_exit0')
    A('s_cmp_lt_u32 s46, 256\ns_cbranch_scc1 M_ovf_again\ns_mov_b32 s3, 0')
    for x in range(8):
        A(f'v_readlane_b32 s11, v3, {x}\ns_min_u32 s11, s11, 32\ns_sub_u32 s16, 32, s11')
        A(f's_cmp_lt_u32 s15, s16\ns_cbranch_scc0 M_nx{x}\ns_add_u32 s3, s11, s15\ns_add_u32 s3, s3, {32*x}\ns_branch M_have\nM_nx{x}:\ns_sub_u32 s15, s15, s16')
    A('M_exit0:\ns_endpgm\nM_ovf_again:')
    A('s_branch M_ovf')
    A("""M_have:
    v_mov_b32 v3, s3
    ds_write_b32 v2, v3
    s_waitcnt lgkmcnt(0)
M_ranked:
    s_barrier
    ds_read_b32 v3, v2
    s_waitcnt lgkmcnt(0)
    v_readfirstlane_b32 s3, v3""")
    rec.tline(A, dict(cfg, tlreg=3), 0)
    rec.dstamp(A, cfg, 3, 0, 3)
    A('s_barrier\ns_cmp_lt_u32 s3, 32\ns_cbranch_scc1 M_rec\ns_sub_u32 s10, s3, 32')
    prep.gen_gemm(A, cfg, 'M_exit0')
    A("""s_sub_u32 s11, s3, 32
    s_and_b32 s10, s11, 63
    s_lshr_b32 s11, s11, 6
    s_cmp_eq_u32 s11, 2
    s_cbranch_scc1 M_F
    s_cmp_eq_u32 s11, 3
    s_cbranch_scc1 M_T
    s_and_b32 s12, s10, 3
    s_lshr_b32 s10, s10, 2
    s_cmp_eq_u32 s11, 1
    s_cbranch_scc1 M_Q""")
    workers.gen_V(A, cfg, 'WV', 'M_exit')
    A('M_Q:'); workers.gen_Q(A, cfg, 'WQ', 'M_exit')
    A('M_T:'); workers.gen_T(A, cfg, 'WT', 'M_exit')
    A('M_F:'); workers.gen_F(A, cfg, 'WF', 'M_exit')
    A('M_exit:\ns_endpgm')
    def mode(lab):
        A(f'v_mov_b32 v2, 0x27c00\ns_cmp_lg_u32 s9, 0\ns_cbranch_scc1 {lab}_ss')
        A('v_and_b32 v4, 7, v0\nv_lshlrev_b32 v4, 5, v4')
        counts(A, f'{lab}_cnt', 'R_exit')
        A(f's_mov_b32 s30, 0\ns_cmp_ge_u32 s47, 32\ns_cbranch_scc1 {lab}_md\ns_mov_b32 s30, 1\ns_cmp_ge_u32 s46, 256\ns_cbranch_scc1 {lab}_md')
        A(f's_branch {lab}_cnt\n{lab}_md:')
        A(f'v_mov_b32 v3, s30\nds_write_b32 v2, v3\ns_waitcnt lgkmcnt(0)\n{lab}_ss:\ns_barrier')
        A(f'ds_read_b32 v3, v2\ns_waitcnt lgkmcnt(0)\nv_readfirstlane_b32 s30, v3')
    def help_a(lab):
        nt_ = cfg.get('helpa', 0)
        if not nt_: return
        A(f's_lshl_b32 s11, s10, 7\ns_add_u32 s11, s11, {FA}\ns_mov_b32 s19, 0x40000')
        A(f'{lab}_ha:\nbuffer_load_dword v3, off, s[4:7], s11 sc1\ns_sub_u32 s19, s19, 1\ns_cbranch_scc1 R_exit')
        A(f's_waitcnt vmcnt(0)\nv_cmp_gt_u32 vcc, 14, v3\ns_cbranch_vccnz {lab}_ha')
        A(f's_mul_i32 s33, s10, {28*14336}\ns_add_u32 s33, s33, {AF}\ns_lshr_b32 s11, s9, 1\ns_mul_i32 s11, s11, {14*14336}\ns_add_u32 s33, s33, s11')
        A(f'v_lshlrev_b32 v4, 7, v0\nv_min_u32 v5, 47, v0\nv_lshlrev_b32 v5, 7, v5\ns_and_b32 s34, s9, 1')
        for k, (t0_, t1_) in enumerate(((6, 7), (5, 13), (4, 12), (3, 11))[:nt_]):
            A(f's_mul_i32 s11, s34, {(t1_-t0_)*14336}\ns_add_u32 s11, s11, s33\ns_add_u32 s11, s11, {t0_*14336}')
            A(f'buffer_load_dword v102, v4, s[4:7], s11 offen\ns_add_u32 s11, s11, 8192\nbuffer_load_dword v102, v5, s[4:7], s11 offen')
    def start_sync(w, lab):
        if lab != 'RA': help_a(lab)
        if cfg.get('tl'): A('s_waitcnt vmcnt(0)')
        rec.tline(A, dict(cfg, tlreg=3), 1)
        if lab.endswith('l'):
            A(f'v_min_u32 v4, 1, v0\nv_lshlrev_b32 v4, 7, v4\ns_mov_b32 s11, {FVX}\ns_mov_b32 s19, 0x40000')
            A(f'{lab}_fv:\nbuffer_load_dword v3, v4, s[4:7], s11 offen sc1\ns_sub_u32 s19, s19, 1\ns_cbranch_scc1 R_exit')
            A(f's_waitcnt vmcnt(0)\nv_cmp_gt_u32 vcc, 16, v3\ns_cbranch_vccnz {lab}_fv')
            if cfg.get('tl'):
                A('s_sub_u32 s9, s9, 2'); rec.tline(A, dict(cfg, tlreg=3), 3); A('s_add_u32 s9, s9, 2')
        elif cfg.get('warm', 1) and lab == 'RA':
            A(f's_lshl_b32 s11, s3, 2\ns_add_u32 s11, s11, s9\ns_lshl_b32 s11, s11, 11\ns_add_u32 s11, s11, {MS}\nv_lshlrev_b32 v4, 5, v0')
            A('buffer_load_dword v3, v4, s[4:7], s11 offen sc1')
        A(f's_mov_b32 s19, {rec.SPIN_MAX}')
        rec.tline(A, dict(cfg, tlreg=3), 2)
        rec.dstamp(A, cfg, 4, 0, 3); rec.dstamp(A, cfg, 5, 31, 3)
    c = dict(BEST); c.update(cfg)
    c.setdefault('start_sync', start_sync); c.setdefault('finish', lambda w, lab: (rec.tline(A, dict(cfg, tlreg=3, tlclk=1), 4), rec.dstamp(A, cfg, 6, 0, 3)))
    def loop_top(w, lab):
        if cfg.get('ds'):
            A(f's_cmp_lg_u32 s8, 2\ns_cbranch_scc1 {lab}_ds2'); rec.dstamp(A, cfg, 12, 0, 3); A(f'{lab}_ds2:')
        if cfg.get('tl'):
            for k, st in zip((3, 5, 6), cfg.get('tlsteps', (1, 16, 32))):
                A(f's_cmp_lg_u32 s8, {st}\ns_cbranch_scc1 {lab}_lt{k}'); rec.tline(A, dict(cfg, tlreg=3, tlclk=1), k); A(f'{lab}_lt{k}:')
    c.setdefault('loop_top', loop_top)
    if cfg.get('locala') and not cfg.get('fakeloc'):
        A('M_rec:\ns_and_b32 s10, s3, 15\ns_cmp_ge_u32 s3, 16\ns_cbranch_scc1 M_misc')
        prep.local_A(A, cfg)
        A('s_cmp_lg_u32 s9, 0\ns_cbranch_scc1 M_prep')
        prep.zero_ready(A, 'M_zr', 'R_exit')
        A('s_branch M_prep\nM_misc:')
    else:
        A('M_rec:\ns_mov_b32 s10, s3')
    prep.gen_misc(A, cfg, 'R_exit')
    A('M_prep:')
    from expr import V, Sg, sel_lt
    l = V('v0')
    def touch(lab, sbase, n):
        A(f'v_lshlrev_b32 v4, 7, v0')
        for k in range(n):
            A(f'buffer_load_dword v30, v4, s[4:7], {sbase} offen\ns_add_u32 {sbase}, {sbase}, 8192')
    def pre_a():
        nb = cfg.get('helpb', 0)
        if nb:
            hh = (Sg('s10') >> 2) * 4 + 2 + ((Sg('s10') >> 1) & 1)
            rec.wait_lanes(A, 'RA_wb', l * 0 + FB + hh * 128, l * 0 + 14, 'R_exit')
            A(f's_lshr_b32 s11, s10, 2\ns_lshl_b32 s11, s11, 2\ns_add_u32 s11, s11, 2\ns_bfe_u32 s33, s10, 0x10001\ns_add_u32 s11, s11, s33\ns_mul_i32 s11, s11, {14*28672}')
            A(f's_and_b32 s33, s10, 1\ns_lshl_b32 s33, s33, 2\ns_add_u32 s33, s33, s9\ns_mul_i32 s33, s33, 50176\ns_add_u32 s11, s11, s33\ns_add_u32 s33, s11, {BF}')
            touch('RA_tb', 's33', nb)
        if cfg.get('locala'): rec.wait_lanes(A, 'RA_wa', sel_lt(l, 1, FA + 2048 + Sg('s10') * 128, FX), sel_lt(l, 1, 7, workers.nfx(cfg)), 'R_exit')
        else: rec.wait_lanes(A, 'RA_wa', sel_lt(l, 1, FA + Sg('s10') * 128, FX), sel_lt(l, 1, 14, 32), 'R_exit')
    c['pre_a'] = pre_a
    def mid_weights(spare):
        if cfg.get('codetouch2', 1):
            A('s_lshl_b32 s33, s3, 2\ns_add_u32 s33, s33, s9')
            rec.code_touch(A, 'M_rec', 'M_end', 's33', 3, 'v2', spare)
    c['mid_weights'] = mid_weights
    c['pre_b'] = lambda: rec.wait_lanes(A, 'RB_wb', sel_lt(l, 16, FB + l * 128, FX), sel_lt(l, 16, 14, workers.nfx(cfg)), 'R_exit')
    mode('RM')
    A('s_and_b32 s10, s3, 15\ns_cmp_ge_u32 s3, 16\ns_cbranch_scc1 M_B')
    rec.gen_A(A, c, 'RA', 'R_exit')
    A('R_exit:\ns_endpgm\nM_B:')
    rec.gen_B(A, c, 'RB', 'R_exit')
    A('M_end:')

def generate(cfg={}, header=''):
    K = Asm(); gen_main(K, cfg)
    return build.assemble([(build.NAME + '_kernel', K.lines, 256, 256, 163840, 512, 256)], header)

if __name__ == '__main__':
    ref = open(f'cdna_kernels/{build.NAME}.s.ref').read().split('\n')
    header = '\n'.join(l for l in ref if l.startswith(';') and '@launch' not in l and 'Override' not in l and 'grid=ceil' not in l) + '\n'
    import sys, json
    if len(sys.argv) > 2: open(sys.argv[1], 'w').write(generate(json.loads(sys.argv[2]), header))
    else: open(f'cdna_kernels/{build.NAME}.s', 'w').write(generate({}, header))
```

```python
from asmdsl import Asm
from layout import *
import rec, workers, prep, build

BEST = dict(xpos=[11, 15, 20, 25, 99, 99, 99, 99], hu2pos=6, ew=128, ne=1, ebar=3, gate='none', dstep=1, dslot=1, bpoll=1, prot=0, tw2=1,
            bdepth=2, dearly=2, aA=[6, 0], apoll=[6, 0], lbar=21, rtid=1, lslot=5, midn=90)
WBEST = dict(deferq=0, defert=0, locala=0)

def counts(A, lab, tmo, sd='s[48:51]'):
    A(f's_mov_b32 s19, 0x40000\n{lab}:')
    A(f'buffer_load_dword v3, v4, {sd}, 0 offen sc1')
    A(f's_sub_u32 s19, s19, 1\ns_cbranch_scc1 {tmo}\ns_waitcnt vmcnt(0)')
    A('v_readlane_b32 s47, v3, 0\ns_mov_b32 s46, s47')
    for x in range(1, 8): A(f'v_readlane_b32 s11, v3, {x}\ns_add_u32 s46, s46, s11')

def gen_main(A, cfg):
    cfg = dict(WBEST, **cfg)
    workers.LASTD[0] = cfg.get('lastpoll', 1)
    workers.ONE[0] = cfg.get('one', 0)
    workers.PREV[0] = cfg.get('prev', 0)
    workers.BACK[0] = f's_sleep {cfg["back"]}\n' if cfg.get('back') else ''
    A(f"""M_start:
    s_cmp_ge_u32 s2, 256
    s_cbranch_scc1 M_exit0
    s_load_dwordx4 s[28:31], s[0:1], 0
    s_load_dwordx8 s[36:43], s[0:1], 16
    s_load_dwordx2 s[4:5], s[0:1], 112
    s_load_dwordx2 s[48:49], s[0:1], 104
    s_getreg_b32 s54, hwreg(HW_REG_XCC_ID, 0, 3)
    v_lshrrev_b32 v1, 6, v0
    v_readfirstlane_b32 s9, v1
    v_and_b32 v0, 63, v0
    s_waitcnt lgkmcnt(0)
    s_add_u32 s4, s4, {cfg.get('wsoff', 0)}
    s_addc_u32 s5, s5, 0
    s_mov_b32 s6, {WS_BYTES - cfg.get('wsoff', 0)}
    s_mov_b32 s7, 0x20000
    s_mov_b32 s50, 256
    s_mov_b32 s51, 0x20000""")
    if cfg.get('fakexcc'): A(cfg['fakexcc'])
    if cfg.get('ds'):
        A('s_mov_b32 s3, s2'); rec.dstamp(A, cfg, 9, 0, 3)
    A("""s_mov_b32 s12, s54
    v_mov_b32 v2, 0x27c00
    s_cmp_lg_u32 s9, 0
    s_cbranch_scc1 M_noat
    v_mov_b32 v3, 1
    s_lshl_b32 s11, s12, 5
    s_mov_b64 exec, 1
    buffer_atomic_add v3, off, s[48:51], s11 sc0 sc1
    s_mov_b64 exec, -1
M_noat:""")
    nt = 0
    if cfg.get('codetouch', 1):
        A('s_getpc_b64 s[20:21]\nM_pc:\ns_sub_u32 s20, s20, M_pc-M_start\ns_subb_u32 s21, s21, 0\ns_mov_b32 s22, M_end-M_start\ns_mov_b32 s23, 0x20000')
        A('s_lshr_b32 s11, s2, 3\ns_lshl_b32 s11, s11, 2\ns_add_u32 s11, s11, s9\ns_lshl_b32 s11, s11, 10\nv_lshlrev_b32 v5, 4, v0')
        A('buffer_load_dword v251, v5, s[20:23], s11 offen'); nt += 1
    if cfg.get('tlbtouch'):
        k = cfg['tlbtouch']
        A(f's_lshl_b32 s11, s9, {k+6}\nv_lshlrev_b32 v5, {k}, v0\nbuffer_load_dword v250, v5, s[4:7], s11 offen'); nt += 1
    if cfg.get('pretouch', 1):
        A(f's_lshl_b32 s11, s2, 2\ns_add_u32 s11, s11, s9\ns_mul_i32 s11, s11, 3584\nv_lshlrev_b32 v5, 7, v0\nv_mov_b32 v6, {OOB}')
        A('v_cmp_gt_u32 vcc, 28, v0\nv_cndmask_b32 v5, v6, v5, vcc')
        for k, p in enumerate(cfg.get('order', (40, 42))):
            prep.srd(A, 20, p, prep.W_BYTES)
            A(f'buffer_load_dword v{252+k}, v5, s[20:23], s11 offen'); nt += 1
    A(f"""s_cmp_lg_u32 s9, 0
    s_cbranch_scc1 M_ranked
    s_waitcnt vmcnt({nt})
    v_readfirstlane_b32 s3, v3
    v_and_b32 v4, 7, v0
    v_lshlrev_b32 v4, 5, v4
    s_lshl_b32 s11, s12, 5
    s_cmp_lt_u32 s3, 32
    s_cselect_b32 s15, 0, 1
    s_add_u32 s3, s3, s11
    s_cmp_eq_u32 s15, 0
    s_cbranch_scc1 M_have""")
    A("""v_mov_b32 v3, 1
    s_mov_b64 exec, 1
    buffer_atomic_add v3, off, s[48:51], 0 offset:4 sc0 sc1
    s_waitcnt vmcnt(0)
    s_mov_b64 exec, -1
    v_readfirstlane_b32 s15, v3""")
    counts(A, 'M_ovf', 'M_exit0')
    A('s_cmp_lt_u32 s46, 256\ns_cbranch_scc1 M_ovf_again\ns_mov_b32 s3, 0')
    for x in range(8):
        A(f'v_readlane_b32 s11, v3, {x}\ns_min_u32 s11, s11, 32\ns_sub_u32 s16, 32, s11')
        A(f's_cmp_lt_u32 s15, s16\ns_cbranch_scc0 M_nx{x}\ns_add_u32 s3, s11, s15\ns_add_u32 s3, s3, {32*x}\ns_branch M_have\nM_nx{x}:\ns_sub_u32 s15, s15, s16')
    A('M_exit0:\ns_endpgm\nM_ovf_again:')
    A('s_branch M_ovf')
    A("""M_have:
    v_mov_b32 v3, s3
    ds_write_b32 v2, v3
    s_waitcnt lgkmcnt(0)
M_ranked:
    s_barrier
    ds_read_b32 v3, v2
    s_waitcnt lgkmcnt(0)
    v_readfirstlane_b32 s3, v3""")
    rec.tline(A, dict(cfg, tlreg=3), 0)
    rec.dstamp(A, cfg, 3, 0, 3)
    A('s_barrier\ns_cmp_lt_u32 s3, 32\ns_cbranch_scc1 M_rec\ns_sub_u32 s10, s3, 32')
    prep.gen_gemm(A, cfg, 'M_exit0')
    A("""s_sub_u32 s11, s3, 32
    s_and_b32 s10, s11, 63
    s_lshr_b32 s11, s11, 6
    s_cmp_eq_u32 s11, 2
    s_cbranch_scc1 M_F
    s_cmp_eq_u32 s11, 3
    s_cbranch_scc1 M_T
    s_and_b32 s12, s10, 3
    s_lshr_b32 s10, s10, 2
    s_cmp_eq_u32 s11, 1
    s_cbranch_scc1 M_Q""")
    workers.gen_V(A, cfg, 'WV', 'M_exit')
    A('M_Q:'); workers.gen_Q(A, cfg, 'WQ', 'M_exit')
    A('M_T:'); workers.gen_T(A, cfg, 'WT', 'M_exit')
    A('M_F:'); workers.gen_F(A, cfg, 'WF', 'M_exit')
    A('M_exit:\ns_endpgm')
    def mode(lab):
        A(f'v_mov_b32 v2, 0x27c00\ns_cmp_lg_u32 s9, 0\ns_cbranch_scc1 {lab}_ss')
        A('v_and_b32 v4, 7, v0\nv_lshlrev_b32 v4, 5, v4')
        counts(A, f'{lab}_cnt', 'R_exit')
        A(f's_mov_b32 s30, 0\ns_cmp_ge_u32 s47, 32\ns_cbranch_scc1 {lab}_md\ns_mov_b32 s30, 1\ns_cmp_ge_u32 s46, 256\ns_cbranch_scc1 {lab}_md')
        A(f's_branch {lab}_cnt\n{lab}_md:')
        A(f'v_mov_b32 v3, s30\nds_write_b32 v2, v3\ns_waitcnt lgkmcnt(0)\n{lab}_ss:\ns_barrier')
        A(f'ds_read_b32 v3, v2\ns_waitcnt lgkmcnt(0)\nv_readfirstlane_b32 s30, v3')
    def help_a(lab):
        nt_ = cfg.get('helpa', 0)
        if not nt_: return
        A(f's_lshl_b32 s11, s10, 7\ns_add_u32 s11, s11, {FA}\ns_mov_b32 s19, 0x40000')
        A(f'{lab}_ha:\nbuffer_load_dword v3, off, s[4:7], s11 sc1\ns_sub_u32 s19, s19, 1\ns_cbranch_scc1 R_exit')
        A(f's_waitcnt vmcnt(0)\nv_cmp_gt_u32 vcc, 14, v3\ns_cbranch_vccnz {lab}_ha')
        A(f's_mul_i32 s33, s10, {28*14336}\ns_add_u32 s33, s33, {AF}\ns_lshr_b32 s11, s9, 1\ns_mul_i32 s11, s11, {14*14336}\ns_add_u32 s33, s33, s11')
        A(f'v_lshlrev_b32 v4, 7, v0\nv_min_u32 v5, 47, v0\nv_lshlrev_b32 v5, 7, v5\ns_and_b32 s34, s9, 1')
        for k, (t0_, t1_) in enumerate(((6, 7), (5, 13), (4, 12), (3, 11))[:nt_]):
            A(f's_mul_i32 s11, s34, {(t1_-t0_)*14336}\ns_add_u32 s11, s11, s33\ns_add_u32 s11, s11, {t0_*14336}')
            A(f'buffer_load_dword v102, v4, s[4:7], s11 offen\ns_add_u32 s11, s11, 8192\nbuffer_load_dword v102, v5, s[4:7], s11 offen')
    def start_sync(w, lab):
        if lab != 'RA': help_a(lab)
        if cfg.get('tl'): A('s_waitcnt vmcnt(0)')
        rec.tline(A, dict(cfg, tlreg=3), 1)
        if lab.endswith('l'):
            A(f'v_min_u32 v4, 1, v0\nv_lshlrev_b32 v4, 7, v4\ns_mov_b32 s11, {FVX}\ns_mov_b32 s19, 0x40000')
            A(f'{lab}_fv:\nbuffer_load_dword v3, v4, s[4:7], s11 offen sc1\ns_sub_u32 s19, s19, 1\ns_cbranch_scc1 R_exit')
            A(f's_waitcnt vmcnt(0)\nv_cmp_gt_u32 vcc, 16, v3\ns_cbranch_vccnz {lab}_fv')
            if cfg.get('tl'):
                A('s_sub_u32 s9, s9, 2'); rec.tline(A, dict(cfg, tlreg=3), 3); A('s_add_u32 s9, s9, 2')
        elif cfg.get('warm', 1) and lab == 'RA':
            A(f's_lshl_b32 s11, s3, 2\ns_add_u32 s11, s11, s9\ns_lshl_b32 s11, s11, 11\ns_add_u32 s11, s11, {MS}\nv_lshlrev_b32 v4, 5, v0')
            A('buffer_load_dword v3, v4, s[4:7], s11 offen sc1')
            if cfg.get('warmx', 1):
                A(f's_sub_u32 s11, s11, {MS}\ns_lshr_b32 s11, s11, 2\ns_add_u32 s11, s11, {XF + 28672}\nv_lshlrev_b32 v4, 3, v0\nbuffer_load_dword v3, v4, s[4:7], s11 offen sc1')
        A(f's_mov_b32 s19, {rec.SPIN_MAX}')
        rec.tline(A, dict(cfg, tlreg=3), 2)
        rec.dstamp(A, cfg, 4, 0, 3); rec.dstamp(A, cfg, 5, 31, 3)
    c = dict(BEST); c.update(cfg)
    c.setdefault('start_sync', start_sync); c.setdefault('finish', lambda w, lab: (rec.tline(A, dict(cfg, tlreg=3, tlclk=1), 4), rec.dstamp(A, cfg, 6, 0, 3), rec.dretry(A, cfg)))
    def loop_top(w, lab):
        if cfg.get('ds'):
            A(f's_cmp_lg_u32 s8, 2\ns_cbranch_scc1 {lab}_ds2'); rec.dstamp(A, cfg, 12, 0, 3); A(f'{lab}_ds2:')
        if cfg.get('tl'):
            for k, st in zip((3, 5, 6), cfg.get('tlsteps', (1, 16, 32))):
                A(f's_cmp_lg_u32 s8, {st}\ns_cbranch_scc1 {lab}_lt{k}'); rec.tline(A, dict(cfg, tlreg=3, tlclk=1), k); A(f'{lab}_lt{k}:')
    c.setdefault('loop_top', loop_top)
    if cfg.get('locala') and not cfg.get('fakeloc'):
        A('M_rec:\ns_and_b32 s10, s3, 15\ns_cmp_ge_u32 s3, 16\ns_cbranch_scc1 M_misc')
        prep.local_A(A, cfg)
        A('s_cmp_lg_u32 s9, 0\ns_cbranch_scc1 M_prep')
        prep.zero_ready(A, 'M_zr', 'R_exit')
        A('s_branch M_prep\nM_misc:')
    elif cfg.get('amisc'):
        A('M_rec:\ns_and_b32 s10, s3, 15\ns_cmp_lt_u32 s3, 16\ns_cbranch_scc1 M_misc')
        A('s_cmp_lg_u32 s9, 0\ns_cbranch_scc1 M_prep')
        prep.zero_ready(A, 'M_zr', 'R_exit')
        A('s_branch M_prep\nM_misc:')
    else:
        A('M_rec:\ns_mov_b32 s10, s3')
    prep.gen_misc(A, cfg, 'R_exit')
    A('M_prep:')
    from expr import V, Sg, sel_lt
    l = V('v0')
    def touch(lab, sbase, n):
        A(f'v_lshlrev_b32 v4, 7, v0')
        for k in range(n):
            A(f'buffer_load_dword v30, v4, s[4:7], {sbase} offen\ns_add_u32 {sbase}, {sbase}, 8192')
    def pre_a():
        nb = cfg.get('helpb', 0)
        if nb:
            hh = (Sg('s10') >> 2) * 4 + 2 + ((Sg('s10') >> 1) & 1)
            rec.wait_lanes(A, 'RA_wb', l * 0 + FB + hh * 128, l * 0 + 14, 'R_exit')
            A(f's_lshr_b32 s11, s10, 2\ns_lshl_b32 s11, s11, 2\ns_add_u32 s11, s11, 2\ns_bfe_u32 s33, s10, 0x10001\ns_add_u32 s11, s11, s33\ns_mul_i32 s11, s11, {14*28672}')
            A(f's_and_b32 s33, s10, 1\ns_lshl_b32 s33, s33, 2\ns_add_u32 s33, s33, s9\ns_mul_i32 s33, s33, 50176\ns_add_u32 s11, s11, s33\ns_add_u32 s33, s11, {BF}')
            touch('RA_tb', 's33', nb)
        if cfg.get('locala'): rec.wait_lanes(A, 'RA_wa', sel_lt(l, 1, FA + 2048 + Sg('s10') * 128, FX), sel_lt(l, 1, 7, workers.nfx(cfg)), 'R_exit')
        else: rec.wait_lanes(A, 'RA_wa', sel_lt(l, 1, FA + Sg('s10') * 128, FX), sel_lt(l, 1, 14, workers.nfx(cfg)), 'R_exit')
    c['pre_a'] = pre_a
    def mid_weights(spare):
        if cfg.get('codetouch2', 1):
            A('s_lshl_b32 s33, s3, 2\ns_add_u32 s33, s33, s9')
            rec.code_touch(A, 'M_rec', 'M_end', 's33', 3, 'v2', spare)
    c['mid_weights'] = mid_weights
    c['pre_b'] = lambda: rec.wait_lanes(A, 'RB_wb', sel_lt(l, 16, FB + l * 128, FX), sel_lt(l, 16, 14, 0 if cfg.get('amisc') else workers.nfx(cfg)), 'R_exit')
    mode('RM')
    A('s_and_b32 s10, s3, 15\ns_cmp_ge_u32 s3, 16\ns_cbranch_scc1 M_B')
    rec.gen_A(A, c, 'RA', 'R_exit')
    A('R_exit:\ns_endpgm\nM_B:')
    rec.gen_B(A, c, 'RB', 'R_exit')
    A('M_end:')

def generate(cfg={}, header=''):
    K = Asm(); gen_main(K, cfg)
    return build.assemble([(build.NAME + '_kernel', K.lines, 256, 256, 163840, 512, 256)], header)

if __name__ == '__main__':
    ref = open(f'cdna_kernels/{build.NAME}.s.ref').read().split('\n')
    header = '\n'.join(l for l in ref if l.startswith(';') and '@launch' not in l and 'Override' not in l and 'grid=ceil' not in l) + '\n'
    import sys, json
    if len(sys.argv) > 2: open(sys.argv[1], 'w').write(generate(json.loads(sys.argv[2]), header))
    else: open(f'cdna_kernels/{build.NAME}.s', 'w').write(generate({}, header))
```

```python
from asmdsl import Asm
from expr import X, V, Sg, Emitter, ev, sel_lt, wrap
from layout import *
import numpy as np

SRD = 's[4:7]'
def vr(a, n=1): return f'v{a}' if n == 1 else f'v[{a}:{a+n-1}]'
def wreg(o):
    return f'a[{8*o}:{8*o+7}]' if o < 32 else f'v[{120+8*(o-32)}:{127+8*(o-32)}]'
def wquad(o, b):
    return f'a[{8*o+4*b}:{8*o+4*b+3}]' if o < 32 else f'v[{120+8*(o-32)+4*b}:{123+8*(o-32)+4*b}]'

class Wv:
    def __init__(self, A, cfg):
        self.A = A; self.vm = []; self.lg = []; self.cfg = cfg; self.nst = 0
    def __call__(self, t): self.A(t)
    def vmem(self, t, tag=None): self.A(t); self.vm.append(tag)
    def ds(self, t, tag=None): self.A(t); self.lg.append(tag)
    def wait(self, vm=None, lg=None):
        parts = []
        if vm is not None and vm in self.vm:
            i = len(self.vm) - 1 - self.vm[::-1].index(vm)
            parts.append(f'vmcnt({len(self.vm)-1-i})'); self.vm = self.vm[i+1:]
        if lg is not None and lg in self.lg:
            i = len(self.lg) - 1 - self.lg[::-1].index(lg)
            n = min(len(self.lg) - 1 - i, 15)
            parts.append(f'lgkmcnt({n})'); self.lg = self.lg[i+1:]
        if parts: self.A('s_waitcnt ' + ' '.join(parts))
    def wait_all_lg(self): self.A('s_waitcnt lgkmcnt(0)'); self.lg = []
    def wait_all_vm(self): self.A('s_waitcnt vmcnt(0)'); self.vm = []
    def stamp(self, name=None):
        if self.cfg.get('stamps'):
            assert self.nst < 12
            self.A(f's_memtime s[{60+2*self.nst}:{61+2*self.nst}]'); self.nst += 1
    def dump_stamps(self, lab):
        if not self.cfg.get('stamps'): return
        A = self.A
        A(f's_waitcnt lgkmcnt(0)\ns_cmp_lg_u32 s8, 6\ns_cbranch_scc1 {lab}_nocal')
        A(f's_memrealtime s[96:97]\ns_waitcnt lgkmcnt(0)\n{lab}_cal:\ns_memrealtime s[98:99]\ns_memtime s[100:101]\ns_waitcnt lgkmcnt(0)\ns_cmp_eq_u32 s96, s98\ns_cbranch_scc1 {lab}_cal')
        for k in range(12): A(f's_mov_b32 s{84+k}, 0')
        A(f'{lab}_nocal:\ns_cmp_lt_u32 s8, 8\ns_cbranch_scc1 {lab}_nodump\ns_cmp_gt_u32 s8, 57\ns_cbranch_scc1 {lab}_nodump')
        for k in range(self.nst): A(f's_sub_u32 s11, s{60+2*k}, s100\ns_add_u32 s{84+k}, s{84+k}, s11')
        A(f's_cmp_lg_u32 s8, 57\ns_cbranch_scc1 {lab}_nodump')
        A('s_lshl_b32 s11, s3, 2\ns_add_u32 s11, s11, s9\ns_lshl_b32 s11, s11, 6')
        A(f's_add_u32 s11, s11, {DBG}')
        A(f'v_mov_b32 v0, s98\nv_mov_b32 v2, 0x4000\nbuffer_store_dword v0, v2, {SRD}, s11 offen')
        for k in range(self.nst):
            A(f'v_mov_b32 v0, s{84+k}\nv_mov_b32 v1, {4*k}\nbuffer_store_dword v0, v1, {SRD}, s11 offen')
        A(f's_waitcnt vmcnt(0)\n{lab}_nodump:')

def tline(A, cfg, k, base=0, idx='s3'):
    if not cfg.get('tl'): return
    lab = A.newlabel(f'TL{base}')
    A(f's_cmp_lg_u32 s9, 0\ns_cbranch_scc1 {lab}')
    A(f's_memrealtime s[96:97]\ns_lshl_b32 s98, {idx}, 6\ns_add_u32 s98, s98, {DBG + 0x8000 + base + 4*k}\ns_waitcnt lgkmcnt(0)')
    A(f'v_accvgpr_write_b32 a255, s96' if False else f'v_mov_b32 v{cfg.get("tlreg", 95)}, s96')
    A(f'buffer_store_dword v{cfg.get("tlreg", 95)}, off, {SRD}, s98')
    if cfg.get('tlclk'):
        A(f's_memtime s[96:97]\ns_waitcnt lgkmcnt(0)\nv_mov_b32 v{cfg.get("tlreg", 95)}, s96\nbuffer_store_dword v{cfg.get("tlreg", 95)}, off, {SRD}, s98 offset:32')
    A(f'{lab}:')

def dstamp(A, cfg, k, slot, reg):
    if not cfg.get('ds'): return
    lab = A.newlabel('DS')
    A(f's_cmp_lg_u32 s9, 0\ns_cbranch_scc1 {lab}\ns_cmp_lg_u32 s3, {slot}\ns_cbranch_scc1 {lab}')
    A(f's_load_dwordx2 s[96:97], s[0:1], 104\ns_memrealtime s[94:95]\ns_waitcnt lgkmcnt(0)\ns_mov_b32 s98, 256\ns_mov_b32 s99, 0x20000')
    A(f's_and_b32 s94, s94, 0xfffff\nv_mov_b32 v{reg}, s94\nbuffer_store_dword v{reg}, off, s[96:99], 0 offset:{4*k}\n{lab}:')

def dretry(A, cfg):
    if not cfg.get('ds'): return
    A('s_load_dwordx2 s[96:97], s[0:1], 104\ns_waitcnt lgkmcnt(0)\ns_mov_b32 s98, 256\ns_mov_b32 s99, 0x20000')
    A('v_mov_b32 v3, s20\ns_mov_b64 exec, 1\nbuffer_atomic_add v3, off, s[96:99], 0 offset:52 sc1\ns_mov_b64 exec, -1')

def smf(acc, a, b, idx): return f'v_smfmac_f32_16x16x64_bf16 {vr(acc,4)}, {a}, {b}, {idx}'

KM = 3
MREG = [16, 20, 24, 0, 4, 8, 12]
ACC = [28 + 4 * t for t in range(7)]
vIDX, vL16, vHUp, vHUs = 'v119', 'v118', 'v117', 'v116'
vKA = ['v115', 'v114', 'v113', 'v112', 'v111', 'v110', 'v109']
sSTEP, sW, sR = 's8', 's9', 's10'
sKK = [f's{12+t}' for t in range(7)]
sSPIN, sRETRY, sS1 = 's19', 's20', 's31'
sMO = ['s36', 's37', 's38']
SPIN_MAX = 0x80000
L_K = 131072

def common_consts(em, A, lab, rot, swap=False):
    l = V('v0')
    em.emit(l & 63, 'v0')
    em.emit(sel_lt(l & 2, 1, 0x44444444, 0xEEEEEEEE), vIDX)
    em.emit(l * 16, vL16)
    if swap: A(f's_xor_b32 s33, {sW}, 2\ns_lshl_b32 s33, s33, 1')
    else: A(f's_lshl_b32 s33, {sW}, 1\ns_add_u32 s33, s33, {rot}')
    for _ in range(3): A('s_cmp_ge_u32 s33, 7\ns_cselect_b32 s35, 7, 0\ns_sub_u32 s33, s33, s35')
    for t in range(7):
        A(f's_add_u32 s34, s33, {t}\ns_cmp_ge_u32 s34, 7\ns_cselect_b32 s35, 7, 0\ns_sub_u32 s34, s34, s35\ns_lshl_b32 {sKK[t]}, s34, 10')
    em.emit(L_K + l * 16, 'v1')
    for t in range(7): A(f'v_add_u32 {vKA[t]}, {sKK[t]}, v1')
    A(f's_cmp_lg_u32 {sW}, {1 if swap else 3}\ns_cbranch_scc1 {lab}_w3skip\nv_add_u32 {vKA[1]}, 7168, v1\n{lab}_w3skip:')

def step_consts(A, solo=False):
    A(f's_and_b32 s11, {sSTEP}, {0 if solo else 3}\ns_lshl_b32 s33, s11, 13\ns_add_u32 s33, s33, {MS}')
    for t in range(3): A(f's_add_u32 {sMO[t]}, s33, {sKK[t]}')
    A(f's_add_u32 {sS1}, {sSTEP}, 1')

def align(A, cfg, key):
    a = cfg.get(key)
    if a:
        A(f'.p2align {a[0]}')
        for _ in range(a[1]): A('s_nop 0')

def poll(w, lab, vp, sval, tmo, nl):
    w(f'v_mov_b32 {vp}, 0')
    if w.cfg.get('pollmask', 1) and nl < 64: w(f's_mov_b32 exec_lo, {hex((1 << nl) - 1) if nl < 32 else -1}\ns_mov_b32 exec_hi, 0')
    align(w.A, w.cfg, 'apoll')
    w(f'{lab}:')
    if w.cfg.get('pollnop'): w(f's_nop {w.cfg["pollnop"]-1}')
    w(f'buffer_load_dword {vp}, {vHUp}, {SRD}, 0 offen sc1')
    w(f's_waitcnt vmcnt({w.cfg.get("polldepth", 40)})')
    w(f'v_cmp_gt_u32 vcc, {sval}, {vp}')
    w(f's_sub_u32 {sSPIN}, {sSPIN}, 1\ns_cbranch_scc1 {tmo}')
    w(f's_cbranch_vccnz {lab}')
    if w.cfg.get('pollmask', 1) and nl < 64: w('s_mov_b64 exec, -1')
    w.vm = []

def zero(w, a, n):
    for i in range(a, a + n, 2): w(f'v_mov_b64 {vr(i,2)}, 0')

def sentinel_check(w, regs, tmp):
    w(f'v_max3_u32 {tmp}, v{regs[0]}, v{regs[1]}, v{regs[2]}')
    r = regs[3:]
    while len(r) >= 2:
        w(f'v_max3_u32 {tmp}, {tmp}, v{r[0]}, v{r[1]}'); r = r[2:]
    if r: w(f'v_max_u32 {tmp}, {tmp}, v{r[0]}')
    w(f'v_cmp_eq_u32 vcc, -1, {tmp}')

def weight_stream(w, fill, comb_write, lab, tmp, tmo=None, mpoll=False, early=None):
    cfg = w.cfg; ND = cfg.get('nd', 2)
    align(w.A, cfg, 'aB')
    w(f'{lab}_mload:')
    w.vm = []; w.lg = []
    if mpoll:
        assert ND == 2
        for t in range(ND):
            w(f'buffer_load_dwordx4 {vr(MREG[t],4)}, {vL16}, {SRD}, {sMO[t]} offen sc1')
        if cfg.get('mnop'): w(f's_nop {cfg["mnop"]-1}')
        w(f's_waitcnt vmcnt({cfg.get("bdepth", 0)})')
        sentinel_check(w, list(range(MREG[0], MREG[0] + 8)), f'v{tmp}')
        w(f's_sub_u32 {sSPIN}, {sSPIN}, 1\ns_cbranch_scc1 {tmo}')
        w(f's_cbranch_vccnz {lab}_mload')
        w.vm = ['MP']
        if early: early()
    else:
        for t in range(ND):
            w(f's_setprio {ND-1-t}')
            w.vmem(f'buffer_load_dwordx4 {vr(MREG[t],4)}, {vL16}, {SRD}, {sMO[t]} offen sc1', f'M{t}')
        if early: early()
    order = [(tl, t) for t in range(KM) for tl in range(7)] + [(tl, t) for tl in range(7) for t in range(KM, 7)]
    pre = {}; mem = {}; val = {}
    ad = lambda d, n, f: d.setdefault(n, []).append(f)
    w1 = 1 if mpoll else cfg.get('w1', 3)
    for t, s0 in ((0, 0), (1, w1)):
        m = MREG[t]
        ad(pre, s0, lambda t=t: w.wait(vm=f'M{t}'))
        ad(mem, s0, lambda t=t, m=m: w.ds(f'ds_write_b128 {vKA[t]}, {vr(m,4)}'))
    if mpoll:
        bs = w1 + cfg.get('mbar', 4)
        def sync():
            w.wait_all_lg(); w('s_barrier')
        ad(pre, 20, lambda: w.wait(vm='MP'))
    else:
        m0, m1, m2 = MREG[0], MREG[1], MREG[2]
        ad(val, 1, lambda: w(f'v_max3_u32 v{tmp}, v{m0}, v{m0+1}, v{m0+2}'))
        c = w1 + 1
        ad(val, c, lambda: w(f'v_max3_u32 v{tmp}, v{tmp}, v{m0+3}, v{m1}'))
        ad(val, c + 1, lambda: w(f'v_max3_u32 v{tmp}, v{tmp}, v{m1+1}, v{m1+2}'))
        if ND == 2:
            ad(val, c + 2, lambda: w(f'v_max_u32 v{tmp}, v{tmp}, v{m1+3}'))
            c += 3
        else:
            ad(pre, c + 2, lambda: w.wait(vm='M2'))
            ad(val, c + 2, lambda: w(f'v_max3_u32 v{tmp}, v{tmp}, v{m1+3}, v{m2}'))
            ad(val, c + 3, lambda: w(f'v_max3_u32 v{tmp}, v{tmp}, v{m2+1}, v{m2+2}'))
            ad(val, c + 4, lambda: w(f'v_max_u32 v{tmp}, v{tmp}, v{m2+3}'))
            c += 5
        ad(val, c, lambda: w(f'v_cmp_eq_u32 vcc, -1, v{tmp}'))
        bs = c + cfg.get('bdelay', 2)
        def sync():
            w(f's_cbranch_vccnz {lab}_mretry')
            w.wait_all_lg(); w('s_barrier')
    ad(mem, bs, sync)
    n = 0
    for t in range(ND, 7):
        m = MREG[t]
        ad(mem, bs + n, lambda t=t, m=m: w.ds(f'ds_read_b128 {vr(m,4)}, {vKA[t]}', f'M{t}'))
        n += 1
    per = 7 - KM; base = 7 * KM
    for tl in range(6):
        s0 = base + per * (tl + 1) + 1
        ad(val, s0, lambda tl=tl: w(f'v_add_f32 v{tmp}, v{ACC[tl]}, v{ACC[tl]+2}'))
        ad(val, s0 + 1, lambda tl=tl: w(f'v_add_f32 v{tmp+1}, v{ACC[tl]+1}, v{ACC[tl]+3}'))
        ad(val, s0 + 2, lambda: w(f'v_cvt_pk_bf16_f32 v{tmp+2}, v{tmp}, v{tmp+1}'))
        ad(mem, s0 + 3, lambda tl=tl: comb_write(tl, f'v{tmp+2}'))
    fl, fv = fill(bs + n)
    for k, fs in fv.items():
        for f in fs: ad(val, k, f)
    if cfg.get('stamps'):
        for k in cfg.get('bfine', [0]): ad(fl, k, lambda: w.stamp())
    for n, (tl, t) in enumerate(order):
        for f in pre.get(n, []): f()
        w.wait(vm=f'M{t}', lg=f'M{t}')
        w(smf(ACC[tl], vr(MREG[t], 4), wreg(tl * 7 + t), vIDX))
        for f in mem.get(n, []): f()
        for f in fl.get(n, []): f()
        for f in val.get(n, []): f()
    assert all(k < 49 for k in fl) and all(k < 49 for k in val)
    return [f for k in sorted(mem) if k >= 49 for f in mem[k]]

MREGA = [12, 16, 20, 24, 0, 4, 8]
def a_consts(em, A):
    l = V('v0')
    em.emit(l & 63, 'v0')
    em.emit(sel_lt(l & 2, 1, 0x44444444, 0xEEEEEEEE), vIDX)
    em.emit(l * 16, vL16)
    for t in range(4): A(f's_add_u32 s34, {sW}, {sR}\ns_add_u32 s34, s34, {t}\ns_and_b32 s34, s34, 3\ns_lshl_b32 {sKK[t]}, s34, 10')
    for t in range(4, 7): A(f's_movk_i32 {sKK[t]}, {t*1024}')
    em.emit(L_K + l * 16, vKA[4])
    for t in range(4): A(f'v_add_u32 {vKA[t]}, {sKK[t]}, {vKA[4]}')
    A(f's_lshl_b32 s29, {sW}, 10\ns_add_u32 s29, s29, 4096')

def a_step_consts(A, solo=False):
    A(f's_and_b32 s11, {sSTEP}, {0 if solo else 3}\ns_lshl_b32 s33, s11, 13\ns_add_u32 s33, s33, {MS}')
    A(f's_add_u32 s36, s33, {sKK[0]}\ns_add_u32 s37, s33, {sKK[1]}\ns_add_u32 s38, s33, s29\ns_add_u32 s39, s29, {L_K}')
    A(f's_add_u32 {sS1}, {sSTEP}, 1')

def a_stream(w, fill, comb_write, lab, tmp, tmo):
    cfg = w.cfg; MR = MREGA; KMA = 4; NE = cfg.get('ne', 2)
    align(w.A, cfg, 'aA')
    w(f'{lab}_mload:')
    w.vm = []; w.lg = []
    for t in range(NE): w(f'buffer_load_dwordx4 {vr(MR[t],4)}, {vL16}, {SRD}, s{36+t} offen sc1')
    if cfg.get('mnop'): w(f's_nop {cfg["mnop"]-1}')
    w(f's_waitcnt vmcnt({cfg.get("mdepth", 2)})')
    if cfg.get('poll1'):
        assert NE == 1 and cfg.get('nanchk', 1)
        w(f'v_cmp_eq_u32 vcc, -1, v{MR[0]+3}')
    else: sentinel_check(w, list(range(MR[0], MR[0] + 4 * NE)), f'v{tmp}')
    w(f's_sub_u32 {sSPIN}, {sSPIN}, 1\ns_cbranch_scc1 {tmo}')
    w(f's_cbranch_vccnz {lab}_mload')
    w(f'{lab}_again:')
    order = [(tl, t) for t in range(KMA) for tl in range(7)] + [(tl, t) for tl in range(7) for t in range(KMA, 7)]
    pre = {}; mem = {}; val = {}
    ad = lambda d, n, f: d.setdefault(n, []).append(f)
    ew = cfg.get('ew', 128)
    if ew == 128:
        if NE == 1: w.ds(f'ds_write_b128 {vKA[0]}, {vr(MR[0],4)}')
        else: ad(mem, 0, lambda: w.ds(f'ds_write_b128 {vKA[0]}, {vr(MR[0],4)}'))
    elif ew == 64:
        for k in range(2): ad(mem, k, lambda k=k: w.ds(f'ds_write_b64 {vKA[0]}, {vr(MR[0]+2*k,2)} offset:{8*k}'))
    else:
        for k in range(4): ad(mem, k, lambda k=k: w.ds(f'ds_write_b32 {vKA[0]}, v{MR[0]+k} offset:{4*k}'))
    bs = cfg.get('ebar', 2 if NE == 1 else 8)
    ad(mem, bs, lambda: (w.wait_all_lg(), w('s_barrier')))
    for t in range(NE, 4):
        ad(mem, bs + (t - NE), lambda t=t: w.ds(f'ds_read_b128 {vr(MR[t],4)}, {vKA[t]}', f'M{t}'))
    l0 = cfg.get('lslot', 3); lb = cfg.get('lbar', 17)
    ad(mem, l0 - 1, lambda: w('s_mov_b32 m0, s39'))
    ad(mem, l0, lambda: w.vmem(f'buffer_load_dwordx4 {vL16}, {SRD}, s38 offen sc1 lds', 'L'))
    ad(mem, lb, lambda: (w.wait(vm='L'), w('s_barrier')))
    for t in (4, 5, 6): ad(mem, lb + (t - 4) // 2, lambda t=t: w.ds(f'ds_read_b128 {vr(MR[t],4)}, {vKA[4]} offset:{t*1024}', f'M{t}'))
    nanchk = cfg.get('nanchk', 1)
    if nanchk:
        cs = lb + 1
        ad(val, 34, lambda: w(f'v_cmp_u_f32 vcc, v{tmp}, v{tmp+1}'))
        ad(mem, 36, lambda: w(f's_cbranch_vccnz {lab}_lretry\n{lab}_lok:'))
    else:
        lc = lb + 3
        w.lretry_state = None
        ad(pre, lc + 1, lambda: w.wait(lg='M5'))
        ad(val, lc + 1, lambda: w(f'v_max3_u32 v{tmp}, v0, v1, v2'))
        ad(val, lc + 2, lambda: w(f'v_max3_u32 v{tmp}, v{tmp}, v3, v4'))
        ad(pre, lc + 3, lambda: w.wait(lg='M6'))
        ad(val, lc + 3, lambda: w(f'v_max3_u32 v{tmp}, v{tmp}, v5, v6'))
        ad(val, lc + 4, lambda: w(f'v_max3_u32 v{tmp}, v{tmp}, v7, v8'))
        ad(val, lc + 5, lambda: w(f'v_max3_u32 v{tmp}, v{tmp}, v9, v10'))
        ad(val, lc + 6, lambda: (w(f'v_max_u32 v{tmp}, v{tmp}, v11'), w(f'v_cmp_eq_u32 vcc, -1, v{tmp}')))
        cs = lc + 7
        assert cs <= 27
        ad(mem, cs, lambda: w(f's_cbranch_vccnz {lab}_lretry\n{lab}_lok:'))
    per = 7 - KMA; base = 7 * KMA
    for tl in range(6):
        s0 = base + per * (tl + 1) + 1
        o = tmp + 2 if not (cfg.get('tw2') and tl % 2 == 0) else 97
        ad(val, s0, lambda tl=tl: w(f'v_add_f32 v{tmp}, v{ACC[tl]}, v{ACC[tl]+2}'))
        ad(val, s0 + 1, lambda tl=tl: w(f'v_add_f32 v{tmp+1}, v{ACC[tl]+1}, v{ACC[tl]+3}'))
        ad(val, s0 + 2, lambda o=o: w(f'v_cvt_pk_bf16_f32 v{o}, v{tmp}, v{tmp+1}'))
        if not cfg.get('tw2'): ad(mem, s0 + 3, lambda tl=tl, o=o: comb_write(tl, f'v{o}'))
        elif tl % 2: ad(mem, s0 + 3, lambda tl=tl, o=o: comb_write(tl, f'v97, v{o}'))
    fl, fv = fill(bs + 4 - NE, cs + 1)
    for k, fs in fv.items():
        for f in fs: ad(val, k, f)
    if cfg.get('stamps'):
        for k in cfg.get('fine', [0]): ad(fl, k, lambda: w.stamp())
    for n, (tl, t) in enumerate(order):
        for f in pre.get(n, []): f()
        w.wait(lg=f'M{t}')
        w(smf(ACC[tl], vr(MR[t], 4), wreg(tl * 7 + t), vIDX))
        for f in mem.get(n, []): f()
        for f in fl.get(n, []): f()
        for f in val.get(n, []): f()
    assert all(k < 49 for k in fl)
    return [f for k in range(49, 56) for f in mem.get(k, []) + val.get(k, [])]

def l_retry(w, lab, tmp, tmo):
    if w.cfg.get('nanchk', 1):
        w(f'{lab}_lretry:')
        sentinel_check(w, list(range(0, 28 if w.cfg.get('poll1') else 12)), f'v{tmp+3}')
        w(f'v_mov_b32 v{tmp+3}, {sS1}\ns_cbranch_vccz {lab}_lok')
        w(f's_add_u32 {sRETRY}, {sRETRY}, 1\ns_sub_u32 {sSPIN}, {sSPIN}, 16\ns_cbranch_scc1 {tmo}')
        w('s_waitcnt vmcnt(0) lgkmcnt(0)\ns_barrier')
        zero(w, 28, 28)
        if w.cfg.get('poll1'):
            w(f'buffer_load_dwordx4 {vr(MREGA[0],4)}, {vL16}, {SRD}, s36 offen sc1\ns_waitcnt vmcnt(0)')
        w(f's_branch {lab}_again')
        return
    w(f'{lab}_lretry:\ns_mov_b32 s33, m0\n{lab}_lretry2:')
    w(f's_add_u32 {sRETRY}, {sRETRY}, 1\ns_barrier\ns_mov_b32 m0, s39')
    w(f's_sub_u32 {sSPIN}, {sSPIN}, 4\ns_cbranch_scc1 {tmo}')
    w(f'buffer_load_dwordx4 {vL16}, {SRD}, s38 offen sc1 lds\ns_waitcnt vmcnt(0)\ns_barrier')
    for t in (4, 5, 6): w(f'ds_read_b128 {vr(MREGA[t],4)}, {vKA[4]} offset:{t*1024}')
    w('s_waitcnt lgkmcnt(0)')
    sentinel_check(w, list(range(0, 12)), f'v{tmp}')
    w(f's_cbranch_vccnz {lab}_lretry2\ns_mov_b32 m0, s33\ns_branch {lab}_lok')

def m_retry(w, lab, tmo):
    w(f'{lab}_mretry:')
    w(f's_add_u32 {sRETRY}, {sRETRY}, 1')
    w(f's_sub_u32 {sSPIN}, {sSPIN}, 8\ns_cbranch_scc1 {tmo}\ns_waitcnt vmcnt(0) lgkmcnt(0)')
    zero(w, 28, 28)
    w(f's_branch {lab}_mload')

def code_touch(A, start, end, sidx, shift, va, vd, sr=56):
    lab = A.newlabel('CT')
    A(f's_getpc_b64 s[{sr}:{sr+1}]\n{lab}:\ns_add_u32 s{sr}, s{sr}, {start}-{lab}\ns_addc_u32 s{sr+1}, s{sr+1}, ({start}-{lab})>>32')
    A(f's_mov_b32 s{sr+2}, {end}-{start}\ns_mov_b32 s{sr+3}, 0x20000\ns_lshl_b32 s11, {sidx}, {shift+6}\nv_lshlrev_b32 {va}, {shift}, v0')
    A(f'buffer_load_dword {vd}, {va}, s[{sr}:{sr+3}], s11 offen')

def wait_lanes(A, lab, addr, target, tmo):
    em = Emitter(A, [f'v{i}' for i in range(4, 13)])
    A(f's_cmp_lg_u32 s9, 0\ns_cbranch_scc1 {lab}_go')
    em.emit(addr, 'v1'); em.emit(target, 'v2')
    A(f's_mov_b32 s19, 0x40000\n{lab}:\nbuffer_load_dword v3, v1, {SRD}, 0 offen sc1')
    A(f's_sub_u32 s19, s19, 1\ns_cbranch_scc1 {tmo}\ns_waitcnt vmcnt(0)\nv_cmp_gt_u32 vcc, v2, v3\ns_cbranch_vccnz {lab}')
    A(f'{lab}_go:\ns_barrier')

def emit_modes(A, cfg, lab, loop):
    if cfg.get('modes', 2) == 1:
        loop(lab, cfg.get('st', '')); return
    A(f's_cmp_lg_u32 s30, 0\ns_cbranch_scc1 {lab}_slow')
    loop(lab + 'x', '')
    A(f'{lab}_slow:')
    loop(lab + 'y', 'sc1')

def load_weights(w, addr_of, spare='v102', slots=range(7)):
    n = 0
    for tl in range(7):
        for t in slots:
            for b in range(2):
                va, pre = addr_of(tl, t, b)
                w(pre)
                w(f'buffer_load_dwordx4 {wquad(tl*7+t, b)}, {va}, {SRD}, s11 offen {w.cfg.get("wfl", "")}')
                n += 1
                if n % 16 == 0: w(f's_waitcnt vmcnt({w.cfg.get("wdepth", 32)})')
                if n == (w.cfg.get('midn', 64) if len(slots) == 7 else 16) and w.cfg.get('mid_weights'): w.cfg['mid_weights'](spare)

A_X, A_T, A_R = 0, 65536, 77824
Z0, Z1, SACC, TSP0, TSP1, TMP = 56, 12, 80, 36, 40, 92
aKR, aKR3, aTW, aTW6, aTR, aXR, aRW, aRR = 'v108', 'v107', 'v106', 'v105', 'v104', 'v103', 'v102', 'v101'
aP, aKR2, aPOLL = 'v100', 'v99', 'v96'
sQ = ['s21', 's22', 's23', 's24']
sXS, sXL, sPW, sPR, sWL, sMASK = 's25', 's26', 's27', 's28', 's32', 's[52:53]'

def a_exprs(R128=False):
    l = V('v0'); w = Sg(sW); h = Sg(sR)
    g = l >> 4; rho = l & 15
    half = (rho >> 1) & 1
    q0 = (w >> 1) * 7 + (w & 1) * 4; q3 = (w >> 1) * 7 + 3
    e = {}
    i = rho & 7
    kr = L_K + ((g >> 1) * 16 + (i >> 1) * 4 + (i & 1)) * 16 + (g & 1) * 8
    e[aKR] = kr + q0 * 512
    e[aKR3] = kr + q3 * 512
    e[aKR2] = kr + q0 * 512 + 1024
    tw = A_T + w * 3072 + (rho >> 2) * 192 + (rho & 1) * 32 + g * 8 + half * 4
    e[aTW] = tw
    e['v98'] = tw + 1536
    e[aTW6] = tw + 2304 + (w & 1) * 64
    e[aTR] = A_T + w * 3072 + g * 384 + ((l >> 3) & 1) * 64 + ((l >> 2) & 1) * 32 + (l & 3) * 8
    e[aXR] = A_X + w * 8192 + l * 16
    e[aRW] = A_R + w * 1536 + g * 384 + rho * 4
    if R128 == 1: e[aRW] = A_R + g * 1536 + (rho >> 1) * 32 + (w ^ g) * 8 + (rho & 1) * 4
    rr = l >> 5; pi = l & 31; pc = pi.min(19)
    e[aRR] = A_R + (w * 2 + rr) * 192 + sel_lt(pc, 4, pc * 8, pc * 8 + 32)
    if R128 == 2: e[aRR] = A_R + (sel_lt(pc, 4, 0, ((pc - 4) >> 3) + 1) * 2 + rr) * 288 + (w * 16 + sel_lt(pc, 4, pc, (pc - 4) & 7) * 2) * 4
    if R128 == 3: e[aRR] = sel_lt(pi, 20, A_R + (sel_lt(pc, 4, 0, ((pc - 4) >> 3) + 1) * 2 + rr) * 288 + (w * 16 + sel_lt(pc, 4, pc, (pc - 4) & 7) * 2) * 4, A_R + 256)
    if R128 == 1: e[aRR] = A_R + (w * 2 + rr) * 768 + sel_lt(pc, 4, pc * 32, pc * 32 + 128)
    row = w * 2 + rr
    rho_of = lambda hf: (row >> 1) * 4 + hf * 2 + (row & 1)
    pm = ((h >> 3) + 8) * 1024 + (((h >> 1) & 3) * 16 + rho_of(pi & 1)) * 16 + ((h & 1) * 2 + ((pi >> 1) & 1)) * 4
    t0 = (pc - 4) * 2
    px = (h >> 1) * 1024 + (((h & 1) * 2 + ((t0 >> 3) & 1)) * 16 + rho_of((t0 >> 1) & 1)) * 16 + (((t0 >> 2) & 1) * 2 + ((t0 >> 4) & 1)) * 4
    e[aP] = sel_lt(pi, 4, pm, sel_lt(pi, 20, px, OOB))
    return e

def check_a_exprs():
    e = a_exprs(); l = np.arange(64)
    for h in (0, 1, 7, 8, 15):
        for w in range(4):
            env = {'v0': l, sW: w, sR: h}
            p = ev(e[aP], env)
            for ln in range(64):
                pi = ln & 31
                assert p[ln] == (ps_off(h, 2 * w + (ln >> 5), pi) if pi < 20 else OOB)
check_a_exprs()

def gen_A(A, cfg, lab, tmo):
    w = Wv(A, cfg)
    em = Emitter(A, [f'v{i}' for i in range(2, 30)])
    a_consts(em, A)
    for k, x in a_exprs((3 if cfg.get('nomask') else 2) if cfg.get('rtid') else cfg.get('r128')).items(): em.emit(x, k)
    l = V('v0')
    em.emit(HU1 + (l & 15) * 4, vHUp)
    if cfg.get('huall'): em.emit(sel_lt(l, 1, HU2 + (Sg(sR) * 4 + Sg(sW)) * 4, OOB), vHUs)
    else: em.emit(sel_lt(l + Sg(sW) * 64, 1, HU2 + Sg(sR) * 4, OOB), vHUs)
    nt = cfg.get('ntouch', 0)
    if nt:
        a = Sg(sR) * 4 + Sg(sW)
        em.emit(sel_lt(l, nt, ((a >> 5) * 1792 + (1792 - 32 * nt) + (a & 31) * nt + l) * 128, OOB), 'v110')
    A(f's_mov_b32 s52, 0xfffff\ns_mov_b32 s53, 0xfffff')
    A(f's_lshr_b32 s11, {sW}, 1')
    A(f's_mul_i32 s34, s11, 7\ns_and_b32 s35, {sW}, 1\ns_lshl_b32 s36, s35, 2\ns_add_u32 s36, s36, s34')
    for u in range(3): A(f's_add_u32 s37, s36, {u}\ns_lshl_b32 {sQ[u]}, s37, 10')
    A(f's_add_u32 s37, s34, 3\ns_lshl_b32 {sQ[3]}, s37, 10')
    A(f's_lshl_b32 {sWL}, {sW}, 13')
    A(f's_mul_i32 s38, {sR}, {28*14336}\ns_add_u32 s38, s38, {AF}')
    A(f's_mul_i32 s39, s35, 14336')
    def addr(tl, t, b):
        pre = f's_mul_i32 s11, {sQ[tl>>1]}, 28\ns_add_u32 s11, s11, s38\n'
        pre += (f's_add_u32 s11, s11, {14336*(tl&1) + 1024*b}\n' if tl < 6 else f's_add_u32 s11, s11, s39\ns_add_u32 s11, s11, {1024*b}\n')
        pre += f's_lshl_b32 s37, {sKK[t]}, 1\ns_add_u32 s11, s11, s37'
        return vL16, pre
    sXo = ['s44', 's45', 's46', 's47']; sXm = ['s48', 's49', 's50', 's51']
    def x_consts():
        A(f's_add_u32 {sXo[0]}, {sXS}, {sQ[0]}\ns_add_u32 {sXo[1]}, {sXS}, {sQ[3]}')
        A(f's_add_u32 {sXo[2]}, {sXo[0]}, 14336\ns_add_u32 {sXo[3]}, {sXo[1]}, 14336')
        A(f's_mov_b32 {sXm[0]}, {sXL}\ns_add_u32 {sXm[1]}, {sXL}, 3072\ns_add_u32 {sXm[2]}, {sXL}, 4096\ns_add_u32 {sXm[3]}, {sXL}, 7168')
    def x_m0(tt, u):
        if u in (0, 3): A(f's_mov_b32 m0, {sXm[2*tt + (u == 3)]}')
    def x_dma(tt, u, w=w):
        w.vmem(f'buffer_load_dwordx4 {vL16}, {SRD}, {sXo[2*tt + (u == 3)]} offen offset:{1024*u if u < 3 else 0} lds', 'X')
    if cfg.get('pre_a'): cfg['pre_a']()
    A(f's_mov_b32 {sXS}, {XF}\ns_mov_b32 {sXL}, {sWL}')
    x_consts()
    for tt in range(2):
        for u in range(4): x_m0(tt, u); x_dma(tt, u)
    load_weights(w, addr, 'v94', range(4, 7) if cfg.get('locala') else range(7))
    em.emit(A_T + Sg(sW) * 3072 + l * 16, 'v1')
    A('v_mov_b64 v[4:5], 0\nv_mov_b64 v[6:7], 0')
    for k in range(3): A(f'ds_write_b128 v1, v[4:7] offset:{k*1024}')
    if cfg.get('nomask'):
        em.emit(A_R + 256 + Sg(sW) * 1728 + l * 0, 'v1')
        em.emit(sel_lt(Sg(sW) + l * 0, 1, 0xff800000, 0), 'v8')
        A('v_mov_b32 v9, v8\nds_write_b64 v1, v[8:9]')
    zero(w, 28, 28); zero(w, SACC, 12)
    A(f's_mov_b32 {sSTEP}, 0\ns_mov_b32 {sSPIN}, {SPIN_MAX}\ns_mov_b32 {sRETRY}, 0')
    A(f's_mul_i32 s35, {sW}, 1728\ns_add_u32 s35, s35, 32768')
    cfg['start_sync'](w, lab)
    A('s_waitcnt vmcnt(0) lgkmcnt(0)'); w.vm = []; w.lg = []
    def loop(lab, st):
        w = Wv(A, cfg)
        A(f'{lab}_loop:')
        cfg['loop_top'](w, lab)
        a_step_consts(A, cfg.get('solo'))
        A(f's_lshl_b32 s33, s11, 14\ns_add_u32 {sPW}, s33, {PS}\ns_xor_b32 {sPR}, {sPW}, 0x8000')
        A(f's_mul_i32 {sXS}, {sS1}, {0 if cfg.get("xsame") else 28672}' + (f'\ns_add_u32 {sXS}, {sXS}, {XF}' if XF else ''))
        A(f's_and_b32 s11, {sS1}, 1\ns_lshl_b32 s11, s11, 15\ns_add_u32 {sXL}, s11, {sWL}')
        x_consts()
        if nt: A(f's_add_u32 s11, {sSTEP}, 2\ns_min_u32 s11, s11, {NSEG-1}\ns_mul_i32 s11, s11, {VX_SEG}\ns_add_u32 s34, s11, {VXF}')
        A(f'v_mov_b32 v{TMP+3}, {sS1}')
        for r in range(MREGA[0], MREGA[0] + 4 * cfg.get('ne', 2), 2): A(f'v_mov_b64 {vr(r,2)}, -1')
        w.stamp()
        gate = cfg.get('gate', 'w0')
        if gate == 'w0':
            A(f's_cmp_lg_u32 {sW}, 0\ns_cbranch_scc1 {lab}_nopoll')
            if not cfg.get('solo'): poll(w, f'{lab}_poll1', aPOLL, sSTEP, tmo, 16)
            A(f'{lab}_nopoll:\ns_barrier')
        elif gate == 'all':
            poll(w, f'{lab}_poll1', aPOLL, sSTEP, tmo, 16)
        w.stamp()
        for _ in range(cfg.get('adelay', 0)): A('s_nop 15')
        xpos = cfg.get('xpos', [14, 19, 24, 29, 34, 39, 44, 50])
        def xat(p):
            if nt and cfg.get('tslot', 27) == p: w.vmem(f'buffer_load_dword v109, v110, {SRD}, s34 offen', 'T')
            for k in range(8):
                if xpos[k] == p: x_m0(k >> 2, k & 3); x_dma(k >> 2, k & 3, w)
        def fill(f0, k0):
            d = {}; dv = {}
            add = lambda n, f: d.setdefault(n, []).append(f)
            def kq(n, reg, areg, off, tag, ns):
                if cfg.get('kr2'):
                    r2 = areg if off < 1024 else aKR2
                    o = (off & 1023) // 4
                    add(n, lambda: w.ds(f'ds_read2_b32 {vr(reg,2)}, {r2} offset0:{o} offset1:{o+8}', tag))
                    add(n, lambda: w.ds(f'ds_read2_b32 {vr(reg+2,2)}, {r2} offset0:{o+1} offset1:{o+9}', tag))
                    return
                add(n, lambda: w.ds(f'ds_read_b64 {vr(reg,2)}, {areg} offset:{off}', tag))
                add(n, lambda: w.ds(f'ds_read_b64 {vr(reg+2,2)}, {areg} offset:{off+32}', tag))
                if cfg.get('lswap', 1) and not (cfg.get('z0swap') and tag in ('K0', 'K1')): return
                add(ns, lambda: w.wait(lg=tag))
                dv.setdefault(ns, []).append(lambda: w(f'v_swap_b32 v{reg+1}, v{reg+2}'))
            n = f0
            for tt in range(2):
                for uu in range(2):
                    add(n, lambda tt=tt, uu=uu: w.ds(f'ds_read_b128 {vr(Z0+8*(1+tt)+4*uu,4)}, {aXR} offset:{(tt*4+uu)*1024}', 'Z0')); n += 1
            for k in range(8):
                if xpos[k] < 49:
                    add(xpos[k] - 1, lambda k=k: x_m0(k >> 2, k & 3))
                    add(xpos[k], lambda k=k: x_dma(k >> 2, k & 3, w))
            if nt and cfg.get('tslot', 27) < 49: add(cfg.get('tslot', 27), lambda: w.vmem(f'buffer_load_dword v109, v110, {SRD}, s34 offen', 'T'))
            ks = cfg.get('kswap', [36, 39, 42, 45])
            if cfg.get('z0swap'): ks = [k0 + 5, k0 + 6, 0, 0]
            kq(k0, Z0, aKR, 0, 'K0', ks[0]); kq(k0 + 1, Z0 + 4, aKR, 512, 'K1', ks[1])
            k1 = 41 if cfg.get('nanchk', 1) else k0 + 3
            if cfg.get('nanchk', 1): k0 += 3
            kq(k1, Z1, aKR, 1024, 'K2', ks[2]); kq(k1 + 1, Z1 + 4, aKR3, 0, 'K3', ks[3])
            for k, sl in enumerate((37, 38, 39, 40) if cfg.get('nanchk', 1) else (36, 37, 39, 40)):
                tt, uu = k >> 1, k & 1
                add(sl, lambda tt=tt, uu=uu: w.ds(f'ds_read_b128 {vr(Z1+8*(1+tt)+4*uu,4)}, {aXR} offset:{(tt*4+2+uu)*1024}', 'Z1'))
            add(45, lambda: w.ds(f'ds_read_b64_tr_b16 {vr(TSP0,2)}, {aTR}', 'TS0'))
            add(46, lambda: w.ds(f'ds_read_b64_tr_b16 {vr(TSP0+2,2)}, {aTR} offset:192', 'TS0'))
            return d, dv
        def tw(tl, reg):
            if ',' in reg:
                u = tl >> 1
                w.ds(f'ds_write2_b32 {aTW if u < 2 else "v98"}, {reg} offset0:{(u&1)*192} offset1:{(u&1)*192+16}')
            elif tl < 6: w.ds(f'ds_write_b32 {aTW}, {reg} offset:{(tl>>1)*768 + (tl&1)*64}')
            else: w.ds(f'ds_write_b32 {aTW6}, {reg}')
        rest = a_stream(w, fill, tw, lab, TMP, tmo)
        w.stamp()
        w.wait(lg='TS0')
        o0 = (1, 2, 0) if cfg.get('lswap', 1) and not cfg.get('z0swap') else (0, 1, 2)
        w(smf(SACC + 4 * o0[0], vr(TSP0, 4), vr(Z0 + 8 * o0[0], 8), vIDX))
        rest[0]()
        w(smf(SACC + 4 * o0[1], vr(TSP0, 4), vr(Z0 + 8 * o0[1], 8), vIDX))
        for f in rest[1:]: f()
        w(f'v_add_f32 v{TMP}, v{ACC[6]}, v{ACC[6]+2}\nv_add_f32 v{TMP+1}, v{ACC[6]+1}, v{ACC[6]+3}')
        w(f'v_cvt_pk_bf16_f32 v{TMP+2}, v{TMP}, v{TMP+1}')
        tw(6, f'v{TMP+2}')
        w.ds(f'ds_read_b64_tr_b16 {vr(TSP1,2)}, {aTR} offset:1536', 'TS1')
        w.ds(f'ds_read_b64_tr_b16 {vr(TSP1+2,2)}, {aTR} offset:{1536+192}', 'TS1')
        if cfg.get('rtid'): w('s_mov_b32 m0, s35')
        if cfg.get('lswap', 1) and not cfg.get('kr2'):
            if not cfg.get('z0swap'):
                for r in (Z0, Z0 + 4, Z1, Z1 + 4): w(f'v_swap_b32 v{r+1}, v{r+2}')
        w(smf(SACC + 4 * o0[2], vr(TSP0, 4), vr(Z0 + 8 * o0[2], 8), vIDX))
        if cfg.get('z0swap'):
            for r in (Z1, Z1 + 4): w(f'v_swap_b32 v{r+1}, v{r+2}')
        xat(50)
        w.wait(lg='TS1')
        for kt in o0: w(smf(SACC + 4 * kt, vr(TSP1, 4), vr(Z1 + 8 * kt, 8), vIDX))
        for kt in o0:
            w(f'v_add_f32 v{56+2*kt}, v{SACC+4*kt}, v{SACC+4*kt+2}\nv_add_f32 v{57+2*kt}, v{SACC+4*kt+1}, v{SACC+4*kt+3}')
            if cfg.get('rtid'):
                for rp in range(2): w.ds(f'ds_write_addtid_b32 v{56+2*kt+rp} offset:{A_R - 32768 + (2*kt+rp)*288}')
            elif cfg.get('r128'): w.ds(f'ds_write2st64_b32 {aRW}, v{56+2*kt}, v{57+2*kt} offset0:{kt} offset1:{kt+3}')
            else: w.ds(f'ds_write2_b32 {aRW}, v{56+2*kt}, v{57+2*kt} offset0:{16*kt} offset1:{16*kt+48}')
        hu2 = lambda: w.vmem(f'buffer_store_dword v{TMP+3}, {vHUs}, {SRD}, 0 offen {st}')
        hp = cfg.get('hu2pos', 0)
        w.stamp()
        if hp == -1: hu2()
        xat(51)
        w.wait_all_lg()
        A('s_barrier')
        if cfg.get('r128'):
            for k in range(2): w.ds(f'ds_read_b128 {vr(64+4*k,4)}, {aRR} offset:{k*16}', f'R{2*k+1}')
        else:
            for k in range(4): w.ds(f'ds_read_b64 {vr(64+2*k,2)}, {aRR} offset:{k*(1728 if cfg.get("rtid") else 1536)}', f'R{k}')
        if hp == 0: hu2()
        xat(52)
        w.stamp()
        w.wait(lg='R1'); w('v_pk_add_f32 v[64:65], v[64:65], v[66:67]')
        w.wait(lg='R3'); w('v_pk_add_f32 v[68:69], v[68:69], v[70:71]')
        w('v_pk_add_f32 v[64:65], v[64:65], v[68:69]')
        if hp == 1: hu2()
        for _ in range(cfg.get('apad', 0)): A('s_nop 15')
        w('v_max_f32 v66, v64, v65')
        for k, r in enumerate((8, 4, 2, 1)):
            if hp == 2 + k: hu2()
            xat(53 + k)
            w(f'v_max_f32_dpp v66, v66, v66 row_ror:{r} row_mask:0xf bank_mask:0xf')
        w('v_mov_b32 v67, v66')
        w('v_permlane16_swap_b32 v66, v67')
        w('v_max_f32 v66, v66, v67')
        w('v_pk_add_f32 v[64:65], v[64:65], v[66:67] op_sel_hi:[1,0] neg_lo:[0,1] neg_hi:[0,1]')
        w('v_exp_f32 v64, v64\nv_exp_f32 v65, v65')
        if hp == 6: hu2()
        w('v_add_f32 v66, v64, v65')
        if not cfg.get('nomask'): w(f'v_cndmask_b32 v66, 0, v66, {sMASK}')
        for k, r in enumerate((8, 4, 2, 1)):
            if hp == 7 + k: hu2()
            xat(57 + k)
            w(f'v_add_f32_dpp v66, v66, v66 row_ror:{r} row_mask:0xf bank_mask:0xf')
        w('v_mov_b32 v67, v66\nv_permlane16_swap_b32 v66, v67\nv_add_f32 v66, v66, v67')
        w('v_rcp_f32 v66, v66')
        if hp == 11: hu2()
        w('v_pk_mul_f32 v[64:65], v[64:65], v[66:67] op_sel_hi:[1,0]')
        w('v_cvt_pk_bf16_f32 v64, v64, v65')
        w('v_min_u32 v64, -2, v64')
        w.vmem(f'buffer_store_dword v64, {aP}, {SRD}, {sPW} offen {st}')
        if hp == 99: hu2()
        w.stamp()
        if cfg.get('ack'): w.wait_all_vm(); w.stamp()
        def later():
            w('v_mov_b32 v65, -1')
            w.vmem(f'buffer_store_dword v65, {aP}, {SRD}, {sPR} offen {st}')
            xat(99)
        lp = cfg.get('lpos', 1)
        if lp == 0: later()
        zero(w, 28, 28); zero(w, SACC, 12)
        w(f'v_xor_b32 {aXR}, 0x8000, {aXR}')
        if lp == 2: A('s_barrier')
        if lp >= 1: later()
        w.dump_stamps(lab)
        A(f's_mov_b32 {sSPIN}, {SPIN_MAX}')
        A(f's_mov_b32 {sSTEP}, {sS1}\ns_cmp_lt_u32 {sSTEP}, {NSEG-1}\ns_cbranch_scc1 {lab}_loop')
        cfg['finish'](w, lab)
        A('s_endpgm')
        l_retry(w, lab, TMP, tmo)

    emit_modes(A, cfg, lab, loop)

B_VX, B_V = 0, 98304
bVW, bWR, bVR, bMS, bSEL = 'v108', 'v107', 'v106', 'v105', 'v104'
bMX, bFL, bVL, bPOLL = 'v107', 'v106', 'v105', 'v104'
bTO, bINC, bFLAG = 'v99', 'v98', 'v97'
bDM = [f'v{89+k}' for k in range(7)]
BT = 100
FACC = 96
sVS, sVL, sMW, sMR, sMXO = 's25', 's26', 's27', 's28', 's29'

def bcol(j, c):
    return sel_lt(c, 16, j * 16 + c, j * 12 + c + 240)

def b_exprs_final(split=False):
    l = V('v0'); w = Sg(sW); j = Sg(sR)
    g = l >> 4; n = l & 15; c = w * 16 + n
    e = {}
    e[bWR] = B_VX + (g * 28 + c.min(27)) * 16
    e[bVR] = B_V + (g * 28 + c.min(27)) * 16
    if split: e[bVR] = B_V + sel_lt(w, 1, g * 16 + n, 256 + g * 12 + n.min(11)) * 16
    i = g * 2 + (n & 1); d0 = bcol(j, c & 30)
    k = d0 & 63
    off = (d0 >> 6) * 1024 + ((k >> 4) * 16 + (i >> 1) * 4 + ((k >> 1) & 1) * 2 + (i & 1)) * 16 + ((k >> 2) & 3) * 4
    e[bMS] = sel_lt(c, 28, off, OOB)
    e[bSEL] = sel_lt(n & 1, 1, 0x05040100, 0x03020706)
    return e
def check_b():
    e = b_exprs_final(); l = np.arange(64)
    for j in (0, 1, 5, 15):
        for w in range(2):
            p = ev(e[bMS], {'v0': l, sW: w, sR: j})
            for ln in range(64):
                c = 16 * w + (ln & 15)
                assert p[ln] == (ms_off(2 * (ln >> 4) + (ln & 1), (16 * j if c < 16 else 12 * j + 240) + (c & ~1)) if c < 28 else OOB)
check_b()

def gen_B(A, cfg, lab, tmo):
    w = Wv(A, cfg)
    em = Emitter(A, [f'v{i}' for i in list(range(2, 20)) + list(range(28, 56))])
    A(f's_add_u32 s39, {sR}, 1')
    fast = cfg.get('bfast', 2)
    common_consts(em, A, lab, '0' if fast else 's39', fast == 1)
    l = V('v0'); ww = Sg(sW); j = Sg(sR)
    split = cfg.get('bsplit', 1)
    em.emit(B_V + (ww * (64 if split else 112) + (l & 15)) * 16 + (l >> 4) * 4, bVW)
    for tl in range(7):
        if not split:
            f = ww * 112 + tl * 16 + (l & 15); hh = f.div(28)
            em.emit((hh * 56 + (l >> 4)) * 7168 + bcol(j, f - hh * 28) * 16, f'v{20+tl}')
        elif tl < 4:
            em.emit(((ww * 4 + tl) * 56 + (l >> 4)) * 7168 + (j * 16 + (l & 15)) * 16, f'v{20+tl}')
        else:
            f = (l & 15) + (tl - 4) * 16; hh = f.div(12)
            em.emit(((ww * 4 + hh) * 56 + (l >> 4)) * 7168 + (j * 12 + 256 + f - hh * 12) * 16, f'v{20+tl}')
    def addr(tl, t, b):
        return f'v{20+tl}', f's_mul_i32 s11, {sKK[t]}, 56\ns_add_u32 s11, s11, {BF + 28672*b}'
    def vw(tl, reg): w.ds(f'ds_write_b32 {bVW}, {reg} offset:{tl*256 if tl < 4 or not split else 4096 + (tl-4)*256}')
    def tail6(rest):
        for f in rest: f()
        w(f'v_add_f32 v{BT}, v{ACC[6]}, v{ACC[6]+2}\nv_add_f32 v{BT+1}, v{ACC[6]+1}, v{ACC[6]+3}')
        w(f'v_cvt_pk_bf16_f32 v{BT+2}, v{BT}, v{BT+1}')
        vw(6, f'v{BT+2}')
    rot = sR if cfg.get('prot', 1) else '0'
    for q in range(4): A(f's_add_u32 s{48+q}, {rot}, {q}\ns_and_b32 s{48+q}, s{48+q}, 3\ns_lshl_b32 s{48+q}, s{48+q}, 11')
    if cfg.get('pre_b'): cfg['pre_b']()
    for t in range(2):
        A(f's_lshl_b32 s11, {sW}, 1\ns_add_u32 s11, s11, {t}\ns_lshl_b32 s33, s11, 10\ns_add_u32 s33, s33, {MX}')
        A(f's_cmp_eq_u32 s11, {sR}\ns_cselect_b32 s{52+t}, s33, {OOB}\ns_cmp_eq_u32 s11, 7\ns_cselect_b32 s{52+t}, {OOB}, s{52+t}')
    def mx_first():
        for t in range(2):
            w.vmem(f'buffer_store_dwordx4 {vr(MREG[t],4)}, {vL16}, {SRD}, s{52+t} offen sc1')
            A(f's_add_u32 s{52+t}, s{52+t}, 7168')
    A(f's_cmp_ge_u32 {sW}, 2\ns_cbranch_scc1 {lab}_loader')
    for k, x in b_exprs_final(split).items(): em.emit(x, k)
    bWB = vHUs if cfg.get('bpoll') else None
    assert bWB, 'the flag variant has no register left for three slots'
    A(f'v_mov_b32 {bWB}, {bWR}\ns_mov_b32 s47, 0')
    em.emit(HU2 + (l & (63 if cfg.get('huall') else 15)) * 4, vHUp)
    load_weights(w, addr)
    zero(w, 28, 28)
    A(f's_mov_b32 {sSTEP}, 0\ns_mov_b32 {sSPIN}, {SPIN_MAX}\ns_mov_b32 {sRETRY}, 0')
    cfg['start_sync'](w, lab + 'f')
    A('s_waitcnt vmcnt(0) lgkmcnt(0)')
    def loopf(lf, st, second):
        nonlocal w
        w = Wv(A, cfg)
        PREG = [4 * m for m in range(10)]
        one = cfg.get('onebar', 1)
        if one:
            order = list(range(10))
            WREG = {0: 56, 1: 64, 2: 72, 3: 80, 4: 88, 5: 40, 6: 48, 7: 56, 8: 64, 9: 72}
        else:
            order = [0, 1, 2, 3, 4, 8, 9, 5, 6, 7]
            WREG = {0: 56, 1: 64, 2: 72, 3: 80, 4: 88, 8: 40, 9: 48, 5: 56, 6: 64, 7: 72}
        sPO = ['s22', 's23', 's24', 's45', 's46']
        def wx(m, b):
            if m < 8: w.ds(f'ds_read_b128 {vr(WREG[m]+4*b,4)}, {bWR} offset:{(2*m+b)*1792}', f'W{m}')
            else: w.ds(f'ds_read_b128 {vr(WREG[m]+4*b,4)}, {bVR} offset:{(2*(m-8)+b)*(1024 if split else 1792)}', f'W{m}')
        def mfirst():
            for t in range(2): A(f'buffer_load_dwordx4 {vr(MREG[t],4)}, {vL16}, {SRD}, {sMO[t]} offen sc1')
        if fast:
            step_consts(A)
            A('s_barrier'); mfirst()
        A(f'{lf}_loop:')
        if fast: A(f's_and_b32 s11, {sSTEP}, 3\ns_add_u32 {sS1}, {sSTEP}, 1')
        else: step_consts(A)
        A(f's_lshl_b32 s11, s11, 14\ns_add_u32 s11, s11, {PS}\ns_add_u32 s46, s11, 8192')
        for q in range(4): A(f's_add_u32 {sPO[q]}, s11, s{48+q}')
        A(f's_and_b32 s11, {sS1}, 3\ns_lshl_b32 s11, s11, 13\ns_add_u32 {sMW}, s11, {MS}\ns_xor_b32 {sMR}, {sMW}, 0x4000')
        A(f'v_mov_b32 v{BT+3}, {sS1}\nv_mov_b64 {vr(FACC,2)}, 0\nv_mov_b64 {vr(FACC+2,2)}, 0')
        if cfg.get('bpoll') and not fast:
            for r in range(MREG[0], MREG[0] + 8, 2): A(f'v_mov_b64 {vr(r,2)}, -1')
        w.stamp()
        if not fast: A('s_barrier')
        w.stamp()
        def fillf(f0):
            d = {}
            for m in range(5):
                for b in range(2): d.setdefault(f0 + 2 * m + b, []).append(lambda m=m, b=b: wx(m, b))
            return d, {}
        tail6(weight_stream(w, fillf, vw, lf, BT, tmo, cfg.get('bpoll'), mx_first if cfg.get('mxfirst') else None))
        for _ in range(cfg.get('vpad', 0)): A('s_nop 15')
        w.stamp()
        if one:
            for m in (5, 6): wx(m, 0); wx(m, 1)
            if fast:
                for t in range(2): A(f's_add_u32 {sMO[t]}, {sMW}, {sKK[t]}')
            w.wait_all_lg()
            w.stamp()
            if second: A('s_barrier')
            else: poll(w, f'{lf}_poll2', f'v{BT+2}', sS1, tmo, 64 if cfg.get('huall') else 16)
        else:
            w.wait_all_lg()
            A('s_barrier')
            A(f's_cmp_eq_u32 {sSTEP}, {NSEG-1}\ns_cbranch_scc1 {lf}_done')
            for m in (8, 9): wx(m, 0); wx(m, 1)
            w.stamp()
            if cfg.get('b0poll'):
                if second: A('s_barrier')
                else: poll(w, f'{lf}_poll2', f'v{BT+2}', sS1, tmo, 16)
            else:
                A('s_barrier')
                if second: A('s_barrier')
        w.stamp()
        def ploads():
            for k, m in enumerate(order):
                w.vmem(f'buffer_load_dwordx4 {vr(PREG[k],4)}, {vL16}, {SRD}, {sPO[m>>1]} offen offset:{(m&1)*1024} sc1', f'P{k}')
        ploads()
        if not second: A('s_barrier')
        if fast and second: A('s_cmp_eq_u32 0, 1')
        A(f'{lf}_pchain:')
        for _ in range(cfg.get('bpad', 0)): A('s_nop 15')
        for k, m in enumerate(order):
            w.wait(vm=f'P{k}', lg=f'W{m}')
            if k == 0: w.stamp()
            w(smf(FACC, vr(PREG[k], 4), vr(WREG[m], 8), vIDX))
            if k < 3: wx((7 if one else 5) + k, 0); wx((7 if one else 5) + k, 1)
            if fast and second and k == cfg.get('kb', 4 if fast == 1 else 99):
                w.wait_all_lg(); A(f's_cbranch_scc1 {lf}_nob\ns_barrier\n{lf}_nob:')
        w(f'v_add_f32 v{BT}, v{FACC}, v{FACC+2}\nv_add_f32 v{BT+1}, v{FACC+1}, v{FACC+3}')
        if cfg.get('bcmp', 1):
            w(f'v_cvt_pk_bf16_f32 v{FACC}, v{BT}, v{BT+1}')
            w(f'v_cmp_u_f32 vcc, v{BT}, v{BT+1}')
            w(f'v_mov_b32_dpp v{BT+1}, v{FACC} quad_perm:[1,0,3,2] row_mask:0xf bank_mask:0xf')
            w(f'v_perm_b32 v{BT}, v{BT+1}, v{FACC}, {bSEL}')
        else:
            w(f'v_cmp_u_f32 vcc, v{BT}, v{BT+1}')
            w(f'v_cvt_pk_bf16_f32 v{BT}, v{BT}, v{BT+1}')
            w(f'v_mov_b32_dpp v{BT+1}, v{BT} quad_perm:[1,0,3,2] row_mask:0xf bank_mask:0xf')
            w(f'v_perm_b32 v{BT}, v{BT+1}, v{BT}, {bSEL}')
        w(f'v_min_u32 v{BT}, -2, v{BT}')
        w(f's_cbranch_vccnz {lf}_pretry\n{lf}_pok:')
        w.vmem(f'buffer_store_dword v{BT}, {bMS}, {SRD}, {sMW} offen {st}')
        if fast:
            if not second or cfg.get('kb', 4 if fast == 1 else 99) == 99: A('s_barrier')
            mfirst()
        if cfg.get('lastmx', 1):
            A(f's_cmp_eq_u32 {sSTEP}, {NSEG-2}\ns_cbranch_scc1 {lf}_last')
        w.stamp()
        if cfg.get('ack'): w.wait_all_vm(); w.stamp()
        w(f'v_mov_b32 v{BT+1}, -1')
        w.vmem(f'buffer_store_dword v{BT+1}, {bMS}, {SRD}, {sMR} offen {st}')
        if not cfg.get('bpoll'): w.vmem(f'buffer_store_dword v{BT+3}, {vHUs}, {SRD}, 0 offen {st}')
        zero(w, 28, 28)
        w(f's_add_u32 s47, s47, 0x8000\ns_cmp_eq_u32 s47, 0x18000\ns_cselect_b32 s47, 0, s47\nv_add_u32 {bWR}, s47, {bWB}')
        w.dump_stamps(lf)
        A(f's_mov_b32 {sSPIN}, {SPIN_MAX}\ns_mov_b32 {sSTEP}, {sS1}\ns_branch {lf}_loop')
        if cfg.get('lastmx', 1):
            A(f'{lf}_last:\ns_mov_b32 s11, {MX + (NSEG-1)*7168}\nbuffer_store_dword v{BT}, {bMS}, {SRD}, s11 offen sc1')
        A(f'{lf}_done:')
        cfg['finish'](w, lf)
        A('s_endpgm')
        m_retry(w, lf, tmo)
        A(f'{lf}_pretry:\ns_waitcnt vmcnt(0) lgkmcnt(0)')
        sentinel_check(w, list(range(0, 40)), f'v{BT+2}')
        A(f's_cbranch_vccz {lf}_pok')
        A(f's_add_u32 {sRETRY}, {sRETRY}, 0x10000\ns_sub_u32 {sSPIN}, {sSPIN}, 8\ns_cbranch_scc1 {tmo}')
        for m in range(3): wx(m, 0); wx(m, 1)
        A(f'v_mov_b64 {vr(FACC,2)}, 0\nv_mov_b64 {vr(FACC+2,2)}, 0\ns_waitcnt lgkmcnt(0)')
        ploads()
        A(f's_cmp_eq_u32 0, 0\ns_branch {lf}_pchain')
    A(f's_cmp_eq_u32 {sW}, 1\ns_cbranch_scc1 {lab}_second')
    emit_modes(A, cfg, lab + 'f', lambda lf, st: loopf(lf, st, False))
    A(f'{lab}_second:')
    emit_modes(A, cfg, lab + 'g', lambda lf, st: loopf(lf, st, True))
    ll = lab + 'l'
    A(f'{lab}_loader:')
    w = Wv(A, cfg)
    for r in range(7):
        f = l + 64 * r; hg = f.div(28)
        em.emit(hg * 7168 + bcol(j, f - hg * 28) * 16 + (4096 - (r & 3) * 1024), bDM[r])
    em.emit(sel_lt(ww, 3, HU1 + 128 + (l & 31) * 4, HU2 + (l & 15) * 4), vHUp)
    em.emit(sel_lt(l + (3 - ww) * 64, 1, HU1 + j * 4, OOB), vHUs)
    em.emit(sel_lt(j + (3 - ww) * 16, 7, j * 1024 + l * 16, OOB), bMX)
    em.emit(L_K + (j & 7) * 1024 + l * 16, 'v88')
    xl = (j * 2 + ww - 2) * 7 + l
    em.emit(sel_lt(l, 7, XF + 2 * 28672 + xl * 128, sel_lt(l, 63, OOB, FVX + 2 * 128)), bTO)
    em.emit(sel_lt(l, 63, 28672, 128), bINC)
    A(f'v_mov_b32 {bFLAG}, 16')
    A(f's_sub_u32 s11, {sW}, 2\ns_mul_i32 s23, s11, 14336\ns_cmp_eq_u32 s11, 0\ns_cselect_b32 s24, s48, s50\ns_cselect_b32 s45, s49, s51')
    A(f's_mul_i32 s24, s24, 56\ns_add_u32 s24, s24, {VXF - 4096}\ns_mul_i32 s45, s45, 56\ns_add_u32 s45, s45, {VXF - 4096}')
    def vx_m0(k):
        if k % 7 in (0, 4): w(f's_add_u32 m0, {sVL}, {k*1024}')
    def vx_dma(k):
        w.vmem(f'buffer_load_dwordx4 {bDM[k%7]}, {SRD}, {sVS if k < 7 else "s44"} offen offset:{((k%7)&3)*1024} lds', 'D')
    load_weights(w, addr)
    zero(w, 28, 28)
    A(f's_mov_b32 {sSTEP}, 0\ns_mov_b32 {sSPIN}, {SPIN_MAX}\ns_mov_b32 {sRETRY}, 0')
    cfg['start_sync'](w, ll)
    A(f's_mov_b32 {sVS}, s24\ns_mov_b32 s44, s45\ns_mov_b32 {sVL}, s23\ns_mov_b32 s47, 0')
    for k in range(14): vx_m0(k); vx_dma(k)
    nl = cfg.get('nlate', 0)
    def late_part():
        k0 = 14 - nl
        for k in range(k0, 14):
            if k == k0 and k % 7 not in (0, 4): w(f's_add_u32 m0, {sVL}, {(k - (k % 7) % 4)*1024}')
            vx_m0(k); vx_dma(k)
    if nl:
        A(f's_add_u32 {sVS}, s24, {VX_SEG}\ns_add_u32 s44, s45, {VX_SEG}\ns_add_u32 {sVL}, s23, 0x8000')
        late_part()
    def loopl(ll, st):
        nonlocal w
        w = Wv(A, cfg)
        A(f'{ll}_loop:')
        step_consts(A)
        A(f's_min_u32 s11, {sS1}, {0 if cfg.get("vxsame") else NSEG-1}\ns_mul_i32 s11, s11, {VX_SEG}\ns_add_u32 {sVS}, s11, s24\ns_add_u32 s44, s11, s45')
        A(f's_add_u32 s47, s47, 0x8000\ns_cmp_eq_u32 s47, 0x18000\ns_cselect_b32 s47, 0, s47\ns_add_u32 {sVL}, s47, s23')
        A(f's_mul_i32 {sMXO}, {sSTEP}, 7168\ns_add_u32 {sMXO}, {sMXO}, {MX}')
        if cfg.get('bpoll'):
            for r in range(MREG[0], MREG[0] + 8, 2): A(f'v_mov_b64 {vr(r,2)}, -1')
        if nl: A(f's_waitcnt vmcnt({nl})')
        else:
            A('s_waitcnt vmcnt(0)')
            A(f's_cmp_ge_u32 {sSTEP}, {NSEG-1}\ns_cbranch_scc1 {ll}_fok')
            A(f'{ll}_fchk:\nv_readlane_b32 s11, {bFLAG}, 63\ns_nop 0\ns_cmp_ge_u32 s11, 16\ns_cbranch_scc1 {ll}_fok')
            A(f's_lshl_b32 s11, {sS1}, 7\ns_add_u32 s11, s11, {FVX}')
            A(f'buffer_load_dword {bFLAG}, off, {SRD}, s11 sc1')
            A(f's_sub_u32 {sSPIN}, {sSPIN}, 1\ns_cbranch_scc1 {tmo}\ns_waitcnt vmcnt(0)\ns_branch {ll}_fchk\n{ll}_fok:')
        w.stamp()
        if not cfg.get('bpoll'):
            A(f's_cmp_lg_u32 {sW}, 2\ns_cbranch_scc1 {ll}_nopoll')
            poll(w, f'{ll}_poll1', bPOLL, sSTEP, tmo, 32)
            A(f'{ll}_nopoll:')
        A('s_barrier')
        w.stamp()
        d0 = cfg.get('dslot', 2); dstep = cfg.get('dstep', 2); ne = cfg.get('dearly', 0)
        def early():
            if cfg.get('mxfirst'): mx_first()
            if cfg.get('tfirst'): w.vmem(f'buffer_load_dword {bFLAG}, {bTO}, {SRD}, 0 offen sc1', 'D')
            for k in range(ne): vx_m0(k); vx_dma(k)
        def filll(f0):
            d = {}
            add = lambda n, f: d.setdefault(n, []).append(f)
            for k in range(ne, 14 - nl):
                add(d0 + dstep * (k - ne) - 1, lambda k=k: vx_m0(k))
                add(d0 + dstep * (k - ne), lambda k=k: vx_dma(k))
            if not cfg.get('tfirst'): add(d0 + dstep * (14 - nl - ne), lambda: w.vmem(f'buffer_load_dword {bFLAG}, {bTO}, {SRD}, 0 offen sc1', 'D'))
            if cfg.get('mxfirst'): pass
            elif fast and not cfg.get('nomx'):
                add(f0, lambda: w.ds('ds_read_b128 v[56:59], v88', 'MX'))
                add(f0 + 5, lambda: (w.wait(lg='MX'), w.vmem(f'buffer_store_dwordx4 v[56:59], {bMX}, {SRD}, {sMXO} offen sc1')))
            elif not cfg.get('nomx'):
                add(max(f0 - 4, cfg.get('vslot', 0)), lambda: w.vmem(f'buffer_store_dwordx4 {vr(MREG[0],4)}, {bMX}, {SRD}, {sMXO} offen {cfg.get("mxfl", "sc1")}'))
            return d, {}
        tail6(weight_stream(w, filll, vw, ll, BT, tmo, cfg.get('bpoll'), early))
        w.stamp()
        w.wait_all_lg()
        if not cfg.get('onebar', 1):
            A('s_barrier')
            A(f's_cmp_eq_u32 {sSTEP}, {NSEG-1}\ns_cbranch_scc1 {ll}_done')
        zero(w, 28, 28)
        A(f'v_mov_b32 v{BT+3}, {sS1}')
        if not cfg.get('xsame'): A(f'v_add_u32 {bTO}, {bTO}, {bINC}')
        w.stamp()
        if cfg.get('drain'):
            w.wait(vm='D'); w.stamp(); w.wait_all_vm(); w.stamp()
        hu1 = f'buffer_store_dword v{BT+3}, {vHUs}, {SRD}, 0 offen {st}'
        if cfg.get('b0poll') or cfg.get('onebar', 1):
            A('s_barrier')
            if cfg.get('gate', 'w0') != 'none': A(hu1)
        else:
            A(f's_cmp_lg_u32 {sW}, 3\ns_cbranch_scc1 {ll}_nopoll2')
            poll(w, f'{ll}_poll2', bPOLL, sS1, tmo, 16)
            A(f'{ll}_nopoll2:\ns_barrier')
            if cfg.get('hu1pos', 0) == 0: A(hu1)
            A('s_barrier')
            if cfg.get('hu1pos', 0) == 1: A(hu1)
        if cfg.get('lastmx', 1): A(f's_cmp_eq_u32 {sSTEP}, {NSEG-2}\ns_cbranch_scc1 {ll}_done')
        if nl:
            A('s_waitcnt vmcnt(0)')
            A(f'{ll}_fchk:\nv_readlane_b32 s11, {bFLAG}, 63\ns_nop 0\ns_cmp_ge_u32 s11, 16\ns_cbranch_scc1 {ll}_fok')
            A(f's_lshl_b32 s11, {sSTEP}, 7\ns_add_u32 s11, s11, {FVX + 256}')
            A(f'buffer_load_dword {bFLAG}, off, {SRD}, s11 sc1')
            A(f's_sub_u32 {sSPIN}, {sSPIN}, 1\ns_cbranch_scc1 {tmo}\ns_waitcnt vmcnt(0)\ns_branch {ll}_fchk\n{ll}_fok:')
            for _ in range(cfg.get('ldelay', 0)): A('s_nop 15')
            A(f's_add_u32 s11, {sSTEP}, 2\ns_mul_i32 s11, s11, {0 if cfg.get("vxsame") else VX_SEG}\ns_add_u32 {sVS}, s11, s24\ns_add_u32 s44, s11, s45')
            A(f's_add_u32 s11, s47, 0x8000\ns_cmp_eq_u32 s11, 0x18000\ns_cselect_b32 s11, 0, s11\ns_add_u32 {sVL}, s11, s23')
            late_part()
        w.dump_stamps(ll)
        A(f's_mov_b32 {sSPIN}, {SPIN_MAX}\ns_mov_b32 {sSTEP}, {sS1}\ns_branch {ll}_loop\n{ll}_done:')
        cfg['finish'](w, ll)
        A('s_endpgm')
        m_retry(w, ll, tmo)
    emit_modes(A, cfg, ll, loopl)
```

```python
import sys, json
sys.path.insert(0, 'gen'); sys.path.insert(0, 'bench')
from common import *
import common
import main as MAIN
from layout import *
base = json.loads(sys.argv[1]); rounds = int(sys.argv[2]); vars_ = [json.loads(a) for a in sys.argv[3:]]
KN = MAIN.build.NAME + '_kernel'
cos = []
for i, v in enumerate(vars_):
    c = dict(base); c.update(v); c['ds'] = 1
    cos.append(build(MAIN.generate(c), KN, 15, f'abf{i}', lists=True))
if ON_GPU:
    from model import *
    d = make_inputs(0, 0.05, 1.0)
    ref, aux = reference(d)
    names = ['x', 'mem0', 'Wq', 'Wk', 'Wv', 'Wo', None, 'x', 'w1', 'b1', 'w2', 'b2']
    bufs = [DeviceBuffer.from_numpy(f2bf(d[n]) if n else np.array([32], dtype=np.int32)) for n in names]
    out = DeviceBuffer(S * D * 2); dbg = DeviceBuffer(4096); ws = DeviceBuffer(WS_BYTES)
    ka = pack_ptr_kernargs([b.ptr for b in bufs] + [out.ptr, dbg.ptr, ws.ptr])
    junk = DeviceBuffer(int(os.environ.get('JUNK', 1)) << 20)
    ks = [AsmKernel(co, KN) for co in cos]
    res = [[] for _ in ks]; errs = [0.0] * len(ks)
    for r in range(rounds + 1):
        for i, k in enumerate(ks):
            memset(out, 0xff); memset(ws, r & 0x7f, WS_BYTES); memset(dbg, 0); sync()
            if os.environ.get('COLD') == '1':
                t_ = DeviceBuffer(64 << 20); memset(t_, 1); sync(); t_.free(); sync()
            if os.environ.get('COLD') == '2':
                time.sleep(0.02)
            if os.environ.get('JUNK'):
                hip_check(common._hip.hipMemsetAsync(ctypes.c_void_p(junk.ptr), r & 0x7f, junk.nbytes, None))
                if os.environ.get('JSYNC'): sync()
            if os.environ.get('HOT'):
                for _ in range(int(os.environ['HOT'])): hip_check(common._hip.hipMemsetAsync(ctypes.c_void_p(ws.ptr), r & 0x7f, WS_BYTES, None))
            k.launch((256,1,1), (256,1,1), ka, 163840); sync()
            g = dbg.to_numpy(np.uint32, (64,)).astype(np.int64)
            rel = lambda x: ((g[x] - g[9]) % 0x100000) / 100
            if r: res[i].append((rel(4), rel(5), rel(6), rel(7), rel(12), g[13] & 0xffff, g[13] >> 16))
            if r == rounds or r == 1:
                got = bf2f(out.to_numpy(np.uint16, (S, D)))
                e_ = float(np.linalg.norm(got - ref) / np.linalg.norm(ref)); errs[i] = max(errs[i], e_ if e_ == e_ else 9.9)
    for i, v in enumerate(vars_):
        a = np.median(np.array(res[i]), 0)
        print(f'end {a[3]:6.1f} Aend {a[2]:6.1f} Aready {a[0]:5.1f} Bready {a[1]:5.1f} step2 {a[4]:5.1f} ns/step {(a[2]-a[4])/61*1000:6.1f} retry {np.mean(np.array(res[i])[:,5]):.0f}/{np.mean(np.array(res[i])[:,6]):.1f} err {errs[i]:.5f} {v}')
```

```python
from asmdsl import Asm
from layout import *
import rec, workers, prep, build

BEST = dict(xpos=[11, 15, 20, 25, 99, 99, 99, 99], hu2pos=6, ew=128, ne=1, ebar=3, gate='none', dstep=1, dslot=1, bpoll=1, prot=0, tw2=0, ttid=1, nomask=1,
            bdepth=2, dearly=2, aA=[6, 0], apoll=[6, 0], lbar=21, rtid=1, lslot=5, midn=90)
WBEST = dict(deferq=0, defert=0, locala=0)

def counts(A, lab, tmo, sd='s[48:51]'):
    A(f's_mov_b32 s19, 0x40000\n{lab}:')
    A(f'buffer_load_dword v3, v4, {sd}, 0 offen sc1')
    A(f's_sub_u32 s19, s19, 1\ns_cbranch_scc1 {tmo}\ns_waitcnt vmcnt(0)')
    A('v_readlane_b32 s47, v3, 0\ns_mov_b32 s46, s47')
    for x in range(1, 8): A(f'v_readlane_b32 s11, v3, {x}\ns_add_u32 s46, s46, s11')

def gen_main(A, cfg):
    cfg = dict(WBEST, **cfg)
    workers.LASTD[0] = cfg.get('lastpoll', 1)
    workers.ONE[0] = cfg.get('one', 0)
    workers.PREV[0] = cfg.get('prev', 0)
    workers.BACK[0] = f's_sleep {cfg["back"]}\n' if cfg.get('back') else ''
    A(f"""M_start:
    s_cmp_ge_u32 s2, 256
    s_cbranch_scc1 M_exit0
    s_load_dwordx4 s[28:31], s[0:1], 0
    s_load_dwordx8 s[36:43], s[0:1], 16
    s_load_dwordx2 s[4:5], s[0:1], 112
    s_load_dwordx2 s[48:49], s[0:1], 104
    s_getreg_b32 s54, hwreg(HW_REG_XCC_ID, 0, 3)
    v_lshrrev_b32 v1, 6, v0
    v_readfirstlane_b32 s9, v1
    v_and_b32 v0, 63, v0
    s_waitcnt lgkmcnt(0)
    s_add_u32 s4, s4, {cfg.get('wsoff', 0)}
    s_addc_u32 s5, s5, 0
    s_mov_b32 s6, {WS_BYTES - cfg.get('wsoff', 0)}
    s_mov_b32 s7, 0x20000
    s_mov_b32 s50, 256
    s_mov_b32 s51, 0x20000""")
    if cfg.get('fakexcc'): A(cfg['fakexcc'])
    if cfg.get('ds'):
        A('s_mov_b32 s3, s2'); rec.dstamp(A, cfg, 9, 0, 3)
    A("""s_mov_b32 s12, s54
    v_mov_b32 v2, 0x27c00
    s_cmp_lg_u32 s9, 0
    s_cbranch_scc1 M_noat
    v_mov_b32 v249, 1
    s_lshl_b32 s11, s12, 5
    s_mov_b64 exec, 1
    buffer_atomic_add v249, off, s[48:51], s11 sc0 sc1
    s_mov_b64 exec, -1
M_noat:""")
    nt = 0
    if cfg.get('codetouch', 1):
        A('s_getpc_b64 s[20:21]\nM_pc:\ns_sub_u32 s20, s20, M_pc-M_start\ns_subb_u32 s21, s21, 0\ns_mov_b32 s22, M_end-M_start\ns_mov_b32 s23, 0x20000')
        A('s_lshr_b32 s11, s2, 3\ns_lshl_b32 s11, s11, 2\ns_add_u32 s11, s11, s9\ns_lshl_b32 s11, s11, 10\nv_lshlrev_b32 v5, 4, v0')
        A('buffer_load_dword v251, v5, s[20:23], s11 offen'); nt += 1
    if cfg.get('tlbtouch'):
        k = cfg['tlbtouch']
        A(f's_lshl_b32 s11, s9, {k+6}\nv_lshlrev_b32 v5, {k}, v0\nbuffer_load_dword v250, v5, s[4:7], s11 offen'); nt += 1
    if cfg.get('pretouch', 1):
        A(f's_lshl_b32 s11, s2, 2\ns_add_u32 s11, s11, s9\ns_mul_i32 s11, s11, 3584\nv_lshlrev_b32 v5, 7, v0\nv_mov_b32 v6, {OOB}')
        A('v_cmp_gt_u32 vcc, 28, v0\nv_cndmask_b32 v5, v6, v5, vcc')
        for k, p in enumerate(cfg.get('order', (40, 42))):
            prep.srd(A, 20, p, prep.W_BYTES)
            A(f'buffer_load_dword v{252+k}, v5, s[20:23], s11 offen'); nt += 1
    A(f"""s_cmp_lg_u32 s9, 0
    s_cbranch_scc1 M_ranked
    {'s_lshr_b32 s3, s2, 3' if cfg.get('fakerank') else f's_waitcnt vmcnt({nt})'}
    {'' if cfg.get('fakerank') else 'v_readfirstlane_b32 s3, v249'}
    v_and_b32 v4, 7, v0
    v_lshlrev_b32 v4, 5, v4
    s_lshl_b32 s11, s12, 5
    s_cmp_lt_u32 s3, 32
    s_cselect_b32 s15, 0, 1
    s_add_u32 s3, s3, s11
    s_cmp_eq_u32 s15, 0
    s_cbranch_scc1 M_have""")
    A("""v_mov_b32 v3, 1
    s_mov_b64 exec, 1
    buffer_atomic_add v3, off, s[48:51], 0 offset:4 sc0 sc1
    s_waitcnt vmcnt(0)
    s_mov_b64 exec, -1
    v_readfirstlane_b32 s15, v3""")
    counts(A, 'M_ovf', 'M_exit0')
    A('s_cmp_lt_u32 s46, 256\ns_cbranch_scc1 M_ovf_again\ns_mov_b32 s3, 0')
    for x in range(8):
        A(f'v_readlane_b32 s11, v3, {x}\ns_min_u32 s11, s11, 32\ns_sub_u32 s16, 32, s11')
        A(f's_cmp_lt_u32 s15, s16\ns_cbranch_scc0 M_nx{x}\ns_add_u32 s3, s11, s15\ns_add_u32 s3, s3, {32*x}\ns_branch M_have\nM_nx{x}:\ns_sub_u32 s15, s15, s16')
    A('M_exit0:\ns_endpgm\nM_ovf_again:')
    A('s_branch M_ovf')
    A("""M_have:
    v_mov_b32 v7, s3
    ds_write_b32 v2, v7
    s_waitcnt lgkmcnt(0)
M_ranked:
    s_barrier
    ds_read_b32 v7, v2
    s_waitcnt lgkmcnt(0)
    v_readfirstlane_b32 s3, v7""")
    rec.tline(A, dict(cfg, tlreg=3), 0)
    rec.dstamp(A, cfg, 3, 0, 3)
    A('s_barrier\ns_cmp_lt_u32 s3, 32\ns_cbranch_scc1 M_rec\ns_sub_u32 s10, s3, 32')
    prep.gen_gemm(A, cfg, 'M_exit0')
    A("""s_sub_u32 s11, s3, 32
    s_and_b32 s10, s11, 63
    s_lshr_b32 s11, s11, 6
    s_cmp_eq_u32 s11, 2
    s_cbranch_scc1 M_F
    s_cmp_eq_u32 s11, 3
    s_cbranch_scc1 M_T
    s_and_b32 s12, s10, 3
    s_lshr_b32 s10, s10, 2
    s_cmp_eq_u32 s11, 1
    s_cbranch_scc1 M_Q""")
    workers.gen_V(A, cfg, 'WV', 'M_exit')
    A('M_Q:'); workers.gen_Q(A, cfg, 'WQ', 'M_exit')
    A('M_T:'); workers.gen_T(A, cfg, 'WT', 'M_exit')
    A('M_F:'); workers.gen_F(A, cfg, 'WF', 'M_exit')
    A('M_exit:\ns_endpgm')
    def mode(lab):
        A(f'v_mov_b32 v2, 0x27c00\ns_cmp_lg_u32 s9, 0\ns_cbranch_scc1 {lab}_ss')
        A('v_and_b32 v4, 7, v0\nv_lshlrev_b32 v4, 5, v4')
        counts(A, f'{lab}_cnt', 'R_exit')
        A(f's_mov_b32 s30, 0\ns_cmp_ge_u32 s47, 32\ns_cbranch_scc1 {lab}_md\ns_mov_b32 s30, 1\ns_cmp_ge_u32 s46, 256\ns_cbranch_scc1 {lab}_md')
        A(f's_branch {lab}_cnt\n{lab}_md:')
        A(f'v_mov_b32 v3, s30\nds_write_b32 v2, v3\ns_waitcnt lgkmcnt(0)\n{lab}_ss:\ns_barrier')
        A(f'ds_read_b32 v3, v2\ns_waitcnt lgkmcnt(0)\nv_readfirstlane_b32 s30, v3')
    def help_a(lab):
        nt_ = cfg.get('helpa', 0)
        if not nt_: return
        A(f's_lshl_b32 s11, s10, 7\ns_add_u32 s11, s11, {FA}\ns_mov_b32 s19, 0x40000')
        A(f'{lab}_ha:\nbuffer_load_dword v3, off, s[4:7], s11 sc1\ns_sub_u32 s19, s19, 1\ns_cbranch_scc1 R_exit')
        A(f's_waitcnt vmcnt(0)\nv_cmp_gt_u32 vcc, 14, v3\ns_cbranch_vccnz {lab}_ha')
        A(f's_mul_i32 s33, s10, {28*14336}\ns_add_u32 s33, s33, {AF}\ns_lshr_b32 s11, s9, 1\ns_mul_i32 s11, s11, {14*14336}\ns_add_u32 s33, s33, s11')
        A(f'v_lshlrev_b32 v4, 7, v0\nv_min_u32 v5, 47, v0\nv_lshlrev_b32 v5, 7, v5\ns_and_b32 s34, s9, 1')
        for k, (t0_, t1_) in enumerate(((6, 7), (5, 13), (4, 12), (3, 11))[:nt_]):
            A(f's_mul_i32 s11, s34, {(t1_-t0_)*14336}\ns_add_u32 s11, s11, s33\ns_add_u32 s11, s11, {t0_*14336}')
            A(f'buffer_load_dword v102, v4, s[4:7], s11 offen\ns_add_u32 s11, s11, 8192\nbuffer_load_dword v102, v5, s[4:7], s11 offen')
    def start_sync(w, lab):
        if lab != 'RA': help_a(lab)
        if cfg.get('tl'): A('s_waitcnt vmcnt(0)')
        rec.tline(A, dict(cfg, tlreg=3), 1)
        if lab.endswith('l'):
            A(f'v_min_u32 v4, 1, v0\nv_lshlrev_b32 v4, 7, v4\ns_mov_b32 s11, {FVX}\ns_mov_b32 s19, 0x40000')
            A(f'{lab}_fv:\nbuffer_load_dword v3, v4, s[4:7], s11 offen sc1\ns_sub_u32 s19, s19, 1\ns_cbranch_scc1 R_exit')
            A(f's_waitcnt vmcnt(0)\nv_cmp_gt_u32 vcc, 16, v3\ns_cbranch_vccnz {lab}_fv')
            if cfg.get('tl'):
                A('s_sub_u32 s9, s9, 2'); rec.tline(A, dict(cfg, tlreg=3), 3); A('s_add_u32 s9, s9, 2')
        elif cfg.get('warm', 1) and lab == 'RA':
            A(f's_lshl_b32 s11, s3, 2\ns_add_u32 s11, s11, s9\ns_lshl_b32 s11, s11, 11\ns_add_u32 s11, s11, {MS}\nv_lshlrev_b32 v4, 5, v0')
            A('buffer_load_dword v3, v4, s[4:7], s11 offen sc1')
            if cfg.get('warmx', 1):
                A(f's_sub_u32 s11, s11, {MS}\ns_lshr_b32 s11, s11, 2\ns_add_u32 s11, s11, {XF + 28672}\nv_lshlrev_b32 v4, 3, v0\nbuffer_load_dword v3, v4, s[4:7], s11 offen sc1')
        A(f's_mov_b32 s19, {rec.SPIN_MAX}')
        rec.tline(A, dict(cfg, tlreg=3), 2)
        rec.dstamp(A, cfg, 4, 0, 3); rec.dstamp(A, cfg, 5, 31, 3)
    c = dict(BEST); c.update(cfg)
    c.setdefault('start_sync', start_sync); c.setdefault('finish', lambda w, lab: (rec.tline(A, dict(cfg, tlreg=3, tlclk=1), 4), rec.dstamp(A, cfg, 6, 0, 3), rec.dretry(A, cfg)))
    def loop_top(w, lab):
        if cfg.get('ds'):
            A(f's_cmp_lg_u32 s8, 2\ns_cbranch_scc1 {lab}_ds2'); rec.dstamp(A, cfg, 12, 0, 3); A(f'{lab}_ds2:')
        if cfg.get('tl'):
            for k, st in zip((3, 5, 6), cfg.get('tlsteps', (1, 16, 32))):
                A(f's_cmp_lg_u32 s8, {st}\ns_cbranch_scc1 {lab}_lt{k}'); rec.tline(A, dict(cfg, tlreg=3, tlclk=1), k); A(f'{lab}_lt{k}:')
    c.setdefault('loop_top', loop_top)
    if cfg.get('locala') and not cfg.get('fakeloc'):
        A('M_rec:\ns_and_b32 s10, s3, 15\ns_cmp_ge_u32 s3, 16\ns_cbranch_scc1 M_misc')
        prep.local_A(A, cfg)
        A('s_cmp_lg_u32 s9, 0\ns_cbranch_scc1 M_prep')
        prep.zero_ready(A, 'M_zr', 'R_exit')
        A('s_branch M_prep\nM_misc:')
    elif cfg.get('amisc'):
        A('M_rec:\ns_and_b32 s10, s3, 15\ns_cmp_lt_u32 s3, 16\ns_cbranch_scc1 M_misc')
        A('s_cmp_lg_u32 s9, 0\ns_cbranch_scc1 M_prep')
        prep.zero_ready(A, 'M_zr', 'R_exit')
        A('s_branch M_prep\nM_misc:')
    else:
        A('M_rec:\ns_mov_b32 s10, s3')
    prep.gen_misc(A, cfg, 'R_exit')
    A('M_prep:')
    from expr import V, Sg, sel_lt
    l = V('v0')
    def touch(lab, sbase, n):
        A(f'v_lshlrev_b32 v4, 7, v0')
        for k in range(n):
            A(f'buffer_load_dword v30, v4, s[4:7], {sbase} offen\ns_add_u32 {sbase}, {sbase}, 8192')
    def pre_a():
        nb = cfg.get('helpb', 0)
        if nb:
            hh = (Sg('s10') >> 2) * 4 + 2 + ((Sg('s10') >> 1) & 1)
            rec.wait_lanes(A, 'RA_wb', l * 0 + FB + hh * 128, l * 0 + 14, 'R_exit')
            A(f's_lshr_b32 s11, s10, 2\ns_lshl_b32 s11, s11, 2\ns_add_u32 s11, s11, 2\ns_bfe_u32 s33, s10, 0x10001\ns_add_u32 s11, s11, s33\ns_mul_i32 s11, s11, {14*28672}')
            A(f's_and_b32 s33, s10, 1\ns_lshl_b32 s33, s33, 2\ns_add_u32 s33, s33, s9\ns_mul_i32 s33, s33, 50176\ns_add_u32 s11, s11, s33\ns_add_u32 s33, s11, {BF}')
            touch('RA_tb', 's33', nb)
        if cfg.get('locala'): rec.wait_lanes(A, 'RA_wa', sel_lt(l, 1, FA + 2048 + Sg('s10') * 128, FX), sel_lt(l, 1, 7, workers.nfx(cfg)), 'R_exit')
        else: rec.wait_lanes(A, 'RA_wa', sel_lt(l, 1, FA + Sg('s10') * 128, FX), sel_lt(l, 1, 14, workers.nfx(cfg)), 'R_exit')
    c['pre_a'] = pre_a
    def mid_weights(spare):
        if cfg.get('codetouch2', 1):
            A('s_lshl_b32 s33, s3, 2\ns_add_u32 s33, s33, s9')
            rec.code_touch(A, 'M_rec', 'M_end', 's33', 3, 'v2', spare)
    c['mid_weights'] = mid_weights
    hs = cfg.get('halfsig', 0)
    def mid_b(lab, k):
        if k == 0:
            A(f's_lshl_b32 s34, s9, 9\ns_add_u32 s34, s34, {FB}\nv_and_b32 v4, 3, v0\nv_lshlrev_b32 v4, 7, v4\ns_mov_b32 s19, 0x40000')
            A('buffer_load_dword v3, v4, s[4:7], s34 offen sc1')
            return
        A(f's_waitcnt vmcnt(25)\n{lab}_mc:\nv_cmp_gt_u32 vcc, 14, v3\ns_cbranch_vccz {lab}_mo')
        A(f'buffer_load_dword v3, v4, s[4:7], s34 offen sc1\ns_sub_u32 s19, s19, 1\ns_cbranch_scc1 R_exit')
        A(f's_waitcnt vmcnt(0)\ns_branch {lab}_mc\n{lab}_mo:')
    if hs: c['mid_b'] = mid_b
    c['pre_b'] = lambda: rec.wait_lanes(A, 'RB_wb', sel_lt(l, 16, FB + (2048 if hs else 0) + l * 128, FX), sel_lt(l, 16, 14, 0 if cfg.get('amisc') else workers.nfx(cfg)), 'R_exit')
    mode('RM')
    A('s_and_b32 s10, s3, 15\ns_cmp_ge_u32 s3, 16\ns_cbranch_scc1 M_B')
    rec.gen_A(A, c, 'RA', 'R_exit')
    A('R_exit:\ns_endpgm\nM_B:')
    rec.gen_B(A, c, 'RB', 'R_exit')
    A('M_end:')

def generate(cfg={}, header=''):
    K = Asm(); gen_main(K, cfg)
    return build.assemble([(build.NAME + '_kernel', K.lines, 256, 256, 163840, 512, 256)], header)

DOC = """;
"""

if __name__ == '__main__':
    ref = open(f'cdna_kernels/{build.NAME}.s.ref').read().split('\n')
    header = '\n'.join(l for l in ref if l.startswith(';') and '@launch' not in l and 'Override' not in l and 'grid=ceil' not in l) + '\n' + DOC
    import sys, json
    if len(sys.argv) > 2: open(sys.argv[1], 'w').write(generate(json.loads(sys.argv[2]), header))
    else: open(f'cdna_kernels/{build.NAME}.s', 'w').write(generate({}, header))
```

```python
from asmdsl import Asm
from expr import X, V, Sg, Emitter, ev, sel_lt
from layout import *
from rec import Wv, vr, tline, dstamp, wquad
import struct, math

def f32(x): return hex(struct.unpack('<I', struct.pack('<f', x))[0])
CSC = math.log2(math.e) / 16
W_BYTES = D * H * E * 2

def mfma(acc, a, b, c=None): return f'v_mfma_f32_16x16x32_bf16 {acc}, {a}, {b}, {c if c is not None else acc}'
def srd(A, r, lo, nbytes):
    A(f's_mov_b32 s{r}, s{lo}\ns_mov_b32 s{r+1}, s{lo+1}\ns_mov_b32 s{r+2}, {nbytes}\ns_mov_b32 s{r+3}, 0x20000')

def zero_ready(A, lab, tmo):
    A(f's_mov_b32 s19, 0x40000\n{lab}:\nbuffer_load_dword v1, off, s[48:51], 0 offset:132 sc1')
    A(f's_sub_u32 s19, s19, 1\ns_cbranch_scc1 {tmo}\ns_waitcnt vmcnt(0)\nv_cmp_eq_u32 vcc, 0, v1\ns_cbranch_vccnz {lab}')

def gen_gemm(A, cfg, tmo):
    w = Wv(A, {}); st = 'sc1'
    c2 = dict(cfg, tlreg=1)
    em = Emitter(A, [f'v{i}' for i in range(32, 60)])
    l = V('v0'); g = l >> 4; rho = l & 15
    loc = cfg.get('locala', 1)
    half = cfg.get('halfsig', 0)
    def derive():
        if half:
            A(f"""s_lshl_b32 s17, s12, 3
            s_lshl_b32 s11, s9, 1
            s_add_u32 s17, s17, s11
            s_lshl_b32 s18, s16, 9          ; h*512
            s_lshl_b32 s52, s17, 18
            s_add_u32 s52, s52, s18
            s_add_u32 s53, s52, 0x40000
            s_cmp_eq_u32 s17, 14
            s_cselect_b32 s52, {OOB}, s52
            s_cselect_b32 s53, {OOB}, s53""")
            return
        A(f"""s_mul_i32 s17, s12, 7
        s_lshl_b32 s11, s9, 1
        s_add_u32 s17, s17, s11
        s_lshl_b32 s18, s16, 9          ; h*512
        s_lshl_b32 s52, s17, 18
        s_add_u32 s52, s52, s18
        s_add_u32 s53, s52, 0x40000
        s_cmp_eq_u32 s9, 3
        s_cselect_b32 s53, {OOB}, s53""")
    A("""s_mul_i32 s16, s10, 4682
    s_lshr_b32 s16, s16, 16
    s_mul_i32 s13, s16, 14
    s_sub_u32 s13, s10, s13
    s_and_b32 s12, s13, 1
    s_lshr_b32 s13, s13, 1""")
    derive()
    A("""s_lshl_b32 s35, s9, 15
    s_lshl_b32 s34, s9, 13""")
    srd(A, 20, 40, W_BYTES); srd(A, 24, 42, W_BYTES); srd(A, 56, 36, W_BYTES); srd(A, 60, 38, W_BYTES)
    LB = 131072
    for par in range(2):
        em.emit((l >> 3) * 896 + ((l & 7) ^ (((l >> 4) & 1) * 2 + par * 4)) * 16, f'v{24+par}')
    A('s_lshl_b32 s19, s16, 8\ns_lshl_b32 s33, s9, 6\ns_add_u32 s19, s19, s33\ns_mul_i32 s19, s19, 896\ns_lshl_b32 s33, s13, 7\ns_add_u32 s19, s19, s33')
    for k in range(8):
        A(f's_add_u32 m0, s34, {LB + k*1024}\ns_add_u32 s33, s19, {k*8*896}')
        w.vmem(f'buffer_load_dwordx4 v{24+(k&1)}, s[24:27], s33 offen lds', 'B0')
    for i in range(8):
        r = (l >> 5) + 2 * i
        em.emit(((r >> 2) * 8 + (r & 3)) * 8192 + ((l & 31) ^ r) * 16 - (i & 3) * 1024, f'v{8+i}')
    def tile_dma(srd_, soff, lds, tag):
        for i in range(8):
            if i % 4 == 0: A(f's_add_u32 m0, {lds[0]}, {lds[1] + i*1024}')
            w.vmem(f'buffer_load_dwordx4 v{8+i}, {srd_}, {soff} offen offset:{(i&3)*1024} lds', tag)
    def load_a(task, k):
        A(f's_add_u32 s33, s{52+k}, 32768')
        for b in range(2): tile_dma(('s[20:23]', 's[56:59]')[task], 's33' if b else f's{52+k}', ('s35', k * 16384 + b * 8192), f'A{task}{k}')
    load_a(0, 0); load_a(0, 1)
    tline(A, c2, 5, 0x4000)
    al = (l >> 2) & 3; c = l & 3
    f = ((al >> 1) & 1) * 2 + (g & 1) * 4
    for t in range(4):
        em.emit(LB + (g * 8 + al) * 128 + ((f ^ (2 * t)) + (c >> 1)) * 16 + (c & 1) * 8, f'v{20+t}')
    for q in range(4):
        em.emit(rho * 512 + (((rho & 12) ^ (4 * q)) + (g ^ (rho & 3))) * 16, f'v{4+q}')
        A(f'v_add_u32 v{16+q}, {LB}, v{4+q}\nv_add_u32 v{4+q}, s35, v{4+q}')
    em.emit(g * 7168 + rho * 16, 'v2')
    em.emit(l * 16, 'v3')
    breg = lambda t, ks: f'a[{(t*8+ks)*4}:{(t*8+ks)*4+3}]'
    areg = lambda k, b, ks: vr(64 + ((k * 2 + b) * 8 + ks) * 4, 4)
    ACCR = lambda b, t: 32 + (b * 4 + t) * 4
    def read_a(k, b, ks): A(f'ds_read_b128 {areg(k,b,ks)}, v{4+(ks&3)} offset:{k*16384 + b*8192 + (ks>>2)*256}')
    def pair(task, k):
        for ks in range(8):
            for b in range(2):
                for t in range(4):
                    A(mfma(vr(ACCR(b, t), 4), areg(k, b, ks), breg(t, ks), 0 if ks == 0 else None))
                if k == 0 and ks == 4 and b == 0:
                    A('s_waitcnt vmcnt(0)')
                    if task == 0:
                        A('buffer_load_dword v26, off, s[48:51], 0 offset:132 sc1')
                        if cfg.get('touch2'):
                            A('s_lshl_b32 s19, s10, 2\ns_add_u32 s19, s19, s9\ns_lshl_b32 s19, s19, 12\nv_and_b32 v27, 31, v0\nv_lshlrev_b32 v27, 7, v27')
                            A('buffer_load_dword v28, v27, s[56:59], s19 offen\nbuffer_load_dword v29, v27, s[60:63], s19 offen')
                if k == 0 and ks >= 4: read_a(1, b, 2 * (ks - 4)); read_a(1, b, 2 * (ks - 4) + 1)
        for t in range(4):
            o = 192 + 16 * k + 4 * t
            for b in range(2):
                a = ACCR(b, t)
                if task:
                    for r in range(4): A(f'v_mul_f32 v{a+r}, s47, v{a+r}')
                A(f'v_cvt_pk_bf16_f32 v{o+2*b}, v{a}, v{a+1}\nv_cvt_pk_bf16_f32 v{o+2*b+1}, v{a+2}, v{a+3}')
    def stores(task, k):
        sp, stt = ((28672, 256), (1024, 14336))[task]
        A(f's_add_u32 s19, s17, {k}\ns_mul_i32 s19, s19, {sp}\ns_add_u32 s19, s19, s44')
        if half: A(f's_cmp_eq_u32 s17, 14\ns_cselect_b32 s19, {OOB}, s19')
        for t in range(4):
            w.vmem(f'buffer_store_dwordx4 {vr(192+16*k+4*t,4)}, v{2+task}, s[4:7], s19 offen {st}')
            if t < 3: A(f's_add_u32 s19, s19, {stt}')
    def signal(task, keep, sfx='', off=0):
        lab = f'P_sig{task}{sfx}'
        A(f's_waitcnt vmcnt({keep})\ns_barrier\ns_cmp_lg_u32 s9, 0\ns_cbranch_scc1 {lab}')
        if task == 0:
            A(f'v_cmp_eq_u32 vcc, 0, v26\ns_cbranch_vccz P_zok{sfx}')
            zero_ready(A, f'P_zr{sfx}', tmo)
            A(f'P_zok{sfx}:')
        A(f's_lshl_b32 s19, {"s45" if task == 0 else "s16"}, 7\ns_add_u32 s19, s19, {(FB, FA)[task] + off}')
        if task and loc: A('s_lshl_b32 s11, s12, 11\ns_add_u32 s19, s19, s11')
        A('v_mov_b32 v1, 1\ns_mov_b64 exec, 1')
        A(f'buffer_atomic_add v1, off, s[4:7], s19 sc1\ns_mov_b64 exec, -1\n{lab}:')
    for task in range(2):
        if task == 0:
            w.wait(vm='B0'); A('s_barrier')
            tline(A, c2, 6, 0x4000)
            for t in range(4):
                for ks in range(8):
                    n = (t * 8 + ks) * 4
                    A(f'ds_read_b64_tr_b16 a[{n}:{n+1}], v{20+t} offset:{ks*4096}')
                    A(f'ds_read_b64_tr_b16 a[{n+2}:{n+3}], v{20+t} offset:{ks*4096+512}')
            A(f's_mul_i32 s44, s16, {14*28672}\ns_lshl_b32 s19, s13, 10\ns_add_u32 s44, s44, s19\ns_add_u32 s44, s44, {BF}')
            w.wait(vm='A00')
        else:
            A('s_waitcnt vmcnt(16)\ns_barrier')
            for t in range(4):
                for ks in range(8): A(f'ds_read_b128 {breg(t,ks)}, v{16+(ks&3)} offset:{t*8192 + (ks>>2)*256}')
            A(f's_mul_i32 s44, s16, {28*14336}\ns_mul_i32 s19, s13, {4*14336}\ns_add_u32 s44, s44, s19\ns_add_u32 s44, s44, {AF}')
            A(f's_mov_b32 s47, {f32(CSC)}')
        for ks in range(8):
            for b in range(2): read_a(0, b, ks)
        A('s_waitcnt lgkmcnt(0)'); w.vm = []
        if task == 0: A('s_barrier')
        pair(task, 0)
        A('s_waitcnt lgkmcnt(0)')
        stores(task, 0)
        if not half: A(f's_cmp_eq_u32 s9, 3\ns_cbranch_scc1 P_skip{task}')
        pair(task, 1)
        if half and task == 0:
            A('s_mov_b32 s45, s16')
            signal(0, 0, 'h', 2048)
        stores(task, 1)
        A(f'P_skip{task}:')
        tline(A, c2, 1 + 2 * task, 0x4000)
        dstamp(A, cfg, 10 + task, 100, 1)
        if task == 0:
            A('s_mov_b32 s45, s16')
            if loc:
                A('s_cmp_lt_u32 s10, 64\ns_cbranch_scc0 P_hasa')
                signal(0, 0, 'v')
                A('s_branch P_gdone\nP_hasa:\ns_sub_u32 s46, s10, 64\ns_mov_b32 s55, 0\nP_atask:')
                A('s_cmp_lt_u32 s46, 112\ns_cselect_b32 s12, 1, 0\ns_cselect_b32 s11, 0, 112\ns_sub_u32 s11, s46, s11')
                A('s_mul_i32 s16, s11, 9363\ns_lshr_b32 s16, s16, 16\ns_mul_i32 s13, s16, 7\ns_sub_u32 s13, s11, s13')
                derive()
            A('s_lshl_b32 s19, s13, 1\ns_lshr_b32 s33, s9, 1\ns_add_u32 s19, s19, s33\ns_lshl_b32 s19, s19, 18\ns_and_b32 s33, s9, 1\ns_lshl_b32 s33, s33, 15')
            A('s_add_u32 s19, s19, s33\ns_add_u32 s19, s19, s18')
            npre = cfg.get('npre', 1)
            tile_dma('s[60:63]', 's19', ('s34', LB), 'B1')
            if npre >= 2: load_a(1, 0)
            if npre >= 3: load_a(1, 1)
            if loc: A('s_cmp_lg_u32 s55, 0\ns_cbranch_scc1 P_nosig')
            signal(0, (8, 24, 40)[npre - 1])
            if loc: A('P_nosig:')
            if npre < 2: load_a(1, 0)
            if npre < 3: load_a(1, 1)
        else:
            signal(1, 0)
            if loc:
                A('s_add_u32 s46, s46, 160\ns_mov_b32 s55, 1\ns_cmp_lt_u32 s46, 224\ns_cbranch_scc1 P_atask\nP_gdone:')
        tline(A, c2, 2 + 2 * task, 0x4000)

def local_A(A, cfg):
    w = Wv(A, {})
    em = Emitter(A, [f'v{i}' for i in range(16, 40)])
    l = V('v0'); g = l >> 4; rho = l & 15
    srd(A, 56, 36, W_BYTES); srd(A, 60, 38, W_BYTES)
    for i in range(8):
        r = (l >> 5) + 2 * i
        em.emit(((r >> 2) * 8 + (r & 3)) * 8192 + ((l & 31) ^ r) * 16 - (i & 3) * 1024, f'v{8+i}')
    A('s_lshl_b32 s18, s10, 9\ns_lshl_b32 s35, s9, 15\ns_lshl_b32 s19, s9, 19\ns_add_u32 s19, s19, s18')
    for k in range(4):
        if k: A(f's_add_u32 s19, s19, {32768 if k & 1 else 262144 - 32768}')
        for i in range(8):
            if i % 4 == 0: A(f's_add_u32 m0, s35, {k*8192 + i*1024}')
            w.vmem(f'buffer_load_dwordx4 v{8+i}, s[56:59], s19 offen offset:{(i&3)*1024} lds', 'Q')
    em.emit(((rho >> 2) * 8 + (rho & 3)) * 8192 + g * 16, 'v1')
    A('s_lshr_b32 s11, s9, 1\ns_mul_i32 s34, s11, 7\ns_and_b32 s33, s9, 1\ns_lshl_b32 s12, s33, 2\ns_add_u32 s12, s12, s34\ns_add_u32 s34, s34, 3')
    breg = lambda tl, ks: wquad(tl * 7 + 4 + (ks >> 1), ks & 1) if ks < 6 else vr(64 + 8 * tl + 4 * (ks - 6), 4)
    def load_b(tl):
        if tl < 6: A(f's_add_u32 s19, s12, {tl>>1}\ns_lshl_b32 s19, s19, 18\ns_add_u32 s19, s19, s18' + ('\ns_add_u32 s19, s19, 32768' if tl & 1 else ''))
        else: A('s_lshl_b32 s19, s34, 18\ns_add_u32 s19, s19, s18\ns_lshl_b32 s11, s33, 15\ns_add_u32 s19, s19, s11')
        for ks in range(8): w.vmem(f'buffer_load_dwordx4 {breg(tl,ks)}, v1, s[60:63], s19 offen offset:{ks*64}', f'K{tl}')
    for tl in range(3): load_b(tl)
    for q in range(4): em.emit(rho * 512 + (((rho & 12) ^ (4 * q)) + (g ^ (rho & 3))) * 16, f'v{2+q}')
    w.wait(vm='Q')
    for tl in range(3, 7): load_b(tl)
    A(f's_barrier\ns_mov_b32 s47, {f32(CSC)}')
    tline(A, dict(cfg, tlreg=6), 5, 0x4000)
    groups = [(0, 1), (2, 3), (4, 5), (6,)]
    jobs = [(t, b, gr) for t in range(4) for b in range(2) for gr in groups]
    steps = [(jn, ks, bp) for jn in range(len(jobs)) for ks in range(8) for bp in range(2)]
    def addr_regs(t, b):
        o = 56 if (t * 2 + b) % 2 == 0 else 60
        return [o, o + 1, o + 2, o + 3]
    def set_addr(t, b):
        A(f's_add_u32 s11, s9, s10\ns_add_u32 s11, s11, {t}\ns_and_b32 s11, s11, 3\ns_lshl_b32 s11, s11, 15' + ('\ns_add_u32 s11, s11, 16384' if b else ''))
        for q, r in enumerate(addr_regs(t, b)): A(f'v_add_u32 v{r}, s11, v{2+q}')
    def read(n):
        jn, ks, bp = steps[n]; t, b, gr = jobs[jn]
        if ks == 0 and bp == 0 and gr == groups[0]: set_addr(t, b)
        w.ds(f'ds_read_b128 {vr(40 + 4*(n & 3), 4)}, v{addr_regs(t, b)[ks & 3]} offset:{bp*8192 + (ks>>2)*256}', f'R{n}')
    acc = lambda jn, bp, j: 8 + (jn & 1) * 16 + (bp * 2 + j) * 4
    def epilogue(jn):
        t, b, gr = jobs[jn]; ops = []
        for j, tl in enumerate(gr):
            dst = wquad(tl * 7 + t, b); base = int(dst[2:dst.index(':')])
            for bp in range(2):
                a = acc(jn, bp, j)
                ops += [f'v_mul_f32 v{a+r}, s47, v{a+r}' for r in range(4)]
                for k in range(2):
                    if dst[0] == 'v': ops.append(f'v_cvt_pk_bf16_f32 v{base+2*bp+k}, v{a+2*k}, v{a+2*k+1}')
                    else: ops += [f'v_cvt_pk_bf16_f32 v{6+k}, v{a+2*k}, v{a+2*k+1}', f'v_accvgpr_write_b32 a{base+2*bp+k}, v{6+k}']
        return ops
    for n in range(3): read(n)
    pend = []
    for n, (jn, ks, bp) in enumerate(steps):
        t, b, gr = jobs[jn]
        if n + 3 < len(steps): read(n + 3)
        w.wait(lg=f'R{n}')
        if jn < 4 and ks == 0 and bp == 0: w.wait(vm=f'K{gr[-1]}')
        first = ks == 0 and bp == 0
        for j, tl in enumerate(gr):
            A(mfma(vr(acc(jn, bp, j), 4), vr(40 + 4 * (n & 3), 4), breg(tl, ks), 0 if ks == 0 else None))
            if not first:
                for _ in range(2 if len(gr) == 2 else 3):
                    if pend: A(pend.pop(0))
        if first and jn:
            assert not pend
            pend = epilogue(jn - 1)
    assert not pend
    for op in epilogue(len(jobs) - 1): A(op)
    A('s_waitcnt vmcnt(0) lgkmcnt(0)\ns_barrier')
    tline(A, dict(cfg, tlreg=6), 6, 0x4000)

def gen_misc(A, cfg, tmo):
    st = 'sc1'
    c2 = dict(cfg, tlreg=1)
    l = V('v0'); g = l >> 4; rho = l & 15
    em = Emitter(A, [f'v{i}' for i in range(200, 230)])
    two = (cfg.get('locala', 1) and not cfg.get('fakeloc')) or cfg.get('amisc')
    A('s_mov_b32 s12, s10')
    srd(A, 20, 28, S * D * 2); srd(A, 24, 30, M * D * 2)
    A('P_pass:\ns_lshl_b32 s13, s12, 2\ns_add_u32 s13, s13, s9')
    tid = l + Sg('s9') * 64
    em.emit(tid * 16, 'v2')
    A(f'v_mov_b64 v[184:185], 0\nv_mov_b64 v[186:187], 0\ns_lshl_b32 s15, s12, 12\ns_add_u32 s16, s15, {HU1}')
    if two: A('s_cmp_ge_u32 s12, 16\ns_cbranch_scc1 P_noz')
    A(f'buffer_store_dwordx4 v[184:187], v2, s[4:7], s16 offen {st}')
    if two: A(f's_add_u32 s16, s16, 65536\nbuffer_store_dwordx4 v[184:187], v2, s[4:7], s16 offen {st}\nP_noz:')
    em.emit(rho * 896 + g * 16, 'v1')
    A('s_mul_i32 s14, s13, 14336')
    for p in range(14): A(f'buffer_load_dwordx4 {vr(4+4*p,4)}, v1, s[20:23], s14 offen offset:{p*64}')
    A('s_cmp_lt_u32 s12, 30\ns_cbranch_scc1 P_nomem')
    gi = (Sg('s12') - 30) * 256 + tid
    rr = gi & 15
    em.emit(sel_lt(gi, 448, (((rr >> 2) * 2 + (rr & 1)) * 448 + (gi >> 4) * 16 + ((rr >> 1) & 1) * 2) * 2, OOB), 'v3')
    for q in range(4): A(f'buffer_load_dword v{188+q}, v3, s[24:27], 0 offen offset:{q*8}')
    em.emit(sel_lt(gi, 448, gi * 16 + MS, OOB), 'v3')
    A('s_waitcnt vmcnt(0)')
    for q in range(4): A(f'v_min_u32 v{188+q}, -2, v{188+q}')
    A(f'buffer_store_dwordx4 v[188:191], v3, s[4:7], 0 offen {st}\ns_waitcnt vmcnt(1)\ns_branch P_memok\nP_nomem:')
    A('s_waitcnt vmcnt(0)\nP_memok:')
    if two:
        A('s_cmp_ge_u32 s12, 16\ns_cbranch_scc1 P_zdone')
        A(f's_add_u32 s11, s14, {64*14336}')
        for p in range(0, 14, 2): A(f'buffer_load_dword a0, v1, s[20:23], s11 offen offset:{p*64}')
    A('s_barrier\ns_cmp_lg_u32 s9, 0\ns_cbranch_scc1 P_zdone')
    A('v_mov_b32 v1, 1\ns_mov_b64 exec, 1\nbuffer_atomic_add v1, off, s[48:51], 0 offset:8 sc0 sc1\ns_waitcnt vmcnt(0)\ns_mov_b64 exec, -1')
    A(f'v_readfirstlane_b32 s11, v1\ns_cmp_lg_u32 s11, {15 if two else 31}\ns_cbranch_scc1 P_zdone\nv_mov_b32 v1, 1\nbuffer_store_dword v1, off, s[48:51], 0 offset:132 sc1\nP_zdone:')
    A('v_mov_b64 v[180:181], -1\nv_mov_b64 v[182:183], -1')
    A(f's_lshl_b32 s15, s12, 14\ns_add_u32 s15, s15, {MX}')
    for k in range(4):
        A(f'buffer_store_dwordx4 v[180:183], v2, s[4:7], s15 offen {st}' + ('\ns_add_u32 s15, s15, 4096' if k < 3 else ''))
    A(f's_lshl_b32 s15, s12, 12')
    A(f's_add_u32 s16, s15, {VM + (NSEG-1)*VM_SEG}\ns_cmp_lt_u32 s12, 28\ns_cselect_b32 s16, s16, {OOB}\nbuffer_store_dwordx4 v[180:183], v2, s[4:7], s16 offen {st}')
    A(f's_add_u32 s16, s15, {PX + (NSEG-1)*PX_SEG}\ns_cmp_lt_u32 s12, 10\ns_cselect_b32 s16, s16, {OOB}\nbuffer_store_dwordx4 v[180:183], v2, s[4:7], s16 offen {st}')
    A(f's_mov_b32 s16, {PS}\ns_cmp_lt_u32 s12, 16\ns_cselect_b32 s16, s16, {MS + 8192 - 16*4096}\ns_add_u32 s16, s16, s15')
    A(f's_cmp_ge_u32 s12, 22\ns_cbranch_scc1 P_nofill\nbuffer_store_dwordx4 v[180:183], v2, s[4:7], s16 offen {st}\nP_nofill:')
    nq = cfg.get('qktouch', 0)
    if nq:
        srd(A, 56, 36, W_BYTES); srd(A, 60, 38, W_BYTES)
        A('s_mul_i32 s11, s13, 28672\nv_lshlrev_b32 v192, 7, v0')
        for k in range(nq):
            A(f'buffer_load_dword a1, v192, s[{56 if k % 2 == 0 else 60}:{59 if k % 2 == 0 else 63}], s11 offen' + ('\ns_add_u32 s11, s11, 8192' if k % 2 else ''))
    for k in range(56):
        A(f'v_lshlrev_b32 v{64+2*k}, 16, v{4+k}\nv_and_b32 v{65+2*k}, 0xffff0000, v{4+k}')
    def allred(r):
        A(f'v_mov_b32 v{r+1}, v{r}\nv_permlane16_swap_b32 v{r}, v{r+1}\nv_add_f32 v{r}, v{r}, v{r+1}')
        A(f'v_mov_b32 v{r+1}, v{r}\nv_permlane32_swap_b32 v{r}, v{r+1}\nv_add_f32 v{r}, v{r}, v{r+1}')
    A('v_pk_add_f32 v[180:181], v[64:65], v[66:67]\nv_pk_add_f32 v[182:183], v[68:69], v[70:71]')
    for k in range(4, 56): A(f'v_pk_add_f32 v[{180+2*(k&1)}:{181+2*(k&1)}], v[{180+2*(k&1)}:{181+2*(k&1)}], v[{64+2*k}:{65+2*k}]')
    A('v_pk_add_f32 v[180:181], v[180:181], v[182:183]\nv_add_f32 v180, v180, v181')
    allred(180)
    A(f'v_mul_f32 v180, {f32(1/448)}, v180          ; mean')
    A('v_mov_b64 v[184:185], 0\nv_mov_b64 v[186:187], 0')
    for k in range(56):
        t = 188 + 2 * (k & 1); s_ = 184 + 2 * (k & 1)
        A(f'v_pk_add_f32 v[{t}:{t+1}], v[{64+2*k}:{65+2*k}], v[180:181] op_sel_hi:[1,0] neg_lo:[0,1] neg_hi:[0,1]')
        A(f'v_pk_fma_f32 v[{s_}:{s_+1}], v[{t}:{t+1}], v[{t}:{t+1}], v[{s_}:{s_+1}]')
    A('v_pk_add_f32 v[184:185], v[184:185], v[186:187]\nv_add_f32 v184, v184, v185')
    allred(184)
    A(f'v_mul_f32 v184, {f32(1/448)}, v184          ; variance')
    rnd = lambda r: A(f'v_cvt_pk_bf16_f32 v{r}, v{r}, v{r}\nv_and_b32 v{r}, 0xffff0000, v{r}')
    rnd(180); rnd(184)
    A(f'v_add_f32 v184, {f32(1e-5)}, v184'); rnd(184)
    A('v_sqrt_f32 v184, v184'); rnd(184)
    A('v_rcp_f32 v184, v184')
    em.emit(l * 16, 'v2')
    if XF: A(f's_add_u32 s14, s14, {XF}')
    for k in range(56):
        a = 64 + 2 * k
        A(f'v_pk_add_f32 v[{a}:{a+1}], v[{a}:{a+1}], v[180:181] op_sel_hi:[1,0] neg_lo:[0,1] neg_hi:[0,1]')
        A(f'v_cvt_pk_bf16_f32 v{a}, v{a}, v{a+1}\nv_and_b32 v{a+1}, 0xffff0000, v{a}\nv_lshlrev_b32 v{a}, 16, v{a}')
        A(f'v_pk_mul_f32 v[{a}:{a+1}], v[{a}:{a+1}], v[184:185] op_sel_hi:[1,0]')
        A(f'v_cvt_pk_bf16_f32 v{4+k}, v{a}, v{a+1}')
        if k % 4 == 3:
            p = k >> 2
            if p and p % 4 == 0: A('s_add_u32 s14, s14, 4096')
            A(f'buffer_store_dwordx4 {vr(4+4*p,4)}, v2, s[4:7], s14 offen offset:{(p%4)*1024} {st}')
    if two: A('s_add_u32 s12, s12, 16\ns_cmp_lt_u32 s12, 32\ns_cbranch_scc1 P_pass')
    A('s_waitcnt vmcnt(0)\ns_barrier\ns_cmp_lg_u32 s9, 0\ns_cbranch_scc1 P_xdone')
    zero_ready(A, 'P_zr2', tmo)
    A(f's_mov_b32 s19, {FX}\nv_mov_b32 v1, 1\ns_mov_b64 exec, 1\nbuffer_atomic_add v1, off, s[4:7], s19 sc1\ns_mov_b64 exec, -1\nP_xdone:')
    tline(A, c2, 2, 0x4000)
```

```python
from asmdsl import Asm
from expr import X, V, Sg, Emitter, ev, sel_lt, wrap
from layout import *
import numpy as np

SRD = 's[4:7]'
def vr(a, n=1): return f'v{a}' if n == 1 else f'v[{a}:{a+n-1}]'
def wreg(o):
    return f'a[{8*o}:{8*o+7}]' if o < 32 else f'v[{120+8*(o-32)}:{127+8*(o-32)}]'
def wquad(o, b):
    return f'a[{8*o+4*b}:{8*o+4*b+3}]' if o < 32 else f'v[{120+8*(o-32)+4*b}:{123+8*(o-32)+4*b}]'

class Wv:
    def __init__(self, A, cfg):
        self.A = A; self.vm = []; self.lg = []; self.cfg = cfg; self.nst = 0
    def __call__(self, t): self.A(t)
    def vmem(self, t, tag=None): self.A(t); self.vm.append(tag)
    def ds(self, t, tag=None): self.A(t); self.lg.append(tag)
    def wait(self, vm=None, lg=None):
        parts = []
        if vm is not None and vm in self.vm:
            i = len(self.vm) - 1 - self.vm[::-1].index(vm)
            parts.append(f'vmcnt({len(self.vm)-1-i})'); self.vm = self.vm[i+1:]
        if lg is not None and lg in self.lg:
            i = len(self.lg) - 1 - self.lg[::-1].index(lg)
            n = min(len(self.lg) - 1 - i, 15)
            parts.append(f'lgkmcnt({n})'); self.lg = self.lg[i+1:]
        if parts: self.A('s_waitcnt ' + ' '.join(parts))
    def wait_all_lg(self): self.A('s_waitcnt lgkmcnt(0)'); self.lg = []
    def wait_all_vm(self): self.A('s_waitcnt vmcnt(0)'); self.vm = []
    def stamp(self, name=None):
        if self.cfg.get('stamps'):
            assert self.nst < 12
            self.A(f's_memtime s[{60+2*self.nst}:{61+2*self.nst}]'); self.nst += 1
    def dump_stamps(self, lab):
        if not self.cfg.get('stamps'): return
        A = self.A
        A(f's_waitcnt lgkmcnt(0)\ns_cmp_lg_u32 s8, 6\ns_cbranch_scc1 {lab}_nocal')
        A(f's_memrealtime s[96:97]\ns_waitcnt lgkmcnt(0)\n{lab}_cal:\ns_memrealtime s[98:99]\ns_memtime s[100:101]\ns_waitcnt lgkmcnt(0)\ns_cmp_eq_u32 s96, s98\ns_cbranch_scc1 {lab}_cal')
        for k in range(12): A(f's_mov_b32 s{84+k}, 0')
        A(f'{lab}_nocal:\ns_cmp_lt_u32 s8, 8\ns_cbranch_scc1 {lab}_nodump\ns_cmp_gt_u32 s8, 57\ns_cbranch_scc1 {lab}_nodump')
        for k in range(self.nst): A(f's_sub_u32 s11, s{60+2*k}, s100\ns_add_u32 s{84+k}, s{84+k}, s11')
        A(f's_cmp_lg_u32 s8, 57\ns_cbranch_scc1 {lab}_nodump')
        A('s_lshl_b32 s11, s3, 2\ns_add_u32 s11, s11, s9\ns_lshl_b32 s11, s11, 6')
        A(f's_add_u32 s11, s11, {DBG}')
        A(f'v_mov_b32 v0, s98\nv_mov_b32 v2, 0x4000\nbuffer_store_dword v0, v2, {SRD}, s11 offen')
        for k in range(self.nst):
            A(f'v_mov_b32 v0, s{84+k}\nv_mov_b32 v1, {4*k}\nbuffer_store_dword v0, v1, {SRD}, s11 offen')
        A(f's_waitcnt vmcnt(0)\n{lab}_nodump:')

def tline(A, cfg, k, base=0, idx='s3'):
    if not cfg.get('tl'): return
    lab = A.newlabel(f'TL{base}')
    A(f's_cmp_lg_u32 s9, 0\ns_cbranch_scc1 {lab}')
    A(f's_memrealtime s[96:97]\ns_lshl_b32 s98, {idx}, 6\ns_add_u32 s98, s98, {DBG + 0x8000 + base + 4*k}\ns_waitcnt lgkmcnt(0)')
    A(f'v_accvgpr_write_b32 a255, s96' if False else f'v_mov_b32 v{cfg.get("tlreg", 95)}, s96')
    A(f'buffer_store_dword v{cfg.get("tlreg", 95)}, off, {SRD}, s98')
    if cfg.get('tlclk'):
        A(f's_memtime s[96:97]\ns_waitcnt lgkmcnt(0)\nv_mov_b32 v{cfg.get("tlreg", 95)}, s96\nbuffer_store_dword v{cfg.get("tlreg", 95)}, off, {SRD}, s98 offset:32')
    A(f'{lab}:')

def dstamp(A, cfg, k, slot, reg):
    if not cfg.get('ds'): return
    lab = A.newlabel('DS')
    A(f's_cmp_lg_u32 s9, 0\ns_cbranch_scc1 {lab}\ns_cmp_lg_u32 s3, {slot}\ns_cbranch_scc1 {lab}')
    A(f's_load_dwordx2 s[96:97], s[0:1], 104\ns_memrealtime s[94:95]\ns_waitcnt lgkmcnt(0)\ns_mov_b32 s98, 256\ns_mov_b32 s99, 0x20000')
    A(f's_and_b32 s94, s94, 0xfffff\nv_mov_b32 v{reg}, s94\nbuffer_store_dword v{reg}, off, s[96:99], 0 offset:{4*k}\n{lab}:')

def dretry(A, cfg):
    if not cfg.get('ds'): return
    A('s_load_dwordx2 s[96:97], s[0:1], 104\ns_waitcnt lgkmcnt(0)\ns_mov_b32 s98, 256\ns_mov_b32 s99, 0x20000')
    A('v_mov_b32 v3, s20\ns_mov_b64 exec, 1\nbuffer_atomic_add v3, off, s[96:99], 0 offset:52 sc1\ns_mov_b64 exec, -1')

def smf(acc, a, b, idx): return f'v_smfmac_f32_16x16x64_bf16 {vr(acc,4)}, {a}, {b}, {idx}'

KM = 3
MREG = [16, 20, 24, 0, 4, 8, 12]
ACC = [28 + 4 * t for t in range(7)]
vIDX, vL16, vHUp, vHUs = 'v119', 'v118', 'v117', 'v116'
vKA = ['v115', 'v114', 'v113', 'v112', 'v111', 'v110', 'v109']
sSTEP, sW, sR = 's8', 's9', 's10'
sKK = [f's{12+t}' for t in range(7)]
sSPIN, sRETRY, sS1 = 's19', 's20', 's31'
sMO = ['s36', 's37', 's38']
SPIN_MAX = 0x80000
L_K = 131072

def common_consts(em, A, lab, rot, swap=False):
    l = V('v0')
    em.emit(l & 63, 'v0')
    em.emit(sel_lt(l & 2, 1, 0x44444444, 0xEEEEEEEE), vIDX)
    em.emit(l * 16, vL16)
    if swap: A(f's_xor_b32 s33, {sW}, 2\ns_lshl_b32 s33, s33, 1')
    else: A(f's_lshl_b32 s33, {sW}, 1\ns_add_u32 s33, s33, {rot}')
    for _ in range(3): A('s_cmp_ge_u32 s33, 7\ns_cselect_b32 s35, 7, 0\ns_sub_u32 s33, s33, s35')
    for t in range(7):
        A(f's_add_u32 s34, s33, {t}\ns_cmp_ge_u32 s34, 7\ns_cselect_b32 s35, 7, 0\ns_sub_u32 s34, s34, s35\ns_lshl_b32 {sKK[t]}, s34, 10')
    em.emit(L_K + l * 16, 'v1')
    for t in range(7): A(f'v_add_u32 {vKA[t]}, {sKK[t]}, v1')
    A(f's_cmp_lg_u32 {sW}, {1 if swap else 3}\ns_cbranch_scc1 {lab}_w3skip\nv_add_u32 {vKA[1]}, 7168, v1\n{lab}_w3skip:')

def step_consts(A, solo=False):
    A(f's_and_b32 s11, {sSTEP}, {0 if solo else 3}\ns_lshl_b32 s33, s11, 13\ns_add_u32 s33, s33, {MS}')
    for t in range(3): A(f's_add_u32 {sMO[t]}, s33, {sKK[t]}')
    A(f's_add_u32 {sS1}, {sSTEP}, 1')

def align(A, cfg, key):
    a = cfg.get(key)
    if a:
        A(f'.p2align {a[0]}')
        for _ in range(a[1]): A('s_nop 0')

def poll(w, lab, vp, sval, tmo, nl):
    w(f'v_mov_b32 {vp}, 0')
    if w.cfg.get('pollmask', 1) and nl < 64: w(f's_mov_b32 exec_lo, {hex((1 << nl) - 1) if nl < 32 else -1}\ns_mov_b32 exec_hi, 0')
    align(w.A, w.cfg, 'apoll')
    w(f'{lab}:')
    if w.cfg.get('pollnop'): w(f's_nop {w.cfg["pollnop"]-1}')
    w(f'buffer_load_dword {vp}, {vHUp}, {SRD}, 0 offen sc1')
    w(f's_waitcnt vmcnt({w.cfg.get("polldepth", 40)})')
    w(f'v_cmp_gt_u32 vcc, {sval}, {vp}')
    w(f's_sub_u32 {sSPIN}, {sSPIN}, 1\ns_cbranch_scc1 {tmo}')
    w(f's_cbranch_vccnz {lab}')
    if w.cfg.get('pollmask', 1) and nl < 64: w('s_mov_b64 exec, -1')
    w.vm = []

def zero(w, a, n):
    for i in range(a, a + n, 2): w(f'v_mov_b64 {vr(i,2)}, 0')

def sentinel_check(w, regs, tmp):
    w(f'v_max3_u32 {tmp}, v{regs[0]}, v{regs[1]}, v{regs[2]}')
    r = regs[3:]
    while len(r) >= 2:
        w(f'v_max3_u32 {tmp}, {tmp}, v{r[0]}, v{r[1]}'); r = r[2:]
    if r: w(f'v_max_u32 {tmp}, {tmp}, v{r[0]}')
    w(f'v_cmp_eq_u32 vcc, -1, {tmp}')

def weight_stream(w, fill, comb_write, lab, tmp, tmo=None, mpoll=False, early=None):
    cfg = w.cfg; ND = cfg.get('nd', 2)
    align(w.A, cfg, 'aB')
    w(f'{lab}_mload:')
    w.vm = []; w.lg = []
    if mpoll:
        assert ND == 2
        for t in range(ND):
            w(f'buffer_load_dwordx4 {vr(MREG[t],4)}, {vL16}, {SRD}, {sMO[t]} offen sc1')
        if cfg.get('mnop'): w(f's_nop {cfg["mnop"]-1}')
        w(f's_waitcnt vmcnt({cfg.get("bdepth", 0)})')
        sentinel_check(w, list(range(MREG[0], MREG[0] + 8)), f'v{tmp}')
        w(f's_sub_u32 {sSPIN}, {sSPIN}, 1\ns_cbranch_scc1 {tmo}')
        w(f's_cbranch_vccnz {lab}_mload')
        w.vm = ['MP']
        if early: early()
    else:
        for t in range(ND):
            w(f's_setprio {ND-1-t}')
            w.vmem(f'buffer_load_dwordx4 {vr(MREG[t],4)}, {vL16}, {SRD}, {sMO[t]} offen sc1', f'M{t}')
        if early: early()
    order = [(tl, t) for t in range(KM) for tl in range(7)] + [(tl, t) for tl in range(7) for t in range(KM, 7)]
    pre = {}; mem = {}; val = {}
    ad = lambda d, n, f: d.setdefault(n, []).append(f)
    w1 = 1 if mpoll else cfg.get('w1', 3)
    for t, s0 in ((0, 0), (1, w1)):
        m = MREG[t]
        ad(pre, s0, lambda t=t: w.wait(vm=f'M{t}'))
        ad(mem, s0, lambda t=t, m=m: w.ds(f'ds_write_b128 {vKA[t]}, {vr(m,4)}'))
    if mpoll:
        bs = w1 + cfg.get('mbar', 4)
        def sync():
            w.wait_all_lg(); w('s_barrier')
        ad(pre, 20, lambda: w.wait(vm='MP'))
    else:
        m0, m1, m2 = MREG[0], MREG[1], MREG[2]
        ad(val, 1, lambda: w(f'v_max3_u32 v{tmp}, v{m0}, v{m0+1}, v{m0+2}'))
        c = w1 + 1
        ad(val, c, lambda: w(f'v_max3_u32 v{tmp}, v{tmp}, v{m0+3}, v{m1}'))
        ad(val, c + 1, lambda: w(f'v_max3_u32 v{tmp}, v{tmp}, v{m1+1}, v{m1+2}'))
        if ND == 2:
            ad(val, c + 2, lambda: w(f'v_max_u32 v{tmp}, v{tmp}, v{m1+3}'))
            c += 3
        else:
            ad(pre, c + 2, lambda: w.wait(vm='M2'))
            ad(val, c + 2, lambda: w(f'v_max3_u32 v{tmp}, v{tmp}, v{m1+3}, v{m2}'))
            ad(val, c + 3, lambda: w(f'v_max3_u32 v{tmp}, v{tmp}, v{m2+1}, v{m2+2}'))
            ad(val, c + 4, lambda: w(f'v_max_u32 v{tmp}, v{tmp}, v{m2+3}'))
            c += 5
        ad(val, c, lambda: w(f'v_cmp_eq_u32 vcc, -1, v{tmp}'))
        bs = c + cfg.get('bdelay', 2)
        def sync():
            w(f's_cbranch_vccnz {lab}_mretry')
            w.wait_all_lg(); w('s_barrier')
    ad(mem, bs, sync)
    n = 0
    for t in range(ND, 7):
        m = MREG[t]
        ad(mem, bs + n, lambda t=t, m=m: w.ds(f'ds_read_b128 {vr(m,4)}, {vKA[t]}', f'M{t}'))
        n += 1
    per = 7 - KM; base = 7 * KM
    for tl in range(6):
        s0 = base + per * (tl + 1) + 1
        ad(val, s0, lambda tl=tl: w(f'v_add_f32 v{tmp}, v{ACC[tl]}, v{ACC[tl]+2}'))
        ad(val, s0 + 1, lambda tl=tl: w(f'v_add_f32 v{tmp+1}, v{ACC[tl]+1}, v{ACC[tl]+3}'))
        ad(val, s0 + 2, lambda: w(f'v_cvt_pk_bf16_f32 v{tmp+2}, v{tmp}, v{tmp+1}'))
        ad(mem, s0 + 3, lambda tl=tl: comb_write(tl, f'v{tmp+2}'))
    fl, fv = fill(bs + n)
    for k, fs in fv.items():
        for f in fs: ad(val, k, f)
    if cfg.get('stamps'):
        for k in cfg.get('bfine', [0]): ad(fl, k, lambda: w.stamp())
    for n, (tl, t) in enumerate(order):
        for f in pre.get(n, []): f()
        w.wait(vm=f'M{t}', lg=f'M{t}')
        w('s_nop 3' if cfg.get('nov') else smf(ACC[tl], vr(MREG[t], 4), wreg(tl * 7 + t), vIDX))
        for f in mem.get(n, []): f()
        for f in fl.get(n, []): f()
        for f in val.get(n, []): f()
    assert all(k < 49 for k in fl) and all(k < 49 for k in val)
    return [f for k in sorted(mem) if k >= 49 for f in mem[k]]

MREGA = [12, 16, 20, 24, 0, 4, 8]
def a_consts(em, A):
    l = V('v0')
    em.emit(l & 63, 'v0')
    em.emit(sel_lt(l & 2, 1, 0x44444444, 0xEEEEEEEE), vIDX)
    em.emit(l * 16, vL16)
    for t in range(4): A(f's_add_u32 s34, {sW}, {sR}\ns_add_u32 s34, s34, {t}\ns_and_b32 s34, s34, 3\ns_lshl_b32 {sKK[t]}, s34, 10')
    for t in range(4, 7): A(f's_movk_i32 {sKK[t]}, {t*1024}')
    em.emit(L_K + l * 16, vKA[4])
    for t in range(4): A(f'v_add_u32 {vKA[t]}, {sKK[t]}, {vKA[4]}')
    A(f's_lshl_b32 s29, {sW}, 10\ns_add_u32 s29, s29, 4096')

def a_step_consts(A, solo=False):
    A(f's_and_b32 s11, {sSTEP}, {0 if solo else 3}\ns_lshl_b32 s33, s11, 13\ns_add_u32 s33, s33, {MS}')
    A(f's_add_u32 s36, s33, {sKK[0]}\ns_add_u32 s37, s33, {sKK[1]}\ns_add_u32 s38, s33, s29\ns_add_u32 s39, s29, {L_K}')
    A(f's_add_u32 {sS1}, {sSTEP}, 1')

def a_stream(w, fill, comb_write, lab, tmp, tmo):
    cfg = w.cfg; MR = MREGA; KMA = 4; NE = cfg.get('ne', 2)
    align(w.A, cfg, 'aA')
    w(f'{lab}_mload:')
    w.vm = []; w.lg = []
    for t in range(NE): w(f'buffer_load_dwordx4 {vr(MR[t],4)}, {vL16}, {SRD}, s{36+t} offen sc1')
    if cfg.get('mnop'): w(f's_nop {cfg["mnop"]-1}')
    w(f's_waitcnt vmcnt({0 if cfg.get("hum") else cfg.get("mdepth", 2)})')
    if cfg.get('hum') == 1: pass
    elif cfg.get('poll1'):
        assert NE == 1 and cfg.get('nanchk', 1)
        w(f'v_cmp_eq_u32 vcc, -1, v{MR[0]+3}')
    else: sentinel_check(w, list(range(MR[0], MR[0] + 4 * NE)), f'v{tmp}')
    if cfg.get('hum') != 1:
        w(f's_sub_u32 {sSPIN}, {sSPIN}, 1\ns_cbranch_scc1 {tmo}')
        w(f's_cbranch_vccnz {lab}_mload')
    w(f'{lab}_again:')
    order = [(tl, t) for t in range(KMA) for tl in range(7)] + [(tl, t) for tl in range(7) for t in range(KMA, 7)]
    pre = {}; mem = {}; val = {}
    ad = lambda d, n, f: d.setdefault(n, []).append(f)
    ew = cfg.get('ew', 128)
    if ew == 128:
        if NE == 1: w.ds(f'ds_write_b128 {vKA[0]}, {vr(MR[0],4)}')
        else: ad(mem, 0, lambda: w.ds(f'ds_write_b128 {vKA[0]}, {vr(MR[0],4)}'))
    elif ew == 64:
        for k in range(2): ad(mem, k, lambda k=k: w.ds(f'ds_write_b64 {vKA[0]}, {vr(MR[0]+2*k,2)} offset:{8*k}'))
    else:
        for k in range(4): ad(mem, k, lambda k=k: w.ds(f'ds_write_b32 {vKA[0]}, v{MR[0]+k} offset:{4*k}'))
    bs = cfg.get('ebar', 2 if NE == 1 else 8)
    ad(mem, bs, lambda: (w.wait_all_lg(), w('s_barrier')))
    for t in range(NE, 4):
        ad(mem, bs + (t - NE), lambda t=t: w.ds(f'ds_read_b128 {vr(MR[t],4)}, {vKA[t]}', f'M{t}'))
    l0 = cfg.get('lslot', 3); lb = cfg.get('lbar', 17)
    ad(mem, l0 - 1, lambda: w('s_mov_b32 m0, s39'))
    ad(mem, l0, lambda: w.vmem(f'buffer_load_dwordx4 {vL16}, {SRD}, s38 offen sc1 lds', 'L'))
    ad(mem, lb, lambda: (w.wait(vm='L'), w('s_barrier')))
    for t in (4, 5, 6): ad(mem, lb + (t - 4) // 2, lambda t=t: w.ds(f'ds_read_b128 {vr(MR[t],4)}, {vKA[4]} offset:{t*1024}', f'M{t}'))
    nanchk = cfg.get('nanchk', 1)
    if nanchk:
        cs = lb + 1
        ad(val, 34, lambda: w(f'v_cmp_u_f32 vcc, v{tmp}, v{tmp+1}'))
        ad(mem, 36, lambda: w(f's_cbranch_vccnz {lab}_lretry\n{lab}_lok:'))
    else:
        lc = lb + 3
        w.lretry_state = None
        ad(pre, lc + 1, lambda: w.wait(lg='M5'))
        ad(val, lc + 1, lambda: w(f'v_max3_u32 v{tmp}, v0, v1, v2'))
        ad(val, lc + 2, lambda: w(f'v_max3_u32 v{tmp}, v{tmp}, v3, v4'))
        ad(pre, lc + 3, lambda: w.wait(lg='M6'))
        ad(val, lc + 3, lambda: w(f'v_max3_u32 v{tmp}, v{tmp}, v5, v6'))
        ad(val, lc + 4, lambda: w(f'v_max3_u32 v{tmp}, v{tmp}, v7, v8'))
        ad(val, lc + 5, lambda: w(f'v_max3_u32 v{tmp}, v{tmp}, v9, v10'))
        ad(val, lc + 6, lambda: (w(f'v_max_u32 v{tmp}, v{tmp}, v11'), w(f'v_cmp_eq_u32 vcc, -1, v{tmp}')))
        cs = lc + 7
        assert cs <= 27
        ad(mem, cs, lambda: w(f's_cbranch_vccnz {lab}_lretry\n{lab}_lok:'))
    per = 7 - KMA; base = 7 * KMA
    for tl in range(6):
        s0 = base + per * (tl + 1) + 1
        o = tmp + 2 if not (cfg.get('tw2') and tl % 2 == 0) else 97
        ad(val, s0, lambda tl=tl: w(f'v_add_f32 v{tmp}, v{ACC[tl]}, v{ACC[tl]+2}'))
        ad(val, s0 + 1, lambda tl=tl: w(f'v_add_f32 v{tmp+1}, v{ACC[tl]+1}, v{ACC[tl]+3}'))
        ad(val, s0 + 2, lambda o=o: w(f'v_cvt_pk_bf16_f32 v{o}, v{tmp}, v{tmp+1}'))
        if not cfg.get('tw2'): ad(mem, s0 + 3, lambda tl=tl, o=o: comb_write(tl, f'v{o}'))
        elif tl % 2: ad(mem, s0 + 3, lambda tl=tl, o=o: comb_write(tl, f'v97, v{o}'))
    fl, fv = fill(bs + 4 - NE, cs + 1)
    for k, fs in fv.items():
        for f in fs: ad(val, k, f)
    if cfg.get('stamps'):
        for k in cfg.get('fine', [0]): ad(fl, k, lambda: w.stamp())
    for n, (tl, t) in enumerate(order):
        for f in pre.get(n, []): f()
        w.wait(lg=f'M{t}')
        w('s_nop 3' if cfg.get('noa') else smf(ACC[tl], vr(MR[t], 4), wreg(tl * 7 + t), vIDX))
        for f in mem.get(n, []): f()
        for f in fl.get(n, []): f()
        for f in val.get(n, []): f()
    assert all(k < 49 for k in fl)
    return [f for k in range(49, 56) for f in mem.get(k, []) + val.get(k, [])]

def l_retry(w, lab, tmp, tmo):
    if w.cfg.get('nanchk', 1):
        w(f'{lab}_lretry:')
        sentinel_check(w, list(range(0, 28 if (w.cfg.get('poll1') or w.cfg.get('hum') == 1) else 12)), f'v{tmp+3}')
        w(f'v_mov_b32 v{tmp+3}, {sS1}\ns_cbranch_vccz {lab}_lok')
        w(f's_add_u32 {sRETRY}, {sRETRY}, 1\ns_sub_u32 {sSPIN}, {sSPIN}, 16\ns_cbranch_scc1 {tmo}')
        w('s_waitcnt vmcnt(0) lgkmcnt(0)\ns_barrier')
        zero(w, 28, 28)
        if w.cfg.get('poll1') or w.cfg.get('hum') == 1:
            w(f'buffer_load_dwordx4 {vr(MREGA[0],4)}, {vL16}, {SRD}, s36 offen sc1\ns_waitcnt vmcnt(0)')
        w(f's_branch {lab}_again')
        return
    w(f'{lab}_lretry:\ns_mov_b32 s33, m0\n{lab}_lretry2:')
    w(f's_add_u32 {sRETRY}, {sRETRY}, 1\ns_barrier\ns_mov_b32 m0, s39')
    w(f's_sub_u32 {sSPIN}, {sSPIN}, 4\ns_cbranch_scc1 {tmo}')
    w(f'buffer_load_dwordx4 {vL16}, {SRD}, s38 offen sc1 lds\ns_waitcnt vmcnt(0)\ns_barrier')
    for t in (4, 5, 6): w(f'ds_read_b128 {vr(MREGA[t],4)}, {vKA[4]} offset:{t*1024}')
    w('s_waitcnt lgkmcnt(0)')
    sentinel_check(w, list(range(0, 12)), f'v{tmp}')
    w(f's_cbranch_vccnz {lab}_lretry2\ns_mov_b32 m0, s33\ns_branch {lab}_lok')

def m_retry(w, lab, tmo):
    w(f'{lab}_mretry:')
    w(f's_add_u32 {sRETRY}, {sRETRY}, 1')
    w(f's_sub_u32 {sSPIN}, {sSPIN}, 8\ns_cbranch_scc1 {tmo}\ns_waitcnt vmcnt(0) lgkmcnt(0)')
    zero(w, 28, 28)
    w(f's_branch {lab}_mload')

def code_touch(A, start, end, sidx, shift, va, vd, sr=56):
    lab = A.newlabel('CT')
    A(f's_getpc_b64 s[{sr}:{sr+1}]\n{lab}:\ns_add_u32 s{sr}, s{sr}, {start}-{lab}\ns_addc_u32 s{sr+1}, s{sr+1}, ({start}-{lab})>>32')
    A(f's_mov_b32 s{sr+2}, {end}-{start}\ns_mov_b32 s{sr+3}, 0x20000\ns_lshl_b32 s11, {sidx}, {shift+6}\nv_lshlrev_b32 {va}, {shift}, v0')
    A(f'buffer_load_dword {vd}, {va}, s[{sr}:{sr+3}], s11 offen')

def wait_lanes(A, lab, addr, target, tmo):
    em = Emitter(A, [f'v{i}' for i in range(4, 13)])
    A(f's_cmp_lg_u32 s9, 0\ns_cbranch_scc1 {lab}_go')
    em.emit(addr, 'v1'); em.emit(target, 'v2')
    A(f's_mov_b32 s19, 0x40000\n{lab}:\nbuffer_load_dword v3, v1, {SRD}, 0 offen sc1')
    A(f's_sub_u32 s19, s19, 1\ns_cbranch_scc1 {tmo}\ns_waitcnt vmcnt(0)\nv_cmp_gt_u32 vcc, v2, v3\ns_cbranch_vccnz {lab}')
    A(f'{lab}_go:\ns_barrier')

def emit_modes(A, cfg, lab, loop):
    if cfg.get('modes', 2) == 1:
        loop(lab, cfg.get('st', '')); return
    A(f's_cmp_lg_u32 s30, 0\ns_cbranch_scc1 {lab}_slow')
    loop(lab + 'x', '')
    A(f'{lab}_slow:')
    loop(lab + 'y', 'sc1')

def load_weights(w, addr_of, spare='v102', slots=range(7), between=None):
    n = 0
    for bs_ in ([(0,), (1,)] if between else [(0, 1)]):
      if bs_ == (1,): between(1)
      for tl in range(7):
        for t in slots:
            for b in bs_:
                va, pre = addr_of(tl, t, b)
                w(pre)
                w(f'buffer_load_dwordx4 {wquad(tl*7+t, b)}, {va}, {SRD}, s11 offen {w.cfg.get("wfl", "")}')
                n += 1
                if between and n == 24: between(0)
                if n % 16 == 0: w(f's_waitcnt vmcnt({w.cfg.get("wdepth", 32)})')
                if n == (w.cfg.get('midn', 64) if len(slots) == 7 else 16) and w.cfg.get('mid_weights'): w.cfg['mid_weights'](spare)

A_X, A_T, A_R = 0, 65536, 77824
Z0, Z1, SACC, TSP0, TSP1, TMP = 56, 12, 80, 36, 40, 92
aKR, aKR3, aTW, aTW6, aTR, aXR, aRW, aRR = 'v108', 'v107', 'v106', 'v105', 'v104', 'v103', 'v102', 'v101'
aP, aKR2, aPOLL = 'v100', 'v99', 'v96'
sQ = ['s21', 's22', 's23', 's24']
sXS, sXL, sPW, sPR, sWL, sMASK = 's25', 's26', 's27', 's28', 's32', 's[52:53]'

def a_exprs(R128=False, TT=False):
    l = V('v0'); w = Sg(sW); h = Sg(sR)
    g = l >> 4; rho = l & 15
    half = (rho >> 1) & 1
    q0 = (w >> 1) * 7 + (w & 1) * 4; q3 = (w >> 1) * 7 + 3
    e = {}
    i = rho & 7
    kr = L_K + ((g >> 1) * 16 + (i >> 1) * 4 + (i & 1)) * 16 + (g & 1) * 8
    e[aKR] = kr + q0 * 512
    e[aKR3] = kr + q3 * 512
    e[aKR2] = kr + q0 * 512 + 1024
    tw = A_T + w * 3072 + (rho >> 2) * 192 + (rho & 1) * 32 + g * 8 + half * 4
    e[aTW] = tw
    e['v98'] = tw + 1536
    e[aTW6] = tw + 2304 + (w & 1) * 64
    e[aTR] = A_T + w * 3072 + g * 384 + ((l >> 3) & 1) * 64 + ((l >> 2) & 1) * 32 + (l & 3) * 8
    e[aXR] = A_X + w * 8192 + l * 16
    e[aRW] = A_R + w * 1536 + g * 384 + rho * 4
    if R128 == 1: e[aRW] = A_R + g * 1536 + (rho >> 1) * 32 + (w ^ g) * 8 + (rho & 1) * 4
    rr = l >> 5; pi = l & 31; pc = pi.min(19)
    e[aRR] = A_R + (w * 2 + rr) * 192 + sel_lt(pc, 4, pc * 8, pc * 8 + 32)
    if R128 == 2: e[aRR] = A_R + (sel_lt(pc, 4, 0, ((pc - 4) >> 3) + 1) * 2 + rr) * 288 + (w * 16 + sel_lt(pc, 4, pc, (pc - 4) & 7) * 2) * 4
    if R128 == 3: e[aRR] = sel_lt(pi, 20, A_R + (sel_lt(pc, 4, 0, ((pc - 4) >> 3) + 1) * 2 + rr) * 288 + (w * 16 + sel_lt(pc, 4, pc, (pc - 4) & 7) * 2) * 4, A_R + 256)
    if R128 == 1: e[aRR] = A_R + (w * 2 + rr) * 768 + sel_lt(pc, 4, pc * 32, pc * 32 + 128)
    if TT:
        al = (l >> 2) & 3; c = l & 3
        tb = A_T + w * 4096 + c * 64 + (g & 1) * 32 + (al & 1) * 8
        e[aTR] = tb + ((g >> 1) * 2 + (al >> 1)) * 272
        e[aTW6] = tb + ((g >> 1) * 2 + ((al >> 1) ^ ((g >> 1) & w & 1))) * 272 + 4 * 272
        e[aTW] = (g * 16 + (rho & 12) + (rho & 1) * 2 + ((rho >> 1) & 1)) * 16
        rb_ = A_T + 2304 + (sel_lt(pc, 4, 0, ((pc - 4) >> 3) + 1) * 2 + rr) * 288 + (w * 16 + sel_lt(pc, 4, pc, (pc - 4) & 7) * 2) * 4
        e[aRR] = sel_lt(pi, 20, rb_, A_T + 2304 + 256) if R128 == 3 else rb_
        e[aRW] = A_T + 4032 + w * 4 + l * 0
        e['v98'] = l * 0 + (A_T + 4032)
    row = w * 2 + rr
    rho_of = lambda hf: (row >> 1) * 4 + hf * 2 + (row & 1)
    pm = ((h >> 3) + 8) * 1024 + (((h >> 1) & 3) * 16 + rho_of(pi & 1)) * 16 + ((h & 1) * 2 + ((pi >> 1) & 1)) * 4
    t0 = (pc - 4) * 2
    px = (h >> 1) * 1024 + (((h & 1) * 2 + ((t0 >> 3) & 1)) * 16 + rho_of((t0 >> 1) & 1)) * 16 + (((t0 >> 2) & 1) * 2 + ((t0 >> 4) & 1)) * 4
    e[aP] = sel_lt(pi, 4, pm, sel_lt(pi, 20, px, OOB))
    return e

def check_a_exprs():
    e = a_exprs(); l = np.arange(64)
    for h in (0, 1, 7, 8, 15):
        for w in range(4):
            env = {'v0': l, sW: w, sR: h}
            p = ev(e[aP], env)
            for ln in range(64):
                pi = ln & 31
                assert p[ln] == (ps_off(h, 2 * w + (ln >> 5), pi) if pi < 20 else OOB)
check_a_exprs()

def gen_A(A, cfg, lab, tmo):
    w = Wv(A, cfg)
    em = Emitter(A, [f'v{i}' for i in range(2, 30)])
    a_consts(em, A)
    for k, x in a_exprs((3 if cfg.get('nomask') else 2) if cfg.get('rtid') else cfg.get('r128'), cfg.get('ttid')).items(): em.emit(x, k)
    l = V('v0')
    em.emit(HU1 + (l & 15) * 4, vHUp)
    if cfg.get('huall'): em.emit(sel_lt(l, 1, HU2 + (Sg(sR) * 4 + Sg(sW)) * 4, OOB), vHUs)
    else: em.emit(sel_lt(l + Sg(sW) * 64, 1, HU2 + Sg(sR) * 4, OOB), vHUs)
    nt = cfg.get('ntouch', 0)
    if nt:
        a = Sg(sR) * 4 + Sg(sW)
        em.emit(sel_lt(l, nt, ((a >> 5) * 1792 + (1792 - 32 * nt) + (a & 31) * nt + l) * 128, OOB), 'v110')
    A(f's_mov_b32 s52, 0xfffff\ns_mov_b32 s53, 0xfffff')
    A(f's_lshr_b32 s11, {sW}, 1')
    A(f's_mul_i32 s34, s11, 7\ns_and_b32 s35, {sW}, 1\ns_lshl_b32 s36, s35, 2\ns_add_u32 s36, s36, s34')
    for u in range(3): A(f's_add_u32 s37, s36, {u}\ns_lshl_b32 {sQ[u]}, s37, 10')
    A(f's_add_u32 s37, s34, 3\ns_lshl_b32 {sQ[3]}, s37, 10')
    A(f's_lshl_b32 {sWL}, {sW}, 13')
    A(f's_mul_i32 s38, {sR}, {28*14336}\ns_add_u32 s38, s38, {AF}')
    A(f's_mul_i32 s39, s35, 14336')
    def addr(tl, t, b):
        pre = f's_mul_i32 s11, {sQ[tl>>1]}, 28\ns_add_u32 s11, s11, s38\n'
        pre += (f's_add_u32 s11, s11, {14336*(tl&1) + 1024*b}\n' if tl < 6 else f's_add_u32 s11, s11, s39\ns_add_u32 s11, s11, {1024*b}\n')
        pre += f's_lshl_b32 s37, {sKK[t]}, 1\ns_add_u32 s11, s11, s37'
        return (aTW if cfg.get('ttid') else vL16), pre
    sXo = ['s44', 's45', 's46', 's47']; sXm = ['s48', 's49', 's50', 's51']
    def x_consts():
        A(f's_add_u32 {sXo[0]}, {sXS}, {sQ[0]}\ns_add_u32 {sXo[1]}, {sXS}, {sQ[3]}')
        A(f's_add_u32 {sXo[2]}, {sXo[0]}, 14336\ns_add_u32 {sXo[3]}, {sXo[1]}, 14336')
        A(f's_mov_b32 {sXm[0]}, {sXL}\ns_add_u32 {sXm[1]}, {sXL}, 3072\ns_add_u32 {sXm[2]}, {sXL}, 4096\ns_add_u32 {sXm[3]}, {sXL}, 7168')
    def x_m0(tt, u):
        if u in (0, 3): A(f's_mov_b32 m0, {sXm[2*tt + (u == 3)]}')
    def x_dma(tt, u, w=w):
        w.vmem(f'buffer_load_dwordx4 {vL16}, {SRD}, {sXo[2*tt + (u == 3)]} offen offset:{1024*u if u < 3 else 0} lds', 'X')
    if cfg.get('pre_a'): cfg['pre_a']()
    A(f's_mov_b32 {sXS}, {XF}\ns_mov_b32 {sXL}, {sWL}')
    x_consts()
    for tt in range(2):
        for u in range(4): x_m0(tt, u); x_dma(tt, u)
    load_weights(w, addr, 'v94', range(4, 7) if cfg.get('locala') else range(7))
    TT = cfg.get('ttid'); WST = 4096 if TT else 1728; RO = A_T + 2304 if TT else A_R
    em.emit(A_T + Sg(sW) * (4096 if TT else 3072) + l * 16, 'v1')
    A('v_mov_b64 v[4:5], 0\nv_mov_b64 v[6:7], 0')
    for k in range(3): A(f'ds_write_b128 v1, v[4:7] offset:{k*1024}')
    if cfg.get('rflag'): A(f'ds_write_b32 {aRW}, v4')
    if cfg.get('nomask'):
        em.emit(RO + 256 + Sg(sW) * WST + l * 0, 'v1')
        em.emit(sel_lt(Sg(sW) + l * 0, 1, 0xff800000, 0), 'v8')
        A('v_mov_b32 v9, v8\nds_write_b64 v1, v[8:9]')
    zero(w, 28, 28); zero(w, SACC, 12)
    A(f's_mov_b32 {sSTEP}, 0\ns_mov_b32 {sSPIN}, {SPIN_MAX}\ns_mov_b32 {sRETRY}, 0')
    A(f's_mul_i32 s35, {sW}, {WST}\ns_add_u32 s35, s35, 32768')
    cfg['start_sync'](w, lab)
    A('s_waitcnt vmcnt(0) lgkmcnt(0)'); w.vm = []; w.lg = []
    def loop(lab, st):
        w = Wv(A, cfg)
        A(f'{lab}_loop:')
        cfg['loop_top'](w, lab)
        a_step_consts(A, cfg.get('solo'))
        A(f's_lshl_b32 s33, s11, 14\ns_add_u32 {sPW}, s33, {PS}\ns_xor_b32 {sPR}, {sPW}, 0x8000')
        A(f's_mul_i32 {sXS}, {sS1}, {0 if cfg.get("xsame") else 28672}' + (f'\ns_add_u32 {sXS}, {sXS}, {XF}' if XF else ''))
        A(f's_and_b32 s11, {sS1}, 1\ns_lshl_b32 s11, s11, 15\ns_add_u32 {sXL}, s11, {sWL}')
        x_consts()
        if nt: A(f's_add_u32 s11, {sSTEP}, 2\ns_min_u32 s11, s11, {NSEG-1}\ns_mul_i32 s11, s11, {VX_SEG}\ns_add_u32 s34, s11, {VXF}')
        A(f'v_mov_b32 v{TMP+3}, {sS1}')
        for r in range(MREGA[0], MREGA[0] + 4 * cfg.get('ne', 2), 2): A(f'v_mov_b64 {vr(r,2)}, -1')
        w.stamp()
        gate = cfg.get('gate', 'w0')
        if gate == 'w0':
            A(f's_cmp_lg_u32 {sW}, 0\ns_cbranch_scc1 {lab}_nopoll')
            if not cfg.get('solo'): poll(w, f'{lab}_poll1', aPOLL, sSTEP, tmo, 16)
            A(f'{lab}_nopoll:\ns_barrier')
        elif gate == 'all':
            poll(w, f'{lab}_poll1', aPOLL, sSTEP, tmo, 16)
        w.stamp()
        for _ in range(cfg.get('adelay', 0)): A('s_nop 15')
        xpos = cfg.get('xpos', [14, 19, 24, 29, 34, 39, 44, 50])
        def xat(p):
            if nt and cfg.get('tslot', 27) == p: w.vmem(f'buffer_load_dword v109, v110, {SRD}, s34 offen', 'T')
            for k in range(8):
                if xpos[k] == p: x_m0(k >> 2, k & 3); x_dma(k >> 2, k & 3, w)
        def fill(f0, k0):
            d = {}; dv = {}
            add = lambda n, f: d.setdefault(n, []).append(f)
            def kq(n, reg, areg, off, tag, ns):
                if cfg.get('kr2'):
                    r2 = areg if off < 1024 else aKR2
                    o = (off & 1023) // 4
                    add(n, lambda: w.ds(f'ds_read2_b32 {vr(reg,2)}, {r2} offset0:{o} offset1:{o+8}', tag))
                    add(n, lambda: w.ds(f'ds_read2_b32 {vr(reg+2,2)}, {r2} offset0:{o+1} offset1:{o+9}', tag))
                    return
                add(n, lambda: w.ds(f'ds_read_b64 {vr(reg,2)}, {areg} offset:{off}', tag))
                add(n, lambda: w.ds(f'ds_read_b64 {vr(reg+2,2)}, {areg} offset:{off+32}', tag))
                if cfg.get('lswap', 1) and not (cfg.get('z0swap') and tag in ('K0', 'K1')): return
                add(ns, lambda: w.wait(lg=tag))
                dv.setdefault(ns, []).append(lambda: w(f'v_swap_b32 v{reg+1}, v{reg+2}'))
            n = f0
            for tt in range(2):
                for uu in range(2):
                    add(n, lambda tt=tt, uu=uu: w.ds(f'ds_read_b128 {vr(Z0+8*(1+tt)+4*uu,4)}, {aXR} offset:{(tt*4+uu)*1024}', 'Z0')); n += 1
            for k in range(8):
                if xpos[k] < 49:
                    add(xpos[k] - 1, lambda k=k: x_m0(k >> 2, k & 3))
                    add(xpos[k], lambda k=k: x_dma(k >> 2, k & 3, w))
            if nt and cfg.get('tslot', 27) < 49: add(cfg.get('tslot', 27), lambda: w.vmem(f'buffer_load_dword v109, v110, {SRD}, s34 offen', 'T'))
            ks = cfg.get('kswap', [36, 39, 42, 45])
            if cfg.get('z0swap'): ks = [k0 + 5, k0 + 6, 0, 0]
            kq(k0, Z0, aKR, 0, 'K0', ks[0]); kq(k0 + 1, Z0 + 4, aKR, 512, 'K1', ks[1])
            k1 = 41 if cfg.get('nanchk', 1) else k0 + 3
            if cfg.get('nanchk', 1): k0 += 3
            kq(k1, Z1, aKR, 1024, 'K2', ks[2]); kq(k1 + 1, Z1 + 4, aKR3, 0, 'K3', ks[3])
            for k, sl in enumerate((37, 38, 39, 40) if cfg.get('nanchk', 1) else (36, 37, 39, 40)):
                tt, uu = k >> 1, k & 1
                add(sl, lambda tt=tt, uu=uu: w.ds(f'ds_read_b128 {vr(Z1+8*(1+tt)+4*uu,4)}, {aXR} offset:{(tt*4+2+uu)*1024}', 'Z1'))
            add(45, lambda: w.ds(f'ds_read_b64_tr_b16 {vr(TSP0,2)}, {aTR}', 'TS0'))
            add(46, lambda: w.ds(f'ds_read_b64_tr_b16 {vr(TSP0+2,2)}, {aTR} offset:{16 if TT else 192}', 'TS0'))
            if TT:
                assert max(x for x in xpos if x < 49) < 30
                add(30, lambda: w('s_mov_b32 m0, s35'))
            return d, dv
        def tw(tl, reg):
            if TT:
                w.ds(f'ds_write_addtid_b32 {reg} offset:{A_T - 32768 + tl*272}'); return
            if ',' in reg:
                u = tl >> 1
                w.ds(f'ds_write2_b32 {aTW if u < 2 else "v98"}, {reg} offset0:{(u&1)*192} offset1:{(u&1)*192+16}')
            elif tl < 6: w.ds(f'ds_write_b32 {aTW}, {reg} offset:{(tl>>1)*768 + (tl&1)*64}')
            else: w.ds(f'ds_write_b32 {aTW6}, {reg}')
        rest = a_stream(w, fill, tw, lab, TMP, tmo)
        w.stamp()
        w.wait(lg='TS0')
        o0 = (1, 2, 0) if cfg.get('lswap', 1) and not cfg.get('z0swap') else (0, 1, 2)
        w(smf(SACC + 4 * o0[0], vr(TSP0, 4), vr(Z0 + 8 * o0[0], 8), vIDX))
        rest[0]()
        w(smf(SACC + 4 * o0[1], vr(TSP0, 4), vr(Z0 + 8 * o0[1], 8), vIDX))
        for f in rest[1:]: f()
        w(f'v_add_f32 v{TMP}, v{ACC[6]}, v{ACC[6]+2}\nv_add_f32 v{TMP+1}, v{ACC[6]+1}, v{ACC[6]+3}')
        w(f'v_cvt_pk_bf16_f32 v{TMP+2}, v{TMP}, v{TMP+1}')
        tw(6, f'v{TMP+2}')
        if TT:
            w.ds(f'ds_read_b64_tr_b16 {vr(TSP1,2)}, {aTW6}', 'TS1')
            w.ds(f'ds_read_b64_tr_b16 {vr(TSP1+2,2)}, {aTW6} offset:16', 'TS1')
        else:
            w.ds(f'ds_read_b64_tr_b16 {vr(TSP1,2)}, {aTR} offset:1536', 'TS1')
            w.ds(f'ds_read_b64_tr_b16 {vr(TSP1+2,2)}, {aTR} offset:{1536+192}', 'TS1')
            if cfg.get('rtid'): w('s_mov_b32 m0, s35')
        if cfg.get('lswap', 1) and not cfg.get('kr2'):
            if not cfg.get('z0swap'):
                for r in (Z0, Z0 + 4, Z1, Z1 + 4): w(f'v_swap_b32 v{r+1}, v{r+2}')
        w(smf(SACC + 4 * o0[2], vr(TSP0, 4), vr(Z0 + 8 * o0[2], 8), vIDX))
        if cfg.get('z0swap'):
            for r in (Z1, Z1 + 4): w(f'v_swap_b32 v{r+1}, v{r+2}')
        xat(50)
        w.wait(lg='TS1')
        for kt in o0: w(smf(SACC + 4 * kt, vr(TSP1, 4), vr(Z1 + 8 * kt, 8), vIDX))
        for kt in o0:
            w(f'v_add_f32 v{56+2*kt}, v{SACC+4*kt}, v{SACC+4*kt+2}\nv_add_f32 v{57+2*kt}, v{SACC+4*kt+1}, v{SACC+4*kt+3}')
            if cfg.get('rtid'):
                for rp in range(2): w.ds(f'ds_write_addtid_b32 v{56+2*kt+rp} offset:{RO - 32768 + (2*kt+rp)*288}')
            elif cfg.get('r128'): w.ds(f'ds_write2st64_b32 {aRW}, v{56+2*kt}, v{57+2*kt} offset0:{kt} offset1:{kt+3}')
            else: w.ds(f'ds_write2_b32 {aRW}, v{56+2*kt}, v{57+2*kt} offset0:{16*kt} offset1:{16*kt+48}')
        hu2 = lambda: w.vmem(f'buffer_store_dword v{TMP+3}, {vHUs}, {SRD}, 0 offen {st}')
        hp = cfg.get('hu2pos', 0)
        w.stamp()
        if hp == -1: hu2()
        xat(51)
        if cfg.get('rflag'):
            w.ds(f'ds_write_b32 {aRW}, v{TMP+3}')
            for _ in range(cfg.get('rgap', 0)): A('s_nop 0')
            A(f'{lab}_rread:')
            w.lg = []
            w.ds('ds_read_b128 v[72:75], v98', 'RF')
            for k in range(4): w.ds(f'ds_read_b64 {vr(64+2*k,2)}, {aRR} offset:{k*WST}', f'R{k}')
            w.wait(lg='RF')
            w('v_min3_u32 v72, v72, v73, v74\nv_min_u32 v72, v72, v75')
            w(f'v_cmp_gt_u32 vcc, {sS1}, v72')
            w.wait(lg='R1'); w('v_pk_add_f32 v[64:65], v[64:65], v[66:67]')
            w.wait(lg='R3'); w('v_pk_add_f32 v[68:69], v[68:69], v[70:71]')
            w(f's_cbranch_vccnz {lab}_rwait')
            w('v_pk_add_f32 v[64:65], v[64:65], v[68:69]')
        else:
            w.wait_all_lg()
            A('s_barrier')
            if cfg.get('r128'):
                for k in range(2): w.ds(f'ds_read_b128 {vr(64+4*k,4)}, {aRR} offset:{k*16}', f'R{2*k+1}')
            else:
                for k in range(4): w.ds(f'ds_read_b64 {vr(64+2*k,2)}, {aRR} offset:{k*(WST if cfg.get("rtid") else 1536)}', f'R{k}')
            if hp == 0: hu2()
            xat(52)
            w.stamp()
            w.wait(lg='R1'); w('v_pk_add_f32 v[64:65], v[64:65], v[66:67]')
            w.wait(lg='R3'); w('v_pk_add_f32 v[68:69], v[68:69], v[70:71]')
            w('v_pk_add_f32 v[64:65], v[64:65], v[68:69]')
        if hp == 1: hu2()
        for _ in range(cfg.get('apad', 0)): A('s_nop 15')
        w('v_max_f32 v66, v64, v65')
        for k, r in enumerate((8, 4, 2, 1)):
            if hp == 2 + k: hu2()
            xat(53 + k)
            w(f'v_max_f32_dpp v66, v66, v66 row_ror:{r} row_mask:0xf bank_mask:0xf')
        w('v_mov_b32 v67, v66')
        w('v_permlane16_swap_b32 v66, v67')
        w('v_max_f32 v66, v66, v67')
        w('v_pk_add_f32 v[64:65], v[64:65], v[66:67] op_sel_hi:[1,0] neg_lo:[0,1] neg_hi:[0,1]')
        w('v_exp_f32 v64, v64\nv_exp_f32 v65, v65')
        if hp == 6: hu2()
        w('v_add_f32 v66, v64, v65')
        if not cfg.get('nomask'): w(f'v_cndmask_b32 v66, 0, v66, {sMASK}')
        for k, r in enumerate((8, 4, 2, 1)):
            if hp == 7 + k: hu2()
            xat(57 + k)
            w(f'v_add_f32_dpp v66, v66, v66 row_ror:{r} row_mask:0xf bank_mask:0xf')
        w('v_mov_b32 v67, v66\nv_permlane16_swap_b32 v66, v67\nv_add_f32 v66, v66, v67')
        w('v_rcp_f32 v66, v66')
        if hp == 11: hu2()
        w('v_pk_mul_f32 v[64:65], v[64:65], v[66:67] op_sel_hi:[1,0]')
        w('v_cvt_pk_bf16_f32 v64, v64, v65')
        w('v_min_u32 v64, -2, v64')
        w.vmem(f'buffer_store_dword v64, {aP}, {SRD}, {sPW} offen {st}')
        if hp == 99: hu2()
        w.stamp()
        if cfg.get('ack'): w.wait_all_vm(); w.stamp()
        def later():
            w('v_mov_b32 v65, -1')
            w.vmem(f'buffer_store_dword v65, {aP}, {SRD}, {sPR} offen {st}')
            xat(99)
        lp = cfg.get('lpos', 1)
        if lp == 0: later()
        zero(w, 28, 28); zero(w, SACC, 12)
        w(f'v_xor_b32 {aXR}, 0x8000, {aXR}')
        if lp == 2: A('s_barrier')
        if lp >= 1: later()
        w.dump_stamps(lab)
        A(f's_mov_b32 {sSPIN}, {SPIN_MAX}')
        A(f's_mov_b32 {sSTEP}, {sS1}\ns_cmp_lt_u32 {sSTEP}, {NSEG-1}\ns_cbranch_scc1 {lab}_loop')
        cfg['finish'](w, lab)
        A('s_endpgm')
        l_retry(w, lab, TMP, tmo)
        if cfg.get('rflag'):
            A(f'{lab}_rwait:\ns_sub_u32 {sSPIN}, {sSPIN}, 1\ns_cbranch_scc1 {tmo}\ns_branch {lab}_rread')

    emit_modes(A, cfg, lab, loop)

B_VX, B_V = 0, 98304
bVW, bWR, bVR, bMS, bSEL = 'v108', 'v107', 'v106', 'v105', 'v104'
bMX, bFL, bVL, bPOLL = 'v107', 'v106', 'v105', 'v104'
bTO, bINC, bFLAG = 'v99', 'v98', 'v97'
bDM = [f'v{89+k}' for k in range(7)]
BT = 100
FACC = 96
sVS, sVL, sMW, sMR, sMXO = 's25', 's26', 's27', 's28', 's29'

def bcol(j, c):
    return sel_lt(c, 16, j * 16 + c, j * 12 + c + 240)

def b_exprs_final(split=False):
    l = V('v0'); w = Sg(sW); j = Sg(sR)
    g = l >> 4; n = l & 15; c = w * 16 + n
    e = {}
    e[bWR] = B_VX + (g * 28 + c.min(27)) * 16
    e[bVR] = B_V + (g * 28 + c.min(27)) * 16
    if split: e[bVR] = B_V + sel_lt(w, 1, g * 16 + n, 256 + g * 12 + n.min(11)) * 16
    i = g * 2 + (n & 1); d0 = bcol(j, c & 30)
    k = d0 & 63
    off = (d0 >> 6) * 1024 + ((k >> 4) * 16 + (i >> 1) * 4 + ((k >> 1) & 1) * 2 + (i & 1)) * 16 + ((k >> 2) & 3) * 4
    e[bMS] = sel_lt(c, 28, off, OOB)
    e[bSEL] = sel_lt(n & 1, 1, 0x05040100, 0x03020706)
    return e
def check_b():
    e = b_exprs_final(); l = np.arange(64)
    for j in (0, 1, 5, 15):
        for w in range(2):
            p = ev(e[bMS], {'v0': l, sW: w, sR: j})
            for ln in range(64):
                c = 16 * w + (ln & 15)
                assert p[ln] == (ms_off(2 * (ln >> 4) + (ln & 1), (16 * j if c < 16 else 12 * j + 240) + (c & ~1)) if c < 28 else OOB)
check_b()

def gen_B(A, cfg, lab, tmo):
    w = Wv(A, cfg)
    em = Emitter(A, [f'v{i}' for i in list(range(2, 20)) + list(range(28, 56))])
    A(f's_add_u32 s39, {sR}, 1')
    fast = cfg.get('bfast', 2)
    common_consts(em, A, lab, '0' if fast else 's39', fast == 1)
    l = V('v0'); ww = Sg(sW); j = Sg(sR)
    split = cfg.get('bsplit', 1)
    em.emit(B_V + (ww * (64 if split else 112) + (l & 15)) * 16 + (l >> 4) * 4, bVW)
    for tl in range(7):
        if not split:
            f = ww * 112 + tl * 16 + (l & 15); hh = f.div(28)
            em.emit((hh * 56 + (l >> 4)) * 7168 + bcol(j, f - hh * 28) * 16, f'v{20+tl}')
        elif tl < 4:
            em.emit(((ww * 4 + tl) * 56 + (l >> 4)) * 7168 + (j * 16 + (l & 15)) * 16, f'v{20+tl}')
        else:
            f = (l & 15) + (tl - 4) * 16; hh = f.div(12)
            em.emit(((ww * 4 + hh) * 56 + (l >> 4)) * 7168 + (j * 12 + 256 + f - hh * 12) * 16, f'v{20+tl}')
    def addr(tl, t, b):
        return f'v{20+tl}', f's_mul_i32 s11, {sKK[t]}, 56\ns_add_u32 s11, s11, {BF + 28672*b}'
    def vw(tl, reg): w.ds(f'ds_write_b32 {bVW}, {reg} offset:{tl*256 if tl < 4 or not split else 4096 + (tl-4)*256}')
    def tail6(rest):
        for f in rest: f()
        w(f'v_add_f32 v{BT}, v{ACC[6]}, v{ACC[6]+2}\nv_add_f32 v{BT+1}, v{ACC[6]+1}, v{ACC[6]+3}')
        w(f'v_cvt_pk_bf16_f32 v{BT+2}, v{BT}, v{BT+1}')
        vw(6, f'v{BT+2}')
    rot = sR if cfg.get('prot', 1) else '0'
    for q in range(4): A(f's_add_u32 s{48+q}, {rot}, {q}\ns_and_b32 s{48+q}, s{48+q}, 3\ns_lshl_b32 s{48+q}, s{48+q}, 11')
    if cfg.get('pre_b'): cfg['pre_b']()
    for t in range(2):
        A(f's_lshl_b32 s11, {sW}, 1\ns_add_u32 s11, s11, {t}\ns_lshl_b32 s33, s11, 10\ns_add_u32 s33, s33, {MX}')
        A(f's_cmp_eq_u32 s11, {sR}\ns_cselect_b32 s{52+t}, s33, {OOB}\ns_cmp_eq_u32 s11, 7\ns_cselect_b32 s{52+t}, {OOB}, s{52+t}')
    def mx_first():
        for t in range(2):
            w.vmem(f'buffer_store_dwordx4 {vr(MREG[t],4)}, {vL16}, {SRD}, s{52+t} offen sc1')
            A(f's_add_u32 s{52+t}, s{52+t}, 7168')
    A(f's_cmp_ge_u32 {sW}, 2\ns_cbranch_scc1 {lab}_loader')
    for k, x in b_exprs_final(split).items(): em.emit(x, k)
    A(f's_lshl_b32 s54, {sR}, 2\ns_add_u32 s54, s54, {HU1}')
    bWB = vHUs if cfg.get('bpoll') else None
    assert bWB, 'the flag variant has no register left for three slots'
    A(f'v_mov_b32 {bWB}, {bWR}\ns_mov_b32 s47, 0')
    em.emit(HU2 + (l & (63 if cfg.get('huall') else 15)) * 4, vHUp)
    load_weights(w, addr, between=(lambda k: cfg['mid_b'](lab + 'f', k)) if cfg.get('mid_b') else None)
    zero(w, 28, 28)
    A(f's_mov_b32 {sSTEP}, 0\ns_mov_b32 {sSPIN}, {SPIN_MAX}\ns_mov_b32 {sRETRY}, 0')
    cfg['start_sync'](w, lab + 'f')
    A('s_waitcnt vmcnt(0) lgkmcnt(0)')
    def loopf(lf, st, second):
        nonlocal w
        w = Wv(A, cfg)
        PREG = [4 * m for m in range(10)]
        one = cfg.get('onebar', 1)
        if one:
            order = list(range(10))
            WREG = {0: 56, 1: 64, 2: 72, 3: 80, 4: 88, 5: 40, 6: 48, 7: 56, 8: 64, 9: 72}
        else:
            order = [0, 1, 2, 3, 4, 8, 9, 5, 6, 7]
            WREG = {0: 56, 1: 64, 2: 72, 3: 80, 4: 88, 8: 40, 9: 48, 5: 56, 6: 64, 7: 72}
        sPO = ['s22', 's23', 's24', 's45', 's46']
        def wx(m, b):
            if m < 8: w.ds(f'ds_read_b128 {vr(WREG[m]+4*b,4)}, {bWR} offset:{(2*m+b)*1792}', f'W{m}')
            else: w.ds(f'ds_read_b128 {vr(WREG[m]+4*b,4)}, {bVR} offset:{(2*(m-8)+b)*(1024 if split else 1792)}', f'W{m}')
        def mfirst():
            for t in range(2): A(f'buffer_load_dwordx4 {vr(MREG[t],4)}, {vL16}, {SRD}, {sMO[t]} offen sc1')
        if fast:
            step_consts(A)
            A('s_barrier'); mfirst()
        A(f'{lf}_loop:')
        if fast: A(f's_and_b32 s11, {sSTEP}, 3\ns_add_u32 {sS1}, {sSTEP}, 1')
        else: step_consts(A)
        A(f's_lshl_b32 s11, s11, 14\ns_add_u32 s11, s11, {PS}\ns_add_u32 s46, s11, 8192')
        for q in range(4): A(f's_add_u32 {sPO[q]}, s11, s{48+q}')
        A(f's_and_b32 s11, {sS1}, 3\ns_lshl_b32 s11, s11, 13\ns_add_u32 {sMW}, s11, {MS}\ns_xor_b32 {sMR}, {sMW}, 0x4000')
        A(f'v_mov_b32 v{BT+3}, {sS1}\nv_mov_b64 {vr(FACC,2)}, 0\nv_mov_b64 {vr(FACC+2,2)}, 0')
        if cfg.get('bpoll') and not fast:
            for r in range(MREG[0], MREG[0] + 8, 2): A(f'v_mov_b64 {vr(r,2)}, -1')
        w.stamp()
        if not fast: A('s_barrier')
        w.stamp()
        def fillf(f0):
            d = {}
            for m in range(5):
                for b in range(2): d.setdefault(f0 + 2 * m + b, []).append(lambda m=m, b=b: wx(m, b))
            return d, {}
        tail6(weight_stream(w, fillf, vw, lf, BT, tmo, cfg.get('bpoll'), mx_first if cfg.get('mxfirst') else None))
        for _ in range(cfg.get('vpad', 0)): A('s_nop 15')
        w.stamp()
        if one:
            for m in (5, 6): wx(m, 0); wx(m, 1)
            if fast:
                for t in range(2): A(f's_add_u32 {sMO[t]}, {sMW}, {sKK[t]}')
            w.wait_all_lg()
            w.stamp()
            if second: A('s_barrier')
            else: poll(w, f'{lf}_poll2', f'v{BT+2}', sS1, tmo, 64 if cfg.get('huall') else 16)
        else:
            w.wait_all_lg()
            A('s_barrier')
            A(f's_cmp_eq_u32 {sSTEP}, {NSEG-1}\ns_cbranch_scc1 {lf}_done')
            for m in (8, 9): wx(m, 0); wx(m, 1)
            w.stamp()
            if cfg.get('b0poll'):
                if second: A('s_barrier')
                else: poll(w, f'{lf}_poll2', f'v{BT+2}', sS1, tmo, 16)
            else:
                A('s_barrier')
                if second: A('s_barrier')
        w.stamp()
        def ploads():
            for k, m in enumerate(order):
                w.vmem(f'buffer_load_dwordx4 {vr(PREG[k],4)}, {vL16}, {SRD}, {sPO[m>>1]} offen offset:{(m&1)*1024} sc1', f'P{k}')
        def hum_store():
            if cfg.get('hum') and not second:
                A('s_mov_b64 exec, 1'); w.vmem(f'buffer_store_dword v{BT+3}, off, {SRD}, s54 {st}'); A('s_mov_b64 exec, -1')
        if cfg.get('hu1k') == -2: hum_store()
        ploads()
        if cfg.get('hu1k') == -1: hum_store()
        if not second: A('s_barrier')
        if fast and second: A('s_cmp_eq_u32 0, 1')
        A(f'{lf}_pchain:')
        for _ in range(cfg.get('bpad', 0)): A('s_nop 15')
        for k, m in enumerate(order):
            w.wait(vm=f'P{k}', lg=f'W{m}')
            if k == 0: w.stamp()
            w(smf(FACC, vr(PREG[k], 4), vr(WREG[m], 8), vIDX))
            if k < 3: wx((7 if one else 5) + k, 0); wx((7 if one else 5) + k, 1)
            if k == cfg.get('hu1k', 7): hum_store()
            if fast and second and k == cfg.get('kb', 4 if fast == 1 else 99):
                w.wait_all_lg(); A(f's_cbranch_scc1 {lf}_nob\ns_barrier\n{lf}_nob:')
        w(f'v_add_f32 v{BT}, v{FACC}, v{FACC+2}\nv_add_f32 v{BT+1}, v{FACC+1}, v{FACC+3}')
        if cfg.get('bcmp', 1):
            w(f'v_cvt_pk_bf16_f32 v{FACC}, v{BT}, v{BT+1}')
            w(f'v_cmp_u_f32 vcc, v{BT}, v{BT+1}')
            w(f'v_mov_b32_dpp v{BT+1}, v{FACC} quad_perm:[1,0,3,2] row_mask:0xf bank_mask:0xf')
            w(f'v_perm_b32 v{BT}, v{BT+1}, v{FACC}, {bSEL}')
        else:
            w(f'v_cmp_u_f32 vcc, v{BT}, v{BT+1}')
            w(f'v_cvt_pk_bf16_f32 v{BT}, v{BT}, v{BT+1}')
            w(f'v_mov_b32_dpp v{BT+1}, v{BT} quad_perm:[1,0,3,2] row_mask:0xf bank_mask:0xf')
            w(f'v_perm_b32 v{BT}, v{BT+1}, v{BT}, {bSEL}')
        w(f'v_min_u32 v{BT}, -2, v{BT}')
        w(f's_cbranch_vccnz {lf}_pretry\n{lf}_pok:')
        w.vmem(f'buffer_store_dword v{BT}, {bMS}, {SRD}, {sMW} offen {st}')
        if fast:
            if not second or cfg.get('kb', 4 if fast == 1 else 99) == 99: A('s_barrier')
            mfirst()
        if cfg.get('lastmx', 1):
            A(f's_cmp_eq_u32 {sSTEP}, {NSEG-2}\ns_cbranch_scc1 {lf}_last')
        w.stamp()
        if cfg.get('ack'): w.wait_all_vm(); w.stamp()
        w(f'v_mov_b32 v{BT+1}, -1')
        w.vmem(f'buffer_store_dword v{BT+1}, {bMS}, {SRD}, {sMR} offen {st}')
        if not cfg.get('bpoll'): w.vmem(f'buffer_store_dword v{BT+3}, {vHUs}, {SRD}, 0 offen {st}')
        zero(w, 28, 28)
        w(f's_add_u32 s47, s47, 0x8000\ns_cmp_eq_u32 s47, 0x18000\ns_cselect_b32 s47, 0, s47\nv_add_u32 {bWR}, s47, {bWB}')
        w.dump_stamps(lf)
        A(f's_mov_b32 {sSPIN}, {SPIN_MAX}\ns_mov_b32 {sSTEP}, {sS1}\ns_branch {lf}_loop')
        if cfg.get('lastmx', 1):
            A(f'{lf}_last:\ns_mov_b32 s11, {MX + (NSEG-1)*7168}\nbuffer_store_dword v{BT}, {bMS}, {SRD}, s11 offen sc1')
        A(f'{lf}_done:')
        cfg['finish'](w, lf)
        A('s_endpgm')
        m_retry(w, lf, tmo)
        A(f'{lf}_pretry:\ns_waitcnt vmcnt(0) lgkmcnt(0)')
        sentinel_check(w, list(range(0, 40)), f'v{BT+2}')
        A(f's_cbranch_vccz {lf}_pok')
        A(f's_add_u32 {sRETRY}, {sRETRY}, 0x10000\ns_sub_u32 {sSPIN}, {sSPIN}, 8\ns_cbranch_scc1 {tmo}')
        for m in range(3): wx(m, 0); wx(m, 1)
        A(f'v_mov_b64 {vr(FACC,2)}, 0\nv_mov_b64 {vr(FACC+2,2)}, 0\ns_waitcnt lgkmcnt(0)')
        ploads()
        A(f's_cmp_eq_u32 0, 0\ns_branch {lf}_pchain')
    A(f's_cmp_eq_u32 {sW}, 1\ns_cbranch_scc1 {lab}_second')
    emit_modes(A, cfg, lab + 'f', lambda lf, st: loopf(lf, st, False))
    A(f'{lab}_second:')
    emit_modes(A, cfg, lab + 'g', lambda lf, st: loopf(lf, st, True))
    ll = lab + 'l'
    A(f'{lab}_loader:')
    w = Wv(A, cfg)
    for r in range(7):
        f = l + 64 * r; hg = f.div(28)
        em.emit(hg * 7168 + bcol(j, f - hg * 28) * 16 + (4096 - (r & 3) * 1024), bDM[r])
    em.emit(sel_lt(ww, 3, HU1 + 128 + (l & 31) * 4, HU2 + (l & 15) * 4), vHUp)
    em.emit(sel_lt(l + (3 - ww) * 64, 1, HU1 + j * 4, OOB), vHUs)
    em.emit(sel_lt(j + (3 - ww) * 16, 7, j * 1024 + l * 16, OOB), bMX)
    em.emit(L_K + (j & 7) * 1024 + l * 16, 'v88')
    xl = (j * 2 + ww - 2) * 7 + l
    em.emit(sel_lt(l, 7, XF + 2 * 28672 + xl * 128, sel_lt(l, 63, OOB, FVX + 2 * 128)), bTO)
    em.emit(sel_lt(l, 63, 28672, 128), bINC)
    A(f'v_mov_b32 {bFLAG}, 16')
    A(f's_sub_u32 s11, {sW}, 2\ns_mul_i32 s23, s11, 14336\ns_cmp_eq_u32 s11, 0\ns_cselect_b32 s24, s48, s50\ns_cselect_b32 s45, s49, s51')
    A(f's_mul_i32 s24, s24, 56\ns_add_u32 s24, s24, {VXF - 4096}\ns_mul_i32 s45, s45, 56\ns_add_u32 s45, s45, {VXF - 4096}')
    def vx_m0(k):
        if k % 7 in (0, 4): w(f's_add_u32 m0, {sVL}, {k*1024}')
    def vx_dma(k):
        w.vmem(f'buffer_load_dwordx4 {bDM[k%7]}, {SRD}, {sVS if k < 7 else "s44"} offen offset:{((k%7)&3)*1024} lds', 'D')
    load_weights(w, addr, between=(lambda k: cfg['mid_b'](ll, k)) if cfg.get('mid_b') else None)
    zero(w, 28, 28)
    A(f's_mov_b32 {sSTEP}, 0\ns_mov_b32 {sSPIN}, {SPIN_MAX}\ns_mov_b32 {sRETRY}, 0')
    cfg['start_sync'](w, ll)
    A(f's_mov_b32 {sVS}, s24\ns_mov_b32 s44, s45\ns_mov_b32 {sVL}, s23\ns_mov_b32 s47, 0')
    for k in range(14): vx_m0(k); vx_dma(k)
    nl = cfg.get('nlate', 0)
    def late_part():
        k0 = 14 - nl
        for k in range(k0, 14):
            if k == k0 and k % 7 not in (0, 4): w(f's_add_u32 m0, {sVL}, {(k - (k % 7) % 4)*1024}')
            vx_m0(k); vx_dma(k)
    if nl:
        A(f's_add_u32 {sVS}, s24, {VX_SEG}\ns_add_u32 s44, s45, {VX_SEG}\ns_add_u32 {sVL}, s23, 0x8000')
        late_part()
    def loopl(ll, st):
        nonlocal w
        w = Wv(A, cfg)
        A(f'{ll}_loop:')
        step_consts(A)
        A(f's_min_u32 s11, {sS1}, {0 if cfg.get("vxsame") else NSEG-1}\ns_mul_i32 s11, s11, {VX_SEG}\ns_add_u32 {sVS}, s11, s24\ns_add_u32 s44, s11, s45')
        A(f's_add_u32 s47, s47, 0x8000\ns_cmp_eq_u32 s47, 0x18000\ns_cselect_b32 s47, 0, s47\ns_add_u32 {sVL}, s47, s23')
        A(f's_mul_i32 {sMXO}, {sSTEP}, 7168\ns_add_u32 {sMXO}, {sMXO}, {MX}')
        if cfg.get('bpoll'):
            for r in range(MREG[0], MREG[0] + 8, 2): A(f'v_mov_b64 {vr(r,2)}, -1')
        if nl: A(f's_waitcnt vmcnt({nl})')
        else:
            A('s_waitcnt vmcnt(0)')
            A(f's_cmp_ge_u32 {sSTEP}, {NSEG-1}\ns_cbranch_scc1 {ll}_fok')
            A(f'{ll}_fchk:\nv_readlane_b32 s11, {bFLAG}, 63\ns_nop 0\ns_cmp_ge_u32 s11, 16\ns_cbranch_scc1 {ll}_fok')
            A(f's_lshl_b32 s11, {sS1}, 7\ns_add_u32 s11, s11, {FVX}')
            A(f'buffer_load_dword {bFLAG}, off, {SRD}, s11 sc1')
            A(f's_sub_u32 {sSPIN}, {sSPIN}, 1\ns_cbranch_scc1 {tmo}\ns_waitcnt vmcnt(0)\ns_branch {ll}_fchk\n{ll}_fok:')
        w.stamp()
        if not cfg.get('bpoll'):
            A(f's_cmp_lg_u32 {sW}, 2\ns_cbranch_scc1 {ll}_nopoll')
            poll(w, f'{ll}_poll1', bPOLL, sSTEP, tmo, 32)
            A(f'{ll}_nopoll:')
        A('s_barrier')
        w.stamp()
        d0 = cfg.get('dslot', 2); dstep = cfg.get('dstep', 2); ne = cfg.get('dearly', 0)
        def early():
            if cfg.get('mxfirst'): mx_first()
            if cfg.get('tfirst'): w.vmem(f'buffer_load_dword {bFLAG}, {bTO}, {SRD}, 0 offen sc1', 'D')
            for k in range(ne): vx_m0(k); vx_dma(k)
        def filll(f0):
            d = {}
            add = lambda n, f: d.setdefault(n, []).append(f)
            for k in range(ne, 14 - nl):
                add(d0 + dstep * (k - ne) - 1, lambda k=k: vx_m0(k))
                add(d0 + dstep * (k - ne), lambda k=k: vx_dma(k))
            if not cfg.get('tfirst'): add(d0 + dstep * (14 - nl - ne), lambda: w.vmem(f'buffer_load_dword {bFLAG}, {bTO}, {SRD}, 0 offen sc1', 'D'))
            if cfg.get('mxfirst'): pass
            elif fast and not cfg.get('nomx'):
                add(f0, lambda: w.ds('ds_read_b128 v[56:59], v88', 'MX'))
                add(f0 + 5, lambda: (w.wait(lg='MX'), w.vmem(f'buffer_store_dwordx4 v[56:59], {bMX}, {SRD}, {sMXO} offen sc1')))
            elif not cfg.get('nomx'):
                add(max(f0 - 4, cfg.get('vslot', 0)), lambda: w.vmem(f'buffer_store_dwordx4 {vr(MREG[0],4)}, {bMX}, {SRD}, {sMXO} offen {cfg.get("mxfl", "sc1")}'))
            return d, {}
        tail6(weight_stream(w, filll, vw, ll, BT, tmo, cfg.get('bpoll'), early))
        w.stamp()
        w.wait_all_lg()
        if not cfg.get('onebar', 1):
            A('s_barrier')
            A(f's_cmp_eq_u32 {sSTEP}, {NSEG-1}\ns_cbranch_scc1 {ll}_done')
        zero(w, 28, 28)
        A(f'v_mov_b32 v{BT+3}, {sS1}')
        if not cfg.get('xsame'): A(f'v_add_u32 {bTO}, {bTO}, {bINC}')
        w.stamp()
        if cfg.get('drain'):
            w.wait(vm='D'); w.stamp(); w.wait_all_vm(); w.stamp()
        hu1 = f'buffer_store_dword v{BT+3}, {vHUs}, {SRD}, 0 offen {st}'
        if cfg.get('b0poll') or cfg.get('onebar', 1):
            A('s_barrier')
            if cfg.get('gate', 'w0') != 'none' and not cfg.get('hum'): A(hu1)
        else:
            A(f's_cmp_lg_u32 {sW}, 3\ns_cbranch_scc1 {ll}_nopoll2')
            poll(w, f'{ll}_poll2', bPOLL, sS1, tmo, 16)
            A(f'{ll}_nopoll2:\ns_barrier')
            if cfg.get('hu1pos', 0) == 0: A(hu1)
            A('s_barrier')
            if cfg.get('hu1pos', 0) == 1: A(hu1)
        if cfg.get('lastmx', 1): A(f's_cmp_eq_u32 {sSTEP}, {NSEG-2}\ns_cbranch_scc1 {ll}_done')
        if nl:
            A('s_waitcnt vmcnt(0)')
            A(f'{ll}_fchk:\nv_readlane_b32 s11, {bFLAG}, 63\ns_nop 0\ns_cmp_ge_u32 s11, 16\ns_cbranch_scc1 {ll}_fok')
            A(f's_lshl_b32 s11, {sSTEP}, 7\ns_add_u32 s11, s11, {FVX + 256}')
            A(f'buffer_load_dword {bFLAG}, off, {SRD}, s11 sc1')
            A(f's_sub_u32 {sSPIN}, {sSPIN}, 1\ns_cbranch_scc1 {tmo}\ns_waitcnt vmcnt(0)\ns_branch {ll}_fchk\n{ll}_fok:')
            for _ in range(cfg.get('ldelay', 0)): A('s_nop 15')
            A(f's_add_u32 s11, {sSTEP}, 2\ns_mul_i32 s11, s11, {0 if cfg.get("vxsame") else VX_SEG}\ns_add_u32 {sVS}, s11, s24\ns_add_u32 s44, s11, s45')
            A(f's_add_u32 s11, s47, 0x8000\ns_cmp_eq_u32 s11, 0x18000\ns_cselect_b32 s11, 0, s11\ns_add_u32 {sVL}, s11, s23')
            late_part()
        w.dump_stamps(ll)
        A(f's_mov_b32 {sSPIN}, {SPIN_MAX}\ns_mov_b32 {sSTEP}, {sS1}\ns_branch {ll}_loop\n{ll}_done:')
        cfg['finish'](w, ll)
        A('s_endpgm')
        m_retry(w, ll, tmo)
    emit_modes(A, cfg, ll, loopl)
```

```python
from asmdsl import Asm
from layout import *
import rec, workers, prep, build

BEST = dict(xpos=[11, 15, 20, 25, 99, 99, 99, 99], hu2pos=6, ew=128, ne=1, ebar=3, gate='none', dstep=1, dslot=1, bpoll=1, prot=0, tw2=0, ttid=1, nomask=1,
            bdepth=2, dearly=2, aA=[6, 0], apoll=[6, 0], lbar=22, rtid=1, lslot=5, midn=90)
WBEST = dict(deferq=0, defert=0, locala=0, diemap=[5, 6, 7, 0, 1, 2, 3, 4], tonq=1)

def counts(A, lab, tmo, sd='s[48:51]'):
    A(f's_mov_b32 s19, 0x40000\n{lab}:')
    A(f'buffer_load_dword v3, v4, {sd}, 0 offen sc1')
    A(f's_sub_u32 s19, s19, 1\ns_cbranch_scc1 {tmo}\ns_waitcnt vmcnt(0)')
    A('v_readlane_b32 s47, v3, 0\ns_mov_b32 s46, s47')
    for x in range(1, 8): A(f'v_readlane_b32 s11, v3, {x}\ns_add_u32 s46, s46, s11')

def gen_main(A, cfg):
    cfg = dict(WBEST, **cfg)
    workers.LASTD[0] = cfg.get('lastpoll', 1)
    workers.ONE[0] = cfg.get('one', 0)
    workers.PREV[0] = cfg.get('prev', 0)
    workers.BACK[0] = f's_sleep {cfg["back"]}\n' if cfg.get('back') else ''
    A(f"""M_start:
    s_cmp_ge_u32 s2, 256
    s_cbranch_scc1 M_exit0
    s_load_dwordx4 s[28:31], s[0:1], 0
    s_load_dwordx8 s[36:43], s[0:1], 16
    s_load_dwordx2 s[4:5], s[0:1], 112
    s_load_dwordx2 s[48:49], s[0:1], 104
    s_getreg_b32 s54, hwreg(HW_REG_XCC_ID, 0, 3)
    v_lshrrev_b32 v1, 6, v0
    v_readfirstlane_b32 s9, v1
    v_and_b32 v0, 63, v0
    s_waitcnt lgkmcnt(0)
    s_add_u32 s4, s4, {cfg.get('wsoff', 0)}
    s_addc_u32 s5, s5, 0
    s_mov_b32 s6, {WS_BYTES - cfg.get('wsoff', 0)}
    s_mov_b32 s7, 0x20000
    s_mov_b32 s50, 256
    s_mov_b32 s51, 0x20000""")
    if cfg.get('fakexcc'): A(cfg['fakexcc'])
    dm = cfg.get('diemap')
    if dm:
        assert sorted(dm) == list(range(8))
        A(f's_lshl_b32 s54, s54, 2\ns_lshr_b32 s54, {hex(sum(v << (4*i) for i, v in enumerate(dm)))}, s54\ns_and_b32 s54, s54, 7')
    if cfg.get('ds'):
        A('s_mov_b32 s3, s2'); rec.dstamp(A, cfg, 9, 0, 3)
    A("""s_mov_b32 s12, s54
    v_mov_b32 v2, 0x27c00
    s_cmp_lg_u32 s9, 0
    s_cbranch_scc1 M_noat
    v_mov_b32 v249, 1
    s_lshl_b32 s11, s12, 5
    s_mov_b64 exec, 1
    buffer_atomic_add v249, off, s[48:51], s11 sc0 sc1
    s_mov_b64 exec, -1
M_noat:""")
    nt = 0
    if cfg.get('codetouch', 1):
        A('s_getpc_b64 s[20:21]\nM_pc:\ns_sub_u32 s20, s20, M_pc-M_start\ns_subb_u32 s21, s21, 0\ns_mov_b32 s22, M_end-M_start\ns_mov_b32 s23, 0x20000')
        A('s_lshr_b32 s11, s2, 3\ns_lshl_b32 s11, s11, 2\ns_add_u32 s11, s11, s9\ns_lshl_b32 s11, s11, 10\nv_lshlrev_b32 v5, 4, v0')
        A('buffer_load_dword v251, v5, s[20:23], s11 offen'); nt += 1
    if cfg.get('tlbtouch'):
        k = cfg['tlbtouch']
        A(f's_lshl_b32 s11, s9, {k+6}\nv_lshlrev_b32 v5, {k}, v0\nbuffer_load_dword v250, v5, s[4:7], s11 offen'); nt += 1
    if cfg.get('pretouch', 1):
        A(f's_lshl_b32 s11, s2, 2\ns_add_u32 s11, s11, s9\ns_mul_i32 s11, s11, 3584\nv_lshlrev_b32 v5, 7, v0\nv_mov_b32 v6, {OOB}')
        A('v_cmp_gt_u32 vcc, 28, v0\nv_cndmask_b32 v5, v6, v5, vcc')
        for k, p in enumerate(cfg.get('order', (40, 42))):
            prep.srd(A, 20, p, prep.W_BYTES)
            A(f'buffer_load_dword v{252+k}, v5, s[20:23], s11 offen'); nt += 1
    A(f"""s_cmp_lg_u32 s9, 0
    s_cbranch_scc1 M_ranked
    {'s_lshr_b32 s3, s2, 3' if cfg.get('fakerank') else f's_waitcnt vmcnt({nt})'}
    {'' if cfg.get('fakerank') else 'v_readfirstlane_b32 s3, v249'}
    v_and_b32 v4, 7, v0
    v_lshlrev_b32 v4, 5, v4
    s_lshl_b32 s11, s12, 5
    s_cmp_lt_u32 s3, 32
    s_cselect_b32 s15, 0, 1
    s_add_u32 s3, s3, s11
    s_cmp_eq_u32 s15, 0
    s_cbranch_scc1 M_have""")
    A("""v_mov_b32 v3, 1
    s_mov_b64 exec, 1
    buffer_atomic_add v3, off, s[48:51], 0 offset:4 sc0 sc1
    s_waitcnt vmcnt(0)
    s_mov_b64 exec, -1
    v_readfirstlane_b32 s15, v3""")
    counts(A, 'M_ovf', 'M_exit0')
    A('s_cmp_lt_u32 s46, 256\ns_cbranch_scc1 M_ovf_again\ns_mov_b32 s3, 0')
    for x in range(8):
        A(f'v_readlane_b32 s11, v3, {x}\ns_min_u32 s11, s11, 32\ns_sub_u32 s16, 32, s11')
        A(f's_cmp_lt_u32 s15, s16\ns_cbranch_scc0 M_nx{x}\ns_add_u32 s3, s11, s15\ns_add_u32 s3, s3, {32*x}\ns_branch M_have\nM_nx{x}:\ns_sub_u32 s15, s15, s16')
    A('M_exit0:\ns_endpgm\nM_ovf_again:')
    A('s_branch M_ovf')
    A("""M_have:
    v_mov_b32 v7, s3
    ds_write_b32 v2, v7
    s_waitcnt lgkmcnt(0)
M_ranked:
    s_barrier
    ds_read_b32 v7, v2
    s_waitcnt lgkmcnt(0)
    v_readfirstlane_b32 s3, v7""")
    rec.tline(A, dict(cfg, tlreg=3), 0)
    rec.dstamp(A, cfg, 3, 0, 3)
    A('s_barrier\ns_cmp_lt_u32 s3, 32\ns_cbranch_scc1 M_rec\ns_sub_u32 s10, s3, 32')
    prep.gen_gemm(A, cfg, 'M_exit0')
    A(f"""s_sub_u32 s11, s3, 32
    s_and_b32 s10, s11, 63
    s_lshr_b32 s11, s11, 6
    s_cmp_eq_u32 s11, 2
    s_cbranch_scc1 M_F
    s_cmp_eq_u32 s11, 3
    s_cbranch_scc1 {'M_exit' if cfg.get('tonq') else 'M_T'}""")
    if cfg.get('tonq'):
        A(f's_cmp_lg_u32 s11, {cfg["tonq"]}\ns_cbranch_scc1 M_noT\ns_cmp_lt_u32 s10, 32\ns_cbranch_scc1 M_T\nM_noT:')
    A(f"""s_and_b32 s12, s10, 3
    s_lshr_b32 s10, s10, 2
    s_cmp_eq_u32 s11, 1
    s_cbranch_scc1 M_Q""")
    workers.gen_V(A, cfg, 'WV', 'M_exit')
    A('M_Q:'); workers.gen_Q(A, cfg, 'WQ', 'M_exit')
    A('M_T:'); workers.gen_T(A, cfg, 'WT', 'M_exit', f's_barrier\ns_mov_b32 s11, {cfg["tonq"]}\ns_branch M_noT' if cfg.get('tonq') else 's_endpgm')
    A('M_F:'); workers.gen_F(A, cfg, 'WF', 'M_exit')
    A('M_exit:\ns_endpgm')
    def mode(lab):
        A(f'v_mov_b32 v2, 0x27c00\ns_cmp_lg_u32 s9, 0\ns_cbranch_scc1 {lab}_ss')
        A('v_and_b32 v4, 7, v0\nv_lshlrev_b32 v4, 5, v4')
        counts(A, f'{lab}_cnt', 'R_exit')
        A(f's_mov_b32 s30, 0\ns_cmp_ge_u32 s47, 32\ns_cbranch_scc1 {lab}_md\ns_mov_b32 s30, 1\ns_cmp_ge_u32 s46, 256\ns_cbranch_scc1 {lab}_md')
        A(f's_branch {lab}_cnt\n{lab}_md:')
        A(f'v_mov_b32 v3, s30\nds_write_b32 v2, v3\ns_waitcnt lgkmcnt(0)\n{lab}_ss:\ns_barrier')
        A(f'ds_read_b32 v3, v2\ns_waitcnt lgkmcnt(0)\nv_readfirstlane_b32 s30, v3')
    def help_a(lab):
        nt_ = cfg.get('helpa', 0)
        if not nt_: return
        A(f's_lshl_b32 s11, s10, 7\ns_add_u32 s11, s11, {FA}\ns_mov_b32 s19, 0x40000')
        A(f'{lab}_ha:\nbuffer_load_dword v3, off, s[4:7], s11 sc1\ns_sub_u32 s19, s19, 1\ns_cbranch_scc1 R_exit')
        A(f's_waitcnt vmcnt(0)\nv_cmp_gt_u32 vcc, 14, v3\ns_cbranch_vccnz {lab}_ha')
        A(f's_mul_i32 s33, s10, {28*14336}\ns_add_u32 s33, s33, {AF}\ns_lshr_b32 s11, s9, 1\ns_mul_i32 s11, s11, {14*14336}\ns_add_u32 s33, s33, s11')
        A(f'v_lshlrev_b32 v4, 7, v0\nv_min_u32 v5, 47, v0\nv_lshlrev_b32 v5, 7, v5\ns_and_b32 s34, s9, 1')
        for k, (t0_, t1_) in enumerate(((6, 7), (5, 13), (4, 12), (3, 11))[:nt_]):
            A(f's_mul_i32 s11, s34, {(t1_-t0_)*14336}\ns_add_u32 s11, s11, s33\ns_add_u32 s11, s11, {t0_*14336}')
            A(f'buffer_load_dword v102, v4, s[4:7], s11 offen\ns_add_u32 s11, s11, 8192\nbuffer_load_dword v102, v5, s[4:7], s11 offen')
    def start_sync(w, lab):
        if lab != 'RA': help_a(lab)
        if cfg.get('tl'): A('s_waitcnt vmcnt(0)')
        rec.tline(A, dict(cfg, tlreg=3), 1)
        if lab.endswith('l'):
            A(f'v_min_u32 v4, 1, v0\nv_lshlrev_b32 v4, 7, v4\ns_mov_b32 s11, {FVX}\ns_mov_b32 s19, 0x40000')
            A(f'{lab}_fv:\nbuffer_load_dword v3, v4, s[4:7], s11 offen sc1\ns_sub_u32 s19, s19, 1\ns_cbranch_scc1 R_exit')
            A(f's_waitcnt vmcnt(0)\nv_cmp_gt_u32 vcc, 16, v3\ns_cbranch_vccnz {lab}_fv')
            if cfg.get('tl'):
                A('s_sub_u32 s9, s9, 2'); rec.tline(A, dict(cfg, tlreg=3), 3); A('s_add_u32 s9, s9, 2')
        elif cfg.get('warm', 1) and lab == 'RA':
            A(f's_lshl_b32 s11, s3, 2\ns_add_u32 s11, s11, s9\ns_lshl_b32 s11, s11, 11\ns_add_u32 s11, s11, {MS}\nv_lshlrev_b32 v4, 5, v0')
            A('buffer_load_dword v3, v4, s[4:7], s11 offen sc1')
            if cfg.get('warmx', 1):
                A(f's_sub_u32 s11, s11, {MS}\ns_lshr_b32 s11, s11, 2\ns_add_u32 s11, s11, {XF + 28672}\nv_lshlrev_b32 v4, 3, v0\nbuffer_load_dword v3, v4, s[4:7], s11 offen sc1')
        A(f's_mov_b32 s19, {rec.SPIN_MAX}')
        rec.tline(A, dict(cfg, tlreg=3), 2)
        rec.dstamp(A, cfg, 4, 0, 3); rec.dstamp(A, cfg, 5, 31, 3)
    c = dict(BEST); c.update(cfg)
    c.setdefault('start_sync', start_sync); c.setdefault('finish', lambda w, lab: (rec.tline(A, dict(cfg, tlreg=3, tlclk=1), 4), rec.dstamp(A, cfg, 6, 0, 3), rec.dretry(A, cfg)))
    def loop_top(w, lab):
        if cfg.get('ds'):
            A(f's_cmp_lg_u32 s8, 2\ns_cbranch_scc1 {lab}_ds2'); rec.dstamp(A, cfg, 12, 0, 3); A(f'{lab}_ds2:')
        if cfg.get('tl'):
            for k, st in zip((3, 5, 6), cfg.get('tlsteps', (1, 16, 32))):
                A(f's_cmp_lg_u32 s8, {st}\ns_cbranch_scc1 {lab}_lt{k}'); rec.tline(A, dict(cfg, tlreg=3, tlclk=1), k); A(f'{lab}_lt{k}:')
    c.setdefault('loop_top', loop_top)
    if cfg.get('locala') and not cfg.get('fakeloc'):
        A('M_rec:\ns_and_b32 s10, s3, 15\ns_cmp_ge_u32 s3, 16\ns_cbranch_scc1 M_misc')
        prep.local_A(A, cfg)
        A('s_cmp_lg_u32 s9, 0\ns_cbranch_scc1 M_prep')
        prep.zero_ready(A, 'M_zr', 'R_exit')
        A('s_branch M_prep\nM_misc:')
    elif cfg.get('amisc'):
        A('M_rec:\ns_and_b32 s10, s3, 15\ns_cmp_lt_u32 s3, 16\ns_cbranch_scc1 M_misc')
        A('s_cmp_lg_u32 s9, 0\ns_cbranch_scc1 M_prep')
        prep.zero_ready(A, 'M_zr', 'R_exit')
        A('s_branch M_prep\nM_misc:')
    else:
        A('M_rec:\ns_mov_b32 s10, s3')
    prep.gen_misc(A, cfg, 'R_exit')
    A('M_prep:')
    from expr import V, Sg, sel_lt
    l = V('v0')
    def touch(lab, sbase, n):
        A(f'v_lshlrev_b32 v4, 7, v0')
        for k in range(n):
            A(f'buffer_load_dword v30, v4, s[4:7], {sbase} offen\ns_add_u32 {sbase}, {sbase}, 8192')
    def pre_a():
        nb = cfg.get('helpb', 0)
        if nb:
            hh = (Sg('s10') >> 2) * 4 + 2 + ((Sg('s10') >> 1) & 1)
            rec.wait_lanes(A, 'RA_wb', l * 0 + FB + hh * 128, l * 0 + 14, 'R_exit')
            A(f's_lshr_b32 s11, s10, 2\ns_lshl_b32 s11, s11, 2\ns_add_u32 s11, s11, 2\ns_bfe_u32 s33, s10, 0x10001\ns_add_u32 s11, s11, s33\ns_mul_i32 s11, s11, {14*28672}')
            A(f's_and_b32 s33, s10, 1\ns_lshl_b32 s33, s33, 2\ns_add_u32 s33, s33, s9\ns_mul_i32 s33, s33, 50176\ns_add_u32 s11, s11, s33\ns_add_u32 s33, s11, {BF}')
            touch('RA_tb', 's33', nb)
        if cfg.get('locala'): rec.wait_lanes(A, 'RA_wa', sel_lt(l, 1, FA + 2048 + Sg('s10') * 128, FX), sel_lt(l, 1, 7, workers.nfx(cfg)), 'R_exit')
        else: rec.wait_lanes(A, 'RA_wa', sel_lt(l, 1, FA + Sg('s10') * 128, FX), sel_lt(l, 1, 14, workers.nfx(cfg)), 'R_exit')
    c['pre_a'] = pre_a
    def mid_weights(spare):
        if cfg.get('codetouch2', 1):
            A('s_lshl_b32 s33, s3, 2\ns_add_u32 s33, s33, s9')
            rec.code_touch(A, 'M_rec', 'M_end', 's33', 3, 'v2', spare)
    c['mid_weights'] = mid_weights
    hs = cfg.get('halfsig', 0)
    def mid_b(lab, k):
        if k == 0:
            A(f's_lshl_b32 s34, s9, 9\ns_add_u32 s34, s34, {FB}\nv_and_b32 v4, 3, v0\nv_lshlrev_b32 v4, 7, v4\ns_mov_b32 s19, 0x40000')
            A('buffer_load_dword v3, v4, s[4:7], s34 offen sc1')
            return
        A(f's_waitcnt vmcnt(25)\n{lab}_mc:\nv_cmp_gt_u32 vcc, 14, v3\ns_cbranch_vccz {lab}_mo')
        A(f'buffer_load_dword v3, v4, s[4:7], s34 offen sc1\ns_sub_u32 s19, s19, 1\ns_cbranch_scc1 R_exit')
        A(f's_waitcnt vmcnt(0)\ns_branch {lab}_mc\n{lab}_mo:')
    if hs: c['mid_b'] = mid_b
    c['pre_b'] = lambda: rec.wait_lanes(A, 'RB_wb', sel_lt(l, 16, FB + (2048 if hs else 0) + l * 128, FX), sel_lt(l, 16, 14, 0 if cfg.get('amisc') else workers.nfx(cfg)), 'R_exit')
    mode('RM')
    A('s_and_b32 s10, s3, 15\ns_cmp_ge_u32 s3, 16\ns_cbranch_scc1 M_B')
    rec.gen_A(A, c, 'RA', 'R_exit')
    A('R_exit:\ns_endpgm\nM_B:')
    rec.gen_B(A, c, 'RB', 'R_exit')
    A('M_end:')

def generate(cfg={}, header=''):
    K = Asm(); gen_main(K, cfg)
    return build.assemble([(build.NAME + '_kernel', K.lines, 256, 256, 163840, 512, 256)], header)

DOC = """;
"""

if __name__ == '__main__':
    ref = open(f'cdna_kernels/{build.NAME}.s.ref').read().split('\n')
    header = '\n'.join(l for l in ref if l.startswith(';') and '@launch' not in l and 'Override' not in l and 'grid=ceil' not in l) + '\n' + DOC
    import sys, json
    if len(sys.argv) > 2: open(sys.argv[1], 'w').write(generate(json.loads(sys.argv[2]), header))
    else: open(f'cdna_kernels/{build.NAME}.s', 'w').write(generate({}, header))
```

```python
from asmdsl import Asm
from expr import X, V, Sg, Emitter, ev, sel_lt, wrap
from layout import *
import numpy as np

SRD = 's[4:7]'
def vr(a, n=1): return f'v{a}' if n == 1 else f'v[{a}:{a+n-1}]'
def wreg(o):
    return f'a[{8*o}:{8*o+7}]' if o < 32 else f'v[{120+8*(o-32)}:{127+8*(o-32)}]'
def wquad(o, b):
    return f'a[{8*o+4*b}:{8*o+4*b+3}]' if o < 32 else f'v[{120+8*(o-32)+4*b}:{123+8*(o-32)+4*b}]'

class Wv:
    def __init__(self, A, cfg):
        self.A = A; self.vm = []; self.lg = []; self.cfg = cfg; self.nst = 0
    def __call__(self, t): self.A(t)
    def vmem(self, t, tag=None): self.A(t); self.vm.append(tag)
    def ds(self, t, tag=None): self.A(t); self.lg.append(tag)
    def wait(self, vm=None, lg=None):
        parts = []
        if vm is not None and vm in self.vm:
            i = len(self.vm) - 1 - self.vm[::-1].index(vm)
            parts.append(f'vmcnt({len(self.vm)-1-i})'); self.vm = self.vm[i+1:]
        if lg is not None and lg in self.lg:
            i = len(self.lg) - 1 - self.lg[::-1].index(lg)
            n = min(len(self.lg) - 1 - i, 15)
            parts.append(f'lgkmcnt({n})'); self.lg = self.lg[i+1:]
        if parts: self.A('s_waitcnt ' + ' '.join(parts))
    def wait_all_lg(self): self.A('s_waitcnt lgkmcnt(0)'); self.lg = []
    def wait_all_vm(self): self.A('s_waitcnt vmcnt(0)'); self.vm = []
    def stamp(self, name=None):
        if self.cfg.get('stamps'):
            assert self.nst < 12
            self.A(f's_memtime s[{60+2*self.nst}:{61+2*self.nst}]'); self.nst += 1
    def dump_stamps(self, lab):
        if not self.cfg.get('stamps'): return
        A = self.A
        A(f's_waitcnt lgkmcnt(0)\ns_cmp_lg_u32 s8, 6\ns_cbranch_scc1 {lab}_nocal')
        A(f's_memrealtime s[96:97]\ns_waitcnt lgkmcnt(0)\n{lab}_cal:\ns_memrealtime s[98:99]\ns_memtime s[100:101]\ns_waitcnt lgkmcnt(0)\ns_cmp_eq_u32 s96, s98\ns_cbranch_scc1 {lab}_cal')
        for k in range(12): A(f's_mov_b32 s{84+k}, 0')
        A(f'{lab}_nocal:\ns_cmp_lt_u32 s8, 8\ns_cbranch_scc1 {lab}_nodump\ns_cmp_gt_u32 s8, 57\ns_cbranch_scc1 {lab}_nodump')
        for k in range(self.nst): A(f's_sub_u32 s11, s{60+2*k}, s100\ns_add_u32 s{84+k}, s{84+k}, s11')
        A(f's_cmp_lg_u32 s8, 57\ns_cbranch_scc1 {lab}_nodump')
        A('s_lshl_b32 s11, s3, 2\ns_add_u32 s11, s11, s9\ns_lshl_b32 s11, s11, 6')
        A(f's_add_u32 s11, s11, {DBG}')
        A(f'v_mov_b32 v0, s98\nv_mov_b32 v2, 0x4000\nbuffer_store_dword v0, v2, {SRD}, s11 offen')
        for k in range(self.nst):
            A(f'v_mov_b32 v0, s{84+k}\nv_mov_b32 v1, {4*k}\nbuffer_store_dword v0, v1, {SRD}, s11 offen')
        A(f's_waitcnt vmcnt(0)\n{lab}_nodump:')

def tline(A, cfg, k, base=0, idx='s3'):
    if not cfg.get('tl'): return
    lab = A.newlabel(f'TL{base}')
    A(f's_cmp_lg_u32 s9, 0\ns_cbranch_scc1 {lab}')
    A(f's_memrealtime s[96:97]\ns_lshl_b32 s98, {idx}, 6\ns_add_u32 s98, s98, {DBG + 0x8000 + base + 4*k}\ns_waitcnt lgkmcnt(0)')
    A(f'v_accvgpr_write_b32 a255, s96' if False else f'v_mov_b32 v{cfg.get("tlreg", 95)}, s96')
    A(f'buffer_store_dword v{cfg.get("tlreg", 95)}, off, {SRD}, s98')
    if cfg.get('tlclk'):
        A(f's_memtime s[96:97]\ns_waitcnt lgkmcnt(0)\nv_mov_b32 v{cfg.get("tlreg", 95)}, s96\nbuffer_store_dword v{cfg.get("tlreg", 95)}, off, {SRD}, s98 offset:32')
    A(f'{lab}:')

def dstamp(A, cfg, k, slot, reg):
    if not cfg.get('ds'): return
    lab = A.newlabel('DS')
    A(f's_cmp_lg_u32 s9, 0\ns_cbranch_scc1 {lab}\ns_cmp_lg_u32 s3, {slot}\ns_cbranch_scc1 {lab}')
    A(f's_load_dwordx2 s[96:97], s[0:1], 104\ns_memrealtime s[94:95]\ns_waitcnt lgkmcnt(0)\ns_mov_b32 s98, 256\ns_mov_b32 s99, 0x20000')
    A(f's_and_b32 s94, s94, 0xfffff\nv_mov_b32 v{reg}, s94\nbuffer_store_dword v{reg}, off, s[96:99], 0 offset:{4*k}\n{lab}:')

def dretry(A, cfg):
    if not cfg.get('ds'): return
    A('s_load_dwordx2 s[96:97], s[0:1], 104\ns_waitcnt lgkmcnt(0)\ns_mov_b32 s98, 256\ns_mov_b32 s99, 0x20000')
    A('v_mov_b32 v3, s20\ns_mov_b64 exec, 1\nbuffer_atomic_add v3, off, s[96:99], 0 offset:52 sc1\ns_mov_b64 exec, -1')

def smf(acc, a, b, idx): return f'v_smfmac_f32_16x16x64_bf16 {vr(acc,4)}, {a}, {b}, {idx}'

KM = 3
MREG = [16, 20, 24, 0, 4, 8, 12]
ACC = [28 + 4 * t for t in range(7)]
vIDX, vL16, vHUp, vHUs = 'v119', 'v118', 'v117', 'v116'
vKA = ['v115', 'v114', 'v113', 'v112', 'v111', 'v110', 'v109']
sSTEP, sW, sR = 's8', 's9', 's10'
sKK = [f's{12+t}' for t in range(7)]
sSPIN, sRETRY, sS1 = 's19', 's20', 's31'
sMO = ['s36', 's37', 's38']
SPIN_MAX = 0x80000
L_K = 131072

def common_consts(em, A, lab, rot, swap=False):
    l = V('v0')
    em.emit(l & 63, 'v0')
    em.emit(sel_lt(l & 2, 1, 0x44444444, 0xEEEEEEEE), vIDX)
    em.emit(l * 16, vL16)
    if swap: A(f's_xor_b32 s33, {sW}, 2\ns_lshl_b32 s33, s33, 1')
    else: A(f's_lshl_b32 s33, {sW}, 1\ns_add_u32 s33, s33, {rot}')
    for _ in range(3): A('s_cmp_ge_u32 s33, 7\ns_cselect_b32 s35, 7, 0\ns_sub_u32 s33, s33, s35')
    for t in range(7):
        A(f's_add_u32 s34, s33, {t}\ns_cmp_ge_u32 s34, 7\ns_cselect_b32 s35, 7, 0\ns_sub_u32 s34, s34, s35\ns_lshl_b32 {sKK[t]}, s34, 10')
    em.emit(L_K + l * 16, 'v1')
    for t in range(7): A(f'v_add_u32 {vKA[t]}, {sKK[t]}, v1')
    A(f's_cmp_lg_u32 {sW}, {1 if swap else 3}\ns_cbranch_scc1 {lab}_w3skip\nv_add_u32 {vKA[1]}, 7168, v1\n{lab}_w3skip:')

def step_consts(A, solo=False):
    A(f's_and_b32 s11, {sSTEP}, {0 if solo else 3}\ns_lshl_b32 s33, s11, 13\ns_add_u32 s33, s33, {MS}')
    for t in range(3): A(f's_add_u32 {sMO[t]}, s33, {sKK[t]}')
    A(f's_add_u32 {sS1}, {sSTEP}, 1')

def align(A, cfg, key):
    a = cfg.get(key)
    if a:
        A(f'.p2align {a[0]}')
        for _ in range(a[1]): A('s_nop 0')

def poll(w, lab, vp, sval, tmo, nl):
    w(f'v_mov_b32 {vp}, 0')
    if w.cfg.get('pollmask', 1) and nl < 64: w(f's_mov_b32 exec_lo, {hex((1 << nl) - 1) if nl < 32 else -1}\ns_mov_b32 exec_hi, 0')
    align(w.A, w.cfg, 'apoll')
    w(f'{lab}:')
    if w.cfg.get('pollnop'): w(f's_nop {w.cfg["pollnop"]-1}')
    w(f'buffer_load_dword {vp}, {vHUp}, {SRD}, 0 offen sc1')
    w(f's_waitcnt vmcnt({w.cfg.get("polldepth", 40)})')
    w(f'v_cmp_gt_u32 vcc, {sval}, {vp}')
    w(f's_sub_u32 {sSPIN}, {sSPIN}, 1\ns_cbranch_scc1 {tmo}')
    w(f's_cbranch_vccnz {lab}')
    if w.cfg.get('pollmask', 1) and nl < 64: w('s_mov_b64 exec, -1')
    w.vm = []

def zero(w, a, n):
    for i in range(a, a + n, 2): w(f'v_mov_b64 {vr(i,2)}, 0')

def sentinel_check(w, regs, tmp):
    w(f'v_max3_u32 {tmp}, v{regs[0]}, v{regs[1]}, v{regs[2]}')
    r = regs[3:]
    while len(r) >= 2:
        w(f'v_max3_u32 {tmp}, {tmp}, v{r[0]}, v{r[1]}'); r = r[2:]
    if r: w(f'v_max_u32 {tmp}, {tmp}, v{r[0]}')
    w(f'v_cmp_eq_u32 vcc, -1, {tmp}')

def weight_stream(w, fill, comb_write, lab, tmp, tmo=None, mpoll=False, early=None):
    cfg = w.cfg; ND = cfg.get('nd', 2)
    align(w.A, cfg, 'aB')
    w(f'{lab}_mload:')
    w.vm = []; w.lg = []
    if mpoll:
        assert ND == 2
        for t in range(ND):
            w(f'buffer_load_dwordx4 {vr(MREG[t],4)}, {vL16}, {SRD}, {sMO[t]} offen sc1')
        if cfg.get('mnop'): w(f's_nop {cfg["mnop"]-1}')
        w(f's_waitcnt vmcnt({cfg.get("bdepth", 0)})')
        sentinel_check(w, list(range(MREG[0], MREG[0] + 8)), f'v{tmp}')
        w(f's_sub_u32 {sSPIN}, {sSPIN}, 1\ns_cbranch_scc1 {tmo}')
        w(f's_cbranch_vccnz {lab}_mload')
        w.vm = ['MP']
        if early: early()
    else:
        for t in range(ND):
            w(f's_setprio {ND-1-t}')
            w.vmem(f'buffer_load_dwordx4 {vr(MREG[t],4)}, {vL16}, {SRD}, {sMO[t]} offen sc1', f'M{t}')
        if early: early()
    order = [(tl, t) for t in range(KM) for tl in range(7)] + [(tl, t) for tl in range(7) for t in range(KM, 7)]
    pre = {}; mem = {}; val = {}
    ad = lambda d, n, f: d.setdefault(n, []).append(f)
    w1 = 1 if mpoll else cfg.get('w1', 3)
    for t, s0 in ((0, 0), (1, w1)):
        m = MREG[t]
        ad(pre, s0, lambda t=t: w.wait(vm=f'M{t}'))
        if cfg.get('bw64'):
            for k in range(2): ad(mem, 2 * t + k, lambda t=t, m=m, k=k: w.ds(f'ds_write_b64 {vKA[t]}, {vr(m+2*k,2)} offset:{8*k}'))
        else: ad(mem, s0, lambda t=t, m=m: w.ds(f'ds_write_b128 {vKA[t]}, {vr(m,4)}'))
    if mpoll:
        bs = w1 + cfg.get('mbar', 4)
        def sync():
            w.wait_all_lg(); w('s_barrier')
        ad(pre, 20, lambda: w.wait(vm='MP'))
    else:
        m0, m1, m2 = MREG[0], MREG[1], MREG[2]
        ad(val, 1, lambda: w(f'v_max3_u32 v{tmp}, v{m0}, v{m0+1}, v{m0+2}'))
        c = w1 + 1
        ad(val, c, lambda: w(f'v_max3_u32 v{tmp}, v{tmp}, v{m0+3}, v{m1}'))
        ad(val, c + 1, lambda: w(f'v_max3_u32 v{tmp}, v{tmp}, v{m1+1}, v{m1+2}'))
        if ND == 2:
            ad(val, c + 2, lambda: w(f'v_max_u32 v{tmp}, v{tmp}, v{m1+3}'))
            c += 3
        else:
            ad(pre, c + 2, lambda: w.wait(vm='M2'))
            ad(val, c + 2, lambda: w(f'v_max3_u32 v{tmp}, v{tmp}, v{m1+3}, v{m2}'))
            ad(val, c + 3, lambda: w(f'v_max3_u32 v{tmp}, v{tmp}, v{m2+1}, v{m2+2}'))
            ad(val, c + 4, lambda: w(f'v_max_u32 v{tmp}, v{tmp}, v{m2+3}'))
            c += 5
        ad(val, c, lambda: w(f'v_cmp_eq_u32 vcc, -1, v{tmp}'))
        bs = c + cfg.get('bdelay', 2)
        def sync():
            w(f's_cbranch_vccnz {lab}_mretry')
            w.wait_all_lg(); w('s_barrier')
    ad(mem, bs, sync)
    n = 0
    for t in range(ND, 7):
        m = MREG[t]
        ad(mem, bs + n, lambda t=t, m=m: w.ds(f'ds_read_b128 {vr(m,4)}, {vKA[t]}', f'M{t}'))
        n += 1
    per = 7 - KM; base = 7 * KM
    for tl in range(6):
        s0 = base + per * (tl + 1) + 1
        ad(val, s0, lambda tl=tl: w(f'v_add_f32 v{tmp}, v{ACC[tl]}, v{ACC[tl]+2}'))
        ad(val, s0 + 1, lambda tl=tl: w(f'v_add_f32 v{tmp+1}, v{ACC[tl]+1}, v{ACC[tl]+3}'))
        ad(val, s0 + 2, lambda: w(f'v_cvt_pk_bf16_f32 v{tmp+2}, v{tmp}, v{tmp+1}'))
        ad(mem, s0 + 3, lambda tl=tl: comb_write(tl, f'v{tmp+2}'))
    fl, fv = fill(bs + n)
    for k, fs in fv.items():
        for f in fs: ad(val, k, f)
    if cfg.get('stamps'):
        for k in cfg.get('bfine', [0]): ad(fl, k, lambda: w.stamp())
    for n, (tl, t) in enumerate(order):
        for f in pre.get(n, []): f()
        w.wait(vm=f'M{t}', lg=f'M{t}')
        w('s_nop 3' if cfg.get('nov') else smf(ACC[tl], vr(MREG[t], 4), wreg(tl * 7 + t), vIDX))
        for f in mem.get(n, []): f()
        for f in fl.get(n, []): f()
        for f in val.get(n, []): f()
    assert all(k < 49 for k in fl) and all(k < 49 for k in val)
    return [f for k in sorted(mem) if k >= 49 for f in mem[k]]

MREGA = [12, 16, 20, 24, 0, 4, 8]
def a_consts(em, A):
    l = V('v0')
    em.emit(l & 63, 'v0')
    em.emit(sel_lt(l & 2, 1, 0x44444444, 0xEEEEEEEE), vIDX)
    em.emit(l * 16, vL16)
    for t in range(4): A(f's_add_u32 s34, {sW}, {sR}\ns_add_u32 s34, s34, {t}\ns_and_b32 s34, s34, 3\ns_lshl_b32 {sKK[t]}, s34, 10')
    for t in range(4, 7): A(f's_movk_i32 {sKK[t]}, {t*1024}')
    em.emit(L_K + l * 16, vKA[4])
    for t in range(4): A(f'v_add_u32 {vKA[t]}, {sKK[t]}, {vKA[4]}')
    A(f's_lshl_b32 s29, {sW}, 10\ns_add_u32 s29, s29, 4096')

def a_step_consts(A, solo=False):
    A(f's_and_b32 s11, {sSTEP}, {0 if solo else 3}\ns_lshl_b32 s33, s11, 13\ns_add_u32 s33, s33, {MS}')
    A(f's_add_u32 s36, s33, {sKK[0]}\ns_add_u32 s37, s33, {sKK[1]}\ns_add_u32 s38, s33, s29\ns_add_u32 s39, s29, {L_K}')
    A(f's_add_u32 {sS1}, {sSTEP}, 1')

def a_stream(w, fill, comb_write, lab, tmp, tmo):
    cfg = w.cfg; MR = MREGA; KMA = 4; NE = cfg.get('ne', 2)
    align(w.A, cfg, 'aA')
    w(f'{lab}_mload:')
    w.vm = []; w.lg = []
    for t in range(NE): w(f'buffer_load_dwordx4 {vr(MR[t],4)}, {vL16}, {SRD}, s{36+t} offen sc1')
    if cfg.get('mnop'): w(f's_nop {cfg["mnop"]-1}')
    w(f's_waitcnt vmcnt({0 if cfg.get("hum") else cfg.get("mdepth", 2)})')
    if cfg.get('hum') == 1: pass
    elif cfg.get('poll1'):
        assert NE == 1 and cfg.get('nanchk', 1)
        w(f'v_cmp_eq_u32 vcc, -1, v{MR[0]+3}')
    else: sentinel_check(w, list(range(MR[0], MR[0] + 4 * NE)), f'v{tmp}')
    if cfg.get('hum') != 1:
        w(f's_sub_u32 {sSPIN}, {sSPIN}, 1\ns_cbranch_scc1 {tmo}')
        w(f's_cbranch_vccnz {lab}_mload')
    w(f'{lab}_again:')
    order = [(tl, t) for t in range(KMA) for tl in range(7)] + [(tl, t) for tl in range(7) for t in range(KMA, 7)]
    pre = {}; mem = {}; val = {}
    ad = lambda d, n, f: d.setdefault(n, []).append(f)
    ew = cfg.get('ew', 128)
    if ew == 128:
        if NE == 1: w.ds(f'ds_write_b128 {vKA[0]}, {vr(MR[0],4)}')
        else: ad(mem, 0, lambda: w.ds(f'ds_write_b128 {vKA[0]}, {vr(MR[0],4)}'))
    elif ew == 64:
        for k in range(2): ad(mem, k, lambda k=k: w.ds(f'ds_write_b64 {vKA[0]}, {vr(MR[0]+2*k,2)} offset:{8*k}'))
    else:
        for k in range(4): ad(mem, k, lambda k=k: w.ds(f'ds_write_b32 {vKA[0]}, v{MR[0]+k} offset:{4*k}'))
    bs = cfg.get('ebar', 2 if NE == 1 else 8)
    ad(mem, bs, lambda: (w.wait_all_lg(), w('s_barrier')))
    for t in range(NE, 4):
        ad(mem, bs + (t - NE), lambda t=t: w.ds(f'ds_read_b128 {vr(MR[t],4)}, {vKA[t]}', f'M{t}'))
    l0 = cfg.get('lslot', 3); lb = cfg.get('lbar', 17)
    ad(mem, l0 - 1, lambda: w('s_mov_b32 m0, s39'))
    ad(mem, l0, lambda: w.vmem(f'buffer_load_dwordx4 {vL16}, {SRD}, s38 offen sc1 lds', 'L'))
    ad(mem, lb, lambda: (w.wait(vm='L'), w('s_barrier')))
    for t in (4, 5, 6): ad(mem, lb + (t - 4) // 2, lambda t=t: w.ds(f'ds_read_b128 {vr(MR[t],4)}, {vKA[4]} offset:{t*1024}', f'M{t}'))
    nanchk = cfg.get('nanchk', 1)
    if nanchk:
        cs = lb + 1
        ad(val, 34, lambda: w(f'v_cmp_u_f32 vcc, v{tmp}, v{tmp+1}'))
        ad(mem, 36, lambda: w(f's_cbranch_vccnz {lab}_lretry\n{lab}_lok:'))
    else:
        lc = lb + 3
        w.lretry_state = None
        ad(pre, lc + 1, lambda: w.wait(lg='M5'))
        ad(val, lc + 1, lambda: w(f'v_max3_u32 v{tmp}, v0, v1, v2'))
        ad(val, lc + 2, lambda: w(f'v_max3_u32 v{tmp}, v{tmp}, v3, v4'))
        ad(pre, lc + 3, lambda: w.wait(lg='M6'))
        ad(val, lc + 3, lambda: w(f'v_max3_u32 v{tmp}, v{tmp}, v5, v6'))
        ad(val, lc + 4, lambda: w(f'v_max3_u32 v{tmp}, v{tmp}, v7, v8'))
        ad(val, lc + 5, lambda: w(f'v_max3_u32 v{tmp}, v{tmp}, v9, v10'))
        ad(val, lc + 6, lambda: (w(f'v_max_u32 v{tmp}, v{tmp}, v11'), w(f'v_cmp_eq_u32 vcc, -1, v{tmp}')))
        cs = lc + 7
        assert cs <= 27
        ad(mem, cs, lambda: w(f's_cbranch_vccnz {lab}_lretry\n{lab}_lok:'))
    per = 7 - KMA; base = 7 * KMA
    for tl in range(6):
        s0 = base + per * (tl + 1) + 1
        o = tmp + 2 if not (cfg.get('tw2') and tl % 2 == 0) else 97
        ad(val, s0, lambda tl=tl: w(f'v_add_f32 v{tmp}, v{ACC[tl]}, v{ACC[tl]+2}'))
        ad(val, s0 + 1, lambda tl=tl: w(f'v_add_f32 v{tmp+1}, v{ACC[tl]+1}, v{ACC[tl]+3}'))
        ad(val, s0 + 2, lambda o=o: w(f'v_cvt_pk_bf16_f32 v{o}, v{tmp}, v{tmp+1}'))
        if not cfg.get('tw2'): ad(mem, s0 + 3, lambda tl=tl, o=o: comb_write(tl, f'v{o}'))
        elif tl % 2: ad(mem, s0 + 3, lambda tl=tl, o=o: comb_write(tl, f'v97, v{o}'))
    fl, fv = fill(bs + 4 - NE, cs + 1)
    for k, fs in fv.items():
        for f in fs: ad(val, k, f)
    if cfg.get('stamps'):
        for k in cfg.get('fine', [0]): ad(fl, k, lambda: w.stamp())
    for n, (tl, t) in enumerate(order):
        for f in pre.get(n, []): f()
        w.wait(lg=f'M{t}')
        w('s_nop 3' if cfg.get('noa') else smf(ACC[tl], vr(MR[t], 4), wreg(tl * 7 + t), vIDX))
        for f in mem.get(n, []): f()
        for f in fl.get(n, []): f()
        for f in val.get(n, []): f()
    assert all(k < 49 for k in fl)
    return [f for k in range(49, 56) for f in mem.get(k, []) + val.get(k, [])]

def l_retry(w, lab, tmp, tmo):
    if w.cfg.get('nanchk', 1):
        w(f'{lab}_lretry:')
        sentinel_check(w, list(range(0, 28 if (w.cfg.get('poll1') or w.cfg.get('hum') == 1) else 12)), f'v{tmp+3}')
        w(f'v_mov_b32 v{tmp+3}, {sS1}\ns_cbranch_vccz {lab}_lok')
        w(f's_add_u32 {sRETRY}, {sRETRY}, 1\ns_sub_u32 {sSPIN}, {sSPIN}, 16\ns_cbranch_scc1 {tmo}')
        w('s_waitcnt vmcnt(0) lgkmcnt(0)\ns_barrier')
        zero(w, 28, 28)
        if w.cfg.get('poll1') or w.cfg.get('hum') == 1:
            w(f'buffer_load_dwordx4 {vr(MREGA[0],4)}, {vL16}, {SRD}, s36 offen sc1\ns_waitcnt vmcnt(0)')
        w(f's_branch {lab}_again')
        return
    w(f'{lab}_lretry:\ns_mov_b32 s33, m0\n{lab}_lretry2:')
    w(f's_add_u32 {sRETRY}, {sRETRY}, 1\ns_barrier\ns_mov_b32 m0, s39')
    w(f's_sub_u32 {sSPIN}, {sSPIN}, 4\ns_cbranch_scc1 {tmo}')
    w(f'buffer_load_dwordx4 {vL16}, {SRD}, s38 offen sc1 lds\ns_waitcnt vmcnt(0)\ns_barrier')
    for t in (4, 5, 6): w(f'ds_read_b128 {vr(MREGA[t],4)}, {vKA[4]} offset:{t*1024}')
    w('s_waitcnt lgkmcnt(0)')
    sentinel_check(w, list(range(0, 12)), f'v{tmp}')
    w(f's_cbranch_vccnz {lab}_lretry2\ns_mov_b32 m0, s33\ns_branch {lab}_lok')

def m_retry(w, lab, tmo):
    w(f'{lab}_mretry:')
    w(f's_add_u32 {sRETRY}, {sRETRY}, 1')
    w(f's_sub_u32 {sSPIN}, {sSPIN}, 8\ns_cbranch_scc1 {tmo}\ns_waitcnt vmcnt(0) lgkmcnt(0)')
    zero(w, 28, 28)
    w(f's_branch {lab}_mload')

def code_touch(A, start, end, sidx, shift, va, vd, sr=56):
    lab = A.newlabel('CT')
    A(f's_getpc_b64 s[{sr}:{sr+1}]\n{lab}:\ns_add_u32 s{sr}, s{sr}, {start}-{lab}\ns_addc_u32 s{sr+1}, s{sr+1}, ({start}-{lab})>>32')
    A(f's_mov_b32 s{sr+2}, {end}-{start}\ns_mov_b32 s{sr+3}, 0x20000\ns_lshl_b32 s11, {sidx}, {shift+6}\nv_lshlrev_b32 {va}, {shift}, v0')
    A(f'buffer_load_dword {vd}, {va}, s[{sr}:{sr+3}], s11 offen')

def wait_lanes(A, lab, addr, target, tmo):
    em = Emitter(A, [f'v{i}' for i in range(4, 13)])
    A(f's_cmp_lg_u32 s9, 0\ns_cbranch_scc1 {lab}_go')
    em.emit(addr, 'v1'); em.emit(target, 'v2')
    A(f's_mov_b32 s19, 0x40000\n{lab}:\nbuffer_load_dword v3, v1, {SRD}, 0 offen sc1')
    A(f's_sub_u32 s19, s19, 1\ns_cbranch_scc1 {tmo}\ns_waitcnt vmcnt(0)\nv_cmp_gt_u32 vcc, v2, v3\ns_cbranch_vccnz {lab}')
    A(f'{lab}_go:\ns_barrier')

def emit_modes(A, cfg, lab, loop):
    if cfg.get('modes', 2) == 1:
        loop(lab, cfg.get('st', '')); return
    A(f's_cmp_lg_u32 s30, 0\ns_cbranch_scc1 {lab}_slow')
    loop(lab + 'x', '')
    A(f'{lab}_slow:')
    loop(lab + 'y', 'sc1')

def load_weights(w, addr_of, spare='v102', slots=range(7), between=None):
    n = 0
    for bs_ in ([(0,), (1,)] if between else [(0, 1)]):
      if bs_ == (1,): between(1)
      for tl in range(7):
        for t in slots:
            for b in bs_:
                va, pre = addr_of(tl, t, b)
                w(pre)
                w(f'buffer_load_dwordx4 {wquad(tl*7+t, b)}, {va}, {SRD}, s11 offen {w.cfg.get("wfl", "")}')
                n += 1
                if between and n == 24: between(0)
                if n % 16 == 0: w(f's_waitcnt vmcnt({w.cfg.get("wdepth", 32)})')
                if n == (w.cfg.get('midn', 64) if len(slots) == 7 else 16) and w.cfg.get('mid_weights'): w.cfg['mid_weights'](spare)

A_X, A_T, A_R = 0, 65536, 77824
Z0, Z1, SACC, TSP0, TSP1, TMP = 56, 12, 80, 36, 40, 92
aKR, aKR3, aTW, aTW6, aTR, aXR, aRW, aRR = 'v108', 'v107', 'v106', 'v105', 'v104', 'v103', 'v102', 'v101'
aP, aKR2, aPOLL = 'v100', 'v99', 'v96'
sQ = ['s21', 's22', 's23', 's24']
sXS, sXL, sPW, sPR, sWL, sMASK = 's25', 's26', 's27', 's28', 's32', 's[52:53]'

def a_exprs(R128=False, TT=False):
    l = V('v0'); w = Sg(sW); h = Sg(sR)
    g = l >> 4; rho = l & 15
    half = (rho >> 1) & 1
    q0 = (w >> 1) * 7 + (w & 1) * 4; q3 = (w >> 1) * 7 + 3
    e = {}
    i = rho & 7
    kr = L_K + ((g >> 1) * 16 + (i >> 1) * 4 + (i & 1)) * 16 + (g & 1) * 8
    e[aKR] = kr + q0 * 512
    e[aKR3] = kr + q3 * 512
    e[aKR2] = kr + q0 * 512 + 1024
    tw = A_T + w * 3072 + (rho >> 2) * 192 + (rho & 1) * 32 + g * 8 + half * 4
    e[aTW] = tw
    e['v98'] = tw + 1536
    e[aTW6] = tw + 2304 + (w & 1) * 64
    e[aTR] = A_T + w * 3072 + g * 384 + ((l >> 3) & 1) * 64 + ((l >> 2) & 1) * 32 + (l & 3) * 8
    e[aXR] = A_X + w * 8192 + l * 16
    e[aRW] = A_R + w * 1536 + g * 384 + rho * 4
    if R128 == 1: e[aRW] = A_R + g * 1536 + (rho >> 1) * 32 + (w ^ g) * 8 + (rho & 1) * 4
    rr = l >> 5; pi = l & 31; pc = pi.min(19)
    e[aRR] = A_R + (w * 2 + rr) * 192 + sel_lt(pc, 4, pc * 8, pc * 8 + 32)
    if R128 == 2: e[aRR] = A_R + (sel_lt(pc, 4, 0, ((pc - 4) >> 3) + 1) * 2 + rr) * 288 + (w * 16 + sel_lt(pc, 4, pc, (pc - 4) & 7) * 2) * 4
    if R128 == 3: e[aRR] = sel_lt(pi, 20, A_R + (sel_lt(pc, 4, 0, ((pc - 4) >> 3) + 1) * 2 + rr) * 288 + (w * 16 + sel_lt(pc, 4, pc, (pc - 4) & 7) * 2) * 4, A_R + 256)
    if R128 == 1: e[aRR] = A_R + (w * 2 + rr) * 768 + sel_lt(pc, 4, pc * 32, pc * 32 + 128)
    if TT:
        al = (l >> 2) & 3; c = l & 3
        tb = A_T + w * 4096 + c * 64 + (g & 1) * 32 + (al & 1) * 8
        e[aTR] = tb + ((g >> 1) * 2 + (al >> 1)) * 272
        e[aTW6] = tb + ((g >> 1) * 2 + ((al >> 1) ^ ((g >> 1) & w & 1))) * 272 + 4 * 272
        e[aTW] = (g * 16 + (rho & 12) + (rho & 1) * 2 + ((rho >> 1) & 1)) * 16
        rb_ = A_T + 2304 + (sel_lt(pc, 4, 0, ((pc - 4) >> 3) + 1) * 2 + rr) * 288 + (w * 16 + sel_lt(pc, 4, pc, (pc - 4) & 7) * 2) * 4
        e[aRR] = sel_lt(pi, 20, rb_, A_T + 2304 + 256) if R128 == 3 else rb_
        e[aRW] = A_T + 4032 + w * 4 + l * 0
        e['v98'] = l * 0 + (A_T + 4032)
    row = w * 2 + rr
    rho_of = lambda hf: (row >> 1) * 4 + hf * 2 + (row & 1)
    pm = ((h >> 3) + 8) * 1024 + (((h >> 1) & 3) * 16 + rho_of(pi & 1)) * 16 + ((h & 1) * 2 + ((pi >> 1) & 1)) * 4
    t0 = (pc - 4) * 2
    px = (h >> 1) * 1024 + (((h & 1) * 2 + ((t0 >> 3) & 1)) * 16 + rho_of((t0 >> 1) & 1)) * 16 + (((t0 >> 2) & 1) * 2 + ((t0 >> 4) & 1)) * 4
    e[aP] = sel_lt(pi, 4, pm, sel_lt(pi, 20, px, OOB))
    return e

def check_a_exprs():
    e = a_exprs(); l = np.arange(64)
    for h in (0, 1, 7, 8, 15):
        for w in range(4):
            env = {'v0': l, sW: w, sR: h}
            p = ev(e[aP], env)
            for ln in range(64):
                pi = ln & 31
                assert p[ln] == (ps_off(h, 2 * w + (ln >> 5), pi) if pi < 20 else OOB)
check_a_exprs()

def gen_A(A, cfg, lab, tmo):
    w = Wv(A, cfg)
    em = Emitter(A, [f'v{i}' for i in range(2, 30)])
    a_consts(em, A)
    for k, x in a_exprs((3 if cfg.get('nomask') else 2) if cfg.get('rtid') else cfg.get('r128'), cfg.get('ttid')).items(): em.emit(x, k)
    l = V('v0')
    em.emit(HU1 + (l & 15) * 4, vHUp)
    if cfg.get('huall'): em.emit(sel_lt(l, 1, HU2 + (Sg(sR) * 4 + Sg(sW)) * 4, OOB), vHUs)
    else: em.emit(sel_lt(l + Sg(sW) * 64, 1, HU2 + Sg(sR) * 4, OOB), vHUs)
    nt = cfg.get('ntouch', 0)
    if nt:
        a = Sg(sR) * 4 + Sg(sW)
        em.emit(sel_lt(l, nt, ((a >> 5) * 1792 + (1792 - 32 * nt) + (a & 31) * nt + l) * 128, OOB), 'v110')
    A(f's_mov_b32 s52, 0xfffff\ns_mov_b32 s53, 0xfffff')
    A(f's_lshr_b32 s11, {sW}, 1')
    A(f's_mul_i32 s34, s11, 7\ns_and_b32 s35, {sW}, 1\ns_lshl_b32 s36, s35, 2\ns_add_u32 s36, s36, s34')
    for u in range(3): A(f's_add_u32 s37, s36, {u}\ns_lshl_b32 {sQ[u]}, s37, 10')
    A(f's_add_u32 s37, s34, 3\ns_lshl_b32 {sQ[3]}, s37, 10')
    A(f's_lshl_b32 {sWL}, {sW}, 13')
    A(f's_mul_i32 s38, {sR}, {28*14336}\ns_add_u32 s38, s38, {AF}')
    A(f's_mul_i32 s39, s35, 14336')
    def addr(tl, t, b):
        pre = f's_mul_i32 s11, {sQ[tl>>1]}, 28\ns_add_u32 s11, s11, s38\n'
        pre += (f's_add_u32 s11, s11, {14336*(tl&1) + 1024*b}\n' if tl < 6 else f's_add_u32 s11, s11, s39\ns_add_u32 s11, s11, {1024*b}\n')
        pre += f's_lshl_b32 s37, {sKK[t]}, 1\ns_add_u32 s11, s11, s37'
        return (aTW if cfg.get('ttid') else vL16), pre
    sXo = ['s44', 's45', 's46', 's47']; sXm = ['s48', 's49', 's50', 's51']
    def x_consts():
        A(f's_add_u32 {sXo[0]}, {sXS}, {sQ[0]}\ns_add_u32 {sXo[1]}, {sXS}, {sQ[3]}')
        A(f's_add_u32 {sXo[2]}, {sXo[0]}, 14336\ns_add_u32 {sXo[3]}, {sXo[1]}, 14336')
        A(f's_mov_b32 {sXm[0]}, {sXL}\ns_add_u32 {sXm[1]}, {sXL}, 3072\ns_add_u32 {sXm[2]}, {sXL}, 4096\ns_add_u32 {sXm[3]}, {sXL}, 7168')
    def x_m0(tt, u):
        if u in (0, 3): A(f's_mov_b32 m0, {sXm[2*tt + (u == 3)]}')
    def x_dma(tt, u, w=w):
        w.vmem(f'buffer_load_dwordx4 {vL16}, {SRD}, {sXo[2*tt + (u == 3)]} offen offset:{1024*u if u < 3 else 0} {cfg.get("xfl", "")} lds', 'X')
    if cfg.get('pre_a'): cfg['pre_a']()
    A(f's_mov_b32 {sXS}, {XF}\ns_mov_b32 {sXL}, {sWL}')
    x_consts()
    for tt in range(2):
        for u in range(4): x_m0(tt, u); x_dma(tt, u)
    load_weights(w, addr, 'v94', range(4, 7) if cfg.get('locala') else range(7))
    TT = cfg.get('ttid'); WST = 4096 if TT else 1728; RO = A_T + 2304 if TT else A_R
    em.emit(A_T + Sg(sW) * (4096 if TT else 3072) + l * 16, 'v1')
    A('v_mov_b64 v[4:5], 0\nv_mov_b64 v[6:7], 0')
    for k in range(3): A(f'ds_write_b128 v1, v[4:7] offset:{k*1024}')
    if cfg.get('rflag'): A(f'ds_write_b32 {aRW}, v4')
    if cfg.get('nomask'):
        em.emit(RO + 256 + Sg(sW) * WST + l * 0, 'v1')
        em.emit(sel_lt(Sg(sW) + l * 0, 1, 0xff800000, 0), 'v8')
        A('v_mov_b32 v9, v8\nds_write_b64 v1, v[8:9]')
    zero(w, 28, 28); zero(w, SACC, 12)
    A(f's_mov_b32 {sSTEP}, 0\ns_mov_b32 {sSPIN}, {SPIN_MAX}\ns_mov_b32 {sRETRY}, 0')
    A(f's_mul_i32 s35, {sW}, {WST}\ns_add_u32 s35, s35, 32768')
    cfg['start_sync'](w, lab)
    A('s_waitcnt vmcnt(0) lgkmcnt(0)'); w.vm = []; w.lg = []
    def loop(lab, st):
        w = Wv(A, cfg)
        A(f'{lab}_loop:')
        cfg['loop_top'](w, lab)
        a_step_consts(A, cfg.get('solo'))
        A(f's_lshl_b32 s33, s11, 14\ns_add_u32 {sPW}, s33, {PS}\ns_xor_b32 {sPR}, {sPW}, 0x8000')
        A(f's_mul_i32 {sXS}, {sS1}, {0 if cfg.get("xsame") else 28672}' + (f'\ns_add_u32 {sXS}, {sXS}, {XF}' if XF else ''))
        A(f's_and_b32 s11, {sS1}, 1\ns_lshl_b32 s11, s11, 15\ns_add_u32 {sXL}, s11, {sWL}')
        x_consts()
        if nt: A(f's_add_u32 s11, {sSTEP}, 2\ns_min_u32 s11, s11, {NSEG-1}\ns_mul_i32 s11, s11, {VX_SEG}\ns_add_u32 s34, s11, {VXF}')
        A(f'v_mov_b32 v{TMP+3}, {sS1}')
        for r in range(MREGA[0], MREGA[0] + 4 * cfg.get('ne', 2), 2): A(f'v_mov_b64 {vr(r,2)}, -1')
        w.stamp()
        gate = cfg.get('gate', 'w0')
        if gate == 'w0':
            A(f's_cmp_lg_u32 {sW}, 0\ns_cbranch_scc1 {lab}_nopoll')
            if not cfg.get('solo'): poll(w, f'{lab}_poll1', aPOLL, sSTEP, tmo, 16)
            A(f'{lab}_nopoll:\ns_barrier')
        elif gate == 'all':
            poll(w, f'{lab}_poll1', aPOLL, sSTEP, tmo, 16)
        w.stamp()
        for _ in range(cfg.get('adelay', 0)): A('s_nop 15')
        if cfg.get('pwait') is not None: A(f's_waitcnt vmcnt({cfg["pwait"]})')
        for _ in range(cfg.get('pchain', 0)):
            A(f'buffer_load_dword {aPOLL}, {vHUp}, {SRD}, 0 offen sc1\ns_waitcnt vmcnt(0)')
        xpos = cfg.get('xpos', [14, 19, 24, 29, 34, 39, 44, 50])
        def xat(p):
            if nt and cfg.get('tslot', 27) == p: w.vmem(f'buffer_load_dword v109, v110, {SRD}, s34 offen', 'T')
            for k in range(8):
                if xpos[k] == p: x_m0(k >> 2, k & 3); x_dma(k >> 2, k & 3, w)
        def fill(f0, k0):
            d = {}; dv = {}
            add = lambda n, f: d.setdefault(n, []).append(f)
            def kq(n, reg, areg, off, tag, ns):
                if cfg.get('kr2'):
                    r2 = areg if off < 1024 else aKR2
                    o = (off & 1023) // 4
                    add(n, lambda: w.ds(f'ds_read2_b32 {vr(reg,2)}, {r2} offset0:{o} offset1:{o+8}', tag))
                    add(n, lambda: w.ds(f'ds_read2_b32 {vr(reg+2,2)}, {r2} offset0:{o+1} offset1:{o+9}', tag))
                    return
                add(n, lambda: w.ds(f'ds_read_b64 {vr(reg,2)}, {areg} offset:{off}', tag))
                add(n, lambda: w.ds(f'ds_read_b64 {vr(reg+2,2)}, {areg} offset:{off+32}', tag))
                if cfg.get('lswap', 1) and not (cfg.get('z0swap') and tag in ('K0', 'K1')): return
                add(ns, lambda: w.wait(lg=tag))
                dv.setdefault(ns, []).append(lambda: w(f'v_swap_b32 v{reg+1}, v{reg+2}'))
            n = f0
            for tt in range(2):
                for uu in range(2):
                    add(n, lambda tt=tt, uu=uu: w.ds(f'ds_read_b128 {vr(Z0+8*(1+tt)+4*uu,4)}, {aXR} offset:{(tt*4+uu)*1024}', 'Z0')); n += 1
            for k in range(8):
                if xpos[k] < 49:
                    add(xpos[k] - 1, lambda k=k: x_m0(k >> 2, k & 3))
                    add(xpos[k], lambda k=k: x_dma(k >> 2, k & 3, w))
            if nt and cfg.get('tslot', 27) < 49: add(cfg.get('tslot', 27), lambda: w.vmem(f'buffer_load_dword v109, v110, {SRD}, s34 offen', 'T'))
            ks = cfg.get('kswap', [36, 39, 42, 45])
            if cfg.get('z0swap'): ks = [k0 + 5, k0 + 6, 0, 0]
            kq(k0, Z0, aKR, 0, 'K0', ks[0]); kq(k0 + 1, Z0 + 4, aKR, 512, 'K1', ks[1])
            k1 = 41 if cfg.get('nanchk', 1) else k0 + 3
            if cfg.get('nanchk', 1): k0 += 3
            kq(k1, Z1, aKR, 1024, 'K2', ks[2]); kq(k1 + 1, Z1 + 4, aKR3, 0, 'K3', ks[3])
            for k, sl in enumerate((37, 38, 39, 40) if cfg.get('nanchk', 1) else (36, 37, 39, 40)):
                tt, uu = k >> 1, k & 1
                add(sl, lambda tt=tt, uu=uu: w.ds(f'ds_read_b128 {vr(Z1+8*(1+tt)+4*uu,4)}, {aXR} offset:{(tt*4+2+uu)*1024}', 'Z1'))
            add(45, lambda: w.ds(f'ds_read_b64_tr_b16 {vr(TSP0,2)}, {aTR}', 'TS0'))
            add(46, lambda: w.ds(f'ds_read_b64_tr_b16 {vr(TSP0+2,2)}, {aTR} offset:{16 if TT else 192}', 'TS0'))
            if TT:
                assert max(x for x in xpos if x < 49) < 30
                add(30, lambda: w('s_mov_b32 m0, s35'))
            return d, dv
        def tw(tl, reg):
            if TT:
                w.ds(f'ds_write_addtid_b32 {reg} offset:{A_T - 32768 + tl*272}'); return
            if ',' in reg:
                u = tl >> 1
                w.ds(f'ds_write2_b32 {aTW if u < 2 else "v98"}, {reg} offset0:{(u&1)*192} offset1:{(u&1)*192+16}')
            elif tl < 6: w.ds(f'ds_write_b32 {aTW}, {reg} offset:{(tl>>1)*768 + (tl&1)*64}')
            else: w.ds(f'ds_write_b32 {aTW6}, {reg}')
        rest = a_stream(w, fill, tw, lab, TMP, tmo)
        w.stamp()
        w.wait(lg='TS0')
        o0 = (1, 2, 0) if cfg.get('lswap', 1) and not cfg.get('z0swap') else (0, 1, 2)
        w(smf(SACC + 4 * o0[0], vr(TSP0, 4), vr(Z0 + 8 * o0[0], 8), vIDX))
        rest[0]()
        w(smf(SACC + 4 * o0[1], vr(TSP0, 4), vr(Z0 + 8 * o0[1], 8), vIDX))
        for f in rest[1:]: f()
        w(f'v_add_f32 v{TMP}, v{ACC[6]}, v{ACC[6]+2}\nv_add_f32 v{TMP+1}, v{ACC[6]+1}, v{ACC[6]+3}')
        w(f'v_cvt_pk_bf16_f32 v{TMP+2}, v{TMP}, v{TMP+1}')
        tw(6, f'v{TMP+2}')
        if TT:
            w.ds(f'ds_read_b64_tr_b16 {vr(TSP1,2)}, {aTW6}', 'TS1')
            w.ds(f'ds_read_b64_tr_b16 {vr(TSP1+2,2)}, {aTW6} offset:16', 'TS1')
        else:
            w.ds(f'ds_read_b64_tr_b16 {vr(TSP1,2)}, {aTR} offset:1536', 'TS1')
            w.ds(f'ds_read_b64_tr_b16 {vr(TSP1+2,2)}, {aTR} offset:{1536+192}', 'TS1')
            if cfg.get('rtid'): w('s_mov_b32 m0, s35')
        if cfg.get('lswap', 1) and not cfg.get('kr2'):
            if not cfg.get('z0swap'):
                for r in (Z0, Z0 + 4, Z1, Z1 + 4): w(f'v_swap_b32 v{r+1}, v{r+2}')
        w(smf(SACC + 4 * o0[2], vr(TSP0, 4), vr(Z0 + 8 * o0[2], 8), vIDX))
        if cfg.get('z0swap'):
            for r in (Z1, Z1 + 4): w(f'v_swap_b32 v{r+1}, v{r+2}')
        xat(50)
        w.wait(lg='TS1')
        for kt in o0: w(smf(SACC + 4 * kt, vr(TSP1, 4), vr(Z1 + 8 * kt, 8), vIDX))
        for kt in o0:
            w(f'v_add_f32 v{56+2*kt}, v{SACC+4*kt}, v{SACC+4*kt+2}\nv_add_f32 v{57+2*kt}, v{SACC+4*kt+1}, v{SACC+4*kt+3}')
            if cfg.get('rtid'):
                for rp in range(2): w.ds(f'ds_write_addtid_b32 v{56+2*kt+rp} offset:{RO - 32768 + (2*kt+rp)*288}')
            elif cfg.get('r128'): w.ds(f'ds_write2st64_b32 {aRW}, v{56+2*kt}, v{57+2*kt} offset0:{kt} offset1:{kt+3}')
            else: w.ds(f'ds_write2_b32 {aRW}, v{56+2*kt}, v{57+2*kt} offset0:{16*kt} offset1:{16*kt+48}')
        hu2 = lambda: w.vmem(f'buffer_store_dword v{TMP+3}, {vHUs}, {SRD}, 0 offen {st}')
        hp = cfg.get('hu2pos', 0)
        w.stamp()
        if hp == -1: hu2()
        xat(51)
        if cfg.get('rflag'):
            w.ds(f'ds_write_b32 {aRW}, v{TMP+3}')
            for _ in range(cfg.get('rgap', 0)): A('s_nop 0')
            A(f'{lab}_rread:')
            w.lg = []
            w.ds('ds_read_b128 v[72:75], v98', 'RF')
            for k in range(4): w.ds(f'ds_read_b64 {vr(64+2*k,2)}, {aRR} offset:{k*WST}', f'R{k}')
            w.wait(lg='RF')
            w('v_min3_u32 v72, v72, v73, v74\nv_min_u32 v72, v72, v75')
            w(f'v_cmp_gt_u32 vcc, {sS1}, v72')
            w.wait(lg='R1'); w('v_pk_add_f32 v[64:65], v[64:65], v[66:67]')
            w.wait(lg='R3'); w('v_pk_add_f32 v[68:69], v[68:69], v[70:71]')
            w(f's_cbranch_vccnz {lab}_rwait')
            w('v_pk_add_f32 v[64:65], v[64:65], v[68:69]')
        else:
            w.wait_all_lg()
            A('s_barrier')
            if cfg.get('r128'):
                for k in range(2): w.ds(f'ds_read_b128 {vr(64+4*k,4)}, {aRR} offset:{k*16}', f'R{2*k+1}')
            else:
                for k in range(4): w.ds(f'ds_read_b64 {vr(64+2*k,2)}, {aRR} offset:{k*(WST if cfg.get("rtid") else 1536)}', f'R{k}')
            if hp == 0: hu2()
            xat(52)
            w.stamp()
            w.wait(lg='R1'); w('v_pk_add_f32 v[64:65], v[64:65], v[66:67]')
            w.wait(lg='R3'); w('v_pk_add_f32 v[68:69], v[68:69], v[70:71]')
            w('v_pk_add_f32 v[64:65], v[64:65], v[68:69]')
        if hp == 1: hu2()
        for _ in range(cfg.get('apad', 0)): A('s_nop 15')
        def truemax():
            w('v_max_f32 v66, v64, v65')
            for k, r in enumerate((8, 4, 2, 1)):
                if hp == 2 + k: hu2()
                xat(53 + k)
                w(f'v_max_f32_dpp v66, v66, v66 row_ror:{r} row_mask:0xf bank_mask:0xf')
            w('v_mov_b32 v67, v66')
            w('v_permlane16_swap_b32 v66, v67')
            w('v_max_f32 v66, v66, v67')
            w('v_pk_add_f32 v[64:65], v[64:65], v[66:67] op_sel_hi:[1,0] neg_lo:[0,1] neg_hi:[0,1]')
            w('v_exp_f32 v64, v64\nv_exp_f32 v65, v65')
        if cfg.get('fastmax'):
            assert hp >= 6
            w('v_max_f32 v66, |v64|, |v65|')
            w(f'v_cmp_lt_f32 vcc, {hex(0x42800000)}, v66')
            w('v_exp_f32 v68, v64\nv_exp_f32 v69, v65')
            w(f's_and_b64 vcc, vcc, {sMASK}\ns_cbranch_scc1 {lab}_tmax\n{lab}_smx:')
        else:
            truemax()
        if hp == 6: hu2()
        EX = 68 if cfg.get('fastmax') else 64
        w(f'v_add_f32 v66, v{EX}, v{EX+1}')
        if not cfg.get('nomask'): w(f'v_cndmask_b32 v66, 0, v66, {sMASK}')
        for k, r in enumerate((8, 4, 2, 1)):
            if hp == 7 + k: hu2()
            xat(57 + k)
            w(f'v_add_f32_dpp v66, v66, v66 row_ror:{r} row_mask:0xf bank_mask:0xf')
        w('v_mov_b32 v67, v66\nv_permlane16_swap_b32 v66, v67\nv_add_f32 v66, v66, v67')
        w('v_rcp_f32 v66, v66')
        if hp == 11: hu2()
        w(f'v_pk_mul_f32 v[64:65], {vr(EX,2)}, v[66:67] op_sel_hi:[1,0]')
        w('v_cvt_pk_bf16_f32 v64, v64, v65')
        w('v_min_u32 v64, -2, v64')
        w.vmem(f'buffer_store_dword v64, {aP}, {SRD}, {sPW} offen {st}')
        if hp == 99: hu2()
        w.stamp()
        if cfg.get('ack'): w.wait_all_vm(); w.stamp()
        def later():
            w('v_mov_b32 v65, -1')
            w.vmem(f'buffer_store_dword v65, {aP}, {SRD}, {sPR} offen {st}')
            xat(99)
        lp = cfg.get('lpos', 1)
        if lp == 0: later()
        zero(w, 28, 28); zero(w, SACC, 12)
        w(f'v_xor_b32 {aXR}, 0x8000, {aXR}')
        if lp == 2: A('s_barrier')
        if lp >= 1: later()
        w.dump_stamps(lab)
        A(f's_mov_b32 {sSPIN}, {SPIN_MAX}')
        A(f's_mov_b32 {sSTEP}, {sS1}\ns_cmp_lt_u32 {sSTEP}, {NSEG-1}\ns_cbranch_scc1 {lab}_loop')
        cfg['finish'](w, lab)
        A('s_endpgm')
        l_retry(w, lab, TMP, tmo)
        if cfg.get('fastmax'):
            A(f'{lab}_tmax:')
            truemax()
            A(f'v_mov_b64 v[68:69], v[64:65]\ns_branch {lab}_smx')
        if cfg.get('rflag'):
            A(f'{lab}_rwait:\ns_sub_u32 {sSPIN}, {sSPIN}, 1\ns_cbranch_scc1 {tmo}\ns_branch {lab}_rread')

    emit_modes(A, cfg, lab, loop)

B_VX, B_V = 0, 98304
bVW, bWR, bVR, bMS, bSEL = 'v108', 'v107', 'v106', 'v105', 'v104'
bMX, bFL, bVL, bPOLL = 'v107', 'v106', 'v105', 'v104'
bTO, bINC, bFLAG = 'v99', 'v98', 'v97'
bDM = [f'v{89+k}' for k in range(7)]
BT = 100
FACC = 96
sVS, sVL, sMW, sMR, sMXO = 's25', 's26', 's27', 's28', 's29'

def bcol(j, c):
    return sel_lt(c, 16, j * 16 + c, j * 12 + c + 240)

def b_exprs_final(split=False):
    l = V('v0'); w = Sg(sW); j = Sg(sR)
    g = l >> 4; n = l & 15; c = w * 16 + n
    e = {}
    e[bWR] = B_VX + (g * 28 + c.min(27)) * 16
    e[bVR] = B_V + (g * 28 + c.min(27)) * 16
    if split: e[bVR] = B_V + sel_lt(w, 1, g * 16 + n, 256 + g * 12 + n.min(11)) * 16
    i = g * 2 + (n & 1); d0 = bcol(j, c & 30)
    k = d0 & 63
    off = (d0 >> 6) * 1024 + ((k >> 4) * 16 + (i >> 1) * 4 + ((k >> 1) & 1) * 2 + (i & 1)) * 16 + ((k >> 2) & 3) * 4
    e[bMS] = sel_lt(c, 28, off, OOB)
    e[bSEL] = sel_lt(n & 1, 1, 0x05040100, 0x03020706)
    return e
def check_b():
    e = b_exprs_final(); l = np.arange(64)
    for j in (0, 1, 5, 15):
        for w in range(2):
            p = ev(e[bMS], {'v0': l, sW: w, sR: j})
            for ln in range(64):
                c = 16 * w + (ln & 15)
                assert p[ln] == (ms_off(2 * (ln >> 4) + (ln & 1), (16 * j if c < 16 else 12 * j + 240) + (c & ~1)) if c < 28 else OOB)
check_b()

def gen_B(A, cfg, lab, tmo):
    w = Wv(A, cfg)
    em = Emitter(A, [f'v{i}' for i in list(range(2, 20)) + list(range(28, 56))])
    A(f's_add_u32 s39, {sR}, 1')
    fast = cfg.get('bfast', 2)
    common_consts(em, A, lab, '0' if fast else 's39', fast == 1)
    l = V('v0'); ww = Sg(sW); j = Sg(sR)
    split = cfg.get('bsplit', 1)
    em.emit(B_V + (ww * (64 if split else 112) + (l & 15)) * 16 + (l >> 4) * 4, bVW)
    for tl in range(7):
        if not split:
            f = ww * 112 + tl * 16 + (l & 15); hh = f.div(28)
            em.emit((hh * 56 + (l >> 4)) * 7168 + bcol(j, f - hh * 28) * 16, f'v{20+tl}')
        elif tl < 4:
            em.emit(((ww * 4 + tl) * 56 + (l >> 4)) * 7168 + (j * 16 + (l & 15)) * 16, f'v{20+tl}')
        else:
            f = (l & 15) + (tl - 4) * 16; hh = f.div(12)
            em.emit(((ww * 4 + hh) * 56 + (l >> 4)) * 7168 + (j * 12 + 256 + f - hh * 12) * 16, f'v{20+tl}')
    def addr(tl, t, b):
        return f'v{20+tl}', f's_mul_i32 s11, {sKK[t]}, 56\ns_add_u32 s11, s11, {BF + 28672*b}'
    def vw(tl, reg): w.ds(f'ds_write_b32 {bVW}, {reg} offset:{tl*256 if tl < 4 or not split else 4096 + (tl-4)*256}')
    def tail6(rest):
        for f in rest: f()
        w(f'v_add_f32 v{BT}, v{ACC[6]}, v{ACC[6]+2}\nv_add_f32 v{BT+1}, v{ACC[6]+1}, v{ACC[6]+3}')
        w(f'v_cvt_pk_bf16_f32 v{BT+2}, v{BT}, v{BT+1}')
        vw(6, f'v{BT+2}')
    rot = sR if cfg.get('prot', 1) else '0'
    for q in range(4): A(f's_add_u32 s{48+q}, {rot}, {q}\ns_and_b32 s{48+q}, s{48+q}, 3\ns_lshl_b32 s{48+q}, s{48+q}, 11')
    if cfg.get('pre_b'): cfg['pre_b']()
    for t in range(2):
        A(f's_lshl_b32 s11, {sW}, 1\ns_add_u32 s11, s11, {t}\ns_lshl_b32 s33, s11, 10\ns_add_u32 s33, s33, {MX}')
        A(f's_cmp_eq_u32 s11, {sR}\ns_cselect_b32 s{52+t}, s33, {OOB}\ns_cmp_eq_u32 s11, 7\ns_cselect_b32 s{52+t}, {OOB}, s{52+t}')
    def mx_first():
        for t in range(2):
            w.vmem(f'buffer_store_dwordx4 {vr(MREG[t],4)}, {vL16}, {SRD}, s{52+t} offen sc1')
            A(f's_add_u32 s{52+t}, s{52+t}, 7168')
    A(f's_cmp_ge_u32 {sW}, 2\ns_cbranch_scc1 {lab}_loader')
    for k, x in b_exprs_final(split).items(): em.emit(x, k)
    A(f's_lshl_b32 s54, {sR}, 2\ns_add_u32 s54, s54, {HU1}')
    bWB = vHUs if cfg.get('bpoll') else None
    assert bWB, 'the flag variant has no register left for three slots'
    A(f'v_mov_b32 {bWB}, {bWR}\ns_mov_b32 s47, 0')
    em.emit(HU2 + (l & (63 if cfg.get('huall') else 15)) * 4, vHUp)
    load_weights(w, addr, between=(lambda k: cfg['mid_b'](lab + 'f', k)) if cfg.get('mid_b') else None)
    zero(w, 28, 28)
    A(f's_mov_b32 {sSTEP}, 0\ns_mov_b32 {sSPIN}, {SPIN_MAX}\ns_mov_b32 {sRETRY}, 0')
    cfg['start_sync'](w, lab + 'f')
    A('s_waitcnt vmcnt(0) lgkmcnt(0)')
    def loopf(lf, st, second):
        nonlocal w
        w = Wv(A, cfg)
        PREG = [4 * m for m in range(10)]
        one = cfg.get('onebar', 1)
        if one:
            order = list(range(10))
            WREG = {0: 56, 1: 64, 2: 72, 3: 80, 4: 88, 5: 40, 6: 48, 7: 56, 8: 64, 9: 72}
        else:
            order = [0, 1, 2, 3, 4, 8, 9, 5, 6, 7]
            WREG = {0: 56, 1: 64, 2: 72, 3: 80, 4: 88, 8: 40, 9: 48, 5: 56, 6: 64, 7: 72}
        sPO = ['s22', 's23', 's24', 's45', 's46']
        def wx(m, b):
            if m < 8: w.ds(f'ds_read_b128 {vr(WREG[m]+4*b,4)}, {bWR} offset:{(2*m+b)*1792}', f'W{m}')
            else: w.ds(f'ds_read_b128 {vr(WREG[m]+4*b,4)}, {bVR} offset:{(2*(m-8)+b)*(1024 if split else 1792)}', f'W{m}')
        def mfirst():
            for t in range(2): A(f'buffer_load_dwordx4 {vr(MREG[t],4)}, {vL16}, {SRD}, {sMO[t]} offen sc1')
        if fast:
            step_consts(A)
            A('s_barrier'); mfirst()
        A(f'{lf}_loop:')
        if fast: A(f's_and_b32 s11, {sSTEP}, 3\ns_add_u32 {sS1}, {sSTEP}, 1')
        else: step_consts(A)
        A(f's_lshl_b32 s11, s11, 14\ns_add_u32 s11, s11, {PS}\ns_add_u32 s46, s11, 8192')
        for q in range(4): A(f's_add_u32 {sPO[q]}, s11, s{48+q}')
        A(f's_and_b32 s11, {sS1}, 3\ns_lshl_b32 s11, s11, 13\ns_add_u32 {sMW}, s11, {MS}\ns_xor_b32 {sMR}, {sMW}, 0x4000')
        A(f'v_mov_b32 v{BT+3}, {sS1}\nv_mov_b64 {vr(FACC,2)}, 0\nv_mov_b64 {vr(FACC+2,2)}, 0')
        if cfg.get('bpoll') and not fast:
            for r in range(MREG[0], MREG[0] + 8, 2): A(f'v_mov_b64 {vr(r,2)}, -1')
        w.stamp()
        if not fast: A('s_barrier')
        w.stamp()
        def fillf(f0):
            d = {}
            for m in range(5):
                for b in range(2): d.setdefault(f0 + 2 * m + b, []).append(lambda m=m, b=b: wx(m, b))
            if cfg.get('bquick'):
                d.setdefault(46, []).append(lambda: wx(5, 0)); d.setdefault(47, []).append(lambda: wx(5, 1))
            return d, {}
        tail6(weight_stream(w, fillf, vw, lf, BT, tmo, cfg.get('bpoll'), mx_first if cfg.get('mxfirst') else None))
        for _ in range(cfg.get('vpad', 0)): A('s_nop 15')
        w.stamp()
        if one:
            quick = cfg.get('bquick')
            for m in ((6,) if quick else (5, 6)): wx(m, 0); wx(m, 1)
            if fast:
                for t in range(2): A(f's_add_u32 {sMO[t]}, {sMW}, {sKK[t]}')
            if second or not quick: w.wait_all_lg()
            w.stamp()
            if second: A('s_barrier')
            else: poll(w, f'{lf}_poll2', f'v{BT+2}', sS1, tmo, 64 if cfg.get('huall') else 16)
        else:
            w.wait_all_lg()
            A('s_barrier')
            A(f's_cmp_eq_u32 {sSTEP}, {NSEG-1}\ns_cbranch_scc1 {lf}_done')
            for m in (8, 9): wx(m, 0); wx(m, 1)
            w.stamp()
            if cfg.get('b0poll'):
                if second: A('s_barrier')
                else: poll(w, f'{lf}_poll2', f'v{BT+2}', sS1, tmo, 16)
            else:
                A('s_barrier')
                if second: A('s_barrier')
        w.stamp()
        def ploads():
            for k, m in enumerate(order):
                w.vmem(f'buffer_load_dwordx4 {vr(PREG[k],4)}, {vL16}, {SRD}, {sPO[m>>1]} offen offset:{(m&1)*1024} sc1', f'P{k}')
        def hum_store():
            if cfg.get('hum') and not second:
                A('s_mov_b64 exec, 1'); w.vmem(f'buffer_store_dword v{BT+3}, off, {SRD}, s54 {st}'); A('s_mov_b64 exec, -1')
        if cfg.get('hu1k') == -2: hum_store()
        ploads()
        if cfg.get('hu1k') == -1: hum_store()
        if not second:
            if cfg.get('bquick'): w.wait_all_lg()
            A('s_barrier')
        if fast and second: A('s_cmp_eq_u32 0, 1')
        A(f'{lf}_pchain:')
        for _ in range(cfg.get('bpad', 0)): A('s_nop 15')
        for k, m in enumerate(order):
            w.wait(vm=f'P{k}', lg=f'W{m}')
            if k == 0: w.stamp()
            w(smf(FACC, vr(PREG[k], 4), vr(WREG[m], 8), vIDX))
            if k < 3: wx((7 if one else 5) + k, 0); wx((7 if one else 5) + k, 1)
            if k == cfg.get('hu1k', 7): hum_store()
            if fast and second and k == cfg.get('kb', 4 if fast == 1 else 99):
                w.wait_all_lg(); A(f's_cbranch_scc1 {lf}_nob\ns_barrier\n{lf}_nob:')
        w(f'v_add_f32 v{BT}, v{FACC}, v{FACC+2}\nv_add_f32 v{BT+1}, v{FACC+1}, v{FACC+3}')
        if cfg.get('bcmp', 1):
            w(f'v_cvt_pk_bf16_f32 v{FACC}, v{BT}, v{BT+1}')
            w(f'v_cmp_u_f32 vcc, v{BT}, v{BT+1}')
            w(f'v_mov_b32_dpp v{BT+1}, v{FACC} quad_perm:[1,0,3,2] row_mask:0xf bank_mask:0xf')
            w(f'v_perm_b32 v{BT}, v{BT+1}, v{FACC}, {bSEL}')
        else:
            w(f'v_cmp_u_f32 vcc, v{BT}, v{BT+1}')
            w(f'v_cvt_pk_bf16_f32 v{BT}, v{BT}, v{BT+1}')
            w(f'v_mov_b32_dpp v{BT+1}, v{BT} quad_perm:[1,0,3,2] row_mask:0xf bank_mask:0xf')
            w(f'v_perm_b32 v{BT}, v{BT+1}, v{BT}, {bSEL}')
        w(f'v_min_u32 v{BT}, -2, v{BT}')
        w(f's_cbranch_vccnz {lf}_pretry\n{lf}_pok:')
        w.vmem(f'buffer_store_dword v{BT}, {bMS}, {SRD}, {sMW} offen {st}')
        if fast:
            if not second or cfg.get('kb', 4 if fast == 1 else 99) == 99: A('s_barrier')
            mfirst()
        if cfg.get('lastmx', 1):
            A(f's_cmp_eq_u32 {sSTEP}, {NSEG-2}\ns_cbranch_scc1 {lf}_last')
        w.stamp()
        if cfg.get('ack'): w.wait_all_vm(); w.stamp()
        w(f'v_mov_b32 v{BT+1}, -1')
        w.vmem(f'buffer_store_dword v{BT+1}, {bMS}, {SRD}, {sMR} offen {st}')
        if not cfg.get('bpoll'): w.vmem(f'buffer_store_dword v{BT+3}, {vHUs}, {SRD}, 0 offen {st}')
        zero(w, 28, 28)
        w(f's_add_u32 s47, s47, 0x8000\ns_cmp_eq_u32 s47, 0x18000\ns_cselect_b32 s47, 0, s47\nv_add_u32 {bWR}, s47, {bWB}')
        w.dump_stamps(lf)
        A(f's_mov_b32 {sSPIN}, {SPIN_MAX}\ns_mov_b32 {sSTEP}, {sS1}\ns_branch {lf}_loop')
        if cfg.get('lastmx', 1):
            A(f'{lf}_last:\ns_mov_b32 s11, {MX + (NSEG-1)*7168}\nbuffer_store_dword v{BT}, {bMS}, {SRD}, s11 offen sc1')
        A(f'{lf}_done:')
        cfg['finish'](w, lf)
        A('s_endpgm')
        m_retry(w, lf, tmo)
        A(f'{lf}_pretry:\ns_waitcnt vmcnt(0) lgkmcnt(0)')
        sentinel_check(w, list(range(0, 40)), f'v{BT+2}')
        A(f's_cbranch_vccz {lf}_pok')
        A(f's_add_u32 {sRETRY}, {sRETRY}, 0x10000\ns_sub_u32 {sSPIN}, {sSPIN}, 8\ns_cbranch_scc1 {tmo}')
        for m in range(3): wx(m, 0); wx(m, 1)
        A(f'v_mov_b64 {vr(FACC,2)}, 0\nv_mov_b64 {vr(FACC+2,2)}, 0\ns_waitcnt lgkmcnt(0)')
        ploads()
        A(f's_cmp_eq_u32 0, 0\ns_branch {lf}_pchain')
    A(f's_cmp_eq_u32 {sW}, 1\ns_cbranch_scc1 {lab}_second')
    emit_modes(A, cfg, lab + 'f', lambda lf, st: loopf(lf, st, False))
    A(f'{lab}_second:')
    emit_modes(A, cfg, lab + 'g', lambda lf, st: loopf(lf, st, True))
    ll = lab + 'l'
    A(f'{lab}_loader:')
    w = Wv(A, cfg)
    for r in range(7):
        f = l + 64 * r; hg = f.div(28)
        em.emit(hg * 7168 + bcol(j, f - hg * 28) * 16 + (4096 - (r & 3) * 1024), bDM[r])
    em.emit(sel_lt(ww, 3, HU1 + 128 + (l & 31) * 4, HU2 + (l & 15) * 4), vHUp)
    em.emit(sel_lt(l + (3 - ww) * 64, 1, HU1 + j * 4, OOB), vHUs)
    em.emit(sel_lt(j + (3 - ww) * 16, 7, j * 1024 + l * 16, OOB), bMX)
    em.emit(L_K + (j & 7) * 1024 + l * 16, 'v88')
    xl = (j * 2 + ww - 2) * 7 + l
    em.emit(sel_lt(l, 7, XF + 2 * 28672 + xl * 128, sel_lt(l, 63, OOB, FVX + 2 * 128)), bTO)
    em.emit(sel_lt(l, 63, 28672, 128), bINC)
    A(f'v_mov_b32 {bFLAG}, 16')
    A(f's_sub_u32 s11, {sW}, 2\ns_mul_i32 s23, s11, 14336\ns_cmp_eq_u32 s11, 0\ns_cselect_b32 s24, s48, s50\ns_cselect_b32 s45, s49, s51')
    A(f's_mul_i32 s24, s24, 56\ns_add_u32 s24, s24, {VXF - 4096}\ns_mul_i32 s45, s45, 56\ns_add_u32 s45, s45, {VXF - 4096}')
    def vx_m0(k):
        if k % 7 in (0, 4): w(f's_add_u32 m0, {sVL}, {k*1024}')
    def vx_dma(k):
        w.vmem(f'buffer_load_dwordx4 {bDM[k%7]}, {SRD}, {sVS if k < 7 else "s44"} offen offset:{((k%7)&3)*1024} {cfg.get("vxfl", "")} lds', 'D')
    load_weights(w, addr, between=(lambda k: cfg['mid_b'](ll, k)) if cfg.get('mid_b') else None)
    zero(w, 28, 28)
    A(f's_mov_b32 {sSTEP}, 0\ns_mov_b32 {sSPIN}, {SPIN_MAX}\ns_mov_b32 {sRETRY}, 0')
    cfg['start_sync'](w, ll)
    A(f's_mov_b32 {sVS}, s24\ns_mov_b32 s44, s45\ns_mov_b32 {sVL}, s23\ns_mov_b32 s47, 0')
    for k in range(14): vx_m0(k); vx_dma(k)
    nl = cfg.get('nlate', 0)
    def late_part():
        k0 = 14 - nl
        for k in range(k0, 14):
            if k == k0 and k % 7 not in (0, 4): w(f's_add_u32 m0, {sVL}, {(k - (k % 7) % 4)*1024}')
            vx_m0(k); vx_dma(k)
    if nl:
        A(f's_add_u32 {sVS}, s24, {VX_SEG}\ns_add_u32 s44, s45, {VX_SEG}\ns_add_u32 {sVL}, s23, 0x8000')
        late_part()
    def loopl(ll, st):
        nonlocal w
        w = Wv(A, cfg)
        A(f'{ll}_loop:')
        step_consts(A)
        A(f's_min_u32 s11, {sS1}, {0 if cfg.get("vxsame") else NSEG-1}\ns_mul_i32 s11, s11, {VX_SEG}\ns_add_u32 {sVS}, s11, s24\ns_add_u32 s44, s11, s45')
        A(f's_add_u32 s47, s47, 0x8000\ns_cmp_eq_u32 s47, 0x18000\ns_cselect_b32 s47, 0, s47\ns_add_u32 {sVL}, s47, s23')
        A(f's_mul_i32 {sMXO}, {sSTEP}, 7168\ns_add_u32 {sMXO}, {sMXO}, {MX}')
        if cfg.get('bpoll'):
            for r in range(MREG[0], MREG[0] + 8, 2): A(f'v_mov_b64 {vr(r,2)}, -1')
        if nl: A(f's_waitcnt vmcnt({nl})')
        else:
            A('s_waitcnt vmcnt(0)')
            A(f's_cmp_ge_u32 {sSTEP}, {NSEG-1}\ns_cbranch_scc1 {ll}_fok')
            A(f'{ll}_fchk:\nv_readlane_b32 s11, {bFLAG}, 63\ns_nop 0\ns_cmp_ge_u32 s11, 16\ns_cbranch_scc1 {ll}_fok')
            A(f's_lshl_b32 s11, {sS1}, 7\ns_add_u32 s11, s11, {FVX}')
            A(f'buffer_load_dword {bFLAG}, off, {SRD}, s11 sc1')
            A(f's_sub_u32 {sSPIN}, {sSPIN}, 1\ns_cbranch_scc1 {tmo}\ns_waitcnt vmcnt(0)\ns_branch {ll}_fchk\n{ll}_fok:')
        w.stamp()
        if not cfg.get('bpoll'):
            A(f's_cmp_lg_u32 {sW}, 2\ns_cbranch_scc1 {ll}_nopoll')
            poll(w, f'{ll}_poll1', bPOLL, sSTEP, tmo, 32)
            A(f'{ll}_nopoll:')
        A('s_barrier')
        w.stamp()
        d0 = cfg.get('dslot', 2); dstep = cfg.get('dstep', 2); ne = cfg.get('dearly', 0)
        def early():
            if cfg.get('mxfirst'): mx_first()
            if cfg.get('tfirst'): w.vmem(f'buffer_load_dword {bFLAG}, {bTO}, {SRD}, 0 offen sc1', 'D')
            for k in range(ne): vx_m0(k); vx_dma(k)
        def filll(f0):
            d = {}
            add = lambda n, f: d.setdefault(n, []).append(f)
            for k in range(ne, 14 - nl):
                add(d0 + dstep * (k - ne) - 1, lambda k=k: vx_m0(k))
                add(d0 + dstep * (k - ne), lambda k=k: vx_dma(k))
            if not cfg.get('tfirst'): add(d0 + dstep * (14 - nl - ne), lambda: w.vmem(f'buffer_load_dword {bFLAG}, {bTO}, {SRD}, 0 offen sc1', 'D'))
            if cfg.get('mxfirst'): pass
            elif fast and not cfg.get('nomx'):
                add(f0, lambda: w.ds('ds_read_b128 v[56:59], v88', 'MX'))
                add(f0 + 5, lambda: (w.wait(lg='MX'), w.vmem(f'buffer_store_dwordx4 v[56:59], {bMX}, {SRD}, {sMXO} offen sc1')))
            elif not cfg.get('nomx'):
                add(max(f0 - 4, cfg.get('vslot', 0)), lambda: w.vmem(f'buffer_store_dwordx4 {vr(MREG[0],4)}, {bMX}, {SRD}, {sMXO} offen {cfg.get("mxfl", "sc1")}'))
            return d, {}
        tail6(weight_stream(w, filll, vw, ll, BT, tmo, cfg.get('bpoll'), early))
        w.stamp()
        w.wait_all_lg()
        if not cfg.get('onebar', 1):
            A('s_barrier')
            A(f's_cmp_eq_u32 {sSTEP}, {NSEG-1}\ns_cbranch_scc1 {ll}_done')
        zero(w, 28, 28)
        A(f'v_mov_b32 v{BT+3}, {sS1}')
        if not cfg.get('xsame'): A(f'v_add_u32 {bTO}, {bTO}, {bINC}')
        w.stamp()
        if cfg.get('drain'):
            w.wait(vm='D'); w.stamp(); w.wait_all_vm(); w.stamp()
        hu1 = f'buffer_store_dword v{BT+3}, {vHUs}, {SRD}, 0 offen {st}'
        if cfg.get('b0poll') or cfg.get('onebar', 1):
            A('s_barrier')
            if cfg.get('gate', 'w0') != 'none' and not cfg.get('hum'): A(hu1)
        else:
            A(f's_cmp_lg_u32 {sW}, 3\ns_cbranch_scc1 {ll}_nopoll2')
            poll(w, f'{ll}_poll2', bPOLL, sS1, tmo, 16)
            A(f'{ll}_nopoll2:\ns_barrier')
            if cfg.get('hu1pos', 0) == 0: A(hu1)
            A('s_barrier')
            if cfg.get('hu1pos', 0) == 1: A(hu1)
        if cfg.get('lastmx', 1): A(f's_cmp_eq_u32 {sSTEP}, {NSEG-2}\ns_cbranch_scc1 {ll}_done')
        if nl:
            A('s_waitcnt vmcnt(0)')
            A(f'{ll}_fchk:\nv_readlane_b32 s11, {bFLAG}, 63\ns_nop 0\ns_cmp_ge_u32 s11, 16\ns_cbranch_scc1 {ll}_fok')
            A(f's_lshl_b32 s11, {sSTEP}, 7\ns_add_u32 s11, s11, {FVX + 256}')
            A(f'buffer_load_dword {bFLAG}, off, {SRD}, s11 sc1')
            A(f's_sub_u32 {sSPIN}, {sSPIN}, 1\ns_cbranch_scc1 {tmo}\ns_waitcnt vmcnt(0)\ns_branch {ll}_fchk\n{ll}_fok:')
            for _ in range(cfg.get('ldelay', 0)): A('s_nop 15')
            A(f's_add_u32 s11, {sSTEP}, 2\ns_mul_i32 s11, s11, {0 if cfg.get("vxsame") else VX_SEG}\ns_add_u32 {sVS}, s11, s24\ns_add_u32 s44, s11, s45')
            A(f's_add_u32 s11, s47, 0x8000\ns_cmp_eq_u32 s11, 0x18000\ns_cselect_b32 s11, 0, s11\ns_add_u32 {sVL}, s11, s23')
            late_part()
        w.dump_stamps(ll)
        A(f's_mov_b32 {sSPIN}, {SPIN_MAX}\ns_mov_b32 {sSTEP}, {sS1}\ns_branch {ll}_loop\n{ll}_done:')
        cfg['finish'](w, ll)
        A('s_endpgm')
        m_retry(w, ll, tmo)
    emit_modes(A, cfg, ll, loopl)
```

```python
from asmdsl import Asm
from expr import X, V, Sg, Emitter, ev, sel_lt, wrap
from layout import *
import numpy as np

SRD = 's[4:7]'
def vr(a, n=1): return f'v{a}' if n == 1 else f'v[{a}:{a+n-1}]'
def wreg(o):
    return f'a[{8*o}:{8*o+7}]' if o < 32 else f'v[{120+8*(o-32)}:{127+8*(o-32)}]'
def wquad(o, b):
    return f'a[{8*o+4*b}:{8*o+4*b+3}]' if o < 32 else f'v[{120+8*(o-32)+4*b}:{123+8*(o-32)+4*b}]'

class Wv:
    def __init__(self, A, cfg):
        self.A = A; self.vm = []; self.lg = []; self.cfg = cfg; self.nst = 0
    def __call__(self, t): self.A(t)
    def vmem(self, t, tag=None): self.A(t); self.vm.append(tag)
    def ds(self, t, tag=None): self.A(t); self.lg.append(tag)
    def wait(self, vm=None, lg=None):
        parts = []
        if vm is not None and vm in self.vm:
            i = len(self.vm) - 1 - self.vm[::-1].index(vm)
            parts.append(f'vmcnt({len(self.vm)-1-i})'); self.vm = self.vm[i+1:]
        if lg is not None and lg in self.lg:
            i = len(self.lg) - 1 - self.lg[::-1].index(lg)
            n = min(len(self.lg) - 1 - i, 15)
            parts.append(f'lgkmcnt({n})'); self.lg = self.lg[i+1:]
        if parts: self.A('s_waitcnt ' + ' '.join(parts))
    def wait_all_lg(self): self.A('s_waitcnt lgkmcnt(0)'); self.lg = []
    def wait_all_vm(self): self.A('s_waitcnt vmcnt(0)'); self.vm = []
    def stamp(self, name=None):
        if self.cfg.get('stamps'):
            assert self.nst < 12
            self.A(f's_memtime s[{60+2*self.nst}:{61+2*self.nst}]'); self.nst += 1
    def dump_stamps(self, lab):
        if not self.cfg.get('stamps'): return
        A = self.A
        A(f's_waitcnt lgkmcnt(0)\ns_cmp_lg_u32 s8, 6\ns_cbranch_scc1 {lab}_nocal')
        A(f's_memrealtime s[96:97]\ns_waitcnt lgkmcnt(0)\n{lab}_cal:\ns_memrealtime s[98:99]\ns_memtime s[100:101]\ns_waitcnt lgkmcnt(0)\ns_cmp_eq_u32 s96, s98\ns_cbranch_scc1 {lab}_cal')
        for k in range(12): A(f's_mov_b32 s{84+k}, 0')
        A(f'{lab}_nocal:\ns_cmp_lt_u32 s8, 8\ns_cbranch_scc1 {lab}_nodump\ns_cmp_gt_u32 s8, 57\ns_cbranch_scc1 {lab}_nodump')
        for k in range(self.nst): A(f's_sub_u32 s11, s{60+2*k}, s100\ns_add_u32 s{84+k}, s{84+k}, s11')
        A(f's_cmp_lg_u32 s8, 57\ns_cbranch_scc1 {lab}_nodump')
        A('s_lshl_b32 s11, s3, 2\ns_add_u32 s11, s11, s9\ns_lshl_b32 s11, s11, 6')
        A(f's_add_u32 s11, s11, {DBG}')
        A(f'v_mov_b32 v0, s98\nv_mov_b32 v2, 0x4000\nbuffer_store_dword v0, v2, {SRD}, s11 offen')
        for k in range(self.nst):
            A(f'v_mov_b32 v0, s{84+k}\nv_mov_b32 v1, {4*k}\nbuffer_store_dword v0, v1, {SRD}, s11 offen')
        A(f's_waitcnt vmcnt(0)\n{lab}_nodump:')

def tline(A, cfg, k, base=0, idx='s3'):
    if not cfg.get('tl'): return
    lab = A.newlabel(f'TL{base}')
    A(f's_cmp_lg_u32 s9, 0\ns_cbranch_scc1 {lab}')
    A(f's_memrealtime s[96:97]\ns_lshl_b32 s98, {idx}, 6\ns_add_u32 s98, s98, {DBG + 0x8000 + base + 4*k}\ns_waitcnt lgkmcnt(0)')
    A(f'v_accvgpr_write_b32 a255, s96' if False else f'v_mov_b32 v{cfg.get("tlreg", 95)}, s96')
    A(f'buffer_store_dword v{cfg.get("tlreg", 95)}, off, {SRD}, s98')
    if cfg.get('tlclk'):
        A(f's_memtime s[96:97]\ns_waitcnt lgkmcnt(0)\nv_mov_b32 v{cfg.get("tlreg", 95)}, s96\nbuffer_store_dword v{cfg.get("tlreg", 95)}, off, {SRD}, s98 offset:32')
    A(f'{lab}:')

def dstamp(A, cfg, k, slot, reg):
    if not cfg.get('ds'): return
    lab = A.newlabel('DS')
    A(f's_cmp_lg_u32 s9, 0\ns_cbranch_scc1 {lab}\ns_cmp_lg_u32 s3, {slot}\ns_cbranch_scc1 {lab}')
    A(f's_load_dwordx2 s[96:97], s[0:1], 104\ns_memrealtime s[94:95]\ns_waitcnt lgkmcnt(0)\ns_mov_b32 s98, 256\ns_mov_b32 s99, 0x20000')
    A(f's_and_b32 s94, s94, 0xfffff\nv_mov_b32 v{reg}, s94\nbuffer_store_dword v{reg}, off, s[96:99], 0 offset:{4*k}\n{lab}:')

def dretry(A, cfg):
    if not cfg.get('ds'): return
    A('s_load_dwordx2 s[96:97], s[0:1], 104\ns_waitcnt lgkmcnt(0)\ns_mov_b32 s98, 256\ns_mov_b32 s99, 0x20000')
    A('v_mov_b32 v3, s20\ns_mov_b64 exec, 1\nbuffer_atomic_add v3, off, s[96:99], 0 offset:52 sc1\ns_mov_b64 exec, -1')

def smf(acc, a, b, idx): return f'v_smfmac_f32_16x16x64_bf16 {vr(acc,4)}, {a}, {b}, {idx}'

KM = 3
MREG = [16, 20, 24, 0, 4, 8, 12]
ACC = [28 + 4 * t for t in range(7)]
vIDX, vL16, vHUp, vHUs = 'v119', 'v118', 'v117', 'v116'
vKA = ['v115', 'v114', 'v113', 'v112', 'v111', 'v110', 'v109']
sSTEP, sW, sR = 's8', 's9', 's10'
sKK = [f's{12+t}' for t in range(7)]
sSPIN, sRETRY, sS1 = 's19', 's20', 's31'
sMO = ['s36', 's37', 's38']
SPIN_MAX = 0x80000
L_K = 131072

def common_consts(em, A, lab, rot, swap=False):
    l = V('v0')
    em.emit(l & 63, 'v0')
    em.emit(sel_lt(l & 2, 1, 0x44444444, 0xEEEEEEEE), vIDX)
    em.emit(l * 16, vL16)
    if swap: A(f's_xor_b32 s33, {sW}, 2\ns_lshl_b32 s33, s33, 1')
    else: A(f's_lshl_b32 s33, {sW}, 1\ns_add_u32 s33, s33, {rot}')
    for _ in range(3): A('s_cmp_ge_u32 s33, 7\ns_cselect_b32 s35, 7, 0\ns_sub_u32 s33, s33, s35')
    for t in range(7):
        A(f's_add_u32 s34, s33, {t}\ns_cmp_ge_u32 s34, 7\ns_cselect_b32 s35, 7, 0\ns_sub_u32 s34, s34, s35\ns_lshl_b32 {sKK[t]}, s34, 10')
    em.emit(L_K + l * 16, 'v1')
    for t in range(7): A(f'v_add_u32 {vKA[t]}, {sKK[t]}, v1')
    A(f's_cmp_lg_u32 {sW}, {1 if swap else 3}\ns_cbranch_scc1 {lab}_w3skip\nv_add_u32 {vKA[1]}, 7168, v1\n{lab}_w3skip:')

def step_consts(A, solo=False):
    A(f's_and_b32 s11, {sSTEP}, {0 if solo else 3}\ns_lshl_b32 s33, s11, 13\ns_add_u32 s33, s33, {MS}')
    for t in range(3): A(f's_add_u32 {sMO[t]}, s33, {sKK[t]}')
    A(f's_add_u32 {sS1}, {sSTEP}, 1')

def align(A, cfg, key):
    a = cfg.get(key)
    if a:
        A(f'.p2align {a[0]}')
        for _ in range(a[1]): A('s_nop 0')

def poll(w, lab, vp, sval, tmo, nl):
    w(f'v_mov_b32 {vp}, 0')
    if w.cfg.get('pollmask', 1) and nl < 64: w(f's_mov_b32 exec_lo, {hex((1 << nl) - 1) if nl < 32 else -1}\ns_mov_b32 exec_hi, 0')
    align(w.A, w.cfg, 'apoll')
    w(f'{lab}:')
    if w.cfg.get('pollnop'): w(f's_nop {w.cfg["pollnop"]-1}')
    w(f'buffer_load_dword {vp}, {vHUp}, {SRD}, 0 offen sc1')
    w(f's_waitcnt vmcnt({w.cfg.get("polldepth", 40)})')
    w(f'v_cmp_gt_u32 vcc, {sval}, {vp}')
    w(f's_sub_u32 {sSPIN}, {sSPIN}, 1\ns_cbranch_scc1 {tmo}')
    w(f's_cbranch_vccnz {lab}')
    if w.cfg.get('pollmask', 1) and nl < 64: w('s_mov_b64 exec, -1')
    w.vm = []

def zero(w, a, n):
    for i in range(a, a + n, 2): w(f'v_mov_b64 {vr(i,2)}, 0')

def sentinel_check(w, regs, tmp):
    w(f'v_max3_u32 {tmp}, v{regs[0]}, v{regs[1]}, v{regs[2]}')
    r = regs[3:]
    while len(r) >= 2:
        w(f'v_max3_u32 {tmp}, {tmp}, v{r[0]}, v{r[1]}'); r = r[2:]
    if r: w(f'v_max_u32 {tmp}, {tmp}, v{r[0]}')
    w(f'v_cmp_eq_u32 vcc, -1, {tmp}')

def weight_stream(w, fill, comb_write, lab, tmp, tmo=None, mpoll=False, early=None):
    cfg = w.cfg; ND = cfg.get('nd', 2)
    align(w.A, cfg, 'aB')
    w(f'{lab}_mload:')
    w.vm = []; w.lg = []
    if mpoll:
        assert ND == 2
        for t in range(ND):
            w(f'buffer_load_dwordx4 {vr(MREG[t],4)}, {vL16}, {SRD}, {sMO[t]} offen sc1')
        if cfg.get('mnop'): w(f's_nop {cfg["mnop"]-1}')
        w(f's_waitcnt vmcnt({cfg.get("bdepth", 0)})')
        sentinel_check(w, list(range(MREG[0], MREG[0] + 8)), f'v{tmp}')
        w(f's_sub_u32 {sSPIN}, {sSPIN}, 1\ns_cbranch_scc1 {tmo}')
        w(f's_cbranch_vccnz {lab}_mload')
        w.vm = ['MP']
        if early: early()
    else:
        for t in range(ND):
            w(f's_setprio {ND-1-t}')
            w.vmem(f'buffer_load_dwordx4 {vr(MREG[t],4)}, {vL16}, {SRD}, {sMO[t]} offen sc1', f'M{t}')
        if early: early()
    order = [(tl, t) for t in range(KM) for tl in range(7)] + [(tl, t) for tl in range(7) for t in range(KM, 7)]
    pre = {}; mem = {}; val = {}
    ad = lambda d, n, f: d.setdefault(n, []).append(f)
    w1 = 1 if mpoll else cfg.get('w1', 3)
    for t, s0 in ((0, 0), (1, w1)):
        m = MREG[t]
        ad(pre, s0, lambda t=t: w.wait(vm=f'M{t}'))
        if cfg.get('bw64'):
            for k in range(2): ad(mem, 2 * t + k, lambda t=t, m=m, k=k: w.ds(f'ds_write_b64 {vKA[t]}, {vr(m+2*k,2)} offset:{8*k}'))
        else: ad(mem, s0, lambda t=t, m=m: w.ds(f'ds_write_b128 {vKA[t]}, {vr(m,4)}'))
    if mpoll:
        bs = w1 + cfg.get('mbar', 4)
        def sync():
            w.wait_all_lg(); w('s_barrier')
        ad(pre, 20, lambda: w.wait(vm='MP'))
    else:
        m0, m1, m2 = MREG[0], MREG[1], MREG[2]
        ad(val, 1, lambda: w(f'v_max3_u32 v{tmp}, v{m0}, v{m0+1}, v{m0+2}'))
        c = w1 + 1
        ad(val, c, lambda: w(f'v_max3_u32 v{tmp}, v{tmp}, v{m0+3}, v{m1}'))
        ad(val, c + 1, lambda: w(f'v_max3_u32 v{tmp}, v{tmp}, v{m1+1}, v{m1+2}'))
        if ND == 2:
            ad(val, c + 2, lambda: w(f'v_max_u32 v{tmp}, v{tmp}, v{m1+3}'))
            c += 3
        else:
            ad(pre, c + 2, lambda: w.wait(vm='M2'))
            ad(val, c + 2, lambda: w(f'v_max3_u32 v{tmp}, v{tmp}, v{m1+3}, v{m2}'))
            ad(val, c + 3, lambda: w(f'v_max3_u32 v{tmp}, v{tmp}, v{m2+1}, v{m2+2}'))
            ad(val, c + 4, lambda: w(f'v_max_u32 v{tmp}, v{tmp}, v{m2+3}'))
            c += 5
        ad(val, c, lambda: w(f'v_cmp_eq_u32 vcc, -1, v{tmp}'))
        bs = c + cfg.get('bdelay', 2)
        def sync():
            w(f's_cbranch_vccnz {lab}_mretry')
            w.wait_all_lg(); w('s_barrier')
    ad(mem, bs, sync)
    n = 0
    for t in range(ND, 7):
        m = MREG[t]
        ad(mem, bs + n, lambda t=t, m=m: w.ds(f'ds_read_b128 {vr(m,4)}, {vKA[t]}', f'M{t}'))
        n += 1
    per = 7 - KM; base = 7 * KM
    for tl in range(6):
        s0 = base + per * (tl + 1) + 1
        ad(val, s0, lambda tl=tl: w(f'v_add_f32 v{tmp}, v{ACC[tl]}, v{ACC[tl]+2}'))
        ad(val, s0 + 1, lambda tl=tl: w(f'v_add_f32 v{tmp+1}, v{ACC[tl]+1}, v{ACC[tl]+3}'))
        ad(val, s0 + 2, lambda: w(f'v_cvt_pk_bf16_f32 v{tmp+2}, v{tmp}, v{tmp+1}'))
        ad(mem, s0 + 3, lambda tl=tl: comb_write(tl, f'v{tmp+2}'))
    fl, fv = fill(bs + n)
    for k, fs in fv.items():
        for f in fs: ad(val, k, f)
    if cfg.get('stamps'):
        for k in cfg.get('bfine', [0]): ad(fl, k, lambda: w.stamp())
    for n, (tl, t) in enumerate(order):
        for f in pre.get(n, []): f()
        w.wait(vm=f'M{t}', lg=f'M{t}')
        w('s_nop 3' if cfg.get('nov') else smf(ACC[tl], vr(MREG[t], 4), wreg(tl * 7 + t), vIDX))
        for f in mem.get(n, []): f()
        for f in fl.get(n, []): f()
        for f in val.get(n, []): f()
    assert all(k < 49 for k in fl) and all(k < 49 for k in val)
    return [f for k in sorted(mem) if k >= 49 for f in mem[k]]

MREGA = [12, 16, 20, 24, 0, 4, 8]
def a_consts(em, A):
    l = V('v0')
    em.emit(l & 63, 'v0')
    em.emit(sel_lt(l & 2, 1, 0x44444444, 0xEEEEEEEE), vIDX)
    em.emit(l * 16, vL16)
    for t in range(4): A(f's_add_u32 s34, {sW}, {sR}\ns_add_u32 s34, s34, {t}\ns_and_b32 s34, s34, 3\ns_lshl_b32 {sKK[t]}, s34, 10')
    for t in range(4, 7): A(f's_movk_i32 {sKK[t]}, {t*1024}')
    em.emit(L_K + l * 16, vKA[4])
    for t in range(4): A(f'v_add_u32 {vKA[t]}, {sKK[t]}, {vKA[4]}')
    A(f's_lshl_b32 s29, {sW}, 10\ns_add_u32 s29, s29, 4096')

def a_step_consts(A, solo=False):
    A(f's_and_b32 s11, {sSTEP}, {0 if solo else 3}\ns_lshl_b32 s33, s11, 13\ns_add_u32 s33, s33, {MS}')
    A(f's_add_u32 s36, s33, {sKK[0]}\ns_add_u32 s37, s33, {sKK[1]}\ns_add_u32 s38, s33, s29\ns_add_u32 s39, s29, {L_K}')
    A(f's_add_u32 {sS1}, {sSTEP}, 1')

def a_stream(w, fill, comb_write, lab, tmp, tmo):
    cfg = w.cfg; MR = MREGA; KMA = 4; NE = cfg.get('ne', 2)
    align(w.A, cfg, 'aA')
    w(f'{lab}_mload:')
    w.vm = []; w.lg = []
    for t in range(NE): w(f'buffer_load_dwordx4 {vr(MR[t],4)}, {vL16}, {SRD}, s{36+t} offen sc1')
    if cfg.get('mnop'): w(f's_nop {cfg["mnop"]-1}')
    w(f's_waitcnt vmcnt({0 if cfg.get("hum") else cfg.get("mdepth", 2)})')
    if cfg.get('hum') == 1: pass
    elif cfg.get('poll1'):
        assert NE == 1 and cfg.get('nanchk', 1)
        w(f'v_cmp_eq_u32 vcc, -1, v{MR[0]+3}')
    else: sentinel_check(w, list(range(MR[0], MR[0] + 4 * NE)), f'v{tmp}')
    if cfg.get('hum') != 1:
        w(f's_sub_u32 {sSPIN}, {sSPIN}, 1\ns_cbranch_scc1 {tmo}')
        w(f's_cbranch_vccnz {lab}_mload')
    w(f'{lab}_again:')
    order = [(tl, t) for t in range(KMA) for tl in range(7)] + [(tl, t) for tl in range(7) for t in range(KMA, 7)]
    pre = {}; mem = {}; val = {}
    ad = lambda d, n, f: d.setdefault(n, []).append(f)
    ew = cfg.get('ew', 128)
    if ew == 128:
        if NE == 1: w.ds(f'ds_write_b128 {vKA[0]}, {vr(MR[0],4)}')
        else: ad(mem, 0, lambda: w.ds(f'ds_write_b128 {vKA[0]}, {vr(MR[0],4)}'))
    elif ew == 64:
        for k in range(2): ad(mem, k, lambda k=k: w.ds(f'ds_write_b64 {vKA[0]}, {vr(MR[0]+2*k,2)} offset:{8*k}'))
    else:
        for k in range(4): ad(mem, k, lambda k=k: w.ds(f'ds_write_b32 {vKA[0]}, v{MR[0]+k} offset:{4*k}'))
    bs = cfg.get('ebar', 2 if NE == 1 else 8)
    ad(mem, bs, lambda: (w.wait_all_lg(), w('s_barrier')))
    for t in range(NE, 4):
        ad(mem, bs + (t - NE), lambda t=t: w.ds(f'ds_read_b128 {vr(MR[t],4)}, {vKA[t]}', f'M{t}'))
    l0 = cfg.get('lslot', 3); lb = cfg.get('lbar', 17)
    ad(mem, l0 - 1, lambda: w('s_mov_b32 m0, s39'))
    ad(mem, l0, lambda: w.vmem(f'buffer_load_dwordx4 {vL16}, {SRD}, s38 offen sc1 lds', 'L'))
    ad(mem, lb, lambda: (w.wait(vm='L'), w('s_barrier')))
    for t in (4, 5, 6): ad(mem, lb + (t - 4) // 2, lambda t=t: w.ds(f'ds_read_b128 {vr(MR[t],4)}, {vKA[4]} offset:{t*1024}', f'M{t}'))
    nanchk = cfg.get('nanchk', 1)
    if nanchk:
        cs = lb + 1
        ad(val, 34, lambda: w(f'v_cmp_u_f32 vcc, v{tmp}, v{tmp+1}'))
        ad(mem, 36, lambda: w(f's_cbranch_vccnz {lab}_lretry\n{lab}_lok:'))
    else:
        lc = lb + 3
        w.lretry_state = None
        ad(pre, lc + 1, lambda: w.wait(lg='M5'))
        ad(val, lc + 1, lambda: w(f'v_max3_u32 v{tmp}, v0, v1, v2'))
        ad(val, lc + 2, lambda: w(f'v_max3_u32 v{tmp}, v{tmp}, v3, v4'))
        ad(pre, lc + 3, lambda: w.wait(lg='M6'))
        ad(val, lc + 3, lambda: w(f'v_max3_u32 v{tmp}, v{tmp}, v5, v6'))
        ad(val, lc + 4, lambda: w(f'v_max3_u32 v{tmp}, v{tmp}, v7, v8'))
        ad(val, lc + 5, lambda: w(f'v_max3_u32 v{tmp}, v{tmp}, v9, v10'))
        ad(val, lc + 6, lambda: (w(f'v_max_u32 v{tmp}, v{tmp}, v11'), w(f'v_cmp_eq_u32 vcc, -1, v{tmp}')))
        cs = lc + 7
        assert cs <= 27
        ad(mem, cs, lambda: w(f's_cbranch_vccnz {lab}_lretry\n{lab}_lok:'))
    per = 7 - KMA; base = 7 * KMA
    for tl in range(6):
        s0 = base + per * (tl + 1) + 1
        o = tmp + 2 if not (cfg.get('tw2') and tl % 2 == 0) else 97
        ad(val, s0, lambda tl=tl: w(f'v_add_f32 v{tmp}, v{ACC[tl]}, v{ACC[tl]+2}'))
        ad(val, s0 + 1, lambda tl=tl: w(f'v_add_f32 v{tmp+1}, v{ACC[tl]+1}, v{ACC[tl]+3}'))
        ad(val, s0 + 2, lambda o=o: w(f'v_cvt_pk_bf16_f32 v{o}, v{tmp}, v{tmp+1}'))
        if not cfg.get('tw2'): ad(mem, s0 + 3, lambda tl=tl, o=o: comb_write(tl, f'v{o}'))
        elif tl % 2: ad(mem, s0 + 3, lambda tl=tl, o=o: comb_write(tl, f'v97, v{o}'))
    fl, fv = fill(bs + 4 - NE, cs + 1)
    for k, fs in fv.items():
        for f in fs: ad(val, k, f)
    if cfg.get('stamps'):
        for k in cfg.get('fine', [0]): ad(fl, k, lambda: w.stamp())
    for n, (tl, t) in enumerate(order):
        for f in pre.get(n, []): f()
        w.wait(lg=f'M{t}')
        w('s_nop 3' if cfg.get('noa') else smf(ACC[tl], vr(MR[t], 4), wreg(tl * 7 + t), vIDX))
        for f in mem.get(n, []): f()
        for f in fl.get(n, []): f()
        for f in val.get(n, []): f()
    assert all(k < 49 for k in fl)
    return [f for k in range(49, 56) for f in mem.get(k, []) + val.get(k, [])]

def l_retry(w, lab, tmp, tmo):
    if w.cfg.get('nanchk', 1):
        w(f'{lab}_lretry:')
        sentinel_check(w, list(range(0, 28 if (w.cfg.get('poll1') or w.cfg.get('hum') == 1) else 12)), f'v{tmp+3}')
        w(f'v_mov_b32 v{tmp+3}, {sS1}\ns_cbranch_vccz {lab}_lok')
        w(f's_add_u32 {sRETRY}, {sRETRY}, 1\ns_sub_u32 {sSPIN}, {sSPIN}, 16\ns_cbranch_scc1 {tmo}')
        w('s_waitcnt vmcnt(0) lgkmcnt(0)\ns_barrier')
        zero(w, 28, 28)
        if w.cfg.get('poll1') or w.cfg.get('hum') == 1:
            w(f'buffer_load_dwordx4 {vr(MREGA[0],4)}, {vL16}, {SRD}, s36 offen sc1\ns_waitcnt vmcnt(0)')
        w(f's_branch {lab}_again')
        return
    w(f'{lab}_lretry:\ns_mov_b32 s33, m0\n{lab}_lretry2:')
    w(f's_add_u32 {sRETRY}, {sRETRY}, 1\ns_barrier\ns_mov_b32 m0, s39')
    w(f's_sub_u32 {sSPIN}, {sSPIN}, 4\ns_cbranch_scc1 {tmo}')
    w(f'buffer_load_dwordx4 {vL16}, {SRD}, s38 offen sc1 lds\ns_waitcnt vmcnt(0)\ns_barrier')
    for t in (4, 5, 6): w(f'ds_read_b128 {vr(MREGA[t],4)}, {vKA[4]} offset:{t*1024}')
    w('s_waitcnt lgkmcnt(0)')
    sentinel_check(w, list(range(0, 12)), f'v{tmp}')
    w(f's_cbranch_vccnz {lab}_lretry2\ns_mov_b32 m0, s33\ns_branch {lab}_lok')

def m_retry(w, lab, tmo):
    w(f'{lab}_mretry:')
    w(f's_add_u32 {sRETRY}, {sRETRY}, 1')
    w(f's_sub_u32 {sSPIN}, {sSPIN}, 8\ns_cbranch_scc1 {tmo}\ns_waitcnt vmcnt(0) lgkmcnt(0)')
    zero(w, 28, 28)
    w(f's_branch {lab}_mload')

def code_touch(A, start, end, sidx, shift, va, vd, sr=56):
    lab = A.newlabel('CT')
    A(f's_getpc_b64 s[{sr}:{sr+1}]\n{lab}:\ns_add_u32 s{sr}, s{sr}, {start}-{lab}\ns_addc_u32 s{sr+1}, s{sr+1}, ({start}-{lab})>>32')
    A(f's_mov_b32 s{sr+2}, {end}-{start}\ns_mov_b32 s{sr+3}, 0x20000\ns_lshl_b32 s11, {sidx}, {shift+6}\nv_lshlrev_b32 {va}, {shift}, v0')
    A(f'buffer_load_dword {vd}, {va}, s[{sr}:{sr+3}], s11 offen')

def wait_lanes(A, lab, addr, target, tmo):
    em = Emitter(A, [f'v{i}' for i in range(4, 13)])
    A(f's_cmp_lg_u32 s9, 0\ns_cbranch_scc1 {lab}_go')
    em.emit(addr, 'v1'); em.emit(target, 'v2')
    A(f's_mov_b32 s19, 0x40000\n{lab}:\nbuffer_load_dword v3, v1, {SRD}, 0 offen sc1')
    A(f's_sub_u32 s19, s19, 1\ns_cbranch_scc1 {tmo}\ns_waitcnt vmcnt(0)\nv_cmp_gt_u32 vcc, v2, v3\ns_cbranch_vccnz {lab}')
    A(f'{lab}_go:\ns_barrier')

def emit_modes(A, cfg, lab, loop):
    if cfg.get('modes', 2) == 1:
        loop(lab, cfg.get('st', '')); return
    A(f's_cmp_lg_u32 s30, 0\ns_cbranch_scc1 {lab}_slow')
    loop(lab + 'x', '')
    A(f'{lab}_slow:')
    loop(lab + 'y', 'sc1')

def load_weights(w, addr_of, spare='v102', slots=range(7), between=None):
    n = 0
    for bs_ in ([(0,), (1,)] if between else [(0, 1)]):
      if bs_ == (1,): between(1)
      for tl in range(7):
        for t in slots:
            for b in bs_:
                va, pre = addr_of(tl, t, b)
                w(pre)
                w(f'buffer_load_dwordx4 {wquad(tl*7+t, b)}, {va}, {SRD}, s11 offen {w.cfg.get("wfl", "")}')
                n += 1
                if between and n == 24: between(0)
                if n % 16 == 0: w(f's_waitcnt vmcnt({w.cfg.get("wdepth", 32)})')
                if n == (w.cfg.get('midn', 64) if len(slots) == 7 else 16) and w.cfg.get('mid_weights'): w.cfg['mid_weights'](spare)

A_X, A_T, A_R = 0, 65536, 77824
Z0, Z1, SACC, TSP0, TSP1, TMP = 56, 12, 80, 36, 40, 92
aKR, aKR3, aTW, aTW6, aTR, aXR, aRW, aRR = 'v108', 'v107', 'v106', 'v105', 'v104', 'v103', 'v102', 'v101'
aP, aKR2, aPOLL = 'v100', 'v99', 'v96'
sQ = ['s21', 's22', 's23', 's24']
sXS, sXL, sPW, sPR, sWL, sMASK = 's25', 's26', 's27', 's28', 's32', 's[52:53]'

def a_exprs(R128=False, TT=False):
    l = V('v0'); w = Sg(sW); h = Sg(sR)
    g = l >> 4; rho = l & 15
    half = (rho >> 1) & 1
    q0 = (w >> 1) * 7 + (w & 1) * 4; q3 = (w >> 1) * 7 + 3
    e = {}
    i = rho & 7
    kr = L_K + ((g >> 1) * 16 + (i >> 1) * 4 + (i & 1)) * 16 + (g & 1) * 8
    e[aKR] = kr + q0 * 512
    e[aKR3] = kr + q3 * 512
    e[aKR2] = kr + q0 * 512 + 1024
    tw = A_T + w * 3072 + (rho >> 2) * 192 + (rho & 1) * 32 + g * 8 + half * 4
    e[aTW] = tw
    e['v98'] = tw + 1536
    e[aTW6] = tw + 2304 + (w & 1) * 64
    e[aTR] = A_T + w * 3072 + g * 384 + ((l >> 3) & 1) * 64 + ((l >> 2) & 1) * 32 + (l & 3) * 8
    e[aXR] = A_X + w * 8192 + l * 16
    e[aRW] = A_R + w * 1536 + g * 384 + rho * 4
    if R128 == 1: e[aRW] = A_R + g * 1536 + (rho >> 1) * 32 + (w ^ g) * 8 + (rho & 1) * 4
    rr = l >> 5; pi = l & 31; pc = pi.min(19)
    e[aRR] = A_R + (w * 2 + rr) * 192 + sel_lt(pc, 4, pc * 8, pc * 8 + 32)
    if R128 == 2: e[aRR] = A_R + (sel_lt(pc, 4, 0, ((pc - 4) >> 3) + 1) * 2 + rr) * 288 + (w * 16 + sel_lt(pc, 4, pc, (pc - 4) & 7) * 2) * 4
    if R128 == 3: e[aRR] = sel_lt(pi, 20, A_R + (sel_lt(pc, 4, 0, ((pc - 4) >> 3) + 1) * 2 + rr) * 288 + (w * 16 + sel_lt(pc, 4, pc, (pc - 4) & 7) * 2) * 4, A_R + 256)
    if R128 == 1: e[aRR] = A_R + (w * 2 + rr) * 768 + sel_lt(pc, 4, pc * 32, pc * 32 + 128)
    if TT:
        al = (l >> 2) & 3; c = l & 3
        tb = A_T + w * 4096 + c * 64 + (g & 1) * 32 + (al & 1) * 8
        e[aTR] = tb + ((g >> 1) * 2 + (al >> 1)) * 272
        e[aTW6] = tb + ((g >> 1) * 2 + ((al >> 1) ^ ((g >> 1) & w & 1))) * 272 + 4 * 272
        e[aTW] = (g * 16 + (rho & 12) + (rho & 1) * 2 + ((rho >> 1) & 1)) * 16
        rb_ = A_T + 2304 + (sel_lt(pc, 4, 0, ((pc - 4) >> 3) + 1) * 2 + rr) * 288 + (w * 16 + sel_lt(pc, 4, pc, (pc - 4) & 7) * 2) * 4
        e[aRR] = sel_lt(pi, 20, rb_, A_T + 2304 + 256) if R128 == 3 else rb_
        e[aRW] = A_T + 4032 + w * 4 + l * 0
        e['v98'] = l * 0 + (A_T + 4032)
    row = w * 2 + rr
    rho_of = lambda hf: (row >> 1) * 4 + hf * 2 + (row & 1)
    pm = ((h >> 3) + 8) * 1024 + (((h >> 1) & 3) * 16 + rho_of(pi & 1)) * 16 + ((h & 1) * 2 + ((pi >> 1) & 1)) * 4
    t0 = (pc - 4) * 2
    px = (h >> 1) * 1024 + (((h & 1) * 2 + ((t0 >> 3) & 1)) * 16 + rho_of((t0 >> 1) & 1)) * 16 + (((t0 >> 2) & 1) * 2 + ((t0 >> 4) & 1)) * 4
    e[aP] = sel_lt(pi, 4, pm, sel_lt(pi, 20, px, OOB))
    return e

def check_a_exprs():
    e = a_exprs(); l = np.arange(64)
    for h in (0, 1, 7, 8, 15):
        for w in range(4):
            env = {'v0': l, sW: w, sR: h}
            p = ev(e[aP], env)
            for ln in range(64):
                pi = ln & 31
                assert p[ln] == (ps_off(h, 2 * w + (ln >> 5), pi) if pi < 20 else OOB)
check_a_exprs()

def gen_A(A, cfg, lab, tmo):
    w = Wv(A, cfg)
    em = Emitter(A, [f'v{i}' for i in range(2, 30)])
    a_consts(em, A)
    for k, x in a_exprs((3 if cfg.get('nomask') else 2) if cfg.get('rtid') else cfg.get('r128'), cfg.get('ttid')).items(): em.emit(x, k)
    l = V('v0')
    em.emit(HU1 + (l & 15) * 4, vHUp)
    if cfg.get('huall'): em.emit(sel_lt(l, 1, HU2 + (Sg(sR) * 4 + Sg(sW)) * 4, OOB), vHUs)
    else: em.emit(sel_lt(l + Sg(sW) * 64, 1, HU2 + Sg(sR) * 4, OOB), vHUs)
    nt = cfg.get('ntouch', 0)
    if nt:
        a = Sg(sR) * 4 + Sg(sW)
        em.emit(sel_lt(l, nt, ((a >> 5) * 1792 + (1792 - 32 * nt) + (a & 31) * nt + l) * 128, OOB), 'v110')
    A(f's_mov_b32 s52, 0xfffff\ns_mov_b32 s53, 0xfffff')
    A(f's_lshr_b32 s11, {sW}, 1')
    A(f's_mul_i32 s34, s11, 7\ns_and_b32 s35, {sW}, 1\ns_lshl_b32 s36, s35, 2\ns_add_u32 s36, s36, s34')
    for u in range(3): A(f's_add_u32 s37, s36, {u}\ns_lshl_b32 {sQ[u]}, s37, 10')
    A(f's_add_u32 s37, s34, 3\ns_lshl_b32 {sQ[3]}, s37, 10')
    A(f's_lshl_b32 {sWL}, {sW}, 13')
    A(f's_mul_i32 s38, {sR}, {28*14336}\ns_add_u32 s38, s38, {AF}')
    A(f's_mul_i32 s39, s35, 14336')
    def addr(tl, t, b):
        pre = f's_mul_i32 s11, {sQ[tl>>1]}, 28\ns_add_u32 s11, s11, s38\n'
        pre += (f's_add_u32 s11, s11, {14336*(tl&1) + 1024*b}\n' if tl < 6 else f's_add_u32 s11, s11, s39\ns_add_u32 s11, s11, {1024*b}\n')
        pre += f's_lshl_b32 s37, {sKK[t]}, 1\ns_add_u32 s11, s11, s37'
        return (aTW if cfg.get('ttid') else vL16), pre
    sXo = ['s44', 's45', 's46', 's47']; sXm = ['s48', 's49', 's50', 's51']
    def x_consts():
        A(f's_add_u32 {sXo[0]}, {sXS}, {sQ[0]}\ns_add_u32 {sXo[1]}, {sXS}, {sQ[3]}')
        A(f's_add_u32 {sXo[2]}, {sXo[0]}, 14336\ns_add_u32 {sXo[3]}, {sXo[1]}, 14336')
        A(f's_mov_b32 {sXm[0]}, {sXL}\ns_add_u32 {sXm[1]}, {sXL}, 3072\ns_add_u32 {sXm[2]}, {sXL}, 4096\ns_add_u32 {sXm[3]}, {sXL}, 7168')
    def x_m0(tt, u):
        if u in (0, 3): A(f's_mov_b32 m0, {sXm[2*tt + (u == 3)]}')
    def x_dma(tt, u, w=w):
        w.vmem(f'buffer_load_dwordx4 {vL16}, {SRD}, {sXo[2*tt + (u == 3)]} offen offset:{1024*u if u < 3 else 0} {cfg.get("xfl", "")} lds', 'X')
    if cfg.get('pre_a'): cfg['pre_a']()
    A(f's_mov_b32 {sXS}, {XF}\ns_mov_b32 {sXL}, {sWL}')
    x_consts()
    for tt in range(2):
        for u in range(4): x_m0(tt, u); x_dma(tt, u)
    load_weights(w, addr, 'v94', range(4, 7) if cfg.get('locala') else range(7))
    TT = cfg.get('ttid'); WST = 4096 if TT else 1728; RO = A_T + 2304 if TT else A_R
    em.emit(A_T + Sg(sW) * (4096 if TT else 3072) + l * 16, 'v1')
    A('v_mov_b64 v[4:5], 0\nv_mov_b64 v[6:7], 0')
    for k in range(3): A(f'ds_write_b128 v1, v[4:7] offset:{k*1024}')
    if cfg.get('rflag'): A(f'ds_write_b32 {aRW}, v4')
    if cfg.get('nomask'):
        em.emit(RO + 256 + Sg(sW) * WST + l * 0, 'v1')
        em.emit(sel_lt(Sg(sW) + l * 0, 1, 0xff800000, 0), 'v8')
        A('v_mov_b32 v9, v8\nds_write_b64 v1, v[8:9]')
    zero(w, 28, 28); zero(w, SACC, 12)
    A(f's_mov_b32 {sSTEP}, 0\ns_mov_b32 {sSPIN}, {SPIN_MAX}\ns_mov_b32 {sRETRY}, 0')
    A(f's_mul_i32 s35, {sW}, {WST}\ns_add_u32 s35, s35, 32768')
    cfg['start_sync'](w, lab)
    A('s_waitcnt vmcnt(0) lgkmcnt(0)'); w.vm = []; w.lg = []
    def loop(lab, st):
        w = Wv(A, cfg)
        A(f'{lab}_loop:')
        cfg['loop_top'](w, lab)
        a_step_consts(A, cfg.get('solo'))
        A(f's_lshl_b32 s33, s11, 14\ns_add_u32 {sPW}, s33, {PS}\ns_xor_b32 {sPR}, {sPW}, 0x8000')
        A(f's_mul_i32 {sXS}, {sS1}, {0 if cfg.get("xsame") else 28672}' + (f'\ns_add_u32 {sXS}, {sXS}, {XF}' if XF else ''))
        A(f's_and_b32 s11, {sS1}, 1\ns_lshl_b32 s11, s11, 15\ns_add_u32 {sXL}, s11, {sWL}')
        x_consts()
        if nt: A(f's_add_u32 s11, {sSTEP}, 2\ns_min_u32 s11, s11, {NSEG-1}\ns_mul_i32 s11, s11, {VX_SEG}\ns_add_u32 s34, s11, {VXF}')
        A(f'v_mov_b32 v{TMP+3}, {sS1}')
        for r in range(MREGA[0], MREGA[0] + 4 * cfg.get('ne', 2), 2): A(f'v_mov_b64 {vr(r,2)}, -1')
        w.stamp()
        gate = cfg.get('gate', 'w0')
        if gate == 'w0':
            A(f's_cmp_lg_u32 {sW}, 0\ns_cbranch_scc1 {lab}_nopoll')
            if not cfg.get('solo'): poll(w, f'{lab}_poll1', aPOLL, sSTEP, tmo, 16)
            A(f'{lab}_nopoll:\ns_barrier')
        elif gate == 'all':
            poll(w, f'{lab}_poll1', aPOLL, sSTEP, tmo, 16)
        w.stamp()
        for _ in range(cfg.get('adelay', 0)): A('s_nop 15')
        if cfg.get('pwait') is not None: A(f's_waitcnt vmcnt({cfg["pwait"]})')
        for _ in range(cfg.get('pchain', 0)):
            A(f'buffer_load_dword {aPOLL}, {vHUp}, {SRD}, 0 offen sc1\ns_waitcnt vmcnt(0)')
        xpos = cfg.get('xpos', [14, 19, 24, 29, 34, 39, 44, 50])
        def xat(p):
            if nt and cfg.get('tslot', 27) == p: w.vmem(f'buffer_load_dword v109, v110, {SRD}, s34 offen', 'T')
            for k in range(8):
                if xpos[k] == p: x_m0(k >> 2, k & 3); x_dma(k >> 2, k & 3, w)
        def fill(f0, k0):
            d = {}; dv = {}
            add = lambda n, f: d.setdefault(n, []).append(f)
            def kq(n, reg, areg, off, tag, ns):
                if cfg.get('kr2'):
                    r2 = areg if off < 1024 else aKR2
                    o = (off & 1023) // 4
                    add(n, lambda: w.ds(f'ds_read2_b32 {vr(reg,2)}, {r2} offset0:{o} offset1:{o+8}', tag))
                    add(n, lambda: w.ds(f'ds_read2_b32 {vr(reg+2,2)}, {r2} offset0:{o+1} offset1:{o+9}', tag))
                    return
                add(n, lambda: w.ds(f'ds_read_b64 {vr(reg,2)}, {areg} offset:{off}', tag))
                add(n, lambda: w.ds(f'ds_read_b64 {vr(reg+2,2)}, {areg} offset:{off+32}', tag))
                if cfg.get('lswap', 1) and not (cfg.get('z0swap') and tag in ('K0', 'K1')): return
                add(ns, lambda: w.wait(lg=tag))
                dv.setdefault(ns, []).append(lambda: w(f'v_swap_b32 v{reg+1}, v{reg+2}'))
            n = f0
            for tt in range(2):
                for uu in range(2):
                    add(n, lambda tt=tt, uu=uu: w.ds(f'ds_read_b128 {vr(Z0+8*(1+tt)+4*uu,4)}, {aXR} offset:{(tt*4+uu)*1024}', 'Z0')); n += 1
            for k in range(8):
                if xpos[k] < 49:
                    add(xpos[k] - 1, lambda k=k: x_m0(k >> 2, k & 3))
                    add(xpos[k], lambda k=k: x_dma(k >> 2, k & 3, w))
            if nt and cfg.get('tslot', 27) < 49: add(cfg.get('tslot', 27), lambda: w.vmem(f'buffer_load_dword v109, v110, {SRD}, s34 offen', 'T'))
            ks = cfg.get('kswap', [36, 39, 42, 45])
            if cfg.get('z0swap'): ks = [k0 + 5, k0 + 6, 0, 0]
            kq(k0, Z0, aKR, 0, 'K0', ks[0]); kq(k0 + 1, Z0 + 4, aKR, 512, 'K1', ks[1])
            k1 = 41 if cfg.get('nanchk', 1) else k0 + 3
            if cfg.get('nanchk', 1): k0 += 3
            kq(k1, Z1, aKR, 1024, 'K2', ks[2]); kq(k1 + 1, Z1 + 4, aKR3, 0, 'K3', ks[3])
            for k, sl in enumerate((37, 38, 39, 40) if cfg.get('nanchk', 1) else (36, 37, 39, 40)):
                tt, uu = k >> 1, k & 1
                add(sl, lambda tt=tt, uu=uu: w.ds(f'ds_read_b128 {vr(Z1+8*(1+tt)+4*uu,4)}, {aXR} offset:{(tt*4+2+uu)*1024}', 'Z1'))
            add(45, lambda: w.ds(f'ds_read_b64_tr_b16 {vr(TSP0,2)}, {aTR}', 'TS0'))
            add(46, lambda: w.ds(f'ds_read_b64_tr_b16 {vr(TSP0+2,2)}, {aTR} offset:{16 if TT else 192}', 'TS0'))
            if TT:
                assert max(x for x in xpos if x < 49) < 30
                add(30, lambda: w('s_mov_b32 m0, s35'))
            return d, dv
        def tw(tl, reg):
            if TT:
                w.ds(f'ds_write_addtid_b32 {reg} offset:{A_T - 32768 + tl*272}'); return
            if ',' in reg:
                u = tl >> 1
                w.ds(f'ds_write2_b32 {aTW if u < 2 else "v98"}, {reg} offset0:{(u&1)*192} offset1:{(u&1)*192+16}')
            elif tl < 6: w.ds(f'ds_write_b32 {aTW}, {reg} offset:{(tl>>1)*768 + (tl&1)*64}')
            else: w.ds(f'ds_write_b32 {aTW6}, {reg}')
        rest = a_stream(w, fill, tw, lab, TMP, tmo)
        w.stamp()
        w.wait(lg='TS0')
        o0 = (1, 2, 0) if cfg.get('lswap', 1) and not cfg.get('z0swap') else (0, 1, 2)
        w(smf(SACC + 4 * o0[0], vr(TSP0, 4), vr(Z0 + 8 * o0[0], 8), vIDX))
        rest[0]()
        w(smf(SACC + 4 * o0[1], vr(TSP0, 4), vr(Z0 + 8 * o0[1], 8), vIDX))
        for f in rest[1:]: f()
        w(f'v_add_f32 v{TMP}, v{ACC[6]}, v{ACC[6]+2}\nv_add_f32 v{TMP+1}, v{ACC[6]+1}, v{ACC[6]+3}')
        w(f'v_cvt_pk_bf16_f32 v{TMP+2}, v{TMP}, v{TMP+1}')
        tw(6, f'v{TMP+2}')
        if TT:
            w.ds(f'ds_read_b64_tr_b16 {vr(TSP1,2)}, {aTW6}', 'TS1')
            w.ds(f'ds_read_b64_tr_b16 {vr(TSP1+2,2)}, {aTW6} offset:16', 'TS1')
        else:
            w.ds(f'ds_read_b64_tr_b16 {vr(TSP1,2)}, {aTR} offset:1536', 'TS1')
            w.ds(f'ds_read_b64_tr_b16 {vr(TSP1+2,2)}, {aTR} offset:{1536+192}', 'TS1')
            if cfg.get('rtid'): w('s_mov_b32 m0, s35')
        if cfg.get('lswap', 1) and not cfg.get('kr2'):
            if not cfg.get('z0swap'):
                for r in (Z0, Z0 + 4, Z1, Z1 + 4): w(f'v_swap_b32 v{r+1}, v{r+2}')
        w(smf(SACC + 4 * o0[2], vr(TSP0, 4), vr(Z0 + 8 * o0[2], 8), vIDX))
        if cfg.get('z0swap'):
            for r in (Z1, Z1 + 4): w(f'v_swap_b32 v{r+1}, v{r+2}')
        xat(50)
        w.wait(lg='TS1')
        for kt in o0: w(smf(SACC + 4 * kt, vr(TSP1, 4), vr(Z1 + 8 * kt, 8), vIDX))
        for kt in o0:
            w(f'v_add_f32 v{56+2*kt}, v{SACC+4*kt}, v{SACC+4*kt+2}\nv_add_f32 v{57+2*kt}, v{SACC+4*kt+1}, v{SACC+4*kt+3}')
            if cfg.get('rtid'):
                for rp in range(2): w.ds(f'ds_write_addtid_b32 v{56+2*kt+rp} offset:{RO - 32768 + (2*kt+rp)*288}')
            elif cfg.get('r128'): w.ds(f'ds_write2st64_b32 {aRW}, v{56+2*kt}, v{57+2*kt} offset0:{kt} offset1:{kt+3}')
            else: w.ds(f'ds_write2_b32 {aRW}, v{56+2*kt}, v{57+2*kt} offset0:{16*kt} offset1:{16*kt+48}')
        hu2 = lambda: w.vmem(f'buffer_store_dword v{TMP+3}, {vHUs}, {SRD}, 0 offen {st}')
        hp = cfg.get('hu2pos', 0)
        w.stamp()
        if hp == -1: hu2()
        xat(51)
        if cfg.get('rflag'):
            w.ds(f'ds_write_b32 {aRW}, v{TMP+3}')
            for _ in range(cfg.get('rgap', 0)): A('s_nop 0')
            A(f'{lab}_rread:')
            w.lg = []
            w.ds('ds_read_b128 v[72:75], v98', 'RF')
            for k in range(4): w.ds(f'ds_read_b64 {vr(64+2*k,2)}, {aRR} offset:{k*WST}', f'R{k}')
            w.wait(lg='RF')
            w('v_min3_u32 v72, v72, v73, v74\nv_min_u32 v72, v72, v75')
            w(f'v_cmp_gt_u32 vcc, {sS1}, v72')
            w.wait(lg='R1'); w('v_pk_add_f32 v[64:65], v[64:65], v[66:67]')
            w.wait(lg='R3'); w('v_pk_add_f32 v[68:69], v[68:69], v[70:71]')
            w(f's_cbranch_vccnz {lab}_rwait')
            w('v_pk_add_f32 v[64:65], v[64:65], v[68:69]')
        else:
            w.wait_all_lg()
            A('s_barrier')
            if cfg.get('r128'):
                for k in range(2): w.ds(f'ds_read_b128 {vr(64+4*k,4)}, {aRR} offset:{k*16}', f'R{2*k+1}')
            else:
                for k in range(4): w.ds(f'ds_read_b64 {vr(64+2*k,2)}, {aRR} offset:{k*(WST if cfg.get("rtid") else 1536)}', f'R{k}')
            if hp == 0: hu2()
            xat(52)
            w.stamp()
            w.wait(lg='R1'); w('v_pk_add_f32 v[64:65], v[64:65], v[66:67]')
            w.wait(lg='R3'); w('v_pk_add_f32 v[68:69], v[68:69], v[70:71]')
            w('v_pk_add_f32 v[64:65], v[64:65], v[68:69]')
        if hp == 1: hu2()
        for _ in range(cfg.get('apad', 0)): A('s_nop 15')
        def truemax():
            w('v_max_f32 v66, v64, v65')
            for k, r in enumerate((8, 4, 2, 1)):
                if hp == 2 + k: hu2()
                xat(53 + k)
                w(f'v_max_f32_dpp v66, v66, v66 row_ror:{r} row_mask:0xf bank_mask:0xf')
            w('v_mov_b32 v67, v66')
            w('v_permlane16_swap_b32 v66, v67')
            w('v_max_f32 v66, v66, v67')
            w('v_pk_add_f32 v[64:65], v[64:65], v[66:67] op_sel_hi:[1,0] neg_lo:[0,1] neg_hi:[0,1]')
            w('v_exp_f32 v64, v64\nv_exp_f32 v65, v65')
        if cfg.get('fastmax'):
            assert hp >= 6
            w('v_max_f32 v66, |v64|, |v65|')
            w(f'v_cmp_lt_f32 vcc, {hex(0x42800000)}, v66')
            w('v_exp_f32 v68, v64\nv_exp_f32 v69, v65')
            w(f's_and_b64 vcc, vcc, {sMASK}\ns_cbranch_scc1 {lab}_tmax\n{lab}_smx:')
        else:
            truemax()
        if hp == 6: hu2()
        EX = 68 if cfg.get('fastmax') else 64
        w(f'v_add_f32 v66, v{EX}, v{EX+1}')
        if not cfg.get('nomask'): w(f'v_cndmask_b32 v66, 0, v66, {sMASK}')
        for k, r in enumerate((8, 4, 2, 1)):
            if hp == 7 + k: hu2()
            xat(57 + k)
            w(f'v_add_f32_dpp v66, v66, v66 row_ror:{r} row_mask:0xf bank_mask:0xf')
        w('v_mov_b32 v67, v66\nv_permlane16_swap_b32 v66, v67\nv_add_f32 v66, v66, v67')
        w('v_rcp_f32 v66, v66')
        if hp == 11: hu2()
        w(f'v_pk_mul_f32 v[64:65], {vr(EX,2)}, v[66:67] op_sel_hi:[1,0]')
        w('v_cvt_pk_bf16_f32 v64, v64, v65')
        w('v_min_u32 v64, -2, v64')
        w.vmem(f'buffer_store_dword v64, {aP}, {SRD}, {sPW} offen {st}')
        if hp == 99: hu2()
        w.stamp()
        if cfg.get('ack'): w.wait_all_vm(); w.stamp()
        def later():
            w('v_mov_b32 v65, -1')
            w.vmem(f'buffer_store_dword v65, {aP}, {SRD}, {sPR} offen {st}')
            xat(99)
        lp = cfg.get('lpos', 1)
        if lp == 0: later()
        zero(w, 28, 28); zero(w, SACC, 12)
        w(f'v_xor_b32 {aXR}, 0x8000, {aXR}')
        if lp == 2: A('s_barrier')
        if lp >= 1: later()
        w.dump_stamps(lab)
        A(f's_mov_b32 {sSPIN}, {SPIN_MAX}')
        A(f's_mov_b32 {sSTEP}, {sS1}\ns_cmp_lt_u32 {sSTEP}, {NSEG-1}\ns_cbranch_scc1 {lab}_loop')
        cfg['finish'](w, lab)
        A('s_endpgm')
        l_retry(w, lab, TMP, tmo)
        if cfg.get('fastmax'):
            A(f'{lab}_tmax:')
            truemax()
            A(f'v_mov_b64 v[68:69], v[64:65]\ns_branch {lab}_smx')
        if cfg.get('rflag'):
            A(f'{lab}_rwait:\ns_sub_u32 {sSPIN}, {sSPIN}, 1\ns_cbranch_scc1 {tmo}\ns_branch {lab}_rread')

    emit_modes(A, cfg, lab, loop)

B_VX, B_V = 0, 98304
bVW, bWR, bVR, bMS, bSEL = 'v108', 'v107', 'v106', 'v105', 'v104'
bMX, bFL, bVL, bPOLL = 'v107', 'v106', 'v105', 'v104'
bTO, bINC, bFLAG = 'v99', 'v98', 'v97'
bDM = [f'v{89+k}' for k in range(7)]
BT = 100
FACC = 96
sVS, sVL, sMW, sMR, sMXO = 's25', 's26', 's27', 's28', 's29'

def bcol(j, c):
    return sel_lt(c, 16, j * 16 + c, j * 12 + c + 240)

def b_exprs_final(split=False):
    l = V('v0'); w = Sg(sW); j = Sg(sR)
    g = l >> 4; n = l & 15; c = w * 16 + n
    e = {}
    e[bWR] = B_VX + (g * 28 + c.min(27)) * 16
    e[bVR] = B_V + (g * 28 + c.min(27)) * 16
    if split: e[bVR] = B_V + sel_lt(w, 1, g * 16 + n, 256 + g * 12 + n.min(11)) * 16
    i = g * 2 + (n & 1); d0 = bcol(j, c & 30)
    k = d0 & 63
    off = (d0 >> 6) * 1024 + ((k >> 4) * 16 + (i >> 1) * 4 + ((k >> 1) & 1) * 2 + (i & 1)) * 16 + ((k >> 2) & 3) * 4
    e[bMS] = sel_lt(c, 28, off, OOB)
    e[bSEL] = sel_lt(n & 1, 1, 0x05040100, 0x03020706)
    return e
def check_b():
    e = b_exprs_final(); l = np.arange(64)
    for j in (0, 1, 5, 15):
        for w in range(2):
            p = ev(e[bMS], {'v0': l, sW: w, sR: j})
            for ln in range(64):
                c = 16 * w + (ln & 15)
                assert p[ln] == (ms_off(2 * (ln >> 4) + (ln & 1), (16 * j if c < 16 else 12 * j + 240) + (c & ~1)) if c < 28 else OOB)
check_b()

def gen_B(A, cfg, lab, tmo):
    w = Wv(A, cfg)
    em = Emitter(A, [f'v{i}' for i in list(range(2, 20)) + list(range(28, 56))])
    A(f's_add_u32 s39, {sR}, 1')
    fast = cfg.get('bfast', 2)
    common_consts(em, A, lab, '0' if fast else 's39', fast == 1)
    l = V('v0'); ww = Sg(sW); j = Sg(sR)
    split = cfg.get('bsplit', 1)
    em.emit(B_V + (ww * (64 if split else 112) + (l & 15)) * 16 + (l >> 4) * 4, bVW)
    for tl in range(7):
        if not split:
            f = ww * 112 + tl * 16 + (l & 15); hh = f.div(28)
            em.emit((hh * 56 + (l >> 4)) * 7168 + bcol(j, f - hh * 28) * 16, f'v{20+tl}')
        elif tl < 4:
            em.emit(((ww * 4 + tl) * 56 + (l >> 4)) * 7168 + (j * 16 + (l & 15)) * 16, f'v{20+tl}')
        else:
            f = (l & 15) + (tl - 4) * 16; hh = f.div(12)
            em.emit(((ww * 4 + hh) * 56 + (l >> 4)) * 7168 + (j * 12 + 256 + f - hh * 12) * 16, f'v{20+tl}')
    def addr(tl, t, b):
        return f'v{20+tl}', f's_mul_i32 s11, {sKK[t]}, 56\ns_add_u32 s11, s11, {BF + 28672*b}'
    def vw(tl, reg): w.ds(f'ds_write_b32 {bVW}, {reg} offset:{tl*256 if tl < 4 or not split else 4096 + (tl-4)*256}')
    def tail6(rest):
        for f in rest: f()
        w(f'v_add_f32 v{BT}, v{ACC[6]}, v{ACC[6]+2}\nv_add_f32 v{BT+1}, v{ACC[6]+1}, v{ACC[6]+3}')
        w(f'v_cvt_pk_bf16_f32 v{BT+2}, v{BT}, v{BT+1}')
        vw(6, f'v{BT+2}')
    rot = sR if cfg.get('prot', 1) else '0'
    for q in range(4): A(f's_add_u32 s{48+q}, {rot}, {q}\ns_and_b32 s{48+q}, s{48+q}, 3\ns_lshl_b32 s{48+q}, s{48+q}, 11')
    if cfg.get('pre_b'): cfg['pre_b']()
    for t in range(2):
        A(f's_lshl_b32 s11, {sW}, 1\ns_add_u32 s11, s11, {t}\ns_lshl_b32 s33, s11, 10\ns_add_u32 s33, s33, {MX}')
        A(f's_cmp_eq_u32 s11, {sR}\ns_cselect_b32 s{52+t}, s33, {OOB}\ns_cmp_eq_u32 s11, 7\ns_cselect_b32 s{52+t}, {OOB}, s{52+t}')
    def mx_first():
        for t in range(2):
            w.vmem(f'buffer_store_dwordx4 {vr(MREG[t],4)}, {vL16}, {SRD}, s{52+t} offen sc1')
            A(f's_add_u32 s{52+t}, s{52+t}, 7168')
    A(f's_cmp_ge_u32 {sW}, 2\ns_cbranch_scc1 {lab}_loader')
    for k, x in b_exprs_final(split).items(): em.emit(x, k)
    A(f's_lshl_b32 s54, {sR}, 2\ns_add_u32 s54, s54, {HU1}')
    bWB = vHUs if cfg.get('bpoll') else None
    assert bWB, 'the flag variant has no register left for three slots'
    A(f'v_mov_b32 {bWB}, {bWR}\ns_mov_b32 s47, 0')
    em.emit(HU2 + (l & (63 if cfg.get('huall') else 15)) * 4, vHUp)
    load_weights(w, addr, between=(lambda k: cfg['mid_b'](lab + 'f', k)) if cfg.get('mid_b') else None)
    zero(w, 28, 28)
    A(f's_mov_b32 {sSTEP}, 0\ns_mov_b32 {sSPIN}, {SPIN_MAX}\ns_mov_b32 {sRETRY}, 0')
    cfg['start_sync'](w, lab + 'f')
    A('s_waitcnt vmcnt(0) lgkmcnt(0)')
    def loopf(lf, st, second):
        nonlocal w
        w = Wv(A, cfg)
        PREG = [4 * m for m in range(10)]
        one = cfg.get('onebar', 1)
        if one:
            order = list(range(10))
            WREG = {0: 56, 1: 64, 2: 72, 3: 80, 4: 88, 5: 40, 6: 48, 7: 56, 8: 64, 9: 72}
        else:
            order = [0, 1, 2, 3, 4, 8, 9, 5, 6, 7]
            WREG = {0: 56, 1: 64, 2: 72, 3: 80, 4: 88, 8: 40, 9: 48, 5: 56, 6: 64, 7: 72}
        sPO = ['s22', 's23', 's24', 's45', 's46']
        def wx(m, b):
            if m < 8: w.ds(f'ds_read_b128 {vr(WREG[m]+4*b,4)}, {bWR} offset:{(2*m+b)*1792}', f'W{m}')
            else: w.ds(f'ds_read_b128 {vr(WREG[m]+4*b,4)}, {bVR} offset:{(2*(m-8)+b)*(1024 if split else 1792)}', f'W{m}')
        def mfirst():
            for t in range(2): A(f'buffer_load_dwordx4 {vr(MREG[t],4)}, {vL16}, {SRD}, {sMO[t]} offen sc1')
        if fast:
            step_consts(A)
            A('s_barrier'); mfirst()
        A(f'{lf}_loop:')
        if fast: A(f's_and_b32 s11, {sSTEP}, 3\ns_add_u32 {sS1}, {sSTEP}, 1')
        else: step_consts(A)
        A(f's_lshl_b32 s11, s11, 14\ns_add_u32 s11, s11, {PS}\ns_add_u32 s46, s11, 8192')
        for q in range(4): A(f's_add_u32 {sPO[q]}, s11, s{48+q}')
        A(f's_and_b32 s11, {sS1}, 3\ns_lshl_b32 s11, s11, 13\ns_add_u32 {sMW}, s11, {MS}\ns_xor_b32 {sMR}, {sMW}, 0x4000')
        A(f'v_mov_b32 v{BT+3}, {sS1}\nv_mov_b64 {vr(FACC,2)}, 0\nv_mov_b64 {vr(FACC+2,2)}, 0')
        if cfg.get('bpoll') and not fast:
            for r in range(MREG[0], MREG[0] + 8, 2): A(f'v_mov_b64 {vr(r,2)}, -1')
        w.stamp()
        if not fast: A('s_barrier')
        w.stamp()
        def fillf(f0):
            d = {}
            for m in range(5):
                for b in range(2): d.setdefault(f0 + 2 * m + b, []).append(lambda m=m, b=b: wx(m, b))
            if cfg.get('bquick'):
                d.setdefault(46, []).append(lambda: wx(5, 0)); d.setdefault(47, []).append(lambda: wx(5, 1))
            return d, {}
        tail6(weight_stream(w, fillf, vw, lf, BT, tmo, cfg.get('bpoll'), mx_first if cfg.get('mxfirst') else None))
        for _ in range(cfg.get('vpad', 0)): A('s_nop 15')
        w.stamp()
        if one:
            quick = cfg.get('bquick')
            for m in ((6,) if quick else (5, 6)): wx(m, 0); wx(m, 1)
            if fast:
                for t in range(2): A(f's_add_u32 {sMO[t]}, {sMW}, {sKK[t]}')
            if second or not quick: w.wait_all_lg()
            w.stamp()
            if second: A('s_barrier')
            else: poll(w, f'{lf}_poll2', f'v{BT+2}', sS1, tmo, 64 if cfg.get('huall') else 16)
        else:
            w.wait_all_lg()
            A('s_barrier')
            A(f's_cmp_eq_u32 {sSTEP}, {NSEG-1}\ns_cbranch_scc1 {lf}_done')
            for m in (8, 9): wx(m, 0); wx(m, 1)
            w.stamp()
            if cfg.get('b0poll'):
                if second: A('s_barrier')
                else: poll(w, f'{lf}_poll2', f'v{BT+2}', sS1, tmo, 16)
            else:
                A('s_barrier')
                if second: A('s_barrier')
        w.stamp()
        def ploads():
            for k, m in enumerate(order):
                w.vmem(f'buffer_load_dwordx4 {vr(PREG[k],4)}, {vL16}, {SRD}, {sPO[m>>1]} offen offset:{(m&1)*1024} sc1', f'P{k}')
        def hum_store():
            if cfg.get('hum') and not second:
                A('s_mov_b64 exec, 1'); w.vmem(f'buffer_store_dword v{BT+3}, off, {SRD}, s54 {st}'); A('s_mov_b64 exec, -1')
        if cfg.get('hu1k') == -2: hum_store()
        ploads()
        if cfg.get('hu1k') == -1: hum_store()
        if not second:
            if cfg.get('bquick'): w.wait_all_lg()
            A('s_barrier')
        if fast and second: A('s_cmp_eq_u32 0, 1')
        A(f'{lf}_pchain:')
        for _ in range(cfg.get('bpad', 0)): A('s_nop 15')
        for k, m in enumerate(order):
            w.wait(vm=f'P{k}', lg=f'W{m}')
            if k == 0: w.stamp()
            w(smf(FACC, vr(PREG[k], 4), vr(WREG[m], 8), vIDX))
            if k < 3: wx((7 if one else 5) + k, 0); wx((7 if one else 5) + k, 1)
            if k == cfg.get('hu1k', 7): hum_store()
            if fast and second and k == cfg.get('kb', 4 if fast == 1 else 99):
                w.wait_all_lg(); A(f's_cbranch_scc1 {lf}_nob\ns_barrier\n{lf}_nob:')
        w(f'v_add_f32 v{BT}, v{FACC}, v{FACC+2}\nv_add_f32 v{BT+1}, v{FACC+1}, v{FACC+3}')
        if cfg.get('bcmp', 1):
            w(f'v_cvt_pk_bf16_f32 v{FACC}, v{BT}, v{BT+1}')
            w(f'v_cmp_u_f32 vcc, v{BT}, v{BT+1}')
            w(f'v_mov_b32_dpp v{BT+1}, v{FACC} quad_perm:[1,0,3,2] row_mask:0xf bank_mask:0xf')
            w(f'v_perm_b32 v{BT}, v{BT+1}, v{FACC}, {bSEL}')
        else:
            w(f'v_cmp_u_f32 vcc, v{BT}, v{BT+1}')
            w(f'v_cvt_pk_bf16_f32 v{BT}, v{BT}, v{BT+1}')
            w(f'v_mov_b32_dpp v{BT+1}, v{BT} quad_perm:[1,0,3,2] row_mask:0xf bank_mask:0xf')
            w(f'v_perm_b32 v{BT}, v{BT+1}, v{BT}, {bSEL}')
        w(f'v_min_u32 v{BT}, -2, v{BT}')
        w(f's_cbranch_vccnz {lf}_pretry\n{lf}_pok:')
        w.vmem(f'buffer_store_dword v{BT}, {bMS}, {SRD}, {sMW} offen {st}')
        if fast:
            if not second or cfg.get('kb', 4 if fast == 1 else 99) == 99: A('s_barrier')
            mfirst()
        if cfg.get('lastmx', 1):
            A(f's_cmp_eq_u32 {sSTEP}, {NSEG-2}\ns_cbranch_scc1 {lf}_last')
        w.stamp()
        if cfg.get('ack'): w.wait_all_vm(); w.stamp()
        w(f'v_mov_b32 v{BT+1}, -1')
        w.vmem(f'buffer_store_dword v{BT+1}, {bMS}, {SRD}, {sMR} offen {st}')
        if not cfg.get('bpoll'): w.vmem(f'buffer_store_dword v{BT+3}, {vHUs}, {SRD}, 0 offen {st}')
        zero(w, 28, 28)
        w(f's_add_u32 s47, s47, 0x8000\ns_cmp_eq_u32 s47, 0x18000\ns_cselect_b32 s47, 0, s47\nv_add_u32 {bWR}, s47, {bWB}')
        w.dump_stamps(lf)
        A(f's_mov_b32 {sSPIN}, {SPIN_MAX}\ns_mov_b32 {sSTEP}, {sS1}\ns_branch {lf}_loop')
        if cfg.get('lastmx', 1):
            A(f'{lf}_last:\ns_mov_b32 s11, {MX + (NSEG-1)*7168}\nbuffer_store_dword v{BT}, {bMS}, {SRD}, s11 offen sc1')
        A(f'{lf}_done:')
        cfg['finish'](w, lf)
        A('s_endpgm')
        m_retry(w, lf, tmo)
        A(f'{lf}_pretry:\ns_waitcnt vmcnt(0) lgkmcnt(0)')
        sentinel_check(w, list(range(0, 40)), f'v{BT+2}')
        A(f's_cbranch_vccz {lf}_pok')
        A(f's_add_u32 {sRETRY}, {sRETRY}, 0x10000\ns_sub_u32 {sSPIN}, {sSPIN}, 8\ns_cbranch_scc1 {tmo}')
        for m in range(3): wx(m, 0); wx(m, 1)
        A(f'v_mov_b64 {vr(FACC,2)}, 0\nv_mov_b64 {vr(FACC+2,2)}, 0\ns_waitcnt lgkmcnt(0)')
        ploads()
        A(f's_cmp_eq_u32 0, 0\ns_branch {lf}_pchain')
    A(f's_cmp_eq_u32 {sW}, 1\ns_cbranch_scc1 {lab}_second')
    emit_modes(A, cfg, lab + 'f', lambda lf, st: loopf(lf, st, False))
    A(f'{lab}_second:')
    emit_modes(A, cfg, lab + 'g', lambda lf, st: loopf(lf, st, True))
    ll = lab + 'l'
    A(f'{lab}_loader:')
    w = Wv(A, cfg)
    lin = cfg.get('vxlin')
    for r in range(7):
        if lin:
            em.emit(j * 28672 + l * 16 + (4096 + (r & 4) * 1024), bDM[r]); continue
        f = l + 64 * r; hg = f.div(28)
        em.emit(hg * 7168 + bcol(j, f - hg * 28) * 16 + (4096 - (r & 3) * 1024), bDM[r])
    em.emit(sel_lt(ww, 3, HU1 + 128 + (l & 31) * 4, HU2 + (l & 15) * 4), vHUp)
    em.emit(sel_lt(l + (3 - ww) * 64, 1, HU1 + j * 4, OOB), vHUs)
    em.emit(sel_lt(j + (3 - ww) * 16, 7, j * 1024 + l * 16, OOB), bMX)
    em.emit(L_K + (j & 7) * 1024 + l * 16, 'v88')
    xl = (j * 2 + ww - 2) * 7 + l
    em.emit(sel_lt(l, 7, XF + 2 * 28672 + xl * 128, sel_lt(l, 63, OOB, FVX + 2 * 128)), bTO)
    em.emit(sel_lt(l, 63, 28672, 128), bINC)
    A(f'v_mov_b32 {bFLAG}, 16')
    A(f's_sub_u32 s11, {sW}, 2\ns_mul_i32 s23, s11, 14336\ns_cmp_eq_u32 s11, 0\ns_cselect_b32 s24, s48, s50\ns_cselect_b32 s45, s49, s51')
    if lin: A(f's_mul_i32 s24, s24, 7\ns_lshr_b32 s24, s24, 1\ns_add_u32 s24, s24, {VXF - 4096}\ns_mul_i32 s45, s45, 7\ns_lshr_b32 s45, s45, 1\ns_add_u32 s45, s45, {VXF - 4096}')
    else: A(f's_mul_i32 s24, s24, 56\ns_add_u32 s24, s24, {VXF - 4096}\ns_mul_i32 s45, s45, 56\ns_add_u32 s45, s45, {VXF - 4096}')
    def vx_m0(k):
        if k % 7 in (0, 4): w(f's_add_u32 m0, {sVL}, {k*1024}')
    def vx_dma(k):
        w.vmem(f'buffer_load_dwordx4 {bDM[k%7]}, {SRD}, {sVS if k < 7 else "s44"} offen offset:{((k%7)&3)*1024} {cfg.get("vxfl", "")} lds', 'D')
    load_weights(w, addr, between=(lambda k: cfg['mid_b'](ll, k)) if cfg.get('mid_b') else None)
    zero(w, 28, 28)
    A(f's_mov_b32 {sSTEP}, 0\ns_mov_b32 {sSPIN}, {SPIN_MAX}\ns_mov_b32 {sRETRY}, 0')
    cfg['start_sync'](w, ll)
    A(f's_mov_b32 {sVS}, s24\ns_mov_b32 s44, s45\ns_mov_b32 {sVL}, s23\ns_mov_b32 s47, 0')
    for k in range(14): vx_m0(k); vx_dma(k)
    nl = cfg.get('nlate', 0)
    def late_part():
        k0 = 14 - nl
        for k in range(k0, 14):
            if k == k0 and k % 7 not in (0, 4): w(f's_add_u32 m0, {sVL}, {(k - (k % 7) % 4)*1024}')
            vx_m0(k); vx_dma(k)
    if nl:
        A(f's_add_u32 {sVS}, s24, {VX_SEG}\ns_add_u32 s44, s45, {VX_SEG}\ns_add_u32 {sVL}, s23, 0x8000')
        late_part()
    def loopl(ll, st):
        nonlocal w
        w = Wv(A, cfg)
        A(f'{ll}_loop:')
        step_consts(A)
        A(f's_min_u32 s11, {sS1}, {0 if cfg.get("vxsame") else NSEG-1}\ns_mul_i32 s11, s11, {VX_SEG}\ns_add_u32 {sVS}, s11, s24\ns_add_u32 s44, s11, s45')
        A(f's_add_u32 s47, s47, 0x8000\ns_cmp_eq_u32 s47, 0x18000\ns_cselect_b32 s47, 0, s47\ns_add_u32 {sVL}, s47, s23')
        A(f's_mul_i32 {sMXO}, {sSTEP}, 7168\ns_add_u32 {sMXO}, {sMXO}, {MX}')
        if cfg.get('bpoll'):
            for r in range(MREG[0], MREG[0] + 8, 2): A(f'v_mov_b64 {vr(r,2)}, -1')
        if nl: A(f's_waitcnt vmcnt({nl})')
        else:
            A('s_waitcnt vmcnt(0)')
            A(f's_cmp_ge_u32 {sSTEP}, {NSEG-1}\ns_cbranch_scc1 {ll}_fok')
            A(f'{ll}_fchk:\nv_readlane_b32 s11, {bFLAG}, 63\ns_nop 0\ns_cmp_ge_u32 s11, 16\ns_cbranch_scc1 {ll}_fok')
            A(f's_lshl_b32 s11, {sS1}, 7\ns_add_u32 s11, s11, {FVX}')
            A(f'buffer_load_dword {bFLAG}, off, {SRD}, s11 sc1')
            A(f's_sub_u32 {sSPIN}, {sSPIN}, 1\ns_cbranch_scc1 {tmo}\ns_waitcnt vmcnt(0)\ns_branch {ll}_fchk\n{ll}_fok:')
        w.stamp()
        if not cfg.get('bpoll'):
            A(f's_cmp_lg_u32 {sW}, 2\ns_cbranch_scc1 {ll}_nopoll')
            poll(w, f'{ll}_poll1', bPOLL, sSTEP, tmo, 32)
            A(f'{ll}_nopoll:')
        A('s_barrier')
        w.stamp()
        d0 = cfg.get('dslot', 2); dstep = cfg.get('dstep', 2); ne = cfg.get('dearly', 0)
        def early():
            if cfg.get('mxfirst'): mx_first()
            if cfg.get('tfirst'): w.vmem(f'buffer_load_dword {bFLAG}, {bTO}, {SRD}, 0 offen sc1', 'D')
            for k in range(ne): vx_m0(k); vx_dma(k)
        def filll(f0):
            d = {}
            add = lambda n, f: d.setdefault(n, []).append(f)
            for k in range(ne, 14 - nl):
                add(d0 + dstep * (k - ne) - 1, lambda k=k: vx_m0(k))
                add(d0 + dstep * (k - ne), lambda k=k: vx_dma(k))
            if not cfg.get('tfirst'): add(d0 + dstep * (14 - nl - ne), lambda: w.vmem(f'buffer_load_dword {bFLAG}, {bTO}, {SRD}, 0 offen sc1', 'D'))
            if cfg.get('mxfirst'): pass
            elif fast and not cfg.get('nomx'):
                add(f0, lambda: w.ds('ds_read_b128 v[56:59], v88', 'MX'))
                add(f0 + 5, lambda: (w.wait(lg='MX'), w.vmem(f'buffer_store_dwordx4 v[56:59], {bMX}, {SRD}, {sMXO} offen sc1')))
            elif not cfg.get('nomx'):
                add(max(f0 - 4, cfg.get('vslot', 0)), lambda: w.vmem(f'buffer_store_dwordx4 {vr(MREG[0],4)}, {bMX}, {SRD}, {sMXO} offen {cfg.get("mxfl", "sc1")}'))
            return d, {}
        tail6(weight_stream(w, filll, vw, ll, BT, tmo, cfg.get('bpoll'), early))
        w.stamp()
        w.wait_all_lg()
        if not cfg.get('onebar', 1):
            A('s_barrier')
            A(f's_cmp_eq_u32 {sSTEP}, {NSEG-1}\ns_cbranch_scc1 {ll}_done')
        zero(w, 28, 28)
        A(f'v_mov_b32 v{BT+3}, {sS1}')
        if not cfg.get('xsame'): A(f'v_add_u32 {bTO}, {bTO}, {bINC}')
        w.stamp()
        if cfg.get('drain'):
            w.wait(vm='D'); w.stamp(); w.wait_all_vm(); w.stamp()
        hu1 = f'buffer_store_dword v{BT+3}, {vHUs}, {SRD}, 0 offen {st}'
        if cfg.get('b0poll') or cfg.get('onebar', 1):
            A('s_barrier')
            if cfg.get('gate', 'w0') != 'none' and not cfg.get('hum'): A(hu1)
        else:
            A(f's_cmp_lg_u32 {sW}, 3\ns_cbranch_scc1 {ll}_nopoll2')
            poll(w, f'{ll}_poll2', bPOLL, sS1, tmo, 16)
            A(f'{ll}_nopoll2:\ns_barrier')
            if cfg.get('hu1pos', 0) == 0: A(hu1)
            A('s_barrier')
            if cfg.get('hu1pos', 0) == 1: A(hu1)
        if cfg.get('lastmx', 1): A(f's_cmp_eq_u32 {sSTEP}, {NSEG-2}\ns_cbranch_scc1 {ll}_done')
        if nl:
            A('s_waitcnt vmcnt(0)')
            A(f'{ll}_fchk:\nv_readlane_b32 s11, {bFLAG}, 63\ns_nop 0\ns_cmp_ge_u32 s11, 16\ns_cbranch_scc1 {ll}_fok')
            A(f's_lshl_b32 s11, {sSTEP}, 7\ns_add_u32 s11, s11, {FVX + 256}')
            A(f'buffer_load_dword {bFLAG}, off, {SRD}, s11 sc1')
            A(f's_sub_u32 {sSPIN}, {sSPIN}, 1\ns_cbranch_scc1 {tmo}\ns_waitcnt vmcnt(0)\ns_branch {ll}_fchk\n{ll}_fok:')
            for _ in range(cfg.get('ldelay', 0)): A('s_nop 15')
            A(f's_add_u32 s11, {sSTEP}, 2\ns_mul_i32 s11, s11, {0 if cfg.get("vxsame") else VX_SEG}\ns_add_u32 {sVS}, s11, s24\ns_add_u32 s44, s11, s45')
            A(f's_add_u32 s11, s47, 0x8000\ns_cmp_eq_u32 s11, 0x18000\ns_cselect_b32 s11, 0, s11\ns_add_u32 {sVL}, s11, s23')
            late_part()
        w.dump_stamps(ll)
        A(f's_mov_b32 {sSPIN}, {SPIN_MAX}\ns_mov_b32 {sSTEP}, {sS1}\ns_branch {ll}_loop\n{ll}_done:')
        cfg['finish'](w, ll)
        A('s_endpgm')
        m_retry(w, ll, tmo)
    emit_modes(A, cfg, ll, loopl)
```

```python
from asmdsl import Asm
from expr import X, V, Sg, Emitter, ev, sel_lt
from layout import *
from rec import code_touch, dstamp, tline, wait_lanes, Wv, vr, wquad, wreg, smf, zero, sentinel_check, SRD
from prep import f32, mfma, srd
import math

sW, sR = 's9', 's10'
sSPIN = 's19'
WSPIN = 0x40000
BACK = ['']
PREV = [1]
ONE = [0]
LASTD = [1]
NV = 4
NQ = 4

def vx_pos(col):
    lc = col - 256; jj = lc.max(0).div(12)
    return sel_lt(col, 256, (col >> 4) * 28672 + (col & 15) * 16, jj * 28672 + (lc - jj * 12 + 16) * 16)

def nfx(cfg): return 16 if (cfg.get('locala') and not cfg.get('fakeloc')) or cfg.get('amisc') else 32

def wait_flag(w, lab, soff, target, tmo, vt='v2'):
    w(f's_cmp_lg_u32 {sW}, 0\ns_cbranch_scc1 {lab}_go\ns_mov_b32 {sSPIN}, {WSPIN}')
    w(f'{lab}:\nbuffer_load_dword {vt}, off, {SRD}, {soff} sc1')
    w(f's_sub_u32 {sSPIN}, {sSPIN}, 1\ns_cbranch_scc1 {tmo}\n{BACK[0]}s_waitcnt vmcnt(0)')
    w(f'v_cmp_gt_u32 vcc, {target}, {vt}\ns_cbranch_vccnz {lab}')
    w(f'{lab}_go:\ns_barrier')

def signal(w, lab, soff, vt='v2'):
    w('s_waitcnt vmcnt(0)\ns_barrier'); w.vm = []
    w(f's_cmp_lg_u32 {sW}, 0\ns_cbranch_scc1 {lab}\nv_mov_b32 {vt}, 1\ns_mov_b64 exec, 1')
    w(f'buffer_atomic_add {vt}, off, {SRD}, {soff} sc1\ns_mov_b64 exec, -1\n{lab}:')

def defer(A, lab, tmo):
    A(f's_cmp_lg_u32 {sW}, 0\ns_cbranch_scc1 {lab}_go\ns_mov_b32 {sSPIN}, {WSPIN}\ns_mov_b32 s11, {MX + 1024}')
    A(f'{lab}:\nbuffer_load_dword v1, off, {SRD}, s11 sc1')
    A(f's_sub_u32 {sSPIN}, {sSPIN}, 1\ns_cbranch_scc1 {tmo}\ns_waitcnt vmcnt(0)\nv_cmp_eq_u32 vcc, -1, v1\ns_cbranch_vccnz {lab}')
    A(f'{lab}_go:\ns_barrier')

def load_w(w, addr_of, ps=range(14)):
    n = 0
    for p in ps:
        for tl in range(7):
            va, pre = addr_of(tl, p)
            w(pre)
            w.vmem(f'buffer_load_dwordx4 {wquad(tl*7 + (p>>1), p&1)}, {va}, {SRD}, s11 offen', f'W{p}')
            n += 1
            if n % 14 == 0 and len(w.vm) > 44: w('s_waitcnt vmcnt(32)'); w.vm = w.vm[-32:]

XB = 56
def xq(p, tt): return XB + ((p & 3) * 2 + tt) * 4
def acc2(tl, tt): return (tl * 2 + tt) * 4
sXB, sXN = 's20', 's21'
vL16 = 'v119'

def x_load(w, p, base):
    for tt in range(2):
        off = p * 1024 + tt * 14336
        w(f's_add_u32 s11, {base}, {off & ~4095}')
        w.vmem(f'buffer_load_dwordx4 {vr(xq(p,tt),4)}, {vL16}, {SRD}, s11 offen offset:{off & 4095}', f'X{p}')

def seg_gemm(w, w_is_a, wload=None):
    for p in range(14):
        w.wait(vm=f'X{p}'); w.wait(vm=f'W{p}')
        for tl in range(7):
            for tt in range(2):
                wq = wquad(tl * 7 + (p >> 1), p & 1); xx = vr(xq(p, tt), 4)
                a, b = (wq, xx) if w_is_a else (xx, wq)
                w(mfma(vr(acc2(tl, tt), 4), a, b, 0 if p == 0 else None))
        if p + 4 < 14: x_load(w, p + 4, sXB)
        if wload and p + 6 < 14: wload(p + 6)
    for p in range(4): x_load(w, p, sXN)

def mx_wait(w, lab, regs, loads, tmo, tmp, light_always=False):
    sl = 's15' if light_always else 's26'
    if light_always: pass
    elif PREV[0]: w(f's_sub_u32 s26, s15, 7168\ns_max_u32 s26, s26, {MX}')
    else: w('s_mov_b32 s26, s15')
    w(f's_mov_b32 {sSPIN}, {WSPIN}')
    if LASTD[0] and not light_always:
        w(f's_cmp_eq_u32 s8, {NSEG-1}\ns_cselect_b32 s11, 7168, 0\ns_sub_u32 s26, s26, s11')
    if ONE[0]: w(f's_cmp_lg_u32 {sW}, 3\ns_cbranch_scc1 {lab}_2')
    w(f'{lab}_1:\nbuffer_load_dword {tmp}, off, {SRD}, {sl} sc1')
    w(f's_sub_u32 {sSPIN}, {sSPIN}, 1\ns_cbranch_scc1 {tmo}\n{BACK[0]}s_waitcnt vmcnt(0)\nv_cmp_eq_u32 vcc, -1, {tmp}\ns_cbranch_vccnz {lab}_1')
    if ONE[0]: w(f'{lab}_2:\ns_barrier')
    w(f'{lab}:')
    loads()
    w(f's_sub_u32 {sSPIN}, {sSPIN}, 1\ns_cbranch_scc1 {tmo}\n{BACK[0]}s_waitcnt vmcnt(0)'); w.vm = []
    sentinel_check(w, regs, tmp)
    w(f's_cbranch_vccnz {lab}')

def gen_V(A, cfg, lab, tmo):
    w = Wv(A, {})
    em = Emitter(A, [f'v{i}' for i in range(2, 30)])
    l = V('v0'); g = l >> 4; n = l & 15; ww = Sg(sW); h = Sg(sR)
    em.emit(l & 63, 'v0')
    em.emit(l * 16, vL16)
    em.emit(sel_lt(l & 2, 1, 0x44444444, 0xEEEEEEEE), 'v118')
    em.emit(g * 7168 + (ww * 112 + n) * 16, 'v117')
    em.emit((ww * 112 + n) * 16 + g * 4, 'v116')
    lin = cfg.get('vxlin')
    if lin:
        for tl in range(7):
            em.emit(ww * 112 + tl * 16 + n, 'v1')
            col = V('v1'); lc = col.max(256) - 256; jj = lc.div(12)
            em.emit(sel_lt(col, 256, (col >> 4) * 28672 + (col & 15) * 16, jj * 28672 + (lc - jj * 12 + 16) * 16) + g * 448, f'v{100+tl}')
    A(f's_mul_i32 s13, {sR}, {14*28672}\ns_add_u32 s13, s13, {BF}')
    A(f's_mul_i32 {sXB}, s12, 28672' + (f'\ns_add_u32 {sXB}, {sXB}, {XF}' if XF else ''))
    wait_lanes(A, f'{lab}_wb', sel_lt(l, 1, FB + h * 128, FX), sel_lt(l, 1, 14, nfx(cfg)), tmo)
    waddr = lambda tl, p: ('v117', f's_add_u32 s11, s13, {p*28672 + tl*256}')
    c2 = dict(cfg, tlreg=97)
    A(f's_mov_b32 s8, s12\ns_mul_i32 s14, {sR}, {1792 if lin else 28672}')
    if cfg.get('vfirst', 1):
        for p in range(4): x_load(w, p, sXB)
        load_w(w, waddr, range(6))
        A(f's_add_u32 {sXN}, {sXB}, {NV*28672}')
        seg_gemm(w, False, lambda p: load_w(w, waddr, [p]))
        tline(A, c2, 1)
        A(f's_branch {lab}_epi')
    else:
        load_w(w, waddr)
        if cfg.get('tl'): A('s_waitcnt vmcnt(0)')
        tline(A, c2, 1)
        for p in range(4): x_load(w, p, sXB)
    A(f'{lab}_loop:')
    A(f's_add_u32 {sXN}, {sXB}, {NV*28672}')
    w.vm = [f'X{p}' for p in range(4) for _ in range(2)]
    seg_gemm(w, False)
    A(f'{lab}_epi:')
    A(f's_mul_i32 s15, s8, {VX_SEG}\ns_add_u32 s15, s15, s14\ns_add_u32 s15, s15, {VXF}')
    for tl in range(7):
        o = 88 + 4 * (tl & 1)
        for tt in range(2):
            a = acc2(tl, tt)
            A(f'v_cvt_pk_bf16_f32 v{o+2*tt}, v{a}, v{a+1}\nv_cvt_pk_bf16_f32 v{o+2*tt+1}, v{a+2}, v{a+3}')
        if lin: A(f'buffer_store_dwordx4 {vr(o,4)}, v{100+tl}, {SRD}, s15 offen sc1')
        else: A(f'buffer_store_dwordx4 {vr(o,4)}, v117, {SRD}, s15 offen offset:{tl*256} sc1')
    A(f's_lshl_b32 s15, s8, 7\ns_add_u32 s15, s15, {FVX}')
    signal(w, f'{lab}_sig', 's15', 'v96')
    if cfg.get('tl'):
        A(f's_cmp_ge_u32 s8, {NV}\ns_cbranch_scc1 {lab}_tl1'); tline(A, c2, 2); A(f'{lab}_tl1:')
    A(f's_mov_b32 {sXB}, {sXN}\ns_add_u32 s8, s8, {NV}\ns_cmp_lt_u32 s8, {NSEG}\ns_cbranch_scc1 {lab}_loop')
    tline(A, c2, 3)
    if cfg.get('nopost'): A('s_endpgm')
    A(f's_mov_b32 s8, s12\ns_mul_i32 s14, {sR}, 7168')
    A(f'{lab}_mloop:')
    zero(w, 28, 28)
    A(f's_mul_i32 s15, s8, 7168\ns_add_u32 s15, s15, {MX}\ns_add_u32 s16, s15, 4096')
    def loads():
        for kk in range(7):
            A(f'buffer_load_dwordx4 {vr(4*kk,4)}, {vL16}, {SRD}, {"s15" if kk < 4 else "s16"} offen offset:{(kk&3)*1024} sc1')
    mx_wait(w, f'{lab}_mx', list(range(28)), loads, tmo, 'v96')
    for tl in range(7):
        for kk in range(7): A(smf(28 + 4 * tl, vr(4 * kk, 4), wreg(tl * 7 + kk), 'v118'))
    A(f's_mul_i32 s15, s8, {VM_SEG}\ns_add_u32 s15, s15, s14\ns_add_u32 s15, s15, {VM}')
    for tl in range(7):
        a = 28 + 4 * tl
        A(f'v_add_f32 v{a}, v{a}, v{a+2}\nv_add_f32 v{a+1}, v{a+1}, v{a+3}\nv_cvt_pk_bf16_f32 v{a}, v{a}, v{a+1}\nv_min_u32 v{a}, -2, v{a}')
        A(f'buffer_store_dword v{a}, v116, {SRD}, s15 offen offset:{tl*256} sc1')
    A(f's_lshl_b32 s15, s8, 7\ns_add_u32 s15, s15, {FVM}')
    signal(w, f'{lab}_sig2', 's15', 'v96')
    A(f's_add_u32 s8, s8, {NV}\ns_cmp_lt_u32 s8, {NSEG}\ns_cbranch_scc1 {lab}_mloop')
    tline(A, c2, 4)
    A('s_endpgm')

def gen_Q(A, cfg, lab, tmo):
    w = Wv(A, {})
    em = Emitter(A, [f'v{i}' for i in range(2, 30)])
    l = V('v0'); g = l >> 4; n = l & 15; ww = Sg(sW); h = Sg(sR)
    sQ = ['s22', 's23', 's24', 's25']
    em.emit(l & 63, 'v0')
    em.emit(l * 16, vL16)
    em.emit(l * 16 + (ww & 1) * 8, 'v118')
    i = n & 7
    em.emit(((g >> 1) * 16 + (i >> 1) * 4 + (i & 1)) * 16 + (g & 1) * 8, 'v117')
    em.emit(((g >> 1) * 16 + (i >> 1) * 4 + (i & 1)) * 16 + (g & 1) * 8 + (ww & 1) * 4, 'v116')
    em.emit(ww * 5120 + l * 16, 'v115')
    em.emit(ww * 1024 + l * 16, 'v114')
    em.emit(ww * 20480 + h * 1024 + l * 16, 'v113')
    em.emit(sel_lt(g, 2, ww * 20480 + ((h >> 2) + 16) * 1024 + ((h & 3) * 16 + n) * 16 + g * 8, OOB), 'v112')
    em.emit(n - g * 4, 'v111')
    A(f's_lshr_b32 s11, {sW}, 1\ns_mul_i32 s14, s11, 7\ns_and_b32 s15, {sW}, 1\ns_lshl_b32 s16, s15, 2\ns_add_u32 s16, s16, s14')
    for u in range(3): A(f's_add_u32 s17, s16, {u}\ns_lshl_b32 {sQ[u]}, s17, 10')
    A(f's_add_u32 s17, s14, 3\ns_lshl_b32 {sQ[3]}, s17, 10')
    A(f's_mul_i32 s13, {sR}, {28*14336}\ns_add_u32 s13, s13, {AF}\ns_mul_i32 s15, s15, 14336')
    def addr(tl, p):
        pre = f's_mul_i32 s11, {sQ[tl>>1]}, 28\ns_add_u32 s11, s11, s13\n'
        pre += f's_add_u32 s11, s11, {14336*(tl&1) + 1024*p}' if tl < 6 else f's_add_u32 s11, s11, s15\ns_add_u32 s11, s11, {1024*p}'
        return vL16, pre
    A(f's_mul_i32 {sXB}, s12, 28672' + (f'\ns_add_u32 {sXB}, {sXB}, {XF}' if XF else ''))
    if cfg.get('nopost'): A('s_endpgm')
    if cfg.get('locala'): wait_lanes(A, f'{lab}_wa', sel_lt(l, 2, FA + h * 128 + l * 2048, FX), sel_lt(l, 2, 7, nfx(cfg)), tmo)
    else: wait_lanes(A, f'{lab}_wa', sel_lt(l, 1, FA + h * 128, FX), sel_lt(l, 1, 14, nfx(cfg)), tmo)
    if cfg.get('deferq'): defer(A, f'{lab}_df', tmo)
    load_w(w, addr)
    w.vm = []
    for p in range(4): x_load(w, p, sXB)
    A('s_mov_b32 s8, s12')
    A(f'{lab}_loop:')
    A(f's_add_u32 {sXN}, {sXB}, {NQ*28672}')
    w.vm = [f'X{p}' for p in range(4) for _ in range(2)]
    seg_gemm(w, True)
    QQ = lambda u, tt: 16 * u + 4 * tt
    for u in range(4):
        for tt in range(2):
            for b in range(2 if u < 3 else 1):
                a = acc2(2 * u + b, tt)
                A(f'v_cvt_pk_bf16_f32 v{88+4*tt+2*b}, v{a}, v{a+1}\nv_cvt_pk_bf16_f32 v{89+4*tt+2*b}, v{a+2}, v{a+3}')
        for tt in range(2):
            for k in range(0, 4 if u < 3 else 2, 2): A(f'v_mov_b64 {vr(QQ(u,tt)+k,2)}, {vr(88+4*tt+k,2)}')
    for u in range(4):
        for kt in range(2):
            A(f's_add_u32 s11, {sXB}, {sQ[u]}' + ('\ns_add_u32 s11, s11, 14336' if kt else ''))
            if u < 3: w.vmem(f'buffer_load_dwordx4 {vr(16*u+8+4*kt,4)}, {vL16}, {SRD}, s11 offen', 'Z')
            else: w.vmem(f'buffer_load_dwordx2 {vr(88+2*kt,2)}, v118, {SRD}, s11 offen', 'Z')
    w.wait(vm='Z')
    SX = {(1, 0): 92, (1, 1): 96, (2, 1): 100}
    for (kt, tt), a in SX.items():
        for u in range(3): A(mfma(vr(a, 4), vr(16 * u + 8 + 4 * (kt - 1), 4), vr(QQ(u, tt), 4), 0 if u == 0 else None))
        A(f'v_mfma_f32_16x16x16_bf16 {vr(a,4)}, {vr(88+2*(kt-1),2)}, {vr(QQ(3,tt),2)}, {vr(a,4)}')
    for (kt, tt), a in SX.items():
        A(f'ds_write_b128 v115, {vr(a,4)} offset:{(2*kt + tt - (1 if kt == 2 else 0))*1024}')
    A('s_waitcnt lgkmcnt(0)\ns_barrier')
    E1, E2, E0 = 92, 96, 100
    A(f's_cmp_ge_u32 {sW}, 2\ns_cbranch_scc1 {lab}_nored')
    def red(dst, off, t0):
        for k in range(4): A(f'ds_read_b128 {vr(dst if k == 0 else t0+16*(k-1),4)}, v114 offset:{k*5120 + off}')
        A('s_waitcnt lgkmcnt(0)')
        for k in range(3):
            for r in (0, 2): A(f'v_pk_add_f32 {vr(dst+r,2)}, {vr(dst+r,2)}, {vr(t0+16*k+r,2)}')
    red(E1, 2048, 8)
    red(E2, 3072, 8)
    A(f'v_mov_b32 v104, 0xff800000\ns_cmp_eq_u32 {sW}, 0\ns_cbranch_scc0 {lab}_t1')
    for r in range(4):
        A(f'v_cmp_le_i32 vcc, {r}, v111\nv_cndmask_b32 v{E1+r}, v104, v{E1+r}, vcc\nv_mov_b32 v{E2+r}, v104')
    A(f's_branch {lab}_nored\n{lab}_t1:')
    for r in range(4): A(f'v_cmp_le_i32 vcc, {r}, v111\nv_cndmask_b32 v{E2+r}, v104, v{E2+r}, vcc')
    A(f'{lab}_nored:')
    A(f's_mul_i32 s15, s8, 7168\ns_add_u32 s15, s15, {MX}')
    KQ = lambda u: 16 * u + 8
    def loads():
        for u in range(4):
            A(f's_lshr_b32 s11, {sQ[u]}, 1\ns_add_u32 s11, s11, s15')
            if u < 3:
                A(f'buffer_load_dwordx2 {vr(KQ(u),2)}, v117, {SRD}, s11 offen sc1\nbuffer_load_dwordx2 {vr(KQ(u)+2,2)}, v117, {SRD}, s11 offen offset:32 sc1')
            else:
                A(f'buffer_load_dword v88, v116, {SRD}, s11 offen sc1\nbuffer_load_dword v89, v116, {SRD}, s11 offen offset:32 sc1')
    mx_wait(w, f'{lab}_mx', [KQ(u) + k for u in range(3) for k in range(4)] + [88, 89], loads, tmo, 'v105')
    for u in range(3): A(f'v_swap_b32 v{KQ(u)+1}, v{KQ(u)+2}')
    for tt in range(2):
        a = 12 + 16 * tt
        for u in range(3): A(mfma(vr(a, 4), vr(KQ(u), 4), vr(QQ(u, tt), 4), 0 if u == 0 else None))
        A(f'v_mfma_f32_16x16x16_bf16 {vr(a,4)}, v[88:89], {vr(QQ(3,tt),2)}, {vr(a,4)}')
    for tt in range(2): A(f'ds_write_b128 v115, {vr(12+16*tt,4)} offset:{tt*1024}')
    A('s_waitcnt lgkmcnt(0)\ns_barrier')
    A(f's_cmp_ge_u32 {sW}, 2\ns_cbranch_scc1 {lab}_nosm')
    red(E0, 0, 8)
    A('s_mov_b32 vcc_lo, -1\ns_mov_b32 vcc_hi, 0')
    for r in range(4): A(f'v_cndmask_b32 v{E0+r}, v104, v{E0+r}, vcc')
    A(f'v_max3_f32 v8, v{E1}, v{E1+1}, v{E1+2}')
    for r in range(E1 + 3, E1 + 11, 2): A(f'v_max3_f32 v8, v8, v{r}, v{r+1}')
    A(f'v_max_f32 v8, v8, v{E1+11}')
    def allred(op):
        A(f'v_mov_b32 v9, v8\nv_permlane16_swap_b32 v8, v9\n{op} v8, v8, v9')
        A(f'v_mov_b32 v9, v8\nv_permlane32_swap_b32 v8, v9\n{op} v8, v8, v9')
    allred('v_max_f32')
    for r in range(E1, E1 + 12, 2): A(f'v_pk_add_f32 {vr(r,2)}, {vr(r,2)}, v[8:9] op_sel_hi:[1,0] neg_lo:[0,1] neg_hi:[0,1]')
    for r in range(E1, E1 + 12): A(f'v_exp_f32 v{r}, v{r}')
    A(f'v_pk_add_f32 v[8:9], {vr(E1,2)}, {vr(E1+2,2)}')
    for r in range(E1 + 4, E1 + 12, 2): A(f'v_pk_add_f32 v[8:9], v[8:9], {vr(r,2)}')
    A('v_add_f32 v8, v8, v9')
    allred('v_add_f32')
    A('v_rcp_f32 v8, v8')
    for r in range(E1, E1 + 12, 2): A(f'v_pk_mul_f32 {vr(r,2)}, {vr(r,2)}, v[8:9] op_sel_hi:[1,0]')
    for k in range(6): A(f'v_cvt_pk_bf16_f32 v{12+k}, v{E1+2*k}, v{E1+2*k+1}\nv_min_u32 v{12+k}, -2, v{12+k}')
    A(f's_mul_i32 s15, s8, {PX_SEG}\ns_add_u32 s15, s15, {PX}')
    A(f'buffer_store_dwordx4 v[12:15], v113, {SRD}, s15 offen sc1\nbuffer_store_dwordx2 v[16:17], v112, {SRD}, s15 offen sc1')
    A(f'{lab}_nosm:')
    A(f's_lshl_b32 s15, s8, 7\ns_add_u32 s15, s15, {FPX}')
    signal(w, f'{lab}_sig', 's15', 'v105')
    A(f's_mov_b32 {sXB}, {sXN}\ns_add_u32 s8, s8, {NQ}\ns_cmp_lt_u32 s8, {NSEG}\ns_cbranch_scc1 {lab}_loop')
    tline(A, dict(cfg, tlreg=106), 4)
    A('s_endpgm')

def gen_T(A, cfg, lab, tmo, fin='s_endpgm'):
    w = Wv(A, {})
    em = Emitter(A, [f'v{i}' for i in range(8, 30)])
    l = V('v0'); g = l >> 4
    A('s_load_dwordx2 s[28:29], s[0:1], 64\ns_load_dwordx2 s[30:31], s[0:1], 80')
    em.emit(l & 63, 'v0')
    A(f"""s_and_b32 s12, {sR}, 15
    s_lshl_b32 s12, s12, 2
    s_add_u32 s12, s12, {sW}
    s_waitcnt lgkmcnt(0)
    s_cmp_lt_u32 {sR}, 16
    s_cselect_b32 s20, s28, s30
    s_cselect_b32 s21, s29, s31
    s_mov_b32 s22, {D*F*2}
    s_mov_b32 s23, 0x20000
    s_movk_i32 s13, 896
    s_cselect_b32 s13, 3584, s13
    s_cselect_b32 s14, 28, 7
    s_movk_i32 s15, 9363
    s_cselect_b32 s15, 2341, s15       ; 65536 / blocks
    s_cselect_b32 s16, 14, 56          ; k quads
    s_mov_b32 s17, {W2F}
    s_cselect_b32 s17, {W1F}, s17
    s_mul_i32 s18, {sW}, 28672""")
    if cfg.get('defert'):
        wait_lanes(A, f'{lab}_wx', l * 0 + FX, l * 0 + nfx(cfg), tmo)
        defer(A, f'{lab}_df', tmo)
    em.emit((l >> 3) * Sg('s13') + (l & 7) * 16, 'v1')
    em.emit(Sg('s18') + (g * 8 + ((l >> 2) & 3)) * 128 + (l & 3) * 16, 'v2')
    em.emit(l * 16, 'v3')
    A('s_lshl_b32 s24, s13, 3')
    for k in range(7):
        A(f's_add_u32 s25, s12, {64*k}\ns_mul_i32 s26, s25, s15\ns_lshr_b32 s26, s26, 16\ns_mul_i32 s27, s26, s14\ns_sub_u32 s27, s25, s27')
        A(f's_lshl_b32 s{40+k}, s27, 2\ns_mul_i32 s{40+k}, s{40+k}, s16\ns_add_u32 s{40+k}, s{40+k}, s26\ns_lshl_b32 s{40+k}, s{40+k}, 10\ns_add_u32 s{40+k}, s{40+k}, s17')
        A(f's_cmp_lt_u32 s25, 392\ns_cselect_b32 s{40+k}, s{40+k}, {OOB}')
        A('s_lshl_b32 s26, s26, 5\ns_mul_i32 s26, s26, s13\ns_lshl_b32 s27, s27, 7\ns_add_u32 s26, s26, s27')
        for r in range(4):
            A(f's_add_u32 m0, s18, {k*4096 + r*1024}')
            w.vmem(f'buffer_load_dwordx4 v1, s[20:23], s26 offen lds', f'U{k}')
            if r < 3: A('s_add_u32 s26, s26, s24')
    A('s_lshl_b32 s24, s16, 10')
    for k in range(7):
        w.wait(vm=f'U{k}')
        for t in range(4):
            o = 8 + 16 * (k & 1) + 4 * t; off = k * 4096 + (t >> 1) * 64 + (t & 1) * 8
            A(f'ds_read_b64_tr_b16 {vr(o,2)}, v2 offset:{off}\nds_read_b64_tr_b16 {vr(o+2,2)}, v2 offset:{off+512}')
        A('s_waitcnt lgkmcnt(0)')
        for t in range(4):
            w.vmem(f'buffer_store_dwordx4 {vr(8+16*(k&1)+4*t,4)}, v3, {SRD}, s{40+k} offen sc1')
            if t < 3: A(f's_add_u32 s{40+k}, s{40+k}, s24')
    A(f's_mov_b32 s15, {FW}')
    signal(w, f'{lab}_sig', 's15', 'v4')
    tline(A, dict(cfg, tlreg=5), 4)
    A(fin)

def gen_F(A, cfg, lab, tmo):
    w = Wv(A, {})
    em = Emitter(A, [f'v{i}' for i in range(8, 30)])
    l = V('v0'); g = l >> 4; n = l & 15; ww = Sg(sW)
    A('s_load_dwordx2 s[28:29], s[0:1], 72\ns_load_dwordx2 s[30:31], s[0:1], 88\ns_load_dwordx2 s[32:33], s[0:1], 0\ns_load_dwordx2 s[34:35], s[0:1], 96')
    wait_lanes(A, f'{lab}_wx', l * 0 + FX, l * 0 + nfx(cfg), tmo)
    em.emit(l * 16, 'v1')
    em.emit(g * 16, 'v3')
    A('s_waitcnt lgkmcnt(0)')
    srd(A, 36, 28, F * 2); srd(A, 40, 30, D * 2); srd(A, 44, 32, S * D * 2); srd(A, 48, 34, S * D * 2)
    xr = lambda tt, p: f'a[{(tt*14+p)*4}:{(tt*14+p)*4+3}]'
    A(f's_mul_i32 s12, {sR}, 28672' + (f'\ns_add_u32 s12, s12, {XF}' if XF else ''))
    for q in range(28):
        if q % 4 == 0: A(f's_add_u32 s11, s12, {q*1024}')
        A(f'buffer_load_dwordx4 {xr(q//14, q%14)}, v1, {SRD}, s11 offen offset:{(q%4)*1024}')
    A(f's_mov_b32 s15, {FW}')
    wait_flag(w, f'{lab}_fw', 's15', 32, tmo)
    c2 = dict(cfg, tlreg=2)
    tline(A, c2, 1)
    WB = lambda buf, q: 32 + buf * 112 + 4 * q
    A(f's_mul_i32 s13, {sW}, {14*28672}\ns_add_u32 s13, s13, {W1F}\ns_mul_i32 s14, {sW}, {14*64}')
    em.emit(ww * 28672 + l * 16, 'v4')
    def wl(buf, q):
        if q % 4 == 0: A(f's_add_u32 s11, s13, {q*1024}')
        w.vmem(f'buffer_load_dwordx4 {vr(WB(buf,q),4)}, v1, {SRD}, s11 offen offset:{(q%4)*1024} sc1', f'W{buf}_{q}')
    def bl(buf): w.vmem(f'buffer_load_dwordx4 {vr(24+4*buf,4)}, v3, s[36:39], s14 offen', f'B{buf}')
    w.vm = []
    bl(0)
    for q in range(28): wl(0, q)
    A('s_mov_b32 s8, 0')
    A(f'{lab}_l1:')
    def block(buf):
        A('s_add_u32 s13, s13, 28672\ns_add_u32 s14, s14, 64')
        bl(1 - buf)
        for p in range(14):
            for b in range(2):
                q = b * 14 + p
                w.wait(vm=f'W{buf}_{q}')
                for tt in range(2): A(mfma(vr(8 + (b * 2 + tt) * 4, 4), vr(WB(buf, q), 4), xr(tt, p), 0 if p == 0 else None))
            wl(1 - buf, 2 * p); wl(1 - buf, 2 * p + 1)
        bb = 24 + 4 * buf
        for tt in range(2):
            for b in range(2):
                a = 8 + (b * 2 + tt) * 4
                for k in range(2):
                    A(f'v_lshlrev_b32 v6, 16, v{bb+2*b+k}\nv_and_b32 v7, 0xffff0000, v{bb+2*b+k}')
                    A(f'v_pk_add_f32 {vr(a+2*k,2)}, {vr(a+2*k,2)}, v[6:7]')
                    A(f'v_max_f32 v{a+2*k}, 0, v{a+2*k}\nv_max_f32 v{a+2*k+1}, 0, v{a+2*k+1}')
                    A(f'v_pk_mul_f32 {vr(a+2*k,2)}, {vr(a+2*k,2)}, {vr(a+2*k,2)}')
                    A(f'v_cvt_pk_bf16_f32 v{a+k}, v{a+2*k}, v{a+2*k+1}')
            A(f'v_mov_b64 {vr(8+tt*4+2,2)}, {vr(16+tt*4,2)}')
            A(f'ds_write_b128 v4, {vr(8+tt*4,4)} offset:{buf*2048 + tt*1024}')
    w.vm = ['B0'] + [f'W0_{q}' for q in range(28)]
    block(0); block(1)
    A(f'v_add_u32 v4, 4096, v4\ns_add_u32 s8, s8, 1\ns_cmp_lt_u32 s8, {1 if cfg.get("noffn") else 7}\ns_cbranch_scc1 {lab}_l1')
    tline(A, c2, 2)
    A(f's_lshl_b32 s16, {sW}, 2\ns_cmp_eq_u32 {sW}, 3\ns_cselect_b32 s16, 11, s16')
    A(f's_mul_i32 s13, s16, {2*57344}\ns_add_u32 s13, s13, {W2F}')
    for t in range(8):
        A(f's_add_u32 s{52+t}, s13, {t*57344}')
    A(f's_cmp_ge_u32 {sW}, 2\ns_cselect_b32 s58, {OOB}, s58\ns_cselect_b32 s59, {OOB}, s59')
    A('s_waitcnt vmcnt(0) lgkmcnt(0)\ns_barrier')
    W2 = lambda buf, t: 32 + (buf * 8 + t) * 4
    HB = lambda buf, tt: 8 + (buf * 2 + tt) * 4
    G = lambda t, tt: f'a[{(t*2+tt)*4}:{(t*2+tt)*4+3}]'
    for r in range(64): A(f'v_accvgpr_write_b32 a{r}, 0')
    A('v_mov_b32 v4, v1\nv_mov_b32 v5, v1')
    def w2l(buf, off):
        for t in range(8): w.vmem(f'buffer_load_dwordx4 {vr(W2(buf,t),4)}, v5, {SRD}, s{52+t} offen offset:{off} sc1', f'V{buf}')
    def hl(buf, off):
        for tt in range(2): w.ds(f'ds_read_b128 {vr(HB(buf,tt),4)}, v4 offset:{off + tt*1024}', f'H{buf}')
    w.vm = []; w.lg = []
    for k in range(3): w2l(k, k * 1024)
    hl(0, 0)
    A('v_add_u32 v5, 3072, v5\ns_mov_b32 s8, 0')
    A(f'{lab}_l2:')
    for k in range(4):
        w2l((k + 3) & 3, k * 1024)
        hl((k + 1) & 1, (k + 1) * 2048)
        w.wait(vm=f'V{k}', lg=f'H{k&1}')
        for t in range(8):
            for tt in range(2): A(mfma(G(t, tt), vr(W2(k, t), 4), vr(HB(k & 1, tt), 4)))
    A(f'v_add_u32 v5, 4096, v5\nv_add_u32 v4, 8192, v4\ns_add_u32 s8, s8, 1\ns_cmp_lt_u32 s8, {1 if cfg.get("noffn") else 14}\ns_cbranch_scc1 {lab}_l2')
    A('s_waitcnt vmcnt(0) lgkmcnt(0)')
    A('s_lshl_b32 s14, s16, 6')
    for k in range(4): A(f'buffer_load_dwordx4 {vr(32+4*k,4)}, v3, s[40:43], s14 offen offset:{k*64}')
    A(f's_lshl_b32 s14, s16, 10\ns_add_u32 s14, s14, s12\ns_add_u32 s14, s14, {GB - XF}\ns_add_u32 s15, s14, 14336')
    A('s_waitcnt vmcnt(0)')
    for k in range(4):
        if k == 3: A(f's_cmp_ge_u32 {sW}, 2\ns_cbranch_scc1 {lab}_gdone')
        for tt in range(2):
            for b in range(2):
                for r in range(4): A(f'v_accvgpr_read_b32 v{48+4*b+r}, a{((2*k+b)*2+tt)*4+r}')
            for j in range(4):
                A(f'v_lshlrev_b32 v6, 16, v{32+4*k+j}\nv_and_b32 v7, 0xffff0000, v{32+4*k+j}')
                A(f'v_pk_add_f32 {vr(48+2*j,2)}, {vr(48+2*j,2)}, v[6:7]')
            for r in range(8): A(f'v_mul_f32 v{56+r}, {f32(-math.log2(math.e))}, v{48+r}')
            for r in range(8): A(f'v_exp_f32 v{56+r}, v{56+r}')
            for r in range(8): A(f'v_add_f32 v{56+r}, 1.0, v{56+r}')
            for r in range(8): A(f'v_rcp_f32 v{56+r}, v{56+r}')
            for j in range(4):
                A(f'v_pk_mul_f32 {vr(48+2*j,2)}, {vr(48+2*j,2)}, {vr(56+2*j,2)}')
                A(f'v_cvt_pk_bf16_f32 v{64+4*tt+j}, v{48+2*j}, v{49+2*j}')
            A(f'buffer_store_dwordx4 {vr(64+4*tt,4)}, v1, {SRD}, {"s15" if tt else "s14"} offen offset:{k*1024} sc1')
    A(f'{lab}_gdone:')
    A(f's_lshl_b32 s15, {sR}, 7\ns_add_u32 s15, s15, {FG}')
    signal(w, f'{lab}_gsig', 's15')
    tline(A, c2, 3)
    if cfg.get('nopost'): A('s_endpgm')
    if cfg.get('out2', 1):
        A(f's_cmp_ge_u32 {sR}, 56\ns_cbranch_scc1 {lab}_end')
        A(f's_mul_i32 s8, {sR}, 4682\ns_lshr_b32 s8, s8, 16\ns_mul_i32 s16, s8, 14\ns_sub_u32 s16, {sR}, s16')
        col = Sg('s16') * 32 + (n >> 2) * 8 + (n & 3)
        em.emit(g * 7168 + col * 16, 'v4')
        em.emit(n * 896 + Sg('s16') * 64 + g * 16 + (ww & 1) * 14336, 'v5')
        em.emit(Sg('s16') * 1024 + l * 16 + (ww & 1) * 14336, 'v6')
        em.emit((l & 1) * (FPX - FVM), 'v7')
        em.emit(ww * 4096 + l * 16, 'v3')
        em.emit((ww & 1) * 2048 + l * 16, 'v123')
        lin = cfg.get('vxlin')
        if lin:
            for b in range(2):
                em.emit(col + 4 * b, 'v126')
                cc = V('v126'); lc = cc.max(256) - 256; jj = lc.div(12)
                em.emit(sel_lt(cc, 256, (cc >> 4) * 28672 + (cc & 15) * 16, jj * 28672 + (lc - jj * 12 + 16) * 16) + g * 448, f'v{124+b}')
        l3 = l & 3
        em.emit(sel_lt(l3, 1, FVX, sel_lt(l3, 2, FG, sel_lt(l3, 3, FVM, FPX))), 'v121')
        em.emit(sel_lt(l3 ^ 1, 1, 1, 16), 'v122')
        A(f's_mul_i32 s17, {sW}, {4*(1792 if lin else 28672)}\ns_mul_i32 s18, {sW}, 28672\ns_lshl_b32 s23, {sW}, 12\ns_lshl_b32 s24, {sW}, 10\ns_add_u32 s24, s24, 16384')
        WX = lambda q, b: 32 + (q * 2 + b) * 4
        PB = lambda q, tt: 72 + (q * 2 + tt) * 4
        A(f'{lab}_l3:')
        if cfg.get('codetouch2', 1): code_touch(A, f'{lab}_l3', f'{lab}_end', sW, 4, 'v27', 'v120', 52)
        A(f's_lshl_b32 s13, s8, 7\ns_cmp_lg_u32 {sW}, 0\ns_cbranch_scc1 {lab}_f1go\ns_mov_b32 {sSPIN}, {WSPIN}')
        A(f'{lab}_f1:\nbuffer_load_dword v2, v121, {SRD}, s13 offen sc1')
        A(f's_sub_u32 {sSPIN}, {sSPIN}, 1\ns_cbranch_scc1 {tmo}\ns_waitcnt vmcnt(0)\nv_cmp_gt_u32 vcc, v122, v2\ns_and_b32 s11, vcc_lo, 3\ns_cbranch_scc1 {lab}_f1')
        A(f's_and_b32 s28, vcc_lo, 12\n{lab}_f1go:\ns_barrier')
        A(f's_mul_i32 s14, s8, {VX_SEG}\ns_add_u32 s14, s14, s17\ns_add_u32 s14, s14, {VXF}')
        for q in range(4):
            for b in range(2):
                if lin: A(f'buffer_load_dwordx4 {vr(WX(q,b),4)}, v{124+b}, {SRD}, s14 offen sc1')
                else: A(f'buffer_load_dwordx4 {vr(WX(q,b),4)}, v4, {SRD}, s14 offen offset:{b*64} sc1')
            if q < 3: A(f's_add_u32 s14, s14, {1792 if lin else 28672}')
        A('s_mul_i32 s14, s8, 28672')
        A('buffer_load_dwordx4 v[112:115], v5, s[44:47], s14 offen')
        A(f's_add_u32 s21, s14, {GB}\nbuffer_load_dwordx4 v[116:119], v6, {SRD}, s21 offen sc1')
        A(f's_mul_i32 s21, s8, {PX_SEG}\ns_add_u32 s21, s21, {PX}\ns_add_u32 s22, s21, s24\ns_add_u32 s21, s21, s23\ns_add_u32 s25, s21, 20480\ns_add_u32 s26, s22, 20480')
        A(f's_mul_i32 s27, s8, {VM_SEG}\ns_add_u32 s27, s27, s18\ns_add_u32 s27, s27, {VM}')
        def late_loads():
            for q in range(4):
                for tt in range(2): A(f'buffer_load_dwordx4 {vr(PB(q,tt),4)}, v1, {SRD}, {"s25" if tt else "s21"} offen offset:{q*1024} sc1')
            for tt in range(2): A(f'buffer_load_dwordx4 {vr(PB(4,tt),4)}, v1, {SRD}, {"s26" if tt else "s22"} offen sc1')
            for b in range(2): A(f'buffer_load_dwordx4 {vr(WX(4,b),4)}, v4, {SRD}, s27 offen offset:{b*64} sc1')
        if cfg.get('lastdirect', 1):
            A(f's_cmp_eq_u32 s8, {NSEG-1}\ns_cbranch_scc0 {lab}_flags')
            A(f's_mov_b32 s15, {MX + (NSEG-1)*7168}')
            mx_wait(w, f'{lab}_dir', list(range(64, 112)), late_loads, tmo, 'v2', True)
            A(f's_branch {lab}_go')
        A(f'{lab}_flags:\ns_add_u32 s15, s13, {FVM}')
        A(f's_cmp_lg_u32 {sW}, 0\ns_cbranch_scc1 {lab}_f2go\ns_cmp_eq_u32 s28, 0\ns_cbranch_scc1 {lab}_f2go\ns_mov_b32 {sSPIN}, {WSPIN}')
        A(f'{lab}_f2:\nbuffer_load_dword v2, v7, {SRD}, s15 offen sc1')
        A(f's_sub_u32 {sSPIN}, {sSPIN}, 1\ns_cbranch_scc1 {tmo}\ns_waitcnt vmcnt(0)\nv_cmp_gt_u32 vcc, 16, v2\ns_cbranch_vccnz {lab}_f2')
        A(f'{lab}_f2go:\ns_barrier')
        late_loads()
        A(f's_waitcnt vmcnt(0)\n{lab}_go:')
        tline(A, c2, 5)
        for q in range(5):
            for b in range(2):
                for tt in range(2): A(mfma(vr(8 + (tt * 2 + b) * 4, 4), vr(WX(q, b), 4), vr(PB(q, tt), 4), 0 if q == 0 else None))
        for k in range(4): A(f'ds_write_b128 v3, {vr(8+4*k,4)} offset:{k*1024}')
        A(f's_waitcnt lgkmcnt(0)\ns_barrier\ns_cmp_ge_u32 {sW}, 2\ns_cbranch_scc1 {lab}_next')
        for src in range(4):
            for b in range(2): A(f'ds_read_b128 {vr(32+(src*2+b)*4,4)}, v123 offset:{src*4096 + b*1024}')
        A('s_waitcnt lgkmcnt(0)')
        for j in range(4):
            r = 32 + 2 * j
            A(f'v_pk_add_f32 {vr(r,2)}, {vr(r,2)}, {vr(r+8,2)}\nv_pk_add_f32 {vr(r+16,2)}, {vr(r+16,2)}, {vr(r+24,2)}\nv_pk_add_f32 {vr(r,2)}, {vr(r,2)}, {vr(r+16,2)}')
            A(f'v_cvt_pk_bf16_f32 v{r}, v{r}, v{r+1}\nv_and_b32 v{r+1}, 0xffff0000, v{r}\nv_lshlrev_b32 v{r}, 16, v{r}')
            A(f'v_lshlrev_b32 v24, 16, v{116+j}\nv_and_b32 v25, 0xffff0000, v{116+j}')
            A(f'v_pk_mul_f32 {vr(r,2)}, {vr(r,2)}, v[24:25]')
            A(f'v_cvt_pk_bf16_f32 v{r}, v{r}, v{r+1}\nv_and_b32 v{r+1}, 0xffff0000, v{r}\nv_lshlrev_b32 v{r}, 16, v{r}')
            A(f'v_lshlrev_b32 v24, 16, v{112+j}\nv_and_b32 v25, 0xffff0000, v{112+j}')
            A(f'v_pk_add_f32 {vr(r,2)}, {vr(r,2)}, v[24:25]')
            A(f'v_cvt_pk_bf16_f32 v{28+j}, v{r}, v{r+1}')
        if cfg.get('ostsplit'):
            A(f's_cmp_ge_u32 s8, {cfg["ostsplit"]}\ns_cbranch_scc1 {lab}_plain\nbuffer_store_dwordx4 v[28:31], v5, s[48:51], s14 offen sc1\ns_branch {lab}_next\n{lab}_plain:')
        A(f'buffer_store_dwordx4 v[28:31], v5, s[48:51], s14 offen {cfg.get("ost", "")}')
        A(f'{lab}_next:\ns_add_u32 s8, s8, 4\ns_cmp_lt_u32 s8, {NSEG}\ns_cbranch_scc1 {lab}_l3\n{lab}_end:')
    else:
        A(f's_and_b32 s11, {sR}, 3\ns_lshl_b32 s16, s11, 2\ns_cmp_eq_u32 s11, 3\ns_cselect_b32 s16, 11, s16\ns_add_u32 s16, s16, {sW}')
        A(f's_lshr_b32 s11, s11, 1\ns_add_u32 s11, s11, {sW}\ns_cmp_ge_u32 s11, 4\ns_cselect_b32 s17, {OOB}, 0')
        col = Sg('s16') * 32 + (n >> 2) * 8 + (n & 3)
        em.emit(g * 7168 + col * 16 + Sg('s17'), 'v4')
        em.emit(n * 896 + Sg('s16') * 64 + g * 16 + Sg('s17'), 'v5')
        em.emit(Sg('s16') * 1024 + l * 16 + Sg('s17'), 'v6')
        em.emit((l & 1) * (FPX - FVM), 'v7')
        A(f's_lshr_b32 s8, {sR}, 2\ns_mul_i32 s18, {sW}, 10240')
        WX = lambda q, b: 32 + (q * 2 + b) * 4
        A(f'{lab}_l3:')
        A(f's_lshl_b32 s13, s8, 7\ns_add_u32 s15, s13, {FVX}')
        wait_flag(w, f'{lab}_fvx', 's15', 16, tmo)
        A(f's_mul_i32 s14, s8, {VX_SEG}\ns_add_u32 s14, s14, {VXF}')
        for q in range(16):
            for b in range(2): A(f'buffer_load_dwordx4 {vr(WX(q,b),4)}, v4, {SRD}, s14 offen offset:{b*64} sc1')
            if q < 15: A('s_add_u32 s14, s14, 28672')
        A('s_mul_i32 s14, s8, 28672\ns_add_u32 s20, s14, 14336')
        A('buffer_load_dwordx4 v[192:195], v5, s[44:47], s14 offen\nbuffer_load_dwordx4 v[196:199], v5, s[44:47], s20 offen')
        A(f's_add_u32 s15, s13, {FG}')
        wait_flag(w, f'{lab}_fg', 's15', 1, tmo)
        A(f's_add_u32 s21, s14, {GB}\ns_add_u32 s22, s20, {GB}')
        A(f'buffer_load_dwordx4 v[200:203], v6, {SRD}, s21 offen sc1\nbuffer_load_dwordx4 v[204:207], v6, {SRD}, s22 offen sc1')
        A(f's_add_u32 s15, s13, {FVM}')
        A(f's_cmp_lg_u32 {sW}, 0\ns_cbranch_scc1 {lab}_f2go\ns_mov_b32 {sSPIN}, {WSPIN}')
        A(f'{lab}_f2:\nbuffer_load_dword v2, v7, {SRD}, s15 offen sc1')
        A(f's_sub_u32 {sSPIN}, {sSPIN}, 1\ns_cbranch_scc1 {tmo}\n{BACK[0]}s_waitcnt vmcnt(0)\nv_cmp_gt_u32 vcc, 16, v2\ns_cbranch_vccnz {lab}_f2')
        A(f'{lab}_f2go:\ns_barrier')
        tline(A, c2, 5)
        A(f's_mul_i32 s21, s8, {PX_SEG}\ns_add_u32 s21, s21, s18\ns_add_u32 s21, s21, {PX}')
        for k in range(10):
            if k % 4 == 0: A(f's_add_u32 m0, s18, {k*1024}\ns_add_u32 s22, s21, {k*1024}')
            A(f'buffer_load_dwordx4 v1, {SRD}, s22 offen offset:{(k%4)*1024} sc1 lds')
        A(f's_mul_i32 s21, s8, {VM_SEG}\ns_add_u32 s21, s21, {VM}')
        for u in range(4):
            for b in range(2): A(f'buffer_load_dwordx4 {vr(WX(16+u,b),4)}, v4, {SRD}, s21 offen offset:{b*64} sc1')
            if u < 3: A('s_add_u32 s21, s21, 28672')
        A('s_waitcnt vmcnt(8)\ns_barrier')
        w.lg = []
        PB = lambda q, tt: 208 + ((q & 3) * 2 + tt) * 4
        def pl(q):
            for tt in range(2): w.ds(f'ds_read_b128 {vr(PB(q,tt),4)}, v1 offset:{tt*20480 + q*1024}', f'P{q}')
        for q in range(3): pl(q)
        for q in range(20):
            if q + 3 < 20: pl(q + 3)
            w.wait(lg=f'P{q}')
            if q == 16: A('s_waitcnt vmcnt(0)')
            for b in range(2):
                for tt in range(2): A(mfma(vr(8 + (tt * 2 + b) * 4, 4), vr(WX(q, b), 4), vr(PB(q, tt), 4), 0 if q == 0 else None))
        for tt in range(2):
            a = 8 + tt * 8
            for j in range(4):
                r = a + 2 * j
                A(f'v_cvt_pk_bf16_f32 v{r}, v{r}, v{r+1}\nv_and_b32 v{r+1}, 0xffff0000, v{r}\nv_lshlrev_b32 v{r}, 16, v{r}')
                A(f'v_lshlrev_b32 v24, 16, v{200+4*tt+j}\nv_and_b32 v25, 0xffff0000, v{200+4*tt+j}')
                A(f'v_pk_mul_f32 {vr(r,2)}, {vr(r,2)}, v[24:25]')
                A(f'v_cvt_pk_bf16_f32 v{r}, v{r}, v{r+1}\nv_and_b32 v{r+1}, 0xffff0000, v{r}\nv_lshlrev_b32 v{r}, 16, v{r}')
                A(f'v_lshlrev_b32 v24, 16, v{192+4*tt+j}\nv_and_b32 v25, 0xffff0000, v{192+4*tt+j}')
                A(f'v_pk_add_f32 {vr(r,2)}, {vr(r,2)}, v[24:25]')
                A(f'v_cvt_pk_bf16_f32 v{28+j}, v{r}, v{r+1}')
            A(f'buffer_store_dwordx4 v[28:31], v5, s[48:51], {"s20" if tt else "s14"} offen {cfg.get("ost", "")}')
        A(f's_add_u32 s8, s8, 16\ns_cmp_lt_u32 s8, {NSEG}\ns_cbranch_scc1 {lab}_l3')
    if cfg.get('tl') or cfg.get('ds'): A('s_waitcnt vmcnt(0)')
    tline(A, c2, 4)
    dstamp(A, cfg, 7, 215 if cfg.get('out2', 1) else 223, 2)
    A('s_endpgm')
```

```python
from asmdsl import Asm
from expr import X, V, Sg, Emitter, ev, sel_lt, wrap
from layout import *
import numpy as np

SRD = 's[4:7]'
def vr(a, n=1): return f'v{a}' if n == 1 else f'v[{a}:{a+n-1}]'
def wreg(o):
    return f'a[{8*o}:{8*o+7}]' if o < 32 else f'v[{120+8*(o-32)}:{127+8*(o-32)}]'
def wquad(o, b):
    return f'a[{8*o+4*b}:{8*o+4*b+3}]' if o < 32 else f'v[{120+8*(o-32)+4*b}:{123+8*(o-32)+4*b}]'

class Wv:
    def __init__(self, A, cfg):
        self.A = A; self.vm = []; self.lg = []; self.cfg = cfg; self.nst = 0
    def __call__(self, t): self.A(t)
    def vmem(self, t, tag=None): self.A(t); self.vm.append(tag)
    def ds(self, t, tag=None): self.A(t); self.lg.append(tag)
    def wait(self, vm=None, lg=None):
        parts = []
        if vm is not None and vm in self.vm:
            i = len(self.vm) - 1 - self.vm[::-1].index(vm)
            parts.append(f'vmcnt({len(self.vm)-1-i})'); self.vm = self.vm[i+1:]
        if lg is not None and lg in self.lg:
            i = len(self.lg) - 1 - self.lg[::-1].index(lg)
            n = min(len(self.lg) - 1 - i, 15)
            parts.append(f'lgkmcnt({n})'); self.lg = self.lg[i+1:]
        if parts: self.A('s_waitcnt ' + ' '.join(parts))
    def wait_all_lg(self): self.A('s_waitcnt lgkmcnt(0)'); self.lg = []
    def wait_all_vm(self): self.A('s_waitcnt vmcnt(0)'); self.vm = []
    def stamp(self, name=None):
        if self.cfg.get('stamps'):
            assert self.nst < 12
            self.A(f's_memtime s[{60+2*self.nst}:{61+2*self.nst}]'); self.nst += 1
    def dump_stamps(self, lab):
        if not self.cfg.get('stamps'): return
        A = self.A
        A(f's_waitcnt lgkmcnt(0)\ns_cmp_lg_u32 s8, 6\ns_cbranch_scc1 {lab}_nocal')
        A(f's_memrealtime s[96:97]\ns_waitcnt lgkmcnt(0)\n{lab}_cal:\ns_memrealtime s[98:99]\ns_memtime s[100:101]\ns_waitcnt lgkmcnt(0)\ns_cmp_eq_u32 s96, s98\ns_cbranch_scc1 {lab}_cal')
        for k in range(12): A(f's_mov_b32 s{84+k}, 0')
        A(f'{lab}_nocal:\ns_cmp_lt_u32 s8, 8\ns_cbranch_scc1 {lab}_nodump\ns_cmp_gt_u32 s8, 57\ns_cbranch_scc1 {lab}_nodump')
        for k in range(self.nst): A(f's_sub_u32 s11, s{60+2*k}, s100\ns_add_u32 s{84+k}, s{84+k}, s11')
        A(f's_cmp_lg_u32 s8, 57\ns_cbranch_scc1 {lab}_nodump')
        A('s_lshl_b32 s11, s3, 2\ns_add_u32 s11, s11, s9\ns_lshl_b32 s11, s11, 6')
        A(f's_add_u32 s11, s11, {DBG}')
        A(f'v_mov_b32 v0, s98\nv_mov_b32 v2, 0x4000\nbuffer_store_dword v0, v2, {SRD}, s11 offen')
        for k in range(self.nst):
            A(f'v_mov_b32 v0, s{84+k}\nv_mov_b32 v1, {4*k}\nbuffer_store_dword v0, v1, {SRD}, s11 offen')
        A(f's_waitcnt vmcnt(0)\n{lab}_nodump:')

def tline(A, cfg, k, base=0, idx='s3'):
    if not cfg.get('tl'): return
    lab = A.newlabel(f'TL{base}')
    A(f's_cmp_lg_u32 s9, 0\ns_cbranch_scc1 {lab}')
    A(f's_memrealtime s[96:97]\ns_lshl_b32 s98, {idx}, 6\ns_add_u32 s98, s98, {DBG + 0x8000 + base + 4*k}\ns_waitcnt lgkmcnt(0)')
    A(f'v_accvgpr_write_b32 a255, s96' if False else f'v_mov_b32 v{cfg.get("tlreg", 95)}, s96')
    A(f'buffer_store_dword v{cfg.get("tlreg", 95)}, off, {SRD}, s98')
    if cfg.get('tlclk'):
        A(f's_memtime s[96:97]\ns_waitcnt lgkmcnt(0)\nv_mov_b32 v{cfg.get("tlreg", 95)}, s96\nbuffer_store_dword v{cfg.get("tlreg", 95)}, off, {SRD}, s98 offset:32')
    A(f'{lab}:')

def dstamp(A, cfg, k, slot, reg):
    if not cfg.get('ds'): return
    lab = A.newlabel('DS')
    A(f's_cmp_lg_u32 s9, 0\ns_cbranch_scc1 {lab}\ns_cmp_lg_u32 s3, {slot}\ns_cbranch_scc1 {lab}')
    A(f's_load_dwordx2 s[96:97], s[0:1], 104\ns_memrealtime s[94:95]\ns_waitcnt lgkmcnt(0)\ns_mov_b32 s98, 256\ns_mov_b32 s99, 0x20000')
    A(f's_and_b32 s94, s94, 0xfffff\nv_mov_b32 v{reg}, s94\nbuffer_store_dword v{reg}, off, s[96:99], 0 offset:{4*k}\n{lab}:')

def dretry(A, cfg):
    if not cfg.get('ds'): return
    A('s_load_dwordx2 s[96:97], s[0:1], 104\ns_waitcnt lgkmcnt(0)\ns_mov_b32 s98, 256\ns_mov_b32 s99, 0x20000')
    A('v_mov_b32 v3, s20\ns_mov_b64 exec, 1\nbuffer_atomic_add v3, off, s[96:99], 0 offset:52 sc1\ns_mov_b64 exec, -1')

def smf(acc, a, b, idx): return f'v_smfmac_f32_16x16x64_bf16 {vr(acc,4)}, {a}, {b}, {idx}'

KM = 3
MREG = [16, 20, 24, 0, 4, 8, 12]
ACC = [28 + 4 * t for t in range(7)]
vIDX, vL16, vHUp, vHUs = 'v119', 'v118', 'v117', 'v116'
vKA = ['v115', 'v114', 'v113', 'v112', 'v111', 'v110', 'v109']
sSTEP, sW, sR = 's8', 's9', 's10'
sKK = [f's{12+t}' for t in range(7)]
sSPIN, sRETRY, sS1 = 's19', 's20', 's31'
sMO = ['s36', 's37', 's38']
SPIN_MAX = 0x80000
L_K = 131072

def common_consts(em, A, lab, rot, swap=False):
    l = V('v0')
    em.emit(l & 63, 'v0')
    em.emit(sel_lt(l & 2, 1, 0x44444444, 0xEEEEEEEE), vIDX)
    em.emit(l * 16, vL16)
    if swap: A(f's_xor_b32 s33, {sW}, 2\ns_lshl_b32 s33, s33, 1')
    else: A(f's_lshl_b32 s33, {sW}, 1\ns_add_u32 s33, s33, {rot}')
    for _ in range(3): A('s_cmp_ge_u32 s33, 7\ns_cselect_b32 s35, 7, 0\ns_sub_u32 s33, s33, s35')
    for t in range(7):
        A(f's_add_u32 s34, s33, {t}\ns_cmp_ge_u32 s34, 7\ns_cselect_b32 s35, 7, 0\ns_sub_u32 s34, s34, s35\ns_lshl_b32 {sKK[t]}, s34, 10')
    em.emit(L_K + l * 16, 'v1')
    for t in range(7): A(f'v_add_u32 {vKA[t]}, {sKK[t]}, v1')
    A(f's_cmp_lg_u32 {sW}, {1 if swap else 3}\ns_cbranch_scc1 {lab}_w3skip\nv_add_u32 {vKA[1]}, 7168, v1\n{lab}_w3skip:')

def step_consts(A, solo=False):
    A(f's_and_b32 s11, {sSTEP}, {0 if solo else 3}\ns_lshl_b32 s33, s11, 13\ns_add_u32 s33, s33, {MS}')
    for t in range(3): A(f's_add_u32 {sMO[t]}, s33, {sKK[t]}')
    A(f's_add_u32 {sS1}, {sSTEP}, 1')

def align(A, cfg, key):
    a = cfg.get(key)
    if a:
        A(f'.p2align {a[0]}')
        for _ in range(a[1]): A('s_nop 0')

def poll(w, lab, vp, sval, tmo, nl):
    w(f'v_mov_b32 {vp}, 0')
    if w.cfg.get('pollmask', 1) and nl < 64: w(f's_mov_b32 exec_lo, {hex((1 << nl) - 1) if nl < 32 else -1}\ns_mov_b32 exec_hi, 0')
    align(w.A, w.cfg, 'apoll')
    w(f'{lab}:')
    if w.cfg.get('pollnop'): w(f's_nop {w.cfg["pollnop"]-1}')
    w(f'buffer_load_dword {vp}, {vHUp}, {SRD}, 0 offen sc1')
    w(f's_waitcnt vmcnt({w.cfg.get("polldepth", 40)})')
    w(f'v_cmp_gt_u32 vcc, {sval}, {vp}')
    w(f's_sub_u32 {sSPIN}, {sSPIN}, 1\ns_cbranch_scc1 {tmo}')
    w(f's_cbranch_vccnz {lab}')
    if w.cfg.get('pollmask', 1) and nl < 64: w('s_mov_b64 exec, -1')
    w.vm = []

def zero(w, a, n):
    for i in range(a, a + n, 2): w(f'v_mov_b64 {vr(i,2)}, 0')

def sentinel_check(w, regs, tmp):
    w(f'v_max3_u32 {tmp}, v{regs[0]}, v{regs[1]}, v{regs[2]}')
    r = regs[3:]
    while len(r) >= 2:
        w(f'v_max3_u32 {tmp}, {tmp}, v{r[0]}, v{r[1]}'); r = r[2:]
    if r: w(f'v_max_u32 {tmp}, {tmp}, v{r[0]}')
    w(f'v_cmp_eq_u32 vcc, -1, {tmp}')

def weight_stream(w, fill, comb_write, lab, tmp, tmo=None, mpoll=False, early=None):
    cfg = w.cfg; ND = cfg.get('nd', 2)
    align(w.A, cfg, 'aB')
    w(f'{lab}_mload:')
    w.vm = []; w.lg = []
    if mpoll:
        assert ND == 2
        for t in range(ND):
            w(f'buffer_load_dwordx4 {vr(MREG[t],4)}, {vL16}, {SRD}, {sMO[t]} offen sc1')
        if cfg.get('mnop'): w(f's_nop {cfg["mnop"]-1}')
        w(f's_waitcnt vmcnt({cfg.get("bdepth", 0)})')
        sentinel_check(w, list(range(MREG[0], MREG[0] + 8)), f'v{tmp}')
        w(f's_sub_u32 {sSPIN}, {sSPIN}, 1\ns_cbranch_scc1 {tmo}')
        w(f's_cbranch_vccnz {lab}_mload')
        w.vm = ['MP']
        if early: early()
    else:
        for t in range(ND):
            w(f's_setprio {ND-1-t}')
            w.vmem(f'buffer_load_dwordx4 {vr(MREG[t],4)}, {vL16}, {SRD}, {sMO[t]} offen sc1', f'M{t}')
        if early: early()
    order = [(tl, t) for t in range(KM) for tl in range(7)] + [(tl, t) for tl in range(7) for t in range(KM, 7)]
    pre = {}; mem = {}; val = {}
    ad = lambda d, n, f: d.setdefault(n, []).append(f)
    w1 = 1 if mpoll else cfg.get('w1', 3)
    for t, s0 in ((0, 0), (1, w1)):
        m = MREG[t]
        ad(pre, s0, lambda t=t: w.wait(vm=f'M{t}'))
        if cfg.get('bw64'):
            for k in range(2): ad(mem, 2 * t + k, lambda t=t, m=m, k=k: w.ds(f'ds_write_b64 {vKA[t]}, {vr(m+2*k,2)} offset:{8*k}'))
        else: ad(mem, s0, lambda t=t, m=m: w.ds(f'ds_write_b128 {vKA[t]}, {vr(m,4)}'))
    if mpoll:
        bs = w1 + cfg.get('mbar', 4)
        def sync():
            w.wait_all_lg(); w('s_barrier')
        ad(pre, 20, lambda: w.wait(vm='MP'))
    else:
        m0, m1, m2 = MREG[0], MREG[1], MREG[2]
        ad(val, 1, lambda: w(f'v_max3_u32 v{tmp}, v{m0}, v{m0+1}, v{m0+2}'))
        c = w1 + 1
        ad(val, c, lambda: w(f'v_max3_u32 v{tmp}, v{tmp}, v{m0+3}, v{m1}'))
        ad(val, c + 1, lambda: w(f'v_max3_u32 v{tmp}, v{tmp}, v{m1+1}, v{m1+2}'))
        if ND == 2:
            ad(val, c + 2, lambda: w(f'v_max_u32 v{tmp}, v{tmp}, v{m1+3}'))
            c += 3
        else:
            ad(pre, c + 2, lambda: w.wait(vm='M2'))
            ad(val, c + 2, lambda: w(f'v_max3_u32 v{tmp}, v{tmp}, v{m1+3}, v{m2}'))
            ad(val, c + 3, lambda: w(f'v_max3_u32 v{tmp}, v{tmp}, v{m2+1}, v{m2+2}'))
            ad(val, c + 4, lambda: w(f'v_max_u32 v{tmp}, v{tmp}, v{m2+3}'))
            c += 5
        ad(val, c, lambda: w(f'v_cmp_eq_u32 vcc, -1, v{tmp}'))
        bs = c + cfg.get('bdelay', 2)
        def sync():
            w(f's_cbranch_vccnz {lab}_mretry')
            w.wait_all_lg(); w('s_barrier')
    ad(mem, bs, sync)
    n = 0
    for t in range(ND, 7):
        m = MREG[t]
        ad(mem, bs + n, lambda t=t, m=m: w.ds(f'ds_read_b128 {vr(m,4)}, {vKA[t]}', f'M{t}'))
        n += 1
    per = 7 - KM; base = 7 * KM
    for tl in range(6):
        s0 = base + per * (tl + 1) + 1
        ad(val, s0, lambda tl=tl: w(f'v_add_f32 v{tmp}, v{ACC[tl]}, v{ACC[tl]+2}'))
        ad(val, s0 + 1, lambda tl=tl: w(f'v_add_f32 v{tmp+1}, v{ACC[tl]+1}, v{ACC[tl]+3}'))
        ad(val, s0 + 2, lambda: w(f'v_cvt_pk_bf16_f32 v{tmp+2}, v{tmp}, v{tmp+1}'))
        ad(mem, s0 + 3, lambda tl=tl: comb_write(tl, f'v{tmp+2}'))
    fl, fv = fill(bs + n)
    for k, fs in fv.items():
        for f in fs: ad(val, k, f)
    if cfg.get('stamps'):
        for k in cfg.get('bfine', [0]): ad(fl, k, lambda: w.stamp())
    for n, (tl, t) in enumerate(order):
        for f in pre.get(n, []): f()
        w.wait(vm=f'M{t}', lg=f'M{t}')
        w('s_nop 3' if cfg.get('nov') else smf(ACC[tl], vr(MREG[t], 4), wreg(tl * 7 + t), vIDX))
        for f in mem.get(n, []): f()
        for f in fl.get(n, []): f()
        for f in val.get(n, []): f()
    assert all(k < 49 for k in fl) and all(k < 49 for k in val)
    return [f for k in sorted(mem) if k >= 49 for f in mem[k]]

MREGA = [12, 16, 20, 24, 0, 4, 8]
def a_consts(em, A):
    l = V('v0')
    em.emit(l & 63, 'v0')
    em.emit(sel_lt(l & 2, 1, 0x44444444, 0xEEEEEEEE), vIDX)
    em.emit(l * 16, vL16)
    for t in range(4): A(f's_add_u32 s34, {sW}, {sR}\ns_add_u32 s34, s34, {t}\ns_and_b32 s34, s34, 3\ns_lshl_b32 {sKK[t]}, s34, 10')
    for t in range(4, 7): A(f's_movk_i32 {sKK[t]}, {t*1024}')
    em.emit(L_K + l * 16, vKA[4])
    for t in range(4): A(f'v_add_u32 {vKA[t]}, {sKK[t]}, {vKA[4]}')
    A(f's_lshl_b32 s29, {sW}, 10\ns_add_u32 s29, s29, 4096')

def a_step_consts(A, solo=False):
    A(f's_and_b32 s11, {sSTEP}, {0 if solo else 3}\ns_lshl_b32 s33, s11, 13\ns_add_u32 s33, s33, {MS}')
    A(f's_add_u32 s36, s33, {sKK[0]}\ns_add_u32 s37, s33, {sKK[1]}\ns_add_u32 s38, s33, s29\ns_add_u32 s39, s29, {L_K}')
    A(f's_add_u32 {sS1}, {sSTEP}, 1')

def a_stream(w, fill, comb_write, lab, tmp, tmo):
    cfg = w.cfg; MR = MREGA; KMA = 4; NE = cfg.get('ne', 2)
    align(w.A, cfg, 'aA')
    w(f'{lab}_mload:')
    w.vm = []; w.lg = []
    for t in range(NE): w(f'buffer_load_dwordx4 {vr(MR[t],4)}, {vL16}, {SRD}, s{36+t} offen sc1')
    if cfg.get('mnop'): w(f's_nop {cfg["mnop"]-1}')
    w(f's_waitcnt vmcnt({0 if cfg.get("hum") else cfg.get("mdepth", 2)})')
    if cfg.get('hum') == 1: pass
    elif cfg.get('poll1'):
        assert NE == 1 and cfg.get('nanchk', 1)
        w(f'v_cmp_eq_u32 vcc, -1, v{MR[0]+3}')
    else: sentinel_check(w, list(range(MR[0], MR[0] + 4 * NE)), f'v{tmp}')
    if cfg.get('hum') != 1:
        w(f's_sub_u32 {sSPIN}, {sSPIN}, 1\ns_cbranch_scc1 {tmo}')
        w(f's_cbranch_vccnz {lab}_mload')
    w(f'{lab}_again:')
    order = [(tl, t) for t in range(KMA) for tl in range(7)] + [(tl, t) for tl in range(7) for t in range(KMA, 7)]
    pre = {}; mem = {}; val = {}
    ad = lambda d, n, f: d.setdefault(n, []).append(f)
    ew = cfg.get('ew', 128)
    if ew == 128:
        if NE == 1: w.ds(f'ds_write_b128 {vKA[0]}, {vr(MR[0],4)}')
        else: ad(mem, 0, lambda: w.ds(f'ds_write_b128 {vKA[0]}, {vr(MR[0],4)}'))
    elif ew == 64:
        for k in range(2): ad(mem, k, lambda k=k: w.ds(f'ds_write_b64 {vKA[0]}, {vr(MR[0]+2*k,2)} offset:{8*k}'))
    else:
        for k in range(4): ad(mem, k, lambda k=k: w.ds(f'ds_write_b32 {vKA[0]}, v{MR[0]+k} offset:{4*k}'))
    bs = cfg.get('ebar', 2 if NE == 1 else 8)
    ad(mem, bs, lambda: (w.wait_all_lg(), w('s_barrier')))
    for t in range(NE, 4):
        ad(mem, bs + (t - NE), lambda t=t: w.ds(f'ds_read_b128 {vr(MR[t],4)}, {vKA[t]}', f'M{t}'))
    l0 = cfg.get('lslot', 3); lb = cfg.get('lbar', 17)
    ad(mem, l0 - 1, lambda: w('s_mov_b32 m0, s39'))
    ad(mem, l0, lambda: w.vmem(f'buffer_load_dwordx4 {vL16}, {SRD}, s38 offen sc1 lds', 'L'))
    ad(mem, lb, lambda: (w.wait(vm='L'), w('s_barrier')))
    for t in (4, 5, 6): ad(mem, lb + (t - 4) // 2, lambda t=t: w.ds(f'ds_read_b128 {vr(MR[t],4)}, {vKA[4]} offset:{t*1024}', f'M{t}'))
    nanchk = cfg.get('nanchk', 1)
    if nanchk:
        cs = lb + 1
        ad(val, 34, lambda: w(f'v_cmp_u_f32 vcc, v{tmp}, v{tmp+1}'))
        ad(mem, 36, lambda: w(f's_cbranch_vccnz {lab}_lretry\n{lab}_lok:'))
    else:
        lc = lb + 3
        w.lretry_state = None
        ad(pre, lc + 1, lambda: w.wait(lg='M5'))
        ad(val, lc + 1, lambda: w(f'v_max3_u32 v{tmp}, v0, v1, v2'))
        ad(val, lc + 2, lambda: w(f'v_max3_u32 v{tmp}, v{tmp}, v3, v4'))
        ad(pre, lc + 3, lambda: w.wait(lg='M6'))
        ad(val, lc + 3, lambda: w(f'v_max3_u32 v{tmp}, v{tmp}, v5, v6'))
        ad(val, lc + 4, lambda: w(f'v_max3_u32 v{tmp}, v{tmp}, v7, v8'))
        ad(val, lc + 5, lambda: w(f'v_max3_u32 v{tmp}, v{tmp}, v9, v10'))
        ad(val, lc + 6, lambda: (w(f'v_max_u32 v{tmp}, v{tmp}, v11'), w(f'v_cmp_eq_u32 vcc, -1, v{tmp}')))
        cs = lc + 7
        assert cs <= 27
        ad(mem, cs, lambda: w(f's_cbranch_vccnz {lab}_lretry\n{lab}_lok:'))
    per = 7 - KMA; base = 7 * KMA
    for tl in range(6):
        s0 = base + per * (tl + 1) + 1
        o = tmp + 2 if not (cfg.get('tw2') and tl % 2 == 0) else 97
        ad(val, s0, lambda tl=tl: w(f'v_add_f32 v{tmp}, v{ACC[tl]}, v{ACC[tl]+2}'))
        ad(val, s0 + 1, lambda tl=tl: w(f'v_add_f32 v{tmp+1}, v{ACC[tl]+1}, v{ACC[tl]+3}'))
        ad(val, s0 + 2, lambda o=o: w(f'v_cvt_pk_bf16_f32 v{o}, v{tmp}, v{tmp+1}'))
        if not cfg.get('tw2'): ad(mem, s0 + 3, lambda tl=tl, o=o: comb_write(tl, f'v{o}'))
        elif tl % 2: ad(mem, s0 + 3, lambda tl=tl, o=o: comb_write(tl, f'v97, v{o}'))
    fl, fv = fill(bs + 4 - NE, cs + 1)
    for k, fs in fv.items():
        for f in fs: ad(val, k, f)
    if cfg.get('stamps'):
        for k in cfg.get('fine', [0]): ad(fl, k, lambda: w.stamp())
    for n, (tl, t) in enumerate(order):
        for f in pre.get(n, []): f()
        w.wait(lg=f'M{t}')
        w('s_nop 3' if cfg.get('noa') else smf(ACC[tl], vr(MR[t], 4), wreg(tl * 7 + t), vIDX))
        for f in mem.get(n, []): f()
        for f in fl.get(n, []): f()
        for f in val.get(n, []): f()
    assert all(k < 49 for k in fl)
    return [f for k in range(49, 56) for f in mem.get(k, []) + val.get(k, [])]

def l_retry(w, lab, tmp, tmo):
    if w.cfg.get('nanchk', 1):
        w(f'{lab}_lretry:')
        sentinel_check(w, list(range(0, 28 if (w.cfg.get('poll1') or w.cfg.get('hum') == 1) else 12)), f'v{tmp+3}')
        w(f'v_mov_b32 v{tmp+3}, {sS1}\ns_cbranch_vccz {lab}_lok')
        w(f's_add_u32 {sRETRY}, {sRETRY}, 1\ns_sub_u32 {sSPIN}, {sSPIN}, 16\ns_cbranch_scc1 {tmo}')
        w('s_waitcnt vmcnt(0) lgkmcnt(0)\ns_barrier')
        zero(w, 28, 28)
        if w.cfg.get('poll1') or w.cfg.get('hum') == 1:
            w(f'buffer_load_dwordx4 {vr(MREGA[0],4)}, {vL16}, {SRD}, s36 offen sc1\ns_waitcnt vmcnt(0)')
        w(f's_branch {lab}_again')
        return
    w(f'{lab}_lretry:\ns_mov_b32 s33, m0\n{lab}_lretry2:')
    w(f's_add_u32 {sRETRY}, {sRETRY}, 1\ns_barrier\ns_mov_b32 m0, s39')
    w(f's_sub_u32 {sSPIN}, {sSPIN}, 4\ns_cbranch_scc1 {tmo}')
    w(f'buffer_load_dwordx4 {vL16}, {SRD}, s38 offen sc1 lds\ns_waitcnt vmcnt(0)\ns_barrier')
    for t in (4, 5, 6): w(f'ds_read_b128 {vr(MREGA[t],4)}, {vKA[4]} offset:{t*1024}')
    w('s_waitcnt lgkmcnt(0)')
    sentinel_check(w, list(range(0, 12)), f'v{tmp}')
    w(f's_cbranch_vccnz {lab}_lretry2\ns_mov_b32 m0, s33\ns_branch {lab}_lok')

def m_retry(w, lab, tmo):
    w(f'{lab}_mretry:')
    w(f's_add_u32 {sRETRY}, {sRETRY}, 1')
    w(f's_sub_u32 {sSPIN}, {sSPIN}, 8\ns_cbranch_scc1 {tmo}\ns_waitcnt vmcnt(0) lgkmcnt(0)')
    zero(w, 28, 28)
    w(f's_branch {lab}_mload')

def code_touch(A, start, end, sidx, shift, va, vd, sr=56):
    lab = A.newlabel('CT')
    A(f's_getpc_b64 s[{sr}:{sr+1}]\n{lab}:\ns_add_u32 s{sr}, s{sr}, {start}-{lab}\ns_addc_u32 s{sr+1}, s{sr+1}, ({start}-{lab})>>32')
    A(f's_mov_b32 s{sr+2}, {end}-{start}\ns_mov_b32 s{sr+3}, 0x20000\ns_lshl_b32 s11, {sidx}, {shift+6}\nv_lshlrev_b32 {va}, {shift}, v0')
    A(f'buffer_load_dword {vd}, {va}, s[{sr}:{sr+3}], s11 offen')

def wait_lanes(A, lab, addr, target, tmo):
    em = Emitter(A, [f'v{i}' for i in range(4, 13)])
    A(f's_cmp_lg_u32 s9, 0\ns_cbranch_scc1 {lab}_go')
    em.emit(addr, 'v1'); em.emit(target, 'v2')
    A(f's_mov_b32 s19, 0x40000\n{lab}:\nbuffer_load_dword v3, v1, {SRD}, 0 offen sc1')
    A(f's_sub_u32 s19, s19, 1\ns_cbranch_scc1 {tmo}\ns_waitcnt vmcnt(0)\nv_cmp_gt_u32 vcc, v2, v3\ns_cbranch_vccnz {lab}')
    A(f'{lab}_go:\ns_barrier')

def emit_modes(A, cfg, lab, loop):
    if cfg.get('modes', 2) == 1:
        loop(lab, cfg.get('st', '')); return
    A(f's_cmp_lg_u32 s30, 0\ns_cbranch_scc1 {lab}_slow')
    loop(lab + 'x', '')
    A(f'{lab}_slow:')
    loop(lab + 'y', 'sc1')

def load_weights(w, addr_of, spare='v102', slots=range(7), between=None):
    n = 0
    for bs_ in ([(0,), (1,)] if between else [(0, 1)]):
      if bs_ == (1,): between(1)
      for tl in range(7):
        for t in slots:
            for b in bs_:
                va, pre = addr_of(tl, t, b)
                w(pre)
                w(f'buffer_load_dwordx4 {wquad(tl*7+t, b)}, {va}, {SRD}, s11 offen {w.cfg.get("wfl", "")}')
                n += 1
                if between and n == 24: between(0)
                if n % 16 == 0: w(f's_waitcnt vmcnt({w.cfg.get("wdepth", 32)})')
                if n == (w.cfg.get('midn', 64) if len(slots) == 7 else 16) and w.cfg.get('mid_weights'): w.cfg['mid_weights'](spare)

A_X, A_T, A_R = 0, 65536, 77824
Z0, Z1, SACC, TSP0, TSP1, TMP = 56, 12, 80, 36, 40, 92
aKR, aKR3, aTW, aTW6, aTR, aXR, aRW, aRR = 'v108', 'v107', 'v106', 'v105', 'v104', 'v103', 'v102', 'v101'
aP, aKR2, aPOLL = 'v100', 'v99', 'v96'
sQ = ['s21', 's22', 's23', 's24']
sXS, sXL, sPW, sPR, sWL, sMASK = 's25', 's26', 's27', 's28', 's32', 's[52:53]'

def a_exprs(R128=False, TT=False):
    l = V('v0'); w = Sg(sW); h = Sg(sR)
    g = l >> 4; rho = l & 15
    half = (rho >> 1) & 1
    q0 = (w >> 1) * 7 + (w & 1) * 4; q3 = (w >> 1) * 7 + 3
    e = {}
    i = rho & 7
    kr = L_K + ((g >> 1) * 16 + (i >> 1) * 4 + (i & 1)) * 16 + (g & 1) * 8
    e[aKR] = kr + q0 * 512
    e[aKR3] = kr + q3 * 512
    e[aKR2] = kr + q0 * 512 + 1024
    tw = A_T + w * 3072 + (rho >> 2) * 192 + (rho & 1) * 32 + g * 8 + half * 4
    e[aTW] = tw
    e['v98'] = tw + 1536
    e[aTW6] = tw + 2304 + (w & 1) * 64
    e[aTR] = A_T + w * 3072 + g * 384 + ((l >> 3) & 1) * 64 + ((l >> 2) & 1) * 32 + (l & 3) * 8
    e[aXR] = A_X + w * 8192 + l * 16
    e[aRW] = A_R + w * 1536 + g * 384 + rho * 4
    if R128 == 1: e[aRW] = A_R + g * 1536 + (rho >> 1) * 32 + (w ^ g) * 8 + (rho & 1) * 4
    rr = l >> 5; pi = l & 31; pc = pi.min(19)
    e[aRR] = A_R + (w * 2 + rr) * 192 + sel_lt(pc, 4, pc * 8, pc * 8 + 32)
    if R128 == 2: e[aRR] = A_R + (sel_lt(pc, 4, 0, ((pc - 4) >> 3) + 1) * 2 + rr) * 288 + (w * 16 + sel_lt(pc, 4, pc, (pc - 4) & 7) * 2) * 4
    if R128 == 3: e[aRR] = sel_lt(pi, 20, A_R + (sel_lt(pc, 4, 0, ((pc - 4) >> 3) + 1) * 2 + rr) * 288 + (w * 16 + sel_lt(pc, 4, pc, (pc - 4) & 7) * 2) * 4, A_R + 256)
    if R128 == 1: e[aRR] = A_R + (w * 2 + rr) * 768 + sel_lt(pc, 4, pc * 32, pc * 32 + 128)
    if TT:
        al = (l >> 2) & 3; c = l & 3
        tb = A_T + w * 4096 + c * 64 + (g & 1) * 32 + (al & 1) * 8
        e[aTR] = tb + ((g >> 1) * 2 + (al >> 1)) * 272
        e[aTW6] = tb + ((g >> 1) * 2 + ((al >> 1) ^ ((g >> 1) & w & 1))) * 272 + 4 * 272
        e[aTW] = (g * 16 + (rho & 12) + (rho & 1) * 2 + ((rho >> 1) & 1)) * 16
        rb_ = A_T + 2304 + (sel_lt(pc, 4, 0, ((pc - 4) >> 3) + 1) * 2 + rr) * 288 + (w * 16 + sel_lt(pc, 4, pc, (pc - 4) & 7) * 2) * 4
        e[aRR] = sel_lt(pi, 20, rb_, A_T + 2304 + 256) if R128 == 3 else rb_
        e[aRW] = A_T + 4032 + w * 4 + l * 0
        e['v98'] = l * 0 + (A_T + 4032)
    row = w * 2 + rr
    rho_of = lambda hf: (row >> 1) * 4 + hf * 2 + (row & 1)
    pm = ((h >> 3) + 8) * 1024 + (((h >> 1) & 3) * 16 + rho_of(pi & 1)) * 16 + ((h & 1) * 2 + ((pi >> 1) & 1)) * 4
    t0 = (pc - 4) * 2
    px = (h >> 1) * 1024 + (((h & 1) * 2 + ((t0 >> 3) & 1)) * 16 + rho_of((t0 >> 1) & 1)) * 16 + (((t0 >> 2) & 1) * 2 + ((t0 >> 4) & 1)) * 4
    e[aP] = sel_lt(pi, 4, pm, sel_lt(pi, 20, px, OOB))
    return e

def check_a_exprs():
    e = a_exprs(); l = np.arange(64)
    for h in (0, 1, 7, 8, 15):
        for w in range(4):
            env = {'v0': l, sW: w, sR: h}
            p = ev(e[aP], env)
            for ln in range(64):
                pi = ln & 31
                assert p[ln] == (ps_off(h, 2 * w + (ln >> 5), pi) if pi < 20 else OOB)
check_a_exprs()

def gen_A(A, cfg, lab, tmo):
    w = Wv(A, cfg)
    em = Emitter(A, [f'v{i}' for i in range(2, 30)])
    a_consts(em, A)
    for k, x in a_exprs((3 if cfg.get('nomask') else 2) if cfg.get('rtid') else cfg.get('r128'), cfg.get('ttid')).items(): em.emit(x, k)
    l = V('v0')
    em.emit(HU1 + (l & 15) * 4, vHUp)
    if cfg.get('huall'): em.emit(sel_lt(l, 1, HU2 + (Sg(sR) * 4 + Sg(sW)) * 4, OOB), vHUs)
    else: em.emit(sel_lt(l + Sg(sW) * 64, 1, HU2 + Sg(sR) * 4, OOB), vHUs)
    nt = cfg.get('ntouch', 0)
    if nt:
        a = Sg(sR) * 4 + Sg(sW)
        em.emit(sel_lt(l, nt, ((a >> 5) * 1792 + (1792 - 32 * nt) + (a & 31) * nt + l) * 128, OOB), 'v110')
    A(f's_mov_b32 s52, 0xfffff\ns_mov_b32 s53, 0xfffff')
    A(f's_lshr_b32 s11, {sW}, 1')
    A(f's_mul_i32 s34, s11, 7\ns_and_b32 s35, {sW}, 1\ns_lshl_b32 s36, s35, 2\ns_add_u32 s36, s36, s34')
    for u in range(3): A(f's_add_u32 s37, s36, {u}\ns_lshl_b32 {sQ[u]}, s37, 10')
    A(f's_add_u32 s37, s34, 3\ns_lshl_b32 {sQ[3]}, s37, 10')
    A(f's_lshl_b32 {sWL}, {sW}, 13')
    A(f's_mul_i32 s38, {sR}, {28*14336}\ns_add_u32 s38, s38, {AF}')
    A(f's_mul_i32 s39, s35, 14336')
    def addr(tl, t, b):
        pre = f's_mul_i32 s11, {sQ[tl>>1]}, 28\ns_add_u32 s11, s11, s38\n'
        pre += (f's_add_u32 s11, s11, {14336*(tl&1) + 1024*b}\n' if tl < 6 else f's_add_u32 s11, s11, s39\ns_add_u32 s11, s11, {1024*b}\n')
        pre += f's_lshl_b32 s37, {sKK[t]}, 1\ns_add_u32 s11, s11, s37'
        return (aTW if cfg.get('ttid') else vL16), pre
    sXo = ['s44', 's45', 's46', 's47']; sXm = ['s48', 's49', 's50', 's51']
    def x_consts():
        A(f's_add_u32 {sXo[0]}, {sXS}, {sQ[0]}\ns_add_u32 {sXo[1]}, {sXS}, {sQ[3]}')
        A(f's_add_u32 {sXo[2]}, {sXo[0]}, 14336\ns_add_u32 {sXo[3]}, {sXo[1]}, 14336')
        A(f's_mov_b32 {sXm[0]}, {sXL}\ns_add_u32 {sXm[1]}, {sXL}, 3072\ns_add_u32 {sXm[2]}, {sXL}, 4096\ns_add_u32 {sXm[3]}, {sXL}, 7168')
    def x_m0(tt, u):
        if u in (0, 3): A(f's_mov_b32 m0, {sXm[2*tt + (u == 3)]}')
    def x_dma(tt, u, w=w):
        w.vmem(f'buffer_load_dwordx4 {vL16}, {SRD}, {sXo[2*tt + (u == 3)]} offen offset:{1024*u if u < 3 else 0} {cfg.get("xfl", "")} lds', 'X')
    if cfg.get('pre_a'): cfg['pre_a']()
    A(f's_mov_b32 {sXS}, {XF}\ns_mov_b32 {sXL}, {sWL}')
    x_consts()
    for tt in range(2):
        for u in range(4): x_m0(tt, u); x_dma(tt, u)
    load_weights(w, addr, 'v94', range(4, 7) if cfg.get('locala') else range(7))
    TT = cfg.get('ttid'); WST = 4096 if TT else 1728; RO = A_T + 2304 if TT else A_R
    em.emit(A_T + Sg(sW) * (4096 if TT else 3072) + l * 16, 'v1')
    A('v_mov_b64 v[4:5], 0\nv_mov_b64 v[6:7], 0')
    for k in range(3): A(f'ds_write_b128 v1, v[4:7] offset:{k*1024}')
    if cfg.get('rflag'): A(f'ds_write_b32 {aRW}, v4')
    if cfg.get('nomask'):
        em.emit(RO + 256 + Sg(sW) * WST + l * 0, 'v1')
        em.emit(sel_lt(Sg(sW) + l * 0, 1, 0xff800000, 0), 'v8')
        A('v_mov_b32 v9, v8\nds_write_b64 v1, v[8:9]')
    zero(w, 28, 28); zero(w, SACC, 12)
    A(f's_mov_b32 {sSTEP}, 0\ns_mov_b32 {sSPIN}, {SPIN_MAX}\ns_mov_b32 {sRETRY}, 0')
    A(f's_mul_i32 s35, {sW}, {WST}\ns_add_u32 s35, s35, 32768')
    cfg['start_sync'](w, lab)
    A('s_waitcnt vmcnt(0) lgkmcnt(0)'); w.vm = []; w.lg = []
    def loop(lab, st):
        w = Wv(A, cfg)
        A(f'{lab}_loop:')
        cfg['loop_top'](w, lab)
        a_step_consts(A, cfg.get('solo'))
        A(f's_lshl_b32 s33, s11, 14\ns_add_u32 {sPW}, s33, {PS}\ns_xor_b32 {sPR}, {sPW}, 0x8000')
        A(f's_mul_i32 {sXS}, {sS1}, {0 if cfg.get("xsame") else 28672}' + (f'\ns_add_u32 {sXS}, {sXS}, {XF}' if XF else ''))
        A(f's_and_b32 s11, {sS1}, 1\ns_lshl_b32 s11, s11, 15\ns_add_u32 {sXL}, s11, {sWL}')
        x_consts()
        if nt: A(f's_add_u32 s11, {sSTEP}, 2\ns_min_u32 s11, s11, {NSEG-1}\ns_mul_i32 s11, s11, {VX_SEG}\ns_add_u32 s34, s11, {VXF}')
        A(f'v_mov_b32 v{TMP+3}, {sS1}')
        for r in range(MREGA[0], MREGA[0] + 4 * cfg.get('ne', 2), 2): A(f'v_mov_b64 {vr(r,2)}, -1')
        w.stamp()
        gate = cfg.get('gate', 'w0')
        if gate == 'w0':
            A(f's_cmp_lg_u32 {sW}, 0\ns_cbranch_scc1 {lab}_nopoll')
            if not cfg.get('solo'): poll(w, f'{lab}_poll1', aPOLL, sSTEP, tmo, 16)
            A(f'{lab}_nopoll:\ns_barrier')
        elif gate == 'all':
            poll(w, f'{lab}_poll1', aPOLL, sSTEP, tmo, 16)
        w.stamp()
        for _ in range(cfg.get('adelay', 0)): A('s_nop 15')
        if cfg.get('pwait') is not None: A(f's_waitcnt vmcnt({cfg["pwait"]})')
        for _ in range(cfg.get('pchain', 0)):
            A(f'buffer_load_dword {aPOLL}, {vHUp}, {SRD}, 0 offen sc1\ns_waitcnt vmcnt(0)')
        xpos = cfg.get('xpos', [14, 19, 24, 29, 34, 39, 44, 50])
        def xat(p):
            if nt and cfg.get('tslot', 27) == p: w.vmem(f'buffer_load_dword v109, v110, {SRD}, s34 offen', 'T')
            for k in range(8):
                if xpos[k] == p: x_m0(k >> 2, k & 3); x_dma(k >> 2, k & 3, w)
        def fill(f0, k0):
            d = {}; dv = {}
            add = lambda n, f: d.setdefault(n, []).append(f)
            def kq(n, reg, areg, off, tag, ns):
                if cfg.get('kr2'):
                    r2 = areg if off < 1024 else aKR2
                    o = (off & 1023) // 4
                    add(n, lambda: w.ds(f'ds_read2_b32 {vr(reg,2)}, {r2} offset0:{o} offset1:{o+8}', tag))
                    add(n, lambda: w.ds(f'ds_read2_b32 {vr(reg+2,2)}, {r2} offset0:{o+1} offset1:{o+9}', tag))
                    return
                add(n, lambda: w.ds(f'ds_read_b64 {vr(reg,2)}, {areg} offset:{off}', tag))
                add(n, lambda: w.ds(f'ds_read_b64 {vr(reg+2,2)}, {areg} offset:{off+32}', tag))
                if cfg.get('lswap', 1) and not (cfg.get('z0swap') and tag in ('K0', 'K1')): return
                add(ns, lambda: w.wait(lg=tag))
                dv.setdefault(ns, []).append(lambda: w(f'v_swap_b32 v{reg+1}, v{reg+2}'))
            n = f0
            for tt in range(2):
                for uu in range(2):
                    add(n, lambda tt=tt, uu=uu: w.ds(f'ds_read_b128 {vr(Z0+8*(1+tt)+4*uu,4)}, {aXR} offset:{(tt*4+uu)*1024}', 'Z0')); n += 1
            for k in range(8):
                if xpos[k] < 49:
                    add(xpos[k] - 1, lambda k=k: x_m0(k >> 2, k & 3))
                    add(xpos[k], lambda k=k: x_dma(k >> 2, k & 3, w))
            if nt and cfg.get('tslot', 27) < 49: add(cfg.get('tslot', 27), lambda: w.vmem(f'buffer_load_dword v109, v110, {SRD}, s34 offen', 'T'))
            ks = cfg.get('kswap', [36, 39, 42, 45])
            if cfg.get('z0swap'): ks = [k0 + 5, k0 + 6, 0, 0]
            kq(k0, Z0, aKR, 0, 'K0', ks[0]); kq(k0 + 1, Z0 + 4, aKR, 512, 'K1', ks[1])
            k1 = 41 if cfg.get('nanchk', 1) else k0 + 3
            if cfg.get('nanchk', 1): k0 += 3
            kq(k1, Z1, aKR, 1024, 'K2', ks[2]); kq(k1 + 1, Z1 + 4, aKR3, 0, 'K3', ks[3])
            for k, sl in enumerate((37, 38, 39, 40) if cfg.get('nanchk', 1) else (36, 37, 39, 40)):
                tt, uu = k >> 1, k & 1
                add(sl, lambda tt=tt, uu=uu: w.ds(f'ds_read_b128 {vr(Z1+8*(1+tt)+4*uu,4)}, {aXR} offset:{(tt*4+2+uu)*1024}', 'Z1'))
            add(45, lambda: w.ds(f'ds_read_b64_tr_b16 {vr(TSP0,2)}, {aTR}', 'TS0'))
            add(46, lambda: w.ds(f'ds_read_b64_tr_b16 {vr(TSP0+2,2)}, {aTR} offset:{16 if TT else 192}', 'TS0'))
            if TT:
                assert max(x for x in xpos if x < 49) < 30
                add(30, lambda: w('s_mov_b32 m0, s35'))
            return d, dv
        def tw(tl, reg):
            if TT:
                w.ds(f'ds_write_addtid_b32 {reg} offset:{A_T - 32768 + tl*272}'); return
            if ',' in reg:
                u = tl >> 1
                w.ds(f'ds_write2_b32 {aTW if u < 2 else "v98"}, {reg} offset0:{(u&1)*192} offset1:{(u&1)*192+16}')
            elif tl < 6: w.ds(f'ds_write_b32 {aTW}, {reg} offset:{(tl>>1)*768 + (tl&1)*64}')
            else: w.ds(f'ds_write_b32 {aTW6}, {reg}')
        rest = a_stream(w, fill, tw, lab, TMP, tmo)
        w.stamp()
        w.wait(lg='TS0')
        o0 = (1, 2, 0) if cfg.get('lswap', 1) and not cfg.get('z0swap') else (0, 1, 2)
        w(smf(SACC + 4 * o0[0], vr(TSP0, 4), vr(Z0 + 8 * o0[0], 8), vIDX))
        rest[0]()
        w(smf(SACC + 4 * o0[1], vr(TSP0, 4), vr(Z0 + 8 * o0[1], 8), vIDX))
        for f in rest[1:]: f()
        w(f'v_add_f32 v{TMP}, v{ACC[6]}, v{ACC[6]+2}\nv_add_f32 v{TMP+1}, v{ACC[6]+1}, v{ACC[6]+3}')
        w(f'v_cvt_pk_bf16_f32 v{TMP+2}, v{TMP}, v{TMP+1}')
        tw(6, f'v{TMP+2}')
        if TT:
            w.ds(f'ds_read_b64_tr_b16 {vr(TSP1,2)}, {aTW6}', 'TS1')
            w.ds(f'ds_read_b64_tr_b16 {vr(TSP1+2,2)}, {aTW6} offset:16', 'TS1')
        else:
            w.ds(f'ds_read_b64_tr_b16 {vr(TSP1,2)}, {aTR} offset:1536', 'TS1')
            w.ds(f'ds_read_b64_tr_b16 {vr(TSP1+2,2)}, {aTR} offset:{1536+192}', 'TS1')
            if cfg.get('rtid'): w('s_mov_b32 m0, s35')
        if cfg.get('lswap', 1) and not cfg.get('kr2'):
            if not cfg.get('z0swap'):
                for r in (Z0, Z0 + 4, Z1, Z1 + 4): w(f'v_swap_b32 v{r+1}, v{r+2}')
        w(smf(SACC + 4 * o0[2], vr(TSP0, 4), vr(Z0 + 8 * o0[2], 8), vIDX))
        if cfg.get('z0swap'):
            for r in (Z1, Z1 + 4): w(f'v_swap_b32 v{r+1}, v{r+2}')
        xat(50)
        w.wait(lg='TS1')
        for kt in o0: w(smf(SACC + 4 * kt, vr(TSP1, 4), vr(Z1 + 8 * kt, 8), vIDX))
        for kt in o0:
            w(f'v_add_f32 v{56+2*kt}, v{SACC+4*kt}, v{SACC+4*kt+2}\nv_add_f32 v{57+2*kt}, v{SACC+4*kt+1}, v{SACC+4*kt+3}')
            if cfg.get('rtid'):
                for rp in range(2): w.ds(f'ds_write_addtid_b32 v{56+2*kt+rp} offset:{RO - 32768 + (2*kt+rp)*288}')
            elif cfg.get('r128'): w.ds(f'ds_write2st64_b32 {aRW}, v{56+2*kt}, v{57+2*kt} offset0:{kt} offset1:{kt+3}')
            else: w.ds(f'ds_write2_b32 {aRW}, v{56+2*kt}, v{57+2*kt} offset0:{16*kt} offset1:{16*kt+48}')
        hu2 = lambda: w.vmem(f'buffer_store_dword v{TMP+3}, {vHUs}, {SRD}, 0 offen {st}')
        hp = cfg.get('hu2pos', 0)
        w.stamp()
        if hp == -1: hu2()
        xat(51)
        if cfg.get('rflag'):
            w.ds(f'ds_write_b32 {aRW}, v{TMP+3}')
            for _ in range(cfg.get('rgap', 0)): A('s_nop 0')
            A(f'{lab}_rread:')
            w.lg = []
            w.ds('ds_read_b128 v[72:75], v98', 'RF')
            for k in range(4): w.ds(f'ds_read_b64 {vr(64+2*k,2)}, {aRR} offset:{k*WST}', f'R{k}')
            w.wait(lg='RF')
            w('v_min3_u32 v72, v72, v73, v74\nv_min_u32 v72, v72, v75')
            w(f'v_cmp_gt_u32 vcc, {sS1}, v72')
            w.wait(lg='R1'); w('v_pk_add_f32 v[64:65], v[64:65], v[66:67]')
            w.wait(lg='R3'); w('v_pk_add_f32 v[68:69], v[68:69], v[70:71]')
            w(f's_cbranch_vccnz {lab}_rwait')
            w('v_pk_add_f32 v[64:65], v[64:65], v[68:69]')
        else:
            w.wait_all_lg()
            A('s_barrier')
            if cfg.get('r128'):
                for k in range(2): w.ds(f'ds_read_b128 {vr(64+4*k,4)}, {aRR} offset:{k*16}', f'R{2*k+1}')
            else:
                for k in range(4): w.ds(f'ds_read_b64 {vr(64+2*k,2)}, {aRR} offset:{k*(WST if cfg.get("rtid") else 1536)}', f'R{k}')
            if hp == 0: hu2()
            xat(52)
            w.stamp()
            w.wait(lg='R1'); w('v_pk_add_f32 v[64:65], v[64:65], v[66:67]')
            w.wait(lg='R3'); w('v_pk_add_f32 v[68:69], v[68:69], v[70:71]')
            w('v_pk_add_f32 v[64:65], v[64:65], v[68:69]')
        if hp == 1: hu2()
        for _ in range(cfg.get('apad', 0)): A('s_nop 15')
        def truemax():
            w('v_max_f32 v66, v64, v65')
            for k, r in enumerate((8, 4, 2, 1)):
                if hp == 2 + k: hu2()
                xat(53 + k)
                w(f'v_max_f32_dpp v66, v66, v66 row_ror:{r} row_mask:0xf bank_mask:0xf')
            w('v_mov_b32 v67, v66')
            w('v_permlane16_swap_b32 v66, v67')
            w('v_max_f32 v66, v66, v67')
            w('v_pk_add_f32 v[64:65], v[64:65], v[66:67] op_sel_hi:[1,0] neg_lo:[0,1] neg_hi:[0,1]')
            w('v_exp_f32 v64, v64\nv_exp_f32 v65, v65')
        if cfg.get('fastmax'):
            assert hp >= 6
            w('v_max_f32 v66, |v64|, |v65|')
            w(f'v_cmp_lt_f32 vcc, {hex(0x42800000)}, v66')
            w('v_exp_f32 v68, v64\nv_exp_f32 v69, v65')
            w(f's_and_b64 vcc, vcc, {sMASK}\ns_cbranch_scc1 {lab}_tmax\n{lab}_smx:')
        else:
            truemax()
        if hp == 6: hu2()
        EX = 68 if cfg.get('fastmax') else 64
        w(f'v_add_f32 v66, v{EX}, v{EX+1}')
        if not cfg.get('nomask'): w(f'v_cndmask_b32 v66, 0, v66, {sMASK}')
        for k, r in enumerate((8, 4, 2, 1)):
            if hp == 7 + k: hu2()
            xat(57 + k)
            w(f'v_add_f32_dpp v66, v66, v66 row_ror:{r} row_mask:0xf bank_mask:0xf')
        w('v_mov_b32 v67, v66\nv_permlane16_swap_b32 v66, v67\nv_add_f32 v66, v66, v67')
        w('v_rcp_f32 v66, v66')
        if hp == 11: hu2()
        w(f'v_pk_mul_f32 v[64:65], {vr(EX,2)}, v[66:67] op_sel_hi:[1,0]')
        w('v_cvt_pk_bf16_f32 v64, v64, v65')
        w('v_min_u32 v64, -2, v64')
        w.vmem(f'buffer_store_dword v64, {aP}, {SRD}, {sPW} offen {st}')
        if hp == 99: hu2()
        w.stamp()
        if cfg.get('ack'): w.wait_all_vm(); w.stamp()
        def later():
            w('v_mov_b32 v65, -1')
            w.vmem(f'buffer_store_dword v65, {aP}, {SRD}, {sPR} offen {st}')
            xat(99)
        lp = cfg.get('lpos', 1)
        if lp == 0: later()
        zero(w, 28, 28); zero(w, SACC, 12)
        w(f'v_xor_b32 {aXR}, 0x8000, {aXR}')
        if lp == 2: A('s_barrier')
        if lp >= 1: later()
        w.dump_stamps(lab)
        A(f's_mov_b32 {sSPIN}, {SPIN_MAX}')
        A(f's_mov_b32 {sSTEP}, {sS1}\ns_cmp_lt_u32 {sSTEP}, {NSEG-1}\ns_cbranch_scc1 {lab}_loop')
        cfg['finish'](w, lab)
        A('s_endpgm')
        l_retry(w, lab, TMP, tmo)
        if cfg.get('fastmax'):
            A(f'{lab}_tmax:')
            truemax()
            A(f'v_mov_b64 v[68:69], v[64:65]\ns_branch {lab}_smx')
        if cfg.get('rflag'):
            A(f'{lab}_rwait:\ns_sub_u32 {sSPIN}, {sSPIN}, 1\ns_cbranch_scc1 {tmo}\ns_branch {lab}_rread')

    emit_modes(A, cfg, lab, loop)

B_VX, B_V = 0, 98304
bVW, bWR, bVR, bMS, bSEL = 'v108', 'v107', 'v106', 'v105', 'v104'
bMX, bFL, bVL, bPOLL = 'v107', 'v106', 'v105', 'v104'
bTO, bINC, bFLAG = 'v99', 'v98', 'v97'
bDM = [f'v{89+k}' for k in range(7)]
BT = 100
FACC = 96
sVS, sVL, sMW, sMR, sMXO = 's25', 's26', 's27', 's28', 's29'

def bcol(j, c):
    return sel_lt(c, 16, j * 16 + c, j * 12 + c + 240)

def b_exprs_final(split=False):
    l = V('v0'); w = Sg(sW); j = Sg(sR)
    g = l >> 4; n = l & 15; c = w * 16 + n
    e = {}
    e[bWR] = B_VX + (g * 28 + c.min(27)) * 16
    e[bVR] = B_V + (g * 28 + c.min(27)) * 16
    if split: e[bVR] = B_V + sel_lt(w, 1, g * 16 + n, 256 + g * 12 + n.min(11)) * 16
    i = g * 2 + (n & 1); d0 = bcol(j, c & 30)
    k = d0 & 63
    off = (d0 >> 6) * 1024 + ((k >> 4) * 16 + (i >> 1) * 4 + ((k >> 1) & 1) * 2 + (i & 1)) * 16 + ((k >> 2) & 3) * 4
    e[bMS] = sel_lt(c, 28, off, OOB)
    e[bSEL] = sel_lt(n & 1, 1, 0x05040100, 0x03020706)
    return e
def check_b():
    e = b_exprs_final(); l = np.arange(64)
    for j in (0, 1, 5, 15):
        for w in range(2):
            p = ev(e[bMS], {'v0': l, sW: w, sR: j})
            for ln in range(64):
                c = 16 * w + (ln & 15)
                assert p[ln] == (ms_off(2 * (ln >> 4) + (ln & 1), (16 * j if c < 16 else 12 * j + 240) + (c & ~1)) if c < 28 else OOB)
check_b()

def gen_B(A, cfg, lab, tmo):
    w = Wv(A, cfg)
    em = Emitter(A, [f'v{i}' for i in list(range(2, 20)) + list(range(28, 56))])
    A(f's_add_u32 s39, {sR}, 1')
    fast = cfg.get('bfast', 2)
    common_consts(em, A, lab, '0' if fast else 's39', fast == 1)
    l = V('v0'); ww = Sg(sW); j = Sg(sR)
    split = cfg.get('bsplit', 1)
    em.emit(B_V + (ww * (64 if split else 112) + (l & 15)) * 16 + (l >> 4) * 4, bVW)
    for tl in range(7):
        if not split:
            f = ww * 112 + tl * 16 + (l & 15); hh = f.div(28)
            em.emit((hh * 56 + (l >> 4)) * 7168 + bcol(j, f - hh * 28) * 16, f'v{20+tl}')
        elif tl < 4:
            em.emit(((ww * 4 + tl) * 56 + (l >> 4)) * 7168 + (j * 16 + (l & 15)) * 16, f'v{20+tl}')
        else:
            f = (l & 15) + (tl - 4) * 16; hh = f.div(12)
            em.emit(((ww * 4 + hh) * 56 + (l >> 4)) * 7168 + (j * 12 + 256 + f - hh * 12) * 16, f'v{20+tl}')
    def addr(tl, t, b):
        return f'v{20+tl}', f's_mul_i32 s11, {sKK[t]}, 56\ns_add_u32 s11, s11, {BF + 28672*b}'
    def vw(tl, reg): w.ds(f'ds_write_b32 {bVW}, {reg} offset:{tl*256 if tl < 4 or not split else 4096 + (tl-4)*256}')
    def tail6(rest):
        for f in rest: f()
        w(f'v_add_f32 v{BT}, v{ACC[6]}, v{ACC[6]+2}\nv_add_f32 v{BT+1}, v{ACC[6]+1}, v{ACC[6]+3}')
        w(f'v_cvt_pk_bf16_f32 v{BT+2}, v{BT}, v{BT+1}')
        vw(6, f'v{BT+2}')
    rot = sR if cfg.get('prot', 1) else '0'
    for q in range(4): A(f's_add_u32 s{48+q}, {rot}, {q}\ns_and_b32 s{48+q}, s{48+q}, 3\ns_lshl_b32 s{48+q}, s{48+q}, 11')
    if cfg.get('pre_b'): cfg['pre_b']()
    for t in range(2):
        A(f's_lshl_b32 s11, {sW}, 1\ns_add_u32 s11, s11, {t}\ns_lshl_b32 s33, s11, 10\ns_add_u32 s33, s33, {MX}')
        A(f's_cmp_eq_u32 s11, {sR}\ns_cselect_b32 s{52+t}, s33, {OOB}\ns_cmp_eq_u32 s11, 7\ns_cselect_b32 s{52+t}, {OOB}, s{52+t}')
    def mx_first():
        for t in range(2):
            w.vmem(f'buffer_store_dwordx4 {vr(MREG[t],4)}, {vL16}, {SRD}, s{52+t} offen sc1')
            A(f's_add_u32 s{52+t}, s{52+t}, 7168')
    def local_vx(sfx):
        if not cfg.get('bvx'): return
        assert split
        e2 = Emitter(A, [f'v{i}' for i in range(28, 60)])
        g_ = l >> 4; n_ = l & 15
        e2.emit(B_VX + ((ww * 16 + g_) * 28 + n_) * 16, 'v4')
        for k in range(3):
            f = n_ + 16 * k; hh = f.div(12)
            e2.emit(B_VX + (((ww * 4 + hh) * 4 + g_) * 28 + 16 + f - hh * 12) * 16, f'v{5+k}')
        w2 = Wv(A, {})
        XR = lambda n, tt: 8 + ((n & 1) * 2 + tt) * 4
        AC = lambda tl, tt: 28 + (tl * 2 + tt) * 4
        steps = [(t, b) for t in range(7) for b in range(2)]
        A('s_mov_b32 s34, 0')
        A(f'{lab}_vx{sfx}:')
        def xl(n):
            t, b = steps[n]
            A(f's_lshl_b32 s11, {sKK[t]}, 1\ns_add_u32 s11, s11, s34\ns_add_u32 s11, s11, {XF + b*1024}\ns_add_u32 s33, s11, 14336')
            for tt in range(2): w2.vmem(f'buffer_load_dwordx4 {vr(XR(n,tt),4)}, {vL16}, {SRD}, {"s33" if tt else "s11"} offen', f'X{n}')
        xl(0); xl(1)
        for n, (t, b) in enumerate(steps):
            w2.wait(vm=f'X{n}')
            for tl in range(7):
                for tt in range(2):
                    A(f'v_mfma_f32_16x16x32_bf16 {vr(AC(tl,tt),4)}, {vr(XR(n,tt),4)}, {wquad(tl*7+t, b)}, {0 if n == 0 else vr(AC(tl,tt),4)}')
            if n + 2 < 14: xl(n + 2)
        for tl in range(7):
            o = 8 + 4 * (tl & 1)
            for tt in range(2):
                a = AC(tl, tt)
                A(f'v_cvt_pk_bf16_f32 v{o+2*tt}, v{a}, v{a+1}\nv_cvt_pk_bf16_f32 v{o+2*tt+1}, v{a+2}, v{a+3}')
            A(f'ds_write_b128 v{4 if tl < 4 else 1+tl}, {vr(o,4)} offset:{tl*1792 if tl < 4 else 0}')
        for r in range(4, 8): A(f'v_add_u32 v{r}, 0x8000, v{r}')
        A(f's_add_u32 s34, s34, 28672\ns_cmp_lt_u32 s34, {2*28672}\ns_cbranch_scc1 {lab}_vx{sfx}\ns_waitcnt lgkmcnt(0)')
    A(f's_cmp_ge_u32 {sW}, 2\ns_cbranch_scc1 {lab}_loader')
    for k, x in b_exprs_final(split).items(): em.emit(x, k)
    A(f's_lshl_b32 s54, {sR}, 2\ns_add_u32 s54, s54, {HU1}')
    bWB = vHUs if cfg.get('bpoll') else None
    assert bWB, 'the flag variant has no register left for three slots'
    A(f'v_mov_b32 {bWB}, {bWR}\ns_mov_b32 s47, 0')
    em.emit(HU2 + (l & (63 if cfg.get('huall') else 15)) * 4, vHUp)
    load_weights(w, addr, between=(lambda k: cfg['mid_b'](lab + 'f', k)) if cfg.get('mid_b') else None)
    local_vx('f')
    zero(w, 28, 28)
    A(f's_mov_b32 {sSTEP}, 0\ns_mov_b32 {sSPIN}, {SPIN_MAX}\ns_mov_b32 {sRETRY}, 0')
    cfg['start_sync'](w, lab + 'f')
    A('s_waitcnt vmcnt(0) lgkmcnt(0)')
    def loopf(lf, st, second):
        nonlocal w
        w = Wv(A, cfg)
        PREG = [4 * m for m in range(10)]
        one = cfg.get('onebar', 1)
        if one:
            order = list(range(10))
            WREG = {0: 56, 1: 64, 2: 72, 3: 80, 4: 88, 5: 40, 6: 48, 7: 56, 8: 64, 9: 72}
        else:
            order = [0, 1, 2, 3, 4, 8, 9, 5, 6, 7]
            WREG = {0: 56, 1: 64, 2: 72, 3: 80, 4: 88, 8: 40, 9: 48, 5: 56, 6: 64, 7: 72}
        sPO = ['s22', 's23', 's24', 's45', 's46']
        def wx(m, b):
            if m < 8: w.ds(f'ds_read_b128 {vr(WREG[m]+4*b,4)}, {bWR} offset:{(2*m+b)*1792}', f'W{m}')
            else: w.ds(f'ds_read_b128 {vr(WREG[m]+4*b,4)}, {bVR} offset:{(2*(m-8)+b)*(1024 if split else 1792)}', f'W{m}')
        def mfirst():
            for t in range(2): A(f'buffer_load_dwordx4 {vr(MREG[t],4)}, {vL16}, {SRD}, {sMO[t]} offen sc1')
        if fast:
            step_consts(A)
            A('s_barrier'); mfirst()
        A(f'{lf}_loop:')
        if fast: A(f's_and_b32 s11, {sSTEP}, 3\ns_add_u32 {sS1}, {sSTEP}, 1')
        else: step_consts(A)
        A(f's_lshl_b32 s11, s11, 14\ns_add_u32 s11, s11, {PS}\ns_add_u32 s46, s11, 8192')
        for q in range(4): A(f's_add_u32 {sPO[q]}, s11, s{48+q}')
        A(f's_and_b32 s11, {sS1}, 3\ns_lshl_b32 s11, s11, 13\ns_add_u32 {sMW}, s11, {MS}\ns_xor_b32 {sMR}, {sMW}, 0x4000')
        A(f'v_mov_b32 v{BT+3}, {sS1}\nv_mov_b64 {vr(FACC,2)}, 0\nv_mov_b64 {vr(FACC+2,2)}, 0')
        if cfg.get('bpoll') and not fast:
            for r in range(MREG[0], MREG[0] + 8, 2): A(f'v_mov_b64 {vr(r,2)}, -1')
        w.stamp()
        if not fast: A('s_barrier')
        w.stamp()
        def fillf(f0):
            d = {}
            for m in range(5):
                for b in range(2): d.setdefault(f0 + 2 * m + b, []).append(lambda m=m, b=b: wx(m, b))
            if cfg.get('bquick'):
                d.setdefault(46, []).append(lambda: wx(5, 0)); d.setdefault(47, []).append(lambda: wx(5, 1))
            return d, {}
        tail6(weight_stream(w, fillf, vw, lf, BT, tmo, cfg.get('bpoll'), mx_first if cfg.get('mxfirst') else None))
        for _ in range(cfg.get('vpad', 0)): A('s_nop 15')
        w.stamp()
        if one:
            quick = cfg.get('bquick')
            for m in ((6,) if quick else (5, 6)): wx(m, 0); wx(m, 1)
            if fast:
                for t in range(2): A(f's_add_u32 {sMO[t]}, {sMW}, {sKK[t]}')
            if second or not quick: w.wait_all_lg()
            w.stamp()
            if second: A('s_barrier')
            else: poll(w, f'{lf}_poll2', f'v{BT+2}', sS1, tmo, 64 if cfg.get('huall') else 16)
        else:
            w.wait_all_lg()
            A('s_barrier')
            A(f's_cmp_eq_u32 {sSTEP}, {NSEG-1}\ns_cbranch_scc1 {lf}_done')
            for m in (8, 9): wx(m, 0); wx(m, 1)
            w.stamp()
            if cfg.get('b0poll'):
                if second: A('s_barrier')
                else: poll(w, f'{lf}_poll2', f'v{BT+2}', sS1, tmo, 16)
            else:
                A('s_barrier')
                if second: A('s_barrier')
        w.stamp()
        def ploads():
            for k, m in enumerate(order):
                w.vmem(f'buffer_load_dwordx4 {vr(PREG[k],4)}, {vL16}, {SRD}, {sPO[m>>1]} offen offset:{(m&1)*1024} sc1', f'P{k}')
        def hum_store():
            if cfg.get('hum') and not second:
                A('s_mov_b64 exec, 1'); w.vmem(f'buffer_store_dword v{BT+3}, off, {SRD}, s54 {st}'); A('s_mov_b64 exec, -1')
        if cfg.get('hu1k') == -2: hum_store()
        ploads()
        if cfg.get('hu1k') == -1: hum_store()
        if not second:
            if cfg.get('bquick'): w.wait_all_lg()
            A('s_barrier')
        if fast and second: A('s_cmp_eq_u32 0, 1')
        A(f'{lf}_pchain:')
        for _ in range(cfg.get('bpad', 0)): A('s_nop 15')
        for k, m in enumerate(order):
            w.wait(vm=f'P{k}', lg=f'W{m}')
            if k == 0: w.stamp()
            w(smf(FACC, vr(PREG[k], 4), vr(WREG[m], 8), vIDX))
            if k < 3: wx((7 if one else 5) + k, 0); wx((7 if one else 5) + k, 1)
            if k == cfg.get('hu1k', 7): hum_store()
            if fast and second and k == cfg.get('kb', 4 if fast == 1 else 99):
                w.wait_all_lg(); A(f's_cbranch_scc1 {lf}_nob\ns_barrier\n{lf}_nob:')
        w(f'v_add_f32 v{BT}, v{FACC}, v{FACC+2}\nv_add_f32 v{BT+1}, v{FACC+1}, v{FACC+3}')
        if cfg.get('bcmp', 1):
            w(f'v_cvt_pk_bf16_f32 v{FACC}, v{BT}, v{BT+1}')
            w(f'v_cmp_u_f32 vcc, v{BT}, v{BT+1}')
            w(f'v_mov_b32_dpp v{BT+1}, v{FACC} quad_perm:[1,0,3,2] row_mask:0xf bank_mask:0xf')
            w(f'v_perm_b32 v{BT}, v{BT+1}, v{FACC}, {bSEL}')
        else:
            w(f'v_cmp_u_f32 vcc, v{BT}, v{BT+1}')
            w(f'v_cvt_pk_bf16_f32 v{BT}, v{BT}, v{BT+1}')
            w(f'v_mov_b32_dpp v{BT+1}, v{BT} quad_perm:[1,0,3,2] row_mask:0xf bank_mask:0xf')
            w(f'v_perm_b32 v{BT}, v{BT+1}, v{BT}, {bSEL}')
        w(f'v_min_u32 v{BT}, -2, v{BT}')
        w(f's_cbranch_vccnz {lf}_pretry\n{lf}_pok:')
        w.vmem(f'buffer_store_dword v{BT}, {bMS}, {SRD}, {sMW} offen {st}')
        if fast:
            if not second or cfg.get('kb', 4 if fast == 1 else 99) == 99: A('s_barrier')
            mfirst()
        if cfg.get('lastmx', 1):
            A(f's_cmp_eq_u32 {sSTEP}, {NSEG-2}\ns_cbranch_scc1 {lf}_last')
        w.stamp()
        if cfg.get('ack'): w.wait_all_vm(); w.stamp()
        w(f'v_mov_b32 v{BT+1}, -1')
        w.vmem(f'buffer_store_dword v{BT+1}, {bMS}, {SRD}, {sMR} offen {st}')
        if not cfg.get('bpoll'): w.vmem(f'buffer_store_dword v{BT+3}, {vHUs}, {SRD}, 0 offen {st}')
        zero(w, 28, 28)
        w(f's_add_u32 s47, s47, 0x8000\ns_cmp_eq_u32 s47, 0x18000\ns_cselect_b32 s47, 0, s47\nv_add_u32 {bWR}, s47, {bWB}')
        w.dump_stamps(lf)
        A(f's_mov_b32 {sSPIN}, {SPIN_MAX}\ns_mov_b32 {sSTEP}, {sS1}\ns_branch {lf}_loop')
        if cfg.get('lastmx', 1):
            A(f'{lf}_last:\ns_mov_b32 s11, {MX + (NSEG-1)*7168}\nbuffer_store_dword v{BT}, {bMS}, {SRD}, s11 offen sc1')
        A(f'{lf}_done:')
        cfg['finish'](w, lf)
        A('s_endpgm')
        m_retry(w, lf, tmo)
        A(f'{lf}_pretry:\ns_waitcnt vmcnt(0) lgkmcnt(0)')
        sentinel_check(w, list(range(0, 40)), f'v{BT+2}')
        A(f's_cbranch_vccz {lf}_pok')
        A(f's_add_u32 {sRETRY}, {sRETRY}, 0x10000\ns_sub_u32 {sSPIN}, {sSPIN}, 8\ns_cbranch_scc1 {tmo}')
        for m in range(3): wx(m, 0); wx(m, 1)
        A(f'v_mov_b64 {vr(FACC,2)}, 0\nv_mov_b64 {vr(FACC+2,2)}, 0\ns_waitcnt lgkmcnt(0)')
        ploads()
        A(f's_cmp_eq_u32 0, 0\ns_branch {lf}_pchain')
    A(f's_cmp_eq_u32 {sW}, 1\ns_cbranch_scc1 {lab}_second')
    emit_modes(A, cfg, lab + 'f', lambda lf, st: loopf(lf, st, False))
    A(f'{lab}_second:')
    emit_modes(A, cfg, lab + 'g', lambda lf, st: loopf(lf, st, True))
    ll = lab + 'l'
    A(f'{lab}_loader:')
    w = Wv(A, cfg)
    lin = cfg.get('vxlin')
    for r in range(7):
        if lin:
            em.emit(j * 28672 + l * 16 + (4096 + (r & 4) * 1024), bDM[r]); continue
        f = l + 64 * r; hg = f.div(28)
        em.emit(hg * 7168 + bcol(j, f - hg * 28) * 16 + (4096 - (r & 3) * 1024), bDM[r])
    em.emit(sel_lt(ww, 3, HU1 + 128 + (l & 31) * 4, HU2 + (l & 15) * 4), vHUp)
    em.emit(sel_lt(l + (3 - ww) * 64, 1, HU1 + j * 4, OOB), vHUs)
    em.emit(sel_lt(j + (3 - ww) * 16, 7, j * 1024 + l * 16, OOB), bMX)
    em.emit(L_K + (j & 7) * 1024 + l * 16, 'v88')
    xl = (j * 2 + ww - 2) * 7 + l
    em.emit(sel_lt(l, 7, XF + 2 * 28672 + xl * 128, sel_lt(l, 63, OOB, FVX + 2 * 128)), bTO)
    em.emit(sel_lt(l, 63, 28672, 128), bINC)
    A(f'v_mov_b32 {bFLAG}, 16')
    A(f's_sub_u32 s11, {sW}, 2\ns_mul_i32 s23, s11, 14336\ns_cmp_eq_u32 s11, 0\ns_cselect_b32 s24, s48, s50\ns_cselect_b32 s45, s49, s51')
    if lin: A(f's_mul_i32 s24, s24, 7\ns_lshr_b32 s24, s24, 1\ns_add_u32 s24, s24, {VXF - 4096}\ns_mul_i32 s45, s45, 7\ns_lshr_b32 s45, s45, 1\ns_add_u32 s45, s45, {VXF - 4096}')
    else: A(f's_mul_i32 s24, s24, 56\ns_add_u32 s24, s24, {VXF - 4096}\ns_mul_i32 s45, s45, 56\ns_add_u32 s45, s45, {VXF - 4096}')
    def vx_m0(k):
        if k % 7 in (0, 4): w(f's_add_u32 m0, {sVL}, {k*1024}')
    def vx_dma(k):
        w.vmem(f'buffer_load_dwordx4 {bDM[k%7]}, {SRD}, {sVS if k < 7 else "s44"} offen offset:{((k%7)&3)*1024} {cfg.get("vxfl", "")} lds', 'D')
    load_weights(w, addr, between=(lambda k: cfg['mid_b'](ll, k)) if cfg.get('mid_b') else None)
    local_vx('l')
    zero(w, 28, 28)
    A(f's_mov_b32 {sSTEP}, 0\ns_mov_b32 {sSPIN}, {SPIN_MAX}\ns_mov_b32 {sRETRY}, 0')
    cfg['start_sync'](w, ll)
    A(f's_mov_b32 {sVS}, s24\ns_mov_b32 s44, s45\ns_mov_b32 {sVL}, s23\ns_mov_b32 s47, 0')
    if not cfg.get('bvx'):
        for k in range(14): vx_m0(k); vx_dma(k)
    nl = cfg.get('nlate', 0)
    def late_part():
        k0 = 14 - nl
        for k in range(k0, 14):
            if k == k0 and k % 7 not in (0, 4): w(f's_add_u32 m0, {sVL}, {(k - (k % 7) % 4)*1024}')
            vx_m0(k); vx_dma(k)
    if nl:
        A(f's_add_u32 {sVS}, s24, {VX_SEG}\ns_add_u32 s44, s45, {VX_SEG}\ns_add_u32 {sVL}, s23, 0x8000')
        late_part()
    def loopl(ll, st):
        nonlocal w
        w = Wv(A, cfg)
        A(f'{ll}_loop:')
        step_consts(A)
        A(f's_min_u32 s11, {sS1}, {0 if cfg.get("vxsame") else NSEG-1}\ns_mul_i32 s11, s11, {VX_SEG}\ns_add_u32 {sVS}, s11, s24\ns_add_u32 s44, s11, s45')
        A(f's_add_u32 s47, s47, 0x8000\ns_cmp_eq_u32 s47, 0x18000\ns_cselect_b32 s47, 0, s47\ns_add_u32 {sVL}, s47, s23')
        if cfg.get('bvx'):
            A(f's_cmp_eq_u32 {sSTEP}, 0\ns_cselect_b32 s11, 0x8000, 0\ns_add_u32 {sVL}, {sVL}, s11')
        A(f's_mul_i32 {sMXO}, {sSTEP}, 7168\ns_add_u32 {sMXO}, {sMXO}, {MX}')
        if cfg.get('bpoll'):
            for r in range(MREG[0], MREG[0] + 8, 2): A(f'v_mov_b64 {vr(r,2)}, -1')
        if nl: A(f's_waitcnt vmcnt({nl})')
        else:
            A('s_waitcnt vmcnt(0)')
            A(f's_cmp_ge_u32 {sSTEP}, {NSEG-1}\ns_cbranch_scc1 {ll}_fok')
            A(f'{ll}_fchk:\nv_readlane_b32 s11, {bFLAG}, 63\ns_nop 0\ns_cmp_ge_u32 s11, 16\ns_cbranch_scc1 {ll}_fok')
            A(f's_lshl_b32 s11, {sS1}, 7\ns_add_u32 s11, s11, {FVX}')
            A(f'buffer_load_dword {bFLAG}, off, {SRD}, s11 sc1')
            A(f's_sub_u32 {sSPIN}, {sSPIN}, 1\ns_cbranch_scc1 {tmo}\ns_waitcnt vmcnt(0)\ns_branch {ll}_fchk\n{ll}_fok:')
        w.stamp()
        if not cfg.get('bpoll'):
            A(f's_cmp_lg_u32 {sW}, 2\ns_cbranch_scc1 {ll}_nopoll')
            poll(w, f'{ll}_poll1', bPOLL, sSTEP, tmo, 32)
            A(f'{ll}_nopoll:')
        A('s_barrier')
        w.stamp()
        d0 = cfg.get('dslot', 2); dstep = cfg.get('dstep', 2); ne = cfg.get('dearly', 0)
        def early():
            if cfg.get('mxfirst'): mx_first()
            if cfg.get('tfirst'): w.vmem(f'buffer_load_dword {bFLAG}, {bTO}, {SRD}, 0 offen sc1', 'D')
            for k in range(ne): vx_m0(k); vx_dma(k)
        def filll(f0):
            d = {}
            add = lambda n, f: d.setdefault(n, []).append(f)
            for k in range(ne, 14 - nl):
                add(d0 + dstep * (k - ne) - 1, lambda k=k: vx_m0(k))
                add(d0 + dstep * (k - ne), lambda k=k: vx_dma(k))
            if not cfg.get('tfirst'): add(d0 + dstep * (14 - nl - ne), lambda: w.vmem(f'buffer_load_dword {bFLAG}, {bTO}, {SRD}, 0 offen sc1', 'D'))
            if cfg.get('mxfirst'): pass
            elif fast and not cfg.get('nomx'):
                add(f0, lambda: w.ds('ds_read_b128 v[56:59], v88', 'MX'))
                add(f0 + 5, lambda: (w.wait(lg='MX'), w.vmem(f'buffer_store_dwordx4 v[56:59], {bMX}, {SRD}, {sMXO} offen sc1')))
            elif not cfg.get('nomx'):
                add(max(f0 - 4, cfg.get('vslot', 0)), lambda: w.vmem(f'buffer_store_dwordx4 {vr(MREG[0],4)}, {bMX}, {SRD}, {sMXO} offen {cfg.get("mxfl", "sc1")}'))
            return d, {}
        tail6(weight_stream(w, filll, vw, ll, BT, tmo, cfg.get('bpoll'), early))
        w.stamp()
        w.wait_all_lg()
        if not cfg.get('onebar', 1):
            A('s_barrier')
            A(f's_cmp_eq_u32 {sSTEP}, {NSEG-1}\ns_cbranch_scc1 {ll}_done')
        zero(w, 28, 28)
        A(f'v_mov_b32 v{BT+3}, {sS1}')
        if not cfg.get('xsame'): A(f'v_add_u32 {bTO}, {bTO}, {bINC}')
        w.stamp()
        if cfg.get('drain'):
            w.wait(vm='D'); w.stamp(); w.wait_all_vm(); w.stamp()
        hu1 = f'buffer_store_dword v{BT+3}, {vHUs}, {SRD}, 0 offen {st}'
        if cfg.get('b0poll') or cfg.get('onebar', 1):
            A('s_barrier')
            if cfg.get('gate', 'w0') != 'none' and not cfg.get('hum'): A(hu1)
        else:
            A(f's_cmp_lg_u32 {sW}, 3\ns_cbranch_scc1 {ll}_nopoll2')
            poll(w, f'{ll}_poll2', bPOLL, sS1, tmo, 16)
            A(f'{ll}_nopoll2:\ns_barrier')
            if cfg.get('hu1pos', 0) == 0: A(hu1)
            A('s_barrier')
            if cfg.get('hu1pos', 0) == 1: A(hu1)
        if cfg.get('lastmx', 1): A(f's_cmp_eq_u32 {sSTEP}, {NSEG-2}\ns_cbranch_scc1 {ll}_done')
        if nl:
            A('s_waitcnt vmcnt(0)')
            A(f'{ll}_fchk:\nv_readlane_b32 s11, {bFLAG}, 63\ns_nop 0\ns_cmp_ge_u32 s11, 16\ns_cbranch_scc1 {ll}_fok')
            A(f's_lshl_b32 s11, {sSTEP}, 7\ns_add_u32 s11, s11, {FVX + 256}')
            A(f'buffer_load_dword {bFLAG}, off, {SRD}, s11 sc1')
            A(f's_sub_u32 {sSPIN}, {sSPIN}, 1\ns_cbranch_scc1 {tmo}\ns_waitcnt vmcnt(0)\ns_branch {ll}_fchk\n{ll}_fok:')
            for _ in range(cfg.get('ldelay', 0)): A('s_nop 15')
            A(f's_add_u32 s11, {sSTEP}, 2\ns_mul_i32 s11, s11, {0 if cfg.get("vxsame") else VX_SEG}\ns_add_u32 {sVS}, s11, s24\ns_add_u32 s44, s11, s45')
            A(f's_add_u32 s11, s47, 0x8000\ns_cmp_eq_u32 s11, 0x18000\ns_cselect_b32 s11, 0, s11\ns_add_u32 {sVL}, s11, s23')
            late_part()
        w.dump_stamps(ll)
        A(f's_mov_b32 {sSPIN}, {SPIN_MAX}\ns_mov_b32 {sSTEP}, {sS1}\ns_branch {ll}_loop\n{ll}_done:')
        cfg['finish'](w, ll)
        A('s_endpgm')
        m_retry(w, ll, tmo)
    emit_modes(A, cfg, ll, loopl)
```

```python
from asmdsl import Asm
from layout import *
import rec, workers, prep, build

BEST = dict(xpos=[11, 15, 20, 25, 99, 99, 99, 99], hu2pos=6, ew=128, ne=1, ebar=3, gate='none', dstep=1, dslot=1, bpoll=1, prot=0, tw2=0, ttid=1, nomask=1,
            bdepth=2, dearly=2, aA=[6, 0], apoll=[6, 0], lbar=22, rtid=1, lslot=5, midn=90)
WBEST = dict(deferq=0, defert=0, locala=0, diemap=[5, 6, 7, 0, 1, 2, 3, 4], tonq=1, pretouch=0)

def counts(A, lab, tmo, sd='s[48:51]'):
    A(f's_mov_b32 s19, 0x40000\n{lab}:')
    A(f'buffer_load_dword v3, v4, {sd}, 0 offen sc1')
    A(f's_sub_u32 s19, s19, 1\ns_cbranch_scc1 {tmo}\ns_waitcnt vmcnt(0)')
    A('v_readlane_b32 s47, v3, 0\ns_mov_b32 s46, s47')
    for x in range(1, 8): A(f'v_readlane_b32 s11, v3, {x}\ns_add_u32 s46, s46, s11')

def gen_main(A, cfg):
    cfg = dict(WBEST, **cfg)
    workers.LASTD[0] = cfg.get('lastpoll', 1)
    workers.ONE[0] = cfg.get('one', 0)
    workers.PREV[0] = cfg.get('prev', 0)
    workers.BACK[0] = f's_sleep {cfg["back"]}\n' if cfg.get('back') else ''
    A(f"""M_start:
    s_cmp_ge_u32 s2, 256
    s_cbranch_scc1 M_exit0
    s_load_dwordx4 s[28:31], s[0:1], 0
    s_load_dwordx8 s[36:43], s[0:1], 16
    s_load_dwordx2 s[4:5], s[0:1], 112
    s_load_dwordx2 s[48:49], s[0:1], 104
    s_getreg_b32 s54, hwreg(HW_REG_XCC_ID, 0, 3)
    v_lshrrev_b32 v1, 6, v0
    v_readfirstlane_b32 s9, v1
    v_and_b32 v0, 63, v0
    s_waitcnt lgkmcnt(0)
    s_add_u32 s4, s4, {cfg.get('wsoff', 0)}
    s_addc_u32 s5, s5, 0
    s_mov_b32 s6, {WS_BYTES - cfg.get('wsoff', 0)}
    s_mov_b32 s7, 0x20000
    s_mov_b32 s50, 256
    s_mov_b32 s51, 0x20000""")
    if cfg.get('fakexcc'): A(cfg['fakexcc'])
    dm = cfg.get('diemap')
    if dm:
        assert sorted(dm) == list(range(8))
        A(f's_lshl_b32 s54, s54, 2\ns_lshr_b32 s54, {hex(sum(v << (4*i) for i, v in enumerate(dm)))}, s54\ns_and_b32 s54, s54, 7')
    if cfg.get('ds'):
        A('s_mov_b32 s3, s2'); rec.dstamp(A, cfg, 9, 0, 3)
    A("""s_mov_b32 s12, s54
    v_mov_b32 v2, 0x27c00
    s_cmp_lg_u32 s9, 0
    s_cbranch_scc1 M_noat
    v_mov_b32 v249, 1
    s_lshl_b32 s11, s12, 5
    s_mov_b64 exec, 1
    buffer_atomic_add v249, off, s[48:51], s11 sc0 sc1
    s_mov_b64 exec, -1
M_noat:""")
    nt = 0
    if cfg.get('codetouch', 1):
        A('s_getpc_b64 s[20:21]\nM_pc:\ns_sub_u32 s20, s20, M_pc-M_start\ns_subb_u32 s21, s21, 0\ns_mov_b32 s22, M_end-M_start\ns_mov_b32 s23, 0x20000')
        A('s_lshr_b32 s11, s2, 3\ns_lshl_b32 s11, s11, 2\ns_add_u32 s11, s11, s9\ns_lshl_b32 s11, s11, 10\nv_lshlrev_b32 v5, 4, v0')
        A('buffer_load_dword v251, v5, s[20:23], s11 offen'); nt += 1
    if cfg.get('tlbtouch'):
        k = cfg['tlbtouch']
        A(f's_lshl_b32 s11, s9, {k+6}\nv_lshlrev_b32 v5, {k}, v0\nbuffer_load_dword v250, v5, s[4:7], s11 offen'); nt += 1
    if cfg.get('pretouch', 1):
        A(f's_lshl_b32 s11, s2, 2\ns_add_u32 s11, s11, s9\ns_mul_i32 s11, s11, 3584\nv_lshlrev_b32 v5, 7, v0\nv_mov_b32 v6, {OOB}')
        A('v_cmp_gt_u32 vcc, 28, v0\nv_cndmask_b32 v5, v6, v5, vcc')
        for k, p in enumerate(cfg.get('order', (40, 42))):
            prep.srd(A, 20, p, prep.W_BYTES)
            A(f'buffer_load_dword v{252+k}, v5, s[20:23], s11 offen'); nt += 1
    A(f"""s_cmp_lg_u32 s9, 0
    s_cbranch_scc1 M_ranked
    {'s_lshr_b32 s3, s2, 3' if cfg.get('fakerank') else f's_waitcnt vmcnt({nt})'}
    {'' if cfg.get('fakerank') else 'v_readfirstlane_b32 s3, v249'}
    v_and_b32 v4, 7, v0
    v_lshlrev_b32 v4, 5, v4
    s_lshl_b32 s11, s12, 5
    s_cmp_lt_u32 s3, 32
    s_cselect_b32 s15, 0, 1
    s_add_u32 s3, s3, s11
    s_cmp_eq_u32 s15, 0
    s_cbranch_scc1 M_have""")
    A("""v_mov_b32 v3, 1
    s_mov_b64 exec, 1
    buffer_atomic_add v3, off, s[48:51], 0 offset:4 sc0 sc1
    s_waitcnt vmcnt(0)
    s_mov_b64 exec, -1
    v_readfirstlane_b32 s15, v3""")
    counts(A, 'M_ovf', 'M_exit0')
    A('s_cmp_lt_u32 s46, 256\ns_cbranch_scc1 M_ovf_again\ns_mov_b32 s3, 0')
    for x in range(8):
        A(f'v_readlane_b32 s11, v3, {x}\ns_min_u32 s11, s11, 32\ns_sub_u32 s16, 32, s11')
        A(f's_cmp_lt_u32 s15, s16\ns_cbranch_scc0 M_nx{x}\ns_add_u32 s3, s11, s15\ns_add_u32 s3, s3, {32*x}\ns_branch M_have\nM_nx{x}:\ns_sub_u32 s15, s15, s16')
    A('M_exit0:\ns_endpgm\nM_ovf_again:')
    A('s_branch M_ovf')
    A("""M_have:
    v_mov_b32 v7, s3
    ds_write_b32 v2, v7
    s_waitcnt lgkmcnt(0)
M_ranked:
    s_barrier
    ds_read_b32 v7, v2
    s_waitcnt lgkmcnt(0)
    v_readfirstlane_b32 s3, v7""")
    rec.tline(A, dict(cfg, tlreg=3), 0)
    rec.dstamp(A, cfg, 3, 0, 3)
    A('s_barrier\ns_cmp_lt_u32 s3, 32\ns_cbranch_scc1 M_rec\ns_sub_u32 s10, s3, 32')
    prep.gen_gemm(A, cfg, 'M_exit0')
    A(f"""s_sub_u32 s11, s3, 32
    s_and_b32 s10, s11, 63
    s_lshr_b32 s11, s11, 6
    s_cmp_eq_u32 s11, 2
    s_cbranch_scc1 M_F
    s_cmp_eq_u32 s11, 3
    s_cbranch_scc1 {'M_exit' if cfg.get('tonq') else 'M_T'}""")
    if cfg.get('mixvq'):
        A('s_sub_u32 s10, s3, 32\ns_and_b32 s11, s10, 1\ns_lshr_b32 s10, s10, 1')
    if cfg.get('tonq'):
        A(f's_cmp_lg_u32 s11, {cfg["tonq"]}\ns_cbranch_scc1 M_noT\ns_cmp_lt_u32 s10, 32\ns_cbranch_scc1 M_T\nM_noT:')
    A(f"""s_and_b32 s12, s10, 3
    s_lshr_b32 s10, s10, 2
    s_cmp_eq_u32 s11, 1
    s_cbranch_scc1 M_Q""")
    workers.gen_V(A, cfg, 'WV', 'M_exit')
    A('M_Q:'); workers.gen_Q(A, cfg, 'WQ', 'M_exit')
    A('M_T:'); workers.gen_T(A, cfg, 'WT', 'M_exit', f's_barrier\ns_mov_b32 s11, {cfg["tonq"]}\ns_branch M_noT' if cfg.get('tonq') else 's_endpgm')
    A('M_F:'); workers.gen_F(A, cfg, 'WF', 'M_exit')
    A('M_exit:\ns_endpgm')
    def mode(lab):
        A(f'v_mov_b32 v2, 0x27c00\ns_cmp_lg_u32 s9, 0\ns_cbranch_scc1 {lab}_ss')
        A('v_and_b32 v4, 7, v0\nv_lshlrev_b32 v4, 5, v4')
        counts(A, f'{lab}_cnt', 'R_exit')
        A(f's_mov_b32 s30, 0\ns_cmp_ge_u32 s47, 32\ns_cbranch_scc1 {lab}_md\ns_mov_b32 s30, 1\ns_cmp_ge_u32 s46, 256\ns_cbranch_scc1 {lab}_md')
        A(f's_branch {lab}_cnt\n{lab}_md:')
        A(f'v_mov_b32 v3, s30\nds_write_b32 v2, v3\ns_waitcnt lgkmcnt(0)\n{lab}_ss:\ns_barrier')
        A(f'ds_read_b32 v3, v2\ns_waitcnt lgkmcnt(0)\nv_readfirstlane_b32 s30, v3')
    def help_a(lab):
        nt_ = cfg.get('helpa', 0)
        if not nt_: return
        A(f's_lshl_b32 s11, s10, 7\ns_add_u32 s11, s11, {FA}\ns_mov_b32 s19, 0x40000')
        A(f'{lab}_ha:\nbuffer_load_dword v3, off, s[4:7], s11 sc1\ns_sub_u32 s19, s19, 1\ns_cbranch_scc1 R_exit')
        A(f's_waitcnt vmcnt(0)\nv_cmp_gt_u32 vcc, 14, v3\ns_cbranch_vccnz {lab}_ha')
        A(f's_mul_i32 s33, s10, {28*14336}\ns_add_u32 s33, s33, {AF}\ns_lshr_b32 s11, s9, 1\ns_mul_i32 s11, s11, {14*14336}\ns_add_u32 s33, s33, s11')
        A(f'v_lshlrev_b32 v4, 7, v0\nv_min_u32 v5, 47, v0\nv_lshlrev_b32 v5, 7, v5\ns_and_b32 s34, s9, 1')
        for k, (t0_, t1_) in enumerate(((6, 7), (5, 13), (4, 12), (3, 11))[:nt_]):
            A(f's_mul_i32 s11, s34, {(t1_-t0_)*14336}\ns_add_u32 s11, s11, s33\ns_add_u32 s11, s11, {t0_*14336}')
            A(f'buffer_load_dword v102, v4, s[4:7], s11 offen\ns_add_u32 s11, s11, 8192\nbuffer_load_dword v102, v5, s[4:7], s11 offen')
    def start_sync(w, lab):
        if lab != 'RA': help_a(lab)
        if cfg.get('tl'): A('s_waitcnt vmcnt(0)')
        rec.tline(A, dict(cfg, tlreg=3), 1)
        if lab.endswith('l') and cfg.get('bvx'): pass
        elif lab.endswith('l'):
            A(f'v_min_u32 v4, 1, v0\nv_lshlrev_b32 v4, 7, v4\ns_mov_b32 s11, {FVX}\ns_mov_b32 s19, 0x40000')
            A(f'{lab}_fv:\nbuffer_load_dword v3, v4, s[4:7], s11 offen sc1\ns_sub_u32 s19, s19, 1\ns_cbranch_scc1 R_exit')
            A(f's_waitcnt vmcnt(0)\nv_cmp_gt_u32 vcc, 16, v3\ns_cbranch_vccnz {lab}_fv')
            if cfg.get('tl'):
                A('s_sub_u32 s9, s9, 2'); rec.tline(A, dict(cfg, tlreg=3), 3); A('s_add_u32 s9, s9, 2')
        elif cfg.get('warm', 1) and lab == 'RA':
            A(f's_lshl_b32 s11, s3, 2\ns_add_u32 s11, s11, s9\ns_lshl_b32 s11, s11, 11\ns_add_u32 s11, s11, {MS}\nv_lshlrev_b32 v4, 5, v0')
            A('buffer_load_dword v3, v4, s[4:7], s11 offen sc1')
            if cfg.get('warmx', 1):
                A(f's_sub_u32 s11, s11, {MS}\ns_lshr_b32 s11, s11, 2\ns_add_u32 s11, s11, {XF + 28672}\nv_lshlrev_b32 v4, 3, v0\nbuffer_load_dword v3, v4, s[4:7], s11 offen sc1')
        A(f's_mov_b32 s19, {rec.SPIN_MAX}')
        rec.tline(A, dict(cfg, tlreg=3), 2)
        rec.dstamp(A, cfg, 4, 0, 3); rec.dstamp(A, cfg, 5, 31, 3)
    c = dict(BEST); c.update(cfg)
    c.setdefault('start_sync', start_sync); c.setdefault('finish', lambda w, lab: (rec.tline(A, dict(cfg, tlreg=3, tlclk=1), 4), rec.dstamp(A, cfg, 6, 0, 3), rec.dretry(A, cfg)))
    def loop_top(w, lab):
        if cfg.get('ds'):
            A(f's_cmp_lg_u32 s8, 2\ns_cbranch_scc1 {lab}_ds2'); rec.dstamp(A, cfg, 12, 0, 3); A(f'{lab}_ds2:')
        if cfg.get('tl'):
            for k, st in zip((3, 5, 6), cfg.get('tlsteps', (1, 16, 32))):
                A(f's_cmp_lg_u32 s8, {st}\ns_cbranch_scc1 {lab}_lt{k}'); rec.tline(A, dict(cfg, tlreg=3, tlclk=1), k); A(f'{lab}_lt{k}:')
    c.setdefault('loop_top', loop_top)
    if cfg.get('locala') and not cfg.get('fakeloc'):
        A('M_rec:\ns_and_b32 s10, s3, 15\ns_cmp_ge_u32 s3, 16\ns_cbranch_scc1 M_misc')
        prep.local_A(A, cfg)
        A('s_cmp_lg_u32 s9, 0\ns_cbranch_scc1 M_prep')
        prep.zero_ready(A, 'M_zr', 'R_exit')
        A('s_branch M_prep\nM_misc:')
    elif cfg.get('amisc'):
        A('M_rec:\ns_and_b32 s10, s3, 15\ns_cmp_lt_u32 s3, 16\ns_cbranch_scc1 M_misc')
        A('s_cmp_lg_u32 s9, 0\ns_cbranch_scc1 M_prep')
        prep.zero_ready(A, 'M_zr', 'R_exit')
        A('s_branch M_prep\nM_misc:')
    else:
        A('M_rec:\ns_mov_b32 s10, s3')
    prep.gen_misc(A, cfg, 'R_exit')
    A('M_prep:')
    from expr import V, Sg, sel_lt
    l = V('v0')
    def touch(lab, sbase, n):
        A(f'v_lshlrev_b32 v4, 7, v0')
        for k in range(n):
            A(f'buffer_load_dword v30, v4, s[4:7], {sbase} offen\ns_add_u32 {sbase}, {sbase}, 8192')
    def pre_a():
        nb = cfg.get('helpb', 0)
        if nb:
            hh = (Sg('s10') >> 2) * 4 + 2 + ((Sg('s10') >> 1) & 1)
            rec.wait_lanes(A, 'RA_wb', l * 0 + FB + hh * 128, l * 0 + 14, 'R_exit')
            A(f's_lshr_b32 s11, s10, 2\ns_lshl_b32 s11, s11, 2\ns_add_u32 s11, s11, 2\ns_bfe_u32 s33, s10, 0x10001\ns_add_u32 s11, s11, s33\ns_mul_i32 s11, s11, {14*28672}')
            A(f's_and_b32 s33, s10, 1\ns_lshl_b32 s33, s33, 2\ns_add_u32 s33, s33, s9\ns_mul_i32 s33, s33, 50176\ns_add_u32 s11, s11, s33\ns_add_u32 s33, s11, {BF}')
            touch('RA_tb', 's33', nb)
        if cfg.get('locala'): rec.wait_lanes(A, 'RA_wa', sel_lt(l, 1, FA + 2048 + Sg('s10') * 128, FX), sel_lt(l, 1, 7, workers.nfx(cfg)), 'R_exit')
        else: rec.wait_lanes(A, 'RA_wa', sel_lt(l, 1, FA + Sg('s10') * 128, FX), sel_lt(l, 1, 14, workers.nfx(cfg)), 'R_exit')
    c['pre_a'] = pre_a
    def mid_weights(spare):
        if cfg.get('codetouch2', 1):
            A('s_lshl_b32 s33, s3, 2\ns_add_u32 s33, s33, s9')
            rec.code_touch(A, 'M_rec', 'M_end', 's33', 3, 'v2', spare)
        if cfg.get('bvx') and spare == 'v102':
            A(f's_and_b32 s33, s3, 15\ns_lshl_b32 s33, s33, 2\ns_add_u32 s33, s33, s9\ns_mul_i32 s11, s33, 896\nv_lshlrev_b32 v2, 4, v0' + (f'\ns_add_u32 s11, s11, {XF}' if XF else ''))
            A(f'buffer_load_dword {spare}, v2, s[4:7], s11 offen')
    c['mid_weights'] = mid_weights
    hs = cfg.get('halfsig', 0)
    def mid_b(lab, k):
        if k == 0:
            A(f's_lshl_b32 s34, s9, 9\ns_add_u32 s34, s34, {FB}\nv_and_b32 v4, 3, v0\nv_lshlrev_b32 v4, 7, v4\ns_mov_b32 s19, 0x40000')
            A('buffer_load_dword v3, v4, s[4:7], s34 offen sc1')
            return
        A(f's_waitcnt vmcnt(25)\n{lab}_mc:\nv_cmp_gt_u32 vcc, 14, v3\ns_cbranch_vccz {lab}_mo')
        A(f'buffer_load_dword v3, v4, s[4:7], s34 offen sc1\ns_sub_u32 s19, s19, 1\ns_cbranch_scc1 R_exit')
        A(f's_waitcnt vmcnt(0)\ns_branch {lab}_mc\n{lab}_mo:')
    if hs: c['mid_b'] = mid_b
    c['pre_b'] = lambda: rec.wait_lanes(A, 'RB_wb', sel_lt(l, 16, FB + (2048 if hs else 0) + l * 128, FX), sel_lt(l, 16, 14, 0 if cfg.get('amisc') else workers.nfx(cfg)), 'R_exit')
    mode('RM')
    A('s_and_b32 s10, s3, 15\ns_cmp_ge_u32 s3, 16\ns_cbranch_scc1 M_B')
    rec.gen_A(A, c, 'RA', 'R_exit')
    A('R_exit:\ns_endpgm\nM_B:')
    rec.gen_B(A, c, 'RB', 'R_exit')
    A('M_end:')

def generate(cfg={}, header=''):
    K = Asm(); gen_main(K, cfg)
    return build.assemble([(build.NAME + '_kernel', K.lines, 256, 256, 163840, 512, 256)], header)

DOC = """;
"""

if __name__ == '__main__':
    ref = open(f'cdna_kernels/{build.NAME}.s.ref').read().split('\n')
    header = '\n'.join(l for l in ref if l.startswith(';') and '@launch' not in l and 'Override' not in l and 'grid=ceil' not in l) + '\n' + DOC
    import sys, json
    if len(sys.argv) > 2: open(sys.argv[1], 'w').write(generate(json.loads(sys.argv[2]), header))
    else: open(f'cdna_kernels/{build.NAME}.s', 'w').write(generate({}, header))
```

```python
from asmdsl import Asm
from expr import X, V, Sg, Emitter, ev, sel_lt
from layout import *
from rec import code_touch, dstamp, tline, wait_lanes, Wv, vr, wquad, wreg, smf, zero, sentinel_check, SRD
from prep import f32, mfma, srd
import math

sW, sR = 's9', 's10'
sSPIN = 's19'
WSPIN = 0x40000
BACK = ['']
PREV = [1]
ONE = [0]
LASTD = [1]
NV = 4
NQ = 4

def vx_pos(col):
    lc = col - 256; jj = lc.max(0).div(12)
    return sel_lt(col, 256, (col >> 4) * 28672 + (col & 15) * 16, jj * 28672 + (lc - jj * 12 + 16) * 16)

def nfx(cfg): return 16 if (cfg.get('locala') and not cfg.get('fakeloc')) or cfg.get('amisc') else 32

def wait_flag(w, lab, soff, target, tmo, vt='v2'):
    w(f's_cmp_lg_u32 {sW}, 0\ns_cbranch_scc1 {lab}_go\ns_mov_b32 {sSPIN}, {WSPIN}')
    w(f'{lab}:\nbuffer_load_dword {vt}, off, {SRD}, {soff} sc1')
    w(f's_sub_u32 {sSPIN}, {sSPIN}, 1\ns_cbranch_scc1 {tmo}\n{BACK[0]}s_waitcnt vmcnt(0)')
    w(f'v_cmp_gt_u32 vcc, {target}, {vt}\ns_cbranch_vccnz {lab}')
    w(f'{lab}_go:\ns_barrier')

def signal(w, lab, soff, vt='v2'):
    w('s_waitcnt vmcnt(0)\ns_barrier'); w.vm = []
    w(f's_cmp_lg_u32 {sW}, 0\ns_cbranch_scc1 {lab}\nv_mov_b32 {vt}, 1\ns_mov_b64 exec, 1')
    w(f'buffer_atomic_add {vt}, off, {SRD}, {soff} sc1\ns_mov_b64 exec, -1\n{lab}:')

def defer(A, lab, tmo):
    A(f's_cmp_lg_u32 {sW}, 0\ns_cbranch_scc1 {lab}_go\ns_mov_b32 {sSPIN}, {WSPIN}\ns_mov_b32 s11, {MX + 1024}')
    A(f'{lab}:\nbuffer_load_dword v1, off, {SRD}, s11 sc1')
    A(f's_sub_u32 {sSPIN}, {sSPIN}, 1\ns_cbranch_scc1 {tmo}\ns_waitcnt vmcnt(0)\nv_cmp_eq_u32 vcc, -1, v1\ns_cbranch_vccnz {lab}')
    A(f'{lab}_go:\ns_barrier')

def load_w(w, addr_of, ps=range(14)):
    n = 0
    for p in ps:
        for tl in range(7):
            va, pre = addr_of(tl, p)
            w(pre)
            w.vmem(f'buffer_load_dwordx4 {wquad(tl*7 + (p>>1), p&1)}, {va}, {SRD}, s11 offen', f'W{p}')
            n += 1
            if n % 14 == 0 and len(w.vm) > 44: w('s_waitcnt vmcnt(32)'); w.vm = w.vm[-32:]

XB = 56
def xq(p, tt): return XB + ((p & 3) * 2 + tt) * 4
def acc2(tl, tt): return (tl * 2 + tt) * 4
sXB, sXN = 's20', 's21'
vL16 = 'v119'

def x_load(w, p, base):
    for tt in range(2):
        off = p * 1024 + tt * 14336
        w(f's_add_u32 s11, {base}, {off & ~4095}')
        w.vmem(f'buffer_load_dwordx4 {vr(xq(p,tt),4)}, {vL16}, {SRD}, s11 offen offset:{off & 4095}', f'X{p}')

def seg_gemm(w, w_is_a, wload=None):
    for p in range(14):
        w.wait(vm=f'X{p}'); w.wait(vm=f'W{p}')
        for tl in range(7):
            for tt in range(2):
                wq = wquad(tl * 7 + (p >> 1), p & 1); xx = vr(xq(p, tt), 4)
                a, b = (wq, xx) if w_is_a else (xx, wq)
                w(mfma(vr(acc2(tl, tt), 4), a, b, 0 if p == 0 else None))
        if p + 4 < 14: x_load(w, p + 4, sXB)
        if wload and p + 6 < 14: wload(p + 6)
    for p in range(4): x_load(w, p, sXN)

def mx_wait(w, lab, regs, loads, tmo, tmp, light_always=False):
    sl = 's15' if light_always else 's26'
    if light_always: pass
    elif PREV[0]: w(f's_sub_u32 s26, s15, 7168\ns_max_u32 s26, s26, {MX}')
    else: w('s_mov_b32 s26, s15')
    w(f's_mov_b32 {sSPIN}, {WSPIN}')
    if LASTD[0] and not light_always:
        w(f's_cmp_eq_u32 s8, {NSEG-1}\ns_cselect_b32 s11, 7168, 0\ns_sub_u32 s26, s26, s11')
    if ONE[0]: w(f's_cmp_lg_u32 {sW}, 3\ns_cbranch_scc1 {lab}_2')
    w(f'{lab}_1:\nbuffer_load_dword {tmp}, off, {SRD}, {sl} sc1')
    w(f's_sub_u32 {sSPIN}, {sSPIN}, 1\ns_cbranch_scc1 {tmo}\n{BACK[0]}s_waitcnt vmcnt(0)\nv_cmp_eq_u32 vcc, -1, {tmp}\ns_cbranch_vccnz {lab}_1')
    if ONE[0]: w(f'{lab}_2:\ns_barrier')
    w(f'{lab}:')
    loads()
    w(f's_sub_u32 {sSPIN}, {sSPIN}, 1\ns_cbranch_scc1 {tmo}\n{BACK[0]}s_waitcnt vmcnt(0)'); w.vm = []
    sentinel_check(w, regs, tmp)
    w(f's_cbranch_vccnz {lab}')

def gen_V(A, cfg, lab, tmo):
    w = Wv(A, {})
    em = Emitter(A, [f'v{i}' for i in range(2, 30)])
    l = V('v0'); g = l >> 4; n = l & 15; ww = Sg(sW); h = Sg(sR)
    em.emit(l & 63, 'v0')
    em.emit(l * 16, vL16)
    em.emit(sel_lt(l & 2, 1, 0x44444444, 0xEEEEEEEE), 'v118')
    em.emit(g * 7168 + (ww * 112 + n) * 16, 'v117')
    em.emit((ww * 112 + n) * 16 + g * 4, 'v116')
    lin = cfg.get('vxlin')
    if lin:
        for tl in range(7):
            em.emit(ww * 112 + tl * 16 + n, 'v1')
            col = V('v1'); lc = col.max(256) - 256; jj = lc.div(12)
            em.emit(sel_lt(col, 256, (col >> 4) * 28672 + (col & 15) * 16, jj * 28672 + (lc - jj * 12 + 16) * 16) + g * 448, f'v{100+tl}')
    A(f's_mul_i32 s13, {sR}, {14*28672}\ns_add_u32 s13, s13, {BF}')
    A(f's_mul_i32 {sXB}, s12, 28672' + (f'\ns_add_u32 {sXB}, {sXB}, {XF}' if XF else ''))
    wait_lanes(A, f'{lab}_wb', sel_lt(l, 1, FB + h * 128, FX), sel_lt(l, 1, 14, nfx(cfg)), tmo)
    waddr = lambda tl, p: ('v117', f's_add_u32 s11, s13, {p*28672 + tl*256}')
    c2 = dict(cfg, tlreg=97)
    A(f's_mov_b32 s8, s12\ns_mul_i32 s14, {sR}, {1792 if lin else 28672}')
    if cfg.get('vfirst', 1):
        for p in range(4): x_load(w, p, sXB)
        load_w(w, waddr, range(6))
        A(f's_add_u32 {sXN}, {sXB}, {NV*28672}')
        seg_gemm(w, False, lambda p: load_w(w, waddr, [p]))
        tline(A, c2, 1)
        A(f's_branch {lab}_epi')
    else:
        load_w(w, waddr)
        if cfg.get('tl'): A('s_waitcnt vmcnt(0)')
        tline(A, c2, 1)
        for p in range(4): x_load(w, p, sXB)
    A(f'{lab}_loop:')
    A(f's_add_u32 {sXN}, {sXB}, {NV*28672}')
    w.vm = [f'X{p}' for p in range(4) for _ in range(2)]
    seg_gemm(w, False)
    A(f'{lab}_epi:')
    A(f's_mul_i32 s15, s8, {VX_SEG}\ns_add_u32 s15, s15, s14\ns_add_u32 s15, s15, {VXF}')
    for tl in range(7):
        o = 88 + 4 * (tl & 1)
        for tt in range(2):
            a = acc2(tl, tt)
            A(f'v_cvt_pk_bf16_f32 v{o+2*tt}, v{a}, v{a+1}\nv_cvt_pk_bf16_f32 v{o+2*tt+1}, v{a+2}, v{a+3}')
        if lin: A(f'buffer_store_dwordx4 {vr(o,4)}, v{100+tl}, {SRD}, s15 offen sc1')
        else: A(f'buffer_store_dwordx4 {vr(o,4)}, v117, {SRD}, s15 offen offset:{tl*256} sc1')
    A(f's_lshl_b32 s15, s8, 7\ns_add_u32 s15, s15, {FVX}')
    signal(w, f'{lab}_sig', 's15', 'v96')
    if cfg.get('tl'):
        A(f's_cmp_ge_u32 s8, {NV}\ns_cbranch_scc1 {lab}_tl1'); tline(A, c2, 2); A(f'{lab}_tl1:')
    A(f's_mov_b32 {sXB}, {sXN}\ns_add_u32 s8, s8, {NV}\ns_cmp_lt_u32 s8, {NSEG}\ns_cbranch_scc1 {lab}_loop')
    tline(A, c2, 3)
    if cfg.get('nopost'): A('s_endpgm')
    A(f's_mov_b32 s8, s12\ns_mul_i32 s14, {sR}, 7168')
    A(f'{lab}_mloop:')
    zero(w, 28, 28)
    A(f's_mul_i32 s15, s8, 7168\ns_add_u32 s15, s15, {MX}\ns_add_u32 s16, s15, 4096')
    def loads():
        for kk in range(7):
            A(f'buffer_load_dwordx4 {vr(4*kk,4)}, {vL16}, {SRD}, {"s15" if kk < 4 else "s16"} offen offset:{(kk&3)*1024} sc1')
    mx_wait(w, f'{lab}_mx', list(range(28)), loads, tmo, 'v96')
    for tl in range(7):
        for kk in range(7): A(smf(28 + 4 * tl, vr(4 * kk, 4), wreg(tl * 7 + kk), 'v118'))
    A(f's_mul_i32 s15, s8, {VM_SEG}\ns_add_u32 s15, s15, s14\ns_add_u32 s15, s15, {VM}')
    for tl in range(7):
        a = 28 + 4 * tl
        A(f'v_add_f32 v{a}, v{a}, v{a+2}\nv_add_f32 v{a+1}, v{a+1}, v{a+3}\nv_cvt_pk_bf16_f32 v{a}, v{a}, v{a+1}\nv_min_u32 v{a}, -2, v{a}')
        A(f'buffer_store_dword v{a}, v116, {SRD}, s15 offen offset:{tl*256} sc1')
    A(f's_lshl_b32 s15, s8, 7\ns_add_u32 s15, s15, {FVM}')
    signal(w, f'{lab}_sig2', 's15', 'v96')
    A(f's_add_u32 s8, s8, {NV}\ns_cmp_lt_u32 s8, {NSEG}\ns_cbranch_scc1 {lab}_mloop')
    tline(A, c2, 4)
    A('s_endpgm')

def gen_Q(A, cfg, lab, tmo):
    w = Wv(A, {})
    em = Emitter(A, [f'v{i}' for i in range(2, 30)])
    l = V('v0'); g = l >> 4; n = l & 15; ww = Sg(sW); h = Sg(sR)
    sQ = ['s22', 's23', 's24', 's25']
    em.emit(l & 63, 'v0')
    em.emit(l * 16, vL16)
    em.emit(l * 16 + (ww & 1) * 8, 'v118')
    i = n & 7
    em.emit(((g >> 1) * 16 + (i >> 1) * 4 + (i & 1)) * 16 + (g & 1) * 8, 'v117')
    em.emit(((g >> 1) * 16 + (i >> 1) * 4 + (i & 1)) * 16 + (g & 1) * 8 + (ww & 1) * 4, 'v116')
    em.emit(ww * 5120 + l * 16, 'v115')
    em.emit(ww * 1024 + l * 16, 'v114')
    em.emit(ww * 20480 + h * 1024 + l * 16, 'v113')
    em.emit(sel_lt(g, 2, ww * 20480 + ((h >> 2) + 16) * 1024 + ((h & 3) * 16 + n) * 16 + g * 8, OOB), 'v112')
    em.emit(n - g * 4, 'v111')
    A(f's_lshr_b32 s11, {sW}, 1\ns_mul_i32 s14, s11, 7\ns_and_b32 s15, {sW}, 1\ns_lshl_b32 s16, s15, 2\ns_add_u32 s16, s16, s14')
    for u in range(3): A(f's_add_u32 s17, s16, {u}\ns_lshl_b32 {sQ[u]}, s17, 10')
    A(f's_add_u32 s17, s14, 3\ns_lshl_b32 {sQ[3]}, s17, 10')
    A(f's_mul_i32 s13, {sR}, {28*14336}\ns_add_u32 s13, s13, {AF}\ns_mul_i32 s15, s15, 14336')
    def addr(tl, p):
        pre = f's_mul_i32 s11, {sQ[tl>>1]}, 28\ns_add_u32 s11, s11, s13\n'
        pre += f's_add_u32 s11, s11, {14336*(tl&1) + 1024*p}' if tl < 6 else f's_add_u32 s11, s11, s15\ns_add_u32 s11, s11, {1024*p}'
        return vL16, pre
    A(f's_mul_i32 {sXB}, s12, 28672' + (f'\ns_add_u32 {sXB}, {sXB}, {XF}' if XF else ''))
    if cfg.get('nopost'): A('s_endpgm')
    if cfg.get('locala'): wait_lanes(A, f'{lab}_wa', sel_lt(l, 2, FA + h * 128 + l * 2048, FX), sel_lt(l, 2, 7, nfx(cfg)), tmo)
    else: wait_lanes(A, f'{lab}_wa', sel_lt(l, 1, FA + h * 128, FX), sel_lt(l, 1, 14, nfx(cfg)), tmo)
    if cfg.get('deferq'): defer(A, f'{lab}_df', tmo)
    load_w(w, addr)
    w.vm = []
    for p in range(4): x_load(w, p, sXB)
    A('s_mov_b32 s8, s12')
    A(f'{lab}_loop:')
    A(f's_add_u32 {sXN}, {sXB}, {NQ*28672}')
    w.vm = [f'X{p}' for p in range(4) for _ in range(2)]
    seg_gemm(w, True)
    QQ = lambda u, tt: 16 * u + 4 * tt
    for u in range(4):
        for tt in range(2):
            for b in range(2 if u < 3 else 1):
                a = acc2(2 * u + b, tt)
                A(f'v_cvt_pk_bf16_f32 v{88+4*tt+2*b}, v{a}, v{a+1}\nv_cvt_pk_bf16_f32 v{89+4*tt+2*b}, v{a+2}, v{a+3}')
        for tt in range(2):
            for k in range(0, 4 if u < 3 else 2, 2): A(f'v_mov_b64 {vr(QQ(u,tt)+k,2)}, {vr(88+4*tt+k,2)}')
    for u in range(4):
        for kt in range(2):
            A(f's_add_u32 s11, {sXB}, {sQ[u]}' + ('\ns_add_u32 s11, s11, 14336' if kt else ''))
            if u < 3: w.vmem(f'buffer_load_dwordx4 {vr(16*u+8+4*kt,4)}, {vL16}, {SRD}, s11 offen', 'Z')
            else: w.vmem(f'buffer_load_dwordx2 {vr(88+2*kt,2)}, v118, {SRD}, s11 offen', 'Z')
    w.wait(vm='Z')
    SX = {(1, 0): 92, (1, 1): 96, (2, 1): 100}
    for (kt, tt), a in SX.items():
        for u in range(3): A(mfma(vr(a, 4), vr(16 * u + 8 + 4 * (kt - 1), 4), vr(QQ(u, tt), 4), 0 if u == 0 else None))
        A(f'v_mfma_f32_16x16x16_bf16 {vr(a,4)}, {vr(88+2*(kt-1),2)}, {vr(QQ(3,tt),2)}, {vr(a,4)}')
    for (kt, tt), a in SX.items():
        A(f'ds_write_b128 v115, {vr(a,4)} offset:{(2*kt + tt - (1 if kt == 2 else 0))*1024}')
    A('s_waitcnt lgkmcnt(0)\ns_barrier')
    E1, E2, E0 = 92, 96, 100
    A(f's_cmp_ge_u32 {sW}, 2\ns_cbranch_scc1 {lab}_nored')
    def red(dst, off, t0):
        for k in range(4): A(f'ds_read_b128 {vr(dst if k == 0 else t0+16*(k-1),4)}, v114 offset:{k*5120 + off}')
        A('s_waitcnt lgkmcnt(0)')
        for k in range(3):
            for r in (0, 2): A(f'v_pk_add_f32 {vr(dst+r,2)}, {vr(dst+r,2)}, {vr(t0+16*k+r,2)}')
    red(E1, 2048, 8)
    red(E2, 3072, 8)
    A(f'v_mov_b32 v104, 0xff800000\ns_cmp_eq_u32 {sW}, 0\ns_cbranch_scc0 {lab}_t1')
    for r in range(4):
        A(f'v_cmp_le_i32 vcc, {r}, v111\nv_cndmask_b32 v{E1+r}, v104, v{E1+r}, vcc\nv_mov_b32 v{E2+r}, v104')
    A(f's_branch {lab}_nored\n{lab}_t1:')
    for r in range(4): A(f'v_cmp_le_i32 vcc, {r}, v111\nv_cndmask_b32 v{E2+r}, v104, v{E2+r}, vcc')
    A(f'{lab}_nored:')
    A(f's_mul_i32 s15, s8, 7168\ns_add_u32 s15, s15, {MX}')
    KQ = lambda u: 16 * u + 8
    def loads():
        for u in range(4):
            A(f's_lshr_b32 s11, {sQ[u]}, 1\ns_add_u32 s11, s11, s15')
            if u < 3:
                A(f'buffer_load_dwordx2 {vr(KQ(u),2)}, v117, {SRD}, s11 offen sc1\nbuffer_load_dwordx2 {vr(KQ(u)+2,2)}, v117, {SRD}, s11 offen offset:32 sc1')
            else:
                A(f'buffer_load_dword v88, v116, {SRD}, s11 offen sc1\nbuffer_load_dword v89, v116, {SRD}, s11 offen offset:32 sc1')
    mx_wait(w, f'{lab}_mx', [KQ(u) + k for u in range(3) for k in range(4)] + [88, 89], loads, tmo, 'v105')
    for u in range(3): A(f'v_swap_b32 v{KQ(u)+1}, v{KQ(u)+2}')
    for tt in range(2):
        a = 12 + 16 * tt
        for u in range(3): A(mfma(vr(a, 4), vr(KQ(u), 4), vr(QQ(u, tt), 4), 0 if u == 0 else None))
        A(f'v_mfma_f32_16x16x16_bf16 {vr(a,4)}, v[88:89], {vr(QQ(3,tt),2)}, {vr(a,4)}')
    for tt in range(2): A(f'ds_write_b128 v115, {vr(12+16*tt,4)} offset:{tt*1024}')
    A('s_waitcnt lgkmcnt(0)\ns_barrier')
    A(f's_cmp_ge_u32 {sW}, 2\ns_cbranch_scc1 {lab}_nosm')
    red(E0, 0, 8)
    A('s_mov_b32 vcc_lo, -1\ns_mov_b32 vcc_hi, 0')
    for r in range(4): A(f'v_cndmask_b32 v{E0+r}, v104, v{E0+r}, vcc')
    A(f'v_max3_f32 v8, v{E1}, v{E1+1}, v{E1+2}')
    for r in range(E1 + 3, E1 + 11, 2): A(f'v_max3_f32 v8, v8, v{r}, v{r+1}')
    A(f'v_max_f32 v8, v8, v{E1+11}')
    def allred(op):
        A(f'v_mov_b32 v9, v8\nv_permlane16_swap_b32 v8, v9\n{op} v8, v8, v9')
        A(f'v_mov_b32 v9, v8\nv_permlane32_swap_b32 v8, v9\n{op} v8, v8, v9')
    allred('v_max_f32')
    for r in range(E1, E1 + 12, 2): A(f'v_pk_add_f32 {vr(r,2)}, {vr(r,2)}, v[8:9] op_sel_hi:[1,0] neg_lo:[0,1] neg_hi:[0,1]')
    for r in range(E1, E1 + 12): A(f'v_exp_f32 v{r}, v{r}')
    A(f'v_pk_add_f32 v[8:9], {vr(E1,2)}, {vr(E1+2,2)}')
    for r in range(E1 + 4, E1 + 12, 2): A(f'v_pk_add_f32 v[8:9], v[8:9], {vr(r,2)}')
    A('v_add_f32 v8, v8, v9')
    allred('v_add_f32')
    A('v_rcp_f32 v8, v8')
    for r in range(E1, E1 + 12, 2): A(f'v_pk_mul_f32 {vr(r,2)}, {vr(r,2)}, v[8:9] op_sel_hi:[1,0]')
    for k in range(6): A(f'v_cvt_pk_bf16_f32 v{12+k}, v{E1+2*k}, v{E1+2*k+1}\nv_min_u32 v{12+k}, -2, v{12+k}')
    A(f's_mul_i32 s15, s8, {PX_SEG}\ns_add_u32 s15, s15, {PX}')
    A(f'buffer_store_dwordx4 v[12:15], v113, {SRD}, s15 offen sc1\nbuffer_store_dwordx2 v[16:17], v112, {SRD}, s15 offen sc1')
    A(f'{lab}_nosm:')
    A(f's_lshl_b32 s15, s8, 7\ns_add_u32 s15, s15, {FPX}')
    signal(w, f'{lab}_sig', 's15', 'v105')
    A(f's_mov_b32 {sXB}, {sXN}\ns_add_u32 s8, s8, {NQ}\ns_cmp_lt_u32 s8, {NSEG}\ns_cbranch_scc1 {lab}_loop')
    tline(A, dict(cfg, tlreg=106), 4)
    A('s_endpgm')

def gen_T(A, cfg, lab, tmo, fin='s_endpgm'):
    w = Wv(A, {})
    em = Emitter(A, [f'v{i}' for i in range(8, 30)])
    l = V('v0'); g = l >> 4
    A('s_load_dwordx2 s[28:29], s[0:1], 64\ns_load_dwordx2 s[30:31], s[0:1], 80')
    em.emit(l & 63, 'v0')
    A(f"""s_and_b32 s12, {sR}, 15
    s_lshl_b32 s12, s12, 2
    s_add_u32 s12, s12, {sW}
    s_waitcnt lgkmcnt(0)
    s_cmp_lt_u32 {sR}, 16
    s_cselect_b32 s20, s28, s30
    s_cselect_b32 s21, s29, s31
    s_mov_b32 s22, {D*F*2}
    s_mov_b32 s23, 0x20000
    s_movk_i32 s13, 896
    s_cselect_b32 s13, 3584, s13
    s_cselect_b32 s14, 28, 7
    s_movk_i32 s15, 9363
    s_cselect_b32 s15, 2341, s15       ; 65536 / blocks
    s_cselect_b32 s16, 14, 56          ; k quads
    s_mov_b32 s17, {W2F}
    s_cselect_b32 s17, {W1F}, s17
    s_mul_i32 s18, {sW}, 28672""")
    if cfg.get('defert'):
        wait_lanes(A, f'{lab}_wx', l * 0 + FX, l * 0 + nfx(cfg), tmo)
        defer(A, f'{lab}_df', tmo)
    em.emit((l >> 3) * Sg('s13') + (l & 7) * 16, 'v1')
    em.emit(Sg('s18') + (g * 8 + ((l >> 2) & 3)) * 128 + (l & 3) * 16, 'v2')
    em.emit(l * 16, 'v3')
    A('s_lshl_b32 s24, s13, 3')
    for k in range(7):
        A(f's_add_u32 s25, s12, {64*k}\ns_mul_i32 s26, s25, s15\ns_lshr_b32 s26, s26, 16\ns_mul_i32 s27, s26, s14\ns_sub_u32 s27, s25, s27')
        A(f's_lshl_b32 s{40+k}, s27, 2\ns_mul_i32 s{40+k}, s{40+k}, s16\ns_add_u32 s{40+k}, s{40+k}, s26\ns_lshl_b32 s{40+k}, s{40+k}, 10\ns_add_u32 s{40+k}, s{40+k}, s17')
        A(f's_cmp_lt_u32 s25, 392\ns_cselect_b32 s{40+k}, s{40+k}, {OOB}')
        A('s_lshl_b32 s26, s26, 5\ns_mul_i32 s26, s26, s13\ns_lshl_b32 s27, s27, 7\ns_add_u32 s26, s26, s27')
        for r in range(4):
            A(f's_add_u32 m0, s18, {k*4096 + r*1024}')
            w.vmem(f'buffer_load_dwordx4 v1, s[20:23], s26 offen lds', f'U{k}')
            if r < 3: A('s_add_u32 s26, s26, s24')
    A('s_lshl_b32 s24, s16, 10')
    for k in range(7):
        w.wait(vm=f'U{k}')
        for t in range(4):
            o = 8 + 16 * (k & 1) + 4 * t; off = k * 4096 + (t >> 1) * 64 + (t & 1) * 8
            A(f'ds_read_b64_tr_b16 {vr(o,2)}, v2 offset:{off}\nds_read_b64_tr_b16 {vr(o+2,2)}, v2 offset:{off+512}')
        A('s_waitcnt lgkmcnt(0)')
        for t in range(4):
            w.vmem(f'buffer_store_dwordx4 {vr(8+16*(k&1)+4*t,4)}, v3, {SRD}, s{40+k} offen sc1')
            if t < 3: A(f's_add_u32 s{40+k}, s{40+k}, s24')
    A(f's_mov_b32 s15, {FW}')
    signal(w, f'{lab}_sig', 's15', 'v4')
    tline(A, dict(cfg, tlreg=5), 4)
    A(fin)

def gen_F(A, cfg, lab, tmo):
    w = Wv(A, {})
    em = Emitter(A, [f'v{i}' for i in range(8, 30)])
    l = V('v0'); g = l >> 4; n = l & 15; ww = Sg(sW)
    A('s_load_dwordx2 s[28:29], s[0:1], 72\ns_load_dwordx2 s[30:31], s[0:1], 88\ns_load_dwordx2 s[32:33], s[0:1], 0\ns_load_dwordx2 s[34:35], s[0:1], 96')
    wait_lanes(A, f'{lab}_wx', l * 0 + FX, l * 0 + nfx(cfg), tmo)
    em.emit(l * 16, 'v1')
    em.emit(g * 16, 'v3')
    A('s_waitcnt lgkmcnt(0)')
    srd(A, 36, 28, F * 2); srd(A, 40, 30, D * 2); srd(A, 44, 32, S * D * 2); srd(A, 48, 34, S * D * 2)
    xr = lambda tt, p: f'a[{(tt*14+p)*4}:{(tt*14+p)*4+3}]'
    A(f's_mul_i32 s12, {sR}, 28672' + (f'\ns_add_u32 s12, s12, {XF}' if XF else ''))
    for q in range(28):
        if q % 4 == 0: A(f's_add_u32 s11, s12, {q*1024}')
        A(f'buffer_load_dwordx4 {xr(q//14, q%14)}, v1, {SRD}, s11 offen offset:{(q%4)*1024}')
    A(f's_mov_b32 s15, {FW}')
    wait_flag(w, f'{lab}_fw', 's15', 32, tmo)
    c2 = dict(cfg, tlreg=2)
    tline(A, c2, 1)
    WB = lambda buf, q: 32 + buf * 112 + 4 * q
    A(f's_mul_i32 s13, {sW}, {14*28672}\ns_add_u32 s13, s13, {W1F}\ns_mul_i32 s14, {sW}, {14*64}')
    em.emit(ww * 28672 + l * 16, 'v4')
    def wl(buf, q):
        if q % 4 == 0: A(f's_add_u32 s11, s13, {q*1024}')
        w.vmem(f'buffer_load_dwordx4 {vr(WB(buf,q),4)}, v1, {SRD}, s11 offen offset:{(q%4)*1024} sc1', f'W{buf}_{q}')
    def bl(buf): w.vmem(f'buffer_load_dwordx4 {vr(24+4*buf,4)}, v3, s[36:39], s14 offen', f'B{buf}')
    w.vm = []
    bl(0)
    for q in range(28): wl(0, q)
    A('s_mov_b32 s8, 0')
    A(f'{lab}_l1:')
    def block(buf):
        A('s_add_u32 s13, s13, 28672\ns_add_u32 s14, s14, 64')
        bl(1 - buf)
        for p in range(14):
            for b in range(2):
                q = b * 14 + p
                w.wait(vm=f'W{buf}_{q}')
                for tt in range(2): A(mfma(vr(8 + (b * 2 + tt) * 4, 4), vr(WB(buf, q), 4), xr(tt, p), 0 if p == 0 else None))
            wl(1 - buf, 2 * p); wl(1 - buf, 2 * p + 1)
        bb = 24 + 4 * buf
        for tt in range(2):
            for b in range(2):
                a = 8 + (b * 2 + tt) * 4
                for k in range(2):
                    A(f'v_lshlrev_b32 v6, 16, v{bb+2*b+k}\nv_and_b32 v7, 0xffff0000, v{bb+2*b+k}')
                    A(f'v_pk_add_f32 {vr(a+2*k,2)}, {vr(a+2*k,2)}, v[6:7]')
                    A(f'v_max_f32 v{a+2*k}, 0, v{a+2*k}\nv_max_f32 v{a+2*k+1}, 0, v{a+2*k+1}')
                    A(f'v_pk_mul_f32 {vr(a+2*k,2)}, {vr(a+2*k,2)}, {vr(a+2*k,2)}')
                    A(f'v_cvt_pk_bf16_f32 v{a+k}, v{a+2*k}, v{a+2*k+1}')
            A(f'v_mov_b64 {vr(8+tt*4+2,2)}, {vr(16+tt*4,2)}')
            A(f'ds_write_b128 v4, {vr(8+tt*4,4)} offset:{buf*2048 + tt*1024}')
    w.vm = ['B0'] + [f'W0_{q}' for q in range(28)]
    block(0); block(1)
    A(f'v_add_u32 v4, 4096, v4\ns_add_u32 s8, s8, 1\ns_cmp_lt_u32 s8, {1 if cfg.get("noffn") else 7}\ns_cbranch_scc1 {lab}_l1')
    tline(A, c2, 2)
    A(f's_lshl_b32 s16, {sW}, 2\ns_cmp_eq_u32 {sW}, 3\ns_cselect_b32 s16, 11, s16')
    A(f's_mul_i32 s13, s16, {2*57344}\ns_add_u32 s13, s13, {W2F}')
    for t in range(8):
        A(f's_add_u32 s{52+t}, s13, {t*57344}')
    A(f's_cmp_ge_u32 {sW}, 2\ns_cselect_b32 s58, {OOB}, s58\ns_cselect_b32 s59, {OOB}, s59')
    A('s_waitcnt vmcnt(0) lgkmcnt(0)\ns_barrier')
    W2 = lambda buf, t: 32 + (buf * 8 + t) * 4
    HB = lambda buf, tt: 8 + (buf * 2 + tt) * 4
    G = lambda t, tt: f'a[{(t*2+tt)*4}:{(t*2+tt)*4+3}]'
    for r in range(64): A(f'v_accvgpr_write_b32 a{r}, 0')
    A('v_mov_b32 v4, v1\nv_mov_b32 v5, v1')
    def w2l(buf, off):
        for t in range(8): w.vmem(f'buffer_load_dwordx4 {vr(W2(buf,t),4)}, v5, {SRD}, s{52+t} offen offset:{off} sc1', f'V{buf}')
    def hl(buf, off):
        for tt in range(2): w.ds(f'ds_read_b128 {vr(HB(buf,tt),4)}, v4 offset:{off + tt*1024}', f'H{buf}')
    w.vm = []; w.lg = []
    for k in range(3): w2l(k, k * 1024)
    hl(0, 0)
    A('v_add_u32 v5, 3072, v5\ns_mov_b32 s8, 0')
    A(f'{lab}_l2:')
    for k in range(4):
        w2l((k + 3) & 3, k * 1024)
        hl((k + 1) & 1, (k + 1) * 2048)
        w.wait(vm=f'V{k}', lg=f'H{k&1}')
        for t in range(8):
            for tt in range(2): A(mfma(G(t, tt), vr(W2(k, t), 4), vr(HB(k & 1, tt), 4)))
    A(f'v_add_u32 v5, 4096, v5\nv_add_u32 v4, 8192, v4\ns_add_u32 s8, s8, 1\ns_cmp_lt_u32 s8, {1 if cfg.get("noffn") else 14}\ns_cbranch_scc1 {lab}_l2')
    A('s_waitcnt vmcnt(0) lgkmcnt(0)')
    A('s_lshl_b32 s14, s16, 6')
    for k in range(4): A(f'buffer_load_dwordx4 {vr(32+4*k,4)}, v3, s[40:43], s14 offen offset:{k*64}')
    A(f's_lshl_b32 s14, s16, 10\ns_add_u32 s14, s14, s12\ns_add_u32 s14, s14, {GB - XF}\ns_add_u32 s15, s14, 14336')
    A('s_waitcnt vmcnt(0)')
    for k in range(4):
        if k == 3: A(f's_cmp_ge_u32 {sW}, 2\ns_cbranch_scc1 {lab}_gdone')
        for tt in range(2):
            for b in range(2):
                for r in range(4): A(f'v_accvgpr_read_b32 v{48+4*b+r}, a{((2*k+b)*2+tt)*4+r}')
            for j in range(4):
                A(f'v_lshlrev_b32 v6, 16, v{32+4*k+j}\nv_and_b32 v7, 0xffff0000, v{32+4*k+j}')
                A(f'v_pk_add_f32 {vr(48+2*j,2)}, {vr(48+2*j,2)}, v[6:7]')
            for r in range(8): A(f'v_mul_f32 v{56+r}, {f32(-math.log2(math.e))}, v{48+r}')
            for r in range(8): A(f'v_exp_f32 v{56+r}, v{56+r}')
            for r in range(8): A(f'v_add_f32 v{56+r}, 1.0, v{56+r}')
            for r in range(8): A(f'v_rcp_f32 v{56+r}, v{56+r}')
            for j in range(4):
                A(f'v_pk_mul_f32 {vr(48+2*j,2)}, {vr(48+2*j,2)}, {vr(56+2*j,2)}')
                A(f'v_cvt_pk_bf16_f32 v{64+4*tt+j}, v{48+2*j}, v{49+2*j}')
            A(f'buffer_store_dwordx4 {vr(64+4*tt,4)}, v1, {SRD}, {"s15" if tt else "s14"} offen offset:{k*1024} sc1')
    A(f'{lab}_gdone:')
    A(f's_lshl_b32 s15, {sR}, 7\ns_add_u32 s15, s15, {FG}')
    signal(w, f'{lab}_gsig', 's15')
    tline(A, c2, 3)
    if cfg.get('nopost'): A('s_endpgm')
    if cfg.get('out2', 1):
        A(f's_cmp_ge_u32 {sR}, 56\ns_cbranch_scc1 {lab}_end')
        A(f's_mul_i32 s8, {sR}, 4682\ns_lshr_b32 s8, s8, 16\ns_mul_i32 s16, s8, 14\ns_sub_u32 s16, {sR}, s16')
        col = Sg('s16') * 32 + (n >> 2) * 8 + (n & 3)
        em.emit(g * 7168 + col * 16, 'v4')
        em.emit(n * 896 + Sg('s16') * 64 + g * 16 + (ww & 1) * 14336, 'v5')
        em.emit(Sg('s16') * 1024 + l * 16 + (ww & 1) * 14336, 'v6')
        em.emit((l & 1) * (FPX - FVM), 'v7')
        em.emit(ww * 4096 + l * 16, 'v3')
        em.emit((ww & 1) * 2048 + l * 16, 'v123')
        lin = cfg.get('vxlin')
        if lin:
            for b in range(2):
                em.emit(col + 4 * b, 'v126')
                cc = V('v126'); lc = cc.max(256) - 256; jj = lc.div(12)
                em.emit(sel_lt(cc, 256, (cc >> 4) * 28672 + (cc & 15) * 16, jj * 28672 + (lc - jj * 12 + 16) * 16) + g * 448, f'v{124+b}')
        l3 = l & 3
        em.emit(sel_lt(l3, 1, FVX, sel_lt(l3, 2, FG, sel_lt(l3, 3, FVM, FPX))), 'v121')
        em.emit(sel_lt(l3 ^ 1, 1, 1, 16), 'v122')
        A('v_mov_b32 v127, 0')
        A(f's_mul_i32 s17, {sW}, {4*(1792 if lin else 28672)}\ns_mul_i32 s18, {sW}, 28672\ns_lshl_b32 s23, {sW}, 12\ns_lshl_b32 s24, {sW}, 10\ns_add_u32 s24, s24, 16384')
        WX = lambda q, b: 32 + (q * 2 + b) * 4
        PB = lambda q, tt: 72 + (q * 2 + tt) * 4
        A(f'{lab}_l3:')
        if cfg.get('codetouch2', 1): code_touch(A, f'{lab}_l3', f'{lab}_end', sW, 4, 'v27', 'v120', 52)
        A(f's_lshl_b32 s13, s8, 7\ns_cmp_lg_u32 {sW}, 0\ns_cbranch_scc1 {lab}_f1go\ns_mov_b32 {sSPIN}, {WSPIN}')
        if cfg.get('fpre', 1):
            A(f'v_cmp_gt_u32 vcc, v122, v127\ns_and_b32 s11, vcc_lo, 3\ns_cbranch_scc0 {lab}_f1ok')
        A(f'{lab}_f1:\nbuffer_load_dword v2, v121, {SRD}, s13 offen sc1')
        A(f's_sub_u32 {sSPIN}, {sSPIN}, 1\ns_cbranch_scc1 {tmo}\ns_waitcnt vmcnt(0)\nv_cmp_gt_u32 vcc, v122, v2\ns_and_b32 s11, vcc_lo, 3\ns_cbranch_scc1 {lab}_f1')
        A(f'{lab}_f1ok:\ns_and_b32 s28, vcc_lo, 12\n{lab}_f1go:\ns_barrier')
        A(f's_mul_i32 s14, s8, {VX_SEG}\ns_add_u32 s14, s14, s17\ns_add_u32 s14, s14, {VXF}')
        for q in range(4):
            for b in range(2):
                if lin: A(f'buffer_load_dwordx4 {vr(WX(q,b),4)}, v{124+b}, {SRD}, s14 offen sc1')
                else: A(f'buffer_load_dwordx4 {vr(WX(q,b),4)}, v4, {SRD}, s14 offen offset:{b*64} sc1')
            if q < 3: A(f's_add_u32 s14, s14, {1792 if lin else 28672}')
        A('s_mul_i32 s14, s8, 28672')
        A('buffer_load_dwordx4 v[112:115], v5, s[44:47], s14 offen')
        A(f's_add_u32 s21, s14, {GB}\nbuffer_load_dwordx4 v[116:119], v6, {SRD}, s21 offen sc1')
        A(f's_mul_i32 s21, s8, {PX_SEG}\ns_add_u32 s21, s21, {PX}\ns_add_u32 s22, s21, s24\ns_add_u32 s21, s21, s23\ns_add_u32 s25, s21, 20480\ns_add_u32 s26, s22, 20480')
        A(f's_mul_i32 s27, s8, {VM_SEG}\ns_add_u32 s27, s27, s18\ns_add_u32 s27, s27, {VM}')
        def late_loads():
            for q in range(4):
                for tt in range(2): A(f'buffer_load_dwordx4 {vr(PB(q,tt),4)}, v1, {SRD}, {"s25" if tt else "s21"} offen offset:{q*1024} sc1')
            for tt in range(2): A(f'buffer_load_dwordx4 {vr(PB(4,tt),4)}, v1, {SRD}, {"s26" if tt else "s22"} offen sc1')
            for b in range(2): A(f'buffer_load_dwordx4 {vr(WX(4,b),4)}, v4, {SRD}, s27 offen offset:{b*64} sc1')
        if cfg.get('lastdirect', 1):
            A(f's_cmp_eq_u32 s8, {NSEG-1}\ns_cbranch_scc0 {lab}_flags')
            A(f's_mov_b32 s15, {MX + (NSEG-1)*7168}')
            mx_wait(w, f'{lab}_dir', list(range(64, 112)), late_loads, tmo, 'v2', True)
            A(f's_branch {lab}_go')
        A(f'{lab}_flags:\ns_add_u32 s15, s13, {FVM}')
        A(f's_cmp_lg_u32 {sW}, 0\ns_cbranch_scc1 {lab}_f2go\ns_cmp_eq_u32 s28, 0\ns_cbranch_scc1 {lab}_f2go\ns_mov_b32 {sSPIN}, {WSPIN}')
        A(f'{lab}_f2:\nbuffer_load_dword v2, v7, {SRD}, s15 offen sc1')
        A(f's_sub_u32 {sSPIN}, {sSPIN}, 1\ns_cbranch_scc1 {tmo}\ns_waitcnt vmcnt(0)\nv_cmp_gt_u32 vcc, 16, v2\ns_cbranch_vccnz {lab}_f2')
        A(f'{lab}_f2go:\ns_barrier')
        late_loads()
        if cfg.get('fpre', 1): A(f'buffer_load_dword v127, v121, {SRD}, s13 offen offset:512 sc1')
        A(f's_waitcnt vmcnt({1 if cfg.get("fpre", 1) else 0})\n{lab}_go:')
        tline(A, c2, 5)
        for q in range(5):
            for b in range(2):
                for tt in range(2): A(mfma(vr(8 + (tt * 2 + b) * 4, 4), vr(WX(q, b), 4), vr(PB(q, tt), 4), 0 if q == 0 else None))
        for k in range(4): A(f'ds_write_b128 v3, {vr(8+4*k,4)} offset:{k*1024}')
        A(f's_waitcnt lgkmcnt(0)\ns_barrier\ns_cmp_ge_u32 {sW}, 2\ns_cbranch_scc1 {lab}_next')
        for src in range(4):
            for b in range(2): A(f'ds_read_b128 {vr(32+(src*2+b)*4,4)}, v123 offset:{src*4096 + b*1024}')
        A('s_waitcnt lgkmcnt(0)')
        for j in range(4):
            r = 32 + 2 * j
            A(f'v_pk_add_f32 {vr(r,2)}, {vr(r,2)}, {vr(r+8,2)}\nv_pk_add_f32 {vr(r+16,2)}, {vr(r+16,2)}, {vr(r+24,2)}\nv_pk_add_f32 {vr(r,2)}, {vr(r,2)}, {vr(r+16,2)}')
            A(f'v_cvt_pk_bf16_f32 v{r}, v{r}, v{r+1}\nv_and_b32 v{r+1}, 0xffff0000, v{r}\nv_lshlrev_b32 v{r}, 16, v{r}')
            A(f'v_lshlrev_b32 v24, 16, v{116+j}\nv_and_b32 v25, 0xffff0000, v{116+j}')
            A(f'v_pk_mul_f32 {vr(r,2)}, {vr(r,2)}, v[24:25]')
            A(f'v_cvt_pk_bf16_f32 v{r}, v{r}, v{r+1}\nv_and_b32 v{r+1}, 0xffff0000, v{r}\nv_lshlrev_b32 v{r}, 16, v{r}')
            A(f'v_lshlrev_b32 v24, 16, v{112+j}\nv_and_b32 v25, 0xffff0000, v{112+j}')
            A(f'v_pk_add_f32 {vr(r,2)}, {vr(r,2)}, v[24:25]')
            A(f'v_cvt_pk_bf16_f32 v{28+j}, v{r}, v{r+1}')
        if cfg.get('ostsplit'):
            A(f's_cmp_ge_u32 s8, {cfg["ostsplit"]}\ns_cbranch_scc1 {lab}_plain\nbuffer_store_dwordx4 v[28:31], v5, s[48:51], s14 offen sc1\ns_branch {lab}_next\n{lab}_plain:')
        A(f'buffer_store_dwordx4 v[28:31], v5, s[48:51], s14 offen {cfg.get("ost", "")}')
        A(f'{lab}_next:')
        if cfg.get('fpre', 1): A(f's_waitcnt vmcnt(1)')
        A(f's_add_u32 s8, s8, 4\ns_cmp_lt_u32 s8, {NSEG}\ns_cbranch_scc1 {lab}_l3\n{lab}_end:')
    else:
        A(f's_and_b32 s11, {sR}, 3\ns_lshl_b32 s16, s11, 2\ns_cmp_eq_u32 s11, 3\ns_cselect_b32 s16, 11, s16\ns_add_u32 s16, s16, {sW}')
        A(f's_lshr_b32 s11, s11, 1\ns_add_u32 s11, s11, {sW}\ns_cmp_ge_u32 s11, 4\ns_cselect_b32 s17, {OOB}, 0')
        col = Sg('s16') * 32 + (n >> 2) * 8 + (n & 3)
        em.emit(g * 7168 + col * 16 + Sg('s17'), 'v4')
        em.emit(n * 896 + Sg('s16') * 64 + g * 16 + Sg('s17'), 'v5')
        em.emit(Sg('s16') * 1024 + l * 16 + Sg('s17'), 'v6')
        em.emit((l & 1) * (FPX - FVM), 'v7')
        A(f's_lshr_b32 s8, {sR}, 2\ns_mul_i32 s18, {sW}, 10240')
        WX = lambda q, b: 32 + (q * 2 + b) * 4
        A(f'{lab}_l3:')
        A(f's_lshl_b32 s13, s8, 7\ns_add_u32 s15, s13, {FVX}')
        wait_flag(w, f'{lab}_fvx', 's15', 16, tmo)
        A(f's_mul_i32 s14, s8, {VX_SEG}\ns_add_u32 s14, s14, {VXF}')
        for q in range(16):
            for b in range(2): A(f'buffer_load_dwordx4 {vr(WX(q,b),4)}, v4, {SRD}, s14 offen offset:{b*64} sc1')
            if q < 15: A('s_add_u32 s14, s14, 28672')
        A('s_mul_i32 s14, s8, 28672\ns_add_u32 s20, s14, 14336')
        A('buffer_load_dwordx4 v[192:195], v5, s[44:47], s14 offen\nbuffer_load_dwordx4 v[196:199], v5, s[44:47], s20 offen')
        A(f's_add_u32 s15, s13, {FG}')
        wait_flag(w, f'{lab}_fg', 's15', 1, tmo)
        A(f's_add_u32 s21, s14, {GB}\ns_add_u32 s22, s20, {GB}')
        A(f'buffer_load_dwordx4 v[200:203], v6, {SRD}, s21 offen sc1\nbuffer_load_dwordx4 v[204:207], v6, {SRD}, s22 offen sc1')
        A(f's_add_u32 s15, s13, {FVM}')
        A(f's_cmp_lg_u32 {sW}, 0\ns_cbranch_scc1 {lab}_f2go\ns_mov_b32 {sSPIN}, {WSPIN}')
        A(f'{lab}_f2:\nbuffer_load_dword v2, v7, {SRD}, s15 offen sc1')
        A(f's_sub_u32 {sSPIN}, {sSPIN}, 1\ns_cbranch_scc1 {tmo}\n{BACK[0]}s_waitcnt vmcnt(0)\nv_cmp_gt_u32 vcc, 16, v2\ns_cbranch_vccnz {lab}_f2')
        A(f'{lab}_f2go:\ns_barrier')
        tline(A, c2, 5)
        A(f's_mul_i32 s21, s8, {PX_SEG}\ns_add_u32 s21, s21, s18\ns_add_u32 s21, s21, {PX}')
        for k in range(10):
            if k % 4 == 0: A(f's_add_u32 m0, s18, {k*1024}\ns_add_u32 s22, s21, {k*1024}')
            A(f'buffer_load_dwordx4 v1, {SRD}, s22 offen offset:{(k%4)*1024} sc1 lds')
        A(f's_mul_i32 s21, s8, {VM_SEG}\ns_add_u32 s21, s21, {VM}')
        for u in range(4):
            for b in range(2): A(f'buffer_load_dwordx4 {vr(WX(16+u,b),4)}, v4, {SRD}, s21 offen offset:{b*64} sc1')
            if u < 3: A('s_add_u32 s21, s21, 28672')
        A('s_waitcnt vmcnt(8)\ns_barrier')
        w.lg = []
        PB = lambda q, tt: 208 + ((q & 3) * 2 + tt) * 4
        def pl(q):
            for tt in range(2): w.ds(f'ds_read_b128 {vr(PB(q,tt),4)}, v1 offset:{tt*20480 + q*1024}', f'P{q}')
        for q in range(3): pl(q)
        for q in range(20):
            if q + 3 < 20: pl(q + 3)
            w.wait(lg=f'P{q}')
            if q == 16: A('s_waitcnt vmcnt(0)')
            for b in range(2):
                for tt in range(2): A(mfma(vr(8 + (tt * 2 + b) * 4, 4), vr(WX(q, b), 4), vr(PB(q, tt), 4), 0 if q == 0 else None))
        for tt in range(2):
            a = 8 + tt * 8
            for j in range(4):
                r = a + 2 * j
                A(f'v_cvt_pk_bf16_f32 v{r}, v{r}, v{r+1}\nv_and_b32 v{r+1}, 0xffff0000, v{r}\nv_lshlrev_b32 v{r}, 16, v{r}')
                A(f'v_lshlrev_b32 v24, 16, v{200+4*tt+j}\nv_and_b32 v25, 0xffff0000, v{200+4*tt+j}')
                A(f'v_pk_mul_f32 {vr(r,2)}, {vr(r,2)}, v[24:25]')
                A(f'v_cvt_pk_bf16_f32 v{r}, v{r}, v{r+1}\nv_and_b32 v{r+1}, 0xffff0000, v{r}\nv_lshlrev_b32 v{r}, 16, v{r}')
                A(f'v_lshlrev_b32 v24, 16, v{192+4*tt+j}\nv_and_b32 v25, 0xffff0000, v{192+4*tt+j}')
                A(f'v_pk_add_f32 {vr(r,2)}, {vr(r,2)}, v[24:25]')
                A(f'v_cvt_pk_bf16_f32 v{28+j}, v{r}, v{r+1}')
            A(f'buffer_store_dwordx4 v[28:31], v5, s[48:51], {"s20" if tt else "s14"} offen {cfg.get("ost", "")}')
        A(f's_add_u32 s8, s8, 16\ns_cmp_lt_u32 s8, {NSEG}\ns_cbranch_scc1 {lab}_l3')
    if cfg.get('tl') or cfg.get('ds'): A('s_waitcnt vmcnt(0)')
    tline(A, c2, 4)
    dstamp(A, cfg, 7, 215 if cfg.get('out2', 1) else 223, 2)
    A('s_endpgm')
```
